```python
import torch

def _softmax(x, axis=-1):
    return torch.softmax(x, dim=axis)
def _gelu(x):
    return torch.nn.functional.gelu(x, approximate="tanh")
def _silu(x):
    return torch.nn.functional.silu(x)
def _sigmoid(x):
    return torch.sigmoid(x)
def _layernorm(x, axis=-1, eps=1e-5):
    m = x.mean(dim=axis, keepdim=True)
    v = x.var(dim=axis, keepdim=True, unbiased=False)
    return (x - m) / torch.sqrt(v + eps)
def _scatter_add(tgt, idx, src, axis=0):
    return tgt.clone().index_add_(axis, idx, src)
def _segment_sum(src, seg, n):
    out = torch.zeros((n,) + src.shape[1:], dtype=src.dtype)
    return out.index_add_(0, seg, src)
def _pad(x, pw):
    flat = tuple(v for pair in reversed(pw) for v in pair)
    return torch.nn.functional.pad(x, flat)

kernel_name = 'sequential_preLN__softmax_full_mha__geglu_ffn__prompt'

def setup_inputs():

    _w = (lambda a: (lambda t: t.to(torch.bfloat16) if t.is_floating_point() else t)(torch.as_tensor(a)))
    def _A_setup():
        B, S, D = 1, 2048, 512
        return {
            "x": _w((lambda *s: torch.randn(*s, dtype=torch.bfloat16) * 0.05)(B, S, D)),
            "wqkv": _w((lambda *s: torch.randn(*s, dtype=torch.bfloat16) * 0.05)(D, 3 * D)),
            "wo": _w((lambda *s: torch.randn(*s, dtype=torch.bfloat16) * 0.05)(D, D)),
        }
    _A_in = _A_setup()

    def _B_setup():
        B, S, D, F = 1, 2048, 512, 1792
        return {
            "x": _w((lambda *s: torch.randn(*s, dtype=torch.bfloat16) * 0.05)(B, S, D)),
            "w_gate": _w((lambda *s: torch.randn(*s, dtype=torch.bfloat16) * 0.05)(D, F)),
            "w_up": _w((lambda *s: torch.randn(*s, dtype=torch.bfloat16) * 0.05)(D, F)),
            "w_down": _w((lambda *s: torch.randn(*s, dtype=torch.bfloat16) * 0.05)(F, D)),
        }
    _B_in = _B_setup()

    return {
        "A_x": _A_in["x"],
        "A_wqkv": _A_in["wqkv"],
        "A_wo": _A_in["wo"],
        "B_x": _B_in["x"],
        "B_w_gate": _B_in["w_gate"],
        "B_w_up": _B_in["w_up"],
        "B_w_down": _B_in["w_down"],
    }

def reference(A_x, A_wqkv, A_wo, B_x, B_w_gate, B_w_up, B_w_down):
    def _A_ref(x, wqkv, wo):
        B, S, D = x.shape
        H = 32; Dh = D // H
        qkv = (lambda x, *d: x.permute(*d))((x @ wqkv).reshape(B, S, 3, H, Dh), 2, 0, 3, 1, 4)
        q, k, v = qkv[0], qkv[1], qkv[2]
        scale = Dh ** -0.5
        scores = torch.einsum("bhqd,bhkd->bhqk", q, k) * scale
        p = _softmax(scores, axis=-1)
        o = torch.einsum("bhqk,bhkd->bhqd", p, v)
        return (lambda x, *d: x.permute(*d))(o, 0, 2, 1, 3).reshape(B, S, D) @ wo

    def _B_ref(x, w_gate, w_up, w_down):
        return (_gelu(x @ w_gate) * (x @ w_up)) @ w_down

    x = A_x
    h = x + _A_ref(_layernorm(x, axis=-1), A_wqkv, A_wo)
    h2 = h + _B_ref(_layernorm(h, axis=-1), B_w_gate, B_w_up, B_w_down)
    return h2
```

```python
import sys, math, struct

NAME = "sequential_preLN__softmax_full_mha__geglu_ffn__prompt"

MB = 1 << 20
WS_Q = 0
WS_K = 2 * MB
WS_V = 4 * MB
WS_O = 6 * MB
WS_H = 8 * MB
WS_A = 10 * MB
WS_WO = 17 * MB
WS_WD = 18 * MB
WS_GU = 20 * MB
WS_CS = 24 * MB
WS_ST = 25 * MB
WS_SIZE = 26 * MB

ARG_X, ARG_WQKV, ARG_WO, ARG_BX, ARG_WG, ARG_WU, ARG_WD, ARG_OUT, ARG_DBG, ARG_WS = [8 * i for i in range(10)]

ONES_BF16 = 0x3F803F80


def f32bits(x):
    return struct.unpack("<I", struct.pack("<f", x))[0]


class Asm:
    def __init__(self):
        self.L = []

    def __call__(self, s):
        for line in s.strip("\n").split("\n"):
            self.L.append("    " + line.strip())

    def label(self, s):
        self.L.append(s + ":")

    def raw(self, s):
        self.L.append(s)

    def text(self):
        return "\n".join(self.L) + "\n"


def vr(b, n=4):
    return "v[%d:%d]" % (b, b + n - 1)


def ar(b, n=4):
    return "a[%d:%d]" % (b, b + n - 1)


def srd(a, sbase, sptr, nbytes):
    a("s_mov_b32 s%d, s%d" % (sbase, sptr))
    a("s_mov_b32 s%d, s%d" % (sbase + 1, sptr + 1))
    a("s_mov_b32 s%d, 0x%x" % (sbase + 2, nbytes))
    a("s_mov_b32 s%d, 0x00020000" % (sbase + 3))


def kernel_begin(a, name):
    a.raw(".globl %s" % name)
    a.raw(".p2align 8")
    a.raw(".type %s,@function" % name)
    a.label(name)


def kernel_desc(name, nvgpr, nagpr, nsgpr=96):
    acc = (nvgpr + 3) // 4 * 4
    nfv = acc + nagpr if nagpr else nvgpr
    return """.p2align 6
.amdhsa_kernel %s
  .amdhsa_next_free_vgpr %d
  .amdhsa_next_free_sgpr %d
  .amdhsa_accum_offset %d
  .amdhsa_group_segment_fixed_size 0
  .amdhsa_kernarg_size 80
  .amdhsa_user_sgpr_count 2
  .amdhsa_user_sgpr_kernarg_segment_ptr 1
  .amdhsa_system_sgpr_workgroup_id_x 1
.end_amdhsa_kernel
""" % (name, nfv, nsgpr, acc)


def interleave(main, fill, per=None):
    out = []
    n = len(main)
    fi = 0
    for i, m in enumerate(main):
        out.append(m)
        tgt = (len(fill) * (i + 1) + n - 1) // n if per is None else min(len(fill), per * (i + 1))
        while fi < tgt:
            out.append(fill[fi])
            fi += 1
    out += fill[fi:]
    return out


def make_sel(a, vlane, vsel, vt):
    a("v_lshrrev_b32 v%d, 2, v%d" % (vt, vlane))
    a("v_lshrrev_b32 v%d, 4, v%d" % (vsel, vlane))
    a("v_xor_b32 v%d, v%d, v%d" % (vt, vt, vsel))
    a("v_and_b32 v%d, 1, v%d" % (vt, vt))
    a("v_add_u32 v%d, -1, v%d" % (vt, vt))
    a("v_and_b32 v%d, 0x%x, v%d" % (vsel, ONES_BF16, vt))
    for i in range(1, 4):
        a("v_mov_b32 v%d, v%d" % (vsel + i, vsel))


def split_hi_lo_A(a, vc, vdst, vt, smask):
    a("v_cvt_pk_bf16_f32 v%d, v%d, v%d" % (vt, vc, vc))
    a("v_and_b32 v%d, s%d, v%d" % (vt, smask, vt))
    a("v_sub_f32 v%d, v%d, v%d" % (vt, vc, vt))
    a("v_cvt_pk_bf16_f32 v%d, v%d, v%d" % (vdst, vc, vt))
    a("v_mov_b32 v%d, v%d" % (vdst + 1, vdst))
    a("v_mov_b32 v%d, 0" % (vdst + 2))
    a("v_mov_b32 v%d, 0" % (vdst + 3))


def split_hi_lo_B(a, vm, vdst, vt, smask):
    a("v_cvt_pk_bf16_f32 v%d, v%d, v%d" % (vdst, vm, vm))
    a("v_and_b32 v%d, s%d, v%d" % (vt, smask, vdst))
    a("v_sub_f32 v%d, v%d, v%d" % (vt, vm, vt))
    a("v_cvt_pk_bf16_f32 v%d, v%d, v%d" % (vdst + 1, vt, vt))
    a("v_mov_b32 v%d, 0" % (vdst + 2))
    a("v_mov_b32 v%d, 0" % (vdst + 3))


def sum_halves(a, v, vt):
    a("v_mov_b32 v%d, v%d" % (vt, v))
    a("s_nop 1")
    a("v_permlane32_swap_b32 v%d, v%d" % (v, vt))
    a("s_nop 1")
    a("v_add_f32 v%d, v%d, v%d" % (v, v, vt))


SLOT = 28672
NSLOT = 5


def slot_base_adjust(stage):
    slot = stage % NSLOT
    return (slot // 2) * 2 * SLOT, (slot % 2) * SLOT


def gen_k1(a):
    name = "k1_qkv_kernel"
    kernel_begin(a, name)
    LDS_SCR = NSLOT * SLOT
    S_WAVE, S_RB, S_CG, S_KC, S_SX, S_SW, S_T0, S_T1, S_MASK, S_M0X, S_M0W = 24, 25, 26, 27, 28, 29, 30, 31, 32, 33, 34
    V_LANE = 1
    V_T = 2
    V_DX = 8
    V_DW = 12
    V_AX = 13
    V_AW = 17
    V_SEL = 24
    V_SQ = 28
    V_X = [32, 36]
    V_W = [[40, 44, 48], [52, 56, 60]]
    V_ACC = [64, 80, 96]
    V_SXA = 112
    V_CS = [116, 120, 124]
    V_TMP = 128
    a("s_cmp_ge_u32 s2, 256")
    a("s_cbranch_scc1 L_k1_end")
    a("s_load_dwordx4 s[4:7], s[0:1], %d" % ARG_X)
    a("s_load_dwordx2 s[8:9], s[0:1], %d" % ARG_WS)
    a("v_lshrrev_b32 v%d, 6, v0" % V_T)
    a("v_and_b32 v%d, 63, v0" % V_LANE)
    a("v_readfirstlane_b32 s%d, v%d" % (S_WAVE, V_T))
    a("s_and_b32 s3, s2, 7")
    a("s_lshr_b32 s%d, s2, 3" % S_T0)
    a("s_lshr_b32 s%d, s3, 1" % S_RB)
    a("s_lshl_b32 s%d, s%d, 2" % (S_RB, S_RB))
    a("s_and_b32 s%d, s%d, 3" % (S_T1, S_T0))
    a("s_add_u32 s%d, s%d, s%d" % (S_RB, S_RB, S_T1))
    a("s_and_b32 s%d, s3, 1" % S_CG)
    a("s_lshl_b32 s%d, s%d, 3" % (S_CG, S_CG))
    a("s_lshr_b32 s%d, s%d, 2" % (S_T1, S_T0))
    a("s_add_u32 s%d, s%d, s%d" % (S_CG, S_CG, S_T1))
    a("s_add_u32 s%d, s%d, s%d" % (S_KC, S_RB, S_CG))
    a("s_and_b32 s%d, s%d, 7" % (S_KC, S_KC))
    a("v_lshrrev_b32 v%d, 3, v%d" % (V_T, V_LANE))
    a("v_lshlrev_b32 v%d, 12, v%d" % (V_T, V_T))
    a("v_and_b32 v%d, 7, v%d" % (V_T + 1, V_LANE))
    a("v_lshrrev_b32 v%d, 2, v%d" % (V_T + 2, V_LANE))
    a("v_and_b32 v%d, 4, v%d" % (V_T + 2, V_T + 2))
    a("v_xor_b32 v%d, v%d, v%d" % (V_T + 1, V_T + 1, V_T + 2))
    for q in range(4):
        a("v_xor_b32 v%d, %d, v%d" % (V_T + 3, q, V_T + 1))
        a("v_lshl_add_u32 v%d, v%d, 4, v%d" % (V_DX + q, V_T + 3, V_T))
    a("v_lshrrev_b32 v%d, 2, v%d" % (V_T, V_LANE))
    a("v_mul_u32_u24 v%d, 3072, v%d" % (V_T, V_T))
    a("v_and_b32 v%d, 3, v%d" % (V_T + 1, V_LANE))
    a("v_lshl_add_u32 v%d, v%d, 4, v%d" % (V_DW, V_T + 1, V_T))
    a("s_lshl_b32 s%d, s%d, 2" % (S_T0, S_RB))
    a("s_add_u32 s%d, s%d, s%d" % (S_T0, S_T0, S_WAVE))
    a("s_lshl_b32 s%d, s%d, 15" % (S_SX, S_T0))
    a("s_mul_i32 s%d, s%d, %d" % (S_SW, S_WAVE, 16 * 3072))
    a("s_lshl_b32 s%d, s%d, 6" % (S_T1, S_CG))
    a("s_add_u32 s%d, s%d, s%d" % (S_SW, S_SW, S_T1))
    a("s_lshl_b32 s%d, s%d, 12" % (S_M0X, S_WAVE))
    a("s_mul_i32 s%d, s%d, 3072" % (S_M0W, S_WAVE))
    a("s_add_u32 s%d, s%d, 16384" % (S_M0W, S_M0W))
    a("s_mov_b32 s%d, 0xffff0000" % S_MASK)
    a("s_waitcnt lgkmcnt(0)")
    srd(a, 12, 4, 2048 * 1024)
    srd(a, 16, 6, 512 * 3072)
    srd(a, 20, 8, WS_SIZE)

    def issue_stage(st):
        slot = st % NSLOT
        a("s_lshl_b32 s%d, s%d, 7" % (S_T0, S_KC))
        a("s_add_u32 s%d, s%d, s%d" % (S_T0, S_T0, S_SX))
        a("s_add_u32 m0, s%d, %d" % (S_M0X, slot * SLOT))
        a("s_mul_i32 s%d, s%d, %d" % (S_T1, S_KC, 64 * 3072))
        for q in range(4):
            a("buffer_load_dwordx4 v%d, s[12:15], s%d offen offset:%d lds" % (V_DX + q, S_T0, q * 1024))
        a("s_add_u32 m0, s%d, %d" % (S_M0W, slot * SLOT))
        a("s_add_u32 s%d, s%d, s%d" % (S_T1, S_T1, S_SW))
        for s in range(3):
            a("buffer_load_dwordx4 v%d, s[16:19], s%d offen offset:%d lds" % (V_DW, S_T1, s * 1024))
        a("s_add_u32 s%d, s%d, 1" % (S_KC, S_KC))
        a("s_and_b32 s%d, s%d, 7" % (S_KC, S_KC))

    for st in range(NSLOT):
        issue_stage(st)
    a("v_and_b32 v%d, 31, v%d" % (V_T, V_LANE))
    a("v_and_b32 v%d, 3, v%d" % (V_T + 1, V_LANE))
    a("v_lshrrev_b32 v%d, 2, v%d" % (V_T + 2, V_T))
    a("v_lshlrev_b32 v%d, 7, v%d" % (V_T + 2, V_T + 2))
    a("v_lshl_add_u32 v%d, v%d, 10, v%d" % (V_T + 2, V_T + 1, V_T + 2))
    a("v_add_u32 v%d, s%d, v%d" % (V_T + 2, S_M0X, V_T + 2))
    a("v_lshrrev_b32 v%d, 1, v%d" % (V_T + 3, V_T))
    a("v_and_b32 v%d, 4, v%d" % (V_T + 3, V_T + 3))
    a("v_or_b32 v%d, v%d, v%d" % (V_T + 3, V_T + 3, V_T + 1))
    a("v_lshrrev_b32 v%d, 5, v%d" % (V_T + 4, V_LANE))
    a("v_xor_b32 v%d, v%d, v%d" % (V_T + 3, V_T + 3, V_T + 4))
    a("v_bfe_u32 v%d, v%d, 2, 2" % (V_T + 5, V_LANE))
    a("v_lshl_add_u32 v%d, v%d, 3, v%d" % (V_T + 5, V_T + 4, V_T + 5))
    a("v_lshlrev_b32 v%d, 6, v%d" % (V_T + 5, V_T + 5))
    a("v_bfe_u32 v%d, v%d, 4, 1" % (V_T + 4, V_LANE))
    a("v_lshl_add_u32 v%d, v%d, 5, v%d" % (V_T + 5, V_T + 4, V_T + 5))
    a("v_lshl_add_u32 v%d, v%d, 3, v%d" % (V_T + 5, V_T + 1, V_T + 5))
    for pos in range(4):
        a("s_add_u32 s%d, s%d, %d" % (S_T0, S_WAVE, pos))
        a("s_and_b32 s%d, s%d, 3" % (S_T0, S_T0))
        a("s_lshl_b32 s%d, s%d, 1" % (S_T1, S_T0))
        a("v_xor_b32 v%d, s%d, v%d" % (V_T + 4, S_T1, V_T + 3))
        a("v_lshl_add_u32 v%d, v%d, 4, v%d" % (V_AX + pos, V_T + 4, V_T + 2))
        a("s_mul_i32 s%d, s%d, 3072" % (S_T1, S_T0))
        a("s_add_u32 s%d, s%d, 16384" % (S_T1, S_T1))
        a("v_add_u32 v%d, s%d, v%d" % (V_AW + pos, S_T1, V_T + 5))
    make_sel(a, V_LANE, V_SEL, V_T)
    a("v_mov_b32 v%d, 0" % V_SQ)
    a("v_mov_b32 v%d, 0" % (V_SQ + 1))

    cur_base = [0]

    def reads(P):
        st, pos = P // 4, P % 4
        base, imm = slot_base_adjust(st)
        out = []
        if base != cur_base[0]:
            d = base - cur_base[0]
            for r in list(range(V_AX, V_AX + 4)) + list(range(V_AW, V_AW + 4)):
                out.append("v_add_u32 v%d, %d, v%d" % (r, d, r) if d > 0 else "v_subrev_u32 v%d, %d, v%d" % (r, -d, r))
            cur_base[0] = base
        b = P % 2
        out.append("ds_read_b128 %s, v%d offset:%d" % (vr(V_X[b]), V_AX + pos, imm))
        for s in range(3):
            for rd in range(2):
                out.append("ds_read_b64_tr_b16 %s, v%d offset:%d" % (vr(V_W[b][s] + 2 * rd, 2), V_AW + pos, imm + s * 1024 + rd * 256))
        return out

    a("s_waitcnt vmcnt(28)")
    a("s_barrier")
    for l in reads(0):
        a(l)
    for P in range(32):
        st, pos = P // 4, P % 4
        b = P % 2
        waited = False
        if pos == 3 and P < 31:
            j = st + 1
            n = 7 * (min(j + 3, 7) - j)
            a("s_waitcnt vmcnt(%d) lgkmcnt(0)" % n)
            a("s_barrier")
            waited = True
            if st + 5 < 8:
                issue_stage(st + 5)
        if P < 31:
            for l in reads(P + 1):
                a(l)
        if not waited:
            a("s_waitcnt lgkmcnt(%d)" % (7 if P < 31 else 0))
        X = vr(V_X[b])
        c = lambda r, n=16: ("0" if P == 0 else vr(r, n))
        m = []
        m.append("v_mfma_f32_32x32x16_bf16 %s, %s, %s, %s" % (vr(V_ACC[0], 16), vr(V_W[b][0]), X, c(V_ACC[0])))
        m.append("v_mfma_f32_32x32x16_bf16 %s, %s, %s, %s" % (vr(V_ACC[1], 16), vr(V_W[b][1]), X, c(V_ACC[1])))
        m.append("v_mfma_f32_32x32x16_bf16 %s, %s, %s, %s" % (vr(V_ACC[2], 16), X, vr(V_W[b][2]), c(V_ACC[2])))
        m.append("v_mfma_f32_16x16x32_bf16 %s, %s, %s, %s" % (vr(V_SXA), vr(V_SEL), X, c(V_SXA, 4)))
        if pos == 0:
            for s in range(3):
                m.append("v_mfma_f32_16x16x32_bf16 %s, %s, %s, %s" % (vr(V_CS[s]), vr(V_SEL), vr(V_W[b][s]), c(V_CS[s], 4)))
        f = []
        for d in range(4):
            t0, t1 = V_TMP + 2 * (d % 2), V_TMP + 2 * (d % 2) + 1
            f.append("v_lshlrev_b32 v%d, 16, v%d" % (t0, V_X[b] + d))
            f.append("v_and_b32 v%d, s%d, v%d" % (t1, S_MASK, V_X[b] + d))
            f.append("v_fmac_f32 v%d, v%d, v%d" % (V_SQ, t0, t0))
            f.append("v_fmac_f32 v%d, v%d, v%d" % (V_SQ + 1, t1, t1))
        for l in interleave(m, f, per=5):
            a(l)
        if P == 30:
            a("v_and_b32 v%d, 31, v%d" % (V_T, V_LANE))
            a("v_lshlrev_b32 v%d, 2, v%d" % (V_T, V_T))
            a("s_mul_i32 s%d, s%d, 384" % (S_T0, S_WAVE))
            a("s_add_u32 s%d, s%d, %d" % (S_T0, S_T0, LDS_SCR))
            a("v_add_u32 v%d, s%d, v%d" % (V_T + 1, S_T0, V_T))
            for s in range(3):
                a("ds_write_b32 v%d, v%d offset:%d" % (V_T + 1, V_CS[s], s * 128))
    a("s_waitcnt lgkmcnt(0)")
    a("s_barrier")
    a("v_lshrrev_b32 v%d, 5, v%d" % (V_T + 2, V_LANE))
    a("v_mul_u32_u24 v%d, 768, v%d" % (V_T + 3, V_T + 2))
    a("v_add_u32 v%d, v%d, v%d" % (V_T + 3, V_T + 3, V_T))
    a("v_add_u32 v%d, %d, v%d" % (V_T + 3, LDS_SCR, V_T + 3))
    VC = V_TMP + 4
    for s in range(3):
        a("ds_read2_b32 %s, v%d offset0:%d offset1:%d" % (vr(VC + 2 * s, 2), V_T + 3, s * 32, s * 32 + 96))
    a("v_add_f32 v%d, v%d, v%d" % (V_SQ, V_SQ, V_SQ + 1))
    sum_halves(a, V_SQ, V_SQ + 1)
    V_MU, V_RS = V_SQ + 2, V_SQ + 3
    a("v_mul_f32 v%d, 0x%x, v%d" % (V_MU, f32bits(1.0 / 512), V_SXA))
    a("v_mul_f32 v%d, 0x%x, v%d" % (V_SQ, f32bits(1.0 / 512), V_SQ))
    a("v_fma_f32 v%d, -v%d, v%d, v%d" % (V_SQ, V_MU, V_MU, V_SQ))
    a("v_max_f32 v%d, 0, v%d" % (V_SQ, V_SQ))
    a("v_add_f32 v%d, 0x%x, v%d" % (V_SQ, f32bits(1e-5), V_SQ))
    a("v_rsq_f32 v%d, v%d" % (V_RS, V_SQ))
    a("v_sub_f32 v%d, 0, v%d" % (V_MU, V_MU))
    a("s_lshl_b32 s%d, s%d, 7" % (S_T0, S_WAVE))
    a("s_add_u32 s%d, s%d, %d" % (S_T0, S_T0, LDS_SCR + 1536))
    a("v_add_u32 v%d, s%d, v%d" % (V_T + 1, S_T0, V_T))
    a("ds_write_b32 v%d, v%d" % (V_T + 1, V_RS))
    VB = V_X[0]
    split_hi_lo_B(a, V_MU, VB, V_T + 4, S_MASK)
    a("v_lshlrev_b32 v%d, 4, v%d" % (V_T + 2, V_T + 2))
    a("v_add_u32 v%d, s%d, v%d" % (V_T + 2, S_T0, V_T + 2))
    VR = V_TMP + 12
    a("s_waitcnt lgkmcnt(0)")
    for q in range(4):
        a("ds_read_b128 %s, v%d offset:%d" % (vr(VR + 4 * q), V_T + 2, q * 32))
    for s in range(3):
        a("v_add_f32 v%d, v%d, v%d" % (VC + 2 * s, VC + 2 * s, VC + 2 * s + 1))
        split_hi_lo_A(a, VC + 2 * s, V_W[0][s], V_T + 4, S_MASK)
    a("s_nop 1")
    a("v_mfma_f32_32x32x16_bf16 %s, %s, %s, %s" % (vr(V_ACC[0], 16), vr(V_W[0][0]), vr(VB), vr(V_ACC[0], 16)))
    a("v_mfma_f32_32x32x16_bf16 %s, %s, %s, %s" % (vr(V_ACC[1], 16), vr(V_W[0][1]), vr(VB), vr(V_ACC[1], 16)))
    a("v_mfma_f32_32x32x16_bf16 %s, %s, %s, %s" % (vr(V_ACC[2], 16), vr(VB), vr(V_W[0][2]), vr(V_ACC[2], 16)))
    V_RQ = V_SQ
    a("v_mul_f32 v%d, 0x%x, v%d" % (V_RQ, f32bits(0.25 * math.log2(math.e)), V_RS))
    a("v_lshlrev_b32 v%d, 4, v%d" % (V_T, V_LANE))
    a("s_lshl_b32 s%d, s%d, 2" % (S_T0, S_RB))
    a("s_add_u32 s%d, s%d, s%d" % (S_T0, S_T0, S_WAVE))
    a("s_lshl_b32 s%d, s%d, 10" % (S_T0, S_T0))
    a("s_lshl_b32 s%d, s%d, 17" % (S_T1, S_CG))
    a("s_add_u32 s%d, s%d, s%d" % (S_T0, S_T0, S_T1))
    a("s_add_u32 s%d, s%d, 65536" % (S_T1, S_T0))
    a("s_add_u32 s35, s%d, %d" % (S_T0, WS_K))
    a("s_add_u32 s36, s%d, %d" % (S_T1, WS_K))
    a("s_add_u32 s37, s%d, %d" % (S_T0, WS_V))
    a("v_bfe_u32 v%d, v%d, 4, 1" % (V_T + 1, V_LANE))
    a("v_lshlrev_b32 v%d, 16, v%d" % (V_T + 1, V_T + 1))
    a("v_lshrrev_b32 v%d, 5, v%d" % (V_T + 2, V_LANE))
    a("v_lshl_add_u32 v%d, v%d, 8, v%d" % (V_T + 1, V_T + 2, V_T + 1))
    a("v_and_b32 v%d, 15, v%d" % (V_T + 2, V_LANE))
    a("v_lshl_add_u32 v%d, v%d, 4, v%d" % (V_T + 1, V_T + 2, V_T + 1))
    a("s_nop 4")
    VO = V_TMP + 28
    k = 0
    for blk, sc, soffs in ((0, V_RQ, (S_T0, S_T1)), (1, V_RS, (35, 36))):
        for half in range(2):
            o = VO + 4 * k
            k += 1
            for i in range(8):
                r = V_ACC[blk] + 8 * half + i
                a("v_mul_f32 v%d, v%d, v%d" % (r, sc, r))
            for i in range(4):
                r = V_ACC[blk] + 8 * half + 2 * i
                a("v_cvt_pk_bf16_f32 v%d, v%d, v%d" % (o + i, r, r + 1))
            a("buffer_store_dwordx4 %s, v%d, s[20:23], s%d offen" % (vr(o), V_T, soffs[half]))
    a("s_waitcnt lgkmcnt(0)")
    for half in range(2):
        o = VO + 4 * k
        k += 1
        for i in range(8):
            r = V_ACC[2] + 8 * half + i
            a("v_mul_f32 v%d, v%d, v%d" % (r, VR + 8 * half + i, r))
        for i in range(4):
            r = V_ACC[2] + 8 * half + 2 * i
            a("v_cvt_pk_bf16_f32 v%d, v%d, v%d" % (o + i, r, r + 1))
        a("buffer_store_dwordx4 %s, v%d, s[20:23], s37 offen offset:%d" % (vr(o), V_T + 1, half * 512))
    a.label("L_k1_end")
    a("s_endpgm")
    return name, 184, 0, (256, 256, LDS_SCR + 2048)


def gen_k2(a):
    name = "k2_attn_kernel"
    kernel_begin(a, name)
    S_WAVE, S_H, S_QB, S_T0, S_T1, S_T2, S_T3 = 40, 41, 42, 43, 44, 45, 46
    S_ITER, S_SYNC, S_PASS, S_NT = 47, 48, 49, 50
    S_TASK, S_STG, S_DST0, S_DST1, S_TYPE = 51, 52, 53, 54, 55
    S_VMASK = 56
    S_CS = 58
    V_LANE, V_L16, V_T = 1, 2, 3
    V_KA, V_VA = 10, 11
    V_Q = 12
    V_K = [16, 20]
    V_V = [24, 32]
    V_P = 40
    V_CM = 48
    V_S = [64, 80]
    V_O = 96
    V_MAX = 112
    V_PK = 113
    V_SEL = 116
    V_PCS = [120, 124]
    STG = 131072
    a("s_cmp_ge_u32 s2, 256")
    a("s_cbranch_scc1 L_k2_end")
    a("s_load_dwordx2 s[8:9], s[0:1], %d" % ARG_WS)
    a("s_load_dwordx2 s[4:5], s[0:1], %d" % ARG_WO)
    a("s_load_dwordx4 s[24:27], s[0:1], %d" % ARG_WG)
    a("s_load_dwordx2 s[6:7], s[0:1], %d" % ARG_WD)
    a("v_lshrrev_b32 v%d, 6, v0" % V_T)
    a("v_and_b32 v%d, 63, v0" % V_LANE)
    a("v_readfirstlane_b32 s%d, v%d" % (S_WAVE, V_T))
    a("v_lshlrev_b32 v%d, 4, v%d" % (V_L16, V_LANE))
    a("s_and_b32 s%d, s2, 7" % S_H)
    a("s_lshl_b32 s%d, s%d, 2" % (S_H, S_H))
    a("s_lshr_b32 s%d, s2, 6" % S_T0)
    a("s_add_u32 s%d, s%d, s%d" % (S_H, S_H, S_T0))
    a("s_lshr_b32 s%d, s2, 3" % S_QB)
    a("s_and_b32 s%d, s%d, 7" % (S_QB, S_QB))
    a("s_lshl_b32 s%d, s%d, 16" % (S_T0, S_H))
    a("s_lshl_b32 s%d, s%d, 10" % (S_T1, S_WAVE))
    a("s_add_u32 s%d, s%d, s%d" % (S_T0, S_T0, S_T1))
    a("s_lshl_b32 s%d, s%d, 13" % (S_T2, S_QB))
    a("s_add_u32 s%d, s%d, s%d" % (S_T3, S_T0, S_T2))
    a("s_waitcnt lgkmcnt(0)")
    srd(a, 20, 8, WS_SIZE)
    a("buffer_load_dwordx4 %s, v%d, s[20:23], s%d offen" % (vr(V_Q), V_L16, S_T3))
    a("s_add_u32 s%d, s%d, %d" % (S_T0, S_T0, WS_K))
    for c in range(8):
        a("s_add_u32 s%d, s%d, s%d" % (S_T3, S_T0, S_T2))
        a("s_add_u32 m0, s%d, %d" % (S_T1, c * 8192))
        a("s_add_u32 s%d, s%d, 8192" % (S_T2, S_T2))
        a("buffer_load_dwordx4 v%d, s[20:23], s%d offen lds" % (V_L16, S_T3))
        a("s_add_u32 s%d, s%d, %d" % (S_T3, S_T3, WS_V - WS_K))
        a("s_add_u32 m0, s%d, %d" % (S_T1, 65536 + c * 8192))
        a("s_and_b32 s%d, s%d, 0xffff" % (S_T2, S_T2))
        a("buffer_load_dwordx4 v%d, s[20:23], s%d offen lds" % (V_L16, S_T3))
    a("s_mov_b32 s%d, 0" % S_TYPE)
    a("s_cmp_lt_u32 s%d, 4" % S_WAVE)
    a("s_cbranch_scc1 L_k2_nopack")
    a("s_lshl_b32 s%d, s2, 2" % S_TASK)
    a("s_add_u32 s%d, s%d, s%d" % (S_TASK, S_TASK, S_WAVE))
    a("s_sub_u32 s%d, s%d, 4" % (S_TASK, S_TASK))
    a("s_cmp_ge_u32 s%d, 736" % S_TASK)
    a("s_cbranch_scc1 L_k2_nopack")
    a("s_lshl_b32 s%d, s%d, 13" % (S_STG, S_WAVE))
    a("s_add_u32 s%d, s%d, %d" % (S_STG, S_STG, STG - 4 * 8192))
    a("v_lshrrev_b32 v%d, 2, v%d" % (V_T, V_LANE))
    a("v_and_b32 v%d, 3, v%d" % (V_T + 1, V_LANE))
    a("s_cmp_ge_u32 s%d, 448" % S_TASK)
    a("s_cbranch_scc1 L_k2_packn")
    a("s_mov_b32 s%d, 1" % S_TYPE)
    srd(a, 28, 24, 512 * 3584)
    srd(a, 32, 26, 512 * 3584)
    a("v_mul_u32_u24 v%d, 3584, v%d" % (V_T, V_T))
    a("v_lshl_add_u32 v%d, v%d, 4, v%d" % (V_T, V_T + 1, V_T))
    a("s_and_b32 s%d, s%d, 7" % (S_T0, S_TASK))
    a("s_lshr_b32 s%d, s%d, 3" % (S_T1, S_TASK))
    a("s_mul_i32 s%d, s%d, %d" % (S_T2, S_T0, 64 * 3584))
    a("s_lshl_b32 s%d, s%d, 6" % (S_T3, S_T1))
    a("s_add_u32 s%d, s%d, s%d" % (S_T2, S_T2, S_T3))
    for ks in range(4):
        a("s_add_u32 m0, s%d, %d" % (S_STG, ks * 2048))
        a("s_nop 0")
        a("buffer_load_dwordx4 v%d, s[28:31], s%d offen lds" % (V_T, S_T2))
        a("s_add_u32 m0, s%d, %d" % (S_STG, ks * 2048 + 1024))
        a("s_nop 0")
        a("buffer_load_dwordx4 v%d, s[32:35], s%d offen lds" % (V_T, S_T2))
        a("s_add_u32 s%d, s%d, %d" % (S_T2, S_T2, 16 * 3584))
    for hb, sd in ((0, S_DST0), (1, S_DST1)):
        a("s_lshl_b32 s%d, s%d, 1" % (S_T2, S_T1))
        if hb:
            a("s_add_u32 s%d, s%d, 1" % (S_T2, S_T2))
        a("s_mul_i32 s%d, s%d, 9363" % (S_T3, S_T2))
        a("s_lshr_b32 s%d, s%d, 16" % (S_T3, S_T3))
        a("s_mul_i32 s%d, s%d, 7" % (sd, S_T3))
        a("s_sub_u32 s%d, s%d, s%d" % (sd, S_T2, sd))
        a("s_mul_i32 s%d, s%d, %d" % (S_T3, S_T3, 32 * 7))
        a("s_add_u32 s%d, s%d, s%d" % (sd, sd, S_T3))
        a("s_mul_i32 s%d, s%d, 28" % (S_T3, S_T0))
        a("s_add_u32 s%d, s%d, s%d" % (sd, sd, S_T3))
        a("s_lshl_b32 s%d, s%d, 10" % (sd, sd))
        a("s_add_u32 s%d, s%d, %d" % (sd, sd, WS_GU))
    a("s_lshl_b32 s%d, s%d, 11" % (S_CS, S_T1))
    a("s_lshr_b32 s%d, s%d, 2" % (S_T2, S_T0))
    a("s_lshl_b32 s%d, s%d, 9" % (S_T2, S_T2))
    a("s_add_u32 s%d, s%d, s%d" % (S_CS, S_CS, S_T2))
    a("s_and_b32 s%d, s%d, 3" % (S_T2, S_T0))
    a("s_lshl_b32 s%d, s%d, 2" % (S_T2, S_T2))
    a("s_add_u32 s%d, s%d, s%d" % (S_CS, S_CS, S_T2))
    a("s_add_u32 s%d, s%d, %d" % (S_CS, S_CS, WS_CS))
    a("s_branch L_k2_nopack")
    a.label("L_k2_packn")
    a("s_mov_b32 s%d, 2" % S_TYPE)
    a("v_lshlrev_b32 v%d, 10, v%d" % (V_T, V_T))
    a("v_lshl_add_u32 v%d, v%d, 4, v%d" % (V_T, V_T + 1, V_T))
    a("s_cmp_ge_u32 s%d, 512" % S_TASK)
    a("s_cbranch_scc1 L_k2_packd")
    srd(a, 28, 4, 512 * 1024)
    a("s_sub_u32 s%d, s%d, 448" % (S_T0, S_TASK))
    a("s_lshr_b32 s%d, s%d, 2" % (S_T1, S_T0))
    a("s_and_b32 s%d, s%d, 3" % (S_T0, S_T0))
    a("s_lshl_b32 s%d, s%d, 15" % (S_DST0, S_T1))
    a("s_add_u32 s%d, s%d, %d" % (S_DST0, S_DST0, WS_WO))
    a("s_branch L_k2_packc")
    a.label("L_k2_packd")
    srd(a, 28, 6, 1792 * 1024)
    a("s_sub_u32 s%d, s%d, 512" % (S_T0, S_TASK))
    a("s_mul_i32 s%d, s%d, 4682" % (S_T1, S_T0))
    a("s_lshr_b32 s%d, s%d, 16" % (S_T1, S_T1))
    a("s_mul_i32 s%d, s%d, 14" % (S_T2, S_T1))
    a("s_sub_u32 s%d, s%d, s%d" % (S_T0, S_T0, S_T2))
    a("s_mul_i32 s%d, s%d, %d" % (S_DST0, S_T1, 112 * 1024))
    a("s_add_u32 s%d, s%d, %d" % (S_DST0, S_DST0, WS_WD))
    a.label("L_k2_packc")
    a("s_lshl_b32 s%d, s%d, 13" % (S_T2, S_T0))
    a("s_add_u32 s%d, s%d, s%d" % (S_DST0, S_DST0, S_T2))
    a("s_lshl_b32 s%d, s%d, 17" % (S_T2, S_T0))
    a("s_lshl_b32 s%d, s%d, 6" % (S_T3, S_T1))
    a("s_add_u32 s%d, s%d, s%d" % (S_T2, S_T2, S_T3))
    for f in range(8):
        a("s_add_u32 m0, s%d, %d" % (S_STG, f * 1024))
        a("s_nop 0")
        a("buffer_load_dwordx4 v%d, s[28:31], s%d offen lds" % (V_T, S_T2))
        a("s_add_u32 s%d, s%d, %d" % (S_T2, S_T2, 16 * 1024))
    a.label("L_k2_nopack")
    a("s_mov_b32 s%d, 0x0000ffff" % S_VMASK)
    a("s_mov_b32 s%d, 0x0000ffff" % (S_VMASK + 1))
    a("v_and_b32 v%d, 27, v%d" % (V_T, V_LANE))
    a("v_cmp_eq_u32 vcc, 16, v%d" % V_T)
    a("v_mov_b32 v%d, 0x%x" % (V_T + 1, ONES_BF16))
    a("s_nop 1")
    a("v_cndmask_b32 v%d, 0, v%d, vcc" % (V_V[0], V_T + 1))
    for i in range(1, 16):
        a("v_mov_b32 v%d, v%d" % (V_V[0] + i, V_V[0]))
    a("s_mov_b32 s%d, 0" % S_SYNC)
    a("s_mov_b32 s%d, 0" % S_PASS)
    a("s_mov_b32 s%d, 1" % S_NT)
    a("s_cmp_eq_u32 s%d, 0" % S_TYPE)
    a("s_cbranch_scc1 L_k2_w14")
    a("s_waitcnt vmcnt(22)")
    a("s_branch L_k2_wdone")
    a.label("L_k2_w14")
    a("s_waitcnt vmcnt(14)")
    a.label("L_k2_wdone")
    a("s_barrier")
    a.label("L_k2_maxpass")
    a("v_mov_b32 v%d, 0xff800000" % V_MAX)
    a("v_mov_b32 v%d, v%d" % (V_KA, V_L16))
    a.label("L_k2_mloop")
    a("ds_read_b128 %s, v%d" % (vr(V_K[0]), V_KA))
    a("v_add_u32 v%d, 1024, v%d" % (V_KA, V_KA))
    a("s_waitcnt lgkmcnt(0)")
    a("v_mfma_f32_32x32x16_bf16 %s, %s, %s, 0" % (vr(V_S[0], 16), vr(V_K[0]), vr(V_Q)))
    a("s_nop 15")
    for i in range(8):
        a("v_max3_f32 v%d, v%d, v%d, v%d" % (V_MAX, V_S[0] + 2 * i, V_S[0] + 2 * i + 1, V_MAX))
    a("s_sub_u32 s%d, s%d, 1" % (S_NT, S_NT))
    a("s_cmp_lg_u32 s%d, 0" % S_NT)
    a("s_cbranch_scc1 L_k2_mloop")
    a("v_mov_b32 v%d, v%d" % (V_T, V_MAX))
    a("s_nop 1")
    a("v_permlane32_swap_b32 v%d, v%d" % (V_MAX, V_T))
    a("s_nop 1")
    a("v_max_f32 v%d, v%d, v%d" % (V_MAX, V_MAX, V_T))
    for i in range(16):
        a("v_sub_f32 v%d, 0, v%d" % (V_CM + i, V_MAX))
    for i in range(16):
        a("v_mov_b32 v%d, 0" % (V_O + i))
    a("v_mov_b32 v%d, v%d" % (V_KA, V_L16))
    a("v_lshrrev_b32 v%d, 5, v%d" % (V_T, V_LANE))
    a("v_lshlrev_b32 v%d, 8, v%d" % (V_T, V_T))
    a("v_and_b32 v%d, 15, v%d" % (V_T + 1, V_LANE))
    a("v_lshl_add_u32 v%d, v%d, 4, v%d" % (V_VA, V_T + 1, V_T))
    a("v_add_u32 v%d, 65536, v%d" % (V_VA, V_VA))
    a("ds_read_b128 %s, v%d" % (vr(V_K[0]), V_KA))
    a("ds_read_b128 %s, v%d offset:1024" % (vr(V_K[1]), V_KA))
    a("s_mov_b64 exec, s[%d:%d]" % (S_VMASK, S_VMASK + 1))
    a("ds_read_b128 %s, v%d" % (vr(V_V[0]), V_VA))
    a("ds_read_b128 %s, v%d offset:512" % (vr(V_V[0] + 4), V_VA))
    a("s_mov_b64 exec, -1")
    a("s_waitcnt lgkmcnt(0)")
    a("v_mfma_f32_32x32x16_bf16 %s, %s, %s, %s" % (vr(V_S[0], 16), vr(V_K[0]), vr(V_Q), vr(V_CM, 16)))
    a("s_mov_b32 s%d, 8" % S_ITER)
    a("s_nop 7")
    a.raw(".p2align 6")
    a.label("L_k2_loop")
    for t in range(8):
        cur, nxt = t % 2, (t + 1) % 2
        if t == 6:
            a("s_cmp_eq_u32 s%d, 0" % S_SYNC)
            a("s_cbranch_scc1 L_k2_sync")
            a.label("L_k2_syncret")
        a("s_waitcnt lgkmcnt(0)")
        a("v_mfma_f32_32x32x16_bf16 %s, %s, %s, %s" % (vr(V_S[nxt], 16), vr(V_K[nxt]), vr(V_Q), vr(V_CM, 16)))
        a("ds_read_b128 %s, v%d offset:%d" % (vr(V_K[cur]), V_KA, (t + 2) * 1024))
        a("s_mov_b64 exec, s[%d:%d]" % (S_VMASK, S_VMASK + 1))
        a("ds_read_b128 %s, v%d offset:%d" % (vr(V_V[nxt]), V_VA, (t + 1) * 1024))
        a("ds_read_b128 %s, v%d offset:%d" % (vr(V_V[nxt] + 4), V_VA, (t + 1) * 1024 + 512))
        a("s_mov_b64 exec, -1")
        S = V_S[cur]
        e = lambda i: "v_exp_f32 v%d, v%d" % (S + i, S + i)
        c = lambda i: "v_cvt_pk_bf16_f32 v%d, v%d, v%d" % (V_P + i, S + 2 * i, S + 2 * i + 1)
        pv = lambda h: "v_mfma_f32_32x32x16_bf16 %s, %s, %s, %s" % (vr(V_O, 16), vr(V_V[cur] + 4 * h), vr(V_P + 4 * h), vr(V_O, 16))
        seq = [e(0), e(1), e(2), e(3), c(0), e(4), e(5), c(1), e(6), e(7), c(2), e(8), e(9), c(3), e(10), e(11), pv(0), c(4),
               e(12), e(13), c(5), e(14), e(15), c(6), "s_nop 0", c(7)]
        for l in seq:
            a(l)
        if t == 7:
            a("v_add_u32 v%d, 8192, v%d" % (V_KA, V_KA))
            a("v_add_u32 v%d, 8192, v%d" % (V_VA, V_VA))
            a("s_sub_u32 s%d, s%d, 1" % (S_ITER, S_ITER))
            a("s_cmp_lg_u32 s%d, 0" % S_ITER)
        else:
            a("s_nop 1")
        a(pv(1))
    a("s_cbranch_scc1 L_k2_loop")
    a("s_waitcnt lgkmcnt(0)")
    a("s_nop 15")
    a("v_mul_f32 v%d, 0, v%d" % (V_T, V_O))
    for i in range(1, 8):
        a("v_fmac_f32 v%d, 0, v%d" % (V_T, V_O + i))
    a("v_add_f32 v%d, v%d, v%d" % (V_T, V_T, V_O + 8))
    a("v_cmp_gt_f32 vcc, 0x%x, v%d" % (f32bits(2.0 ** 100), V_T))
    a("v_rcp_f32 v%d, v%d" % (V_T + 1, V_O + 8))
    a("s_cmp_lg_u32 s%d, 0" % S_PASS)
    a("s_cbranch_scc1 L_k2_fin")
    a("s_cmp_eq_u64 vcc, exec")
    a("s_cbranch_scc1 L_k2_fin")
    a("s_mov_b32 s%d, 1" % S_PASS)
    a("s_mov_b32 s%d, 64" % S_NT)
    a("s_branch L_k2_maxpass")
    a.label("L_k2_fin")
    for i in range(8):
        a("v_mul_f32 v%d, v%d, v%d" % (V_O + i, V_T + 1, V_O + i))
    for i in range(4):
        a("v_cvt_pk_bf16_f32 v%d, v%d, v%d" % (V_P + i, V_O + 2 * i, V_O + 2 * i + 1))
    a("s_lshl_b32 s%d, s%d, 3" % (S_T0, S_QB))
    a("s_add_u32 s%d, s%d, s%d" % (S_T0, S_T0, S_WAVE))
    a("s_lshl_b32 s%d, s%d, 5" % (S_T0, S_T0))
    a("s_add_u32 s%d, s%d, s%d" % (S_T0, S_T0, S_H))
    a("s_lshl_b32 s%d, s%d, 10" % (S_T0, S_T0))
    a("s_add_u32 s%d, s%d, %d" % (S_T0, S_T0, WS_O))
    a("buffer_store_dwordx4 %s, v%d, s[20:23], s%d offen" % (vr(V_P), V_L16, S_T0))
    a.label("L_k2_end")
    a("s_endpgm")
    a.label("L_k2_sync")
    a("s_mov_b32 s%d, 1" % S_SYNC)
    a("s_waitcnt vmcnt(0)")
    a("s_barrier")
    a("s_cmp_eq_u32 s%d, 0" % S_TYPE)
    a("s_cbranch_scc1 L_k2_syncret")
    a("v_bfe_u32 v%d, v%d, 2, 2" % (V_T, V_LANE))
    a("v_lshrrev_b32 v%d, 5, v%d" % (V_T + 1, V_LANE))
    a("v_lshl_add_u32 v%d, v%d, 2, v%d" % (V_T, V_T + 1, V_T))
    a("v_lshlrev_b32 v%d, 6, v%d" % (V_T, V_T))
    a("v_and_b32 v%d, 3, v%d" % (V_T + 1, V_LANE))
    a("v_lshl_add_u32 v%d, v%d, 3, v%d" % (V_T, V_T + 1, V_T))
    a("v_add_u32 v%d, s%d, v%d" % (V_T, S_STG, V_T))
    a("v_bfe_u32 v%d, v%d, 4, 1" % (V_T + 1, V_LANE))
    FB = [128 + 4 * i for i in range(8)]
    a("s_cmp_eq_u32 s%d, 2" % S_TYPE)
    a("s_cbranch_scc1 L_k2_pk2")
    a("v_lshl_add_u32 v%d, v%d, 10, v%d" % (V_PK, V_T + 1, V_T))
    for ks in range(4):
        for hb in range(2):
            for rd in range(2):
                a("ds_read_b64_tr_b16 %s, v%d offset:%d" % (vr(FB[ks * 2 + hb] + 2 * rd, 2), V_PK, ks * 2048 + hb * 32 + rd * 512))
    make_sel(a, V_LANE, V_SEL, V_T + 2)
    a("v_and_b32 v%d, 31, v%d" % (V_T, V_LANE))
    a("v_lshlrev_b32 v%d, 4, v%d" % (V_T, V_T))
    a("s_waitcnt lgkmcnt(0)")
    for ks in range(4):
        for hb in range(2):
            a("v_mfma_f32_16x16x32_bf16 %s, %s, %s, %s" % (vr(V_PCS[hb]), vr(V_SEL), vr(FB[ks * 2 + hb]), "0" if ks == 0 else vr(V_PCS[hb])))
            a("buffer_store_dwordx4 %s, v%d, s[20:23], s%d offen" % (vr(FB[ks * 2 + hb]), V_L16, (S_DST0, S_DST1)[hb]))
        a("s_add_u32 s%d, s%d, 7168" % (S_DST0, S_DST0))
        a("s_add_u32 s%d, s%d, 7168" % (S_DST1, S_DST1))
    a("s_nop 7")
    a("buffer_store_dword v%d, v%d, s[20:23], s%d offen" % (V_PCS[0], V_T, S_CS))
    a("buffer_store_dword v%d, v%d, s[20:23], s%d offen offset:1024" % (V_PCS[1], V_T, S_CS))
    a("s_branch L_k2_syncret")
    a.label("L_k2_pk2")
    a("v_lshl_add_u32 v%d, v%d, 5, v%d" % (V_PK, V_T + 1, V_T))
    a("s_add_u32 s%d, s%d, 4096" % (S_DST1, S_DST0))
    for f in range(8):
        for rd in range(2):
            a("ds_read_b64_tr_b16 %s, v%d offset:%d" % (vr(FB[f] + 2 * rd, 2), V_PK, f * 1024 + rd * 512))
    a("s_waitcnt lgkmcnt(0)")
    for f in range(8):
        a("buffer_store_dwordx4 %s, v%d, s[20:23], s%d offen offset:%d" % (vr(FB[f]), V_L16, S_DST0 if f < 4 else S_DST1, (f % 4) * 1024))
    a("s_branch L_k2_syncret")
    return name, 160, 0, (256, 512, 163840)


def gen_k35(a, which):
    name = "k3_wo_kernel" if which == 3 else "k5_down_kernel"
    L = "L_k%d_" % which
    kernel_begin(a, name)
    NS = 8 if which == 3 else 28
    STEPS = 32 if which == 3 else 112
    WIN = 8 if which == 3 else 14
    A_BASE = WS_O if which == 3 else WS_A
    W_BASE = WS_WO if which == 3 else WS_WD
    S_WAVE, S_RB, S_CG, S_T0, S_T1 = 24, 25, 26, 27, 28
    S_A = [30, 31]
    S_W = [32, 33]
    S_TB, S_NB = 34, 35
    V_LANE, V_L16, V_T = 1, 2, 3
    V_RES = 12
    V_ACC = [32, 48, 64, 80]
    V_RD = 96
    a("s_cmp_ge_u32 s2, 256")
    a("s_cbranch_scc1 %send" % L)
    a("s_load_dwordx2 s[8:9], s[0:1], %d" % ARG_WS)
    a("s_load_dwordx2 s[4:5], s[0:1], %d" % (ARG_X if which == 3 else ARG_OUT))
    a("v_lshrrev_b32 v%d, 6, v0" % V_T)
    a("v_and_b32 v%d, 63, v0" % V_LANE)
    a("v_readfirstlane_b32 s%d, v%d" % (S_WAVE, V_T))
    a("v_lshlrev_b32 v%d, 4, v%d" % (V_L16, V_LANE))
    a("s_and_b32 s%d, s2, 7" % S_RB)
    a("s_lshl_b32 s%d, s%d, 2" % (S_RB, S_RB))
    a("s_lshr_b32 s%d, s2, 3" % S_T0)
    a("s_and_b32 s%d, s%d, 3" % (S_T1, S_T0))
    a("s_add_u32 s%d, s%d, s%d" % (S_RB, S_RB, S_T1))
    a("s_lshr_b32 s%d, s%d, 2" % (S_CG, S_T0))
    a("s_lshr_b32 s%d, s%d, 1" % (S_T0, S_WAVE))
    a("s_lshl_b32 s%d, s%d, 1" % (S_TB, S_RB))
    a("s_add_u32 s%d, s%d, s%d" % (S_TB, S_TB, S_T0))
    a("s_and_b32 s%d, s%d, 1" % (S_T0, S_WAVE))
    a("s_lshl_b32 s%d, s%d, 1" % (S_NB, S_CG))
    a("s_add_u32 s%d, s%d, s%d" % (S_NB, S_NB, S_T0))
    a("s_mul_i32 s%d, s%d, %d" % (S_T1, S_WAVE, NS * 1024))
    for i in range(2):
        a("s_xor_b32 s%d, s%d, %d" % (S_T0, S_TB, i))
        a("s_mul_i32 s%d, s%d, %d" % (S_A[i], S_T0, STEPS * 1024))
        a("s_add_u32 s%d, s%d, s%d" % (S_A[i], S_A[i], S_T1))
        a("s_add_u32 s%d, s%d, %d" % (S_A[i], S_A[i], A_BASE))
        a("s_xor_b32 s%d, s%d, %d" % (S_T0, S_NB, i))
        a("s_mul_i32 s%d, s%d, %d" % (S_W[i], S_T0, STEPS * 1024))
        a("s_add_u32 s%d, s%d, s%d" % (S_W[i], S_W[i], S_T1))
        a("s_add_u32 s%d, s%d, %d" % (S_W[i], S_W[i], W_BASE))
    a("s_waitcnt lgkmcnt(0)")
    srd(a, 20, 8, WS_SIZE)
    srd(a, 12, 4, 2048 * 1024)

    def frag(p, kind, i):
        return (p % WIN) * 16 + kind * 8 + i * 4

    def loads(p):
        out = []
        if p > 0 and p % 4 == 0:
            for s in S_A + S_W:
                out.append("s_add_u32 s%d, s%d, 4096" % (s, s))
        off = (p % 4) * 1024
        for i in range(2):
            out.append("buffer_load_dwordx4 %s, v%d, s[20:23], s%d offen offset:%d" % (ar(frag(p, 0, i)), V_L16, S_A[i], off))
            out.append("buffer_load_dwordx4 %s, v%d, s[20:23], s%d offen offset:%d" % (ar(frag(p, 1, i)), V_L16, S_W[i], off))
        return out

    for p in range(WIN):
        for l in loads(p):
            a(l)
    a("v_and_b32 v%d, 31, v%d" % (V_T, V_LANE))
    a("v_lshlrev_b32 v%d, 10, v%d" % (V_T, V_T))
    a("v_lshrrev_b32 v%d, 5, v%d" % (V_T + 1, V_LANE))
    a("v_lshl_add_u32 v%d, v%d, 3, v%d" % (V_T, V_T + 1, V_T))
    a("s_lshl_b32 s36, s%d, 15" % S_TB)
    a("s_lshl_b32 s%d, s%d, 6" % (S_T0, S_NB))
    a("s_add_u32 s36, s36, s%d" % S_T0)
    a("s_lshl_b32 s37, s%d, 5" % S_TB)
    a("s_lshl_b32 s%d, s%d, 1" % (S_T0, S_NB))
    a("s_add_u32 s37, s37, s%d" % S_T0)
    a("s_lshl_b32 s37, s37, 10")
    a("s_add_u32 s37, s37, %d" % WS_H)
    issued = WIN
    NRES = 4 if which == 3 else 2
    res_done = False
    for p in range(NS):
        younger = 4 * (issued - p - 1) + (NRES if res_done else 0)
        a("s_waitcnt vmcnt(%d)" % younger)
        for ti in range(2):
            for ni in range(2):
                acc = V_ACC[ti * 2 + ni]
                a("v_mfma_f32_32x32x16_bf16 %s, %s, %s, %s" % (vr(acc, 16), ar(frag(p, 1, ni)), ar(frag(p, 0, ti)), "0" if p == 0 else vr(acc, 16)))
        if issued < NS:
            for l in loads(issued):
                a(l)
            issued += 1
        elif not res_done:
            if which == 3:
                for q in range(4):
                    a("buffer_load_dwordx2 %s, v%d, s[12:15], s36 offen offset:%d" % (vr(V_RES + 2 * q, 2), V_T, q * 16))
            else:
                for q in range(2):
                    a("buffer_load_dwordx4 %s, v%d, s[20:23], s37 offen offset:%d" % (vr(V_RES + 4 * q), V_L16, q * 1024))
            res_done = True
    a("s_nop 7")
    for t in range(1, 4):
        a("s_xor_b32 s%d, s%d, %d" % (S_T0, S_WAVE, t))
        a("s_mul_i32 s%d, s%d, 12288" % (S_T0, S_T0))
        a("v_add_u32 v%d, s%d, v%d" % (V_T + 1 + t, S_T0, V_L16))
    a("s_nop 3")
    for t in range(1, 4):
        for q in range(4):
            a("ds_write_b128 v%d, %s offset:%d" % (V_T + 1 + t, vr(V_ACC[t] + 4 * q), (t - 1) * 4096 + q * 1024))
    a("s_mul_i32 s%d, s%d, 12288" % (S_T0, S_WAVE))
    a("v_add_u32 v%d, s%d, v%d" % (V_T + 1, S_T0, V_L16))
    a("s_waitcnt lgkmcnt(0)")
    a("s_barrier")
    for t in range(3):
        for q in range(4):
            a("ds_read_b128 %s, v%d offset:%d" % (vr(V_RD + 16 * t + 4 * q), V_T + 1, t * 4096 + q * 1024))
    A0 = V_ACC[0]
    U = V_ACC[1]
    a("s_mov_b32 s38, 0xffff0000")
    a("s_waitcnt vmcnt(0)")
    for d in range(8):
        a("v_lshlrev_b32 v%d, 16, v%d" % (U + 2 * d, V_RES + d))
        a("v_and_b32 v%d, s38, v%d" % (U + 2 * d + 1, V_RES + d))
    for i in range(16):
        a("v_add_f32 v%d, v%d, v%d" % (A0 + i, A0 + i, U + i))
    for t in range(3):
        a("s_waitcnt lgkmcnt(%d)" % (8 - 4 * t))
        for i in range(16):
            a("v_add_f32 v%d, v%d, v%d" % (A0 + i, A0 + i, V_RD + 16 * t + i))
    O = V_ACC[2]
    for i in range(8):
        a("v_cvt_pk_bf16_f32 v%d, v%d, v%d" % (O + i, A0 + 2 * i, A0 + 2 * i + 1))
    if which == 3:
        for q in range(2):
            a("buffer_store_dwordx4 %s, v%d, s[20:23], s37 offen offset:%d" % (vr(O + 4 * q), V_L16, q * 1024))
        for d in range(8):
            a("v_lshlrev_b32 v%d, 16, v%d" % (U + 2 * d, O + d))
            a("v_and_b32 v%d, s38, v%d" % (U + 2 * d + 1, O + d))
        S1, S2 = V_RD, V_RD + 1
        a("v_add_f32 v%d, v%d, v%d" % (S1, U, U + 1))
        a("v_mul_f32 v%d, v%d, v%d" % (S2, U, U))
        a("v_fmac_f32 v%d, v%d, v%d" % (S2, U + 1, U + 1))
        for i in range(2, 16):
            a("v_add_f32 v%d, v%d, v%d" % (S1, S1, U + i))
            a("v_fmac_f32 v%d, v%d, v%d" % (S2, U + i, U + i))
        sum_halves(a, S1, V_RD + 2)
        sum_halves(a, S2, V_RD + 3)
        a("s_lshl_b32 s%d, s%d, 4" % (S_T0, S_TB))
        a("s_add_u32 s%d, s%d, s%d" % (S_T0, S_T0, S_NB))
        a("s_lshl_b32 s%d, s%d, 8" % (S_T0, S_T0))
        a("s_add_u32 s%d, s%d, %d" % (S_T0, S_T0, WS_ST))
        a("v_and_b32 v%d, 31, v%d" % (V_T, V_LANE))
        a("v_lshlrev_b32 v%d, 3, v%d" % (V_T, V_T))
        a("buffer_store_dwordx2 %s, v%d, s[20:23], s%d offen" % (vr(S1, 2), V_T, S_T0))
    else:
        for q in range(4):
            a("buffer_store_dwordx2 %s, v%d, s[12:15], s36 offen offset:%d" % (vr(O + 2 * q, 2), V_T, q * 16))
    a.label(L + "end")
    a("s_endpgm")
    return name, 144, WIN * 16, (256, 256, 49152)


def gen_k4(a):
    name = "k4_glu_kernel"
    kernel_begin(a, name)
    S_WAVE, S_RB, S_CG, S_KC, S_SH, S_SW, S_T0, S_T1, S_MASK, S_M0 = 24, 25, 26, 27, 28, 29, 30, 31, 32, 33
    S_TB = 34
    V_LANE, V_L16, V_T = 1, 2, 3
    V_AW = 12
    V_ST = 16
    V_CSL = 32
    V_W = [64, 92]
    V_ACC = [120 + 16 * b for b in range(7)]
    V_TMP = 232
    a("s_cmp_ge_u32 s2, 256")
    a("s_cbranch_scc1 L_k4_end")
    a("s_load_dwordx2 s[8:9], s[0:1], %d" % ARG_WS)
    a("v_lshrrev_b32 v%d, 6, v0" % V_T)
    a("v_and_b32 v%d, 63, v0" % V_LANE)
    a("v_readfirstlane_b32 s%d, v%d" % (S_WAVE, V_T))
    a("v_lshlrev_b32 v%d, 4, v%d" % (V_L16, V_LANE))
    a("s_and_b32 s3, s2, 7")
    a("s_lshr_b32 s%d, s2, 3" % S_T0)
    a("s_lshr_b32 s%d, s3, 2" % S_RB)
    a("s_lshl_b32 s%d, s%d, 3" % (S_RB, S_RB))
    a("s_and_b32 s%d, s%d, 7" % (S_T1, S_T0))
    a("s_add_u32 s%d, s%d, s%d" % (S_RB, S_RB, S_T1))
    a("s_and_b32 s%d, s3, 3" % S_CG)
    a("s_lshl_b32 s%d, s%d, 2" % (S_CG, S_CG))
    a("s_lshr_b32 s%d, s%d, 3" % (S_T1, S_T0))
    a("s_add_u32 s%d, s%d, s%d" % (S_CG, S_CG, S_T1))
    a("s_add_u32 s%d, s%d, s%d" % (S_KC, S_RB, S_CG))
    a("s_and_b32 s%d, s%d, 7" % (S_KC, S_KC))
    a("s_lshl_b32 s%d, s%d, 2" % (S_TB, S_RB))
    a("s_add_u32 s%d, s%d, s%d" % (S_TB, S_TB, S_WAVE))
    a("s_lshl_b32 s%d, s%d, 15" % (S_SH, S_TB))
    a("s_add_u32 s%d, s%d, %d" % (S_SH, S_SH, WS_H))
    a("s_mul_i32 s%d, s%d, 7168" % (S_M0, S_WAVE))
    a("s_mul_i32 s%d, s%d, %d" % (S_SW, S_CG, 32 * 7 * 1024))
    a("s_add_u32 s%d, s%d, s%d" % (S_SW, S_SW, S_M0))
    a("s_add_u32 s%d, s%d, %d" % (S_SW, S_SW, WS_GU))
    a("s_mov_b32 s%d, 0xffff0000" % S_MASK)
    a("s_waitcnt lgkmcnt(0)")
    srd(a, 20, 8, WS_SIZE)

    def issue_stage(st):
        slot = st % NSLOT
        a("s_lshl_b32 s%d, s%d, 12" % (S_T0, S_KC))
        a("s_add_u32 s%d, s%d, s%d" % (S_T0, S_T0, S_SH))
        a("s_mul_i32 s%d, s%d, %d" % (S_T1, S_KC, SLOT))
        a("s_add_u32 s%d, s%d, s%d" % (S_T1, S_T1, S_SW))
        a("s_add_u32 m0, s%d, %d" % (S_M0, slot * SLOT))
        for q in range(4):
            a("buffer_load_dwordx4 %s, v%d, s[20:23], s%d offen offset:%d" % (ar(st * 16 + q * 4), V_L16, S_T0, q * 1024))
        for q in range(4):
            a("buffer_load_dwordx4 v%d, s[20:23], s%d offen offset:%d lds" % (V_L16, S_T1, q * 1024))
        a("s_add_u32 m0, s%d, %d" % (S_M0, slot * SLOT + 4096))
        a("s_add_u32 s%d, s%d, 4096" % (S_T1, S_T1))
        for q in range(3):
            a("buffer_load_dwordx4 v%d, s[20:23], s%d offen offset:%d lds" % (V_L16, S_T1, q * 1024))
        a("s_add_u32 s%d, s%d, 1" % (S_KC, S_KC))
        a("s_and_b32 s%d, s%d, 7" % (S_KC, S_KC))

    for st in range(NSLOT):
        issue_stage(st)
    a("v_mov_b32 v%d, v%d" % (V_AW, V_L16))
    cur_base = [0]

    def reads(P):
        st, pos = P // 4, P % 4
        base, imm = slot_base_adjust(st)
        out = []
        if base != cur_base[0]:
            d = base - cur_base[0]
            out.append("v_add_u32 v%d, %d, v%d" % (V_AW, d, V_AW) if d > 0 else "v_subrev_u32 v%d, %d, v%d" % (V_AW, -d, V_AW))
            cur_base[0] = base
        b = P % 2
        for blk in range(7):
            out.append("ds_read_b128 %s, v%d offset:%d" % (vr(V_W[b] + 4 * blk), V_AW, imm + (pos * 7 + blk) * 1024))
        return out

    NEXTRA = 8 + 7
    a("s_waitcnt vmcnt(44)")
    a("s_barrier")
    for l in reads(0):
        a(l)
    for P in range(32):
        st, pos = P // 4, P % 4
        b = P % 2
        waited = False
        if pos == 3 and P < 31:
            j = st + 1
            n = 11 * (min(j + 3, 7) - j) + (NEXTRA if j >= 4 else 0)
            a("s_waitcnt vmcnt(%d) lgkmcnt(0)" % n)
            a("s_barrier")
            waited = True
            if st + 5 < 8:
                issue_stage(st + 5)
            if st + 5 == 7:
                a("v_and_b32 v%d, 31, v%d" % (V_T, V_LANE))
                a("v_lshlrev_b32 v%d, 3, v%d" % (V_T, V_T))
                a("v_lshrrev_b32 v%d, 5, v%d" % (V_T + 1, V_LANE))
                a("v_lshl_add_u32 v%d, v%d, 11, v%d" % (V_T, V_T + 1, V_T))
                a("s_lshl_b32 s%d, s%d, 12" % (S_T0, S_TB))
                a("s_add_u32 s%d, s%d, %d" % (S_T0, S_T0, WS_ST))
                for i in range(8):
                    a("buffer_load_dwordx2 %s, v%d, s[20:23], s%d offen offset:%d" % (vr(V_ST + 2 * i, 2), V_T, S_T0, i * 256))
                a("s_mul_i32 s%d, s%d, 7168" % (S_T0, S_CG))
                a("s_add_u32 s%d, s%d, %d" % (S_T0, S_T0, WS_CS))
                a("s_add_u32 s%d, s%d, 4096" % (S_T1, S_T0))
                for blk in range(7):
                    a("buffer_load_dwordx4 %s, v%d, s[20:23], s%d offen offset:%d" % (vr(V_CSL + 4 * blk), V_L16, S_T0 if blk < 4 else S_T1, (blk % 4) * 1024))
        rd = reads(P + 1) if P < 31 else []
        m = []
        for blk in range(7):
            m.append("v_mfma_f32_32x32x16_bf16 %s, %s, %s, %s" % (vr(V_ACC[blk], 16), vr(V_W[b] + 4 * blk), ar(P * 4), "0" if P == 0 else vr(V_ACC[blk], 16)))
        if not waited:
            a("s_waitcnt lgkmcnt(0)")
        for l in interleave(m, rd):
            a(l)
    a("s_waitcnt vmcnt(0)")
    S1, S2 = V_T + 2, V_T + 3
    a("v_add_f32 v%d, v%d, v%d" % (S1, V_ST, V_ST + 2))
    a("v_add_f32 v%d, v%d, v%d" % (S2, V_ST + 1, V_ST + 3))
    for i in range(2, 8):
        a("v_add_f32 v%d, v%d, v%d" % (S1, S1, V_ST + 2 * i))
        a("v_add_f32 v%d, v%d, v%d" % (S2, S2, V_ST + 2 * i + 1))
    sum_halves(a, S1, V_T + 4)
    sum_halves(a, S2, V_T + 4)
    V_MU, V_VAR, V_RS, V_C1, V_C2 = V_T + 4, V_T + 5, V_T + 6, V_T + 7, V_T + 8
    a("v_mul_f32 v%d, 0x%x, v%d" % (V_MU, f32bits(1.0 / 512), S1))
    a("v_mul_f32 v%d, 0x%x, v%d" % (V_VAR, f32bits(1.0 / 512), S2))
    a("v_fma_f32 v%d, -v%d, v%d, v%d" % (V_VAR, V_MU, V_MU, V_VAR))
    a("v_max_f32 v%d, 0, v%d" % (V_VAR, V_VAR))
    a("v_add_f32 v%d, 0x%x, v%d" % (V_VAR, f32bits(1e-5), V_VAR))
    a("v_rsq_f32 v%d, v%d" % (V_RS, V_VAR))
    a("v_sub_f32 v%d, 0, v%d" % (V_MU, V_MU))
    VB = V_ST
    split_hi_lo_B(a, V_MU, VB, V_T, S_MASK)
    c1 = -2.0 * math.sqrt(2.0 / math.pi) * math.log2(math.e)
    a("v_mul_f32 v%d, 0x%x, v%d" % (V_C1, f32bits(c1), V_RS))
    a("v_mul_f32 v%d, v%d, v%d" % (V_C2, V_RS, V_RS))
    a("v_mul_f32 v%d, v%d, v%d" % (V_C2, V_C2, V_C1))
    a("v_mul_f32 v%d, 0x%x, v%d" % (V_C2, f32bits(0.044715), V_C2))
    for blk in range(7):
        c = V_CSL + 4 * blk
        a("v_add_f32 v%d, v%d, v%d" % (c, c, c + 1))
        a("v_add_f32 v%d, v%d, v%d" % (c + 2, c + 2, c + 3))
        a("v_add_f32 v%d, v%d, v%d" % (c, c, c + 2))
        split_hi_lo_A(a, c, V_W[0] + 4 * blk, V_T, S_MASK)
    a("s_nop 1")
    for blk in range(7):
        a("v_mfma_f32_32x32x16_bf16 %s, %s, %s, %s" % (vr(V_ACC[blk], 16), vr(V_W[0] + 4 * blk), vr(VB), vr(V_ACC[blk], 16)))
    a("s_mul_i32 s%d, s%d, 112" % (S_T0, S_TB))
    a("s_mul_i32 s%d, s%d, 7" % (S_T1, S_CG))
    a("s_add_u32 s%d, s%d, s%d" % (S_T0, S_T0, S_T1))
    a("s_lshl_b32 s%d, s%d, 10" % (S_T0, S_T0))
    a("s_add_u32 s%d, s%d, %d" % (S_T0, S_T0, WS_A))
    a("s_add_u32 s%d, s%d, 4096" % (S_T1, S_T0))
    a("s_nop 7")
    for blk in range(7):
        G = V_ACC[blk]
        Uu = G + 8
        T = V_TMP
        for i in range(8):
            a("v_mul_f32 v%d, v%d, v%d" % (T + i, G + i, G + i))
        for i in range(8):
            a("v_fma_f32 v%d, v%d, v%d, v%d" % (T + i, T + i, V_C2, V_C1))
        for i in range(8):
            a("v_mul_f32 v%d, v%d, v%d" % (T + i, T + i, G + i))
        for i in range(8):
            a("v_exp_f32 v%d, v%d" % (T + i, T + i))
        for i in range(8):
            a("v_mul_f32 v%d, v%d, v%d" % (G + i, G + i, Uu + i))
        for i in range(8):
            a("v_fma_f32 v%d, v%d, v%d, v%d" % (T + i, T + i, V_VAR, V_VAR))
        for i in range(8):
            a("v_rcp_f32 v%d, v%d" % (T + i, T + i))
        a("s_nop 0")
        for i in range(8):
            a("v_mul_f32 v%d, v%d, v%d" % (G + i, G + i, T + i))
        o = V_TMP + 8 + 4 * (blk % 4)
        for i in range(4):
            a("v_cvt_pk_bf16_f32 v%d, v%d, v%d" % (o + i, G + 2 * i, G + 2 * i + 1))
        a("buffer_store_dwordx4 %s, v%d, s[20:23], s%d offen offset:%d" % (vr(o), V_L16, S_T0 if blk < 4 else S_T1, (blk % 4) * 1024))
    a.label("L_k4_end")
    a("s_endpgm")
    return name, 256, 128, (256, 256, NSLOT * SLOT)


def main():
    hdr = open("cdna_kernels/%s.s.ref" % NAME).read().split("\n")
    head = [l for l in hdr if l.startswith(";") and "@launch" not in l and "Override launch" not in l and "grid=ceil" not in l]
    a = Asm()
    ks = []
    ks.append(gen_k1(a))
    ks.append(gen_k2(a))
    ks.append(gen_k35(a, 3))
    ks.append(gen_k4(a))
    ks.append(gen_k35(a, 5))
    out = "\n".join(head) + "\n"
    for name, nv, na, (g, b, lds) in ks:
        out += "; @launch kernel=%s grid=(%d,1,1) block=(%d,1,1) lds=%d\n" % (name, g, b, lds)
    out += '.amdgcn_target "amdgcn-amd-amdhsa--gfx950"\n.text\n'
    out += a.text()
    out += '.section .rodata,"a"\n'
    for name, nv, na, _ in ks:
        out += kernel_desc(name, nv, na)
    path = sys.argv[1] if len(sys.argv) > 1 else "cdna_kernels/%s.s" % NAME
    open(path, "w").write(out)


if __name__ == "__main__":
    main()
```

```python
import sys, math, struct

NAME = "sequential_preLN__softmax_full_mha__geglu_ffn__prompt"

MB = 1 << 20
WS_Q = 0
WS_K = 2 * MB
WS_V = 4 * MB
WS_O = 6 * MB
WS_H = 8 * MB
WS_A = 10 * MB
WS_WO = 17 * MB
WS_WD = 18 * MB
WS_GU = 20 * MB
WS_CS = 24 * MB
WS_ST = 25 * MB
WS_SIZE = 27 * MB

ARG_X, ARG_WQKV, ARG_WO, ARG_BX, ARG_WG, ARG_WU, ARG_WD, ARG_OUT, ARG_DBG, ARG_WS = [8 * i for i in range(10)]

ONES_BF16 = 0x3F803F80


def f32bits(x):
    return struct.unpack("<I", struct.pack("<f", x))[0]


import os
INSTR = os.environ.get("INSTR", "")
WS_TS = 26 * MB


class Asm:
    def __init__(self):
        self.L = []
        self.nts = 0

    def ts(self, kern):
        if INSTR != kern:
            return
        if self.nts == 0:
            self("s_memrealtime s[92:93]")
        self("s_memtime s[%d:%d]" % (64 + 2 * self.nts, 65 + 2 * self.nts))
        self.nts += 1

    def ts_flush(self, kern, swave, vtmp):
        if INSTR != kern:
            return
        self("s_memtime s[%d:%d]" % (64 + 2 * self.nts, 65 + 2 * self.nts))
        self.nts += 1
        self("s_memrealtime s[94:95]")
        self("s_waitcnt lgkmcnt(0)")
        self("s_lshl_b32 s3, s2, 3")
        self("s_add_u32 s3, s3, s%d" % swave)
        self("s_lshl_b32 s3, s3, 6")
        self("s_add_u32 s3, s3, %d" % WS_TS)
        self("v_mov_b32 v%d, 0" % vtmp)
        for i in range(self.nts):
            self("v_mov_b32 v%d, s%d" % (vtmp + 1, 64 + 2 * i))
            self("buffer_store_dword v%d, v%d, s[20:23], s3 offen offset:%d" % (vtmp + 1, vtmp, 4 * i))
            self("s_nop 1")
        for i, r in enumerate((92, 94)):
            self("v_mov_b32 v%d, s%d" % (vtmp + 1, r))
            self("buffer_store_dword v%d, v%d, s[20:23], s3 offen offset:%d" % (vtmp + 1, vtmp, 56 + 4 * i))
            self("s_nop 1")
        self.nts = 0

    def __call__(self, s):
        for line in s.strip("\n").split("\n"):
            self.L.append("    " + line.strip())

    def label(self, s):
        self.L.append(s + ":")

    def raw(self, s):
        self.L.append(s)

    def text(self):
        return "\n".join(self.L) + "\n"


def vr(b, n=4):
    return "v[%d:%d]" % (b, b + n - 1)


def ar(b, n=4):
    return "a[%d:%d]" % (b, b + n - 1)


def srd(a, sbase, sptr, nbytes):
    a("s_mov_b32 s%d, s%d" % (sbase, sptr))
    a("s_mov_b32 s%d, s%d" % (sbase + 1, sptr + 1))
    a("s_mov_b32 s%d, 0x%x" % (sbase + 2, nbytes))
    a("s_mov_b32 s%d, 0x00020000" % (sbase + 3))


def kernel_begin(a, name):
    a.raw(".globl %s" % name)
    a.raw(".p2align 8")
    a.raw(".type %s,@function" % name)
    a.label(name)


def kernel_desc(name, nvgpr, nagpr, nsgpr=96):
    acc = (nvgpr + 3) // 4 * 4
    nfv = acc + nagpr if nagpr else nvgpr
    return """.p2align 6
.amdhsa_kernel %s
  .amdhsa_next_free_vgpr %d
  .amdhsa_next_free_sgpr %d
  .amdhsa_accum_offset %d
  .amdhsa_group_segment_fixed_size 0
  .amdhsa_kernarg_size 80
  .amdhsa_user_sgpr_count 2
  .amdhsa_user_sgpr_kernarg_segment_ptr 1
  .amdhsa_system_sgpr_workgroup_id_x 1
.end_amdhsa_kernel
""" % (name, nfv, nsgpr, acc)


def interleave(main, fill, per=None):
    out = []
    n = len(main)
    fi = 0
    for i, m in enumerate(main):
        out.append(m)
        tgt = (len(fill) * (i + 1) + n - 1) // n if per is None else min(len(fill), per * (i + 1))
        while fi < tgt:
            out.append(fill[fi])
            fi += 1
    out += fill[fi:]
    return out


def make_sel(a, vlane, vsel, vt):
    a("v_lshrrev_b32 v%d, 2, v%d" % (vt, vlane))
    a("v_lshrrev_b32 v%d, 4, v%d" % (vsel, vlane))
    a("v_xor_b32 v%d, v%d, v%d" % (vt, vt, vsel))
    a("v_and_b32 v%d, 1, v%d" % (vt, vt))
    a("v_add_u32 v%d, -1, v%d" % (vt, vt))
    a("v_and_b32 v%d, 0x%x, v%d" % (vsel, ONES_BF16, vt))
    for i in range(1, 4):
        a("v_mov_b32 v%d, v%d" % (vsel + i, vsel))


def split_hi_lo_A(a, vc, vdst, vt, smask):
    a("v_cvt_pk_bf16_f32 v%d, v%d, v%d" % (vt, vc, vc))
    a("v_and_b32 v%d, s%d, v%d" % (vt, smask, vt))
    a("v_sub_f32 v%d, v%d, v%d" % (vt, vc, vt))
    a("v_cvt_pk_bf16_f32 v%d, v%d, v%d" % (vdst, vc, vt))
    a("v_mov_b32 v%d, v%d" % (vdst + 1, vdst))
    a("v_mov_b32 v%d, 0" % (vdst + 2))
    a("v_mov_b32 v%d, 0" % (vdst + 3))


def split_hi_lo_B(a, vm, vdst, vt, smask):
    a("v_cvt_pk_bf16_f32 v%d, v%d, v%d" % (vdst, vm, vm))
    a("v_and_b32 v%d, s%d, v%d" % (vt, smask, vdst))
    a("v_sub_f32 v%d, v%d, v%d" % (vt, vm, vt))
    a("v_cvt_pk_bf16_f32 v%d, v%d, v%d" % (vdst + 1, vt, vt))
    a("v_mov_b32 v%d, 0" % (vdst + 2))
    a("v_mov_b32 v%d, 0" % (vdst + 3))


def sum_halves(a, v, vt):
    a("v_mov_b32 v%d, v%d" % (vt, v))
    a("s_nop 1")
    a("v_permlane32_swap_b32 v%d, v%d" % (v, vt))
    a("s_nop 1")
    a("v_add_f32 v%d, v%d, v%d" % (v, v, vt))


SLOT = 28672
NSLOT = 5
K1_DIST = int(os.environ.get('K1_DIST', 2))
DIAG = os.environ.get('DIAG', '')
K1_ROT = int(os.environ.get('K1_ROT', 1))
K4_ROT = int(os.environ.get('K4_ROT', 0))
K2_ROT = int(os.environ.get('K2_ROT', 0))
K4_DIST = int(os.environ.get('K4_DIST', 2))


def slot_base_adjust(stage):
    slot = stage % NSLOT
    return (slot // 2) * 2 * SLOT, (slot % 2) * SLOT


def gen_k1(a):
    name = "k1_qkv_kernel"
    kernel_begin(a, name)
    LDS_SCR = NSLOT * SLOT
    S_WAVE, S_RB, S_CG, S_KC, S_SX, S_SW, S_T0, S_T1, S_MASK, S_M0X, S_M0W = 24, 25, 26, 27, 28, 29, 30, 31, 32, 33, 34
    S_ROLE = 42
    V_LANE = 1
    V_T = 2
    V_DX = 8
    V_DW = 12
    V_AX = 13
    V_AW = 17
    V_SEL = 24
    V_SQ = 28
    V_X = [32, 36]
    V_W = [[40, 44, 48], [52, 56, 60]]
    V_ACC = [64, 80, 96]
    V_SXA = 112
    V_CS = [116, 120, 124]
    V_TMP = 128
    a("s_cmp_ge_u32 s2, 256")
    a("s_cbranch_scc1 L_k1_end")
    a.ts("k1")
    a("s_load_dwordx4 s[4:7], s[0:1], %d" % ARG_X)
    a("s_load_dwordx2 s[8:9], s[0:1], %d" % ARG_WS)
    a("v_lshrrev_b32 v%d, 6, v0" % V_T)
    a("v_and_b32 v%d, 63, v0" % V_LANE)
    a("v_readfirstlane_b32 s%d, v%d" % (S_ROLE, V_T))
    a("s_and_b32 s3, s2, 7")
    a("s_lshr_b32 s%d, s2, 3" % S_T0)
    a("s_lshr_b32 s%d, s3, 1" % S_RB)
    a("s_lshl_b32 s%d, s%d, 2" % (S_RB, S_RB))
    a("s_and_b32 s%d, s%d, 3" % (S_T1, S_T0))
    a("s_add_u32 s%d, s%d, s%d" % (S_RB, S_RB, S_T1))
    a("s_and_b32 s%d, s3, 1" % S_CG)
    a("s_lshl_b32 s%d, s%d, 3" % (S_CG, S_CG))
    a("s_lshr_b32 s%d, s%d, 2" % (S_T1, S_T0))
    a("s_add_u32 s%d, s%d, s%d" % (S_CG, S_CG, S_T1))
    a("s_and_b32 s%d, s%d, 3" % (S_WAVE, S_ROLE))
    a("s_lshl_b32 s%d, s%d, 12" % (S_M0X, S_WAVE))
    a("s_cmp_ge_u32 s%d, 4" % S_ROLE)
    a("s_cbranch_scc1 L_k1_compute")
    if K1_ROT:
        a("s_add_u32 s%d, s%d, s%d" % (S_KC, S_RB, S_CG))
        a("s_and_b32 s%d, s%d, 7" % (S_KC, S_KC))
    else:
        a("s_mov_b32 s%d, 0" % S_KC)
    a("v_lshrrev_b32 v%d, 3, v%d" % (V_T, V_LANE))
    a("v_lshlrev_b32 v%d, 12, v%d" % (V_T, V_T))
    a("v_and_b32 v%d, 7, v%d" % (V_T + 1, V_LANE))
    a("v_lshrrev_b32 v%d, 2, v%d" % (V_T + 2, V_LANE))
    a("v_and_b32 v%d, 4, v%d" % (V_T + 2, V_T + 2))
    a("v_xor_b32 v%d, v%d, v%d" % (V_T + 1, V_T + 1, V_T + 2))
    for q in range(4):
        a("v_xor_b32 v%d, %d, v%d" % (V_T + 3, q, V_T + 1))
        a("v_lshl_add_u32 v%d, v%d, 4, v%d" % (V_DX + q, V_T + 3, V_T))
    a("v_lshrrev_b32 v%d, 2, v%d" % (V_T, V_LANE))
    a("v_mul_u32_u24 v%d, 3072, v%d" % (V_T, V_T))
    a("v_and_b32 v%d, 3, v%d" % (V_T + 1, V_LANE))
    a("v_lshl_add_u32 v%d, v%d, 4, v%d" % (V_DW, V_T + 1, V_T))
    a("s_lshl_b32 s%d, s%d, 2" % (S_T0, S_RB))
    a("s_add_u32 s%d, s%d, s%d" % (S_T0, S_T0, S_WAVE))
    a("s_lshl_b32 s%d, s%d, 15" % (S_SX, S_T0))
    a("s_mul_i32 s%d, s%d, %d" % (S_SW, S_WAVE, 16 * 3072))
    a("s_lshl_b32 s%d, s%d, 6" % (S_T1, S_CG))
    a("s_add_u32 s%d, s%d, s%d" % (S_SW, S_SW, S_T1))
    a("s_mul_i32 s%d, s%d, 3072" % (S_M0W, S_WAVE))
    a("s_add_u32 s%d, s%d, 16384" % (S_M0W, S_M0W))
    S_OX, S_OW, S_SLOT, S_CNT = 38, 39, 40, 41
    a("s_mov_b32 s%d, 0" % S_SLOT)
    a("s_mov_b32 s%d, 0" % S_CNT)
    a("s_waitcnt lgkmcnt(0)")
    srd(a, 12, 4, 2048 * 1024)
    srd(a, 16, 6, 512 * 3072)
    a.label("L_k1_ld")
    a("s_lshl_b32 s%d, s%d, 7" % (S_OX, S_KC))
    a("s_add_u32 s%d, s%d, s%d" % (S_OX, S_OX, S_SX))
    a("s_add_u32 m0, s%d, s%d" % (S_M0X, S_SLOT))
    a("s_mul_i32 s%d, s%d, %d" % (S_OW, S_KC, 64 * 3072))
    for q in range(4 if DIAG != "noload" else 0):
        a("buffer_load_dwordx4 v%d, s[12:15], s%d offen offset:%d lds" % (V_DX + q, S_OX, q * 1024))
    a("s_add_u32 m0, s%d, s%d" % (S_M0W, S_SLOT))
    a("s_add_u32 s%d, s%d, s%d" % (S_OW, S_OW, S_SW))
    for sx in range(3 if DIAG != "noload" else 0):
        a("buffer_load_dwordx4 v%d, s[16:19], s%d offen offset:%d lds" % (V_DW, S_OW, sx * 1024))
    a("s_add_u32 s%d, s%d, 1" % (S_KC, S_KC))
    a("s_and_b32 s%d, s%d, 7" % (S_KC, S_KC))
    a("s_add_u32 s%d, s%d, %d" % (S_SLOT, S_SLOT, SLOT))
    a("s_cmp_eq_u32 s%d, %d" % (S_SLOT, NSLOT * SLOT))
    a("s_cselect_b32 s%d, 0, s%d" % (S_SLOT, S_SLOT))
    a("s_add_u32 s%d, s%d, 1" % (S_CNT, S_CNT))
    a("s_cmp_lt_u32 s%d, %d" % (S_CNT, K1_DIST))
    a("s_cbranch_scc1 L_k1_ld")
    a("s_waitcnt vmcnt(%d)" % (7 * (K1_DIST - 1)))
    a("s_barrier")
    a("s_cmp_lt_u32 s%d, 8" % S_CNT)
    a("s_cbranch_scc1 L_k1_ld")
    for r in range(K1_DIST - 2, -1, -1):
        a("s_waitcnt vmcnt(%d)" % (7 * r))
        a("s_barrier")
    a("s_endpgm")
    a.label("L_k1_compute")
    a("s_mov_b32 s%d, 0xffff0000" % S_MASK)
    a("v_and_b32 v%d, 31, v%d" % (V_T, V_LANE))
    a("v_and_b32 v%d, 3, v%d" % (V_T + 1, V_LANE))
    a("v_lshrrev_b32 v%d, 2, v%d" % (V_T + 2, V_T))
    a("v_lshlrev_b32 v%d, 7, v%d" % (V_T + 2, V_T + 2))
    a("v_lshl_add_u32 v%d, v%d, 10, v%d" % (V_T + 2, V_T + 1, V_T + 2))
    a("v_add_u32 v%d, s%d, v%d" % (V_T + 2, S_M0X, V_T + 2))
    a("v_lshrrev_b32 v%d, 1, v%d" % (V_T + 3, V_T))
    a("v_and_b32 v%d, 4, v%d" % (V_T + 3, V_T + 3))
    a("v_or_b32 v%d, v%d, v%d" % (V_T + 3, V_T + 3, V_T + 1))
    a("v_lshrrev_b32 v%d, 5, v%d" % (V_T + 4, V_LANE))
    a("v_xor_b32 v%d, v%d, v%d" % (V_T + 3, V_T + 3, V_T + 4))
    a("v_bfe_u32 v%d, v%d, 2, 2" % (V_T + 5, V_LANE))
    a("v_lshl_add_u32 v%d, v%d, 3, v%d" % (V_T + 5, V_T + 4, V_T + 5))
    a("v_lshlrev_b32 v%d, 6, v%d" % (V_T + 5, V_T + 5))
    a("v_bfe_u32 v%d, v%d, 4, 1" % (V_T + 4, V_LANE))
    a("v_lshl_add_u32 v%d, v%d, 5, v%d" % (V_T + 5, V_T + 4, V_T + 5))
    a("v_lshl_add_u32 v%d, v%d, 3, v%d" % (V_T + 5, V_T + 1, V_T + 5))
    for pos in range(4):
        a("s_add_u32 s%d, s%d, %d" % (S_T0, S_WAVE, pos))
        a("s_and_b32 s%d, s%d, 3" % (S_T0, S_T0))
        a("s_lshl_b32 s%d, s%d, 1" % (S_T1, S_T0))
        a("v_xor_b32 v%d, s%d, v%d" % (V_T + 4, S_T1, V_T + 3))
        a("v_lshl_add_u32 v%d, v%d, 4, v%d" % (V_AX + pos, V_T + 4, V_T + 2))
        a("s_mul_i32 s%d, s%d, 3072" % (S_T1, S_T0))
        a("s_add_u32 s%d, s%d, 16384" % (S_T1, S_T1))
        a("v_add_u32 v%d, s%d, v%d" % (V_AW + pos, S_T1, V_T + 5))
    make_sel(a, V_LANE, V_SEL, V_T)
    a("v_mov_b32 v%d, 0" % V_SQ)
    a("v_mov_b32 v%d, 0" % (V_SQ + 1))

    cur_base = [0]

    def reads(P):
        st, pos = P // 4, P % 4
        base, imm = slot_base_adjust(st)
        out = []
        if base != cur_base[0]:
            d = base - cur_base[0]
            for r in list(range(V_AX, V_AX + 4)) + list(range(V_AW, V_AW + 4)):
                out.append("v_add_u32 v%d, %d, v%d" % (r, d, r) if d > 0 else "v_subrev_u32 v%d, %d, v%d" % (r, -d, r))
            cur_base[0] = base
        b = P % 2
        out.append("ds_read_b128 %s, v%d offset:%d" % (vr(V_X[b]), V_AX + pos, imm))
        for s in range(3):
            for rd in range(2):
                out.append("ds_read_b64_tr_b16 %s, v%d offset:%d" % (vr(V_W[b][s] + 2 * rd, 2), V_AW + pos, imm + s * 1024 + rd * 256))
        return out

    a("s_waitcnt lgkmcnt(0)")
    srd(a, 20, 8, WS_SIZE)
    a.ts("k1")
    a("s_barrier")
    a.ts("k1")
    for l in reads(0):
        a(l)
    V_G = 184
    for P in range(32):
        st, pos = P // 4, P % 4
        b = P % 2
        a("s_waitcnt lgkmcnt(0)")
        if pos == 3 and P < 31:
            a("s_barrier")
        rd = reads(P + 1) if P < 31 else []
        X = vr(V_X[b])
        c = lambda r, n=16: ("0" if P == 0 else vr(r, n))
        m = []
        m.append("v_mfma_f32_32x32x16_bf16 %s, %s, %s, %s" % (vr(V_G, 16), X, X, c(V_G)))
        m.append("v_mfma_f32_32x32x16_bf16 %s, %s, %s, %s" % (vr(V_ACC[0], 16), vr(V_W[b][0]), X, c(V_ACC[0])))
        m.append("v_mfma_f32_32x32x16_bf16 %s, %s, %s, %s" % (vr(V_ACC[1], 16), vr(V_W[b][1]), X, c(V_ACC[1])))
        m.append("v_mfma_f32_32x32x16_bf16 %s, %s, %s, %s" % (vr(V_ACC[2], 16), X, vr(V_W[b][2]), c(V_ACC[2])))
        m.append("v_mfma_f32_16x16x32_bf16 %s, %s, %s, %s" % (vr(V_SXA), vr(V_SEL), X, c(V_SXA, 4)))
        if pos == 0:
            for sx in range(3):
                m.append("v_mfma_f32_16x16x32_bf16 %s, %s, %s, %s" % (vr(V_CS[sx]), vr(V_SEL), vr(V_W[b][sx]), c(V_CS[sx], 4)))
        if DIAG == "nocompute":
            m, rd = [], []
        for l in interleave(m, rd, per=(4 if len(rd) > 8 else 2)) if m else []:
            a(l)
        if P == 30:
            a("v_and_b32 v%d, 31, v%d" % (V_T, V_LANE))
            a("v_lshlrev_b32 v%d, 2, v%d" % (V_T, V_T))
            a("s_mul_i32 s%d, s%d, 384" % (S_T0, S_WAVE))
            a("s_add_u32 s%d, s%d, %d" % (S_T0, S_T0, LDS_SCR))
            a("v_add_u32 v%d, s%d, v%d" % (V_T + 1, S_T0, V_T))
            for s in range(3):
                a("ds_write_b32 v%d, v%d offset:%d" % (V_T + 1, V_CS[s], s * 128))
    a.ts("k1")
    a("s_waitcnt lgkmcnt(0)")
    a("s_barrier")
    a("v_lshrrev_b32 v%d, 5, v%d" % (V_T + 2, V_LANE))
    a("v_mul_u32_u24 v%d, 768, v%d" % (V_T + 3, V_T + 2))
    a("v_add_u32 v%d, v%d, v%d" % (V_T + 3, V_T + 3, V_T))
    a("v_add_u32 v%d, %d, v%d" % (V_T + 3, LDS_SCR, V_T + 3))
    VC = V_TMP + 4
    for s in range(3):
        a("ds_read2_b32 %s, v%d offset0:%d offset1:%d" % (vr(VC + 2 * s, 2), V_T + 3, s * 32, s * 32 + 96))
    a("s_lshl_b32 s%d, s%d, 12" % (S_T0, S_WAVE))
    a("s_add_u32 s%d, s%d, %d" % (S_T0, S_T0, LDS_SCR + 2048))
    a("v_lshl_add_u32 v%d, v%d, 6, s%d" % (V_DX, V_LANE, S_T0))
    for q in range(4):
        a("ds_write_b128 v%d, %s offset:%d" % (V_DX, vr(V_G + 4 * q), q * 16))
    a("v_and_b32 v%d, 31, v%d" % (V_T + 4, V_LANE))
    a("v_bfe_u32 v%d, v%d, 2, 1" % (V_T + 5, V_LANE))
    a("v_lshl_add_u32 v%d, v%d, 5, v%d" % (V_T + 5, V_T + 5, V_T + 4))
    a("v_lshl_add_u32 v%d, v%d, 6, s%d" % (V_T + 5, V_T + 5, S_T0))
    a("v_lshrrev_b32 v%d, 3, v%d" % (V_T + 4, V_T + 4))
    a("v_lshl_add_u32 v%d, v%d, 4, v%d" % (V_T + 5, V_T + 4, V_T + 5))
    a("v_and_b32 v%d, 3, v%d" % (V_T + 4, V_LANE))
    a("v_lshl_add_u32 v%d, v%d, 2, v%d" % (V_T + 5, V_T + 4, V_T + 5))
    a("ds_read_b32 v%d, v%d" % (V_SQ, V_T + 5))
    a("s_waitcnt lgkmcnt(0)")
    V_MU, V_RS = V_SQ + 2, V_SQ + 3
    a("v_mul_f32 v%d, 0x%x, v%d" % (V_MU, f32bits(1.0 / 512), V_SXA))
    a("v_mul_f32 v%d, 0x%x, v%d" % (V_SQ, f32bits(1.0 / 512), V_SQ))
    a("v_fma_f32 v%d, -v%d, v%d, v%d" % (V_SQ, V_MU, V_MU, V_SQ))
    a("v_max_f32 v%d, 0, v%d" % (V_SQ, V_SQ))
    a("v_add_f32 v%d, 0x%x, v%d" % (V_SQ, f32bits(1e-5), V_SQ))
    a("v_rsq_f32 v%d, v%d" % (V_RS, V_SQ))
    a("v_sub_f32 v%d, 0, v%d" % (V_MU, V_MU))
    a("s_lshl_b32 s%d, s%d, 7" % (S_T0, S_WAVE))
    a("s_add_u32 s%d, s%d, %d" % (S_T0, S_T0, LDS_SCR + 1536))
    a("v_add_u32 v%d, s%d, v%d" % (V_T + 1, S_T0, V_T))
    a("ds_write_b32 v%d, v%d" % (V_T + 1, V_RS))
    VB = V_X[0]
    split_hi_lo_B(a, V_MU, VB, V_T + 4, S_MASK)
    a("v_lshlrev_b32 v%d, 4, v%d" % (V_T + 2, V_T + 2))
    a("v_add_u32 v%d, s%d, v%d" % (V_T + 2, S_T0, V_T + 2))
    VR = V_TMP + 12
    a("s_waitcnt lgkmcnt(0)")
    for q in range(4):
        a("ds_read_b128 %s, v%d offset:%d" % (vr(VR + 4 * q), V_T + 2, q * 32))
    for s in range(3):
        a("v_add_f32 v%d, v%d, v%d" % (VC + 2 * s, VC + 2 * s, VC + 2 * s + 1))
        split_hi_lo_A(a, VC + 2 * s, V_W[0][s], V_T + 4, S_MASK)
    a("s_nop 1")
    a("v_mfma_f32_32x32x16_bf16 %s, %s, %s, %s" % (vr(V_ACC[0], 16), vr(V_W[0][0]), vr(VB), vr(V_ACC[0], 16)))
    a("v_mfma_f32_32x32x16_bf16 %s, %s, %s, %s" % (vr(V_ACC[1], 16), vr(V_W[0][1]), vr(VB), vr(V_ACC[1], 16)))
    a("v_mfma_f32_32x32x16_bf16 %s, %s, %s, %s" % (vr(V_ACC[2], 16), vr(VB), vr(V_W[0][2]), vr(V_ACC[2], 16)))
    V_RQ = V_SQ
    a("v_mul_f32 v%d, 0x%x, v%d" % (V_RQ, f32bits(0.25 * math.log2(math.e)), V_RS))
    a("v_lshlrev_b32 v%d, 4, v%d" % (V_T, V_LANE))
    a("s_lshl_b32 s%d, s%d, 2" % (S_T0, S_RB))
    a("s_add_u32 s%d, s%d, s%d" % (S_T0, S_T0, S_WAVE))
    a("s_lshl_b32 s%d, s%d, 10" % (S_T0, S_T0))
    a("s_lshl_b32 s%d, s%d, 17" % (S_T1, S_CG))
    a("s_add_u32 s%d, s%d, s%d" % (S_T0, S_T0, S_T1))
    a("s_add_u32 s%d, s%d, 65536" % (S_T1, S_T0))
    a("s_add_u32 s35, s%d, %d" % (S_T0, WS_K))
    a("s_add_u32 s36, s%d, %d" % (S_T1, WS_K))
    a("s_add_u32 s37, s%d, %d" % (S_T0, WS_V))
    a("v_bfe_u32 v%d, v%d, 4, 1" % (V_T + 1, V_LANE))
    a("v_lshlrev_b32 v%d, 16, v%d" % (V_T + 1, V_T + 1))
    a("v_lshrrev_b32 v%d, 5, v%d" % (V_T + 2, V_LANE))
    a("v_lshl_add_u32 v%d, v%d, 8, v%d" % (V_T + 1, V_T + 2, V_T + 1))
    a("v_and_b32 v%d, 15, v%d" % (V_T + 2, V_LANE))
    a("v_lshl_add_u32 v%d, v%d, 4, v%d" % (V_T + 1, V_T + 2, V_T + 1))
    a("s_nop 4")
    VO = V_TMP + 28
    k = 0
    for blk, sc, soffs in ((0, V_RQ, (S_T0, S_T1)), (1, V_RS, (35, 36))):
        for half in range(2):
            o = VO + 4 * k
            k += 1
            for i in range(8):
                r = V_ACC[blk] + 8 * half + i
                a("v_mul_f32 v%d, v%d, v%d" % (r, sc, r))
            for i in range(4):
                r = V_ACC[blk] + 8 * half + 2 * i
                a("v_cvt_pk_bf16_f32 v%d, v%d, v%d" % (o + i, r, r + 1))
            a("buffer_store_dwordx4 %s, v%d, s[20:23], s%d offen" % (vr(o), V_T, soffs[half]))
    a("s_waitcnt lgkmcnt(0)")
    for half in range(2):
        o = VO + 4 * k
        k += 1
        for i in range(8):
            r = V_ACC[2] + 8 * half + i
            a("v_mul_f32 v%d, v%d, v%d" % (r, VR + 8 * half + i, r))
        for i in range(4):
            r = V_ACC[2] + 8 * half + 2 * i
            a("v_cvt_pk_bf16_f32 v%d, v%d, v%d" % (o + i, r, r + 1))
        a("buffer_store_dwordx4 %s, v%d, s[20:23], s37 offen offset:%d" % (vr(o), V_T + 1, half * 512))
    a.ts_flush("k1", S_WAVE, V_T)
    a.label("L_k1_end")
    a("s_endpgm")
    return name, 200, 0, (256, 512, LDS_SCR + 2048 + 16384)


def gen_k2(a):
    name = "k2_attn_kernel"
    kernel_begin(a, name)
    S_WAVE, S_H, S_QB, S_T0, S_T1, S_T2, S_T3 = 40, 41, 42, 43, 44, 45, 46
    S_ITER, S_SYNC, S_PASS, S_NT = 47, 48, 49, 50
    S_TASK, S_STG, S_DST0, S_DST1, S_TYPE = 51, 52, 53, 54, 55
    S_VMASK = 56
    S_CS = 58
    S_KB, S_W1K, S_CH = 59, 60, 61
    S_PE, S_PO, S_PS = 36, 37, 38
    V_LANE, V_L16, V_T = 1, 2, 3
    V_KA, V_VA = 10, 11
    V_Q = 12
    V_K = [16, 20]
    V_V = [24, 32]
    V_P = 40
    V_CM = 48
    V_S = [64, 80]
    V_O = 96
    V_MAX = 112
    V_PK = 113
    V_PD = 114
    V_SEL = 116
    V_PCS = [120, 124]
    STG = 131072
    a("s_cmp_ge_u32 s2, 256")
    a("s_cbranch_scc1 L_k2_end")
    a.ts("k2")
    a.ts("k2b")
    a("s_load_dwordx2 s[8:9], s[0:1], %d" % ARG_WS)
    a("s_load_dwordx2 s[4:5], s[0:1], %d" % ARG_WO)
    a("s_load_dwordx4 s[24:27], s[0:1], %d" % ARG_WG)
    a("s_load_dwordx2 s[6:7], s[0:1], %d" % ARG_WD)
    a("v_lshrrev_b32 v%d, 6, v0" % V_T)
    a("v_and_b32 v%d, 63, v0" % V_LANE)
    a("v_readfirstlane_b32 s%d, v%d" % (S_WAVE, V_T))
    a("v_lshlrev_b32 v%d, 4, v%d" % (V_L16, V_LANE))
    a("s_and_b32 s%d, s2, 7" % S_H)
    a("s_lshl_b32 s%d, s%d, 2" % (S_H, S_H))
    a("s_lshr_b32 s%d, s2, 6" % S_T0)
    a("s_add_u32 s%d, s%d, s%d" % (S_H, S_H, S_T0))
    a("s_lshr_b32 s%d, s2, 3" % S_QB)
    a("s_and_b32 s%d, s%d, 7" % (S_QB, S_QB))
    a("s_lshl_b32 s%d, s%d, 16" % (S_KB, S_H))
    a("s_lshl_b32 s%d, s%d, 10" % (S_W1K, S_WAVE))
    a("s_add_u32 s%d, s%d, s%d" % (S_KB, S_KB, S_W1K))
    a("s_lshl_b32 s%d, s%d, 13" % (S_CH, S_QB))
    a("s_add_u32 s%d, s%d, s%d" % (S_T3, S_KB, S_CH))
    a("s_add_u32 s%d, s%d, %d" % (S_KB, S_KB, WS_K))
    if not K2_ROT:
        a("s_mov_b32 s%d, 0" % S_CH)
    a("s_waitcnt lgkmcnt(0)")
    a.ts("k2b")
    srd(a, 20, 8, WS_SIZE)
    a("buffer_load_dwordx4 %s, v%d, s[20:23], s%d offen" % (vr(V_Q), V_L16, S_T3))
    if INSTR == "k2b":
        a("s_waitcnt vmcnt(0)")
    a.ts("k2b")

    def kv_dma(c):
        return [["s_add_u32 s%d, s%d, s%d" % (S_T3, S_KB, S_CH),
                 "s_add_u32 m0, s%d, %d" % (S_W1K, c * 8192),
                 "s_add_u32 s%d, s%d, 8192" % (S_CH, S_CH),
                 "buffer_load_dwordx4 v%d, s[20:23], s%d offen lds" % (V_L16, S_T3)],
                ["s_add_u32 s%d, s%d, %d" % (S_T3, S_T3, WS_V - WS_K),
                 "s_add_u32 m0, s%d, %d" % (S_W1K, 65536 + c * 8192),
                 "s_and_b32 s%d, s%d, 0xffff" % (S_CH, S_CH),
                 "buffer_load_dwordx4 v%d, s[20:23], s%d offen lds" % (V_L16, S_T3)]]

    for c in range(2):
        for g in kv_dma(c):
            for l in g:
                a(l)
    a("s_mov_b32 s%d, 0" % S_TYPE)
    a("s_cmp_lt_u32 s%d, 4" % S_WAVE)
    a("s_cbranch_scc1 L_k2_nopack")
    a("s_lshl_b32 s%d, s2, 2" % S_TASK)
    a("s_add_u32 s%d, s%d, s%d" % (S_TASK, S_TASK, S_WAVE))
    a("s_sub_u32 s%d, s%d, 4" % (S_TASK, S_TASK))
    a("s_cmp_ge_u32 s%d, 736" % S_TASK)
    a("s_cbranch_scc1 L_k2_nopack")
    a("s_lshl_b32 s%d, s%d, 13" % (S_STG, S_WAVE))
    a("s_add_u32 s%d, s%d, %d" % (S_STG, S_STG, STG - 4 * 8192))
    a("v_lshrrev_b32 v%d, 2, v%d" % (V_T, V_LANE))
    a("v_and_b32 v%d, 3, v%d" % (V_T + 1, V_LANE))
    a("s_cmp_ge_u32 s%d, 448" % S_TASK)
    a("s_cbranch_scc1 L_k2_packn")
    a("s_mov_b32 s%d, 1" % S_TYPE)
    srd(a, 28, 24, 512 * 3584)
    srd(a, 32, 26, 512 * 3584)
    a("v_mul_u32_u24 v%d, 3584, v%d" % (V_T, V_T))
    a("v_lshl_add_u32 v%d, v%d, 4, v%d" % (V_PD, V_T + 1, V_T))
    a("s_and_b32 s%d, s%d, 7" % (S_T0, S_TASK))
    a("s_lshr_b32 s%d, s%d, 3" % (S_T1, S_TASK))
    a("s_mul_i32 s%d, s%d, %d" % (S_PE, S_T0, 64 * 3584))
    a("s_lshl_b32 s%d, s%d, 6" % (S_T2, S_T1))
    a("s_add_u32 s%d, s%d, s%d" % (S_PE, S_PE, S_T2))
    a("s_mov_b32 s%d, s%d" % (S_PO, S_PE))
    a("s_mov_b32 s%d, %d" % (S_PS, 16 * 3584))
    for hb, sd in ((0, S_DST0), (1, S_DST1)):
        a("s_lshl_b32 s%d, s%d, 1" % (S_T2, S_T1))
        if hb:
            a("s_add_u32 s%d, s%d, 1" % (S_T2, S_T2))
        a("s_mul_i32 s%d, s%d, 9363" % (S_CS, S_T2))
        a("s_lshr_b32 s%d, s%d, 16" % (S_CS, S_CS))
        a("s_mul_i32 s%d, s%d, 7" % (sd, S_CS))
        a("s_sub_u32 s%d, s%d, s%d" % (sd, S_T2, sd))
        a("s_mul_i32 s%d, s%d, %d" % (S_CS, S_CS, 32 * 7))
        a("s_add_u32 s%d, s%d, s%d" % (sd, sd, S_CS))
        a("s_mul_i32 s%d, s%d, 28" % (S_CS, S_T0))
        a("s_add_u32 s%d, s%d, s%d" % (sd, sd, S_CS))
        a("s_lshl_b32 s%d, s%d, 10" % (sd, sd))
        a("s_add_u32 s%d, s%d, %d" % (sd, sd, WS_GU))
    a("s_lshl_b32 s%d, s%d, 11" % (S_CS, S_T1))
    a("s_lshr_b32 s%d, s%d, 2" % (S_T2, S_T0))
    a("s_lshl_b32 s%d, s%d, 9" % (S_T2, S_T2))
    a("s_add_u32 s%d, s%d, s%d" % (S_CS, S_CS, S_T2))
    a("s_and_b32 s%d, s%d, 3" % (S_T2, S_T0))
    a("s_lshl_b32 s%d, s%d, 2" % (S_T2, S_T2))
    a("s_add_u32 s%d, s%d, s%d" % (S_CS, S_CS, S_T2))
    a("s_add_u32 s%d, s%d, %d" % (S_CS, S_CS, WS_CS))
    a("s_branch L_k2_nopack")
    a.label("L_k2_packn")
    a("s_mov_b32 s%d, 2" % S_TYPE)
    a("v_lshlrev_b32 v%d, 10, v%d" % (V_T, V_T))
    a("v_lshl_add_u32 v%d, v%d, 4, v%d" % (V_PD, V_T + 1, V_T))
    a("s_cmp_ge_u32 s%d, 512" % S_TASK)
    a("s_cbranch_scc1 L_k2_packd")
    srd(a, 28, 4, 512 * 1024)
    srd(a, 32, 4, 512 * 1024)
    a("s_sub_u32 s%d, s%d, 448" % (S_T0, S_TASK))
    a("s_lshr_b32 s%d, s%d, 2" % (S_T1, S_T0))
    a("s_and_b32 s%d, s%d, 3" % (S_T0, S_T0))
    a("s_lshl_b32 s%d, s%d, 15" % (S_DST0, S_T1))
    a("s_add_u32 s%d, s%d, %d" % (S_DST0, S_DST0, WS_WO))
    a("s_branch L_k2_packc")
    a.label("L_k2_packd")
    srd(a, 28, 6, 1792 * 1024)
    srd(a, 32, 6, 1792 * 1024)
    a("s_sub_u32 s%d, s%d, 512" % (S_T0, S_TASK))
    a("s_mul_i32 s%d, s%d, 4682" % (S_T1, S_T0))
    a("s_lshr_b32 s%d, s%d, 16" % (S_T1, S_T1))
    a("s_mul_i32 s%d, s%d, 14" % (S_T2, S_T1))
    a("s_sub_u32 s%d, s%d, s%d" % (S_T0, S_T0, S_T2))
    a("s_mul_i32 s%d, s%d, %d" % (S_DST0, S_T1, 112 * 1024))
    a("s_add_u32 s%d, s%d, %d" % (S_DST0, S_DST0, WS_WD))
    a.label("L_k2_packc")
    a("s_lshl_b32 s%d, s%d, 13" % (S_T2, S_T0))
    a("s_add_u32 s%d, s%d, s%d" % (S_DST0, S_DST0, S_T2))
    a("s_lshl_b32 s%d, s%d, 17" % (S_PE, S_T0))
    a("s_lshl_b32 s%d, s%d, 6" % (S_T2, S_T1))
    a("s_add_u32 s%d, s%d, s%d" % (S_PE, S_PE, S_T2))
    a("s_add_u32 s%d, s%d, 16384" % (S_PO, S_PE))
    a("s_mov_b32 s%d, 32768" % S_PS)
    a.label("L_k2_nopack")
    a("s_mov_b32 s%d, 0x0000ffff" % S_VMASK)
    a("s_mov_b32 s%d, 0x0000ffff" % (S_VMASK + 1))
    a("v_and_b32 v%d, 27, v%d" % (V_T, V_LANE))
    a("v_cmp_eq_u32 vcc, 16, v%d" % V_T)
    a("v_mov_b32 v%d, 0x%x" % (V_T + 1, ONES_BF16))
    a("s_nop 1")
    a("v_cndmask_b32 v%d, 0, v%d, vcc" % (V_V[0], V_T + 1))
    for i in range(1, 16):
        a("v_mov_b32 v%d, v%d" % (V_V[0] + i, V_V[0]))
    a("s_mov_b32 s%d, 0" % S_SYNC)
    a("s_mov_b32 s%d, 0" % S_PASS)
    a("s_mov_b32 s%d, 1" % S_NT)
    a("s_setprio 3")
    a.ts("k2b")
    a("s_waitcnt vmcnt(2)")
    a.ts("k2b")
    a("s_barrier")
    a.ts("k2")
    a.ts("k2b")
    a.label("L_k2_maxpass")
    a("v_mov_b32 v%d, 0xff800000" % V_MAX)
    a("v_mov_b32 v%d, v%d" % (V_KA, V_L16))
    a.label("L_k2_mloop")
    a("ds_read_b128 %s, v%d" % (vr(V_K[0]), V_KA))
    a("v_add_u32 v%d, 1024, v%d" % (V_KA, V_KA))
    a("s_waitcnt lgkmcnt(0)")
    a("v_mfma_f32_32x32x16_bf16 %s, %s, %s, 0" % (vr(V_S[0], 16), vr(V_K[0]), vr(V_Q)))
    a("s_nop 15")
    for i in range(8):
        a("v_max3_f32 v%d, v%d, v%d, v%d" % (V_MAX, V_S[0] + 2 * i, V_S[0] + 2 * i + 1, V_MAX))
    a("s_sub_u32 s%d, s%d, 1" % (S_NT, S_NT))
    a("s_cmp_lg_u32 s%d, 0" % S_NT)
    a("s_cbranch_scc1 L_k2_mloop")
    a("v_mov_b32 v%d, v%d" % (V_KA, V_L16))
    a("v_lshrrev_b32 v%d, 5, v%d" % (V_T, V_LANE))
    a("v_lshlrev_b32 v%d, 8, v%d" % (V_T, V_T))
    a("v_and_b32 v%d, 15, v%d" % (V_T + 1, V_LANE))
    a("v_lshl_add_u32 v%d, v%d, 4, v%d" % (V_VA, V_T + 1, V_T))
    a("v_add_u32 v%d, 65536, v%d" % (V_VA, V_VA))
    a("ds_read_b128 %s, v%d" % (vr(V_K[0]), V_KA))
    a("ds_read_b128 %s, v%d offset:1024" % (vr(V_K[1]), V_KA))
    a("s_mov_b64 exec, s[%d:%d]" % (S_VMASK, S_VMASK + 1))
    a("ds_read_b128 %s, v%d" % (vr(V_V[0]), V_VA))
    a("ds_read_b128 %s, v%d offset:512" % (vr(V_V[0] + 4), V_VA))
    a("s_mov_b64 exec, -1")
    a("v_mov_b32 v%d, v%d" % (V_T, V_MAX))
    a("s_nop 1")
    a("v_permlane32_swap_b32 v%d, v%d" % (V_MAX, V_T))
    a("s_nop 1")
    a("v_max_f32 v%d, v%d, v%d" % (V_MAX, V_MAX, V_T))
    for i in range(16):
        a("v_sub_f32 v%d, 0, v%d" % (V_CM + i, V_MAX))
    a("s_waitcnt lgkmcnt(0)")
    a("s_nop 0")
    a("v_mfma_f32_32x32x16_bf16 %s, %s, %s, %s" % (vr(V_S[0], 16), vr(V_K[0]), vr(V_Q), vr(V_CM, 16)))
    for i in range(16):
        a("v_mov_b32 v%d, 0" % (V_O + i))
    for i in range(4):
        a("v_mov_b32 v%d, 0" % (V_P + 4 + i))
    a("s_mov_b32 s%d, 8" % S_ITER)
    a.ts("k2")
    a("s_cmp_lg_u32 s%d, 0" % S_PASS)
    a("s_cbranch_scc1 L_k2_loop")

    def body(peeled):
        for t in range(8):
            cur, nxt = t % 2, (t + 1) % 2
            x1, x2 = [], []
            if peeled:
                if t < 6:
                    x1, x2 = kv_dma(t + 2)
                if t == 6:
                    a("s_waitcnt vmcnt(12)")
                    a("s_barrier")
                if t >= 6:
                    lab = "L_k2_np%d" % t
                    x1 = ["s_cmp_eq_u32 s%d, 0" % S_TYPE, "s_cbranch_scc1 %s" % lab]
                    for i in range(4 * (t - 6), 4 * (t - 6) + 4):
                        x1 += ["s_add_u32 m0, s%d, %d" % (S_STG, i * 1024), "s_nop 0",
                               "buffer_load_dwordx4 v%d, s[%d:%d], s%d offen lds" % (V_PD, 28 + 4 * (i % 2), 31 + 4 * (i % 2), S_PO if i % 2 else S_PE),
                               "s_add_u32 s%d, s%d, s%d" % ((S_PO, S_PO, S_PS) if i % 2 else (S_PE, S_PE, S_PS))]
                    x1 += [lab + ":"]
            else:
                if t == 0:
                    for k, r in enumerate((5, 2, 1)):
                        x1 += ["s_cmp_lg_u32 s%d, %d" % (S_ITER, r), "s_cbranch_scc1 L_k2_pp%d" % k, "s_setprio %d" % (2 - k), "L_k2_pp%d:" % k]
                if t == 6:
                    a("s_cmp_eq_u32 s%d, 0" % S_SYNC)
                    a("s_cbranch_scc1 L_k2_sync")
                    a.label("L_k2_syncret")
            S = V_S[cur]
            e = lambda i: "v_exp_f32 v%d, v%d" % (S + i, S + i)
            c = lambda i: "v_cvt_pk_bf16_f32 v%d, v%d, v%d" % (V_P + i, S + 2 * i, S + 2 * i + 1)
            pv = lambda b, h: "v_mfma_f32_32x32x16_bf16 %s, %s, %s, %s" % (vr(V_O, 16), vr(V_V[b] + 4 * h), vr(V_P + 4 * h), vr(V_O, 16))
            qk = "v_mfma_f32_32x32x16_bf16 %s, %s, %s, %s" % (vr(V_S[nxt], 16), vr(V_K[nxt]), vr(V_Q), vr(V_CM, 16))
            rdk = "ds_read_b128 %s, v%d offset:%d" % (vr(V_K[cur]), V_KA, (t + 2) * 1024)
            rdv = ["s_mov_b64 exec, s[%d:%d]" % (S_VMASK, S_VMASK + 1),
                   "ds_read_b128 %s, v%d offset:%d" % (vr(V_V[nxt]), V_VA, (t + 1) * 1024),
                   "ds_read_b128 %s, v%d offset:%d" % (vr(V_V[nxt] + 4), V_VA, (t + 1) * 1024 + 512),
                   "s_mov_b64 exec, -1"]
            seq = [e(0), e(1), pv(nxt, 1), e(2), "s_waitcnt lgkmcnt(0)", rdk, e(3)] + rdv + [c(0), e(4), e(5), c(1), e(6), e(7), qk, c(2), e(8)] + x1 + [e(9), c(3),
                   e(10), e(11), c(4), e(12), e(13), pv(cur, 0), c(5), e(14)] + x2 + [e(15), c(6)]
            if t == 7:
                seq += ["v_add_u32 v%d, 8192, v%d" % (V_KA, V_KA), "v_add_u32 v%d, 8192, v%d" % (V_VA, V_VA),
                        "s_sub_u32 s%d, s%d, 1" % (S_ITER, S_ITER), "s_cmp_lg_u32 s%d, 0" % S_ITER]
            seq += [c(7)]
            for l in seq:
                if l.endswith(":"):
                    a.label(l[:-1])
                else:
                    a(l)

    body(True)
    a.raw(".p2align 6")
    a.label("L_k2_loop")
    body(False)
    a("s_cbranch_scc1 L_k2_loop")
    a.ts("k2")
    a("s_nop 1")
    a("v_mfma_f32_32x32x16_bf16 %s, %s, %s, %s" % (vr(V_O, 16), vr(V_V[1] + 4), vr(V_P + 4), vr(V_O, 16)))
    a("s_waitcnt lgkmcnt(0)")
    a("s_lshl_b32 s%d, s%d, 3" % (S_T0, S_QB))
    a("s_add_u32 s%d, s%d, s%d" % (S_T0, S_T0, S_WAVE))
    a("s_lshl_b32 s%d, s%d, 5" % (S_T0, S_T0))
    a("s_add_u32 s%d, s%d, s%d" % (S_T0, S_T0, S_H))
    a("s_lshl_b32 s%d, s%d, 10" % (S_T0, S_T0))
    a("s_add_u32 s%d, s%d, %d" % (S_T0, S_T0, WS_O))
    a("s_nop 7")
    a("v_mul_f32 v%d, 0, v%d" % (V_T, V_O))
    for i in range(1, 8):
        a("v_fmac_f32 v%d, 0, v%d" % (V_T, V_O + i))
    a("v_add_f32 v%d, v%d, v%d" % (V_T, V_T, V_O + 8))
    a("v_cmp_gt_f32 vcc, 0x%x, v%d" % (f32bits(2.0 ** 100), V_T))
    a("v_rcp_f32 v%d, v%d" % (V_T + 1, V_O + 8))
    a("s_cmp_lg_u32 s%d, 0" % S_PASS)
    a("s_cbranch_scc1 L_k2_fin")
    a("s_cmp_eq_u64 vcc, exec")
    a("s_cbranch_scc1 L_k2_fin")
    a("s_mov_b32 s%d, 1" % S_PASS)
    a("s_mov_b32 s%d, 64" % S_NT)
    a("s_branch L_k2_maxpass")
    a.label("L_k2_fin")
    for i in range(8):
        a("v_mul_f32 v%d, v%d, v%d" % (V_O + i, V_T + 1, V_O + i))
    for i in range(4):
        a("v_cvt_pk_bf16_f32 v%d, v%d, v%d" % (V_P + i, V_O + 2 * i, V_O + 2 * i + 1))
    a("buffer_store_dwordx4 %s, v%d, s[20:23], s%d offen" % (vr(V_P), V_L16, S_T0))
    a.ts_flush("k2", S_WAVE, V_T)
    a.ts_flush("k2b", S_WAVE, V_T)
    a.label("L_k2_end")
    a("s_endpgm")
    a.label("L_k2_sync")
    a("s_mov_b32 s%d, 1" % S_SYNC)
    a("s_waitcnt vmcnt(0)")
    a("s_barrier")
    a("s_cmp_eq_u32 s%d, 0" % S_TYPE)
    a("s_cbranch_scc1 L_k2_syncret")
    a("v_bfe_u32 v%d, v%d, 2, 2" % (V_T, V_LANE))
    a("v_lshrrev_b32 v%d, 5, v%d" % (V_T + 1, V_LANE))
    a("v_lshl_add_u32 v%d, v%d, 2, v%d" % (V_T, V_T + 1, V_T))
    a("v_lshlrev_b32 v%d, 6, v%d" % (V_T, V_T))
    a("v_and_b32 v%d, 3, v%d" % (V_T + 1, V_LANE))
    a("v_lshl_add_u32 v%d, v%d, 3, v%d" % (V_T, V_T + 1, V_T))
    a("v_add_u32 v%d, s%d, v%d" % (V_T, S_STG, V_T))
    a("v_bfe_u32 v%d, v%d, 4, 1" % (V_T + 1, V_LANE))
    FB = [128 + 4 * i for i in range(8)]
    a("s_cmp_eq_u32 s%d, 2" % S_TYPE)
    a("s_cbranch_scc1 L_k2_pk2")
    a("v_lshl_add_u32 v%d, v%d, 10, v%d" % (V_PK, V_T + 1, V_T))
    for ks in range(4):
        for hb in range(2):
            for rd in range(2):
                a("ds_read_b64_tr_b16 %s, v%d offset:%d" % (vr(FB[ks * 2 + hb] + 2 * rd, 2), V_PK, ks * 2048 + hb * 32 + rd * 512))
    make_sel(a, V_LANE, V_SEL, V_T + 2)
    a("v_and_b32 v%d, 31, v%d" % (V_T, V_LANE))
    a("v_lshlrev_b32 v%d, 4, v%d" % (V_T, V_T))
    a("s_waitcnt lgkmcnt(0)")
    for ks in range(4):
        for hb in range(2):
            a("v_mfma_f32_16x16x32_bf16 %s, %s, %s, %s" % (vr(V_PCS[hb]), vr(V_SEL), vr(FB[ks * 2 + hb]), "0" if ks == 0 else vr(V_PCS[hb])))
            a("buffer_store_dwordx4 %s, v%d, s[20:23], s%d offen" % (vr(FB[ks * 2 + hb]), V_L16, (S_DST0, S_DST1)[hb]))
        a("s_add_u32 s%d, s%d, 7168" % (S_DST0, S_DST0))
        a("s_add_u32 s%d, s%d, 7168" % (S_DST1, S_DST1))
    a("s_nop 7")
    a("buffer_store_dword v%d, v%d, s[20:23], s%d offen" % (V_PCS[0], V_T, S_CS))
    a("buffer_store_dword v%d, v%d, s[20:23], s%d offen offset:1024" % (V_PCS[1], V_T, S_CS))
    a("s_branch L_k2_syncret")
    a.label("L_k2_pk2")
    a("v_lshl_add_u32 v%d, v%d, 5, v%d" % (V_PK, V_T + 1, V_T))
    a("s_add_u32 s%d, s%d, 4096" % (S_DST1, S_DST0))
    for f in range(8):
        for rd in range(2):
            a("ds_read_b64_tr_b16 %s, v%d offset:%d" % (vr(FB[f] + 2 * rd, 2), V_PK, f * 1024 + rd * 512))
    a("s_waitcnt lgkmcnt(0)")
    for f in range(8):
        a("buffer_store_dwordx4 %s, v%d, s[20:23], s%d offen offset:%d" % (vr(FB[f]), V_L16, S_DST0 if f < 4 else S_DST1, (f % 4) * 1024))
    a("s_branch L_k2_syncret")
    return name, 160, 0, (256, 512, 163840)


def gen_k35(a, which):
    name = "k3_wo_kernel" if which == 3 else "k5_down_kernel"
    L = "L_k%d_" % which
    kernel_begin(a, name)
    NS = 8 if which == 3 else 28
    STEPS = 32 if which == 3 else 112
    WIN = 8 if which == 3 else 14
    A_BASE = WS_O if which == 3 else WS_A
    W_BASE = WS_WO if which == 3 else WS_WD
    S_WAVE, S_RB, S_CG, S_T0, S_T1 = 24, 25, 26, 27, 28
    S_A = [30, 31]
    S_W = [32, 33]
    S_TB, S_NB = 34, 35
    V_LANE, V_L16, V_T = 1, 2, 3
    V_RES = 12
    V_ACC = [32, 48, 64, 80]
    V_RD = 96
    a("s_cmp_ge_u32 s2, 256")
    a("s_cbranch_scc1 %send" % L)
    a.ts("k%d" % which)
    a("s_load_dwordx2 s[8:9], s[0:1], %d" % ARG_WS)
    a("s_load_dwordx2 s[4:5], s[0:1], %d" % (ARG_X if which == 3 else ARG_OUT))
    a("v_lshrrev_b32 v%d, 6, v0" % V_T)
    a("v_and_b32 v%d, 63, v0" % V_LANE)
    a("v_readfirstlane_b32 s%d, v%d" % (S_WAVE, V_T))
    a("v_lshlrev_b32 v%d, 4, v%d" % (V_L16, V_LANE))
    a("s_and_b32 s%d, s2, 7" % S_RB)
    a("s_lshl_b32 s%d, s%d, 2" % (S_RB, S_RB))
    a("s_lshr_b32 s%d, s2, 3" % S_T0)
    a("s_and_b32 s%d, s%d, 3" % (S_T1, S_T0))
    a("s_add_u32 s%d, s%d, s%d" % (S_RB, S_RB, S_T1))
    a("s_lshr_b32 s%d, s%d, 2" % (S_CG, S_T0))
    a("s_lshr_b32 s%d, s%d, 1" % (S_T0, S_WAVE))
    a("s_lshl_b32 s%d, s%d, 1" % (S_TB, S_RB))
    a("s_add_u32 s%d, s%d, s%d" % (S_TB, S_TB, S_T0))
    a("s_and_b32 s%d, s%d, 1" % (S_T0, S_WAVE))
    a("s_lshl_b32 s%d, s%d, 1" % (S_NB, S_CG))
    a("s_add_u32 s%d, s%d, s%d" % (S_NB, S_NB, S_T0))
    a("s_mul_i32 s%d, s%d, %d" % (S_T1, S_WAVE, NS * 1024))
    for i in range(2):
        a("s_xor_b32 s%d, s%d, %d" % (S_T0, S_TB, i))
        a("s_mul_i32 s%d, s%d, %d" % (S_A[i], S_T0, STEPS * 1024))
        a("s_add_u32 s%d, s%d, s%d" % (S_A[i], S_A[i], S_T1))
        a("s_add_u32 s%d, s%d, %d" % (S_A[i], S_A[i], A_BASE))
        a("s_xor_b32 s%d, s%d, %d" % (S_T0, S_NB, i))
        a("s_mul_i32 s%d, s%d, %d" % (S_W[i], S_T0, STEPS * 1024))
        a("s_add_u32 s%d, s%d, s%d" % (S_W[i], S_W[i], S_T1))
        a("s_add_u32 s%d, s%d, %d" % (S_W[i], S_W[i], W_BASE))
    a("s_waitcnt lgkmcnt(0)")
    srd(a, 20, 8, WS_SIZE)
    srd(a, 12, 4, 2048 * 1024)

    def frag(p, kind, i):
        return (p % WIN) * 16 + kind * 8 + i * 4

    def loads(p):
        out = []
        if p > 0 and p % 4 == 0:
            for s in S_A + S_W:
                out.append("s_add_u32 s%d, s%d, 4096" % (s, s))
        off = (p % 4) * 1024
        for i in range(2):
            out.append("buffer_load_dwordx4 %s, v%d, s[20:23], s%d offen offset:%d" % (ar(frag(p, 0, i)), V_L16, S_A[i], off))
            out.append("buffer_load_dwordx4 %s, v%d, s[20:23], s%d offen offset:%d" % (ar(frag(p, 1, i)), V_L16, S_W[i], off))
        return out

    for p in range(WIN):
        for l in loads(p):
            a(l)
    a("v_and_b32 v%d, 31, v%d" % (V_T, V_LANE))
    a("v_lshlrev_b32 v%d, 10, v%d" % (V_T, V_T))
    a("v_lshrrev_b32 v%d, 5, v%d" % (V_T + 1, V_LANE))
    a("v_lshl_add_u32 v%d, v%d, 3, v%d" % (V_T, V_T + 1, V_T))
    a("s_lshl_b32 s36, s%d, 15" % S_TB)
    a("s_lshl_b32 s%d, s%d, 6" % (S_T0, S_NB))
    a("s_add_u32 s36, s36, s%d" % S_T0)
    a("s_lshl_b32 s37, s%d, 5" % S_TB)
    a("s_lshl_b32 s%d, s%d, 1" % (S_T0, S_NB))
    a("s_add_u32 s37, s37, s%d" % S_T0)
    a("s_lshl_b32 s37, s37, 10")
    a("s_add_u32 s37, s37, %d" % WS_H)
    a.ts("k%d" % which)
    issued = WIN
    NRES = 4 if which == 3 else 2
    res_done = False
    for p in range(NS):
        younger = 4 * (issued - p - 1) + (NRES if res_done else 0)
        a("s_waitcnt vmcnt(%d)" % younger)
        for ti in range(2):
            for ni in range(2):
                acc = V_ACC[ti * 2 + ni]
                a("v_mfma_f32_32x32x16_bf16 %s, %s, %s, %s" % (vr(acc, 16), ar(frag(p, 1, ni)), ar(frag(p, 0, ti)), "0" if p == 0 else vr(acc, 16)))
        if issued < NS:
            for l in loads(issued):
                a(l)
            issued += 1
        elif not res_done:
            if which == 3:
                for q in range(4):
                    a("buffer_load_dwordx2 %s, v%d, s[12:15], s36 offen offset:%d" % (vr(V_RES + 2 * q, 2), V_T, q * 16))
            else:
                for q in range(2):
                    a("buffer_load_dwordx4 %s, v%d, s[20:23], s37 offen offset:%d" % (vr(V_RES + 4 * q), V_L16, q * 1024))
            res_done = True
    a.ts("k%d" % which)
    a("s_nop 7")
    for t in range(1, 4):
        a("s_xor_b32 s%d, s%d, %d" % (S_T0, S_WAVE, t))
        a("s_mul_i32 s%d, s%d, 12288" % (S_T0, S_T0))
        a("v_add_u32 v%d, s%d, v%d" % (V_T + 1 + t, S_T0, V_L16))
    a("s_nop 3")
    for t in range(1, 4):
        for q in range(4):
            a("ds_write_b128 v%d, %s offset:%d" % (V_T + 1 + t, vr(V_ACC[t] + 4 * q), (t - 1) * 4096 + q * 1024))
    a("s_mul_i32 s%d, s%d, 12288" % (S_T0, S_WAVE))
    a("v_add_u32 v%d, s%d, v%d" % (V_T + 1, S_T0, V_L16))
    a("s_waitcnt lgkmcnt(0)")
    a("s_barrier")
    for t in range(3):
        for q in range(4):
            a("ds_read_b128 %s, v%d offset:%d" % (vr(V_RD + 16 * t + 4 * q), V_T + 1, t * 4096 + q * 1024))
    A0 = V_ACC[0]
    U = V_ACC[1]
    a("s_mov_b32 s38, 0xffff0000")
    a("s_waitcnt vmcnt(0)")
    for d in range(8):
        a("v_lshlrev_b32 v%d, 16, v%d" % (U + 2 * d, V_RES + d))
        a("v_and_b32 v%d, s38, v%d" % (U + 2 * d + 1, V_RES + d))
    for i in range(16):
        a("v_add_f32 v%d, v%d, v%d" % (A0 + i, A0 + i, U + i))
    for t in range(3):
        a("s_waitcnt lgkmcnt(%d)" % (8 - 4 * t))
        for i in range(16):
            a("v_add_f32 v%d, v%d, v%d" % (A0 + i, A0 + i, V_RD + 16 * t + i))
    O = V_ACC[2]
    for i in range(8):
        a("v_cvt_pk_bf16_f32 v%d, v%d, v%d" % (O + i, A0 + 2 * i, A0 + 2 * i + 1))
    if which == 3:
        for q in range(2):
            a("buffer_store_dwordx4 %s, v%d, s[20:23], s37 offen offset:%d" % (vr(O + 4 * q), V_L16, q * 1024))
        for d in range(8):
            a("v_lshlrev_b32 v%d, 16, v%d" % (U + 2 * d, O + d))
            a("v_and_b32 v%d, s38, v%d" % (U + 2 * d + 1, O + d))
        S1, S2 = V_RD, V_RD + 1
        a("v_add_f32 v%d, v%d, v%d" % (S1, U, U + 1))
        a("v_mul_f32 v%d, v%d, v%d" % (S2, U, U))
        a("v_fmac_f32 v%d, v%d, v%d" % (S2, U + 1, U + 1))
        for i in range(2, 16):
            a("v_add_f32 v%d, v%d, v%d" % (S1, S1, U + i))
            a("v_fmac_f32 v%d, v%d, v%d" % (S2, U + i, U + i))
        sum_halves(a, S1, V_RD + 2)
        sum_halves(a, S2, V_RD + 3)
        a("s_lshl_b32 s%d, s%d, 4" % (S_T0, S_TB))
        a("s_add_u32 s%d, s%d, s%d" % (S_T0, S_T0, S_NB))
        a("s_lshl_b32 s%d, s%d, 8" % (S_T0, S_T0))
        a("s_add_u32 s%d, s%d, %d" % (S_T0, S_T0, WS_ST))
        a("v_and_b32 v%d, 31, v%d" % (V_T, V_LANE))
        a("v_lshlrev_b32 v%d, 3, v%d" % (V_T, V_T))
        a("buffer_store_dwordx2 %s, v%d, s[20:23], s%d offen" % (vr(S1, 2), V_T, S_T0))
    else:
        for q in range(4):
            a("buffer_store_dwordx2 %s, v%d, s[12:15], s36 offen offset:%d" % (vr(O + 2 * q, 2), V_T, q * 16))
    a.ts_flush("k%d" % which, S_WAVE, V_T)
    a.label(L + "end")
    a("s_endpgm")
    return name, 144, WIN * 16, (256, 256, 49152)


def gen_k4(a):
    name = "k4_glu_kernel"
    kernel_begin(a, name)
    SL4, NS4 = 45056, 3
    S_WAVE, S_RB, S_CG, S_KC, S_SH, S_SW, S_T0, S_T1, S_MASK, S_M0 = 24, 25, 26, 27, 28, 29, 30, 31, 32, 33
    S_TB, S_ROLE, S_M0H = 34, 42, 35
    V_LANE, V_L16, V_T = 1, 2, 3
    V_AW, V_AH = 12, 13
    V_ST = 16
    V_CSL = 32
    V_H = [60, 244]
    V_W = [64, 92]
    V_ACC = [120 + 16 * b for b in range(7)]
    V_TMP = 232
    a("s_cmp_ge_u32 s2, 256")
    a("s_cbranch_scc1 L_k4_end")
    a.ts("k4")
    a("s_load_dwordx2 s[8:9], s[0:1], %d" % ARG_WS)
    a("v_lshrrev_b32 v%d, 6, v0" % V_T)
    a("v_and_b32 v%d, 63, v0" % V_LANE)
    a("v_readfirstlane_b32 s%d, v%d" % (S_ROLE, V_T))
    a("v_lshlrev_b32 v%d, 4, v%d" % (V_L16, V_LANE))
    a("s_and_b32 s3, s2, 7")
    a("s_lshr_b32 s%d, s2, 3" % S_T0)
    a("s_lshr_b32 s%d, s3, 2" % S_RB)
    a("s_lshl_b32 s%d, s%d, 3" % (S_RB, S_RB))
    a("s_and_b32 s%d, s%d, 7" % (S_T1, S_T0))
    a("s_add_u32 s%d, s%d, s%d" % (S_RB, S_RB, S_T1))
    a("s_and_b32 s%d, s3, 3" % S_CG)
    a("s_lshl_b32 s%d, s%d, 2" % (S_CG, S_CG))
    a("s_lshr_b32 s%d, s%d, 3" % (S_T1, S_T0))
    a("s_add_u32 s%d, s%d, s%d" % (S_CG, S_CG, S_T1))
    a("s_and_b32 s%d, s%d, 3" % (S_WAVE, S_ROLE))
    a("s_lshl_b32 s%d, s%d, 2" % (S_TB, S_RB))
    a("s_add_u32 s%d, s%d, s%d" % (S_TB, S_TB, S_WAVE))
    a("s_lshl_b32 s%d, s%d, 12" % (S_M0H, S_WAVE))
    a("s_add_u32 s%d, s%d, 28672" % (S_M0H, S_M0H))
    a("s_cmp_ge_u32 s%d, 4" % S_ROLE)
    a("s_cbranch_scc1 L_k4_compute")
    if K4_ROT:
        a("s_add_u32 s%d, s%d, s%d" % (S_KC, S_RB, S_CG))
        a("s_and_b32 s%d, s%d, 7" % (S_KC, S_KC))
    else:
        a("s_mov_b32 s%d, 0" % S_KC)
    a("s_lshl_b32 s%d, s%d, 15" % (S_SH, S_TB))
    a("s_add_u32 s%d, s%d, %d" % (S_SH, S_SH, WS_H))
    a("s_mul_i32 s%d, s%d, 7168" % (S_M0, S_WAVE))
    a("s_mul_i32 s%d, s%d, %d" % (S_SW, S_CG, 32 * 7 * 1024))
    a("s_add_u32 s%d, s%d, s%d" % (S_SW, S_SW, S_M0))
    a("s_add_u32 s%d, s%d, %d" % (S_SW, S_SW, WS_GU))
    S_OH, S_OW, S_SLOT, S_CNT = 38, 39, 40, 41
    a("s_mov_b32 s%d, 0" % S_SLOT)
    a("s_mov_b32 s%d, 0" % S_CNT)
    a("s_waitcnt lgkmcnt(0)")
    srd(a, 20, 8, WS_SIZE)
    a.label("L_k4_ld")
    a("s_lshl_b32 s%d, s%d, 12" % (S_OH, S_KC))
    a("s_add_u32 s%d, s%d, s%d" % (S_OH, S_OH, S_SH))
    a("s_add_u32 m0, s%d, s%d" % (S_M0H, S_SLOT))
    a("s_mul_i32 s%d, s%d, %d" % (S_OW, S_KC, SLOT))
    for q in range(4):
        a("buffer_load_dwordx4 v%d, s[20:23], s%d offen offset:%d lds" % (V_L16, S_OH, q * 1024))
    a("s_add_u32 m0, s%d, s%d" % (S_M0, S_SLOT))
    a("s_add_u32 s%d, s%d, s%d" % (S_OW, S_OW, S_SW))
    for q in range(4):
        a("buffer_load_dwordx4 v%d, s[20:23], s%d offen offset:%d lds" % (V_L16, S_OW, q * 1024))
    a("s_add_u32 m0, m0, 4096")
    a("s_add_u32 s%d, s%d, 4096" % (S_OW, S_OW))
    for q in range(3):
        a("buffer_load_dwordx4 v%d, s[20:23], s%d offen offset:%d lds" % (V_L16, S_OW, q * 1024))
    a("s_add_u32 s%d, s%d, 1" % (S_KC, S_KC))
    a("s_and_b32 s%d, s%d, 7" % (S_KC, S_KC))
    a("s_add_u32 s%d, s%d, %d" % (S_SLOT, S_SLOT, SL4))
    a("s_cmp_eq_u32 s%d, %d" % (S_SLOT, NS4 * SL4))
    a("s_cselect_b32 s%d, 0, s%d" % (S_SLOT, S_SLOT))
    a("s_add_u32 s%d, s%d, 1" % (S_CNT, S_CNT))
    a("s_cmp_lt_u32 s%d, 2" % S_CNT)
    a("s_cbranch_scc1 L_k4_ld")
    a("s_waitcnt vmcnt(11)")
    a("s_barrier")
    a("s_cmp_lt_u32 s%d, 8" % S_CNT)
    a("s_cbranch_scc1 L_k4_ld")
    a("s_waitcnt vmcnt(0)")
    a("s_barrier")
    a("s_endpgm")
    a.label("L_k4_compute")
    a("s_mov_b32 s%d, 0xffff0000" % S_MASK)
    a("v_mov_b32 v%d, v%d" % (V_AW, V_L16))
    a("v_add_u32 v%d, s%d, v%d" % (V_AH, S_M0H, V_L16))
    a("v_and_b32 v%d, 31, v%d" % (V_T, V_LANE))
    a("v_lshlrev_b32 v%d, 3, v%d" % (V_T, V_T))
    a("v_lshrrev_b32 v%d, 5, v%d" % (V_T + 1, V_LANE))
    a("v_lshl_add_u32 v%d, v%d, 11, v%d" % (V_T, V_T + 1, V_T))
    a("s_waitcnt lgkmcnt(0)")
    srd(a, 20, 8, WS_SIZE)
    cur_base = [0]

    def reads(P):
        st, pos = P // 4, P % 4
        base = (st % NS4) * SL4
        out = []
        if base != cur_base[0]:
            d = base - cur_base[0]
            for r in (V_AW, V_AH):
                out.append("v_add_u32 v%d, %d, v%d" % (r, d, r) if d > 0 else "v_subrev_u32 v%d, %d, v%d" % (r, -d, r))
            cur_base[0] = base
        b = P % 2
        out.append("ds_read_b128 %s, v%d offset:%d" % (vr(V_H[b]), V_AH, pos * 1024))
        for blk in range(7):
            out.append("ds_read_b128 %s, v%d offset:%d" % (vr(V_W[b] + 4 * blk), V_AW, (pos * 7 + blk) * 1024))
        return out

    extra = {}
    g = ["s_lshl_b32 s%d, s%d, 12" % (S_T0, S_TB), "s_add_u32 s%d, s%d, %d" % (S_T0, S_T0, WS_ST)]
    for i in range(8):
        g.append("buffer_load_dwordx2 %s, v%d, s[20:23], s%d offen offset:%d" % (vr(V_ST + 2 * i, 2), V_T, S_T0, i * 256))
    extra[8], extra[9], extra[10] = g[:4], g[4:7], g[7:]
    g = ["s_mul_i32 s%d, s%d, 7168" % (S_T0, S_CG), "s_add_u32 s%d, s%d, %d" % (S_T0, S_T0, WS_CS), "s_add_u32 s%d, s%d, 4096" % (S_T1, S_T0)]
    for blk in range(7):
        g.append("buffer_load_dwordx4 %s, v%d, s[20:23], s%d offen offset:%d" % (vr(V_CSL + 4 * blk), V_L16, S_T0 if blk < 4 else S_T1, (blk % 4) * 1024))
    extra[12], extra[13], extra[14] = g[:5], g[5:8], g[8:]
    a.ts("k4")
    a("s_barrier")
    a.ts("k4")
    for l in reads(0):
        a(l)
    for P in range(32):
        st, pos = P // 4, P % 4
        b = P % 2
        a("s_waitcnt lgkmcnt(0)")
        if pos == 3 and P < 31:
            a("s_barrier")
        rd = reads(P + 1) if P < 31 else []
        m = []
        for blk in range(7):
            m.append("v_mfma_f32_32x32x16_bf16 %s, %s, %s, %s" % (vr(V_ACC[blk], 16), vr(V_W[b] + 4 * blk), vr(V_H[b]), "0" if P == 0 else vr(V_ACC[blk], 16)))
        for l in interleave(m, rd + extra.get(P, []), per=2):
            a(l)
    a.ts("k4")
    a("s_waitcnt vmcnt(0)")
    S1, S2 = V_T + 2, V_T + 3
    a("v_add_f32 v%d, v%d, v%d" % (S1, V_ST, V_ST + 2))
    a("v_add_f32 v%d, v%d, v%d" % (S2, V_ST + 1, V_ST + 3))
    for i in range(2, 8):
        a("v_add_f32 v%d, v%d, v%d" % (S1, S1, V_ST + 2 * i))
        a("v_add_f32 v%d, v%d, v%d" % (S2, S2, V_ST + 2 * i + 1))
    sum_halves(a, S1, V_T + 4)
    sum_halves(a, S2, V_T + 4)
    V_MU, V_VAR, V_RS, V_C1, V_C2 = V_T + 4, V_T + 5, V_T + 6, V_T + 7, V_T + 8
    a("v_mul_f32 v%d, 0x%x, v%d" % (V_MU, f32bits(1.0 / 512), S1))
    a("v_mul_f32 v%d, 0x%x, v%d" % (V_VAR, f32bits(1.0 / 512), S2))
    a("v_fma_f32 v%d, -v%d, v%d, v%d" % (V_VAR, V_MU, V_MU, V_VAR))
    a("v_max_f32 v%d, 0, v%d" % (V_VAR, V_VAR))
    a("v_add_f32 v%d, 0x%x, v%d" % (V_VAR, f32bits(1e-5), V_VAR))
    a("v_rsq_f32 v%d, v%d" % (V_RS, V_VAR))
    a("v_sub_f32 v%d, 0, v%d" % (V_MU, V_MU))
    VB = V_ST
    split_hi_lo_B(a, V_MU, VB, V_T, S_MASK)
    c1 = -2.0 * math.sqrt(2.0 / math.pi) * math.log2(math.e)
    a("v_mul_f32 v%d, 0x%x, v%d" % (V_C1, f32bits(c1), V_RS))
    a("v_mul_f32 v%d, v%d, v%d" % (V_C2, V_RS, V_RS))
    a("v_mul_f32 v%d, v%d, v%d" % (V_C2, V_C2, V_C1))
    a("v_mul_f32 v%d, 0x%x, v%d" % (V_C2, f32bits(0.044715), V_C2))
    for blk in range(7):
        c = V_CSL + 4 * blk
        a("v_add_f32 v%d, v%d, v%d" % (c, c, c + 1))
        a("v_add_f32 v%d, v%d, v%d" % (c + 2, c + 2, c + 3))
        a("v_add_f32 v%d, v%d, v%d" % (c, c, c + 2))
        split_hi_lo_A(a, c, V_W[0] + 4 * blk, V_T, S_MASK)
    a("s_nop 1")
    for blk in range(7):
        a("v_mfma_f32_32x32x16_bf16 %s, %s, %s, %s" % (vr(V_ACC[blk], 16), vr(V_W[0] + 4 * blk), vr(VB), vr(V_ACC[blk], 16)))
    a("s_mul_i32 s%d, s%d, 112" % (S_T0, S_TB))
    a("s_mul_i32 s%d, s%d, 7" % (S_T1, S_CG))
    a("s_add_u32 s%d, s%d, s%d" % (S_T0, S_T0, S_T1))
    a("s_lshl_b32 s%d, s%d, 10" % (S_T0, S_T0))
    a("s_add_u32 s%d, s%d, %d" % (S_T0, S_T0, WS_A))
    a("s_add_u32 s%d, s%d, 4096" % (S_T1, S_T0))
    a("s_nop 7")
    for blk in range(7):
        G = V_ACC[blk]
        Uu = G + 8
        T = V_TMP
        for i in range(8):
            a("v_mul_f32 v%d, v%d, v%d" % (T + i, G + i, G + i))
        for i in range(8):
            a("v_fma_f32 v%d, v%d, v%d, v%d" % (T + i, T + i, V_C2, V_C1))
        for i in range(8):
            a("v_mul_f32 v%d, v%d, v%d" % (T + i, T + i, G + i))
        for i in range(8):
            a("v_exp_f32 v%d, v%d" % (T + i, T + i))
        for i in range(8):
            a("v_mul_f32 v%d, v%d, v%d" % (G + i, G + i, Uu + i))
        for i in range(8):
            a("v_fma_f32 v%d, v%d, v%d, v%d" % (T + i, T + i, V_VAR, V_VAR))
        for i in range(8):
            a("v_rcp_f32 v%d, v%d" % (T + i, T + i))
        a("s_nop 0")
        for i in range(8):
            a("v_mul_f32 v%d, v%d, v%d" % (G + i, G + i, T + i))
        o = V_TMP + 8 + 4 * (blk % 4)
        for i in range(4):
            a("v_cvt_pk_bf16_f32 v%d, v%d, v%d" % (o + i, G + 2 * i, G + 2 * i + 1))
        a("buffer_store_dwordx4 %s, v%d, s[20:23], s%d offen offset:%d" % (vr(o), V_L16, S_T0 if blk < 4 else S_T1, (blk % 4) * 1024))
    a.ts_flush("k4", S_WAVE, V_T)
    a.label("L_k4_end")
    a("s_endpgm")
    return name, 256, 0, (256, 512, NS4 * SL4)


def main():
    hdr = open("cdna_kernels/%s.s.ref" % NAME).read().split("\n")
    head = [l for l in hdr if l.startswith(";") and "@launch" not in l and "Override launch" not in l and "grid=ceil" not in l]
    a = Asm()
    ks = []
    ks.append(gen_k1(a))
    ks.append(gen_k2(a))
    ks.append(gen_k35(a, 3))
    ks.append(gen_k4(a))
    ks.append(gen_k35(a, 5))
    out = "\n".join(head) + "\n"
    for name, nv, na, (g, b, lds) in ks:
        out += "; @launch kernel=%s grid=(%d,1,1) block=(%d,1,1) lds=%d\n" % (name, g, b, lds)
    out += '.amdgcn_target "amdgcn-amd-amdhsa--gfx950"\n.text\n'
    out += a.text()
    out += '.section .rodata,"a"\n'
    for name, nv, na, _ in ks:
        out += kernel_desc(name, nv, na)
    path = sys.argv[1] if len(sys.argv) > 1 else "cdna_kernels/%s.s" % NAME
    open(path, "w").write(out)


if __name__ == "__main__":
    main()
```

```python
import sys, math, struct

NAME = "sequential_preLN__softmax_full_mha__geglu_ffn__prompt"

MB = 1 << 20
WS_Q = 0
WS_K = 2 * MB
WS_V = 4 * MB
WS_O = 6 * MB
WS_H = 8 * MB
WS_A = 10 * MB
WS_WO = 17 * MB
WS_WD = 18 * MB
WS_GU = 20 * MB
WS_CS = 24 * MB
WS_ST = 25 * MB
WS_FL = 27 * MB + 768 * 1024
WS_SIZE = 28 * MB

ARG_X, ARG_WQKV, ARG_WO, ARG_BX, ARG_WG, ARG_WU, ARG_WD, ARG_OUT, ARG_DBG, ARG_WS = [8 * i for i in range(10)]

ONES_BF16 = 0x3F803F80


def f32bits(x):
    return struct.unpack("<I", struct.pack("<f", x))[0]


import os
INSTR = os.environ.get("INSTR", "")
WS_TS = 26 * MB


class Asm:
    def __init__(self):
        self.L = []
        self.nts = 0

    def ts(self, kern):
        if INSTR != kern and not (INSTR == "all" and len(kern) == 2):
            return
        if self.nts == 0:
            self("s_memrealtime s[92:93]")
        self("%s s[%d:%d]" % ("s_memrealtime" if os.environ.get("RT") else "s_memtime", 64 + 2 * self.nts, 65 + 2 * self.nts))
        self.nts += 1

    def ts_flush(self, kern, swave, vtmp):
        if INSTR != kern and not (INSTR == "all" and len(kern) == 2):
            return
        self("%s s[%d:%d]" % ("s_memrealtime" if os.environ.get("RT") else "s_memtime", 64 + 2 * self.nts, 65 + 2 * self.nts))
        self.nts += 1
        self("s_memrealtime s[94:95]")
        self("s_waitcnt lgkmcnt(0)")
        self("s_lshl_b32 s3, s2, 3")
        self("s_add_u32 s3, s3, s%d" % swave)
        self("s_lshl_b32 s3, s3, 6")
        self("s_add_u32 s3, s3, %d" % (WS_TS + (int(kern[1]) * 131072 if INSTR == "all" else 0)))
        self("v_mov_b32 v%d, 0" % vtmp)
        for i in range(self.nts):
            self("v_mov_b32 v%d, s%d" % (vtmp + 1, 64 + 2 * i))
            self("buffer_store_dword v%d, v%d, s[20:23], s3 offen offset:%d" % (vtmp + 1, vtmp, 4 * i))
            self("s_nop 1")
        for i, r in enumerate((92, 94)):
            self("v_mov_b32 v%d, s%d" % (vtmp + 1, r))
            self("buffer_store_dword v%d, v%d, s[20:23], s3 offen offset:%d" % (vtmp + 1, vtmp, 56 + 4 * i))
            self("s_nop 1")
        self.nts = 0

    def __call__(self, s):
        for line in s.strip("\n").split("\n"):
            self.L.append("    " + line.strip())

    def label(self, s):
        self.L.append(s + ":")

    def raw(self, s):
        self.L.append(s)

    def text(self):
        return "\n".join(self.L) + "\n"


def vr(b, n=4):
    return "v[%d:%d]" % (b, b + n - 1)


def ar(b, n=4):
    return "a[%d:%d]" % (b, b + n - 1)


def srd(a, sbase, sptr, nbytes):
    a("s_mov_b32 s%d, s%d" % (sbase, sptr))
    a("s_mov_b32 s%d, s%d" % (sbase + 1, sptr + 1))
    a("s_mov_b32 s%d, 0x%x" % (sbase + 2, nbytes))
    a("s_mov_b32 s%d, 0x00020000" % (sbase + 3))


def kernel_begin(a, name):
    a.raw(".globl %s" % name)
    a.raw(".p2align 8")
    a.raw(".type %s,@function" % name)
    a.label(name)


def kernel_desc(name, nvgpr, nagpr, nsgpr=96):
    acc = (nvgpr + 3) // 4 * 4
    nfv = acc + nagpr if nagpr else nvgpr
    return """.p2align 6
.amdhsa_kernel %s
  .amdhsa_next_free_vgpr %d
  .amdhsa_next_free_sgpr %d
  .amdhsa_accum_offset %d
  .amdhsa_group_segment_fixed_size 0
  .amdhsa_kernarg_size 80
  .amdhsa_user_sgpr_count 2
  .amdhsa_user_sgpr_kernarg_segment_ptr 1
  .amdhsa_system_sgpr_workgroup_id_x 1
.end_amdhsa_kernel
""" % (name, nfv, nsgpr, acc)


def interleave(main, fill, per=None):
    out = []
    n = len(main)
    fi = 0
    for i, m in enumerate(main):
        out.append(m)
        tgt = (len(fill) * (i + 1) + n - 1) // n if per is None else min(len(fill), per * (i + 1))
        while fi < tgt:
            out.append(fill[fi])
            fi += 1
    out += fill[fi:]
    return out


def make_sel(a, vlane, vsel, vt):
    a("v_lshrrev_b32 v%d, 2, v%d" % (vt, vlane))
    a("v_lshrrev_b32 v%d, 4, v%d" % (vsel, vlane))
    a("v_xor_b32 v%d, v%d, v%d" % (vt, vt, vsel))
    a("v_and_b32 v%d, 1, v%d" % (vt, vt))
    a("v_add_u32 v%d, -1, v%d" % (vt, vt))
    a("v_and_b32 v%d, 0x%x, v%d" % (vsel, ONES_BF16, vt))
    for i in range(1, 4):
        a("v_mov_b32 v%d, v%d" % (vsel + i, vsel))


def split_hi_lo_A(a, vc, vdst, vt, smask):
    a("v_cvt_pk_bf16_f32 v%d, v%d, v%d" % (vt, vc, vc))
    a("v_and_b32 v%d, s%d, v%d" % (vt, smask, vt))
    a("v_sub_f32 v%d, v%d, v%d" % (vt, vc, vt))
    a("v_cvt_pk_bf16_f32 v%d, v%d, v%d" % (vdst, vc, vt))
    a("v_mov_b32 v%d, v%d" % (vdst + 1, vdst))
    a("v_mov_b32 v%d, 0" % (vdst + 2))
    a("v_mov_b32 v%d, 0" % (vdst + 3))


def split_hi_lo_B(a, vm, vdst, vt, smask):
    a("v_cvt_pk_bf16_f32 v%d, v%d, v%d" % (vdst, vm, vm))
    a("v_and_b32 v%d, s%d, v%d" % (vt, smask, vdst))
    a("v_sub_f32 v%d, v%d, v%d" % (vt, vm, vt))
    a("v_cvt_pk_bf16_f32 v%d, v%d, v%d" % (vdst + 1, vt, vt))
    a("v_mov_b32 v%d, 0" % (vdst + 2))
    a("v_mov_b32 v%d, 0" % (vdst + 3))


def sum_halves(a, v, vt):
    a("v_mov_b32 v%d, v%d" % (vt, v))
    a("s_nop 1")
    a("v_permlane32_swap_b32 v%d, v%d" % (v, vt))
    a("s_nop 1")
    a("v_add_f32 v%d, v%d, v%d" % (v, v, vt))


SLOT = 28672
NSLOT = 5
K1_DIST = int(os.environ.get('K1_DIST', 2))
DIAG = os.environ.get('DIAG', '')
K1_ROT = int(os.environ.get('K1_ROT', 1))
K4_ROT = int(os.environ.get('K4_ROT', 0))
K2_ROT = int(os.environ.get('K2_ROT', 0))
K4_DIST = int(os.environ.get('K4_DIST', 2))


def slot_base_adjust(stage):
    slot = stage % NSLOT
    return (slot // 2) * 2 * SLOT, (slot % 2) * SLOT


def gen_k1(a):
    name = "k1_qkv_kernel"
    kernel_begin(a, name)
    NS1 = 4
    LDS_SCR = NS1 * SLOT
    SCR_RS, SCR_BF = LDS_SCR + 1536, LDS_SCR + 2048
    S_WAVE, S_RB, S_CG, S_KC, S_SX, S_SW, S_T0, S_T1, S_MASK, S_M0X, S_M0W = 24, 25, 26, 27, 28, 29, 30, 31, 32, 33, 34
    S_ROLE = 42
    V_LANE = 1
    V_T = 2
    V_DX = 8
    V_DW = 12
    V_AX = 13
    V_AW = 17
    V_SEL = 24
    V_SQ = 28
    V_X = [32, 36]
    V_W = [[40, 44, 48], [52, 56, 60]]
    V_ACC = [64, 80, 96]
    V_TMP = 112
    a("s_cmp_ge_u32 s2, 256")
    a("s_cbranch_scc1 L_k1_end")
    a.ts("k1")
    a("s_load_dwordx4 s[4:7], s[0:1], %d" % ARG_X)
    a("s_load_dwordx2 s[8:9], s[0:1], %d" % ARG_WS)
    a("v_lshrrev_b32 v%d, 6, v0" % V_T)
    a("v_and_b32 v%d, 63, v0" % V_LANE)
    a("v_readfirstlane_b32 s%d, v%d" % (S_ROLE, V_T))
    a("s_and_b32 s3, s2, 7")
    a("s_lshr_b32 s%d, s2, 3" % S_T0)
    a("s_lshr_b32 s%d, s3, 1" % S_RB)
    a("s_lshl_b32 s%d, s%d, 2" % (S_RB, S_RB))
    a("s_and_b32 s%d, s%d, 3" % (S_T1, S_T0))
    a("s_add_u32 s%d, s%d, s%d" % (S_RB, S_RB, S_T1))
    a("s_and_b32 s%d, s3, 1" % S_CG)
    a("s_lshl_b32 s%d, s%d, 3" % (S_CG, S_CG))
    a("s_lshr_b32 s%d, s%d, 2" % (S_T1, S_T0))
    a("s_add_u32 s%d, s%d, s%d" % (S_CG, S_CG, S_T1))
    a("s_and_b32 s%d, s%d, 3" % (S_WAVE, S_ROLE))
    a("s_lshl_b32 s%d, s%d, 12" % (S_M0X, S_WAVE))
    a("s_mul_i32 s%d, s%d, 3072" % (S_M0W, S_WAVE))
    a("s_add_u32 s%d, s%d, 16384" % (S_M0W, S_M0W))
    a("s_mov_b32 s%d, 0xffff0000" % S_MASK)

    def lds_addr_setup(rotate):
        a("v_and_b32 v%d, 31, v%d" % (V_T, V_LANE))
        a("v_and_b32 v%d, 3, v%d" % (V_T + 1, V_LANE))
        a("v_lshrrev_b32 v%d, 2, v%d" % (V_T + 2, V_T))
        a("v_lshlrev_b32 v%d, 7, v%d" % (V_T + 2, V_T + 2))
        a("v_lshl_add_u32 v%d, v%d, 10, v%d" % (V_T + 2, V_T + 1, V_T + 2))
        a("v_add_u32 v%d, s%d, v%d" % (V_T + 2, S_M0X, V_T + 2))
        a("v_lshrrev_b32 v%d, 1, v%d" % (V_T + 3, V_T))
        a("v_and_b32 v%d, 4, v%d" % (V_T + 3, V_T + 3))
        a("v_or_b32 v%d, v%d, v%d" % (V_T + 3, V_T + 3, V_T + 1))
        a("v_lshrrev_b32 v%d, 5, v%d" % (V_T + 4, V_LANE))
        a("v_xor_b32 v%d, v%d, v%d" % (V_T + 3, V_T + 3, V_T + 4))
        a("v_bfe_u32 v%d, v%d, 2, 2" % (V_T + 5, V_LANE))
        a("v_lshl_add_u32 v%d, v%d, 3, v%d" % (V_T + 5, V_T + 4, V_T + 5))
        a("v_lshlrev_b32 v%d, 6, v%d" % (V_T + 5, V_T + 5))
        a("v_bfe_u32 v%d, v%d, 4, 1" % (V_T + 4, V_LANE))
        a("v_lshl_add_u32 v%d, v%d, 5, v%d" % (V_T + 5, V_T + 4, V_T + 5))
        a("v_lshl_add_u32 v%d, v%d, 3, v%d" % (V_T + 5, V_T + 1, V_T + 5))
        for ks in range(4):
            a("v_xor_b32 v%d, %d, v%d" % (V_T + 4, 2 * ks, V_T + 3))
            a("v_lshl_add_u32 v%d, v%d, 4, v%d" % (V_AX + ks, V_T + 4, V_T + 2))

    a("s_cmp_ge_u32 s%d, 8" % S_ROLE)
    a("s_cbranch_scc1 L_k1_stats")
    a("s_cmp_ge_u32 s%d, 4" % S_ROLE)
    a("s_cbranch_scc1 L_k1_compute")
    if K1_ROT:
        a("s_add_u32 s%d, s%d, s%d" % (S_KC, S_RB, S_CG))
        a("s_and_b32 s%d, s%d, 7" % (S_KC, S_KC))
    else:
        a("s_mov_b32 s%d, 0" % S_KC)
    a("v_lshrrev_b32 v%d, 3, v%d" % (V_T, V_LANE))
    a("v_lshlrev_b32 v%d, 12, v%d" % (V_T, V_T))
    a("v_and_b32 v%d, 7, v%d" % (V_T + 1, V_LANE))
    a("v_lshrrev_b32 v%d, 2, v%d" % (V_T + 2, V_LANE))
    a("v_and_b32 v%d, 4, v%d" % (V_T + 2, V_T + 2))
    a("v_xor_b32 v%d, v%d, v%d" % (V_T + 1, V_T + 1, V_T + 2))
    for q in range(4):
        a("v_xor_b32 v%d, %d, v%d" % (V_T + 3, q, V_T + 1))
        a("v_lshl_add_u32 v%d, v%d, 4, v%d" % (V_DX + q, V_T + 3, V_T))
    a("v_lshrrev_b32 v%d, 2, v%d" % (V_T, V_LANE))
    a("v_mul_u32_u24 v%d, 3072, v%d" % (V_T, V_T))
    a("v_and_b32 v%d, 3, v%d" % (V_T + 1, V_LANE))
    a("v_lshl_add_u32 v%d, v%d, 4, v%d" % (V_DW, V_T + 1, V_T))
    a("s_lshl_b32 s%d, s%d, 2" % (S_T0, S_RB))
    a("s_add_u32 s%d, s%d, s%d" % (S_T0, S_T0, S_WAVE))
    a("s_lshl_b32 s%d, s%d, 15" % (S_SX, S_T0))
    a("s_mul_i32 s%d, s%d, %d" % (S_SW, S_WAVE, 16 * 3072))
    a("s_lshl_b32 s%d, s%d, 6" % (S_T1, S_CG))
    a("s_add_u32 s%d, s%d, s%d" % (S_SW, S_SW, S_T1))
    S_OX, S_OW, S_SLOT, S_CNT, S_RD = 38, 39, 40, 41, 43
    a("s_mov_b32 s%d, 0" % S_SLOT)
    a("s_mov_b32 s%d, 0" % S_CNT)
    a("s_waitcnt lgkmcnt(0)")
    srd(a, 12, 4, 2048 * 1024)
    srd(a, 16, 6, 512 * 3072)

    def issue():
        a("s_lshl_b32 s%d, s%d, 7" % (S_OX, S_KC))
        a("s_add_u32 s%d, s%d, s%d" % (S_OX, S_OX, S_SX))
        a("s_add_u32 m0, s%d, s%d" % (S_M0X, S_SLOT))
        a("s_mul_i32 s%d, s%d, %d" % (S_OW, S_KC, 64 * 3072))
        for q in range(4):
            a("buffer_load_dwordx4 v%d, s[12:15], s%d offen offset:%d lds" % (V_DX + q, S_OX, q * 1024))
        a("s_add_u32 m0, s%d, s%d" % (S_M0W, S_SLOT))
        a("s_add_u32 s%d, s%d, s%d" % (S_OW, S_OW, S_SW))
        for sx in range(3):
            a("buffer_load_dwordx4 v%d, s[16:19], s%d offen offset:%d lds" % (V_DW, S_OW, sx * 1024))
        a("s_add_u32 s%d, s%d, 1" % (S_KC, S_KC))
        a("s_and_b32 s%d, s%d, 7" % (S_KC, S_KC))
        a("s_add_u32 s%d, s%d, %d" % (S_SLOT, S_SLOT, SLOT))
        a("s_cmp_eq_u32 s%d, %d" % (S_SLOT, NS1 * SLOT))
        a("s_cselect_b32 s%d, 0, s%d" % (S_SLOT, S_SLOT))

    a.label("L_k1_ld")
    issue()
    a("s_add_u32 s%d, s%d, 1" % (S_CNT, S_CNT))
    a("s_cmp_lt_u32 s%d, %d" % (S_CNT, K1_DIST))
    a("s_cbranch_scc1 L_k1_ld")
    a("s_waitcnt vmcnt(%d)" % (7 * (K1_DIST - 1)))
    a("s_barrier")
    a("s_cmp_lt_u32 s%d, 8" % S_CNT)
    a("s_cbranch_scc1 L_k1_ld")
    for r in range(K1_DIST - 2, -1, -1):
        a("s_waitcnt vmcnt(%d)" % (7 * r))
        a("s_barrier")
    a("s_endpgm")
    a.label("L_k1_stats")
    LX = [64, 68, 72, 76]
    LW = [80, 84, 88]
    L_SX = 92
    L_CS = [96, 100, 104]
    lds_addr_setup(False)
    a("v_add_u32 v%d, s%d, v%d" % (V_AW, S_M0W, V_T + 5))
    make_sel(a, V_LANE, V_SEL, V_T)
    for r in [V_SQ, V_SQ + 1] + list(range(L_SX, L_SX + 16)):
        a("v_mov_b32 v%d, 0" % r)
    a("s_mov_b32 s44, %d" % SLOT)
    a("s_mov_b32 s%d, 0" % S_CNT)
    a.label("L_k1_st")
    a("s_barrier")
    for ks in range(4):
        a("ds_read_b128 %s, v%d" % (vr(LX[ks]), V_AX + ks))
    for sx in range(3):
        for rd in range(2):
            a("ds_read_b64_tr_b16 %s, v%d offset:%d" % (vr(LW[sx] + 2 * rd, 2), V_AW, sx * 1024 + rd * 256))
    a("s_add_u32 s%d, s%d, 1" % (S_CNT, S_CNT))
    a("s_and_b32 s%d, s%d, %d" % (S_T0, S_CNT, NS1 - 1))
    a("s_cmp_eq_u32 s%d, 0" % S_T0)
    a("s_cselect_b32 s%d, %d, s44" % (S_RD, -(NS1 - 1) * SLOT))
    for ks in range(4):
        a("s_waitcnt lgkmcnt(%d)" % (9 - ks))
        a("v_mfma_f32_16x16x32_bf16 %s, %s, %s, %s" % (vr(L_SX), vr(V_SEL), vr(LX[ks]), vr(L_SX)))
        for d in range(4):
            t0, t1 = V_TMP + 2 * (d % 2), V_TMP + 2 * (d % 2) + 1
            a("v_lshlrev_b32 v%d, 16, v%d" % (t0, LX[ks] + d))
            a("v_and_b32 v%d, s%d, v%d" % (t1, S_MASK, LX[ks] + d))
            a("v_fmac_f32 v%d, v%d, v%d" % (V_SQ, t0, t0))
            a("v_fmac_f32 v%d, v%d, v%d" % (V_SQ + 1, t1, t1))
        if ks == 1:
            a("s_waitcnt lgkmcnt(0)")
            for sx in range(3):
                a("v_mfma_f32_16x16x32_bf16 %s, %s, %s, %s" % (vr(L_CS[sx]), vr(V_SEL), vr(LW[sx]), vr(L_CS[sx])))
    for r in list(range(V_AX, V_AX + 4)) + [V_AW]:
        a("v_add_u32 v%d, s%d, v%d" % (r, S_RD, r))
    a("s_cmp_lt_u32 s%d, 8" % S_CNT)
    a("s_cbranch_scc1 L_k1_st")
    a("v_and_b32 v%d, 31, v%d" % (V_T, V_LANE))
    a("v_lshlrev_b32 v%d, 2, v%d" % (V_T, V_T))
    a("s_mul_i32 s%d, s%d, 384" % (S_T0, S_WAVE))
    a("s_add_u32 s%d, s%d, %d" % (S_T0, S_T0, LDS_SCR))
    a("v_add_u32 v%d, s%d, v%d" % (V_T + 1, S_T0, V_T))
    for sx in range(3):
        a("ds_write_b32 v%d, v%d offset:%d" % (V_T + 1, L_CS[sx], sx * 128))
    a("v_add_f32 v%d, v%d, v%d" % (V_SQ, V_SQ, V_SQ + 1))
    sum_halves(a, V_SQ, V_SQ + 1)
    V_MU, V_RS = V_SQ + 2, V_SQ + 3
    a("v_mul_f32 v%d, 0x%x, v%d" % (V_MU, f32bits(1.0 / 512), L_SX))
    a("v_mul_f32 v%d, 0x%x, v%d" % (V_SQ, f32bits(1.0 / 512), V_SQ))
    a("v_fma_f32 v%d, -v%d, v%d, v%d" % (V_SQ, V_MU, V_MU, V_SQ))
    a("v_max_f32 v%d, 0, v%d" % (V_SQ, V_SQ))
    a("v_add_f32 v%d, 0x%x, v%d" % (V_SQ, f32bits(1e-5), V_SQ))
    a("v_rsq_f32 v%d, v%d" % (V_RS, V_SQ))
    a("v_sub_f32 v%d, 0, v%d" % (V_MU, V_MU))
    a("s_lshl_b32 s%d, s%d, 7" % (S_T0, S_WAVE))
    a("s_add_u32 s%d, s%d, %d" % (S_T0, S_T0, SCR_RS))
    a("v_add_u32 v%d, s%d, v%d" % (V_T + 2, S_T0, V_T))
    a("ds_write_b32 v%d, v%d" % (V_T + 2, V_RS))
    split_hi_lo_B(a, V_MU, LX[0], V_T + 4, S_MASK)
    a("s_lshl_b32 s%d, s%d, 9" % (S_T0, S_WAVE))
    a("s_add_u32 s%d, s%d, %d" % (S_T0, S_T0, SCR_BF))
    a("v_lshl_add_u32 v%d, v%d, 3, s%d" % (V_T + 3, V_LANE, S_T0))
    a("ds_write_b64 v%d, %s" % (V_T + 3, vr(LX[0], 2)))
    a("s_waitcnt lgkmcnt(0)")
    a("s_barrier")
    a("s_endpgm")
    a.label("L_k1_compute")
    lds_addr_setup(False)
    a("v_add_u32 v%d, 16384, v%d" % (V_AW, V_T + 5))
    V_ECS, V_ERS, V_ERV, V_EBF, V_OQ, V_OV = 18, 19, 20, 21, 22, 23
    a("v_and_b32 v%d, 31, v%d" % (V_T, V_LANE))
    a("v_lshlrev_b32 v%d, 2, v%d" % (V_T, V_T))
    a("v_lshrrev_b32 v%d, 5, v%d" % (V_T + 2, V_LANE))
    a("v_mul_u32_u24 v%d, 768, v%d" % (V_T + 3, V_T + 2))
    a("v_add_u32 v%d, v%d, v%d" % (V_T + 3, V_T + 3, V_T))
    a("v_add_u32 v%d, %d, v%d" % (V_ECS, LDS_SCR, V_T + 3))
    a("s_lshl_b32 s%d, s%d, 7" % (S_T0, S_WAVE))
    a("s_add_u32 s%d, s%d, %d" % (S_T0, S_T0, SCR_RS))
    a("v_add_u32 v%d, s%d, v%d" % (V_ERS, S_T0, V_T))
    a("v_lshl_add_u32 v%d, v%d, 4, s%d" % (V_ERV, V_T + 2, S_T0))
    a("s_lshl_b32 s%d, s%d, 9" % (S_T0, S_WAVE))
    a("s_add_u32 s%d, s%d, %d" % (S_T0, S_T0, SCR_BF))
    a("v_lshl_add_u32 v%d, v%d, 3, s%d" % (V_EBF, V_LANE, S_T0))
    a("v_lshlrev_b32 v%d, 4, v%d" % (V_OQ, V_LANE))
    a("v_bfe_u32 v%d, v%d, 4, 1" % (V_T + 1, V_LANE))
    a("v_lshlrev_b32 v%d, 16, v%d" % (V_T + 1, V_T + 1))
    a("v_lshl_add_u32 v%d, v%d, 8, v%d" % (V_T + 1, V_T + 2, V_T + 1))
    a("v_and_b32 v%d, 15, v%d" % (V_T + 2, V_LANE))
    a("v_lshl_add_u32 v%d, v%d, 4, v%d" % (V_OV, V_T + 2, V_T + 1))
    a("s_lshl_b32 s%d, s%d, 2" % (S_T0, S_RB))
    a("s_add_u32 s%d, s%d, s%d" % (S_T0, S_T0, S_WAVE))
    a("s_lshl_b32 s%d, s%d, 10" % (S_T0, S_T0))
    a("s_lshl_b32 s%d, s%d, 17" % (S_T1, S_CG))
    a("s_add_u32 s%d, s%d, s%d" % (S_T0, S_T0, S_T1))
    a("s_add_u32 s%d, s%d, 65536" % (S_T1, S_T0))
    a("s_add_u32 s35, s%d, %d" % (S_T0, WS_K))
    a("s_add_u32 s36, s%d, %d" % (S_T1, WS_K))
    a("s_add_u32 s37, s%d, %d" % (S_T0, WS_V))
    VB = V_TMP
    VA = [V_TMP + 4, V_TMP + 8, V_TMP + 12]
    for r in (VB + 2, VB + 3):
        a("v_mov_b32 v%d, 0" % r)
    cur_base = [0]

    def reads(P):
        st, ks = P // 4, P % 4
        slot = st % NS1
        base, imm = (slot // 2) * 2 * SLOT, (slot % 2) * SLOT
        out = []
        if base != cur_base[0]:
            d = base - cur_base[0]
            for r in list(range(V_AX, V_AX + 4)) + [V_AW]:
                out.append("v_add_u32 v%d, %d, v%d" % (r, d, r) if d > 0 else "v_subrev_u32 v%d, %d, v%d" % (r, -d, r))
            cur_base[0] = base
        b = P % 2
        out.append("ds_read_b128 %s, v%d offset:%d" % (vr(V_X[b]), V_AX + ks, imm))
        for sx in range(3):
            for rd in range(2):
                out.append("ds_read_b64_tr_b16 %s, v%d offset:%d" % (vr(V_W[b][sx] + 2 * rd, 2), V_AW, imm + ks * 3072 + sx * 1024 + rd * 256))
        return out

    a("s_waitcnt lgkmcnt(0)")
    srd(a, 20, 8, WS_SIZE)
    a("s_cmp_ge_u32 s2, 4")
    a("s_cbranch_scc1 L_k1_nozero")
    for r in range(4):
        a("v_mov_b32 v%d, 0" % (V_ACC[0] + r))
    a("s_lshl_b32 s3, s2, 2")
    a("s_add_u32 s3, s3, s%d" % S_WAVE)
    a("s_lshl_b32 s3, s3, 10")
    a("s_add_u32 s3, s3, %d" % WS_FL)
    a("buffer_store_dwordx4 %s, v%d, s[20:23], s3 offen" % (vr(V_ACC[0]), V_OQ))
    a.label("L_k1_nozero")
    a.ts("k1")
    a("s_barrier")
    a.ts("k1")
    for l in reads(0):
        a(l)
    for P in range(32):
        st, pos = P // 4, P % 4
        b = P % 2
        a("s_waitcnt lgkmcnt(0)")
        if pos == 3 and P < 31:
            a("s_barrier")
        rd = reads(P + 1) if P < 31 else []
        X = vr(V_X[b])
        c = lambda r, n=16: ("0" if P == 0 else vr(r, n))
        m = []
        m.append("v_mfma_f32_32x32x16_bf16 %s, %s, %s, %s" % (vr(V_ACC[0], 16), vr(V_W[b][0]), X, c(V_ACC[0])))
        m.append("v_mfma_f32_32x32x16_bf16 %s, %s, %s, %s" % (vr(V_ACC[1], 16), vr(V_W[b][1]), X, c(V_ACC[1])))
        m.append("v_mfma_f32_32x32x16_bf16 %s, %s, %s, %s" % (vr(V_ACC[2], 16), X, vr(V_W[b][2]), c(V_ACC[2])))
        nfirst = 3 if len(rd) <= 8 else 8
        for l in rd[:nfirst]:
            a(l)
        for l in interleave(m, rd[nfirst:], per=2):
            a(l)
    a.ts("k1")
    a("s_barrier")
    VC = V_TMP + 16
    V_RS = V_TMP + 22
    V_RQ = V_TMP + 23
    VR = V_TMP + 24
    for sx in range(3):
        a("ds_read2_b32 %s, v%d offset0:%d offset1:%d" % (vr(VC + 2 * sx, 2), V_ECS, sx * 32, sx * 32 + 96))
    a("ds_read_b64 %s, v%d" % (vr(VB, 2), V_EBF))
    a("ds_read_b32 v%d, v%d" % (V_RS, V_ERS))
    for q in range(4):
        a("ds_read_b128 %s, v%d offset:%d" % (vr(VR + 4 * q), V_ERV, q * 32))
    for sx in range(3):
        a("s_waitcnt lgkmcnt(%d)" % (8 - sx))
        a("v_add_f32 v%d, v%d, v%d" % (VC + 2 * sx, VC + 2 * sx, VC + 2 * sx + 1))
        split_hi_lo_A(a, VC + 2 * sx, VA[sx], V_T + 4, S_MASK)
    a("s_waitcnt lgkmcnt(4)")
    a("v_mul_f32 v%d, 0x%x, v%d" % (V_RQ, f32bits(0.25 * math.log2(math.e)), V_RS))
    a("v_mfma_f32_32x32x16_bf16 %s, %s, %s, %s" % (vr(V_ACC[0], 16), vr(VA[0]), vr(VB), vr(V_ACC[0], 16)))
    a("v_mfma_f32_32x32x16_bf16 %s, %s, %s, %s" % (vr(V_ACC[1], 16), vr(VA[1]), vr(VB), vr(V_ACC[1], 16)))
    a("v_mfma_f32_32x32x16_bf16 %s, %s, %s, %s" % (vr(V_ACC[2], 16), vr(VB), vr(VA[2]), vr(V_ACC[2], 16)))
    a("s_nop 9")
    VO = V_X[0]
    k = 0
    for blk, sc, soffs in ((0, V_RQ, (S_T0, S_T1)), (1, V_RS, (35, 36))):
        for half in range(2):
            o = VO + 4 * k
            k += 1
            for i in range(8):
                r = V_ACC[blk] + 8 * half + i
                a("v_mul_f32 v%d, v%d, v%d" % (r, sc, r))
            for i in range(4):
                r = V_ACC[blk] + 8 * half + 2 * i
                a("v_cvt_pk_bf16_f32 v%d, v%d, v%d" % (o + i, r, r + 1))
            a("buffer_store_dwordx4 %s, v%d, s[20:23], s%d offen" % (vr(o), V_OQ, soffs[half]))
    a("s_waitcnt lgkmcnt(0)")
    for half in range(2):
        o = VO + 4 * k
        k += 1
        for i in range(8):
            r = V_ACC[2] + 8 * half + i
            a("v_mul_f32 v%d, v%d, v%d" % (r, VR + 8 * half + i, r))
        for i in range(4):
            r = V_ACC[2] + 8 * half + 2 * i
            a("v_cvt_pk_bf16_f32 v%d, v%d, v%d" % (o + i, r, r + 1))
        a("buffer_store_dwordx4 %s, v%d, s[20:23], s37 offen offset:%d" % (vr(o), V_OV, half * 512))
    a.ts_flush("k1", S_WAVE, V_T)
    a.label("L_k1_end")
    a("s_endpgm")
    return name, 152, 0, (256, 768, LDS_SCR + 4096)


def gen_k2(a):
    name = "k2_attn_kernel"
    kernel_begin(a, name)
    S_WAVE, S_H, S_QB, S_T0, S_T1, S_T2, S_T3 = 40, 41, 42, 43, 44, 45, 46
    S_ITER, S_SYNC, S_PASS, S_NT = 47, 48, 49, 50
    S_TASK, S_STG, S_DST0, S_DST1, S_TYPE = 51, 52, 53, 54, 55
    S_VMASK = 56
    S_CS = 58
    S_KB, S_W1K, S_CH = 59, 60, 61
    S_PE, S_PO, S_PS = 36, 37, 38
    V_LANE, V_L16, V_T = 1, 2, 3
    V_KA, V_VA = 10, 11
    V_Q = 12
    V_K = [16, 20]
    V_V = [24, 32]
    V_P = 40
    V_CM = 48
    V_S = [64, 80]
    V_O = 96
    V_MAX = 112
    V_PK = 113
    V_PD = 114
    V_SEL = 116
    V_PCS = [120, 124]
    STG = 131072
    a("s_cmp_ge_u32 s2, 256")
    a("s_cbranch_scc1 L_k2_end")
    a.ts("k2")
    a.ts("k2b")
    a("s_load_dwordx2 s[8:9], s[0:1], %d" % ARG_WS)
    a("s_load_dwordx2 s[4:5], s[0:1], %d" % ARG_WO)
    a("s_load_dwordx4 s[24:27], s[0:1], %d" % ARG_WG)
    a("s_load_dwordx2 s[6:7], s[0:1], %d" % ARG_WD)
    a("v_lshrrev_b32 v%d, 6, v0" % V_T)
    a("v_and_b32 v%d, 63, v0" % V_LANE)
    a("v_readfirstlane_b32 s%d, v%d" % (S_WAVE, V_T))
    a("v_lshlrev_b32 v%d, 4, v%d" % (V_L16, V_LANE))
    a("s_and_b32 s%d, s2, 7" % S_H)
    a("s_lshl_b32 s%d, s%d, 2" % (S_H, S_H))
    a("s_lshr_b32 s%d, s2, 6" % S_T0)
    a("s_add_u32 s%d, s%d, s%d" % (S_H, S_H, S_T0))
    a("s_lshr_b32 s%d, s2, 3" % S_QB)
    a("s_and_b32 s%d, s%d, 7" % (S_QB, S_QB))
    a("s_lshl_b32 s%d, s%d, 16" % (S_KB, S_H))
    a("s_lshl_b32 s%d, s%d, 10" % (S_W1K, S_WAVE))
    a("s_add_u32 s%d, s%d, s%d" % (S_KB, S_KB, S_W1K))
    a("s_lshl_b32 s%d, s%d, 13" % (S_CH, S_QB))
    a("s_add_u32 s%d, s%d, s%d" % (S_T3, S_KB, S_CH))
    a("s_add_u32 s%d, s%d, %d" % (S_KB, S_KB, WS_K))
    if not K2_ROT:
        a("s_mov_b32 s%d, 0" % S_CH)
    a("s_waitcnt lgkmcnt(0)")
    a.ts("k2b")
    srd(a, 20, 8, WS_SIZE)
    a("buffer_load_dwordx4 %s, v%d, s[20:23], s%d offen" % (vr(V_Q), V_L16, S_T3))
    if INSTR == "k2b":
        a("s_waitcnt vmcnt(0)")
    a.ts("k2b")

    def kv_dma(c):
        return [["s_add_u32 s%d, s%d, s%d" % (S_T3, S_KB, S_CH),
                 "s_add_u32 m0, s%d, %d" % (S_W1K, c * 8192),
                 "s_add_u32 s%d, s%d, 8192" % (S_CH, S_CH),
                 "buffer_load_dwordx4 v%d, s[20:23], s%d offen lds" % (V_L16, S_T3)],
                ["s_add_u32 s%d, s%d, %d" % (S_T3, S_T3, WS_V - WS_K),
                 "s_add_u32 m0, s%d, %d" % (S_W1K, 65536 + c * 8192),
                 "s_and_b32 s%d, s%d, 0xffff" % (S_CH, S_CH),
                 "buffer_load_dwordx4 v%d, s[20:23], s%d offen lds" % (V_L16, S_T3)]]

    for c in range(2):
        for g in kv_dma(c):
            for l in g:
                a(l)
    a("s_mov_b32 s%d, 0" % S_TYPE)
    a("s_cmp_lt_u32 s%d, 4" % S_WAVE)
    a("s_cbranch_scc1 L_k2_nopack")
    a("s_lshl_b32 s%d, s2, 2" % S_TASK)
    a("s_add_u32 s%d, s%d, s%d" % (S_TASK, S_TASK, S_WAVE))
    a("s_sub_u32 s%d, s%d, 4" % (S_TASK, S_TASK))
    a("s_cmp_ge_u32 s%d, 736" % S_TASK)
    a("s_cbranch_scc1 L_k2_nopack")
    a("s_lshl_b32 s%d, s%d, 13" % (S_STG, S_WAVE))
    a("s_add_u32 s%d, s%d, %d" % (S_STG, S_STG, STG - 4 * 8192))
    a("v_lshrrev_b32 v%d, 2, v%d" % (V_T, V_LANE))
    a("v_and_b32 v%d, 3, v%d" % (V_T + 1, V_LANE))
    a("s_cmp_ge_u32 s%d, 448" % S_TASK)
    a("s_cbranch_scc1 L_k2_packn")
    a("s_mov_b32 s%d, 1" % S_TYPE)
    srd(a, 28, 24, 512 * 3584)
    srd(a, 32, 26, 512 * 3584)
    a("v_mul_u32_u24 v%d, 3584, v%d" % (V_T, V_T))
    a("v_lshl_add_u32 v%d, v%d, 4, v%d" % (V_PD, V_T + 1, V_T))
    a("s_and_b32 s%d, s%d, 7" % (S_T0, S_TASK))
    a("s_lshr_b32 s%d, s%d, 3" % (S_T1, S_TASK))
    a("s_mul_i32 s%d, s%d, %d" % (S_PE, S_T0, 64 * 3584))
    a("s_lshl_b32 s%d, s%d, 6" % (S_T2, S_T1))
    a("s_add_u32 s%d, s%d, s%d" % (S_PE, S_PE, S_T2))
    a("s_mov_b32 s%d, s%d" % (S_PO, S_PE))
    a("s_mov_b32 s%d, %d" % (S_PS, 16 * 3584))
    for hb, sd in ((0, S_DST0), (1, S_DST1)):
        a("s_lshl_b32 s%d, s%d, 1" % (S_T2, S_T1))
        if hb:
            a("s_add_u32 s%d, s%d, 1" % (S_T2, S_T2))
        a("s_mul_i32 s%d, s%d, 9363" % (S_CS, S_T2))
        a("s_lshr_b32 s%d, s%d, 16" % (S_CS, S_CS))
        a("s_mul_i32 s%d, s%d, 7" % (sd, S_CS))
        a("s_sub_u32 s%d, s%d, s%d" % (sd, S_T2, sd))
        a("s_mul_i32 s%d, s%d, %d" % (S_CS, S_CS, 32 * 7))
        a("s_add_u32 s%d, s%d, s%d" % (sd, sd, S_CS))
        a("s_mul_i32 s%d, s%d, 28" % (S_CS, S_T0))
        a("s_add_u32 s%d, s%d, s%d" % (sd, sd, S_CS))
        a("s_lshl_b32 s%d, s%d, 10" % (sd, sd))
        a("s_add_u32 s%d, s%d, %d" % (sd, sd, WS_GU))
    a("s_lshl_b32 s%d, s%d, 11" % (S_CS, S_T1))
    a("s_lshr_b32 s%d, s%d, 2" % (S_T2, S_T0))
    a("s_lshl_b32 s%d, s%d, 9" % (S_T2, S_T2))
    a("s_add_u32 s%d, s%d, s%d" % (S_CS, S_CS, S_T2))
    a("s_and_b32 s%d, s%d, 3" % (S_T2, S_T0))
    a("s_lshl_b32 s%d, s%d, 2" % (S_T2, S_T2))
    a("s_add_u32 s%d, s%d, s%d" % (S_CS, S_CS, S_T2))
    a("s_add_u32 s%d, s%d, %d" % (S_CS, S_CS, WS_CS))
    a("s_branch L_k2_nopack")
    a.label("L_k2_packn")
    a("s_mov_b32 s%d, 2" % S_TYPE)
    a("v_lshlrev_b32 v%d, 10, v%d" % (V_T, V_T))
    a("v_lshl_add_u32 v%d, v%d, 4, v%d" % (V_PD, V_T + 1, V_T))
    a("s_cmp_ge_u32 s%d, 512" % S_TASK)
    a("s_cbranch_scc1 L_k2_packd")
    srd(a, 28, 4, 512 * 1024)
    srd(a, 32, 4, 512 * 1024)
    a("s_sub_u32 s%d, s%d, 448" % (S_T0, S_TASK))
    a("s_lshr_b32 s%d, s%d, 2" % (S_T1, S_T0))
    a("s_and_b32 s%d, s%d, 3" % (S_T0, S_T0))
    a("s_lshl_b32 s%d, s%d, 15" % (S_DST0, S_T1))
    a("s_add_u32 s%d, s%d, %d" % (S_DST0, S_DST0, WS_WO))
    a("s_branch L_k2_packc")
    a.label("L_k2_packd")
    srd(a, 28, 6, 1792 * 1024)
    srd(a, 32, 6, 1792 * 1024)
    a("s_sub_u32 s%d, s%d, 512" % (S_T0, S_TASK))
    a("s_mul_i32 s%d, s%d, 4682" % (S_T1, S_T0))
    a("s_lshr_b32 s%d, s%d, 16" % (S_T1, S_T1))
    a("s_mul_i32 s%d, s%d, 14" % (S_T2, S_T1))
    a("s_sub_u32 s%d, s%d, s%d" % (S_T0, S_T0, S_T2))
    a("s_mul_i32 s%d, s%d, %d" % (S_DST0, S_T1, 112 * 1024))
    a("s_add_u32 s%d, s%d, %d" % (S_DST0, S_DST0, WS_WD))
    a.label("L_k2_packc")
    a("s_lshl_b32 s%d, s%d, 13" % (S_T2, S_T0))
    a("s_add_u32 s%d, s%d, s%d" % (S_DST0, S_DST0, S_T2))
    a("s_lshl_b32 s%d, s%d, 17" % (S_PE, S_T0))
    a("s_lshl_b32 s%d, s%d, 6" % (S_T2, S_T1))
    a("s_add_u32 s%d, s%d, s%d" % (S_PE, S_PE, S_T2))
    a("s_add_u32 s%d, s%d, 16384" % (S_PO, S_PE))
    a("s_mov_b32 s%d, 32768" % S_PS)
    a.label("L_k2_nopack")
    a("s_mov_b32 s%d, 0x0000ffff" % S_VMASK)
    a("s_mov_b32 s%d, 0x0000ffff" % (S_VMASK + 1))
    a("v_and_b32 v%d, 27, v%d" % (V_T, V_LANE))
    a("v_cmp_eq_u32 vcc, 16, v%d" % V_T)
    a("v_mov_b32 v%d, 0x%x" % (V_T + 1, ONES_BF16))
    a("s_nop 1")
    a("v_cndmask_b32 v%d, 0, v%d, vcc" % (V_V[0], V_T + 1))
    for i in range(1, 16):
        a("v_mov_b32 v%d, v%d" % (V_V[0] + i, V_V[0]))
    a("s_mov_b32 s%d, 0" % S_SYNC)
    a("s_mov_b32 s%d, 0" % S_PASS)
    a("s_mov_b32 s%d, 1" % S_NT)
    a("s_setprio 3")
    a.ts("k2b")
    a("s_waitcnt vmcnt(2)")
    a.ts("k2b")
    a("s_barrier")
    a.ts("k2")
    a.ts("k2b")
    a.label("L_k2_maxpass")
    a("v_mov_b32 v%d, 0xff800000" % V_MAX)
    a("v_mov_b32 v%d, v%d" % (V_KA, V_L16))
    a.label("L_k2_mloop")
    a("ds_read_b128 %s, v%d" % (vr(V_K[0]), V_KA))
    a("v_add_u32 v%d, 1024, v%d" % (V_KA, V_KA))
    a("s_waitcnt lgkmcnt(0)")
    a("v_mfma_f32_32x32x16_bf16 %s, %s, %s, 0" % (vr(V_S[0], 16), vr(V_K[0]), vr(V_Q)))
    a("s_nop 15")
    for i in range(8):
        a("v_max3_f32 v%d, v%d, v%d, v%d" % (V_MAX, V_S[0] + 2 * i, V_S[0] + 2 * i + 1, V_MAX))
    a("s_sub_u32 s%d, s%d, 1" % (S_NT, S_NT))
    a("s_cmp_lg_u32 s%d, 0" % S_NT)
    a("s_cbranch_scc1 L_k2_mloop")
    a("v_mov_b32 v%d, v%d" % (V_KA, V_L16))
    a("v_lshrrev_b32 v%d, 5, v%d" % (V_T, V_LANE))
    a("v_lshlrev_b32 v%d, 8, v%d" % (V_T, V_T))
    a("v_and_b32 v%d, 15, v%d" % (V_T + 1, V_LANE))
    a("v_lshl_add_u32 v%d, v%d, 4, v%d" % (V_VA, V_T + 1, V_T))
    a("v_add_u32 v%d, 65536, v%d" % (V_VA, V_VA))
    a("ds_read_b128 %s, v%d" % (vr(V_K[0]), V_KA))
    a("ds_read_b128 %s, v%d offset:1024" % (vr(V_K[1]), V_KA))
    a("s_mov_b64 exec, s[%d:%d]" % (S_VMASK, S_VMASK + 1))
    a("ds_read_b128 %s, v%d" % (vr(V_V[0]), V_VA))
    a("ds_read_b128 %s, v%d offset:512" % (vr(V_V[0] + 4), V_VA))
    a("s_mov_b64 exec, -1")
    a("v_mov_b32 v%d, v%d" % (V_T, V_MAX))
    a("s_nop 1")
    a("v_permlane32_swap_b32 v%d, v%d" % (V_MAX, V_T))
    a("s_nop 1")
    a("v_max_f32 v%d, v%d, v%d" % (V_MAX, V_MAX, V_T))
    for i in range(16):
        a("v_sub_f32 v%d, 0, v%d" % (V_CM + i, V_MAX))
    a("s_waitcnt lgkmcnt(0)")
    a("s_nop 0")
    a("v_mfma_f32_32x32x16_bf16 %s, %s, %s, %s" % (vr(V_S[0], 16), vr(V_K[0]), vr(V_Q), vr(V_CM, 16)))
    for i in range(16):
        a("v_mov_b32 v%d, 0" % (V_O + i))
    for i in range(4):
        a("v_mov_b32 v%d, 0" % (V_P + 4 + i))
    a("s_mov_b32 s%d, 8" % S_ITER)
    a.ts("k2")
    a("s_cmp_lg_u32 s%d, 0" % S_PASS)
    a("s_cbranch_scc1 L_k2_loop")

    def body(peeled):
        for t in range(8):
            cur, nxt = t % 2, (t + 1) % 2
            x1, x2 = [], []
            if peeled:
                if t < 6:
                    x1, x2 = kv_dma(t + 2)
                if t == 6:
                    a("s_waitcnt vmcnt(12)")
                    a("s_barrier")
                if t >= 6:
                    lab = "L_k2_np%d" % t
                    x1 = ["s_cmp_eq_u32 s%d, 0" % S_TYPE, "s_cbranch_scc1 %s" % lab]
                    for i in range(4 * (t - 6), 4 * (t - 6) + 4):
                        x1 += ["s_add_u32 m0, s%d, %d" % (S_STG, i * 1024), "s_nop 0",
                               "buffer_load_dwordx4 v%d, s[%d:%d], s%d offen lds" % (V_PD, 28 + 4 * (i % 2), 31 + 4 * (i % 2), S_PO if i % 2 else S_PE),
                               "s_add_u32 s%d, s%d, s%d" % ((S_PO, S_PO, S_PS) if i % 2 else (S_PE, S_PE, S_PS))]
                    x1 += [lab + ":"]
            else:
                if t == 0:
                    for k, r in enumerate((5, 2, 1)):
                        x1 += ["s_cmp_lg_u32 s%d, %d" % (S_ITER, r), "s_cbranch_scc1 L_k2_pp%d" % k, "s_setprio %d" % (2 - k), "L_k2_pp%d:" % k]
                if t == 6:
                    a("s_cmp_eq_u32 s%d, 0" % S_SYNC)
                    a("s_cbranch_scc1 L_k2_sync")
                    a.label("L_k2_syncret")
            S = V_S[cur]
            e = lambda i: "v_exp_f32 v%d, v%d" % (S + i, S + i)
            c = lambda i: "v_cvt_pk_bf16_f32 v%d, v%d, v%d" % (V_P + i, S + 2 * i, S + 2 * i + 1)
            pv = lambda b, h: "v_mfma_f32_32x32x16_bf16 %s, %s, %s, %s" % (vr(V_O, 16), vr(V_V[b] + 4 * h), vr(V_P + 4 * h), vr(V_O, 16))
            qk = "v_mfma_f32_32x32x16_bf16 %s, %s, %s, %s" % (vr(V_S[nxt], 16), vr(V_K[nxt]), vr(V_Q), vr(V_CM, 16))
            rdk = "ds_read_b128 %s, v%d offset:%d" % (vr(V_K[cur]), V_KA, (t + 2) * 1024)
            rdv = ["s_mov_b64 exec, s[%d:%d]" % (S_VMASK, S_VMASK + 1),
                   "ds_read_b128 %s, v%d offset:%d" % (vr(V_V[nxt]), V_VA, (t + 1) * 1024),
                   "ds_read_b128 %s, v%d offset:%d" % (vr(V_V[nxt] + 4), V_VA, (t + 1) * 1024 + 512),
                   "s_mov_b64 exec, -1"]
            seq = [e(0), e(1), pv(nxt, 1), e(2), "s_waitcnt lgkmcnt(0)", rdk, e(3)] + rdv + [c(0), e(4), e(5), c(1), e(6), e(7), qk, c(2), e(8)] + x1 + [e(9), c(3),
                   e(10), e(11), c(4), e(12), e(13), pv(cur, 0), c(5), e(14)] + x2 + [e(15), c(6)]
            if t == 7:
                seq += ["v_add_u32 v%d, 8192, v%d" % (V_KA, V_KA), "v_add_u32 v%d, 8192, v%d" % (V_VA, V_VA),
                        "s_sub_u32 s%d, s%d, 1" % (S_ITER, S_ITER), "s_cmp_lg_u32 s%d, 0" % S_ITER]
            seq += [c(7)]
            for l in seq:
                if l.endswith(":"):
                    a.label(l[:-1])
                else:
                    a(l)

    body(True)
    a.raw(".p2align 6")
    a.label("L_k2_loop")
    body(False)
    a("s_cbranch_scc1 L_k2_loop")
    a.ts("k2")
    a("s_nop 1")
    a("v_mfma_f32_32x32x16_bf16 %s, %s, %s, %s" % (vr(V_O, 16), vr(V_V[1] + 4), vr(V_P + 4), vr(V_O, 16)))
    a("s_waitcnt lgkmcnt(0)")
    a("s_lshl_b32 s%d, s%d, 3" % (S_T0, S_QB))
    a("s_add_u32 s%d, s%d, s%d" % (S_T0, S_T0, S_WAVE))
    a("s_lshl_b32 s%d, s%d, 5" % (S_T0, S_T0))
    a("s_add_u32 s%d, s%d, s%d" % (S_T0, S_T0, S_H))
    a("s_lshl_b32 s%d, s%d, 10" % (S_T0, S_T0))
    a("s_add_u32 s%d, s%d, %d" % (S_T0, S_T0, WS_O))
    a("s_nop 7")
    a("v_mul_f32 v%d, 0, v%d" % (V_T, V_O))
    for i in range(1, 8):
        a("v_fmac_f32 v%d, 0, v%d" % (V_T, V_O + i))
    a("v_add_f32 v%d, v%d, v%d" % (V_T, V_T, V_O + 8))
    a("v_cmp_gt_f32 vcc, 0x%x, v%d" % (f32bits(2.0 ** 100), V_T))
    a("v_rcp_f32 v%d, v%d" % (V_T + 1, V_O + 8))
    a("s_cmp_lg_u32 s%d, 0" % S_PASS)
    a("s_cbranch_scc1 L_k2_fin")
    a("s_cmp_eq_u64 vcc, exec")
    a("s_cbranch_scc1 L_k2_fin")
    a("s_mov_b32 s%d, 1" % S_PASS)
    a("s_mov_b32 s%d, 64" % S_NT)
    a("s_branch L_k2_maxpass")
    a.label("L_k2_fin")
    for i in range(8):
        a("v_mul_f32 v%d, v%d, v%d" % (V_O + i, V_T + 1, V_O + i))
    for i in range(4):
        a("v_cvt_pk_bf16_f32 v%d, v%d, v%d" % (V_P + i, V_O + 2 * i, V_O + 2 * i + 1))
    a("buffer_store_dwordx4 %s, v%d, s[20:23], s%d offen" % (vr(V_P), V_L16, S_T0))
    a.ts_flush("k2", S_WAVE, V_T)
    a.ts_flush("k2b", S_WAVE, V_T)
    a.label("L_k2_end")
    a("s_endpgm")
    a.label("L_k2_sync")
    a("s_mov_b32 s%d, 1" % S_SYNC)
    a("s_waitcnt vmcnt(0)")
    a("s_barrier")
    a("s_cmp_eq_u32 s%d, 0" % S_TYPE)
    a("s_cbranch_scc1 L_k2_syncret")
    a("v_bfe_u32 v%d, v%d, 2, 2" % (V_T, V_LANE))
    a("v_lshrrev_b32 v%d, 5, v%d" % (V_T + 1, V_LANE))
    a("v_lshl_add_u32 v%d, v%d, 2, v%d" % (V_T, V_T + 1, V_T))
    a("v_lshlrev_b32 v%d, 6, v%d" % (V_T, V_T))
    a("v_and_b32 v%d, 3, v%d" % (V_T + 1, V_LANE))
    a("v_lshl_add_u32 v%d, v%d, 3, v%d" % (V_T, V_T + 1, V_T))
    a("v_add_u32 v%d, s%d, v%d" % (V_T, S_STG, V_T))
    a("v_bfe_u32 v%d, v%d, 4, 1" % (V_T + 1, V_LANE))
    FB = [128 + 4 * i for i in range(8)]
    a("s_cmp_eq_u32 s%d, 2" % S_TYPE)
    a("s_cbranch_scc1 L_k2_pk2")
    a("v_lshl_add_u32 v%d, v%d, 10, v%d" % (V_PK, V_T + 1, V_T))
    for ks in range(4):
        for hb in range(2):
            for rd in range(2):
                a("ds_read_b64_tr_b16 %s, v%d offset:%d" % (vr(FB[ks * 2 + hb] + 2 * rd, 2), V_PK, ks * 2048 + hb * 32 + rd * 512))
    make_sel(a, V_LANE, V_SEL, V_T + 2)
    a("v_and_b32 v%d, 31, v%d" % (V_T, V_LANE))
    a("v_lshlrev_b32 v%d, 4, v%d" % (V_T, V_T))
    a("s_waitcnt lgkmcnt(0)")
    for ks in range(4):
        for hb in range(2):
            a("v_mfma_f32_16x16x32_bf16 %s, %s, %s, %s" % (vr(V_PCS[hb]), vr(V_SEL), vr(FB[ks * 2 + hb]), "0" if ks == 0 else vr(V_PCS[hb])))
            a("buffer_store_dwordx4 %s, v%d, s[20:23], s%d offen" % (vr(FB[ks * 2 + hb]), V_L16, (S_DST0, S_DST1)[hb]))
        a("s_add_u32 s%d, s%d, 7168" % (S_DST0, S_DST0))
        a("s_add_u32 s%d, s%d, 7168" % (S_DST1, S_DST1))
    a("s_nop 7")
    a("buffer_store_dword v%d, v%d, s[20:23], s%d offen" % (V_PCS[0], V_T, S_CS))
    a("buffer_store_dword v%d, v%d, s[20:23], s%d offen offset:1024" % (V_PCS[1], V_T, S_CS))
    a("s_branch L_k2_syncret")
    a.label("L_k2_pk2")
    a("v_lshl_add_u32 v%d, v%d, 5, v%d" % (V_PK, V_T + 1, V_T))
    a("s_add_u32 s%d, s%d, 4096" % (S_DST1, S_DST0))
    for f in range(8):
        for rd in range(2):
            a("ds_read_b64_tr_b16 %s, v%d offset:%d" % (vr(FB[f] + 2 * rd, 2), V_PK, f * 1024 + rd * 512))
    a("s_waitcnt lgkmcnt(0)")
    for f in range(8):
        a("buffer_store_dwordx4 %s, v%d, s[20:23], s%d offen offset:%d" % (vr(FB[f]), V_L16, S_DST0 if f < 4 else S_DST1, (f % 4) * 1024))
    a("s_branch L_k2_syncret")
    return name, 160, 0, (256, 512, 163840)


FL_A, FL_B, FL_C, FL_P = WS_FL, WS_FL + 2048, WS_FL + 6144, WS_FL + 10240
T_XCD, T_R2, T_RB64, T_RB128, T_CGF, T_TBO, T_NBO, T_HALF, T_A, T_B, T_C, T_D, T_CNT, T_M = 24, 25, 26, 27, 28, 29, 30, 31, 32, 33, 34, 35, 36, 37
FV_WO = 160
FV_XR = 224
FV_LX = 228
FV_L4 = 229
FV_F = 230
POLLD = int(os.environ.get('POLLD', 1))


def poll(a, tag, soff, n, vl4, vf, depth=1):
    mask = (1 << n) - 1
    a("s_mov_b32 s%d, 0" % T_CNT)
    for d in range(depth - 1):
        a("buffer_load_dword v%d, v%d, s[20:23], s%d offen sc1" % (vf + d, vl4, soff))
        a("s_nop 15")
        a("s_nop 15")
        a("s_nop 15")
        a("s_nop 15")
    a.label("L_poll_%s" % tag)
    for d in range(depth):
        a("buffer_load_dword v%d, v%d, s[20:23], s%d offen sc1" % (vf + (d + depth - 1) % depth, vl4, soff))
        a("s_add_u32 s%d, s%d, 1" % (T_CNT, T_CNT))
        a("s_waitcnt vmcnt(%d)" % (depth - 1))
        a("v_cmp_ne_u32 vcc, 0, v%d" % (vf + d))
        a("s_cmp_gt_u32 s%d, 0x40000" % T_CNT)
        a("s_cbranch_scc1 L_polld_%s" % tag)
        a("s_and_b32 s%d, vcc_lo, 0x%x" % (T_M, mask))
        if d < depth - 1:
            a("s_cmp_eq_u32 s%d, 0x%x" % (T_M, mask))
            a("s_cbranch_scc1 L_polld_%s" % tag)
        else:
            a("s_cmp_lg_u32 s%d, 0x%x" % (T_M, mask))
            a("s_cbranch_scc1 L_poll_%s" % tag)
    a.label("L_polld_%s" % tag)


def set_flag(a, soff, vt):
    a("v_mov_b32 v%d, 0" % vt)
    a("v_mov_b32 v%d, 1" % (vt + 1))
    a("s_mov_b64 exec, 1")
    a("buffer_store_dword v%d, v%d, s[20:23], s%d offen sc1" % (vt + 1, vt, soff))
    a("s_mov_b64 exec, -1")


def fused_events(a, E):
    S_WAVE, S_H, S_QB, S_ITER, S_SYNC, S_TASK, S_TYPE = (E[k] for k in ("S_WAVE", "S_H", "S_QB", "S_ITER", "S_SYNC", "S_TASK", "S_TYPE"))
    V_LANE, V_L16, V_T = E["V_LANE"], E["V_L16"], E["V_T"]
    a.label("L_f_event")
    a("s_cmp_eq_u32 s%d, 7" % S_ITER)
    a("s_cbranch_scc1 L_f_sync")
    a("s_cmp_eq_u32 s%d, 2" % S_ITER)
    a("s_cbranch_scc1 L_f_ev2")
    a("s_cmp_eq_u32 s%d, 3" % S_ITER)
    a("s_cbranch_scc1 L_f_ev3")
    a("s_mov_b32 s%d, 3" % S_SYNC)
    a("s_cmp_eq_u32 s%d, 0" % S_TYPE)
    a("s_cbranch_scc1 L_f_syncret")
    a("s_lshl_b32 s%d, s%d, 2" % (T_A, S_TASK))
    a("s_add_u32 s%d, s%d, %d" % (T_A, T_A, FL_P))
    a("s_waitcnt vmcnt(0)")
    set_flag(a, T_A, V_T)
    a("s_branch L_f_syncret")
    a.label("L_f_ev3")
    a("s_mov_b32 s%d, 2" % S_SYNC)
    a("s_lshr_b32 s%d, s2, 5" % T_XCD)
    a("s_bfe_u32 s%d, s2, 0x20003" % T_R2)
    a("s_and_b32 s%d, s2, 7" % T_RB64)
    a("s_lshl_b32 s%d, s%d, 2" % (T_RB64, T_RB64))
    a("s_add_u32 s%d, s%d, s%d" % (T_RB64, T_RB64, T_R2))
    a("s_lshr_b32 s%d, s%d, 1" % (T_RB128, T_RB64))
    a("s_and_b32 s%d, s%d, 1" % (T_A, T_R2))
    a("s_lshl_b32 s%d, s%d, 1" % (T_CGF, T_XCD))
    a("s_add_u32 s%d, s%d, s%d" % (T_CGF, T_CGF, T_A))
    a("s_bfe_u32 s%d, s%d, 0x10001" % (T_A, S_WAVE))
    a("s_lshl_b32 s%d, s%d, 1" % (T_TBO, T_RB64))
    a("s_add_u32 s%d, s%d, s%d" % (T_TBO, T_TBO, T_A))
    a("s_and_b32 s%d, s%d, 1" % (T_A, S_WAVE))
    a("s_lshl_b32 s%d, s%d, 1" % (T_NBO, T_XCD))
    a("s_add_u32 s%d, s%d, s%d" % (T_NBO, T_NBO, T_A))
    a("s_lshr_b32 s%d, s%d, 2" % (T_HALF, S_WAVE))
    a("s_mul_i32 s%d, s%d, 7" % (T_A, T_CGF))
    a("s_lshr_b32 s%d, s%d, 1" % (T_A, T_A))
    a("s_lshl_b32 s%d, s%d, 5" % (T_A, T_A))
    a("s_mul_i32 s%d, s%d, 56" % (T_B, T_NBO))
    a("s_add_u32 s%d, s%d, %d" % (T_B, T_B, 512 * 4 - 32 * 4))
    a("s_lshl_b32 s%d, s%d, 1" % (T_C, T_NBO))
    a("s_add_u32 s%d, s%d, s%d" % (T_C, T_C, T_HALF))
    a("s_lshl_b32 s%d, s%d, 3" % (T_C, T_C))
    a("s_add_u32 s%d, s%d, %d" % (T_C, T_C, 448 * 4 - 46 * 4))
    a("v_mov_b32 v%d, s%d" % (V_T, T_A))
    a("v_mov_b32 v%d, s%d" % (V_T + 1, T_B))
    a("v_cmp_le_u32 vcc, 32, v%d" % V_LANE)
    a("v_mov_b32 v%d, s%d" % (V_T + 2, T_C))
    a("s_nop 0")
    a("v_cndmask_b32 v%d, v%d, v%d, vcc" % (V_T, V_T, V_T + 1))
    a("v_cmp_le_u32 vcc, 46, v%d" % V_LANE)
    a("s_mov_b32 s%d, %d" % (T_A, FL_P))
    a("s_nop 0")
    a("v_cndmask_b32 v%d, v%d, v%d, vcc" % (V_T, V_T, V_T + 2))
    a("v_add_u32 v%d, v%d, v%d" % (FV_F + 1, V_T, FV_L4))
    a("buffer_load_dword v%d, v%d, s[20:23], s%d offen sc1" % (FV_F, FV_F + 1, T_A))
    a("s_branch L_f_syncret")
    a.label("L_f_ev2")
    a("s_mov_b32 s%d, 0" % S_SYNC)
    a("s_mov_b32 s%d, 0" % T_CNT)
    a("s_mov_b32 s%d, %d" % (T_A, FL_P))
    a.label("L_f_fpchk")
    a("s_waitcnt vmcnt(0)")
    a("v_cmp_ne_u32 vcc, 0, v%d" % FV_F)
    a("s_add_u32 s%d, s%d, 1" % (T_CNT, T_CNT))
    a("s_cmp_gt_u32 s%d, 0x40000" % T_CNT)
    a("s_cbranch_scc1 L_f_fpok")
    a("s_or_b32 s%d, vcc_hi, 0xffff0000" % T_M)
    a("s_and_b32 s%d, s%d, vcc_lo" % (T_M, T_M))
    a("s_cmp_eq_u32 s%d, -1" % T_M)
    a("s_cbranch_scc1 L_f_fpok")
    a("buffer_load_dword v%d, v%d, s[20:23], s%d offen sc1" % (FV_F, FV_F + 1, T_A))
    a("s_branch L_f_fpchk")
    a.label("L_f_fpok")
    a("s_lshl_b32 s%d, s%d, 1" % (T_A, T_NBO))
    a("s_add_u32 s%d, s%d, s%d" % (T_A, T_A, T_HALF))
    a("s_lshl_b32 s%d, s%d, 14" % (T_A, T_A))
    a("s_add_u32 s%d, s%d, %d" % (T_A, T_A, WS_WO))
    for i in range(16):
        if i and i % 4 == 0:
            a("s_add_u32 s%d, s%d, 4096" % (T_A, T_A))
        a("buffer_load_dwordx4 %s, v%d, s[20:23], s%d offen offset:%d sc1" % (vr(FV_WO + 4 * i), FV_LX, T_A, (i % 4) * 1024))
    srd(a, 12, 10, 2048 * 1024)
    a("v_and_b32 v%d, 31, v%d" % (V_T, V_LANE))
    a("v_lshlrev_b32 v%d, 10, v%d" % (V_T, V_T))
    a("v_lshrrev_b32 v%d, 5, v%d" % (V_T + 1, V_LANE))
    a("v_lshl_add_u32 v%d, v%d, 3, v%d" % (V_T, V_T + 1, V_T))
    a("s_lshl_b32 s%d, s%d, 15" % (T_A, T_TBO))
    a("s_lshl_b32 s%d, s%d, 6" % (T_B, T_NBO))
    a("s_add_u32 s%d, s%d, s%d" % (T_A, T_A, T_B))
    a("s_lshl_b32 s%d, s%d, 5" % (T_B, T_HALF))
    a("s_add_u32 s%d, s%d, s%d" % (T_A, T_A, T_B))
    for q in range(2):
        a("buffer_load_dwordx2 %s, v%d, s[12:15], s%d offen offset:%d" % (vr(FV_XR + 2 * q, 2), V_T, T_A, q * 16))
    a("s_branch L_f_syncret")


def fused_tail(a, E):
    S_WAVE, S_H, S_QB = E["S_WAVE"], E["S_H"], E["S_QB"]
    V_LANE, V_L16 = 1, 2
    V_T = 3
    S_MASK, S_W3, S_M0W, S_SW, S_SH, S_M0H = 43, 44, 45, 46, 47, 48
    a.ts("k2")
    a("s_setprio 0")
    a("s_mov_b32 s%d, 0xffff0000" % S_MASK)
    a("s_and_b32 s%d, s%d, 3" % (S_W3, S_WAVE))
    a("s_lshl_b32 s%d, s%d, 8" % (T_A, S_QB))
    a("s_add_u32 s%d, s%d, %d" % (T_A, T_A, FL_A))
    a("s_lshl_b32 s%d, s%d, 2" % (T_B, S_H))
    a("s_add_u32 s%d, s%d, s%d" % (T_B, T_B, T_A))
    a("s_and_b32 s%d, s2, 7" % T_A)
    a("s_lshl_b32 s%d, s%d, 8" % (T_A, T_A))
    a("s_add_u32 s%d, s%d, %d" % (T_A, T_A, FL_A))
    a("s_mul_i32 s%d, s%d, 7168" % (S_M0W, S_W3))
    a("s_mul_i32 s%d, s%d, %d" % (S_SW, T_CGF, 32 * 7 * 1024))
    a("s_add_u32 s%d, s%d, s%d" % (S_SW, S_SW, S_M0W))
    a("s_add_u32 s%d, s%d, %d" % (S_SW, S_SW, WS_GU))

    def w_stage(st):
        slot = st % 4
        a("s_add_u32 s%d, s%d, %d" % (T_C, S_SW, st * SLOT))
        a("s_add_u32 m0, s%d, %d" % (S_M0W, slot * SLOT))
        a("s_add_u32 s%d, s%d, 4096" % (T_D, T_C))
        for q in range(4):
            a("buffer_load_dwordx4 v%d, s[20:23], s%d offen offset:%d sc1 lds" % (V_L16, T_C, q * 1024))
        a("s_add_u32 m0, m0, 4096")
        a("s_nop 0")
        for q in range(3):
            a("buffer_load_dwordx4 v%d, s[20:23], s%d offen offset:%d sc1 lds" % (V_L16, T_D, q * 1024))

    a("s_waitcnt vmcnt(0)")
    a("s_barrier")
    a("s_cmp_lg_u32 s%d, 4" % S_WAVE)
    a("s_cbranch_scc1 L_f_a1")
    set_flag(a, T_B, V_T)
    poll(a, "fa", T_A, 32, FV_L4, FV_F + 2, POLLD)
    a.label("L_f_a1")
    a("s_cmp_ge_u32 s%d, 4" % S_WAVE)
    a("s_cbranch_scc1 L_f_a2")
    w_stage(0)
    w_stage(1)
    a.label("L_f_a2")
    OB, XS = 86016, 57344
    a("s_lshl_b32 s%d, s%d, 1" % (T_A, T_RB64))
    a("s_add_u32 s%d, s%d, s%d" % (T_A, T_A, T_HALF))
    a("s_lshl_b32 s%d, s%d, 2" % (T_A, T_A))
    a("s_add_u32 s%d, s%d, s%d" % (T_A, T_A, S_W3))
    a("s_lshl_b32 s%d, s%d, 13" % (T_A, T_A))
    a("s_add_u32 s%d, s%d, %d" % (T_A, T_A, WS_O))
    a("s_lshl_b32 s%d, s%d, 13" % (T_B, S_WAVE))
    a("s_add_u32 m0, s%d, %d" % (T_B, OB))
    a("s_barrier")
    a.ts("k2")
    for j in range(8):
        if j == 4:
            a("s_add_u32 m0, m0, 4096")
            a("s_add_u32 s%d, s%d, 4096" % (T_A, T_A))
        a("buffer_load_dwordx4 v%d, s[20:23], s%d offen offset:%d sc1 lds" % (V_L16, T_A, (j % 4) * 1024))

    V_OA = 12
    V_OF = [16 + 4 * i for i in range(8)]
    V_AB = 64
    V_U = 80
    V_HK = 16
    a("s_bfe_u32 s%d, s%d, 0x10001" % (T_B, S_WAVE))
    a("s_lshl_b32 s%d, s%d, 1" % (T_B, T_B))
    a("s_add_u32 s%d, s%d, s%d" % (T_B, T_B, T_HALF))
    a("s_lshl_b32 s%d, s%d, 14" % (T_B, T_B))
    a("s_add_u32 s%d, s%d, %d" % (T_B, T_B, OB))
    a("v_add_u32 v%d, s%d, v%d" % (V_OA, T_B, V_L16))
    a("s_xor_b32 s%d, s%d, 4" % (T_B, S_WAVE))
    a("s_lshl_b32 s%d, s%d, 11" % (T_B, T_B))
    a("s_add_u32 s%d, s%d, %d" % (T_B, T_B, XS))
    a("v_add_u32 v%d, s%d, v%d" % (V_OA + 1, T_B, V_L16))
    a("s_lshl_b32 s%d, s%d, 11" % (T_B, S_WAVE))
    a("s_add_u32 s%d, s%d, %d" % (T_B, T_B, XS))
    a("v_add_u32 v%d, s%d, v%d" % (V_OA + 2, T_B, V_L16))
    for d in range(4):
        a("v_lshlrev_b32 v%d, 16, v%d" % (V_U + 2 * d, FV_XR + d))
        a("v_and_b32 v%d, s%d, v%d" % (V_U + 2 * d + 1, S_MASK, FV_XR + d))
    a("s_waitcnt vmcnt(0)")
    a("s_barrier")
    a.ts("k2")
    for i in range(8):
        a("ds_read_b128 %s, v%d offset:%d" % (vr(V_OF[i]), V_OA, i * 1024))
    for i in range(16):
        a("s_waitcnt lgkmcnt(%d)" % (7 if i < 8 else 15 - i))
        a("v_mfma_f32_32x32x16_bf16 %s, %s, %s, %s" % (vr(V_AB, 16), vr(FV_WO + 4 * i), vr(V_OF[i % 8]), "0" if i == 0 else vr(V_AB, 16)))
        if i < 8:
            a("ds_read_b128 %s, v%d offset:%d" % (vr(V_OF[i]), V_OA, (i + 8) * 1024))
    a("s_lshl_b32 s%d, s%d, 4" % (T_A, T_TBO))
    a("s_add_u32 s%d, s%d, s%d" % (T_A, T_A, T_NBO))
    a("s_lshl_b32 s%d, s%d, 1" % (T_A, T_A))
    a("s_add_u32 s%d, s%d, s%d" % (T_A, T_A, T_HALF))
    a("s_lshl_b32 s%d, s%d, 8" % (T_B, T_A))
    a("s_add_u32 s%d, s%d, %d" % (T_B, T_B, WS_ST))
    a("s_lshl_b32 s%d, s%d, 10" % (T_A, T_A))
    a("s_add_u32 s%d, s%d, %d" % (T_A, T_A, WS_H))
    a("v_and_b32 v%d, 31, v%d" % (V_T, V_LANE))
    a("v_lshlrev_b32 v%d, 3, v%d" % (V_T, V_T))
    a("s_nop 3")
    for q in range(2):
        a("ds_write_b128 v%d, %s offset:%d" % (V_OA + 1, vr(V_AB + 8 + 4 * q), q * 1024))
    for i in range(8):
        a("v_add_f32 v%d, v%d, v%d" % (V_AB + i, V_AB + i, V_U + i))
    a("s_waitcnt lgkmcnt(0)")
    a("s_barrier")
    for q in range(2):
        a("ds_read_b128 %s, v%d offset:%d" % (vr(V_U + 4 * q), V_OA + 2, q * 1024))
    a("s_waitcnt lgkmcnt(0)")
    for i in range(8):
        a("v_add_f32 v%d, v%d, v%d" % (V_AB + i, V_AB + i, V_U + i))
    for i in range(4):
        a("v_cvt_pk_bf16_f32 v%d, v%d, v%d" % (V_HK + i, V_AB + 2 * i, V_AB + 2 * i + 1))
    a("buffer_store_dwordx4 %s, v%d, s[20:23], s%d offen sc1" % (vr(V_HK), V_L16, T_A))
    for d in range(4):
        a("v_lshlrev_b32 v%d, 16, v%d" % (V_U + 2 * d, V_HK + d))
        a("v_and_b32 v%d, s%d, v%d" % (V_U + 2 * d + 1, S_MASK, V_HK + d))
    S1, S2 = V_AB, V_AB + 1
    a("v_add_f32 v%d, v%d, v%d" % (S1, V_U, V_U + 1))
    a("v_mul_f32 v%d, v%d, v%d" % (S2, V_U, V_U))
    a("v_fmac_f32 v%d, v%d, v%d" % (S2, V_U + 1, V_U + 1))
    for i in range(2, 8):
        a("v_add_f32 v%d, v%d, v%d" % (S1, S1, V_U + i))
        a("v_fmac_f32 v%d, v%d, v%d" % (S2, V_U + i, V_U + i))
    sum_halves(a, S1, V_AB + 2)
    sum_halves(a, S2, V_AB + 3)
    a("buffer_store_dwordx2 %s, v%d, s[20:23], s%d offen sc1" % (vr(S1, 2), V_T, T_B))
    a("s_lshl_b32 s%d, s%d, 8" % (T_A, T_RB128))
    a("s_add_u32 s%d, s%d, %d" % (T_A, T_A, FL_B))
    a("s_lshl_b32 s%d, s%d, 2" % (T_B, T_CGF))
    a("s_add_u32 s%d, s%d, s%d" % (T_B, T_B, T_A))
    a("v_mov_b32 v%d, v%d" % (14, FV_LX))
    a("v_mov_b32 v%d, v%d" % (15, FV_L4))
    V_LX, V_L4 = 14, 15
    a("s_waitcnt vmcnt(0)")
    a("s_barrier")
    a.ts("k2")
    a("s_cmp_ge_u32 s%d, 4" % S_WAVE)
    a("s_cbranch_scc1 L_f_ccomp")
    w_stage(2)
    w_stage(3)
    HR = 114688
    a("s_lshl_b32 s%d, s%d, 2" % (T_A, T_RB128))
    a("s_add_u32 s%d, s%d, s%d" % (T_A, T_A, S_W3))
    a("s_lshl_b32 s%d, s%d, 15" % (S_SH, T_A))
    a("s_add_u32 s%d, s%d, %d" % (S_SH, S_SH, WS_H))
    a("s_lshl_b32 s%d, s%d, 12" % (S_M0H, S_W3))
    a("s_add_u32 s%d, s%d, %d" % (S_M0H, S_M0H, HR))

    def h_stage(st):
        a("s_add_u32 m0, s%d, %d" % (S_M0H, (st % 3) * 16384))
        a("s_add_u32 s%d, s%d, %d" % (T_C, S_SH, st * 4096))
        for q in range(4):
            a("buffer_load_dwordx4 v%d, s[20:23], s%d offen offset:%d sc1 lds" % (V_L16, T_C, q * 1024))

    a("s_barrier")
    for st in range(3):
        h_stage(st)
    waits = [8, 4, 11, 18, 18, 18, 11, 0]
    for j in range(8):
        a("s_waitcnt vmcnt(%d)" % waits[j])
        a("s_barrier")
        if j >= 1:
            if j + 2 <= 7:
                h_stage(j + 2)
            if j + 3 <= 7:
                w_stage(j + 3)
    a("s_branch L_f_dpre")
    a.label("L_f_ccomp")
    a("s_cmp_lg_u32 s%d, 4" % S_WAVE)
    a("s_cbranch_scc1 L_f_c1")
    set_flag(a, T_B, V_T)
    poll(a, "fb", T_A, 16, V_L4, 9, POLLD)
    a.label("L_f_c1")
    V_AW, V_AH = 12, 13
    V_ST = 20
    V_CSL = 52
    V_H = [80, 84]
    V_W = [88, 116]
    V_ACC = [144 + 16 * b for b in range(7)]
    V_TMP = 116
    S_TB = 49
    a("s_lshl_b32 s%d, s%d, 2" % (S_TB, T_RB128))
    a("s_add_u32 s%d, s%d, s%d" % (S_TB, S_TB, S_W3))
    a("v_mov_b32 v%d, v%d" % (V_AW, V_L16))
    a("s_lshl_b32 s%d, s%d, 12" % (T_A, S_W3))
    a("s_add_u32 s%d, s%d, %d" % (T_A, T_A, HR))
    a("v_add_u32 v%d, s%d, v%d" % (V_AH, T_A, V_L16))
    a("v_and_b32 v%d, 31, v%d" % (V_T, V_LANE))
    a("v_lshlrev_b32 v%d, 3, v%d" % (V_T, V_T))
    a("v_lshrrev_b32 v%d, 5, v%d" % (V_T + 1, V_LANE))
    a("v_lshl_add_u32 v%d, v%d, 12, v%d" % (V_T, V_T + 1, V_T))
    a("s_barrier")
    cur_base = [0]

    def reads(P):
        st, pos = P // 4, P % 4
        slot = st % 4
        base, imm = (slot // 2) * 2 * SLOT, (slot % 2) * SLOT
        out = []
        if base != cur_base[0]:
            d = base - cur_base[0]
            out.append("v_add_u32 v%d, %d, v%d" % (V_AW, d, V_AW) if d > 0 else "v_subrev_u32 v%d, %d, v%d" % (V_AW, -d, V_AW))
            cur_base[0] = base
        b = P % 2
        out.append("ds_read_b128 %s, v%d offset:%d" % (vr(V_H[b]), V_AH, (st % 3) * 16384 + pos * 1024))
        for blk in range(7):
            out.append("ds_read_b128 %s, v%d offset:%d" % (vr(V_W[b] + 4 * blk), V_AW, imm + (pos * 7 + blk) * 1024))
        return out

    extra = {}
    g = ["s_lshl_b32 s%d, s%d, 13" % (T_A, S_TB), "s_add_u32 s%d, s%d, %d" % (T_A, T_A, WS_ST)]
    for i in range(16):
        g.append("buffer_load_dwordx2 %s, v%d, s[20:23], s%d offen offset:%d sc1" % (vr(V_ST + 2 * i, 2), V_T, T_A, i * 256))
    for k in range(6):
        extra[8 + k] = g[3 * k:3 * k + 3]
    g = ["s_mul_i32 s%d, s%d, 7168" % (T_C, T_CGF), "s_add_u32 s%d, s%d, %d" % (T_C, T_C, WS_CS), "s_add_u32 s%d, s%d, 4096" % (T_D, T_C)]
    for blk in range(7):
        g.append("buffer_load_dwordx4 %s, v%d, s[20:23], s%d offen offset:%d sc1" % (vr(V_CSL + 4 * blk), V_L16, T_C if blk < 4 else T_D, (blk % 4) * 1024))
    extra[16], extra[17], extra[18] = g[:5], g[5:8], g[8:]
    a("s_barrier")
    a.ts("k2")
    for l in reads(0):
        a(l)
    for P in range(32):
        st, pos = P // 4, P % 4
        b = P % 2
        a("s_waitcnt lgkmcnt(0)")
        if pos == 3 and P < 31:
            a("s_barrier")
        rd = reads(P + 1) if P < 31 else []
        m = []
        for blk in range(7):
            m.append("v_mfma_f32_32x32x16_bf16 %s, %s, %s, %s" % (vr(V_ACC[blk], 16), vr(V_W[b] + 4 * blk), vr(V_H[b]), "0" if P == 0 else vr(V_ACC[blk], 16)))
        for l in interleave(m, rd + extra.get(P, []), per=2):
            a(l)
    a.ts("k2")
    a("s_waitcnt vmcnt(0)")
    S1, S2 = V_T + 2, V_T + 3
    a("v_add_f32 v%d, v%d, v%d" % (S1, V_ST, V_ST + 2))
    a("v_add_f32 v%d, v%d, v%d" % (S2, V_ST + 1, V_ST + 3))
    for i in range(2, 16):
        a("v_add_f32 v%d, v%d, v%d" % (S1, S1, V_ST + 2 * i))
        a("v_add_f32 v%d, v%d, v%d" % (S2, S2, V_ST + 2 * i + 1))
    sum_halves(a, S1, V_T + 4)
    sum_halves(a, S2, V_T + 4)
    V_MU, V_VAR, V_RS, V_C1, V_C2 = V_T + 4, V_T + 5, V_T + 6, V_T + 7, V_T + 8
    a("v_mul_f32 v%d, 0x%x, v%d" % (V_MU, f32bits(1.0 / 512), S1))
    a("v_mul_f32 v%d, 0x%x, v%d" % (V_VAR, f32bits(1.0 / 512), S2))
    a("v_fma_f32 v%d, -v%d, v%d, v%d" % (V_VAR, V_MU, V_MU, V_VAR))
    a("v_max_f32 v%d, 0, v%d" % (V_VAR, V_VAR))
    a("v_add_f32 v%d, 0x%x, v%d" % (V_VAR, f32bits(1e-5), V_VAR))
    a("v_rsq_f32 v%d, v%d" % (V_RS, V_VAR))
    a("v_sub_f32 v%d, 0, v%d" % (V_MU, V_MU))
    VB = V_ST
    split_hi_lo_B(a, V_MU, VB, V_T, S_MASK)
    c1 = -2.0 * math.sqrt(2.0 / math.pi) * math.log2(math.e)
    a("v_mul_f32 v%d, 0x%x, v%d" % (V_C1, f32bits(c1), V_RS))
    a("v_mul_f32 v%d, v%d, v%d" % (V_C2, V_RS, V_RS))
    a("v_mul_f32 v%d, v%d, v%d" % (V_C2, V_C2, V_C1))
    a("v_mul_f32 v%d, 0x%x, v%d" % (V_C2, f32bits(0.044715), V_C2))
    for blk in range(7):
        c = V_CSL + 4 * blk
        a("v_add_f32 v%d, v%d, v%d" % (c, c, c + 1))
        a("v_add_f32 v%d, v%d, v%d" % (c + 2, c + 2, c + 3))
        a("v_add_f32 v%d, v%d, v%d" % (c, c, c + 2))
        split_hi_lo_A(a, c, V_W[0] + 4 * blk, V_T, S_MASK)
    a("s_nop 1")
    for blk in range(7):
        a("v_mfma_f32_32x32x16_bf16 %s, %s, %s, %s" % (vr(V_ACC[blk], 16), vr(V_W[0] + 4 * blk), vr(VB), vr(V_ACC[blk], 16)))
    a("s_mul_i32 s%d, s%d, 112" % (T_A, S_TB))
    a("s_mul_i32 s%d, s%d, 7" % (T_B, T_CGF))
    a("s_add_u32 s%d, s%d, s%d" % (T_A, T_A, T_B))
    a("s_lshl_b32 s%d, s%d, 10" % (T_A, T_A))
    a("s_add_u32 s%d, s%d, %d" % (T_A, T_A, WS_A))
    a("s_add_u32 s%d, s%d, 4096" % (T_B, T_A))
    a("s_nop 7")
    for blk in range(7):
        G = V_ACC[blk]
        Uu = G + 8
        T = V_TMP
        for i in range(8):
            a("v_mul_f32 v%d, v%d, v%d" % (T + i, G + i, G + i))
        for i in range(8):
            a("v_fma_f32 v%d, v%d, v%d, v%d" % (T + i, T + i, V_C2, V_C1))
        for i in range(8):
            a("v_mul_f32 v%d, v%d, v%d" % (T + i, T + i, G + i))
        for i in range(8):
            a("v_exp_f32 v%d, v%d" % (T + i, T + i))
        for i in range(8):
            a("v_mul_f32 v%d, v%d, v%d" % (G + i, G + i, Uu + i))
        for i in range(8):
            a("v_fma_f32 v%d, v%d, v%d, v%d" % (T + i, T + i, V_VAR, V_VAR))
        for i in range(8):
            a("v_rcp_f32 v%d, v%d" % (T + i, T + i))
        a("s_nop 0")
        for i in range(8):
            a("v_mul_f32 v%d, v%d, v%d" % (G + i, G + i, T + i))
        o = V_TMP + 8 + 4 * (blk % 4)
        for i in range(4):
            a("v_cvt_pk_bf16_f32 v%d, v%d, v%d" % (o + i, G + 2 * i, G + 2 * i + 1))
        a("buffer_store_dwordx4 %s, v%d, s[20:23], s%d offen offset:%d sc1" % (vr(o), V_L16, T_A if blk < 4 else T_B, (blk % 4) * 1024))
    a.ts("k2")
    a("s_waitcnt vmcnt(0)")
    a("s_barrier")
    a("s_cmp_lg_u32 s%d, 4" % S_WAVE)
    a("s_cbranch_scc1 L_f_c2")
    a("s_lshl_b32 s%d, s%d, 8" % (T_A, T_RB128))
    a("s_lshl_b32 s%d, s%d, 2" % (T_B, T_CGF))
    a("s_add_u32 s%d, s%d, s%d" % (T_B, T_B, T_A))
    a("s_add_u32 s%d, s%d, %d" % (T_B, T_B, FL_C))
    set_flag(a, T_B, V_T)
    a.label("L_f_c2")
    a.label("L_f_dpre")
    V_WD = 144
    S_KQ = 50
    a("s_lshr_b32 s%d, s%d, 1" % (S_KQ, S_WAVE))
    a("s_lshl_b32 s%d, s%d, 2" % (T_A, T_NBO))
    a("s_add_u32 s%d, s%d, s%d" % (T_A, T_A, S_KQ))
    a("s_mul_i32 s%d, s%d, %d" % (T_A, T_A, 28 * 1024))
    a("s_add_u32 s%d, s%d, %d" % (T_A, T_A, WS_WD))
    for i in range(28):
        if i and i % 4 == 0:
            a("s_add_u32 s%d, s%d, 4096" % (T_A, T_A))
        a("buffer_load_dwordx4 %s, v%d, s[20:23], s%d offen offset:%d sc1" % (vr(V_WD + 4 * i), V_LX, T_A, (i % 4) * 1024))
    a("s_cmp_ge_u32 s%d, 4" % S_WAVE)
    a("s_cbranch_scc1 L_f_d1")
    a("s_barrier")
    a("s_cmp_lg_u32 s%d, 0" % S_WAVE)
    a("s_cbranch_scc1 L_f_d1")
    a("s_lshl_b32 s%d, s%d, 8" % (T_A, T_RB128))
    a("s_add_u32 s%d, s%d, %d" % (T_A, T_A, FL_C))
    poll(a, "fc", T_A, 16, V_L4, 9, POLLD)
    a.label("L_f_d1")
    V_AA = [12, 13]
    V_AF = [[32 + 32 * b + 4 * i for i in range(8)] for b in range(2)]
    V_AD = [96, 112]
    S_SA, S_M0A = 45, 46
    a("s_and_b32 s%d, s%d, 1" % (T_A, S_WAVE))
    a("s_lshl_b32 s%d, s%d, 1" % (T_B, T_RB64))
    a("s_add_u32 s%d, s%d, s%d" % (T_A, T_A, T_B))
    a("s_lshl_b32 s%d, s%d, 2" % (T_A, T_A))
    a("s_add_u32 s%d, s%d, s%d" % (T_A, T_A, S_KQ))
    a("s_mul_i32 s%d, s%d, %d" % (S_SA, T_A, 28 * 1024))
    a("s_add_u32 s%d, s%d, %d" % (S_SA, S_SA, WS_A))
    a("s_lshl_b32 s%d, s%d, 12" % (S_M0A, S_WAVE))
    for ai in range(2):
        a("s_and_b32 s%d, s%d, 1" % (T_A, S_KQ))
        a("s_xor_b32 s%d, s%d, %d" % (T_A, T_A, ai))
        a("s_lshl_b32 s%d, s%d, 1" % (T_B, S_KQ))
        a("s_add_u32 s%d, s%d, s%d" % (T_A, T_A, T_B))
        a("s_lshl_b32 s%d, s%d, 12" % (T_A, T_A))
        a("v_add_u32 v%d, s%d, v%d" % (V_AA[ai], T_A, V_L16))

    def a_stage(j):
        out = ["s_add_u32 m0, s%d, %d" % (S_M0A, (j % 5) * 32768), "s_add_u32 s%d, s%d, %d" % (T_C, S_SA, j * 4096)]
        for q in range(4):
            out.append("buffer_load_dwordx4 v%d, s[20:23], s%d offen offset:%d sc1 lds" % (V_L16, T_C, q * 1024))
        return out

    a("s_barrier")
    a.ts("k2")
    DD = 3
    for j in range(DD):
        for l in a_stage(j):
            a(l)
    cb = 0
    for j in range(7):
        slot = j % 5
        base, imm = (slot // 2) * 65536, (slot % 2) * 32768
        if base != cb:
            d = base - cb
            for r in V_AA:
                a("v_add_u32 v%d, %d, v%d" % (r, d, r) if d > 0 else "v_subrev_u32 v%d, %d, v%d" % (r, -d, r))
            cb = base
        a("s_waitcnt vmcnt(%d)" % (4 * (min(j + DD - 1, 6) - j)))
        a("s_barrier")
        F = V_AF[j % 2]
        for q in range(4):
            for ai in range(2):
                a("ds_read_b128 %s, v%d offset:%d" % (vr(F[q * 2 + ai]), V_AA[ai], imm + q * 1024))
        if j + DD <= 6:
            for l in a_stage(j + DD):
                a(l)
        for q in range(4):
            for ai in range(2):
                a("s_waitcnt lgkmcnt(%d)" % (7 - (q * 2 + ai)))
                a("v_mfma_f32_32x32x16_bf16 %s, %s, %s, %s" % (vr(V_AD[ai], 16), vr(V_WD + 4 * (4 * j + q)), vr(F[q * 2 + ai]), "0" if (j == 0 and q == 0) else vr(V_AD[ai], 16)))
    a.ts("k2")
    XD = 65536
    for x in range(1, 4):
        a("s_xor_b32 s%d, s%d, %d" % (T_A, S_WAVE, x << 1))
        a("s_mul_i32 s%d, s%d, 6144" % (T_A, T_A))
        a("s_add_u32 s%d, s%d, %d" % (T_A, T_A, XD + (x - 1) * 2048))
        a("v_add_u32 v%d, s%d, v%d" % (V_T + x, T_A, V_L16))
    a("s_mul_i32 s%d, s%d, 6144" % (T_A, S_WAVE))
    a("s_add_u32 s%d, s%d, %d" % (T_A, T_A, XD))
    a("v_add_u32 v%d, s%d, v%d" % (V_T, T_A, V_L16))
    src = {1: V_AD[1], 2: V_AD[0] + 8, 3: V_AD[1] + 8}
    for x in (2, 1, 3):
        for q in range(2):
            a("ds_write_b128 v%d, %s offset:%d" % (V_T + x, vr(src[x] + 4 * q), q * 1024))
    U = 32
    for d in range(4):
        a("v_lshlrev_b32 v%d, 16, v%d" % (U + 2 * d, V_HK + d))
        a("v_and_b32 v%d, s%d, v%d" % (U + 2 * d + 1, S_MASK, V_HK + d))
    for i in range(8):
        a("v_add_f32 v%d, v%d, v%d" % (V_AD[0] + i, V_AD[0] + i, U + i))
    srd(a, 12, 16, 2048 * 1024)
    a("v_and_b32 v%d, 31, v%d" % (V_T + 4, V_LANE))
    a("v_lshlrev_b32 v%d, 10, v%d" % (V_T + 4, V_T + 4))
    a("v_lshrrev_b32 v%d, 5, v%d" % (V_T + 5, V_LANE))
    a("v_lshl_add_u32 v%d, v%d, 3, v%d" % (V_T + 4, V_T + 5, V_T + 4))
    a("s_lshl_b32 s%d, s%d, 15" % (T_A, T_TBO))
    a("s_lshl_b32 s%d, s%d, 6" % (T_B, T_NBO))
    a("s_add_u32 s%d, s%d, s%d" % (T_A, T_A, T_B))
    a("s_lshl_b32 s%d, s%d, 5" % (T_B, T_HALF))
    a("s_add_u32 s%d, s%d, s%d" % (T_A, T_A, T_B))
    a("s_waitcnt lgkmcnt(0)")
    a("s_barrier")
    R = 48
    for k in range(6):
        a("ds_read_b128 %s, v%d offset:%d" % (vr(R + 4 * k), V_T, k * 1024))
    for x in range(3):
        a("s_waitcnt lgkmcnt(%d)" % (4 - 2 * x))
        for i in range(8):
            a("v_add_f32 v%d, v%d, v%d" % (V_AD[0] + i, V_AD[0] + i, R + 8 * x + i))
    for i in range(4):
        a("v_cvt_pk_bf16_f32 v%d, v%d, v%d" % (U + i, V_AD[0] + 2 * i, V_AD[0] + 2 * i + 1))
    for q in range(2):
        a("buffer_store_dwordx2 %s, v%d, s[12:15], s%d offen offset:%d" % (vr(U + 2 * q, 2), V_T + 4, T_A, q * 16))
    a.ts_flush("k2", S_WAVE, V_T)


def gen_f(a):
    name = "kf_fused_kernel"
    kernel_begin(a, name)
    S_WAVE, S_H, S_QB, S_T0, S_T1, S_T2, S_T3 = 40, 41, 42, 43, 44, 45, 46
    S_ITER, S_SYNC, S_PASS, S_NT = 47, 48, 49, 50
    S_TASK, S_STG, S_DST0, S_DST1, S_TYPE = 51, 52, 53, 54, 55
    S_VMASK = 56
    S_CS = 58
    S_KB, S_W1K, S_CH = 59, 60, 61
    S_PE, S_PO, S_PS = 36, 37, 38
    V_LANE, V_L16, V_T = 1, 2, 3
    V_KA, V_VA = 10, 11
    V_Q = 12
    V_K = [16, 20]
    V_V = [24, 32]
    V_P = 40
    V_CM = 48
    V_S = [64, 80]
    V_O = 96
    V_MAX = 112
    V_PK = 113
    V_PD = 114
    V_SEL = 116
    V_PCS = [120, 124]
    STG = 131072
    a("s_cmp_ge_u32 s2, 256")
    a("s_cbranch_scc1 L_f_end")
    a.ts("k2")
    pass
    a("s_load_dwordx2 s[8:9], s[0:1], %d" % ARG_WS)
    a("s_load_dwordx2 s[4:5], s[0:1], %d" % ARG_WO)
    a("s_load_dwordx4 s[24:27], s[0:1], %d" % ARG_WG)
    a("s_load_dwordx2 s[6:7], s[0:1], %d" % ARG_WD)
    a("s_load_dwordx2 s[10:11], s[0:1], %d" % ARG_X)
    a("s_load_dwordx2 s[16:17], s[0:1], %d" % ARG_OUT)
    a("v_lshrrev_b32 v%d, 6, v0" % V_T)
    a("v_and_b32 v%d, 63, v0" % V_LANE)
    a("v_readfirstlane_b32 s%d, v%d" % (S_WAVE, V_T))
    a("v_lshlrev_b32 v%d, 4, v%d" % (V_L16, V_LANE))
    a("s_and_b32 s%d, s2, 7" % S_H)
    a("s_lshl_b32 s%d, s%d, 2" % (S_H, S_H))
    a("s_lshr_b32 s%d, s2, 6" % S_T0)
    a("s_add_u32 s%d, s%d, s%d" % (S_H, S_H, S_T0))
    a("s_lshr_b32 s%d, s2, 3" % S_QB)
    a("s_and_b32 s%d, s%d, 7" % (S_QB, S_QB))
    a("s_lshl_b32 s%d, s%d, 16" % (S_KB, S_H))
    a("s_lshl_b32 s%d, s%d, 10" % (S_W1K, S_WAVE))
    a("s_add_u32 s%d, s%d, s%d" % (S_KB, S_KB, S_W1K))
    a("s_lshl_b32 s%d, s%d, 13" % (S_CH, S_QB))
    a("s_add_u32 s%d, s%d, s%d" % (S_T3, S_KB, S_CH))
    a("s_add_u32 s%d, s%d, %d" % (S_KB, S_KB, WS_K))
    if not K2_ROT:
        a("s_mov_b32 s%d, 0" % S_CH)
    a("s_waitcnt lgkmcnt(0)")
    pass
    srd(a, 20, 8, WS_SIZE)
    a("buffer_load_dwordx4 %s, v%d, s[20:23], s%d offen" % (vr(V_Q), V_L16, S_T3))
    pass

    def kv_dma(c):
        return [["s_add_u32 s%d, s%d, s%d" % (S_T3, S_KB, S_CH),
                 "s_add_u32 m0, s%d, %d" % (S_W1K, c * 8192),
                 "s_add_u32 s%d, s%d, 8192" % (S_CH, S_CH),
                 "buffer_load_dwordx4 v%d, s[20:23], s%d offen lds" % (V_L16, S_T3)],
                ["s_add_u32 s%d, s%d, %d" % (S_T3, S_T3, WS_V - WS_K),
                 "s_add_u32 m0, s%d, %d" % (S_W1K, 65536 + c * 8192),
                 "s_and_b32 s%d, s%d, 0xffff" % (S_CH, S_CH),
                 "buffer_load_dwordx4 v%d, s[20:23], s%d offen lds" % (V_L16, S_T3)]]

    for c in range(2):
        for g in kv_dma(c):
            for l in g:
                a(l)
    a("s_mov_b32 s%d, 0" % S_TYPE)
    a("s_cmp_lt_u32 s%d, 4" % S_WAVE)
    a("s_cbranch_scc1 L_f_nopack")
    a("s_lshl_b32 s%d, s2, 2" % S_TASK)
    a("s_add_u32 s%d, s%d, s%d" % (S_TASK, S_TASK, S_WAVE))
    a("s_sub_u32 s%d, s%d, 4" % (S_TASK, S_TASK))
    a("s_cmp_ge_u32 s%d, 736" % S_TASK)
    a("s_cbranch_scc1 L_f_nopack")
    a("s_lshl_b32 s%d, s%d, 13" % (S_STG, S_WAVE))
    a("s_add_u32 s%d, s%d, %d" % (S_STG, S_STG, STG - 4 * 8192))
    a("v_lshrrev_b32 v%d, 2, v%d" % (V_T, V_LANE))
    a("v_and_b32 v%d, 3, v%d" % (V_T + 1, V_LANE))
    a("s_cmp_ge_u32 s%d, 448" % S_TASK)
    a("s_cbranch_scc1 L_f_packn")
    a("s_mov_b32 s%d, 1" % S_TYPE)
    srd(a, 28, 24, 512 * 3584)
    srd(a, 32, 26, 512 * 3584)
    a("v_mul_u32_u24 v%d, 3584, v%d" % (V_T, V_T))
    a("v_lshl_add_u32 v%d, v%d, 4, v%d" % (V_PD, V_T + 1, V_T))
    a("s_and_b32 s%d, s%d, 7" % (S_T0, S_TASK))
    a("s_lshr_b32 s%d, s%d, 3" % (S_T1, S_TASK))
    a("s_mul_i32 s%d, s%d, %d" % (S_PE, S_T0, 64 * 3584))
    a("s_lshl_b32 s%d, s%d, 6" % (S_T2, S_T1))
    a("s_add_u32 s%d, s%d, s%d" % (S_PE, S_PE, S_T2))
    a("s_mov_b32 s%d, s%d" % (S_PO, S_PE))
    a("s_mov_b32 s%d, %d" % (S_PS, 16 * 3584))
    for hb, sd in ((0, S_DST0), (1, S_DST1)):
        a("s_lshl_b32 s%d, s%d, 1" % (S_T2, S_T1))
        if hb:
            a("s_add_u32 s%d, s%d, 1" % (S_T2, S_T2))
        a("s_mul_i32 s%d, s%d, 9363" % (S_CS, S_T2))
        a("s_lshr_b32 s%d, s%d, 16" % (S_CS, S_CS))
        a("s_mul_i32 s%d, s%d, 7" % (sd, S_CS))
        a("s_sub_u32 s%d, s%d, s%d" % (sd, S_T2, sd))
        a("s_mul_i32 s%d, s%d, %d" % (S_CS, S_CS, 32 * 7))
        a("s_add_u32 s%d, s%d, s%d" % (sd, sd, S_CS))
        a("s_mul_i32 s%d, s%d, 28" % (S_CS, S_T0))
        a("s_add_u32 s%d, s%d, s%d" % (sd, sd, S_CS))
        a("s_lshl_b32 s%d, s%d, 10" % (sd, sd))
        a("s_add_u32 s%d, s%d, %d" % (sd, sd, WS_GU))
    a("s_lshl_b32 s%d, s%d, 11" % (S_CS, S_T1))
    a("s_lshr_b32 s%d, s%d, 2" % (S_T2, S_T0))
    a("s_lshl_b32 s%d, s%d, 9" % (S_T2, S_T2))
    a("s_add_u32 s%d, s%d, s%d" % (S_CS, S_CS, S_T2))
    a("s_and_b32 s%d, s%d, 3" % (S_T2, S_T0))
    a("s_lshl_b32 s%d, s%d, 2" % (S_T2, S_T2))
    a("s_add_u32 s%d, s%d, s%d" % (S_CS, S_CS, S_T2))
    a("s_add_u32 s%d, s%d, %d" % (S_CS, S_CS, WS_CS))
    a("s_branch L_f_nopack")
    a.label("L_f_packn")
    a("s_mov_b32 s%d, 2" % S_TYPE)
    a("v_lshlrev_b32 v%d, 10, v%d" % (V_T, V_T))
    a("v_lshl_add_u32 v%d, v%d, 4, v%d" % (V_PD, V_T + 1, V_T))
    a("s_cmp_ge_u32 s%d, 512" % S_TASK)
    a("s_cbranch_scc1 L_f_packd")
    srd(a, 28, 4, 512 * 1024)
    srd(a, 32, 4, 512 * 1024)
    a("s_sub_u32 s%d, s%d, 448" % (S_T0, S_TASK))
    a("s_lshr_b32 s%d, s%d, 2" % (S_T1, S_T0))
    a("s_and_b32 s%d, s%d, 3" % (S_T0, S_T0))
    a("s_lshl_b32 s%d, s%d, 15" % (S_DST0, S_T1))
    a("s_add_u32 s%d, s%d, %d" % (S_DST0, S_DST0, WS_WO))
    a("s_branch L_f_packc")
    a.label("L_f_packd")
    srd(a, 28, 6, 1792 * 1024)
    srd(a, 32, 6, 1792 * 1024)
    a("s_sub_u32 s%d, s%d, 512" % (S_T0, S_TASK))
    a("s_mul_i32 s%d, s%d, 4682" % (S_T1, S_T0))
    a("s_lshr_b32 s%d, s%d, 16" % (S_T1, S_T1))
    a("s_mul_i32 s%d, s%d, 14" % (S_T2, S_T1))
    a("s_sub_u32 s%d, s%d, s%d" % (S_T0, S_T0, S_T2))
    a("s_mul_i32 s%d, s%d, %d" % (S_DST0, S_T1, 112 * 1024))
    a("s_add_u32 s%d, s%d, %d" % (S_DST0, S_DST0, WS_WD))
    a.label("L_f_packc")
    a("s_lshl_b32 s%d, s%d, 13" % (S_T2, S_T0))
    a("s_add_u32 s%d, s%d, s%d" % (S_DST0, S_DST0, S_T2))
    a("s_lshl_b32 s%d, s%d, 17" % (S_PE, S_T0))
    a("s_lshl_b32 s%d, s%d, 6" % (S_T2, S_T1))
    a("s_add_u32 s%d, s%d, s%d" % (S_PE, S_PE, S_T2))
    a("s_add_u32 s%d, s%d, 16384" % (S_PO, S_PE))
    a("s_mov_b32 s%d, 32768" % S_PS)
    a.label("L_f_nopack")
    a("s_lshr_b32 s%d, s%d, 2" % (S_T0, S_WAVE))
    a("s_lshl_b32 s%d, s%d, 8" % (S_T0, S_T0))
    a("v_xor_b32 v%d, s%d, v%d" % (FV_LX, S_T0, V_L16))
    a("v_lshlrev_b32 v%d, 2, v%d" % (FV_L4, V_LANE))
    a("v_mov_b32 v%d, 0" % (FV_F + 1))
    a("s_mov_b32 s%d, 0x0000ffff" % S_VMASK)
    a("s_mov_b32 s%d, 0x0000ffff" % (S_VMASK + 1))
    a("v_and_b32 v%d, 27, v%d" % (V_T, V_LANE))
    a("v_cmp_eq_u32 vcc, 16, v%d" % V_T)
    a("v_mov_b32 v%d, 0x%x" % (V_T + 1, ONES_BF16))
    a("s_nop 1")
    a("v_cndmask_b32 v%d, 0, v%d, vcc" % (V_V[0], V_T + 1))
    for i in range(1, 16):
        a("v_mov_b32 v%d, v%d" % (V_V[0] + i, V_V[0]))
    a("s_mov_b32 s%d, 7" % S_SYNC)
    a("s_mov_b32 s%d, 0" % S_PASS)
    a("s_mov_b32 s%d, 1" % S_NT)
    a("s_setprio 3")
    pass
    a("s_waitcnt vmcnt(2)")
    pass
    a("s_barrier")
    a.ts("k2")
    pass
    a.label("L_f_maxpass")
    a("v_mov_b32 v%d, 0xff800000" % V_MAX)
    a("v_mov_b32 v%d, v%d" % (V_KA, V_L16))
    a.label("L_f_mloop")
    a("ds_read_b128 %s, v%d" % (vr(V_K[0]), V_KA))
    a("v_add_u32 v%d, 1024, v%d" % (V_KA, V_KA))
    a("s_waitcnt lgkmcnt(0)")
    a("v_mfma_f32_32x32x16_bf16 %s, %s, %s, 0" % (vr(V_S[0], 16), vr(V_K[0]), vr(V_Q)))
    a("s_nop 15")
    for i in range(8):
        a("v_max3_f32 v%d, v%d, v%d, v%d" % (V_MAX, V_S[0] + 2 * i, V_S[0] + 2 * i + 1, V_MAX))
    a("s_sub_u32 s%d, s%d, 1" % (S_NT, S_NT))
    a("s_cmp_lg_u32 s%d, 0" % S_NT)
    a("s_cbranch_scc1 L_f_mloop")
    a("v_mov_b32 v%d, v%d" % (V_KA, V_L16))
    a("v_lshrrev_b32 v%d, 5, v%d" % (V_T, V_LANE))
    a("v_lshlrev_b32 v%d, 8, v%d" % (V_T, V_T))
    a("v_and_b32 v%d, 15, v%d" % (V_T + 1, V_LANE))
    a("v_lshl_add_u32 v%d, v%d, 4, v%d" % (V_VA, V_T + 1, V_T))
    a("v_add_u32 v%d, 65536, v%d" % (V_VA, V_VA))
    a("ds_read_b128 %s, v%d" % (vr(V_K[0]), V_KA))
    a("ds_read_b128 %s, v%d offset:1024" % (vr(V_K[1]), V_KA))
    a("s_mov_b64 exec, s[%d:%d]" % (S_VMASK, S_VMASK + 1))
    a("ds_read_b128 %s, v%d" % (vr(V_V[0]), V_VA))
    a("ds_read_b128 %s, v%d offset:512" % (vr(V_V[0] + 4), V_VA))
    a("s_mov_b64 exec, -1")
    a("v_mov_b32 v%d, v%d" % (V_T, V_MAX))
    a("s_nop 1")
    a("v_permlane32_swap_b32 v%d, v%d" % (V_MAX, V_T))
    a("s_nop 1")
    a("v_max_f32 v%d, v%d, v%d" % (V_MAX, V_MAX, V_T))
    for i in range(16):
        a("v_sub_f32 v%d, 0, v%d" % (V_CM + i, V_MAX))
    a("s_waitcnt lgkmcnt(0)")
    a("s_nop 0")
    a("v_mfma_f32_32x32x16_bf16 %s, %s, %s, %s" % (vr(V_S[0], 16), vr(V_K[0]), vr(V_Q), vr(V_CM, 16)))
    for i in range(16):
        a("v_mov_b32 v%d, 0" % (V_O + i))
    for i in range(4):
        a("v_mov_b32 v%d, 0" % (V_P + 4 + i))
    a("s_mov_b32 s%d, 8" % S_ITER)
    a.ts("k2")
    a("s_cmp_lg_u32 s%d, 0" % S_PASS)
    a("s_cbranch_scc1 L_f_loop")

    def body(peeled):
        for t in range(8):
            cur, nxt = t % 2, (t + 1) % 2
            x1, x2 = [], []
            if peeled:
                if t < 6:
                    x1, x2 = kv_dma(t + 2)
                if t == 6:
                    a("s_waitcnt vmcnt(12)")
                    a("s_barrier")
                if t >= 6:
                    lab = "L_f_np%d" % t
                    x1 = ["s_cmp_eq_u32 s%d, 0" % S_TYPE, "s_cbranch_scc1 %s" % lab]
                    for i in range(4 * (t - 6), 4 * (t - 6) + 4):
                        x1 += ["s_add_u32 m0, s%d, %d" % (S_STG, i * 1024), "s_nop 0",
                               "buffer_load_dwordx4 v%d, s[%d:%d], s%d offen lds" % (V_PD, 28 + 4 * (i % 2), 31 + 4 * (i % 2), S_PO if i % 2 else S_PE),
                               "s_add_u32 s%d, s%d, s%d" % ((S_PO, S_PO, S_PS) if i % 2 else (S_PE, S_PE, S_PS))]
                    x1 += [lab + ":"]
            else:
                if t == 0:
                    for k, r in enumerate((5, 2, 1)):
                        x1 += ["s_cmp_lg_u32 s%d, %d" % (S_ITER, r), "s_cbranch_scc1 L_f_pp%d" % k, "s_setprio %d" % (2 - k), "L_f_pp%d:" % k]
                if t == 6:
                    a("s_cmp_eq_u32 s%d, s%d" % (S_ITER, S_SYNC))
                    a("s_cbranch_scc1 L_f_event")
                    a.label("L_f_syncret")
            S = V_S[cur]
            e = lambda i: "v_exp_f32 v%d, v%d" % (S + i, S + i)
            c = lambda i: "v_cvt_pk_bf16_f32 v%d, v%d, v%d" % (V_P + i, S + 2 * i, S + 2 * i + 1)
            pv = lambda b, h: "v_mfma_f32_32x32x16_bf16 %s, %s, %s, %s" % (vr(V_O, 16), vr(V_V[b] + 4 * h), vr(V_P + 4 * h), vr(V_O, 16))
            qk = "v_mfma_f32_32x32x16_bf16 %s, %s, %s, %s" % (vr(V_S[nxt], 16), vr(V_K[nxt]), vr(V_Q), vr(V_CM, 16))
            rdk = "ds_read_b128 %s, v%d offset:%d" % (vr(V_K[cur]), V_KA, (t + 2) * 1024)
            rdv = ["s_mov_b64 exec, s[%d:%d]" % (S_VMASK, S_VMASK + 1),
                   "ds_read_b128 %s, v%d offset:%d" % (vr(V_V[nxt]), V_VA, (t + 1) * 1024),
                   "ds_read_b128 %s, v%d offset:%d" % (vr(V_V[nxt] + 4), V_VA, (t + 1) * 1024 + 512),
                   "s_mov_b64 exec, -1"]
            seq = [e(0), e(1), pv(nxt, 1), e(2), "s_waitcnt lgkmcnt(0)", rdk, e(3)] + rdv + [c(0), e(4), e(5), c(1), e(6), e(7), qk, c(2), e(8)] + x1 + [e(9), c(3),
                   e(10), e(11), c(4), e(12), e(13), pv(cur, 0), c(5), e(14)] + x2 + [e(15), c(6)]
            if t == 7:
                seq += ["v_add_u32 v%d, 8192, v%d" % (V_KA, V_KA), "v_add_u32 v%d, 8192, v%d" % (V_VA, V_VA),
                        "s_sub_u32 s%d, s%d, 1" % (S_ITER, S_ITER), "s_cmp_lg_u32 s%d, 0" % S_ITER]
            seq += [c(7)]
            for l in seq:
                if l.endswith(":"):
                    a.label(l[:-1])
                else:
                    a(l)

    body(True)
    a.raw(".p2align 6")
    a.label("L_f_loop")
    body(False)
    a("s_cbranch_scc1 L_f_loop")
    a.ts("k2")
    a("s_nop 1")
    a("v_mfma_f32_32x32x16_bf16 %s, %s, %s, %s" % (vr(V_O, 16), vr(V_V[1] + 4), vr(V_P + 4), vr(V_O, 16)))
    a("s_waitcnt lgkmcnt(0)")
    a("s_lshl_b32 s%d, s%d, 3" % (S_T0, S_QB))
    a("s_add_u32 s%d, s%d, s%d" % (S_T0, S_T0, S_WAVE))
    a("s_lshl_b32 s%d, s%d, 5" % (S_T0, S_T0))
    a("s_add_u32 s%d, s%d, s%d" % (S_T0, S_T0, S_H))
    a("s_lshl_b32 s%d, s%d, 10" % (S_T0, S_T0))
    a("s_add_u32 s%d, s%d, %d" % (S_T0, S_T0, WS_O))
    a("s_nop 7")
    a("v_mul_f32 v%d, 0, v%d" % (V_T, V_O))
    for i in range(1, 8):
        a("v_fmac_f32 v%d, 0, v%d" % (V_T, V_O + i))
    a("v_add_f32 v%d, v%d, v%d" % (V_T, V_T, V_O + 8))
    a("v_cmp_gt_f32 vcc, 0x%x, v%d" % (f32bits(2.0 ** 100), V_T))
    a("v_rcp_f32 v%d, v%d" % (V_T + 1, V_O + 8))
    a("s_cmp_lg_u32 s%d, 0" % S_PASS)
    a("s_cbranch_scc1 L_f_fin")
    a("s_cmp_eq_u64 vcc, exec")
    a("s_cbranch_scc1 L_f_fin")
    a("s_mov_b32 s%d, 1" % S_PASS)
    a("s_mov_b32 s%d, 64" % S_NT)
    a("s_branch L_f_maxpass")
    a.label("L_f_fin")
    for i in range(8):
        a("v_mul_f32 v%d, v%d, v%d" % (V_O + i, V_T + 1, V_O + i))
    for i in range(4):
        a("v_cvt_pk_bf16_f32 v%d, v%d, v%d" % (V_P + i, V_O + 2 * i, V_O + 2 * i + 1))
    a("buffer_store_dwordx4 %s, v%d, s[20:23], s%d offen sc1" % (vr(V_P), V_L16, S_T0))
    fused_tail(a, locals())
    a.label("L_f_end")
    a("s_endpgm")
    fused_events(a, locals())
    a.label("L_f_sync")
    a("s_mov_b32 s%d, 5" % S_SYNC)
    a("s_waitcnt vmcnt(0)")
    a("s_barrier")
    a("s_cmp_eq_u32 s%d, 0" % S_TYPE)
    a("s_cbranch_scc1 L_f_syncret")
    a("v_bfe_u32 v%d, v%d, 2, 2" % (V_T, V_LANE))
    a("v_lshrrev_b32 v%d, 5, v%d" % (V_T + 1, V_LANE))
    a("v_lshl_add_u32 v%d, v%d, 2, v%d" % (V_T, V_T + 1, V_T))
    a("v_lshlrev_b32 v%d, 6, v%d" % (V_T, V_T))
    a("v_and_b32 v%d, 3, v%d" % (V_T + 1, V_LANE))
    a("v_lshl_add_u32 v%d, v%d, 3, v%d" % (V_T, V_T + 1, V_T))
    a("v_add_u32 v%d, s%d, v%d" % (V_T, S_STG, V_T))
    a("v_bfe_u32 v%d, v%d, 4, 1" % (V_T + 1, V_LANE))
    FB = [128 + 4 * i for i in range(8)]
    a("s_cmp_eq_u32 s%d, 2" % S_TYPE)
    a("s_cbranch_scc1 L_f_pk2")
    a("v_lshl_add_u32 v%d, v%d, 10, v%d" % (V_PK, V_T + 1, V_T))
    for ks in range(4):
        for hb in range(2):
            for rd in range(2):
                a("ds_read_b64_tr_b16 %s, v%d offset:%d" % (vr(FB[ks * 2 + hb] + 2 * rd, 2), V_PK, ks * 2048 + hb * 32 + rd * 512))
    make_sel(a, V_LANE, V_SEL, V_T + 2)
    a("v_and_b32 v%d, 31, v%d" % (V_T, V_LANE))
    a("v_lshlrev_b32 v%d, 4, v%d" % (V_T, V_T))
    a("s_waitcnt lgkmcnt(0)")
    for ks in range(4):
        for hb in range(2):
            a("v_mfma_f32_16x16x32_bf16 %s, %s, %s, %s" % (vr(V_PCS[hb]), vr(V_SEL), vr(FB[ks * 2 + hb]), "0" if ks == 0 else vr(V_PCS[hb])))
            a("buffer_store_dwordx4 %s, v%d, s[20:23], s%d offen sc1" % (vr(FB[ks * 2 + hb]), V_L16, (S_DST0, S_DST1)[hb]))
        a("s_add_u32 s%d, s%d, 7168" % (S_DST0, S_DST0))
        a("s_add_u32 s%d, s%d, 7168" % (S_DST1, S_DST1))
    a("s_nop 7")
    a("buffer_store_dword v%d, v%d, s[20:23], s%d offen sc1" % (V_PCS[0], V_T, S_CS))
    a("buffer_store_dword v%d, v%d, s[20:23], s%d offen offset:1024 sc1" % (V_PCS[1], V_T, S_CS))
    a("s_branch L_f_syncret")
    a.label("L_f_pk2")
    a("v_lshl_add_u32 v%d, v%d, 5, v%d" % (V_PK, V_T + 1, V_T))
    a("s_add_u32 s%d, s%d, 4096" % (S_DST1, S_DST0))
    for f in range(8):
        for rd in range(2):
            a("ds_read_b64_tr_b16 %s, v%d offset:%d" % (vr(FB[f] + 2 * rd, 2), V_PK, f * 1024 + rd * 512))
    a("s_waitcnt lgkmcnt(0)")
    for f in range(8):
        a("buffer_store_dwordx4 %s, v%d, s[20:23], s%d offen offset:%d sc1" % (vr(FB[f]), V_L16, S_DST0 if f < 4 else S_DST1, (f % 4) * 1024))
    a("s_branch L_f_syncret")
    return name, 256, 0, (256, 512, 163840)


def gen_k35(a, which):
    name = "k3_wo_kernel" if which == 3 else "k5_down_kernel"
    L = "L_k%d_" % which
    kernel_begin(a, name)
    NS = 8 if which == 3 else 28
    STEPS = 32 if which == 3 else 112
    WIN = 8 if which == 3 else 14
    A_BASE = WS_O if which == 3 else WS_A
    W_BASE = WS_WO if which == 3 else WS_WD
    S_WAVE, S_RB, S_CG, S_T0, S_T1 = 24, 25, 26, 27, 28
    S_A = [30, 31]
    S_W = [32, 33]
    S_TB, S_NB = 34, 35
    V_LANE, V_L16, V_T = 1, 2, 3
    V_RES = 12
    V_ACC = [32, 48, 64, 80]
    V_RD = 96
    a("s_cmp_ge_u32 s2, 256")
    a("s_cbranch_scc1 %send" % L)
    a.ts("k%d" % which)
    a("s_load_dwordx2 s[8:9], s[0:1], %d" % ARG_WS)
    a("s_load_dwordx2 s[4:5], s[0:1], %d" % (ARG_X if which == 3 else ARG_OUT))
    a("v_lshrrev_b32 v%d, 6, v0" % V_T)
    a("v_and_b32 v%d, 63, v0" % V_LANE)
    a("v_readfirstlane_b32 s%d, v%d" % (S_WAVE, V_T))
    a("v_lshlrev_b32 v%d, 4, v%d" % (V_L16, V_LANE))
    a("s_and_b32 s%d, s2, 7" % S_RB)
    a("s_lshl_b32 s%d, s%d, 2" % (S_RB, S_RB))
    a("s_lshr_b32 s%d, s2, 3" % S_T0)
    a("s_and_b32 s%d, s%d, 3" % (S_T1, S_T0))
    a("s_add_u32 s%d, s%d, s%d" % (S_RB, S_RB, S_T1))
    a("s_lshr_b32 s%d, s%d, 2" % (S_CG, S_T0))
    a("s_lshr_b32 s%d, s%d, 1" % (S_T0, S_WAVE))
    a("s_lshl_b32 s%d, s%d, 1" % (S_TB, S_RB))
    a("s_add_u32 s%d, s%d, s%d" % (S_TB, S_TB, S_T0))
    a("s_and_b32 s%d, s%d, 1" % (S_T0, S_WAVE))
    a("s_lshl_b32 s%d, s%d, 1" % (S_NB, S_CG))
    a("s_add_u32 s%d, s%d, s%d" % (S_NB, S_NB, S_T0))
    a("s_mul_i32 s%d, s%d, %d" % (S_T1, S_WAVE, NS * 1024))
    for i in range(2):
        a("s_xor_b32 s%d, s%d, %d" % (S_T0, S_TB, i))
        a("s_mul_i32 s%d, s%d, %d" % (S_A[i], S_T0, STEPS * 1024))
        a("s_add_u32 s%d, s%d, s%d" % (S_A[i], S_A[i], S_T1))
        a("s_add_u32 s%d, s%d, %d" % (S_A[i], S_A[i], A_BASE))
        a("s_xor_b32 s%d, s%d, %d" % (S_T0, S_NB, i))
        a("s_mul_i32 s%d, s%d, %d" % (S_W[i], S_T0, STEPS * 1024))
        a("s_add_u32 s%d, s%d, s%d" % (S_W[i], S_W[i], S_T1))
        a("s_add_u32 s%d, s%d, %d" % (S_W[i], S_W[i], W_BASE))
    a("s_waitcnt lgkmcnt(0)")
    srd(a, 20, 8, WS_SIZE)
    srd(a, 12, 4, 2048 * 1024)

    def frag(p, kind, i):
        return (p % WIN) * 16 + kind * 8 + i * 4

    def loads(p):
        out = []
        if p > 0 and p % 4 == 0:
            for s in S_A + S_W:
                out.append("s_add_u32 s%d, s%d, 4096" % (s, s))
        off = (p % 4) * 1024
        for i in range(2):
            out.append("buffer_load_dwordx4 %s, v%d, s[20:23], s%d offen offset:%d" % (ar(frag(p, 0, i)), V_L16, S_A[i], off))
            out.append("buffer_load_dwordx4 %s, v%d, s[20:23], s%d offen offset:%d" % (ar(frag(p, 1, i)), V_L16, S_W[i], off))
        return out

    for p in range(WIN):
        for l in loads(p):
            a(l)
    a("v_and_b32 v%d, 31, v%d" % (V_T, V_LANE))
    a("v_lshlrev_b32 v%d, 10, v%d" % (V_T, V_T))
    a("v_lshrrev_b32 v%d, 5, v%d" % (V_T + 1, V_LANE))
    a("v_lshl_add_u32 v%d, v%d, 3, v%d" % (V_T, V_T + 1, V_T))
    a("s_lshl_b32 s36, s%d, 15" % S_TB)
    a("s_lshl_b32 s%d, s%d, 6" % (S_T0, S_NB))
    a("s_add_u32 s36, s36, s%d" % S_T0)
    a("s_lshl_b32 s37, s%d, 5" % S_TB)
    a("s_lshl_b32 s%d, s%d, 1" % (S_T0, S_NB))
    a("s_add_u32 s37, s37, s%d" % S_T0)
    a("s_lshl_b32 s37, s37, 10")
    a("s_add_u32 s37, s37, %d" % WS_H)
    a.ts("k%d" % which)
    issued = WIN
    NRES = 4 if which == 3 else 2
    res_done = False
    for p in range(NS):
        younger = 4 * (issued - p - 1) + (NRES if res_done else 0)
        a("s_waitcnt vmcnt(%d)" % younger)
        for ti in range(2):
            for ni in range(2):
                acc = V_ACC[ti * 2 + ni]
                a("v_mfma_f32_32x32x16_bf16 %s, %s, %s, %s" % (vr(acc, 16), ar(frag(p, 1, ni)), ar(frag(p, 0, ti)), "0" if p == 0 else vr(acc, 16)))
        if issued < NS:
            for l in loads(issued):
                a(l)
            issued += 1
        elif not res_done:
            if which == 3:
                for q in range(4):
                    a("buffer_load_dwordx2 %s, v%d, s[12:15], s36 offen offset:%d" % (vr(V_RES + 2 * q, 2), V_T, q * 16))
            else:
                for q in range(2):
                    a("buffer_load_dwordx4 %s, v%d, s[20:23], s37 offen offset:%d" % (vr(V_RES + 4 * q), V_L16, q * 1024))
            res_done = True
    a.ts("k%d" % which)
    a("s_nop 7")
    for t in range(1, 4):
        a("s_xor_b32 s%d, s%d, %d" % (S_T0, S_WAVE, t))
        a("s_mul_i32 s%d, s%d, 12288" % (S_T0, S_T0))
        a("v_add_u32 v%d, s%d, v%d" % (V_T + 1 + t, S_T0, V_L16))
    a("s_nop 3")
    for t in range(1, 4):
        for q in range(4):
            a("ds_write_b128 v%d, %s offset:%d" % (V_T + 1 + t, vr(V_ACC[t] + 4 * q), (t - 1) * 4096 + q * 1024))
    a("s_mul_i32 s%d, s%d, 12288" % (S_T0, S_WAVE))
    a("v_add_u32 v%d, s%d, v%d" % (V_T + 1, S_T0, V_L16))
    a("s_waitcnt lgkmcnt(0)")
    a("s_barrier")
    for t in range(3):
        for q in range(4):
            a("ds_read_b128 %s, v%d offset:%d" % (vr(V_RD + 16 * t + 4 * q), V_T + 1, t * 4096 + q * 1024))
    A0 = V_ACC[0]
    U = V_ACC[1]
    a("s_mov_b32 s38, 0xffff0000")
    a("s_waitcnt vmcnt(0)")
    for d in range(8):
        a("v_lshlrev_b32 v%d, 16, v%d" % (U + 2 * d, V_RES + d))
        a("v_and_b32 v%d, s38, v%d" % (U + 2 * d + 1, V_RES + d))
    for i in range(16):
        a("v_add_f32 v%d, v%d, v%d" % (A0 + i, A0 + i, U + i))
    for t in range(3):
        a("s_waitcnt lgkmcnt(%d)" % (8 - 4 * t))
        for i in range(16):
            a("v_add_f32 v%d, v%d, v%d" % (A0 + i, A0 + i, V_RD + 16 * t + i))
    O = V_ACC[2]
    for i in range(8):
        a("v_cvt_pk_bf16_f32 v%d, v%d, v%d" % (O + i, A0 + 2 * i, A0 + 2 * i + 1))
    if which == 3:
        for q in range(2):
            a("buffer_store_dwordx4 %s, v%d, s[20:23], s37 offen offset:%d" % (vr(O + 4 * q), V_L16, q * 1024))
        for d in range(8):
            a("v_lshlrev_b32 v%d, 16, v%d" % (U + 2 * d, O + d))
            a("v_and_b32 v%d, s38, v%d" % (U + 2 * d + 1, O + d))
        S1, S2 = V_RD, V_RD + 1
        a("v_add_f32 v%d, v%d, v%d" % (S1, U, U + 1))
        a("v_mul_f32 v%d, v%d, v%d" % (S2, U, U))
        a("v_fmac_f32 v%d, v%d, v%d" % (S2, U + 1, U + 1))
        for i in range(2, 16):
            a("v_add_f32 v%d, v%d, v%d" % (S1, S1, U + i))
            a("v_fmac_f32 v%d, v%d, v%d" % (S2, U + i, U + i))
        sum_halves(a, S1, V_RD + 2)
        sum_halves(a, S2, V_RD + 3)
        a("s_lshl_b32 s%d, s%d, 4" % (S_T0, S_TB))
        a("s_add_u32 s%d, s%d, s%d" % (S_T0, S_T0, S_NB))
        a("s_lshl_b32 s%d, s%d, 8" % (S_T0, S_T0))
        a("s_add_u32 s%d, s%d, %d" % (S_T0, S_T0, WS_ST))
        a("v_and_b32 v%d, 31, v%d" % (V_T, V_LANE))
        a("v_lshlrev_b32 v%d, 3, v%d" % (V_T, V_T))
        a("buffer_store_dwordx2 %s, v%d, s[20:23], s%d offen" % (vr(S1, 2), V_T, S_T0))
    else:
        for q in range(4):
            a("buffer_store_dwordx2 %s, v%d, s[12:15], s36 offen offset:%d" % (vr(O + 2 * q, 2), V_T, q * 16))
    a.ts_flush("k%d" % which, S_WAVE, V_T)
    a.label(L + "end")
    a("s_endpgm")
    return name, 144, WIN * 16, (256, 256, 49152)


def gen_k4(a):
    name = "k4_glu_kernel"
    kernel_begin(a, name)
    SL4, NS4 = 45056, 3
    S_WAVE, S_RB, S_CG, S_KC, S_SH, S_SW, S_T0, S_T1, S_MASK, S_M0 = 24, 25, 26, 27, 28, 29, 30, 31, 32, 33
    S_TB, S_ROLE, S_M0H = 34, 42, 35
    V_LANE, V_L16, V_T = 1, 2, 3
    V_AW, V_AH = 12, 13
    V_ST = 16
    V_CSL = 32
    V_H = [60, 244]
    V_W = [64, 92]
    V_ACC = [120 + 16 * b for b in range(7)]
    V_TMP = 232
    a("s_cmp_ge_u32 s2, 256")
    a("s_cbranch_scc1 L_k4_end")
    a.ts("k4")
    a("s_load_dwordx2 s[8:9], s[0:1], %d" % ARG_WS)
    a("v_lshrrev_b32 v%d, 6, v0" % V_T)
    a("v_and_b32 v%d, 63, v0" % V_LANE)
    a("v_readfirstlane_b32 s%d, v%d" % (S_ROLE, V_T))
    a("v_lshlrev_b32 v%d, 4, v%d" % (V_L16, V_LANE))
    a("s_and_b32 s3, s2, 7")
    a("s_lshr_b32 s%d, s2, 3" % S_T0)
    a("s_lshr_b32 s%d, s3, 2" % S_RB)
    a("s_lshl_b32 s%d, s%d, 3" % (S_RB, S_RB))
    a("s_and_b32 s%d, s%d, 7" % (S_T1, S_T0))
    a("s_add_u32 s%d, s%d, s%d" % (S_RB, S_RB, S_T1))
    a("s_and_b32 s%d, s3, 3" % S_CG)
    a("s_lshl_b32 s%d, s%d, 2" % (S_CG, S_CG))
    a("s_lshr_b32 s%d, s%d, 3" % (S_T1, S_T0))
    a("s_add_u32 s%d, s%d, s%d" % (S_CG, S_CG, S_T1))
    a("s_and_b32 s%d, s%d, 3" % (S_WAVE, S_ROLE))
    a("s_lshl_b32 s%d, s%d, 2" % (S_TB, S_RB))
    a("s_add_u32 s%d, s%d, s%d" % (S_TB, S_TB, S_WAVE))
    a("s_lshl_b32 s%d, s%d, 12" % (S_M0H, S_WAVE))
    a("s_add_u32 s%d, s%d, 28672" % (S_M0H, S_M0H))
    a("s_cmp_ge_u32 s%d, 4" % S_ROLE)
    a("s_cbranch_scc1 L_k4_compute")
    if K4_ROT:
        a("s_add_u32 s%d, s%d, s%d" % (S_KC, S_RB, S_CG))
        a("s_and_b32 s%d, s%d, 7" % (S_KC, S_KC))
    else:
        a("s_mov_b32 s%d, 0" % S_KC)
    a("s_lshl_b32 s%d, s%d, 15" % (S_SH, S_TB))
    a("s_add_u32 s%d, s%d, %d" % (S_SH, S_SH, WS_H))
    a("s_mul_i32 s%d, s%d, 7168" % (S_M0, S_WAVE))
    a("s_mul_i32 s%d, s%d, %d" % (S_SW, S_CG, 32 * 7 * 1024))
    a("s_add_u32 s%d, s%d, s%d" % (S_SW, S_SW, S_M0))
    a("s_add_u32 s%d, s%d, %d" % (S_SW, S_SW, WS_GU))
    S_OH, S_OW, S_SLOT, S_CNT = 38, 39, 40, 41
    a("s_mov_b32 s%d, 0" % S_SLOT)
    a("s_mov_b32 s%d, 0" % S_CNT)
    a("s_waitcnt lgkmcnt(0)")
    srd(a, 20, 8, WS_SIZE)
    a.label("L_k4_ld")
    a("s_lshl_b32 s%d, s%d, 12" % (S_OH, S_KC))
    a("s_add_u32 s%d, s%d, s%d" % (S_OH, S_OH, S_SH))
    a("s_add_u32 m0, s%d, s%d" % (S_M0H, S_SLOT))
    a("s_mul_i32 s%d, s%d, %d" % (S_OW, S_KC, SLOT))
    for q in range(4):
        a("buffer_load_dwordx4 v%d, s[20:23], s%d offen offset:%d lds" % (V_L16, S_OH, q * 1024))
    a("s_add_u32 m0, s%d, s%d" % (S_M0, S_SLOT))
    a("s_add_u32 s%d, s%d, s%d" % (S_OW, S_OW, S_SW))
    for q in range(4):
        a("buffer_load_dwordx4 v%d, s[20:23], s%d offen offset:%d lds" % (V_L16, S_OW, q * 1024))
    a("s_add_u32 m0, m0, 4096")
    a("s_add_u32 s%d, s%d, 4096" % (S_OW, S_OW))
    for q in range(3):
        a("buffer_load_dwordx4 v%d, s[20:23], s%d offen offset:%d lds" % (V_L16, S_OW, q * 1024))
    a("s_add_u32 s%d, s%d, 1" % (S_KC, S_KC))
    a("s_and_b32 s%d, s%d, 7" % (S_KC, S_KC))
    a("s_add_u32 s%d, s%d, %d" % (S_SLOT, S_SLOT, SL4))
    a("s_cmp_eq_u32 s%d, %d" % (S_SLOT, NS4 * SL4))
    a("s_cselect_b32 s%d, 0, s%d" % (S_SLOT, S_SLOT))
    a("s_add_u32 s%d, s%d, 1" % (S_CNT, S_CNT))
    a("s_cmp_lt_u32 s%d, 2" % S_CNT)
    a("s_cbranch_scc1 L_k4_ld")
    a("s_waitcnt vmcnt(11)")
    a("s_barrier")
    a("s_cmp_lt_u32 s%d, 8" % S_CNT)
    a("s_cbranch_scc1 L_k4_ld")
    a("s_waitcnt vmcnt(0)")
    a("s_barrier")
    a("s_endpgm")
    a.label("L_k4_compute")
    a("s_mov_b32 s%d, 0xffff0000" % S_MASK)
    a("v_mov_b32 v%d, v%d" % (V_AW, V_L16))
    a("v_add_u32 v%d, s%d, v%d" % (V_AH, S_M0H, V_L16))
    a("v_and_b32 v%d, 31, v%d" % (V_T, V_LANE))
    a("v_lshlrev_b32 v%d, 3, v%d" % (V_T, V_T))
    a("v_lshrrev_b32 v%d, 5, v%d" % (V_T + 1, V_LANE))
    a("v_lshl_add_u32 v%d, v%d, 11, v%d" % (V_T, V_T + 1, V_T))
    a("s_waitcnt lgkmcnt(0)")
    srd(a, 20, 8, WS_SIZE)
    cur_base = [0]

    def reads(P):
        st, pos = P // 4, P % 4
        base = (st % NS4) * SL4
        out = []
        if base != cur_base[0]:
            d = base - cur_base[0]
            for r in (V_AW, V_AH):
                out.append("v_add_u32 v%d, %d, v%d" % (r, d, r) if d > 0 else "v_subrev_u32 v%d, %d, v%d" % (r, -d, r))
            cur_base[0] = base
        b = P % 2
        out.append("ds_read_b128 %s, v%d offset:%d" % (vr(V_H[b]), V_AH, pos * 1024))
        for blk in range(7):
            out.append("ds_read_b128 %s, v%d offset:%d" % (vr(V_W[b] + 4 * blk), V_AW, (pos * 7 + blk) * 1024))
        return out

    extra = {}
    g = ["s_lshl_b32 s%d, s%d, 12" % (S_T0, S_TB), "s_add_u32 s%d, s%d, %d" % (S_T0, S_T0, WS_ST)]
    for i in range(8):
        g.append("buffer_load_dwordx2 %s, v%d, s[20:23], s%d offen offset:%d" % (vr(V_ST + 2 * i, 2), V_T, S_T0, i * 256))
    extra[8], extra[9], extra[10] = g[:4], g[4:7], g[7:]
    g = ["s_mul_i32 s%d, s%d, 7168" % (S_T0, S_CG), "s_add_u32 s%d, s%d, %d" % (S_T0, S_T0, WS_CS), "s_add_u32 s%d, s%d, 4096" % (S_T1, S_T0)]
    for blk in range(7):
        g.append("buffer_load_dwordx4 %s, v%d, s[20:23], s%d offen offset:%d" % (vr(V_CSL + 4 * blk), V_L16, S_T0 if blk < 4 else S_T1, (blk % 4) * 1024))
    extra[12], extra[13], extra[14] = g[:5], g[5:8], g[8:]
    a.ts("k4")
    a("s_barrier")
    a.ts("k4")
    for l in reads(0):
        a(l)
    for P in range(32):
        st, pos = P // 4, P % 4
        b = P % 2
        a("s_waitcnt lgkmcnt(0)")
        if pos == 3 and P < 31:
            a("s_barrier")
        rd = reads(P + 1) if P < 31 else []
        m = []
        for blk in range(7):
            m.append("v_mfma_f32_32x32x16_bf16 %s, %s, %s, %s" % (vr(V_ACC[blk], 16), vr(V_W[b] + 4 * blk), vr(V_H[b]), "0" if P == 0 else vr(V_ACC[blk], 16)))
        for l in interleave(m, rd + extra.get(P, []), per=2):
            a(l)
    a.ts("k4")
    a("s_waitcnt vmcnt(0)")
    S1, S2 = V_T + 2, V_T + 3
    a("v_add_f32 v%d, v%d, v%d" % (S1, V_ST, V_ST + 2))
    a("v_add_f32 v%d, v%d, v%d" % (S2, V_ST + 1, V_ST + 3))
    for i in range(2, 8):
        a("v_add_f32 v%d, v%d, v%d" % (S1, S1, V_ST + 2 * i))
        a("v_add_f32 v%d, v%d, v%d" % (S2, S2, V_ST + 2 * i + 1))
    sum_halves(a, S1, V_T + 4)
    sum_halves(a, S2, V_T + 4)
    V_MU, V_VAR, V_RS, V_C1, V_C2 = V_T + 4, V_T + 5, V_T + 6, V_T + 7, V_T + 8
    a("v_mul_f32 v%d, 0x%x, v%d" % (V_MU, f32bits(1.0 / 512), S1))
    a("v_mul_f32 v%d, 0x%x, v%d" % (V_VAR, f32bits(1.0 / 512), S2))
    a("v_fma_f32 v%d, -v%d, v%d, v%d" % (V_VAR, V_MU, V_MU, V_VAR))
    a("v_max_f32 v%d, 0, v%d" % (V_VAR, V_VAR))
    a("v_add_f32 v%d, 0x%x, v%d" % (V_VAR, f32bits(1e-5), V_VAR))
    a("v_rsq_f32 v%d, v%d" % (V_RS, V_VAR))
    a("v_sub_f32 v%d, 0, v%d" % (V_MU, V_MU))
    VB = V_ST
    split_hi_lo_B(a, V_MU, VB, V_T, S_MASK)
    c1 = -2.0 * math.sqrt(2.0 / math.pi) * math.log2(math.e)
    a("v_mul_f32 v%d, 0x%x, v%d" % (V_C1, f32bits(c1), V_RS))
    a("v_mul_f32 v%d, v%d, v%d" % (V_C2, V_RS, V_RS))
    a("v_mul_f32 v%d, v%d, v%d" % (V_C2, V_C2, V_C1))
    a("v_mul_f32 v%d, 0x%x, v%d" % (V_C2, f32bits(0.044715), V_C2))
    for blk in range(7):
        c = V_CSL + 4 * blk
        a("v_add_f32 v%d, v%d, v%d" % (c, c, c + 1))
        a("v_add_f32 v%d, v%d, v%d" % (c + 2, c + 2, c + 3))
        a("v_add_f32 v%d, v%d, v%d" % (c, c, c + 2))
        split_hi_lo_A(a, c, V_W[0] + 4 * blk, V_T, S_MASK)
    a("s_nop 1")
    for blk in range(7):
        a("v_mfma_f32_32x32x16_bf16 %s, %s, %s, %s" % (vr(V_ACC[blk], 16), vr(V_W[0] + 4 * blk), vr(VB), vr(V_ACC[blk], 16)))
    a("s_mul_i32 s%d, s%d, 112" % (S_T0, S_TB))
    a("s_mul_i32 s%d, s%d, 7" % (S_T1, S_CG))
    a("s_add_u32 s%d, s%d, s%d" % (S_T0, S_T0, S_T1))
    a("s_lshl_b32 s%d, s%d, 10" % (S_T0, S_T0))
    a("s_add_u32 s%d, s%d, %d" % (S_T0, S_T0, WS_A))
    a("s_add_u32 s%d, s%d, 4096" % (S_T1, S_T0))
    a("s_nop 7")
    for blk in range(7):
        G = V_ACC[blk]
        Uu = G + 8
        T = V_TMP
        for i in range(8):
            a("v_mul_f32 v%d, v%d, v%d" % (T + i, G + i, G + i))
        for i in range(8):
            a("v_fma_f32 v%d, v%d, v%d, v%d" % (T + i, T + i, V_C2, V_C1))
        for i in range(8):
            a("v_mul_f32 v%d, v%d, v%d" % (T + i, T + i, G + i))
        for i in range(8):
            a("v_exp_f32 v%d, v%d" % (T + i, T + i))
        for i in range(8):
            a("v_mul_f32 v%d, v%d, v%d" % (G + i, G + i, Uu + i))
        for i in range(8):
            a("v_fma_f32 v%d, v%d, v%d, v%d" % (T + i, T + i, V_VAR, V_VAR))
        for i in range(8):
            a("v_rcp_f32 v%d, v%d" % (T + i, T + i))
        a("s_nop 0")
        for i in range(8):
            a("v_mul_f32 v%d, v%d, v%d" % (G + i, G + i, T + i))
        o = V_TMP + 8 + 4 * (blk % 4)
        for i in range(4):
            a("v_cvt_pk_bf16_f32 v%d, v%d, v%d" % (o + i, G + 2 * i, G + 2 * i + 1))
        a("buffer_store_dwordx4 %s, v%d, s[20:23], s%d offen offset:%d" % (vr(o), V_L16, S_T0 if blk < 4 else S_T1, (blk % 4) * 1024))
    a.ts_flush("k4", S_WAVE, V_T)
    a.label("L_k4_end")
    a("s_endpgm")
    return name, 256, 0, (256, 512, NS4 * SL4)


def main():
    hdr = open("cdna_kernels/%s.s.ref" % NAME).read().split("\n")
    head = [l for l in hdr if l.startswith(";") and "@launch" not in l and "Override launch" not in l and "grid=ceil" not in l]
    a = Asm()
    ks = []
    ks.append(gen_k1(a))
    if os.environ.get("FUSED", "1") == "1":
        ks.append(gen_f(a))
    else:
        ks.append(gen_k2(a))
        ks.append(gen_k35(a, 3))
        ks.append(gen_k4(a))
        ks.append(gen_k35(a, 5))
    out = "\n".join(head) + "\n"
    for name, nv, na, (g, b, lds) in ks:
        out += "; @launch kernel=%s grid=(%d,1,1) block=(%d,1,1) lds=%d\n" % (name, g, b, lds)
    out += '.amdgcn_target "amdgcn-amd-amdhsa--gfx950"\n.text\n'
    out += a.text()
    out += '.section .rodata,"a"\n'
    for name, nv, na, _ in ks:
        out += kernel_desc(name, nv, na)
    path = sys.argv[1] if len(sys.argv) > 1 else "cdna_kernels/%s.s" % NAME
    open(path, "w").write(out)


if __name__ == "__main__":
    main()
```

```python
import sys, math, struct

NAME = "sequential_preLN__softmax_full_mha__geglu_ffn__prompt"

MB = 1 << 20
WS_Q = 0
WS_K = 2 * MB
WS_V = 4 * MB
WS_O = 6 * MB
WS_H = 8 * MB
WS_A = 10 * MB
WS_WO = 17 * MB
WS_WD = 18 * MB
WS_GU = 20 * MB
WS_CS = 24 * MB
WS_ST = 25 * MB
WS_FL = 27 * MB + 768 * 1024
WS_SIZE = 28 * MB

ARG_X, ARG_WQKV, ARG_WO, ARG_BX, ARG_WG, ARG_WU, ARG_WD, ARG_OUT, ARG_DBG, ARG_WS = [8 * i for i in range(10)]

ONES_BF16 = 0x3F803F80


def f32bits(x):
    return struct.unpack("<I", struct.pack("<f", x))[0]


import os
INSTR = os.environ.get("INSTR", "")
WS_TS = 26 * MB


class Asm:
    def __init__(self):
        self.L = []
        self.nts = 0

    def ts(self, kern):
        if INSTR != kern and not (INSTR == "all" and len(kern) == 2):
            return
        if self.nts == 0:
            self("s_memrealtime s[92:93]")
        self("%s s[%d:%d]" % ("s_memrealtime" if os.environ.get("RT") else "s_memtime", 64 + 2 * self.nts, 65 + 2 * self.nts))
        self.nts += 1

    def ts_flush(self, kern, swave, vtmp):
        if INSTR != kern and not (INSTR == "all" and len(kern) == 2):
            return
        self("%s s[%d:%d]" % ("s_memrealtime" if os.environ.get("RT") else "s_memtime", 64 + 2 * self.nts, 65 + 2 * self.nts))
        self.nts += 1
        self("s_memrealtime s[94:95]")
        self("s_waitcnt lgkmcnt(0)")
        self("s_lshl_b32 s3, s2, 3")
        self("s_add_u32 s3, s3, s%d" % swave)
        self("s_lshl_b32 s3, s3, 6")
        self("s_add_u32 s3, s3, %d" % (WS_TS + (int(kern[1]) * 131072 if INSTR == "all" else 0)))
        self("v_mov_b32 v%d, 0" % vtmp)
        for i in range(self.nts):
            self("v_mov_b32 v%d, s%d" % (vtmp + 1, 64 + 2 * i))
            self("buffer_store_dword v%d, v%d, s[20:23], s3 offen offset:%d" % (vtmp + 1, vtmp, 4 * i))
            self("s_nop 1")
        for i, r in enumerate((92, 94)):
            self("v_mov_b32 v%d, s%d" % (vtmp + 1, r))
            self("buffer_store_dword v%d, v%d, s[20:23], s3 offen offset:%d" % (vtmp + 1, vtmp, 56 + 4 * i))
            self("s_nop 1")
        self.nts = 0

    def __call__(self, s):
        for line in s.strip("\n").split("\n"):
            self.L.append("    " + line.strip())

    def label(self, s):
        self.L.append(s + ":")

    def raw(self, s):
        self.L.append(s)

    def text(self):
        return "\n".join(self.L) + "\n"


def vr(b, n=4):
    return "v[%d:%d]" % (b, b + n - 1)


def ar(b, n=4):
    return "a[%d:%d]" % (b, b + n - 1)


def srd(a, sbase, sptr, nbytes):
    a("s_mov_b32 s%d, s%d" % (sbase, sptr))
    a("s_mov_b32 s%d, s%d" % (sbase + 1, sptr + 1))
    a("s_mov_b32 s%d, 0x%x" % (sbase + 2, nbytes))
    a("s_mov_b32 s%d, 0x00020000" % (sbase + 3))


def kernel_begin(a, name):
    a.raw(".globl %s" % name)
    a.raw(".p2align 8")
    a.raw(".type %s,@function" % name)
    a.label(name)


def kernel_desc(name, nvgpr, nagpr, nsgpr=102):
    acc = (nvgpr + 3) // 4 * 4
    nfv = acc + nagpr if nagpr else nvgpr
    return """.p2align 6
.amdhsa_kernel %s
  .amdhsa_next_free_vgpr %d
  .amdhsa_next_free_sgpr %d
  .amdhsa_accum_offset %d
  .amdhsa_group_segment_fixed_size 0
  .amdhsa_kernarg_size 80
  .amdhsa_user_sgpr_count 2
  .amdhsa_user_sgpr_kernarg_segment_ptr 1
  .amdhsa_system_sgpr_workgroup_id_x 1
.end_amdhsa_kernel
""" % (name, nfv, nsgpr, acc)


def interleave(main, fill, per=None):
    out = []
    n = len(main)
    fi = 0
    for i, m in enumerate(main):
        out.append(m)
        tgt = (len(fill) * (i + 1) + n - 1) // n if per is None else min(len(fill), per * (i + 1))
        while fi < tgt:
            out.append(fill[fi])
            fi += 1
    out += fill[fi:]
    return out


class Lds:
    def __init__(self, a):
        self.a = a
        self.n = 0
        self.done = 0
        self.idx = {}

    def op(self, text, tag=None):
        self.a(text)
        self.n += 1
        if tag is not None:
            self.idx[tag] = self.n

    def need(self, *tags):
        k = max(self.idx[t] for t in tags)
        if k > self.done:
            w = self.n - k
            assert w <= 15
            self.a("s_waitcnt lgkmcnt(%d)" % w)
            self.done = k

    def drain(self):
        if self.done < self.n:
            self.a("s_waitcnt lgkmcnt(0)")
            self.done = self.n


def make_sel(a, vlane, vsel, vt):
    a("v_lshrrev_b32 v%d, 2, v%d" % (vt, vlane))
    a("v_lshrrev_b32 v%d, 4, v%d" % (vsel, vlane))
    a("v_xor_b32 v%d, v%d, v%d" % (vt, vt, vsel))
    a("v_and_b32 v%d, 1, v%d" % (vt, vt))
    a("v_add_u32 v%d, -1, v%d" % (vt, vt))
    a("v_and_b32 v%d, 0x%x, v%d" % (vsel, ONES_BF16, vt))
    for i in range(1, 4):
        a("v_mov_b32 v%d, v%d" % (vsel + i, vsel))


def split_hi_lo_A(a, vc, vdst, vt, smask):
    a("v_cvt_pk_bf16_f32 v%d, v%d, v%d" % (vt, vc, vc))
    a("v_and_b32 v%d, s%d, v%d" % (vt, smask, vt))
    a("v_sub_f32 v%d, v%d, v%d" % (vt, vc, vt))
    a("v_cvt_pk_bf16_f32 v%d, v%d, v%d" % (vdst, vc, vt))
    a("v_mov_b32 v%d, v%d" % (vdst + 1, vdst))
    a("v_mov_b32 v%d, 0" % (vdst + 2))
    a("v_mov_b32 v%d, 0" % (vdst + 3))


def split_hi_lo_B(a, vm, vdst, vt, smask):
    a("v_cvt_pk_bf16_f32 v%d, v%d, v%d" % (vdst, vm, vm))
    a("v_and_b32 v%d, s%d, v%d" % (vt, smask, vdst))
    a("v_sub_f32 v%d, v%d, v%d" % (vt, vm, vt))
    a("v_cvt_pk_bf16_f32 v%d, v%d, v%d" % (vdst + 1, vt, vt))
    a("v_mov_b32 v%d, 0" % (vdst + 2))
    a("v_mov_b32 v%d, 0" % (vdst + 3))


def sum_halves(a, v, vt):
    a("v_mov_b32 v%d, v%d" % (vt, v))
    a("s_nop 1")
    a("v_permlane32_swap_b32 v%d, v%d" % (v, vt))
    a("s_nop 1")
    a("v_add_f32 v%d, v%d, v%d" % (v, v, vt))


SLOT = 28672
NSLOT = 5
K1_DIST = int(os.environ.get('K1_DIST', 2))
DIAG = os.environ.get('DIAG', '')
K1_ROT = int(os.environ.get('K1_ROT', 1))
K4_ROT = int(os.environ.get('K4_ROT', 0))
K2_ROT = int(os.environ.get('K2_ROT', 0))
K4_DIST = int(os.environ.get('K4_DIST', 2))


def slot_base_adjust(stage):
    slot = stage % NSLOT
    return (slot // 2) * 2 * SLOT, (slot % 2) * SLOT


def gen_k1(a):
    name = "k1_qkv_kernel"
    kernel_begin(a, name)
    NS1 = 4
    LDS_SCR = NS1 * SLOT
    SCR_RS, SCR_BF = LDS_SCR + 1536, LDS_SCR + 2048
    S_WAVE, S_RB, S_CG, S_KC, S_SX, S_SW, S_T0, S_T1, S_MASK, S_M0X, S_M0W = 24, 25, 26, 27, 28, 29, 30, 31, 32, 33, 34
    S_ROLE = 42
    V_LANE = 1
    V_T = 2
    V_DX = 8
    V_DW = 12
    V_AX = 13
    V_AW = 17
    V_SEL = 24
    V_SQ = 28
    V_X = [32, 36]
    V_W = [[40, 44, 48], [52, 56, 60]]
    V_ACC = [64, 80, 96]
    V_TMP = 112
    a("s_cmp_ge_u32 s2, 256")
    a("s_cbranch_scc1 L_k1_end")
    a.ts("k1")
    a("s_load_dwordx4 s[4:7], s[0:1], %d" % ARG_X)
    a("s_load_dwordx2 s[8:9], s[0:1], %d" % ARG_WS)
    a("v_lshrrev_b32 v%d, 6, v0" % V_T)
    a("v_and_b32 v%d, 63, v0" % V_LANE)
    a("v_readfirstlane_b32 s%d, v%d" % (S_ROLE, V_T))
    a("s_and_b32 s3, s2, 7")
    a("s_lshr_b32 s%d, s2, 3" % S_T0)
    a("s_lshr_b32 s%d, s3, 1" % S_RB)
    a("s_lshl_b32 s%d, s%d, 2" % (S_RB, S_RB))
    a("s_and_b32 s%d, s%d, 3" % (S_T1, S_T0))
    a("s_add_u32 s%d, s%d, s%d" % (S_RB, S_RB, S_T1))
    a("s_and_b32 s%d, s3, 1" % S_CG)
    a("s_lshl_b32 s%d, s%d, 3" % (S_CG, S_CG))
    a("s_lshr_b32 s%d, s%d, 2" % (S_T1, S_T0))
    a("s_add_u32 s%d, s%d, s%d" % (S_CG, S_CG, S_T1))
    a("s_and_b32 s%d, s%d, 3" % (S_WAVE, S_ROLE))
    a("s_lshl_b32 s%d, s%d, 12" % (S_M0X, S_WAVE))
    a("s_mul_i32 s%d, s%d, 3072" % (S_M0W, S_WAVE))
    a("s_add_u32 s%d, s%d, 16384" % (S_M0W, S_M0W))
    a("s_mov_b32 s%d, 0xffff0000" % S_MASK)

    def lds_addr_setup(rotate):
        a("v_and_b32 v%d, 31, v%d" % (V_T, V_LANE))
        a("v_and_b32 v%d, 3, v%d" % (V_T + 1, V_LANE))
        a("v_lshrrev_b32 v%d, 2, v%d" % (V_T + 2, V_T))
        a("v_lshlrev_b32 v%d, 7, v%d" % (V_T + 2, V_T + 2))
        a("v_lshl_add_u32 v%d, v%d, 10, v%d" % (V_T + 2, V_T + 1, V_T + 2))
        a("v_add_u32 v%d, s%d, v%d" % (V_T + 2, S_M0X, V_T + 2))
        a("v_lshrrev_b32 v%d, 1, v%d" % (V_T + 3, V_T))
        a("v_and_b32 v%d, 4, v%d" % (V_T + 3, V_T + 3))
        a("v_or_b32 v%d, v%d, v%d" % (V_T + 3, V_T + 3, V_T + 1))
        a("v_lshrrev_b32 v%d, 5, v%d" % (V_T + 4, V_LANE))
        a("v_xor_b32 v%d, v%d, v%d" % (V_T + 3, V_T + 3, V_T + 4))
        a("v_bfe_u32 v%d, v%d, 2, 2" % (V_T + 5, V_LANE))
        a("v_lshl_add_u32 v%d, v%d, 3, v%d" % (V_T + 5, V_T + 4, V_T + 5))
        a("v_lshlrev_b32 v%d, 6, v%d" % (V_T + 5, V_T + 5))
        a("v_bfe_u32 v%d, v%d, 4, 1" % (V_T + 4, V_LANE))
        a("v_lshl_add_u32 v%d, v%d, 5, v%d" % (V_T + 5, V_T + 4, V_T + 5))
        a("v_lshl_add_u32 v%d, v%d, 3, v%d" % (V_T + 5, V_T + 1, V_T + 5))
        for ks in range(4):
            a("v_xor_b32 v%d, %d, v%d" % (V_T + 4, 2 * ks, V_T + 3))
            a("v_lshl_add_u32 v%d, v%d, 4, v%d" % (V_AX + ks, V_T + 4, V_T + 2))

    a("s_cmp_ge_u32 s%d, 8" % S_ROLE)
    a("s_cbranch_scc1 L_k1_stats")
    a("s_cmp_ge_u32 s%d, 4" % S_ROLE)
    a("s_cbranch_scc1 L_k1_compute")
    if K1_ROT:
        a("s_add_u32 s%d, s%d, s%d" % (S_KC, S_RB, S_CG))
        a("s_and_b32 s%d, s%d, 7" % (S_KC, S_KC))
    else:
        a("s_mov_b32 s%d, 0" % S_KC)
    a("v_lshrrev_b32 v%d, 3, v%d" % (V_T, V_LANE))
    a("v_lshlrev_b32 v%d, 12, v%d" % (V_T, V_T))
    a("v_and_b32 v%d, 7, v%d" % (V_T + 1, V_LANE))
    a("v_lshrrev_b32 v%d, 2, v%d" % (V_T + 2, V_LANE))
    a("v_and_b32 v%d, 4, v%d" % (V_T + 2, V_T + 2))
    a("v_xor_b32 v%d, v%d, v%d" % (V_T + 1, V_T + 1, V_T + 2))
    for q in range(4):
        a("v_xor_b32 v%d, %d, v%d" % (V_T + 3, q, V_T + 1))
        a("v_lshl_add_u32 v%d, v%d, 4, v%d" % (V_DX + q, V_T + 3, V_T))
    a("v_lshrrev_b32 v%d, 2, v%d" % (V_T, V_LANE))
    a("v_mul_u32_u24 v%d, 3072, v%d" % (V_T, V_T))
    a("v_and_b32 v%d, 3, v%d" % (V_T + 1, V_LANE))
    a("v_lshl_add_u32 v%d, v%d, 4, v%d" % (V_DW, V_T + 1, V_T))
    a("s_lshl_b32 s%d, s%d, 2" % (S_T0, S_RB))
    a("s_add_u32 s%d, s%d, s%d" % (S_T0, S_T0, S_WAVE))
    a("s_lshl_b32 s%d, s%d, 15" % (S_SX, S_T0))
    a("s_mul_i32 s%d, s%d, %d" % (S_SW, S_WAVE, 16 * 3072))
    a("s_lshl_b32 s%d, s%d, 6" % (S_T1, S_CG))
    a("s_add_u32 s%d, s%d, s%d" % (S_SW, S_SW, S_T1))
    S_OX, S_OW, S_SLOT, S_CNT, S_RD = 38, 39, 40, 41, 43
    a("s_mov_b32 s%d, 0" % S_SLOT)
    a("s_mov_b32 s%d, 0" % S_CNT)
    a("s_waitcnt lgkmcnt(0)")
    srd(a, 12, 4, 2048 * 1024)
    srd(a, 16, 6, 512 * 3072)

    def issue():
        a("s_lshl_b32 s%d, s%d, 7" % (S_OX, S_KC))
        a("s_add_u32 s%d, s%d, s%d" % (S_OX, S_OX, S_SX))
        a("s_add_u32 m0, s%d, s%d" % (S_M0X, S_SLOT))
        a("s_mul_i32 s%d, s%d, %d" % (S_OW, S_KC, 64 * 3072))
        for q in range(4):
            a("buffer_load_dwordx4 v%d, s[12:15], s%d offen offset:%d lds" % (V_DX + q, S_OX, q * 1024))
        a("s_add_u32 m0, s%d, s%d" % (S_M0W, S_SLOT))
        a("s_add_u32 s%d, s%d, s%d" % (S_OW, S_OW, S_SW))
        for sx in range(3):
            a("buffer_load_dwordx4 v%d, s[16:19], s%d offen offset:%d lds" % (V_DW, S_OW, sx * 1024))
        a("s_add_u32 s%d, s%d, 1" % (S_KC, S_KC))
        a("s_and_b32 s%d, s%d, 7" % (S_KC, S_KC))
        a("s_add_u32 s%d, s%d, %d" % (S_SLOT, S_SLOT, SLOT))
        a("s_cmp_eq_u32 s%d, %d" % (S_SLOT, NS1 * SLOT))
        a("s_cselect_b32 s%d, 0, s%d" % (S_SLOT, S_SLOT))

    a.label("L_k1_ld")
    issue()
    a("s_add_u32 s%d, s%d, 1" % (S_CNT, S_CNT))
    a("s_cmp_lt_u32 s%d, %d" % (S_CNT, K1_DIST))
    a("s_cbranch_scc1 L_k1_ld")
    a("s_waitcnt vmcnt(%d)" % (7 * (K1_DIST - 1)))
    a("s_barrier")
    a("s_cmp_lt_u32 s%d, 8" % S_CNT)
    a("s_cbranch_scc1 L_k1_ld")
    for r in range(K1_DIST - 2, -1, -1):
        a("s_waitcnt vmcnt(%d)" % (7 * r))
        a("s_barrier")
    a("s_endpgm")
    a.label("L_k1_stats")
    LX = [64, 68, 72, 76]
    LW = [80, 84, 88]
    L_SX = 92
    L_CS = [96, 100, 104]
    lds_addr_setup(False)
    a("v_add_u32 v%d, s%d, v%d" % (V_AW, S_M0W, V_T + 5))
    make_sel(a, V_LANE, V_SEL, V_T)
    for r in [V_SQ, V_SQ + 1] + list(range(L_SX, L_SX + 16)):
        a("v_mov_b32 v%d, 0" % r)
    a("s_mov_b32 s44, %d" % SLOT)
    a("s_mov_b32 s%d, 0" % S_CNT)
    a.label("L_k1_st")
    a("s_barrier")
    for ks in range(4):
        a("ds_read_b128 %s, v%d" % (vr(LX[ks]), V_AX + ks))
    for sx in range(3):
        for rd in range(2):
            a("ds_read_b64_tr_b16 %s, v%d offset:%d" % (vr(LW[sx] + 2 * rd, 2), V_AW, sx * 1024 + rd * 256))
    a("s_add_u32 s%d, s%d, 1" % (S_CNT, S_CNT))
    a("s_and_b32 s%d, s%d, %d" % (S_T0, S_CNT, NS1 - 1))
    a("s_cmp_eq_u32 s%d, 0" % S_T0)
    a("s_cselect_b32 s%d, %d, s44" % (S_RD, -(NS1 - 1) * SLOT))
    for ks in range(4):
        a("s_waitcnt lgkmcnt(%d)" % (9 - ks))
        a("v_mfma_f32_16x16x32_bf16 %s, %s, %s, %s" % (vr(L_SX), vr(V_SEL), vr(LX[ks]), vr(L_SX)))
        for d in range(4):
            t0, t1 = V_TMP + 2 * (d % 2), V_TMP + 2 * (d % 2) + 1
            a("v_lshlrev_b32 v%d, 16, v%d" % (t0, LX[ks] + d))
            a("v_and_b32 v%d, s%d, v%d" % (t1, S_MASK, LX[ks] + d))
            a("v_fmac_f32 v%d, v%d, v%d" % (V_SQ, t0, t0))
            a("v_fmac_f32 v%d, v%d, v%d" % (V_SQ + 1, t1, t1))
        if ks == 1:
            a("s_waitcnt lgkmcnt(0)")
            for sx in range(3):
                a("v_mfma_f32_16x16x32_bf16 %s, %s, %s, %s" % (vr(L_CS[sx]), vr(V_SEL), vr(LW[sx]), vr(L_CS[sx])))
    for r in list(range(V_AX, V_AX + 4)) + [V_AW]:
        a("v_add_u32 v%d, s%d, v%d" % (r, S_RD, r))
    a("s_cmp_lt_u32 s%d, 8" % S_CNT)
    a("s_cbranch_scc1 L_k1_st")
    a("v_and_b32 v%d, 31, v%d" % (V_T, V_LANE))
    a("v_lshlrev_b32 v%d, 2, v%d" % (V_T, V_T))
    a("s_mul_i32 s%d, s%d, 384" % (S_T0, S_WAVE))
    a("s_add_u32 s%d, s%d, %d" % (S_T0, S_T0, LDS_SCR))
    a("v_add_u32 v%d, s%d, v%d" % (V_T + 1, S_T0, V_T))
    for sx in range(3):
        a("ds_write_b32 v%d, v%d offset:%d" % (V_T + 1, L_CS[sx], sx * 128))
    a("v_add_f32 v%d, v%d, v%d" % (V_SQ, V_SQ, V_SQ + 1))
    sum_halves(a, V_SQ, V_SQ + 1)
    V_MU, V_RS = V_SQ + 2, V_SQ + 3
    a("v_mul_f32 v%d, 0x%x, v%d" % (V_MU, f32bits(1.0 / 512), L_SX))
    a("v_mul_f32 v%d, 0x%x, v%d" % (V_SQ, f32bits(1.0 / 512), V_SQ))
    a("v_fma_f32 v%d, -v%d, v%d, v%d" % (V_SQ, V_MU, V_MU, V_SQ))
    a("v_max_f32 v%d, 0, v%d" % (V_SQ, V_SQ))
    a("v_add_f32 v%d, 0x%x, v%d" % (V_SQ, f32bits(1e-5), V_SQ))
    a("v_rsq_f32 v%d, v%d" % (V_RS, V_SQ))
    a("v_sub_f32 v%d, 0, v%d" % (V_MU, V_MU))
    a("s_lshl_b32 s%d, s%d, 7" % (S_T0, S_WAVE))
    a("s_add_u32 s%d, s%d, %d" % (S_T0, S_T0, SCR_RS))
    a("v_add_u32 v%d, s%d, v%d" % (V_T + 2, S_T0, V_T))
    a("ds_write_b32 v%d, v%d" % (V_T + 2, V_RS))
    split_hi_lo_B(a, V_MU, LX[0], V_T + 4, S_MASK)
    a("s_lshl_b32 s%d, s%d, 9" % (S_T0, S_WAVE))
    a("s_add_u32 s%d, s%d, %d" % (S_T0, S_T0, SCR_BF))
    a("v_lshl_add_u32 v%d, v%d, 3, s%d" % (V_T + 3, V_LANE, S_T0))
    a("ds_write_b64 v%d, %s" % (V_T + 3, vr(LX[0], 2)))
    a("s_waitcnt lgkmcnt(0)")
    a("s_barrier")
    a("s_endpgm")
    a.label("L_k1_compute")
    lds_addr_setup(False)
    a("v_add_u32 v%d, 16384, v%d" % (V_AW, V_T + 5))
    V_ECS, V_ERS, V_ERV, V_EBF, V_OQ, V_OV = 18, 19, 20, 21, 22, 23
    a("v_and_b32 v%d, 31, v%d" % (V_T, V_LANE))
    a("v_lshlrev_b32 v%d, 2, v%d" % (V_T, V_T))
    a("v_lshrrev_b32 v%d, 5, v%d" % (V_T + 2, V_LANE))
    a("v_mul_u32_u24 v%d, 768, v%d" % (V_T + 3, V_T + 2))
    a("v_add_u32 v%d, v%d, v%d" % (V_T + 3, V_T + 3, V_T))
    a("v_add_u32 v%d, %d, v%d" % (V_ECS, LDS_SCR, V_T + 3))
    a("s_lshl_b32 s%d, s%d, 7" % (S_T0, S_WAVE))
    a("s_add_u32 s%d, s%d, %d" % (S_T0, S_T0, SCR_RS))
    a("v_add_u32 v%d, s%d, v%d" % (V_ERS, S_T0, V_T))
    a("v_lshl_add_u32 v%d, v%d, 4, s%d" % (V_ERV, V_T + 2, S_T0))
    a("s_lshl_b32 s%d, s%d, 9" % (S_T0, S_WAVE))
    a("s_add_u32 s%d, s%d, %d" % (S_T0, S_T0, SCR_BF))
    a("v_lshl_add_u32 v%d, v%d, 3, s%d" % (V_EBF, V_LANE, S_T0))
    a("v_lshlrev_b32 v%d, 4, v%d" % (V_OQ, V_LANE))
    a("v_bfe_u32 v%d, v%d, 4, 1" % (V_T + 1, V_LANE))
    a("v_lshlrev_b32 v%d, 16, v%d" % (V_T + 1, V_T + 1))
    a("v_lshl_add_u32 v%d, v%d, 8, v%d" % (V_T + 1, V_T + 2, V_T + 1))
    a("v_and_b32 v%d, 15, v%d" % (V_T + 2, V_LANE))
    a("v_lshl_add_u32 v%d, v%d, 4, v%d" % (V_OV, V_T + 2, V_T + 1))
    a("s_lshl_b32 s%d, s%d, 2" % (S_T0, S_RB))
    a("s_add_u32 s%d, s%d, s%d" % (S_T0, S_T0, S_WAVE))
    a("s_lshl_b32 s%d, s%d, 10" % (S_T0, S_T0))
    a("s_lshl_b32 s%d, s%d, 17" % (S_T1, S_CG))
    a("s_add_u32 s%d, s%d, s%d" % (S_T0, S_T0, S_T1))
    a("s_add_u32 s%d, s%d, 65536" % (S_T1, S_T0))
    a("s_add_u32 s35, s%d, %d" % (S_T0, WS_K))
    a("s_add_u32 s36, s%d, %d" % (S_T1, WS_K))
    a("s_add_u32 s37, s%d, %d" % (S_T0, WS_V))
    VB = V_TMP
    VA = [V_TMP + 4, V_TMP + 8, V_TMP + 12]
    for r in (VB + 2, VB + 3):
        a("v_mov_b32 v%d, 0" % r)
    cur_base = [0]

    def reads(P):
        st, ks = P // 4, P % 4
        slot = st % NS1
        base, imm = (slot // 2) * 2 * SLOT, (slot % 2) * SLOT
        out = []
        if base != cur_base[0]:
            d = base - cur_base[0]
            for r in list(range(V_AX, V_AX + 4)) + [V_AW]:
                out.append("v_add_u32 v%d, %d, v%d" % (r, d, r) if d > 0 else "v_subrev_u32 v%d, %d, v%d" % (r, -d, r))
            cur_base[0] = base
        b = P % 2
        out.append("ds_read_b128 %s, v%d offset:%d" % (vr(V_X[b]), V_AX + ks, imm))
        for sx in range(3):
            for rd in range(2):
                out.append("ds_read_b64_tr_b16 %s, v%d offset:%d" % (vr(V_W[b][sx] + 2 * rd, 2), V_AW, imm + ks * 3072 + sx * 1024 + rd * 256))
        return out

    a("s_waitcnt lgkmcnt(0)")
    srd(a, 20, 8, WS_SIZE)
    a("s_cmp_ge_u32 s2, 4")
    a("s_cbranch_scc1 L_k1_nozero")
    for r in range(4):
        a("v_mov_b32 v%d, 0" % (V_ACC[0] + r))
    a("s_lshl_b32 s3, s2, 2")
    a("s_add_u32 s3, s3, s%d" % S_WAVE)
    a("s_lshl_b32 s3, s3, 10")
    a("s_add_u32 s3, s3, %d" % WS_FL)
    a("buffer_store_dwordx4 %s, v%d, s[20:23], s3 offen" % (vr(V_ACC[0]), V_OQ))
    a.label("L_k1_nozero")
    a.ts("k1")
    a("s_barrier")
    a.ts("k1")
    for l in reads(0):
        a(l)
    for P in range(32):
        st, pos = P // 4, P % 4
        b = P % 2
        a("s_waitcnt lgkmcnt(0)")
        if pos == 3 and P < 31:
            a("s_barrier")
        rd = reads(P + 1) if P < 31 else []
        X = vr(V_X[b])
        c = lambda r, n=16: ("0" if P == 0 else vr(r, n))
        m = []
        m.append("v_mfma_f32_32x32x16_bf16 %s, %s, %s, %s" % (vr(V_ACC[0], 16), vr(V_W[b][0]), X, c(V_ACC[0])))
        m.append("v_mfma_f32_32x32x16_bf16 %s, %s, %s, %s" % (vr(V_ACC[1], 16), vr(V_W[b][1]), X, c(V_ACC[1])))
        m.append("v_mfma_f32_32x32x16_bf16 %s, %s, %s, %s" % (vr(V_ACC[2], 16), X, vr(V_W[b][2]), c(V_ACC[2])))
        nfirst = 3 if len(rd) <= 8 else 8
        for l in rd[:nfirst]:
            a(l)
        for l in interleave(m, rd[nfirst:], per=2):
            a(l)
    a.ts("k1")
    a("s_barrier")
    VC = V_TMP + 16
    V_RS = V_TMP + 22
    V_RQ = V_TMP + 23
    VR = V_TMP + 24
    for sx in range(3):
        a("ds_read2_b32 %s, v%d offset0:%d offset1:%d" % (vr(VC + 2 * sx, 2), V_ECS, sx * 32, sx * 32 + 96))
    a("ds_read_b64 %s, v%d" % (vr(VB, 2), V_EBF))
    a("ds_read_b32 v%d, v%d" % (V_RS, V_ERS))
    for q in range(4):
        a("ds_read_b128 %s, v%d offset:%d" % (vr(VR + 4 * q), V_ERV, q * 32))
    for sx in range(3):
        a("s_waitcnt lgkmcnt(%d)" % (8 - sx))
        a("v_add_f32 v%d, v%d, v%d" % (VC + 2 * sx, VC + 2 * sx, VC + 2 * sx + 1))
        split_hi_lo_A(a, VC + 2 * sx, VA[sx], V_T + 4, S_MASK)
    a("s_waitcnt lgkmcnt(4)")
    a("v_mul_f32 v%d, 0x%x, v%d" % (V_RQ, f32bits(0.25 * math.log2(math.e)), V_RS))
    a("v_mfma_f32_32x32x16_bf16 %s, %s, %s, %s" % (vr(V_ACC[0], 16), vr(VA[0]), vr(VB), vr(V_ACC[0], 16)))
    a("v_mfma_f32_32x32x16_bf16 %s, %s, %s, %s" % (vr(V_ACC[1], 16), vr(VA[1]), vr(VB), vr(V_ACC[1], 16)))
    a("v_mfma_f32_32x32x16_bf16 %s, %s, %s, %s" % (vr(V_ACC[2], 16), vr(VB), vr(VA[2]), vr(V_ACC[2], 16)))
    a("s_nop 9")
    VO = V_X[0]
    k = 0
    for blk, sc, soffs in ((0, V_RQ, (S_T0, S_T1)), (1, V_RS, (35, 36))):
        for half in range(2):
            o = VO + 4 * k
            k += 1
            for i in range(8):
                r = V_ACC[blk] + 8 * half + i
                a("v_mul_f32 v%d, v%d, v%d" % (r, sc, r))
            for i in range(4):
                r = V_ACC[blk] + 8 * half + 2 * i
                a("v_cvt_pk_bf16_f32 v%d, v%d, v%d" % (o + i, r, r + 1))
            a("buffer_store_dwordx4 %s, v%d, s[20:23], s%d offen" % (vr(o), V_OQ, soffs[half]))
    a("s_waitcnt lgkmcnt(0)")
    for half in range(2):
        o = VO + 4 * k
        k += 1
        for i in range(8):
            r = V_ACC[2] + 8 * half + i
            a("v_mul_f32 v%d, v%d, v%d" % (r, VR + 8 * half + i, r))
        for i in range(4):
            r = V_ACC[2] + 8 * half + 2 * i
            a("v_cvt_pk_bf16_f32 v%d, v%d, v%d" % (o + i, r, r + 1))
        a("buffer_store_dwordx4 %s, v%d, s[20:23], s37 offen offset:%d" % (vr(o), V_OV, half * 512))
    a.ts_flush("k1", S_WAVE, V_T)
    a.label("L_k1_end")
    a("s_endpgm")
    return name, 152, 0, (256, 768, LDS_SCR + 4096)


def gen_k2(a):
    name = "k2_attn_kernel"
    kernel_begin(a, name)
    S_WAVE, S_H, S_QB, S_T0, S_T1, S_T2, S_T3 = 40, 41, 42, 43, 44, 45, 46
    S_ITER, S_SYNC, S_PASS, S_NT = 47, 48, 49, 50
    S_TASK, S_STG, S_DST0, S_DST1, S_TYPE = 51, 52, 53, 54, 55
    S_VMASK = 56
    S_CS = 58
    S_KB, S_W1K, S_CH = 59, 60, 61
    S_PE, S_PO, S_PS = 36, 37, 38
    V_LANE, V_L16, V_T = 1, 2, 3
    V_KA, V_VA = 10, 11
    V_Q = 12
    V_K = [16, 20]
    V_V = [24, 32]
    V_P = 40
    V_CM = 48
    V_S = [64, 80]
    V_O = 96
    V_MAX = 112
    V_PK = 113
    V_PD = 114
    V_SEL = 116
    V_PCS = [120, 124]
    STG = 131072
    a("s_cmp_ge_u32 s2, 256")
    a("s_cbranch_scc1 L_k2_end")
    a.ts("k2")
    a.ts("k2b")
    a("s_load_dwordx2 s[8:9], s[0:1], %d" % ARG_WS)
    a("s_load_dwordx2 s[4:5], s[0:1], %d" % ARG_WO)
    a("s_load_dwordx4 s[24:27], s[0:1], %d" % ARG_WG)
    a("s_load_dwordx2 s[6:7], s[0:1], %d" % ARG_WD)
    a("v_lshrrev_b32 v%d, 6, v0" % V_T)
    a("v_and_b32 v%d, 63, v0" % V_LANE)
    a("v_readfirstlane_b32 s%d, v%d" % (S_WAVE, V_T))
    a("v_lshlrev_b32 v%d, 4, v%d" % (V_L16, V_LANE))
    a("s_and_b32 s%d, s2, 7" % S_H)
    a("s_lshl_b32 s%d, s%d, 2" % (S_H, S_H))
    a("s_lshr_b32 s%d, s2, 6" % S_T0)
    a("s_add_u32 s%d, s%d, s%d" % (S_H, S_H, S_T0))
    a("s_lshr_b32 s%d, s2, 3" % S_QB)
    a("s_and_b32 s%d, s%d, 7" % (S_QB, S_QB))
    a("s_lshl_b32 s%d, s%d, 16" % (S_KB, S_H))
    a("s_lshl_b32 s%d, s%d, 10" % (S_W1K, S_WAVE))
    a("s_add_u32 s%d, s%d, s%d" % (S_KB, S_KB, S_W1K))
    a("s_lshl_b32 s%d, s%d, 13" % (S_CH, S_QB))
    a("s_add_u32 s%d, s%d, s%d" % (S_T3, S_KB, S_CH))
    a("s_add_u32 s%d, s%d, %d" % (S_KB, S_KB, WS_K))
    if not K2_ROT:
        a("s_mov_b32 s%d, 0" % S_CH)
    a("s_waitcnt lgkmcnt(0)")
    a.ts("k2b")
    srd(a, 20, 8, WS_SIZE)
    a("buffer_load_dwordx4 %s, v%d, s[20:23], s%d offen" % (vr(V_Q), V_L16, S_T3))
    if INSTR == "k2b":
        a("s_waitcnt vmcnt(0)")
    a.ts("k2b")

    def kv_dma(c):
        return [["s_add_u32 s%d, s%d, s%d" % (S_T3, S_KB, S_CH),
                 "s_add_u32 m0, s%d, %d" % (S_W1K, c * 8192),
                 "s_add_u32 s%d, s%d, 8192" % (S_CH, S_CH),
                 "buffer_load_dwordx4 v%d, s[20:23], s%d offen lds" % (V_L16, S_T3)],
                ["s_add_u32 s%d, s%d, %d" % (S_T3, S_T3, WS_V - WS_K),
                 "s_add_u32 m0, s%d, %d" % (S_W1K, 65536 + c * 8192),
                 "s_and_b32 s%d, s%d, 0xffff" % (S_CH, S_CH),
                 "buffer_load_dwordx4 v%d, s[20:23], s%d offen lds" % (V_L16, S_T3)]]

    for c in range(2):
        for g in kv_dma(c):
            for l in g:
                a(l)
    a("s_mov_b32 s%d, 0" % S_TYPE)
    a("s_cmp_lt_u32 s%d, 4" % S_WAVE)
    a("s_cbranch_scc1 L_k2_nopack")
    a("s_lshl_b32 s%d, s2, 2" % S_TASK)
    a("s_add_u32 s%d, s%d, s%d" % (S_TASK, S_TASK, S_WAVE))
    a("s_sub_u32 s%d, s%d, 4" % (S_TASK, S_TASK))
    a("s_cmp_ge_u32 s%d, 736" % S_TASK)
    a("s_cbranch_scc1 L_k2_nopack")
    a("s_lshl_b32 s%d, s%d, 13" % (S_STG, S_WAVE))
    a("s_add_u32 s%d, s%d, %d" % (S_STG, S_STG, STG - 4 * 8192))
    a("v_lshrrev_b32 v%d, 2, v%d" % (V_T, V_LANE))
    a("v_and_b32 v%d, 3, v%d" % (V_T + 1, V_LANE))
    a("s_cmp_ge_u32 s%d, 448" % S_TASK)
    a("s_cbranch_scc1 L_k2_packn")
    a("s_mov_b32 s%d, 1" % S_TYPE)
    srd(a, 28, 24, 512 * 3584)
    srd(a, 32, 26, 512 * 3584)
    a("v_mul_u32_u24 v%d, 3584, v%d" % (V_T, V_T))
    a("v_lshl_add_u32 v%d, v%d, 4, v%d" % (V_PD, V_T + 1, V_T))
    a("s_and_b32 s%d, s%d, 7" % (S_T0, S_TASK))
    a("s_lshr_b32 s%d, s%d, 3" % (S_T1, S_TASK))
    a("s_mul_i32 s%d, s%d, %d" % (S_PE, S_T0, 64 * 3584))
    a("s_lshl_b32 s%d, s%d, 6" % (S_T2, S_T1))
    a("s_add_u32 s%d, s%d, s%d" % (S_PE, S_PE, S_T2))
    a("s_mov_b32 s%d, s%d" % (S_PO, S_PE))
    a("s_mov_b32 s%d, %d" % (S_PS, 16 * 3584))
    for hb, sd in ((0, S_DST0), (1, S_DST1)):
        a("s_lshl_b32 s%d, s%d, 1" % (S_T2, S_T1))
        if hb:
            a("s_add_u32 s%d, s%d, 1" % (S_T2, S_T2))
        a("s_mul_i32 s%d, s%d, 9363" % (S_CS, S_T2))
        a("s_lshr_b32 s%d, s%d, 16" % (S_CS, S_CS))
        a("s_mul_i32 s%d, s%d, 7" % (sd, S_CS))
        a("s_sub_u32 s%d, s%d, s%d" % (sd, S_T2, sd))
        a("s_mul_i32 s%d, s%d, %d" % (S_CS, S_CS, 32 * 7))
        a("s_add_u32 s%d, s%d, s%d" % (sd, sd, S_CS))
        a("s_mul_i32 s%d, s%d, 28" % (S_CS, S_T0))
        a("s_add_u32 s%d, s%d, s%d" % (sd, sd, S_CS))
        a("s_lshl_b32 s%d, s%d, 10" % (sd, sd))
        a("s_add_u32 s%d, s%d, %d" % (sd, sd, WS_GU))
    a("s_lshl_b32 s%d, s%d, 11" % (S_CS, S_T1))
    a("s_lshr_b32 s%d, s%d, 2" % (S_T2, S_T0))
    a("s_lshl_b32 s%d, s%d, 9" % (S_T2, S_T2))
    a("s_add_u32 s%d, s%d, s%d" % (S_CS, S_CS, S_T2))
    a("s_and_b32 s%d, s%d, 3" % (S_T2, S_T0))
    a("s_lshl_b32 s%d, s%d, 2" % (S_T2, S_T2))
    a("s_add_u32 s%d, s%d, s%d" % (S_CS, S_CS, S_T2))
    a("s_add_u32 s%d, s%d, %d" % (S_CS, S_CS, WS_CS))
    a("s_branch L_k2_nopack")
    a.label("L_k2_packn")
    a("s_mov_b32 s%d, 2" % S_TYPE)
    a("v_lshlrev_b32 v%d, 10, v%d" % (V_T, V_T))
    a("v_lshl_add_u32 v%d, v%d, 4, v%d" % (V_PD, V_T + 1, V_T))
    a("s_cmp_ge_u32 s%d, 512" % S_TASK)
    a("s_cbranch_scc1 L_k2_packd")
    srd(a, 28, 4, 512 * 1024)
    srd(a, 32, 4, 512 * 1024)
    a("s_sub_u32 s%d, s%d, 448" % (S_T0, S_TASK))
    a("s_lshr_b32 s%d, s%d, 2" % (S_T1, S_T0))
    a("s_and_b32 s%d, s%d, 3" % (S_T0, S_T0))
    a("s_lshl_b32 s%d, s%d, 15" % (S_DST0, S_T1))
    a("s_add_u32 s%d, s%d, %d" % (S_DST0, S_DST0, WS_WO))
    a("s_branch L_k2_packc")
    a.label("L_k2_packd")
    srd(a, 28, 6, 1792 * 1024)
    srd(a, 32, 6, 1792 * 1024)
    a("s_sub_u32 s%d, s%d, 512" % (S_T0, S_TASK))
    a("s_mul_i32 s%d, s%d, 4682" % (S_T1, S_T0))
    a("s_lshr_b32 s%d, s%d, 16" % (S_T1, S_T1))
    a("s_mul_i32 s%d, s%d, 14" % (S_T2, S_T1))
    a("s_sub_u32 s%d, s%d, s%d" % (S_T0, S_T0, S_T2))
    a("s_mul_i32 s%d, s%d, %d" % (S_DST0, S_T1, 112 * 1024))
    a("s_add_u32 s%d, s%d, %d" % (S_DST0, S_DST0, WS_WD))
    a.label("L_k2_packc")
    a("s_lshl_b32 s%d, s%d, 13" % (S_T2, S_T0))
    a("s_add_u32 s%d, s%d, s%d" % (S_DST0, S_DST0, S_T2))
    a("s_lshl_b32 s%d, s%d, 17" % (S_PE, S_T0))
    a("s_lshl_b32 s%d, s%d, 6" % (S_T2, S_T1))
    a("s_add_u32 s%d, s%d, s%d" % (S_PE, S_PE, S_T2))
    a("s_add_u32 s%d, s%d, 16384" % (S_PO, S_PE))
    a("s_mov_b32 s%d, 32768" % S_PS)
    a.label("L_k2_nopack")
    a("s_mov_b32 s%d, 0x0000ffff" % S_VMASK)
    a("s_mov_b32 s%d, 0x0000ffff" % (S_VMASK + 1))
    a("v_and_b32 v%d, 27, v%d" % (V_T, V_LANE))
    a("v_cmp_eq_u32 vcc, 16, v%d" % V_T)
    a("v_mov_b32 v%d, 0x%x" % (V_T + 1, ONES_BF16))
    a("s_nop 1")
    a("v_cndmask_b32 v%d, 0, v%d, vcc" % (V_V[0], V_T + 1))
    for i in range(1, 16):
        a("v_mov_b32 v%d, v%d" % (V_V[0] + i, V_V[0]))
    a("s_mov_b32 s%d, 0" % S_SYNC)
    a("s_mov_b32 s%d, 0" % S_PASS)
    a("s_mov_b32 s%d, 1" % S_NT)
    a("s_setprio 3")
    a.ts("k2b")
    a("s_waitcnt vmcnt(2)")
    a.ts("k2b")
    a("s_barrier")
    a.ts("k2")
    a.ts("k2b")
    a.label("L_k2_maxpass")
    a("v_mov_b32 v%d, 0xff800000" % V_MAX)
    a("v_mov_b32 v%d, v%d" % (V_KA, V_L16))
    a.label("L_k2_mloop")
    a("ds_read_b128 %s, v%d" % (vr(V_K[0]), V_KA))
    a("v_add_u32 v%d, 1024, v%d" % (V_KA, V_KA))
    a("s_waitcnt lgkmcnt(0)")
    a("v_mfma_f32_32x32x16_bf16 %s, %s, %s, 0" % (vr(V_S[0], 16), vr(V_K[0]), vr(V_Q)))
    a("s_nop 15")
    for i in range(8):
        a("v_max3_f32 v%d, v%d, v%d, v%d" % (V_MAX, V_S[0] + 2 * i, V_S[0] + 2 * i + 1, V_MAX))
    a("s_sub_u32 s%d, s%d, 1" % (S_NT, S_NT))
    a("s_cmp_lg_u32 s%d, 0" % S_NT)
    a("s_cbranch_scc1 L_k2_mloop")
    a("v_mov_b32 v%d, v%d" % (V_KA, V_L16))
    a("v_lshrrev_b32 v%d, 5, v%d" % (V_T, V_LANE))
    a("v_lshlrev_b32 v%d, 8, v%d" % (V_T, V_T))
    a("v_and_b32 v%d, 15, v%d" % (V_T + 1, V_LANE))
    a("v_lshl_add_u32 v%d, v%d, 4, v%d" % (V_VA, V_T + 1, V_T))
    a("v_add_u32 v%d, 65536, v%d" % (V_VA, V_VA))
    a("ds_read_b128 %s, v%d" % (vr(V_K[0]), V_KA))
    a("ds_read_b128 %s, v%d offset:1024" % (vr(V_K[1]), V_KA))
    a("s_mov_b64 exec, s[%d:%d]" % (S_VMASK, S_VMASK + 1))
    a("ds_read_b128 %s, v%d" % (vr(V_V[0]), V_VA))
    a("ds_read_b128 %s, v%d offset:512" % (vr(V_V[0] + 4), V_VA))
    a("s_mov_b64 exec, -1")
    a("v_mov_b32 v%d, v%d" % (V_T, V_MAX))
    a("s_nop 1")
    a("v_permlane32_swap_b32 v%d, v%d" % (V_MAX, V_T))
    a("s_nop 1")
    a("v_max_f32 v%d, v%d, v%d" % (V_MAX, V_MAX, V_T))
    for i in range(16):
        a("v_sub_f32 v%d, 0, v%d" % (V_CM + i, V_MAX))
    a("s_waitcnt lgkmcnt(0)")
    a("s_nop 0")
    a("v_mfma_f32_32x32x16_bf16 %s, %s, %s, %s" % (vr(V_S[0], 16), vr(V_K[0]), vr(V_Q), vr(V_CM, 16)))
    for i in range(16):
        a("v_mov_b32 v%d, 0" % (V_O + i))
    for i in range(4):
        a("v_mov_b32 v%d, 0" % (V_P + 4 + i))
    a("s_mov_b32 s%d, 8" % S_ITER)
    a.ts("k2")
    a("s_cmp_lg_u32 s%d, 0" % S_PASS)
    a("s_cbranch_scc1 L_k2_loop")

    def body(peeled):
        for t in range(8):
            cur, nxt = t % 2, (t + 1) % 2
            x1, x2 = [], []
            if peeled:
                if t < 6:
                    x1, x2 = kv_dma(t + 2)
                if t == 6:
                    a("s_waitcnt vmcnt(12)")
                    a("s_barrier")
                if t >= 6:
                    lab = "L_k2_np%d" % t
                    x1 = ["s_cmp_eq_u32 s%d, 0" % S_TYPE, "s_cbranch_scc1 %s" % lab]
                    for i in range(4 * (t - 6), 4 * (t - 6) + 4):
                        x1 += ["s_add_u32 m0, s%d, %d" % (S_STG, i * 1024), "s_nop 0",
                               "buffer_load_dwordx4 v%d, s[%d:%d], s%d offen lds" % (V_PD, 28 + 4 * (i % 2), 31 + 4 * (i % 2), S_PO if i % 2 else S_PE),
                               "s_add_u32 s%d, s%d, s%d" % ((S_PO, S_PO, S_PS) if i % 2 else (S_PE, S_PE, S_PS))]
                    x1 += [lab + ":"]
            else:
                if t == 0:
                    for k, r in enumerate((5, 2, 1)):
                        x1 += ["s_cmp_lg_u32 s%d, %d" % (S_ITER, r), "s_cbranch_scc1 L_k2_pp%d" % k, "s_setprio %d" % (2 - k), "L_k2_pp%d:" % k]
                if t == 6:
                    a("s_cmp_eq_u32 s%d, 0" % S_SYNC)
                    a("s_cbranch_scc1 L_k2_sync")
                    a.label("L_k2_syncret")
            S = V_S[cur]
            e = lambda i: "v_exp_f32 v%d, v%d" % (S + i, S + i)
            c = lambda i: "v_cvt_pk_bf16_f32 v%d, v%d, v%d" % (V_P + i, S + 2 * i, S + 2 * i + 1)
            pv = lambda b, h: "v_mfma_f32_32x32x16_bf16 %s, %s, %s, %s" % (vr(V_O, 16), vr(V_V[b] + 4 * h), vr(V_P + 4 * h), vr(V_O, 16))
            qk = "v_mfma_f32_32x32x16_bf16 %s, %s, %s, %s" % (vr(V_S[nxt], 16), vr(V_K[nxt]), vr(V_Q), vr(V_CM, 16))
            rdk = "ds_read_b128 %s, v%d offset:%d" % (vr(V_K[cur]), V_KA, (t + 2) * 1024)
            rdv = ["s_mov_b64 exec, s[%d:%d]" % (S_VMASK, S_VMASK + 1),
                   "ds_read_b128 %s, v%d offset:%d" % (vr(V_V[nxt]), V_VA, (t + 1) * 1024),
                   "ds_read_b128 %s, v%d offset:%d" % (vr(V_V[nxt] + 4), V_VA, (t + 1) * 1024 + 512),
                   "s_mov_b64 exec, -1"]
            seq = [e(0), e(1), pv(nxt, 1), e(2), "s_waitcnt lgkmcnt(0)", rdk, e(3)] + rdv + [c(0), e(4), e(5), c(1), e(6), e(7), qk, c(2), e(8)] + x1 + [e(9), c(3),
                   e(10), e(11), c(4), e(12), e(13), pv(cur, 0), c(5), e(14)] + x2 + [e(15), c(6)]
            if t == 7:
                seq += ["v_add_u32 v%d, 8192, v%d" % (V_KA, V_KA), "v_add_u32 v%d, 8192, v%d" % (V_VA, V_VA),
                        "s_sub_u32 s%d, s%d, 1" % (S_ITER, S_ITER), "s_cmp_lg_u32 s%d, 0" % S_ITER]
            seq += [c(7)]
            for l in seq:
                if l.endswith(":"):
                    a.label(l[:-1])
                else:
                    a(l)

    body(True)
    a.raw(".p2align 6")
    a.label("L_k2_loop")
    body(False)
    a("s_cbranch_scc1 L_k2_loop")
    a.ts("k2")
    a("s_nop 1")
    a("v_mfma_f32_32x32x16_bf16 %s, %s, %s, %s" % (vr(V_O, 16), vr(V_V[1] + 4), vr(V_P + 4), vr(V_O, 16)))
    a("s_waitcnt lgkmcnt(0)")
    a("s_lshl_b32 s%d, s%d, 3" % (S_T0, S_QB))
    a("s_add_u32 s%d, s%d, s%d" % (S_T0, S_T0, S_WAVE))
    a("s_lshl_b32 s%d, s%d, 5" % (S_T0, S_T0))
    a("s_add_u32 s%d, s%d, s%d" % (S_T0, S_T0, S_H))
    a("s_lshl_b32 s%d, s%d, 10" % (S_T0, S_T0))
    a("s_add_u32 s%d, s%d, %d" % (S_T0, S_T0, WS_O))
    a("s_nop 7")
    a("v_mul_f32 v%d, 0, v%d" % (V_T, V_O))
    for i in range(1, 8):
        a("v_fmac_f32 v%d, 0, v%d" % (V_T, V_O + i))
    a("v_add_f32 v%d, v%d, v%d" % (V_T, V_T, V_O + 8))
    a("v_cmp_gt_f32 vcc, 0x%x, v%d" % (f32bits(2.0 ** 100), V_T))
    a("v_rcp_f32 v%d, v%d" % (V_T + 1, V_O + 8))
    a("s_cmp_lg_u32 s%d, 0" % S_PASS)
    a("s_cbranch_scc1 L_k2_fin")
    a("s_cmp_eq_u64 vcc, exec")
    a("s_cbranch_scc1 L_k2_fin")
    a("s_mov_b32 s%d, 1" % S_PASS)
    a("s_mov_b32 s%d, 64" % S_NT)
    a("s_branch L_k2_maxpass")
    a.label("L_k2_fin")
    for i in range(8):
        a("v_mul_f32 v%d, v%d, v%d" % (V_O + i, V_T + 1, V_O + i))
    for i in range(4):
        a("v_cvt_pk_bf16_f32 v%d, v%d, v%d" % (V_P + i, V_O + 2 * i, V_O + 2 * i + 1))
    a("buffer_store_dwordx4 %s, v%d, s[20:23], s%d offen" % (vr(V_P), V_L16, S_T0))
    a.ts_flush("k2", S_WAVE, V_T)
    a.ts_flush("k2b", S_WAVE, V_T)
    a.label("L_k2_end")
    a("s_endpgm")
    a.label("L_k2_sync")
    a("s_mov_b32 s%d, 1" % S_SYNC)
    a("s_waitcnt vmcnt(0)")
    a("s_barrier")
    a("s_cmp_eq_u32 s%d, 0" % S_TYPE)
    a("s_cbranch_scc1 L_k2_syncret")
    a("v_bfe_u32 v%d, v%d, 2, 2" % (V_T, V_LANE))
    a("v_lshrrev_b32 v%d, 5, v%d" % (V_T + 1, V_LANE))
    a("v_lshl_add_u32 v%d, v%d, 2, v%d" % (V_T, V_T + 1, V_T))
    a("v_lshlrev_b32 v%d, 6, v%d" % (V_T, V_T))
    a("v_and_b32 v%d, 3, v%d" % (V_T + 1, V_LANE))
    a("v_lshl_add_u32 v%d, v%d, 3, v%d" % (V_T, V_T + 1, V_T))
    a("v_add_u32 v%d, s%d, v%d" % (V_T, S_STG, V_T))
    a("v_bfe_u32 v%d, v%d, 4, 1" % (V_T + 1, V_LANE))
    FB = [128 + 4 * i for i in range(8)]
    a("s_cmp_eq_u32 s%d, 2" % S_TYPE)
    a("s_cbranch_scc1 L_k2_pk2")
    a("v_lshl_add_u32 v%d, v%d, 10, v%d" % (V_PK, V_T + 1, V_T))
    for ks in range(4):
        for hb in range(2):
            for rd in range(2):
                a("ds_read_b64_tr_b16 %s, v%d offset:%d" % (vr(FB[ks * 2 + hb] + 2 * rd, 2), V_PK, ks * 2048 + hb * 32 + rd * 512))
    make_sel(a, V_LANE, V_SEL, V_T + 2)
    a("v_and_b32 v%d, 31, v%d" % (V_T, V_LANE))
    a("v_lshlrev_b32 v%d, 4, v%d" % (V_T, V_T))
    a("s_waitcnt lgkmcnt(0)")
    for ks in range(4):
        for hb in range(2):
            a("v_mfma_f32_16x16x32_bf16 %s, %s, %s, %s" % (vr(V_PCS[hb]), vr(V_SEL), vr(FB[ks * 2 + hb]), "0" if ks == 0 else vr(V_PCS[hb])))
            a("buffer_store_dwordx4 %s, v%d, s[20:23], s%d offen" % (vr(FB[ks * 2 + hb]), V_L16, (S_DST0, S_DST1)[hb]))
        a("s_add_u32 s%d, s%d, 7168" % (S_DST0, S_DST0))
        a("s_add_u32 s%d, s%d, 7168" % (S_DST1, S_DST1))
    a("s_nop 7")
    a("buffer_store_dword v%d, v%d, s[20:23], s%d offen" % (V_PCS[0], V_T, S_CS))
    a("buffer_store_dword v%d, v%d, s[20:23], s%d offen offset:1024" % (V_PCS[1], V_T, S_CS))
    a("s_branch L_k2_syncret")
    a.label("L_k2_pk2")
    a("v_lshl_add_u32 v%d, v%d, 5, v%d" % (V_PK, V_T + 1, V_T))
    a("s_add_u32 s%d, s%d, 4096" % (S_DST1, S_DST0))
    for f in range(8):
        for rd in range(2):
            a("ds_read_b64_tr_b16 %s, v%d offset:%d" % (vr(FB[f] + 2 * rd, 2), V_PK, f * 1024 + rd * 512))
    a("s_waitcnt lgkmcnt(0)")
    for f in range(8):
        a("buffer_store_dwordx4 %s, v%d, s[20:23], s%d offen offset:%d" % (vr(FB[f]), V_L16, S_DST0 if f < 4 else S_DST1, (f % 4) * 1024))
    a("s_branch L_k2_syncret")
    return name, 160, 0, (256, 512, 163840)


FL_A, FL_B, FL_C, FL_P = WS_FL, WS_FL + 8192, WS_FL + 16384, WS_FL + 20480
S_XCC, S_FAST = 62, 63
T_XCD, T_R2, T_RB64, T_RB128, T_CGF, T_TBO, T_NBO, T_HALF, T_A, T_B, T_C, T_D, T_CNT, T_M = 24, 25, 26, 27, 28, 29, 30, 31, 32, 33, 34, 35, 36, 37
FV_WO = 160
FV_XR = 224
FV_LX = 228
FV_L4 = 229
FV_F = 230
LSC = os.environ.get('LSC', ' sc1')
AMAP = int(os.environ.get('AMAP', 0))
S_TEAM, S_MEM = 18, 19
FASTPATH = int(os.environ.get('FASTPATH', 1))
POLLD = int(os.environ.get('POLLD', 1))


def poll(a, tag, soff, n, vl4, vf, depth=1):
    a("s_mov_b32 s%d, 0" % T_CNT)
    a.label("L_poll_%s" % tag)
    a("buffer_load_dword v%d, v%d, s[20:23], s%d offen sc1" % (vf, vl4, soff))
    a("s_add_u32 s%d, s%d, 1" % (T_CNT, T_CNT))
    a("s_waitcnt vmcnt(0)")
    a("v_cmp_ne_u32 vcc, 0, v%d" % vf)
    a("s_cmp_gt_u32 s%d, 0x40000" % T_CNT)
    a("s_cbranch_scc1 L_polld_%s" % tag)
    if n == 64:
        a("s_and_b32 s%d, vcc_lo, vcc_hi" % T_M)
        a("s_cmp_lg_u32 s%d, -1" % T_M)
    else:
        mask = (1 << n) - 1
        a("s_and_b32 s%d, vcc_lo, 0x%x" % (T_M, mask))
        a("s_cmp_lg_u32 s%d, 0x%x" % (T_M, mask))
    a("s_cbranch_scc1 L_poll_%s" % tag)
    a.label("L_polld_%s" % tag)


def hstore(a, tag, stores):
    a("s_cmp_eq_u32 s%d, -1" % S_FAST)
    a("s_cbranch_scc1 L_hs_%s_f" % tag)
    for st in stores:
        a(st + " sc1")
    a("s_branch L_hs_%s_d" % tag)
    a.label("L_hs_%s_f" % tag)
    for st in stores:
        a(st)
    a.label("L_hs_%s_d" % tag)


def set_flag(a, soff, vt, tag=None):
    a("v_mov_b32 v%d, 0" % vt)
    a("v_mov_b32 v%d, 1" % (vt + 1))
    a("s_mov_b64 exec, 1")
    st = "buffer_store_dword v%d, v%d, s[20:23], s%d offen" % (vt + 1, vt, soff)
    if tag:
        hstore(a, tag, [st])
    else:
        a(st + " sc1")
    a("s_mov_b64 exec, -1")


def fused_events(a, E):
    S_WAVE, S_H, S_QB, S_ITER, S_SYNC, S_TASK, S_TYPE = (E[k] for k in ("S_WAVE", "S_H", "S_QB", "S_ITER", "S_SYNC", "S_TASK", "S_TYPE"))
    V_LANE, V_L16, V_T = E["V_LANE"], E["V_L16"], E["V_T"]
    a.label("L_f_event")
    a("s_cmp_eq_u32 s%d, 7" % S_ITER)
    a("s_cbranch_scc1 L_f_sync")
    a("s_cmp_eq_u32 s%d, 2" % S_ITER)
    a("s_cbranch_scc1 L_f_ev2")
    a("s_cmp_eq_u32 s%d, 3" % S_ITER)
    a("s_cbranch_scc1 L_f_ev3")
    a("s_mov_b32 s%d, 3" % S_SYNC)
    a("s_cmp_eq_u32 s%d, 0" % S_TYPE)
    a("s_cbranch_scc1 L_f_ev5b")
    a("s_lshl_b32 s%d, s%d, 2" % (T_A, S_TASK))
    a("s_add_u32 s%d, s%d, %d" % (T_A, T_A, FL_P))
    a("s_waitcnt vmcnt(0)")
    set_flag(a, T_A, V_T)
    a.label("L_f_ev5b")
    a("buffer_load_dword v%d, v%d, s[96:99], 0 offen sc1" % (FV_F, FV_L4))
    a("s_branch L_f_syncret")
    a.label("L_f_ev3")
    a("s_mov_b32 s%d, 2" % S_SYNC)
    a("s_mov_b32 s%d, 0" % T_CNT)
    a.label("L_f_dbchk")
    a("s_waitcnt vmcnt(0)")
    a("v_subrev_u32 v%d, 0x01010101, v%d" % (FV_F + 1, FV_F))
    a("v_not_b32 v%d, v%d" % (FV_F + 2, FV_F))
    a("v_and_b32 v%d, v%d, v%d" % (FV_F + 1, FV_F + 1, FV_F + 2))
    a("v_and_b32 v%d, 0x80808080, v%d" % (FV_F + 1, FV_F + 1))
    a("v_cmp_eq_u32 vcc, 0, v%d" % (FV_F + 1))
    a("s_add_u32 s%d, s%d, 1" % (T_CNT, T_CNT))
    a("s_cmp_gt_u32 s%d, 0x40000" % T_CNT)
    a("s_cbranch_scc1 L_f_dbok")
    a("s_and_b32 s%d, vcc_lo, vcc_hi" % T_M)
    a("s_cmp_eq_u32 s%d, -1" % T_M)
    a("s_cbranch_scc1 L_f_dbok")
    a("buffer_load_dword v%d, v%d, s[96:99], 0 offen sc1" % (FV_F, FV_L4))
    a("s_branch L_f_dbchk")
    a.label("L_f_dbok")
    a("s_lshr_b32 s%d, s2, 5" % T_XCD)
    a("s_bfe_u32 s%d, s2, 0x20003" % T_R2)
    a("s_and_b32 s%d, s2, 7" % T_RB64)
    a("s_lshl_b32 s%d, s%d, 2" % (T_RB64, T_RB64))
    a("s_add_u32 s%d, s%d, s%d" % (T_RB64, T_RB64, T_R2))
    a("s_lshr_b32 s%d, s%d, 1" % (T_RB128, T_RB64))
    a("s_and_b32 s%d, s%d, 1" % (T_A, T_R2))
    a("s_lshl_b32 s%d, s%d, 1" % (T_CGF, T_XCD))
    a("s_add_u32 s%d, s%d, s%d" % (T_CGF, T_CGF, T_A))
    a("s_bfe_u32 s%d, s%d, 0x10001" % (T_A, S_WAVE))
    a("s_lshl_b32 s%d, s%d, 1" % (T_TBO, T_RB64))
    a("s_add_u32 s%d, s%d, s%d" % (T_TBO, T_TBO, T_A))
    a("s_and_b32 s%d, s%d, 1" % (T_A, S_WAVE))
    a("s_lshl_b32 s%d, s%d, 1" % (T_NBO, T_XCD))
    a("s_add_u32 s%d, s%d, s%d" % (T_NBO, T_NBO, T_A))
    a("s_lshr_b32 s%d, s%d, 2" % (T_HALF, S_WAVE))
    a("s_mul_i32 s%d, s%d, 7" % (T_A, T_CGF))
    a("s_lshr_b32 s%d, s%d, 1" % (T_A, T_A))
    a("s_lshl_b32 s%d, s%d, 5" % (T_A, T_A))
    a("s_mul_i32 s%d, s%d, 56" % (T_B, T_NBO))
    a("s_add_u32 s%d, s%d, %d" % (T_B, T_B, 512 * 4 - 32 * 4))
    a("s_lshl_b32 s%d, s%d, 1" % (T_C, T_NBO))
    a("s_add_u32 s%d, s%d, s%d" % (T_C, T_C, T_HALF))
    a("s_lshl_b32 s%d, s%d, 3" % (T_C, T_C))
    a("s_add_u32 s%d, s%d, %d" % (T_C, T_C, 448 * 4 - 46 * 4))
    a("v_mov_b32 v%d, s%d" % (V_T, T_A))
    a("v_mov_b32 v%d, s%d" % (V_T + 1, T_B))
    a("v_cmp_le_u32 vcc, 32, v%d" % V_LANE)
    a("v_mov_b32 v%d, s%d" % (V_T + 2, T_C))
    a("s_nop 0")
    a("v_cndmask_b32 v%d, v%d, v%d, vcc" % (V_T, V_T, V_T + 1))
    a("v_cmp_le_u32 vcc, 46, v%d" % V_LANE)
    a("s_mov_b32 s%d, %d" % (T_A, FL_P))
    a("s_nop 0")
    a("v_cndmask_b32 v%d, v%d, v%d, vcc" % (V_T, V_T, V_T + 2))
    a("v_add_u32 v%d, v%d, v%d" % (FV_F + 3, V_T, FV_L4))
    a("buffer_load_dword v%d, v%d, s[20:23], s%d offen sc1" % (FV_F, FV_F + 3, T_A))
    a("s_branch L_f_syncret")
    a.label("L_f_ev2")
    a("s_mov_b32 s%d, 0" % S_SYNC)
    a("s_mov_b32 s%d, 0" % T_CNT)
    a("s_mov_b32 s%d, %d" % (T_A, FL_P))
    a.label("L_f_fpchk")
    a("s_waitcnt vmcnt(0)")
    a("v_cmp_ne_u32 vcc, 0, v%d" % FV_F)
    a("s_add_u32 s%d, s%d, 1" % (T_CNT, T_CNT))
    a("s_cmp_gt_u32 s%d, 0x40000" % T_CNT)
    a("s_cbranch_scc1 L_f_fpok")
    a("s_or_b32 s%d, vcc_hi, 0xffff0000" % T_M)
    a("s_and_b32 s%d, s%d, vcc_lo" % (T_M, T_M))
    a("s_cmp_eq_u32 s%d, -1" % T_M)
    a("s_cbranch_scc1 L_f_fpok")
    a("buffer_load_dword v%d, v%d, s[20:23], s%d offen sc1" % (FV_F, FV_F + 3, T_A))
    a("s_branch L_f_fpchk")
    a.label("L_f_fpok")
    a("s_lshl_b32 s%d, s%d, 1" % (T_A, T_NBO))
    a("s_add_u32 s%d, s%d, s%d" % (T_A, T_A, T_HALF))
    a("s_lshl_b32 s%d, s%d, 14" % (T_A, T_A))
    a("s_add_u32 s%d, s%d, %d" % (T_A, T_A, WS_WO))
    for i in range(16):
        if i and i % 4 == 0:
            a("s_add_u32 s%d, s%d, 4096" % (T_A, T_A))
        a("buffer_load_dwordx4 %s, v%d, s[20:23], s%d offen offset:%d sc1" % (vr(FV_WO + 4 * i), FV_LX, T_A, (i % 4) * 1024))
    srd(a, 12, 10, 2048 * 1024)
    a("v_and_b32 v%d, 31, v%d" % (V_T, V_LANE))
    a("v_lshlrev_b32 v%d, 10, v%d" % (V_T, V_T))
    a("v_lshrrev_b32 v%d, 5, v%d" % (V_T + 1, V_LANE))
    a("v_lshl_add_u32 v%d, v%d, 3, v%d" % (V_T, V_T + 1, V_T))
    a("s_lshl_b32 s%d, s%d, 15" % (T_A, T_TBO))
    a("s_lshl_b32 s%d, s%d, 6" % (T_B, T_NBO))
    a("s_add_u32 s%d, s%d, s%d" % (T_A, T_A, T_B))
    a("s_lshl_b32 s%d, s%d, 5" % (T_B, T_HALF))
    a("s_add_u32 s%d, s%d, s%d" % (T_A, T_A, T_B))
    for q in range(2):
        a("buffer_load_dwordx2 %s, v%d, s[12:15], s%d offen offset:%d" % (vr(FV_XR + 2 * q, 2), V_T, T_A, q * 16))
    a("s_branch L_f_syncret")


def fused_tail(a, E):
    S_WAVE, S_H, S_QB = E["S_WAVE"], E["S_H"], E["S_QB"]
    V_LANE, V_L16 = 1, 2
    V_T = 3
    S_MASK, S_W3, S_M0W, S_SW, S_SH, S_M0H = 43, 44, 45, 46, 47, 48
    a.ts("k2")
    a("s_setprio 0")
    for k in ("S_SYNC", "S_TYPE", "S_PASS", "S_NT", "S_ITER"):
        a("s_mov_b32 s%d, 0" % E[k])
    a("s_mov_b32 s%d, 0xffff0000" % S_MASK)
    a("s_and_b32 s%d, s%d, 3" % (S_W3, S_WAVE))
    a("s_lshl_b32 s%d, s%d, 2" % (T_A, S_QB))
    a("s_lshr_b32 s%d, s%d, 1" % (T_B, S_WAVE))
    a("s_add_u32 s%d, s%d, s%d" % (T_A, T_A, T_B))
    a("s_lshl_b32 s%d, s%d, 8" % (T_A, T_A))
    a("s_and_b32 s%d, s%d, 1" % (T_B, S_WAVE))
    a("s_lshl_b32 s%d, s%d, 5" % (T_B, T_B))
    a("s_add_u32 s%d, s%d, s%d" % (T_B, T_B, S_H))
    a("s_lshl_b32 s%d, s%d, 2" % (T_B, T_B))
    a("s_add_u32 s%d, s%d, s%d" % (T_B, T_B, T_A))
    a("s_add_u32 s%d, s%d, %d" % (T_B, T_B, FL_A))
    a("s_mul_i32 s%d, s%d, 7168" % (S_M0W, S_W3))
    a("s_mul_i32 s%d, s%d, %d" % (S_SW, T_CGF, 32 * 7 * 1024))
    a("s_add_u32 s%d, s%d, s%d" % (S_SW, S_SW, S_M0W))
    a("s_add_u32 s%d, s%d, %d" % (S_SW, S_SW, WS_GU))

    def w_stage(st):
        slot = st % 4
        a("s_add_u32 s%d, s%d, %d" % (T_C, S_SW, st * SLOT))
        a("s_add_u32 m0, s%d, %d" % (S_M0W, slot * SLOT))
        a("s_add_u32 s%d, s%d, 4096" % (T_D, T_C))
        for q in range(4):
            a("buffer_load_dwordx4 v%d, s[20:23], s%d offen offset:%d sc1 lds" % (V_L16, T_C, q * 1024))
        a("s_add_u32 m0, m0, 4096")
        a("s_nop 0")
        for q in range(3):
            a("buffer_load_dwordx4 v%d, s[20:23], s%d offen offset:%d sc1 lds" % (V_L16, T_D, q * 1024))

    a("s_waitcnt vmcnt(0)")
    set_flag(a, T_B, V_T)
    a("s_barrier")
    OB, XS = 86016, 57344
    a("s_cmp_ge_u32 s%d, 4" % S_WAVE)
    a("s_cbranch_scc1 L_f_a1")
    w_stage(0)
    w_stage(1)
    a("s_branch L_f_a2")
    a.label("L_f_a1")
    a("s_lshl_b32 s%d, s%d, 8" % (T_A, T_RB64))
    a("s_lshl_b32 s%d, s%d, 6" % (T_B, S_W3))
    a("s_add_u32 s%d, s%d, s%d" % (T_A, T_A, T_B))
    a("s_add_u32 s%d, s%d, %d" % (T_A, T_A, FL_A))
    a("s_lshl_b32 s%d, s%d, 2" % (T_C, T_RB64))
    a("s_add_u32 s%d, s%d, s%d" % (T_C, T_C, S_W3))
    a("s_lshl_b32 s%d, s%d, 14" % (T_C, T_C))
    a("s_add_u32 s%d, s%d, %d" % (T_C, T_C, WS_O))
    a("s_lshl_b32 s%d, s%d, 14" % (T_B, S_W3))
    a("s_add_u32 m0, s%d, %d" % (T_B, OB))
    poll(a, "fa", T_A, 16, FV_L4, FV_F + 2)
    a.ts("k2")
    for j in range(16):
        if j and j % 4 == 0:
            a("s_add_u32 m0, m0, 4096")
            a("s_add_u32 s%d, s%d, 4096" % (T_C, T_C))
        a("buffer_load_dwordx4 v%d, s[20:23], s%d offen offset:%d sc1 lds" % (V_L16, T_C, (j % 4) * 1024))
    a.label("L_f_a2")

    V_OA = 12
    V_OF = [16 + 4 * i for i in range(8)]
    V_AB = 64
    V_U = 80
    V_HK = 16
    a("s_bfe_u32 s%d, s%d, 0x10001" % (T_B, S_WAVE))
    a("s_lshl_b32 s%d, s%d, 1" % (T_B, T_B))
    a("s_add_u32 s%d, s%d, s%d" % (T_B, T_B, T_HALF))
    a("s_lshl_b32 s%d, s%d, 14" % (T_B, T_B))
    a("s_add_u32 s%d, s%d, %d" % (T_B, T_B, OB))
    a("v_add_u32 v%d, s%d, v%d" % (V_OA, T_B, V_L16))
    a("s_xor_b32 s%d, s%d, 4" % (T_B, S_WAVE))
    a("s_lshl_b32 s%d, s%d, 11" % (T_B, T_B))
    a("s_add_u32 s%d, s%d, %d" % (T_B, T_B, XS))
    a("v_add_u32 v%d, s%d, v%d" % (V_OA + 1, T_B, V_L16))
    a("s_lshl_b32 s%d, s%d, 11" % (T_B, S_WAVE))
    a("s_add_u32 s%d, s%d, %d" % (T_B, T_B, XS))
    a("v_add_u32 v%d, s%d, v%d" % (V_OA + 2, T_B, V_L16))
    for d in range(4):
        a("v_lshlrev_b32 v%d, 16, v%d" % (V_U + 2 * d, FV_XR + d))
        a("v_and_b32 v%d, s%d, v%d" % (V_U + 2 * d + 1, S_MASK, FV_XR + d))
    a("s_cmp_lt_u32 s%d, 4" % S_WAVE)
    a("s_cbranch_scc1 L_f_b3")
    a("s_waitcnt vmcnt(0)")
    a.label("L_f_b3")
    a("s_barrier")
    a.ts("k2")
    for i in range(8):
        a("ds_read_b128 %s, v%d offset:%d" % (vr(V_OF[i]), V_OA, i * 1024))
    for i in range(16):
        a("s_waitcnt lgkmcnt(%d)" % (7 if i < 8 else 15 - i))
        a("v_mfma_f32_32x32x16_bf16 %s, %s, %s, %s" % (vr(V_AB, 16), vr(FV_WO + 4 * i), vr(V_OF[i % 8]), "0" if i == 0 else vr(V_AB, 16)))
        if i < 8:
            a("ds_read_b128 %s, v%d offset:%d" % (vr(V_OF[i]), V_OA, (i + 8) * 1024))
    a("s_lshl_b32 s%d, s%d, 4" % (T_A, T_TBO))
    a("s_add_u32 s%d, s%d, s%d" % (T_A, T_A, T_NBO))
    a("s_lshl_b32 s%d, s%d, 1" % (T_A, T_A))
    a("s_add_u32 s%d, s%d, s%d" % (T_A, T_A, T_HALF))
    a("s_lshr_b32 s%d, s%d, 1" % (T_B, T_A))
    a("s_lshl_b32 s%d, s%d, 9" % (T_B, T_B))
    a("s_lshl_b32 s%d, s%d, 3" % (T_C, T_HALF))
    a("s_add_u32 s%d, s%d, s%d" % (T_B, T_B, T_C))
    a("s_add_u32 s%d, s%d, %d" % (T_B, T_B, WS_ST))
    a("s_lshl_b32 s%d, s%d, 10" % (T_A, T_A))
    a("s_add_u32 s%d, s%d, %d" % (T_A, T_A, WS_H))
    a("v_and_b32 v%d, 31, v%d" % (V_T, V_LANE))
    a("v_lshlrev_b32 v%d, 4, v%d" % (V_T, V_T))
    a("s_nop 1")
    for q in range(2):
        a("ds_write_b128 v%d, %s offset:%d" % (V_OA + 1, vr(V_AB + 8 + 4 * q), q * 1024))
    for i in range(8):
        a("v_add_f32 v%d, v%d, v%d" % (V_AB + i, V_AB + i, V_U + i))
    a("s_waitcnt lgkmcnt(0)")
    a("s_barrier")
    for q in range(2):
        a("ds_read_b128 %s, v%d offset:%d" % (vr(V_U + 4 * q), V_OA + 2, q * 1024))
    a("s_waitcnt lgkmcnt(0)")
    for i in range(8):
        a("v_add_f32 v%d, v%d, v%d" % (V_AB + i, V_AB + i, V_U + i))
    for i in range(4):
        a("v_cvt_pk_bf16_f32 v%d, v%d, v%d" % (V_HK + i, V_AB + 2 * i, V_AB + 2 * i + 1))
    hstore(a, "h", ["buffer_store_dwordx4 %s, v%d, s[20:23], s%d offen" % (vr(V_HK), V_L16, T_A)])
    for d in range(4):
        a("v_lshlrev_b32 v%d, 16, v%d" % (V_U + 2 * d, V_HK + d))
        a("v_and_b32 v%d, s%d, v%d" % (V_U + 2 * d + 1, S_MASK, V_HK + d))
    S1, S2 = V_AB, V_AB + 1
    a("v_add_f32 v%d, v%d, v%d" % (S1, V_U, V_U + 1))
    a("v_mul_f32 v%d, v%d, v%d" % (S2, V_U, V_U))
    a("v_fmac_f32 v%d, v%d, v%d" % (S2, V_U + 1, V_U + 1))
    for i in range(2, 8):
        a("v_add_f32 v%d, v%d, v%d" % (S1, S1, V_U + i))
        a("v_fmac_f32 v%d, v%d, v%d" % (S2, V_U + i, V_U + i))
    sum_halves(a, S1, V_AB + 2)
    sum_halves(a, S2, V_AB + 3)
    hstore(a, "st", ["buffer_store_dwordx2 %s, v%d, s[20:23], s%d offen" % (vr(S1, 2), V_T, T_B)])
    a("s_lshl_b32 s%d, s%d, 4" % (T_B, T_TBO))
    a("s_add_u32 s%d, s%d, s%d" % (T_B, T_B, T_NBO))
    a("s_lshl_b32 s%d, s%d, 1" % (T_B, T_B))
    a("s_add_u32 s%d, s%d, s%d" % (T_B, T_B, T_HALF))
    a("s_lshl_b32 s%d, s%d, 2" % (T_B, T_B))
    a("s_add_u32 s%d, s%d, %d" % (T_B, T_B, FL_B))
    a("v_mov_b32 v%d, v%d" % (14, FV_LX))
    a("v_mov_b32 v%d, v%d" % (15, FV_L4))
    V_LX, V_L4 = 14, 15
    a("s_waitcnt vmcnt(0)")
    set_flag(a, T_B, V_T, "fb")
    a("s_barrier")
    a.ts("k2")
    HR = 114688
    a("s_lshl_b32 s%d, s%d, 2" % (T_A, T_RB128))
    a("s_add_u32 s%d, s%d, s%d" % (T_A, T_A, S_W3))
    a("s_lshl_b32 s%d, s%d, 15" % (S_SH, T_A))
    a("s_add_u32 s%d, s%d, %d" % (S_SH, S_SH, WS_H))
    a("s_lshl_b32 s%d, s%d, 12" % (S_M0H, S_W3))
    a("s_add_u32 s%d, s%d, %d" % (S_M0H, S_M0H, HR))

    def h_stage(st):
        a("s_add_u32 m0, s%d, %d" % (S_M0H, (st % 3) * 16384))
        a("s_add_u32 s%d, s%d, %d" % (T_C, S_SH, st * 4096))
        for q in range(4):
            a("buffer_load_dwordx4 v%d, s[20:23], s%d offen offset:%d sc1 lds" % (V_L16, T_C, q * 1024))

    a("s_cmp_ge_u32 s%d, 4" % S_WAVE)
    a("s_cbranch_scc1 L_f_ccomp")
    w_stage(2)
    w_stage(3)
    V_WD = 144
    V_WP = 32
    S_KQ = 50
    a("s_lshr_b32 s%d, s%d, 1" % (S_KQ, S_WAVE))
    a("s_lshl_b32 s%d, s%d, 2" % (T_A, T_NBO))
    a("s_add_u32 s%d, s%d, s%d" % (T_A, T_A, S_KQ))
    a("s_mul_i32 s%d, s%d, %d" % (T_A, T_A, 28 * 1024))
    a("s_add_u32 s%d, s%d, %d" % (T_A, T_A, WS_WD))
    a("s_add_u32 s%d, s%d, %d" % (T_B, T_A, 56 * 1024))
    a("v_xor_b32 v%d, 0x100, v%d" % (V_T, V_L16))
    a("s_mul_i32 s%d, s%d, %d" % (T_M, S_W3, 28 * 1024))
    a("v_add_u32 v%d, s%d, v%d" % (V_T + 1, T_M, V_L16))

    def wd_loads(i0, i1):
        for i in range(i0, i1):
            if i and i % 4 == 0:
                a("s_add_u32 s%d, s%d, 4096" % (T_A, T_A))
            a("buffer_load_dwordx4 %s, v%d, s[20:23], s%d offen offset:%d sc1" % (vr(V_WD + 4 * i), V_LX, T_A, (i % 4) * 1024))

    log = ["W0"] * 7 + ["W1"] * 7 + ["W2"] * 7 + ["W3"] * 7
    wd_plan = {5: 8, 6: 12, 7: 8}
    nwd = 0
    for j in range(8):
        last = max(i for i, t in enumerate(log) if t in ("W%d" % j, "h%d" % j))
        n = len(log) - 1 - last
        assert n <= 63
        a("s_waitcnt vmcnt(%d)" % n)
        a("s_barrier")
        if j >= 1:
            if j + 2 <= 7:
                h_stage(j + 2)
                log += ["h%d" % (j + 2)] * 4
            if j + 3 <= 7:
                w_stage(j + 3)
                log += ["W%d" % (j + 3)] * 7
        k = wd_plan.get(j, 0)
        wd_loads(nwd, nwd + k)
        log += ["d"] * k
        nwd += k
    assert nwd == 28
    a("s_mov_b32 m0, s%d" % T_M)
    a("s_barrier")
    for i in range(28):
        if i and i % 4 == 0:
            a("s_add_u32 m0, m0, 4096")
            a("s_add_u32 s%d, s%d, 4096" % (T_B, T_B))
        a("buffer_load_dwordx4 v%d, s[20:23], s%d offen offset:%d sc1 lds" % (V_T, T_B, (i % 4) * 1024))
    a("s_waitcnt vmcnt(0)")
    a("s_barrier")
    a("s_branch L_f_d1")
    a.label("L_f_ccomp")
    V_AW, V_AH = 12, 13
    V_ST = 20
    V_CSL = 52
    V_H = [80, 84]
    V_W = [88, 116]
    V_ACC = [144 + 16 * b for b in range(7)]
    V_TMP = 88
    S_TB = 49
    a("s_lshl_b32 s%d, s%d, 2" % (S_TB, T_RB128))
    a("s_add_u32 s%d, s%d, s%d" % (S_TB, S_TB, S_W3))
    a("v_mov_b32 v%d, v%d" % (V_AW, V_L16))
    a("s_lshl_b32 s%d, s%d, 12" % (T_A, S_W3))
    a("s_add_u32 s%d, s%d, %d" % (T_A, T_A, HR))
    a("v_add_u32 v%d, s%d, v%d" % (V_AH, T_A, V_L16))
    a("v_and_b32 v%d, 31, v%d" % (V_T, V_LANE))
    a("v_lshlrev_b32 v%d, 4, v%d" % (V_T, V_T))
    a("v_lshrrev_b32 v%d, 5, v%d" % (V_T + 1, V_LANE))
    a("v_lshl_add_u32 v%d, v%d, 12, v%d" % (V_T, V_T + 1, V_T))
    a("s_mul_i32 s%d, s%d, 7168" % (T_C, T_CGF))
    a("s_add_u32 s%d, s%d, %d" % (T_C, T_C, WS_CS))
    a("s_add_u32 s%d, s%d, 4096" % (T_D, T_C))
    for blk in range(7):
        a("buffer_load_dwordx4 %s, v%d, s[20:23], s%d offen offset:%d sc1" % (vr(V_CSL + 4 * blk), V_L16, T_C if blk < 4 else T_D, (blk % 4) * 1024))
    a("s_lshl_b32 s%d, s%d, 7" % (T_B, S_TB))
    a("s_add_u32 s%d, s%d, %d" % (T_B, T_B, FL_B))
    poll(a, "fb", T_B, 32, V_L4, 9)
    for st in range(3):
        h_stage(st)
    a("s_lshl_b32 s%d, s%d, 13" % (T_A, S_TB))
    a("s_add_u32 s%d, s%d, %d" % (T_A, T_A, WS_ST))
    cur_base = [0]
    lds = Lds(a)

    def reads(P):
        st, pos = P // 4, P % 4
        slot = st % 4
        base, imm = (slot // 2) * 2 * SLOT, (slot % 2) * SLOT
        out = []
        b = P % 2
        out.append(("ds_read_b128 %s, v%d offset:%d" % (vr(V_H[b]), V_AH, (st % 3) * 16384 + pos * 1024), ("h", P)))
        if base != cur_base[0]:
            d = base - cur_base[0]
            out.append(("v_add_u32 v%d, %d, v%d" % (V_AW, d, V_AW) if d > 0 else "v_subrev_u32 v%d, %d, v%d" % (V_AW, -d, V_AW), None))
            cur_base[0] = base
        for blk in range(7):
            out.append(("ds_read_b128 %s, v%d offset:%d" % (vr(V_W[b] + 4 * blk), V_AW, imm + (pos * 7 + blk) * 1024), ("w", P, blk)))
        return out

    side = {}
    g = []
    for i in range(8):
        g.append("buffer_load_dwordx4 %s, v%d, s[20:23], s%d offen offset:%d sc1" % (vr(V_ST + 4 * i), V_T, T_A, i * 512))
    side[0], side[1] = g[:4], g[4:]
    sa = Asm()
    S1, S2 = V_T + 1, V_T + 2
    V_MU, V_RS = V_T + 2, V_T + 4
    V_VAR, V_C1, V_C2 = 6, 8, 10
    sa("s_waitcnt vmcnt(0)")
    sa("v_add_f32 v%d, v%d, v%d" % (S1, V_ST, V_ST + 2))
    sa("v_add_f32 v%d, v%d, v%d" % (S2, V_ST + 1, V_ST + 3))
    for i in range(2, 16):
        sa("v_add_f32 v%d, v%d, v%d" % (S1, S1, V_ST + 2 * i))
        sa("v_add_f32 v%d, v%d, v%d" % (S2, S2, V_ST + 2 * i + 1))
    sum_halves(sa, S1, V_T + 4)
    sum_halves(sa, S2, V_T + 4)
    sa("v_mul_f32 v%d, 0x%x, v%d" % (V_VAR, f32bits(1.0 / 512), S2))
    sa("v_mul_f32 v%d, 0x%x, v%d" % (V_MU, f32bits(1.0 / 512), S1))
    sa("v_fma_f32 v%d, -v%d, v%d, v%d" % (V_VAR, V_MU, V_MU, V_VAR))
    sa("v_max_f32 v%d, 0, v%d" % (V_VAR, V_VAR))
    sa("v_add_f32 v%d, 0x%x, v%d" % (V_VAR, f32bits(1e-5), V_VAR))
    sa("v_rsq_f32 v%d, v%d" % (V_RS, V_VAR))
    sa("v_sub_f32 v%d, 0, v%d" % (V_MU, V_MU))
    VB = V_ST
    split_hi_lo_B(sa, V_MU, VB, V_T, S_MASK)
    c1 = -2.0 * math.sqrt(2.0 / math.pi) * math.log2(math.e)
    sa("v_mul_f32 v%d, 0x%x, v%d" % (V_C1, f32bits(c1), V_RS))
    sa("v_mul_f32 v%d, v%d, v%d" % (V_C2, V_RS, V_RS))
    sa("v_mul_f32 v%d, v%d, v%d" % (V_C2, V_C2, V_C1))
    sa("v_mul_f32 v%d, 0x%x, v%d" % (V_C2, f32bits(0.044715), V_C2))
    VA = V_CSL
    for blk in range(7):
        c = V_CSL + 4 * blk
        a("v_add_f32 v%d, v%d, v%d" % (c, c, c + 1))
        a("v_add_f32 v%d, v%d, v%d" % (c + 2, c + 2, c + 3))
        a("v_add_f32 v%d, v%d, v%d" % (V_T + 2, c, c + 2))
        split_hi_lo_A(a, V_T + 2, c, V_T + 1, S_MASK)
    sl = [x.strip() for x in sa.L]
    per = 10
    for k in range((len(sl) + per - 1) // per):
        side[10 + k] = sl[per * k:per * (k + 1)]
    P_R1 = 10 + (len(sl) + per - 1) // per + 1
    assert P_R1 <= 30
    side[30] = ["s_mul_i32 s%d, s%d, 112" % (T_A, S_TB), "s_mul_i32 s%d, s%d, 7" % (T_B, T_CGF), "s_add_u32 s%d, s%d, s%d" % (T_A, T_A, T_B),
                "s_lshl_b32 s%d, s%d, 10" % (T_A, T_A), "s_add_u32 s%d, s%d, %d" % (T_A, T_A, WS_A), "s_add_u32 s%d, s%d, 4096" % (T_B, T_A)]
    a("s_waitcnt vmcnt(8)")
    a("s_barrier")
    a.ts("k2")
    for t, tag in reads(0):
        lds.op(t, tag) if tag else a(t)
    for P in range(32):
        st, pos = P // 4, P % 4
        b = P % 2
        rd = reads(P + 1) if P < 31 else []
        sd = list(side.get(P, []))
        bar_at = 3 if (pos == 3 and P < 31) else -1
        first_rd = bar_at if bar_at >= 0 else 0
        for blk in range(7):
            if blk == bar_at:
                lds.drain()
                if st == 0:
                    a("s_waitcnt vmcnt(12)")
                if st == 1:
                    a("s_waitcnt vmcnt(8)")
                a("s_barrier")
            lds.need(("h", P), ("w", P, blk))
            a("v_mfma_f32_32x32x16_bf16 %s, %s, %s, %s" % (vr(V_ACC[blk], 16), vr(V_W[b] + 4 * blk), vr(V_H[b]), "0" if P == 0 else vr(V_ACC[blk], 16)))
            if blk >= first_rd:
                nrd = 3 if bar_at >= 0 else 2
                for _ in range(nrd):
                    if rd:
                        t, tag = rd.pop(0)
                        lds.op(t, tag) if tag else a(t)
            for _ in range(2):
                if sd:
                    a(sd.pop(0))
        assert not rd and not sd
        if P == P_R1:
            for blk in range(7):
                a("v_mfma_f32_32x32x16_bf16 %s, %s, %s, %s" % (vr(V_ACC[blk], 16), vr(VA + 4 * blk), vr(VB), vr(V_ACC[blk], 16)))
    a.ts("k2")
    a("s_barrier")
    a("s_nop 4")
    bc = lambda r: "v[%d:%d]" % (r, r + 1)
    for blk in range(7):
        G = V_ACC[blk]
        Uu = G + 8
        T = V_TMP + 8 * (blk % 2)
        for i in range(0, 8, 2):
            a("v_pk_mul_f32 %s, %s, %s" % (bc(T + i), bc(G + i), bc(G + i)))
        for i in range(0, 8, 2):
            a("v_pk_fma_f32 %s, %s, %s, %s op_sel_hi:[1,0,0]" % (bc(T + i), bc(T + i), bc(V_C2), bc(V_C1)))
        for i in range(0, 8, 2):
            a("v_pk_mul_f32 %s, %s, %s" % (bc(T + i), bc(T + i), bc(G + i)))
        for i in range(8):
            a("v_exp_f32 v%d, v%d" % (T + i, T + i))
        for i in range(0, 8, 2):
            a("v_pk_mul_f32 %s, %s, %s" % (bc(G + i), bc(G + i), bc(Uu + i)))
        for i in range(0, 8, 2):
            a("v_pk_fma_f32 %s, %s, %s, %s op_sel_hi:[1,0,0]" % (bc(T + i), bc(T + i), bc(V_VAR), bc(V_VAR)))
        for i in range(8):
            a("v_rcp_f32 v%d, v%d" % (T + i, T + i))
        a("s_nop 0")
        for i in range(0, 8, 2):
            a("v_pk_mul_f32 %s, %s, %s" % (bc(G + i), bc(G + i), bc(T + i)))
        o = V_TMP + 16 + 4 * blk
        for i in range(4):
            a("v_cvt_pk_bf16_f32 v%d, v%d, v%d" % (o + i, G + 2 * i, G + 2 * i + 1))
    hstore(a, "act", ["buffer_store_dwordx4 %s, v%d, s[20:23], s%d offen offset:%d" % (vr(V_TMP + 16 + 4 * blk), V_L16, T_A if blk < 4 else T_B, (blk % 4) * 1024) for blk in range(7)])
    a.ts("k2")
    a("s_lshl_b32 s%d, s%d, 4" % (T_B, S_TB))
    a("s_add_u32 s%d, s%d, s%d" % (T_B, T_B, T_CGF))
    a("s_lshl_b32 s%d, s%d, 2" % (T_B, T_B))
    a("s_add_u32 s%d, s%d, %d" % (T_B, T_B, FL_C))
    a("s_lshr_b32 s%d, s%d, 1" % (S_KQ, S_WAVE))
    a("s_mul_i32 s%d, s%d, %d" % (T_M, S_W3, 28 * 1024))
    a("v_add_u32 v%d, s%d, v%d" % (V_T + 2, T_M, V_L16))
    a("s_waitcnt vmcnt(0)")
    set_flag(a, T_B, V_T, "fc")
    a("s_barrier")
    for i in range(28):
        a("ds_read_b128 %s, v%d offset:%d" % (vr(V_WD + 4 * i), V_T + 2, i * 1024))
        if i % 8 == 7:
            a("s_waitcnt lgkmcnt(4)")
    a("s_waitcnt lgkmcnt(0)")
    a.label("L_f_d1")
    V_AA = [12, 13]
    V_AF = [[32 + 32 * b + 4 * i for i in range(8)] for b in range(2)]
    V_AD = [96, 112]
    S_SA, S_M0A = 45, 46
    a("s_and_b32 s%d, s%d, 1" % (T_A, S_WAVE))
    a("s_lshl_b32 s%d, s%d, 1" % (T_B, T_RB64))
    a("s_add_u32 s%d, s%d, s%d" % (T_A, T_A, T_B))
    a("s_lshl_b32 s%d, s%d, 2" % (T_A, T_A))
    a("s_add_u32 s%d, s%d, s%d" % (T_A, T_A, S_KQ))
    a("s_mul_i32 s%d, s%d, %d" % (S_SA, T_A, 28 * 1024))
    a("s_add_u32 s%d, s%d, %d" % (S_SA, S_SA, WS_A))
    a("s_lshl_b32 s%d, s%d, 12" % (S_M0A, S_WAVE))
    for ai in range(2):
        a("s_and_b32 s%d, s%d, 1" % (T_A, S_KQ))
        a("s_xor_b32 s%d, s%d, %d" % (T_A, T_A, ai))
        a("s_lshl_b32 s%d, s%d, 1" % (T_B, S_KQ))
        a("s_add_u32 s%d, s%d, s%d" % (T_A, T_A, T_B))
        a("s_lshl_b32 s%d, s%d, 12" % (T_A, T_A))
        a("v_add_u32 v%d, s%d, v%d" % (V_AA[ai], T_A, V_L16))

    def a_stage(j):
        out = ["s_add_u32 m0, s%d, %d" % (S_M0A, (j % 5) * 32768), "s_add_u32 s%d, s%d, %d" % (T_C, S_SA, j * 4096)]
        for q in range(4):
            out.append("buffer_load_dwordx4 v%d, s[20:23], s%d offen offset:%d%s lds" % (V_L16, T_C, q * 1024, LSC))
        return out

    a("s_cmp_lg_u32 s%d, 0" % S_WAVE)
    a("s_cbranch_scc1 L_f_d2")
    a("s_lshl_b32 s%d, s%d, 7" % (T_A, T_RB64))
    a("s_add_u32 s%d, s%d, %d" % (T_A, T_A, FL_C))
    poll(a, "fc", T_A, 32, V_L4, 9)
    a.label("L_f_d2")
    a("s_barrier")
    a.ts("k2")
    a.ts("kd_")
    DD = 2
    for l in a_stage(0):
        a(l)
    a("s_barrier")
    for l in a_stage(1):
        a(l)
    cb = 0

    def d_mfmas(j):
        F = V_AF[j % 2]
        return ["v_mfma_f32_32x32x16_bf16 %s, %s, %s, %s" % (vr(V_AD[ai], 16), vr(V_WD + 4 * (4 * j + q)), vr(F[q * 2 + ai]), "0" if (j == 0 and q == 0) else vr(V_AD[ai], 16))
                for q in range(4) for ai in range(2)]

    for j in range(7):
        slot = j % 5
        base, imm = (slot // 2) * 65536, (slot % 2) * 32768
        if base != cb:
            d = base - cb
            for r in V_AA:
                a("v_add_u32 v%d, %d, v%d" % (r, d, r) if d > 0 else "v_subrev_u32 v%d, %d, v%d" % (r, -d, r))
            cb = base
        a("s_waitcnt vmcnt(%d) lgkmcnt(0)" % (4 * (min(j + DD - 1, 6) - j)))
        a("s_barrier")
        a.ts("kd_")
        F = V_AF[j % 2]
        stg = a_stage(j + DD) if j + DD <= 6 else []
        for l in stg[:3]:
            a(l)
        for q in range(4):
            for ai in range(2):
                a("ds_read_b128 %s, v%d offset:%d" % (vr(F[q * 2 + ai]), V_AA[ai], imm + q * 1024))
        rest = stg[3:]
        for k, m in enumerate(d_mfmas(j)):
            a("s_waitcnt lgkmcnt(%d)" % (7 - k))
            a(m)
            if rest:
                a(rest.pop(0))
    a.ts("kd_")
    XD = 65536
    for x in range(1, 4):
        a("s_xor_b32 s%d, s%d, %d" % (T_A, S_WAVE, x << 1))
        a("s_mul_i32 s%d, s%d, 6144" % (T_A, T_A))
        a("s_add_u32 s%d, s%d, %d" % (T_A, T_A, XD + (x - 1) * 2048))
        a("v_add_u32 v%d, s%d, v%d" % (V_T + x, T_A, V_L16))
    a("s_mul_i32 s%d, s%d, 6144" % (T_A, S_WAVE))
    a("s_add_u32 s%d, s%d, %d" % (T_A, T_A, XD))
    a("v_add_u32 v%d, s%d, v%d" % (V_T, T_A, V_L16))
    src = {1: V_AD[1], 2: V_AD[0] + 8, 3: V_AD[1] + 8}
    for x in (2, 1, 3):
        for q in range(2):
            a("ds_write_b128 v%d, %s offset:%d" % (V_T + x, vr(src[x] + 4 * q), q * 1024))
    U = 32
    for d in range(4):
        a("v_lshlrev_b32 v%d, 16, v%d" % (U + 2 * d, V_HK + d))
        a("v_and_b32 v%d, s%d, v%d" % (U + 2 * d + 1, S_MASK, V_HK + d))
    for i in range(8):
        a("v_add_f32 v%d, v%d, v%d" % (V_AD[0] + i, V_AD[0] + i, U + i))
    srd(a, 12, 16, 2048 * 1024)
    a("v_and_b32 v%d, 31, v%d" % (V_T + 4, V_LANE))
    a("v_lshlrev_b32 v%d, 10, v%d" % (V_T + 4, V_T + 4))
    a("v_lshrrev_b32 v%d, 5, v%d" % (V_T + 5, V_LANE))
    a("v_lshl_add_u32 v%d, v%d, 3, v%d" % (V_T + 4, V_T + 5, V_T + 4))
    a("s_lshl_b32 s%d, s%d, 15" % (T_A, T_TBO))
    a("s_lshl_b32 s%d, s%d, 6" % (T_B, T_NBO))
    a("s_add_u32 s%d, s%d, s%d" % (T_A, T_A, T_B))
    a("s_lshl_b32 s%d, s%d, 5" % (T_B, T_HALF))
    a("s_add_u32 s%d, s%d, s%d" % (T_A, T_A, T_B))
    a("s_waitcnt lgkmcnt(0)")
    a("s_barrier")
    a.ts("kd_")
    R = 48
    for k in range(6):
        a("ds_read_b128 %s, v%d offset:%d" % (vr(R + 4 * k), V_T, k * 1024))
    for x in range(3):
        a("s_waitcnt lgkmcnt(%d)" % (4 - 2 * x))
        for i in range(8):
            a("v_add_f32 v%d, v%d, v%d" % (V_AD[0] + i, V_AD[0] + i, R + 8 * x + i))
    for i in range(4):
        a("v_cvt_pk_bf16_f32 v%d, v%d, v%d" % (U + i, V_AD[0] + 2 * i, V_AD[0] + 2 * i + 1))
    for q in range(2):
        a("buffer_store_dwordx2 %s, v%d, s[12:15], s%d offen offset:%d" % (vr(U + 2 * q, 2), V_T + 4, T_A, q * 16))
    a.ts_flush("k2", S_WAVE, V_T)
    a.ts_flush("kd_", S_WAVE, V_T)


FL_1 = WS_FL + 24576
P1_DIST = int(os.environ.get('P1_DIST', 3))
P1_ROT = int(os.environ.get('P1_ROT', 1))


def team_check(a, tag, vl4, vf, preissued=False):
    a("s_lshl_b32 s38, s%d, 5" % S_TEAM)
    a("s_mov_b32 s36, 0")
    if preissued:
        a("s_branch L_tc_%s_w" % tag)
    a.label("L_tc_%s" % tag)
    a("buffer_load_dword v%d, v%d, s[96:99], s38 offen sc1" % (vf, vl4))
    a.label("L_tc_%s_w" % tag)
    a("s_add_u32 s36, s36, 1")
    a("s_waitcnt vmcnt(0)")
    a("v_subrev_u32 v%d, 0x01010101, v%d" % (vf + 1, vf))
    a("v_not_b32 v%d, v%d" % (vf + 2, vf))
    a("v_and_b32 v%d, v%d, v%d" % (vf + 1, vf + 1, vf + 2))
    a("v_and_b32 v%d, 0x80808080, v%d" % (vf + 1, vf + 1))
    a("v_cmp_eq_u32 vcc, 0, v%d" % (vf + 1))
    a("s_cmp_gt_u32 s36, 0x40000")
    a("s_cbranch_scc1 L_tc_%s_d" % tag)
    a("s_and_b32 s37, vcc_lo, 0xff")
    a("s_cmp_lg_u32 s37, 0xff")
    a("s_cbranch_scc1 L_tc_%s" % tag)
    a.label("L_tc_%s_d" % tag)
    a("s_mul_i32 s37, s%d, 0x01010101" % S_XCC)
    a("v_cmp_eq_u32 vcc, s37, v%d" % vf)
    a("s_nop 3")
    a("s_or_b32 s%d, vcc_lo, 0xffffff00" % S_FAST)
    if not FASTPATH:
        a("s_and_b32 s%d, s%d, 0" % (S_FAST, S_FAST))


def phase1(a, E):
    S_WAVE, S_H, S_QB = E["S_WAVE"], E["S_H"], E["S_QB"]
    SL, NS = 32768, 4
    SCR = NS * SL
    SCR_CS, SCR_RS, SCR_BF = SCR, SCR + 1536, SCR + 2048
    S_W3, S_MASK, S_T0, S_T1, S_KX, S_KW, S_SLOT, S_CNT, S_M0X, S_M0W, S_RD, S_SLC = 43, 44, 45, 46, 47, 48, 49, 50, 51, 52, 53, 54
    S_TBI, S_G, S_O0, S_O1, S_O2, S_O3, S_O4 = 55, 56, 57, 58, 59, 60, 61
    V_LANE, V_L16, V_T = 1, 2, 3
    V_DX, V_DW, V_AX, V_AW = 10, 14, 15, 19
    V_SEL, V_SQ = 24, 28
    V_X = [32, 36]
    V_W = [[40, 44, 48], [52, 56, 60]]
    V_ACC = [64, 80, 96]
    V_CS = [112, 116, 120]
    V_TMP = 124
    a("s_and_b32 s%d, s%d, 3" % (S_W3, S_WAVE))
    a("s_mov_b32 s%d, 0xffff0000" % S_MASK)
    a("s_mov_b32 s%d, 0" % S_SLOT)
    a("s_mov_b32 s%d, 0" % S_CNT)

    def x_addr(sbase, sxor):
        a("v_and_b32 v%d, 31, v%d" % (V_T, V_LANE))
        a("v_and_b32 v%d, 3, v%d" % (V_T + 1, V_LANE))
        a("v_lshrrev_b32 v%d, 2, v%d" % (V_T + 2, V_T))
        a("v_lshlrev_b32 v%d, 7, v%d" % (V_T + 2, V_T + 2))
        a("v_lshl_add_u32 v%d, v%d, 10, v%d" % (V_T + 2, V_T + 1, V_T + 2))
        a("v_add_u32 v%d, s%d, v%d" % (V_T + 2, sbase, V_T + 2))
        a("v_lshrrev_b32 v%d, 1, v%d" % (V_T + 3, V_T))
        a("v_and_b32 v%d, 4, v%d" % (V_T + 3, V_T + 3))
        a("v_or_b32 v%d, v%d, v%d" % (V_T + 3, V_T + 3, V_T + 1))
        a("v_lshrrev_b32 v%d, 5, v%d" % (V_T + 4, V_LANE))
        a("v_xor_b32 v%d, v%d, v%d" % (V_T + 3, V_T + 3, V_T + 4))
        if sxor is not None:
            a("v_xor_b32 v%d, s%d, v%d" % (V_T + 3, sxor, V_T + 3))
        for ks in range(4):
            a("v_xor_b32 v%d, %d, v%d" % (V_T + 5, 2 * ks, V_T + 3))
            a("v_lshl_add_u32 v%d, v%d, 4, v%d" % (V_AX + ks, V_T + 5, V_T + 2))

    a("s_cmp_ge_u32 s%d, 4" % S_WAVE)
    a("s_cbranch_scc1 L_p1_comp")
    a("v_lshrrev_b32 v%d, 3, v%d" % (V_T, V_LANE))
    a("v_and_b32 v%d, 7, v%d" % (V_T + 1, V_LANE))
    a("v_lshrrev_b32 v%d, 2, v%d" % (V_T + 2, V_LANE))
    a("v_and_b32 v%d, 4, v%d" % (V_T + 2, V_T + 2))
    a("v_xor_b32 v%d, v%d, v%d" % (V_T + 1, V_T + 1, V_T + 2))
    a("v_mul_u32_u24 v%d, 3072, v%d" % (V_T + 3, V_T))
    a("v_lshl_add_u32 v%d, v%d, 4, v%d" % (V_DW, V_T + 1, V_T + 3))
    a("v_lshlrev_b32 v%d, 12, v%d" % (V_T, V_T))
    for q in range(4):
        a("v_xor_b32 v%d, %d, v%d" % (V_T + 3, q, V_T + 1))
        a("v_lshl_add_u32 v%d, v%d, 4, v%d" % (V_DX + q, V_T + 3, V_T))
    a("s_mul_i32 s%d, s%d, %d" % (S_KW, S_W3, 16 * 3072))
    a("s_lshl_b32 s%d, s%d, 7" % (S_T0, S_TEAM))
    a("s_add_u32 s%d, s%d, s%d" % (S_KW, S_KW, S_T0))
    a("s_mul_i32 s%d, s%d, 6144" % (S_M0W, S_W3))
    a("s_add_u32 s%d, s%d, 8192" % (S_M0W, S_M0W))
    a("s_and_b32 s%d, s%d, 1" % (S_T0, S_W3))
    a("s_lshl_b32 s%d, s%d, 12" % (S_M0X, S_T0))
    a("s_lshl_b32 s%d, s%d, 1" % (S_T1, S_MEM))
    a("s_add_u32 s%d, s%d, s%d" % (S_T1, S_T1, S_T0))
    a("s_lshl_b32 s%d, s%d, 15" % (S_KX, S_T1))
    a("s_waitcnt lgkmcnt(0)")
    srd(a, 12, 10, 2048 * 1024)
    srd(a, 28, 100, 512 * 3072)
    srd(a, 20, 8, WS_SIZE)
    a("s_mov_b32 s98, 256")
    a("s_mov_b32 s99, 0x00020000")

    S_KC, S_OX, S_OW = 55, 56, 57
    if P1_ROT:
        a("s_and_b32 s%d, s%d, 7" % (S_KC, S_MEM))
    else:
        a("s_mov_b32 s%d, 0" % S_KC)

    def issue(with_x):
        a("s_mul_i32 s%d, s%d, %d" % (S_OW, S_KC, 64 * 3072))
        a("s_add_u32 s%d, s%d, s%d" % (S_OW, S_OW, S_KW))
        if with_x:
            a("s_lshl_b32 s%d, s%d, 7" % (S_OX, S_KC))
            a("s_add_u32 m0, s%d, s%d" % (S_M0X, S_SLOT))
            a("s_add_u32 s%d, s%d, s%d" % (S_OX, S_OX, S_KX))
            for q in range(4 if DIAG not in ("noload", "nox") else 0):
                a("buffer_load_dwordx4 v%d, s[12:15], s%d offen offset:%d lds" % (V_DX + q, S_OX, q * 1024))
        a("s_add_u32 m0, s%d, s%d" % (S_M0W, S_SLOT))
        a("s_add_u32 s%d, s%d, %d" % (S_T0, S_OW, 8 * 3072))
        for sx in range(3 if DIAG != "noload" else 0):
            a("buffer_load_dwordx4 v%d, s[28:31], s%d offen offset:%d lds" % (V_DW, S_OW, sx * 1024))
        a("s_add_u32 m0, m0, 3072")
        a("s_add_u32 s%d, s%d, 1" % (S_KC, S_KC))
        for sx in range(3 if DIAG != "noload" else 0):
            a("buffer_load_dwordx4 v%d, s[28:31], s%d offen offset:%d lds" % (V_DW, S_T0, sx * 1024))
        a("s_and_b32 s%d, s%d, 7" % (S_KC, S_KC))
        a("s_add_u32 s%d, s%d, %d" % (S_SLOT, S_SLOT, SL))
        a("s_and_b32 s%d, s%d, %d" % (S_SLOT, S_SLOT, NS * SL - 1))

    D = P1_DIST
    a("s_cmp_lt_u32 s%d, 2" % S_WAVE)
    a("s_cbranch_scc1 L_p1_stat")
    a.label("L_p1_ld")
    issue(True)
    a("s_add_u32 s%d, s%d, 1" % (S_CNT, S_CNT))
    a("s_cmp_lt_u32 s%d, %d" % (S_CNT, D))
    a("s_cbranch_scc1 L_p1_ld")
    a("s_waitcnt vmcnt(%d)" % (10 * (D - 1)))
    a("s_barrier")
    a("s_cmp_lt_u32 s%d, 8" % S_CNT)
    a("s_cbranch_scc1 L_p1_ld")
    for r in range(D - 2, -1, -1):
        a("s_waitcnt vmcnt(%d)" % (10 * r))
        a("s_barrier")
    a("s_branch L_p1_hx")
    a.label("L_p1_stat")
    for _ in range(D - 1):
        issue(False)
    LX = [64, 68, 72, 76]
    L_SX = 92
    x_addr(S_M0X, None)
    make_sel(a, V_LANE, V_SEL, V_T)
    for r in [V_SQ, V_SQ + 1] + list(range(L_SX, L_SX + 4)):
        a("v_mov_b32 v%d, 0" % r)
    a("s_mov_b32 s%d, %d" % (S_SLC, SL))
    a.label("L_p1_st")
    a("s_cmp_gt_u32 s%d, %d" % (S_CNT, 8 - D))
    a("s_cbranch_scc1 L_p1_st2")
    issue(False)
    a("s_waitcnt vmcnt(%d)" % (6 * (D - 1)))
    a("s_branch L_p1_st3")
    a.label("L_p1_st2")
    if D == 3:
        a("s_cmp_eq_u32 s%d, 7" % S_CNT)
        a("s_cbranch_scc1 L_p1_st4")
        a("s_waitcnt vmcnt(6)")
        a("s_branch L_p1_st3")
        a.label("L_p1_st4")
    a("s_waitcnt vmcnt(0)")
    a.label("L_p1_st3")
    a("s_barrier")
    for ks in range(4):
        a("ds_read_b128 %s, v%d" % (vr(LX[ks]), V_AX + ks))
    a("s_add_u32 s%d, s%d, 1" % (S_CNT, S_CNT))
    a("s_and_b32 s%d, s%d, %d" % (S_T1, S_CNT, NS - 1))
    a("s_cmp_eq_u32 s%d, 0" % S_T1)
    a("s_cselect_b32 s%d, %d, s%d" % (S_RD, -(NS - 1) * SL, S_SLC))
    for ks in range(4):
        a("s_waitcnt lgkmcnt(%d)" % (3 - ks))
        a("v_mfma_f32_16x16x32_bf16 %s, %s, %s, %s" % (vr(L_SX), vr(V_SEL), vr(LX[ks]), vr(L_SX)))
        for d in range(4 if DIAG not in ("nostat", "nocompute") else 0):
            t0, t1 = V_TMP + 2 * (d % 2), V_TMP + 2 * (d % 2) + 1
            a("v_lshlrev_b32 v%d, 16, v%d" % (t0, LX[ks] + d))
            a("v_and_b32 v%d, s%d, v%d" % (t1, S_MASK, LX[ks] + d))
            a("v_fmac_f32 v%d, v%d, v%d" % (V_SQ, t0, t0))
            a("v_fmac_f32 v%d, v%d, v%d" % (V_SQ + 1, t1, t1))
    for r in range(V_AX, V_AX + 4):
        a("v_add_u32 v%d, s%d, v%d" % (r, S_RD, r))
    a("s_cmp_lt_u32 s%d, 8" % S_CNT)
    a("s_cbranch_scc1 L_p1_st")
    a("v_and_b32 v%d, 31, v%d" % (V_T, V_LANE))
    a("v_lshlrev_b32 v%d, 2, v%d" % (V_T, V_T))
    a("v_add_f32 v%d, v%d, v%d" % (V_SQ, V_SQ, V_SQ + 1))
    sum_halves(a, V_SQ, V_SQ + 1)
    V_MU, V_RS = V_SQ + 2, V_SQ + 3
    a("v_mul_f32 v%d, 0x%x, v%d" % (V_MU, f32bits(1.0 / 512), L_SX))
    a("v_mul_f32 v%d, 0x%x, v%d" % (V_SQ, f32bits(1.0 / 512), V_SQ))
    a("v_fma_f32 v%d, -v%d, v%d, v%d" % (V_SQ, V_MU, V_MU, V_SQ))
    a("v_max_f32 v%d, 0, v%d" % (V_SQ, V_SQ))
    a("v_add_f32 v%d, 0x%x, v%d" % (V_SQ, f32bits(1e-5), V_SQ))
    a("v_rsq_f32 v%d, v%d" % (V_RS, V_SQ))
    a("v_sub_f32 v%d, 0, v%d" % (V_MU, V_MU))
    a("s_lshl_b32 s%d, s%d, 7" % (S_T0, S_W3))
    a("s_add_u32 s%d, s%d, %d" % (S_T0, S_T0, SCR_RS))
    a("v_add_u32 v%d, s%d, v%d" % (V_T + 2, S_T0, V_T))
    a("ds_write_b32 v%d, v%d" % (V_T + 2, V_RS))
    split_hi_lo_B(a, V_MU, LX[0], V_T + 4, S_MASK)
    a("s_lshl_b32 s%d, s%d, 9" % (S_T0, S_W3))
    a("s_add_u32 s%d, s%d, %d" % (S_T0, S_T0, SCR_BF))
    a("v_lshl_add_u32 v%d, v%d, 3, s%d" % (V_T + 3, V_LANE, S_T0))
    a("ds_write_b64 v%d, %s" % (V_T + 3, vr(LX[0], 2)))
    a("s_waitcnt lgkmcnt(0)")
    a.label("L_p1_hx")
    a("s_barrier")
    team_check(a, "h", FV_L4, FV_F)
    a("s_cmp_lg_u32 s%d, 0" % S_WAVE)
    a("s_cbranch_scc1 L_p1_done")
    a("s_lshl_b32 s%d, s%d, 9" % (T_A, S_TEAM))
    a("s_bfe_u32 s%d, s%d, 0x10001" % (T_B, S_H))
    a("s_lshl_b32 s%d, s%d, 8" % (T_B, T_B))
    a("s_add_u32 s%d, s%d, s%d" % (T_A, T_A, T_B))
    a("s_add_u32 s%d, s%d, %d" % (T_A, T_A, FL_1))
    poll(a, "f1", T_A, 64, FV_L4, FV_F)
    a("s_branch L_p1_done")
    a.label("L_p1_comp")
    a("s_lshr_b32 s%d, s%d, 1" % (S_TBI, S_W3))
    a("s_and_b32 s%d, s%d, 1" % (S_G, S_W3))
    a("s_lshl_b32 s%d, s%d, 12" % (S_T0, S_TBI))
    a("s_lshl_b32 s%d, s%d, 1" % (S_T1, S_TBI))
    x_addr(S_T0, S_T1)
    a("v_bfe_u32 v%d, v%d, 2, 2" % (V_T, V_LANE))
    a("v_lshlrev_b32 v%d, 7, v%d" % (V_T + 1, V_T))
    a("v_lshrrev_b32 v%d, 1, v%d" % (V_T, V_T))
    a("v_xor_b32 v%d, s%d, v%d" % (V_T, S_G, V_T))
    a("v_lshl_add_u32 v%d, v%d, 6, v%d" % (V_T + 1, V_T, V_T + 1))
    a("v_bfe_u32 v%d, v%d, 4, 1" % (V_T, V_LANE))
    a("v_lshl_add_u32 v%d, v%d, 5, v%d" % (V_T + 1, V_T, V_T + 1))
    a("v_and_b32 v%d, 3, v%d" % (V_T, V_LANE))
    a("v_lshl_add_u32 v%d, v%d, 3, v%d" % (V_T + 1, V_T, V_T + 1))
    a("v_lshrrev_b32 v%d, 5, v%d" % (V_T + 2, V_LANE))
    a("v_mul_u32_u24 v%d, 3072, v%d" % (V_T, V_T + 2))
    a("v_add_u32 v%d, v%d, v%d" % (V_T + 1, V_T + 1, V_T))
    for p in range(2):
        a("s_xor_b32 s%d, s%d, %d" % (S_T0, S_TBI, p))
        a("s_mul_i32 s%d, s%d, 6144" % (S_T0, S_T0))
        a("s_add_u32 s%d, s%d, 8192" % (S_T0, S_T0))
        a("v_add_u32 v%d, s%d, v%d" % (V_AW + p, S_T0, V_T + 1))
    make_sel(a, V_LANE, V_SEL, V_T)
    V_ECW, V_ECS, V_ERS, V_ERV, V_EBF, V_OV = 10, 11, 12, 13, 14, 21
    a("v_and_b32 v%d, 31, v%d" % (V_T, V_LANE))
    a("v_lshlrev_b32 v%d, 2, v%d" % (V_T, V_T))
    a("s_mul_i32 s%d, s%d, 768" % (S_T0, S_G))
    a("s_add_u32 s%d, s%d, %d" % (S_T0, S_T0, SCR_CS))
    a("v_mul_u32_u24 v%d, 384, v%d" % (V_T + 3, V_T + 2))
    a("v_add3_u32 v%d, v%d, v%d, s%d" % (V_ECS, V_T + 3, V_T, S_T0))
    a("s_mul_i32 s%d, s%d, 384" % (S_T1, S_TBI))
    a("s_add_u32 s%d, s%d, s%d" % (S_T0, S_T0, S_T1))
    a("v_add_u32 v%d, s%d, v%d" % (V_ECW, S_T0, V_T))
    a("s_lshl_b32 s%d, s%d, 7" % (S_T0, S_TBI))
    a("s_add_u32 s%d, s%d, %d" % (S_T0, S_T0, SCR_RS))
    a("v_add_u32 v%d, s%d, v%d" % (V_ERS, S_T0, V_T))
    a("v_lshl_add_u32 v%d, v%d, 4, s%d" % (V_ERV, V_T + 2, S_T0))
    a("s_lshl_b32 s%d, s%d, 9" % (S_T0, S_TBI))
    a("s_add_u32 s%d, s%d, %d" % (S_T0, S_T0, SCR_BF))
    a("v_lshl_add_u32 v%d, v%d, 3, s%d" % (V_EBF, V_LANE, S_T0))
    a("v_bfe_u32 v%d, v%d, 4, 1" % (V_T + 1, V_LANE))
    a("v_lshlrev_b32 v%d, 16, v%d" % (V_T + 1, V_T + 1))
    a("v_lshl_add_u32 v%d, v%d, 8, v%d" % (V_T + 1, V_T + 2, V_T + 1))
    a("v_and_b32 v%d, 15, v%d" % (V_T + 2, V_LANE))
    a("v_lshl_add_u32 v%d, v%d, 4, v%d" % (V_OV, V_T + 2, V_T + 1))
    a("s_lshl_b32 s%d, s%d, 1" % (S_T0, S_MEM))
    a("s_add_u32 s%d, s%d, s%d" % (S_T0, S_T0, S_TBI))
    a("s_lshl_b32 s%d, s%d, 10" % (S_T0, S_T0))
    a("s_lshl_b32 s%d, s%d, 1" % (S_T1, S_TEAM))
    a("s_add_u32 s%d, s%d, s%d" % (S_T1, S_T1, S_G))
    a("s_lshl_b32 s%d, s%d, 17" % (S_T1, S_T1))
    a("s_add_u32 s%d, s%d, s%d" % (S_O0, S_T0, S_T1))
    a("s_add_u32 s%d, s%d, 65536" % (S_O1, S_O0))
    a("s_add_u32 s%d, s%d, %d" % (S_O2, S_O0, WS_K))
    a("s_add_u32 s%d, s%d, %d" % (S_O3, S_O1, WS_K))
    a("s_add_u32 s%d, s%d, %d" % (S_O4, S_O0, WS_V))
    VB = V_TMP
    VA = [V_TMP + 4, V_TMP + 8, V_TMP + 12]
    for r in (VB + 2, VB + 3):
        a("v_mov_b32 v%d, 0" % r)
    a("s_waitcnt lgkmcnt(0)")
    srd(a, 20, 8, WS_SIZE)
    a("s_mov_b32 s98, 256")
    a("s_mov_b32 s99, 0x00020000")
    a("s_cmp_lg_u32 s%d, 4" % S_WAVE)
    a("s_cbranch_scc1 L_p1_nz")
    Z = V_TMP + 20
    a("v_and_b32 v%d, 1, v%d" % (Z, V_LANE))
    a("v_bfe_u32 v%d, v%d, 1, 1" % (Z + 1, V_LANE))
    a("v_bfe_u32 v%d, v%d, 2, 1" % (Z + 2, V_LANE))
    a("v_bfe_u32 v%d, v%d, 1, 2" % (Z + 3, V_LANE))
    a("s_lshl_b32 s36, s%d, 10" % S_QB)
    a("s_lshl_b32 s37, s%d, 2" % S_H)
    a("s_add_u32 s36, s36, s37")
    a("v_lshl_add_u32 v%d, v%d, 8, s36" % (Z + 4, Z + 3))
    a("v_lshl_add_u32 v%d, v%d, 7, v%d" % (Z + 4, Z, Z + 4))
    a("s_and_b32 s36, s%d, 3" % S_MEM)
    a("s_lshl_b32 s37, s%d, 2" % S_TEAM)
    a("s_add_u32 s38, s36, s37")
    a("s_lshl_b32 s36, s38, 8")
    a("s_lshr_b32 s37, s%d, 2" % S_MEM)
    a("s_lshl_b32 s39, s37, 4")
    a("s_add_u32 s36, s36, s39")
    a("s_add_u32 s36, s36, %d" % (FL_B - WS_FL))
    a("v_lshl_add_u32 v%d, v%d, 7, s36" % (Z + 5, Z + 1))
    a("v_lshl_add_u32 v%d, v%d, 3, v%d" % (Z + 5, Z, Z + 5))
    a("v_lshl_add_u32 v%d, v%d, 2, v%d" % (Z + 5, Z + 2, Z + 5))
    a("s_lshr_b32 s36, s38, 1")
    a("s_lshl_b32 s36, s36, 8")
    a("s_lshl_b32 s37, s37, 1")
    a("s_and_b32 s39, s%d, 1" % S_MEM)
    a("s_add_u32 s37, s37, s39")
    a("s_lshl_b32 s37, s37, 2")
    a("s_add_u32 s36, s36, s37")
    a("s_add_u32 s36, s36, %d" % (FL_C - WS_FL))
    a("v_lshl_add_u32 v%d, v%d, 7, s36" % (Z + 6, Z + 1))
    a("v_lshl_add_u32 v%d, v%d, 6, v%d" % (Z + 6, Z, Z + 6))
    a("s_lshl_b32 s36, s2, 4")
    a("s_add_u32 s36, s36, %d" % (FL_P - WS_FL))
    a("v_and_b32 v%d, 3, v%d" % (Z + 7, V_LANE))
    a("v_lshl_add_u32 v%d, v%d, 2, s36" % (Z + 7, Z + 7))
    a("v_cmp_ne_u32 vcc, 0, v%d" % (Z + 2))
    a("s_lshl_b32 s36, s%d, 9" % S_TEAM)
    a("s_lshl_b32 s37, s%d, 3" % S_MEM)
    a("s_add_u32 s36, s36, s37")
    a("s_add_u32 s36, s36, %d" % (FL_1 - WS_FL))
    a("v_cndmask_b32 v%d, v%d, v%d, vcc" % (Z + 6, Z + 6, Z + 7))
    a("v_lshl_add_u32 v%d, v%d, 8, s36" % (Z + 7, Z))
    a("v_lshl_add_u32 v%d, v%d, 2, v%d" % (Z + 7, Z + 1, Z + 7))
    a("v_mov_b32 v%d, v%d" % (V_T, Z + 4))
    for k in range(1, 4):
        a("v_cmp_le_u32 vcc, %d, v%d" % (8 * k, V_LANE))
        a("s_nop 1")
        a("v_cndmask_b32 v%d, v%d, v%d, vcc" % (V_T, V_T, Z + 4 + k))
    a("v_mov_b32 v%d, 0" % (V_T + 1))
    a("s_mov_b32 s%d, %d" % (S_T0, WS_FL))
    a("s_mov_b64 exec, 0xffffffff")
    a("buffer_store_dword v%d, v%d, s[20:23], s%d offen sc1" % (V_T + 1, V_T, S_T0))
    a("s_lshl_b32 s%d, s%d, 5" % (S_T0, S_TEAM))
    a("s_add_u32 s%d, s%d, s%d" % (S_T0, S_T0, S_MEM))
    a("v_mov_b32 v%d, s%d" % (V_T + 2, S_XCC))
    a("s_mov_b64 exec, 1")
    a("s_waitcnt vmcnt(0)")
    a("buffer_store_byte v%d, v%d, s[96:99], s%d offen sc1" % (V_T + 2, V_T + 1, S_T0))
    a("s_mov_b64 exec, -1")
    a.label("L_p1_nz")
    cur_base = [0]

    def reads(P):
        st, pos = P // 4, P % 4
        slot = st % NS
        base, imm = (slot // 2) * 2 * SL, (slot % 2) * SL
        out = []
        if base != cur_base[0]:
            d = base - cur_base[0]
            for r in list(range(V_AX, V_AX + 4)) + [V_AW, V_AW + 1]:
                out.append("v_add_u32 v%d, %d, v%d" % (r, d, r) if d > 0 else "v_subrev_u32 v%d, %d, v%d" % (r, -d, r))
            cur_base[0] = base
        b = P % 2
        out.append("ds_read_b128 %s, v%d offset:%d" % (vr(V_X[b]), V_AX + pos, imm))
        for sx in range(3):
            for rd in range(2):
                out.append("ds_read_b64_tr_b16 %s, v%d offset:%d" % (vr(V_W[b][sx] + 2 * rd, 2), V_AW + (pos & 1), imm + (pos & 2) * 6144 + sx * 1024 + rd * 512))
        return out

    a("s_barrier")
    a.ts("k2")
    for l in reads(0):
        a(l)
    for P in range(32):
        st, pos = P // 4, P % 4
        b = P % 2
        a("s_waitcnt lgkmcnt(0)")
        if pos == 3 and P < 31:
            a("s_barrier")
        rd = reads(P + 1) if P < 31 else []
        X = vr(V_X[b])
        c = lambda r, n=16: ("0" if P == 0 else vr(r, n))
        m = []
        if pos % 2 == 0:
            for sx in range(3):
                m.append("v_mfma_f32_16x16x32_bf16 %s, %s, %s, %s" % (vr(V_CS[sx]), vr(V_SEL), vr(V_W[b][sx]), c(V_CS[sx], 4)))
        m.append("v_mfma_f32_32x32x16_bf16 %s, %s, %s, %s" % (vr(V_ACC[0], 16), vr(V_W[b][0]), X, c(V_ACC[0])))
        m.append("v_mfma_f32_32x32x16_bf16 %s, %s, %s, %s" % (vr(V_ACC[1], 16), vr(V_W[b][1]), X, c(V_ACC[1])))
        m.append("v_mfma_f32_32x32x16_bf16 %s, %s, %s, %s" % (vr(V_ACC[2], 16), X, vr(V_W[b][2]), c(V_ACC[2])))
        nfirst = 3 if len(rd) <= 8 else 9
        if P == 31:
            rd = ["ds_write_b32 v%d, v%d offset:%d" % (V_ECW, V_CS[sx], sx * 128) for sx in range(3)]
        if P == 20:
            rd = rd + ["s_lshl_b32 s38, s%d, 5" % S_TEAM, "buffer_load_dword v%d, v%d, s[96:99], s38 offen sc1" % (FV_F, FV_L4)]
        if DIAG == "nocompute" and P not in (20, 31):
            continue
        for l in rd[:nfirst]:
            a(l)
        for l in interleave(m, rd[nfirst:], per=2):
            a(l)
    a.ts("k2")
    a("s_waitcnt lgkmcnt(0)")
    a("s_barrier")
    VC = V_TMP + 16
    V_RS = V_TMP + 22
    V_RQ = V_TMP + 23
    VR = V_TMP + 24
    for sx in range(3):
        a("ds_read_b32 v%d, v%d offset:%d" % (VC + sx, V_ECS, sx * 128))
    a("ds_read_b64 %s, v%d" % (vr(VB, 2), V_EBF))
    a("ds_read_b32 v%d, v%d" % (V_RS, V_ERS))
    for q in range(4):
        a("ds_read_b128 %s, v%d offset:%d" % (vr(VR + 4 * q), V_ERV, q * 32))
    for sx in range(3):
        a("s_waitcnt lgkmcnt(%d)" % (8 - sx))
        split_hi_lo_A(a, VC + sx, VA[sx], V_T + 4, S_MASK)
    a("s_waitcnt lgkmcnt(4)")
    a("v_mul_f32 v%d, 0x%x, v%d" % (V_RQ, f32bits(0.25 * math.log2(math.e)), V_RS))
    a("v_mfma_f32_32x32x16_bf16 %s, %s, %s, %s" % (vr(V_ACC[0], 16), vr(VA[0]), vr(VB), vr(V_ACC[0], 16)))
    a("v_mfma_f32_32x32x16_bf16 %s, %s, %s, %s" % (vr(V_ACC[1], 16), vr(VA[1]), vr(VB), vr(V_ACC[1], 16)))
    a("v_mfma_f32_32x32x16_bf16 %s, %s, %s, %s" % (vr(V_ACC[2], 16), vr(VB), vr(VA[2]), vr(V_ACC[2], 16)))
    team_check(a, "c", FV_L4, FV_F, preissued=True)
    VO = V_X[0]
    k = 0
    stores = []
    for blk, sc, soffs in ((1, V_RS, (S_O2, S_O3)), (0, V_RQ, (S_O0, S_O1))):
        for half in range(2):
            o = VO + 4 * k
            k += 1
            for i in range(8):
                r = V_ACC[blk] + 8 * half + i
                a("v_mul_f32 v%d, v%d, v%d" % (r, sc, r))
            for i in range(4):
                r = V_ACC[blk] + 8 * half + 2 * i
                a("v_cvt_pk_bf16_f32 v%d, v%d, v%d" % (o + i, r, r + 1))
            stores.append("buffer_store_dwordx4 %s, v%d, s[20:23], s%d offen" % (vr(o), V_L16, soffs[half]))
        hstore(a, "p1%d" % blk, stores)
        stores = []
    a("s_waitcnt lgkmcnt(0)")
    for half in range(2):
        o = VO + 4 * k
        k += 1
        for i in range(8):
            r = V_ACC[2] + 8 * half + i
            a("v_mul_f32 v%d, v%d, v%d" % (r, VR + 8 * half + i, r))
        for i in range(4):
            r = V_ACC[2] + 8 * half + 2 * i
            a("v_cvt_pk_bf16_f32 v%d, v%d, v%d" % (o + i, r, r + 1))
        stores.append("buffer_store_dwordx4 %s, v%d, s[20:23], s%d offen offset:%d" % (vr(o), V_OV, S_O4, half * 512))
    hstore(a, "p1v", stores)
    a("s_lshl_b32 s%d, s%d, 9" % (T_A, S_TEAM))
    a("s_lshl_b32 s%d, s%d, 8" % (T_B, S_G))
    a("s_add_u32 s%d, s%d, s%d" % (T_A, T_A, T_B))
    a("s_lshl_b32 s%d, s%d, 1" % (T_B, S_MEM))
    a("s_add_u32 s%d, s%d, s%d" % (T_B, T_B, S_TBI))
    a("s_lshl_b32 s%d, s%d, 2" % (T_B, T_B))
    a("s_add_u32 s%d, s%d, s%d" % (T_A, T_A, T_B))
    a("s_add_u32 s%d, s%d, %d" % (T_A, T_A, FL_1))
    a("s_waitcnt vmcnt(0)")
    set_flag(a, T_A, V_T, "f1")
    a.label("L_p1_done")


def gen_f(a):
    name = NAME + "_kernel"
    kernel_begin(a, name)
    S_WAVE, S_H, S_QB, S_T0, S_T1, S_T2, S_T3 = 40, 41, 42, 43, 44, 45, 46
    S_ITER, S_SYNC, S_PASS, S_NT = 47, 48, 49, 50
    S_TASK, S_STG, S_DST0, S_DST1, S_TYPE = 51, 52, 53, 54, 55
    S_VMASK = 56
    S_CS = 58
    S_KB, S_W1K, S_CH = 59, 60, 61
    S_PE, S_PO, S_PS = 36, 37, 38
    V_LANE, V_L16, V_T = 1, 2, 3
    V_KA, V_VA = 10, 11
    V_Q = 12
    V_K = [16, 20]
    V_V = [24, 32]
    V_P = 40
    V_CM = 48
    V_S = [64, 80]
    V_O = 96
    V_MAX = 112
    V_PK = 113
    V_PD = 114
    V_SEL = 116
    V_PCS = [120, 124]
    STG = 131072
    a("s_cmp_ge_u32 s2, 256")
    a("s_cbranch_scc1 L_f_end")
    a.ts("k2")
    pass
    a("s_load_dwordx2 s[8:9], s[0:1], %d" % ARG_WS)
    a("s_load_dwordx2 s[4:5], s[0:1], %d" % ARG_WO)
    a("s_load_dwordx4 s[24:27], s[0:1], %d" % ARG_WG)
    a("s_load_dwordx2 s[6:7], s[0:1], %d" % ARG_WD)
    a("s_load_dwordx2 s[10:11], s[0:1], %d" % ARG_X)
    a("s_load_dwordx2 s[16:17], s[0:1], %d" % ARG_OUT)
    a("s_load_dwordx2 s[100:101], s[0:1], %d" % ARG_WQKV)
    a("s_load_dwordx2 s[96:97], s[0:1], %d" % ARG_DBG)
    a("v_lshrrev_b32 v%d, 6, v0" % V_T)
    a("v_and_b32 v%d, 63, v0" % V_LANE)
    a("v_readfirstlane_b32 s%d, v%d" % (S_WAVE, V_T))
    a("v_lshlrev_b32 v%d, 4, v%d" % (V_L16, V_LANE))
    a("s_lshr_b32 s%d, s2, 3" % S_MEM)
    a("s_and_b32 s%d, s2, 7" % S_TEAM)
    if AMAP:
        a("s_lshr_b32 s%d, s2, 3" % S_H)
        a("s_and_b32 s%d, s2, 7" % S_QB)
    else:
        a("s_and_b32 s%d, s2, 7" % S_H)
        a("s_lshl_b32 s%d, s%d, 2" % (S_H, S_H))
        a("s_lshr_b32 s%d, s2, 6" % S_T0)
        a("s_add_u32 s%d, s%d, s%d" % (S_H, S_H, S_T0))
        a("s_lshr_b32 s%d, s2, 3" % S_QB)
        a("s_and_b32 s%d, s%d, 7" % (S_QB, S_QB))
    a("s_lshr_b32 s%d, s%d, 2" % (S_T0, S_WAVE))
    a("s_lshl_b32 s%d, s%d, 8" % (S_T0, S_T0))
    a("v_xor_b32 v%d, s%d, v%d" % (FV_LX, S_T0, V_L16))
    a("v_lshlrev_b32 v%d, 2, v%d" % (FV_L4, V_LANE))
    a("v_mov_b32 v%d, 0" % (FV_F + 3))
    a("s_getreg_b32 s%d, hwreg(HW_REG_XCC_ID)" % S_XCC)
    a("s_and_b32 s%d, s%d, 15" % (S_XCC, S_XCC))
    a("s_add_u32 s%d, s%d, 1" % (S_XCC, S_XCC))
    phase1(a, locals())
    a("s_lshl_b32 s%d, s%d, 16" % (S_KB, S_H))
    a("s_lshl_b32 s%d, s%d, 10" % (S_W1K, S_WAVE))
    a("s_add_u32 s%d, s%d, s%d" % (S_KB, S_KB, S_W1K))
    a("s_lshl_b32 s%d, s%d, 13" % (S_CH, S_QB))
    a("s_add_u32 s%d, s%d, s%d" % (S_T3, S_KB, S_CH))
    a("s_add_u32 s%d, s%d, %d" % (S_KB, S_KB, WS_K))
    if not K2_ROT:
        a("s_mov_b32 s%d, 0" % S_CH)
    a("s_mov_b32 s39, s%d" % S_T3)

    def kv_dma(c):
        return [["s_add_u32 s%d, s%d, s%d" % (S_T3, S_KB, S_CH),
                 "s_add_u32 m0, s%d, %d" % (S_W1K, c * 8192),
                 "s_add_u32 s%d, s%d, 8192" % (S_CH, S_CH),
                 "buffer_load_dwordx4 v%d, s[20:23], s%d offen sc1 lds" % (V_L16, S_T3)],
                ["s_add_u32 s%d, s%d, %d" % (S_T3, S_T3, WS_V - WS_K),
                 "s_add_u32 m0, s%d, %d" % (S_W1K, 65536 + c * 8192),
                 "s_and_b32 s%d, s%d, 0xffff" % (S_CH, S_CH),
                 "buffer_load_dwordx4 v%d, s[20:23], s%d offen sc1 lds" % (V_L16, S_T3)]]

    a("s_mov_b32 s%d, 0" % S_TYPE)
    a("s_cmp_lt_u32 s%d, 4" % S_WAVE)
    a("s_cbranch_scc1 L_f_nopack")
    a("s_lshl_b32 s%d, s2, 2" % S_TASK)
    a("s_add_u32 s%d, s%d, s%d" % (S_TASK, S_TASK, S_WAVE))
    a("s_sub_u32 s%d, s%d, 4" % (S_TASK, S_TASK))
    a("s_cmp_ge_u32 s%d, 736" % S_TASK)
    a("s_cbranch_scc1 L_f_nopack")
    a("s_lshl_b32 s%d, s%d, 13" % (S_STG, S_WAVE))
    a("s_add_u32 s%d, s%d, %d" % (S_STG, S_STG, STG - 4 * 8192))
    a("v_lshrrev_b32 v%d, 2, v%d" % (V_T, V_LANE))
    a("v_and_b32 v%d, 3, v%d" % (V_T + 1, V_LANE))
    a("s_cmp_ge_u32 s%d, 448" % S_TASK)
    a("s_cbranch_scc1 L_f_packn")
    a("s_mov_b32 s%d, 1" % S_TYPE)
    srd(a, 28, 24, 512 * 3584)
    srd(a, 32, 26, 512 * 3584)
    a("v_mul_u32_u24 v%d, 3584, v%d" % (V_T, V_T))
    a("v_lshl_add_u32 v%d, v%d, 4, v%d" % (V_PD, V_T + 1, V_T))
    a("s_and_b32 s%d, s%d, 7" % (S_T0, S_TASK))
    a("s_lshr_b32 s%d, s%d, 3" % (S_T1, S_TASK))
    a("s_mul_i32 s%d, s%d, %d" % (S_PE, S_T0, 64 * 3584))
    a("s_lshl_b32 s%d, s%d, 6" % (S_T2, S_T1))
    a("s_add_u32 s%d, s%d, s%d" % (S_PE, S_PE, S_T2))
    a("s_mov_b32 s%d, s%d" % (S_PO, S_PE))
    a("s_mov_b32 s%d, %d" % (S_PS, 16 * 3584))
    for hb, sd in ((0, S_DST0), (1, S_DST1)):
        a("s_lshl_b32 s%d, s%d, 1" % (S_T2, S_T1))
        if hb:
            a("s_add_u32 s%d, s%d, 1" % (S_T2, S_T2))
        a("s_mul_i32 s%d, s%d, 9363" % (S_CS, S_T2))
        a("s_lshr_b32 s%d, s%d, 16" % (S_CS, S_CS))
        a("s_mul_i32 s%d, s%d, 7" % (sd, S_CS))
        a("s_sub_u32 s%d, s%d, s%d" % (sd, S_T2, sd))
        a("s_mul_i32 s%d, s%d, %d" % (S_CS, S_CS, 32 * 7))
        a("s_add_u32 s%d, s%d, s%d" % (sd, sd, S_CS))
        a("s_mul_i32 s%d, s%d, 28" % (S_CS, S_T0))
        a("s_add_u32 s%d, s%d, s%d" % (sd, sd, S_CS))
        a("s_lshl_b32 s%d, s%d, 10" % (sd, sd))
        a("s_add_u32 s%d, s%d, %d" % (sd, sd, WS_GU))
    a("s_lshl_b32 s%d, s%d, 11" % (S_CS, S_T1))
    a("s_lshr_b32 s%d, s%d, 2" % (S_T2, S_T0))
    a("s_lshl_b32 s%d, s%d, 9" % (S_T2, S_T2))
    a("s_add_u32 s%d, s%d, s%d" % (S_CS, S_CS, S_T2))
    a("s_and_b32 s%d, s%d, 3" % (S_T2, S_T0))
    a("s_lshl_b32 s%d, s%d, 2" % (S_T2, S_T2))
    a("s_add_u32 s%d, s%d, s%d" % (S_CS, S_CS, S_T2))
    a("s_add_u32 s%d, s%d, %d" % (S_CS, S_CS, WS_CS))
    a("s_branch L_f_nopack")
    a.label("L_f_packn")
    a("s_mov_b32 s%d, 2" % S_TYPE)
    a("v_lshlrev_b32 v%d, 10, v%d" % (V_T, V_T))
    a("v_lshl_add_u32 v%d, v%d, 4, v%d" % (V_PD, V_T + 1, V_T))
    a("s_cmp_ge_u32 s%d, 512" % S_TASK)
    a("s_cbranch_scc1 L_f_packd")
    srd(a, 28, 4, 512 * 1024)
    srd(a, 32, 4, 512 * 1024)
    a("s_sub_u32 s%d, s%d, 448" % (S_T0, S_TASK))
    a("s_lshr_b32 s%d, s%d, 2" % (S_T1, S_T0))
    a("s_and_b32 s%d, s%d, 3" % (S_T0, S_T0))
    a("s_lshl_b32 s%d, s%d, 15" % (S_DST0, S_T1))
    a("s_add_u32 s%d, s%d, %d" % (S_DST0, S_DST0, WS_WO))
    a("s_branch L_f_packc")
    a.label("L_f_packd")
    srd(a, 28, 6, 1792 * 1024)
    srd(a, 32, 6, 1792 * 1024)
    a("s_sub_u32 s%d, s%d, 512" % (S_T0, S_TASK))
    a("s_mul_i32 s%d, s%d, 4682" % (S_T1, S_T0))
    a("s_lshr_b32 s%d, s%d, 16" % (S_T1, S_T1))
    a("s_mul_i32 s%d, s%d, 14" % (S_T2, S_T1))
    a("s_sub_u32 s%d, s%d, s%d" % (S_T0, S_T0, S_T2))
    a("s_mul_i32 s%d, s%d, %d" % (S_DST0, S_T1, 112 * 1024))
    a("s_add_u32 s%d, s%d, %d" % (S_DST0, S_DST0, WS_WD))
    a.label("L_f_packc")
    a("s_lshl_b32 s%d, s%d, 13" % (S_T2, S_T0))
    a("s_add_u32 s%d, s%d, s%d" % (S_DST0, S_DST0, S_T2))
    a("s_lshl_b32 s%d, s%d, 17" % (S_PE, S_T0))
    a("s_lshl_b32 s%d, s%d, 6" % (S_T2, S_T1))
    a("s_add_u32 s%d, s%d, s%d" % (S_PE, S_PE, S_T2))
    a("s_add_u32 s%d, s%d, 16384" % (S_PO, S_PE))
    a("s_mov_b32 s%d, 32768" % S_PS)
    a.label("L_f_nopack")
    a("s_mov_b32 s%d, 0x0000ffff" % S_VMASK)
    a("s_mov_b32 s%d, 0x0000ffff" % (S_VMASK + 1))
    a("v_and_b32 v%d, 27, v%d" % (V_T, V_LANE))
    a("v_cmp_eq_u32 vcc, 16, v%d" % V_T)
    a("v_mov_b32 v%d, 0x%x" % (V_T + 1, ONES_BF16))
    a("s_nop 1")
    a("v_cndmask_b32 v%d, 0, v%d, vcc" % (V_V[0], V_T + 1))
    for i in range(1, 16):
        a("v_mov_b32 v%d, v%d" % (V_V[0] + i, V_V[0]))
    a("s_mov_b32 s%d, 7" % S_SYNC)
    a("s_mov_b32 s%d, 0" % S_PASS)
    a("s_mov_b32 s%d, 1" % S_NT)
    a("s_setprio 3")
    a("s_barrier")
    a.ts("k2")
    a("buffer_load_dwordx4 %s, v%d, s[20:23], s39 offen sc1" % (vr(V_Q), V_L16))
    for c in range(2):
        for g in kv_dma(c):
            for l in g:
                a(l)
    a("s_waitcnt vmcnt(2)")
    pass
    a("s_barrier")
    a.ts("k2")
    pass
    a.label("L_f_maxpass")
    a("v_mov_b32 v%d, 0xff800000" % V_MAX)
    a("v_mov_b32 v%d, v%d" % (V_KA, V_L16))
    a.label("L_f_mloop")
    a("ds_read_b128 %s, v%d" % (vr(V_K[0]), V_KA))
    a("v_add_u32 v%d, 1024, v%d" % (V_KA, V_KA))
    a("s_waitcnt lgkmcnt(0)")
    a("v_mfma_f32_32x32x16_bf16 %s, %s, %s, 0" % (vr(V_S[0], 16), vr(V_K[0]), vr(V_Q)))
    a("s_nop 15")
    for i in range(8):
        a("v_max3_f32 v%d, v%d, v%d, v%d" % (V_MAX, V_S[0] + 2 * i, V_S[0] + 2 * i + 1, V_MAX))
    a("s_sub_u32 s%d, s%d, 1" % (S_NT, S_NT))
    a("s_cmp_lg_u32 s%d, 0" % S_NT)
    a("s_cbranch_scc1 L_f_mloop")
    a("v_mov_b32 v%d, v%d" % (V_KA, V_L16))
    a("v_lshrrev_b32 v%d, 5, v%d" % (V_T, V_LANE))
    a("v_lshlrev_b32 v%d, 8, v%d" % (V_T, V_T))
    a("v_and_b32 v%d, 15, v%d" % (V_T + 1, V_LANE))
    a("v_lshl_add_u32 v%d, v%d, 4, v%d" % (V_VA, V_T + 1, V_T))
    a("v_add_u32 v%d, 65536, v%d" % (V_VA, V_VA))
    a("ds_read_b128 %s, v%d" % (vr(V_K[0]), V_KA))
    a("ds_read_b128 %s, v%d offset:1024" % (vr(V_K[1]), V_KA))
    a("s_mov_b64 exec, s[%d:%d]" % (S_VMASK, S_VMASK + 1))
    a("ds_read_b128 %s, v%d" % (vr(V_V[0]), V_VA))
    a("ds_read_b128 %s, v%d offset:512" % (vr(V_V[0] + 4), V_VA))
    a("s_mov_b64 exec, -1")
    a("v_mov_b32 v%d, v%d" % (V_T, V_MAX))
    a("s_nop 1")
    a("v_permlane32_swap_b32 v%d, v%d" % (V_MAX, V_T))
    a("s_nop 1")
    a("v_max_f32 v%d, v%d, v%d" % (V_MAX, V_MAX, V_T))
    for i in range(16):
        a("v_sub_f32 v%d, 0, v%d" % (V_CM + i, V_MAX))
    a("s_waitcnt lgkmcnt(0)")
    a("s_nop 0")
    a("v_mfma_f32_32x32x16_bf16 %s, %s, %s, %s" % (vr(V_S[0], 16), vr(V_K[0]), vr(V_Q), vr(V_CM, 16)))
    for i in range(16):
        a("v_mov_b32 v%d, 0" % (V_O + i))
    for i in range(4):
        a("v_mov_b32 v%d, 0" % (V_P + 4 + i))
    a("s_mov_b32 s%d, 8" % S_ITER)
    a("s_cmp_lg_u32 s%d, 0" % S_PASS)
    a("s_cbranch_scc1 L_f_loop")

    def body(peeled):
        for t in range(8):
            cur, nxt = t % 2, (t + 1) % 2
            x1, x2 = [], []
            if peeled:
                if t < 6:
                    x1, x2 = kv_dma(t + 2)
                if t == 6:
                    a("s_waitcnt vmcnt(12)")
                    a("s_barrier")
                if t >= 6:
                    lab = "L_f_np%d" % t
                    x1 = ["s_cmp_eq_u32 s%d, 0" % S_TYPE, "s_cbranch_scc1 %s" % lab]
                    for i in range(4 * (t - 6), 4 * (t - 6) + 4):
                        x1 += ["s_add_u32 m0, s%d, %d" % (S_STG, i * 1024), "s_nop 0",
                               "buffer_load_dwordx4 v%d, s[%d:%d], s%d offen lds" % (V_PD, 28 + 4 * (i % 2), 31 + 4 * (i % 2), S_PO if i % 2 else S_PE),
                               "s_add_u32 s%d, s%d, s%d" % ((S_PO, S_PO, S_PS) if i % 2 else (S_PE, S_PE, S_PS))]
                    x1 += [lab + ":"]
            else:
                if t == 0:
                    for k, r in enumerate((5, 2, 1)):
                        x1 += ["s_cmp_lg_u32 s%d, %d" % (S_ITER, r), "s_cbranch_scc1 L_f_pp%d" % k, "s_setprio %d" % (2 - k), "L_f_pp%d:" % k]
                if t == 6:
                    a("s_cmp_eq_u32 s%d, s%d" % (S_ITER, S_SYNC))
                    a("s_cbranch_scc1 L_f_event")
                    a.label("L_f_syncret")
            S = V_S[cur]
            e = lambda i: "v_exp_f32 v%d, v%d" % (S + i, S + i)
            c = lambda i: "v_cvt_pk_bf16_f32 v%d, v%d, v%d" % (V_P + i, S + 2 * i, S + 2 * i + 1)
            pv = lambda b, h: "v_mfma_f32_32x32x16_bf16 %s, %s, %s, %s" % (vr(V_O, 16), vr(V_V[b] + 4 * h), vr(V_P + 4 * h), vr(V_O, 16))
            qk = "v_mfma_f32_32x32x16_bf16 %s, %s, %s, %s" % (vr(V_S[nxt], 16), vr(V_K[nxt]), vr(V_Q), vr(V_CM, 16))
            rdk = "ds_read_b128 %s, v%d offset:%d" % (vr(V_K[cur]), V_KA, (t + 2) * 1024)
            rdv = ["s_mov_b64 exec, s[%d:%d]" % (S_VMASK, S_VMASK + 1),
                   "ds_read_b128 %s, v%d offset:%d" % (vr(V_V[nxt]), V_VA, (t + 1) * 1024),
                   "ds_read_b128 %s, v%d offset:%d" % (vr(V_V[nxt] + 4), V_VA, (t + 1) * 1024 + 512),
                   "s_mov_b64 exec, -1"]
            seq = [e(0), e(1), pv(nxt, 1), e(2), "s_waitcnt lgkmcnt(0)", rdk, e(3)] + rdv + [c(0), e(4), e(5), c(1), e(6), e(7), qk, c(2), e(8)] + x1 + [e(9), c(3),
                   e(10), e(11), c(4), e(12), e(13), pv(cur, 0), c(5), e(14)] + x2 + [e(15), c(6)]
            if t == 7:
                seq += ["v_add_u32 v%d, 8192, v%d" % (V_KA, V_KA), "v_add_u32 v%d, 8192, v%d" % (V_VA, V_VA),
                        "s_sub_u32 s%d, s%d, 1" % (S_ITER, S_ITER), "s_cmp_lg_u32 s%d, 0" % S_ITER]
            seq += [c(7)]
            for l in seq:
                if l.endswith(":"):
                    a.label(l[:-1])
                else:
                    a(l)

    body(True)
    a.raw(".p2align 6")
    a.label("L_f_loop")
    body(False)
    a("s_cbranch_scc1 L_f_loop")
    a("s_nop 1")
    a("v_mfma_f32_32x32x16_bf16 %s, %s, %s, %s" % (vr(V_O, 16), vr(V_V[1] + 4), vr(V_P + 4), vr(V_O, 16)))
    a("s_waitcnt lgkmcnt(0)")
    a("s_lshl_b32 s%d, s%d, 3" % (S_T0, S_QB))
    a("s_add_u32 s%d, s%d, s%d" % (S_T0, S_T0, S_WAVE))
    a("s_lshl_b32 s%d, s%d, 5" % (S_T0, S_T0))
    a("s_add_u32 s%d, s%d, s%d" % (S_T0, S_T0, S_H))
    a("s_lshl_b32 s%d, s%d, 10" % (S_T0, S_T0))
    a("s_add_u32 s%d, s%d, %d" % (S_T0, S_T0, WS_O))
    a("s_nop 7")
    a("v_mul_f32 v%d, 0, v%d" % (V_T, V_O))
    for i in range(1, 8):
        a("v_fmac_f32 v%d, 0, v%d" % (V_T, V_O + i))
    a("v_add_f32 v%d, v%d, v%d" % (V_T, V_T, V_O + 8))
    a("v_cmp_gt_f32 vcc, 0x%x, v%d" % (f32bits(2.0 ** 100), V_T))
    a("v_rcp_f32 v%d, v%d" % (V_T + 1, V_O + 8))
    a("s_cmp_lg_u32 s%d, 0" % S_PASS)
    a("s_cbranch_scc1 L_f_fin")
    a("s_cmp_eq_u64 vcc, exec")
    a("s_cbranch_scc1 L_f_fin")
    a("s_mov_b32 s%d, 1" % S_PASS)
    a("s_mov_b32 s%d, 64" % S_NT)
    a("s_branch L_f_maxpass")
    a.label("L_f_fin")
    for i in range(8):
        a("v_mul_f32 v%d, v%d, v%d" % (V_O + i, V_T + 1, V_O + i))
    for i in range(4):
        a("v_cvt_pk_bf16_f32 v%d, v%d, v%d" % (V_P + i, V_O + 2 * i, V_O + 2 * i + 1))
    if AMAP:
        hstore(a, "o", ["buffer_store_dwordx4 %s, v%d, s[20:23], s%d offen" % (vr(V_P), V_L16, S_T0)])
    else:
        a("buffer_store_dwordx4 %s, v%d, s[20:23], s%d offen sc1" % (vr(V_P), V_L16, S_T0))
    fused_tail(a, locals())
    a.label("L_f_end")
    a("s_endpgm")
    fused_events(a, locals())
    a.label("L_f_sync")
    a("s_mov_b32 s%d, 5" % S_SYNC)
    a("s_waitcnt vmcnt(0)")
    a("s_barrier")
    a("s_cmp_eq_u32 s%d, 0" % S_TYPE)
    a("s_cbranch_scc1 L_f_syncret")
    a("v_bfe_u32 v%d, v%d, 2, 2" % (V_T, V_LANE))
    a("v_lshrrev_b32 v%d, 5, v%d" % (V_T + 1, V_LANE))
    a("v_lshl_add_u32 v%d, v%d, 2, v%d" % (V_T, V_T + 1, V_T))
    a("v_lshlrev_b32 v%d, 6, v%d" % (V_T, V_T))
    a("v_and_b32 v%d, 3, v%d" % (V_T + 1, V_LANE))
    a("v_lshl_add_u32 v%d, v%d, 3, v%d" % (V_T, V_T + 1, V_T))
    a("v_add_u32 v%d, s%d, v%d" % (V_T, S_STG, V_T))
    a("v_bfe_u32 v%d, v%d, 4, 1" % (V_T + 1, V_LANE))
    FB = [128 + 4 * i for i in range(8)]
    a("s_cmp_eq_u32 s%d, 2" % S_TYPE)
    a("s_cbranch_scc1 L_f_pk2")
    a("v_lshl_add_u32 v%d, v%d, 10, v%d" % (V_PK, V_T + 1, V_T))
    for ks in range(4):
        for hb in range(2):
            for rd in range(2):
                a("ds_read_b64_tr_b16 %s, v%d offset:%d" % (vr(FB[ks * 2 + hb] + 2 * rd, 2), V_PK, ks * 2048 + hb * 32 + rd * 512))
    make_sel(a, V_LANE, V_SEL, V_T + 2)
    a("v_and_b32 v%d, 31, v%d" % (V_T, V_LANE))
    a("v_lshlrev_b32 v%d, 4, v%d" % (V_T, V_T))
    a("s_waitcnt lgkmcnt(0)")
    for ks in range(4):
        for hb in range(2):
            a("v_mfma_f32_16x16x32_bf16 %s, %s, %s, %s" % (vr(V_PCS[hb]), vr(V_SEL), vr(FB[ks * 2 + hb]), "0" if ks == 0 else vr(V_PCS[hb])))
            a("buffer_store_dwordx4 %s, v%d, s[20:23], s%d offen sc1" % (vr(FB[ks * 2 + hb]), V_L16, (S_DST0, S_DST1)[hb]))
        a("s_add_u32 s%d, s%d, 7168" % (S_DST0, S_DST0))
        a("s_add_u32 s%d, s%d, 7168" % (S_DST1, S_DST1))
    a("s_nop 7")
    a("buffer_store_dword v%d, v%d, s[20:23], s%d offen sc1" % (V_PCS[0], V_T, S_CS))
    a("buffer_store_dword v%d, v%d, s[20:23], s%d offen offset:1024 sc1" % (V_PCS[1], V_T, S_CS))
    a("s_branch L_f_syncret")
    a.label("L_f_pk2")
    a("v_lshl_add_u32 v%d, v%d, 5, v%d" % (V_PK, V_T + 1, V_T))
    a("s_add_u32 s%d, s%d, 4096" % (S_DST1, S_DST0))
    for f in range(8):
        for rd in range(2):
            a("ds_read_b64_tr_b16 %s, v%d offset:%d" % (vr(FB[f] + 2 * rd, 2), V_PK, f * 1024 + rd * 512))
    a("s_waitcnt lgkmcnt(0)")
    for f in range(8):
        a("buffer_store_dwordx4 %s, v%d, s[20:23], s%d offen offset:%d sc1" % (vr(FB[f]), V_L16, S_DST0 if f < 4 else S_DST1, (f % 4) * 1024))
    a("s_branch L_f_syncret")
    return name, 256, 0, (256, 512, 163840)


def gen_k35(a, which):
    name = "k3_wo_kernel" if which == 3 else "k5_down_kernel"
    L = "L_k%d_" % which
    kernel_begin(a, name)
    NS = 8 if which == 3 else 28
    STEPS = 32 if which == 3 else 112
    WIN = 8 if which == 3 else 14
    A_BASE = WS_O if which == 3 else WS_A
    W_BASE = WS_WO if which == 3 else WS_WD
    S_WAVE, S_RB, S_CG, S_T0, S_T1 = 24, 25, 26, 27, 28
    S_A = [30, 31]
    S_W = [32, 33]
    S_TB, S_NB = 34, 35
    V_LANE, V_L16, V_T = 1, 2, 3
    V_RES = 12
    V_ACC = [32, 48, 64, 80]
    V_RD = 96
    a("s_cmp_ge_u32 s2, 256")
    a("s_cbranch_scc1 %send" % L)
    a.ts("k%d" % which)
    a("s_load_dwordx2 s[8:9], s[0:1], %d" % ARG_WS)
    a("s_load_dwordx2 s[4:5], s[0:1], %d" % (ARG_X if which == 3 else ARG_OUT))
    a("v_lshrrev_b32 v%d, 6, v0" % V_T)
    a("v_and_b32 v%d, 63, v0" % V_LANE)
    a("v_readfirstlane_b32 s%d, v%d" % (S_WAVE, V_T))
    a("v_lshlrev_b32 v%d, 4, v%d" % (V_L16, V_LANE))
    a("s_and_b32 s%d, s2, 7" % S_RB)
    a("s_lshl_b32 s%d, s%d, 2" % (S_RB, S_RB))
    a("s_lshr_b32 s%d, s2, 3" % S_T0)
    a("s_and_b32 s%d, s%d, 3" % (S_T1, S_T0))
    a("s_add_u32 s%d, s%d, s%d" % (S_RB, S_RB, S_T1))
    a("s_lshr_b32 s%d, s%d, 2" % (S_CG, S_T0))
    a("s_lshr_b32 s%d, s%d, 1" % (S_T0, S_WAVE))
    a("s_lshl_b32 s%d, s%d, 1" % (S_TB, S_RB))
    a("s_add_u32 s%d, s%d, s%d" % (S_TB, S_TB, S_T0))
    a("s_and_b32 s%d, s%d, 1" % (S_T0, S_WAVE))
    a("s_lshl_b32 s%d, s%d, 1" % (S_NB, S_CG))
    a("s_add_u32 s%d, s%d, s%d" % (S_NB, S_NB, S_T0))
    a("s_mul_i32 s%d, s%d, %d" % (S_T1, S_WAVE, NS * 1024))
    for i in range(2):
        a("s_xor_b32 s%d, s%d, %d" % (S_T0, S_TB, i))
        a("s_mul_i32 s%d, s%d, %d" % (S_A[i], S_T0, STEPS * 1024))
        a("s_add_u32 s%d, s%d, s%d" % (S_A[i], S_A[i], S_T1))
        a("s_add_u32 s%d, s%d, %d" % (S_A[i], S_A[i], A_BASE))
        a("s_xor_b32 s%d, s%d, %d" % (S_T0, S_NB, i))
        a("s_mul_i32 s%d, s%d, %d" % (S_W[i], S_T0, STEPS * 1024))
        a("s_add_u32 s%d, s%d, s%d" % (S_W[i], S_W[i], S_T1))
        a("s_add_u32 s%d, s%d, %d" % (S_W[i], S_W[i], W_BASE))
    a("s_waitcnt lgkmcnt(0)")
    srd(a, 20, 8, WS_SIZE)
    srd(a, 12, 4, 2048 * 1024)

    def frag(p, kind, i):
        return (p % WIN) * 16 + kind * 8 + i * 4

    def loads(p):
        out = []
        if p > 0 and p % 4 == 0:
            for s in S_A + S_W:
                out.append("s_add_u32 s%d, s%d, 4096" % (s, s))
        off = (p % 4) * 1024
        for i in range(2):
            out.append("buffer_load_dwordx4 %s, v%d, s[20:23], s%d offen offset:%d" % (ar(frag(p, 0, i)), V_L16, S_A[i], off))
            out.append("buffer_load_dwordx4 %s, v%d, s[20:23], s%d offen offset:%d" % (ar(frag(p, 1, i)), V_L16, S_W[i], off))
        return out

    for p in range(WIN):
        for l in loads(p):
            a(l)
    a("v_and_b32 v%d, 31, v%d" % (V_T, V_LANE))
    a("v_lshlrev_b32 v%d, 10, v%d" % (V_T, V_T))
    a("v_lshrrev_b32 v%d, 5, v%d" % (V_T + 1, V_LANE))
    a("v_lshl_add_u32 v%d, v%d, 3, v%d" % (V_T, V_T + 1, V_T))
    a("s_lshl_b32 s36, s%d, 15" % S_TB)
    a("s_lshl_b32 s%d, s%d, 6" % (S_T0, S_NB))
    a("s_add_u32 s36, s36, s%d" % S_T0)
    a("s_lshl_b32 s37, s%d, 5" % S_TB)
    a("s_lshl_b32 s%d, s%d, 1" % (S_T0, S_NB))
    a("s_add_u32 s37, s37, s%d" % S_T0)
    a("s_lshl_b32 s37, s37, 10")
    a("s_add_u32 s37, s37, %d" % WS_H)
    a.ts("k%d" % which)
    issued = WIN
    NRES = 4 if which == 3 else 2
    res_done = False
    for p in range(NS):
        younger = 4 * (issued - p - 1) + (NRES if res_done else 0)
        a("s_waitcnt vmcnt(%d)" % younger)
        for ti in range(2):
            for ni in range(2):
                acc = V_ACC[ti * 2 + ni]
                a("v_mfma_f32_32x32x16_bf16 %s, %s, %s, %s" % (vr(acc, 16), ar(frag(p, 1, ni)), ar(frag(p, 0, ti)), "0" if p == 0 else vr(acc, 16)))
        if issued < NS:
            for l in loads(issued):
                a(l)
            issued += 1
        elif not res_done:
            if which == 3:
                for q in range(4):
                    a("buffer_load_dwordx2 %s, v%d, s[12:15], s36 offen offset:%d" % (vr(V_RES + 2 * q, 2), V_T, q * 16))
            else:
                for q in range(2):
                    a("buffer_load_dwordx4 %s, v%d, s[20:23], s37 offen offset:%d" % (vr(V_RES + 4 * q), V_L16, q * 1024))
            res_done = True
    a.ts("k%d" % which)
    a("s_nop 7")
    for t in range(1, 4):
        a("s_xor_b32 s%d, s%d, %d" % (S_T0, S_WAVE, t))
        a("s_mul_i32 s%d, s%d, 12288" % (S_T0, S_T0))
        a("v_add_u32 v%d, s%d, v%d" % (V_T + 1 + t, S_T0, V_L16))
    a("s_nop 3")
    for t in range(1, 4):
        for q in range(4):
            a("ds_write_b128 v%d, %s offset:%d" % (V_T + 1 + t, vr(V_ACC[t] + 4 * q), (t - 1) * 4096 + q * 1024))
    a("s_mul_i32 s%d, s%d, 12288" % (S_T0, S_WAVE))
    a("v_add_u32 v%d, s%d, v%d" % (V_T + 1, S_T0, V_L16))
    a("s_waitcnt lgkmcnt(0)")
    a("s_barrier")
    for t in range(3):
        for q in range(4):
            a("ds_read_b128 %s, v%d offset:%d" % (vr(V_RD + 16 * t + 4 * q), V_T + 1, t * 4096 + q * 1024))
    A0 = V_ACC[0]
    U = V_ACC[1]
    a("s_mov_b32 s38, 0xffff0000")
    a("s_waitcnt vmcnt(0)")
    for d in range(8):
        a("v_lshlrev_b32 v%d, 16, v%d" % (U + 2 * d, V_RES + d))
        a("v_and_b32 v%d, s38, v%d" % (U + 2 * d + 1, V_RES + d))
    for i in range(16):
        a("v_add_f32 v%d, v%d, v%d" % (A0 + i, A0 + i, U + i))
    for t in range(3):
        a("s_waitcnt lgkmcnt(%d)" % (8 - 4 * t))
        for i in range(16):
            a("v_add_f32 v%d, v%d, v%d" % (A0 + i, A0 + i, V_RD + 16 * t + i))
    O = V_ACC[2]
    for i in range(8):
        a("v_cvt_pk_bf16_f32 v%d, v%d, v%d" % (O + i, A0 + 2 * i, A0 + 2 * i + 1))
    if which == 3:
        for q in range(2):
            a("buffer_store_dwordx4 %s, v%d, s[20:23], s37 offen offset:%d" % (vr(O + 4 * q), V_L16, q * 1024))
        for d in range(8):
            a("v_lshlrev_b32 v%d, 16, v%d" % (U + 2 * d, O + d))
            a("v_and_b32 v%d, s38, v%d" % (U + 2 * d + 1, O + d))
        S1, S2 = V_RD, V_RD + 1
        a("v_add_f32 v%d, v%d, v%d" % (S1, U, U + 1))
        a("v_mul_f32 v%d, v%d, v%d" % (S2, U, U))
        a("v_fmac_f32 v%d, v%d, v%d" % (S2, U + 1, U + 1))
        for i in range(2, 16):
            a("v_add_f32 v%d, v%d, v%d" % (S1, S1, U + i))
            a("v_fmac_f32 v%d, v%d, v%d" % (S2, U + i, U + i))
        sum_halves(a, S1, V_RD + 2)
        sum_halves(a, S2, V_RD + 3)
        a("s_lshl_b32 s%d, s%d, 4" % (S_T0, S_TB))
        a("s_add_u32 s%d, s%d, s%d" % (S_T0, S_T0, S_NB))
        a("s_lshl_b32 s%d, s%d, 8" % (S_T0, S_T0))
        a("s_add_u32 s%d, s%d, %d" % (S_T0, S_T0, WS_ST))
        a("v_and_b32 v%d, 31, v%d" % (V_T, V_LANE))
        a("v_lshlrev_b32 v%d, 3, v%d" % (V_T, V_T))
        a("buffer_store_dwordx2 %s, v%d, s[20:23], s%d offen" % (vr(S1, 2), V_T, S_T0))
    else:
        for q in range(4):
            a("buffer_store_dwordx2 %s, v%d, s[12:15], s36 offen offset:%d" % (vr(O + 2 * q, 2), V_T, q * 16))
    a.ts_flush("k%d" % which, S_WAVE, V_T)
    a.label(L + "end")
    a("s_endpgm")
    return name, 144, WIN * 16, (256, 256, 49152)


def gen_k4(a):
    name = "k4_glu_kernel"
    kernel_begin(a, name)
    SL4, NS4 = 45056, 3
    S_WAVE, S_RB, S_CG, S_KC, S_SH, S_SW, S_T0, S_T1, S_MASK, S_M0 = 24, 25, 26, 27, 28, 29, 30, 31, 32, 33
    S_TB, S_ROLE, S_M0H = 34, 42, 35
    V_LANE, V_L16, V_T = 1, 2, 3
    V_AW, V_AH = 12, 13
    V_ST = 16
    V_CSL = 32
    V_H = [60, 244]
    V_W = [64, 92]
    V_ACC = [120 + 16 * b for b in range(7)]
    V_TMP = 232
    a("s_cmp_ge_u32 s2, 256")
    a("s_cbranch_scc1 L_k4_end")
    a.ts("k4")
    a("s_load_dwordx2 s[8:9], s[0:1], %d" % ARG_WS)
    a("v_lshrrev_b32 v%d, 6, v0" % V_T)
    a("v_and_b32 v%d, 63, v0" % V_LANE)
    a("v_readfirstlane_b32 s%d, v%d" % (S_ROLE, V_T))
    a("v_lshlrev_b32 v%d, 4, v%d" % (V_L16, V_LANE))
    a("s_and_b32 s3, s2, 7")
    a("s_lshr_b32 s%d, s2, 3" % S_T0)
    a("s_lshr_b32 s%d, s3, 2" % S_RB)
    a("s_lshl_b32 s%d, s%d, 3" % (S_RB, S_RB))
    a("s_and_b32 s%d, s%d, 7" % (S_T1, S_T0))
    a("s_add_u32 s%d, s%d, s%d" % (S_RB, S_RB, S_T1))
    a("s_and_b32 s%d, s3, 3" % S_CG)
    a("s_lshl_b32 s%d, s%d, 2" % (S_CG, S_CG))
    a("s_lshr_b32 s%d, s%d, 3" % (S_T1, S_T0))
    a("s_add_u32 s%d, s%d, s%d" % (S_CG, S_CG, S_T1))
    a("s_and_b32 s%d, s%d, 3" % (S_WAVE, S_ROLE))
    a("s_lshl_b32 s%d, s%d, 2" % (S_TB, S_RB))
    a("s_add_u32 s%d, s%d, s%d" % (S_TB, S_TB, S_WAVE))
    a("s_lshl_b32 s%d, s%d, 12" % (S_M0H, S_WAVE))
    a("s_add_u32 s%d, s%d, 28672" % (S_M0H, S_M0H))
    a("s_cmp_ge_u32 s%d, 4" % S_ROLE)
    a("s_cbranch_scc1 L_k4_compute")
    if K4_ROT:
        a("s_add_u32 s%d, s%d, s%d" % (S_KC, S_RB, S_CG))
        a("s_and_b32 s%d, s%d, 7" % (S_KC, S_KC))
    else:
        a("s_mov_b32 s%d, 0" % S_KC)
    a("s_lshl_b32 s%d, s%d, 15" % (S_SH, S_TB))
    a("s_add_u32 s%d, s%d, %d" % (S_SH, S_SH, WS_H))
    a("s_mul_i32 s%d, s%d, 7168" % (S_M0, S_WAVE))
    a("s_mul_i32 s%d, s%d, %d" % (S_SW, S_CG, 32 * 7 * 1024))
    a("s_add_u32 s%d, s%d, s%d" % (S_SW, S_SW, S_M0))
    a("s_add_u32 s%d, s%d, %d" % (S_SW, S_SW, WS_GU))
    S_OH, S_OW, S_SLOT, S_CNT = 38, 39, 40, 41
    a("s_mov_b32 s%d, 0" % S_SLOT)
    a("s_mov_b32 s%d, 0" % S_CNT)
    a("s_waitcnt lgkmcnt(0)")
    srd(a, 20, 8, WS_SIZE)
    a.label("L_k4_ld")
    a("s_lshl_b32 s%d, s%d, 12" % (S_OH, S_KC))
    a("s_add_u32 s%d, s%d, s%d" % (S_OH, S_OH, S_SH))
    a("s_add_u32 m0, s%d, s%d" % (S_M0H, S_SLOT))
    a("s_mul_i32 s%d, s%d, %d" % (S_OW, S_KC, SLOT))
    for q in range(4):
        a("buffer_load_dwordx4 v%d, s[20:23], s%d offen offset:%d lds" % (V_L16, S_OH, q * 1024))
    a("s_add_u32 m0, s%d, s%d" % (S_M0, S_SLOT))
    a("s_add_u32 s%d, s%d, s%d" % (S_OW, S_OW, S_SW))
    for q in range(4):
        a("buffer_load_dwordx4 v%d, s[20:23], s%d offen offset:%d lds" % (V_L16, S_OW, q * 1024))
    a("s_add_u32 m0, m0, 4096")
    a("s_add_u32 s%d, s%d, 4096" % (S_OW, S_OW))
    for q in range(3):
        a("buffer_load_dwordx4 v%d, s[20:23], s%d offen offset:%d lds" % (V_L16, S_OW, q * 1024))
    a("s_add_u32 s%d, s%d, 1" % (S_KC, S_KC))
    a("s_and_b32 s%d, s%d, 7" % (S_KC, S_KC))
    a("s_add_u32 s%d, s%d, %d" % (S_SLOT, S_SLOT, SL4))
    a("s_cmp_eq_u32 s%d, %d" % (S_SLOT, NS4 * SL4))
    a("s_cselect_b32 s%d, 0, s%d" % (S_SLOT, S_SLOT))
    a("s_add_u32 s%d, s%d, 1" % (S_CNT, S_CNT))
    a("s_cmp_lt_u32 s%d, 2" % S_CNT)
    a("s_cbranch_scc1 L_k4_ld")
    a("s_waitcnt vmcnt(11)")
    a("s_barrier")
    a("s_cmp_lt_u32 s%d, 8" % S_CNT)
    a("s_cbranch_scc1 L_k4_ld")
    a("s_waitcnt vmcnt(0)")
    a("s_barrier")
    a("s_endpgm")
    a.label("L_k4_compute")
    a("s_mov_b32 s%d, 0xffff0000" % S_MASK)
    a("v_mov_b32 v%d, v%d" % (V_AW, V_L16))
    a("v_add_u32 v%d, s%d, v%d" % (V_AH, S_M0H, V_L16))
    a("v_and_b32 v%d, 31, v%d" % (V_T, V_LANE))
    a("v_lshlrev_b32 v%d, 3, v%d" % (V_T, V_T))
    a("v_lshrrev_b32 v%d, 5, v%d" % (V_T + 1, V_LANE))
    a("v_lshl_add_u32 v%d, v%d, 11, v%d" % (V_T, V_T + 1, V_T))
    a("s_waitcnt lgkmcnt(0)")
    srd(a, 20, 8, WS_SIZE)
    cur_base = [0]

    def reads(P):
        st, pos = P // 4, P % 4
        base = (st % NS4) * SL4
        out = []
        if base != cur_base[0]:
            d = base - cur_base[0]
            for r in (V_AW, V_AH):
                out.append("v_add_u32 v%d, %d, v%d" % (r, d, r) if d > 0 else "v_subrev_u32 v%d, %d, v%d" % (r, -d, r))
            cur_base[0] = base
        b = P % 2
        out.append("ds_read_b128 %s, v%d offset:%d" % (vr(V_H[b]), V_AH, pos * 1024))
        for blk in range(7):
            out.append("ds_read_b128 %s, v%d offset:%d" % (vr(V_W[b] + 4 * blk), V_AW, (pos * 7 + blk) * 1024))
        return out

    extra = {}
    g = ["s_lshl_b32 s%d, s%d, 12" % (S_T0, S_TB), "s_add_u32 s%d, s%d, %d" % (S_T0, S_T0, WS_ST)]
    for i in range(8):
        g.append("buffer_load_dwordx2 %s, v%d, s[20:23], s%d offen offset:%d" % (vr(V_ST + 2 * i, 2), V_T, S_T0, i * 256))
    extra[8], extra[9], extra[10] = g[:4], g[4:7], g[7:]
    g = ["s_mul_i32 s%d, s%d, 7168" % (S_T0, S_CG), "s_add_u32 s%d, s%d, %d" % (S_T0, S_T0, WS_CS), "s_add_u32 s%d, s%d, 4096" % (S_T1, S_T0)]
    for blk in range(7):
        g.append("buffer_load_dwordx4 %s, v%d, s[20:23], s%d offen offset:%d" % (vr(V_CSL + 4 * blk), V_L16, S_T0 if blk < 4 else S_T1, (blk % 4) * 1024))
    extra[12], extra[13], extra[14] = g[:5], g[5:8], g[8:]
    a.ts("k4")
    a("s_barrier")
    a.ts("k4")
    for l in reads(0):
        a(l)
    for P in range(32):
        st, pos = P // 4, P % 4
        b = P % 2
        a("s_waitcnt lgkmcnt(0)")
        if pos == 3 and P < 31:
            a("s_barrier")
        rd = reads(P + 1) if P < 31 else []
        m = []
        for blk in range(7):
            m.append("v_mfma_f32_32x32x16_bf16 %s, %s, %s, %s" % (vr(V_ACC[blk], 16), vr(V_W[b] + 4 * blk), vr(V_H[b]), "0" if P == 0 else vr(V_ACC[blk], 16)))
        for l in interleave(m, rd + extra.get(P, []), per=2):
            a(l)
    a.ts("k4")
    a("s_waitcnt vmcnt(0)")
    S1, S2 = V_T + 2, V_T + 3
    a("v_add_f32 v%d, v%d, v%d" % (S1, V_ST, V_ST + 2))
    a("v_add_f32 v%d, v%d, v%d" % (S2, V_ST + 1, V_ST + 3))
    for i in range(2, 8):
        a("v_add_f32 v%d, v%d, v%d" % (S1, S1, V_ST + 2 * i))
        a("v_add_f32 v%d, v%d, v%d" % (S2, S2, V_ST + 2 * i + 1))
    sum_halves(a, S1, V_T + 4)
    sum_halves(a, S2, V_T + 4)
    V_MU, V_VAR, V_RS, V_C1, V_C2 = V_T + 4, V_T + 5, V_T + 6, V_T + 7, V_T + 8
    a("v_mul_f32 v%d, 0x%x, v%d" % (V_MU, f32bits(1.0 / 512), S1))
    a("v_mul_f32 v%d, 0x%x, v%d" % (V_VAR, f32bits(1.0 / 512), S2))
    a("v_fma_f32 v%d, -v%d, v%d, v%d" % (V_VAR, V_MU, V_MU, V_VAR))
    a("v_max_f32 v%d, 0, v%d" % (V_VAR, V_VAR))
    a("v_add_f32 v%d, 0x%x, v%d" % (V_VAR, f32bits(1e-5), V_VAR))
    a("v_rsq_f32 v%d, v%d" % (V_RS, V_VAR))
    a("v_sub_f32 v%d, 0, v%d" % (V_MU, V_MU))
    VB = V_ST
    split_hi_lo_B(a, V_MU, VB, V_T, S_MASK)
    c1 = -2.0 * math.sqrt(2.0 / math.pi) * math.log2(math.e)
    a("v_mul_f32 v%d, 0x%x, v%d" % (V_C1, f32bits(c1), V_RS))
    a("v_mul_f32 v%d, v%d, v%d" % (V_C2, V_RS, V_RS))
    a("v_mul_f32 v%d, v%d, v%d" % (V_C2, V_C2, V_C1))
    a("v_mul_f32 v%d, 0x%x, v%d" % (V_C2, f32bits(0.044715), V_C2))
    for blk in range(7):
        c = V_CSL + 4 * blk
        a("v_add_f32 v%d, v%d, v%d" % (c, c, c + 1))
        a("v_add_f32 v%d, v%d, v%d" % (c + 2, c + 2, c + 3))
        a("v_add_f32 v%d, v%d, v%d" % (c, c, c + 2))
        split_hi_lo_A(a, c, V_W[0] + 4 * blk, V_T, S_MASK)
    a("s_nop 1")
    for blk in range(7):
        a("v_mfma_f32_32x32x16_bf16 %s, %s, %s, %s" % (vr(V_ACC[blk], 16), vr(V_W[0] + 4 * blk), vr(VB), vr(V_ACC[blk], 16)))
    a("s_mul_i32 s%d, s%d, 112" % (S_T0, S_TB))
    a("s_mul_i32 s%d, s%d, 7" % (S_T1, S_CG))
    a("s_add_u32 s%d, s%d, s%d" % (S_T0, S_T0, S_T1))
    a("s_lshl_b32 s%d, s%d, 10" % (S_T0, S_T0))
    a("s_add_u32 s%d, s%d, %d" % (S_T0, S_T0, WS_A))
    a("s_add_u32 s%d, s%d, 4096" % (S_T1, S_T0))
    a("s_nop 7")
    for blk in range(7):
        G = V_ACC[blk]
        Uu = G + 8
        T = V_TMP
        for i in range(8):
            a("v_mul_f32 v%d, v%d, v%d" % (T + i, G + i, G + i))
        for i in range(8):
            a("v_fma_f32 v%d, v%d, v%d, v%d" % (T + i, T + i, V_C2, V_C1))
        for i in range(8):
            a("v_mul_f32 v%d, v%d, v%d" % (T + i, T + i, G + i))
        for i in range(8):
            a("v_exp_f32 v%d, v%d" % (T + i, T + i))
        for i in range(8):
            a("v_mul_f32 v%d, v%d, v%d" % (G + i, G + i, Uu + i))
        for i in range(8):
            a("v_fma_f32 v%d, v%d, v%d, v%d" % (T + i, T + i, V_VAR, V_VAR))
        for i in range(8):
            a("v_rcp_f32 v%d, v%d" % (T + i, T + i))
        a("s_nop 0")
        for i in range(8):
            a("v_mul_f32 v%d, v%d, v%d" % (G + i, G + i, T + i))
        o = V_TMP + 8 + 4 * (blk % 4)
        for i in range(4):
            a("v_cvt_pk_bf16_f32 v%d, v%d, v%d" % (o + i, G + 2 * i, G + 2 * i + 1))
        a("buffer_store_dwordx4 %s, v%d, s[20:23], s%d offen offset:%d" % (vr(o), V_L16, S_T0 if blk < 4 else S_T1, (blk % 4) * 1024))
    a.ts_flush("k4", S_WAVE, V_T)
    a.label("L_k4_end")
    a("s_endpgm")
    return name, 256, 0, (256, 512, NS4 * SL4)


def main():
    hdr = open("cdna_kernels/%s.s.ref" % NAME).read().split("\n")
    head = [l for l in hdr if l.startswith(";") and "@launch" not in l and "Override launch" not in l and "grid=ceil" not in l]
    a = Asm()
    ks = []
    ks.append(gen_f(a))
    out = "\n".join(head) + "\n"
    for name, nv, na, (g, b, lds) in ks:
        out += "; @launch grid=(%d,1,1) block=(%d,1,1) lds=%d\n" % (g, b, lds)
    out += '.amdgcn_target "amdgcn-amd-amdhsa--gfx950"\n.text\n'
    out += a.text()
    out += '.section .rodata,"a"\n'
    for name, nv, na, _ in ks:
        out += kernel_desc(name, nv, na)
    path = sys.argv[1] if len(sys.argv) > 1 else "cdna_kernels/%s.s" % NAME
    open(path, "w").write(out)


if __name__ == "__main__":
    main()
```

```python
import sys, math, struct

NAME = "sequential_preLN__softmax_full_mha__geglu_ffn__prompt"

MB = 1 << 20
WS_Q = 0
WS_K = 2 * MB
WS_V = 4 * MB
WS_O = 6 * MB
WS_H = 8 * MB
WS_A = 10 * MB
WS_WO = 17 * MB
WS_WD = 18 * MB
WS_GU = 20 * MB
WS_CS = 24 * MB
WS_ST = 25 * MB
WS_FL = 27 * MB + 768 * 1024
WS_SIZE = 28 * MB

ARG_X, ARG_WQKV, ARG_WO, ARG_BX, ARG_WG, ARG_WU, ARG_WD, ARG_OUT, ARG_DBG, ARG_WS = [8 * i for i in range(10)]

ONES_BF16 = 0x3F803F80


def f32bits(x):
    return struct.unpack("<I", struct.pack("<f", x))[0]


import os
INSTR = os.environ.get("INSTR", "")
WS_TS = 26 * MB


class Asm:
    def __init__(self):
        self.L = []
        self.nts = 0

    def ts(self, kern):
        if INSTR != kern and not (INSTR == "all" and len(kern) == 2):
            return
        if self.nts == 0:
            self("s_memrealtime s[92:93]")
        self("%s s[%d:%d]" % ("s_memrealtime" if os.environ.get("RT") else "s_memtime", 64 + 2 * self.nts, 65 + 2 * self.nts))
        self.nts += 1

    def ts_flush(self, kern, swave, vtmp):
        if INSTR != kern and not (INSTR == "all" and len(kern) == 2):
            return
        self("%s s[%d:%d]" % ("s_memrealtime" if os.environ.get("RT") else "s_memtime", 64 + 2 * self.nts, 65 + 2 * self.nts))
        self.nts += 1
        self("s_memrealtime s[94:95]")
        self("s_waitcnt lgkmcnt(0)")
        if os.environ.get("DBGOUT"):
            self("s_cmp_lg_u32 s2, %s" % os.environ["DBGOUT"])
            self("s_cbranch_scc1 L_dbg_skip")
            self("s_cmp_lg_u32 s%d, 7" % swave)
            self("s_cbranch_scc1 L_dbg_skip")
            self("v_mov_b32 v%d, 0" % vtmp)
            for i in range(1, self.nts):
                self("s_sub_u32 s3, s%d, s64" % (64 + 2 * i))
                self("s_and_b32 s36, s3, 0x7f")
                self("s_lshr_b32 s3, s3, 7")
                self("s_and_b32 s3, s3, 0x7f")
                self("s_lshl_b32 s3, s3, 8")
                self("s_or_b32 s3, s3, s36")
                self("s_or_b32 s3, s3, 0x80808080")
                self("v_mov_b32 v%d, s3" % (vtmp + 1))
                self("buffer_store_dword v%d, v%d, s[96:99], 0 offen offset:%d" % (vtmp + 1, vtmp, 4 * i))
                self("s_nop 1")
            self.label("L_dbg_skip")
        self("s_lshl_b32 s3, s2, 3")
        self("s_add_u32 s3, s3, s%d" % swave)
        self("s_lshl_b32 s3, s3, 6")
        self("s_add_u32 s3, s3, %d" % (WS_TS + (int(kern[1]) * 131072 if INSTR == "all" else 0)))
        self("v_mov_b32 v%d, 0" % vtmp)
        for i in range(self.nts):
            self("v_mov_b32 v%d, s%d" % (vtmp + 1, 64 + 2 * i))
            self("buffer_store_dword v%d, v%d, s[20:23], s3 offen offset:%d" % (vtmp + 1, vtmp, 4 * i))
            self("s_nop 1")
        for i, r in enumerate((92, 94)):
            self("v_mov_b32 v%d, s%d" % (vtmp + 1, r))
            self("buffer_store_dword v%d, v%d, s[20:23], s3 offen offset:%d" % (vtmp + 1, vtmp, 56 + 4 * i))
            self("s_nop 1")
        self.nts = 0

    def __call__(self, s):
        for line in s.strip("\n").split("\n"):
            self.L.append("    " + line.strip())

    def label(self, s):
        self.L.append(s + ":")

    def raw(self, s):
        self.L.append(s)

    def text(self):
        return "\n".join(self.L) + "\n"


def vr(b, n=4):
    return "v[%d:%d]" % (b, b + n - 1)


def ar(b, n=4):
    return "a[%d:%d]" % (b, b + n - 1)


def srd(a, sbase, sptr, nbytes):
    a("s_mov_b32 s%d, s%d" % (sbase, sptr))
    a("s_mov_b32 s%d, s%d" % (sbase + 1, sptr + 1))
    a("s_mov_b32 s%d, 0x%x" % (sbase + 2, nbytes))
    a("s_mov_b32 s%d, 0x00020000" % (sbase + 3))


def kernel_begin(a, name):
    a.raw(".globl %s" % name)
    a.raw(".p2align 8")
    a.raw(".type %s,@function" % name)
    a.label(name)


def kernel_desc(name, nvgpr, nagpr, nsgpr=102):
    acc = (nvgpr + 3) // 4 * 4
    nfv = acc + nagpr if nagpr else nvgpr
    return """.p2align 6
.amdhsa_kernel %s
  .amdhsa_next_free_vgpr %d
  .amdhsa_next_free_sgpr %d
  .amdhsa_accum_offset %d
  .amdhsa_group_segment_fixed_size 0
  .amdhsa_kernarg_size 80
  .amdhsa_user_sgpr_count 2
  .amdhsa_user_sgpr_kernarg_segment_ptr 1
  .amdhsa_system_sgpr_workgroup_id_x 1
.end_amdhsa_kernel
""" % (name, nfv, nsgpr, acc)


def interleave(main, fill, per=None):
    out = []
    n = len(main)
    fi = 0
    for i, m in enumerate(main):
        out.append(m)
        tgt = (len(fill) * (i + 1) + n - 1) // n if per is None else min(len(fill), per * (i + 1))
        while fi < tgt:
            out.append(fill[fi])
            fi += 1
    out += fill[fi:]
    return out


class Lds:
    def __init__(self, a):
        self.a = a
        self.n = 0
        self.done = 0
        self.idx = {}

    def op(self, text, tag=None):
        self.a(text)
        self.n += 1
        if tag is not None:
            self.idx[tag] = self.n

    def need(self, *tags):
        k = max(self.idx[t] for t in tags)
        if k > self.done:
            w = self.n - k
            assert w <= 15
            self.a("s_waitcnt lgkmcnt(%d)" % w)
            self.done = k

    def drain(self):
        if self.done < self.n:
            self.a("s_waitcnt lgkmcnt(0)")
            self.done = self.n


def make_sel(a, vlane, vsel, vt):
    a("v_lshrrev_b32 v%d, 2, v%d" % (vt, vlane))
    a("v_lshrrev_b32 v%d, 4, v%d" % (vsel, vlane))
    a("v_xor_b32 v%d, v%d, v%d" % (vt, vt, vsel))
    a("v_and_b32 v%d, 1, v%d" % (vt, vt))
    a("v_add_u32 v%d, -1, v%d" % (vt, vt))
    a("v_and_b32 v%d, 0x%x, v%d" % (vsel, ONES_BF16, vt))
    for i in range(1, 4):
        a("v_mov_b32 v%d, v%d" % (vsel + i, vsel))


def split_hi_lo_A(a, vc, vdst, vt, smask):
    a("v_cvt_pk_bf16_f32 v%d, v%d, v%d" % (vt, vc, vc))
    a("v_and_b32 v%d, s%d, v%d" % (vt, smask, vt))
    a("v_sub_f32 v%d, v%d, v%d" % (vt, vc, vt))
    a("v_cvt_pk_bf16_f32 v%d, v%d, v%d" % (vdst, vc, vt))
    a("v_mov_b32 v%d, v%d" % (vdst + 1, vdst))
    a("v_mov_b32 v%d, 0" % (vdst + 2))
    a("v_mov_b32 v%d, 0" % (vdst + 3))


def split_hi_lo_B(a, vm, vdst, vt, smask):
    a("v_cvt_pk_bf16_f32 v%d, v%d, v%d" % (vdst, vm, vm))
    a("v_and_b32 v%d, s%d, v%d" % (vt, smask, vdst))
    a("v_sub_f32 v%d, v%d, v%d" % (vt, vm, vt))
    a("v_cvt_pk_bf16_f32 v%d, v%d, v%d" % (vdst + 1, vt, vt))
    a("v_mov_b32 v%d, 0" % (vdst + 2))
    a("v_mov_b32 v%d, 0" % (vdst + 3))


def sum_halves(a, v, vt):
    a("v_mov_b32 v%d, v%d" % (vt, v))
    a("s_nop 1")
    a("v_permlane32_swap_b32 v%d, v%d" % (v, vt))
    a("s_nop 1")
    a("v_add_f32 v%d, v%d, v%d" % (v, v, vt))


SLOT = 28672
NSLOT = 5
K1_DIST = int(os.environ.get('K1_DIST', 2))
DIAG = os.environ.get('DIAG', '')
K1_ROT = int(os.environ.get('K1_ROT', 1))
K4_ROT = int(os.environ.get('K4_ROT', 0))
K2_ROT = int(os.environ.get('K2_ROT', 0))
K4_DIST = int(os.environ.get('K4_DIST', 2))


def slot_base_adjust(stage):
    slot = stage % NSLOT
    return (slot // 2) * 2 * SLOT, (slot % 2) * SLOT


def gen_k1(a):
    name = "k1_qkv_kernel"
    kernel_begin(a, name)
    NS1 = 4
    LDS_SCR = NS1 * SLOT
    SCR_RS, SCR_BF = LDS_SCR + 1536, LDS_SCR + 2048
    S_WAVE, S_RB, S_CG, S_KC, S_SX, S_SW, S_T0, S_T1, S_MASK, S_M0X, S_M0W = 24, 25, 26, 27, 28, 29, 30, 31, 32, 33, 34
    S_ROLE = 42
    V_LANE = 1
    V_T = 2
    V_DX = 8
    V_DW = 12
    V_AX = 13
    V_AW = 17
    V_SEL = 24
    V_SQ = 28
    V_X = [32, 36]
    V_W = [[40, 44, 48], [52, 56, 60]]
    V_ACC = [64, 80, 96]
    V_TMP = 112
    a("s_cmp_ge_u32 s2, 256")
    a("s_cbranch_scc1 L_k1_end")
    a.ts("k1")
    a("s_load_dwordx4 s[4:7], s[0:1], %d" % ARG_X)
    a("s_load_dwordx2 s[8:9], s[0:1], %d" % ARG_WS)
    a("v_lshrrev_b32 v%d, 6, v0" % V_T)
    a("v_and_b32 v%d, 63, v0" % V_LANE)
    a("v_readfirstlane_b32 s%d, v%d" % (S_ROLE, V_T))
    a("s_and_b32 s3, s2, 7")
    a("s_lshr_b32 s%d, s2, 3" % S_T0)
    a("s_lshr_b32 s%d, s3, 1" % S_RB)
    a("s_lshl_b32 s%d, s%d, 2" % (S_RB, S_RB))
    a("s_and_b32 s%d, s%d, 3" % (S_T1, S_T0))
    a("s_add_u32 s%d, s%d, s%d" % (S_RB, S_RB, S_T1))
    a("s_and_b32 s%d, s3, 1" % S_CG)
    a("s_lshl_b32 s%d, s%d, 3" % (S_CG, S_CG))
    a("s_lshr_b32 s%d, s%d, 2" % (S_T1, S_T0))
    a("s_add_u32 s%d, s%d, s%d" % (S_CG, S_CG, S_T1))
    a("s_and_b32 s%d, s%d, 3" % (S_WAVE, S_ROLE))
    a("s_lshl_b32 s%d, s%d, 12" % (S_M0X, S_WAVE))
    a("s_mul_i32 s%d, s%d, 3072" % (S_M0W, S_WAVE))
    a("s_add_u32 s%d, s%d, 16384" % (S_M0W, S_M0W))
    a("s_mov_b32 s%d, 0xffff0000" % S_MASK)

    def lds_addr_setup(rotate):
        a("v_and_b32 v%d, 31, v%d" % (V_T, V_LANE))
        a("v_and_b32 v%d, 3, v%d" % (V_T + 1, V_LANE))
        a("v_lshrrev_b32 v%d, 2, v%d" % (V_T + 2, V_T))
        a("v_lshlrev_b32 v%d, 7, v%d" % (V_T + 2, V_T + 2))
        a("v_lshl_add_u32 v%d, v%d, 10, v%d" % (V_T + 2, V_T + 1, V_T + 2))
        a("v_add_u32 v%d, s%d, v%d" % (V_T + 2, S_M0X, V_T + 2))
        a("v_lshrrev_b32 v%d, 1, v%d" % (V_T + 3, V_T))
        a("v_and_b32 v%d, 4, v%d" % (V_T + 3, V_T + 3))
        a("v_or_b32 v%d, v%d, v%d" % (V_T + 3, V_T + 3, V_T + 1))
        a("v_lshrrev_b32 v%d, 5, v%d" % (V_T + 4, V_LANE))
        a("v_xor_b32 v%d, v%d, v%d" % (V_T + 3, V_T + 3, V_T + 4))
        a("v_bfe_u32 v%d, v%d, 2, 2" % (V_T + 5, V_LANE))
        a("v_lshl_add_u32 v%d, v%d, 3, v%d" % (V_T + 5, V_T + 4, V_T + 5))
        a("v_lshlrev_b32 v%d, 6, v%d" % (V_T + 5, V_T + 5))
        a("v_bfe_u32 v%d, v%d, 4, 1" % (V_T + 4, V_LANE))
        a("v_lshl_add_u32 v%d, v%d, 5, v%d" % (V_T + 5, V_T + 4, V_T + 5))
        a("v_lshl_add_u32 v%d, v%d, 3, v%d" % (V_T + 5, V_T + 1, V_T + 5))
        for ks in range(4):
            a("v_xor_b32 v%d, %d, v%d" % (V_T + 4, 2 * ks, V_T + 3))
            a("v_lshl_add_u32 v%d, v%d, 4, v%d" % (V_AX + ks, V_T + 4, V_T + 2))

    a("s_cmp_ge_u32 s%d, 8" % S_ROLE)
    a("s_cbranch_scc1 L_k1_stats")
    a("s_cmp_ge_u32 s%d, 4" % S_ROLE)
    a("s_cbranch_scc1 L_k1_compute")
    if K1_ROT:
        a("s_add_u32 s%d, s%d, s%d" % (S_KC, S_RB, S_CG))
        a("s_and_b32 s%d, s%d, 7" % (S_KC, S_KC))
    else:
        a("s_mov_b32 s%d, 0" % S_KC)
    a("v_lshrrev_b32 v%d, 3, v%d" % (V_T, V_LANE))
    a("v_lshlrev_b32 v%d, 12, v%d" % (V_T, V_T))
    a("v_and_b32 v%d, 7, v%d" % (V_T + 1, V_LANE))
    a("v_lshrrev_b32 v%d, 2, v%d" % (V_T + 2, V_LANE))
    a("v_and_b32 v%d, 4, v%d" % (V_T + 2, V_T + 2))
    a("v_xor_b32 v%d, v%d, v%d" % (V_T + 1, V_T + 1, V_T + 2))
    for q in range(4):
        a("v_xor_b32 v%d, %d, v%d" % (V_T + 3, q, V_T + 1))
        a("v_lshl_add_u32 v%d, v%d, 4, v%d" % (V_DX + q, V_T + 3, V_T))
    a("v_lshrrev_b32 v%d, 2, v%d" % (V_T, V_LANE))
    a("v_mul_u32_u24 v%d, 3072, v%d" % (V_T, V_T))
    a("v_and_b32 v%d, 3, v%d" % (V_T + 1, V_LANE))
    a("v_lshl_add_u32 v%d, v%d, 4, v%d" % (V_DW, V_T + 1, V_T))
    a("s_lshl_b32 s%d, s%d, 2" % (S_T0, S_RB))
    a("s_add_u32 s%d, s%d, s%d" % (S_T0, S_T0, S_WAVE))
    a("s_lshl_b32 s%d, s%d, 15" % (S_SX, S_T0))
    a("s_mul_i32 s%d, s%d, %d" % (S_SW, S_WAVE, 16 * 3072))
    a("s_lshl_b32 s%d, s%d, 6" % (S_T1, S_CG))
    a("s_add_u32 s%d, s%d, s%d" % (S_SW, S_SW, S_T1))
    S_OX, S_OW, S_SLOT, S_CNT, S_RD = 38, 39, 40, 41, 43
    a("s_mov_b32 s%d, 0" % S_SLOT)
    a("s_mov_b32 s%d, 0" % S_CNT)
    a("s_waitcnt lgkmcnt(0)")
    srd(a, 12, 4, 2048 * 1024)
    srd(a, 16, 6, 512 * 3072)

    def issue():
        a("s_lshl_b32 s%d, s%d, 7" % (S_OX, S_KC))
        a("s_add_u32 s%d, s%d, s%d" % (S_OX, S_OX, S_SX))
        a("s_add_u32 m0, s%d, s%d" % (S_M0X, S_SLOT))
        a("s_mul_i32 s%d, s%d, %d" % (S_OW, S_KC, 64 * 3072))
        for q in range(4):
            a("buffer_load_dwordx4 v%d, s[12:15], s%d offen offset:%d lds" % (V_DX + q, S_OX, q * 1024))
        a("s_add_u32 m0, s%d, s%d" % (S_M0W, S_SLOT))
        a("s_add_u32 s%d, s%d, s%d" % (S_OW, S_OW, S_SW))
        for sx in range(3):
            a("buffer_load_dwordx4 v%d, s[16:19], s%d offen offset:%d lds" % (V_DW, S_OW, sx * 1024))
        a("s_add_u32 s%d, s%d, 1" % (S_KC, S_KC))
        a("s_and_b32 s%d, s%d, 7" % (S_KC, S_KC))
        a("s_add_u32 s%d, s%d, %d" % (S_SLOT, S_SLOT, SLOT))
        a("s_cmp_eq_u32 s%d, %d" % (S_SLOT, NS1 * SLOT))
        a("s_cselect_b32 s%d, 0, s%d" % (S_SLOT, S_SLOT))

    a.label("L_k1_ld")
    issue()
    a("s_add_u32 s%d, s%d, 1" % (S_CNT, S_CNT))
    a("s_cmp_lt_u32 s%d, %d" % (S_CNT, K1_DIST))
    a("s_cbranch_scc1 L_k1_ld")
    a("s_waitcnt vmcnt(%d)" % (7 * (K1_DIST - 1)))
    a("s_barrier")
    a("s_cmp_lt_u32 s%d, 8" % S_CNT)
    a("s_cbranch_scc1 L_k1_ld")
    for r in range(K1_DIST - 2, -1, -1):
        a("s_waitcnt vmcnt(%d)" % (7 * r))
        a("s_barrier")
    a("s_endpgm")
    a.label("L_k1_stats")
    LX = [64, 68, 72, 76]
    LW = [80, 84, 88]
    L_SX = 92
    L_CS = [96, 100, 104]
    lds_addr_setup(False)
    a("v_add_u32 v%d, s%d, v%d" % (V_AW, S_M0W, V_T + 5))
    make_sel(a, V_LANE, V_SEL, V_T)
    for r in [V_SQ, V_SQ + 1] + list(range(L_SX, L_SX + 16)):
        a("v_mov_b32 v%d, 0" % r)
    a("s_mov_b32 s44, %d" % SLOT)
    a("s_mov_b32 s%d, 0" % S_CNT)
    a.label("L_k1_st")
    a("s_barrier")
    for ks in range(4):
        a("ds_read_b128 %s, v%d" % (vr(LX[ks]), V_AX + ks))
    for sx in range(3):
        for rd in range(2):
            a("ds_read_b64_tr_b16 %s, v%d offset:%d" % (vr(LW[sx] + 2 * rd, 2), V_AW, sx * 1024 + rd * 256))
    a("s_add_u32 s%d, s%d, 1" % (S_CNT, S_CNT))
    a("s_and_b32 s%d, s%d, %d" % (S_T0, S_CNT, NS1 - 1))
    a("s_cmp_eq_u32 s%d, 0" % S_T0)
    a("s_cselect_b32 s%d, %d, s44" % (S_RD, -(NS1 - 1) * SLOT))
    for ks in range(4):
        a("s_waitcnt lgkmcnt(%d)" % (9 - ks))
        a("v_mfma_f32_16x16x32_bf16 %s, %s, %s, %s" % (vr(L_SX), vr(V_SEL), vr(LX[ks]), vr(L_SX)))
        for d in range(4):
            t0, t1 = V_TMP + 2 * (d % 2), V_TMP + 2 * (d % 2) + 1
            a("v_lshlrev_b32 v%d, 16, v%d" % (t0, LX[ks] + d))
            a("v_and_b32 v%d, s%d, v%d" % (t1, S_MASK, LX[ks] + d))
            a("v_fmac_f32 v%d, v%d, v%d" % (V_SQ, t0, t0))
            a("v_fmac_f32 v%d, v%d, v%d" % (V_SQ + 1, t1, t1))
        if ks == 1:
            a("s_waitcnt lgkmcnt(0)")
            for sx in range(3):
                a("v_mfma_f32_16x16x32_bf16 %s, %s, %s, %s" % (vr(L_CS[sx]), vr(V_SEL), vr(LW[sx]), vr(L_CS[sx])))
    for r in list(range(V_AX, V_AX + 4)) + [V_AW]:
        a("v_add_u32 v%d, s%d, v%d" % (r, S_RD, r))
    a("s_cmp_lt_u32 s%d, 8" % S_CNT)
    a("s_cbranch_scc1 L_k1_st")
    a("v_and_b32 v%d, 31, v%d" % (V_T, V_LANE))
    a("v_lshlrev_b32 v%d, 2, v%d" % (V_T, V_T))
    a("s_mul_i32 s%d, s%d, 384" % (S_T0, S_WAVE))
    a("s_add_u32 s%d, s%d, %d" % (S_T0, S_T0, LDS_SCR))
    a("v_add_u32 v%d, s%d, v%d" % (V_T + 1, S_T0, V_T))
    for sx in range(3):
        a("ds_write_b32 v%d, v%d offset:%d" % (V_T + 1, L_CS[sx], sx * 128))
    a("v_add_f32 v%d, v%d, v%d" % (V_SQ, V_SQ, V_SQ + 1))
    sum_halves(a, V_SQ, V_SQ + 1)
    V_MU, V_RS = V_SQ + 2, V_SQ + 3
    a("v_mul_f32 v%d, 0x%x, v%d" % (V_MU, f32bits(1.0 / 512), L_SX))
    a("v_mul_f32 v%d, 0x%x, v%d" % (V_SQ, f32bits(1.0 / 512), V_SQ))
    a("v_fma_f32 v%d, -v%d, v%d, v%d" % (V_SQ, V_MU, V_MU, V_SQ))
    a("v_max_f32 v%d, 0, v%d" % (V_SQ, V_SQ))
    a("v_add_f32 v%d, 0x%x, v%d" % (V_SQ, f32bits(1e-5), V_SQ))
    a("v_rsq_f32 v%d, v%d" % (V_RS, V_SQ))
    a("v_sub_f32 v%d, 0, v%d" % (V_MU, V_MU))
    a("s_lshl_b32 s%d, s%d, 7" % (S_T0, S_WAVE))
    a("s_add_u32 s%d, s%d, %d" % (S_T0, S_T0, SCR_RS))
    a("v_add_u32 v%d, s%d, v%d" % (V_T + 2, S_T0, V_T))
    a("ds_write_b32 v%d, v%d" % (V_T + 2, V_RS))
    split_hi_lo_B(a, V_MU, LX[0], V_T + 4, S_MASK)
    a("s_lshl_b32 s%d, s%d, 9" % (S_T0, S_WAVE))
    a("s_add_u32 s%d, s%d, %d" % (S_T0, S_T0, SCR_BF))
    a("v_lshl_add_u32 v%d, v%d, 3, s%d" % (V_T + 3, V_LANE, S_T0))
    a("ds_write_b64 v%d, %s" % (V_T + 3, vr(LX[0], 2)))
    a("s_waitcnt lgkmcnt(0)")
    a("s_barrier")
    a("s_endpgm")
    a.label("L_k1_compute")
    lds_addr_setup(False)
    a("v_add_u32 v%d, 16384, v%d" % (V_AW, V_T + 5))
    V_ECS, V_ERS, V_ERV, V_EBF, V_OQ, V_OV = 18, 19, 20, 21, 22, 23
    a("v_and_b32 v%d, 31, v%d" % (V_T, V_LANE))
    a("v_lshlrev_b32 v%d, 2, v%d" % (V_T, V_T))
    a("v_lshrrev_b32 v%d, 5, v%d" % (V_T + 2, V_LANE))
    a("v_mul_u32_u24 v%d, 768, v%d" % (V_T + 3, V_T + 2))
    a("v_add_u32 v%d, v%d, v%d" % (V_T + 3, V_T + 3, V_T))
    a("v_add_u32 v%d, %d, v%d" % (V_ECS, LDS_SCR, V_T + 3))
    a("s_lshl_b32 s%d, s%d, 7" % (S_T0, S_WAVE))
    a("s_add_u32 s%d, s%d, %d" % (S_T0, S_T0, SCR_RS))
    a("v_add_u32 v%d, s%d, v%d" % (V_ERS, S_T0, V_T))
    a("v_lshl_add_u32 v%d, v%d, 4, s%d" % (V_ERV, V_T + 2, S_T0))
    a("s_lshl_b32 s%d, s%d, 9" % (S_T0, S_WAVE))
    a("s_add_u32 s%d, s%d, %d" % (S_T0, S_T0, SCR_BF))
    a("v_lshl_add_u32 v%d, v%d, 3, s%d" % (V_EBF, V_LANE, S_T0))
    a("v_lshlrev_b32 v%d, 4, v%d" % (V_OQ, V_LANE))
    a("v_bfe_u32 v%d, v%d, 4, 1" % (V_T + 1, V_LANE))
    a("v_lshlrev_b32 v%d, 16, v%d" % (V_T + 1, V_T + 1))
    a("v_lshl_add_u32 v%d, v%d, 8, v%d" % (V_T + 1, V_T + 2, V_T + 1))
    a("v_and_b32 v%d, 15, v%d" % (V_T + 2, V_LANE))
    a("v_lshl_add_u32 v%d, v%d, 4, v%d" % (V_OV, V_T + 2, V_T + 1))
    a("s_lshl_b32 s%d, s%d, 2" % (S_T0, S_RB))
    a("s_add_u32 s%d, s%d, s%d" % (S_T0, S_T0, S_WAVE))
    a("s_lshl_b32 s%d, s%d, 10" % (S_T0, S_T0))
    a("s_lshl_b32 s%d, s%d, 17" % (S_T1, S_CG))
    a("s_add_u32 s%d, s%d, s%d" % (S_T0, S_T0, S_T1))
    a("s_add_u32 s%d, s%d, 65536" % (S_T1, S_T0))
    a("s_add_u32 s35, s%d, %d" % (S_T0, WS_K))
    a("s_add_u32 s36, s%d, %d" % (S_T1, WS_K))
    a("s_add_u32 s37, s%d, %d" % (S_T0, WS_V))
    VB = V_TMP
    VA = [V_TMP + 4, V_TMP + 8, V_TMP + 12]
    for r in (VB + 2, VB + 3):
        a("v_mov_b32 v%d, 0" % r)
    cur_base = [0]

    def reads(P):
        st, ks = P // 4, P % 4
        slot = st % NS1
        base, imm = (slot // 2) * 2 * SLOT, (slot % 2) * SLOT
        out = []
        if base != cur_base[0]:
            d = base - cur_base[0]
            for r in list(range(V_AX, V_AX + 4)) + [V_AW]:
                out.append("v_add_u32 v%d, %d, v%d" % (r, d, r) if d > 0 else "v_subrev_u32 v%d, %d, v%d" % (r, -d, r))
            cur_base[0] = base
        b = P % 2
        out.append("ds_read_b128 %s, v%d offset:%d" % (vr(V_X[b]), V_AX + ks, imm))
        for sx in range(3):
            for rd in range(2):
                out.append("ds_read_b64_tr_b16 %s, v%d offset:%d" % (vr(V_W[b][sx] + 2 * rd, 2), V_AW, imm + ks * 3072 + sx * 1024 + rd * 256))
        return out

    a("s_waitcnt lgkmcnt(0)")
    srd(a, 20, 8, WS_SIZE)
    a("s_cmp_ge_u32 s2, 4")
    a("s_cbranch_scc1 L_k1_nozero")
    for r in range(4):
        a("v_mov_b32 v%d, 0" % (V_ACC[0] + r))
    a("s_lshl_b32 s3, s2, 2")
    a("s_add_u32 s3, s3, s%d" % S_WAVE)
    a("s_lshl_b32 s3, s3, 10")
    a("s_add_u32 s3, s3, %d" % WS_FL)
    a("buffer_store_dwordx4 %s, v%d, s[20:23], s3 offen" % (vr(V_ACC[0]), V_OQ))
    a.label("L_k1_nozero")
    a.ts("k1")
    a("s_barrier")
    a.ts("k1")
    for l in reads(0):
        a(l)
    for P in range(32):
        st, pos = P // 4, P % 4
        b = P % 2
        a("s_waitcnt lgkmcnt(0)")
        if pos == 3 and P < 31:
            a("s_barrier")
        rd = reads(P + 1) if P < 31 else []
        X = vr(V_X[b])
        c = lambda r, n=16: ("0" if P == 0 else vr(r, n))
        m = []
        m.append("v_mfma_f32_32x32x16_bf16 %s, %s, %s, %s" % (vr(V_ACC[0], 16), vr(V_W[b][0]), X, c(V_ACC[0])))
        m.append("v_mfma_f32_32x32x16_bf16 %s, %s, %s, %s" % (vr(V_ACC[1], 16), vr(V_W[b][1]), X, c(V_ACC[1])))
        m.append("v_mfma_f32_32x32x16_bf16 %s, %s, %s, %s" % (vr(V_ACC[2], 16), X, vr(V_W[b][2]), c(V_ACC[2])))
        nfirst = 3 if len(rd) <= 8 else 8
        for l in rd[:nfirst]:
            a(l)
        for l in interleave(m, rd[nfirst:], per=2):
            a(l)
    a.ts("k1")
    a("s_barrier")
    VC = V_TMP + 16
    V_RS = V_TMP + 22
    V_RQ = V_TMP + 23
    VR = V_TMP + 24
    for sx in range(3):
        a("ds_read2_b32 %s, v%d offset0:%d offset1:%d" % (vr(VC + 2 * sx, 2), V_ECS, sx * 32, sx * 32 + 96))
    a("ds_read_b64 %s, v%d" % (vr(VB, 2), V_EBF))
    a("ds_read_b32 v%d, v%d" % (V_RS, V_ERS))
    for q in range(4):
        a("ds_read_b128 %s, v%d offset:%d" % (vr(VR + 4 * q), V_ERV, q * 32))
    for sx in range(3):
        a("s_waitcnt lgkmcnt(%d)" % (8 - sx))
        a("v_add_f32 v%d, v%d, v%d" % (VC + 2 * sx, VC + 2 * sx, VC + 2 * sx + 1))
        split_hi_lo_A(a, VC + 2 * sx, VA[sx], V_T + 4, S_MASK)
    a("s_waitcnt lgkmcnt(4)")
    a("v_mul_f32 v%d, 0x%x, v%d" % (V_RQ, f32bits(0.25 * math.log2(math.e)), V_RS))
    a("v_mfma_f32_32x32x16_bf16 %s, %s, %s, %s" % (vr(V_ACC[0], 16), vr(VA[0]), vr(VB), vr(V_ACC[0], 16)))
    a("v_mfma_f32_32x32x16_bf16 %s, %s, %s, %s" % (vr(V_ACC[1], 16), vr(VA[1]), vr(VB), vr(V_ACC[1], 16)))
    a("v_mfma_f32_32x32x16_bf16 %s, %s, %s, %s" % (vr(V_ACC[2], 16), vr(VB), vr(VA[2]), vr(V_ACC[2], 16)))
    a("s_nop 9")
    VO = V_X[0]
    k = 0
    for blk, sc, soffs in ((0, V_RQ, (S_T0, S_T1)), (1, V_RS, (35, 36))):
        for half in range(2):
            o = VO + 4 * k
            k += 1
            for i in range(8):
                r = V_ACC[blk] + 8 * half + i
                a("v_mul_f32 v%d, v%d, v%d" % (r, sc, r))
            for i in range(4):
                r = V_ACC[blk] + 8 * half + 2 * i
                a("v_cvt_pk_bf16_f32 v%d, v%d, v%d" % (o + i, r, r + 1))
            a("buffer_store_dwordx4 %s, v%d, s[20:23], s%d offen" % (vr(o), V_OQ, soffs[half]))
    a("s_waitcnt lgkmcnt(0)")
    for half in range(2):
        o = VO + 4 * k
        k += 1
        for i in range(8):
            r = V_ACC[2] + 8 * half + i
            a("v_mul_f32 v%d, v%d, v%d" % (r, VR + 8 * half + i, r))
        for i in range(4):
            r = V_ACC[2] + 8 * half + 2 * i
            a("v_cvt_pk_bf16_f32 v%d, v%d, v%d" % (o + i, r, r + 1))
        a("buffer_store_dwordx4 %s, v%d, s[20:23], s37 offen offset:%d" % (vr(o), V_OV, half * 512))
    a.ts_flush("k1", S_WAVE, V_T)
    a.label("L_k1_end")
    a("s_endpgm")
    return name, 152, 0, (256, 768, LDS_SCR + 4096)


def gen_k2(a):
    name = "k2_attn_kernel"
    kernel_begin(a, name)
    S_WAVE, S_H, S_QB, S_T0, S_T1, S_T2, S_T3 = 40, 41, 42, 43, 44, 45, 46
    S_ITER, S_SYNC, S_PASS, S_NT = 47, 48, 49, 50
    S_TASK, S_STG, S_DST0, S_DST1, S_TYPE = 51, 52, 53, 54, 55
    S_VMASK = 56
    S_CS = 58
    S_KB, S_W1K, S_CH = 59, 60, 61
    S_PE, S_PO, S_PS = 36, 37, 38
    V_LANE, V_L16, V_T = 1, 2, 3
    V_KA, V_VA = 10, 11
    V_Q = 12
    V_K = [16, 20]
    V_V = [24, 32]
    V_P = 40
    V_CM = 48
    V_S = [64, 80]
    V_O = 96
    V_MAX = 112
    V_PK = 113
    V_PD = 114
    V_SEL = 116
    V_PCS = [120, 124]
    STG = 131072
    a("s_cmp_ge_u32 s2, 256")
    a("s_cbranch_scc1 L_k2_end")
    a.ts("k2")
    a.ts("k2b")
    a("s_load_dwordx2 s[8:9], s[0:1], %d" % ARG_WS)
    a("s_load_dwordx2 s[4:5], s[0:1], %d" % ARG_WO)
    a("s_load_dwordx4 s[24:27], s[0:1], %d" % ARG_WG)
    a("s_load_dwordx2 s[6:7], s[0:1], %d" % ARG_WD)
    a("v_lshrrev_b32 v%d, 6, v0" % V_T)
    a("v_and_b32 v%d, 63, v0" % V_LANE)
    a("v_readfirstlane_b32 s%d, v%d" % (S_WAVE, V_T))
    a("v_lshlrev_b32 v%d, 4, v%d" % (V_L16, V_LANE))
    a("s_and_b32 s%d, s2, 7" % S_H)
    a("s_lshl_b32 s%d, s%d, 2" % (S_H, S_H))
    a("s_lshr_b32 s%d, s2, 6" % S_T0)
    a("s_add_u32 s%d, s%d, s%d" % (S_H, S_H, S_T0))
    a("s_lshr_b32 s%d, s2, 3" % S_QB)
    a("s_and_b32 s%d, s%d, 7" % (S_QB, S_QB))
    a("s_lshl_b32 s%d, s%d, 16" % (S_KB, S_H))
    a("s_lshl_b32 s%d, s%d, 10" % (S_W1K, S_WAVE))
    a("s_add_u32 s%d, s%d, s%d" % (S_KB, S_KB, S_W1K))
    a("s_lshl_b32 s%d, s%d, 13" % (S_CH, S_QB))
    a("s_add_u32 s%d, s%d, s%d" % (S_T3, S_KB, S_CH))
    a("s_add_u32 s%d, s%d, %d" % (S_KB, S_KB, WS_K))
    if not K2_ROT:
        a("s_mov_b32 s%d, 0" % S_CH)
    a("s_waitcnt lgkmcnt(0)")
    a.ts("k2b")
    srd(a, 20, 8, WS_SIZE)
    a("buffer_load_dwordx4 %s, v%d, s[20:23], s%d offen" % (vr(V_Q), V_L16, S_T3))
    if INSTR == "k2b":
        a("s_waitcnt vmcnt(0)")
    a.ts("k2b")

    def kv_dma(c):
        return [["s_add_u32 s%d, s%d, s%d" % (S_T3, S_KB, S_CH),
                 "s_add_u32 m0, s%d, %d" % (S_W1K, c * 8192),
                 "s_add_u32 s%d, s%d, 8192" % (S_CH, S_CH),
                 "buffer_load_dwordx4 v%d, s[20:23], s%d offen lds" % (V_L16, S_T3)],
                ["s_add_u32 s%d, s%d, %d" % (S_T3, S_T3, WS_V - WS_K),
                 "s_add_u32 m0, s%d, %d" % (S_W1K, 65536 + c * 8192),
                 "s_and_b32 s%d, s%d, 0xffff" % (S_CH, S_CH),
                 "buffer_load_dwordx4 v%d, s[20:23], s%d offen lds" % (V_L16, S_T3)]]

    for c in range(2):
        for g in kv_dma(c):
            for l in g:
                a(l)
    a("s_mov_b32 s%d, 0" % S_TYPE)
    a("s_cmp_lt_u32 s%d, 4" % S_WAVE)
    a("s_cbranch_scc1 L_k2_nopack")
    a("s_lshl_b32 s%d, s2, 2" % S_TASK)
    a("s_add_u32 s%d, s%d, s%d" % (S_TASK, S_TASK, S_WAVE))
    a("s_sub_u32 s%d, s%d, 4" % (S_TASK, S_TASK))
    a("s_cmp_ge_u32 s%d, 736" % S_TASK)
    a("s_cbranch_scc1 L_k2_nopack")
    a("s_lshl_b32 s%d, s%d, 13" % (S_STG, S_WAVE))
    a("s_add_u32 s%d, s%d, %d" % (S_STG, S_STG, STG - 4 * 8192))
    a("v_lshrrev_b32 v%d, 2, v%d" % (V_T, V_LANE))
    a("v_and_b32 v%d, 3, v%d" % (V_T + 1, V_LANE))
    a("s_cmp_ge_u32 s%d, 448" % S_TASK)
    a("s_cbranch_scc1 L_k2_packn")
    a("s_mov_b32 s%d, 1" % S_TYPE)
    srd(a, 28, 24, 512 * 3584)
    srd(a, 32, 26, 512 * 3584)
    a("v_mul_u32_u24 v%d, 3584, v%d" % (V_T, V_T))
    a("v_lshl_add_u32 v%d, v%d, 4, v%d" % (V_PD, V_T + 1, V_T))
    a("s_and_b32 s%d, s%d, 7" % (S_T0, S_TASK))
    a("s_lshr_b32 s%d, s%d, 3" % (S_T1, S_TASK))
    a("s_mul_i32 s%d, s%d, %d" % (S_PE, S_T0, 64 * 3584))
    a("s_lshl_b32 s%d, s%d, 6" % (S_T2, S_T1))
    a("s_add_u32 s%d, s%d, s%d" % (S_PE, S_PE, S_T2))
    a("s_mov_b32 s%d, s%d" % (S_PO, S_PE))
    a("s_mov_b32 s%d, %d" % (S_PS, 16 * 3584))
    for hb, sd in ((0, S_DST0), (1, S_DST1)):
        a("s_lshl_b32 s%d, s%d, 1" % (S_T2, S_T1))
        if hb:
            a("s_add_u32 s%d, s%d, 1" % (S_T2, S_T2))
        a("s_mul_i32 s%d, s%d, 9363" % (S_CS, S_T2))
        a("s_lshr_b32 s%d, s%d, 16" % (S_CS, S_CS))
        a("s_mul_i32 s%d, s%d, 7" % (sd, S_CS))
        a("s_sub_u32 s%d, s%d, s%d" % (sd, S_T2, sd))
        a("s_mul_i32 s%d, s%d, %d" % (S_CS, S_CS, 32 * 7))
        a("s_add_u32 s%d, s%d, s%d" % (sd, sd, S_CS))
        a("s_mul_i32 s%d, s%d, 28" % (S_CS, S_T0))
        a("s_add_u32 s%d, s%d, s%d" % (sd, sd, S_CS))
        a("s_lshl_b32 s%d, s%d, 10" % (sd, sd))
        a("s_add_u32 s%d, s%d, %d" % (sd, sd, WS_GU))
    a("s_lshl_b32 s%d, s%d, 11" % (S_CS, S_T1))
    a("s_lshr_b32 s%d, s%d, 2" % (S_T2, S_T0))
    a("s_lshl_b32 s%d, s%d, 9" % (S_T2, S_T2))
    a("s_add_u32 s%d, s%d, s%d" % (S_CS, S_CS, S_T2))
    a("s_and_b32 s%d, s%d, 3" % (S_T2, S_T0))
    a("s_lshl_b32 s%d, s%d, 2" % (S_T2, S_T2))
    a("s_add_u32 s%d, s%d, s%d" % (S_CS, S_CS, S_T2))
    a("s_add_u32 s%d, s%d, %d" % (S_CS, S_CS, WS_CS))
    a("s_branch L_k2_nopack")
    a.label("L_k2_packn")
    a("s_mov_b32 s%d, 2" % S_TYPE)
    a("v_lshlrev_b32 v%d, 10, v%d" % (V_T, V_T))
    a("v_lshl_add_u32 v%d, v%d, 4, v%d" % (V_PD, V_T + 1, V_T))
    a("s_cmp_ge_u32 s%d, 512" % S_TASK)
    a("s_cbranch_scc1 L_k2_packd")
    srd(a, 28, 4, 512 * 1024)
    srd(a, 32, 4, 512 * 1024)
    a("s_sub_u32 s%d, s%d, 448" % (S_T0, S_TASK))
    a("s_lshr_b32 s%d, s%d, 2" % (S_T1, S_T0))
    a("s_and_b32 s%d, s%d, 3" % (S_T0, S_T0))
    a("s_lshl_b32 s%d, s%d, 15" % (S_DST0, S_T1))
    a("s_add_u32 s%d, s%d, %d" % (S_DST0, S_DST0, WS_WO))
    a("s_branch L_k2_packc")
    a.label("L_k2_packd")
    srd(a, 28, 6, 1792 * 1024)
    srd(a, 32, 6, 1792 * 1024)
    a("s_sub_u32 s%d, s%d, 512" % (S_T0, S_TASK))
    a("s_mul_i32 s%d, s%d, 4682" % (S_T1, S_T0))
    a("s_lshr_b32 s%d, s%d, 16" % (S_T1, S_T1))
    a("s_mul_i32 s%d, s%d, 14" % (S_T2, S_T1))
    a("s_sub_u32 s%d, s%d, s%d" % (S_T0, S_T0, S_T2))
    a("s_mul_i32 s%d, s%d, %d" % (S_DST0, S_T1, 112 * 1024))
    a("s_add_u32 s%d, s%d, %d" % (S_DST0, S_DST0, WS_WD))
    a.label("L_k2_packc")
    a("s_lshl_b32 s%d, s%d, 13" % (S_T2, S_T0))
    a("s_add_u32 s%d, s%d, s%d" % (S_DST0, S_DST0, S_T2))
    a("s_lshl_b32 s%d, s%d, 17" % (S_PE, S_T0))
    a("s_lshl_b32 s%d, s%d, 6" % (S_T2, S_T1))
    a("s_add_u32 s%d, s%d, s%d" % (S_PE, S_PE, S_T2))
    a("s_add_u32 s%d, s%d, 16384" % (S_PO, S_PE))
    a("s_mov_b32 s%d, 32768" % S_PS)
    a.label("L_k2_nopack")
    a("s_mov_b32 s%d, 0x0000ffff" % S_VMASK)
    a("s_mov_b32 s%d, 0x0000ffff" % (S_VMASK + 1))
    a("v_and_b32 v%d, 27, v%d" % (V_T, V_LANE))
    a("v_cmp_eq_u32 vcc, 16, v%d" % V_T)
    a("v_mov_b32 v%d, 0x%x" % (V_T + 1, ONES_BF16))
    a("s_nop 1")
    a("v_cndmask_b32 v%d, 0, v%d, vcc" % (V_V[0], V_T + 1))
    for i in range(1, 16):
        a("v_mov_b32 v%d, v%d" % (V_V[0] + i, V_V[0]))
    a("s_mov_b32 s%d, 0" % S_SYNC)
    a("s_mov_b32 s%d, 0" % S_PASS)
    a("s_mov_b32 s%d, 1" % S_NT)
    a("s_setprio 3")
    a.ts("k2b")
    a("s_waitcnt vmcnt(2)")
    a.ts("k2b")
    a("s_barrier")
    a.ts("k2")
    a.ts("k2b")
    a.label("L_k2_maxpass")
    a("v_mov_b32 v%d, 0xff800000" % V_MAX)
    a("v_mov_b32 v%d, v%d" % (V_KA, V_L16))
    a.label("L_k2_mloop")
    a("ds_read_b128 %s, v%d" % (vr(V_K[0]), V_KA))
    a("v_add_u32 v%d, 1024, v%d" % (V_KA, V_KA))
    a("s_waitcnt lgkmcnt(0)")
    a("v_mfma_f32_32x32x16_bf16 %s, %s, %s, 0" % (vr(V_S[0], 16), vr(V_K[0]), vr(V_Q)))
    a("s_nop 15")
    for i in range(8):
        a("v_max3_f32 v%d, v%d, v%d, v%d" % (V_MAX, V_S[0] + 2 * i, V_S[0] + 2 * i + 1, V_MAX))
    a("s_sub_u32 s%d, s%d, 1" % (S_NT, S_NT))
    a("s_cmp_lg_u32 s%d, 0" % S_NT)
    a("s_cbranch_scc1 L_k2_mloop")
    a("v_mov_b32 v%d, v%d" % (V_KA, V_L16))
    a("v_lshrrev_b32 v%d, 5, v%d" % (V_T, V_LANE))
    a("v_lshlrev_b32 v%d, 8, v%d" % (V_T, V_T))
    a("v_and_b32 v%d, 15, v%d" % (V_T + 1, V_LANE))
    a("v_lshl_add_u32 v%d, v%d, 4, v%d" % (V_VA, V_T + 1, V_T))
    a("v_add_u32 v%d, 65536, v%d" % (V_VA, V_VA))
    a("ds_read_b128 %s, v%d" % (vr(V_K[0]), V_KA))
    a("ds_read_b128 %s, v%d offset:1024" % (vr(V_K[1]), V_KA))
    a("s_mov_b64 exec, s[%d:%d]" % (S_VMASK, S_VMASK + 1))
    a("ds_read_b128 %s, v%d" % (vr(V_V[0]), V_VA))
    a("ds_read_b128 %s, v%d offset:512" % (vr(V_V[0] + 4), V_VA))
    a("s_mov_b64 exec, -1")
    a("v_mov_b32 v%d, v%d" % (V_T, V_MAX))
    a("s_nop 1")
    a("v_permlane32_swap_b32 v%d, v%d" % (V_MAX, V_T))
    a("s_nop 1")
    a("v_max_f32 v%d, v%d, v%d" % (V_MAX, V_MAX, V_T))
    for i in range(16):
        a("v_sub_f32 v%d, 0, v%d" % (V_CM + i, V_MAX))
    a("s_waitcnt lgkmcnt(0)")
    a("s_nop 0")
    a("v_mfma_f32_32x32x16_bf16 %s, %s, %s, %s" % (vr(V_S[0], 16), vr(V_K[0]), vr(V_Q), vr(V_CM, 16)))
    for i in range(16):
        a("v_mov_b32 v%d, 0" % (V_O + i))
    for i in range(4):
        a("v_mov_b32 v%d, 0" % (V_P + 4 + i))
    a("s_mov_b32 s%d, 8" % S_ITER)
    a.ts("k2")
    a("s_cmp_lg_u32 s%d, 0" % S_PASS)
    a("s_cbranch_scc1 L_k2_loop")

    def body(peeled):
        for t in range(8):
            cur, nxt = t % 2, (t + 1) % 2
            x1, x2 = [], []
            if peeled:
                if t < 6:
                    x1, x2 = kv_dma(t + 2)
                if t == 6:
                    a("s_waitcnt vmcnt(12)")
                    a("s_barrier")
                if t >= 6:
                    lab = "L_k2_np%d" % t
                    x1 = ["s_cmp_eq_u32 s%d, 0" % S_TYPE, "s_cbranch_scc1 %s" % lab]
                    for i in range(4 * (t - 6), 4 * (t - 6) + 4):
                        x1 += ["s_add_u32 m0, s%d, %d" % (S_STG, i * 1024), "s_nop 0",
                               "buffer_load_dwordx4 v%d, s[%d:%d], s%d offen lds" % (V_PD, 28 + 4 * (i % 2), 31 + 4 * (i % 2), S_PO if i % 2 else S_PE),
                               "s_add_u32 s%d, s%d, s%d" % ((S_PO, S_PO, S_PS) if i % 2 else (S_PE, S_PE, S_PS))]
                    x1 += [lab + ":"]
            else:
                if t == 0:
                    for k, r in enumerate((5, 2, 1)):
                        x1 += ["s_cmp_lg_u32 s%d, %d" % (S_ITER, r), "s_cbranch_scc1 L_k2_pp%d" % k, "s_setprio %d" % (2 - k), "L_k2_pp%d:" % k]
                if t == 6:
                    a("s_cmp_eq_u32 s%d, 0" % S_SYNC)
                    a("s_cbranch_scc1 L_k2_sync")
                    a.label("L_k2_syncret")
            S = V_S[cur]
            e = lambda i: "v_exp_f32 v%d, v%d" % (S + i, S + i)
            c = lambda i: "v_cvt_pk_bf16_f32 v%d, v%d, v%d" % (V_P + i, S + 2 * i, S + 2 * i + 1)
            pv = lambda b, h: "v_mfma_f32_32x32x16_bf16 %s, %s, %s, %s" % (vr(V_O, 16), vr(V_V[b] + 4 * h), vr(V_P + 4 * h), vr(V_O, 16))
            qk = "v_mfma_f32_32x32x16_bf16 %s, %s, %s, %s" % (vr(V_S[nxt], 16), vr(V_K[nxt]), vr(V_Q), vr(V_CM, 16))
            rdk = "ds_read_b128 %s, v%d offset:%d" % (vr(V_K[cur]), V_KA, (t + 2) * 1024)
            rdv = ["s_mov_b64 exec, s[%d:%d]" % (S_VMASK, S_VMASK + 1),
                   "ds_read_b128 %s, v%d offset:%d" % (vr(V_V[nxt]), V_VA, (t + 1) * 1024),
                   "ds_read_b128 %s, v%d offset:%d" % (vr(V_V[nxt] + 4), V_VA, (t + 1) * 1024 + 512),
                   "s_mov_b64 exec, -1"]
            seq = [e(0), e(1), pv(nxt, 1), e(2), "s_waitcnt lgkmcnt(0)", rdk, e(3)] + rdv + [c(0), e(4), e(5), c(1), e(6), e(7), qk, c(2), e(8)] + x1 + [e(9), c(3),
                   e(10), e(11), c(4), e(12), e(13), pv(cur, 0), c(5), e(14)] + x2 + [e(15), c(6)]
            if t == 7:
                seq += ["v_add_u32 v%d, 8192, v%d" % (V_KA, V_KA), "v_add_u32 v%d, 8192, v%d" % (V_VA, V_VA),
                        "s_sub_u32 s%d, s%d, 1" % (S_ITER, S_ITER), "s_cmp_lg_u32 s%d, 0" % S_ITER]
            seq += [c(7)]
            for l in seq:
                if l.endswith(":"):
                    a.label(l[:-1])
                else:
                    a(l)

    body(True)
    a.raw(".p2align 6")
    a.label("L_k2_loop")
    body(False)
    a("s_cbranch_scc1 L_k2_loop")
    a.ts("k2")
    a("s_nop 1")
    a("v_mfma_f32_32x32x16_bf16 %s, %s, %s, %s" % (vr(V_O, 16), vr(V_V[1] + 4), vr(V_P + 4), vr(V_O, 16)))
    a("s_waitcnt lgkmcnt(0)")
    a("s_lshl_b32 s%d, s%d, 3" % (S_T0, S_QB))
    a("s_add_u32 s%d, s%d, s%d" % (S_T0, S_T0, S_WAVE))
    a("s_lshl_b32 s%d, s%d, 5" % (S_T0, S_T0))
    a("s_add_u32 s%d, s%d, s%d" % (S_T0, S_T0, S_H))
    a("s_lshl_b32 s%d, s%d, 10" % (S_T0, S_T0))
    a("s_add_u32 s%d, s%d, %d" % (S_T0, S_T0, WS_O))
    a("s_nop 7")
    a("v_mul_f32 v%d, 0, v%d" % (V_T, V_O))
    for i in range(1, 8):
        a("v_fmac_f32 v%d, 0, v%d" % (V_T, V_O + i))
    a("v_add_f32 v%d, v%d, v%d" % (V_T, V_T, V_O + 8))
    a("v_cmp_gt_f32 vcc, 0x%x, v%d" % (f32bits(2.0 ** 100), V_T))
    a("v_rcp_f32 v%d, v%d" % (V_T + 1, V_O + 8))
    a("s_cmp_lg_u32 s%d, 0" % S_PASS)
    a("s_cbranch_scc1 L_k2_fin")
    a("s_cmp_eq_u64 vcc, exec")
    a("s_cbranch_scc1 L_k2_fin")
    a("s_mov_b32 s%d, 1" % S_PASS)
    a("s_mov_b32 s%d, 64" % S_NT)
    a("s_branch L_k2_maxpass")
    a.label("L_k2_fin")
    for i in range(8):
        a("v_mul_f32 v%d, v%d, v%d" % (V_O + i, V_T + 1, V_O + i))
    for i in range(4):
        a("v_cvt_pk_bf16_f32 v%d, v%d, v%d" % (V_P + i, V_O + 2 * i, V_O + 2 * i + 1))
    a("buffer_store_dwordx4 %s, v%d, s[20:23], s%d offen" % (vr(V_P), V_L16, S_T0))
    a.ts_flush("k2", S_WAVE, V_T)
    a.ts_flush("k2b", S_WAVE, V_T)
    a.label("L_k2_end")
    a("s_endpgm")
    a.label("L_k2_sync")
    a("s_mov_b32 s%d, 1" % S_SYNC)
    a("s_waitcnt vmcnt(0)")
    a("s_barrier")
    a("s_cmp_eq_u32 s%d, 0" % S_TYPE)
    a("s_cbranch_scc1 L_k2_syncret")
    a("v_bfe_u32 v%d, v%d, 2, 2" % (V_T, V_LANE))
    a("v_lshrrev_b32 v%d, 5, v%d" % (V_T + 1, V_LANE))
    a("v_lshl_add_u32 v%d, v%d, 2, v%d" % (V_T, V_T + 1, V_T))
    a("v_lshlrev_b32 v%d, 6, v%d" % (V_T, V_T))
    a("v_and_b32 v%d, 3, v%d" % (V_T + 1, V_LANE))
    a("v_lshl_add_u32 v%d, v%d, 3, v%d" % (V_T, V_T + 1, V_T))
    a("v_add_u32 v%d, s%d, v%d" % (V_T, S_STG, V_T))
    a("v_bfe_u32 v%d, v%d, 4, 1" % (V_T + 1, V_LANE))
    FB = [128 + 4 * i for i in range(8)]
    a("s_cmp_eq_u32 s%d, 2" % S_TYPE)
    a("s_cbranch_scc1 L_k2_pk2")
    a("v_lshl_add_u32 v%d, v%d, 10, v%d" % (V_PK, V_T + 1, V_T))
    for ks in range(4):
        for hb in range(2):
            for rd in range(2):
                a("ds_read_b64_tr_b16 %s, v%d offset:%d" % (vr(FB[ks * 2 + hb] + 2 * rd, 2), V_PK, ks * 2048 + hb * 32 + rd * 512))
    make_sel(a, V_LANE, V_SEL, V_T + 2)
    a("v_and_b32 v%d, 31, v%d" % (V_T, V_LANE))
    a("v_lshlrev_b32 v%d, 4, v%d" % (V_T, V_T))
    a("s_waitcnt lgkmcnt(0)")
    for ks in range(4):
        for hb in range(2):
            a("v_mfma_f32_16x16x32_bf16 %s, %s, %s, %s" % (vr(V_PCS[hb]), vr(V_SEL), vr(FB[ks * 2 + hb]), "0" if ks == 0 else vr(V_PCS[hb])))
            a("buffer_store_dwordx4 %s, v%d, s[20:23], s%d offen" % (vr(FB[ks * 2 + hb]), V_L16, (S_DST0, S_DST1)[hb]))
        a("s_add_u32 s%d, s%d, 7168" % (S_DST0, S_DST0))
        a("s_add_u32 s%d, s%d, 7168" % (S_DST1, S_DST1))
    a("s_nop 7")
    a("buffer_store_dword v%d, v%d, s[20:23], s%d offen" % (V_PCS[0], V_T, S_CS))
    a("buffer_store_dword v%d, v%d, s[20:23], s%d offen offset:1024" % (V_PCS[1], V_T, S_CS))
    a("s_branch L_k2_syncret")
    a.label("L_k2_pk2")
    a("v_lshl_add_u32 v%d, v%d, 5, v%d" % (V_PK, V_T + 1, V_T))
    a("s_add_u32 s%d, s%d, 4096" % (S_DST1, S_DST0))
    for f in range(8):
        for rd in range(2):
            a("ds_read_b64_tr_b16 %s, v%d offset:%d" % (vr(FB[f] + 2 * rd, 2), V_PK, f * 1024 + rd * 512))
    a("s_waitcnt lgkmcnt(0)")
    for f in range(8):
        a("buffer_store_dwordx4 %s, v%d, s[20:23], s%d offen offset:%d" % (vr(FB[f]), V_L16, S_DST0 if f < 4 else S_DST1, (f % 4) * 1024))
    a("s_branch L_k2_syncret")
    return name, 160, 0, (256, 512, 163840)


FL_A, FL_B, FL_C, FL_P = WS_FL, WS_FL + 8192, WS_FL + 16384, WS_FL + 20480
S_XCC, S_FAST = 62, 63
T_XCD, T_R2, T_RB64, T_RB128, T_CGF, T_TBO, T_NBO, T_HALF, T_A, T_B, T_C, T_D, T_CNT, T_M = 24, 25, 26, 27, 28, 29, 30, 31, 32, 33, 34, 35, 36, 37
FV_WO = 160
FV_XR = 224
FV_LX = 228
FV_L4 = 229
FV_F = 230
LSC = os.environ.get('LSC', ' sc1')
AMAP = int(os.environ.get('AMAP', 0))
S_TEAM, S_MEM = 18, 19
FASTPATH = int(os.environ.get('FASTPATH', 1))
POLLD = int(os.environ.get('POLLD', 1))


def poll(a, tag, soff, n, vl4, vf, depth=1):
    a("s_mov_b32 s%d, 0" % T_CNT)
    a.label("L_poll_%s" % tag)
    a("buffer_load_dword v%d, v%d, s[20:23], s%d offen sc1" % (vf, vl4, soff))
    a("s_add_u32 s%d, s%d, 1" % (T_CNT, T_CNT))
    a("s_waitcnt vmcnt(0)")
    a("v_cmp_ne_u32 vcc, 0, v%d" % vf)
    a("s_cmp_gt_u32 s%d, 0x40000" % T_CNT)
    a("s_cbranch_scc1 L_polld_%s" % tag)
    if n == 64:
        a("s_and_b32 s%d, vcc_lo, vcc_hi" % T_M)
        a("s_cmp_lg_u32 s%d, -1" % T_M)
    else:
        mask = (1 << n) - 1
        a("s_and_b32 s%d, vcc_lo, 0x%x" % (T_M, mask))
        a("s_cmp_lg_u32 s%d, 0x%x" % (T_M, mask))
    a("s_cbranch_scc1 L_poll_%s" % tag)
    a.label("L_polld_%s" % tag)


def hstore(a, tag, stores):
    a("s_cmp_eq_u32 s%d, -1" % S_FAST)
    a("s_cbranch_scc1 L_hs_%s_f" % tag)
    for st in stores:
        a(st + " sc1")
    a("s_branch L_hs_%s_d" % tag)
    a.label("L_hs_%s_f" % tag)
    for st in stores:
        a(st)
    a.label("L_hs_%s_d" % tag)


def set_flag(a, soff, vt, tag=None):
    a("v_mov_b32 v%d, 0" % vt)
    a("v_mov_b32 v%d, 1" % (vt + 1))
    a("s_mov_b64 exec, 1")
    st = "buffer_store_dword v%d, v%d, s[20:23], s%d offen" % (vt + 1, vt, soff)
    if tag:
        hstore(a, tag, [st])
    else:
        a(st + " sc1")
    a("s_mov_b64 exec, -1")


def fused_events(a, E):
    S_WAVE, S_H, S_QB, S_ITER, S_SYNC, S_TASK, S_TYPE = (E[k] for k in ("S_WAVE", "S_H", "S_QB", "S_ITER", "S_SYNC", "S_TASK", "S_TYPE"))
    V_LANE, V_L16, V_T = E["V_LANE"], E["V_L16"], E["V_T"]
    a.label("L_f_event")
    a("s_cmp_eq_u32 s%d, 7" % S_ITER)
    a("s_cbranch_scc1 L_f_sync")
    a("s_cmp_eq_u32 s%d, 6" % S_ITER)
    a("s_cbranch_scc1 L_f_ev6")
    a("s_cmp_eq_u32 s%d, 2" % S_ITER)
    a("s_cbranch_scc1 L_f_ev2")
    a("s_cmp_eq_u32 s%d, 3" % S_ITER)
    a("s_cbranch_scc1 L_f_ev3")
    a("s_mov_b32 s%d, 3" % S_SYNC)
    a("s_cmp_eq_u32 s%d, 0" % S_TYPE)
    a("s_cbranch_scc1 L_f_ev5b")
    a("s_lshl_b32 s%d, s%d, 2" % (T_A, S_TASK))
    a("s_add_u32 s%d, s%d, %d" % (T_A, T_A, FL_P))
    a("s_waitcnt vmcnt(0)")
    set_flag(a, T_A, V_T)
    a.label("L_f_ev5b")
    a("buffer_load_dword v%d, v%d, s[96:99], 0 offen sc1" % (FV_F, FV_L4))
    a("s_branch L_f_syncret")
    a.label("L_f_ev3")
    a("s_mov_b32 s%d, 2" % S_SYNC)
    a("s_mov_b32 s%d, 0" % T_CNT)
    a.label("L_f_dbchk")
    a("s_waitcnt vmcnt(0)")
    a("v_subrev_u32 v%d, 0x01010101, v%d" % (FV_F + 1, FV_F))
    a("v_not_b32 v%d, v%d" % (FV_F + 2, FV_F))
    a("v_and_b32 v%d, v%d, v%d" % (FV_F + 1, FV_F + 1, FV_F + 2))
    a("v_and_b32 v%d, 0x80808080, v%d" % (FV_F + 1, FV_F + 1))
    a("v_cmp_eq_u32 vcc, 0, v%d" % (FV_F + 1))
    a("s_add_u32 s%d, s%d, 1" % (T_CNT, T_CNT))
    a("s_cmp_gt_u32 s%d, 0x40000" % T_CNT)
    a("s_cbranch_scc1 L_f_dbok")
    a("s_and_b32 s%d, vcc_lo, vcc_hi" % T_M)
    a("s_cmp_eq_u32 s%d, -1" % T_M)
    a("s_cbranch_scc1 L_f_dbok")
    a("buffer_load_dword v%d, v%d, s[96:99], 0 offen sc1" % (FV_F, FV_L4))
    a("s_branch L_f_dbchk")
    a.label("L_f_dbok")
    a("s_lshr_b32 s%d, s2, 5" % T_XCD)
    a("s_bfe_u32 s%d, s2, 0x20003" % T_R2)
    a("s_and_b32 s%d, s2, 7" % T_RB64)
    a("s_lshl_b32 s%d, s%d, 2" % (T_RB64, T_RB64))
    a("s_add_u32 s%d, s%d, s%d" % (T_RB64, T_RB64, T_R2))
    a("s_lshr_b32 s%d, s%d, 1" % (T_RB128, T_RB64))
    a("s_and_b32 s%d, s%d, 1" % (T_A, T_R2))
    a("s_lshl_b32 s%d, s%d, 1" % (T_CGF, T_XCD))
    a("s_add_u32 s%d, s%d, s%d" % (T_CGF, T_CGF, T_A))
    a("s_bfe_u32 s%d, s%d, 0x10001" % (T_A, S_WAVE))
    a("s_lshl_b32 s%d, s%d, 1" % (T_TBO, T_RB64))
    a("s_add_u32 s%d, s%d, s%d" % (T_TBO, T_TBO, T_A))
    a("s_and_b32 s%d, s%d, 1" % (T_A, S_WAVE))
    a("s_lshl_b32 s%d, s%d, 1" % (T_NBO, T_XCD))
    a("s_add_u32 s%d, s%d, s%d" % (T_NBO, T_NBO, T_A))
    a("s_lshr_b32 s%d, s%d, 2" % (T_HALF, S_WAVE))
    a("s_mul_i32 s%d, s%d, 7" % (T_A, T_CGF))
    a("s_lshr_b32 s%d, s%d, 1" % (T_A, T_A))
    a("s_lshl_b32 s%d, s%d, 5" % (T_A, T_A))
    a("s_mul_i32 s%d, s%d, 56" % (T_B, T_NBO))
    a("s_add_u32 s%d, s%d, %d" % (T_B, T_B, 512 * 4 - 32 * 4))
    a("s_lshl_b32 s%d, s%d, 1" % (T_C, T_NBO))
    a("s_add_u32 s%d, s%d, s%d" % (T_C, T_C, T_HALF))
    a("s_lshl_b32 s%d, s%d, 3" % (T_C, T_C))
    a("s_add_u32 s%d, s%d, %d" % (T_C, T_C, 448 * 4 - 46 * 4))
    a("v_mov_b32 v%d, s%d" % (V_T, T_A))
    a("v_mov_b32 v%d, s%d" % (V_T + 1, T_B))
    a("v_cmp_le_u32 vcc, 32, v%d" % V_LANE)
    a("v_mov_b32 v%d, s%d" % (V_T + 2, T_C))
    a("s_nop 0")
    a("v_cndmask_b32 v%d, v%d, v%d, vcc" % (V_T, V_T, V_T + 1))
    a("v_cmp_le_u32 vcc, 46, v%d" % V_LANE)
    a("s_mov_b32 s%d, %d" % (T_A, FL_P))
    a("s_nop 0")
    a("v_cndmask_b32 v%d, v%d, v%d, vcc" % (V_T, V_T, V_T + 2))
    a("v_add_u32 v%d, v%d, v%d" % (FV_F + 3, V_T, FV_L4))
    a("buffer_load_dword v%d, v%d, s[20:23], s%d offen sc1" % (FV_F, FV_F + 3, T_A))
    a("s_branch L_f_syncret")
    a.label("L_f_ev2")
    a("s_mov_b32 s%d, 0" % S_SYNC)
    a("s_mov_b32 s%d, 0" % T_CNT)
    a("s_mov_b32 s%d, %d" % (T_A, FL_P))
    a.label("L_f_fpchk")
    a("s_waitcnt vmcnt(0)")
    a("v_cmp_ne_u32 vcc, 0, v%d" % FV_F)
    a("s_add_u32 s%d, s%d, 1" % (T_CNT, T_CNT))
    a("s_cmp_gt_u32 s%d, 0x40000" % T_CNT)
    a("s_cbranch_scc1 L_f_fpok")
    a("s_or_b32 s%d, vcc_hi, 0xffff0000" % T_M)
    a("s_and_b32 s%d, s%d, vcc_lo" % (T_M, T_M))
    a("s_cmp_eq_u32 s%d, -1" % T_M)
    a("s_cbranch_scc1 L_f_fpok")
    a("buffer_load_dword v%d, v%d, s[20:23], s%d offen sc1" % (FV_F, FV_F + 3, T_A))
    a("s_branch L_f_fpchk")
    a.label("L_f_fpok")
    a("s_lshl_b32 s%d, s%d, 1" % (T_A, T_NBO))
    a("s_add_u32 s%d, s%d, s%d" % (T_A, T_A, T_HALF))
    a("s_lshl_b32 s%d, s%d, 14" % (T_A, T_A))
    a("s_add_u32 s%d, s%d, %d" % (T_A, T_A, WS_WO))
    for i in range(16):
        if i and i % 4 == 0:
            a("s_add_u32 s%d, s%d, 4096" % (T_A, T_A))
        a("buffer_load_dwordx4 %s, v%d, s[20:23], s%d offen offset:%d sc1" % (vr(FV_WO + 4 * i), FV_LX, T_A, (i % 4) * 1024))
    srd(a, 12, 10, 2048 * 1024)
    a("v_and_b32 v%d, 31, v%d" % (V_T, V_LANE))
    a("v_lshlrev_b32 v%d, 10, v%d" % (V_T, V_T))
    a("v_lshrrev_b32 v%d, 5, v%d" % (V_T + 1, V_LANE))
    a("v_lshl_add_u32 v%d, v%d, 3, v%d" % (V_T, V_T + 1, V_T))
    a("s_lshl_b32 s%d, s%d, 15" % (T_A, T_TBO))
    a("s_lshl_b32 s%d, s%d, 6" % (T_B, T_NBO))
    a("s_add_u32 s%d, s%d, s%d" % (T_A, T_A, T_B))
    a("s_lshl_b32 s%d, s%d, 5" % (T_B, T_HALF))
    a("s_add_u32 s%d, s%d, s%d" % (T_A, T_A, T_B))
    for q in range(2):
        a("buffer_load_dwordx2 %s, v%d, s[12:15], s%d offen offset:%d" % (vr(FV_XR + 2 * q, 2), V_T, T_A, q * 16))
    a("s_branch L_f_syncret")


def fused_tail(a, E):
    S_WAVE, S_H, S_QB = E["S_WAVE"], E["S_H"], E["S_QB"]
    V_LANE, V_L16 = 1, 2
    V_T = 3
    S_MASK, S_W3, S_M0W, S_SW, S_SH, S_M0H = 43, 44, 45, 46, 47, 48
    a.ts("k2")
    a("s_setprio 0")
    for k in ("S_SYNC", "S_TYPE", "S_PASS", "S_NT", "S_ITER"):
        a("s_mov_b32 s%d, 0" % E[k])
    a("s_mov_b32 s%d, 0xffff0000" % S_MASK)
    a("s_and_b32 s%d, s%d, 3" % (S_W3, S_WAVE))
    a("s_lshl_b32 s%d, s%d, 2" % (T_A, S_QB))
    a("s_lshr_b32 s%d, s%d, 1" % (T_B, S_WAVE))
    a("s_add_u32 s%d, s%d, s%d" % (T_A, T_A, T_B))
    a("s_lshl_b32 s%d, s%d, 8" % (T_A, T_A))
    a("s_and_b32 s%d, s%d, 1" % (T_B, S_WAVE))
    a("s_lshl_b32 s%d, s%d, 5" % (T_B, T_B))
    a("s_add_u32 s%d, s%d, s%d" % (T_B, T_B, S_H))
    a("s_lshl_b32 s%d, s%d, 2" % (T_B, T_B))
    a("s_add_u32 s%d, s%d, s%d" % (T_B, T_B, T_A))
    a("s_add_u32 s%d, s%d, %d" % (T_B, T_B, FL_A))
    a("s_mul_i32 s%d, s%d, 7168" % (S_M0W, S_W3))
    a("s_mul_i32 s%d, s%d, %d" % (S_SW, T_CGF, 32 * 7 * 1024))
    a("s_add_u32 s%d, s%d, s%d" % (S_SW, S_SW, S_M0W))
    a("s_add_u32 s%d, s%d, %d" % (S_SW, S_SW, WS_GU))

    def w_stage(st):
        slot = st % 4
        a("s_add_u32 s%d, s%d, %d" % (T_C, S_SW, st * SLOT))
        a("s_add_u32 m0, s%d, %d" % (S_M0W, slot * SLOT))
        a("s_add_u32 s%d, s%d, 4096" % (T_D, T_C))
        for q in range(4):
            a("buffer_load_dwordx4 v%d, s[20:23], s%d offen offset:%d sc1 lds" % (V_L16, T_C, q * 1024))
        a("s_add_u32 m0, m0, 4096")
        a("s_nop 0")
        for q in range(3):
            a("buffer_load_dwordx4 v%d, s[20:23], s%d offen offset:%d sc1 lds" % (V_L16, T_D, q * 1024))

    a("s_waitcnt vmcnt(0)")
    set_flag(a, T_B, V_T)
    a("s_barrier")
    OB, XS = 86016, 57344
    a("s_cmp_ge_u32 s%d, 4" % S_WAVE)
    a("s_cbranch_scc1 L_f_a1")
    w_stage(0)
    w_stage(1)
    a("s_branch L_f_a2")
    a.label("L_f_a1")
    a("s_lshl_b32 s%d, s%d, 8" % (T_A, T_RB64))
    a("s_lshl_b32 s%d, s%d, 6" % (T_B, S_W3))
    a("s_add_u32 s%d, s%d, s%d" % (T_A, T_A, T_B))
    a("s_add_u32 s%d, s%d, %d" % (T_A, T_A, FL_A))
    a("s_lshl_b32 s%d, s%d, 2" % (T_C, T_RB64))
    a("s_add_u32 s%d, s%d, s%d" % (T_C, T_C, S_W3))
    a("s_lshl_b32 s%d, s%d, 14" % (T_C, T_C))
    a("s_add_u32 s%d, s%d, %d" % (T_C, T_C, WS_O))
    a("s_lshl_b32 s%d, s%d, 14" % (T_B, S_W3))
    a("s_add_u32 m0, s%d, %d" % (T_B, OB))
    poll(a, "fa", T_A, 16, FV_L4, FV_F + 2)
    a.ts("k2")
    for j in range(16):
        if j and j % 4 == 0:
            a("s_add_u32 m0, m0, 4096")
            a("s_add_u32 s%d, s%d, 4096" % (T_C, T_C))
        a("buffer_load_dwordx4 v%d, s[20:23], s%d offen offset:%d sc1 lds" % (V_L16, T_C, (j % 4) * 1024))
    a.label("L_f_a2")

    V_OA = 12
    V_OF = [16 + 4 * i for i in range(8)]
    V_AB = 64
    V_U = 80
    V_HK = 16
    a("s_bfe_u32 s%d, s%d, 0x10001" % (T_B, S_WAVE))
    a("s_lshl_b32 s%d, s%d, 1" % (T_B, T_B))
    a("s_add_u32 s%d, s%d, s%d" % (T_B, T_B, T_HALF))
    a("s_lshl_b32 s%d, s%d, 14" % (T_B, T_B))
    a("s_add_u32 s%d, s%d, %d" % (T_B, T_B, OB))
    a("v_add_u32 v%d, s%d, v%d" % (V_OA, T_B, V_L16))
    a("s_xor_b32 s%d, s%d, 4" % (T_B, S_WAVE))
    a("s_lshl_b32 s%d, s%d, 11" % (T_B, T_B))
    a("s_add_u32 s%d, s%d, %d" % (T_B, T_B, XS))
    a("v_add_u32 v%d, s%d, v%d" % (V_OA + 1, T_B, V_L16))
    a("s_lshl_b32 s%d, s%d, 11" % (T_B, S_WAVE))
    a("s_add_u32 s%d, s%d, %d" % (T_B, T_B, XS))
    a("v_add_u32 v%d, s%d, v%d" % (V_OA + 2, T_B, V_L16))
    for d in range(4):
        a("v_lshlrev_b32 v%d, 16, v%d" % (V_U + 2 * d, FV_XR + d))
        a("v_and_b32 v%d, s%d, v%d" % (V_U + 2 * d + 1, S_MASK, FV_XR + d))
    a("s_cmp_lt_u32 s%d, 4" % S_WAVE)
    a("s_cbranch_scc1 L_f_b3")
    a("s_waitcnt vmcnt(0)")
    a.label("L_f_b3")
    a("s_barrier")
    a.ts("k2")
    for i in range(8):
        a("ds_read_b128 %s, v%d offset:%d" % (vr(V_OF[i]), V_OA, i * 1024))
    for i in range(16):
        a("s_waitcnt lgkmcnt(%d)" % (7 if i < 8 else 15 - i))
        a("v_mfma_f32_32x32x16_bf16 %s, %s, %s, %s" % (vr(V_AB, 16), vr(FV_WO + 4 * i), vr(V_OF[i % 8]), "0" if i == 0 else vr(V_AB, 16)))
        if i < 8:
            a("ds_read_b128 %s, v%d offset:%d" % (vr(V_OF[i]), V_OA, (i + 8) * 1024))
    a("s_lshl_b32 s%d, s%d, 4" % (T_A, T_TBO))
    a("s_add_u32 s%d, s%d, s%d" % (T_A, T_A, T_NBO))
    a("s_lshl_b32 s%d, s%d, 1" % (T_A, T_A))
    a("s_add_u32 s%d, s%d, s%d" % (T_A, T_A, T_HALF))
    a("s_lshr_b32 s%d, s%d, 1" % (T_B, T_A))
    a("s_lshl_b32 s%d, s%d, 9" % (T_B, T_B))
    a("s_lshl_b32 s%d, s%d, 3" % (T_C, T_HALF))
    a("s_add_u32 s%d, s%d, s%d" % (T_B, T_B, T_C))
    a("s_add_u32 s%d, s%d, %d" % (T_B, T_B, WS_ST))
    a("s_lshl_b32 s%d, s%d, 10" % (T_A, T_A))
    a("s_add_u32 s%d, s%d, %d" % (T_A, T_A, WS_H))
    a("v_and_b32 v%d, 31, v%d" % (V_T, V_LANE))
    a("v_lshlrev_b32 v%d, 4, v%d" % (V_T, V_T))
    a("s_nop 1")
    for q in range(2):
        a("ds_write_b128 v%d, %s offset:%d" % (V_OA + 1, vr(V_AB + 8 + 4 * q), q * 1024))
    for i in range(8):
        a("v_add_f32 v%d, v%d, v%d" % (V_AB + i, V_AB + i, V_U + i))
    a("s_waitcnt lgkmcnt(0)")
    a("s_barrier")
    for q in range(2):
        a("ds_read_b128 %s, v%d offset:%d" % (vr(V_U + 4 * q), V_OA + 2, q * 1024))
    a("s_waitcnt lgkmcnt(0)")
    for i in range(8):
        a("v_add_f32 v%d, v%d, v%d" % (V_AB + i, V_AB + i, V_U + i))
    for i in range(4):
        a("v_cvt_pk_bf16_f32 v%d, v%d, v%d" % (V_HK + i, V_AB + 2 * i, V_AB + 2 * i + 1))
    hstore(a, "h", ["buffer_store_dwordx4 %s, v%d, s[20:23], s%d offen" % (vr(V_HK), V_L16, T_A)])
    for d in range(4):
        a("v_lshlrev_b32 v%d, 16, v%d" % (V_U + 2 * d, V_HK + d))
        a("v_and_b32 v%d, s%d, v%d" % (V_U + 2 * d + 1, S_MASK, V_HK + d))
    S1, S2 = V_AB, V_AB + 1
    a("v_add_f32 v%d, v%d, v%d" % (S1, V_U, V_U + 1))
    a("v_mul_f32 v%d, v%d, v%d" % (S2, V_U, V_U))
    a("v_fmac_f32 v%d, v%d, v%d" % (S2, V_U + 1, V_U + 1))
    for i in range(2, 8):
        a("v_add_f32 v%d, v%d, v%d" % (S1, S1, V_U + i))
        a("v_fmac_f32 v%d, v%d, v%d" % (S2, V_U + i, V_U + i))
    sum_halves(a, S1, V_AB + 2)
    sum_halves(a, S2, V_AB + 3)
    hstore(a, "st", ["buffer_store_dwordx2 %s, v%d, s[20:23], s%d offen" % (vr(S1, 2), V_T, T_B)])
    a("s_lshl_b32 s%d, s%d, 4" % (T_B, T_TBO))
    a("s_add_u32 s%d, s%d, s%d" % (T_B, T_B, T_NBO))
    a("s_lshl_b32 s%d, s%d, 1" % (T_B, T_B))
    a("s_add_u32 s%d, s%d, s%d" % (T_B, T_B, T_HALF))
    a("s_lshl_b32 s%d, s%d, 2" % (T_B, T_B))
    a("s_add_u32 s%d, s%d, %d" % (T_B, T_B, FL_B))
    a("v_mov_b32 v%d, v%d" % (14, FV_LX))
    a("v_mov_b32 v%d, v%d" % (15, FV_L4))
    V_LX, V_L4 = 14, 15
    a("s_waitcnt vmcnt(0)")
    set_flag(a, T_B, V_T, "fb")
    a("s_barrier")
    a.ts("k2")
    HR = 114688
    a("s_lshl_b32 s%d, s%d, 2" % (T_A, T_RB128))
    a("s_add_u32 s%d, s%d, s%d" % (T_A, T_A, S_W3))
    a("s_lshl_b32 s%d, s%d, 15" % (S_SH, T_A))
    a("s_add_u32 s%d, s%d, %d" % (S_SH, S_SH, WS_H))
    a("s_lshl_b32 s%d, s%d, 12" % (S_M0H, S_W3))
    a("s_add_u32 s%d, s%d, %d" % (S_M0H, S_M0H, HR))

    def h_stage(st):
        a("s_add_u32 m0, s%d, %d" % (S_M0H, (st % 3) * 16384))
        a("s_add_u32 s%d, s%d, %d" % (T_C, S_SH, st * 4096))
        for q in range(4):
            a("buffer_load_dwordx4 v%d, s[20:23], s%d offen offset:%d sc1 lds" % (V_L16, T_C, q * 1024))

    a("s_cmp_ge_u32 s%d, 4" % S_WAVE)
    a("s_cbranch_scc1 L_f_ccomp")
    w_stage(2)
    w_stage(3)
    V_WD = 144
    V_WP = 32
    S_KQ = 50
    a("s_lshr_b32 s%d, s%d, 1" % (S_KQ, S_WAVE))
    a("s_lshl_b32 s%d, s%d, 2" % (T_A, T_NBO))
    a("s_add_u32 s%d, s%d, s%d" % (T_A, T_A, S_KQ))
    a("s_mul_i32 s%d, s%d, %d" % (T_A, T_A, 28 * 1024))
    a("s_add_u32 s%d, s%d, %d" % (T_A, T_A, WS_WD))
    a("s_add_u32 s%d, s%d, %d" % (T_B, T_A, 56 * 1024))
    a("v_xor_b32 v%d, 0x100, v%d" % (V_T, V_L16))
    a("s_mul_i32 s%d, s%d, %d" % (T_M, S_W3, 28 * 1024))
    a("v_add_u32 v%d, s%d, v%d" % (V_T + 1, T_M, V_L16))

    def wd_loads(i0, i1):
        for i in range(i0, i1):
            if i and i % 4 == 0:
                a("s_add_u32 s%d, s%d, 4096" % (T_A, T_A))
            a("buffer_load_dwordx4 %s, v%d, s[20:23], s%d offen offset:%d sc1" % (vr(V_WD + 4 * i), V_LX, T_A, (i % 4) * 1024))

    log = ["W0"] * 7 + ["W1"] * 7 + ["W2"] * 7 + ["W3"] * 7
    wd_plan = {5: 8, 6: 12, 7: 8}
    nwd = 0
    for j in range(8):
        last = max(i for i, t in enumerate(log) if t in ("W%d" % j, "h%d" % j))
        n = len(log) - 1 - last
        assert n <= 63
        a("s_waitcnt vmcnt(%d)" % n)
        a("s_barrier")
        if j >= 1:
            if j + 2 <= 7:
                h_stage(j + 2)
                log += ["h%d" % (j + 2)] * 4
            if j + 3 <= 7:
                w_stage(j + 3)
                log += ["W%d" % (j + 3)] * 7
        k = wd_plan.get(j, 0)
        wd_loads(nwd, nwd + k)
        log += ["d"] * k
        nwd += k
    assert nwd == 28
    a("s_mov_b32 m0, s%d" % T_M)
    a("s_barrier")
    for i in range(28):
        if i and i % 4 == 0:
            a("s_add_u32 m0, m0, 4096")
            a("s_add_u32 s%d, s%d, 4096" % (T_B, T_B))
        a("buffer_load_dwordx4 v%d, s[20:23], s%d offen offset:%d sc1 lds" % (V_T, T_B, (i % 4) * 1024))
    a("s_waitcnt vmcnt(0)")
    a("s_barrier")
    a("s_branch L_f_d1")
    a.label("L_f_ccomp")
    V_AW, V_AH = 12, 13
    V_ST = 20
    V_CSL = 52
    V_H = [80, 84]
    V_W = [88, 116]
    V_ACC = [144 + 16 * b for b in range(7)]
    V_TMP = 88
    S_TB = 49
    a("s_lshl_b32 s%d, s%d, 2" % (S_TB, T_RB128))
    a("s_add_u32 s%d, s%d, s%d" % (S_TB, S_TB, S_W3))
    a("v_mov_b32 v%d, v%d" % (V_AW, V_L16))
    a("s_lshl_b32 s%d, s%d, 12" % (T_A, S_W3))
    a("s_add_u32 s%d, s%d, %d" % (T_A, T_A, HR))
    a("v_add_u32 v%d, s%d, v%d" % (V_AH, T_A, V_L16))
    a("v_and_b32 v%d, 31, v%d" % (V_T, V_LANE))
    a("v_lshlrev_b32 v%d, 4, v%d" % (V_T, V_T))
    a("v_lshrrev_b32 v%d, 5, v%d" % (V_T + 1, V_LANE))
    a("v_lshl_add_u32 v%d, v%d, 12, v%d" % (V_T, V_T + 1, V_T))
    a("s_mul_i32 s%d, s%d, 7168" % (T_C, T_CGF))
    a("s_add_u32 s%d, s%d, %d" % (T_C, T_C, WS_CS))
    a("s_add_u32 s%d, s%d, 4096" % (T_D, T_C))
    for blk in range(7):
        a("buffer_load_dwordx4 %s, v%d, s[20:23], s%d offen offset:%d sc1" % (vr(V_CSL + 4 * blk), V_L16, T_C if blk < 4 else T_D, (blk % 4) * 1024))
    a("s_lshl_b32 s%d, s%d, 7" % (T_B, S_TB))
    a("s_add_u32 s%d, s%d, %d" % (T_B, T_B, FL_B))
    poll(a, "fb", T_B, 32, V_L4, 9)
    for st in range(3):
        h_stage(st)
    a("s_lshl_b32 s%d, s%d, 13" % (T_A, S_TB))
    a("s_add_u32 s%d, s%d, %d" % (T_A, T_A, WS_ST))
    cur_base = [0]
    lds = Lds(a)

    def reads(P):
        st, pos = P // 4, P % 4
        slot = st % 4
        base, imm = (slot // 2) * 2 * SLOT, (slot % 2) * SLOT
        out = []
        b = P % 2
        out.append(("ds_read_b128 %s, v%d offset:%d" % (vr(V_H[b]), V_AH, (st % 3) * 16384 + pos * 1024), ("h", P)))
        if base != cur_base[0]:
            d = base - cur_base[0]
            out.append(("v_add_u32 v%d, %d, v%d" % (V_AW, d, V_AW) if d > 0 else "v_subrev_u32 v%d, %d, v%d" % (V_AW, -d, V_AW), None))
            cur_base[0] = base
        for blk in range(7):
            out.append(("ds_read_b128 %s, v%d offset:%d" % (vr(V_W[b] + 4 * blk), V_AW, imm + (pos * 7 + blk) * 1024), ("w", P, blk)))
        return out

    side = {}
    g = []
    for i in range(8):
        g.append("buffer_load_dwordx4 %s, v%d, s[20:23], s%d offen offset:%d sc1" % (vr(V_ST + 4 * i), V_T, T_A, i * 512))
    side[0], side[1] = g[:4], g[4:]
    sa = Asm()
    S1, S2 = V_T + 1, V_T + 2
    V_MU, V_RS = V_T + 2, V_T + 4
    V_VAR, V_C1, V_C2 = 6, 8, 10
    sa("s_waitcnt vmcnt(0)")
    sa("v_add_f32 v%d, v%d, v%d" % (S1, V_ST, V_ST + 2))
    sa("v_add_f32 v%d, v%d, v%d" % (S2, V_ST + 1, V_ST + 3))
    for i in range(2, 16):
        sa("v_add_f32 v%d, v%d, v%d" % (S1, S1, V_ST + 2 * i))
        sa("v_add_f32 v%d, v%d, v%d" % (S2, S2, V_ST + 2 * i + 1))
    sum_halves(sa, S1, V_T + 4)
    sum_halves(sa, S2, V_T + 4)
    sa("v_mul_f32 v%d, 0x%x, v%d" % (V_VAR, f32bits(1.0 / 512), S2))
    sa("v_mul_f32 v%d, 0x%x, v%d" % (V_MU, f32bits(1.0 / 512), S1))
    sa("v_fma_f32 v%d, -v%d, v%d, v%d" % (V_VAR, V_MU, V_MU, V_VAR))
    sa("v_max_f32 v%d, 0, v%d" % (V_VAR, V_VAR))
    sa("v_add_f32 v%d, 0x%x, v%d" % (V_VAR, f32bits(1e-5), V_VAR))
    sa("v_rsq_f32 v%d, v%d" % (V_RS, V_VAR))
    sa("v_sub_f32 v%d, 0, v%d" % (V_MU, V_MU))
    VB = V_ST
    split_hi_lo_B(sa, V_MU, VB, V_T, S_MASK)
    c1 = -2.0 * math.sqrt(2.0 / math.pi) * math.log2(math.e)
    sa("v_mul_f32 v%d, 0x%x, v%d" % (V_C1, f32bits(c1), V_RS))
    sa("v_mul_f32 v%d, v%d, v%d" % (V_C2, V_RS, V_RS))
    sa("v_mul_f32 v%d, v%d, v%d" % (V_C2, V_C2, V_C1))
    sa("v_mul_f32 v%d, 0x%x, v%d" % (V_C2, f32bits(0.044715), V_C2))
    VA = V_CSL
    for blk in range(7):
        c = V_CSL + 4 * blk
        a("v_add_f32 v%d, v%d, v%d" % (c, c, c + 1))
        a("v_add_f32 v%d, v%d, v%d" % (c + 2, c + 2, c + 3))
        a("v_add_f32 v%d, v%d, v%d" % (V_T + 2, c, c + 2))
        split_hi_lo_A(a, V_T + 2, c, V_T + 1, S_MASK)
    sl = [x.strip() for x in sa.L]
    per = 10
    for k in range((len(sl) + per - 1) // per):
        side[10 + k] = sl[per * k:per * (k + 1)]
    P_R1 = 10 + (len(sl) + per - 1) // per + 1
    assert P_R1 <= 30
    side[30] = ["s_mul_i32 s%d, s%d, 112" % (T_A, S_TB), "s_mul_i32 s%d, s%d, 7" % (T_B, T_CGF), "s_add_u32 s%d, s%d, s%d" % (T_A, T_A, T_B),
                "s_lshl_b32 s%d, s%d, 10" % (T_A, T_A), "s_add_u32 s%d, s%d, %d" % (T_A, T_A, WS_A), "s_add_u32 s%d, s%d, 4096" % (T_B, T_A)]
    a("s_waitcnt vmcnt(8)")
    a("s_barrier")
    a.ts("k2")
    for t, tag in reads(0):
        lds.op(t, tag) if tag else a(t)
    for P in range(32):
        st, pos = P // 4, P % 4
        b = P % 2
        rd = reads(P + 1) if P < 31 else []
        sd = list(side.get(P, []))
        bar_at = 3 if (pos == 3 and P < 31) else -1
        first_rd = bar_at if bar_at >= 0 else 0
        for blk in range(7):
            if blk == bar_at:
                lds.drain()
                if st == 0:
                    a("s_waitcnt vmcnt(12)")
                if st == 1:
                    a("s_waitcnt vmcnt(8)")
                a("s_barrier")
            lds.need(("h", P), ("w", P, blk))
            a("v_mfma_f32_32x32x16_bf16 %s, %s, %s, %s" % (vr(V_ACC[blk], 16), vr(V_W[b] + 4 * blk), vr(V_H[b]), "0" if P == 0 else vr(V_ACC[blk], 16)))
            if blk >= first_rd:
                nrd = 3 if bar_at >= 0 else 2
                for _ in range(nrd):
                    if rd:
                        t, tag = rd.pop(0)
                        lds.op(t, tag) if tag else a(t)
            for _ in range(2):
                if sd:
                    a(sd.pop(0))
        assert not rd and not sd
        if P == P_R1:
            for blk in range(7):
                a("v_mfma_f32_32x32x16_bf16 %s, %s, %s, %s" % (vr(V_ACC[blk], 16), vr(VA + 4 * blk), vr(VB), vr(V_ACC[blk], 16)))
    a.ts("k2")
    a("s_barrier")
    a("s_nop 4")
    bc = lambda r: "v[%d:%d]" % (r, r + 1)
    for blk in range(7):
        G = V_ACC[blk]
        Uu = G + 8
        T = V_TMP + 8 * (blk % 2)
        for i in range(0, 8, 2):
            a("v_pk_mul_f32 %s, %s, %s" % (bc(T + i), bc(G + i), bc(G + i)))
        for i in range(0, 8, 2):
            a("v_pk_fma_f32 %s, %s, %s, %s op_sel_hi:[1,0,0]" % (bc(T + i), bc(T + i), bc(V_C2), bc(V_C1)))
        for i in range(0, 8, 2):
            a("v_pk_mul_f32 %s, %s, %s" % (bc(T + i), bc(T + i), bc(G + i)))
        for i in range(8):
            a("v_exp_f32 v%d, v%d" % (T + i, T + i))
        for i in range(0, 8, 2):
            a("v_pk_mul_f32 %s, %s, %s" % (bc(G + i), bc(G + i), bc(Uu + i)))
        for i in range(0, 8, 2):
            a("v_pk_fma_f32 %s, %s, %s, %s op_sel_hi:[1,0,0]" % (bc(T + i), bc(T + i), bc(V_VAR), bc(V_VAR)))
        for i in range(8):
            a("v_rcp_f32 v%d, v%d" % (T + i, T + i))
        a("s_nop 0")
        for i in range(0, 8, 2):
            a("v_pk_mul_f32 %s, %s, %s" % (bc(G + i), bc(G + i), bc(T + i)))
        o = V_TMP + 16 + 4 * blk
        for i in range(4):
            a("v_cvt_pk_bf16_f32 v%d, v%d, v%d" % (o + i, G + 2 * i, G + 2 * i + 1))
    hstore(a, "act", ["buffer_store_dwordx4 %s, v%d, s[20:23], s%d offen offset:%d" % (vr(V_TMP + 16 + 4 * blk), V_L16, T_A if blk < 4 else T_B, (blk % 4) * 1024) for blk in range(7)])
    a.ts("k2")
    a("s_lshl_b32 s%d, s%d, 4" % (T_B, S_TB))
    a("s_add_u32 s%d, s%d, s%d" % (T_B, T_B, T_CGF))
    a("s_lshl_b32 s%d, s%d, 2" % (T_B, T_B))
    a("s_add_u32 s%d, s%d, %d" % (T_B, T_B, FL_C))
    a("s_lshr_b32 s%d, s%d, 1" % (S_KQ, S_WAVE))
    a("s_mul_i32 s%d, s%d, %d" % (T_M, S_W3, 28 * 1024))
    a("v_add_u32 v%d, s%d, v%d" % (V_T + 2, T_M, V_L16))
    a("s_waitcnt vmcnt(0)")
    set_flag(a, T_B, V_T, "fc")
    a("s_barrier")
    for i in range(28):
        a("ds_read_b128 %s, v%d offset:%d" % (vr(V_WD + 4 * i), V_T + 2, i * 1024))
        if i % 8 == 7:
            a("s_waitcnt lgkmcnt(4)")
    a("s_waitcnt lgkmcnt(0)")
    a.label("L_f_d1")
    V_AA = [12, 13]
    V_AF = [[32 + 32 * b + 4 * i for i in range(8)] for b in range(2)]
    V_AD = [96, 112]
    S_SA, S_M0A = 45, 46
    a("s_and_b32 s%d, s%d, 1" % (T_A, S_WAVE))
    a("s_lshl_b32 s%d, s%d, 1" % (T_B, T_RB64))
    a("s_add_u32 s%d, s%d, s%d" % (T_A, T_A, T_B))
    a("s_lshl_b32 s%d, s%d, 2" % (T_A, T_A))
    a("s_add_u32 s%d, s%d, s%d" % (T_A, T_A, S_KQ))
    a("s_mul_i32 s%d, s%d, %d" % (S_SA, T_A, 28 * 1024))
    a("s_add_u32 s%d, s%d, %d" % (S_SA, S_SA, WS_A))
    a("s_lshl_b32 s%d, s%d, 12" % (S_M0A, S_WAVE))
    for ai in range(2):
        a("s_and_b32 s%d, s%d, 1" % (T_A, S_KQ))
        a("s_xor_b32 s%d, s%d, %d" % (T_A, T_A, ai))
        a("s_lshl_b32 s%d, s%d, 1" % (T_B, S_KQ))
        a("s_add_u32 s%d, s%d, s%d" % (T_A, T_A, T_B))
        a("s_lshl_b32 s%d, s%d, 12" % (T_A, T_A))
        a("v_add_u32 v%d, s%d, v%d" % (V_AA[ai], T_A, V_L16))

    def a_stage(j):
        out = ["s_add_u32 m0, s%d, %d" % (S_M0A, (j % 5) * 32768), "s_add_u32 s%d, s%d, %d" % (T_C, S_SA, j * 4096)]
        for q in range(4):
            out.append("buffer_load_dwordx4 v%d, s[20:23], s%d offen offset:%d%s lds" % (V_L16, T_C, q * 1024, LSC))
        return out

    a("s_cmp_lg_u32 s%d, 0" % S_WAVE)
    a("s_cbranch_scc1 L_f_d2")
    a("s_lshl_b32 s%d, s%d, 7" % (T_A, T_RB64))
    a("s_add_u32 s%d, s%d, %d" % (T_A, T_A, FL_C))
    poll(a, "fc", T_A, 32, V_L4, 9)
    a.label("L_f_d2")
    a("s_barrier")
    a.ts("k2")
    a.ts("kd_")
    DD = 2
    for l in a_stage(0):
        a(l)
    a("s_barrier")
    for l in a_stage(1):
        a(l)
    cb = 0

    def d_mfmas(j):
        F = V_AF[j % 2]
        return ["v_mfma_f32_32x32x16_bf16 %s, %s, %s, %s" % (vr(V_AD[ai], 16), vr(V_WD + 4 * (4 * j + q)), vr(F[q * 2 + ai]), "0" if (j == 0 and q == 0) else vr(V_AD[ai], 16))
                for q in range(4) for ai in range(2)]

    for j in range(7):
        slot = j % 5
        base, imm = (slot // 2) * 65536, (slot % 2) * 32768
        if base != cb:
            d = base - cb
            for r in V_AA:
                a("v_add_u32 v%d, %d, v%d" % (r, d, r) if d > 0 else "v_subrev_u32 v%d, %d, v%d" % (r, -d, r))
            cb = base
        a("s_waitcnt vmcnt(%d) lgkmcnt(0)" % (4 * (min(j + DD - 1, 6) - j)))
        a("s_barrier")
        a.ts("kd_")
        F = V_AF[j % 2]
        stg = a_stage(j + DD) if j + DD <= 6 else []
        for l in stg[:3]:
            a(l)
        for q in range(4):
            for ai in range(2):
                a("ds_read_b128 %s, v%d offset:%d" % (vr(F[q * 2 + ai]), V_AA[ai], imm + q * 1024))
        rest = stg[3:]
        for k, m in enumerate(d_mfmas(j)):
            a("s_waitcnt lgkmcnt(%d)" % (7 - k))
            a(m)
            if rest:
                a(rest.pop(0))
    a.ts("kd_")
    XD = 65536
    for x in range(1, 4):
        a("s_xor_b32 s%d, s%d, %d" % (T_A, S_WAVE, x << 1))
        a("s_mul_i32 s%d, s%d, 6144" % (T_A, T_A))
        a("s_add_u32 s%d, s%d, %d" % (T_A, T_A, XD + (x - 1) * 2048))
        a("v_add_u32 v%d, s%d, v%d" % (V_T + x, T_A, V_L16))
    a("s_mul_i32 s%d, s%d, 6144" % (T_A, S_WAVE))
    a("s_add_u32 s%d, s%d, %d" % (T_A, T_A, XD))
    a("v_add_u32 v%d, s%d, v%d" % (V_T, T_A, V_L16))
    src = {1: V_AD[1], 2: V_AD[0] + 8, 3: V_AD[1] + 8}
    for x in (2, 1, 3):
        for q in range(2):
            a("ds_write_b128 v%d, %s offset:%d" % (V_T + x, vr(src[x] + 4 * q), q * 1024))
    U = 32
    for d in range(4):
        a("v_lshlrev_b32 v%d, 16, v%d" % (U + 2 * d, V_HK + d))
        a("v_and_b32 v%d, s%d, v%d" % (U + 2 * d + 1, S_MASK, V_HK + d))
    for i in range(8):
        a("v_add_f32 v%d, v%d, v%d" % (V_AD[0] + i, V_AD[0] + i, U + i))
    srd(a, 12, 16, 2048 * 1024)
    a("v_and_b32 v%d, 31, v%d" % (V_T + 4, V_LANE))
    a("v_lshlrev_b32 v%d, 10, v%d" % (V_T + 4, V_T + 4))
    a("v_lshrrev_b32 v%d, 5, v%d" % (V_T + 5, V_LANE))
    a("v_lshl_add_u32 v%d, v%d, 3, v%d" % (V_T + 4, V_T + 5, V_T + 4))
    a("s_lshl_b32 s%d, s%d, 15" % (T_A, T_TBO))
    a("s_lshl_b32 s%d, s%d, 6" % (T_B, T_NBO))
    a("s_add_u32 s%d, s%d, s%d" % (T_A, T_A, T_B))
    a("s_lshl_b32 s%d, s%d, 5" % (T_B, T_HALF))
    a("s_add_u32 s%d, s%d, s%d" % (T_A, T_A, T_B))
    a("s_waitcnt lgkmcnt(0)")
    a("s_barrier")
    a.ts("kd_")
    R = 48
    for k in range(6):
        a("ds_read_b128 %s, v%d offset:%d" % (vr(R + 4 * k), V_T, k * 1024))
    for x in range(3):
        a("s_waitcnt lgkmcnt(%d)" % (4 - 2 * x))
        for i in range(8):
            a("v_add_f32 v%d, v%d, v%d" % (V_AD[0] + i, V_AD[0] + i, R + 8 * x + i))
    for i in range(4):
        a("v_cvt_pk_bf16_f32 v%d, v%d, v%d" % (U + i, V_AD[0] + 2 * i, V_AD[0] + 2 * i + 1))
    for q in range(2):
        a("buffer_store_dwordx2 %s, v%d, s[12:15], s%d offen offset:%d" % (vr(U + 2 * q, 2), V_T + 4, T_A, q * 16))
    a.ts_flush("k2", S_WAVE, V_T)
    a.ts_flush("kd_", S_WAVE, V_T)


FL_1 = WS_FL + 24576
P1_DIST = int(os.environ.get('P1_DIST', 3))
P1_ROT = int(os.environ.get('P1_ROT', 1))


def team_check(a, tag, vl4, vf, preissued=False):
    a("s_lshl_b32 s38, s%d, 5" % S_TEAM)
    a("s_mov_b32 s36, 0")
    if preissued:
        a("s_branch L_tc_%s_w" % tag)
    a.label("L_tc_%s" % tag)
    a("buffer_load_dword v%d, v%d, s[96:99], s38 offen sc1" % (vf, vl4))
    a.label("L_tc_%s_w" % tag)
    a("s_add_u32 s36, s36, 1")
    a("s_waitcnt vmcnt(0)")
    a("v_subrev_u32 v%d, 0x01010101, v%d" % (vf + 1, vf))
    a("v_not_b32 v%d, v%d" % (vf + 2, vf))
    a("v_and_b32 v%d, v%d, v%d" % (vf + 1, vf + 1, vf + 2))
    a("v_and_b32 v%d, 0x80808080, v%d" % (vf + 1, vf + 1))
    a("v_cmp_eq_u32 vcc, 0, v%d" % (vf + 1))
    a("s_cmp_gt_u32 s36, 0x40000")
    a("s_cbranch_scc1 L_tc_%s_d" % tag)
    a("s_and_b32 s37, vcc_lo, 0xff")
    a("s_cmp_lg_u32 s37, 0xff")
    a("s_cbranch_scc1 L_tc_%s" % tag)
    a.label("L_tc_%s_d" % tag)
    a("s_mul_i32 s37, s%d, 0x01010101" % S_XCC)
    a("v_cmp_eq_u32 vcc, s37, v%d" % vf)
    a("s_nop 3")
    a("s_or_b32 s%d, vcc_lo, 0xffffff00" % S_FAST)
    if not FASTPATH:
        a("s_and_b32 s%d, s%d, 0" % (S_FAST, S_FAST))


def phase1(a, E):
    S_WAVE, S_H, S_QB = E["S_WAVE"], E["S_H"], E["S_QB"]
    SL, NS = 32768, 4
    SCR = NS * SL
    SCR_CS, SCR_RS, SCR_BF = SCR, SCR + 1536, SCR + 2048
    S_W3, S_MASK, S_T0, S_T1, S_KX, S_KW, S_SLOT, S_CNT, S_M0X, S_M0W, S_RD, S_SLC = 43, 44, 45, 46, 47, 48, 49, 50, 51, 52, 53, 54
    S_TBI, S_G, S_O0, S_O1, S_O2, S_O3, S_O4 = 55, 56, 57, 58, 59, 60, 61
    V_LANE, V_L16, V_T = 1, 2, 3
    V_DX, V_DW, V_AX, V_AW = 10, 14, 15, 19
    V_SEL, V_SQ = 24, 28
    V_X = [32, 36]
    V_W = [[40, 44, 48], [52, 56, 60]]
    V_ACC = [64, 80, 96]
    V_CS = [112, 116, 120]
    V_TMP = 124
    a("s_and_b32 s%d, s%d, 3" % (S_W3, S_WAVE))
    a("s_mov_b32 s%d, 0xffff0000" % S_MASK)
    a("s_mov_b32 s%d, 0" % S_SLOT)
    a("s_mov_b32 s%d, 0" % S_CNT)

    def x_addr(sbase, sxor):
        a("v_and_b32 v%d, 31, v%d" % (V_T, V_LANE))
        a("v_and_b32 v%d, 3, v%d" % (V_T + 1, V_LANE))
        a("v_lshrrev_b32 v%d, 2, v%d" % (V_T + 2, V_T))
        a("v_lshlrev_b32 v%d, 7, v%d" % (V_T + 2, V_T + 2))
        a("v_lshl_add_u32 v%d, v%d, 10, v%d" % (V_T + 2, V_T + 1, V_T + 2))
        a("v_add_u32 v%d, s%d, v%d" % (V_T + 2, sbase, V_T + 2))
        a("v_lshrrev_b32 v%d, 1, v%d" % (V_T + 3, V_T))
        a("v_and_b32 v%d, 4, v%d" % (V_T + 3, V_T + 3))
        a("v_or_b32 v%d, v%d, v%d" % (V_T + 3, V_T + 3, V_T + 1))
        a("v_lshrrev_b32 v%d, 5, v%d" % (V_T + 4, V_LANE))
        a("v_xor_b32 v%d, v%d, v%d" % (V_T + 3, V_T + 3, V_T + 4))
        if sxor is not None:
            a("v_xor_b32 v%d, s%d, v%d" % (V_T + 3, sxor, V_T + 3))
        for ks in range(4):
            a("v_xor_b32 v%d, %d, v%d" % (V_T + 5, 2 * ks, V_T + 3))
            a("v_lshl_add_u32 v%d, v%d, 4, v%d" % (V_AX + ks, V_T + 5, V_T + 2))

    a("s_cmp_ge_u32 s%d, 4" % S_WAVE)
    a("s_cbranch_scc1 L_p1_comp")
    a("v_lshrrev_b32 v%d, 3, v%d" % (V_T, V_LANE))
    a("v_and_b32 v%d, 7, v%d" % (V_T + 1, V_LANE))
    a("v_lshrrev_b32 v%d, 2, v%d" % (V_T + 2, V_LANE))
    a("v_and_b32 v%d, 4, v%d" % (V_T + 2, V_T + 2))
    a("v_xor_b32 v%d, v%d, v%d" % (V_T + 1, V_T + 1, V_T + 2))
    a("v_mul_u32_u24 v%d, 3072, v%d" % (V_T + 3, V_T))
    a("v_lshl_add_u32 v%d, v%d, 4, v%d" % (V_DW, V_T + 1, V_T + 3))
    a("v_lshlrev_b32 v%d, 12, v%d" % (V_T, V_T))
    for q in range(4):
        a("v_xor_b32 v%d, %d, v%d" % (V_T + 3, q, V_T + 1))
        a("v_lshl_add_u32 v%d, v%d, 4, v%d" % (V_DX + q, V_T + 3, V_T))
    a("s_mul_i32 s%d, s%d, %d" % (S_KW, S_W3, 16 * 3072))
    a("s_lshl_b32 s%d, s%d, 7" % (S_T0, S_TEAM))
    a("s_add_u32 s%d, s%d, s%d" % (S_KW, S_KW, S_T0))
    a("s_mul_i32 s%d, s%d, 6144" % (S_M0W, S_W3))
    a("s_add_u32 s%d, s%d, 8192" % (S_M0W, S_M0W))
    a("s_and_b32 s%d, s%d, 1" % (S_T0, S_W3))
    a("s_lshl_b32 s%d, s%d, 12" % (S_M0X, S_T0))
    a("s_lshl_b32 s%d, s%d, 1" % (S_T1, S_MEM))
    a("s_add_u32 s%d, s%d, s%d" % (S_T1, S_T1, S_T0))
    a("s_lshl_b32 s%d, s%d, 15" % (S_KX, S_T1))
    a("s_waitcnt lgkmcnt(0)")
    srd(a, 12, 10, 2048 * 1024)
    srd(a, 28, 100, 512 * 3072)
    srd(a, 20, 8, WS_SIZE)
    a("s_mov_b32 s98, 256")
    a("s_mov_b32 s99, 0x00020000")

    S_KC, S_OX, S_OW = 55, 56, 57
    if P1_ROT:
        a("s_and_b32 s%d, s%d, 7" % (S_KC, S_MEM))
    else:
        a("s_mov_b32 s%d, 0" % S_KC)

    def issue(with_x):
        a("s_mul_i32 s%d, s%d, %d" % (S_OW, S_KC, 64 * 3072))
        a("s_add_u32 s%d, s%d, s%d" % (S_OW, S_OW, S_KW))
        if with_x:
            a("s_lshl_b32 s%d, s%d, 7" % (S_OX, S_KC))
            a("s_add_u32 m0, s%d, s%d" % (S_M0X, S_SLOT))
            a("s_add_u32 s%d, s%d, s%d" % (S_OX, S_OX, S_KX))
            for q in range(4 if DIAG not in ("noload", "nox") else 0):
                a("buffer_load_dwordx4 v%d, s[12:15], s%d offen offset:%d lds" % (V_DX + q, S_OX, q * 1024))
        a("s_add_u32 m0, s%d, s%d" % (S_M0W, S_SLOT))
        a("s_add_u32 s%d, s%d, %d" % (S_T0, S_OW, 8 * 3072))
        for sx in range(3 if DIAG != "noload" else 0):
            a("buffer_load_dwordx4 v%d, s[28:31], s%d offen offset:%d lds" % (V_DW, S_OW, sx * 1024))
        a("s_add_u32 m0, m0, 3072")
        a("s_add_u32 s%d, s%d, 1" % (S_KC, S_KC))
        for sx in range(3 if DIAG != "noload" else 0):
            a("buffer_load_dwordx4 v%d, s[28:31], s%d offen offset:%d lds" % (V_DW, S_T0, sx * 1024))
        a("s_and_b32 s%d, s%d, 7" % (S_KC, S_KC))
        a("s_add_u32 s%d, s%d, %d" % (S_SLOT, S_SLOT, SL))
        a("s_and_b32 s%d, s%d, %d" % (S_SLOT, S_SLOT, NS * SL - 1))

    D = P1_DIST
    a("s_cmp_lt_u32 s%d, 2" % S_WAVE)
    a("s_cbranch_scc1 L_p1_stat")
    a.label("L_p1_ld")
    issue(True)
    a("s_add_u32 s%d, s%d, 1" % (S_CNT, S_CNT))
    a("s_cmp_lt_u32 s%d, %d" % (S_CNT, D))
    a("s_cbranch_scc1 L_p1_ld")
    a("s_waitcnt vmcnt(%d)" % (10 * (D - 1)))
    a("s_barrier")
    a("s_cmp_lt_u32 s%d, 8" % S_CNT)
    a("s_cbranch_scc1 L_p1_ld")
    for r in range(D - 2, -1, -1):
        a("s_waitcnt vmcnt(%d)" % (10 * r))
        a("s_barrier")
    a("s_branch L_p1_hx")
    a.label("L_p1_stat")
    for _ in range(D - 1):
        issue(False)
    LX = [64, 68, 72, 76]
    L_SX = 92
    x_addr(S_M0X, None)
    make_sel(a, V_LANE, V_SEL, V_T)
    for r in [V_SQ, V_SQ + 1] + list(range(L_SX, L_SX + 4)):
        a("v_mov_b32 v%d, 0" % r)
    a("s_mov_b32 s%d, %d" % (S_SLC, SL))
    a.label("L_p1_st")
    a("s_cmp_gt_u32 s%d, %d" % (S_CNT, 8 - D))
    a("s_cbranch_scc1 L_p1_st2")
    issue(False)
    a("s_waitcnt vmcnt(%d)" % (6 * (D - 1)))
    a("s_branch L_p1_st3")
    a.label("L_p1_st2")
    if D == 3:
        a("s_cmp_eq_u32 s%d, 7" % S_CNT)
        a("s_cbranch_scc1 L_p1_st4")
        a("s_waitcnt vmcnt(6)")
        a("s_branch L_p1_st3")
        a.label("L_p1_st4")
    a("s_waitcnt vmcnt(0)")
    a.label("L_p1_st3")
    a("s_barrier")
    for ks in range(4):
        a("ds_read_b128 %s, v%d" % (vr(LX[ks]), V_AX + ks))
    a("s_add_u32 s%d, s%d, 1" % (S_CNT, S_CNT))
    a("s_and_b32 s%d, s%d, %d" % (S_T1, S_CNT, NS - 1))
    a("s_cmp_eq_u32 s%d, 0" % S_T1)
    a("s_cselect_b32 s%d, %d, s%d" % (S_RD, -(NS - 1) * SL, S_SLC))
    for ks in range(4):
        a("s_waitcnt lgkmcnt(%d)" % (3 - ks))
        a("v_mfma_f32_16x16x32_bf16 %s, %s, %s, %s" % (vr(L_SX), vr(V_SEL), vr(LX[ks]), vr(L_SX)))
        for d in range(4 if DIAG not in ("nostat", "nocompute") else 0):
            t0, t1 = V_TMP + 2 * (d % 2), V_TMP + 2 * (d % 2) + 1
            a("v_lshlrev_b32 v%d, 16, v%d" % (t0, LX[ks] + d))
            a("v_and_b32 v%d, s%d, v%d" % (t1, S_MASK, LX[ks] + d))
            a("v_fmac_f32 v%d, v%d, v%d" % (V_SQ, t0, t0))
            a("v_fmac_f32 v%d, v%d, v%d" % (V_SQ + 1, t1, t1))
    for r in range(V_AX, V_AX + 4):
        a("v_add_u32 v%d, s%d, v%d" % (r, S_RD, r))
    a("s_cmp_lt_u32 s%d, 8" % S_CNT)
    a("s_cbranch_scc1 L_p1_st")
    a("v_and_b32 v%d, 31, v%d" % (V_T, V_LANE))
    a("v_lshlrev_b32 v%d, 2, v%d" % (V_T, V_T))
    a("v_add_f32 v%d, v%d, v%d" % (V_SQ, V_SQ, V_SQ + 1))
    sum_halves(a, V_SQ, V_SQ + 1)
    V_MU, V_RS = V_SQ + 2, V_SQ + 3
    a("v_mul_f32 v%d, 0x%x, v%d" % (V_MU, f32bits(1.0 / 512), L_SX))
    a("v_mul_f32 v%d, 0x%x, v%d" % (V_SQ, f32bits(1.0 / 512), V_SQ))
    a("v_fma_f32 v%d, -v%d, v%d, v%d" % (V_SQ, V_MU, V_MU, V_SQ))
    a("v_max_f32 v%d, 0, v%d" % (V_SQ, V_SQ))
    a("v_add_f32 v%d, 0x%x, v%d" % (V_SQ, f32bits(1e-5), V_SQ))
    a("v_rsq_f32 v%d, v%d" % (V_RS, V_SQ))
    a("v_sub_f32 v%d, 0, v%d" % (V_MU, V_MU))
    a("s_lshl_b32 s%d, s%d, 7" % (S_T0, S_W3))
    a("s_add_u32 s%d, s%d, %d" % (S_T0, S_T0, SCR_RS))
    a("v_add_u32 v%d, s%d, v%d" % (V_T + 2, S_T0, V_T))
    a("ds_write_b32 v%d, v%d" % (V_T + 2, V_RS))
    split_hi_lo_B(a, V_MU, LX[0], V_T + 4, S_MASK)
    a("s_lshl_b32 s%d, s%d, 9" % (S_T0, S_W3))
    a("s_add_u32 s%d, s%d, %d" % (S_T0, S_T0, SCR_BF))
    a("v_lshl_add_u32 v%d, v%d, 3, s%d" % (V_T + 3, V_LANE, S_T0))
    a("ds_write_b64 v%d, %s" % (V_T + 3, vr(LX[0], 2)))
    a("s_waitcnt lgkmcnt(0)")
    a.label("L_p1_hx")
    a("s_barrier")
    team_check(a, "h", FV_L4, FV_F)
    a("s_cmp_lg_u32 s%d, 0" % S_WAVE)
    a("s_cbranch_scc1 L_p1_done")
    a("s_lshl_b32 s%d, s%d, 9" % (T_A, S_TEAM))
    a("s_bfe_u32 s%d, s%d, 0x10001" % (T_B, S_H))
    a("s_lshl_b32 s%d, s%d, 8" % (T_B, T_B))
    a("s_add_u32 s%d, s%d, s%d" % (T_A, T_A, T_B))
    a("s_add_u32 s%d, s%d, %d" % (T_A, T_A, FL_1))
    poll(a, "f1", T_A, 64, FV_L4, FV_F)
    a("s_branch L_p1_done")
    a.label("L_p1_comp")
    a("s_lshr_b32 s%d, s%d, 1" % (S_TBI, S_W3))
    a("s_and_b32 s%d, s%d, 1" % (S_G, S_W3))
    a("s_lshl_b32 s%d, s%d, 12" % (S_T0, S_TBI))
    a("s_lshl_b32 s%d, s%d, 1" % (S_T1, S_TBI))
    x_addr(S_T0, S_T1)
    a("v_bfe_u32 v%d, v%d, 2, 2" % (V_T, V_LANE))
    a("v_lshlrev_b32 v%d, 7, v%d" % (V_T + 1, V_T))
    a("v_lshrrev_b32 v%d, 1, v%d" % (V_T, V_T))
    a("v_xor_b32 v%d, s%d, v%d" % (V_T, S_G, V_T))
    a("v_lshl_add_u32 v%d, v%d, 6, v%d" % (V_T + 1, V_T, V_T + 1))
    a("v_bfe_u32 v%d, v%d, 4, 1" % (V_T, V_LANE))
    a("v_lshl_add_u32 v%d, v%d, 5, v%d" % (V_T + 1, V_T, V_T + 1))
    a("v_and_b32 v%d, 3, v%d" % (V_T, V_LANE))
    a("v_lshl_add_u32 v%d, v%d, 3, v%d" % (V_T + 1, V_T, V_T + 1))
    a("v_lshrrev_b32 v%d, 5, v%d" % (V_T + 2, V_LANE))
    a("v_mul_u32_u24 v%d, 3072, v%d" % (V_T, V_T + 2))
    a("v_add_u32 v%d, v%d, v%d" % (V_T + 1, V_T + 1, V_T))
    for p in range(2):
        a("s_xor_b32 s%d, s%d, %d" % (S_T0, S_TBI, p))
        a("s_mul_i32 s%d, s%d, 6144" % (S_T0, S_T0))
        a("s_add_u32 s%d, s%d, 8192" % (S_T0, S_T0))
        a("v_add_u32 v%d, s%d, v%d" % (V_AW + p, S_T0, V_T + 1))
    make_sel(a, V_LANE, V_SEL, V_T)
    V_ECW, V_ECS, V_ERS, V_ERV, V_EBF, V_OV = 10, 11, 12, 13, 14, 21
    a("v_and_b32 v%d, 31, v%d" % (V_T, V_LANE))
    a("v_lshlrev_b32 v%d, 2, v%d" % (V_T, V_T))
    a("s_mul_i32 s%d, s%d, 768" % (S_T0, S_G))
    a("s_add_u32 s%d, s%d, %d" % (S_T0, S_T0, SCR_CS))
    a("v_mul_u32_u24 v%d, 384, v%d" % (V_T + 3, V_T + 2))
    a("v_add3_u32 v%d, v%d, v%d, s%d" % (V_ECS, V_T + 3, V_T, S_T0))
    a("s_mul_i32 s%d, s%d, 384" % (S_T1, S_TBI))
    a("s_add_u32 s%d, s%d, s%d" % (S_T0, S_T0, S_T1))
    a("v_add_u32 v%d, s%d, v%d" % (V_ECW, S_T0, V_T))
    a("s_lshl_b32 s%d, s%d, 7" % (S_T0, S_TBI))
    a("s_add_u32 s%d, s%d, %d" % (S_T0, S_T0, SCR_RS))
    a("v_add_u32 v%d, s%d, v%d" % (V_ERS, S_T0, V_T))
    a("v_lshl_add_u32 v%d, v%d, 4, s%d" % (V_ERV, V_T + 2, S_T0))
    a("s_lshl_b32 s%d, s%d, 9" % (S_T0, S_TBI))
    a("s_add_u32 s%d, s%d, %d" % (S_T0, S_T0, SCR_BF))
    a("v_lshl_add_u32 v%d, v%d, 3, s%d" % (V_EBF, V_LANE, S_T0))
    a("v_bfe_u32 v%d, v%d, 4, 1" % (V_T + 1, V_LANE))
    a("v_lshlrev_b32 v%d, 16, v%d" % (V_T + 1, V_T + 1))
    a("v_lshl_add_u32 v%d, v%d, 8, v%d" % (V_T + 1, V_T + 2, V_T + 1))
    a("v_and_b32 v%d, 15, v%d" % (V_T + 2, V_LANE))
    a("v_lshl_add_u32 v%d, v%d, 4, v%d" % (V_OV, V_T + 2, V_T + 1))
    a("s_lshl_b32 s%d, s%d, 1" % (S_T0, S_MEM))
    a("s_add_u32 s%d, s%d, s%d" % (S_T0, S_T0, S_TBI))
    a("s_lshl_b32 s%d, s%d, 10" % (S_T0, S_T0))
    a("s_lshl_b32 s%d, s%d, 1" % (S_T1, S_TEAM))
    a("s_add_u32 s%d, s%d, s%d" % (S_T1, S_T1, S_G))
    a("s_lshl_b32 s%d, s%d, 17" % (S_T1, S_T1))
    a("s_add_u32 s%d, s%d, s%d" % (S_O0, S_T0, S_T1))
    a("s_add_u32 s%d, s%d, 65536" % (S_O1, S_O0))
    a("s_add_u32 s%d, s%d, %d" % (S_O2, S_O0, WS_K))
    a("s_add_u32 s%d, s%d, %d" % (S_O3, S_O1, WS_K))
    a("s_add_u32 s%d, s%d, %d" % (S_O4, S_O0, WS_V))
    VB = V_TMP
    VA = [V_TMP + 4, V_TMP + 8, V_TMP + 12]
    for r in (VB + 2, VB + 3):
        a("v_mov_b32 v%d, 0" % r)
    a("s_waitcnt lgkmcnt(0)")
    srd(a, 20, 8, WS_SIZE)
    a("s_mov_b32 s98, 256")
    a("s_mov_b32 s99, 0x00020000")
    a("s_cmp_lg_u32 s%d, 4" % S_WAVE)
    a("s_cbranch_scc1 L_p1_nz")
    Z = V_TMP + 20
    a("v_and_b32 v%d, 1, v%d" % (Z, V_LANE))
    a("v_bfe_u32 v%d, v%d, 1, 1" % (Z + 1, V_LANE))
    a("v_bfe_u32 v%d, v%d, 2, 1" % (Z + 2, V_LANE))
    a("v_bfe_u32 v%d, v%d, 1, 2" % (Z + 3, V_LANE))
    a("s_lshl_b32 s36, s%d, 10" % S_QB)
    a("s_lshl_b32 s37, s%d, 2" % S_H)
    a("s_add_u32 s36, s36, s37")
    a("v_lshl_add_u32 v%d, v%d, 8, s36" % (Z + 4, Z + 3))
    a("v_lshl_add_u32 v%d, v%d, 7, v%d" % (Z + 4, Z, Z + 4))
    a("s_and_b32 s36, s%d, 3" % S_MEM)
    a("s_lshl_b32 s37, s%d, 2" % S_TEAM)
    a("s_add_u32 s38, s36, s37")
    a("s_lshl_b32 s36, s38, 8")
    a("s_lshr_b32 s37, s%d, 2" % S_MEM)
    a("s_lshl_b32 s39, s37, 4")
    a("s_add_u32 s36, s36, s39")
    a("s_add_u32 s36, s36, %d" % (FL_B - WS_FL))
    a("v_lshl_add_u32 v%d, v%d, 7, s36" % (Z + 5, Z + 1))
    a("v_lshl_add_u32 v%d, v%d, 3, v%d" % (Z + 5, Z, Z + 5))
    a("v_lshl_add_u32 v%d, v%d, 2, v%d" % (Z + 5, Z + 2, Z + 5))
    a("s_lshr_b32 s36, s38, 1")
    a("s_lshl_b32 s36, s36, 8")
    a("s_lshl_b32 s37, s37, 1")
    a("s_and_b32 s39, s%d, 1" % S_MEM)
    a("s_add_u32 s37, s37, s39")
    a("s_lshl_b32 s37, s37, 2")
    a("s_add_u32 s36, s36, s37")
    a("s_add_u32 s36, s36, %d" % (FL_C - WS_FL))
    a("v_lshl_add_u32 v%d, v%d, 7, s36" % (Z + 6, Z + 1))
    a("v_lshl_add_u32 v%d, v%d, 6, v%d" % (Z + 6, Z, Z + 6))
    a("s_lshl_b32 s36, s2, 4")
    a("s_add_u32 s36, s36, %d" % (FL_P - WS_FL))
    a("v_and_b32 v%d, 3, v%d" % (Z + 7, V_LANE))
    a("v_lshl_add_u32 v%d, v%d, 2, s36" % (Z + 7, Z + 7))
    a("v_cmp_ne_u32 vcc, 0, v%d" % (Z + 2))
    a("s_lshl_b32 s36, s%d, 9" % S_TEAM)
    a("s_lshl_b32 s37, s%d, 3" % S_MEM)
    a("s_add_u32 s36, s36, s37")
    a("s_add_u32 s36, s36, %d" % (FL_1 - WS_FL))
    a("v_cndmask_b32 v%d, v%d, v%d, vcc" % (Z + 6, Z + 6, Z + 7))
    a("v_lshl_add_u32 v%d, v%d, 8, s36" % (Z + 7, Z))
    a("v_lshl_add_u32 v%d, v%d, 2, v%d" % (Z + 7, Z + 1, Z + 7))
    a("v_mov_b32 v%d, v%d" % (V_T, Z + 4))
    for k in range(1, 4):
        a("v_cmp_le_u32 vcc, %d, v%d" % (8 * k, V_LANE))
        a("s_nop 1")
        a("v_cndmask_b32 v%d, v%d, v%d, vcc" % (V_T, V_T, Z + 4 + k))
    a("v_mov_b32 v%d, 0" % (V_T + 1))
    a("s_mov_b32 s%d, %d" % (S_T0, WS_FL))
    a("s_mov_b64 exec, 0xffffffff")
    a("buffer_store_dword v%d, v%d, s[20:23], s%d offen sc1" % (V_T + 1, V_T, S_T0))
    a("s_lshl_b32 s%d, s%d, 5" % (S_T0, S_TEAM))
    a("s_add_u32 s%d, s%d, s%d" % (S_T0, S_T0, S_MEM))
    a("v_mov_b32 v%d, s%d" % (V_T + 2, S_XCC))
    a("s_mov_b64 exec, 1")
    a("s_waitcnt vmcnt(0)")
    a("buffer_store_byte v%d, v%d, s[96:99], s%d offen sc1" % (V_T + 2, V_T + 1, S_T0))
    a("s_mov_b64 exec, -1")
    a.label("L_p1_nz")
    cur_base = [0]

    def reads(P):
        st, pos = P // 4, P % 4
        slot = st % NS
        base, imm = (slot // 2) * 2 * SL, (slot % 2) * SL
        out = []
        if base != cur_base[0]:
            d = base - cur_base[0]
            for r in list(range(V_AX, V_AX + 4)) + [V_AW, V_AW + 1]:
                out.append("v_add_u32 v%d, %d, v%d" % (r, d, r) if d > 0 else "v_subrev_u32 v%d, %d, v%d" % (r, -d, r))
            cur_base[0] = base
        b = P % 2
        out.append("ds_read_b128 %s, v%d offset:%d" % (vr(V_X[b]), V_AX + pos, imm))
        for sx in range(3):
            for rd in range(2):
                out.append("ds_read_b64_tr_b16 %s, v%d offset:%d" % (vr(V_W[b][sx] + 2 * rd, 2), V_AW + (pos & 1), imm + (pos & 2) * 6144 + sx * 1024 + rd * 512))
        return out

    a("s_barrier")
    a.ts("k2")
    for l in reads(0):
        a(l)
    for P in range(32):
        st, pos = P // 4, P % 4
        b = P % 2
        a("s_waitcnt lgkmcnt(0)")
        if pos == 3 and P < 31:
            a("s_barrier")
        rd = reads(P + 1) if P < 31 else []
        X = vr(V_X[b])
        c = lambda r, n=16: ("0" if P == 0 else vr(r, n))
        m = []
        if pos % 2 == 0:
            for sx in range(3):
                m.append("v_mfma_f32_16x16x32_bf16 %s, %s, %s, %s" % (vr(V_CS[sx]), vr(V_SEL), vr(V_W[b][sx]), c(V_CS[sx], 4)))
        m.append("v_mfma_f32_32x32x16_bf16 %s, %s, %s, %s" % (vr(V_ACC[0], 16), vr(V_W[b][0]), X, c(V_ACC[0])))
        m.append("v_mfma_f32_32x32x16_bf16 %s, %s, %s, %s" % (vr(V_ACC[1], 16), vr(V_W[b][1]), X, c(V_ACC[1])))
        m.append("v_mfma_f32_32x32x16_bf16 %s, %s, %s, %s" % (vr(V_ACC[2], 16), X, vr(V_W[b][2]), c(V_ACC[2])))
        nfirst = 3 if len(rd) <= 8 else 9
        if P == 31:
            rd = ["ds_write_b32 v%d, v%d offset:%d" % (V_ECW, V_CS[sx], sx * 128) for sx in range(3)]
        if P == 20:
            rd = rd + ["s_lshl_b32 s38, s%d, 5" % S_TEAM, "buffer_load_dword v%d, v%d, s[96:99], s38 offen sc1" % (FV_F, FV_L4)]
        if DIAG == "nocompute" and P not in (20, 31):
            continue
        for l in rd[:nfirst]:
            a(l)
        for l in interleave(m, rd[nfirst:], per=2):
            a(l)
    a.ts("k2")
    a("s_waitcnt lgkmcnt(0)")
    a("s_barrier")
    VC = V_TMP + 16
    V_RS = V_TMP + 22
    V_RQ = V_TMP + 23
    VR = V_TMP + 24
    for sx in range(3):
        a("ds_read_b32 v%d, v%d offset:%d" % (VC + sx, V_ECS, sx * 128))
    a("ds_read_b64 %s, v%d" % (vr(VB, 2), V_EBF))
    a("ds_read_b32 v%d, v%d" % (V_RS, V_ERS))
    for q in range(4):
        a("ds_read_b128 %s, v%d offset:%d" % (vr(VR + 4 * q), V_ERV, q * 32))
    for sx in range(3):
        a("s_waitcnt lgkmcnt(%d)" % (8 - sx))
        split_hi_lo_A(a, VC + sx, VA[sx], V_T + 4, S_MASK)
    a("s_waitcnt lgkmcnt(4)")
    a("v_mul_f32 v%d, 0x%x, v%d" % (V_RQ, f32bits(0.25 * math.log2(math.e)), V_RS))
    a("v_mfma_f32_32x32x16_bf16 %s, %s, %s, %s" % (vr(V_ACC[0], 16), vr(VA[0]), vr(VB), vr(V_ACC[0], 16)))
    a("v_mfma_f32_32x32x16_bf16 %s, %s, %s, %s" % (vr(V_ACC[1], 16), vr(VA[1]), vr(VB), vr(V_ACC[1], 16)))
    a("v_mfma_f32_32x32x16_bf16 %s, %s, %s, %s" % (vr(V_ACC[2], 16), vr(VB), vr(VA[2]), vr(V_ACC[2], 16)))
    team_check(a, "c", FV_L4, FV_F, preissued=True)
    VO = V_X[0]
    k = 0
    stores = []
    for blk, sc, soffs in ((1, V_RS, (S_O2, S_O3)), (0, V_RQ, (S_O0, S_O1))):
        for half in range(2):
            o = VO + 4 * k
            k += 1
            for i in range(8):
                r = V_ACC[blk] + 8 * half + i
                a("v_mul_f32 v%d, v%d, v%d" % (r, sc, r))
            for i in range(4):
                r = V_ACC[blk] + 8 * half + 2 * i
                a("v_cvt_pk_bf16_f32 v%d, v%d, v%d" % (o + i, r, r + 1))
            stores.append("buffer_store_dwordx4 %s, v%d, s[20:23], s%d offen" % (vr(o), V_L16, soffs[half]))
        hstore(a, "p1%d" % blk, stores)
        stores = []
    a("s_waitcnt lgkmcnt(0)")
    for half in range(2):
        o = VO + 4 * k
        k += 1
        for i in range(8):
            r = V_ACC[2] + 8 * half + i
            a("v_mul_f32 v%d, v%d, v%d" % (r, VR + 8 * half + i, r))
        for i in range(4):
            r = V_ACC[2] + 8 * half + 2 * i
            a("v_cvt_pk_bf16_f32 v%d, v%d, v%d" % (o + i, r, r + 1))
        stores.append("buffer_store_dwordx4 %s, v%d, s[20:23], s%d offen offset:%d" % (vr(o), V_OV, S_O4, half * 512))
    hstore(a, "p1v", stores)
    a("s_lshl_b32 s%d, s%d, 9" % (T_A, S_TEAM))
    a("s_lshl_b32 s%d, s%d, 8" % (T_B, S_G))
    a("s_add_u32 s%d, s%d, s%d" % (T_A, T_A, T_B))
    a("s_lshl_b32 s%d, s%d, 1" % (T_B, S_MEM))
    a("s_add_u32 s%d, s%d, s%d" % (T_B, T_B, S_TBI))
    a("s_lshl_b32 s%d, s%d, 2" % (T_B, T_B))
    a("s_add_u32 s%d, s%d, s%d" % (T_A, T_A, T_B))
    a("s_add_u32 s%d, s%d, %d" % (T_A, T_A, FL_1))
    a("s_waitcnt vmcnt(0)")
    set_flag(a, T_A, V_T, "f1")
    a.label("L_p1_done")


def gen_f(a):
    name = NAME + "_kernel"
    kernel_begin(a, name)
    S_WAVE, S_H, S_QB, S_T0, S_T1, S_T2, S_T3 = 40, 41, 42, 43, 44, 45, 46
    S_ITER, S_SYNC, S_PASS, S_NT = 47, 48, 49, 50
    S_TASK, S_STG, S_DST0, S_DST1, S_TYPE = 51, 52, 53, 54, 55
    S_VMASK = 56
    S_CS = 58
    S_KB, S_W1K, S_CH = 59, 60, 61
    S_PE, S_PO, S_PS = 36, 37, 38
    V_LANE, V_L16, V_T = 1, 2, 3
    V_KA, V_VA = 10, 11
    V_Q = 12
    V_K = [16, 20]
    V_V = [24, 32]
    V_P = 40
    V_CM = 48
    V_S = [64, 80]
    V_O = 96
    V_MAX = 112
    V_PK = 113
    V_PD = 114
    V_SEL = 116
    V_PCS = [120, 124]
    STG = 131072
    a("s_cmp_ge_u32 s2, 256")
    a("s_cbranch_scc1 L_f_end")
    a.ts("k2")
    pass
    a("s_load_dwordx2 s[8:9], s[0:1], %d" % ARG_WS)
    a("s_load_dwordx2 s[4:5], s[0:1], %d" % ARG_WO)
    a("s_load_dwordx4 s[24:27], s[0:1], %d" % ARG_WG)
    a("s_load_dwordx2 s[6:7], s[0:1], %d" % ARG_WD)
    a("s_load_dwordx2 s[10:11], s[0:1], %d" % ARG_X)
    a("s_load_dwordx2 s[16:17], s[0:1], %d" % ARG_OUT)
    a("s_load_dwordx2 s[100:101], s[0:1], %d" % ARG_WQKV)
    a("s_load_dwordx2 s[96:97], s[0:1], %d" % ARG_DBG)
    a("v_lshrrev_b32 v%d, 6, v0" % V_T)
    a("v_and_b32 v%d, 63, v0" % V_LANE)
    a("v_readfirstlane_b32 s%d, v%d" % (S_WAVE, V_T))
    a("v_lshlrev_b32 v%d, 4, v%d" % (V_L16, V_LANE))
    a("s_lshr_b32 s%d, s2, 3" % S_MEM)
    a("s_and_b32 s%d, s2, 7" % S_TEAM)
    if AMAP:
        a("s_lshr_b32 s%d, s2, 3" % S_H)
        a("s_and_b32 s%d, s2, 7" % S_QB)
    else:
        a("s_and_b32 s%d, s2, 7" % S_H)
        a("s_lshl_b32 s%d, s%d, 2" % (S_H, S_H))
        a("s_lshr_b32 s%d, s2, 6" % S_T0)
        a("s_add_u32 s%d, s%d, s%d" % (S_H, S_H, S_T0))
        a("s_lshr_b32 s%d, s2, 3" % S_QB)
        a("s_and_b32 s%d, s%d, 7" % (S_QB, S_QB))
    a("s_lshr_b32 s%d, s%d, 2" % (S_T0, S_WAVE))
    a("s_lshl_b32 s%d, s%d, 8" % (S_T0, S_T0))
    a("v_xor_b32 v%d, s%d, v%d" % (FV_LX, S_T0, V_L16))
    a("v_lshlrev_b32 v%d, 2, v%d" % (FV_L4, V_LANE))
    a("v_mov_b32 v%d, 0" % (FV_F + 3))
    a("s_getreg_b32 s%d, hwreg(HW_REG_XCC_ID)" % S_XCC)
    a("s_and_b32 s%d, s%d, 15" % (S_XCC, S_XCC))
    a("s_add_u32 s%d, s%d, 1" % (S_XCC, S_XCC))
    phase1(a, locals())
    a("s_lshl_b32 s%d, s%d, 16" % (S_KB, S_H))
    a("s_lshl_b32 s%d, s%d, 10" % (S_W1K, S_WAVE))
    a("s_add_u32 s%d, s%d, s%d" % (S_KB, S_KB, S_W1K))
    a("s_lshl_b32 s%d, s%d, 13" % (S_CH, S_QB))
    a("s_add_u32 s%d, s%d, s%d" % (S_T3, S_KB, S_CH))
    a("s_add_u32 s%d, s%d, %d" % (S_KB, S_KB, WS_K))
    if not K2_ROT:
        a("s_mov_b32 s%d, 0" % S_CH)
    a("s_mov_b32 s39, s%d" % S_T3)

    def kv_dma(c):
        return [["s_add_u32 s%d, s%d, s%d" % (S_T3, S_KB, S_CH),
                 "s_add_u32 m0, s%d, %d" % (S_W1K, c * 8192),
                 "s_add_u32 s%d, s%d, 8192" % (S_CH, S_CH),
                 "buffer_load_dwordx4 v%d, s[20:23], s%d offen sc1 lds" % (V_L16, S_T3)],
                ["s_add_u32 s%d, s%d, %d" % (S_T3, S_T3, WS_V - WS_K),
                 "s_add_u32 m0, s%d, %d" % (S_W1K, 65536 + c * 8192),
                 "s_and_b32 s%d, s%d, 0xffff" % (S_CH, S_CH),
                 "buffer_load_dwordx4 v%d, s[20:23], s%d offen sc1 lds" % (V_L16, S_T3)]]

    a("s_mov_b32 s%d, 0" % S_TYPE)
    a("s_cmp_ge_u32 s%d, 4" % S_WAVE)
    a("s_cbranch_scc1 L_f_nopack")
    a("s_lshl_b32 s%d, s2, 2" % S_TASK)
    a("s_add_u32 s%d, s%d, s%d" % (S_TASK, S_TASK, S_WAVE))
    a("s_cmp_ge_u32 s%d, 736" % S_TASK)
    a("s_cbranch_scc1 L_f_nopack")
    a("s_lshl_b32 s%d, s%d, 13" % (S_STG, S_WAVE))
    a("s_add_u32 s%d, s%d, %d" % (S_STG, S_STG, STG))
    a("v_lshrrev_b32 v%d, 2, v%d" % (V_T, V_LANE))
    a("v_and_b32 v%d, 3, v%d" % (V_T + 1, V_LANE))
    a("s_cmp_ge_u32 s%d, 448" % S_TASK)
    a("s_cbranch_scc1 L_f_packn")
    a("s_mov_b32 s%d, 1" % S_TYPE)
    srd(a, 28, 24, 512 * 3584)
    srd(a, 32, 26, 512 * 3584)
    a("v_mul_u32_u24 v%d, 3584, v%d" % (V_T, V_T))
    a("v_lshl_add_u32 v%d, v%d, 4, v%d" % (V_PD, V_T + 1, V_T))
    a("s_and_b32 s%d, s%d, 7" % (S_T0, S_TASK))
    a("s_lshr_b32 s%d, s%d, 3" % (S_T1, S_TASK))
    a("s_mul_i32 s%d, s%d, %d" % (S_PE, S_T0, 64 * 3584))
    a("s_lshl_b32 s%d, s%d, 6" % (S_T2, S_T1))
    a("s_add_u32 s%d, s%d, s%d" % (S_PE, S_PE, S_T2))
    a("s_mov_b32 s%d, s%d" % (S_PO, S_PE))
    a("s_mov_b32 s%d, %d" % (S_PS, 16 * 3584))
    for hb, sd in ((0, S_DST0), (1, S_DST1)):
        a("s_lshl_b32 s%d, s%d, 1" % (S_T2, S_T1))
        if hb:
            a("s_add_u32 s%d, s%d, 1" % (S_T2, S_T2))
        a("s_mul_i32 s%d, s%d, 9363" % (S_CS, S_T2))
        a("s_lshr_b32 s%d, s%d, 16" % (S_CS, S_CS))
        a("s_mul_i32 s%d, s%d, 7" % (sd, S_CS))
        a("s_sub_u32 s%d, s%d, s%d" % (sd, S_T2, sd))
        a("s_mul_i32 s%d, s%d, %d" % (S_CS, S_CS, 32 * 7))
        a("s_add_u32 s%d, s%d, s%d" % (sd, sd, S_CS))
        a("s_mul_i32 s%d, s%d, 28" % (S_CS, S_T0))
        a("s_add_u32 s%d, s%d, s%d" % (sd, sd, S_CS))
        a("s_lshl_b32 s%d, s%d, 10" % (sd, sd))
        a("s_add_u32 s%d, s%d, %d" % (sd, sd, WS_GU))
    a("s_lshl_b32 s%d, s%d, 11" % (S_CS, S_T1))
    a("s_lshr_b32 s%d, s%d, 2" % (S_T2, S_T0))
    a("s_lshl_b32 s%d, s%d, 9" % (S_T2, S_T2))
    a("s_add_u32 s%d, s%d, s%d" % (S_CS, S_CS, S_T2))
    a("s_and_b32 s%d, s%d, 3" % (S_T2, S_T0))
    a("s_lshl_b32 s%d, s%d, 2" % (S_T2, S_T2))
    a("s_add_u32 s%d, s%d, s%d" % (S_CS, S_CS, S_T2))
    a("s_add_u32 s%d, s%d, %d" % (S_CS, S_CS, WS_CS))
    a("s_branch L_f_nopack")
    a.label("L_f_packn")
    a("s_mov_b32 s%d, 2" % S_TYPE)
    a("v_lshlrev_b32 v%d, 10, v%d" % (V_T, V_T))
    a("v_lshl_add_u32 v%d, v%d, 4, v%d" % (V_PD, V_T + 1, V_T))
    a("s_cmp_ge_u32 s%d, 512" % S_TASK)
    a("s_cbranch_scc1 L_f_packd")
    srd(a, 28, 4, 512 * 1024)
    srd(a, 32, 4, 512 * 1024)
    a("s_sub_u32 s%d, s%d, 448" % (S_T0, S_TASK))
    a("s_lshr_b32 s%d, s%d, 2" % (S_T1, S_T0))
    a("s_and_b32 s%d, s%d, 3" % (S_T0, S_T0))
    a("s_lshl_b32 s%d, s%d, 15" % (S_DST0, S_T1))
    a("s_add_u32 s%d, s%d, %d" % (S_DST0, S_DST0, WS_WO))
    a("s_branch L_f_packc")
    a.label("L_f_packd")
    srd(a, 28, 6, 1792 * 1024)
    srd(a, 32, 6, 1792 * 1024)
    a("s_sub_u32 s%d, s%d, 512" % (S_T0, S_TASK))
    a("s_mul_i32 s%d, s%d, 4682" % (S_T1, S_T0))
    a("s_lshr_b32 s%d, s%d, 16" % (S_T1, S_T1))
    a("s_mul_i32 s%d, s%d, 14" % (S_T2, S_T1))
    a("s_sub_u32 s%d, s%d, s%d" % (S_T0, S_T0, S_T2))
    a("s_mul_i32 s%d, s%d, %d" % (S_DST0, S_T1, 112 * 1024))
    a("s_add_u32 s%d, s%d, %d" % (S_DST0, S_DST0, WS_WD))
    a.label("L_f_packc")
    a("s_lshl_b32 s%d, s%d, 13" % (S_T2, S_T0))
    a("s_add_u32 s%d, s%d, s%d" % (S_DST0, S_DST0, S_T2))
    a("s_lshl_b32 s%d, s%d, 17" % (S_PE, S_T0))
    a("s_lshl_b32 s%d, s%d, 6" % (S_T2, S_T1))
    a("s_add_u32 s%d, s%d, s%d" % (S_PE, S_PE, S_T2))
    a("s_add_u32 s%d, s%d, 16384" % (S_PO, S_PE))
    a("s_mov_b32 s%d, 32768" % S_PS)
    a.label("L_f_nopack")
    a("s_mov_b32 s%d, 0x0000ffff" % S_VMASK)
    a("s_mov_b32 s%d, 0x0000ffff" % (S_VMASK + 1))
    a("v_and_b32 v%d, 27, v%d" % (V_T, V_LANE))
    a("v_cmp_eq_u32 vcc, 16, v%d" % V_T)
    a("v_mov_b32 v%d, 0x%x" % (V_T + 1, ONES_BF16))
    a("s_nop 1")
    a("v_cndmask_b32 v%d, 0, v%d, vcc" % (V_V[0], V_T + 1))
    for i in range(1, 16):
        a("v_mov_b32 v%d, v%d" % (V_V[0] + i, V_V[0]))
    a("s_mov_b32 s%d, 7" % S_SYNC)
    a("s_mov_b32 s%d, 0" % S_PASS)
    a("s_mov_b32 s%d, 1" % S_NT)
    a("s_setprio 3")
    a("s_barrier")
    a.ts("k2")
    a("buffer_load_dwordx4 %s, v%d, s[20:23], s39 offen sc1" % (vr(V_Q), V_L16))
    for c in range(2):
        for g in kv_dma(c):
            for l in g:
                a(l)
    a("s_waitcnt vmcnt(2)")
    pass
    a("s_barrier")
    a.ts("k2")
    pass
    a.label("L_f_maxpass")
    a("v_mov_b32 v%d, 0xff800000" % V_MAX)
    a("v_mov_b32 v%d, v%d" % (V_KA, V_L16))
    a.label("L_f_mloop")
    a("ds_read_b128 %s, v%d" % (vr(V_K[0]), V_KA))
    a("v_add_u32 v%d, 1024, v%d" % (V_KA, V_KA))
    a("s_waitcnt lgkmcnt(0)")
    a("v_mfma_f32_32x32x16_bf16 %s, %s, %s, 0" % (vr(V_S[0], 16), vr(V_K[0]), vr(V_Q)))
    a("s_nop 15")
    for i in range(8):
        a("v_max3_f32 v%d, v%d, v%d, v%d" % (V_MAX, V_S[0] + 2 * i, V_S[0] + 2 * i + 1, V_MAX))
    a("s_sub_u32 s%d, s%d, 1" % (S_NT, S_NT))
    a("s_cmp_lg_u32 s%d, 0" % S_NT)
    a("s_cbranch_scc1 L_f_mloop")
    a("v_mov_b32 v%d, v%d" % (V_KA, V_L16))
    a("v_lshrrev_b32 v%d, 5, v%d" % (V_T, V_LANE))
    a("v_lshlrev_b32 v%d, 8, v%d" % (V_T, V_T))
    a("v_and_b32 v%d, 15, v%d" % (V_T + 1, V_LANE))
    a("v_lshl_add_u32 v%d, v%d, 4, v%d" % (V_VA, V_T + 1, V_T))
    a("v_add_u32 v%d, 65536, v%d" % (V_VA, V_VA))
    a("ds_read_b128 %s, v%d" % (vr(V_K[0]), V_KA))
    a("ds_read_b128 %s, v%d offset:1024" % (vr(V_K[1]), V_KA))
    a("s_mov_b64 exec, s[%d:%d]" % (S_VMASK, S_VMASK + 1))
    a("ds_read_b128 %s, v%d" % (vr(V_V[0]), V_VA))
    a("ds_read_b128 %s, v%d offset:512" % (vr(V_V[0] + 4), V_VA))
    a("s_mov_b64 exec, -1")
    a("v_mov_b32 v%d, v%d" % (V_T, V_MAX))
    a("s_nop 1")
    a("v_permlane32_swap_b32 v%d, v%d" % (V_MAX, V_T))
    a("s_nop 1")
    a("v_max_f32 v%d, v%d, v%d" % (V_MAX, V_MAX, V_T))
    for i in range(16):
        a("v_sub_f32 v%d, 0, v%d" % (V_CM + i, V_MAX))
    a("s_waitcnt lgkmcnt(0)")
    a("s_nop 0")
    a("v_mfma_f32_32x32x16_bf16 %s, %s, %s, %s" % (vr(V_S[0], 16), vr(V_K[0]), vr(V_Q), vr(V_CM, 16)))
    for i in range(16):
        a("v_mov_b32 v%d, 0" % (V_O + i))
    for i in range(4):
        a("v_mov_b32 v%d, 0" % (V_P + 4 + i))
    a("s_mov_b32 s%d, 8" % S_ITER)
    a("s_cmp_lg_u32 s%d, 0" % S_PASS)
    a("s_cbranch_scc1 L_f_loop")

    def body(peeled):
        for t in range(8):
            cur, nxt = t % 2, (t + 1) % 2
            x1, x2 = [], []
            if peeled:
                if t < 6:
                    x1, x2 = kv_dma(t + 2)
                if t == 6:
                    a("s_waitcnt vmcnt(12)")
                    a("s_barrier")
                if t >= 6:
                    lab = "L_f_np%d" % t
                    x1 = ["s_cmp_eq_u32 s%d, 0" % S_TYPE, "s_cbranch_scc1 %s" % lab]
                    for i in range(4 * (t - 6), 4 * (t - 6) + 4):
                        x1 += ["s_add_u32 m0, s%d, %d" % (S_STG, i * 1024), "s_nop 0",
                               "buffer_load_dwordx4 v%d, s[%d:%d], s%d offen lds" % (V_PD, 28 + 4 * (i % 2), 31 + 4 * (i % 2), S_PO if i % 2 else S_PE),
                               "s_add_u32 s%d, s%d, s%d" % ((S_PO, S_PO, S_PS) if i % 2 else (S_PE, S_PE, S_PS))]
                    x1 += [lab + ":"]
            else:
                if t == 0:
                    for k, r in enumerate((5, 2, 1)):
                        x1 += ["s_cmp_lg_u32 s%d, %d" % (S_ITER, r), "s_cbranch_scc1 L_f_pp%d" % k, "s_setprio %d" % (2 - k), "L_f_pp%d:" % k]
                if t == 6:
                    a("s_cmp_eq_u32 s%d, s%d" % (S_ITER, S_SYNC))
                    a("s_cbranch_scc1 L_f_event")
                    a.label("L_f_syncret")
            S = V_S[cur]
            e = lambda i: "v_exp_f32 v%d, v%d" % (S + i, S + i)
            c = lambda i: "v_cvt_pk_bf16_f32 v%d, v%d, v%d" % (V_P + i, S + 2 * i, S + 2 * i + 1)
            pv = lambda b, h: "v_mfma_f32_32x32x16_bf16 %s, %s, %s, %s" % (vr(V_O, 16), vr(V_V[b] + 4 * h), vr(V_P + 4 * h), vr(V_O, 16))
            qk = "v_mfma_f32_32x32x16_bf16 %s, %s, %s, %s" % (vr(V_S[nxt], 16), vr(V_K[nxt]), vr(V_Q), vr(V_CM, 16))
            rdk = "ds_read_b128 %s, v%d offset:%d" % (vr(V_K[cur]), V_KA, (t + 2) * 1024)
            rdv = ["s_mov_b64 exec, s[%d:%d]" % (S_VMASK, S_VMASK + 1),
                   "ds_read_b128 %s, v%d offset:%d" % (vr(V_V[nxt]), V_VA, (t + 1) * 1024),
                   "ds_read_b128 %s, v%d offset:%d" % (vr(V_V[nxt] + 4), V_VA, (t + 1) * 1024 + 512),
                   "s_mov_b64 exec, -1"]
            seq = [e(0), e(1), pv(nxt, 1), e(2), "s_waitcnt lgkmcnt(0)", rdk, e(3)] + rdv + [c(0), e(4), e(5), c(1), e(6), e(7), qk, c(2), e(8)] + x1 + [e(9), c(3),
                   e(10), e(11), c(4), e(12), e(13), pv(cur, 0), c(5), e(14)] + x2 + [e(15), c(6)]
            if t == 7:
                seq += ["v_add_u32 v%d, 8192, v%d" % (V_KA, V_KA), "v_add_u32 v%d, 8192, v%d" % (V_VA, V_VA),
                        "s_sub_u32 s%d, s%d, 1" % (S_ITER, S_ITER), "s_cmp_lg_u32 s%d, 0" % S_ITER]
            seq += [c(7)]
            for l in seq:
                if l.endswith(":"):
                    a.label(l[:-1])
                else:
                    a(l)

    body(True)
    a.raw(".p2align 6")
    a.label("L_f_loop")
    body(False)
    a("s_cbranch_scc1 L_f_loop")
    a("s_nop 1")
    a("v_mfma_f32_32x32x16_bf16 %s, %s, %s, %s" % (vr(V_O, 16), vr(V_V[1] + 4), vr(V_P + 4), vr(V_O, 16)))
    a("s_waitcnt lgkmcnt(0)")
    a("s_lshl_b32 s%d, s%d, 3" % (S_T0, S_QB))
    a("s_add_u32 s%d, s%d, s%d" % (S_T0, S_T0, S_WAVE))
    a("s_lshl_b32 s%d, s%d, 5" % (S_T0, S_T0))
    a("s_add_u32 s%d, s%d, s%d" % (S_T0, S_T0, S_H))
    a("s_lshl_b32 s%d, s%d, 10" % (S_T0, S_T0))
    a("s_add_u32 s%d, s%d, %d" % (S_T0, S_T0, WS_O))
    a("s_nop 7")
    a("v_mul_f32 v%d, 0, v%d" % (V_T, V_O))
    for i in range(1, 8):
        a("v_fmac_f32 v%d, 0, v%d" % (V_T, V_O + i))
    a("v_add_f32 v%d, v%d, v%d" % (V_T, V_T, V_O + 8))
    a("v_cmp_gt_f32 vcc, 0x%x, v%d" % (f32bits(2.0 ** 100), V_T))
    a("v_rcp_f32 v%d, v%d" % (V_T + 1, V_O + 8))
    a("s_cmp_lg_u32 s%d, 0" % S_PASS)
    a("s_cbranch_scc1 L_f_fin")
    a("s_cmp_eq_u64 vcc, exec")
    a("s_cbranch_scc1 L_f_fin")
    a("s_mov_b32 s%d, 1" % S_PASS)
    a("s_mov_b32 s%d, 64" % S_NT)
    a("s_branch L_f_maxpass")
    a.label("L_f_fin")
    for i in range(8):
        a("v_mul_f32 v%d, v%d, v%d" % (V_O + i, V_T + 1, V_O + i))
    for i in range(4):
        a("v_cvt_pk_bf16_f32 v%d, v%d, v%d" % (V_P + i, V_O + 2 * i, V_O + 2 * i + 1))
    if AMAP:
        hstore(a, "o", ["buffer_store_dwordx4 %s, v%d, s[20:23], s%d offen" % (vr(V_P), V_L16, S_T0)])
    else:
        a("buffer_store_dwordx4 %s, v%d, s[20:23], s%d offen sc1" % (vr(V_P), V_L16, S_T0))
    fused_tail(a, locals())
    a.label("L_f_end")
    a("s_endpgm")
    fused_events(a, locals())
    a.label("L_f_sync")
    a("s_mov_b32 s%d, 6" % S_SYNC)
    a("s_cmp_eq_u32 s%d, 0" % S_TYPE)
    a("s_cbranch_scc1 L_f_sy0")
    a("s_waitcnt vmcnt(8)")
    a("s_barrier")
    a("s_branch L_f_syncret")
    a.label("L_f_sy0")
    a("s_waitcnt vmcnt(0)")
    a("s_barrier")
    a("s_branch L_f_syncret")
    a.label("L_f_ev6")
    a("s_mov_b32 s%d, 5" % S_SYNC)
    a("s_cmp_eq_u32 s%d, 0" % S_TYPE)
    a("s_cbranch_scc1 L_f_syncret")
    a("s_waitcnt vmcnt(0)")
    a("v_bfe_u32 v%d, v%d, 2, 2" % (V_T, V_LANE))
    a("v_lshrrev_b32 v%d, 5, v%d" % (V_T + 1, V_LANE))
    a("v_lshl_add_u32 v%d, v%d, 2, v%d" % (V_T, V_T + 1, V_T))
    a("v_lshlrev_b32 v%d, 6, v%d" % (V_T, V_T))
    a("v_and_b32 v%d, 3, v%d" % (V_T + 1, V_LANE))
    a("v_lshl_add_u32 v%d, v%d, 3, v%d" % (V_T, V_T + 1, V_T))
    a("v_add_u32 v%d, s%d, v%d" % (V_T, S_STG, V_T))
    a("v_bfe_u32 v%d, v%d, 4, 1" % (V_T + 1, V_LANE))
    FB = [128 + 4 * i for i in range(8)]
    a("s_cmp_eq_u32 s%d, 2" % S_TYPE)
    a("s_cbranch_scc1 L_f_pk2")
    a("v_lshl_add_u32 v%d, v%d, 10, v%d" % (V_PK, V_T + 1, V_T))
    for ks in range(4):
        for hb in range(2):
            for rd in range(2):
                a("ds_read_b64_tr_b16 %s, v%d offset:%d" % (vr(FB[ks * 2 + hb] + 2 * rd, 2), V_PK, ks * 2048 + hb * 32 + rd * 512))
    make_sel(a, V_LANE, V_SEL, V_T + 2)
    a("v_and_b32 v%d, 31, v%d" % (V_T, V_LANE))
    a("v_lshlrev_b32 v%d, 4, v%d" % (V_T, V_T))
    a("s_waitcnt lgkmcnt(0)")
    for ks in range(4):
        for hb in range(2):
            a("v_mfma_f32_16x16x32_bf16 %s, %s, %s, %s" % (vr(V_PCS[hb]), vr(V_SEL), vr(FB[ks * 2 + hb]), "0" if ks == 0 else vr(V_PCS[hb])))
            a("buffer_store_dwordx4 %s, v%d, s[20:23], s%d offen sc1" % (vr(FB[ks * 2 + hb]), V_L16, (S_DST0, S_DST1)[hb]))
        a("s_add_u32 s%d, s%d, 7168" % (S_DST0, S_DST0))
        a("s_add_u32 s%d, s%d, 7168" % (S_DST1, S_DST1))
    a("s_nop 7")
    a("buffer_store_dword v%d, v%d, s[20:23], s%d offen sc1" % (V_PCS[0], V_T, S_CS))
    a("buffer_store_dword v%d, v%d, s[20:23], s%d offen offset:1024 sc1" % (V_PCS[1], V_T, S_CS))
    a("s_branch L_f_syncret")
    a.label("L_f_pk2")
    a("v_lshl_add_u32 v%d, v%d, 5, v%d" % (V_PK, V_T + 1, V_T))
    a("s_add_u32 s%d, s%d, 4096" % (S_DST1, S_DST0))
    for f in range(8):
        for rd in range(2):
            a("ds_read_b64_tr_b16 %s, v%d offset:%d" % (vr(FB[f] + 2 * rd, 2), V_PK, f * 1024 + rd * 512))
    a("s_waitcnt lgkmcnt(0)")
    for f in range(8):
        a("buffer_store_dwordx4 %s, v%d, s[20:23], s%d offen offset:%d sc1" % (vr(FB[f]), V_L16, S_DST0 if f < 4 else S_DST1, (f % 4) * 1024))
    a("s_branch L_f_syncret")
    return name, 256, 0, (256, 512, 163840)


def gen_k35(a, which):
    name = "k3_wo_kernel" if which == 3 else "k5_down_kernel"
    L = "L_k%d_" % which
    kernel_begin(a, name)
    NS = 8 if which == 3 else 28
    STEPS = 32 if which == 3 else 112
    WIN = 8 if which == 3 else 14
    A_BASE = WS_O if which == 3 else WS_A
    W_BASE = WS_WO if which == 3 else WS_WD
    S_WAVE, S_RB, S_CG, S_T0, S_T1 = 24, 25, 26, 27, 28
    S_A = [30, 31]
    S_W = [32, 33]
    S_TB, S_NB = 34, 35
    V_LANE, V_L16, V_T = 1, 2, 3
    V_RES = 12
    V_ACC = [32, 48, 64, 80]
    V_RD = 96
    a("s_cmp_ge_u32 s2, 256")
    a("s_cbranch_scc1 %send" % L)
    a.ts("k%d" % which)
    a("s_load_dwordx2 s[8:9], s[0:1], %d" % ARG_WS)
    a("s_load_dwordx2 s[4:5], s[0:1], %d" % (ARG_X if which == 3 else ARG_OUT))
    a("v_lshrrev_b32 v%d, 6, v0" % V_T)
    a("v_and_b32 v%d, 63, v0" % V_LANE)
    a("v_readfirstlane_b32 s%d, v%d" % (S_WAVE, V_T))
    a("v_lshlrev_b32 v%d, 4, v%d" % (V_L16, V_LANE))
    a("s_and_b32 s%d, s2, 7" % S_RB)
    a("s_lshl_b32 s%d, s%d, 2" % (S_RB, S_RB))
    a("s_lshr_b32 s%d, s2, 3" % S_T0)
    a("s_and_b32 s%d, s%d, 3" % (S_T1, S_T0))
    a("s_add_u32 s%d, s%d, s%d" % (S_RB, S_RB, S_T1))
    a("s_lshr_b32 s%d, s%d, 2" % (S_CG, S_T0))
    a("s_lshr_b32 s%d, s%d, 1" % (S_T0, S_WAVE))
    a("s_lshl_b32 s%d, s%d, 1" % (S_TB, S_RB))
    a("s_add_u32 s%d, s%d, s%d" % (S_TB, S_TB, S_T0))
    a("s_and_b32 s%d, s%d, 1" % (S_T0, S_WAVE))
    a("s_lshl_b32 s%d, s%d, 1" % (S_NB, S_CG))
    a("s_add_u32 s%d, s%d, s%d" % (S_NB, S_NB, S_T0))
    a("s_mul_i32 s%d, s%d, %d" % (S_T1, S_WAVE, NS * 1024))
    for i in range(2):
        a("s_xor_b32 s%d, s%d, %d" % (S_T0, S_TB, i))
        a("s_mul_i32 s%d, s%d, %d" % (S_A[i], S_T0, STEPS * 1024))
        a("s_add_u32 s%d, s%d, s%d" % (S_A[i], S_A[i], S_T1))
        a("s_add_u32 s%d, s%d, %d" % (S_A[i], S_A[i], A_BASE))
        a("s_xor_b32 s%d, s%d, %d" % (S_T0, S_NB, i))
        a("s_mul_i32 s%d, s%d, %d" % (S_W[i], S_T0, STEPS * 1024))
        a("s_add_u32 s%d, s%d, s%d" % (S_W[i], S_W[i], S_T1))
        a("s_add_u32 s%d, s%d, %d" % (S_W[i], S_W[i], W_BASE))
    a("s_waitcnt lgkmcnt(0)")
    srd(a, 20, 8, WS_SIZE)
    srd(a, 12, 4, 2048 * 1024)

    def frag(p, kind, i):
        return (p % WIN) * 16 + kind * 8 + i * 4

    def loads(p):
        out = []
        if p > 0 and p % 4 == 0:
            for s in S_A + S_W:
                out.append("s_add_u32 s%d, s%d, 4096" % (s, s))
        off = (p % 4) * 1024
        for i in range(2):
            out.append("buffer_load_dwordx4 %s, v%d, s[20:23], s%d offen offset:%d" % (ar(frag(p, 0, i)), V_L16, S_A[i], off))
            out.append("buffer_load_dwordx4 %s, v%d, s[20:23], s%d offen offset:%d" % (ar(frag(p, 1, i)), V_L16, S_W[i], off))
        return out

    for p in range(WIN):
        for l in loads(p):
            a(l)
    a("v_and_b32 v%d, 31, v%d" % (V_T, V_LANE))
    a("v_lshlrev_b32 v%d, 10, v%d" % (V_T, V_T))
    a("v_lshrrev_b32 v%d, 5, v%d" % (V_T + 1, V_LANE))
    a("v_lshl_add_u32 v%d, v%d, 3, v%d" % (V_T, V_T + 1, V_T))
    a("s_lshl_b32 s36, s%d, 15" % S_TB)
    a("s_lshl_b32 s%d, s%d, 6" % (S_T0, S_NB))
    a("s_add_u32 s36, s36, s%d" % S_T0)
    a("s_lshl_b32 s37, s%d, 5" % S_TB)
    a("s_lshl_b32 s%d, s%d, 1" % (S_T0, S_NB))
    a("s_add_u32 s37, s37, s%d" % S_T0)
    a("s_lshl_b32 s37, s37, 10")
    a("s_add_u32 s37, s37, %d" % WS_H)
    a.ts("k%d" % which)
    issued = WIN
    NRES = 4 if which == 3 else 2
    res_done = False
    for p in range(NS):
        younger = 4 * (issued - p - 1) + (NRES if res_done else 0)
        a("s_waitcnt vmcnt(%d)" % younger)
        for ti in range(2):
            for ni in range(2):
                acc = V_ACC[ti * 2 + ni]
                a("v_mfma_f32_32x32x16_bf16 %s, %s, %s, %s" % (vr(acc, 16), ar(frag(p, 1, ni)), ar(frag(p, 0, ti)), "0" if p == 0 else vr(acc, 16)))
        if issued < NS:
            for l in loads(issued):
                a(l)
            issued += 1
        elif not res_done:
            if which == 3:
                for q in range(4):
                    a("buffer_load_dwordx2 %s, v%d, s[12:15], s36 offen offset:%d" % (vr(V_RES + 2 * q, 2), V_T, q * 16))
            else:
                for q in range(2):
                    a("buffer_load_dwordx4 %s, v%d, s[20:23], s37 offen offset:%d" % (vr(V_RES + 4 * q), V_L16, q * 1024))
            res_done = True
    a.ts("k%d" % which)
    a("s_nop 7")
    for t in range(1, 4):
        a("s_xor_b32 s%d, s%d, %d" % (S_T0, S_WAVE, t))
        a("s_mul_i32 s%d, s%d, 12288" % (S_T0, S_T0))
        a("v_add_u32 v%d, s%d, v%d" % (V_T + 1 + t, S_T0, V_L16))
    a("s_nop 3")
    for t in range(1, 4):
        for q in range(4):
            a("ds_write_b128 v%d, %s offset:%d" % (V_T + 1 + t, vr(V_ACC[t] + 4 * q), (t - 1) * 4096 + q * 1024))
    a("s_mul_i32 s%d, s%d, 12288" % (S_T0, S_WAVE))
    a("v_add_u32 v%d, s%d, v%d" % (V_T + 1, S_T0, V_L16))
    a("s_waitcnt lgkmcnt(0)")
    a("s_barrier")
    for t in range(3):
        for q in range(4):
            a("ds_read_b128 %s, v%d offset:%d" % (vr(V_RD + 16 * t + 4 * q), V_T + 1, t * 4096 + q * 1024))
    A0 = V_ACC[0]
    U = V_ACC[1]
    a("s_mov_b32 s38, 0xffff0000")
    a("s_waitcnt vmcnt(0)")
    for d in range(8):
        a("v_lshlrev_b32 v%d, 16, v%d" % (U + 2 * d, V_RES + d))
        a("v_and_b32 v%d, s38, v%d" % (U + 2 * d + 1, V_RES + d))
    for i in range(16):
        a("v_add_f32 v%d, v%d, v%d" % (A0 + i, A0 + i, U + i))
    for t in range(3):
        a("s_waitcnt lgkmcnt(%d)" % (8 - 4 * t))
        for i in range(16):
            a("v_add_f32 v%d, v%d, v%d" % (A0 + i, A0 + i, V_RD + 16 * t + i))
    O = V_ACC[2]
    for i in range(8):
        a("v_cvt_pk_bf16_f32 v%d, v%d, v%d" % (O + i, A0 + 2 * i, A0 + 2 * i + 1))
    if which == 3:
        for q in range(2):
            a("buffer_store_dwordx4 %s, v%d, s[20:23], s37 offen offset:%d" % (vr(O + 4 * q), V_L16, q * 1024))
        for d in range(8):
            a("v_lshlrev_b32 v%d, 16, v%d" % (U + 2 * d, O + d))
            a("v_and_b32 v%d, s38, v%d" % (U + 2 * d + 1, O + d))
        S1, S2 = V_RD, V_RD + 1
        a("v_add_f32 v%d, v%d, v%d" % (S1, U, U + 1))
        a("v_mul_f32 v%d, v%d, v%d" % (S2, U, U))
        a("v_fmac_f32 v%d, v%d, v%d" % (S2, U + 1, U + 1))
        for i in range(2, 16):
            a("v_add_f32 v%d, v%d, v%d" % (S1, S1, U + i))
            a("v_fmac_f32 v%d, v%d, v%d" % (S2, U + i, U + i))
        sum_halves(a, S1, V_RD + 2)
        sum_halves(a, S2, V_RD + 3)
        a("s_lshl_b32 s%d, s%d, 4" % (S_T0, S_TB))
        a("s_add_u32 s%d, s%d, s%d" % (S_T0, S_T0, S_NB))
        a("s_lshl_b32 s%d, s%d, 8" % (S_T0, S_T0))
        a("s_add_u32 s%d, s%d, %d" % (S_T0, S_T0, WS_ST))
        a("v_and_b32 v%d, 31, v%d" % (V_T, V_LANE))
        a("v_lshlrev_b32 v%d, 3, v%d" % (V_T, V_T))
        a("buffer_store_dwordx2 %s, v%d, s[20:23], s%d offen" % (vr(S1, 2), V_T, S_T0))
    else:
        for q in range(4):
            a("buffer_store_dwordx2 %s, v%d, s[12:15], s36 offen offset:%d" % (vr(O + 2 * q, 2), V_T, q * 16))
    a.ts_flush("k%d" % which, S_WAVE, V_T)
    a.label(L + "end")
    a("s_endpgm")
    return name, 144, WIN * 16, (256, 256, 49152)


def gen_k4(a):
    name = "k4_glu_kernel"
    kernel_begin(a, name)
    SL4, NS4 = 45056, 3
    S_WAVE, S_RB, S_CG, S_KC, S_SH, S_SW, S_T0, S_T1, S_MASK, S_M0 = 24, 25, 26, 27, 28, 29, 30, 31, 32, 33
    S_TB, S_ROLE, S_M0H = 34, 42, 35
    V_LANE, V_L16, V_T = 1, 2, 3
    V_AW, V_AH = 12, 13
    V_ST = 16
    V_CSL = 32
    V_H = [60, 244]
    V_W = [64, 92]
    V_ACC = [120 + 16 * b for b in range(7)]
    V_TMP = 232
    a("s_cmp_ge_u32 s2, 256")
    a("s_cbranch_scc1 L_k4_end")
    a.ts("k4")
    a("s_load_dwordx2 s[8:9], s[0:1], %d" % ARG_WS)
    a("v_lshrrev_b32 v%d, 6, v0" % V_T)
    a("v_and_b32 v%d, 63, v0" % V_LANE)
    a("v_readfirstlane_b32 s%d, v%d" % (S_ROLE, V_T))
    a("v_lshlrev_b32 v%d, 4, v%d" % (V_L16, V_LANE))
    a("s_and_b32 s3, s2, 7")
    a("s_lshr_b32 s%d, s2, 3" % S_T0)
    a("s_lshr_b32 s%d, s3, 2" % S_RB)
    a("s_lshl_b32 s%d, s%d, 3" % (S_RB, S_RB))
    a("s_and_b32 s%d, s%d, 7" % (S_T1, S_T0))
    a("s_add_u32 s%d, s%d, s%d" % (S_RB, S_RB, S_T1))
    a("s_and_b32 s%d, s3, 3" % S_CG)
    a("s_lshl_b32 s%d, s%d, 2" % (S_CG, S_CG))
    a("s_lshr_b32 s%d, s%d, 3" % (S_T1, S_T0))
    a("s_add_u32 s%d, s%d, s%d" % (S_CG, S_CG, S_T1))
    a("s_and_b32 s%d, s%d, 3" % (S_WAVE, S_ROLE))
    a("s_lshl_b32 s%d, s%d, 2" % (S_TB, S_RB))
    a("s_add_u32 s%d, s%d, s%d" % (S_TB, S_TB, S_WAVE))
    a("s_lshl_b32 s%d, s%d, 12" % (S_M0H, S_WAVE))
    a("s_add_u32 s%d, s%d, 28672" % (S_M0H, S_M0H))
    a("s_cmp_ge_u32 s%d, 4" % S_ROLE)
    a("s_cbranch_scc1 L_k4_compute")
    if K4_ROT:
        a("s_add_u32 s%d, s%d, s%d" % (S_KC, S_RB, S_CG))
        a("s_and_b32 s%d, s%d, 7" % (S_KC, S_KC))
    else:
        a("s_mov_b32 s%d, 0" % S_KC)
    a("s_lshl_b32 s%d, s%d, 15" % (S_SH, S_TB))
    a("s_add_u32 s%d, s%d, %d" % (S_SH, S_SH, WS_H))
    a("s_mul_i32 s%d, s%d, 7168" % (S_M0, S_WAVE))
    a("s_mul_i32 s%d, s%d, %d" % (S_SW, S_CG, 32 * 7 * 1024))
    a("s_add_u32 s%d, s%d, s%d" % (S_SW, S_SW, S_M0))
    a("s_add_u32 s%d, s%d, %d" % (S_SW, S_SW, WS_GU))
    S_OH, S_OW, S_SLOT, S_CNT = 38, 39, 40, 41
    a("s_mov_b32 s%d, 0" % S_SLOT)
    a("s_mov_b32 s%d, 0" % S_CNT)
    a("s_waitcnt lgkmcnt(0)")
    srd(a, 20, 8, WS_SIZE)
    a.label("L_k4_ld")
    a("s_lshl_b32 s%d, s%d, 12" % (S_OH, S_KC))
    a("s_add_u32 s%d, s%d, s%d" % (S_OH, S_OH, S_SH))
    a("s_add_u32 m0, s%d, s%d" % (S_M0H, S_SLOT))
    a("s_mul_i32 s%d, s%d, %d" % (S_OW, S_KC, SLOT))
    for q in range(4):
        a("buffer_load_dwordx4 v%d, s[20:23], s%d offen offset:%d lds" % (V_L16, S_OH, q * 1024))
    a("s_add_u32 m0, s%d, s%d" % (S_M0, S_SLOT))
    a("s_add_u32 s%d, s%d, s%d" % (S_OW, S_OW, S_SW))
    for q in range(4):
        a("buffer_load_dwordx4 v%d, s[20:23], s%d offen offset:%d lds" % (V_L16, S_OW, q * 1024))
    a("s_add_u32 m0, m0, 4096")
    a("s_add_u32 s%d, s%d, 4096" % (S_OW, S_OW))
    for q in range(3):
        a("buffer_load_dwordx4 v%d, s[20:23], s%d offen offset:%d lds" % (V_L16, S_OW, q * 1024))
    a("s_add_u32 s%d, s%d, 1" % (S_KC, S_KC))
    a("s_and_b32 s%d, s%d, 7" % (S_KC, S_KC))
    a("s_add_u32 s%d, s%d, %d" % (S_SLOT, S_SLOT, SL4))
    a("s_cmp_eq_u32 s%d, %d" % (S_SLOT, NS4 * SL4))
    a("s_cselect_b32 s%d, 0, s%d" % (S_SLOT, S_SLOT))
    a("s_add_u32 s%d, s%d, 1" % (S_CNT, S_CNT))
    a("s_cmp_lt_u32 s%d, 2" % S_CNT)
    a("s_cbranch_scc1 L_k4_ld")
    a("s_waitcnt vmcnt(11)")
    a("s_barrier")
    a("s_cmp_lt_u32 s%d, 8" % S_CNT)
    a("s_cbranch_scc1 L_k4_ld")
    a("s_waitcnt vmcnt(0)")
    a("s_barrier")
    a("s_endpgm")
    a.label("L_k4_compute")
    a("s_mov_b32 s%d, 0xffff0000" % S_MASK)
    a("v_mov_b32 v%d, v%d" % (V_AW, V_L16))
    a("v_add_u32 v%d, s%d, v%d" % (V_AH, S_M0H, V_L16))
    a("v_and_b32 v%d, 31, v%d" % (V_T, V_LANE))
    a("v_lshlrev_b32 v%d, 3, v%d" % (V_T, V_T))
    a("v_lshrrev_b32 v%d, 5, v%d" % (V_T + 1, V_LANE))
    a("v_lshl_add_u32 v%d, v%d, 11, v%d" % (V_T, V_T + 1, V_T))
    a("s_waitcnt lgkmcnt(0)")
    srd(a, 20, 8, WS_SIZE)
    cur_base = [0]

    def reads(P):
        st, pos = P // 4, P % 4
        base = (st % NS4) * SL4
        out = []
        if base != cur_base[0]:
            d = base - cur_base[0]
            for r in (V_AW, V_AH):
                out.append("v_add_u32 v%d, %d, v%d" % (r, d, r) if d > 0 else "v_subrev_u32 v%d, %d, v%d" % (r, -d, r))
            cur_base[0] = base
        b = P % 2
        out.append("ds_read_b128 %s, v%d offset:%d" % (vr(V_H[b]), V_AH, pos * 1024))
        for blk in range(7):
            out.append("ds_read_b128 %s, v%d offset:%d" % (vr(V_W[b] + 4 * blk), V_AW, (pos * 7 + blk) * 1024))
        return out

    extra = {}
    g = ["s_lshl_b32 s%d, s%d, 12" % (S_T0, S_TB), "s_add_u32 s%d, s%d, %d" % (S_T0, S_T0, WS_ST)]
    for i in range(8):
        g.append("buffer_load_dwordx2 %s, v%d, s[20:23], s%d offen offset:%d" % (vr(V_ST + 2 * i, 2), V_T, S_T0, i * 256))
    extra[8], extra[9], extra[10] = g[:4], g[4:7], g[7:]
    g = ["s_mul_i32 s%d, s%d, 7168" % (S_T0, S_CG), "s_add_u32 s%d, s%d, %d" % (S_T0, S_T0, WS_CS), "s_add_u32 s%d, s%d, 4096" % (S_T1, S_T0)]
    for blk in range(7):
        g.append("buffer_load_dwordx4 %s, v%d, s[20:23], s%d offen offset:%d" % (vr(V_CSL + 4 * blk), V_L16, S_T0 if blk < 4 else S_T1, (blk % 4) * 1024))
    extra[12], extra[13], extra[14] = g[:5], g[5:8], g[8:]
    a.ts("k4")
    a("s_barrier")
    a.ts("k4")
    for l in reads(0):
        a(l)
    for P in range(32):
        st, pos = P // 4, P % 4
        b = P % 2
        a("s_waitcnt lgkmcnt(0)")
        if pos == 3 and P < 31:
            a("s_barrier")
        rd = reads(P + 1) if P < 31 else []
        m = []
        for blk in range(7):
            m.append("v_mfma_f32_32x32x16_bf16 %s, %s, %s, %s" % (vr(V_ACC[blk], 16), vr(V_W[b] + 4 * blk), vr(V_H[b]), "0" if P == 0 else vr(V_ACC[blk], 16)))
        for l in interleave(m, rd + extra.get(P, []), per=2):
            a(l)
    a.ts("k4")
    a("s_waitcnt vmcnt(0)")
    S1, S2 = V_T + 2, V_T + 3
    a("v_add_f32 v%d, v%d, v%d" % (S1, V_ST, V_ST + 2))
    a("v_add_f32 v%d, v%d, v%d" % (S2, V_ST + 1, V_ST + 3))
    for i in range(2, 8):
        a("v_add_f32 v%d, v%d, v%d" % (S1, S1, V_ST + 2 * i))
        a("v_add_f32 v%d, v%d, v%d" % (S2, S2, V_ST + 2 * i + 1))
    sum_halves(a, S1, V_T + 4)
    sum_halves(a, S2, V_T + 4)
    V_MU, V_VAR, V_RS, V_C1, V_C2 = V_T + 4, V_T + 5, V_T + 6, V_T + 7, V_T + 8
    a("v_mul_f32 v%d, 0x%x, v%d" % (V_MU, f32bits(1.0 / 512), S1))
    a("v_mul_f32 v%d, 0x%x, v%d" % (V_VAR, f32bits(1.0 / 512), S2))
    a("v_fma_f32 v%d, -v%d, v%d, v%d" % (V_VAR, V_MU, V_MU, V_VAR))
    a("v_max_f32 v%d, 0, v%d" % (V_VAR, V_VAR))
    a("v_add_f32 v%d, 0x%x, v%d" % (V_VAR, f32bits(1e-5), V_VAR))
    a("v_rsq_f32 v%d, v%d" % (V_RS, V_VAR))
    a("v_sub_f32 v%d, 0, v%d" % (V_MU, V_MU))
    VB = V_ST
    split_hi_lo_B(a, V_MU, VB, V_T, S_MASK)
    c1 = -2.0 * math.sqrt(2.0 / math.pi) * math.log2(math.e)
    a("v_mul_f32 v%d, 0x%x, v%d" % (V_C1, f32bits(c1), V_RS))
    a("v_mul_f32 v%d, v%d, v%d" % (V_C2, V_RS, V_RS))
    a("v_mul_f32 v%d, v%d, v%d" % (V_C2, V_C2, V_C1))
    a("v_mul_f32 v%d, 0x%x, v%d" % (V_C2, f32bits(0.044715), V_C2))
    for blk in range(7):
        c = V_CSL + 4 * blk
        a("v_add_f32 v%d, v%d, v%d" % (c, c, c + 1))
        a("v_add_f32 v%d, v%d, v%d" % (c + 2, c + 2, c + 3))
        a("v_add_f32 v%d, v%d, v%d" % (c, c, c + 2))
        split_hi_lo_A(a, c, V_W[0] + 4 * blk, V_T, S_MASK)
    a("s_nop 1")
    for blk in range(7):
        a("v_mfma_f32_32x32x16_bf16 %s, %s, %s, %s" % (vr(V_ACC[blk], 16), vr(V_W[0] + 4 * blk), vr(VB), vr(V_ACC[blk], 16)))
    a("s_mul_i32 s%d, s%d, 112" % (S_T0, S_TB))
    a("s_mul_i32 s%d, s%d, 7" % (S_T1, S_CG))
    a("s_add_u32 s%d, s%d, s%d" % (S_T0, S_T0, S_T1))
    a("s_lshl_b32 s%d, s%d, 10" % (S_T0, S_T0))
    a("s_add_u32 s%d, s%d, %d" % (S_T0, S_T0, WS_A))
    a("s_add_u32 s%d, s%d, 4096" % (S_T1, S_T0))
    a("s_nop 7")
    for blk in range(7):
        G = V_ACC[blk]
        Uu = G + 8
        T = V_TMP
        for i in range(8):
            a("v_mul_f32 v%d, v%d, v%d" % (T + i, G + i, G + i))
        for i in range(8):
            a("v_fma_f32 v%d, v%d, v%d, v%d" % (T + i, T + i, V_C2, V_C1))
        for i in range(8):
            a("v_mul_f32 v%d, v%d, v%d" % (T + i, T + i, G + i))
        for i in range(8):
            a("v_exp_f32 v%d, v%d" % (T + i, T + i))
        for i in range(8):
            a("v_mul_f32 v%d, v%d, v%d" % (G + i, G + i, Uu + i))
        for i in range(8):
            a("v_fma_f32 v%d, v%d, v%d, v%d" % (T + i, T + i, V_VAR, V_VAR))
        for i in range(8):
            a("v_rcp_f32 v%d, v%d" % (T + i, T + i))
        a("s_nop 0")
        for i in range(8):
            a("v_mul_f32 v%d, v%d, v%d" % (G + i, G + i, T + i))
        o = V_TMP + 8 + 4 * (blk % 4)
        for i in range(4):
            a("v_cvt_pk_bf16_f32 v%d, v%d, v%d" % (o + i, G + 2 * i, G + 2 * i + 1))
        a("buffer_store_dwordx4 %s, v%d, s[20:23], s%d offen offset:%d" % (vr(o), V_L16, S_T0 if blk < 4 else S_T1, (blk % 4) * 1024))
    a.ts_flush("k4", S_WAVE, V_T)
    a.label("L_k4_end")
    a("s_endpgm")
    return name, 256, 0, (256, 512, NS4 * SL4)


def main():
    hdr = open("cdna_kernels/%s.s.ref" % NAME).read().split("\n")
    head = [l for l in hdr if l.startswith(";") and "@launch" not in l and "Override launch" not in l and "grid=ceil" not in l]
    a = Asm()
    ks = []
    ks.append(gen_f(a))
    out = "\n".join(head) + "\n"
    for name, nv, na, (g, b, lds) in ks:
        out += "; @launch grid=(%d,1,1) block=(%d,1,1) lds=%d\n" % (g, b, lds)
    out += '.amdgcn_target "amdgcn-amd-amdhsa--gfx950"\n.text\n'
    out += a.text()
    out += '.section .rodata,"a"\n'
    for name, nv, na, _ in ks:
        out += kernel_desc(name, nv, na)
    path = sys.argv[1] if len(sys.argv) > 1 else "cdna_kernels/%s.s" % NAME
    open(path, "w").write(out)


if __name__ == "__main__":
    main()
```

```python
import sys, math, struct

NAME = "sequential_preLN__softmax_full_mha__geglu_ffn__prompt"

MB = 1 << 20
WS_Q = 0
WS_K = 2 * MB
WS_V = 4 * MB
WS_O = 6 * MB
WS_H = 8 * MB
WS_A = 10 * MB
WS_WO = 17 * MB
WS_WD = 18 * MB
WS_GU = 20 * MB
WS_CS = 24 * MB
WS_ST = 25 * MB
WS_FL = 27 * MB + 768 * 1024
WS_SIZE = 28 * MB

ARG_X, ARG_WQKV, ARG_WO, ARG_BX, ARG_WG, ARG_WU, ARG_WD, ARG_OUT, ARG_DBG, ARG_WS = [8 * i for i in range(10)]

ONES_BF16 = 0x3F803F80


def f32bits(x):
    return struct.unpack("<I", struct.pack("<f", x))[0]


import os
INSTR = os.environ.get("INSTR", "")
WS_TS = 26 * MB


class Asm:
    def __init__(self):
        self.L = []
        self.nts = 0

    def ts(self, kern):
        if INSTR != kern and not (INSTR == "all" and len(kern) == 2):
            return
        if self.nts == 0:
            self("s_memrealtime s[92:93]")
        self("%s s[%d:%d]" % ("s_memrealtime" if os.environ.get("RT") else "s_memtime", 64 + 2 * self.nts, 65 + 2 * self.nts))
        self.nts += 1

    def ts_flush(self, kern, swave, vtmp):
        if INSTR != kern and not (INSTR == "all" and len(kern) == 2):
            return
        self("%s s[%d:%d]" % ("s_memrealtime" if os.environ.get("RT") else "s_memtime", 64 + 2 * self.nts, 65 + 2 * self.nts))
        self.nts += 1
        self("s_memrealtime s[94:95]")
        self("s_waitcnt lgkmcnt(0)")
        if os.environ.get("DBGOUT"):
            self("s_cmp_lg_u32 s2, %s" % os.environ["DBGOUT"])
            self("s_cbranch_scc1 L_dbg_skip")
            self("s_cmp_lg_u32 s%d, 7" % swave)
            self("s_cbranch_scc1 L_dbg_skip")
            self("v_mov_b32 v%d, 0" % vtmp)
            for i in range(1, self.nts):
                self("s_sub_u32 s3, s%d, s64" % (64 + 2 * i))
                self("s_and_b32 s36, s3, 0x7f")
                self("s_lshr_b32 s3, s3, 7")
                self("s_and_b32 s3, s3, 0x7f")
                self("s_lshl_b32 s3, s3, 8")
                self("s_or_b32 s3, s3, s36")
                self("s_or_b32 s3, s3, 0x80808080")
                self("v_mov_b32 v%d, s3" % (vtmp + 1))
                self("buffer_store_dword v%d, v%d, s[96:99], 0 offen offset:%d" % (vtmp + 1, vtmp, 4 * i))
                self("s_nop 1")
            self.label("L_dbg_skip")
        self("s_lshl_b32 s3, s2, 3")
        self("s_add_u32 s3, s3, s%d" % swave)
        self("s_lshl_b32 s3, s3, 6")
        self("s_add_u32 s3, s3, %d" % (WS_TS + (int(kern[1]) * 131072 if INSTR == "all" else 0)))
        self("v_mov_b32 v%d, 0" % vtmp)
        for i in range(self.nts):
            self("v_mov_b32 v%d, s%d" % (vtmp + 1, 64 + 2 * i))
            self("buffer_store_dword v%d, v%d, s[20:23], s3 offen offset:%d" % (vtmp + 1, vtmp, 4 * i))
            self("s_nop 1")
        for i, r in enumerate((92, 94)):
            self("v_mov_b32 v%d, s%d" % (vtmp + 1, r))
            self("buffer_store_dword v%d, v%d, s[20:23], s3 offen offset:%d" % (vtmp + 1, vtmp, 56 + 4 * i))
            self("s_nop 1")
        self.nts = 0

    def __call__(self, s):
        for line in s.strip("\n").split("\n"):
            self.L.append("    " + line.strip())

    def label(self, s):
        self.L.append(s + ":")

    def raw(self, s):
        self.L.append(s)

    def text(self):
        return "\n".join(self.L) + "\n"


def vr(b, n=4):
    return "v[%d:%d]" % (b, b + n - 1)


def ar(b, n=4):
    return "a[%d:%d]" % (b, b + n - 1)


def srd(a, sbase, sptr, nbytes):
    a("s_mov_b32 s%d, s%d" % (sbase, sptr))
    a("s_mov_b32 s%d, s%d" % (sbase + 1, sptr + 1))
    a("s_mov_b32 s%d, 0x%x" % (sbase + 2, nbytes))
    a("s_mov_b32 s%d, 0x00020000" % (sbase + 3))


def kernel_begin(a, name):
    a.raw(".globl %s" % name)
    a.raw(".p2align 8")
    a.raw(".type %s,@function" % name)
    a.label(name)


def kernel_desc(name, nvgpr, nagpr, nsgpr=102):
    acc = (nvgpr + 3) // 4 * 4
    nfv = acc + nagpr if nagpr else nvgpr
    return """.p2align 6
.amdhsa_kernel %s
  .amdhsa_next_free_vgpr %d
  .amdhsa_next_free_sgpr %d
  .amdhsa_accum_offset %d
  .amdhsa_group_segment_fixed_size 0
  .amdhsa_kernarg_size 80
  .amdhsa_user_sgpr_count 2
  .amdhsa_user_sgpr_kernarg_segment_ptr 1
  .amdhsa_system_sgpr_workgroup_id_x 1
.end_amdhsa_kernel
""" % (name, nfv, nsgpr, acc)


def interleave(main, fill, per=None):
    out = []
    n = len(main)
    fi = 0
    for i, m in enumerate(main):
        out.append(m)
        tgt = (len(fill) * (i + 1) + n - 1) // n if per is None else min(len(fill), per * (i + 1))
        while fi < tgt:
            out.append(fill[fi])
            fi += 1
    out += fill[fi:]
    return out


class Lds:
    def __init__(self, a):
        self.a = a
        self.n = 0
        self.done = 0
        self.idx = {}

    def op(self, text, tag=None):
        self.a(text)
        self.n += 1
        if tag is not None:
            self.idx[tag] = self.n

    def need(self, *tags):
        k = max(self.idx[t] for t in tags)
        if k > self.done:
            w = self.n - k
            assert w <= 15
            self.a("s_waitcnt lgkmcnt(%d)" % w)
            self.done = k

    def drain(self):
        if self.done < self.n:
            self.a("s_waitcnt lgkmcnt(0)")
            self.done = self.n


def make_sel(a, vlane, vsel, vt):
    a("v_lshrrev_b32 v%d, 2, v%d" % (vt, vlane))
    a("v_lshrrev_b32 v%d, 4, v%d" % (vsel, vlane))
    a("v_xor_b32 v%d, v%d, v%d" % (vt, vt, vsel))
    a("v_and_b32 v%d, 1, v%d" % (vt, vt))
    a("v_add_u32 v%d, -1, v%d" % (vt, vt))
    a("v_and_b32 v%d, 0x%x, v%d" % (vsel, ONES_BF16, vt))
    for i in range(1, 4):
        a("v_mov_b32 v%d, v%d" % (vsel + i, vsel))


def split_hi_lo_A(a, vc, vdst, vt, smask):
    a("v_cvt_pk_bf16_f32 v%d, v%d, v%d" % (vt, vc, vc))
    a("v_and_b32 v%d, s%d, v%d" % (vt, smask, vt))
    a("v_sub_f32 v%d, v%d, v%d" % (vt, vc, vt))
    a("v_cvt_pk_bf16_f32 v%d, v%d, v%d" % (vdst, vc, vt))
    a("v_mov_b32 v%d, v%d" % (vdst + 1, vdst))
    a("v_mov_b32 v%d, 0" % (vdst + 2))
    a("v_mov_b32 v%d, 0" % (vdst + 3))


def split_hi_lo_B(a, vm, vdst, vt, smask):
    a("v_cvt_pk_bf16_f32 v%d, v%d, v%d" % (vdst, vm, vm))
    a("v_and_b32 v%d, s%d, v%d" % (vt, smask, vdst))
    a("v_sub_f32 v%d, v%d, v%d" % (vt, vm, vt))
    a("v_cvt_pk_bf16_f32 v%d, v%d, v%d" % (vdst + 1, vt, vt))
    a("v_mov_b32 v%d, 0" % (vdst + 2))
    a("v_mov_b32 v%d, 0" % (vdst + 3))


def sum_halves(a, v, vt):
    a("v_mov_b32 v%d, v%d" % (vt, v))
    a("s_nop 1")
    a("v_permlane32_swap_b32 v%d, v%d" % (v, vt))
    a("s_nop 1")
    a("v_add_f32 v%d, v%d, v%d" % (v, v, vt))


SLOT = 28672
NSLOT = 5
K1_DIST = int(os.environ.get('K1_DIST', 2))
DIAG = os.environ.get('DIAG', '')
K1_ROT = int(os.environ.get('K1_ROT', 1))
K4_ROT = int(os.environ.get('K4_ROT', 0))
K2_ROT = int(os.environ.get('K2_ROT', 0))
K4_DIST = int(os.environ.get('K4_DIST', 2))


def slot_base_adjust(stage):
    slot = stage % NSLOT
    return (slot // 2) * 2 * SLOT, (slot % 2) * SLOT


def gen_k1(a):
    name = "k1_qkv_kernel"
    kernel_begin(a, name)
    NS1 = 4
    LDS_SCR = NS1 * SLOT
    SCR_RS, SCR_BF = LDS_SCR + 1536, LDS_SCR + 2048
    S_WAVE, S_RB, S_CG, S_KC, S_SX, S_SW, S_T0, S_T1, S_MASK, S_M0X, S_M0W = 24, 25, 26, 27, 28, 29, 30, 31, 32, 33, 34
    S_ROLE = 42
    V_LANE = 1
    V_T = 2
    V_DX = 8
    V_DW = 12
    V_AX = 13
    V_AW = 17
    V_SEL = 24
    V_SQ = 28
    V_X = [32, 36]
    V_W = [[40, 44, 48], [52, 56, 60]]
    V_ACC = [64, 80, 96]
    V_TMP = 112
    a("s_cmp_ge_u32 s2, 256")
    a("s_cbranch_scc1 L_k1_end")
    a.ts("k1")
    a("s_load_dwordx4 s[4:7], s[0:1], %d" % ARG_X)
    a("s_load_dwordx2 s[8:9], s[0:1], %d" % ARG_WS)
    a("v_lshrrev_b32 v%d, 6, v0" % V_T)
    a("v_and_b32 v%d, 63, v0" % V_LANE)
    a("v_readfirstlane_b32 s%d, v%d" % (S_ROLE, V_T))
    a("s_and_b32 s3, s2, 7")
    a("s_lshr_b32 s%d, s2, 3" % S_T0)
    a("s_lshr_b32 s%d, s3, 1" % S_RB)
    a("s_lshl_b32 s%d, s%d, 2" % (S_RB, S_RB))
    a("s_and_b32 s%d, s%d, 3" % (S_T1, S_T0))
    a("s_add_u32 s%d, s%d, s%d" % (S_RB, S_RB, S_T1))
    a("s_and_b32 s%d, s3, 1" % S_CG)
    a("s_lshl_b32 s%d, s%d, 3" % (S_CG, S_CG))
    a("s_lshr_b32 s%d, s%d, 2" % (S_T1, S_T0))
    a("s_add_u32 s%d, s%d, s%d" % (S_CG, S_CG, S_T1))
    a("s_and_b32 s%d, s%d, 3" % (S_WAVE, S_ROLE))
    a("s_lshl_b32 s%d, s%d, 12" % (S_M0X, S_WAVE))
    a("s_mul_i32 s%d, s%d, 3072" % (S_M0W, S_WAVE))
    a("s_add_u32 s%d, s%d, 16384" % (S_M0W, S_M0W))
    a("s_mov_b32 s%d, 0xffff0000" % S_MASK)

    def lds_addr_setup(rotate):
        a("v_and_b32 v%d, 31, v%d" % (V_T, V_LANE))
        a("v_and_b32 v%d, 3, v%d" % (V_T + 1, V_LANE))
        a("v_lshrrev_b32 v%d, 2, v%d" % (V_T + 2, V_T))
        a("v_lshlrev_b32 v%d, 7, v%d" % (V_T + 2, V_T + 2))
        a("v_lshl_add_u32 v%d, v%d, 10, v%d" % (V_T + 2, V_T + 1, V_T + 2))
        a("v_add_u32 v%d, s%d, v%d" % (V_T + 2, S_M0X, V_T + 2))
        a("v_lshrrev_b32 v%d, 1, v%d" % (V_T + 3, V_T))
        a("v_and_b32 v%d, 4, v%d" % (V_T + 3, V_T + 3))
        a("v_or_b32 v%d, v%d, v%d" % (V_T + 3, V_T + 3, V_T + 1))
        a("v_lshrrev_b32 v%d, 5, v%d" % (V_T + 4, V_LANE))
        a("v_xor_b32 v%d, v%d, v%d" % (V_T + 3, V_T + 3, V_T + 4))
        a("v_bfe_u32 v%d, v%d, 2, 2" % (V_T + 5, V_LANE))
        a("v_lshl_add_u32 v%d, v%d, 3, v%d" % (V_T + 5, V_T + 4, V_T + 5))
        a("v_lshlrev_b32 v%d, 6, v%d" % (V_T + 5, V_T + 5))
        a("v_bfe_u32 v%d, v%d, 4, 1" % (V_T + 4, V_LANE))
        a("v_lshl_add_u32 v%d, v%d, 5, v%d" % (V_T + 5, V_T + 4, V_T + 5))
        a("v_lshl_add_u32 v%d, v%d, 3, v%d" % (V_T + 5, V_T + 1, V_T + 5))
        for ks in range(4):
            a("v_xor_b32 v%d, %d, v%d" % (V_T + 4, 2 * ks, V_T + 3))
            a("v_lshl_add_u32 v%d, v%d, 4, v%d" % (V_AX + ks, V_T + 4, V_T + 2))

    a("s_cmp_ge_u32 s%d, 8" % S_ROLE)
    a("s_cbranch_scc1 L_k1_stats")
    a("s_cmp_ge_u32 s%d, 4" % S_ROLE)
    a("s_cbranch_scc1 L_k1_compute")
    if K1_ROT:
        a("s_add_u32 s%d, s%d, s%d" % (S_KC, S_RB, S_CG))
        a("s_and_b32 s%d, s%d, 7" % (S_KC, S_KC))
    else:
        a("s_mov_b32 s%d, 0" % S_KC)
    a("v_lshrrev_b32 v%d, 3, v%d" % (V_T, V_LANE))
    a("v_lshlrev_b32 v%d, 12, v%d" % (V_T, V_T))
    a("v_and_b32 v%d, 7, v%d" % (V_T + 1, V_LANE))
    a("v_lshrrev_b32 v%d, 2, v%d" % (V_T + 2, V_LANE))
    a("v_and_b32 v%d, 4, v%d" % (V_T + 2, V_T + 2))
    a("v_xor_b32 v%d, v%d, v%d" % (V_T + 1, V_T + 1, V_T + 2))
    for q in range(4):
        a("v_xor_b32 v%d, %d, v%d" % (V_T + 3, q, V_T + 1))
        a("v_lshl_add_u32 v%d, v%d, 4, v%d" % (V_DX + q, V_T + 3, V_T))
    a("v_lshrrev_b32 v%d, 2, v%d" % (V_T, V_LANE))
    a("v_mul_u32_u24 v%d, 3072, v%d" % (V_T, V_T))
    a("v_and_b32 v%d, 3, v%d" % (V_T + 1, V_LANE))
    a("v_lshl_add_u32 v%d, v%d, 4, v%d" % (V_DW, V_T + 1, V_T))
    a("s_lshl_b32 s%d, s%d, 2" % (S_T0, S_RB))
    a("s_add_u32 s%d, s%d, s%d" % (S_T0, S_T0, S_WAVE))
    a("s_lshl_b32 s%d, s%d, 15" % (S_SX, S_T0))
    a("s_mul_i32 s%d, s%d, %d" % (S_SW, S_WAVE, 16 * 3072))
    a("s_lshl_b32 s%d, s%d, 6" % (S_T1, S_CG))
    a("s_add_u32 s%d, s%d, s%d" % (S_SW, S_SW, S_T1))
    S_OX, S_OW, S_SLOT, S_CNT, S_RD = 38, 39, 40, 41, 43
    a("s_mov_b32 s%d, 0" % S_SLOT)
    a("s_mov_b32 s%d, 0" % S_CNT)
    a("s_waitcnt lgkmcnt(0)")
    srd(a, 12, 4, 2048 * 1024)
    srd(a, 16, 6, 512 * 3072)

    def issue():
        a("s_lshl_b32 s%d, s%d, 7" % (S_OX, S_KC))
        a("s_add_u32 s%d, s%d, s%d" % (S_OX, S_OX, S_SX))
        a("s_add_u32 m0, s%d, s%d" % (S_M0X, S_SLOT))
        a("s_mul_i32 s%d, s%d, %d" % (S_OW, S_KC, 64 * 3072))
        for q in range(4):
            a("buffer_load_dwordx4 v%d, s[12:15], s%d offen offset:%d lds" % (V_DX + q, S_OX, q * 1024))
        a("s_add_u32 m0, s%d, s%d" % (S_M0W, S_SLOT))
        a("s_add_u32 s%d, s%d, s%d" % (S_OW, S_OW, S_SW))
        for sx in range(3):
            a("buffer_load_dwordx4 v%d, s[16:19], s%d offen offset:%d lds" % (V_DW, S_OW, sx * 1024))
        a("s_add_u32 s%d, s%d, 1" % (S_KC, S_KC))
        a("s_and_b32 s%d, s%d, 7" % (S_KC, S_KC))
        a("s_add_u32 s%d, s%d, %d" % (S_SLOT, S_SLOT, SLOT))
        a("s_cmp_eq_u32 s%d, %d" % (S_SLOT, NS1 * SLOT))
        a("s_cselect_b32 s%d, 0, s%d" % (S_SLOT, S_SLOT))

    a.label("L_k1_ld")
    issue()
    a("s_add_u32 s%d, s%d, 1" % (S_CNT, S_CNT))
    a("s_cmp_lt_u32 s%d, %d" % (S_CNT, K1_DIST))
    a("s_cbranch_scc1 L_k1_ld")
    a("s_waitcnt vmcnt(%d)" % (7 * (K1_DIST - 1)))
    a("s_barrier")
    a("s_cmp_lt_u32 s%d, 8" % S_CNT)
    a("s_cbranch_scc1 L_k1_ld")
    for r in range(K1_DIST - 2, -1, -1):
        a("s_waitcnt vmcnt(%d)" % (7 * r))
        a("s_barrier")
    a("s_endpgm")
    a.label("L_k1_stats")
    LX = [64, 68, 72, 76]
    LW = [80, 84, 88]
    L_SX = 92
    L_CS = [96, 100, 104]
    lds_addr_setup(False)
    a("v_add_u32 v%d, s%d, v%d" % (V_AW, S_M0W, V_T + 5))
    make_sel(a, V_LANE, V_SEL, V_T)
    for r in [V_SQ, V_SQ + 1] + list(range(L_SX, L_SX + 16)):
        a("v_mov_b32 v%d, 0" % r)
    a("s_mov_b32 s44, %d" % SLOT)
    a("s_mov_b32 s%d, 0" % S_CNT)
    a.label("L_k1_st")
    a("s_barrier")
    for ks in range(4):
        a("ds_read_b128 %s, v%d" % (vr(LX[ks]), V_AX + ks))
    for sx in range(3):
        for rd in range(2):
            a("ds_read_b64_tr_b16 %s, v%d offset:%d" % (vr(LW[sx] + 2 * rd, 2), V_AW, sx * 1024 + rd * 256))
    a("s_add_u32 s%d, s%d, 1" % (S_CNT, S_CNT))
    a("s_and_b32 s%d, s%d, %d" % (S_T0, S_CNT, NS1 - 1))
    a("s_cmp_eq_u32 s%d, 0" % S_T0)
    a("s_cselect_b32 s%d, %d, s44" % (S_RD, -(NS1 - 1) * SLOT))
    for ks in range(4):
        a("s_waitcnt lgkmcnt(%d)" % (9 - ks))
        a("v_mfma_f32_16x16x32_bf16 %s, %s, %s, %s" % (vr(L_SX), vr(V_SEL), vr(LX[ks]), vr(L_SX)))
        for d in range(4):
            t0, t1 = V_TMP + 2 * (d % 2), V_TMP + 2 * (d % 2) + 1
            a("v_lshlrev_b32 v%d, 16, v%d" % (t0, LX[ks] + d))
            a("v_and_b32 v%d, s%d, v%d" % (t1, S_MASK, LX[ks] + d))
            a("v_fmac_f32 v%d, v%d, v%d" % (V_SQ, t0, t0))
            a("v_fmac_f32 v%d, v%d, v%d" % (V_SQ + 1, t1, t1))
        if ks == 1:
            a("s_waitcnt lgkmcnt(0)")
            for sx in range(3):
                a("v_mfma_f32_16x16x32_bf16 %s, %s, %s, %s" % (vr(L_CS[sx]), vr(V_SEL), vr(LW[sx]), vr(L_CS[sx])))
    for r in list(range(V_AX, V_AX + 4)) + [V_AW]:
        a("v_add_u32 v%d, s%d, v%d" % (r, S_RD, r))
    a("s_cmp_lt_u32 s%d, 8" % S_CNT)
    a("s_cbranch_scc1 L_k1_st")
    a("v_and_b32 v%d, 31, v%d" % (V_T, V_LANE))
    a("v_lshlrev_b32 v%d, 2, v%d" % (V_T, V_T))
    a("s_mul_i32 s%d, s%d, 384" % (S_T0, S_WAVE))
    a("s_add_u32 s%d, s%d, %d" % (S_T0, S_T0, LDS_SCR))
    a("v_add_u32 v%d, s%d, v%d" % (V_T + 1, S_T0, V_T))
    for sx in range(3):
        a("ds_write_b32 v%d, v%d offset:%d" % (V_T + 1, L_CS[sx], sx * 128))
    a("v_add_f32 v%d, v%d, v%d" % (V_SQ, V_SQ, V_SQ + 1))
    sum_halves(a, V_SQ, V_SQ + 1)
    V_MU, V_RS = V_SQ + 2, V_SQ + 3
    a("v_mul_f32 v%d, 0x%x, v%d" % (V_MU, f32bits(1.0 / 512), L_SX))
    a("v_mul_f32 v%d, 0x%x, v%d" % (V_SQ, f32bits(1.0 / 512), V_SQ))
    a("v_fma_f32 v%d, -v%d, v%d, v%d" % (V_SQ, V_MU, V_MU, V_SQ))
    a("v_max_f32 v%d, 0, v%d" % (V_SQ, V_SQ))
    a("v_add_f32 v%d, 0x%x, v%d" % (V_SQ, f32bits(1e-5), V_SQ))
    a("v_rsq_f32 v%d, v%d" % (V_RS, V_SQ))
    a("v_sub_f32 v%d, 0, v%d" % (V_MU, V_MU))
    a("s_lshl_b32 s%d, s%d, 7" % (S_T0, S_WAVE))
    a("s_add_u32 s%d, s%d, %d" % (S_T0, S_T0, SCR_RS))
    a("v_add_u32 v%d, s%d, v%d" % (V_T + 2, S_T0, V_T))
    a("ds_write_b32 v%d, v%d" % (V_T + 2, V_RS))
    split_hi_lo_B(a, V_MU, LX[0], V_T + 4, S_MASK)
    a("s_lshl_b32 s%d, s%d, 9" % (S_T0, S_WAVE))
    a("s_add_u32 s%d, s%d, %d" % (S_T0, S_T0, SCR_BF))
    a("v_lshl_add_u32 v%d, v%d, 3, s%d" % (V_T + 3, V_LANE, S_T0))
    a("ds_write_b64 v%d, %s" % (V_T + 3, vr(LX[0], 2)))
    a("s_waitcnt lgkmcnt(0)")
    a("s_barrier")
    a("s_endpgm")
    a.label("L_k1_compute")
    lds_addr_setup(False)
    a("v_add_u32 v%d, 16384, v%d" % (V_AW, V_T + 5))
    V_ECS, V_ERS, V_ERV, V_EBF, V_OQ, V_OV = 18, 19, 20, 21, 22, 23
    a("v_and_b32 v%d, 31, v%d" % (V_T, V_LANE))
    a("v_lshlrev_b32 v%d, 2, v%d" % (V_T, V_T))
    a("v_lshrrev_b32 v%d, 5, v%d" % (V_T + 2, V_LANE))
    a("v_mul_u32_u24 v%d, 768, v%d" % (V_T + 3, V_T + 2))
    a("v_add_u32 v%d, v%d, v%d" % (V_T + 3, V_T + 3, V_T))
    a("v_add_u32 v%d, %d, v%d" % (V_ECS, LDS_SCR, V_T + 3))
    a("s_lshl_b32 s%d, s%d, 7" % (S_T0, S_WAVE))
    a("s_add_u32 s%d, s%d, %d" % (S_T0, S_T0, SCR_RS))
    a("v_add_u32 v%d, s%d, v%d" % (V_ERS, S_T0, V_T))
    a("v_lshl_add_u32 v%d, v%d, 4, s%d" % (V_ERV, V_T + 2, S_T0))
    a("s_lshl_b32 s%d, s%d, 9" % (S_T0, S_WAVE))
    a("s_add_u32 s%d, s%d, %d" % (S_T0, S_T0, SCR_BF))
    a("v_lshl_add_u32 v%d, v%d, 3, s%d" % (V_EBF, V_LANE, S_T0))
    a("v_lshlrev_b32 v%d, 4, v%d" % (V_OQ, V_LANE))
    a("v_bfe_u32 v%d, v%d, 4, 1" % (V_T + 1, V_LANE))
    a("v_lshlrev_b32 v%d, 16, v%d" % (V_T + 1, V_T + 1))
    a("v_lshl_add_u32 v%d, v%d, 8, v%d" % (V_T + 1, V_T + 2, V_T + 1))
    a("v_and_b32 v%d, 15, v%d" % (V_T + 2, V_LANE))
    a("v_lshl_add_u32 v%d, v%d, 4, v%d" % (V_OV, V_T + 2, V_T + 1))
    a("s_lshl_b32 s%d, s%d, 2" % (S_T0, S_RB))
    a("s_add_u32 s%d, s%d, s%d" % (S_T0, S_T0, S_WAVE))
    a("s_lshl_b32 s%d, s%d, 10" % (S_T0, S_T0))
    a("s_lshl_b32 s%d, s%d, 17" % (S_T1, S_CG))
    a("s_add_u32 s%d, s%d, s%d" % (S_T0, S_T0, S_T1))
    a("s_add_u32 s%d, s%d, 65536" % (S_T1, S_T0))
    a("s_add_u32 s35, s%d, %d" % (S_T0, WS_K))
    a("s_add_u32 s36, s%d, %d" % (S_T1, WS_K))
    a("s_add_u32 s37, s%d, %d" % (S_T0, WS_V))
    VB = V_TMP
    VA = [V_TMP + 4, V_TMP + 8, V_TMP + 12]
    for r in (VB + 2, VB + 3):
        a("v_mov_b32 v%d, 0" % r)
    cur_base = [0]

    def reads(P):
        st, ks = P // 4, P % 4
        slot = st % NS1
        base, imm = (slot // 2) * 2 * SLOT, (slot % 2) * SLOT
        out = []
        if base != cur_base[0]:
            d = base - cur_base[0]
            for r in list(range(V_AX, V_AX + 4)) + [V_AW]:
                out.append("v_add_u32 v%d, %d, v%d" % (r, d, r) if d > 0 else "v_subrev_u32 v%d, %d, v%d" % (r, -d, r))
            cur_base[0] = base
        b = P % 2
        out.append("ds_read_b128 %s, v%d offset:%d" % (vr(V_X[b]), V_AX + ks, imm))
        for sx in range(3):
            for rd in range(2):
                out.append("ds_read_b64_tr_b16 %s, v%d offset:%d" % (vr(V_W[b][sx] + 2 * rd, 2), V_AW, imm + ks * 3072 + sx * 1024 + rd * 256))
        return out

    a("s_waitcnt lgkmcnt(0)")
    srd(a, 20, 8, WS_SIZE)
    a("s_cmp_ge_u32 s2, 4")
    a("s_cbranch_scc1 L_k1_nozero")
    for r in range(4):
        a("v_mov_b32 v%d, 0" % (V_ACC[0] + r))
    a("s_lshl_b32 s3, s2, 2")
    a("s_add_u32 s3, s3, s%d" % S_WAVE)
    a("s_lshl_b32 s3, s3, 10")
    a("s_add_u32 s3, s3, %d" % WS_FL)
    a("buffer_store_dwordx4 %s, v%d, s[20:23], s3 offen" % (vr(V_ACC[0]), V_OQ))
    a.label("L_k1_nozero")
    a.ts("k1")
    a("s_barrier")
    a.ts("k1")
    for l in reads(0):
        a(l)
    for P in range(32):
        st, pos = P // 4, P % 4
        b = P % 2
        a("s_waitcnt lgkmcnt(0)")
        if pos == 3 and P < 31:
            a("s_barrier")
        rd = reads(P + 1) if P < 31 else []
        X = vr(V_X[b])
        c = lambda r, n=16: ("0" if P == 0 else vr(r, n))
        m = []
        m.append("v_mfma_f32_32x32x16_bf16 %s, %s, %s, %s" % (vr(V_ACC[0], 16), vr(V_W[b][0]), X, c(V_ACC[0])))
        m.append("v_mfma_f32_32x32x16_bf16 %s, %s, %s, %s" % (vr(V_ACC[1], 16), vr(V_W[b][1]), X, c(V_ACC[1])))
        m.append("v_mfma_f32_32x32x16_bf16 %s, %s, %s, %s" % (vr(V_ACC[2], 16), X, vr(V_W[b][2]), c(V_ACC[2])))
        nfirst = 3 if len(rd) <= 8 else 8
        for l in rd[:nfirst]:
            a(l)
        for l in interleave(m, rd[nfirst:], per=2):
            a(l)
    a.ts("k1")
    a("s_barrier")
    VC = V_TMP + 16
    V_RS = V_TMP + 22
    V_RQ = V_TMP + 23
    VR = V_TMP + 24
    for sx in range(3):
        a("ds_read2_b32 %s, v%d offset0:%d offset1:%d" % (vr(VC + 2 * sx, 2), V_ECS, sx * 32, sx * 32 + 96))
    a("ds_read_b64 %s, v%d" % (vr(VB, 2), V_EBF))
    a("ds_read_b32 v%d, v%d" % (V_RS, V_ERS))
    for q in range(4):
        a("ds_read_b128 %s, v%d offset:%d" % (vr(VR + 4 * q), V_ERV, q * 32))
    for sx in range(3):
        a("s_waitcnt lgkmcnt(%d)" % (8 - sx))
        a("v_add_f32 v%d, v%d, v%d" % (VC + 2 * sx, VC + 2 * sx, VC + 2 * sx + 1))
        split_hi_lo_A(a, VC + 2 * sx, VA[sx], V_T + 4, S_MASK)
    a("s_waitcnt lgkmcnt(4)")
    a("v_mul_f32 v%d, 0x%x, v%d" % (V_RQ, f32bits(0.25 * math.log2(math.e)), V_RS))
    a("v_mfma_f32_32x32x16_bf16 %s, %s, %s, %s" % (vr(V_ACC[0], 16), vr(VA[0]), vr(VB), vr(V_ACC[0], 16)))
    a("v_mfma_f32_32x32x16_bf16 %s, %s, %s, %s" % (vr(V_ACC[1], 16), vr(VA[1]), vr(VB), vr(V_ACC[1], 16)))
    a("v_mfma_f32_32x32x16_bf16 %s, %s, %s, %s" % (vr(V_ACC[2], 16), vr(VB), vr(VA[2]), vr(V_ACC[2], 16)))
    a("s_nop 9")
    VO = V_X[0]
    k = 0
    for blk, sc, soffs in ((0, V_RQ, (S_T0, S_T1)), (1, V_RS, (35, 36))):
        for half in range(2):
            o = VO + 4 * k
            k += 1
            for i in range(8):
                r = V_ACC[blk] + 8 * half + i
                a("v_mul_f32 v%d, v%d, v%d" % (r, sc, r))
            for i in range(4):
                r = V_ACC[blk] + 8 * half + 2 * i
                a("v_cvt_pk_bf16_f32 v%d, v%d, v%d" % (o + i, r, r + 1))
            a("buffer_store_dwordx4 %s, v%d, s[20:23], s%d offen" % (vr(o), V_OQ, soffs[half]))
    a("s_waitcnt lgkmcnt(0)")
    for half in range(2):
        o = VO + 4 * k
        k += 1
        for i in range(8):
            r = V_ACC[2] + 8 * half + i
            a("v_mul_f32 v%d, v%d, v%d" % (r, VR + 8 * half + i, r))
        for i in range(4):
            r = V_ACC[2] + 8 * half + 2 * i
            a("v_cvt_pk_bf16_f32 v%d, v%d, v%d" % (o + i, r, r + 1))
        a("buffer_store_dwordx4 %s, v%d, s[20:23], s37 offen offset:%d" % (vr(o), V_OV, half * 512))
    a.ts_flush("k1", S_WAVE, V_T)
    a.label("L_k1_end")
    a("s_endpgm")
    return name, 152, 0, (256, 768, LDS_SCR + 4096)


def gen_k2(a):
    name = "k2_attn_kernel"
    kernel_begin(a, name)
    S_WAVE, S_H, S_QB, S_T0, S_T1, S_T2, S_T3 = 40, 41, 42, 43, 44, 45, 46
    S_ITER, S_SYNC, S_PASS, S_NT = 47, 48, 49, 50
    S_TASK, S_STG, S_DST0, S_DST1, S_TYPE = 51, 52, 53, 54, 55
    S_VMASK = 56
    S_CS = 58
    S_KB, S_W1K, S_CH = 59, 60, 61
    S_PE, S_PO, S_PS = 36, 37, 38
    V_LANE, V_L16, V_T = 1, 2, 3
    V_KA, V_VA = 10, 11
    V_Q = 12
    V_K = [16, 20]
    V_V = [24, 32]
    V_P = 40
    V_CM = 48
    V_S = [64, 80]
    V_O = 96
    V_MAX = 112
    V_PK = 113
    V_PD = 114
    V_SEL = 116
    V_PCS = [120, 124]
    STG = 131072
    a("s_cmp_ge_u32 s2, 256")
    a("s_cbranch_scc1 L_k2_end")
    a.ts("k2")
    a.ts("k2b")
    a("s_load_dwordx2 s[8:9], s[0:1], %d" % ARG_WS)
    a("s_load_dwordx2 s[4:5], s[0:1], %d" % ARG_WO)
    a("s_load_dwordx4 s[24:27], s[0:1], %d" % ARG_WG)
    a("s_load_dwordx2 s[6:7], s[0:1], %d" % ARG_WD)
    a("v_lshrrev_b32 v%d, 6, v0" % V_T)
    a("v_and_b32 v%d, 63, v0" % V_LANE)
    a("v_readfirstlane_b32 s%d, v%d" % (S_WAVE, V_T))
    a("v_lshlrev_b32 v%d, 4, v%d" % (V_L16, V_LANE))
    a("s_and_b32 s%d, s2, 7" % S_H)
    a("s_lshl_b32 s%d, s%d, 2" % (S_H, S_H))
    a("s_lshr_b32 s%d, s2, 6" % S_T0)
    a("s_add_u32 s%d, s%d, s%d" % (S_H, S_H, S_T0))
    a("s_lshr_b32 s%d, s2, 3" % S_QB)
    a("s_and_b32 s%d, s%d, 7" % (S_QB, S_QB))
    a("s_lshl_b32 s%d, s%d, 16" % (S_KB, S_H))
    a("s_lshl_b32 s%d, s%d, 10" % (S_W1K, S_WAVE))
    a("s_add_u32 s%d, s%d, s%d" % (S_KB, S_KB, S_W1K))
    a("s_lshl_b32 s%d, s%d, 13" % (S_CH, S_QB))
    a("s_add_u32 s%d, s%d, s%d" % (S_T3, S_KB, S_CH))
    a("s_add_u32 s%d, s%d, %d" % (S_KB, S_KB, WS_K))
    if not K2_ROT:
        a("s_mov_b32 s%d, 0" % S_CH)
    a("s_waitcnt lgkmcnt(0)")
    a.ts("k2b")
    srd(a, 20, 8, WS_SIZE)
    a("buffer_load_dwordx4 %s, v%d, s[20:23], s%d offen" % (vr(V_Q), V_L16, S_T3))
    if INSTR == "k2b":
        a("s_waitcnt vmcnt(0)")
    a.ts("k2b")

    def kv_dma(c):
        return [["s_add_u32 s%d, s%d, s%d" % (S_T3, S_KB, S_CH),
                 "s_add_u32 m0, s%d, %d" % (S_W1K, c * 8192),
                 "s_add_u32 s%d, s%d, 8192" % (S_CH, S_CH),
                 "buffer_load_dwordx4 v%d, s[20:23], s%d offen lds" % (V_L16, S_T3)],
                ["s_add_u32 s%d, s%d, %d" % (S_T3, S_T3, WS_V - WS_K),
                 "s_add_u32 m0, s%d, %d" % (S_W1K, 65536 + c * 8192),
                 "s_and_b32 s%d, s%d, 0xffff" % (S_CH, S_CH),
                 "buffer_load_dwordx4 v%d, s[20:23], s%d offen lds" % (V_L16, S_T3)]]

    for c in range(2):
        for g in kv_dma(c):
            for l in g:
                a(l)
    a("s_mov_b32 s%d, 0" % S_TYPE)
    a("s_cmp_lt_u32 s%d, 4" % S_WAVE)
    a("s_cbranch_scc1 L_k2_nopack")
    a("s_lshl_b32 s%d, s2, 2" % S_TASK)
    a("s_add_u32 s%d, s%d, s%d" % (S_TASK, S_TASK, S_WAVE))
    a("s_sub_u32 s%d, s%d, 4" % (S_TASK, S_TASK))
    a("s_cmp_ge_u32 s%d, 736" % S_TASK)
    a("s_cbranch_scc1 L_k2_nopack")
    a("s_lshl_b32 s%d, s%d, 13" % (S_STG, S_WAVE))
    a("s_add_u32 s%d, s%d, %d" % (S_STG, S_STG, STG - 4 * 8192))
    a("v_lshrrev_b32 v%d, 2, v%d" % (V_T, V_LANE))
    a("v_and_b32 v%d, 3, v%d" % (V_T + 1, V_LANE))
    a("s_cmp_ge_u32 s%d, 448" % S_TASK)
    a("s_cbranch_scc1 L_k2_packn")
    a("s_mov_b32 s%d, 1" % S_TYPE)
    srd(a, 28, 24, 512 * 3584)
    srd(a, 32, 26, 512 * 3584)
    a("v_mul_u32_u24 v%d, 3584, v%d" % (V_T, V_T))
    a("v_lshl_add_u32 v%d, v%d, 4, v%d" % (V_PD, V_T + 1, V_T))
    a("s_and_b32 s%d, s%d, 7" % (S_T0, S_TASK))
    a("s_lshr_b32 s%d, s%d, 3" % (S_T1, S_TASK))
    a("s_mul_i32 s%d, s%d, %d" % (S_PE, S_T0, 64 * 3584))
    a("s_lshl_b32 s%d, s%d, 6" % (S_T2, S_T1))
    a("s_add_u32 s%d, s%d, s%d" % (S_PE, S_PE, S_T2))
    a("s_mov_b32 s%d, s%d" % (S_PO, S_PE))
    a("s_mov_b32 s%d, %d" % (S_PS, 16 * 3584))
    for hb, sd in ((0, S_DST0), (1, S_DST1)):
        a("s_lshl_b32 s%d, s%d, 1" % (S_T2, S_T1))
        if hb:
            a("s_add_u32 s%d, s%d, 1" % (S_T2, S_T2))
        a("s_mul_i32 s%d, s%d, 9363" % (S_CS, S_T2))
        a("s_lshr_b32 s%d, s%d, 16" % (S_CS, S_CS))
        a("s_mul_i32 s%d, s%d, 7" % (sd, S_CS))
        a("s_sub_u32 s%d, s%d, s%d" % (sd, S_T2, sd))
        a("s_mul_i32 s%d, s%d, %d" % (S_CS, S_CS, 32 * 7))
        a("s_add_u32 s%d, s%d, s%d" % (sd, sd, S_CS))
        a("s_mul_i32 s%d, s%d, 28" % (S_CS, S_T0))
        a("s_add_u32 s%d, s%d, s%d" % (sd, sd, S_CS))
        a("s_lshl_b32 s%d, s%d, 10" % (sd, sd))
        a("s_add_u32 s%d, s%d, %d" % (sd, sd, WS_GU))
    a("s_lshl_b32 s%d, s%d, 11" % (S_CS, S_T1))
    a("s_lshr_b32 s%d, s%d, 2" % (S_T2, S_T0))
    a("s_lshl_b32 s%d, s%d, 9" % (S_T2, S_T2))
    a("s_add_u32 s%d, s%d, s%d" % (S_CS, S_CS, S_T2))
    a("s_and_b32 s%d, s%d, 3" % (S_T2, S_T0))
    a("s_lshl_b32 s%d, s%d, 2" % (S_T2, S_T2))
    a("s_add_u32 s%d, s%d, s%d" % (S_CS, S_CS, S_T2))
    a("s_add_u32 s%d, s%d, %d" % (S_CS, S_CS, WS_CS))
    a("s_branch L_k2_nopack")
    a.label("L_k2_packn")
    a("s_mov_b32 s%d, 2" % S_TYPE)
    a("v_lshlrev_b32 v%d, 10, v%d" % (V_T, V_T))
    a("v_lshl_add_u32 v%d, v%d, 4, v%d" % (V_PD, V_T + 1, V_T))
    a("s_cmp_ge_u32 s%d, 512" % S_TASK)
    a("s_cbranch_scc1 L_k2_packd")
    srd(a, 28, 4, 512 * 1024)
    srd(a, 32, 4, 512 * 1024)
    a("s_sub_u32 s%d, s%d, 448" % (S_T0, S_TASK))
    a("s_lshr_b32 s%d, s%d, 2" % (S_T1, S_T0))
    a("s_and_b32 s%d, s%d, 3" % (S_T0, S_T0))
    a("s_lshl_b32 s%d, s%d, 15" % (S_DST0, S_T1))
    a("s_add_u32 s%d, s%d, %d" % (S_DST0, S_DST0, WS_WO))
    a("s_branch L_k2_packc")
    a.label("L_k2_packd")
    srd(a, 28, 6, 1792 * 1024)
    srd(a, 32, 6, 1792 * 1024)
    a("s_sub_u32 s%d, s%d, 512" % (S_T0, S_TASK))
    a("s_mul_i32 s%d, s%d, 4682" % (S_T1, S_T0))
    a("s_lshr_b32 s%d, s%d, 16" % (S_T1, S_T1))
    a("s_mul_i32 s%d, s%d, 14" % (S_T2, S_T1))
    a("s_sub_u32 s%d, s%d, s%d" % (S_T0, S_T0, S_T2))
    a("s_mul_i32 s%d, s%d, %d" % (S_DST0, S_T1, 112 * 1024))
    a("s_add_u32 s%d, s%d, %d" % (S_DST0, S_DST0, WS_WD))
    a.label("L_k2_packc")
    a("s_lshl_b32 s%d, s%d, 13" % (S_T2, S_T0))
    a("s_add_u32 s%d, s%d, s%d" % (S_DST0, S_DST0, S_T2))
    a("s_lshl_b32 s%d, s%d, 17" % (S_PE, S_T0))
    a("s_lshl_b32 s%d, s%d, 6" % (S_T2, S_T1))
    a("s_add_u32 s%d, s%d, s%d" % (S_PE, S_PE, S_T2))
    a("s_add_u32 s%d, s%d, 16384" % (S_PO, S_PE))
    a("s_mov_b32 s%d, 32768" % S_PS)
    a.label("L_k2_nopack")
    a("s_mov_b32 s%d, 0x0000ffff" % S_VMASK)
    a("s_mov_b32 s%d, 0x0000ffff" % (S_VMASK + 1))
    a("v_and_b32 v%d, 27, v%d" % (V_T, V_LANE))
    a("v_cmp_eq_u32 vcc, 16, v%d" % V_T)
    a("v_mov_b32 v%d, 0x%x" % (V_T + 1, ONES_BF16))
    a("s_nop 1")
    a("v_cndmask_b32 v%d, 0, v%d, vcc" % (V_V[0], V_T + 1))
    for i in range(1, 16):
        a("v_mov_b32 v%d, v%d" % (V_V[0] + i, V_V[0]))
    a("s_mov_b32 s%d, 0" % S_SYNC)
    a("s_mov_b32 s%d, 0" % S_PASS)
    a("s_mov_b32 s%d, 1" % S_NT)
    a("s_setprio 3")
    a.ts("k2b")
    a("s_waitcnt vmcnt(2)")
    a.ts("k2b")
    a("s_barrier")
    a.ts("k2")
    a.ts("k2b")
    a.label("L_k2_maxpass")
    a("v_mov_b32 v%d, 0xff800000" % V_MAX)
    a("v_mov_b32 v%d, v%d" % (V_KA, V_L16))
    a.label("L_k2_mloop")
    a("ds_read_b128 %s, v%d" % (vr(V_K[0]), V_KA))
    a("v_add_u32 v%d, 1024, v%d" % (V_KA, V_KA))
    a("s_waitcnt lgkmcnt(0)")
    a("v_mfma_f32_32x32x16_bf16 %s, %s, %s, 0" % (vr(V_S[0], 16), vr(V_K[0]), vr(V_Q)))
    a("s_nop 15")
    for i in range(8):
        a("v_max3_f32 v%d, v%d, v%d, v%d" % (V_MAX, V_S[0] + 2 * i, V_S[0] + 2 * i + 1, V_MAX))
    a("s_sub_u32 s%d, s%d, 1" % (S_NT, S_NT))
    a("s_cmp_lg_u32 s%d, 0" % S_NT)
    a("s_cbranch_scc1 L_k2_mloop")
    a("v_mov_b32 v%d, v%d" % (V_KA, V_L16))
    a("v_lshrrev_b32 v%d, 5, v%d" % (V_T, V_LANE))
    a("v_lshlrev_b32 v%d, 8, v%d" % (V_T, V_T))
    a("v_and_b32 v%d, 15, v%d" % (V_T + 1, V_LANE))
    a("v_lshl_add_u32 v%d, v%d, 4, v%d" % (V_VA, V_T + 1, V_T))
    a("v_add_u32 v%d, 65536, v%d" % (V_VA, V_VA))
    a("ds_read_b128 %s, v%d" % (vr(V_K[0]), V_KA))
    a("ds_read_b128 %s, v%d offset:1024" % (vr(V_K[1]), V_KA))
    a("s_mov_b64 exec, s[%d:%d]" % (S_VMASK, S_VMASK + 1))
    a("ds_read_b128 %s, v%d" % (vr(V_V[0]), V_VA))
    a("ds_read_b128 %s, v%d offset:512" % (vr(V_V[0] + 4), V_VA))
    a("s_mov_b64 exec, -1")
    a("v_mov_b32 v%d, v%d" % (V_T, V_MAX))
    a("s_nop 1")
    a("v_permlane32_swap_b32 v%d, v%d" % (V_MAX, V_T))
    a("s_nop 1")
    a("v_max_f32 v%d, v%d, v%d" % (V_MAX, V_MAX, V_T))
    for i in range(16):
        a("v_sub_f32 v%d, 0, v%d" % (V_CM + i, V_MAX))
    a("s_waitcnt lgkmcnt(0)")
    a("s_nop 0")
    a("v_mfma_f32_32x32x16_bf16 %s, %s, %s, %s" % (vr(V_S[0], 16), vr(V_K[0]), vr(V_Q), vr(V_CM, 16)))
    for i in range(16):
        a("v_mov_b32 v%d, 0" % (V_O + i))
    for i in range(4):
        a("v_mov_b32 v%d, 0" % (V_P + 4 + i))
    a("s_mov_b32 s%d, 8" % S_ITER)
    a.ts("k2")
    a("s_cmp_lg_u32 s%d, 0" % S_PASS)
    a("s_cbranch_scc1 L_k2_loop")

    def body(peeled):
        for t in range(8):
            cur, nxt = t % 2, (t + 1) % 2
            x1, x2 = [], []
            if peeled:
                if t < 6:
                    x1, x2 = kv_dma(t + 2)
                if t == 6:
                    a("s_waitcnt vmcnt(12)")
                    a("s_barrier")
                if t >= 6:
                    lab = "L_k2_np%d" % t
                    x1 = ["s_cmp_eq_u32 s%d, 0" % S_TYPE, "s_cbranch_scc1 %s" % lab]
                    for i in range(4 * (t - 6), 4 * (t - 6) + 4):
                        x1 += ["s_add_u32 m0, s%d, %d" % (S_STG, i * 1024), "s_nop 0",
                               "buffer_load_dwordx4 v%d, s[%d:%d], s%d offen lds" % (V_PD, 28 + 4 * (i % 2), 31 + 4 * (i % 2), S_PO if i % 2 else S_PE),
                               "s_add_u32 s%d, s%d, s%d" % ((S_PO, S_PO, S_PS) if i % 2 else (S_PE, S_PE, S_PS))]
                    x1 += [lab + ":"]
            else:
                if t == 0:
                    for k, r in enumerate((5, 2, 1)):
                        x1 += ["s_cmp_lg_u32 s%d, %d" % (S_ITER, r), "s_cbranch_scc1 L_k2_pp%d" % k, "s_setprio %d" % (2 - k), "L_k2_pp%d:" % k]
                if t == 6:
                    a("s_cmp_eq_u32 s%d, 0" % S_SYNC)
                    a("s_cbranch_scc1 L_k2_sync")
                    a.label("L_k2_syncret")
            S = V_S[cur]
            e = lambda i: "v_exp_f32 v%d, v%d" % (S + i, S + i)
            c = lambda i: "v_cvt_pk_bf16_f32 v%d, v%d, v%d" % (V_P + i, S + 2 * i, S + 2 * i + 1)
            pv = lambda b, h: "v_mfma_f32_32x32x16_bf16 %s, %s, %s, %s" % (vr(V_O, 16), vr(V_V[b] + 4 * h), vr(V_P + 4 * h), vr(V_O, 16))
            qk = "v_mfma_f32_32x32x16_bf16 %s, %s, %s, %s" % (vr(V_S[nxt], 16), vr(V_K[nxt]), vr(V_Q), vr(V_CM, 16))
            rdk = "ds_read_b128 %s, v%d offset:%d" % (vr(V_K[cur]), V_KA, (t + 2) * 1024)
            rdv = ["s_mov_b64 exec, s[%d:%d]" % (S_VMASK, S_VMASK + 1),
                   "ds_read_b128 %s, v%d offset:%d" % (vr(V_V[nxt]), V_VA, (t + 1) * 1024),
                   "ds_read_b128 %s, v%d offset:%d" % (vr(V_V[nxt] + 4), V_VA, (t + 1) * 1024 + 512),
                   "s_mov_b64 exec, -1"]
            seq = [e(0), e(1), pv(nxt, 1), e(2), "s_waitcnt lgkmcnt(0)", rdk, e(3)] + rdv + [c(0), e(4), e(5), c(1), e(6), e(7), qk, c(2), e(8)] + x1 + [e(9), c(3),
                   e(10), e(11), c(4), e(12), e(13), pv(cur, 0), c(5), e(14)] + x2 + [e(15), c(6)]
            if t == 7:
                seq += ["v_add_u32 v%d, 8192, v%d" % (V_KA, V_KA), "v_add_u32 v%d, 8192, v%d" % (V_VA, V_VA),
                        "s_sub_u32 s%d, s%d, 1" % (S_ITER, S_ITER), "s_cmp_lg_u32 s%d, 0" % S_ITER]
            seq += [c(7)]
            for l in seq:
                if l.endswith(":"):
                    a.label(l[:-1])
                else:
                    a(l)

    body(True)
    a.raw(".p2align 6")
    a.label("L_k2_loop")
    body(False)
    a("s_cbranch_scc1 L_k2_loop")
    a.ts("k2")
    a("s_nop 1")
    a("v_mfma_f32_32x32x16_bf16 %s, %s, %s, %s" % (vr(V_O, 16), vr(V_V[1] + 4), vr(V_P + 4), vr(V_O, 16)))
    a("s_waitcnt lgkmcnt(0)")
    a("s_lshl_b32 s%d, s%d, 3" % (S_T0, S_QB))
    a("s_add_u32 s%d, s%d, s%d" % (S_T0, S_T0, S_WAVE))
    a("s_lshl_b32 s%d, s%d, 5" % (S_T0, S_T0))
    a("s_add_u32 s%d, s%d, s%d" % (S_T0, S_T0, S_H))
    a("s_lshl_b32 s%d, s%d, 10" % (S_T0, S_T0))
    a("s_add_u32 s%d, s%d, %d" % (S_T0, S_T0, WS_O))
    a("s_nop 7")
    a("v_mul_f32 v%d, 0, v%d" % (V_T, V_O))
    for i in range(1, 8):
        a("v_fmac_f32 v%d, 0, v%d" % (V_T, V_O + i))
    a("v_add_f32 v%d, v%d, v%d" % (V_T, V_T, V_O + 8))
    a("v_cmp_gt_f32 vcc, 0x%x, v%d" % (f32bits(2.0 ** 100), V_T))
    a("v_rcp_f32 v%d, v%d" % (V_T + 1, V_O + 8))
    a("s_cmp_lg_u32 s%d, 0" % S_PASS)
    a("s_cbranch_scc1 L_k2_fin")
    a("s_cmp_eq_u64 vcc, exec")
    a("s_cbranch_scc1 L_k2_fin")
    a("s_mov_b32 s%d, 1" % S_PASS)
    a("s_mov_b32 s%d, 64" % S_NT)
    a("s_branch L_k2_maxpass")
    a.label("L_k2_fin")
    for i in range(8):
        a("v_mul_f32 v%d, v%d, v%d" % (V_O + i, V_T + 1, V_O + i))
    for i in range(4):
        a("v_cvt_pk_bf16_f32 v%d, v%d, v%d" % (V_P + i, V_O + 2 * i, V_O + 2 * i + 1))
    a("buffer_store_dwordx4 %s, v%d, s[20:23], s%d offen" % (vr(V_P), V_L16, S_T0))
    a.ts_flush("k2", S_WAVE, V_T)
    a.ts_flush("k2b", S_WAVE, V_T)
    a.label("L_k2_end")
    a("s_endpgm")
    a.label("L_k2_sync")
    a("s_mov_b32 s%d, 1" % S_SYNC)
    a("s_waitcnt vmcnt(0)")
    a("s_barrier")
    a("s_cmp_eq_u32 s%d, 0" % S_TYPE)
    a("s_cbranch_scc1 L_k2_syncret")
    a("v_bfe_u32 v%d, v%d, 2, 2" % (V_T, V_LANE))
    a("v_lshrrev_b32 v%d, 5, v%d" % (V_T + 1, V_LANE))
    a("v_lshl_add_u32 v%d, v%d, 2, v%d" % (V_T, V_T + 1, V_T))
    a("v_lshlrev_b32 v%d, 6, v%d" % (V_T, V_T))
    a("v_and_b32 v%d, 3, v%d" % (V_T + 1, V_LANE))
    a("v_lshl_add_u32 v%d, v%d, 3, v%d" % (V_T, V_T + 1, V_T))
    a("v_add_u32 v%d, s%d, v%d" % (V_T, S_STG, V_T))
    a("v_bfe_u32 v%d, v%d, 4, 1" % (V_T + 1, V_LANE))
    FB = [128 + 4 * i for i in range(8)]
    a("s_cmp_eq_u32 s%d, 2" % S_TYPE)
    a("s_cbranch_scc1 L_k2_pk2")
    a("v_lshl_add_u32 v%d, v%d, 10, v%d" % (V_PK, V_T + 1, V_T))
    for ks in range(4):
        for hb in range(2):
            for rd in range(2):
                a("ds_read_b64_tr_b16 %s, v%d offset:%d" % (vr(FB[ks * 2 + hb] + 2 * rd, 2), V_PK, ks * 2048 + hb * 32 + rd * 512))
    make_sel(a, V_LANE, V_SEL, V_T + 2)
    a("v_and_b32 v%d, 31, v%d" % (V_T, V_LANE))
    a("v_lshlrev_b32 v%d, 4, v%d" % (V_T, V_T))
    a("s_waitcnt lgkmcnt(0)")
    for ks in range(4):
        for hb in range(2):
            a("v_mfma_f32_16x16x32_bf16 %s, %s, %s, %s" % (vr(V_PCS[hb]), vr(V_SEL), vr(FB[ks * 2 + hb]), "0" if ks == 0 else vr(V_PCS[hb])))
            a("buffer_store_dwordx4 %s, v%d, s[20:23], s%d offen" % (vr(FB[ks * 2 + hb]), V_L16, (S_DST0, S_DST1)[hb]))
        a("s_add_u32 s%d, s%d, 7168" % (S_DST0, S_DST0))
        a("s_add_u32 s%d, s%d, 7168" % (S_DST1, S_DST1))
    a("s_nop 7")
    a("buffer_store_dword v%d, v%d, s[20:23], s%d offen" % (V_PCS[0], V_T, S_CS))
    a("buffer_store_dword v%d, v%d, s[20:23], s%d offen offset:1024" % (V_PCS[1], V_T, S_CS))
    a("s_branch L_k2_syncret")
    a.label("L_k2_pk2")
    a("v_lshl_add_u32 v%d, v%d, 5, v%d" % (V_PK, V_T + 1, V_T))
    a("s_add_u32 s%d, s%d, 4096" % (S_DST1, S_DST0))
    for f in range(8):
        for rd in range(2):
            a("ds_read_b64_tr_b16 %s, v%d offset:%d" % (vr(FB[f] + 2 * rd, 2), V_PK, f * 1024 + rd * 512))
    a("s_waitcnt lgkmcnt(0)")
    for f in range(8):
        a("buffer_store_dwordx4 %s, v%d, s[20:23], s%d offen offset:%d" % (vr(FB[f]), V_L16, S_DST0 if f < 4 else S_DST1, (f % 4) * 1024))
    a("s_branch L_k2_syncret")
    return name, 160, 0, (256, 512, 163840)


FL_A, FL_B, FL_C, FL_P = WS_FL, WS_FL + 8192, WS_FL + 16384, WS_FL + 20480
S_XCC, S_FAST = 62, 63
T_XCD, T_R2, T_RB64, T_RB128, T_CGF, T_TBO, T_NBO, T_HALF, T_A, T_B, T_C, T_D, T_CNT, T_M = 24, 25, 26, 27, 28, 29, 30, 31, 32, 33, 34, 35, 36, 37
FV_WO = 160
FV_XR = 224
FV_LX = 228
FV_L4 = 229
FV_F = 230
WBL2 = os.environ.get('WBL2', '')
LSC = os.environ.get('LSC', ' sc1')
AMAP = int(os.environ.get('AMAP', 0))
S_TEAM, S_MEM = 18, 19
FASTPATH = int(os.environ.get('FASTPATH', 1))
POLLD = int(os.environ.get('POLLD', 1))


def poll(a, tag, soff, n, vl4, vf, depth=1):
    a("s_mov_b32 s%d, 0" % T_CNT)
    a.label("L_poll_%s" % tag)
    a("buffer_load_dword v%d, v%d, s[20:23], s%d offen sc1" % (vf, vl4, soff))
    a("s_add_u32 s%d, s%d, 1" % (T_CNT, T_CNT))
    a("s_waitcnt vmcnt(0)")
    a("v_cmp_ne_u32 vcc, 0, v%d" % vf)
    a("s_cmp_gt_u32 s%d, 0x40000" % T_CNT)
    a("s_cbranch_scc1 L_polld_%s" % tag)
    if n == 64:
        a("s_and_b32 s%d, vcc_lo, vcc_hi" % T_M)
        a("s_cmp_lg_u32 s%d, -1" % T_M)
    else:
        mask = (1 << n) - 1
        a("s_and_b32 s%d, vcc_lo, 0x%x" % (T_M, mask))
        a("s_cmp_lg_u32 s%d, 0x%x" % (T_M, mask))
    a("s_cbranch_scc1 L_poll_%s" % tag)
    a.label("L_polld_%s" % tag)


def hstore(a, tag, stores):
    a("s_cmp_eq_u32 s%d, -1" % S_FAST)
    a("s_cbranch_scc1 L_hs_%s_f" % tag)
    for st in stores:
        a(st + " sc1")
    a("s_branch L_hs_%s_d" % tag)
    a.label("L_hs_%s_f" % tag)
    for st in stores:
        a(st)
    a.label("L_hs_%s_d" % tag)


def set_flag(a, soff, vt, tag=None):
    a("v_mov_b32 v%d, 0" % vt)
    a("v_mov_b32 v%d, 1" % (vt + 1))
    a("s_mov_b64 exec, 1")
    st = "buffer_store_dword v%d, v%d, s[20:23], s%d offen" % (vt + 1, vt, soff)
    if tag:
        hstore(a, tag, [st])
    else:
        a(st + " sc1")
    a("s_mov_b64 exec, -1")


def fused_events(a, E):
    S_WAVE, S_H, S_QB, S_ITER, S_SYNC, S_TASK, S_TYPE = (E[k] for k in ("S_WAVE", "S_H", "S_QB", "S_ITER", "S_SYNC", "S_TASK", "S_TYPE"))
    V_LANE, V_L16, V_T = E["V_LANE"], E["V_L16"], E["V_T"]
    a.label("L_f_event")
    a("s_cmp_eq_u32 s%d, 7" % S_ITER)
    a("s_cbranch_scc1 L_f_sync")
    a("s_cmp_eq_u32 s%d, 6" % S_ITER)
    a("s_cbranch_scc1 L_f_ev6")
    a("s_cmp_eq_u32 s%d, 2" % S_ITER)
    a("s_cbranch_scc1 L_f_ev2")
    a("s_cmp_eq_u32 s%d, 3" % S_ITER)
    a("s_cbranch_scc1 L_f_ev3")
    a("s_mov_b32 s%d, 3" % S_SYNC)
    a("s_cmp_eq_u32 s%d, 0" % S_TYPE)
    a("s_cbranch_scc1 L_f_ev5b")
    a("s_lshl_b32 s%d, s%d, 2" % (T_A, S_TASK))
    a("s_add_u32 s%d, s%d, %d" % (T_A, T_A, FL_P))
    a("s_waitcnt vmcnt(0)")
    set_flag(a, T_A, V_T)
    a.label("L_f_ev5b")
    if "a" in WBL2:
        a("s_lshl_b32 s%d, s%d, 3" % (T_A, S_MEM))
        a("s_add_u32 s%d, s%d, s%d" % (T_A, T_A, S_WAVE))
        a("s_cmp_lg_u32 s%d, 5" % T_A)
        a("s_cbranch_scc1 L_f_nowb1")
        a("buffer_wbl2 sc1")
        a.label("L_f_nowb1")
    a("buffer_load_dword v%d, v%d, s[96:99], 0 offen sc1" % (FV_F, FV_L4))
    a("s_branch L_f_syncret")
    a.label("L_f_ev3")
    a("s_mov_b32 s%d, 2" % S_SYNC)
    a("s_mov_b32 s%d, 0" % T_CNT)
    a.label("L_f_dbchk")
    a("s_waitcnt vmcnt(0)")
    a("v_subrev_u32 v%d, 0x01010101, v%d" % (FV_F + 1, FV_F))
    a("v_not_b32 v%d, v%d" % (FV_F + 2, FV_F))
    a("v_and_b32 v%d, v%d, v%d" % (FV_F + 1, FV_F + 1, FV_F + 2))
    a("v_and_b32 v%d, 0x80808080, v%d" % (FV_F + 1, FV_F + 1))
    a("v_cmp_eq_u32 vcc, 0, v%d" % (FV_F + 1))
    a("s_add_u32 s%d, s%d, 1" % (T_CNT, T_CNT))
    a("s_cmp_gt_u32 s%d, 0x40000" % T_CNT)
    a("s_cbranch_scc1 L_f_dbok")
    a("s_and_b32 s%d, vcc_lo, vcc_hi" % T_M)
    a("s_cmp_eq_u32 s%d, -1" % T_M)
    a("s_cbranch_scc1 L_f_dbok")
    a("buffer_load_dword v%d, v%d, s[96:99], 0 offen sc1" % (FV_F, FV_L4))
    a("s_branch L_f_dbchk")
    a.label("L_f_dbok")
    a("s_lshr_b32 s%d, s2, 5" % T_XCD)
    a("s_bfe_u32 s%d, s2, 0x20003" % T_R2)
    a("s_and_b32 s%d, s2, 7" % T_RB64)
    a("s_lshl_b32 s%d, s%d, 2" % (T_RB64, T_RB64))
    a("s_add_u32 s%d, s%d, s%d" % (T_RB64, T_RB64, T_R2))
    a("s_lshr_b32 s%d, s%d, 1" % (T_RB128, T_RB64))
    a("s_and_b32 s%d, s%d, 1" % (T_A, T_R2))
    a("s_lshl_b32 s%d, s%d, 1" % (T_CGF, T_XCD))
    a("s_add_u32 s%d, s%d, s%d" % (T_CGF, T_CGF, T_A))
    a("s_bfe_u32 s%d, s%d, 0x10001" % (T_A, S_WAVE))
    a("s_lshl_b32 s%d, s%d, 1" % (T_TBO, T_RB64))
    a("s_add_u32 s%d, s%d, s%d" % (T_TBO, T_TBO, T_A))
    a("s_and_b32 s%d, s%d, 1" % (T_A, S_WAVE))
    a("s_lshl_b32 s%d, s%d, 1" % (T_NBO, T_XCD))
    a("s_add_u32 s%d, s%d, s%d" % (T_NBO, T_NBO, T_A))
    a("s_lshr_b32 s%d, s%d, 2" % (T_HALF, S_WAVE))
    a("s_mul_i32 s%d, s%d, 7" % (T_A, T_CGF))
    a("s_lshr_b32 s%d, s%d, 1" % (T_A, T_A))
    a("s_lshl_b32 s%d, s%d, 5" % (T_A, T_A))
    a("s_mul_i32 s%d, s%d, 56" % (T_B, T_NBO))
    a("s_add_u32 s%d, s%d, %d" % (T_B, T_B, 512 * 4 - 32 * 4))
    a("s_lshl_b32 s%d, s%d, 1" % (T_C, T_NBO))
    a("s_add_u32 s%d, s%d, s%d" % (T_C, T_C, T_HALF))
    a("s_lshl_b32 s%d, s%d, 3" % (T_C, T_C))
    a("s_add_u32 s%d, s%d, %d" % (T_C, T_C, 448 * 4 - 46 * 4))
    a("v_mov_b32 v%d, s%d" % (V_T, T_A))
    a("v_mov_b32 v%d, s%d" % (V_T + 1, T_B))
    a("v_cmp_le_u32 vcc, 32, v%d" % V_LANE)
    a("v_mov_b32 v%d, s%d" % (V_T + 2, T_C))
    a("s_nop 0")
    a("v_cndmask_b32 v%d, v%d, v%d, vcc" % (V_T, V_T, V_T + 1))
    a("v_cmp_le_u32 vcc, 46, v%d" % V_LANE)
    a("s_mov_b32 s%d, %d" % (T_A, FL_P))
    a("s_nop 0")
    a("v_cndmask_b32 v%d, v%d, v%d, vcc" % (V_T, V_T, V_T + 2))
    a("v_add_u32 v%d, v%d, v%d" % (FV_F + 3, V_T, FV_L4))
    a("buffer_load_dword v%d, v%d, s[20:23], s%d offen sc1" % (FV_F, FV_F + 3, T_A))
    a("s_branch L_f_syncret")
    a.label("L_f_ev2")
    a("s_mov_b32 s%d, 0" % S_SYNC)
    a("s_mov_b32 s%d, 0" % T_CNT)
    a("s_mov_b32 s%d, %d" % (T_A, FL_P))
    a.label("L_f_fpchk")
    a("s_waitcnt vmcnt(0)")
    a("v_cmp_ne_u32 vcc, 0, v%d" % FV_F)
    a("s_add_u32 s%d, s%d, 1" % (T_CNT, T_CNT))
    a("s_cmp_gt_u32 s%d, 0x40000" % T_CNT)
    a("s_cbranch_scc1 L_f_fpok")
    a("s_or_b32 s%d, vcc_hi, 0xffff0000" % T_M)
    a("s_and_b32 s%d, s%d, vcc_lo" % (T_M, T_M))
    a("s_cmp_eq_u32 s%d, -1" % T_M)
    a("s_cbranch_scc1 L_f_fpok")
    a("buffer_load_dword v%d, v%d, s[20:23], s%d offen sc1" % (FV_F, FV_F + 3, T_A))
    a("s_branch L_f_fpchk")
    a.label("L_f_fpok")
    a("s_lshl_b32 s%d, s%d, 1" % (T_A, T_NBO))
    a("s_add_u32 s%d, s%d, s%d" % (T_A, T_A, T_HALF))
    a("s_lshl_b32 s%d, s%d, 14" % (T_A, T_A))
    a("s_add_u32 s%d, s%d, %d" % (T_A, T_A, WS_WO))
    for i in range(16):
        if i and i % 4 == 0:
            a("s_add_u32 s%d, s%d, 4096" % (T_A, T_A))
        a("buffer_load_dwordx4 %s, v%d, s[20:23], s%d offen offset:%d sc1" % (vr(FV_WO + 4 * i), FV_LX, T_A, (i % 4) * 1024))
    srd(a, 12, 10, 2048 * 1024)
    a("v_and_b32 v%d, 31, v%d" % (V_T, V_LANE))
    a("v_lshlrev_b32 v%d, 10, v%d" % (V_T, V_T))
    a("v_lshrrev_b32 v%d, 5, v%d" % (V_T + 1, V_LANE))
    a("v_lshl_add_u32 v%d, v%d, 3, v%d" % (V_T, V_T + 1, V_T))
    a("s_lshl_b32 s%d, s%d, 15" % (T_A, T_TBO))
    a("s_lshl_b32 s%d, s%d, 6" % (T_B, T_NBO))
    a("s_add_u32 s%d, s%d, s%d" % (T_A, T_A, T_B))
    a("s_lshl_b32 s%d, s%d, 5" % (T_B, T_HALF))
    a("s_add_u32 s%d, s%d, s%d" % (T_A, T_A, T_B))
    for q in range(2):
        a("buffer_load_dwordx2 %s, v%d, s[12:15], s%d offen offset:%d" % (vr(FV_XR + 2 * q, 2), V_T, T_A, q * 16))
    a("s_branch L_f_syncret")


def fused_tail(a, E):
    S_WAVE, S_H, S_QB = E["S_WAVE"], E["S_H"], E["S_QB"]
    V_LANE, V_L16 = 1, 2
    V_T = 3
    S_MASK, S_W3, S_M0W, S_SW, S_SH, S_M0H = 43, 44, 45, 46, 47, 48
    a.ts("k2")
    a("s_setprio 0")
    for k in ("S_SYNC", "S_TYPE", "S_PASS", "S_NT", "S_ITER"):
        a("s_mov_b32 s%d, 0" % E[k])
    a("s_mov_b32 s%d, 0xffff0000" % S_MASK)
    a("s_and_b32 s%d, s%d, 3" % (S_W3, S_WAVE))
    a("s_lshl_b32 s%d, s%d, 2" % (T_A, S_QB))
    a("s_lshr_b32 s%d, s%d, 1" % (T_B, S_WAVE))
    a("s_add_u32 s%d, s%d, s%d" % (T_A, T_A, T_B))
    a("s_lshl_b32 s%d, s%d, 8" % (T_A, T_A))
    a("s_and_b32 s%d, s%d, 1" % (T_B, S_WAVE))
    a("s_lshl_b32 s%d, s%d, 5" % (T_B, T_B))
    a("s_add_u32 s%d, s%d, s%d" % (T_B, T_B, S_H))
    a("s_lshl_b32 s%d, s%d, 2" % (T_B, T_B))
    a("s_add_u32 s%d, s%d, s%d" % (T_B, T_B, T_A))
    a("s_add_u32 s%d, s%d, %d" % (T_B, T_B, FL_A))
    a("s_mul_i32 s%d, s%d, 7168" % (S_M0W, S_W3))
    a("s_mul_i32 s%d, s%d, %d" % (S_SW, T_CGF, 32 * 7 * 1024))
    a("s_add_u32 s%d, s%d, s%d" % (S_SW, S_SW, S_M0W))
    a("s_add_u32 s%d, s%d, %d" % (S_SW, S_SW, WS_GU))

    def w_stage(st):
        slot = st % 4
        a("s_add_u32 s%d, s%d, %d" % (T_C, S_SW, st * SLOT))
        a("s_add_u32 m0, s%d, %d" % (S_M0W, slot * SLOT))
        a("s_add_u32 s%d, s%d, 4096" % (T_D, T_C))
        for q in range(4):
            a("buffer_load_dwordx4 v%d, s[20:23], s%d offen offset:%d sc1 lds" % (V_L16, T_C, q * 1024))
        a("s_add_u32 m0, m0, 4096")
        a("s_nop 0")
        for q in range(3):
            a("buffer_load_dwordx4 v%d, s[20:23], s%d offen offset:%d sc1 lds" % (V_L16, T_D, q * 1024))

    a("s_waitcnt vmcnt(0)")
    set_flag(a, T_B, V_T)
    a("s_barrier")
    OB, XS = 86016, 57344
    a("s_cmp_ge_u32 s%d, 4" % S_WAVE)
    a("s_cbranch_scc1 L_f_a1")
    w_stage(0)
    w_stage(1)
    a("s_branch L_f_a2")
    a.label("L_f_a1")
    a("s_lshl_b32 s%d, s%d, 8" % (T_A, T_RB64))
    a("s_lshl_b32 s%d, s%d, 6" % (T_B, S_W3))
    a("s_add_u32 s%d, s%d, s%d" % (T_A, T_A, T_B))
    a("s_add_u32 s%d, s%d, %d" % (T_A, T_A, FL_A))
    a("s_lshl_b32 s%d, s%d, 2" % (T_C, T_RB64))
    a("s_add_u32 s%d, s%d, s%d" % (T_C, T_C, S_W3))
    a("s_lshl_b32 s%d, s%d, 14" % (T_C, T_C))
    a("s_add_u32 s%d, s%d, %d" % (T_C, T_C, WS_O))
    a("s_lshl_b32 s%d, s%d, 14" % (T_B, S_W3))
    a("s_add_u32 m0, s%d, %d" % (T_B, OB))
    poll(a, "fa", T_A, 16, FV_L4, FV_F + 2)
    a.ts("k2")
    for j in range(16):
        if j and j % 4 == 0:
            a("s_add_u32 m0, m0, 4096")
            a("s_add_u32 s%d, s%d, 4096" % (T_C, T_C))
        a("buffer_load_dwordx4 v%d, s[20:23], s%d offen offset:%d sc1 lds" % (V_L16, T_C, (j % 4) * 1024))
    a.label("L_f_a2")

    V_OA = 12
    V_OF = [16 + 4 * i for i in range(8)]
    V_AB = 64
    V_U = 80
    V_HK = 16
    a("s_bfe_u32 s%d, s%d, 0x10001" % (T_B, S_WAVE))
    a("s_lshl_b32 s%d, s%d, 1" % (T_B, T_B))
    a("s_add_u32 s%d, s%d, s%d" % (T_B, T_B, T_HALF))
    a("s_lshl_b32 s%d, s%d, 14" % (T_B, T_B))
    a("s_add_u32 s%d, s%d, %d" % (T_B, T_B, OB))
    a("v_add_u32 v%d, s%d, v%d" % (V_OA, T_B, V_L16))
    a("s_xor_b32 s%d, s%d, 4" % (T_B, S_WAVE))
    a("s_lshl_b32 s%d, s%d, 11" % (T_B, T_B))
    a("s_add_u32 s%d, s%d, %d" % (T_B, T_B, XS))
    a("v_add_u32 v%d, s%d, v%d" % (V_OA + 1, T_B, V_L16))
    a("s_lshl_b32 s%d, s%d, 11" % (T_B, S_WAVE))
    a("s_add_u32 s%d, s%d, %d" % (T_B, T_B, XS))
    a("v_add_u32 v%d, s%d, v%d" % (V_OA + 2, T_B, V_L16))
    for d in range(4):
        a("v_lshlrev_b32 v%d, 16, v%d" % (V_U + 2 * d, FV_XR + d))
        a("v_and_b32 v%d, s%d, v%d" % (V_U + 2 * d + 1, S_MASK, FV_XR + d))
    a("s_cmp_lt_u32 s%d, 4" % S_WAVE)
    a("s_cbranch_scc1 L_f_b3")
    a("s_waitcnt vmcnt(0)")
    a.label("L_f_b3")
    a("s_barrier")
    a.ts("k2")
    for i in range(8):
        a("ds_read_b128 %s, v%d offset:%d" % (vr(V_OF[i]), V_OA, i * 1024))
    for i in range(16):
        a("s_waitcnt lgkmcnt(%d)" % (7 if i < 8 else 15 - i))
        a("v_mfma_f32_32x32x16_bf16 %s, %s, %s, %s" % (vr(V_AB, 16), vr(FV_WO + 4 * i), vr(V_OF[i % 8]), "0" if i == 0 else vr(V_AB, 16)))
        if i < 8:
            a("ds_read_b128 %s, v%d offset:%d" % (vr(V_OF[i]), V_OA, (i + 8) * 1024))
    a("s_lshl_b32 s%d, s%d, 4" % (T_A, T_TBO))
    a("s_add_u32 s%d, s%d, s%d" % (T_A, T_A, T_NBO))
    a("s_lshl_b32 s%d, s%d, 1" % (T_A, T_A))
    a("s_add_u32 s%d, s%d, s%d" % (T_A, T_A, T_HALF))
    a("s_lshr_b32 s%d, s%d, 1" % (T_B, T_A))
    a("s_lshl_b32 s%d, s%d, 9" % (T_B, T_B))
    a("s_lshl_b32 s%d, s%d, 3" % (T_C, T_HALF))
    a("s_add_u32 s%d, s%d, s%d" % (T_B, T_B, T_C))
    a("s_add_u32 s%d, s%d, %d" % (T_B, T_B, WS_ST))
    a("s_lshl_b32 s%d, s%d, 10" % (T_A, T_A))
    a("s_add_u32 s%d, s%d, %d" % (T_A, T_A, WS_H))
    a("v_and_b32 v%d, 31, v%d" % (V_T, V_LANE))
    a("v_lshlrev_b32 v%d, 4, v%d" % (V_T, V_T))
    a("s_nop 1")
    for q in range(2):
        a("ds_write_b128 v%d, %s offset:%d" % (V_OA + 1, vr(V_AB + 8 + 4 * q), q * 1024))
    for i in range(8):
        a("v_add_f32 v%d, v%d, v%d" % (V_AB + i, V_AB + i, V_U + i))
    a("s_waitcnt lgkmcnt(0)")
    a("s_barrier")
    for q in range(2):
        a("ds_read_b128 %s, v%d offset:%d" % (vr(V_U + 4 * q), V_OA + 2, q * 1024))
    a("s_waitcnt lgkmcnt(0)")
    for i in range(8):
        a("v_add_f32 v%d, v%d, v%d" % (V_AB + i, V_AB + i, V_U + i))
    for i in range(4):
        a("v_cvt_pk_bf16_f32 v%d, v%d, v%d" % (V_HK + i, V_AB + 2 * i, V_AB + 2 * i + 1))
    hstore(a, "h", ["buffer_store_dwordx4 %s, v%d, s[20:23], s%d offen" % (vr(V_HK), V_L16, T_A)])
    for d in range(4):
        a("v_lshlrev_b32 v%d, 16, v%d" % (V_U + 2 * d, V_HK + d))
        a("v_and_b32 v%d, s%d, v%d" % (V_U + 2 * d + 1, S_MASK, V_HK + d))
    S1, S2 = V_AB, V_AB + 1
    a("v_add_f32 v%d, v%d, v%d" % (S1, V_U, V_U + 1))
    a("v_mul_f32 v%d, v%d, v%d" % (S2, V_U, V_U))
    a("v_fmac_f32 v%d, v%d, v%d" % (S2, V_U + 1, V_U + 1))
    for i in range(2, 8):
        a("v_add_f32 v%d, v%d, v%d" % (S1, S1, V_U + i))
        a("v_fmac_f32 v%d, v%d, v%d" % (S2, V_U + i, V_U + i))
    sum_halves(a, S1, V_AB + 2)
    sum_halves(a, S2, V_AB + 3)
    hstore(a, "st", ["buffer_store_dwordx2 %s, v%d, s[20:23], s%d offen" % (vr(S1, 2), V_T, T_B)])
    a("s_lshl_b32 s%d, s%d, 4" % (T_B, T_TBO))
    a("s_add_u32 s%d, s%d, s%d" % (T_B, T_B, T_NBO))
    a("s_lshl_b32 s%d, s%d, 1" % (T_B, T_B))
    a("s_add_u32 s%d, s%d, s%d" % (T_B, T_B, T_HALF))
    a("s_lshl_b32 s%d, s%d, 2" % (T_B, T_B))
    a("s_add_u32 s%d, s%d, %d" % (T_B, T_B, FL_B))
    a("v_mov_b32 v%d, v%d" % (14, FV_LX))
    a("v_mov_b32 v%d, v%d" % (15, FV_L4))
    V_LX, V_L4 = 14, 15
    a("s_waitcnt vmcnt(0)")
    set_flag(a, T_B, V_T, "fb")
    a("s_barrier")
    a.ts("k2")
    HR = 114688
    a("s_lshl_b32 s%d, s%d, 2" % (T_A, T_RB128))
    a("s_add_u32 s%d, s%d, s%d" % (T_A, T_A, S_W3))
    a("s_lshl_b32 s%d, s%d, 15" % (S_SH, T_A))
    a("s_add_u32 s%d, s%d, %d" % (S_SH, S_SH, WS_H))
    a("s_lshl_b32 s%d, s%d, 12" % (S_M0H, S_W3))
    a("s_add_u32 s%d, s%d, %d" % (S_M0H, S_M0H, HR))

    def h_stage(st):
        a("s_add_u32 m0, s%d, %d" % (S_M0H, (st % 3) * 16384))
        a("s_add_u32 s%d, s%d, %d" % (T_C, S_SH, st * 4096))
        for q in range(4):
            a("buffer_load_dwordx4 v%d, s[20:23], s%d offen offset:%d sc1 lds" % (V_L16, T_C, q * 1024))

    a("s_cmp_ge_u32 s%d, 4" % S_WAVE)
    a("s_cbranch_scc1 L_f_ccomp")
    w_stage(2)
    w_stage(3)
    V_WD = 144
    V_WP = 32
    S_KQ = 50
    a("s_lshr_b32 s%d, s%d, 1" % (S_KQ, S_WAVE))
    a("s_lshl_b32 s%d, s%d, 2" % (T_A, T_NBO))
    a("s_add_u32 s%d, s%d, s%d" % (T_A, T_A, S_KQ))
    a("s_mul_i32 s%d, s%d, %d" % (T_A, T_A, 28 * 1024))
    a("s_add_u32 s%d, s%d, %d" % (T_A, T_A, WS_WD))
    a("s_add_u32 s%d, s%d, %d" % (T_B, T_A, 56 * 1024))
    a("v_xor_b32 v%d, 0x100, v%d" % (V_T, V_L16))
    a("s_mul_i32 s%d, s%d, %d" % (T_M, S_W3, 28 * 1024))
    a("v_add_u32 v%d, s%d, v%d" % (V_T + 1, T_M, V_L16))

    def wd_loads(i0, i1):
        for i in range(i0, i1):
            if i and i % 4 == 0:
                a("s_add_u32 s%d, s%d, 4096" % (T_A, T_A))
            a("buffer_load_dwordx4 %s, v%d, s[20:23], s%d offen offset:%d sc1" % (vr(V_WD + 4 * i), V_LX, T_A, (i % 4) * 1024))

    log = ["W0"] * 7 + ["W1"] * 7 + ["W2"] * 7 + ["W3"] * 7
    wd_plan = {5: 8, 6: 12, 7: 8}
    nwd = 0
    for j in range(8):
        last = max(i for i, t in enumerate(log) if t in ("W%d" % j, "h%d" % j))
        n = len(log) - 1 - last
        assert n <= 63
        a("s_waitcnt vmcnt(%d)" % n)
        a("s_barrier")
        if j >= 1:
            if j + 2 <= 7:
                h_stage(j + 2)
                log += ["h%d" % (j + 2)] * 4
            if j + 3 <= 7:
                w_stage(j + 3)
                log += ["W%d" % (j + 3)] * 7
        k = wd_plan.get(j, 0)
        wd_loads(nwd, nwd + k)
        log += ["d"] * k
        nwd += k
    assert nwd == 28
    a("s_mov_b32 m0, s%d" % T_M)
    a("s_barrier")
    for i in range(28):
        if i and i % 4 == 0:
            a("s_add_u32 m0, m0, 4096")
            a("s_add_u32 s%d, s%d, 4096" % (T_B, T_B))
        a("buffer_load_dwordx4 v%d, s[20:23], s%d offen offset:%d sc1 lds" % (V_T, T_B, (i % 4) * 1024))
    a("s_waitcnt vmcnt(0)")
    a("s_barrier")
    a("s_branch L_f_d1")
    a.label("L_f_ccomp")
    V_AW, V_AH = 12, 13
    V_ST = 20
    V_CSL = 52
    V_H = [80, 84]
    V_W = [88, 116]
    V_ACC = [144 + 16 * b for b in range(7)]
    V_TMP = 88
    S_TB = 49
    a("s_lshl_b32 s%d, s%d, 2" % (S_TB, T_RB128))
    a("s_add_u32 s%d, s%d, s%d" % (S_TB, S_TB, S_W3))
    a("v_mov_b32 v%d, v%d" % (V_AW, V_L16))
    a("s_lshl_b32 s%d, s%d, 12" % (T_A, S_W3))
    a("s_add_u32 s%d, s%d, %d" % (T_A, T_A, HR))
    a("v_add_u32 v%d, s%d, v%d" % (V_AH, T_A, V_L16))
    a("v_and_b32 v%d, 31, v%d" % (V_T, V_LANE))
    a("v_lshlrev_b32 v%d, 4, v%d" % (V_T, V_T))
    a("v_lshrrev_b32 v%d, 5, v%d" % (V_T + 1, V_LANE))
    a("v_lshl_add_u32 v%d, v%d, 12, v%d" % (V_T, V_T + 1, V_T))
    a("s_mul_i32 s%d, s%d, 7168" % (T_C, T_CGF))
    a("s_add_u32 s%d, s%d, %d" % (T_C, T_C, WS_CS))
    a("s_add_u32 s%d, s%d, 4096" % (T_D, T_C))
    for blk in range(7):
        a("buffer_load_dwordx4 %s, v%d, s[20:23], s%d offen offset:%d sc1" % (vr(V_CSL + 4 * blk), V_L16, T_C if blk < 4 else T_D, (blk % 4) * 1024))
    a("s_lshl_b32 s%d, s%d, 7" % (T_B, S_TB))
    a("s_add_u32 s%d, s%d, %d" % (T_B, T_B, FL_B))
    poll(a, "fb", T_B, 32, V_L4, 9)
    for st in range(3):
        h_stage(st)
    a("s_lshl_b32 s%d, s%d, 13" % (T_A, S_TB))
    a("s_add_u32 s%d, s%d, %d" % (T_A, T_A, WS_ST))
    cur_base = [0]
    lds = Lds(a)

    def reads(P):
        st, pos = P // 4, P % 4
        slot = st % 4
        base, imm = (slot // 2) * 2 * SLOT, (slot % 2) * SLOT
        out = []
        b = P % 2
        out.append(("ds_read_b128 %s, v%d offset:%d" % (vr(V_H[b]), V_AH, (st % 3) * 16384 + pos * 1024), ("h", P)))
        if base != cur_base[0]:
            d = base - cur_base[0]
            out.append(("v_add_u32 v%d, %d, v%d" % (V_AW, d, V_AW) if d > 0 else "v_subrev_u32 v%d, %d, v%d" % (V_AW, -d, V_AW), None))
            cur_base[0] = base
        for blk in range(7):
            out.append(("ds_read_b128 %s, v%d offset:%d" % (vr(V_W[b] + 4 * blk), V_AW, imm + (pos * 7 + blk) * 1024), ("w", P, blk)))
        return out

    side = {}
    g = []
    for i in range(8):
        g.append("buffer_load_dwordx4 %s, v%d, s[20:23], s%d offen offset:%d sc1" % (vr(V_ST + 4 * i), V_T, T_A, i * 512))
    side[0], side[1] = g[:4], g[4:]
    sa = Asm()
    S1, S2 = V_T + 1, V_T + 2
    V_MU, V_RS = V_T + 2, V_T + 4
    V_VAR, V_C1, V_C2 = 6, 8, 10
    sa("s_waitcnt vmcnt(0)")
    sa("v_add_f32 v%d, v%d, v%d" % (S1, V_ST, V_ST + 2))
    sa("v_add_f32 v%d, v%d, v%d" % (S2, V_ST + 1, V_ST + 3))
    for i in range(2, 16):
        sa("v_add_f32 v%d, v%d, v%d" % (S1, S1, V_ST + 2 * i))
        sa("v_add_f32 v%d, v%d, v%d" % (S2, S2, V_ST + 2 * i + 1))
    sum_halves(sa, S1, V_T + 4)
    sum_halves(sa, S2, V_T + 4)
    sa("v_mul_f32 v%d, 0x%x, v%d" % (V_VAR, f32bits(1.0 / 512), S2))
    sa("v_mul_f32 v%d, 0x%x, v%d" % (V_MU, f32bits(1.0 / 512), S1))
    sa("v_fma_f32 v%d, -v%d, v%d, v%d" % (V_VAR, V_MU, V_MU, V_VAR))
    sa("v_max_f32 v%d, 0, v%d" % (V_VAR, V_VAR))
    sa("v_add_f32 v%d, 0x%x, v%d" % (V_VAR, f32bits(1e-5), V_VAR))
    sa("v_rsq_f32 v%d, v%d" % (V_RS, V_VAR))
    sa("v_sub_f32 v%d, 0, v%d" % (V_MU, V_MU))
    VB = V_ST
    split_hi_lo_B(sa, V_MU, VB, V_T, S_MASK)
    c1 = -2.0 * math.sqrt(2.0 / math.pi) * math.log2(math.e)
    sa("v_mul_f32 v%d, 0x%x, v%d" % (V_C1, f32bits(c1), V_RS))
    sa("v_mul_f32 v%d, v%d, v%d" % (V_C2, V_RS, V_RS))
    sa("v_mul_f32 v%d, v%d, v%d" % (V_C2, V_C2, V_C1))
    sa("v_mul_f32 v%d, 0x%x, v%d" % (V_C2, f32bits(0.044715), V_C2))
    VA = V_CSL
    for blk in range(7):
        c = V_CSL + 4 * blk
        a("v_add_f32 v%d, v%d, v%d" % (c, c, c + 1))
        a("v_add_f32 v%d, v%d, v%d" % (c + 2, c + 2, c + 3))
        a("v_add_f32 v%d, v%d, v%d" % (V_T + 2, c, c + 2))
        split_hi_lo_A(a, V_T + 2, c, V_T + 1, S_MASK)
    sl = [x.strip() for x in sa.L]
    per = 10
    for k in range((len(sl) + per - 1) // per):
        side[10 + k] = sl[per * k:per * (k + 1)]
    P_R1 = 10 + (len(sl) + per - 1) // per + 1
    assert P_R1 <= 30
    side[30] = ["s_mul_i32 s%d, s%d, 112" % (T_A, S_TB), "s_mul_i32 s%d, s%d, 7" % (T_B, T_CGF), "s_add_u32 s%d, s%d, s%d" % (T_A, T_A, T_B),
                "s_lshl_b32 s%d, s%d, 10" % (T_A, T_A), "s_add_u32 s%d, s%d, %d" % (T_A, T_A, WS_A), "s_add_u32 s%d, s%d, 4096" % (T_B, T_A)]
    a("s_waitcnt vmcnt(8)")
    a("s_barrier")
    a.ts("k2")
    for t, tag in reads(0):
        lds.op(t, tag) if tag else a(t)
    for P in range(32):
        st, pos = P // 4, P % 4
        b = P % 2
        rd = reads(P + 1) if P < 31 else []
        sd = list(side.get(P, []))
        bar_at = 3 if (pos == 3 and P < 31) else -1
        first_rd = bar_at if bar_at >= 0 else 0
        for blk in range(7):
            if blk == bar_at:
                lds.drain()
                if st == 0:
                    a("s_waitcnt vmcnt(12)")
                if st == 1:
                    a("s_waitcnt vmcnt(8)")
                a("s_barrier")
            lds.need(("h", P), ("w", P, blk))
            a("v_mfma_f32_32x32x16_bf16 %s, %s, %s, %s" % (vr(V_ACC[blk], 16), vr(V_W[b] + 4 * blk), vr(V_H[b]), "0" if P == 0 else vr(V_ACC[blk], 16)))
            if blk >= first_rd:
                nrd = 3 if bar_at >= 0 else 2
                for _ in range(nrd):
                    if rd:
                        t, tag = rd.pop(0)
                        lds.op(t, tag) if tag else a(t)
            for _ in range(2):
                if sd:
                    a(sd.pop(0))
        assert not rd and not sd
        if P == P_R1:
            for blk in range(7):
                a("v_mfma_f32_32x32x16_bf16 %s, %s, %s, %s" % (vr(V_ACC[blk], 16), vr(VA + 4 * blk), vr(VB), vr(V_ACC[blk], 16)))
    a.ts("k2")
    a("s_barrier")
    a("s_nop 4")
    bc = lambda r: "v[%d:%d]" % (r, r + 1)
    for blk in range(7):
        G = V_ACC[blk]
        Uu = G + 8
        T = V_TMP + 8 * (blk % 2)
        for i in range(0, 8, 2):
            a("v_pk_mul_f32 %s, %s, %s" % (bc(T + i), bc(G + i), bc(G + i)))
        for i in range(0, 8, 2):
            a("v_pk_fma_f32 %s, %s, %s, %s op_sel_hi:[1,0,0]" % (bc(T + i), bc(T + i), bc(V_C2), bc(V_C1)))
        for i in range(0, 8, 2):
            a("v_pk_mul_f32 %s, %s, %s" % (bc(T + i), bc(T + i), bc(G + i)))
        for i in range(8):
            a("v_exp_f32 v%d, v%d" % (T + i, T + i))
        for i in range(0, 8, 2):
            a("v_pk_mul_f32 %s, %s, %s" % (bc(G + i), bc(G + i), bc(Uu + i)))
        for i in range(0, 8, 2):
            a("v_pk_fma_f32 %s, %s, %s, %s op_sel_hi:[1,0,0]" % (bc(T + i), bc(T + i), bc(V_VAR), bc(V_VAR)))
        for i in range(8):
            a("v_rcp_f32 v%d, v%d" % (T + i, T + i))
        a("s_nop 0")
        for i in range(0, 8, 2):
            a("v_pk_mul_f32 %s, %s, %s" % (bc(G + i), bc(G + i), bc(T + i)))
        o = V_TMP + 16 + 4 * blk
        for i in range(4):
            a("v_cvt_pk_bf16_f32 v%d, v%d, v%d" % (o + i, G + 2 * i, G + 2 * i + 1))
    hstore(a, "act", ["buffer_store_dwordx4 %s, v%d, s[20:23], s%d offen offset:%d" % (vr(V_TMP + 16 + 4 * blk), V_L16, T_A if blk < 4 else T_B, (blk % 4) * 1024) for blk in range(7)])
    a.ts("k2")
    a("s_lshl_b32 s%d, s%d, 4" % (T_B, S_TB))
    a("s_add_u32 s%d, s%d, s%d" % (T_B, T_B, T_CGF))
    a("s_lshl_b32 s%d, s%d, 2" % (T_B, T_B))
    a("s_add_u32 s%d, s%d, %d" % (T_B, T_B, FL_C))
    a("s_lshr_b32 s%d, s%d, 1" % (S_KQ, S_WAVE))
    a("s_mul_i32 s%d, s%d, %d" % (T_M, S_W3, 28 * 1024))
    a("v_add_u32 v%d, s%d, v%d" % (V_T + 2, T_M, V_L16))
    a("s_waitcnt vmcnt(0)")
    set_flag(a, T_B, V_T, "fc")
    a("s_barrier")
    for i in range(28):
        a("ds_read_b128 %s, v%d offset:%d" % (vr(V_WD + 4 * i), V_T + 2, i * 1024))
        if i % 8 == 7:
            a("s_waitcnt lgkmcnt(4)")
    a("s_waitcnt lgkmcnt(0)")
    a.label("L_f_d1")
    V_AA = [12, 13]
    V_AF = [[32 + 32 * b + 4 * i for i in range(8)] for b in range(2)]
    V_AD = [96, 112]
    S_SA, S_M0A = 45, 46
    a("s_and_b32 s%d, s%d, 1" % (T_A, S_WAVE))
    a("s_lshl_b32 s%d, s%d, 1" % (T_B, T_RB64))
    a("s_add_u32 s%d, s%d, s%d" % (T_A, T_A, T_B))
    a("s_lshl_b32 s%d, s%d, 2" % (T_A, T_A))
    a("s_add_u32 s%d, s%d, s%d" % (T_A, T_A, S_KQ))
    a("s_mul_i32 s%d, s%d, %d" % (S_SA, T_A, 28 * 1024))
    a("s_add_u32 s%d, s%d, %d" % (S_SA, S_SA, WS_A))
    a("s_lshl_b32 s%d, s%d, 12" % (S_M0A, S_WAVE))
    for ai in range(2):
        a("s_and_b32 s%d, s%d, 1" % (T_A, S_KQ))
        a("s_xor_b32 s%d, s%d, %d" % (T_A, T_A, ai))
        a("s_lshl_b32 s%d, s%d, 1" % (T_B, S_KQ))
        a("s_add_u32 s%d, s%d, s%d" % (T_A, T_A, T_B))
        a("s_lshl_b32 s%d, s%d, 12" % (T_A, T_A))
        a("v_add_u32 v%d, s%d, v%d" % (V_AA[ai], T_A, V_L16))

    def a_stage(j):
        out = ["s_add_u32 m0, s%d, %d" % (S_M0A, (j % 5) * 32768), "s_add_u32 s%d, s%d, %d" % (T_C, S_SA, j * 4096)]
        for q in range(4):
            out.append("buffer_load_dwordx4 v%d, s[20:23], s%d offen offset:%d%s lds" % (V_L16, T_C, q * 1024, LSC))
        return out

    a("s_cmp_lg_u32 s%d, 0" % S_WAVE)
    a("s_cbranch_scc1 L_f_d2")
    a("s_lshl_b32 s%d, s%d, 7" % (T_A, T_RB64))
    a("s_add_u32 s%d, s%d, %d" % (T_A, T_A, FL_C))
    poll(a, "fc", T_A, 32, V_L4, 9)
    a.label("L_f_d2")
    a("s_barrier")
    a.ts("k2")
    a.ts("kd_")
    DD = 2
    for l in a_stage(0):
        a(l)
    a("s_barrier")
    if "d" in WBL2:
        a("s_lshl_b32 s%d, s%d, 3" % (T_A, S_MEM))
        a("s_add_u32 s%d, s%d, s%d" % (T_A, T_A, S_WAVE))
        a("s_cmp_lg_u32 s%d, 5" % T_A)
        a("s_cbranch_scc1 L_f_nowb2")
        a("buffer_wbl2 sc1")
        a.label("L_f_nowb2")
    for l in a_stage(1):
        a(l)
    cb = 0

    def d_mfmas(j):
        F = V_AF[j % 2]
        return ["v_mfma_f32_32x32x16_bf16 %s, %s, %s, %s" % (vr(V_AD[ai], 16), vr(V_WD + 4 * (4 * j + q)), vr(F[q * 2 + ai]), "0" if (j == 0 and q == 0) else vr(V_AD[ai], 16))
                for q in range(4) for ai in range(2)]

    for j in range(7):
        slot = j % 5
        base, imm = (slot // 2) * 65536, (slot % 2) * 32768
        if base != cb:
            d = base - cb
            for r in V_AA:
                a("v_add_u32 v%d, %d, v%d" % (r, d, r) if d > 0 else "v_subrev_u32 v%d, %d, v%d" % (r, -d, r))
            cb = base
        a("s_waitcnt vmcnt(%d) lgkmcnt(0)" % (4 * (min(j + DD - 1, 6) - j)))
        a("s_barrier")
        a.ts("kd_")
        F = V_AF[j % 2]
        stg = a_stage(j + DD) if j + DD <= 6 else []
        for l in stg[:3]:
            a(l)
        for q in range(4):
            for ai in range(2):
                a("ds_read_b128 %s, v%d offset:%d" % (vr(F[q * 2 + ai]), V_AA[ai], imm + q * 1024))
        rest = stg[3:]
        for k, m in enumerate(d_mfmas(j)):
            a("s_waitcnt lgkmcnt(%d)" % (7 - k))
            a(m)
            if rest:
                a(rest.pop(0))
    a.ts("kd_")
    XD = 65536
    for x in range(1, 4):
        a("s_xor_b32 s%d, s%d, %d" % (T_A, S_WAVE, x << 1))
        a("s_mul_i32 s%d, s%d, 6144" % (T_A, T_A))
        a("s_add_u32 s%d, s%d, %d" % (T_A, T_A, XD + (x - 1) * 2048))
        a("v_add_u32 v%d, s%d, v%d" % (V_T + x, T_A, V_L16))
    a("s_mul_i32 s%d, s%d, 6144" % (T_A, S_WAVE))
    a("s_add_u32 s%d, s%d, %d" % (T_A, T_A, XD))
    a("v_add_u32 v%d, s%d, v%d" % (V_T, T_A, V_L16))
    src = {1: V_AD[1], 2: V_AD[0] + 8, 3: V_AD[1] + 8}
    for x in (2, 1, 3):
        for q in range(2):
            a("ds_write_b128 v%d, %s offset:%d" % (V_T + x, vr(src[x] + 4 * q), q * 1024))
    U = 32
    for d in range(4):
        a("v_lshlrev_b32 v%d, 16, v%d" % (U + 2 * d, V_HK + d))
        a("v_and_b32 v%d, s%d, v%d" % (U + 2 * d + 1, S_MASK, V_HK + d))
    for i in range(8):
        a("v_add_f32 v%d, v%d, v%d" % (V_AD[0] + i, V_AD[0] + i, U + i))
    srd(a, 12, 16, 2048 * 1024)
    a("v_and_b32 v%d, 31, v%d" % (V_T + 4, V_LANE))
    a("v_lshlrev_b32 v%d, 10, v%d" % (V_T + 4, V_T + 4))
    a("v_lshrrev_b32 v%d, 5, v%d" % (V_T + 5, V_LANE))
    a("v_lshl_add_u32 v%d, v%d, 3, v%d" % (V_T + 4, V_T + 5, V_T + 4))
    a("s_lshl_b32 s%d, s%d, 15" % (T_A, T_TBO))
    a("s_lshl_b32 s%d, s%d, 6" % (T_B, T_NBO))
    a("s_add_u32 s%d, s%d, s%d" % (T_A, T_A, T_B))
    a("s_lshl_b32 s%d, s%d, 5" % (T_B, T_HALF))
    a("s_add_u32 s%d, s%d, s%d" % (T_A, T_A, T_B))
    a("s_waitcnt lgkmcnt(0)")
    a("s_barrier")
    a.ts("kd_")
    R = 48
    for k in range(6):
        a("ds_read_b128 %s, v%d offset:%d" % (vr(R + 4 * k), V_T, k * 1024))
    for x in range(3):
        a("s_waitcnt lgkmcnt(%d)" % (4 - 2 * x))
        for i in range(8):
            a("v_add_f32 v%d, v%d, v%d" % (V_AD[0] + i, V_AD[0] + i, R + 8 * x + i))
    for i in range(4):
        a("v_cvt_pk_bf16_f32 v%d, v%d, v%d" % (U + i, V_AD[0] + 2 * i, V_AD[0] + 2 * i + 1))
    for q in range(2):
        a("buffer_store_dwordx2 %s, v%d, s[12:15], s%d offen offset:%d" % (vr(U + 2 * q, 2), V_T + 4, T_A, q * 16))
    a.ts_flush("k2", S_WAVE, V_T)
    a.ts_flush("kd_", S_WAVE, V_T)


FL_1 = WS_FL + 24576
P1_DIST = int(os.environ.get('P1_DIST', 3))
P1_ROT = int(os.environ.get('P1_ROT', 1))


def team_check(a, tag, vl4, vf, preissued=False):
    a("s_lshl_b32 s38, s%d, 5" % S_TEAM)
    a("s_mov_b32 s36, 0")
    if preissued:
        a("s_branch L_tc_%s_w" % tag)
    a.label("L_tc_%s" % tag)
    a("buffer_load_dword v%d, v%d, s[96:99], s38 offen sc1" % (vf, vl4))
    a.label("L_tc_%s_w" % tag)
    a("s_add_u32 s36, s36, 1")
    a("s_waitcnt vmcnt(0)")
    a("v_subrev_u32 v%d, 0x01010101, v%d" % (vf + 1, vf))
    a("v_not_b32 v%d, v%d" % (vf + 2, vf))
    a("v_and_b32 v%d, v%d, v%d" % (vf + 1, vf + 1, vf + 2))
    a("v_and_b32 v%d, 0x80808080, v%d" % (vf + 1, vf + 1))
    a("v_cmp_eq_u32 vcc, 0, v%d" % (vf + 1))
    a("s_cmp_gt_u32 s36, 0x40000")
    a("s_cbranch_scc1 L_tc_%s_d" % tag)
    a("s_and_b32 s37, vcc_lo, 0xff")
    a("s_cmp_lg_u32 s37, 0xff")
    a("s_cbranch_scc1 L_tc_%s" % tag)
    a.label("L_tc_%s_d" % tag)
    a("s_mul_i32 s37, s%d, 0x01010101" % S_XCC)
    a("v_cmp_eq_u32 vcc, s37, v%d" % vf)
    a("s_nop 3")
    a("s_or_b32 s%d, vcc_lo, 0xffffff00" % S_FAST)
    if not FASTPATH:
        a("s_and_b32 s%d, s%d, 0" % (S_FAST, S_FAST))


def phase1(a, E):
    S_WAVE, S_H, S_QB = E["S_WAVE"], E["S_H"], E["S_QB"]
    SL, NS = 32768, 4
    SCR = NS * SL
    SCR_CS, SCR_RS, SCR_BF = SCR, SCR + 1536, SCR + 2048
    S_W3, S_MASK, S_T0, S_T1, S_KX, S_KW, S_SLOT, S_CNT, S_M0X, S_M0W, S_RD, S_SLC = 43, 44, 45, 46, 47, 48, 49, 50, 51, 52, 53, 54
    S_TBI, S_G, S_O0, S_O1, S_O2, S_O3, S_O4 = 55, 56, 57, 58, 59, 60, 61
    V_LANE, V_L16, V_T = 1, 2, 3
    V_DX, V_DW, V_AX, V_AW = 10, 14, 15, 19
    V_SEL, V_SQ = 24, 28
    V_X = [32, 36]
    V_W = [[40, 44, 48], [52, 56, 60]]
    V_ACC = [64, 80, 96]
    V_CS = [112, 116, 120]
    V_TMP = 124
    a("s_and_b32 s%d, s%d, 3" % (S_W3, S_WAVE))
    a("s_mov_b32 s%d, 0xffff0000" % S_MASK)
    a("s_mov_b32 s%d, 0" % S_SLOT)
    a("s_mov_b32 s%d, 0" % S_CNT)

    def x_addr(sbase, sxor):
        a("v_and_b32 v%d, 31, v%d" % (V_T, V_LANE))
        a("v_and_b32 v%d, 3, v%d" % (V_T + 1, V_LANE))
        a("v_lshrrev_b32 v%d, 2, v%d" % (V_T + 2, V_T))
        a("v_lshlrev_b32 v%d, 7, v%d" % (V_T + 2, V_T + 2))
        a("v_lshl_add_u32 v%d, v%d, 10, v%d" % (V_T + 2, V_T + 1, V_T + 2))
        a("v_add_u32 v%d, s%d, v%d" % (V_T + 2, sbase, V_T + 2))
        a("v_lshrrev_b32 v%d, 1, v%d" % (V_T + 3, V_T))
        a("v_and_b32 v%d, 4, v%d" % (V_T + 3, V_T + 3))
        a("v_or_b32 v%d, v%d, v%d" % (V_T + 3, V_T + 3, V_T + 1))
        a("v_lshrrev_b32 v%d, 5, v%d" % (V_T + 4, V_LANE))
        a("v_xor_b32 v%d, v%d, v%d" % (V_T + 3, V_T + 3, V_T + 4))
        if sxor is not None:
            a("v_xor_b32 v%d, s%d, v%d" % (V_T + 3, sxor, V_T + 3))
        for ks in range(4):
            a("v_xor_b32 v%d, %d, v%d" % (V_T + 5, 2 * ks, V_T + 3))
            a("v_lshl_add_u32 v%d, v%d, 4, v%d" % (V_AX + ks, V_T + 5, V_T + 2))

    a("s_cmp_ge_u32 s%d, 4" % S_WAVE)
    a("s_cbranch_scc1 L_p1_comp")
    a("v_lshrrev_b32 v%d, 3, v%d" % (V_T, V_LANE))
    a("v_and_b32 v%d, 7, v%d" % (V_T + 1, V_LANE))
    a("v_lshrrev_b32 v%d, 2, v%d" % (V_T + 2, V_LANE))
    a("v_and_b32 v%d, 4, v%d" % (V_T + 2, V_T + 2))
    a("v_xor_b32 v%d, v%d, v%d" % (V_T + 1, V_T + 1, V_T + 2))
    a("v_mul_u32_u24 v%d, 3072, v%d" % (V_T + 3, V_T))
    a("v_lshl_add_u32 v%d, v%d, 4, v%d" % (V_DW, V_T + 1, V_T + 3))
    a("v_lshlrev_b32 v%d, 12, v%d" % (V_T, V_T))
    for q in range(4):
        a("v_xor_b32 v%d, %d, v%d" % (V_T + 3, q, V_T + 1))
        a("v_lshl_add_u32 v%d, v%d, 4, v%d" % (V_DX + q, V_T + 3, V_T))
    a("s_mul_i32 s%d, s%d, %d" % (S_KW, S_W3, 16 * 3072))
    a("s_lshl_b32 s%d, s%d, 7" % (S_T0, S_TEAM))
    a("s_add_u32 s%d, s%d, s%d" % (S_KW, S_KW, S_T0))
    a("s_mul_i32 s%d, s%d, 6144" % (S_M0W, S_W3))
    a("s_add_u32 s%d, s%d, 8192" % (S_M0W, S_M0W))
    a("s_and_b32 s%d, s%d, 1" % (S_T0, S_W3))
    a("s_lshl_b32 s%d, s%d, 12" % (S_M0X, S_T0))
    a("s_lshl_b32 s%d, s%d, 1" % (S_T1, S_MEM))
    a("s_add_u32 s%d, s%d, s%d" % (S_T1, S_T1, S_T0))
    a("s_lshl_b32 s%d, s%d, 15" % (S_KX, S_T1))
    a("s_waitcnt lgkmcnt(0)")
    srd(a, 12, 10, 2048 * 1024)
    srd(a, 28, 100, 512 * 3072)
    srd(a, 20, 8, WS_SIZE)
    a("s_mov_b32 s98, 256")
    a("s_mov_b32 s99, 0x00020000")

    S_KC, S_OX, S_OW = 55, 56, 57
    if P1_ROT:
        a("s_and_b32 s%d, s%d, 7" % (S_KC, S_MEM))
    else:
        a("s_mov_b32 s%d, 0" % S_KC)

    def issue(with_x):
        a("s_mul_i32 s%d, s%d, %d" % (S_OW, S_KC, 64 * 3072))
        a("s_add_u32 s%d, s%d, s%d" % (S_OW, S_OW, S_KW))
        if with_x:
            a("s_lshl_b32 s%d, s%d, 7" % (S_OX, S_KC))
            a("s_add_u32 m0, s%d, s%d" % (S_M0X, S_SLOT))
            a("s_add_u32 s%d, s%d, s%d" % (S_OX, S_OX, S_KX))
            for q in range(4 if DIAG not in ("noload", "nox") else 0):
                a("buffer_load_dwordx4 v%d, s[12:15], s%d offen offset:%d lds" % (V_DX + q, S_OX, q * 1024))
        a("s_add_u32 m0, s%d, s%d" % (S_M0W, S_SLOT))
        a("s_add_u32 s%d, s%d, %d" % (S_T0, S_OW, 8 * 3072))
        for sx in range(3 if DIAG != "noload" else 0):
            a("buffer_load_dwordx4 v%d, s[28:31], s%d offen offset:%d lds" % (V_DW, S_OW, sx * 1024))
        a("s_add_u32 m0, m0, 3072")
        a("s_add_u32 s%d, s%d, 1" % (S_KC, S_KC))
        for sx in range(3 if DIAG != "noload" else 0):
            a("buffer_load_dwordx4 v%d, s[28:31], s%d offen offset:%d lds" % (V_DW, S_T0, sx * 1024))
        a("s_and_b32 s%d, s%d, 7" % (S_KC, S_KC))
        a("s_add_u32 s%d, s%d, %d" % (S_SLOT, S_SLOT, SL))
        a("s_and_b32 s%d, s%d, %d" % (S_SLOT, S_SLOT, NS * SL - 1))

    D = P1_DIST
    a("s_cmp_lt_u32 s%d, 2" % S_WAVE)
    a("s_cbranch_scc1 L_p1_stat")
    a.label("L_p1_ld")
    issue(True)
    a("s_add_u32 s%d, s%d, 1" % (S_CNT, S_CNT))
    a("s_cmp_lt_u32 s%d, %d" % (S_CNT, D))
    a("s_cbranch_scc1 L_p1_ld")
    a("s_waitcnt vmcnt(%d)" % (10 * (D - 1)))
    a("s_barrier")
    a("s_cmp_lt_u32 s%d, 8" % S_CNT)
    a("s_cbranch_scc1 L_p1_ld")
    for r in range(D - 2, -1, -1):
        a("s_waitcnt vmcnt(%d)" % (10 * r))
        a("s_barrier")
    a("s_branch L_p1_hx")
    a.label("L_p1_stat")
    for _ in range(D - 1):
        issue(False)
    LX = [64, 68, 72, 76]
    L_SX = 92
    x_addr(S_M0X, None)
    make_sel(a, V_LANE, V_SEL, V_T)
    for r in [V_SQ, V_SQ + 1] + list(range(L_SX, L_SX + 4)):
        a("v_mov_b32 v%d, 0" % r)
    a("s_mov_b32 s%d, %d" % (S_SLC, SL))
    a.label("L_p1_st")
    a("s_cmp_gt_u32 s%d, %d" % (S_CNT, 8 - D))
    a("s_cbranch_scc1 L_p1_st2")
    issue(False)
    a("s_waitcnt vmcnt(%d)" % (6 * (D - 1)))
    a("s_branch L_p1_st3")
    a.label("L_p1_st2")
    if D == 3:
        a("s_cmp_eq_u32 s%d, 7" % S_CNT)
        a("s_cbranch_scc1 L_p1_st4")
        a("s_waitcnt vmcnt(6)")
        a("s_branch L_p1_st3")
        a.label("L_p1_st4")
    a("s_waitcnt vmcnt(0)")
    a.label("L_p1_st3")
    a("s_barrier")
    for ks in range(4):
        a("ds_read_b128 %s, v%d" % (vr(LX[ks]), V_AX + ks))
    a("s_add_u32 s%d, s%d, 1" % (S_CNT, S_CNT))
    a("s_and_b32 s%d, s%d, %d" % (S_T1, S_CNT, NS - 1))
    a("s_cmp_eq_u32 s%d, 0" % S_T1)
    a("s_cselect_b32 s%d, %d, s%d" % (S_RD, -(NS - 1) * SL, S_SLC))
    for ks in range(4):
        a("s_waitcnt lgkmcnt(%d)" % (3 - ks))
        a("v_mfma_f32_16x16x32_bf16 %s, %s, %s, %s" % (vr(L_SX), vr(V_SEL), vr(LX[ks]), vr(L_SX)))
        for d in range(4 if DIAG not in ("nostat", "nocompute") else 0):
            t0, t1 = V_TMP + 2 * (d % 2), V_TMP + 2 * (d % 2) + 1
            a("v_lshlrev_b32 v%d, 16, v%d" % (t0, LX[ks] + d))
            a("v_and_b32 v%d, s%d, v%d" % (t1, S_MASK, LX[ks] + d))
            a("v_fmac_f32 v%d, v%d, v%d" % (V_SQ, t0, t0))
            a("v_fmac_f32 v%d, v%d, v%d" % (V_SQ + 1, t1, t1))
    for r in range(V_AX, V_AX + 4):
        a("v_add_u32 v%d, s%d, v%d" % (r, S_RD, r))
    a("s_cmp_lt_u32 s%d, 8" % S_CNT)
    a("s_cbranch_scc1 L_p1_st")
    a("v_and_b32 v%d, 31, v%d" % (V_T, V_LANE))
    a("v_lshlrev_b32 v%d, 2, v%d" % (V_T, V_T))
    a("v_add_f32 v%d, v%d, v%d" % (V_SQ, V_SQ, V_SQ + 1))
    sum_halves(a, V_SQ, V_SQ + 1)
    V_MU, V_RS = V_SQ + 2, V_SQ + 3
    a("v_mul_f32 v%d, 0x%x, v%d" % (V_MU, f32bits(1.0 / 512), L_SX))
    a("v_mul_f32 v%d, 0x%x, v%d" % (V_SQ, f32bits(1.0 / 512), V_SQ))
    a("v_fma_f32 v%d, -v%d, v%d, v%d" % (V_SQ, V_MU, V_MU, V_SQ))
    a("v_max_f32 v%d, 0, v%d" % (V_SQ, V_SQ))
    a("v_add_f32 v%d, 0x%x, v%d" % (V_SQ, f32bits(1e-5), V_SQ))
    a("v_rsq_f32 v%d, v%d" % (V_RS, V_SQ))
    a("v_sub_f32 v%d, 0, v%d" % (V_MU, V_MU))
    a("s_lshl_b32 s%d, s%d, 7" % (S_T0, S_W3))
    a("s_add_u32 s%d, s%d, %d" % (S_T0, S_T0, SCR_RS))
    a("v_add_u32 v%d, s%d, v%d" % (V_T + 2, S_T0, V_T))
    a("ds_write_b32 v%d, v%d" % (V_T + 2, V_RS))
    split_hi_lo_B(a, V_MU, LX[0], V_T + 4, S_MASK)
    a("s_lshl_b32 s%d, s%d, 9" % (S_T0, S_W3))
    a("s_add_u32 s%d, s%d, %d" % (S_T0, S_T0, SCR_BF))
    a("v_lshl_add_u32 v%d, v%d, 3, s%d" % (V_T + 3, V_LANE, S_T0))
    a("ds_write_b64 v%d, %s" % (V_T + 3, vr(LX[0], 2)))
    a("s_waitcnt lgkmcnt(0)")
    a.label("L_p1_hx")
    a("s_barrier")
    team_check(a, "h", FV_L4, FV_F)
    a("s_cmp_lg_u32 s%d, 0" % S_WAVE)
    a("s_cbranch_scc1 L_p1_done")
    a("s_lshl_b32 s%d, s%d, 9" % (T_A, S_TEAM))
    a("s_bfe_u32 s%d, s%d, 0x10001" % (T_B, S_H))
    a("s_lshl_b32 s%d, s%d, 8" % (T_B, T_B))
    a("s_add_u32 s%d, s%d, s%d" % (T_A, T_A, T_B))
    a("s_add_u32 s%d, s%d, %d" % (T_A, T_A, FL_1))
    poll(a, "f1", T_A, 64, FV_L4, FV_F)
    a("s_branch L_p1_done")
    a.label("L_p1_comp")
    a("s_lshr_b32 s%d, s%d, 1" % (S_TBI, S_W3))
    a("s_and_b32 s%d, s%d, 1" % (S_G, S_W3))
    a("s_lshl_b32 s%d, s%d, 12" % (S_T0, S_TBI))
    a("s_lshl_b32 s%d, s%d, 1" % (S_T1, S_TBI))
    x_addr(S_T0, S_T1)
    a("v_bfe_u32 v%d, v%d, 2, 2" % (V_T, V_LANE))
    a("v_lshlrev_b32 v%d, 7, v%d" % (V_T + 1, V_T))
    a("v_lshrrev_b32 v%d, 1, v%d" % (V_T, V_T))
    a("v_xor_b32 v%d, s%d, v%d" % (V_T, S_G, V_T))
    a("v_lshl_add_u32 v%d, v%d, 6, v%d" % (V_T + 1, V_T, V_T + 1))
    a("v_bfe_u32 v%d, v%d, 4, 1" % (V_T, V_LANE))
    a("v_lshl_add_u32 v%d, v%d, 5, v%d" % (V_T + 1, V_T, V_T + 1))
    a("v_and_b32 v%d, 3, v%d" % (V_T, V_LANE))
    a("v_lshl_add_u32 v%d, v%d, 3, v%d" % (V_T + 1, V_T, V_T + 1))
    a("v_lshrrev_b32 v%d, 5, v%d" % (V_T + 2, V_LANE))
    a("v_mul_u32_u24 v%d, 3072, v%d" % (V_T, V_T + 2))
    a("v_add_u32 v%d, v%d, v%d" % (V_T + 1, V_T + 1, V_T))
    for p in range(2):
        a("s_xor_b32 s%d, s%d, %d" % (S_T0, S_TBI, p))
        a("s_mul_i32 s%d, s%d, 6144" % (S_T0, S_T0))
        a("s_add_u32 s%d, s%d, 8192" % (S_T0, S_T0))
        a("v_add_u32 v%d, s%d, v%d" % (V_AW + p, S_T0, V_T + 1))
    make_sel(a, V_LANE, V_SEL, V_T)
    V_ECW, V_ECS, V_ERS, V_ERV, V_EBF, V_OV = 10, 11, 12, 13, 14, 21
    a("v_and_b32 v%d, 31, v%d" % (V_T, V_LANE))
    a("v_lshlrev_b32 v%d, 2, v%d" % (V_T, V_T))
    a("s_mul_i32 s%d, s%d, 768" % (S_T0, S_G))
    a("s_add_u32 s%d, s%d, %d" % (S_T0, S_T0, SCR_CS))
    a("v_mul_u32_u24 v%d, 384, v%d" % (V_T + 3, V_T + 2))
    a("v_add3_u32 v%d, v%d, v%d, s%d" % (V_ECS, V_T + 3, V_T, S_T0))
    a("s_mul_i32 s%d, s%d, 384" % (S_T1, S_TBI))
    a("s_add_u32 s%d, s%d, s%d" % (S_T0, S_T0, S_T1))
    a("v_add_u32 v%d, s%d, v%d" % (V_ECW, S_T0, V_T))
    a("s_lshl_b32 s%d, s%d, 7" % (S_T0, S_TBI))
    a("s_add_u32 s%d, s%d, %d" % (S_T0, S_T0, SCR_RS))
    a("v_add_u32 v%d, s%d, v%d" % (V_ERS, S_T0, V_T))
    a("v_lshl_add_u32 v%d, v%d, 4, s%d" % (V_ERV, V_T + 2, S_T0))
    a("s_lshl_b32 s%d, s%d, 9" % (S_T0, S_TBI))
    a("s_add_u32 s%d, s%d, %d" % (S_T0, S_T0, SCR_BF))
    a("v_lshl_add_u32 v%d, v%d, 3, s%d" % (V_EBF, V_LANE, S_T0))
    a("v_bfe_u32 v%d, v%d, 4, 1" % (V_T + 1, V_LANE))
    a("v_lshlrev_b32 v%d, 16, v%d" % (V_T + 1, V_T + 1))
    a("v_lshl_add_u32 v%d, v%d, 8, v%d" % (V_T + 1, V_T + 2, V_T + 1))
    a("v_and_b32 v%d, 15, v%d" % (V_T + 2, V_LANE))
    a("v_lshl_add_u32 v%d, v%d, 4, v%d" % (V_OV, V_T + 2, V_T + 1))
    a("s_lshl_b32 s%d, s%d, 1" % (S_T0, S_MEM))
    a("s_add_u32 s%d, s%d, s%d" % (S_T0, S_T0, S_TBI))
    a("s_lshl_b32 s%d, s%d, 10" % (S_T0, S_T0))
    a("s_lshl_b32 s%d, s%d, 1" % (S_T1, S_TEAM))
    a("s_add_u32 s%d, s%d, s%d" % (S_T1, S_T1, S_G))
    a("s_lshl_b32 s%d, s%d, 17" % (S_T1, S_T1))
    a("s_add_u32 s%d, s%d, s%d" % (S_O0, S_T0, S_T1))
    a("s_add_u32 s%d, s%d, 65536" % (S_O1, S_O0))
    a("s_add_u32 s%d, s%d, %d" % (S_O2, S_O0, WS_K))
    a("s_add_u32 s%d, s%d, %d" % (S_O3, S_O1, WS_K))
    a("s_add_u32 s%d, s%d, %d" % (S_O4, S_O0, WS_V))
    VB = V_TMP
    VA = [V_TMP + 4, V_TMP + 8, V_TMP + 12]
    for r in (VB + 2, VB + 3):
        a("v_mov_b32 v%d, 0" % r)
    a("s_waitcnt lgkmcnt(0)")
    srd(a, 20, 8, WS_SIZE)
    a("s_mov_b32 s98, 256")
    a("s_mov_b32 s99, 0x00020000")
    a("s_cmp_lg_u32 s%d, 4" % S_WAVE)
    a("s_cbranch_scc1 L_p1_nz")
    Z = V_TMP + 20
    a("v_and_b32 v%d, 1, v%d" % (Z, V_LANE))
    a("v_bfe_u32 v%d, v%d, 1, 1" % (Z + 1, V_LANE))
    a("v_bfe_u32 v%d, v%d, 2, 1" % (Z + 2, V_LANE))
    a("v_bfe_u32 v%d, v%d, 1, 2" % (Z + 3, V_LANE))
    a("s_lshl_b32 s36, s%d, 10" % S_QB)
    a("s_lshl_b32 s37, s%d, 2" % S_H)
    a("s_add_u32 s36, s36, s37")
    a("v_lshl_add_u32 v%d, v%d, 8, s36" % (Z + 4, Z + 3))
    a("v_lshl_add_u32 v%d, v%d, 7, v%d" % (Z + 4, Z, Z + 4))
    a("s_and_b32 s36, s%d, 3" % S_MEM)
    a("s_lshl_b32 s37, s%d, 2" % S_TEAM)
    a("s_add_u32 s38, s36, s37")
    a("s_lshl_b32 s36, s38, 8")
    a("s_lshr_b32 s37, s%d, 2" % S_MEM)
    a("s_lshl_b32 s39, s37, 4")
    a("s_add_u32 s36, s36, s39")
    a("s_add_u32 s36, s36, %d" % (FL_B - WS_FL))
    a("v_lshl_add_u32 v%d, v%d, 7, s36" % (Z + 5, Z + 1))
    a("v_lshl_add_u32 v%d, v%d, 3, v%d" % (Z + 5, Z, Z + 5))
    a("v_lshl_add_u32 v%d, v%d, 2, v%d" % (Z + 5, Z + 2, Z + 5))
    a("s_lshr_b32 s36, s38, 1")
    a("s_lshl_b32 s36, s36, 8")
    a("s_lshl_b32 s37, s37, 1")
    a("s_and_b32 s39, s%d, 1" % S_MEM)
    a("s_add_u32 s37, s37, s39")
    a("s_lshl_b32 s37, s37, 2")
    a("s_add_u32 s36, s36, s37")
    a("s_add_u32 s36, s36, %d" % (FL_C - WS_FL))
    a("v_lshl_add_u32 v%d, v%d, 7, s36" % (Z + 6, Z + 1))
    a("v_lshl_add_u32 v%d, v%d, 6, v%d" % (Z + 6, Z, Z + 6))
    a("s_lshl_b32 s36, s2, 4")
    a("s_add_u32 s36, s36, %d" % (FL_P - WS_FL))
    a("v_and_b32 v%d, 3, v%d" % (Z + 7, V_LANE))
    a("v_lshl_add_u32 v%d, v%d, 2, s36" % (Z + 7, Z + 7))
    a("v_cmp_ne_u32 vcc, 0, v%d" % (Z + 2))
    a("s_lshl_b32 s36, s%d, 9" % S_TEAM)
    a("s_lshl_b32 s37, s%d, 3" % S_MEM)
    a("s_add_u32 s36, s36, s37")
    a("s_add_u32 s36, s36, %d" % (FL_1 - WS_FL))
    a("v_cndmask_b32 v%d, v%d, v%d, vcc" % (Z + 6, Z + 6, Z + 7))
    a("v_lshl_add_u32 v%d, v%d, 8, s36" % (Z + 7, Z))
    a("v_lshl_add_u32 v%d, v%d, 2, v%d" % (Z + 7, Z + 1, Z + 7))
    a("v_mov_b32 v%d, v%d" % (V_T, Z + 4))
    for k in range(1, 4):
        a("v_cmp_le_u32 vcc, %d, v%d" % (8 * k, V_LANE))
        a("s_nop 1")
        a("v_cndmask_b32 v%d, v%d, v%d, vcc" % (V_T, V_T, Z + 4 + k))
    a("v_mov_b32 v%d, 0" % (V_T + 1))
    a("s_mov_b32 s%d, %d" % (S_T0, WS_FL))
    a("s_mov_b64 exec, 0xffffffff")
    a("buffer_store_dword v%d, v%d, s[20:23], s%d offen sc1" % (V_T + 1, V_T, S_T0))
    a("s_lshl_b32 s%d, s%d, 5" % (S_T0, S_TEAM))
    a("s_add_u32 s%d, s%d, s%d" % (S_T0, S_T0, S_MEM))
    a("v_mov_b32 v%d, s%d" % (V_T + 2, S_XCC))
    a("s_mov_b64 exec, 1")
    a("s_waitcnt vmcnt(0)")
    a("buffer_store_byte v%d, v%d, s[96:99], s%d offen sc1" % (V_T + 2, V_T + 1, S_T0))
    a("s_mov_b64 exec, -1")
    a.label("L_p1_nz")
    cur_base = [0]

    def reads(P):
        st, pos = P // 4, P % 4
        slot = st % NS
        base, imm = (slot // 2) * 2 * SL, (slot % 2) * SL
        out = []
        if base != cur_base[0]:
            d = base - cur_base[0]
            for r in list(range(V_AX, V_AX + 4)) + [V_AW, V_AW + 1]:
                out.append("v_add_u32 v%d, %d, v%d" % (r, d, r) if d > 0 else "v_subrev_u32 v%d, %d, v%d" % (r, -d, r))
            cur_base[0] = base
        b = P % 2
        out.append("ds_read_b128 %s, v%d offset:%d" % (vr(V_X[b]), V_AX + pos, imm))
        for sx in range(3):
            for rd in range(2):
                out.append("ds_read_b64_tr_b16 %s, v%d offset:%d" % (vr(V_W[b][sx] + 2 * rd, 2), V_AW + (pos & 1), imm + (pos & 2) * 6144 + sx * 1024 + rd * 512))
        return out

    a("s_barrier")
    a.ts("k2")
    for l in reads(0):
        a(l)
    for P in range(32):
        st, pos = P // 4, P % 4
        b = P % 2
        a("s_waitcnt lgkmcnt(0)")
        if pos == 3 and P < 31:
            a("s_barrier")
        rd = reads(P + 1) if P < 31 else []
        X = vr(V_X[b])
        c = lambda r, n=16: ("0" if P == 0 else vr(r, n))
        m = []
        if pos % 2 == 0:
            for sx in range(3):
                m.append("v_mfma_f32_16x16x32_bf16 %s, %s, %s, %s" % (vr(V_CS[sx]), vr(V_SEL), vr(V_W[b][sx]), c(V_CS[sx], 4)))
        m.append("v_mfma_f32_32x32x16_bf16 %s, %s, %s, %s" % (vr(V_ACC[0], 16), vr(V_W[b][0]), X, c(V_ACC[0])))
        m.append("v_mfma_f32_32x32x16_bf16 %s, %s, %s, %s" % (vr(V_ACC[1], 16), vr(V_W[b][1]), X, c(V_ACC[1])))
        m.append("v_mfma_f32_32x32x16_bf16 %s, %s, %s, %s" % (vr(V_ACC[2], 16), X, vr(V_W[b][2]), c(V_ACC[2])))
        nfirst = 3 if len(rd) <= 8 else 9
        if P == 31:
            rd = ["ds_write_b32 v%d, v%d offset:%d" % (V_ECW, V_CS[sx], sx * 128) for sx in range(3)]
        if P == 20:
            rd = rd + ["s_lshl_b32 s38, s%d, 5" % S_TEAM, "buffer_load_dword v%d, v%d, s[96:99], s38 offen sc1" % (FV_F, FV_L4)]
        if DIAG == "nocompute" and P not in (20, 31):
            continue
        for l in rd[:nfirst]:
            a(l)
        for l in interleave(m, rd[nfirst:], per=2):
            a(l)
    a.ts("k2")
    a("s_waitcnt lgkmcnt(0)")
    a("s_barrier")
    VC = V_TMP + 16
    V_RS = V_TMP + 22
    V_RQ = V_TMP + 23
    VR = V_TMP + 24
    for sx in range(3):
        a("ds_read_b32 v%d, v%d offset:%d" % (VC + sx, V_ECS, sx * 128))
    a("ds_read_b64 %s, v%d" % (vr(VB, 2), V_EBF))
    a("ds_read_b32 v%d, v%d" % (V_RS, V_ERS))
    for q in range(4):
        a("ds_read_b128 %s, v%d offset:%d" % (vr(VR + 4 * q), V_ERV, q * 32))
    for sx in range(3):
        a("s_waitcnt lgkmcnt(%d)" % (8 - sx))
        split_hi_lo_A(a, VC + sx, VA[sx], V_T + 4, S_MASK)
    a("s_waitcnt lgkmcnt(4)")
    a("v_mul_f32 v%d, 0x%x, v%d" % (V_RQ, f32bits(0.25 * math.log2(math.e)), V_RS))
    a("v_mfma_f32_32x32x16_bf16 %s, %s, %s, %s" % (vr(V_ACC[0], 16), vr(VA[0]), vr(VB), vr(V_ACC[0], 16)))
    a("v_mfma_f32_32x32x16_bf16 %s, %s, %s, %s" % (vr(V_ACC[1], 16), vr(VA[1]), vr(VB), vr(V_ACC[1], 16)))
    a("v_mfma_f32_32x32x16_bf16 %s, %s, %s, %s" % (vr(V_ACC[2], 16), vr(VB), vr(VA[2]), vr(V_ACC[2], 16)))
    team_check(a, "c", FV_L4, FV_F, preissued=True)
    VO = V_X[0]
    k = 0
    stores = []
    for blk, sc, soffs in ((1, V_RS, (S_O2, S_O3)), (0, V_RQ, (S_O0, S_O1))):
        for half in range(2):
            o = VO + 4 * k
            k += 1
            for i in range(8):
                r = V_ACC[blk] + 8 * half + i
                a("v_mul_f32 v%d, v%d, v%d" % (r, sc, r))
            for i in range(4):
                r = V_ACC[blk] + 8 * half + 2 * i
                a("v_cvt_pk_bf16_f32 v%d, v%d, v%d" % (o + i, r, r + 1))
            stores.append("buffer_store_dwordx4 %s, v%d, s[20:23], s%d offen" % (vr(o), V_L16, soffs[half]))
        hstore(a, "p1%d" % blk, stores)
        stores = []
    a("s_waitcnt lgkmcnt(0)")
    for half in range(2):
        o = VO + 4 * k
        k += 1
        for i in range(8):
            r = V_ACC[2] + 8 * half + i
            a("v_mul_f32 v%d, v%d, v%d" % (r, VR + 8 * half + i, r))
        for i in range(4):
            r = V_ACC[2] + 8 * half + 2 * i
            a("v_cvt_pk_bf16_f32 v%d, v%d, v%d" % (o + i, r, r + 1))
        stores.append("buffer_store_dwordx4 %s, v%d, s[20:23], s%d offen offset:%d" % (vr(o), V_OV, S_O4, half * 512))
    hstore(a, "p1v", stores)
    a("s_lshl_b32 s%d, s%d, 9" % (T_A, S_TEAM))
    a("s_lshl_b32 s%d, s%d, 8" % (T_B, S_G))
    a("s_add_u32 s%d, s%d, s%d" % (T_A, T_A, T_B))
    a("s_lshl_b32 s%d, s%d, 1" % (T_B, S_MEM))
    a("s_add_u32 s%d, s%d, s%d" % (T_B, T_B, S_TBI))
    a("s_lshl_b32 s%d, s%d, 2" % (T_B, T_B))
    a("s_add_u32 s%d, s%d, s%d" % (T_A, T_A, T_B))
    a("s_add_u32 s%d, s%d, %d" % (T_A, T_A, FL_1))
    a("s_waitcnt vmcnt(0)")
    set_flag(a, T_A, V_T, "f1")
    a.label("L_p1_done")


def gen_f(a):
    name = NAME + "_kernel"
    kernel_begin(a, name)
    S_WAVE, S_H, S_QB, S_T0, S_T1, S_T2, S_T3 = 40, 41, 42, 43, 44, 45, 46
    S_ITER, S_SYNC, S_PASS, S_NT = 47, 48, 49, 50
    S_TASK, S_STG, S_DST0, S_DST1, S_TYPE = 51, 52, 53, 54, 55
    S_VMASK = 56
    S_CS = 58
    S_KB, S_W1K, S_CH = 59, 60, 61
    S_PE, S_PO, S_PS = 36, 37, 38
    V_LANE, V_L16, V_T = 1, 2, 3
    V_KA, V_VA = 10, 11
    V_Q = 12
    V_K = [16, 20]
    V_V = [24, 32]
    V_P = 40
    V_CM = 48
    V_S = [64, 80]
    V_O = 96
    V_MAX = 112
    V_PK = 113
    V_PD = 114
    V_SEL = 116
    V_PCS = [120, 124]
    STG = 131072
    a("s_cmp_ge_u32 s2, 256")
    a("s_cbranch_scc1 L_f_end")
    a.ts("k2")
    pass
    a("s_load_dwordx2 s[8:9], s[0:1], %d" % ARG_WS)
    a("s_load_dwordx2 s[4:5], s[0:1], %d" % ARG_WO)
    a("s_load_dwordx4 s[24:27], s[0:1], %d" % ARG_WG)
    a("s_load_dwordx2 s[6:7], s[0:1], %d" % ARG_WD)
    a("s_load_dwordx2 s[10:11], s[0:1], %d" % ARG_X)
    a("s_load_dwordx2 s[16:17], s[0:1], %d" % ARG_OUT)
    a("s_load_dwordx2 s[100:101], s[0:1], %d" % ARG_WQKV)
    a("s_load_dwordx2 s[96:97], s[0:1], %d" % ARG_DBG)
    a("v_lshrrev_b32 v%d, 6, v0" % V_T)
    a("v_and_b32 v%d, 63, v0" % V_LANE)
    a("v_readfirstlane_b32 s%d, v%d" % (S_WAVE, V_T))
    a("v_lshlrev_b32 v%d, 4, v%d" % (V_L16, V_LANE))
    a("s_lshr_b32 s%d, s2, 3" % S_MEM)
    a("s_and_b32 s%d, s2, 7" % S_TEAM)
    if AMAP:
        a("s_lshr_b32 s%d, s2, 3" % S_H)
        a("s_and_b32 s%d, s2, 7" % S_QB)
    else:
        a("s_and_b32 s%d, s2, 7" % S_H)
        a("s_lshl_b32 s%d, s%d, 2" % (S_H, S_H))
        a("s_lshr_b32 s%d, s2, 6" % S_T0)
        a("s_add_u32 s%d, s%d, s%d" % (S_H, S_H, S_T0))
        a("s_lshr_b32 s%d, s2, 3" % S_QB)
        a("s_and_b32 s%d, s%d, 7" % (S_QB, S_QB))
    a("s_lshr_b32 s%d, s%d, 2" % (S_T0, S_WAVE))
    a("s_lshl_b32 s%d, s%d, 8" % (S_T0, S_T0))
    a("v_xor_b32 v%d, s%d, v%d" % (FV_LX, S_T0, V_L16))
    a("v_lshlrev_b32 v%d, 2, v%d" % (FV_L4, V_LANE))
    a("v_mov_b32 v%d, 0" % (FV_F + 3))
    a("s_getreg_b32 s%d, hwreg(HW_REG_XCC_ID)" % S_XCC)
    a("s_and_b32 s%d, s%d, 15" % (S_XCC, S_XCC))
    a("s_add_u32 s%d, s%d, 1" % (S_XCC, S_XCC))
    phase1(a, locals())
    a("s_lshl_b32 s%d, s%d, 16" % (S_KB, S_H))
    a("s_lshl_b32 s%d, s%d, 10" % (S_W1K, S_WAVE))
    a("s_add_u32 s%d, s%d, s%d" % (S_KB, S_KB, S_W1K))
    a("s_lshl_b32 s%d, s%d, 13" % (S_CH, S_QB))
    a("s_add_u32 s%d, s%d, s%d" % (S_T3, S_KB, S_CH))
    a("s_add_u32 s%d, s%d, %d" % (S_KB, S_KB, WS_K))
    if not K2_ROT:
        a("s_mov_b32 s%d, 0" % S_CH)
    a("s_mov_b32 s39, s%d" % S_T3)

    def kv_dma(c):
        return [["s_add_u32 s%d, s%d, s%d" % (S_T3, S_KB, S_CH),
                 "s_add_u32 m0, s%d, %d" % (S_W1K, c * 8192),
                 "s_add_u32 s%d, s%d, 8192" % (S_CH, S_CH),
                 "buffer_load_dwordx4 v%d, s[20:23], s%d offen sc1 lds" % (V_L16, S_T3)],
                ["s_add_u32 s%d, s%d, %d" % (S_T3, S_T3, WS_V - WS_K),
                 "s_add_u32 m0, s%d, %d" % (S_W1K, 65536 + c * 8192),
                 "s_and_b32 s%d, s%d, 0xffff" % (S_CH, S_CH),
                 "buffer_load_dwordx4 v%d, s[20:23], s%d offen sc1 lds" % (V_L16, S_T3)]]

    a("s_mov_b32 s%d, 0" % S_TYPE)
    a("s_cmp_ge_u32 s%d, 4" % S_WAVE)
    a("s_cbranch_scc1 L_f_nopack")
    a("s_lshl_b32 s%d, s2, 2" % S_TASK)
    a("s_add_u32 s%d, s%d, s%d" % (S_TASK, S_TASK, S_WAVE))
    a("s_cmp_ge_u32 s%d, 736" % S_TASK)
    a("s_cbranch_scc1 L_f_nopack")
    a("s_lshl_b32 s%d, s%d, 13" % (S_STG, S_WAVE))
    a("s_add_u32 s%d, s%d, %d" % (S_STG, S_STG, STG))
    a("v_lshrrev_b32 v%d, 2, v%d" % (V_T, V_LANE))
    a("v_and_b32 v%d, 3, v%d" % (V_T + 1, V_LANE))
    a("s_cmp_ge_u32 s%d, 448" % S_TASK)
    a("s_cbranch_scc1 L_f_packn")
    a("s_mov_b32 s%d, 1" % S_TYPE)
    srd(a, 28, 24, 512 * 3584)
    srd(a, 32, 26, 512 * 3584)
    a("v_mul_u32_u24 v%d, 3584, v%d" % (V_T, V_T))
    a("v_lshl_add_u32 v%d, v%d, 4, v%d" % (V_PD, V_T + 1, V_T))
    a("s_and_b32 s%d, s%d, 7" % (S_T0, S_TASK))
    a("s_lshr_b32 s%d, s%d, 3" % (S_T1, S_TASK))
    a("s_mul_i32 s%d, s%d, %d" % (S_PE, S_T0, 64 * 3584))
    a("s_lshl_b32 s%d, s%d, 6" % (S_T2, S_T1))
    a("s_add_u32 s%d, s%d, s%d" % (S_PE, S_PE, S_T2))
    a("s_mov_b32 s%d, s%d" % (S_PO, S_PE))
    a("s_mov_b32 s%d, %d" % (S_PS, 16 * 3584))
    for hb, sd in ((0, S_DST0), (1, S_DST1)):
        a("s_lshl_b32 s%d, s%d, 1" % (S_T2, S_T1))
        if hb:
            a("s_add_u32 s%d, s%d, 1" % (S_T2, S_T2))
        a("s_mul_i32 s%d, s%d, 9363" % (S_CS, S_T2))
        a("s_lshr_b32 s%d, s%d, 16" % (S_CS, S_CS))
        a("s_mul_i32 s%d, s%d, 7" % (sd, S_CS))
        a("s_sub_u32 s%d, s%d, s%d" % (sd, S_T2, sd))
        a("s_mul_i32 s%d, s%d, %d" % (S_CS, S_CS, 32 * 7))
        a("s_add_u32 s%d, s%d, s%d" % (sd, sd, S_CS))
        a("s_mul_i32 s%d, s%d, 28" % (S_CS, S_T0))
        a("s_add_u32 s%d, s%d, s%d" % (sd, sd, S_CS))
        a("s_lshl_b32 s%d, s%d, 10" % (sd, sd))
        a("s_add_u32 s%d, s%d, %d" % (sd, sd, WS_GU))
    a("s_lshl_b32 s%d, s%d, 11" % (S_CS, S_T1))
    a("s_lshr_b32 s%d, s%d, 2" % (S_T2, S_T0))
    a("s_lshl_b32 s%d, s%d, 9" % (S_T2, S_T2))
    a("s_add_u32 s%d, s%d, s%d" % (S_CS, S_CS, S_T2))
    a("s_and_b32 s%d, s%d, 3" % (S_T2, S_T0))
    a("s_lshl_b32 s%d, s%d, 2" % (S_T2, S_T2))
    a("s_add_u32 s%d, s%d, s%d" % (S_CS, S_CS, S_T2))
    a("s_add_u32 s%d, s%d, %d" % (S_CS, S_CS, WS_CS))
    a("s_branch L_f_nopack")
    a.label("L_f_packn")
    a("s_mov_b32 s%d, 2" % S_TYPE)
    a("v_lshlrev_b32 v%d, 10, v%d" % (V_T, V_T))
    a("v_lshl_add_u32 v%d, v%d, 4, v%d" % (V_PD, V_T + 1, V_T))
    a("s_cmp_ge_u32 s%d, 512" % S_TASK)
    a("s_cbranch_scc1 L_f_packd")
    srd(a, 28, 4, 512 * 1024)
    srd(a, 32, 4, 512 * 1024)
    a("s_sub_u32 s%d, s%d, 448" % (S_T0, S_TASK))
    a("s_lshr_b32 s%d, s%d, 2" % (S_T1, S_T0))
    a("s_and_b32 s%d, s%d, 3" % (S_T0, S_T0))
    a("s_lshl_b32 s%d, s%d, 15" % (S_DST0, S_T1))
    a("s_add_u32 s%d, s%d, %d" % (S_DST0, S_DST0, WS_WO))
    a("s_branch L_f_packc")
    a.label("L_f_packd")
    srd(a, 28, 6, 1792 * 1024)
    srd(a, 32, 6, 1792 * 1024)
    a("s_sub_u32 s%d, s%d, 512" % (S_T0, S_TASK))
    a("s_mul_i32 s%d, s%d, 4682" % (S_T1, S_T0))
    a("s_lshr_b32 s%d, s%d, 16" % (S_T1, S_T1))
    a("s_mul_i32 s%d, s%d, 14" % (S_T2, S_T1))
    a("s_sub_u32 s%d, s%d, s%d" % (S_T0, S_T0, S_T2))
    a("s_mul_i32 s%d, s%d, %d" % (S_DST0, S_T1, 112 * 1024))
    a("s_add_u32 s%d, s%d, %d" % (S_DST0, S_DST0, WS_WD))
    a.label("L_f_packc")
    a("s_lshl_b32 s%d, s%d, 13" % (S_T2, S_T0))
    a("s_add_u32 s%d, s%d, s%d" % (S_DST0, S_DST0, S_T2))
    a("s_lshl_b32 s%d, s%d, 17" % (S_PE, S_T0))
    a("s_lshl_b32 s%d, s%d, 6" % (S_T2, S_T1))
    a("s_add_u32 s%d, s%d, s%d" % (S_PE, S_PE, S_T2))
    a("s_add_u32 s%d, s%d, 16384" % (S_PO, S_PE))
    a("s_mov_b32 s%d, 32768" % S_PS)
    a.label("L_f_nopack")
    a("s_mov_b32 s%d, 0x0000ffff" % S_VMASK)
    a("s_mov_b32 s%d, 0x0000ffff" % (S_VMASK + 1))
    a("v_and_b32 v%d, 27, v%d" % (V_T, V_LANE))
    a("v_cmp_eq_u32 vcc, 16, v%d" % V_T)
    a("v_mov_b32 v%d, 0x%x" % (V_T + 1, ONES_BF16))
    a("s_nop 1")
    a("v_cndmask_b32 v%d, 0, v%d, vcc" % (V_V[0], V_T + 1))
    for i in range(1, 16):
        a("v_mov_b32 v%d, v%d" % (V_V[0] + i, V_V[0]))
    a("s_mov_b32 s%d, 7" % S_SYNC)
    a("s_mov_b32 s%d, 0" % S_PASS)
    a("s_mov_b32 s%d, 1" % S_NT)
    a("s_setprio 3")
    a("s_barrier")
    a.ts("k2")
    a("buffer_load_dwordx4 %s, v%d, s[20:23], s39 offen sc1" % (vr(V_Q), V_L16))
    for c in range(2):
        for g in kv_dma(c):
            for l in g:
                a(l)
    a("s_waitcnt vmcnt(2)")
    pass
    a("s_barrier")
    a.ts("k2")
    pass
    a.label("L_f_maxpass")
    a("v_mov_b32 v%d, 0xff800000" % V_MAX)
    a("v_mov_b32 v%d, v%d" % (V_KA, V_L16))
    a.label("L_f_mloop")
    a("ds_read_b128 %s, v%d" % (vr(V_K[0]), V_KA))
    a("v_add_u32 v%d, 1024, v%d" % (V_KA, V_KA))
    a("s_waitcnt lgkmcnt(0)")
    a("v_mfma_f32_32x32x16_bf16 %s, %s, %s, 0" % (vr(V_S[0], 16), vr(V_K[0]), vr(V_Q)))
    a("s_nop 15")
    for i in range(8):
        a("v_max3_f32 v%d, v%d, v%d, v%d" % (V_MAX, V_S[0] + 2 * i, V_S[0] + 2 * i + 1, V_MAX))
    a("s_sub_u32 s%d, s%d, 1" % (S_NT, S_NT))
    a("s_cmp_lg_u32 s%d, 0" % S_NT)
    a("s_cbranch_scc1 L_f_mloop")
    a("v_mov_b32 v%d, v%d" % (V_KA, V_L16))
    a("v_lshrrev_b32 v%d, 5, v%d" % (V_T, V_LANE))
    a("v_lshlrev_b32 v%d, 8, v%d" % (V_T, V_T))
    a("v_and_b32 v%d, 15, v%d" % (V_T + 1, V_LANE))
    a("v_lshl_add_u32 v%d, v%d, 4, v%d" % (V_VA, V_T + 1, V_T))
    a("v_add_u32 v%d, 65536, v%d" % (V_VA, V_VA))
    a("ds_read_b128 %s, v%d" % (vr(V_K[0]), V_KA))
    a("ds_read_b128 %s, v%d offset:1024" % (vr(V_K[1]), V_KA))
    a("s_mov_b64 exec, s[%d:%d]" % (S_VMASK, S_VMASK + 1))
    a("ds_read_b128 %s, v%d" % (vr(V_V[0]), V_VA))
    a("ds_read_b128 %s, v%d offset:512" % (vr(V_V[0] + 4), V_VA))
    a("s_mov_b64 exec, -1")
    a("v_mov_b32 v%d, v%d" % (V_T, V_MAX))
    a("s_nop 1")
    a("v_permlane32_swap_b32 v%d, v%d" % (V_MAX, V_T))
    a("s_nop 1")
    a("v_max_f32 v%d, v%d, v%d" % (V_MAX, V_MAX, V_T))
    for i in range(16):
        a("v_sub_f32 v%d, 0, v%d" % (V_CM + i, V_MAX))
    a("s_waitcnt lgkmcnt(0)")
    a("s_nop 0")
    a("v_mfma_f32_32x32x16_bf16 %s, %s, %s, %s" % (vr(V_S[0], 16), vr(V_K[0]), vr(V_Q), vr(V_CM, 16)))
    for i in range(16):
        a("v_mov_b32 v%d, 0" % (V_O + i))
    for i in range(4):
        a("v_mov_b32 v%d, 0" % (V_P + 4 + i))
    a("s_mov_b32 s%d, 8" % S_ITER)
    a("s_cmp_lg_u32 s%d, 0" % S_PASS)
    a("s_cbranch_scc1 L_f_loop")

    def body(peeled):
        for t in range(8):
            cur, nxt = t % 2, (t + 1) % 2
            x1, x2 = [], []
            if peeled:
                if t < 6:
                    x1, x2 = kv_dma(t + 2)
                if t == 6:
                    a("s_waitcnt vmcnt(12)")
                    a("s_barrier")
                if t >= 6:
                    lab = "L_f_np%d" % t
                    x1 = ["s_cmp_eq_u32 s%d, 0" % S_TYPE, "s_cbranch_scc1 %s" % lab]
                    for i in range(4 * (t - 6), 4 * (t - 6) + 4):
                        x1 += ["s_add_u32 m0, s%d, %d" % (S_STG, i * 1024), "s_nop 0",
                               "buffer_load_dwordx4 v%d, s[%d:%d], s%d offen lds" % (V_PD, 28 + 4 * (i % 2), 31 + 4 * (i % 2), S_PO if i % 2 else S_PE),
                               "s_add_u32 s%d, s%d, s%d" % ((S_PO, S_PO, S_PS) if i % 2 else (S_PE, S_PE, S_PS))]
                    x1 += [lab + ":"]
            else:
                if t == 0:
                    for k, r in enumerate((5, 2, 1)):
                        x1 += ["s_cmp_lg_u32 s%d, %d" % (S_ITER, r), "s_cbranch_scc1 L_f_pp%d" % k, "s_setprio %d" % (2 - k), "L_f_pp%d:" % k]
                if t == 6:
                    a("s_cmp_eq_u32 s%d, s%d" % (S_ITER, S_SYNC))
                    a("s_cbranch_scc1 L_f_event")
                    a.label("L_f_syncret")
            S = V_S[cur]
            e = lambda i: "v_exp_f32 v%d, v%d" % (S + i, S + i)
            c = lambda i: "v_cvt_pk_bf16_f32 v%d, v%d, v%d" % (V_P + i, S + 2 * i, S + 2 * i + 1)
            pv = lambda b, h: "v_mfma_f32_32x32x16_bf16 %s, %s, %s, %s" % (vr(V_O, 16), vr(V_V[b] + 4 * h), vr(V_P + 4 * h), vr(V_O, 16))
            qk = "v_mfma_f32_32x32x16_bf16 %s, %s, %s, %s" % (vr(V_S[nxt], 16), vr(V_K[nxt]), vr(V_Q), vr(V_CM, 16))
            rdk = "ds_read_b128 %s, v%d offset:%d" % (vr(V_K[cur]), V_KA, (t + 2) * 1024)
            rdv = ["s_mov_b64 exec, s[%d:%d]" % (S_VMASK, S_VMASK + 1),
                   "ds_read_b128 %s, v%d offset:%d" % (vr(V_V[nxt]), V_VA, (t + 1) * 1024),
                   "ds_read_b128 %s, v%d offset:%d" % (vr(V_V[nxt] + 4), V_VA, (t + 1) * 1024 + 512),
                   "s_mov_b64 exec, -1"]
            seq = [e(0), e(1), pv(nxt, 1), e(2), "s_waitcnt lgkmcnt(0)", rdk, e(3)] + rdv + [c(0), e(4), e(5), c(1), e(6), e(7), qk, c(2), e(8)] + x1 + [e(9), c(3),
                   e(10), e(11), c(4), e(12), e(13), pv(cur, 0), c(5), e(14)] + x2 + [e(15), c(6)]
            if t == 7:
                seq += ["v_add_u32 v%d, 8192, v%d" % (V_KA, V_KA), "v_add_u32 v%d, 8192, v%d" % (V_VA, V_VA),
                        "s_sub_u32 s%d, s%d, 1" % (S_ITER, S_ITER), "s_cmp_lg_u32 s%d, 0" % S_ITER]
            seq += [c(7)]
            for l in seq:
                if l.endswith(":"):
                    a.label(l[:-1])
                else:
                    a(l)

    body(True)
    a.raw(".p2align 6")
    a.label("L_f_loop")
    body(False)
    a("s_cbranch_scc1 L_f_loop")
    a("s_nop 1")
    a("v_mfma_f32_32x32x16_bf16 %s, %s, %s, %s" % (vr(V_O, 16), vr(V_V[1] + 4), vr(V_P + 4), vr(V_O, 16)))
    a("s_waitcnt lgkmcnt(0)")
    a("s_lshl_b32 s%d, s%d, 3" % (S_T0, S_QB))
    a("s_add_u32 s%d, s%d, s%d" % (S_T0, S_T0, S_WAVE))
    a("s_lshl_b32 s%d, s%d, 5" % (S_T0, S_T0))
    a("s_add_u32 s%d, s%d, s%d" % (S_T0, S_T0, S_H))
    a("s_lshl_b32 s%d, s%d, 10" % (S_T0, S_T0))
    a("s_add_u32 s%d, s%d, %d" % (S_T0, S_T0, WS_O))
    a("s_nop 7")
    a("v_mul_f32 v%d, 0, v%d" % (V_T, V_O))
    for i in range(1, 8):
        a("v_fmac_f32 v%d, 0, v%d" % (V_T, V_O + i))
    a("v_add_f32 v%d, v%d, v%d" % (V_T, V_T, V_O + 8))
    a("v_cmp_gt_f32 vcc, 0x%x, v%d" % (f32bits(2.0 ** 100), V_T))
    a("v_rcp_f32 v%d, v%d" % (V_T + 1, V_O + 8))
    a("s_cmp_lg_u32 s%d, 0" % S_PASS)
    a("s_cbranch_scc1 L_f_fin")
    a("s_cmp_eq_u64 vcc, exec")
    a("s_cbranch_scc1 L_f_fin")
    a("s_mov_b32 s%d, 1" % S_PASS)
    a("s_mov_b32 s%d, 64" % S_NT)
    a("s_branch L_f_maxpass")
    a.label("L_f_fin")
    for i in range(8):
        a("v_mul_f32 v%d, v%d, v%d" % (V_O + i, V_T + 1, V_O + i))
    for i in range(4):
        a("v_cvt_pk_bf16_f32 v%d, v%d, v%d" % (V_P + i, V_O + 2 * i, V_O + 2 * i + 1))
    if AMAP:
        hstore(a, "o", ["buffer_store_dwordx4 %s, v%d, s[20:23], s%d offen" % (vr(V_P), V_L16, S_T0)])
    else:
        a("buffer_store_dwordx4 %s, v%d, s[20:23], s%d offen sc1" % (vr(V_P), V_L16, S_T0))
    fused_tail(a, locals())
    a.label("L_f_end")
    a("s_endpgm")
    fused_events(a, locals())
    a.label("L_f_sync")
    a("s_mov_b32 s%d, 6" % S_SYNC)
    a("s_cmp_eq_u32 s%d, 0" % S_TYPE)
    a("s_cbranch_scc1 L_f_sy0")
    a("s_waitcnt vmcnt(8)")
    a("s_barrier")
    a("s_branch L_f_syncret")
    a.label("L_f_sy0")
    a("s_waitcnt vmcnt(0)")
    a("s_barrier")
    a("s_branch L_f_syncret")
    a.label("L_f_ev6")
    a("s_mov_b32 s%d, 5" % S_SYNC)
    a("s_cmp_eq_u32 s%d, 0" % S_TYPE)
    a("s_cbranch_scc1 L_f_syncret")
    a("s_waitcnt vmcnt(0)")
    a("v_bfe_u32 v%d, v%d, 2, 2" % (V_T, V_LANE))
    a("v_lshrrev_b32 v%d, 5, v%d" % (V_T + 1, V_LANE))
    a("v_lshl_add_u32 v%d, v%d, 2, v%d" % (V_T, V_T + 1, V_T))
    a("v_lshlrev_b32 v%d, 6, v%d" % (V_T, V_T))
    a("v_and_b32 v%d, 3, v%d" % (V_T + 1, V_LANE))
    a("v_lshl_add_u32 v%d, v%d, 3, v%d" % (V_T, V_T + 1, V_T))
    a("v_add_u32 v%d, s%d, v%d" % (V_T, S_STG, V_T))
    a("v_bfe_u32 v%d, v%d, 4, 1" % (V_T + 1, V_LANE))
    FB = [128 + 4 * i for i in range(8)]
    a("s_cmp_eq_u32 s%d, 2" % S_TYPE)
    a("s_cbranch_scc1 L_f_pk2")
    a("v_lshl_add_u32 v%d, v%d, 10, v%d" % (V_PK, V_T + 1, V_T))
    for ks in range(4):
        for hb in range(2):
            for rd in range(2):
                a("ds_read_b64_tr_b16 %s, v%d offset:%d" % (vr(FB[ks * 2 + hb] + 2 * rd, 2), V_PK, ks * 2048 + hb * 32 + rd * 512))
    make_sel(a, V_LANE, V_SEL, V_T + 2)
    a("v_and_b32 v%d, 31, v%d" % (V_T, V_LANE))
    a("v_lshlrev_b32 v%d, 4, v%d" % (V_T, V_T))
    a("s_waitcnt lgkmcnt(0)")
    for ks in range(4):
        for hb in range(2):
            a("v_mfma_f32_16x16x32_bf16 %s, %s, %s, %s" % (vr(V_PCS[hb]), vr(V_SEL), vr(FB[ks * 2 + hb]), "0" if ks == 0 else vr(V_PCS[hb])))
            a("buffer_store_dwordx4 %s, v%d, s[20:23], s%d offen sc1" % (vr(FB[ks * 2 + hb]), V_L16, (S_DST0, S_DST1)[hb]))
        a("s_add_u32 s%d, s%d, 7168" % (S_DST0, S_DST0))
        a("s_add_u32 s%d, s%d, 7168" % (S_DST1, S_DST1))
    a("s_nop 7")
    a("buffer_store_dword v%d, v%d, s[20:23], s%d offen sc1" % (V_PCS[0], V_T, S_CS))
    a("buffer_store_dword v%d, v%d, s[20:23], s%d offen offset:1024 sc1" % (V_PCS[1], V_T, S_CS))
    a("s_branch L_f_syncret")
    a.label("L_f_pk2")
    a("v_lshl_add_u32 v%d, v%d, 5, v%d" % (V_PK, V_T + 1, V_T))
    a("s_add_u32 s%d, s%d, 4096" % (S_DST1, S_DST0))
    for f in range(8):
        for rd in range(2):
            a("ds_read_b64_tr_b16 %s, v%d offset:%d" % (vr(FB[f] + 2 * rd, 2), V_PK, f * 1024 + rd * 512))
    a("s_waitcnt lgkmcnt(0)")
    for f in range(8):
        a("buffer_store_dwordx4 %s, v%d, s[20:23], s%d offen offset:%d sc1" % (vr(FB[f]), V_L16, S_DST0 if f < 4 else S_DST1, (f % 4) * 1024))
    a("s_branch L_f_syncret")
    return name, 256, 0, (256, 512, 163840)


def gen_k35(a, which):
    name = "k3_wo_kernel" if which == 3 else "k5_down_kernel"
    L = "L_k%d_" % which
    kernel_begin(a, name)
    NS = 8 if which == 3 else 28
    STEPS = 32 if which == 3 else 112
    WIN = 8 if which == 3 else 14
    A_BASE = WS_O if which == 3 else WS_A
    W_BASE = WS_WO if which == 3 else WS_WD
    S_WAVE, S_RB, S_CG, S_T0, S_T1 = 24, 25, 26, 27, 28
    S_A = [30, 31]
    S_W = [32, 33]
    S_TB, S_NB = 34, 35
    V_LANE, V_L16, V_T = 1, 2, 3
    V_RES = 12
    V_ACC = [32, 48, 64, 80]
    V_RD = 96
    a("s_cmp_ge_u32 s2, 256")
    a("s_cbranch_scc1 %send" % L)
    a.ts("k%d" % which)
    a("s_load_dwordx2 s[8:9], s[0:1], %d" % ARG_WS)
    a("s_load_dwordx2 s[4:5], s[0:1], %d" % (ARG_X if which == 3 else ARG_OUT))
    a("v_lshrrev_b32 v%d, 6, v0" % V_T)
    a("v_and_b32 v%d, 63, v0" % V_LANE)
    a("v_readfirstlane_b32 s%d, v%d" % (S_WAVE, V_T))
    a("v_lshlrev_b32 v%d, 4, v%d" % (V_L16, V_LANE))
    a("s_and_b32 s%d, s2, 7" % S_RB)
    a("s_lshl_b32 s%d, s%d, 2" % (S_RB, S_RB))
    a("s_lshr_b32 s%d, s2, 3" % S_T0)
    a("s_and_b32 s%d, s%d, 3" % (S_T1, S_T0))
    a("s_add_u32 s%d, s%d, s%d" % (S_RB, S_RB, S_T1))
    a("s_lshr_b32 s%d, s%d, 2" % (S_CG, S_T0))
    a("s_lshr_b32 s%d, s%d, 1" % (S_T0, S_WAVE))
    a("s_lshl_b32 s%d, s%d, 1" % (S_TB, S_RB))
    a("s_add_u32 s%d, s%d, s%d" % (S_TB, S_TB, S_T0))
    a("s_and_b32 s%d, s%d, 1" % (S_T0, S_WAVE))
    a("s_lshl_b32 s%d, s%d, 1" % (S_NB, S_CG))
    a("s_add_u32 s%d, s%d, s%d" % (S_NB, S_NB, S_T0))
    a("s_mul_i32 s%d, s%d, %d" % (S_T1, S_WAVE, NS * 1024))
    for i in range(2):
        a("s_xor_b32 s%d, s%d, %d" % (S_T0, S_TB, i))
        a("s_mul_i32 s%d, s%d, %d" % (S_A[i], S_T0, STEPS * 1024))
        a("s_add_u32 s%d, s%d, s%d" % (S_A[i], S_A[i], S_T1))
        a("s_add_u32 s%d, s%d, %d" % (S_A[i], S_A[i], A_BASE))
        a("s_xor_b32 s%d, s%d, %d" % (S_T0, S_NB, i))
        a("s_mul_i32 s%d, s%d, %d" % (S_W[i], S_T0, STEPS * 1024))
        a("s_add_u32 s%d, s%d, s%d" % (S_W[i], S_W[i], S_T1))
        a("s_add_u32 s%d, s%d, %d" % (S_W[i], S_W[i], W_BASE))
    a("s_waitcnt lgkmcnt(0)")
    srd(a, 20, 8, WS_SIZE)
    srd(a, 12, 4, 2048 * 1024)

    def frag(p, kind, i):
        return (p % WIN) * 16 + kind * 8 + i * 4

    def loads(p):
        out = []
        if p > 0 and p % 4 == 0:
            for s in S_A + S_W:
                out.append("s_add_u32 s%d, s%d, 4096" % (s, s))
        off = (p % 4) * 1024
        for i in range(2):
            out.append("buffer_load_dwordx4 %s, v%d, s[20:23], s%d offen offset:%d" % (ar(frag(p, 0, i)), V_L16, S_A[i], off))
            out.append("buffer_load_dwordx4 %s, v%d, s[20:23], s%d offen offset:%d" % (ar(frag(p, 1, i)), V_L16, S_W[i], off))
        return out

    for p in range(WIN):
        for l in loads(p):
            a(l)
    a("v_and_b32 v%d, 31, v%d" % (V_T, V_LANE))
    a("v_lshlrev_b32 v%d, 10, v%d" % (V_T, V_T))
    a("v_lshrrev_b32 v%d, 5, v%d" % (V_T + 1, V_LANE))
    a("v_lshl_add_u32 v%d, v%d, 3, v%d" % (V_T, V_T + 1, V_T))
    a("s_lshl_b32 s36, s%d, 15" % S_TB)
    a("s_lshl_b32 s%d, s%d, 6" % (S_T0, S_NB))
    a("s_add_u32 s36, s36, s%d" % S_T0)
    a("s_lshl_b32 s37, s%d, 5" % S_TB)
    a("s_lshl_b32 s%d, s%d, 1" % (S_T0, S_NB))
    a("s_add_u32 s37, s37, s%d" % S_T0)
    a("s_lshl_b32 s37, s37, 10")
    a("s_add_u32 s37, s37, %d" % WS_H)
    a.ts("k%d" % which)
    issued = WIN
    NRES = 4 if which == 3 else 2
    res_done = False
    for p in range(NS):
        younger = 4 * (issued - p - 1) + (NRES if res_done else 0)
        a("s_waitcnt vmcnt(%d)" % younger)
        for ti in range(2):
            for ni in range(2):
                acc = V_ACC[ti * 2 + ni]
                a("v_mfma_f32_32x32x16_bf16 %s, %s, %s, %s" % (vr(acc, 16), ar(frag(p, 1, ni)), ar(frag(p, 0, ti)), "0" if p == 0 else vr(acc, 16)))
        if issued < NS:
            for l in loads(issued):
                a(l)
            issued += 1
        elif not res_done:
            if which == 3:
                for q in range(4):
                    a("buffer_load_dwordx2 %s, v%d, s[12:15], s36 offen offset:%d" % (vr(V_RES + 2 * q, 2), V_T, q * 16))
            else:
                for q in range(2):
                    a("buffer_load_dwordx4 %s, v%d, s[20:23], s37 offen offset:%d" % (vr(V_RES + 4 * q), V_L16, q * 1024))
            res_done = True
    a.ts("k%d" % which)
    a("s_nop 7")
    for t in range(1, 4):
        a("s_xor_b32 s%d, s%d, %d" % (S_T0, S_WAVE, t))
        a("s_mul_i32 s%d, s%d, 12288" % (S_T0, S_T0))
        a("v_add_u32 v%d, s%d, v%d" % (V_T + 1 + t, S_T0, V_L16))
    a("s_nop 3")
    for t in range(1, 4):
        for q in range(4):
            a("ds_write_b128 v%d, %s offset:%d" % (V_T + 1 + t, vr(V_ACC[t] + 4 * q), (t - 1) * 4096 + q * 1024))
    a("s_mul_i32 s%d, s%d, 12288" % (S_T0, S_WAVE))
    a("v_add_u32 v%d, s%d, v%d" % (V_T + 1, S_T0, V_L16))
    a("s_waitcnt lgkmcnt(0)")
    a("s_barrier")
    for t in range(3):
        for q in range(4):
            a("ds_read_b128 %s, v%d offset:%d" % (vr(V_RD + 16 * t + 4 * q), V_T + 1, t * 4096 + q * 1024))
    A0 = V_ACC[0]
    U = V_ACC[1]
    a("s_mov_b32 s38, 0xffff0000")
    a("s_waitcnt vmcnt(0)")
    for d in range(8):
        a("v_lshlrev_b32 v%d, 16, v%d" % (U + 2 * d, V_RES + d))
        a("v_and_b32 v%d, s38, v%d" % (U + 2 * d + 1, V_RES + d))
    for i in range(16):
        a("v_add_f32 v%d, v%d, v%d" % (A0 + i, A0 + i, U + i))
    for t in range(3):
        a("s_waitcnt lgkmcnt(%d)" % (8 - 4 * t))
        for i in range(16):
            a("v_add_f32 v%d, v%d, v%d" % (A0 + i, A0 + i, V_RD + 16 * t + i))
    O = V_ACC[2]
    for i in range(8):
        a("v_cvt_pk_bf16_f32 v%d, v%d, v%d" % (O + i, A0 + 2 * i, A0 + 2 * i + 1))
    if which == 3:
        for q in range(2):
            a("buffer_store_dwordx4 %s, v%d, s[20:23], s37 offen offset:%d" % (vr(O + 4 * q), V_L16, q * 1024))
        for d in range(8):
            a("v_lshlrev_b32 v%d, 16, v%d" % (U + 2 * d, O + d))
            a("v_and_b32 v%d, s38, v%d" % (U + 2 * d + 1, O + d))
        S1, S2 = V_RD, V_RD + 1
        a("v_add_f32 v%d, v%d, v%d" % (S1, U, U + 1))
        a("v_mul_f32 v%d, v%d, v%d" % (S2, U, U))
        a("v_fmac_f32 v%d, v%d, v%d" % (S2, U + 1, U + 1))
        for i in range(2, 16):
            a("v_add_f32 v%d, v%d, v%d" % (S1, S1, U + i))
            a("v_fmac_f32 v%d, v%d, v%d" % (S2, U + i, U + i))
        sum_halves(a, S1, V_RD + 2)
        sum_halves(a, S2, V_RD + 3)
        a("s_lshl_b32 s%d, s%d, 4" % (S_T0, S_TB))
        a("s_add_u32 s%d, s%d, s%d" % (S_T0, S_T0, S_NB))
        a("s_lshl_b32 s%d, s%d, 8" % (S_T0, S_T0))
        a("s_add_u32 s%d, s%d, %d" % (S_T0, S_T0, WS_ST))
        a("v_and_b32 v%d, 31, v%d" % (V_T, V_LANE))
        a("v_lshlrev_b32 v%d, 3, v%d" % (V_T, V_T))
        a("buffer_store_dwordx2 %s, v%d, s[20:23], s%d offen" % (vr(S1, 2), V_T, S_T0))
    else:
        for q in range(4):
            a("buffer_store_dwordx2 %s, v%d, s[12:15], s36 offen offset:%d" % (vr(O + 2 * q, 2), V_T, q * 16))
    a.ts_flush("k%d" % which, S_WAVE, V_T)
    a.label(L + "end")
    a("s_endpgm")
    return name, 144, WIN * 16, (256, 256, 49152)


def gen_k4(a):
    name = "k4_glu_kernel"
    kernel_begin(a, name)
    SL4, NS4 = 45056, 3
    S_WAVE, S_RB, S_CG, S_KC, S_SH, S_SW, S_T0, S_T1, S_MASK, S_M0 = 24, 25, 26, 27, 28, 29, 30, 31, 32, 33
    S_TB, S_ROLE, S_M0H = 34, 42, 35
    V_LANE, V_L16, V_T = 1, 2, 3
    V_AW, V_AH = 12, 13
    V_ST = 16
    V_CSL = 32
    V_H = [60, 244]
    V_W = [64, 92]
    V_ACC = [120 + 16 * b for b in range(7)]
    V_TMP = 232
    a("s_cmp_ge_u32 s2, 256")
    a("s_cbranch_scc1 L_k4_end")
    a.ts("k4")
    a("s_load_dwordx2 s[8:9], s[0:1], %d" % ARG_WS)
    a("v_lshrrev_b32 v%d, 6, v0" % V_T)
    a("v_and_b32 v%d, 63, v0" % V_LANE)
    a("v_readfirstlane_b32 s%d, v%d" % (S_ROLE, V_T))
    a("v_lshlrev_b32 v%d, 4, v%d" % (V_L16, V_LANE))
    a("s_and_b32 s3, s2, 7")
    a("s_lshr_b32 s%d, s2, 3" % S_T0)
    a("s_lshr_b32 s%d, s3, 2" % S_RB)
    a("s_lshl_b32 s%d, s%d, 3" % (S_RB, S_RB))
    a("s_and_b32 s%d, s%d, 7" % (S_T1, S_T0))
    a("s_add_u32 s%d, s%d, s%d" % (S_RB, S_RB, S_T1))
    a("s_and_b32 s%d, s3, 3" % S_CG)
    a("s_lshl_b32 s%d, s%d, 2" % (S_CG, S_CG))
    a("s_lshr_b32 s%d, s%d, 3" % (S_T1, S_T0))
    a("s_add_u32 s%d, s%d, s%d" % (S_CG, S_CG, S_T1))
    a("s_and_b32 s%d, s%d, 3" % (S_WAVE, S_ROLE))
    a("s_lshl_b32 s%d, s%d, 2" % (S_TB, S_RB))
    a("s_add_u32 s%d, s%d, s%d" % (S_TB, S_TB, S_WAVE))
    a("s_lshl_b32 s%d, s%d, 12" % (S_M0H, S_WAVE))
    a("s_add_u32 s%d, s%d, 28672" % (S_M0H, S_M0H))
    a("s_cmp_ge_u32 s%d, 4" % S_ROLE)
    a("s_cbranch_scc1 L_k4_compute")
    if K4_ROT:
        a("s_add_u32 s%d, s%d, s%d" % (S_KC, S_RB, S_CG))
        a("s_and_b32 s%d, s%d, 7" % (S_KC, S_KC))
    else:
        a("s_mov_b32 s%d, 0" % S_KC)
    a("s_lshl_b32 s%d, s%d, 15" % (S_SH, S_TB))
    a("s_add_u32 s%d, s%d, %d" % (S_SH, S_SH, WS_H))
    a("s_mul_i32 s%d, s%d, 7168" % (S_M0, S_WAVE))
    a("s_mul_i32 s%d, s%d, %d" % (S_SW, S_CG, 32 * 7 * 1024))
    a("s_add_u32 s%d, s%d, s%d" % (S_SW, S_SW, S_M0))
    a("s_add_u32 s%d, s%d, %d" % (S_SW, S_SW, WS_GU))
    S_OH, S_OW, S_SLOT, S_CNT = 38, 39, 40, 41
    a("s_mov_b32 s%d, 0" % S_SLOT)
    a("s_mov_b32 s%d, 0" % S_CNT)
    a("s_waitcnt lgkmcnt(0)")
    srd(a, 20, 8, WS_SIZE)
    a.label("L_k4_ld")
    a("s_lshl_b32 s%d, s%d, 12" % (S_OH, S_KC))
    a("s_add_u32 s%d, s%d, s%d" % (S_OH, S_OH, S_SH))
    a("s_add_u32 m0, s%d, s%d" % (S_M0H, S_SLOT))
    a("s_mul_i32 s%d, s%d, %d" % (S_OW, S_KC, SLOT))
    for q in range(4):
        a("buffer_load_dwordx4 v%d, s[20:23], s%d offen offset:%d lds" % (V_L16, S_OH, q * 1024))
    a("s_add_u32 m0, s%d, s%d" % (S_M0, S_SLOT))
    a("s_add_u32 s%d, s%d, s%d" % (S_OW, S_OW, S_SW))
    for q in range(4):
        a("buffer_load_dwordx4 v%d, s[20:23], s%d offen offset:%d lds" % (V_L16, S_OW, q * 1024))
    a("s_add_u32 m0, m0, 4096")
    a("s_add_u32 s%d, s%d, 4096" % (S_OW, S_OW))
    for q in range(3):
        a("buffer_load_dwordx4 v%d, s[20:23], s%d offen offset:%d lds" % (V_L16, S_OW, q * 1024))
    a("s_add_u32 s%d, s%d, 1" % (S_KC, S_KC))
    a("s_and_b32 s%d, s%d, 7" % (S_KC, S_KC))
    a("s_add_u32 s%d, s%d, %d" % (S_SLOT, S_SLOT, SL4))
    a("s_cmp_eq_u32 s%d, %d" % (S_SLOT, NS4 * SL4))
    a("s_cselect_b32 s%d, 0, s%d" % (S_SLOT, S_SLOT))
    a("s_add_u32 s%d, s%d, 1" % (S_CNT, S_CNT))
    a("s_cmp_lt_u32 s%d, 2" % S_CNT)
    a("s_cbranch_scc1 L_k4_ld")
    a("s_waitcnt vmcnt(11)")
    a("s_barrier")
    a("s_cmp_lt_u32 s%d, 8" % S_CNT)
    a("s_cbranch_scc1 L_k4_ld")
    a("s_waitcnt vmcnt(0)")
    a("s_barrier")
    a("s_endpgm")
    a.label("L_k4_compute")
    a("s_mov_b32 s%d, 0xffff0000" % S_MASK)
    a("v_mov_b32 v%d, v%d" % (V_AW, V_L16))
    a("v_add_u32 v%d, s%d, v%d" % (V_AH, S_M0H, V_L16))
    a("v_and_b32 v%d, 31, v%d" % (V_T, V_LANE))
    a("v_lshlrev_b32 v%d, 3, v%d" % (V_T, V_T))
    a("v_lshrrev_b32 v%d, 5, v%d" % (V_T + 1, V_LANE))
    a("v_lshl_add_u32 v%d, v%d, 11, v%d" % (V_T, V_T + 1, V_T))
    a("s_waitcnt lgkmcnt(0)")
    srd(a, 20, 8, WS_SIZE)
    cur_base = [0]

    def reads(P):
        st, pos = P // 4, P % 4
        base = (st % NS4) * SL4
        out = []
        if base != cur_base[0]:
            d = base - cur_base[0]
            for r in (V_AW, V_AH):
                out.append("v_add_u32 v%d, %d, v%d" % (r, d, r) if d > 0 else "v_subrev_u32 v%d, %d, v%d" % (r, -d, r))
            cur_base[0] = base
        b = P % 2
        out.append("ds_read_b128 %s, v%d offset:%d" % (vr(V_H[b]), V_AH, pos * 1024))
        for blk in range(7):
            out.append("ds_read_b128 %s, v%d offset:%d" % (vr(V_W[b] + 4 * blk), V_AW, (pos * 7 + blk) * 1024))
        return out

    extra = {}
    g = ["s_lshl_b32 s%d, s%d, 12" % (S_T0, S_TB), "s_add_u32 s%d, s%d, %d" % (S_T0, S_T0, WS_ST)]
    for i in range(8):
        g.append("buffer_load_dwordx2 %s, v%d, s[20:23], s%d offen offset:%d" % (vr(V_ST + 2 * i, 2), V_T, S_T0, i * 256))
    extra[8], extra[9], extra[10] = g[:4], g[4:7], g[7:]
    g = ["s_mul_i32 s%d, s%d, 7168" % (S_T0, S_CG), "s_add_u32 s%d, s%d, %d" % (S_T0, S_T0, WS_CS), "s_add_u32 s%d, s%d, 4096" % (S_T1, S_T0)]
    for blk in range(7):
        g.append("buffer_load_dwordx4 %s, v%d, s[20:23], s%d offen offset:%d" % (vr(V_CSL + 4 * blk), V_L16, S_T0 if blk < 4 else S_T1, (blk % 4) * 1024))
    extra[12], extra[13], extra[14] = g[:5], g[5:8], g[8:]
    a.ts("k4")
    a("s_barrier")
    a.ts("k4")
    for l in reads(0):
        a(l)
    for P in range(32):
        st, pos = P // 4, P % 4
        b = P % 2
        a("s_waitcnt lgkmcnt(0)")
        if pos == 3 and P < 31:
            a("s_barrier")
        rd = reads(P + 1) if P < 31 else []
        m = []
        for blk in range(7):
            m.append("v_mfma_f32_32x32x16_bf16 %s, %s, %s, %s" % (vr(V_ACC[blk], 16), vr(V_W[b] + 4 * blk), vr(V_H[b]), "0" if P == 0 else vr(V_ACC[blk], 16)))
        for l in interleave(m, rd + extra.get(P, []), per=2):
            a(l)
    a.ts("k4")
    a("s_waitcnt vmcnt(0)")
    S1, S2 = V_T + 2, V_T + 3
    a("v_add_f32 v%d, v%d, v%d" % (S1, V_ST, V_ST + 2))
    a("v_add_f32 v%d, v%d, v%d" % (S2, V_ST + 1, V_ST + 3))
    for i in range(2, 8):
        a("v_add_f32 v%d, v%d, v%d" % (S1, S1, V_ST + 2 * i))
        a("v_add_f32 v%d, v%d, v%d" % (S2, S2, V_ST + 2 * i + 1))
    sum_halves(a, S1, V_T + 4)
    sum_halves(a, S2, V_T + 4)
    V_MU, V_VAR, V_RS, V_C1, V_C2 = V_T + 4, V_T + 5, V_T + 6, V_T + 7, V_T + 8
    a("v_mul_f32 v%d, 0x%x, v%d" % (V_MU, f32bits(1.0 / 512), S1))
    a("v_mul_f32 v%d, 0x%x, v%d" % (V_VAR, f32bits(1.0 / 512), S2))
    a("v_fma_f32 v%d, -v%d, v%d, v%d" % (V_VAR, V_MU, V_MU, V_VAR))
    a("v_max_f32 v%d, 0, v%d" % (V_VAR, V_VAR))
    a("v_add_f32 v%d, 0x%x, v%d" % (V_VAR, f32bits(1e-5), V_VAR))
    a("v_rsq_f32 v%d, v%d" % (V_RS, V_VAR))
    a("v_sub_f32 v%d, 0, v%d" % (V_MU, V_MU))
    VB = V_ST
    split_hi_lo_B(a, V_MU, VB, V_T, S_MASK)
    c1 = -2.0 * math.sqrt(2.0 / math.pi) * math.log2(math.e)
    a("v_mul_f32 v%d, 0x%x, v%d" % (V_C1, f32bits(c1), V_RS))
    a("v_mul_f32 v%d, v%d, v%d" % (V_C2, V_RS, V_RS))
    a("v_mul_f32 v%d, v%d, v%d" % (V_C2, V_C2, V_C1))
    a("v_mul_f32 v%d, 0x%x, v%d" % (V_C2, f32bits(0.044715), V_C2))
    for blk in range(7):
        c = V_CSL + 4 * blk
        a("v_add_f32 v%d, v%d, v%d" % (c, c, c + 1))
        a("v_add_f32 v%d, v%d, v%d" % (c + 2, c + 2, c + 3))
        a("v_add_f32 v%d, v%d, v%d" % (c, c, c + 2))
        split_hi_lo_A(a, c, V_W[0] + 4 * blk, V_T, S_MASK)
    a("s_nop 1")
    for blk in range(7):
        a("v_mfma_f32_32x32x16_bf16 %s, %s, %s, %s" % (vr(V_ACC[blk], 16), vr(V_W[0] + 4 * blk), vr(VB), vr(V_ACC[blk], 16)))
    a("s_mul_i32 s%d, s%d, 112" % (S_T0, S_TB))
    a("s_mul_i32 s%d, s%d, 7" % (S_T1, S_CG))
    a("s_add_u32 s%d, s%d, s%d" % (S_T0, S_T0, S_T1))
    a("s_lshl_b32 s%d, s%d, 10" % (S_T0, S_T0))
    a("s_add_u32 s%d, s%d, %d" % (S_T0, S_T0, WS_A))
    a("s_add_u32 s%d, s%d, 4096" % (S_T1, S_T0))
    a("s_nop 7")
    for blk in range(7):
        G = V_ACC[blk]
        Uu = G + 8
        T = V_TMP
        for i in range(8):
            a("v_mul_f32 v%d, v%d, v%d" % (T + i, G + i, G + i))
        for i in range(8):
            a("v_fma_f32 v%d, v%d, v%d, v%d" % (T + i, T + i, V_C2, V_C1))
        for i in range(8):
            a("v_mul_f32 v%d, v%d, v%d" % (T + i, T + i, G + i))
        for i in range(8):
            a("v_exp_f32 v%d, v%d" % (T + i, T + i))
        for i in range(8):
            a("v_mul_f32 v%d, v%d, v%d" % (G + i, G + i, Uu + i))
        for i in range(8):
            a("v_fma_f32 v%d, v%d, v%d, v%d" % (T + i, T + i, V_VAR, V_VAR))
        for i in range(8):
            a("v_rcp_f32 v%d, v%d" % (T + i, T + i))
        a("s_nop 0")
        for i in range(8):
            a("v_mul_f32 v%d, v%d, v%d" % (G + i, G + i, T + i))
        o = V_TMP + 8 + 4 * (blk % 4)
        for i in range(4):
            a("v_cvt_pk_bf16_f32 v%d, v%d, v%d" % (o + i, G + 2 * i, G + 2 * i + 1))
        a("buffer_store_dwordx4 %s, v%d, s[20:23], s%d offen offset:%d" % (vr(o), V_L16, S_T0 if blk < 4 else S_T1, (blk % 4) * 1024))
    a.ts_flush("k4", S_WAVE, V_T)
    a.label("L_k4_end")
    a("s_endpgm")
    return name, 256, 0, (256, 512, NS4 * SL4)


def main():
    hdr = open("cdna_kernels/%s.s.ref" % NAME).read().split("\n")
    head = [l for l in hdr if l.startswith(";") and "@launch" not in l and "Override launch" not in l and "grid=ceil" not in l]
    a = Asm()
    ks = []
    ks.append(gen_f(a))
    out = "\n".join(head) + "\n"
    for name, nv, na, (g, b, lds) in ks:
        out += "; @launch grid=(%d,1,1) block=(%d,1,1) lds=%d\n" % (g, b, lds)
    out += '.amdgcn_target "amdgcn-amd-amdhsa--gfx950"\n.text\n'
    out += a.text()
    out += '.section .rodata,"a"\n'
    for name, nv, na, _ in ks:
        out += kernel_desc(name, nv, na)
    path = sys.argv[1] if len(sys.argv) > 1 else "cdna_kernels/%s.s" % NAME
    open(path, "w").write(out)


if __name__ == "__main__":
    main()
```

```python
import sys, math, struct

NAME = "sequential_preLN__softmax_full_mha__geglu_ffn__prompt"

MB = 1 << 20
WS_Q = 0
WS_K = 2 * MB
WS_V = 4 * MB
WS_O = 6 * MB
WS_H = 8 * MB
WS_A = 10 * MB
WS_WO = 17 * MB
WS_WD = 18 * MB
WS_GU = 20 * MB
WS_CS = 24 * MB
WS_ST = 25 * MB
WS_FL = 27 * MB + 768 * 1024
WS_SIZE = 28 * MB

ARG_X, ARG_WQKV, ARG_WO, ARG_BX, ARG_WG, ARG_WU, ARG_WD, ARG_OUT, ARG_DBG, ARG_WS = [8 * i for i in range(10)]

ONES_BF16 = 0x3F803F80


def f32bits(x):
    return struct.unpack("<I", struct.pack("<f", x))[0]


import os
INSTR = os.environ.get("INSTR", "")
WS_TS = 26 * MB


class Asm:
    def __init__(self):
        self.L = []
        self.nts = 0

    def ts(self, kern):
        if INSTR != kern and not (INSTR == "all" and len(kern) == 2):
            return
        if self.nts == 0:
            self("s_memrealtime s[92:93]")
        self("%s s[%d:%d]" % ("s_memrealtime" if os.environ.get("RT") else "s_memtime", 64 + 2 * self.nts, 65 + 2 * self.nts))
        self.nts += 1

    def ts_flush(self, kern, swave, vtmp):
        if INSTR != kern and not (INSTR == "all" and len(kern) == 2):
            return
        self("%s s[%d:%d]" % ("s_memrealtime" if os.environ.get("RT") else "s_memtime", 64 + 2 * self.nts, 65 + 2 * self.nts))
        self.nts += 1
        self("s_memrealtime s[94:95]")
        self("s_waitcnt lgkmcnt(0)")
        if os.environ.get("DBGOUT"):
            self("s_cmp_lg_u32 s2, %s" % os.environ["DBGOUT"])
            self("s_cbranch_scc1 L_dbg_skip")
            self("s_cmp_lg_u32 s%d, 7" % swave)
            self("s_cbranch_scc1 L_dbg_skip")
            self("v_mov_b32 v%d, 0" % vtmp)
            for i in range(1, self.nts):
                self("s_sub_u32 s3, s%d, s64" % (64 + 2 * i))
                self("s_and_b32 s36, s3, 0x7f")
                self("s_lshr_b32 s3, s3, 7")
                self("s_and_b32 s3, s3, 0x7f")
                self("s_lshl_b32 s3, s3, 8")
                self("s_or_b32 s3, s3, s36")
                self("s_or_b32 s3, s3, 0x80808080")
                self("v_mov_b32 v%d, s3" % (vtmp + 1))
                self("buffer_store_dword v%d, v%d, s[96:99], 0 offen offset:%d" % (vtmp + 1, vtmp, 4 * i))
                self("s_nop 1")
            self.label("L_dbg_skip")
        self("s_lshl_b32 s3, s2, 3")
        self("s_add_u32 s3, s3, s%d" % swave)
        self("s_lshl_b32 s3, s3, 6")
        self("s_add_u32 s3, s3, %d" % (WS_TS + (int(kern[1]) * 131072 if INSTR == "all" else 0)))
        self("v_mov_b32 v%d, 0" % vtmp)
        for i in range(self.nts):
            self("v_mov_b32 v%d, s%d" % (vtmp + 1, 64 + 2 * i))
            self("buffer_store_dword v%d, v%d, s[20:23], s3 offen offset:%d" % (vtmp + 1, vtmp, 4 * i))
            self("s_nop 1")
        for i, r in enumerate((92, 94)):
            self("v_mov_b32 v%d, s%d" % (vtmp + 1, r))
            self("buffer_store_dword v%d, v%d, s[20:23], s3 offen offset:%d" % (vtmp + 1, vtmp, 56 + 4 * i))
            self("s_nop 1")
        self.nts = 0

    def __call__(self, s):
        for line in s.strip("\n").split("\n"):
            self.L.append("    " + line.strip())

    def label(self, s):
        self.L.append(s + ":")

    def raw(self, s):
        self.L.append(s)

    def text(self):
        return "\n".join(self.L) + "\n"


def vr(b, n=4):
    return "v[%d:%d]" % (b, b + n - 1)


def ar(b, n=4):
    return "a[%d:%d]" % (b, b + n - 1)


def srd(a, sbase, sptr, nbytes):
    a("s_mov_b32 s%d, s%d" % (sbase, sptr))
    a("s_mov_b32 s%d, s%d" % (sbase + 1, sptr + 1))
    a("s_mov_b32 s%d, 0x%x" % (sbase + 2, nbytes))
    a("s_mov_b32 s%d, 0x00020000" % (sbase + 3))


def kernel_begin(a, name):
    a.raw(".globl %s" % name)
    a.raw(".p2align 8")
    a.raw(".type %s,@function" % name)
    a.label(name)


def kernel_desc(name, nvgpr, nagpr, nsgpr=102):
    acc = (nvgpr + 3) // 4 * 4
    nfv = acc + nagpr if nagpr else nvgpr
    return """.p2align 6
.amdhsa_kernel %s
  .amdhsa_next_free_vgpr %d
  .amdhsa_next_free_sgpr %d
  .amdhsa_accum_offset %d
  .amdhsa_group_segment_fixed_size 0
  .amdhsa_kernarg_size 80
  .amdhsa_user_sgpr_count 2
  .amdhsa_user_sgpr_kernarg_segment_ptr 1
  .amdhsa_system_sgpr_workgroup_id_x 1
.end_amdhsa_kernel
""" % (name, nfv, nsgpr, acc)


def interleave(main, fill, per=None):
    out = []
    n = len(main)
    fi = 0
    for i, m in enumerate(main):
        out.append(m)
        tgt = (len(fill) * (i + 1) + n - 1) // n if per is None else min(len(fill), per * (i + 1))
        while fi < tgt:
            out.append(fill[fi])
            fi += 1
    out += fill[fi:]
    return out


class Lds:
    def __init__(self, a):
        self.a = a
        self.n = 0
        self.done = 0
        self.idx = {}

    def op(self, text, tag=None):
        self.a(text)
        self.n += 1
        if tag is not None:
            self.idx[tag] = self.n

    def need(self, *tags):
        k = max(self.idx[t] for t in tags)
        if k > self.done:
            w = self.n - k
            assert w <= 15
            self.a("s_waitcnt lgkmcnt(%d)" % w)
            self.done = k

    def drain(self):
        if self.done < self.n:
            self.a("s_waitcnt lgkmcnt(0)")
            self.done = self.n


def make_sel(a, vlane, vsel, vt):
    a("v_lshrrev_b32 v%d, 2, v%d" % (vt, vlane))
    a("v_lshrrev_b32 v%d, 4, v%d" % (vsel, vlane))
    a("v_xor_b32 v%d, v%d, v%d" % (vt, vt, vsel))
    a("v_and_b32 v%d, 1, v%d" % (vt, vt))
    a("v_add_u32 v%d, -1, v%d" % (vt, vt))
    a("v_and_b32 v%d, 0x%x, v%d" % (vsel, ONES_BF16, vt))
    for i in range(1, 4):
        a("v_mov_b32 v%d, v%d" % (vsel + i, vsel))


def split_hi_lo_A(a, vc, vdst, vt, smask):
    a("v_cvt_pk_bf16_f32 v%d, v%d, v%d" % (vt, vc, vc))
    a("v_and_b32 v%d, s%d, v%d" % (vt, smask, vt))
    a("v_sub_f32 v%d, v%d, v%d" % (vt, vc, vt))
    a("v_cvt_pk_bf16_f32 v%d, v%d, v%d" % (vdst, vc, vt))
    a("v_mov_b32 v%d, v%d" % (vdst + 1, vdst))
    a("v_mov_b32 v%d, 0" % (vdst + 2))
    a("v_mov_b32 v%d, 0" % (vdst + 3))


def split_hi_lo_B(a, vm, vdst, vt, smask):
    a("v_cvt_pk_bf16_f32 v%d, v%d, v%d" % (vdst, vm, vm))
    a("v_and_b32 v%d, s%d, v%d" % (vt, smask, vdst))
    a("v_sub_f32 v%d, v%d, v%d" % (vt, vm, vt))
    a("v_cvt_pk_bf16_f32 v%d, v%d, v%d" % (vdst + 1, vt, vt))
    a("v_mov_b32 v%d, 0" % (vdst + 2))
    a("v_mov_b32 v%d, 0" % (vdst + 3))


def sum_halves(a, v, vt):
    a("v_mov_b32 v%d, v%d" % (vt, v))
    a("s_nop 1")
    a("v_permlane32_swap_b32 v%d, v%d" % (v, vt))
    a("s_nop 1")
    a("v_add_f32 v%d, v%d, v%d" % (v, v, vt))


SLOT = 28672
NSLOT = 5
K1_DIST = int(os.environ.get('K1_DIST', 2))
DIAG = os.environ.get('DIAG', '')
K1_ROT = int(os.environ.get('K1_ROT', 1))
K4_ROT = int(os.environ.get('K4_ROT', 0))
K2_ROT = int(os.environ.get('K2_ROT', 0))
K4_DIST = int(os.environ.get('K4_DIST', 2))


def slot_base_adjust(stage):
    slot = stage % NSLOT
    return (slot // 2) * 2 * SLOT, (slot % 2) * SLOT


def gen_k1(a):
    name = "k1_qkv_kernel"
    kernel_begin(a, name)
    NS1 = 4
    LDS_SCR = NS1 * SLOT
    SCR_RS, SCR_BF = LDS_SCR + 1536, LDS_SCR + 2048
    S_WAVE, S_RB, S_CG, S_KC, S_SX, S_SW, S_T0, S_T1, S_MASK, S_M0X, S_M0W = 24, 25, 26, 27, 28, 29, 30, 31, 32, 33, 34
    S_ROLE = 42
    V_LANE = 1
    V_T = 2
    V_DX = 8
    V_DW = 12
    V_AX = 13
    V_AW = 17
    V_SEL = 24
    V_SQ = 28
    V_X = [32, 36]
    V_W = [[40, 44, 48], [52, 56, 60]]
    V_ACC = [64, 80, 96]
    V_TMP = 112
    a("s_cmp_ge_u32 s2, 256")
    a("s_cbranch_scc1 L_k1_end")
    a.ts("k1")
    a("s_load_dwordx4 s[4:7], s[0:1], %d" % ARG_X)
    a("s_load_dwordx2 s[8:9], s[0:1], %d" % ARG_WS)
    a("v_lshrrev_b32 v%d, 6, v0" % V_T)
    a("v_and_b32 v%d, 63, v0" % V_LANE)
    a("v_readfirstlane_b32 s%d, v%d" % (S_ROLE, V_T))
    a("s_and_b32 s3, s2, 7")
    a("s_lshr_b32 s%d, s2, 3" % S_T0)
    a("s_lshr_b32 s%d, s3, 1" % S_RB)
    a("s_lshl_b32 s%d, s%d, 2" % (S_RB, S_RB))
    a("s_and_b32 s%d, s%d, 3" % (S_T1, S_T0))
    a("s_add_u32 s%d, s%d, s%d" % (S_RB, S_RB, S_T1))
    a("s_and_b32 s%d, s3, 1" % S_CG)
    a("s_lshl_b32 s%d, s%d, 3" % (S_CG, S_CG))
    a("s_lshr_b32 s%d, s%d, 2" % (S_T1, S_T0))
    a("s_add_u32 s%d, s%d, s%d" % (S_CG, S_CG, S_T1))
    a("s_and_b32 s%d, s%d, 3" % (S_WAVE, S_ROLE))
    a("s_lshl_b32 s%d, s%d, 12" % (S_M0X, S_WAVE))
    a("s_mul_i32 s%d, s%d, 3072" % (S_M0W, S_WAVE))
    a("s_add_u32 s%d, s%d, 16384" % (S_M0W, S_M0W))
    a("s_mov_b32 s%d, 0xffff0000" % S_MASK)

    def lds_addr_setup(rotate):
        a("v_and_b32 v%d, 31, v%d" % (V_T, V_LANE))
        a("v_and_b32 v%d, 3, v%d" % (V_T + 1, V_LANE))
        a("v_lshrrev_b32 v%d, 2, v%d" % (V_T + 2, V_T))
        a("v_lshlrev_b32 v%d, 7, v%d" % (V_T + 2, V_T + 2))
        a("v_lshl_add_u32 v%d, v%d, 10, v%d" % (V_T + 2, V_T + 1, V_T + 2))
        a("v_add_u32 v%d, s%d, v%d" % (V_T + 2, S_M0X, V_T + 2))
        a("v_lshrrev_b32 v%d, 1, v%d" % (V_T + 3, V_T))
        a("v_and_b32 v%d, 4, v%d" % (V_T + 3, V_T + 3))
        a("v_or_b32 v%d, v%d, v%d" % (V_T + 3, V_T + 3, V_T + 1))
        a("v_lshrrev_b32 v%d, 5, v%d" % (V_T + 4, V_LANE))
        a("v_xor_b32 v%d, v%d, v%d" % (V_T + 3, V_T + 3, V_T + 4))
        a("v_bfe_u32 v%d, v%d, 2, 2" % (V_T + 5, V_LANE))
        a("v_lshl_add_u32 v%d, v%d, 3, v%d" % (V_T + 5, V_T + 4, V_T + 5))
        a("v_lshlrev_b32 v%d, 6, v%d" % (V_T + 5, V_T + 5))
        a("v_bfe_u32 v%d, v%d, 4, 1" % (V_T + 4, V_LANE))
        a("v_lshl_add_u32 v%d, v%d, 5, v%d" % (V_T + 5, V_T + 4, V_T + 5))
        a("v_lshl_add_u32 v%d, v%d, 3, v%d" % (V_T + 5, V_T + 1, V_T + 5))
        for ks in range(4):
            a("v_xor_b32 v%d, %d, v%d" % (V_T + 4, 2 * ks, V_T + 3))
            a("v_lshl_add_u32 v%d, v%d, 4, v%d" % (V_AX + ks, V_T + 4, V_T + 2))

    a("s_cmp_ge_u32 s%d, 8" % S_ROLE)
    a("s_cbranch_scc1 L_k1_stats")
    a("s_cmp_ge_u32 s%d, 4" % S_ROLE)
    a("s_cbranch_scc1 L_k1_compute")
    if K1_ROT:
        a("s_add_u32 s%d, s%d, s%d" % (S_KC, S_RB, S_CG))
        a("s_and_b32 s%d, s%d, 7" % (S_KC, S_KC))
    else:
        a("s_mov_b32 s%d, 0" % S_KC)
    a("v_lshrrev_b32 v%d, 3, v%d" % (V_T, V_LANE))
    a("v_lshlrev_b32 v%d, 12, v%d" % (V_T, V_T))
    a("v_and_b32 v%d, 7, v%d" % (V_T + 1, V_LANE))
    a("v_lshrrev_b32 v%d, 2, v%d" % (V_T + 2, V_LANE))
    a("v_and_b32 v%d, 4, v%d" % (V_T + 2, V_T + 2))
    a("v_xor_b32 v%d, v%d, v%d" % (V_T + 1, V_T + 1, V_T + 2))
    for q in range(4):
        a("v_xor_b32 v%d, %d, v%d" % (V_T + 3, q, V_T + 1))
        a("v_lshl_add_u32 v%d, v%d, 4, v%d" % (V_DX + q, V_T + 3, V_T))
    a("v_lshrrev_b32 v%d, 2, v%d" % (V_T, V_LANE))
    a("v_mul_u32_u24 v%d, 3072, v%d" % (V_T, V_T))
    a("v_and_b32 v%d, 3, v%d" % (V_T + 1, V_LANE))
    a("v_lshl_add_u32 v%d, v%d, 4, v%d" % (V_DW, V_T + 1, V_T))
    a("s_lshl_b32 s%d, s%d, 2" % (S_T0, S_RB))
    a("s_add_u32 s%d, s%d, s%d" % (S_T0, S_T0, S_WAVE))
    a("s_lshl_b32 s%d, s%d, 15" % (S_SX, S_T0))
    a("s_mul_i32 s%d, s%d, %d" % (S_SW, S_WAVE, 16 * 3072))
    a("s_lshl_b32 s%d, s%d, 6" % (S_T1, S_CG))
    a("s_add_u32 s%d, s%d, s%d" % (S_SW, S_SW, S_T1))
    S_OX, S_OW, S_SLOT, S_CNT, S_RD = 38, 39, 40, 41, 43
    a("s_mov_b32 s%d, 0" % S_SLOT)
    a("s_mov_b32 s%d, 0" % S_CNT)
    a("s_waitcnt lgkmcnt(0)")
    srd(a, 12, 4, 2048 * 1024)
    srd(a, 16, 6, 512 * 3072)

    def issue():
        a("s_lshl_b32 s%d, s%d, 7" % (S_OX, S_KC))
        a("s_add_u32 s%d, s%d, s%d" % (S_OX, S_OX, S_SX))
        a("s_add_u32 m0, s%d, s%d" % (S_M0X, S_SLOT))
        a("s_mul_i32 s%d, s%d, %d" % (S_OW, S_KC, 64 * 3072))
        for q in range(4):
            a("buffer_load_dwordx4 v%d, s[12:15], s%d offen offset:%d lds" % (V_DX + q, S_OX, q * 1024))
        a("s_add_u32 m0, s%d, s%d" % (S_M0W, S_SLOT))
        a("s_add_u32 s%d, s%d, s%d" % (S_OW, S_OW, S_SW))
        for sx in range(3):
            a("buffer_load_dwordx4 v%d, s[16:19], s%d offen offset:%d lds" % (V_DW, S_OW, sx * 1024))
        a("s_add_u32 s%d, s%d, 1" % (S_KC, S_KC))
        a("s_and_b32 s%d, s%d, 7" % (S_KC, S_KC))
        a("s_add_u32 s%d, s%d, %d" % (S_SLOT, S_SLOT, SLOT))
        a("s_cmp_eq_u32 s%d, %d" % (S_SLOT, NS1 * SLOT))
        a("s_cselect_b32 s%d, 0, s%d" % (S_SLOT, S_SLOT))

    a.label("L_k1_ld")
    issue()
    a("s_add_u32 s%d, s%d, 1" % (S_CNT, S_CNT))
    a("s_cmp_lt_u32 s%d, %d" % (S_CNT, K1_DIST))
    a("s_cbranch_scc1 L_k1_ld")
    a("s_waitcnt vmcnt(%d)" % (7 * (K1_DIST - 1)))
    a("s_barrier")
    a("s_cmp_lt_u32 s%d, 8" % S_CNT)
    a("s_cbranch_scc1 L_k1_ld")
    for r in range(K1_DIST - 2, -1, -1):
        a("s_waitcnt vmcnt(%d)" % (7 * r))
        a("s_barrier")
    a("s_endpgm")
    a.label("L_k1_stats")
    LX = [64, 68, 72, 76]
    LW = [80, 84, 88]
    L_SX = 92
    L_CS = [96, 100, 104]
    lds_addr_setup(False)
    a("v_add_u32 v%d, s%d, v%d" % (V_AW, S_M0W, V_T + 5))
    make_sel(a, V_LANE, V_SEL, V_T)
    for r in [V_SQ, V_SQ + 1] + list(range(L_SX, L_SX + 16)):
        a("v_mov_b32 v%d, 0" % r)
    a("s_mov_b32 s44, %d" % SLOT)
    a("s_mov_b32 s%d, 0" % S_CNT)
    a.label("L_k1_st")
    a("s_barrier")
    for ks in range(4):
        a("ds_read_b128 %s, v%d" % (vr(LX[ks]), V_AX + ks))
    for sx in range(3):
        for rd in range(2):
            a("ds_read_b64_tr_b16 %s, v%d offset:%d" % (vr(LW[sx] + 2 * rd, 2), V_AW, sx * 1024 + rd * 256))
    a("s_add_u32 s%d, s%d, 1" % (S_CNT, S_CNT))
    a("s_and_b32 s%d, s%d, %d" % (S_T0, S_CNT, NS1 - 1))
    a("s_cmp_eq_u32 s%d, 0" % S_T0)
    a("s_cselect_b32 s%d, %d, s44" % (S_RD, -(NS1 - 1) * SLOT))
    for ks in range(4):
        a("s_waitcnt lgkmcnt(%d)" % (9 - ks))
        a("v_mfma_f32_16x16x32_bf16 %s, %s, %s, %s" % (vr(L_SX), vr(V_SEL), vr(LX[ks]), vr(L_SX)))
        for d in range(4):
            t0, t1 = V_TMP + 2 * (d % 2), V_TMP + 2 * (d % 2) + 1
            a("v_lshlrev_b32 v%d, 16, v%d" % (t0, LX[ks] + d))
            a("v_and_b32 v%d, s%d, v%d" % (t1, S_MASK, LX[ks] + d))
            a("v_fmac_f32 v%d, v%d, v%d" % (V_SQ, t0, t0))
            a("v_fmac_f32 v%d, v%d, v%d" % (V_SQ + 1, t1, t1))
        if ks == 1:
            a("s_waitcnt lgkmcnt(0)")
            for sx in range(3):
                a("v_mfma_f32_16x16x32_bf16 %s, %s, %s, %s" % (vr(L_CS[sx]), vr(V_SEL), vr(LW[sx]), vr(L_CS[sx])))
    for r in list(range(V_AX, V_AX + 4)) + [V_AW]:
        a("v_add_u32 v%d, s%d, v%d" % (r, S_RD, r))
    a("s_cmp_lt_u32 s%d, 8" % S_CNT)
    a("s_cbranch_scc1 L_k1_st")
    a("v_and_b32 v%d, 31, v%d" % (V_T, V_LANE))
    a("v_lshlrev_b32 v%d, 2, v%d" % (V_T, V_T))
    a("s_mul_i32 s%d, s%d, 384" % (S_T0, S_WAVE))
    a("s_add_u32 s%d, s%d, %d" % (S_T0, S_T0, LDS_SCR))
    a("v_add_u32 v%d, s%d, v%d" % (V_T + 1, S_T0, V_T))
    for sx in range(3):
        a("ds_write_b32 v%d, v%d offset:%d" % (V_T + 1, L_CS[sx], sx * 128))
    a("v_add_f32 v%d, v%d, v%d" % (V_SQ, V_SQ, V_SQ + 1))
    sum_halves(a, V_SQ, V_SQ + 1)
    V_MU, V_RS = V_SQ + 2, V_SQ + 3
    a("v_mul_f32 v%d, 0x%x, v%d" % (V_MU, f32bits(1.0 / 512), L_SX))
    a("v_mul_f32 v%d, 0x%x, v%d" % (V_SQ, f32bits(1.0 / 512), V_SQ))
    a("v_fma_f32 v%d, -v%d, v%d, v%d" % (V_SQ, V_MU, V_MU, V_SQ))
    a("v_max_f32 v%d, 0, v%d" % (V_SQ, V_SQ))
    a("v_add_f32 v%d, 0x%x, v%d" % (V_SQ, f32bits(1e-5), V_SQ))
    a("v_rsq_f32 v%d, v%d" % (V_RS, V_SQ))
    a("v_sub_f32 v%d, 0, v%d" % (V_MU, V_MU))
    a("s_lshl_b32 s%d, s%d, 7" % (S_T0, S_WAVE))
    a("s_add_u32 s%d, s%d, %d" % (S_T0, S_T0, SCR_RS))
    a("v_add_u32 v%d, s%d, v%d" % (V_T + 2, S_T0, V_T))
    a("ds_write_b32 v%d, v%d" % (V_T + 2, V_RS))
    split_hi_lo_B(a, V_MU, LX[0], V_T + 4, S_MASK)
    a("s_lshl_b32 s%d, s%d, 9" % (S_T0, S_WAVE))
    a("s_add_u32 s%d, s%d, %d" % (S_T0, S_T0, SCR_BF))
    a("v_lshl_add_u32 v%d, v%d, 3, s%d" % (V_T + 3, V_LANE, S_T0))
    a("ds_write_b64 v%d, %s" % (V_T + 3, vr(LX[0], 2)))
    a("s_waitcnt lgkmcnt(0)")
    a("s_barrier")
    a("s_endpgm")
    a.label("L_k1_compute")
    lds_addr_setup(False)
    a("v_add_u32 v%d, 16384, v%d" % (V_AW, V_T + 5))
    V_ECS, V_ERS, V_ERV, V_EBF, V_OQ, V_OV = 18, 19, 20, 21, 22, 23
    a("v_and_b32 v%d, 31, v%d" % (V_T, V_LANE))
    a("v_lshlrev_b32 v%d, 2, v%d" % (V_T, V_T))
    a("v_lshrrev_b32 v%d, 5, v%d" % (V_T + 2, V_LANE))
    a("v_mul_u32_u24 v%d, 768, v%d" % (V_T + 3, V_T + 2))
    a("v_add_u32 v%d, v%d, v%d" % (V_T + 3, V_T + 3, V_T))
    a("v_add_u32 v%d, %d, v%d" % (V_ECS, LDS_SCR, V_T + 3))
    a("s_lshl_b32 s%d, s%d, 7" % (S_T0, S_WAVE))
    a("s_add_u32 s%d, s%d, %d" % (S_T0, S_T0, SCR_RS))
    a("v_add_u32 v%d, s%d, v%d" % (V_ERS, S_T0, V_T))
    a("v_lshl_add_u32 v%d, v%d, 4, s%d" % (V_ERV, V_T + 2, S_T0))
    a("s_lshl_b32 s%d, s%d, 9" % (S_T0, S_WAVE))
    a("s_add_u32 s%d, s%d, %d" % (S_T0, S_T0, SCR_BF))
    a("v_lshl_add_u32 v%d, v%d, 3, s%d" % (V_EBF, V_LANE, S_T0))
    a("v_lshlrev_b32 v%d, 4, v%d" % (V_OQ, V_LANE))
    a("v_bfe_u32 v%d, v%d, 4, 1" % (V_T + 1, V_LANE))
    a("v_lshlrev_b32 v%d, 16, v%d" % (V_T + 1, V_T + 1))
    a("v_lshl_add_u32 v%d, v%d, 8, v%d" % (V_T + 1, V_T + 2, V_T + 1))
    a("v_and_b32 v%d, 15, v%d" % (V_T + 2, V_LANE))
    a("v_lshl_add_u32 v%d, v%d, 4, v%d" % (V_OV, V_T + 2, V_T + 1))
    a("s_lshl_b32 s%d, s%d, 2" % (S_T0, S_RB))
    a("s_add_u32 s%d, s%d, s%d" % (S_T0, S_T0, S_WAVE))
    a("s_lshl_b32 s%d, s%d, 10" % (S_T0, S_T0))
    a("s_lshl_b32 s%d, s%d, 17" % (S_T1, S_CG))
    a("s_add_u32 s%d, s%d, s%d" % (S_T0, S_T0, S_T1))
    a("s_add_u32 s%d, s%d, 65536" % (S_T1, S_T0))
    a("s_add_u32 s35, s%d, %d" % (S_T0, WS_K))
    a("s_add_u32 s36, s%d, %d" % (S_T1, WS_K))
    a("s_add_u32 s37, s%d, %d" % (S_T0, WS_V))
    VB = V_TMP
    VA = [V_TMP + 4, V_TMP + 8, V_TMP + 12]
    for r in (VB + 2, VB + 3):
        a("v_mov_b32 v%d, 0" % r)
    cur_base = [0]

    def reads(P):
        st, ks = P // 4, P % 4
        slot = st % NS1
        base, imm = (slot // 2) * 2 * SLOT, (slot % 2) * SLOT
        out = []
        if base != cur_base[0]:
            d = base - cur_base[0]
            for r in list(range(V_AX, V_AX + 4)) + [V_AW]:
                out.append("v_add_u32 v%d, %d, v%d" % (r, d, r) if d > 0 else "v_subrev_u32 v%d, %d, v%d" % (r, -d, r))
            cur_base[0] = base
        b = P % 2
        out.append("ds_read_b128 %s, v%d offset:%d" % (vr(V_X[b]), V_AX + ks, imm))
        for sx in range(3):
            for rd in range(2):
                out.append("ds_read_b64_tr_b16 %s, v%d offset:%d" % (vr(V_W[b][sx] + 2 * rd, 2), V_AW, imm + ks * 3072 + sx * 1024 + rd * 256))
        return out

    a("s_waitcnt lgkmcnt(0)")
    srd(a, 20, 8, WS_SIZE)
    a("s_cmp_ge_u32 s2, 4")
    a("s_cbranch_scc1 L_k1_nozero")
    for r in range(4):
        a("v_mov_b32 v%d, 0" % (V_ACC[0] + r))
    a("s_lshl_b32 s3, s2, 2")
    a("s_add_u32 s3, s3, s%d" % S_WAVE)
    a("s_lshl_b32 s3, s3, 10")
    a("s_add_u32 s3, s3, %d" % WS_FL)
    a("buffer_store_dwordx4 %s, v%d, s[20:23], s3 offen" % (vr(V_ACC[0]), V_OQ))
    a.label("L_k1_nozero")
    a.ts("k1")
    a("s_barrier")
    a.ts("k1")
    for l in reads(0):
        a(l)
    for P in range(32):
        st, pos = P // 4, P % 4
        b = P % 2
        a("s_waitcnt lgkmcnt(0)")
        if pos == 3 and P < 31:
            a("s_barrier")
        rd = reads(P + 1) if P < 31 else []
        X = vr(V_X[b])
        c = lambda r, n=16: ("0" if P == 0 else vr(r, n))
        m = []
        m.append("v_mfma_f32_32x32x16_bf16 %s, %s, %s, %s" % (vr(V_ACC[0], 16), vr(V_W[b][0]), X, c(V_ACC[0])))
        m.append("v_mfma_f32_32x32x16_bf16 %s, %s, %s, %s" % (vr(V_ACC[1], 16), vr(V_W[b][1]), X, c(V_ACC[1])))
        m.append("v_mfma_f32_32x32x16_bf16 %s, %s, %s, %s" % (vr(V_ACC[2], 16), X, vr(V_W[b][2]), c(V_ACC[2])))
        nfirst = 3 if len(rd) <= 8 else 8
        for l in rd[:nfirst]:
            a(l)
        for l in interleave(m, rd[nfirst:], per=2):
            a(l)
    a.ts("k1")
    a("s_barrier")
    VC = V_TMP + 16
    V_RS = V_TMP + 22
    V_RQ = V_TMP + 23
    VR = V_TMP + 24
    for sx in range(3):
        a("ds_read2_b32 %s, v%d offset0:%d offset1:%d" % (vr(VC + 2 * sx, 2), V_ECS, sx * 32, sx * 32 + 96))
    a("ds_read_b64 %s, v%d" % (vr(VB, 2), V_EBF))
    a("ds_read_b32 v%d, v%d" % (V_RS, V_ERS))
    for q in range(4):
        a("ds_read_b128 %s, v%d offset:%d" % (vr(VR + 4 * q), V_ERV, q * 32))
    for sx in range(3):
        a("s_waitcnt lgkmcnt(%d)" % (8 - sx))
        a("v_add_f32 v%d, v%d, v%d" % (VC + 2 * sx, VC + 2 * sx, VC + 2 * sx + 1))
        split_hi_lo_A(a, VC + 2 * sx, VA[sx], V_T + 4, S_MASK)
    a("s_waitcnt lgkmcnt(4)")
    a("v_mul_f32 v%d, 0x%x, v%d" % (V_RQ, f32bits(0.25 * math.log2(math.e)), V_RS))
    a("v_mfma_f32_32x32x16_bf16 %s, %s, %s, %s" % (vr(V_ACC[0], 16), vr(VA[0]), vr(VB), vr(V_ACC[0], 16)))
    a("v_mfma_f32_32x32x16_bf16 %s, %s, %s, %s" % (vr(V_ACC[1], 16), vr(VA[1]), vr(VB), vr(V_ACC[1], 16)))
    a("v_mfma_f32_32x32x16_bf16 %s, %s, %s, %s" % (vr(V_ACC[2], 16), vr(VB), vr(VA[2]), vr(V_ACC[2], 16)))
    a("s_nop 9")
    VO = V_X[0]
    k = 0
    for blk, sc, soffs in ((0, V_RQ, (S_T0, S_T1)), (1, V_RS, (35, 36))):
        for half in range(2):
            o = VO + 4 * k
            k += 1
            for i in range(8):
                r = V_ACC[blk] + 8 * half + i
                a("v_mul_f32 v%d, v%d, v%d" % (r, sc, r))
            for i in range(4):
                r = V_ACC[blk] + 8 * half + 2 * i
                a("v_cvt_pk_bf16_f32 v%d, v%d, v%d" % (o + i, r, r + 1))
            a("buffer_store_dwordx4 %s, v%d, s[20:23], s%d offen" % (vr(o), V_OQ, soffs[half]))
    a("s_waitcnt lgkmcnt(0)")
    for half in range(2):
        o = VO + 4 * k
        k += 1
        for i in range(8):
            r = V_ACC[2] + 8 * half + i
            a("v_mul_f32 v%d, v%d, v%d" % (r, VR + 8 * half + i, r))
        for i in range(4):
            r = V_ACC[2] + 8 * half + 2 * i
            a("v_cvt_pk_bf16_f32 v%d, v%d, v%d" % (o + i, r, r + 1))
        a("buffer_store_dwordx4 %s, v%d, s[20:23], s37 offen offset:%d" % (vr(o), V_OV, half * 512))
    a.ts_flush("k1", S_WAVE, V_T)
    a.label("L_k1_end")
    a("s_endpgm")
    return name, 152, 0, (256, 768, LDS_SCR + 4096)


def gen_k2(a):
    name = "k2_attn_kernel"
    kernel_begin(a, name)
    S_WAVE, S_H, S_QB, S_T0, S_T1, S_T2, S_T3 = 40, 41, 42, 43, 44, 45, 46
    S_ITER, S_SYNC, S_PASS, S_NT = 47, 48, 49, 50
    S_TASK, S_STG, S_DST0, S_DST1, S_TYPE = 51, 52, 53, 54, 55
    S_VMASK = 56
    S_CS = 58
    S_KB, S_W1K, S_CH = 59, 60, 61
    S_PE, S_PO, S_PS = 36, 37, 38
    V_LANE, V_L16, V_T = 1, 2, 3
    V_KA, V_VA = 10, 11
    V_Q = 12
    V_K = [16, 20]
    V_V = [24, 32]
    V_P = 40
    V_CM = 48
    V_S = [64, 80]
    V_O = 96
    V_MAX = 112
    V_PK = 113
    V_PD = 114
    V_SEL = 116
    V_PCS = [120, 124]
    STG = 131072
    a("s_cmp_ge_u32 s2, 256")
    a("s_cbranch_scc1 L_k2_end")
    a.ts("k2")
    a.ts("k2b")
    a("s_load_dwordx2 s[8:9], s[0:1], %d" % ARG_WS)
    a("s_load_dwordx2 s[4:5], s[0:1], %d" % ARG_WO)
    a("s_load_dwordx4 s[24:27], s[0:1], %d" % ARG_WG)
    a("s_load_dwordx2 s[6:7], s[0:1], %d" % ARG_WD)
    a("v_lshrrev_b32 v%d, 6, v0" % V_T)
    a("v_and_b32 v%d, 63, v0" % V_LANE)
    a("v_readfirstlane_b32 s%d, v%d" % (S_WAVE, V_T))
    a("v_lshlrev_b32 v%d, 4, v%d" % (V_L16, V_LANE))
    a("s_and_b32 s%d, s2, 7" % S_H)
    a("s_lshl_b32 s%d, s%d, 2" % (S_H, S_H))
    a("s_lshr_b32 s%d, s2, 6" % S_T0)
    a("s_add_u32 s%d, s%d, s%d" % (S_H, S_H, S_T0))
    a("s_lshr_b32 s%d, s2, 3" % S_QB)
    a("s_and_b32 s%d, s%d, 7" % (S_QB, S_QB))
    a("s_lshl_b32 s%d, s%d, 16" % (S_KB, S_H))
    a("s_lshl_b32 s%d, s%d, 10" % (S_W1K, S_WAVE))
    a("s_add_u32 s%d, s%d, s%d" % (S_KB, S_KB, S_W1K))
    a("s_lshl_b32 s%d, s%d, 13" % (S_CH, S_QB))
    a("s_add_u32 s%d, s%d, s%d" % (S_T3, S_KB, S_CH))
    a("s_add_u32 s%d, s%d, %d" % (S_KB, S_KB, WS_K))
    if not K2_ROT:
        a("s_mov_b32 s%d, 0" % S_CH)
    a("s_waitcnt lgkmcnt(0)")
    a.ts("k2b")
    srd(a, 20, 8, WS_SIZE)
    a("buffer_load_dwordx4 %s, v%d, s[20:23], s%d offen" % (vr(V_Q), V_L16, S_T3))
    if INSTR == "k2b":
        a("s_waitcnt vmcnt(0)")
    a.ts("k2b")

    def kv_dma(c):
        return [["s_add_u32 s%d, s%d, s%d" % (S_T3, S_KB, S_CH),
                 "s_add_u32 m0, s%d, %d" % (S_W1K, c * 8192),
                 "s_add_u32 s%d, s%d, 8192" % (S_CH, S_CH),
                 "buffer_load_dwordx4 v%d, s[20:23], s%d offen lds" % (V_L16, S_T3)],
                ["s_add_u32 s%d, s%d, %d" % (S_T3, S_T3, WS_V - WS_K),
                 "s_add_u32 m0, s%d, %d" % (S_W1K, 65536 + c * 8192),
                 "s_and_b32 s%d, s%d, 0xffff" % (S_CH, S_CH),
                 "buffer_load_dwordx4 v%d, s[20:23], s%d offen lds" % (V_L16, S_T3)]]

    for c in range(2):
        for g in kv_dma(c):
            for l in g:
                a(l)
    a("s_mov_b32 s%d, 0" % S_TYPE)
    a("s_cmp_lt_u32 s%d, 4" % S_WAVE)
    a("s_cbranch_scc1 L_k2_nopack")
    a("s_lshl_b32 s%d, s2, 2" % S_TASK)
    a("s_add_u32 s%d, s%d, s%d" % (S_TASK, S_TASK, S_WAVE))
    a("s_sub_u32 s%d, s%d, 4" % (S_TASK, S_TASK))
    a("s_cmp_ge_u32 s%d, 736" % S_TASK)
    a("s_cbranch_scc1 L_k2_nopack")
    a("s_lshl_b32 s%d, s%d, 13" % (S_STG, S_WAVE))
    a("s_add_u32 s%d, s%d, %d" % (S_STG, S_STG, STG - 4 * 8192))
    a("v_lshrrev_b32 v%d, 2, v%d" % (V_T, V_LANE))
    a("v_and_b32 v%d, 3, v%d" % (V_T + 1, V_LANE))
    a("s_cmp_ge_u32 s%d, 448" % S_TASK)
    a("s_cbranch_scc1 L_k2_packn")
    a("s_mov_b32 s%d, 1" % S_TYPE)
    srd(a, 28, 24, 512 * 3584)
    srd(a, 32, 26, 512 * 3584)
    a("v_mul_u32_u24 v%d, 3584, v%d" % (V_T, V_T))
    a("v_lshl_add_u32 v%d, v%d, 4, v%d" % (V_PD, V_T + 1, V_T))
    a("s_and_b32 s%d, s%d, 7" % (S_T0, S_TASK))
    a("s_lshr_b32 s%d, s%d, 3" % (S_T1, S_TASK))
    a("s_mul_i32 s%d, s%d, %d" % (S_PE, S_T0, 64 * 3584))
    a("s_lshl_b32 s%d, s%d, 6" % (S_T2, S_T1))
    a("s_add_u32 s%d, s%d, s%d" % (S_PE, S_PE, S_T2))
    a("s_mov_b32 s%d, s%d" % (S_PO, S_PE))
    a("s_mov_b32 s%d, %d" % (S_PS, 16 * 3584))
    for hb, sd in ((0, S_DST0), (1, S_DST1)):
        a("s_lshl_b32 s%d, s%d, 1" % (S_T2, S_T1))
        if hb:
            a("s_add_u32 s%d, s%d, 1" % (S_T2, S_T2))
        a("s_mul_i32 s%d, s%d, 9363" % (S_CS, S_T2))
        a("s_lshr_b32 s%d, s%d, 16" % (S_CS, S_CS))
        a("s_mul_i32 s%d, s%d, 7" % (sd, S_CS))
        a("s_sub_u32 s%d, s%d, s%d" % (sd, S_T2, sd))
        a("s_mul_i32 s%d, s%d, %d" % (S_CS, S_CS, 32 * 7))
        a("s_add_u32 s%d, s%d, s%d" % (sd, sd, S_CS))
        a("s_mul_i32 s%d, s%d, 28" % (S_CS, S_T0))
        a("s_add_u32 s%d, s%d, s%d" % (sd, sd, S_CS))
        a("s_lshl_b32 s%d, s%d, 10" % (sd, sd))
        a("s_add_u32 s%d, s%d, %d" % (sd, sd, WS_GU))
    a("s_lshl_b32 s%d, s%d, 11" % (S_CS, S_T1))
    a("s_lshr_b32 s%d, s%d, 2" % (S_T2, S_T0))
    a("s_lshl_b32 s%d, s%d, 9" % (S_T2, S_T2))
    a("s_add_u32 s%d, s%d, s%d" % (S_CS, S_CS, S_T2))
    a("s_and_b32 s%d, s%d, 3" % (S_T2, S_T0))
    a("s_lshl_b32 s%d, s%d, 2" % (S_T2, S_T2))
    a("s_add_u32 s%d, s%d, s%d" % (S_CS, S_CS, S_T2))
    a("s_add_u32 s%d, s%d, %d" % (S_CS, S_CS, WS_CS))
    a("s_branch L_k2_nopack")
    a.label("L_k2_packn")
    a("s_mov_b32 s%d, 2" % S_TYPE)
    a("v_lshlrev_b32 v%d, 10, v%d" % (V_T, V_T))
    a("v_lshl_add_u32 v%d, v%d, 4, v%d" % (V_PD, V_T + 1, V_T))
    a("s_cmp_ge_u32 s%d, 512" % S_TASK)
    a("s_cbranch_scc1 L_k2_packd")
    srd(a, 28, 4, 512 * 1024)
    srd(a, 32, 4, 512 * 1024)
    a("s_sub_u32 s%d, s%d, 448" % (S_T0, S_TASK))
    a("s_lshr_b32 s%d, s%d, 2" % (S_T1, S_T0))
    a("s_and_b32 s%d, s%d, 3" % (S_T0, S_T0))
    a("s_lshl_b32 s%d, s%d, 15" % (S_DST0, S_T1))
    a("s_add_u32 s%d, s%d, %d" % (S_DST0, S_DST0, WS_WO))
    a("s_branch L_k2_packc")
    a.label("L_k2_packd")
    srd(a, 28, 6, 1792 * 1024)
    srd(a, 32, 6, 1792 * 1024)
    a("s_sub_u32 s%d, s%d, 512" % (S_T0, S_TASK))
    a("s_mul_i32 s%d, s%d, 4682" % (S_T1, S_T0))
    a("s_lshr_b32 s%d, s%d, 16" % (S_T1, S_T1))
    a("s_mul_i32 s%d, s%d, 14" % (S_T2, S_T1))
    a("s_sub_u32 s%d, s%d, s%d" % (S_T0, S_T0, S_T2))
    a("s_mul_i32 s%d, s%d, %d" % (S_DST0, S_T1, 112 * 1024))
    a("s_add_u32 s%d, s%d, %d" % (S_DST0, S_DST0, WS_WD))
    a.label("L_k2_packc")
    a("s_lshl_b32 s%d, s%d, 13" % (S_T2, S_T0))
    a("s_add_u32 s%d, s%d, s%d" % (S_DST0, S_DST0, S_T2))
    a("s_lshl_b32 s%d, s%d, 17" % (S_PE, S_T0))
    a("s_lshl_b32 s%d, s%d, 6" % (S_T2, S_T1))
    a("s_add_u32 s%d, s%d, s%d" % (S_PE, S_PE, S_T2))
    a("s_add_u32 s%d, s%d, 16384" % (S_PO, S_PE))
    a("s_mov_b32 s%d, 32768" % S_PS)
    a.label("L_k2_nopack")
    a("s_mov_b32 s%d, 0x0000ffff" % S_VMASK)
    a("s_mov_b32 s%d, 0x0000ffff" % (S_VMASK + 1))
    a("v_and_b32 v%d, 27, v%d" % (V_T, V_LANE))
    a("v_cmp_eq_u32 vcc, 16, v%d" % V_T)
    a("v_mov_b32 v%d, 0x%x" % (V_T + 1, ONES_BF16))
    a("s_nop 1")
    a("v_cndmask_b32 v%d, 0, v%d, vcc" % (V_V[0], V_T + 1))
    for i in range(1, 16):
        a("v_mov_b32 v%d, v%d" % (V_V[0] + i, V_V[0]))
    a("s_mov_b32 s%d, 0" % S_SYNC)
    a("s_mov_b32 s%d, 0" % S_PASS)
    a("s_mov_b32 s%d, 1" % S_NT)
    a("s_setprio 3")
    a.ts("k2b")
    a("s_waitcnt vmcnt(2)")
    a.ts("k2b")
    a("s_barrier")
    a.ts("k2")
    a.ts("k2b")
    a.label("L_k2_maxpass")
    a("v_mov_b32 v%d, 0xff800000" % V_MAX)
    a("v_mov_b32 v%d, v%d" % (V_KA, V_L16))
    a.label("L_k2_mloop")
    a("ds_read_b128 %s, v%d" % (vr(V_K[0]), V_KA))
    a("v_add_u32 v%d, 1024, v%d" % (V_KA, V_KA))
    a("s_waitcnt lgkmcnt(0)")
    a("v_mfma_f32_32x32x16_bf16 %s, %s, %s, 0" % (vr(V_S[0], 16), vr(V_K[0]), vr(V_Q)))
    a("s_nop 15")
    for i in range(8):
        a("v_max3_f32 v%d, v%d, v%d, v%d" % (V_MAX, V_S[0] + 2 * i, V_S[0] + 2 * i + 1, V_MAX))
    a("s_sub_u32 s%d, s%d, 1" % (S_NT, S_NT))
    a("s_cmp_lg_u32 s%d, 0" % S_NT)
    a("s_cbranch_scc1 L_k2_mloop")
    a("v_mov_b32 v%d, v%d" % (V_KA, V_L16))
    a("v_lshrrev_b32 v%d, 5, v%d" % (V_T, V_LANE))
    a("v_lshlrev_b32 v%d, 8, v%d" % (V_T, V_T))
    a("v_and_b32 v%d, 15, v%d" % (V_T + 1, V_LANE))
    a("v_lshl_add_u32 v%d, v%d, 4, v%d" % (V_VA, V_T + 1, V_T))
    a("v_add_u32 v%d, 65536, v%d" % (V_VA, V_VA))
    a("ds_read_b128 %s, v%d" % (vr(V_K[0]), V_KA))
    a("ds_read_b128 %s, v%d offset:1024" % (vr(V_K[1]), V_KA))
    a("s_mov_b64 exec, s[%d:%d]" % (S_VMASK, S_VMASK + 1))
    a("ds_read_b128 %s, v%d" % (vr(V_V[0]), V_VA))
    a("ds_read_b128 %s, v%d offset:512" % (vr(V_V[0] + 4), V_VA))
    a("s_mov_b64 exec, -1")
    a("v_mov_b32 v%d, v%d" % (V_T, V_MAX))
    a("s_nop 1")
    a("v_permlane32_swap_b32 v%d, v%d" % (V_MAX, V_T))
    a("s_nop 1")
    a("v_max_f32 v%d, v%d, v%d" % (V_MAX, V_MAX, V_T))
    for i in range(16):
        a("v_sub_f32 v%d, 0, v%d" % (V_CM + i, V_MAX))
    a("s_waitcnt lgkmcnt(0)")
    a("s_nop 0")
    a("v_mfma_f32_32x32x16_bf16 %s, %s, %s, %s" % (vr(V_S[0], 16), vr(V_K[0]), vr(V_Q), vr(V_CM, 16)))
    for i in range(16):
        a("v_mov_b32 v%d, 0" % (V_O + i))
    for i in range(4):
        a("v_mov_b32 v%d, 0" % (V_P + 4 + i))
    a("s_mov_b32 s%d, 8" % S_ITER)
    a.ts("k2")
    a("s_cmp_lg_u32 s%d, 0" % S_PASS)
    a("s_cbranch_scc1 L_k2_loop")

    def body(peeled):
        for t in range(8):
            cur, nxt = t % 2, (t + 1) % 2
            x1, x2 = [], []
            if peeled:
                if t < 6:
                    x1, x2 = kv_dma(t + 2)
                if t == 6:
                    a("s_waitcnt vmcnt(12)")
                    a("s_barrier")
                if t >= 6:
                    lab = "L_k2_np%d" % t
                    x1 = ["s_cmp_eq_u32 s%d, 0" % S_TYPE, "s_cbranch_scc1 %s" % lab]
                    for i in range(4 * (t - 6), 4 * (t - 6) + 4):
                        x1 += ["s_add_u32 m0, s%d, %d" % (S_STG, i * 1024), "s_nop 0",
                               "buffer_load_dwordx4 v%d, s[%d:%d], s%d offen lds" % (V_PD, 28 + 4 * (i % 2), 31 + 4 * (i % 2), S_PO if i % 2 else S_PE),
                               "s_add_u32 s%d, s%d, s%d" % ((S_PO, S_PO, S_PS) if i % 2 else (S_PE, S_PE, S_PS))]
                    x1 += [lab + ":"]
            else:
                if t == 0:
                    for k, r in enumerate((5, 2, 1)):
                        x1 += ["s_cmp_lg_u32 s%d, %d" % (S_ITER, r), "s_cbranch_scc1 L_k2_pp%d" % k, "s_setprio %d" % (2 - k), "L_k2_pp%d:" % k]
                if t == 6:
                    a("s_cmp_eq_u32 s%d, 0" % S_SYNC)
                    a("s_cbranch_scc1 L_k2_sync")
                    a.label("L_k2_syncret")
            S = V_S[cur]
            e = lambda i: "v_exp_f32 v%d, v%d" % (S + i, S + i)
            c = lambda i: "v_cvt_pk_bf16_f32 v%d, v%d, v%d" % (V_P + i, S + 2 * i, S + 2 * i + 1)
            pv = lambda b, h: "v_mfma_f32_32x32x16_bf16 %s, %s, %s, %s" % (vr(V_O, 16), vr(V_V[b] + 4 * h), vr(V_P + 4 * h), vr(V_O, 16))
            qk = "v_mfma_f32_32x32x16_bf16 %s, %s, %s, %s" % (vr(V_S[nxt], 16), vr(V_K[nxt]), vr(V_Q), vr(V_CM, 16))
            rdk = "ds_read_b128 %s, v%d offset:%d" % (vr(V_K[cur]), V_KA, (t + 2) * 1024)
            rdv = ["s_mov_b64 exec, s[%d:%d]" % (S_VMASK, S_VMASK + 1),
                   "ds_read_b128 %s, v%d offset:%d" % (vr(V_V[nxt]), V_VA, (t + 1) * 1024),
                   "ds_read_b128 %s, v%d offset:%d" % (vr(V_V[nxt] + 4), V_VA, (t + 1) * 1024 + 512),
                   "s_mov_b64 exec, -1"]
            seq = [e(0), e(1), pv(nxt, 1), e(2), "s_waitcnt lgkmcnt(0)", rdk, e(3)] + rdv + [c(0), e(4), e(5), c(1), e(6), e(7), qk, c(2), e(8)] + x1 + [e(9), c(3),
                   e(10), e(11), c(4), e(12), e(13), pv(cur, 0), c(5), e(14)] + x2 + [e(15), c(6)]
            if t == 7:
                seq += ["v_add_u32 v%d, 8192, v%d" % (V_KA, V_KA), "v_add_u32 v%d, 8192, v%d" % (V_VA, V_VA),
                        "s_sub_u32 s%d, s%d, 1" % (S_ITER, S_ITER), "s_cmp_lg_u32 s%d, 0" % S_ITER]
            seq += [c(7)]
            for l in seq:
                if l.endswith(":"):
                    a.label(l[:-1])
                else:
                    a(l)

    body(True)
    a.raw(".p2align 6")
    a.label("L_k2_loop")
    body(False)
    a("s_cbranch_scc1 L_k2_loop")
    a.ts("k2")
    a("s_nop 1")
    a("v_mfma_f32_32x32x16_bf16 %s, %s, %s, %s" % (vr(V_O, 16), vr(V_V[1] + 4), vr(V_P + 4), vr(V_O, 16)))
    a("s_waitcnt lgkmcnt(0)")
    a("s_lshl_b32 s%d, s%d, 3" % (S_T0, S_QB))
    a("s_add_u32 s%d, s%d, s%d" % (S_T0, S_T0, S_WAVE))
    a("s_lshl_b32 s%d, s%d, 5" % (S_T0, S_T0))
    a("s_add_u32 s%d, s%d, s%d" % (S_T0, S_T0, S_H))
    a("s_lshl_b32 s%d, s%d, 10" % (S_T0, S_T0))
    a("s_add_u32 s%d, s%d, %d" % (S_T0, S_T0, WS_O))
    a("s_nop 7")
    a("v_mul_f32 v%d, 0, v%d" % (V_T, V_O))
    for i in range(1, 8):
        a("v_fmac_f32 v%d, 0, v%d" % (V_T, V_O + i))
    a("v_add_f32 v%d, v%d, v%d" % (V_T, V_T, V_O + 8))
    a("v_cmp_gt_f32 vcc, 0x%x, v%d" % (f32bits(2.0 ** 100), V_T))
    a("v_rcp_f32 v%d, v%d" % (V_T + 1, V_O + 8))
    a("s_cmp_lg_u32 s%d, 0" % S_PASS)
    a("s_cbranch_scc1 L_k2_fin")
    a("s_cmp_eq_u64 vcc, exec")
    a("s_cbranch_scc1 L_k2_fin")
    a("s_mov_b32 s%d, 1" % S_PASS)
    a("s_mov_b32 s%d, 64" % S_NT)
    a("s_branch L_k2_maxpass")
    a.label("L_k2_fin")
    for i in range(8):
        a("v_mul_f32 v%d, v%d, v%d" % (V_O + i, V_T + 1, V_O + i))
    for i in range(4):
        a("v_cvt_pk_bf16_f32 v%d, v%d, v%d" % (V_P + i, V_O + 2 * i, V_O + 2 * i + 1))
    a("buffer_store_dwordx4 %s, v%d, s[20:23], s%d offen" % (vr(V_P), V_L16, S_T0))
    a.ts_flush("k2", S_WAVE, V_T)
    a.ts_flush("k2b", S_WAVE, V_T)
    a.label("L_k2_end")
    a("s_endpgm")
    a.label("L_k2_sync")
    a("s_mov_b32 s%d, 1" % S_SYNC)
    a("s_waitcnt vmcnt(0)")
    a("s_barrier")
    a("s_cmp_eq_u32 s%d, 0" % S_TYPE)
    a("s_cbranch_scc1 L_k2_syncret")
    a("v_bfe_u32 v%d, v%d, 2, 2" % (V_T, V_LANE))
    a("v_lshrrev_b32 v%d, 5, v%d" % (V_T + 1, V_LANE))
    a("v_lshl_add_u32 v%d, v%d, 2, v%d" % (V_T, V_T + 1, V_T))
    a("v_lshlrev_b32 v%d, 6, v%d" % (V_T, V_T))
    a("v_and_b32 v%d, 3, v%d" % (V_T + 1, V_LANE))
    a("v_lshl_add_u32 v%d, v%d, 3, v%d" % (V_T, V_T + 1, V_T))
    a("v_add_u32 v%d, s%d, v%d" % (V_T, S_STG, V_T))
    a("v_bfe_u32 v%d, v%d, 4, 1" % (V_T + 1, V_LANE))
    FB = [128 + 4 * i for i in range(8)]
    a("s_cmp_eq_u32 s%d, 2" % S_TYPE)
    a("s_cbranch_scc1 L_k2_pk2")
    a("v_lshl_add_u32 v%d, v%d, 10, v%d" % (V_PK, V_T + 1, V_T))
    for ks in range(4):
        for hb in range(2):
            for rd in range(2):
                a("ds_read_b64_tr_b16 %s, v%d offset:%d" % (vr(FB[ks * 2 + hb] + 2 * rd, 2), V_PK, ks * 2048 + hb * 32 + rd * 512))
    make_sel(a, V_LANE, V_SEL, V_T + 2)
    a("v_and_b32 v%d, 31, v%d" % (V_T, V_LANE))
    a("v_lshlrev_b32 v%d, 4, v%d" % (V_T, V_T))
    a("s_waitcnt lgkmcnt(0)")
    for ks in range(4):
        for hb in range(2):
            a("v_mfma_f32_16x16x32_bf16 %s, %s, %s, %s" % (vr(V_PCS[hb]), vr(V_SEL), vr(FB[ks * 2 + hb]), "0" if ks == 0 else vr(V_PCS[hb])))
            a("buffer_store_dwordx4 %s, v%d, s[20:23], s%d offen" % (vr(FB[ks * 2 + hb]), V_L16, (S_DST0, S_DST1)[hb]))
        a("s_add_u32 s%d, s%d, 7168" % (S_DST0, S_DST0))
        a("s_add_u32 s%d, s%d, 7168" % (S_DST1, S_DST1))
    a("s_nop 7")
    a("buffer_store_dword v%d, v%d, s[20:23], s%d offen" % (V_PCS[0], V_T, S_CS))
    a("buffer_store_dword v%d, v%d, s[20:23], s%d offen offset:1024" % (V_PCS[1], V_T, S_CS))
    a("s_branch L_k2_syncret")
    a.label("L_k2_pk2")
    a("v_lshl_add_u32 v%d, v%d, 5, v%d" % (V_PK, V_T + 1, V_T))
    a("s_add_u32 s%d, s%d, 4096" % (S_DST1, S_DST0))
    for f in range(8):
        for rd in range(2):
            a("ds_read_b64_tr_b16 %s, v%d offset:%d" % (vr(FB[f] + 2 * rd, 2), V_PK, f * 1024 + rd * 512))
    a("s_waitcnt lgkmcnt(0)")
    for f in range(8):
        a("buffer_store_dwordx4 %s, v%d, s[20:23], s%d offen offset:%d" % (vr(FB[f]), V_L16, S_DST0 if f < 4 else S_DST1, (f % 4) * 1024))
    a("s_branch L_k2_syncret")
    return name, 160, 0, (256, 512, 163840)


FL_A, FL_B, FL_C, FL_P = WS_FL, WS_FL + 8192, WS_FL + 16384, WS_FL + 20480
S_XCC, S_FAST = 62, 63
T_XCD, T_R2, T_RB64, T_RB128, T_CGF, T_TBO, T_NBO, T_HALF, T_A, T_B, T_C, T_D, T_CNT, T_M = 24, 25, 26, 27, 28, 29, 30, 31, 32, 33, 34, 35, 36, 37
FV_WO = 160
FV_XR = 224
FV_LX = 228
FV_L4 = 229
FV_L8 = 234
FV_F = 230
FSTORE = os.environ.get('FSTORE', '')
PRET = os.environ.get('PRET', 'qa')
WBL2 = os.environ.get('WBL2', '')
LSC = os.environ.get('LSC', ' sc1')
AMAP = int(os.environ.get('AMAP', 0))
S_TEAM, S_MEM = 18, 19
FASTPATH = int(os.environ.get('FASTPATH', 1))
POLLD = int(os.environ.get('POLLD', 1))


def poll(a, tag, soff, n, vl4, vf, depth=1):
    a("s_mov_b32 s%d, 0" % T_CNT)
    a.label("L_poll_%s" % tag)
    a("buffer_load_dword v%d, v%d, s[20:23], s%d offen sc1" % (vf, vl4, soff))
    a("s_add_u32 s%d, s%d, 1" % (T_CNT, T_CNT))
    a("s_waitcnt vmcnt(0)")
    a("v_cmp_ne_u32 vcc, 0, v%d" % vf)
    a("s_cmp_gt_u32 s%d, 0x40000" % T_CNT)
    a("s_cbranch_scc1 L_polld_%s" % tag)
    if n == 64:
        a("s_and_b32 s%d, vcc_lo, vcc_hi" % T_M)
        a("s_cmp_lg_u32 s%d, -1" % T_M)
    else:
        mask = (1 << n) - 1
        a("s_and_b32 s%d, vcc_lo, 0x%x" % (T_M, mask))
        a("s_cmp_lg_u32 s%d, 0x%x" % (T_M, mask))
    a("s_cbranch_scc1 L_poll_%s" % tag)
    a.label("L_polld_%s" % tag)


def hstore(a, tag, stores):
    a("s_cmp_eq_u32 s%d, -1" % S_FAST)
    a("s_cbranch_scc1 L_hs_%s_f" % tag)
    for st in stores:
        a(st + " sc1")
    a("s_branch L_hs_%s_d" % tag)
    a.label("L_hs_%s_f" % tag)
    for st in stores:
        a(st + (FSTORE if "dwordx4" in st else ""))
    a.label("L_hs_%s_d" % tag)


def set_flag(a, soff, vt, tag=None):
    a("v_mov_b32 v%d, 0" % vt)
    a("v_mov_b32 v%d, 1" % (vt + 1))
    a("s_mov_b64 exec, 1")
    st = "buffer_store_dword v%d, v%d, s[20:23], s%d offen" % (vt + 1, vt, soff)
    if tag:
        hstore(a, tag, [st])
    else:
        a(st + " sc1")
    a("s_mov_b64 exec, -1")


def fused_events(a, E):
    S_WAVE, S_H, S_QB, S_ITER, S_SYNC, S_TASK, S_TYPE = (E[k] for k in ("S_WAVE", "S_H", "S_QB", "S_ITER", "S_SYNC", "S_TASK", "S_TYPE"))
    V_LANE, V_L16, V_T = E["V_LANE"], E["V_L16"], E["V_T"]
    a.label("L_f_event")
    a("s_cmp_eq_u32 s%d, 7" % S_ITER)
    a("s_cbranch_scc1 L_f_sync")
    a("s_cmp_eq_u32 s%d, 6" % S_ITER)
    a("s_cbranch_scc1 L_f_ev6")
    a("s_cmp_eq_u32 s%d, 2" % S_ITER)
    a("s_cbranch_scc1 L_f_ev2")
    a("s_cmp_eq_u32 s%d, 3" % S_ITER)
    a("s_cbranch_scc1 L_f_ev3")
    a("s_mov_b32 s%d, 3" % S_SYNC)
    a("s_cmp_eq_u32 s%d, 0" % S_TYPE)
    a("s_cbranch_scc1 L_f_ev5b")
    a("s_lshl_b32 s%d, s%d, 2" % (T_A, S_TASK))
    a("s_add_u32 s%d, s%d, %d" % (T_A, T_A, FL_P))
    a("s_waitcnt vmcnt(0)")
    set_flag(a, T_A, V_T)
    a.label("L_f_ev5b")
    if "a" in WBL2:
        a("s_lshl_b32 s%d, s%d, 3" % (T_A, S_MEM))
        a("s_add_u32 s%d, s%d, s%d" % (T_A, T_A, S_WAVE))
        a("s_cmp_lg_u32 s%d, 5" % T_A)
        a("s_cbranch_scc1 L_f_nowb1")
        a("buffer_wbl2 sc1")
        a.label("L_f_nowb1")
    a("buffer_load_dword v%d, v%d, s[96:99], 0 offen sc1" % (FV_F, FV_L4))
    a("s_branch L_f_syncret")
    a.label("L_f_ev3")
    a("s_mov_b32 s%d, 2" % S_SYNC)
    a("s_mov_b32 s%d, 0" % T_CNT)
    a.label("L_f_dbchk")
    a("s_waitcnt vmcnt(0)")
    a("v_subrev_u32 v%d, 0x01010101, v%d" % (FV_F + 1, FV_F))
    a("v_not_b32 v%d, v%d" % (FV_F + 2, FV_F))
    a("v_and_b32 v%d, v%d, v%d" % (FV_F + 1, FV_F + 1, FV_F + 2))
    a("v_and_b32 v%d, 0x80808080, v%d" % (FV_F + 1, FV_F + 1))
    a("v_cmp_eq_u32 vcc, 0, v%d" % (FV_F + 1))
    a("s_add_u32 s%d, s%d, 1" % (T_CNT, T_CNT))
    a("s_cmp_gt_u32 s%d, 0x40000" % T_CNT)
    a("s_cbranch_scc1 L_f_dbok")
    a("s_and_b32 s%d, vcc_lo, vcc_hi" % T_M)
    a("s_cmp_eq_u32 s%d, -1" % T_M)
    a("s_cbranch_scc1 L_f_dbok")
    a("buffer_load_dword v%d, v%d, s[96:99], 0 offen sc1" % (FV_F, FV_L4))
    a("s_branch L_f_dbchk")
    a.label("L_f_dbok")
    a("s_lshr_b32 s%d, s2, 5" % T_XCD)
    a("s_bfe_u32 s%d, s2, 0x20003" % T_R2)
    a("s_and_b32 s%d, s2, 7" % T_RB64)
    a("s_lshl_b32 s%d, s%d, 2" % (T_RB64, T_RB64))
    a("s_add_u32 s%d, s%d, s%d" % (T_RB64, T_RB64, T_R2))
    a("s_lshr_b32 s%d, s%d, 1" % (T_RB128, T_RB64))
    a("s_and_b32 s%d, s%d, 1" % (T_A, T_R2))
    a("s_lshl_b32 s%d, s%d, 1" % (T_CGF, T_XCD))
    a("s_add_u32 s%d, s%d, s%d" % (T_CGF, T_CGF, T_A))
    a("s_bfe_u32 s%d, s%d, 0x10001" % (T_A, S_WAVE))
    a("s_lshl_b32 s%d, s%d, 1" % (T_TBO, T_RB64))
    a("s_add_u32 s%d, s%d, s%d" % (T_TBO, T_TBO, T_A))
    a("s_and_b32 s%d, s%d, 1" % (T_A, S_WAVE))
    a("s_lshl_b32 s%d, s%d, 1" % (T_NBO, T_XCD))
    a("s_add_u32 s%d, s%d, s%d" % (T_NBO, T_NBO, T_A))
    a("s_lshr_b32 s%d, s%d, 2" % (T_HALF, S_WAVE))
    if "a" in PRET:
        a("s_lshl_b32 s%d, s%d, 4" % (T_A, T_TBO))
        a("s_add_u32 s%d, s%d, s%d" % (T_A, T_A, T_NBO))
        a("s_lshl_b32 s%d, s%d, 9" % (T_B, T_A))
        a("s_add_u32 s%d, s%d, %d" % (T_B, T_B, WS_ST))
        a("s_lshl_b32 s%d, s%d, 1" % (T_A, T_A))
        a("s_add_u32 s%d, s%d, s%d" % (T_A, T_A, T_HALF))
        a("s_lshl_b32 s%d, s%d, 10" % (T_A, T_A))
        a("s_add_u32 s%d, s%d, %d" % (T_A, T_A, WS_H))
        a("buffer_load_dwordx4 %s, v%d, s[20:23], s%d offen sc1" % (vr(236), V_L16, T_A))
        a("buffer_load_dwordx2 %s, v%d, s[20:23], s%d offen sc1" % (vr(240, 2), FV_L8, T_B))
        a("s_and_b32 s%d, s%d, 3" % (T_A, S_WAVE))
        a("s_lshl_b32 s%d, s%d, 2" % (T_B, T_RB128))
        a("s_add_u32 s%d, s%d, s%d" % (T_A, T_A, T_B))
        a("s_mul_i32 s%d, s%d, 112" % (T_A, T_A))
        a("s_mul_i32 s%d, s%d, 7" % (T_B, T_CGF))
        a("s_add_u32 s%d, s%d, s%d" % (T_A, T_A, T_B))
        a("s_mul_i32 s%d, s%d, 3" % (T_B, T_HALF))
        a("s_add_u32 s%d, s%d, s%d" % (T_A, T_A, T_B))
        a("s_lshl_b32 s%d, s%d, 10" % (T_A, T_A))
        a("s_add_u32 s%d, s%d, %d" % (T_A, T_A, WS_A))
        for k in range(4):
            a("buffer_load_dwordx4 %s, v%d, s[20:23], s%d offen offset:%d sc1" % (vr(236 if k == 0 else 240 + 4 * k), V_L16, T_A, k * 1024))
    a("s_mul_i32 s%d, s%d, 7" % (T_A, T_CGF))
    a("s_lshr_b32 s%d, s%d, 1" % (T_A, T_A))
    a("s_lshl_b32 s%d, s%d, 5" % (T_A, T_A))
    a("s_mul_i32 s%d, s%d, 56" % (T_B, T_NBO))
    a("s_add_u32 s%d, s%d, %d" % (T_B, T_B, 512 * 4 - 32 * 4))
    a("s_lshl_b32 s%d, s%d, 1" % (T_C, T_NBO))
    a("s_add_u32 s%d, s%d, s%d" % (T_C, T_C, T_HALF))
    a("s_lshl_b32 s%d, s%d, 3" % (T_C, T_C))
    a("s_add_u32 s%d, s%d, %d" % (T_C, T_C, 448 * 4 - 46 * 4))
    a("v_mov_b32 v%d, s%d" % (V_T, T_A))
    a("v_mov_b32 v%d, s%d" % (V_T + 1, T_B))
    a("v_cmp_le_u32 vcc, 32, v%d" % V_LANE)
    a("v_mov_b32 v%d, s%d" % (V_T + 2, T_C))
    a("s_nop 0")
    a("v_cndmask_b32 v%d, v%d, v%d, vcc" % (V_T, V_T, V_T + 1))
    a("v_cmp_le_u32 vcc, 46, v%d" % V_LANE)
    a("s_mov_b32 s%d, %d" % (T_A, FL_P))
    a("s_nop 0")
    a("v_cndmask_b32 v%d, v%d, v%d, vcc" % (V_T, V_T, V_T + 2))
    a("v_add_u32 v%d, v%d, v%d" % (FV_F + 3, V_T, FV_L4))
    a("buffer_load_dword v%d, v%d, s[20:23], s%d offen sc1" % (FV_F, FV_F + 3, T_A))
    a("s_branch L_f_syncret")
    a.label("L_f_ev2")
    a("s_mov_b32 s%d, 0" % S_SYNC)
    a("s_mov_b32 s%d, 0" % T_CNT)
    a("s_mov_b32 s%d, %d" % (T_A, FL_P))
    a.label("L_f_fpchk")
    a("s_waitcnt vmcnt(0)")
    a("v_cmp_ne_u32 vcc, 0, v%d" % FV_F)
    a("s_add_u32 s%d, s%d, 1" % (T_CNT, T_CNT))
    a("s_cmp_gt_u32 s%d, 0x40000" % T_CNT)
    a("s_cbranch_scc1 L_f_fpok")
    a("s_or_b32 s%d, vcc_hi, 0xffff0000" % T_M)
    a("s_and_b32 s%d, s%d, vcc_lo" % (T_M, T_M))
    a("s_cmp_eq_u32 s%d, -1" % T_M)
    a("s_cbranch_scc1 L_f_fpok")
    a("buffer_load_dword v%d, v%d, s[20:23], s%d offen sc1" % (FV_F, FV_F + 3, T_A))
    a("s_branch L_f_fpchk")
    a.label("L_f_fpok")
    a("s_lshl_b32 s%d, s%d, 1" % (T_A, T_NBO))
    a("s_add_u32 s%d, s%d, s%d" % (T_A, T_A, T_HALF))
    a("s_lshl_b32 s%d, s%d, 14" % (T_A, T_A))
    a("s_add_u32 s%d, s%d, %d" % (T_A, T_A, WS_WO))
    for i in range(16):
        if i and i % 4 == 0:
            a("s_add_u32 s%d, s%d, 4096" % (T_A, T_A))
        a("buffer_load_dwordx4 %s, v%d, s[20:23], s%d offen offset:%d sc1" % (vr(FV_WO + 4 * i), FV_LX, T_A, (i % 4) * 1024))
    srd(a, 12, 10, 2048 * 1024)
    a("v_and_b32 v%d, 31, v%d" % (V_T, V_LANE))
    a("v_lshlrev_b32 v%d, 10, v%d" % (V_T, V_T))
    a("v_lshrrev_b32 v%d, 5, v%d" % (V_T + 1, V_LANE))
    a("v_lshl_add_u32 v%d, v%d, 3, v%d" % (V_T, V_T + 1, V_T))
    a("s_lshl_b32 s%d, s%d, 15" % (T_A, T_TBO))
    a("s_lshl_b32 s%d, s%d, 6" % (T_B, T_NBO))
    a("s_add_u32 s%d, s%d, s%d" % (T_A, T_A, T_B))
    a("s_lshl_b32 s%d, s%d, 5" % (T_B, T_HALF))
    a("s_add_u32 s%d, s%d, s%d" % (T_A, T_A, T_B))
    for q in range(2):
        a("buffer_load_dwordx2 %s, v%d, s[12:15], s%d offen offset:%d" % (vr(FV_XR + 2 * q, 2), V_T, T_A, q * 16))
    a("s_branch L_f_syncret")


def fused_tail(a, E):
    S_WAVE, S_H, S_QB = E["S_WAVE"], E["S_H"], E["S_QB"]
    V_LANE, V_L16 = 1, 2
    V_T = 3
    S_MASK, S_W3, S_M0W, S_SW, S_SH, S_M0H = 43, 44, 45, 46, 47, 48
    a.ts("k2")
    a("s_setprio 0")
    for k in ("S_SYNC", "S_TYPE", "S_PASS", "S_NT", "S_ITER"):
        a("s_mov_b32 s%d, 0" % E[k])
    a("s_mov_b32 s%d, 0xffff0000" % S_MASK)
    a("s_and_b32 s%d, s%d, 3" % (S_W3, S_WAVE))
    a("s_lshl_b32 s%d, s%d, 2" % (T_A, S_QB))
    a("s_lshr_b32 s%d, s%d, 1" % (T_B, S_WAVE))
    a("s_add_u32 s%d, s%d, s%d" % (T_A, T_A, T_B))
    a("s_lshl_b32 s%d, s%d, 8" % (T_A, T_A))
    a("s_and_b32 s%d, s%d, 1" % (T_B, S_WAVE))
    a("s_lshl_b32 s%d, s%d, 5" % (T_B, T_B))
    a("s_add_u32 s%d, s%d, s%d" % (T_B, T_B, S_H))
    a("s_lshl_b32 s%d, s%d, 2" % (T_B, T_B))
    a("s_add_u32 s%d, s%d, s%d" % (T_B, T_B, T_A))
    a("s_add_u32 s%d, s%d, %d" % (T_B, T_B, FL_A))
    a("s_mul_i32 s%d, s%d, 7168" % (S_M0W, S_W3))
    a("s_mul_i32 s%d, s%d, %d" % (S_SW, T_CGF, 32 * 7 * 1024))
    a("s_add_u32 s%d, s%d, s%d" % (S_SW, S_SW, S_M0W))
    a("s_add_u32 s%d, s%d, %d" % (S_SW, S_SW, WS_GU))

    def w_stage(st):
        slot = st % 4
        a("s_add_u32 s%d, s%d, %d" % (T_C, S_SW, st * SLOT))
        a("s_add_u32 m0, s%d, %d" % (S_M0W, slot * SLOT))
        a("s_add_u32 s%d, s%d, 4096" % (T_D, T_C))
        for q in range(4):
            a("buffer_load_dwordx4 v%d, s[20:23], s%d offen offset:%d sc1 lds" % (V_L16, T_C, q * 1024))
        a("s_add_u32 m0, m0, 4096")
        a("s_nop 0")
        for q in range(3):
            a("buffer_load_dwordx4 v%d, s[20:23], s%d offen offset:%d sc1 lds" % (V_L16, T_D, q * 1024))

    a("s_waitcnt vmcnt(0)")
    set_flag(a, T_B, V_T)
    a("s_barrier")
    OB, XS = 86016, 57344
    a("s_cmp_ge_u32 s%d, 4" % S_WAVE)
    a("s_cbranch_scc1 L_f_a1")
    w_stage(0)
    w_stage(1)
    a("s_branch L_f_a2")
    a.label("L_f_a1")
    a("s_lshl_b32 s%d, s%d, 8" % (T_A, T_RB64))
    a("s_lshl_b32 s%d, s%d, 6" % (T_B, S_W3))
    a("s_add_u32 s%d, s%d, s%d" % (T_A, T_A, T_B))
    a("s_add_u32 s%d, s%d, %d" % (T_A, T_A, FL_A))
    a("s_lshl_b32 s%d, s%d, 2" % (T_C, T_RB64))
    a("s_add_u32 s%d, s%d, s%d" % (T_C, T_C, S_W3))
    a("s_lshl_b32 s%d, s%d, 14" % (T_C, T_C))
    a("s_add_u32 s%d, s%d, %d" % (T_C, T_C, WS_O))
    a("s_lshl_b32 s%d, s%d, 14" % (T_B, S_W3))
    a("s_add_u32 m0, s%d, %d" % (T_B, OB))
    poll(a, "fa", T_A, 16, FV_L4, FV_F + 2)
    a.ts("k2")
    for j in range(16):
        if j and j % 4 == 0:
            a("s_add_u32 m0, m0, 4096")
            a("s_add_u32 s%d, s%d, 4096" % (T_C, T_C))
        a("buffer_load_dwordx4 v%d, s[20:23], s%d offen offset:%d sc1 lds" % (V_L16, T_C, (j % 4) * 1024))
    a.label("L_f_a2")

    V_OA = 12
    V_OF = [16 + 4 * i for i in range(8)]
    V_AB = 64
    V_U = 80
    V_HK = 16
    a("s_bfe_u32 s%d, s%d, 0x10001" % (T_B, S_WAVE))
    a("s_lshl_b32 s%d, s%d, 1" % (T_B, T_B))
    a("s_add_u32 s%d, s%d, s%d" % (T_B, T_B, T_HALF))
    a("s_lshl_b32 s%d, s%d, 14" % (T_B, T_B))
    a("s_add_u32 s%d, s%d, %d" % (T_B, T_B, OB))
    a("v_add_u32 v%d, s%d, v%d" % (V_OA, T_B, V_L16))
    a("s_xor_b32 s%d, s%d, 4" % (T_B, S_WAVE))
    a("s_lshl_b32 s%d, s%d, 11" % (T_B, T_B))
    a("s_add_u32 s%d, s%d, %d" % (T_B, T_B, XS))
    a("v_add_u32 v%d, s%d, v%d" % (V_OA + 1, T_B, V_L16))
    a("s_lshl_b32 s%d, s%d, 11" % (T_B, S_WAVE))
    a("s_add_u32 s%d, s%d, %d" % (T_B, T_B, XS))
    a("v_add_u32 v%d, s%d, v%d" % (V_OA + 2, T_B, V_L16))
    for d in range(4):
        a("v_lshlrev_b32 v%d, 16, v%d" % (V_U + 2 * d, FV_XR + d))
        a("v_and_b32 v%d, s%d, v%d" % (V_U + 2 * d + 1, S_MASK, FV_XR + d))
    a("s_cmp_lt_u32 s%d, 4" % S_WAVE)
    a("s_cbranch_scc1 L_f_b3")
    a("s_waitcnt vmcnt(0)")
    a.label("L_f_b3")
    a("s_barrier")
    a.ts("k2")
    for i in range(8):
        a("ds_read_b128 %s, v%d offset:%d" % (vr(V_OF[i]), V_OA, i * 1024))
    for i in range(16):
        a("s_waitcnt lgkmcnt(%d)" % (7 if i < 8 else 15 - i))
        a("v_mfma_f32_32x32x16_bf16 %s, %s, %s, %s" % (vr(V_AB, 16), vr(FV_WO + 4 * i), vr(V_OF[i % 8]), "0" if i == 0 else vr(V_AB, 16)))
        if i < 8:
            a("ds_read_b128 %s, v%d offset:%d" % (vr(V_OF[i]), V_OA, (i + 8) * 1024))
    a("s_lshl_b32 s%d, s%d, 4" % (T_A, T_TBO))
    a("s_add_u32 s%d, s%d, s%d" % (T_A, T_A, T_NBO))
    a("s_lshl_b32 s%d, s%d, 1" % (T_A, T_A))
    a("s_add_u32 s%d, s%d, s%d" % (T_A, T_A, T_HALF))
    a("s_lshr_b32 s%d, s%d, 1" % (T_B, T_A))
    a("s_lshl_b32 s%d, s%d, 9" % (T_B, T_B))
    a("s_lshl_b32 s%d, s%d, 3" % (T_C, T_HALF))
    a("s_add_u32 s%d, s%d, s%d" % (T_B, T_B, T_C))
    a("s_add_u32 s%d, s%d, %d" % (T_B, T_B, WS_ST))
    a("s_lshl_b32 s%d, s%d, 10" % (T_A, T_A))
    a("s_add_u32 s%d, s%d, %d" % (T_A, T_A, WS_H))
    a("v_and_b32 v%d, 31, v%d" % (V_T, V_LANE))
    a("v_lshlrev_b32 v%d, 4, v%d" % (V_T, V_T))
    a("s_nop 1")
    for q in range(2):
        a("ds_write_b128 v%d, %s offset:%d" % (V_OA + 1, vr(V_AB + 8 + 4 * q), q * 1024))
    for i in range(8):
        a("v_add_f32 v%d, v%d, v%d" % (V_AB + i, V_AB + i, V_U + i))
    a("s_waitcnt lgkmcnt(0)")
    a("s_barrier")
    for q in range(2):
        a("ds_read_b128 %s, v%d offset:%d" % (vr(V_U + 4 * q), V_OA + 2, q * 1024))
    a("s_waitcnt lgkmcnt(0)")
    for i in range(8):
        a("v_add_f32 v%d, v%d, v%d" % (V_AB + i, V_AB + i, V_U + i))
    for i in range(4):
        a("v_cvt_pk_bf16_f32 v%d, v%d, v%d" % (V_HK + i, V_AB + 2 * i, V_AB + 2 * i + 1))
    hstore(a, "h", ["buffer_store_dwordx4 %s, v%d, s[20:23], s%d offen" % (vr(V_HK), V_L16, T_A)])
    for d in range(4):
        a("v_lshlrev_b32 v%d, 16, v%d" % (V_U + 2 * d, V_HK + d))
        a("v_and_b32 v%d, s%d, v%d" % (V_U + 2 * d + 1, S_MASK, V_HK + d))
    S1, S2 = V_AB, V_AB + 1
    a("v_add_f32 v%d, v%d, v%d" % (S1, V_U, V_U + 1))
    a("v_mul_f32 v%d, v%d, v%d" % (S2, V_U, V_U))
    a("v_fmac_f32 v%d, v%d, v%d" % (S2, V_U + 1, V_U + 1))
    for i in range(2, 8):
        a("v_add_f32 v%d, v%d, v%d" % (S1, S1, V_U + i))
        a("v_fmac_f32 v%d, v%d, v%d" % (S2, V_U + i, V_U + i))
    sum_halves(a, S1, V_AB + 2)
    sum_halves(a, S2, V_AB + 3)
    hstore(a, "st", ["buffer_store_dwordx2 %s, v%d, s[20:23], s%d offen" % (vr(S1, 2), V_T, T_B)])
    a("s_lshl_b32 s%d, s%d, 4" % (T_B, T_TBO))
    a("s_add_u32 s%d, s%d, s%d" % (T_B, T_B, T_NBO))
    a("s_lshl_b32 s%d, s%d, 1" % (T_B, T_B))
    a("s_add_u32 s%d, s%d, s%d" % (T_B, T_B, T_HALF))
    a("s_lshl_b32 s%d, s%d, 2" % (T_B, T_B))
    a("s_add_u32 s%d, s%d, %d" % (T_B, T_B, FL_B))
    a("v_mov_b32 v%d, v%d" % (14, FV_LX))
    a("v_mov_b32 v%d, v%d" % (15, FV_L4))
    V_LX, V_L4 = 14, 15
    a("s_waitcnt vmcnt(0)")
    set_flag(a, T_B, V_T, "fb")
    a("s_barrier")
    a.ts("k2")
    HR = 114688
    a("s_lshl_b32 s%d, s%d, 2" % (T_A, T_RB128))
    a("s_add_u32 s%d, s%d, s%d" % (T_A, T_A, S_W3))
    a("s_lshl_b32 s%d, s%d, 15" % (S_SH, T_A))
    a("s_add_u32 s%d, s%d, %d" % (S_SH, S_SH, WS_H))
    a("s_lshl_b32 s%d, s%d, 12" % (S_M0H, S_W3))
    a("s_add_u32 s%d, s%d, %d" % (S_M0H, S_M0H, HR))

    def h_stage(st):
        a("s_add_u32 m0, s%d, %d" % (S_M0H, (st % 3) * 16384))
        a("s_add_u32 s%d, s%d, %d" % (T_C, S_SH, st * 4096))
        for q in range(4):
            a("buffer_load_dwordx4 v%d, s[20:23], s%d offen offset:%d sc1 lds" % (V_L16, T_C, q * 1024))

    a("s_cmp_ge_u32 s%d, 4" % S_WAVE)
    a("s_cbranch_scc1 L_f_ccomp")
    w_stage(2)
    w_stage(3)
    V_WD = 144
    V_WP = 32
    S_KQ = 50
    a("s_lshr_b32 s%d, s%d, 1" % (S_KQ, S_WAVE))
    a("s_lshl_b32 s%d, s%d, 2" % (T_A, T_NBO))
    a("s_add_u32 s%d, s%d, s%d" % (T_A, T_A, S_KQ))
    a("s_mul_i32 s%d, s%d, %d" % (T_A, T_A, 28 * 1024))
    a("s_add_u32 s%d, s%d, %d" % (T_A, T_A, WS_WD))
    a("s_add_u32 s%d, s%d, %d" % (T_B, T_A, 56 * 1024))
    a("v_xor_b32 v%d, 0x100, v%d" % (V_T, V_L16))
    a("s_mul_i32 s%d, s%d, %d" % (T_M, S_W3, 28 * 1024))
    a("v_add_u32 v%d, s%d, v%d" % (V_T + 1, T_M, V_L16))

    def wd_loads(i0, i1):
        for i in range(i0, i1):
            if i and i % 4 == 0:
                a("s_add_u32 s%d, s%d, 4096" % (T_A, T_A))
            a("buffer_load_dwordx4 %s, v%d, s[20:23], s%d offen offset:%d sc1" % (vr(V_WD + 4 * i), V_LX, T_A, (i % 4) * 1024))

    log = ["W0"] * 7 + ["W1"] * 7 + ["W2"] * 7 + ["W3"] * 7
    wd_plan = {5: 8, 6: 12, 7: 8}
    nwd = 0
    for j in range(8):
        last = max(i for i, t in enumerate(log) if t in ("W%d" % j, "h%d" % j))
        n = len(log) - 1 - last
        assert n <= 63
        a("s_waitcnt vmcnt(%d)" % n)
        a("s_barrier")
        if j >= 1:
            if j + 2 <= 7:
                h_stage(j + 2)
                log += ["h%d" % (j + 2)] * 4
            if j + 3 <= 7:
                w_stage(j + 3)
                log += ["W%d" % (j + 3)] * 7
        k = wd_plan.get(j, 0)
        wd_loads(nwd, nwd + k)
        log += ["d"] * k
        nwd += k
    assert nwd == 28
    a("s_mov_b32 m0, s%d" % T_M)
    a("s_barrier")
    for i in range(28):
        if i and i % 4 == 0:
            a("s_add_u32 m0, m0, 4096")
            a("s_add_u32 s%d, s%d, 4096" % (T_B, T_B))
        a("buffer_load_dwordx4 v%d, s[20:23], s%d offen offset:%d sc1 lds" % (V_T, T_B, (i % 4) * 1024))
    a("s_waitcnt vmcnt(0)")
    a("s_barrier")
    a("s_branch L_f_d1")
    a.label("L_f_ccomp")
    V_AW, V_AH = 12, 13
    V_ST = 20
    V_CSL = 52
    V_H = [80, 84]
    V_W = [88, 116]
    V_ACC = [144 + 16 * b for b in range(7)]
    V_TMP = 88
    S_TB = 49
    a("s_lshl_b32 s%d, s%d, 2" % (S_TB, T_RB128))
    a("s_add_u32 s%d, s%d, s%d" % (S_TB, S_TB, S_W3))
    a("v_mov_b32 v%d, v%d" % (V_AW, V_L16))
    a("s_lshl_b32 s%d, s%d, 12" % (T_A, S_W3))
    a("s_add_u32 s%d, s%d, %d" % (T_A, T_A, HR))
    a("v_add_u32 v%d, s%d, v%d" % (V_AH, T_A, V_L16))
    a("v_and_b32 v%d, 31, v%d" % (V_T, V_LANE))
    a("v_lshlrev_b32 v%d, 4, v%d" % (V_T, V_T))
    a("v_lshrrev_b32 v%d, 5, v%d" % (V_T + 1, V_LANE))
    a("v_lshl_add_u32 v%d, v%d, 12, v%d" % (V_T, V_T + 1, V_T))
    a("s_mul_i32 s%d, s%d, 7168" % (T_C, T_CGF))
    a("s_add_u32 s%d, s%d, %d" % (T_C, T_C, WS_CS))
    a("s_add_u32 s%d, s%d, 4096" % (T_D, T_C))
    for blk in range(7):
        a("buffer_load_dwordx4 %s, v%d, s[20:23], s%d offen offset:%d sc1" % (vr(V_CSL + 4 * blk), V_L16, T_C if blk < 4 else T_D, (blk % 4) * 1024))
    a("s_lshl_b32 s%d, s%d, 7" % (T_B, S_TB))
    a("s_add_u32 s%d, s%d, %d" % (T_B, T_B, FL_B))
    poll(a, "fb", T_B, 32, V_L4, 9)
    for st in range(3):
        h_stage(st)
    a("s_lshl_b32 s%d, s%d, 13" % (T_A, S_TB))
    a("s_add_u32 s%d, s%d, %d" % (T_A, T_A, WS_ST))
    cur_base = [0]
    lds = Lds(a)

    def reads(P):
        st, pos = P // 4, P % 4
        slot = st % 4
        base, imm = (slot // 2) * 2 * SLOT, (slot % 2) * SLOT
        out = []
        b = P % 2
        out.append(("ds_read_b128 %s, v%d offset:%d" % (vr(V_H[b]), V_AH, (st % 3) * 16384 + pos * 1024), ("h", P)))
        if base != cur_base[0]:
            d = base - cur_base[0]
            out.append(("v_add_u32 v%d, %d, v%d" % (V_AW, d, V_AW) if d > 0 else "v_subrev_u32 v%d, %d, v%d" % (V_AW, -d, V_AW), None))
            cur_base[0] = base
        for blk in range(7):
            out.append(("ds_read_b128 %s, v%d offset:%d" % (vr(V_W[b] + 4 * blk), V_AW, imm + (pos * 7 + blk) * 1024), ("w", P, blk)))
        return out

    side = {}
    g = []
    for i in range(8):
        g.append("buffer_load_dwordx4 %s, v%d, s[20:23], s%d offen offset:%d sc1" % (vr(V_ST + 4 * i), V_T, T_A, i * 512))
    side[0], side[1] = g[:4], g[4:]
    sa = Asm()
    S1, S2 = V_T + 1, V_T + 2
    V_MU, V_RS = V_T + 2, V_T + 4
    V_VAR, V_C1, V_C2 = 6, 8, 10
    sa("s_waitcnt vmcnt(0)")
    sa("v_add_f32 v%d, v%d, v%d" % (S1, V_ST, V_ST + 2))
    sa("v_add_f32 v%d, v%d, v%d" % (S2, V_ST + 1, V_ST + 3))
    for i in range(2, 16):
        sa("v_add_f32 v%d, v%d, v%d" % (S1, S1, V_ST + 2 * i))
        sa("v_add_f32 v%d, v%d, v%d" % (S2, S2, V_ST + 2 * i + 1))
    sum_halves(sa, S1, V_T + 4)
    sum_halves(sa, S2, V_T + 4)
    sa("v_mul_f32 v%d, 0x%x, v%d" % (V_VAR, f32bits(1.0 / 512), S2))
    sa("v_mul_f32 v%d, 0x%x, v%d" % (V_MU, f32bits(1.0 / 512), S1))
    sa("v_fma_f32 v%d, -v%d, v%d, v%d" % (V_VAR, V_MU, V_MU, V_VAR))
    sa("v_max_f32 v%d, 0, v%d" % (V_VAR, V_VAR))
    sa("v_add_f32 v%d, 0x%x, v%d" % (V_VAR, f32bits(1e-5), V_VAR))
    sa("v_rsq_f32 v%d, v%d" % (V_RS, V_VAR))
    sa("v_sub_f32 v%d, 0, v%d" % (V_MU, V_MU))
    VB = V_ST
    split_hi_lo_B(sa, V_MU, VB, V_T, S_MASK)
    c1 = -2.0 * math.sqrt(2.0 / math.pi) * math.log2(math.e)
    sa("v_mul_f32 v%d, 0x%x, v%d" % (V_C1, f32bits(c1), V_RS))
    sa("v_mul_f32 v%d, v%d, v%d" % (V_C2, V_RS, V_RS))
    sa("v_mul_f32 v%d, v%d, v%d" % (V_C2, V_C2, V_C1))
    sa("v_mul_f32 v%d, 0x%x, v%d" % (V_C2, f32bits(0.044715), V_C2))
    VA = V_CSL
    for blk in range(7):
        c = V_CSL + 4 * blk
        a("v_add_f32 v%d, v%d, v%d" % (c, c, c + 1))
        a("v_add_f32 v%d, v%d, v%d" % (c + 2, c + 2, c + 3))
        a("v_add_f32 v%d, v%d, v%d" % (V_T + 2, c, c + 2))
        split_hi_lo_A(a, V_T + 2, c, V_T + 1, S_MASK)
    sl = [x.strip() for x in sa.L]
    per = 10
    for k in range((len(sl) + per - 1) // per):
        side[10 + k] = sl[per * k:per * (k + 1)]
    P_R1 = 10 + (len(sl) + per - 1) // per + 1
    assert P_R1 <= 30
    side[30] = ["s_mul_i32 s%d, s%d, 112" % (T_A, S_TB), "s_mul_i32 s%d, s%d, 7" % (T_B, T_CGF), "s_add_u32 s%d, s%d, s%d" % (T_A, T_A, T_B),
                "s_lshl_b32 s%d, s%d, 10" % (T_A, T_A), "s_add_u32 s%d, s%d, %d" % (T_A, T_A, WS_A), "s_add_u32 s%d, s%d, 4096" % (T_B, T_A)]
    a("s_waitcnt vmcnt(8)")
    a("s_barrier")
    a.ts("k2")
    for t, tag in reads(0):
        lds.op(t, tag) if tag else a(t)
    for P in range(32):
        st, pos = P // 4, P % 4
        b = P % 2
        rd = reads(P + 1) if P < 31 else []
        sd = list(side.get(P, []))
        bar_at = 3 if (pos == 3 and P < 31) else -1
        first_rd = bar_at if bar_at >= 0 else 0
        for blk in range(7):
            if blk == bar_at:
                lds.drain()
                if st == 0:
                    a("s_waitcnt vmcnt(12)")
                if st == 1:
                    a("s_waitcnt vmcnt(8)")
                a("s_barrier")
            lds.need(("h", P), ("w", P, blk))
            a("v_mfma_f32_32x32x16_bf16 %s, %s, %s, %s" % (vr(V_ACC[blk], 16), vr(V_W[b] + 4 * blk), vr(V_H[b]), "0" if P == 0 else vr(V_ACC[blk], 16)))
            if blk >= first_rd:
                nrd = 3 if bar_at >= 0 else 2
                for _ in range(nrd):
                    if rd:
                        t, tag = rd.pop(0)
                        lds.op(t, tag) if tag else a(t)
            for _ in range(2):
                if sd:
                    a(sd.pop(0))
        assert not rd and not sd
        if P == P_R1:
            for blk in range(7):
                a("v_mfma_f32_32x32x16_bf16 %s, %s, %s, %s" % (vr(V_ACC[blk], 16), vr(VA + 4 * blk), vr(VB), vr(V_ACC[blk], 16)))
    a.ts("k2")
    a("s_barrier")
    a("s_nop 4")
    bc = lambda r: "v[%d:%d]" % (r, r + 1)
    for blk in range(7):
        G = V_ACC[blk]
        Uu = G + 8
        T = V_TMP + 8 * (blk % 2)
        for i in range(0, 8, 2):
            a("v_pk_mul_f32 %s, %s, %s" % (bc(T + i), bc(G + i), bc(G + i)))
        for i in range(0, 8, 2):
            a("v_pk_fma_f32 %s, %s, %s, %s op_sel_hi:[1,0,0]" % (bc(T + i), bc(T + i), bc(V_C2), bc(V_C1)))
        for i in range(0, 8, 2):
            a("v_pk_mul_f32 %s, %s, %s" % (bc(T + i), bc(T + i), bc(G + i)))
        for i in range(8):
            a("v_exp_f32 v%d, v%d" % (T + i, T + i))
        for i in range(0, 8, 2):
            a("v_pk_mul_f32 %s, %s, %s" % (bc(G + i), bc(G + i), bc(Uu + i)))
        for i in range(0, 8, 2):
            a("v_pk_fma_f32 %s, %s, %s, %s op_sel_hi:[1,0,0]" % (bc(T + i), bc(T + i), bc(V_VAR), bc(V_VAR)))
        for i in range(8):
            a("v_rcp_f32 v%d, v%d" % (T + i, T + i))
        a("s_nop 0")
        for i in range(0, 8, 2):
            a("v_pk_mul_f32 %s, %s, %s" % (bc(G + i), bc(G + i), bc(T + i)))
        o = V_TMP + 16 + 4 * blk
        for i in range(4):
            a("v_cvt_pk_bf16_f32 v%d, v%d, v%d" % (o + i, G + 2 * i, G + 2 * i + 1))
    hstore(a, "act", ["buffer_store_dwordx4 %s, v%d, s[20:23], s%d offen offset:%d" % (vr(V_TMP + 16 + 4 * blk), V_L16, T_A if blk < 4 else T_B, (blk % 4) * 1024) for blk in range(7)])
    a.ts("k2")
    a("s_lshl_b32 s%d, s%d, 4" % (T_B, S_TB))
    a("s_add_u32 s%d, s%d, s%d" % (T_B, T_B, T_CGF))
    a("s_lshl_b32 s%d, s%d, 2" % (T_B, T_B))
    a("s_add_u32 s%d, s%d, %d" % (T_B, T_B, FL_C))
    a("s_lshr_b32 s%d, s%d, 1" % (S_KQ, S_WAVE))
    a("s_mul_i32 s%d, s%d, %d" % (T_M, S_W3, 28 * 1024))
    a("v_add_u32 v%d, s%d, v%d" % (V_T + 2, T_M, V_L16))
    a("s_waitcnt vmcnt(0)")
    set_flag(a, T_B, V_T, "fc")
    a("s_barrier")
    for i in range(28):
        a("ds_read_b128 %s, v%d offset:%d" % (vr(V_WD + 4 * i), V_T + 2, i * 1024))
        if i % 8 == 7:
            a("s_waitcnt lgkmcnt(4)")
    a("s_waitcnt lgkmcnt(0)")
    a.label("L_f_d1")
    V_AA = [12, 13]
    V_AF = [[32 + 32 * b + 4 * i for i in range(8)] for b in range(2)]
    V_AD = [96, 112]
    S_SA, S_M0A = 45, 46
    a("s_and_b32 s%d, s%d, 1" % (T_A, S_WAVE))
    a("s_lshl_b32 s%d, s%d, 1" % (T_B, T_RB64))
    a("s_add_u32 s%d, s%d, s%d" % (T_A, T_A, T_B))
    a("s_lshl_b32 s%d, s%d, 2" % (T_A, T_A))
    a("s_add_u32 s%d, s%d, s%d" % (T_A, T_A, S_KQ))
    a("s_mul_i32 s%d, s%d, %d" % (S_SA, T_A, 28 * 1024))
    a("s_add_u32 s%d, s%d, %d" % (S_SA, S_SA, WS_A))
    a("s_lshl_b32 s%d, s%d, 12" % (S_M0A, S_WAVE))
    for ai in range(2):
        a("s_and_b32 s%d, s%d, 1" % (T_A, S_KQ))
        a("s_xor_b32 s%d, s%d, %d" % (T_A, T_A, ai))
        a("s_lshl_b32 s%d, s%d, 1" % (T_B, S_KQ))
        a("s_add_u32 s%d, s%d, s%d" % (T_A, T_A, T_B))
        a("s_lshl_b32 s%d, s%d, 12" % (T_A, T_A))
        a("v_add_u32 v%d, s%d, v%d" % (V_AA[ai], T_A, V_L16))

    def a_stage(j):
        out = ["s_add_u32 m0, s%d, %d" % (S_M0A, (j % 5) * 32768), "s_add_u32 s%d, s%d, %d" % (T_C, S_SA, j * 4096)]
        for q in range(4):
            out.append("buffer_load_dwordx4 v%d, s[20:23], s%d offen offset:%d%s lds" % (V_L16, T_C, q * 1024, LSC))
        return out

    a("s_cmp_lg_u32 s%d, 0" % S_WAVE)
    a("s_cbranch_scc1 L_f_d2")
    a("s_lshl_b32 s%d, s%d, 7" % (T_A, T_RB64))
    a("s_add_u32 s%d, s%d, %d" % (T_A, T_A, FL_C))
    poll(a, "fc", T_A, 32, V_L4, 9)
    a.label("L_f_d2")
    a("s_barrier")
    a.ts("k2")
    a.ts("kd_")
    DD = int(os.environ.get('DD', 2))
    for l in a_stage(0):
        a(l)
    a("s_barrier")
    if "d" in WBL2:
        a("s_lshl_b32 s%d, s%d, 3" % (T_A, S_MEM))
        a("s_add_u32 s%d, s%d, s%d" % (T_A, T_A, S_WAVE))
        a("s_cmp_lg_u32 s%d, 5" % T_A)
        a("s_cbranch_scc1 L_f_nowb2")
        a("buffer_wbl2 sc1")
        a.label("L_f_nowb2")
    for jj in range(1, DD):
        for l in a_stage(jj):
            a(l)
    cb = 0

    def d_mfmas(j):
        F = V_AF[j % 2]
        return ["v_mfma_f32_32x32x16_bf16 %s, %s, %s, %s" % (vr(V_AD[ai], 16), vr(V_WD + 4 * (4 * j + q)), vr(F[q * 2 + ai]), "0" if (j == 0 and q == 0) else vr(V_AD[ai], 16))
                for q in range(4) for ai in range(2)]

    for j in range(7):
        slot = j % 5
        base, imm = (slot // 2) * 65536, (slot % 2) * 32768
        if base != cb:
            d = base - cb
            for r in V_AA:
                a("v_add_u32 v%d, %d, v%d" % (r, d, r) if d > 0 else "v_subrev_u32 v%d, %d, v%d" % (r, -d, r))
            cb = base
        a("s_waitcnt vmcnt(%d) lgkmcnt(0)" % (4 * (min(j + DD - 1, 6) - j)))
        a("s_barrier")
        a.ts("kd_")
        F = V_AF[j % 2]
        stg = a_stage(j + DD) if j + DD <= 6 else []
        for l in stg[:3]:
            a(l)
        for q in range(4):
            for ai in range(2):
                a("ds_read_b128 %s, v%d offset:%d" % (vr(F[q * 2 + ai]), V_AA[ai], imm + q * 1024))
        rest = stg[3:]
        for k, m in enumerate(d_mfmas(j)):
            a("s_waitcnt lgkmcnt(%d)" % (7 - k))
            if DIAG != "dnomfma":
                a(m)
            if rest:
                a(rest.pop(0))
    a.ts("kd_")
    XD = 65536
    for x in range(1, 4):
        a("s_xor_b32 s%d, s%d, %d" % (T_A, S_WAVE, x << 1))
        a("s_mul_i32 s%d, s%d, 6144" % (T_A, T_A))
        a("s_add_u32 s%d, s%d, %d" % (T_A, T_A, XD + (x - 1) * 2048))
        a("v_add_u32 v%d, s%d, v%d" % (V_T + x, T_A, V_L16))
    a("s_mul_i32 s%d, s%d, 6144" % (T_A, S_WAVE))
    a("s_add_u32 s%d, s%d, %d" % (T_A, T_A, XD))
    a("v_add_u32 v%d, s%d, v%d" % (V_T, T_A, V_L16))
    src = {1: V_AD[1], 2: V_AD[0] + 8, 3: V_AD[1] + 8}
    for x in (2, 1, 3):
        for q in range(2):
            a("ds_write_b128 v%d, %s offset:%d" % (V_T + x, vr(src[x] + 4 * q), q * 1024))
    U = 32
    for d in range(4):
        a("v_lshlrev_b32 v%d, 16, v%d" % (U + 2 * d, V_HK + d))
        a("v_and_b32 v%d, s%d, v%d" % (U + 2 * d + 1, S_MASK, V_HK + d))
    for i in range(8):
        a("v_add_f32 v%d, v%d, v%d" % (V_AD[0] + i, V_AD[0] + i, U + i))
    srd(a, 12, 16, 2048 * 1024)
    a("v_and_b32 v%d, 31, v%d" % (V_T + 4, V_LANE))
    a("v_lshlrev_b32 v%d, 10, v%d" % (V_T + 4, V_T + 4))
    a("v_lshrrev_b32 v%d, 5, v%d" % (V_T + 5, V_LANE))
    a("v_lshl_add_u32 v%d, v%d, 3, v%d" % (V_T + 4, V_T + 5, V_T + 4))
    a("s_lshl_b32 s%d, s%d, 15" % (T_A, T_TBO))
    a("s_lshl_b32 s%d, s%d, 6" % (T_B, T_NBO))
    a("s_add_u32 s%d, s%d, s%d" % (T_A, T_A, T_B))
    a("s_lshl_b32 s%d, s%d, 5" % (T_B, T_HALF))
    a("s_add_u32 s%d, s%d, s%d" % (T_A, T_A, T_B))
    a("s_waitcnt lgkmcnt(0)")
    a("s_barrier")
    a.ts("kd_")
    R = 48
    for k in range(6):
        a("ds_read_b128 %s, v%d offset:%d" % (vr(R + 4 * k), V_T, k * 1024))
    for x in range(3):
        a("s_waitcnt lgkmcnt(%d)" % (4 - 2 * x))
        for i in range(8):
            a("v_add_f32 v%d, v%d, v%d" % (V_AD[0] + i, V_AD[0] + i, R + 8 * x + i))
    for i in range(4):
        a("v_cvt_pk_bf16_f32 v%d, v%d, v%d" % (U + i, V_AD[0] + 2 * i, V_AD[0] + 2 * i + 1))
    for q in range(2):
        a("buffer_store_dwordx2 %s, v%d, s[12:15], s%d offen offset:%d" % (vr(U + 2 * q, 2), V_T + 4, T_A, q * 16))
    a.ts_flush("k2", S_WAVE, V_T)
    a.ts_flush("kd_", S_WAVE, V_T)


FL_1 = WS_FL + 24576
P1_DIST = int(os.environ.get('P1_DIST', 3))
P1_ROT = int(os.environ.get('P1_ROT', 1))


def team_check(a, tag, vl4, vf, preissued=False):
    a("s_lshl_b32 s38, s%d, 5" % S_TEAM)
    a("s_mov_b32 s36, 0")
    if preissued:
        a("s_branch L_tc_%s_w" % tag)
    a.label("L_tc_%s" % tag)
    a("buffer_load_dword v%d, v%d, s[96:99], s38 offen sc1" % (vf, vl4))
    a.label("L_tc_%s_w" % tag)
    a("s_add_u32 s36, s36, 1")
    a("s_waitcnt vmcnt(0)")
    a("v_subrev_u32 v%d, 0x01010101, v%d" % (vf + 1, vf))
    a("v_not_b32 v%d, v%d" % (vf + 2, vf))
    a("v_and_b32 v%d, v%d, v%d" % (vf + 1, vf + 1, vf + 2))
    a("v_and_b32 v%d, 0x80808080, v%d" % (vf + 1, vf + 1))
    a("v_cmp_eq_u32 vcc, 0, v%d" % (vf + 1))
    a("s_cmp_gt_u32 s36, 0x40000")
    a("s_cbranch_scc1 L_tc_%s_d" % tag)
    a("s_and_b32 s37, vcc_lo, 0xff")
    a("s_cmp_lg_u32 s37, 0xff")
    a("s_cbranch_scc1 L_tc_%s" % tag)
    a.label("L_tc_%s_d" % tag)
    a("s_mul_i32 s37, s%d, 0x01010101" % S_XCC)
    a("v_cmp_eq_u32 vcc, s37, v%d" % vf)
    a("s_nop 3")
    a("s_or_b32 s%d, vcc_lo, 0xffffff00" % S_FAST)
    if not FASTPATH:
        a("s_and_b32 s%d, s%d, 0" % (S_FAST, S_FAST))


def phase1(a, E):
    S_WAVE, S_H, S_QB = E["S_WAVE"], E["S_H"], E["S_QB"]
    SL, NS = 32768, 4
    SCR = NS * SL
    SCR_CS, SCR_RS, SCR_BF = SCR, SCR + 1536, SCR + 2048
    S_W3, S_MASK, S_T0, S_T1, S_KX, S_KW, S_SLOT, S_CNT, S_M0X, S_M0W, S_RD, S_SLC = 43, 44, 45, 46, 47, 48, 49, 50, 51, 52, 53, 54
    S_TBI, S_G, S_O0, S_O1, S_O2, S_O3, S_O4 = 55, 56, 57, 58, 59, 60, 61
    V_LANE, V_L16, V_T = 1, 2, 3
    V_DX, V_DW, V_AX, V_AW = 10, 14, 15, 19
    V_SEL, V_SQ = 24, 28
    V_X = [32, 36]
    V_W = [[40, 44, 48], [52, 56, 60]]
    V_ACC = [64, 80, 96]
    V_CS = [112, 116, 120]
    V_TMP = 124
    a("s_and_b32 s%d, s%d, 3" % (S_W3, S_WAVE))
    a("s_mov_b32 s%d, 0xffff0000" % S_MASK)
    a("s_mov_b32 s%d, 0" % S_SLOT)
    a("s_mov_b32 s%d, 0" % S_CNT)

    def x_addr(sbase, sxor):
        a("v_and_b32 v%d, 31, v%d" % (V_T, V_LANE))
        a("v_and_b32 v%d, 3, v%d" % (V_T + 1, V_LANE))
        a("v_lshrrev_b32 v%d, 2, v%d" % (V_T + 2, V_T))
        a("v_lshlrev_b32 v%d, 7, v%d" % (V_T + 2, V_T + 2))
        a("v_lshl_add_u32 v%d, v%d, 10, v%d" % (V_T + 2, V_T + 1, V_T + 2))
        a("v_add_u32 v%d, s%d, v%d" % (V_T + 2, sbase, V_T + 2))
        a("v_lshrrev_b32 v%d, 1, v%d" % (V_T + 3, V_T))
        a("v_and_b32 v%d, 4, v%d" % (V_T + 3, V_T + 3))
        a("v_or_b32 v%d, v%d, v%d" % (V_T + 3, V_T + 3, V_T + 1))
        a("v_lshrrev_b32 v%d, 5, v%d" % (V_T + 4, V_LANE))
        a("v_xor_b32 v%d, v%d, v%d" % (V_T + 3, V_T + 3, V_T + 4))
        if sxor is not None:
            a("v_xor_b32 v%d, s%d, v%d" % (V_T + 3, sxor, V_T + 3))
        for ks in range(4):
            a("v_xor_b32 v%d, %d, v%d" % (V_T + 5, 2 * ks, V_T + 3))
            a("v_lshl_add_u32 v%d, v%d, 4, v%d" % (V_AX + ks, V_T + 5, V_T + 2))

    a("s_cmp_ge_u32 s%d, 4" % S_WAVE)
    a("s_cbranch_scc1 L_p1_comp")
    a("v_lshrrev_b32 v%d, 3, v%d" % (V_T, V_LANE))
    a("v_and_b32 v%d, 7, v%d" % (V_T + 1, V_LANE))
    a("v_lshrrev_b32 v%d, 2, v%d" % (V_T + 2, V_LANE))
    a("v_and_b32 v%d, 4, v%d" % (V_T + 2, V_T + 2))
    a("v_xor_b32 v%d, v%d, v%d" % (V_T + 1, V_T + 1, V_T + 2))
    a("v_mul_u32_u24 v%d, 3072, v%d" % (V_T + 3, V_T))
    a("v_lshl_add_u32 v%d, v%d, 4, v%d" % (V_DW, V_T + 1, V_T + 3))
    a("v_lshlrev_b32 v%d, 12, v%d" % (V_T, V_T))
    for q in range(4):
        a("v_xor_b32 v%d, %d, v%d" % (V_T + 3, q, V_T + 1))
        a("v_lshl_add_u32 v%d, v%d, 4, v%d" % (V_DX + q, V_T + 3, V_T))
    a("s_mul_i32 s%d, s%d, %d" % (S_KW, S_W3, 16 * 3072))
    a("s_lshl_b32 s%d, s%d, 7" % (S_T0, S_TEAM))
    a("s_add_u32 s%d, s%d, s%d" % (S_KW, S_KW, S_T0))
    a("s_mul_i32 s%d, s%d, 6144" % (S_M0W, S_W3))
    a("s_add_u32 s%d, s%d, 8192" % (S_M0W, S_M0W))
    a("s_and_b32 s%d, s%d, 1" % (S_T0, S_W3))
    a("s_lshl_b32 s%d, s%d, 12" % (S_M0X, S_T0))
    a("s_lshl_b32 s%d, s%d, 1" % (S_T1, S_MEM))
    a("s_add_u32 s%d, s%d, s%d" % (S_T1, S_T1, S_T0))
    a("s_lshl_b32 s%d, s%d, 15" % (S_KX, S_T1))
    a("s_waitcnt lgkmcnt(0)")
    srd(a, 12, 10, 2048 * 1024)
    srd(a, 28, 100, 512 * 3072)
    srd(a, 20, 8, WS_SIZE)
    a("s_mov_b32 s98, 256")
    a("s_mov_b32 s99, 0x00020000")

    S_KC, S_OX, S_OW = 55, 56, 57
    if P1_ROT == 2:
        a("s_add_u32 s%d, s%d, s%d" % (S_KC, S_MEM, S_TEAM))
        a("s_and_b32 s%d, s%d, 7" % (S_KC, S_KC))
    elif P1_ROT:
        a("s_and_b32 s%d, s%d, 7" % (S_KC, S_MEM))
    else:
        a("s_mov_b32 s%d, 0" % S_KC)

    def issue(with_x):
        a("s_mul_i32 s%d, s%d, %d" % (S_OW, S_KC, 64 * 3072))
        a("s_add_u32 s%d, s%d, s%d" % (S_OW, S_OW, S_KW))
        if with_x:
            a("s_lshl_b32 s%d, s%d, 7" % (S_OX, S_KC))
            a("s_add_u32 m0, s%d, s%d" % (S_M0X, S_SLOT))
            a("s_add_u32 s%d, s%d, s%d" % (S_OX, S_OX, S_KX))
            for q in range(4 if DIAG not in ("noload", "nox") else 0):
                a("buffer_load_dwordx4 v%d, s[12:15], s%d offen offset:%d lds" % (V_DX + q, S_OX, q * 1024))
        a("s_add_u32 m0, s%d, s%d" % (S_M0W, S_SLOT))
        a("s_add_u32 s%d, s%d, %d" % (S_T0, S_OW, 8 * 3072))
        for sx in range(3 if DIAG != "noload" else 0):
            a("buffer_load_dwordx4 v%d, s[28:31], s%d offen offset:%d lds" % (V_DW, S_OW, sx * 1024))
        a("s_add_u32 m0, m0, 3072")
        a("s_add_u32 s%d, s%d, 1" % (S_KC, S_KC))
        for sx in range(3 if DIAG != "noload" else 0):
            a("buffer_load_dwordx4 v%d, s[28:31], s%d offen offset:%d lds" % (V_DW, S_T0, sx * 1024))
        a("s_and_b32 s%d, s%d, 7" % (S_KC, S_KC))
        a("s_add_u32 s%d, s%d, %d" % (S_SLOT, S_SLOT, SL))
        a("s_and_b32 s%d, s%d, %d" % (S_SLOT, S_SLOT, NS * SL - 1))

    D = P1_DIST
    a("s_cmp_lt_u32 s%d, 2" % S_WAVE)
    a("s_cbranch_scc1 L_p1_stat")
    a.label("L_p1_ld")
    issue(True)
    a("s_add_u32 s%d, s%d, 1" % (S_CNT, S_CNT))
    a("s_cmp_lt_u32 s%d, %d" % (S_CNT, D))
    a("s_cbranch_scc1 L_p1_ld")
    a("s_waitcnt vmcnt(%d)" % (10 * (D - 1)))
    a("s_barrier")
    a("s_cmp_lt_u32 s%d, 8" % S_CNT)
    a("s_cbranch_scc1 L_p1_ld")
    for r in range(D - 2, -1, -1):
        a("s_waitcnt vmcnt(%d)" % (10 * r))
        a("s_barrier")
    a("s_branch L_p1_hx")
    a.label("L_p1_stat")
    for _ in range(D - 1):
        issue(False)
    LX = [64, 68, 72, 76]
    L_SX = 92
    x_addr(S_M0X, None)
    make_sel(a, V_LANE, V_SEL, V_T)
    for r in [V_SQ, V_SQ + 1] + list(range(L_SX, L_SX + 4)):
        a("v_mov_b32 v%d, 0" % r)
    a("s_mov_b32 s%d, %d" % (S_SLC, SL))
    a.label("L_p1_st")
    a("s_cmp_gt_u32 s%d, %d" % (S_CNT, 8 - D))
    a("s_cbranch_scc1 L_p1_st2")
    issue(False)
    a("s_waitcnt vmcnt(%d)" % (6 * (D - 1)))
    a("s_branch L_p1_st3")
    a.label("L_p1_st2")
    if D == 3:
        a("s_cmp_eq_u32 s%d, 7" % S_CNT)
        a("s_cbranch_scc1 L_p1_st4")
        a("s_waitcnt vmcnt(6)")
        a("s_branch L_p1_st3")
        a.label("L_p1_st4")
    a("s_waitcnt vmcnt(0)")
    a.label("L_p1_st3")
    a("s_barrier")
    for ks in range(4):
        a("ds_read_b128 %s, v%d" % (vr(LX[ks]), V_AX + ks))
    a("s_add_u32 s%d, s%d, 1" % (S_CNT, S_CNT))
    a("s_and_b32 s%d, s%d, %d" % (S_T1, S_CNT, NS - 1))
    a("s_cmp_eq_u32 s%d, 0" % S_T1)
    a("s_cselect_b32 s%d, %d, s%d" % (S_RD, -(NS - 1) * SL, S_SLC))
    for ks in range(4):
        a("s_waitcnt lgkmcnt(%d)" % (3 - ks))
        a("v_mfma_f32_16x16x32_bf16 %s, %s, %s, %s" % (vr(L_SX), vr(V_SEL), vr(LX[ks]), vr(L_SX)))
        for d in range(4 if DIAG not in ("nostat", "nocompute") else 0):
            t0, t1 = V_TMP + 2 * (d % 2), V_TMP + 2 * (d % 2) + 1
            a("v_lshlrev_b32 v%d, 16, v%d" % (t0, LX[ks] + d))
            a("v_and_b32 v%d, s%d, v%d" % (t1, S_MASK, LX[ks] + d))
            a("v_fmac_f32 v%d, v%d, v%d" % (V_SQ, t0, t0))
            a("v_fmac_f32 v%d, v%d, v%d" % (V_SQ + 1, t1, t1))
    for r in range(V_AX, V_AX + 4):
        a("v_add_u32 v%d, s%d, v%d" % (r, S_RD, r))
    a("s_cmp_lt_u32 s%d, 8" % S_CNT)
    a("s_cbranch_scc1 L_p1_st")
    a("v_and_b32 v%d, 31, v%d" % (V_T, V_LANE))
    a("v_lshlrev_b32 v%d, 2, v%d" % (V_T, V_T))
    a("v_add_f32 v%d, v%d, v%d" % (V_SQ, V_SQ, V_SQ + 1))
    sum_halves(a, V_SQ, V_SQ + 1)
    V_MU, V_RS = V_SQ + 2, V_SQ + 3
    a("v_mul_f32 v%d, 0x%x, v%d" % (V_MU, f32bits(1.0 / 512), L_SX))
    a("v_mul_f32 v%d, 0x%x, v%d" % (V_SQ, f32bits(1.0 / 512), V_SQ))
    a("v_fma_f32 v%d, -v%d, v%d, v%d" % (V_SQ, V_MU, V_MU, V_SQ))
    a("v_max_f32 v%d, 0, v%d" % (V_SQ, V_SQ))
    a("v_add_f32 v%d, 0x%x, v%d" % (V_SQ, f32bits(1e-5), V_SQ))
    a("v_rsq_f32 v%d, v%d" % (V_RS, V_SQ))
    a("v_sub_f32 v%d, 0, v%d" % (V_MU, V_MU))
    a("s_lshl_b32 s%d, s%d, 7" % (S_T0, S_W3))
    a("s_add_u32 s%d, s%d, %d" % (S_T0, S_T0, SCR_RS))
    a("v_add_u32 v%d, s%d, v%d" % (V_T + 2, S_T0, V_T))
    a("ds_write_b32 v%d, v%d" % (V_T + 2, V_RS))
    split_hi_lo_B(a, V_MU, LX[0], V_T + 4, S_MASK)
    a("s_lshl_b32 s%d, s%d, 9" % (S_T0, S_W3))
    a("s_add_u32 s%d, s%d, %d" % (S_T0, S_T0, SCR_BF))
    a("v_lshl_add_u32 v%d, v%d, 3, s%d" % (V_T + 3, V_LANE, S_T0))
    a("ds_write_b64 v%d, %s" % (V_T + 3, vr(LX[0], 2)))
    a("s_waitcnt lgkmcnt(0)")
    a.label("L_p1_hx")
    a("s_barrier")
    team_check(a, "h", FV_L4, FV_F)
    a("s_cmp_lg_u32 s%d, 0" % S_WAVE)
    a("s_cbranch_scc1 L_p1_done")
    a("s_lshl_b32 s%d, s%d, 9" % (T_A, S_TEAM))
    a("s_bfe_u32 s%d, s%d, 0x10001" % (T_B, S_H))
    a("s_lshl_b32 s%d, s%d, 8" % (T_B, T_B))
    a("s_add_u32 s%d, s%d, s%d" % (T_A, T_A, T_B))
    a("s_add_u32 s%d, s%d, %d" % (T_A, T_A, FL_1))
    poll(a, "f1", T_A, 64, FV_L4, FV_F)
    a("s_branch L_p1_done")
    a.label("L_p1_comp")
    a("s_lshr_b32 s%d, s%d, 1" % (S_TBI, S_W3))
    a("s_and_b32 s%d, s%d, 1" % (S_G, S_W3))
    a("s_lshl_b32 s%d, s%d, 12" % (S_T0, S_TBI))
    a("s_lshl_b32 s%d, s%d, 1" % (S_T1, S_TBI))
    x_addr(S_T0, S_T1)
    a("v_bfe_u32 v%d, v%d, 2, 2" % (V_T, V_LANE))
    a("v_lshlrev_b32 v%d, 7, v%d" % (V_T + 1, V_T))
    a("v_lshrrev_b32 v%d, 1, v%d" % (V_T, V_T))
    a("v_xor_b32 v%d, s%d, v%d" % (V_T, S_G, V_T))
    a("v_lshl_add_u32 v%d, v%d, 6, v%d" % (V_T + 1, V_T, V_T + 1))
    a("v_bfe_u32 v%d, v%d, 4, 1" % (V_T, V_LANE))
    a("v_lshl_add_u32 v%d, v%d, 5, v%d" % (V_T + 1, V_T, V_T + 1))
    a("v_and_b32 v%d, 3, v%d" % (V_T, V_LANE))
    a("v_lshl_add_u32 v%d, v%d, 3, v%d" % (V_T + 1, V_T, V_T + 1))
    a("v_lshrrev_b32 v%d, 5, v%d" % (V_T + 2, V_LANE))
    a("v_mul_u32_u24 v%d, 3072, v%d" % (V_T, V_T + 2))
    a("v_add_u32 v%d, v%d, v%d" % (V_T + 1, V_T + 1, V_T))
    for p in range(2):
        a("s_xor_b32 s%d, s%d, %d" % (S_T0, S_TBI, p))
        a("s_mul_i32 s%d, s%d, 6144" % (S_T0, S_T0))
        a("s_add_u32 s%d, s%d, 8192" % (S_T0, S_T0))
        a("v_add_u32 v%d, s%d, v%d" % (V_AW + p, S_T0, V_T + 1))
    make_sel(a, V_LANE, V_SEL, V_T)
    V_ECW, V_ECS, V_ERS, V_ERV, V_EBF, V_OV = 10, 11, 12, 13, 14, 21
    a("v_and_b32 v%d, 31, v%d" % (V_T, V_LANE))
    a("v_lshlrev_b32 v%d, 2, v%d" % (V_T, V_T))
    a("s_mul_i32 s%d, s%d, 768" % (S_T0, S_G))
    a("s_add_u32 s%d, s%d, %d" % (S_T0, S_T0, SCR_CS))
    a("v_mul_u32_u24 v%d, 384, v%d" % (V_T + 3, V_T + 2))
    a("v_add3_u32 v%d, v%d, v%d, s%d" % (V_ECS, V_T + 3, V_T, S_T0))
    a("s_mul_i32 s%d, s%d, 384" % (S_T1, S_TBI))
    a("s_add_u32 s%d, s%d, s%d" % (S_T0, S_T0, S_T1))
    a("v_add_u32 v%d, s%d, v%d" % (V_ECW, S_T0, V_T))
    a("s_lshl_b32 s%d, s%d, 7" % (S_T0, S_TBI))
    a("s_add_u32 s%d, s%d, %d" % (S_T0, S_T0, SCR_RS))
    a("v_add_u32 v%d, s%d, v%d" % (V_ERS, S_T0, V_T))
    a("v_lshl_add_u32 v%d, v%d, 4, s%d" % (V_ERV, V_T + 2, S_T0))
    a("s_lshl_b32 s%d, s%d, 9" % (S_T0, S_TBI))
    a("s_add_u32 s%d, s%d, %d" % (S_T0, S_T0, SCR_BF))
    a("v_lshl_add_u32 v%d, v%d, 3, s%d" % (V_EBF, V_LANE, S_T0))
    a("v_bfe_u32 v%d, v%d, 4, 1" % (V_T + 1, V_LANE))
    a("v_lshlrev_b32 v%d, 16, v%d" % (V_T + 1, V_T + 1))
    a("v_lshl_add_u32 v%d, v%d, 8, v%d" % (V_T + 1, V_T + 2, V_T + 1))
    a("v_and_b32 v%d, 15, v%d" % (V_T + 2, V_LANE))
    a("v_lshl_add_u32 v%d, v%d, 4, v%d" % (V_OV, V_T + 2, V_T + 1))
    a("s_lshl_b32 s%d, s%d, 1" % (S_T0, S_MEM))
    a("s_add_u32 s%d, s%d, s%d" % (S_T0, S_T0, S_TBI))
    a("s_lshl_b32 s%d, s%d, 10" % (S_T0, S_T0))
    a("s_lshl_b32 s%d, s%d, 1" % (S_T1, S_TEAM))
    a("s_add_u32 s%d, s%d, s%d" % (S_T1, S_T1, S_G))
    a("s_lshl_b32 s%d, s%d, 17" % (S_T1, S_T1))
    a("s_add_u32 s%d, s%d, s%d" % (S_O0, S_T0, S_T1))
    a("s_add_u32 s%d, s%d, 65536" % (S_O1, S_O0))
    a("s_add_u32 s%d, s%d, %d" % (S_O2, S_O0, WS_K))
    a("s_add_u32 s%d, s%d, %d" % (S_O3, S_O1, WS_K))
    a("s_add_u32 s%d, s%d, %d" % (S_O4, S_O0, WS_V))
    VB = V_TMP
    VA = [V_TMP + 4, V_TMP + 8, V_TMP + 12]
    for r in (VB + 2, VB + 3):
        a("v_mov_b32 v%d, 0" % r)
    a("s_waitcnt lgkmcnt(0)")
    srd(a, 20, 8, WS_SIZE)
    a("s_mov_b32 s98, 256")
    a("s_mov_b32 s99, 0x00020000")
    pret = []
    if "q" in PRET:
        for k, so in enumerate((S_O0, S_O1, S_O2, S_O3)):
            pret.append("buffer_load_dwordx4 %s, v%d, s[20:23], s%d offen sc1" % (vr(160 + 4 * k), V_L16, so))
        for half in range(2):
            pret.append("buffer_load_dwordx4 %s, v%d, s[20:23], s%d offen offset:%d sc1" % (vr(176 + 4 * half), V_OV, S_O4, half * 512))
    a("s_cmp_lg_u32 s%d, 4" % S_WAVE)
    a("s_cbranch_scc1 L_p1_nz")
    Z = V_TMP + 20
    a("v_and_b32 v%d, 1, v%d" % (Z, V_LANE))
    a("v_bfe_u32 v%d, v%d, 1, 1" % (Z + 1, V_LANE))
    a("v_bfe_u32 v%d, v%d, 2, 1" % (Z + 2, V_LANE))
    a("v_bfe_u32 v%d, v%d, 1, 2" % (Z + 3, V_LANE))
    a("s_lshl_b32 s36, s%d, 10" % S_QB)
    a("s_lshl_b32 s37, s%d, 2" % S_H)
    a("s_add_u32 s36, s36, s37")
    a("v_lshl_add_u32 v%d, v%d, 8, s36" % (Z + 4, Z + 3))
    a("v_lshl_add_u32 v%d, v%d, 7, v%d" % (Z + 4, Z, Z + 4))
    a("s_and_b32 s36, s%d, 3" % S_MEM)
    a("s_lshl_b32 s37, s%d, 2" % S_TEAM)
    a("s_add_u32 s38, s36, s37")
    a("s_lshl_b32 s36, s38, 8")
    a("s_lshr_b32 s37, s%d, 2" % S_MEM)
    a("s_lshl_b32 s39, s37, 4")
    a("s_add_u32 s36, s36, s39")
    a("s_add_u32 s36, s36, %d" % (FL_B - WS_FL))
    a("v_lshl_add_u32 v%d, v%d, 7, s36" % (Z + 5, Z + 1))
    a("v_lshl_add_u32 v%d, v%d, 3, v%d" % (Z + 5, Z, Z + 5))
    a("v_lshl_add_u32 v%d, v%d, 2, v%d" % (Z + 5, Z + 2, Z + 5))
    a("s_lshr_b32 s36, s38, 1")
    a("s_lshl_b32 s36, s36, 8")
    a("s_lshl_b32 s37, s37, 1")
    a("s_and_b32 s39, s%d, 1" % S_MEM)
    a("s_add_u32 s37, s37, s39")
    a("s_lshl_b32 s37, s37, 2")
    a("s_add_u32 s36, s36, s37")
    a("s_add_u32 s36, s36, %d" % (FL_C - WS_FL))
    a("v_lshl_add_u32 v%d, v%d, 7, s36" % (Z + 6, Z + 1))
    a("v_lshl_add_u32 v%d, v%d, 6, v%d" % (Z + 6, Z, Z + 6))
    a("s_lshl_b32 s36, s2, 4")
    a("s_add_u32 s36, s36, %d" % (FL_P - WS_FL))
    a("v_and_b32 v%d, 3, v%d" % (Z + 7, V_LANE))
    a("v_lshl_add_u32 v%d, v%d, 2, s36" % (Z + 7, Z + 7))
    a("v_cmp_ne_u32 vcc, 0, v%d" % (Z + 2))
    a("s_lshl_b32 s36, s%d, 9" % S_TEAM)
    a("s_lshl_b32 s37, s%d, 3" % S_MEM)
    a("s_add_u32 s36, s36, s37")
    a("s_add_u32 s36, s36, %d" % (FL_1 - WS_FL))
    a("v_cndmask_b32 v%d, v%d, v%d, vcc" % (Z + 6, Z + 6, Z + 7))
    a("v_lshl_add_u32 v%d, v%d, 8, s36" % (Z + 7, Z))
    a("v_lshl_add_u32 v%d, v%d, 2, v%d" % (Z + 7, Z + 1, Z + 7))
    a("v_mov_b32 v%d, v%d" % (V_T, Z + 4))
    for k in range(1, 4):
        a("v_cmp_le_u32 vcc, %d, v%d" % (8 * k, V_LANE))
        a("s_nop 1")
        a("v_cndmask_b32 v%d, v%d, v%d, vcc" % (V_T, V_T, Z + 4 + k))
    a("v_mov_b32 v%d, 0" % (V_T + 1))
    a("s_mov_b32 s%d, %d" % (S_T0, WS_FL))
    a("s_mov_b64 exec, 0xffffffff")
    a("buffer_store_dword v%d, v%d, s[20:23], s%d offen sc1" % (V_T + 1, V_T, S_T0))
    a("s_mov_b64 exec, -1")
    a.label("L_p1_nz")
    cur_base = [0]

    def reads(P):
        st, pos = P // 4, P % 4
        slot = st % NS
        base, imm = (slot // 2) * 2 * SL, (slot % 2) * SL
        out = []
        if base != cur_base[0]:
            d = base - cur_base[0]
            for r in list(range(V_AX, V_AX + 4)) + [V_AW, V_AW + 1]:
                out.append("v_add_u32 v%d, %d, v%d" % (r, d, r) if d > 0 else "v_subrev_u32 v%d, %d, v%d" % (r, -d, r))
            cur_base[0] = base
        b = P % 2
        out.append("ds_read_b128 %s, v%d offset:%d" % (vr(V_X[b]), V_AX + pos, imm))
        for sx in range(3):
            for rd in range(2):
                out.append("ds_read_b64_tr_b16 %s, v%d offset:%d" % (vr(V_W[b][sx] + 2 * rd, 2), V_AW + (pos & 1), imm + (pos & 2) * 6144 + sx * 1024 + rd * 512))
        return out

    a("s_barrier")
    a.ts("k2")
    a.ts("kp_")
    for l in reads(0):
        a(l)
    for P in range(32):
        st, pos = P // 4, P % 4
        b = P % 2
        a("s_waitcnt lgkmcnt(0)")
        if pos == 3 and P < 31:
            if st in (1, 3, 5):
                a.ts("kp_")
            a("s_barrier")
            a.ts("kp_")
        rd = reads(P + 1) if P < 31 else []
        X = vr(V_X[b])
        c = lambda r, n=16: ("0" if P == 0 else vr(r, n))
        m = []
        if pos % 2 == 0:
            for sx in range(3):
                m.append("v_mfma_f32_16x16x32_bf16 %s, %s, %s, %s" % (vr(V_CS[sx]), vr(V_SEL), vr(V_W[b][sx]), c(V_CS[sx], 4)))
        m.append("v_mfma_f32_32x32x16_bf16 %s, %s, %s, %s" % (vr(V_ACC[0], 16), vr(V_W[b][0]), X, c(V_ACC[0])))
        m.append("v_mfma_f32_32x32x16_bf16 %s, %s, %s, %s" % (vr(V_ACC[1], 16), vr(V_W[b][1]), X, c(V_ACC[1])))
        m.append("v_mfma_f32_32x32x16_bf16 %s, %s, %s, %s" % (vr(V_ACC[2], 16), X, vr(V_W[b][2]), c(V_ACC[2])))
        nfirst = 3 if len(rd) <= 8 else 9
        if P == 31:
            rd = ["ds_write_b32 v%d, v%d offset:%d" % (V_ECW, V_CS[sx], sx * 128) for sx in range(3)]
        if P == 20:
            rd = rd + ["s_lshl_b32 s38, s%d, 5" % S_TEAM, "buffer_load_dword v%d, v%d, s[96:99], s38 offen sc1" % (FV_F, FV_L4)]
        if P == 2:
            a("s_cmp_lg_u32 s%d, 4" % S_WAVE)
            a("s_cbranch_scc1 L_p1_np")
            a("s_lshl_b32 s%d, s%d, 5" % (S_T0, S_TEAM))
            a("s_add_u32 s%d, s%d, s%d" % (S_T0, S_T0, S_MEM))
            a("v_mov_b32 v%d, 0" % (V_T + 1))
            a("v_mov_b32 v%d, s%d" % (V_T + 2, S_XCC))
            a("s_mov_b64 exec, 1")
            a("s_waitcnt vmcnt(0)")
            a("buffer_store_byte v%d, v%d, s[96:99], s%d offen sc1" % (V_T + 2, V_T + 1, S_T0))
            a("s_mov_b64 exec, -1")
            a.label("L_p1_np")
        if 4 <= P < 4 + len(pret):
            rd = rd + [pret[P - 4]]
        for l in rd[:nfirst]:
            a(l)
        for l in interleave(m, rd[nfirst:], per=2):
            a(l)
    a.ts("k2")
    a("s_waitcnt lgkmcnt(0)")
    a("s_barrier")
    a.ts("kp_")
    VC = V_TMP + 16
    V_RS = V_TMP + 22
    V_RQ = V_TMP + 23
    VR = V_TMP + 24
    for sx in range(3):
        a("ds_read_b32 v%d, v%d offset:%d" % (VC + sx, V_ECS, sx * 128))
    a("ds_read_b64 %s, v%d" % (vr(VB, 2), V_EBF))
    a("ds_read_b32 v%d, v%d" % (V_RS, V_ERS))
    for q in range(4):
        a("ds_read_b128 %s, v%d offset:%d" % (vr(VR + 4 * q), V_ERV, q * 32))
    for sx in range(3):
        a("s_waitcnt lgkmcnt(%d)" % (8 - sx))
        split_hi_lo_A(a, VC + sx, VA[sx], V_T + 4, S_MASK)
    a("s_waitcnt lgkmcnt(4)")
    a("v_mul_f32 v%d, 0x%x, v%d" % (V_RQ, f32bits(0.25 * math.log2(math.e)), V_RS))
    a("v_mfma_f32_32x32x16_bf16 %s, %s, %s, %s" % (vr(V_ACC[0], 16), vr(VA[0]), vr(VB), vr(V_ACC[0], 16)))
    a("v_mfma_f32_32x32x16_bf16 %s, %s, %s, %s" % (vr(V_ACC[1], 16), vr(VA[1]), vr(VB), vr(V_ACC[1], 16)))
    a("v_mfma_f32_32x32x16_bf16 %s, %s, %s, %s" % (vr(V_ACC[2], 16), vr(VB), vr(VA[2]), vr(V_ACC[2], 16)))
    team_check(a, "c", FV_L4, FV_F, preissued=True)
    VO = V_X[0]
    k = 0
    stores = []
    for blk, sc, soffs in ((1, V_RS, (S_O2, S_O3)), (0, V_RQ, (S_O0, S_O1))):
        for half in range(2):
            o = VO + 4 * k
            k += 1
            for i in range(8):
                r = V_ACC[blk] + 8 * half + i
                a("v_mul_f32 v%d, v%d, v%d" % (r, sc, r))
            for i in range(4):
                r = V_ACC[blk] + 8 * half + 2 * i
                a("v_cvt_pk_bf16_f32 v%d, v%d, v%d" % (o + i, r, r + 1))
            stores.append("buffer_store_dwordx4 %s, v%d, s[20:23], s%d offen" % (vr(o), V_L16, soffs[half]))
        hstore(a, "p1%d" % blk, stores)
        stores = []
    a("s_waitcnt lgkmcnt(0)")
    for half in range(2):
        o = VO + 4 * k
        k += 1
        for i in range(8):
            r = V_ACC[2] + 8 * half + i
            a("v_mul_f32 v%d, v%d, v%d" % (r, VR + 8 * half + i, r))
        for i in range(4):
            r = V_ACC[2] + 8 * half + 2 * i
            a("v_cvt_pk_bf16_f32 v%d, v%d, v%d" % (o + i, r, r + 1))
        stores.append("buffer_store_dwordx4 %s, v%d, s[20:23], s%d offen offset:%d" % (vr(o), V_OV, S_O4, half * 512))
    hstore(a, "p1v", stores)
    a("s_lshl_b32 s%d, s%d, 9" % (T_A, S_TEAM))
    a("s_lshl_b32 s%d, s%d, 8" % (T_B, S_G))
    a("s_add_u32 s%d, s%d, s%d" % (T_A, T_A, T_B))
    a("s_lshl_b32 s%d, s%d, 1" % (T_B, S_MEM))
    a("s_add_u32 s%d, s%d, s%d" % (T_B, T_B, S_TBI))
    a("s_lshl_b32 s%d, s%d, 2" % (T_B, T_B))
    a("s_add_u32 s%d, s%d, s%d" % (T_A, T_A, T_B))
    a("s_add_u32 s%d, s%d, %d" % (T_A, T_A, FL_1))
    a("s_waitcnt vmcnt(0)")
    set_flag(a, T_A, V_T, "f1")
    a.ts_flush("kp_", S_WAVE, V_T)
    a.label("L_p1_done")


def gen_f(a):
    name = NAME + "_kernel"
    kernel_begin(a, name)
    S_WAVE, S_H, S_QB, S_T0, S_T1, S_T2, S_T3 = 40, 41, 42, 43, 44, 45, 46
    S_ITER, S_SYNC, S_PASS, S_NT = 47, 48, 49, 50
    S_TASK, S_STG, S_DST0, S_DST1, S_TYPE = 51, 52, 53, 54, 55
    S_VMASK = 56
    S_CS = 58
    S_KB, S_W1K, S_CH = 59, 60, 61
    S_PE, S_PO, S_PS = 36, 37, 38
    V_LANE, V_L16, V_T = 1, 2, 3
    V_KA, V_VA = 10, 11
    V_Q = 12
    V_K = [16, 20]
    V_V = [24, 32]
    V_P = 40
    V_CM = 48
    V_S = [64, 80]
    V_O = 96
    V_MAX = 112
    V_PK = 113
    V_PD = 114
    V_SEL = 116
    V_PCS = [120, 124]
    STG = 131072
    a("s_cmp_ge_u32 s2, 256")
    a("s_cbranch_scc1 L_f_end")
    a.ts("k2")
    a.ts("kp_")
    pass
    a("s_load_dwordx2 s[8:9], s[0:1], %d" % ARG_WS)
    a("s_load_dwordx2 s[4:5], s[0:1], %d" % ARG_WO)
    a("s_load_dwordx4 s[24:27], s[0:1], %d" % ARG_WG)
    a("s_load_dwordx2 s[6:7], s[0:1], %d" % ARG_WD)
    a("s_load_dwordx2 s[10:11], s[0:1], %d" % ARG_X)
    a("s_load_dwordx2 s[16:17], s[0:1], %d" % ARG_OUT)
    a("s_load_dwordx2 s[100:101], s[0:1], %d" % ARG_WQKV)
    a("s_load_dwordx2 s[96:97], s[0:1], %d" % ARG_DBG)
    a("v_lshrrev_b32 v%d, 6, v0" % V_T)
    a("v_and_b32 v%d, 63, v0" % V_LANE)
    a("v_readfirstlane_b32 s%d, v%d" % (S_WAVE, V_T))
    a("v_lshlrev_b32 v%d, 4, v%d" % (V_L16, V_LANE))
    a("s_lshr_b32 s%d, s2, 3" % S_MEM)
    a("s_and_b32 s%d, s2, 7" % S_TEAM)
    if AMAP:
        a("s_lshr_b32 s%d, s2, 3" % S_H)
        a("s_and_b32 s%d, s2, 7" % S_QB)
    else:
        a("s_and_b32 s%d, s2, 7" % S_H)
        a("s_lshl_b32 s%d, s%d, 2" % (S_H, S_H))
        a("s_lshr_b32 s%d, s2, 6" % S_T0)
        a("s_add_u32 s%d, s%d, s%d" % (S_H, S_H, S_T0))
        a("s_lshr_b32 s%d, s2, 3" % S_QB)
        a("s_and_b32 s%d, s%d, 7" % (S_QB, S_QB))
    a("s_lshr_b32 s%d, s%d, 2" % (S_T0, S_WAVE))
    a("s_lshl_b32 s%d, s%d, 8" % (S_T0, S_T0))
    a("v_xor_b32 v%d, s%d, v%d" % (FV_LX, S_T0, V_L16))
    a("v_lshlrev_b32 v%d, 2, v%d" % (FV_L4, V_LANE))
    a("v_mov_b32 v%d, 0" % (FV_F + 3))
    a("v_lshlrev_b32 v%d, 3, v%d" % (FV_L8, V_LANE))
    a("s_getreg_b32 s%d, hwreg(HW_REG_XCC_ID)" % S_XCC)
    a("s_and_b32 s%d, s%d, 15" % (S_XCC, S_XCC))
    a("s_add_u32 s%d, s%d, 1" % (S_XCC, S_XCC))
    phase1(a, locals())
    a("s_lshl_b32 s%d, s%d, 16" % (S_KB, S_H))
    a("s_lshl_b32 s%d, s%d, 10" % (S_W1K, S_WAVE))
    a("s_add_u32 s%d, s%d, s%d" % (S_KB, S_KB, S_W1K))
    a("s_lshl_b32 s%d, s%d, 13" % (S_CH, S_QB))
    a("s_add_u32 s%d, s%d, s%d" % (S_T3, S_KB, S_CH))
    a("s_add_u32 s%d, s%d, %d" % (S_KB, S_KB, WS_K))
    if not K2_ROT:
        a("s_mov_b32 s%d, 0" % S_CH)
    a("s_mov_b32 s39, s%d" % S_T3)

    def kv_dma(c):
        return [["s_add_u32 s%d, s%d, s%d" % (S_T3, S_KB, S_CH),
                 "s_add_u32 m0, s%d, %d" % (S_W1K, c * 8192),
                 "s_add_u32 s%d, s%d, 8192" % (S_CH, S_CH),
                 "buffer_load_dwordx4 v%d, s[20:23], s%d offen sc1 lds" % (V_L16, S_T3)],
                ["s_add_u32 s%d, s%d, %d" % (S_T3, S_T3, WS_V - WS_K),
                 "s_add_u32 m0, s%d, %d" % (S_W1K, 65536 + c * 8192),
                 "s_and_b32 s%d, s%d, 0xffff" % (S_CH, S_CH),
                 "buffer_load_dwordx4 v%d, s[20:23], s%d offen sc1 lds" % (V_L16, S_T3)]]

    a("s_mov_b32 s%d, 0" % S_TYPE)
    a("s_cmp_ge_u32 s%d, 4" % S_WAVE)
    a("s_cbranch_scc1 L_f_nopack")
    a("s_lshl_b32 s%d, s2, 2" % S_TASK)
    a("s_add_u32 s%d, s%d, s%d" % (S_TASK, S_TASK, S_WAVE))
    a("s_cmp_ge_u32 s%d, 736" % S_TASK)
    a("s_cbranch_scc1 L_f_nopack")
    a("s_lshl_b32 s%d, s%d, 13" % (S_STG, S_WAVE))
    a("s_add_u32 s%d, s%d, %d" % (S_STG, S_STG, STG))
    a("v_lshrrev_b32 v%d, 2, v%d" % (V_T, V_LANE))
    a("v_and_b32 v%d, 3, v%d" % (V_T + 1, V_LANE))
    a("s_cmp_ge_u32 s%d, 448" % S_TASK)
    a("s_cbranch_scc1 L_f_packn")
    a("s_mov_b32 s%d, 1" % S_TYPE)
    srd(a, 28, 24, 512 * 3584)
    srd(a, 32, 26, 512 * 3584)
    a("v_mul_u32_u24 v%d, 3584, v%d" % (V_T, V_T))
    a("v_lshl_add_u32 v%d, v%d, 4, v%d" % (V_PD, V_T + 1, V_T))
    a("s_and_b32 s%d, s%d, 7" % (S_T0, S_TASK))
    a("s_lshr_b32 s%d, s%d, 3" % (S_T1, S_TASK))
    a("s_mul_i32 s%d, s%d, %d" % (S_PE, S_T0, 64 * 3584))
    a("s_lshl_b32 s%d, s%d, 6" % (S_T2, S_T1))
    a("s_add_u32 s%d, s%d, s%d" % (S_PE, S_PE, S_T2))
    a("s_mov_b32 s%d, s%d" % (S_PO, S_PE))
    a("s_mov_b32 s%d, %d" % (S_PS, 16 * 3584))
    for hb, sd in ((0, S_DST0), (1, S_DST1)):
        a("s_lshl_b32 s%d, s%d, 1" % (S_T2, S_T1))
        if hb:
            a("s_add_u32 s%d, s%d, 1" % (S_T2, S_T2))
        a("s_mul_i32 s%d, s%d, 9363" % (S_CS, S_T2))
        a("s_lshr_b32 s%d, s%d, 16" % (S_CS, S_CS))
        a("s_mul_i32 s%d, s%d, 7" % (sd, S_CS))
        a("s_sub_u32 s%d, s%d, s%d" % (sd, S_T2, sd))
        a("s_mul_i32 s%d, s%d, %d" % (S_CS, S_CS, 32 * 7))
        a("s_add_u32 s%d, s%d, s%d" % (sd, sd, S_CS))
        a("s_mul_i32 s%d, s%d, 28" % (S_CS, S_T0))
        a("s_add_u32 s%d, s%d, s%d" % (sd, sd, S_CS))
        a("s_lshl_b32 s%d, s%d, 10" % (sd, sd))
        a("s_add_u32 s%d, s%d, %d" % (sd, sd, WS_GU))
    a("s_lshl_b32 s%d, s%d, 11" % (S_CS, S_T1))
    a("s_lshr_b32 s%d, s%d, 2" % (S_T2, S_T0))
    a("s_lshl_b32 s%d, s%d, 9" % (S_T2, S_T2))
    a("s_add_u32 s%d, s%d, s%d" % (S_CS, S_CS, S_T2))
    a("s_and_b32 s%d, s%d, 3" % (S_T2, S_T0))
    a("s_lshl_b32 s%d, s%d, 2" % (S_T2, S_T2))
    a("s_add_u32 s%d, s%d, s%d" % (S_CS, S_CS, S_T2))
    a("s_add_u32 s%d, s%d, %d" % (S_CS, S_CS, WS_CS))
    a("s_branch L_f_nopack")
    a.label("L_f_packn")
    a("s_mov_b32 s%d, 2" % S_TYPE)
    a("v_lshlrev_b32 v%d, 10, v%d" % (V_T, V_T))
    a("v_lshl_add_u32 v%d, v%d, 4, v%d" % (V_PD, V_T + 1, V_T))
    a("s_cmp_ge_u32 s%d, 512" % S_TASK)
    a("s_cbranch_scc1 L_f_packd")
    srd(a, 28, 4, 512 * 1024)
    srd(a, 32, 4, 512 * 1024)
    a("s_sub_u32 s%d, s%d, 448" % (S_T0, S_TASK))
    a("s_lshr_b32 s%d, s%d, 2" % (S_T1, S_T0))
    a("s_and_b32 s%d, s%d, 3" % (S_T0, S_T0))
    a("s_lshl_b32 s%d, s%d, 15" % (S_DST0, S_T1))
    a("s_add_u32 s%d, s%d, %d" % (S_DST0, S_DST0, WS_WO))
    a("s_branch L_f_packc")
    a.label("L_f_packd")
    srd(a, 28, 6, 1792 * 1024)
    srd(a, 32, 6, 1792 * 1024)
    a("s_sub_u32 s%d, s%d, 512" % (S_T0, S_TASK))
    a("s_mul_i32 s%d, s%d, 4682" % (S_T1, S_T0))
    a("s_lshr_b32 s%d, s%d, 16" % (S_T1, S_T1))
    a("s_mul_i32 s%d, s%d, 14" % (S_T2, S_T1))
    a("s_sub_u32 s%d, s%d, s%d" % (S_T0, S_T0, S_T2))
    a("s_mul_i32 s%d, s%d, %d" % (S_DST0, S_T1, 112 * 1024))
    a("s_add_u32 s%d, s%d, %d" % (S_DST0, S_DST0, WS_WD))
    a.label("L_f_packc")
    a("s_lshl_b32 s%d, s%d, 13" % (S_T2, S_T0))
    a("s_add_u32 s%d, s%d, s%d" % (S_DST0, S_DST0, S_T2))
    a("s_lshl_b32 s%d, s%d, 17" % (S_PE, S_T0))
    a("s_lshl_b32 s%d, s%d, 6" % (S_T2, S_T1))
    a("s_add_u32 s%d, s%d, s%d" % (S_PE, S_PE, S_T2))
    a("s_add_u32 s%d, s%d, 16384" % (S_PO, S_PE))
    a("s_mov_b32 s%d, 32768" % S_PS)
    a.label("L_f_nopack")
    a("s_mov_b32 s%d, 0x0000ffff" % S_VMASK)
    a("s_mov_b32 s%d, 0x0000ffff" % (S_VMASK + 1))
    a("v_and_b32 v%d, 27, v%d" % (V_T, V_LANE))
    a("v_cmp_eq_u32 vcc, 16, v%d" % V_T)
    a("v_mov_b32 v%d, 0x%x" % (V_T + 1, ONES_BF16))
    a("s_nop 1")
    a("v_cndmask_b32 v%d, 0, v%d, vcc" % (V_V[0], V_T + 1))
    for i in range(1, 16):
        a("v_mov_b32 v%d, v%d" % (V_V[0] + i, V_V[0]))
    a("s_mov_b32 s%d, 7" % S_SYNC)
    a("s_mov_b32 s%d, 0" % S_PASS)
    a("s_mov_b32 s%d, 1" % S_NT)
    a("s_setprio 3")
    a("s_barrier")
    a.ts("k2")
    a("buffer_load_dwordx4 %s, v%d, s[20:23], s39 offen sc1" % (vr(V_Q), V_L16))
    for c in range(2):
        for g in kv_dma(c):
            for l in g:
                a(l)
    a("s_waitcnt vmcnt(2)")
    pass
    a("s_barrier")
    a.ts("k2")
    pass
    a.label("L_f_maxpass")
    a("v_mov_b32 v%d, 0xff800000" % V_MAX)
    a("v_mov_b32 v%d, v%d" % (V_KA, V_L16))
    a.label("L_f_mloop")
    a("ds_read_b128 %s, v%d" % (vr(V_K[0]), V_KA))
    a("v_add_u32 v%d, 1024, v%d" % (V_KA, V_KA))
    a("s_waitcnt lgkmcnt(0)")
    a("v_mfma_f32_32x32x16_bf16 %s, %s, %s, 0" % (vr(V_S[0], 16), vr(V_K[0]), vr(V_Q)))
    a("s_nop 15")
    for i in range(8):
        a("v_max3_f32 v%d, v%d, v%d, v%d" % (V_MAX, V_S[0] + 2 * i, V_S[0] + 2 * i + 1, V_MAX))
    a("s_sub_u32 s%d, s%d, 1" % (S_NT, S_NT))
    a("s_cmp_lg_u32 s%d, 0" % S_NT)
    a("s_cbranch_scc1 L_f_mloop")
    a("v_mov_b32 v%d, v%d" % (V_KA, V_L16))
    a("v_lshrrev_b32 v%d, 5, v%d" % (V_T, V_LANE))
    a("v_lshlrev_b32 v%d, 8, v%d" % (V_T, V_T))
    a("v_and_b32 v%d, 15, v%d" % (V_T + 1, V_LANE))
    a("v_lshl_add_u32 v%d, v%d, 4, v%d" % (V_VA, V_T + 1, V_T))
    a("v_add_u32 v%d, 65536, v%d" % (V_VA, V_VA))
    a("ds_read_b128 %s, v%d" % (vr(V_K[0]), V_KA))
    a("ds_read_b128 %s, v%d offset:1024" % (vr(V_K[1]), V_KA))
    a("s_mov_b64 exec, s[%d:%d]" % (S_VMASK, S_VMASK + 1))
    a("ds_read_b128 %s, v%d" % (vr(V_V[0]), V_VA))
    a("ds_read_b128 %s, v%d offset:512" % (vr(V_V[0] + 4), V_VA))
    a("s_mov_b64 exec, -1")
    a("v_mov_b32 v%d, v%d" % (V_T, V_MAX))
    a("s_nop 1")
    a("v_permlane32_swap_b32 v%d, v%d" % (V_MAX, V_T))
    a("s_nop 1")
    a("v_max_f32 v%d, v%d, v%d" % (V_MAX, V_MAX, V_T))
    for i in range(16):
        a("v_sub_f32 v%d, 0, v%d" % (V_CM + i, V_MAX))
    a("s_waitcnt lgkmcnt(0)")
    a("s_nop 0")
    a("v_mfma_f32_32x32x16_bf16 %s, %s, %s, %s" % (vr(V_S[0], 16), vr(V_K[0]), vr(V_Q), vr(V_CM, 16)))
    for i in range(16):
        a("v_mov_b32 v%d, 0" % (V_O + i))
    for i in range(4):
        a("v_mov_b32 v%d, 0" % (V_P + 4 + i))
    a("s_mov_b32 s%d, 8" % S_ITER)
    a("s_cmp_lg_u32 s%d, 0" % S_PASS)
    a("s_cbranch_scc1 L_f_loop")

    def body(peeled):
        for t in range(8):
            cur, nxt = t % 2, (t + 1) % 2
            x1, x2 = [], []
            if peeled:
                if t < 6:
                    x1, x2 = kv_dma(t + 2)
                if t == 6:
                    a("s_waitcnt vmcnt(12)")
                    a("s_barrier")
                if t >= 6:
                    lab = "L_f_np%d" % t
                    x1 = ["s_cmp_eq_u32 s%d, 0" % S_TYPE, "s_cbranch_scc1 %s" % lab]
                    for i in range(4 * (t - 6), 4 * (t - 6) + 4):
                        x1 += ["s_add_u32 m0, s%d, %d" % (S_STG, i * 1024), "s_nop 0",
                               "buffer_load_dwordx4 v%d, s[%d:%d], s%d offen lds" % (V_PD, 28 + 4 * (i % 2), 31 + 4 * (i % 2), S_PO if i % 2 else S_PE),
                               "s_add_u32 s%d, s%d, s%d" % ((S_PO, S_PO, S_PS) if i % 2 else (S_PE, S_PE, S_PS))]
                    x1 += [lab + ":"]
            else:
                if t == 0:
                    for k, r in enumerate((5, 2, 1)):
                        x1 += ["s_cmp_lg_u32 s%d, %d" % (S_ITER, r), "s_cbranch_scc1 L_f_pp%d" % k, "s_setprio %d" % (2 - k), "L_f_pp%d:" % k]
                if t == 6:
                    a("s_cmp_eq_u32 s%d, s%d" % (S_ITER, S_SYNC))
                    a("s_cbranch_scc1 L_f_event")
                    a.label("L_f_syncret")
            S = V_S[cur]
            e = lambda i: "v_exp_f32 v%d, v%d" % (S + i, S + i)
            c = lambda i: "v_cvt_pk_bf16_f32 v%d, v%d, v%d" % (V_P + i, S + 2 * i, S + 2 * i + 1)
            pv = lambda b, h: "v_mfma_f32_32x32x16_bf16 %s, %s, %s, %s" % (vr(V_O, 16), vr(V_V[b] + 4 * h), vr(V_P + 4 * h), vr(V_O, 16))
            qk = "v_mfma_f32_32x32x16_bf16 %s, %s, %s, %s" % (vr(V_S[nxt], 16), vr(V_K[nxt]), vr(V_Q), vr(V_CM, 16))
            rdk = "ds_read_b128 %s, v%d offset:%d" % (vr(V_K[cur]), V_KA, (t + 2) * 1024)
            rdv = ["s_mov_b64 exec, s[%d:%d]" % (S_VMASK, S_VMASK + 1),
                   "ds_read_b128 %s, v%d offset:%d" % (vr(V_V[nxt]), V_VA, (t + 1) * 1024),
                   "ds_read_b128 %s, v%d offset:%d" % (vr(V_V[nxt] + 4), V_VA, (t + 1) * 1024 + 512),
                   "s_mov_b64 exec, -1"]
            seq = [e(0), e(1), pv(nxt, 1), e(2), "s_waitcnt lgkmcnt(0)", rdk, e(3)] + rdv + [c(0), e(4), e(5), c(1), e(6), e(7), qk, c(2), e(8)] + x1 + [e(9), c(3),
                   e(10), e(11), c(4), e(12), e(13), pv(cur, 0), c(5), e(14)] + x2 + [e(15), c(6)]
            if t == 7:
                seq += ["v_add_u32 v%d, 8192, v%d" % (V_KA, V_KA), "v_add_u32 v%d, 8192, v%d" % (V_VA, V_VA),
                        "s_sub_u32 s%d, s%d, 1" % (S_ITER, S_ITER), "s_cmp_lg_u32 s%d, 0" % S_ITER]
            seq += [c(7)]
            for l in seq:
                if l.endswith(":"):
                    a.label(l[:-1])
                else:
                    a(l)

    body(True)
    a.raw(".p2align 6")
    a.label("L_f_loop")
    body(False)
    a("s_cbranch_scc1 L_f_loop")
    a("s_nop 1")
    a("v_mfma_f32_32x32x16_bf16 %s, %s, %s, %s" % (vr(V_O, 16), vr(V_V[1] + 4), vr(V_P + 4), vr(V_O, 16)))
    a("s_waitcnt lgkmcnt(0)")
    a("s_lshl_b32 s%d, s%d, 3" % (S_T0, S_QB))
    a("s_add_u32 s%d, s%d, s%d" % (S_T0, S_T0, S_WAVE))
    a("s_lshl_b32 s%d, s%d, 5" % (S_T0, S_T0))
    a("s_add_u32 s%d, s%d, s%d" % (S_T0, S_T0, S_H))
    a("s_lshl_b32 s%d, s%d, 10" % (S_T0, S_T0))
    a("s_add_u32 s%d, s%d, %d" % (S_T0, S_T0, WS_O))
    a("s_nop 7")
    a("v_mul_f32 v%d, 0, v%d" % (V_T, V_O))
    for i in range(1, 8):
        a("v_fmac_f32 v%d, 0, v%d" % (V_T, V_O + i))
    a("v_add_f32 v%d, v%d, v%d" % (V_T, V_T, V_O + 8))
    a("v_cmp_gt_f32 vcc, 0x%x, v%d" % (f32bits(2.0 ** 100), V_T))
    a("v_rcp_f32 v%d, v%d" % (V_T + 1, V_O + 8))
    a("s_cmp_lg_u32 s%d, 0" % S_PASS)
    a("s_cbranch_scc1 L_f_fin")
    a("s_cmp_eq_u64 vcc, exec")
    a("s_cbranch_scc1 L_f_fin")
    a("s_mov_b32 s%d, 1" % S_PASS)
    a("s_mov_b32 s%d, 64" % S_NT)
    a("s_branch L_f_maxpass")
    a.label("L_f_fin")
    for i in range(8):
        a("v_mul_f32 v%d, v%d, v%d" % (V_O + i, V_T + 1, V_O + i))
    for i in range(4):
        a("v_cvt_pk_bf16_f32 v%d, v%d, v%d" % (V_P + i, V_O + 2 * i, V_O + 2 * i + 1))
    if AMAP:
        hstore(a, "o", ["buffer_store_dwordx4 %s, v%d, s[20:23], s%d offen" % (vr(V_P), V_L16, S_T0)])
    else:
        a("buffer_store_dwordx4 %s, v%d, s[20:23], s%d offen sc1" % (vr(V_P), V_L16, S_T0))
    fused_tail(a, locals())
    a.label("L_f_end")
    a("s_endpgm")
    fused_events(a, locals())
    a.label("L_f_sync")
    a("s_mov_b32 s%d, 6" % S_SYNC)
    a("s_cmp_eq_u32 s%d, 0" % S_TYPE)
    a("s_cbranch_scc1 L_f_sy0")
    a("s_waitcnt vmcnt(8)")
    a("s_barrier")
    a("s_branch L_f_syncret")
    a.label("L_f_sy0")
    a("s_waitcnt vmcnt(0)")
    a("s_barrier")
    a("s_branch L_f_syncret")
    a.label("L_f_ev6")
    a("s_mov_b32 s%d, 5" % S_SYNC)
    a("s_cmp_eq_u32 s%d, 0" % S_TYPE)
    a("s_cbranch_scc1 L_f_syncret")
    a("s_waitcnt vmcnt(0)")
    a("v_bfe_u32 v%d, v%d, 2, 2" % (V_T, V_LANE))
    a("v_lshrrev_b32 v%d, 5, v%d" % (V_T + 1, V_LANE))
    a("v_lshl_add_u32 v%d, v%d, 2, v%d" % (V_T, V_T + 1, V_T))
    a("v_lshlrev_b32 v%d, 6, v%d" % (V_T, V_T))
    a("v_and_b32 v%d, 3, v%d" % (V_T + 1, V_LANE))
    a("v_lshl_add_u32 v%d, v%d, 3, v%d" % (V_T, V_T + 1, V_T))
    a("v_add_u32 v%d, s%d, v%d" % (V_T, S_STG, V_T))
    a("v_bfe_u32 v%d, v%d, 4, 1" % (V_T + 1, V_LANE))
    FB = [128 + 4 * i for i in range(8)]
    a("s_cmp_eq_u32 s%d, 2" % S_TYPE)
    a("s_cbranch_scc1 L_f_pk2")
    a("v_lshl_add_u32 v%d, v%d, 10, v%d" % (V_PK, V_T + 1, V_T))
    for ks in range(4):
        for hb in range(2):
            for rd in range(2):
                a("ds_read_b64_tr_b16 %s, v%d offset:%d" % (vr(FB[ks * 2 + hb] + 2 * rd, 2), V_PK, ks * 2048 + hb * 32 + rd * 512))
    make_sel(a, V_LANE, V_SEL, V_T + 2)
    a("v_and_b32 v%d, 31, v%d" % (V_T, V_LANE))
    a("v_lshlrev_b32 v%d, 4, v%d" % (V_T, V_T))
    a("s_waitcnt lgkmcnt(0)")
    for ks in range(4):
        for hb in range(2):
            a("v_mfma_f32_16x16x32_bf16 %s, %s, %s, %s" % (vr(V_PCS[hb]), vr(V_SEL), vr(FB[ks * 2 + hb]), "0" if ks == 0 else vr(V_PCS[hb])))
            a("buffer_store_dwordx4 %s, v%d, s[20:23], s%d offen sc1" % (vr(FB[ks * 2 + hb]), V_L16, (S_DST0, S_DST1)[hb]))
        a("s_add_u32 s%d, s%d, 7168" % (S_DST0, S_DST0))
        a("s_add_u32 s%d, s%d, 7168" % (S_DST1, S_DST1))
    a("s_nop 7")
    a("buffer_store_dword v%d, v%d, s[20:23], s%d offen sc1" % (V_PCS[0], V_T, S_CS))
    a("buffer_store_dword v%d, v%d, s[20:23], s%d offen offset:1024 sc1" % (V_PCS[1], V_T, S_CS))
    a("s_branch L_f_syncret")
    a.label("L_f_pk2")
    a("v_lshl_add_u32 v%d, v%d, 5, v%d" % (V_PK, V_T + 1, V_T))
    a("s_add_u32 s%d, s%d, 4096" % (S_DST1, S_DST0))
    for f in range(8):
        for rd in range(2):
            a("ds_read_b64_tr_b16 %s, v%d offset:%d" % (vr(FB[f] + 2 * rd, 2), V_PK, f * 1024 + rd * 512))
    a("s_waitcnt lgkmcnt(0)")
    for f in range(8):
        a("buffer_store_dwordx4 %s, v%d, s[20:23], s%d offen offset:%d sc1" % (vr(FB[f]), V_L16, S_DST0 if f < 4 else S_DST1, (f % 4) * 1024))
    a("s_branch L_f_syncret")
    return name, 256, 0, (256, 512, 163840)


def gen_k35(a, which):
    name = "k3_wo_kernel" if which == 3 else "k5_down_kernel"
    L = "L_k%d_" % which
    kernel_begin(a, name)
    NS = 8 if which == 3 else 28
    STEPS = 32 if which == 3 else 112
    WIN = 8 if which == 3 else 14
    A_BASE = WS_O if which == 3 else WS_A
    W_BASE = WS_WO if which == 3 else WS_WD
    S_WAVE, S_RB, S_CG, S_T0, S_T1 = 24, 25, 26, 27, 28
    S_A = [30, 31]
    S_W = [32, 33]
    S_TB, S_NB = 34, 35
    V_LANE, V_L16, V_T = 1, 2, 3
    V_RES = 12
    V_ACC = [32, 48, 64, 80]
    V_RD = 96
    a("s_cmp_ge_u32 s2, 256")
    a("s_cbranch_scc1 %send" % L)
    a.ts("k%d" % which)
    a("s_load_dwordx2 s[8:9], s[0:1], %d" % ARG_WS)
    a("s_load_dwordx2 s[4:5], s[0:1], %d" % (ARG_X if which == 3 else ARG_OUT))
    a("v_lshrrev_b32 v%d, 6, v0" % V_T)
    a("v_and_b32 v%d, 63, v0" % V_LANE)
    a("v_readfirstlane_b32 s%d, v%d" % (S_WAVE, V_T))
    a("v_lshlrev_b32 v%d, 4, v%d" % (V_L16, V_LANE))
    a("s_and_b32 s%d, s2, 7" % S_RB)
    a("s_lshl_b32 s%d, s%d, 2" % (S_RB, S_RB))
    a("s_lshr_b32 s%d, s2, 3" % S_T0)
    a("s_and_b32 s%d, s%d, 3" % (S_T1, S_T0))
    a("s_add_u32 s%d, s%d, s%d" % (S_RB, S_RB, S_T1))
    a("s_lshr_b32 s%d, s%d, 2" % (S_CG, S_T0))
    a("s_lshr_b32 s%d, s%d, 1" % (S_T0, S_WAVE))
    a("s_lshl_b32 s%d, s%d, 1" % (S_TB, S_RB))
    a("s_add_u32 s%d, s%d, s%d" % (S_TB, S_TB, S_T0))
    a("s_and_b32 s%d, s%d, 1" % (S_T0, S_WAVE))
    a("s_lshl_b32 s%d, s%d, 1" % (S_NB, S_CG))
    a("s_add_u32 s%d, s%d, s%d" % (S_NB, S_NB, S_T0))
    a("s_mul_i32 s%d, s%d, %d" % (S_T1, S_WAVE, NS * 1024))
    for i in range(2):
        a("s_xor_b32 s%d, s%d, %d" % (S_T0, S_TB, i))
        a("s_mul_i32 s%d, s%d, %d" % (S_A[i], S_T0, STEPS * 1024))
        a("s_add_u32 s%d, s%d, s%d" % (S_A[i], S_A[i], S_T1))
        a("s_add_u32 s%d, s%d, %d" % (S_A[i], S_A[i], A_BASE))
        a("s_xor_b32 s%d, s%d, %d" % (S_T0, S_NB, i))
        a("s_mul_i32 s%d, s%d, %d" % (S_W[i], S_T0, STEPS * 1024))
        a("s_add_u32 s%d, s%d, s%d" % (S_W[i], S_W[i], S_T1))
        a("s_add_u32 s%d, s%d, %d" % (S_W[i], S_W[i], W_BASE))
    a("s_waitcnt lgkmcnt(0)")
    srd(a, 20, 8, WS_SIZE)
    srd(a, 12, 4, 2048 * 1024)

    def frag(p, kind, i):
        return (p % WIN) * 16 + kind * 8 + i * 4

    def loads(p):
        out = []
        if p > 0 and p % 4 == 0:
            for s in S_A + S_W:
                out.append("s_add_u32 s%d, s%d, 4096" % (s, s))
        off = (p % 4) * 1024
        for i in range(2):
            out.append("buffer_load_dwordx4 %s, v%d, s[20:23], s%d offen offset:%d" % (ar(frag(p, 0, i)), V_L16, S_A[i], off))
            out.append("buffer_load_dwordx4 %s, v%d, s[20:23], s%d offen offset:%d" % (ar(frag(p, 1, i)), V_L16, S_W[i], off))
        return out

    for p in range(WIN):
        for l in loads(p):
            a(l)
    a("v_and_b32 v%d, 31, v%d" % (V_T, V_LANE))
    a("v_lshlrev_b32 v%d, 10, v%d" % (V_T, V_T))
    a("v_lshrrev_b32 v%d, 5, v%d" % (V_T + 1, V_LANE))
    a("v_lshl_add_u32 v%d, v%d, 3, v%d" % (V_T, V_T + 1, V_T))
    a("s_lshl_b32 s36, s%d, 15" % S_TB)
    a("s_lshl_b32 s%d, s%d, 6" % (S_T0, S_NB))
    a("s_add_u32 s36, s36, s%d" % S_T0)
    a("s_lshl_b32 s37, s%d, 5" % S_TB)
    a("s_lshl_b32 s%d, s%d, 1" % (S_T0, S_NB))
    a("s_add_u32 s37, s37, s%d" % S_T0)
    a("s_lshl_b32 s37, s37, 10")
    a("s_add_u32 s37, s37, %d" % WS_H)
    a.ts("k%d" % which)
    issued = WIN
    NRES = 4 if which == 3 else 2
    res_done = False
    for p in range(NS):
        younger = 4 * (issued - p - 1) + (NRES if res_done else 0)
        a("s_waitcnt vmcnt(%d)" % younger)
        for ti in range(2):
            for ni in range(2):
                acc = V_ACC[ti * 2 + ni]
                a("v_mfma_f32_32x32x16_bf16 %s, %s, %s, %s" % (vr(acc, 16), ar(frag(p, 1, ni)), ar(frag(p, 0, ti)), "0" if p == 0 else vr(acc, 16)))
        if issued < NS:
            for l in loads(issued):
                a(l)
            issued += 1
        elif not res_done:
            if which == 3:
                for q in range(4):
                    a("buffer_load_dwordx2 %s, v%d, s[12:15], s36 offen offset:%d" % (vr(V_RES + 2 * q, 2), V_T, q * 16))
            else:
                for q in range(2):
                    a("buffer_load_dwordx4 %s, v%d, s[20:23], s37 offen offset:%d" % (vr(V_RES + 4 * q), V_L16, q * 1024))
            res_done = True
    a.ts("k%d" % which)
    a("s_nop 7")
    for t in range(1, 4):
        a("s_xor_b32 s%d, s%d, %d" % (S_T0, S_WAVE, t))
        a("s_mul_i32 s%d, s%d, 12288" % (S_T0, S_T0))
        a("v_add_u32 v%d, s%d, v%d" % (V_T + 1 + t, S_T0, V_L16))
    a("s_nop 3")
    for t in range(1, 4):
        for q in range(4):
            a("ds_write_b128 v%d, %s offset:%d" % (V_T + 1 + t, vr(V_ACC[t] + 4 * q), (t - 1) * 4096 + q * 1024))
    a("s_mul_i32 s%d, s%d, 12288" % (S_T0, S_WAVE))
    a("v_add_u32 v%d, s%d, v%d" % (V_T + 1, S_T0, V_L16))
    a("s_waitcnt lgkmcnt(0)")
    a("s_barrier")
    for t in range(3):
        for q in range(4):
            a("ds_read_b128 %s, v%d offset:%d" % (vr(V_RD + 16 * t + 4 * q), V_T + 1, t * 4096 + q * 1024))
    A0 = V_ACC[0]
    U = V_ACC[1]
    a("s_mov_b32 s38, 0xffff0000")
    a("s_waitcnt vmcnt(0)")
    for d in range(8):
        a("v_lshlrev_b32 v%d, 16, v%d" % (U + 2 * d, V_RES + d))
        a("v_and_b32 v%d, s38, v%d" % (U + 2 * d + 1, V_RES + d))
    for i in range(16):
        a("v_add_f32 v%d, v%d, v%d" % (A0 + i, A0 + i, U + i))
    for t in range(3):
        a("s_waitcnt lgkmcnt(%d)" % (8 - 4 * t))
        for i in range(16):
            a("v_add_f32 v%d, v%d, v%d" % (A0 + i, A0 + i, V_RD + 16 * t + i))
    O = V_ACC[2]
    for i in range(8):
        a("v_cvt_pk_bf16_f32 v%d, v%d, v%d" % (O + i, A0 + 2 * i, A0 + 2 * i + 1))
    if which == 3:
        for q in range(2):
            a("buffer_store_dwordx4 %s, v%d, s[20:23], s37 offen offset:%d" % (vr(O + 4 * q), V_L16, q * 1024))
        for d in range(8):
            a("v_lshlrev_b32 v%d, 16, v%d" % (U + 2 * d, O + d))
            a("v_and_b32 v%d, s38, v%d" % (U + 2 * d + 1, O + d))
        S1, S2 = V_RD, V_RD + 1
        a("v_add_f32 v%d, v%d, v%d" % (S1, U, U + 1))
        a("v_mul_f32 v%d, v%d, v%d" % (S2, U, U))
        a("v_fmac_f32 v%d, v%d, v%d" % (S2, U + 1, U + 1))
        for i in range(2, 16):
            a("v_add_f32 v%d, v%d, v%d" % (S1, S1, U + i))
            a("v_fmac_f32 v%d, v%d, v%d" % (S2, U + i, U + i))
        sum_halves(a, S1, V_RD + 2)
        sum_halves(a, S2, V_RD + 3)
        a("s_lshl_b32 s%d, s%d, 4" % (S_T0, S_TB))
        a("s_add_u32 s%d, s%d, s%d" % (S_T0, S_T0, S_NB))
        a("s_lshl_b32 s%d, s%d, 8" % (S_T0, S_T0))
        a("s_add_u32 s%d, s%d, %d" % (S_T0, S_T0, WS_ST))
        a("v_and_b32 v%d, 31, v%d" % (V_T, V_LANE))
        a("v_lshlrev_b32 v%d, 3, v%d" % (V_T, V_T))
        a("buffer_store_dwordx2 %s, v%d, s[20:23], s%d offen" % (vr(S1, 2), V_T, S_T0))
    else:
        for q in range(4):
            a("buffer_store_dwordx2 %s, v%d, s[12:15], s36 offen offset:%d" % (vr(O + 2 * q, 2), V_T, q * 16))
    a.ts_flush("k%d" % which, S_WAVE, V_T)
    a.label(L + "end")
    a("s_endpgm")
    return name, 144, WIN * 16, (256, 256, 49152)


def gen_k4(a):
    name = "k4_glu_kernel"
    kernel_begin(a, name)
    SL4, NS4 = 45056, 3
    S_WAVE, S_RB, S_CG, S_KC, S_SH, S_SW, S_T0, S_T1, S_MASK, S_M0 = 24, 25, 26, 27, 28, 29, 30, 31, 32, 33
    S_TB, S_ROLE, S_M0H = 34, 42, 35
    V_LANE, V_L16, V_T = 1, 2, 3
    V_AW, V_AH = 12, 13
    V_ST = 16
    V_CSL = 32
    V_H = [60, 244]
    V_W = [64, 92]
    V_ACC = [120 + 16 * b for b in range(7)]
    V_TMP = 232
    a("s_cmp_ge_u32 s2, 256")
    a("s_cbranch_scc1 L_k4_end")
    a.ts("k4")
    a("s_load_dwordx2 s[8:9], s[0:1], %d" % ARG_WS)
    a("v_lshrrev_b32 v%d, 6, v0" % V_T)
    a("v_and_b32 v%d, 63, v0" % V_LANE)
    a("v_readfirstlane_b32 s%d, v%d" % (S_ROLE, V_T))
    a("v_lshlrev_b32 v%d, 4, v%d" % (V_L16, V_LANE))
    a("s_and_b32 s3, s2, 7")
    a("s_lshr_b32 s%d, s2, 3" % S_T0)
    a("s_lshr_b32 s%d, s3, 2" % S_RB)
    a("s_lshl_b32 s%d, s%d, 3" % (S_RB, S_RB))
    a("s_and_b32 s%d, s%d, 7" % (S_T1, S_T0))
    a("s_add_u32 s%d, s%d, s%d" % (S_RB, S_RB, S_T1))
    a("s_and_b32 s%d, s3, 3" % S_CG)
    a("s_lshl_b32 s%d, s%d, 2" % (S_CG, S_CG))
    a("s_lshr_b32 s%d, s%d, 3" % (S_T1, S_T0))
    a("s_add_u32 s%d, s%d, s%d" % (S_CG, S_CG, S_T1))
    a("s_and_b32 s%d, s%d, 3" % (S_WAVE, S_ROLE))
    a("s_lshl_b32 s%d, s%d, 2" % (S_TB, S_RB))
    a("s_add_u32 s%d, s%d, s%d" % (S_TB, S_TB, S_WAVE))
    a("s_lshl_b32 s%d, s%d, 12" % (S_M0H, S_WAVE))
    a("s_add_u32 s%d, s%d, 28672" % (S_M0H, S_M0H))
    a("s_cmp_ge_u32 s%d, 4" % S_ROLE)
    a("s_cbranch_scc1 L_k4_compute")
    if K4_ROT:
        a("s_add_u32 s%d, s%d, s%d" % (S_KC, S_RB, S_CG))
        a("s_and_b32 s%d, s%d, 7" % (S_KC, S_KC))
    else:
        a("s_mov_b32 s%d, 0" % S_KC)
    a("s_lshl_b32 s%d, s%d, 15" % (S_SH, S_TB))
    a("s_add_u32 s%d, s%d, %d" % (S_SH, S_SH, WS_H))
    a("s_mul_i32 s%d, s%d, 7168" % (S_M0, S_WAVE))
    a("s_mul_i32 s%d, s%d, %d" % (S_SW, S_CG, 32 * 7 * 1024))
    a("s_add_u32 s%d, s%d, s%d" % (S_SW, S_SW, S_M0))
    a("s_add_u32 s%d, s%d, %d" % (S_SW, S_SW, WS_GU))
    S_OH, S_OW, S_SLOT, S_CNT = 38, 39, 40, 41
    a("s_mov_b32 s%d, 0" % S_SLOT)
    a("s_mov_b32 s%d, 0" % S_CNT)
    a("s_waitcnt lgkmcnt(0)")
    srd(a, 20, 8, WS_SIZE)
    a.label("L_k4_ld")
    a("s_lshl_b32 s%d, s%d, 12" % (S_OH, S_KC))
    a("s_add_u32 s%d, s%d, s%d" % (S_OH, S_OH, S_SH))
    a("s_add_u32 m0, s%d, s%d" % (S_M0H, S_SLOT))
    a("s_mul_i32 s%d, s%d, %d" % (S_OW, S_KC, SLOT))
    for q in range(4):
        a("buffer_load_dwordx4 v%d, s[20:23], s%d offen offset:%d lds" % (V_L16, S_OH, q * 1024))
    a("s_add_u32 m0, s%d, s%d" % (S_M0, S_SLOT))
    a("s_add_u32 s%d, s%d, s%d" % (S_OW, S_OW, S_SW))
    for q in range(4):
        a("buffer_load_dwordx4 v%d, s[20:23], s%d offen offset:%d lds" % (V_L16, S_OW, q * 1024))
    a("s_add_u32 m0, m0, 4096")
    a("s_add_u32 s%d, s%d, 4096" % (S_OW, S_OW))
    for q in range(3):
        a("buffer_load_dwordx4 v%d, s[20:23], s%d offen offset:%d lds" % (V_L16, S_OW, q * 1024))
    a("s_add_u32 s%d, s%d, 1" % (S_KC, S_KC))
    a("s_and_b32 s%d, s%d, 7" % (S_KC, S_KC))
    a("s_add_u32 s%d, s%d, %d" % (S_SLOT, S_SLOT, SL4))
    a("s_cmp_eq_u32 s%d, %d" % (S_SLOT, NS4 * SL4))
    a("s_cselect_b32 s%d, 0, s%d" % (S_SLOT, S_SLOT))
    a("s_add_u32 s%d, s%d, 1" % (S_CNT, S_CNT))
    a("s_cmp_lt_u32 s%d, 2" % S_CNT)
    a("s_cbranch_scc1 L_k4_ld")
    a("s_waitcnt vmcnt(11)")
    a("s_barrier")
    a("s_cmp_lt_u32 s%d, 8" % S_CNT)
    a("s_cbranch_scc1 L_k4_ld")
    a("s_waitcnt vmcnt(0)")
    a("s_barrier")
    a("s_endpgm")
    a.label("L_k4_compute")
    a("s_mov_b32 s%d, 0xffff0000" % S_MASK)
    a("v_mov_b32 v%d, v%d" % (V_AW, V_L16))
    a("v_add_u32 v%d, s%d, v%d" % (V_AH, S_M0H, V_L16))
    a("v_and_b32 v%d, 31, v%d" % (V_T, V_LANE))
    a("v_lshlrev_b32 v%d, 3, v%d" % (V_T, V_T))
    a("v_lshrrev_b32 v%d, 5, v%d" % (V_T + 1, V_LANE))
    a("v_lshl_add_u32 v%d, v%d, 11, v%d" % (V_T, V_T + 1, V_T))
    a("s_waitcnt lgkmcnt(0)")
    srd(a, 20, 8, WS_SIZE)
    cur_base = [0]

    def reads(P):
        st, pos = P // 4, P % 4
        base = (st % NS4) * SL4
        out = []
        if base != cur_base[0]:
            d = base - cur_base[0]
            for r in (V_AW, V_AH):
                out.append("v_add_u32 v%d, %d, v%d" % (r, d, r) if d > 0 else "v_subrev_u32 v%d, %d, v%d" % (r, -d, r))
            cur_base[0] = base
        b = P % 2
        out.append("ds_read_b128 %s, v%d offset:%d" % (vr(V_H[b]), V_AH, pos * 1024))
        for blk in range(7):
            out.append("ds_read_b128 %s, v%d offset:%d" % (vr(V_W[b] + 4 * blk), V_AW, (pos * 7 + blk) * 1024))
        return out

    extra = {}
    g = ["s_lshl_b32 s%d, s%d, 12" % (S_T0, S_TB), "s_add_u32 s%d, s%d, %d" % (S_T0, S_T0, WS_ST)]
    for i in range(8):
        g.append("buffer_load_dwordx2 %s, v%d, s[20:23], s%d offen offset:%d" % (vr(V_ST + 2 * i, 2), V_T, S_T0, i * 256))
    extra[8], extra[9], extra[10] = g[:4], g[4:7], g[7:]
    g = ["s_mul_i32 s%d, s%d, 7168" % (S_T0, S_CG), "s_add_u32 s%d, s%d, %d" % (S_T0, S_T0, WS_CS), "s_add_u32 s%d, s%d, 4096" % (S_T1, S_T0)]
    for blk in range(7):
        g.append("buffer_load_dwordx4 %s, v%d, s[20:23], s%d offen offset:%d" % (vr(V_CSL + 4 * blk), V_L16, S_T0 if blk < 4 else S_T1, (blk % 4) * 1024))
    extra[12], extra[13], extra[14] = g[:5], g[5:8], g[8:]
    a.ts("k4")
    a("s_barrier")
    a.ts("k4")
    for l in reads(0):
        a(l)
    for P in range(32):
        st, pos = P // 4, P % 4
        b = P % 2
        a("s_waitcnt lgkmcnt(0)")
        if pos == 3 and P < 31:
            a("s_barrier")
        rd = reads(P + 1) if P < 31 else []
        m = []
        for blk in range(7):
            m.append("v_mfma_f32_32x32x16_bf16 %s, %s, %s, %s" % (vr(V_ACC[blk], 16), vr(V_W[b] + 4 * blk), vr(V_H[b]), "0" if P == 0 else vr(V_ACC[blk], 16)))
        for l in interleave(m, rd + extra.get(P, []), per=2):
            a(l)
    a.ts("k4")
    a("s_waitcnt vmcnt(0)")
    S1, S2 = V_T + 2, V_T + 3
    a("v_add_f32 v%d, v%d, v%d" % (S1, V_ST, V_ST + 2))
    a("v_add_f32 v%d, v%d, v%d" % (S2, V_ST + 1, V_ST + 3))
    for i in range(2, 8):
        a("v_add_f32 v%d, v%d, v%d" % (S1, S1, V_ST + 2 * i))
        a("v_add_f32 v%d, v%d, v%d" % (S2, S2, V_ST + 2 * i + 1))
    sum_halves(a, S1, V_T + 4)
    sum_halves(a, S2, V_T + 4)
    V_MU, V_VAR, V_RS, V_C1, V_C2 = V_T + 4, V_T + 5, V_T + 6, V_T + 7, V_T + 8
    a("v_mul_f32 v%d, 0x%x, v%d" % (V_MU, f32bits(1.0 / 512), S1))
    a("v_mul_f32 v%d, 0x%x, v%d" % (V_VAR, f32bits(1.0 / 512), S2))
    a("v_fma_f32 v%d, -v%d, v%d, v%d" % (V_VAR, V_MU, V_MU, V_VAR))
    a("v_max_f32 v%d, 0, v%d" % (V_VAR, V_VAR))
    a("v_add_f32 v%d, 0x%x, v%d" % (V_VAR, f32bits(1e-5), V_VAR))
    a("v_rsq_f32 v%d, v%d" % (V_RS, V_VAR))
    a("v_sub_f32 v%d, 0, v%d" % (V_MU, V_MU))
    VB = V_ST
    split_hi_lo_B(a, V_MU, VB, V_T, S_MASK)
    c1 = -2.0 * math.sqrt(2.0 / math.pi) * math.log2(math.e)
    a("v_mul_f32 v%d, 0x%x, v%d" % (V_C1, f32bits(c1), V_RS))
    a("v_mul_f32 v%d, v%d, v%d" % (V_C2, V_RS, V_RS))
    a("v_mul_f32 v%d, v%d, v%d" % (V_C2, V_C2, V_C1))
    a("v_mul_f32 v%d, 0x%x, v%d" % (V_C2, f32bits(0.044715), V_C2))
    for blk in range(7):
        c = V_CSL + 4 * blk
        a("v_add_f32 v%d, v%d, v%d" % (c, c, c + 1))
        a("v_add_f32 v%d, v%d, v%d" % (c + 2, c + 2, c + 3))
        a("v_add_f32 v%d, v%d, v%d" % (c, c, c + 2))
        split_hi_lo_A(a, c, V_W[0] + 4 * blk, V_T, S_MASK)
    a("s_nop 1")
    for blk in range(7):
        a("v_mfma_f32_32x32x16_bf16 %s, %s, %s, %s" % (vr(V_ACC[blk], 16), vr(V_W[0] + 4 * blk), vr(VB), vr(V_ACC[blk], 16)))
    a("s_mul_i32 s%d, s%d, 112" % (S_T0, S_TB))
    a("s_mul_i32 s%d, s%d, 7" % (S_T1, S_CG))
    a("s_add_u32 s%d, s%d, s%d" % (S_T0, S_T0, S_T1))
    a("s_lshl_b32 s%d, s%d, 10" % (S_T0, S_T0))
    a("s_add_u32 s%d, s%d, %d" % (S_T0, S_T0, WS_A))
    a("s_add_u32 s%d, s%d, 4096" % (S_T1, S_T0))
    a("s_nop 7")
    for blk in range(7):
        G = V_ACC[blk]
        Uu = G + 8
        T = V_TMP
        for i in range(8):
            a("v_mul_f32 v%d, v%d, v%d" % (T + i, G + i, G + i))
        for i in range(8):
            a("v_fma_f32 v%d, v%d, v%d, v%d" % (T + i, T + i, V_C2, V_C1))
        for i in range(8):
            a("v_mul_f32 v%d, v%d, v%d" % (T + i, T + i, G + i))
        for i in range(8):
            a("v_exp_f32 v%d, v%d" % (T + i, T + i))
        for i in range(8):
            a("v_mul_f32 v%d, v%d, v%d" % (G + i, G + i, Uu + i))
        for i in range(8):
            a("v_fma_f32 v%d, v%d, v%d, v%d" % (T + i, T + i, V_VAR, V_VAR))
        for i in range(8):
            a("v_rcp_f32 v%d, v%d" % (T + i, T + i))
        a("s_nop 0")
        for i in range(8):
            a("v_mul_f32 v%d, v%d, v%d" % (G + i, G + i, T + i))
        o = V_TMP + 8 + 4 * (blk % 4)
        for i in range(4):
            a("v_cvt_pk_bf16_f32 v%d, v%d, v%d" % (o + i, G + 2 * i, G + 2 * i + 1))
        a("buffer_store_dwordx4 %s, v%d, s[20:23], s%d offen offset:%d" % (vr(o), V_L16, S_T0 if blk < 4 else S_T1, (blk % 4) * 1024))
    a.ts_flush("k4", S_WAVE, V_T)
    a.label("L_k4_end")
    a("s_endpgm")
    return name, 256, 0, (256, 512, NS4 * SL4)


def main():
    hdr = open("cdna_kernels/%s.s.ref" % NAME).read().split("\n")
    head = [l for l in hdr if l.startswith(";") and "@launch" not in l and "Override launch" not in l and "grid=ceil" not in l]
    a = Asm()
    ks = []
    ks.append(gen_f(a))
    out = "\n".join(head) + "\n"
    for name, nv, na, (g, b, lds) in ks:
        out += "; @launch grid=(%d,1,1) block=(%d,1,1) lds=%d\n" % (g, b, lds)
    out += '.amdgcn_target "amdgcn-amd-amdhsa--gfx950"\n.text\n'
    out += a.text()
    out += '.section .rodata,"a"\n'
    for name, nv, na, _ in ks:
        out += kernel_desc(name, nv, na)
    path = sys.argv[1] if len(sys.argv) > 1 else "cdna_kernels/%s.s" % NAME
    open(path, "w").write(out)


if __name__ == "__main__":
    main()
```

```python
import sys, math, struct

NAME = "sequential_preLN__softmax_full_mha__geglu_ffn__prompt"

MB = 1 << 20
WS_Q = 0
WS_K = 2 * MB
WS_V = 4 * MB
WS_O = 6 * MB
WS_H = 8 * MB
WS_A = 10 * MB
WS_WO = 17 * MB
WS_WD = 18 * MB
WS_GU = 20 * MB
WS_CS = 24 * MB
WS_ST = 25 * MB
WS_FL = 27 * MB + 768 * 1024
WS_SIZE = 28 * MB

ARG_X, ARG_WQKV, ARG_WO, ARG_BX, ARG_WG, ARG_WU, ARG_WD, ARG_OUT, ARG_DBG, ARG_WS = [8 * i for i in range(10)]

ONES_BF16 = 0x3F803F80


def f32bits(x):
    return struct.unpack("<I", struct.pack("<f", x))[0]


import os
INSTR = os.environ.get("INSTR", "")
WS_TS = 26 * MB


class Asm:
    def __init__(self):
        self.L = []
        self.nts = 0

    def ts(self, kern):
        if INSTR != kern and not (INSTR == "all" and len(kern) == 2):
            return
        if self.nts == 0:
            self("s_memrealtime s[92:93]")
        self("%s s[%d:%d]" % ("s_memrealtime" if os.environ.get("RT") else "s_memtime", 64 + 2 * self.nts, 65 + 2 * self.nts))
        self.nts += 1

    def tsv(self, lane, key="kv_"):
        if INSTR != key:
            return
        self("%s s[64:65]" % ("s_memtime" if os.environ.get("CYC") else "s_memrealtime"))
        self("s_waitcnt lgkmcnt(0)")
        self("v_cmp_eq_u32 vcc, %s, v1" % lane)
        self("v_mov_b32 v251, s64")
        self("s_nop 1")
        self("v_cndmask_b32 v250, v250, v251, vcc")

    def tsv_flush(self, swave, key="kv_"):
        if INSTR != key:
            return
        self("s_lshl_b32 s3, s2, 3")
        self("s_add_u32 s3, s3, s%d" % swave)
        self("s_lshl_b32 s3, s3, 8")
        self("s_add_u32 s3, s3, %d" % WS_TS)
        self("buffer_store_dword v250, v229, s[20:23], s3 offen")

    def ts_flush(self, kern, swave, vtmp):
        if INSTR != kern and not (INSTR == "all" and len(kern) == 2):
            return
        self("%s s[%d:%d]" % ("s_memrealtime" if os.environ.get("RT") else "s_memtime", 64 + 2 * self.nts, 65 + 2 * self.nts))
        self.nts += 1
        self("s_memrealtime s[94:95]")
        self("s_waitcnt lgkmcnt(0)")
        if os.environ.get("DBGOUT"):
            self("s_cmp_lg_u32 s2, %s" % os.environ["DBGOUT"])
            self("s_cbranch_scc1 L_dbg_skip")
            self("s_cmp_lg_u32 s%d, 7" % swave)
            self("s_cbranch_scc1 L_dbg_skip")
            self("v_mov_b32 v%d, 0" % vtmp)
            for i in range(1, self.nts):
                self("s_sub_u32 s3, s%d, s64" % (64 + 2 * i))
                self("s_and_b32 s36, s3, 0x7f")
                self("s_lshr_b32 s3, s3, 7")
                self("s_and_b32 s3, s3, 0x7f")
                self("s_lshl_b32 s3, s3, 8")
                self("s_or_b32 s3, s3, s36")
                self("s_or_b32 s3, s3, 0x80808080")
                self("v_mov_b32 v%d, s3" % (vtmp + 1))
                self("buffer_store_dword v%d, v%d, s[96:99], 0 offen offset:%d" % (vtmp + 1, vtmp, 4 * i))
                self("s_nop 1")
            self.label("L_dbg_skip")
        self("s_lshl_b32 s3, s2, 3")
        self("s_add_u32 s3, s3, s%d" % swave)
        self("s_lshl_b32 s3, s3, 6")
        self("s_add_u32 s3, s3, %d" % (WS_TS + (int(kern[1]) * 131072 if INSTR == "all" else 0)))
        self("v_mov_b32 v%d, 0" % vtmp)
        for i in range(self.nts):
            self("v_mov_b32 v%d, s%d" % (vtmp + 1, 64 + 2 * i))
            self("buffer_store_dword v%d, v%d, s[20:23], s3 offen offset:%d" % (vtmp + 1, vtmp, 4 * i))
            self("s_nop 1")
        for i, r in enumerate((92, 94)):
            self("v_mov_b32 v%d, s%d" % (vtmp + 1, r))
            self("buffer_store_dword v%d, v%d, s[20:23], s3 offen offset:%d" % (vtmp + 1, vtmp, 56 + 4 * i))
            self("s_nop 1")
        self.nts = 0

    def __call__(self, s):
        for line in s.strip("\n").split("\n"):
            self.L.append("    " + line.strip())

    def label(self, s):
        self.L.append(s + ":")

    def raw(self, s):
        self.L.append(s)

    def text(self):
        return "\n".join(self.L) + "\n"


def vr(b, n=4):
    return "v[%d:%d]" % (b, b + n - 1)


def ar(b, n=4):
    return "a[%d:%d]" % (b, b + n - 1)


def srd(a, sbase, sptr, nbytes):
    a("s_mov_b32 s%d, s%d" % (sbase, sptr))
    a("s_mov_b32 s%d, s%d" % (sbase + 1, sptr + 1))
    a("s_mov_b32 s%d, 0x%x" % (sbase + 2, nbytes))
    a("s_mov_b32 s%d, 0x00020000" % (sbase + 3))


def kernel_begin(a, name):
    a.raw(".globl %s" % name)
    a.raw(".p2align 8")
    a.raw(".type %s,@function" % name)
    a.label(name)


def kernel_desc(name, nvgpr, nagpr, nsgpr=102):
    acc = (nvgpr + 3) // 4 * 4
    nfv = acc + nagpr if nagpr else nvgpr
    return """.p2align 6
.amdhsa_kernel %s
  .amdhsa_next_free_vgpr %d
  .amdhsa_next_free_sgpr %d
  .amdhsa_accum_offset %d
  .amdhsa_group_segment_fixed_size 0
  .amdhsa_kernarg_size 80
  .amdhsa_user_sgpr_count 2
  .amdhsa_user_sgpr_kernarg_segment_ptr 1
  .amdhsa_system_sgpr_workgroup_id_x 1
.end_amdhsa_kernel
""" % (name, nfv, nsgpr, acc)


def interleave(main, fill, per=None):
    out = []
    n = len(main)
    fi = 0
    for i, m in enumerate(main):
        out.append(m)
        tgt = (len(fill) * (i + 1) + n - 1) // n if per is None else min(len(fill), per * (i + 1))
        while fi < tgt:
            out.append(fill[fi])
            fi += 1
    out += fill[fi:]
    return out


class Lds:
    def __init__(self, a):
        self.a = a
        self.n = 0
        self.done = 0
        self.idx = {}

    def op(self, text, tag=None):
        self.a(text)
        self.n += 1
        if tag is not None:
            self.idx[tag] = self.n

    def need(self, *tags):
        k = max(self.idx[t] for t in tags)
        if k > self.done:
            w = self.n - k
            assert w <= 15
            self.a("s_waitcnt lgkmcnt(%d)" % w)
            self.done = k

    def drain(self):
        if self.done < self.n:
            self.a("s_waitcnt lgkmcnt(0)")
            self.done = self.n


def make_sel(a, vlane, vsel, vt):
    a("v_lshrrev_b32 v%d, 2, v%d" % (vt, vlane))
    a("v_lshrrev_b32 v%d, 4, v%d" % (vsel, vlane))
    a("v_xor_b32 v%d, v%d, v%d" % (vt, vt, vsel))
    a("v_and_b32 v%d, 1, v%d" % (vt, vt))
    a("v_add_u32 v%d, -1, v%d" % (vt, vt))
    a("v_and_b32 v%d, 0x%x, v%d" % (vsel, ONES_BF16, vt))
    for i in range(1, 4):
        a("v_mov_b32 v%d, v%d" % (vsel + i, vsel))


def split_hi_lo_A(a, vc, vdst, vt, smask):
    a("v_cvt_pk_bf16_f32 v%d, v%d, v%d" % (vt, vc, vc))
    a("v_and_b32 v%d, s%d, v%d" % (vt, smask, vt))
    a("v_sub_f32 v%d, v%d, v%d" % (vt, vc, vt))
    a("v_cvt_pk_bf16_f32 v%d, v%d, v%d" % (vdst, vc, vt))
    a("v_mov_b32 v%d, v%d" % (vdst + 1, vdst))
    a("v_mov_b32 v%d, 0" % (vdst + 2))
    a("v_mov_b32 v%d, 0" % (vdst + 3))


def split_hi_lo_B(a, vm, vdst, vt, smask):
    a("v_cvt_pk_bf16_f32 v%d, v%d, v%d" % (vdst, vm, vm))
    a("v_and_b32 v%d, s%d, v%d" % (vt, smask, vdst))
    a("v_sub_f32 v%d, v%d, v%d" % (vt, vm, vt))
    a("v_cvt_pk_bf16_f32 v%d, v%d, v%d" % (vdst + 1, vt, vt))
    a("v_mov_b32 v%d, 0" % (vdst + 2))
    a("v_mov_b32 v%d, 0" % (vdst + 3))


def sum_halves(a, v, vt):
    a("v_mov_b32 v%d, v%d" % (vt, v))
    a("s_nop 1")
    a("v_permlane32_swap_b32 v%d, v%d" % (v, vt))
    a("s_nop 1")
    a("v_add_f32 v%d, v%d, v%d" % (v, v, vt))


SLOT = 28672
NSLOT = 5
K1_DIST = int(os.environ.get('K1_DIST', 2))
DIAG = os.environ.get('DIAG', '')
K1_ROT = int(os.environ.get('K1_ROT', 1))
K4_ROT = int(os.environ.get('K4_ROT', 0))
K2_ROT = int(os.environ.get('K2_ROT', 0))
K4_DIST = int(os.environ.get('K4_DIST', 2))


def slot_base_adjust(stage):
    slot = stage % NSLOT
    return (slot // 2) * 2 * SLOT, (slot % 2) * SLOT


def gen_k1(a):
    name = "k1_qkv_kernel"
    kernel_begin(a, name)
    NS1 = 4
    LDS_SCR = NS1 * SLOT
    SCR_RS, SCR_BF = LDS_SCR + 1536, LDS_SCR + 2048
    S_WAVE, S_RB, S_CG, S_KC, S_SX, S_SW, S_T0, S_T1, S_MASK, S_M0X, S_M0W = 24, 25, 26, 27, 28, 29, 30, 31, 32, 33, 34
    S_ROLE = 42
    V_LANE = 1
    V_T = 2
    V_DX = 8
    V_DW = 12
    V_AX = 13
    V_AW = 17
    V_SEL = 24
    V_SQ = 28
    V_X = [32, 36]
    V_W = [[40, 44, 48], [52, 56, 60]]
    V_ACC = [64, 80, 96]
    V_TMP = 112
    a("s_cmp_ge_u32 s2, 256")
    a("s_cbranch_scc1 L_k1_end")
    a.ts("k1")
    a("s_load_dwordx4 s[4:7], s[0:1], %d" % ARG_X)
    a("s_load_dwordx2 s[8:9], s[0:1], %d" % ARG_WS)
    a("v_lshrrev_b32 v%d, 6, v0" % V_T)
    a("v_and_b32 v%d, 63, v0" % V_LANE)
    a("v_readfirstlane_b32 s%d, v%d" % (S_ROLE, V_T))
    a("s_and_b32 s3, s2, 7")
    a("s_lshr_b32 s%d, s2, 3" % S_T0)
    a("s_lshr_b32 s%d, s3, 1" % S_RB)
    a("s_lshl_b32 s%d, s%d, 2" % (S_RB, S_RB))
    a("s_and_b32 s%d, s%d, 3" % (S_T1, S_T0))
    a("s_add_u32 s%d, s%d, s%d" % (S_RB, S_RB, S_T1))
    a("s_and_b32 s%d, s3, 1" % S_CG)
    a("s_lshl_b32 s%d, s%d, 3" % (S_CG, S_CG))
    a("s_lshr_b32 s%d, s%d, 2" % (S_T1, S_T0))
    a("s_add_u32 s%d, s%d, s%d" % (S_CG, S_CG, S_T1))
    a("s_and_b32 s%d, s%d, 3" % (S_WAVE, S_ROLE))
    a("s_lshl_b32 s%d, s%d, 12" % (S_M0X, S_WAVE))
    a("s_mul_i32 s%d, s%d, 3072" % (S_M0W, S_WAVE))
    a("s_add_u32 s%d, s%d, 16384" % (S_M0W, S_M0W))
    a("s_mov_b32 s%d, 0xffff0000" % S_MASK)

    def lds_addr_setup(rotate):
        a("v_and_b32 v%d, 31, v%d" % (V_T, V_LANE))
        a("v_and_b32 v%d, 3, v%d" % (V_T + 1, V_LANE))
        a("v_lshrrev_b32 v%d, 2, v%d" % (V_T + 2, V_T))
        a("v_lshlrev_b32 v%d, 7, v%d" % (V_T + 2, V_T + 2))
        a("v_lshl_add_u32 v%d, v%d, 10, v%d" % (V_T + 2, V_T + 1, V_T + 2))
        a("v_add_u32 v%d, s%d, v%d" % (V_T + 2, S_M0X, V_T + 2))
        a("v_lshrrev_b32 v%d, 1, v%d" % (V_T + 3, V_T))
        a("v_and_b32 v%d, 4, v%d" % (V_T + 3, V_T + 3))
        a("v_or_b32 v%d, v%d, v%d" % (V_T + 3, V_T + 3, V_T + 1))
        a("v_lshrrev_b32 v%d, 5, v%d" % (V_T + 4, V_LANE))
        a("v_xor_b32 v%d, v%d, v%d" % (V_T + 3, V_T + 3, V_T + 4))
        a("v_bfe_u32 v%d, v%d, 2, 2" % (V_T + 5, V_LANE))
        a("v_lshl_add_u32 v%d, v%d, 3, v%d" % (V_T + 5, V_T + 4, V_T + 5))
        a("v_lshlrev_b32 v%d, 6, v%d" % (V_T + 5, V_T + 5))
        a("v_bfe_u32 v%d, v%d, 4, 1" % (V_T + 4, V_LANE))
        a("v_lshl_add_u32 v%d, v%d, 5, v%d" % (V_T + 5, V_T + 4, V_T + 5))
        a("v_lshl_add_u32 v%d, v%d, 3, v%d" % (V_T + 5, V_T + 1, V_T + 5))
        for ks in range(4):
            a("v_xor_b32 v%d, %d, v%d" % (V_T + 4, 2 * ks, V_T + 3))
            a("v_lshl_add_u32 v%d, v%d, 4, v%d" % (V_AX + ks, V_T + 4, V_T + 2))

    a("s_cmp_ge_u32 s%d, 8" % S_ROLE)
    a("s_cbranch_scc1 L_k1_stats")
    a("s_cmp_ge_u32 s%d, 4" % S_ROLE)
    a("s_cbranch_scc1 L_k1_compute")
    if K1_ROT:
        a("s_add_u32 s%d, s%d, s%d" % (S_KC, S_RB, S_CG))
        a("s_and_b32 s%d, s%d, 7" % (S_KC, S_KC))
    else:
        a("s_mov_b32 s%d, 0" % S_KC)
    a("v_lshrrev_b32 v%d, 3, v%d" % (V_T, V_LANE))
    a("v_lshlrev_b32 v%d, 12, v%d" % (V_T, V_T))
    a("v_and_b32 v%d, 7, v%d" % (V_T + 1, V_LANE))
    a("v_lshrrev_b32 v%d, 2, v%d" % (V_T + 2, V_LANE))
    a("v_and_b32 v%d, 4, v%d" % (V_T + 2, V_T + 2))
    a("v_xor_b32 v%d, v%d, v%d" % (V_T + 1, V_T + 1, V_T + 2))
    for q in range(4):
        a("v_xor_b32 v%d, %d, v%d" % (V_T + 3, q, V_T + 1))
        a("v_lshl_add_u32 v%d, v%d, 4, v%d" % (V_DX + q, V_T + 3, V_T))
    a("v_lshrrev_b32 v%d, 2, v%d" % (V_T, V_LANE))
    a("v_mul_u32_u24 v%d, 3072, v%d" % (V_T, V_T))
    a("v_and_b32 v%d, 3, v%d" % (V_T + 1, V_LANE))
    a("v_lshl_add_u32 v%d, v%d, 4, v%d" % (V_DW, V_T + 1, V_T))
    a("s_lshl_b32 s%d, s%d, 2" % (S_T0, S_RB))
    a("s_add_u32 s%d, s%d, s%d" % (S_T0, S_T0, S_WAVE))
    a("s_lshl_b32 s%d, s%d, 15" % (S_SX, S_T0))
    a("s_mul_i32 s%d, s%d, %d" % (S_SW, S_WAVE, 16 * 3072))
    a("s_lshl_b32 s%d, s%d, 6" % (S_T1, S_CG))
    a("s_add_u32 s%d, s%d, s%d" % (S_SW, S_SW, S_T1))
    S_OX, S_OW, S_SLOT, S_CNT, S_RD = 38, 39, 40, 41, 43
    a("s_mov_b32 s%d, 0" % S_SLOT)
    a("s_mov_b32 s%d, 0" % S_CNT)
    a("s_waitcnt lgkmcnt(0)")
    srd(a, 12, 4, 2048 * 1024)
    srd(a, 16, 6, 512 * 3072)

    def issue():
        a("s_lshl_b32 s%d, s%d, 7" % (S_OX, S_KC))
        a("s_add_u32 s%d, s%d, s%d" % (S_OX, S_OX, S_SX))
        a("s_add_u32 m0, s%d, s%d" % (S_M0X, S_SLOT))
        a("s_mul_i32 s%d, s%d, %d" % (S_OW, S_KC, 64 * 3072))
        for q in range(4):
            a("buffer_load_dwordx4 v%d, s[12:15], s%d offen offset:%d lds" % (V_DX + q, S_OX, q * 1024))
        a("s_add_u32 m0, s%d, s%d" % (S_M0W, S_SLOT))
        a("s_add_u32 s%d, s%d, s%d" % (S_OW, S_OW, S_SW))
        for sx in range(3):
            a("buffer_load_dwordx4 v%d, s[16:19], s%d offen offset:%d lds" % (V_DW, S_OW, sx * 1024))
        a("s_add_u32 s%d, s%d, 1" % (S_KC, S_KC))
        a("s_and_b32 s%d, s%d, 7" % (S_KC, S_KC))
        a("s_add_u32 s%d, s%d, %d" % (S_SLOT, S_SLOT, SLOT))
        a("s_cmp_eq_u32 s%d, %d" % (S_SLOT, NS1 * SLOT))
        a("s_cselect_b32 s%d, 0, s%d" % (S_SLOT, S_SLOT))

    a.label("L_k1_ld")
    issue()
    a("s_add_u32 s%d, s%d, 1" % (S_CNT, S_CNT))
    a("s_cmp_lt_u32 s%d, %d" % (S_CNT, K1_DIST))
    a("s_cbranch_scc1 L_k1_ld")
    a("s_waitcnt vmcnt(%d)" % (7 * (K1_DIST - 1)))
    a("s_barrier")
    a("s_cmp_lt_u32 s%d, 8" % S_CNT)
    a("s_cbranch_scc1 L_k1_ld")
    for r in range(K1_DIST - 2, -1, -1):
        a("s_waitcnt vmcnt(%d)" % (7 * r))
        a("s_barrier")
    a("s_endpgm")
    a.label("L_k1_stats")
    LX = [64, 68, 72, 76]
    LW = [80, 84, 88]
    L_SX = 92
    L_CS = [96, 100, 104]
    lds_addr_setup(False)
    a("v_add_u32 v%d, s%d, v%d" % (V_AW, S_M0W, V_T + 5))
    make_sel(a, V_LANE, V_SEL, V_T)
    for r in [V_SQ, V_SQ + 1] + list(range(L_SX, L_SX + 16)):
        a("v_mov_b32 v%d, 0" % r)
    a("s_mov_b32 s44, %d" % SLOT)
    a("s_mov_b32 s%d, 0" % S_CNT)
    a.label("L_k1_st")
    a("s_barrier")
    for ks in range(4):
        a("ds_read_b128 %s, v%d" % (vr(LX[ks]), V_AX + ks))
    for sx in range(3):
        for rd in range(2):
            a("ds_read_b64_tr_b16 %s, v%d offset:%d" % (vr(LW[sx] + 2 * rd, 2), V_AW, sx * 1024 + rd * 256))
    a("s_add_u32 s%d, s%d, 1" % (S_CNT, S_CNT))
    a("s_and_b32 s%d, s%d, %d" % (S_T0, S_CNT, NS1 - 1))
    a("s_cmp_eq_u32 s%d, 0" % S_T0)
    a("s_cselect_b32 s%d, %d, s44" % (S_RD, -(NS1 - 1) * SLOT))
    for ks in range(4):
        a("s_waitcnt lgkmcnt(%d)" % (9 - ks))
        a("v_mfma_f32_16x16x32_bf16 %s, %s, %s, %s" % (vr(L_SX), vr(V_SEL), vr(LX[ks]), vr(L_SX)))
        for d in range(4):
            t0, t1 = V_TMP + 2 * (d % 2), V_TMP + 2 * (d % 2) + 1
            a("v_lshlrev_b32 v%d, 16, v%d" % (t0, LX[ks] + d))
            a("v_and_b32 v%d, s%d, v%d" % (t1, S_MASK, LX[ks] + d))
            a("v_fmac_f32 v%d, v%d, v%d" % (V_SQ, t0, t0))
            a("v_fmac_f32 v%d, v%d, v%d" % (V_SQ + 1, t1, t1))
        if ks == 1:
            a("s_waitcnt lgkmcnt(0)")
            for sx in range(3):
                a("v_mfma_f32_16x16x32_bf16 %s, %s, %s, %s" % (vr(L_CS[sx]), vr(V_SEL), vr(LW[sx]), vr(L_CS[sx])))
    for r in list(range(V_AX, V_AX + 4)) + [V_AW]:
        a("v_add_u32 v%d, s%d, v%d" % (r, S_RD, r))
    a("s_cmp_lt_u32 s%d, 8" % S_CNT)
    a("s_cbranch_scc1 L_k1_st")
    a("v_and_b32 v%d, 31, v%d" % (V_T, V_LANE))
    a("v_lshlrev_b32 v%d, 2, v%d" % (V_T, V_T))
    a("s_mul_i32 s%d, s%d, 384" % (S_T0, S_WAVE))
    a("s_add_u32 s%d, s%d, %d" % (S_T0, S_T0, LDS_SCR))
    a("v_add_u32 v%d, s%d, v%d" % (V_T + 1, S_T0, V_T))
    for sx in range(3):
        a("ds_write_b32 v%d, v%d offset:%d" % (V_T + 1, L_CS[sx], sx * 128))
    a("v_add_f32 v%d, v%d, v%d" % (V_SQ, V_SQ, V_SQ + 1))
    sum_halves(a, V_SQ, V_SQ + 1)
    V_MU, V_RS = V_SQ + 2, V_SQ + 3
    a("v_mul_f32 v%d, 0x%x, v%d" % (V_MU, f32bits(1.0 / 512), L_SX))
    a("v_mul_f32 v%d, 0x%x, v%d" % (V_SQ, f32bits(1.0 / 512), V_SQ))
    a("v_fma_f32 v%d, -v%d, v%d, v%d" % (V_SQ, V_MU, V_MU, V_SQ))
    a("v_max_f32 v%d, 0, v%d" % (V_SQ, V_SQ))
    a("v_add_f32 v%d, 0x%x, v%d" % (V_SQ, f32bits(1e-5), V_SQ))
    a("v_rsq_f32 v%d, v%d" % (V_RS, V_SQ))
    a("v_sub_f32 v%d, 0, v%d" % (V_MU, V_MU))
    a("s_lshl_b32 s%d, s%d, 7" % (S_T0, S_WAVE))
    a("s_add_u32 s%d, s%d, %d" % (S_T0, S_T0, SCR_RS))
    a("v_add_u32 v%d, s%d, v%d" % (V_T + 2, S_T0, V_T))
    a("ds_write_b32 v%d, v%d" % (V_T + 2, V_RS))
    split_hi_lo_B(a, V_MU, LX[0], V_T + 4, S_MASK)
    a("s_lshl_b32 s%d, s%d, 9" % (S_T0, S_WAVE))
    a("s_add_u32 s%d, s%d, %d" % (S_T0, S_T0, SCR_BF))
    a("v_lshl_add_u32 v%d, v%d, 3, s%d" % (V_T + 3, V_LANE, S_T0))
    a("ds_write_b64 v%d, %s" % (V_T + 3, vr(LX[0], 2)))
    a("s_waitcnt lgkmcnt(0)")
    a("s_barrier")
    a("s_endpgm")
    a.label("L_k1_compute")
    lds_addr_setup(False)
    a("v_add_u32 v%d, 16384, v%d" % (V_AW, V_T + 5))
    V_ECS, V_ERS, V_ERV, V_EBF, V_OQ, V_OV = 18, 19, 20, 21, 22, 23
    a("v_and_b32 v%d, 31, v%d" % (V_T, V_LANE))
    a("v_lshlrev_b32 v%d, 2, v%d" % (V_T, V_T))
    a("v_lshrrev_b32 v%d, 5, v%d" % (V_T + 2, V_LANE))
    a("v_mul_u32_u24 v%d, 768, v%d" % (V_T + 3, V_T + 2))
    a("v_add_u32 v%d, v%d, v%d" % (V_T + 3, V_T + 3, V_T))
    a("v_add_u32 v%d, %d, v%d" % (V_ECS, LDS_SCR, V_T + 3))
    a("s_lshl_b32 s%d, s%d, 7" % (S_T0, S_WAVE))
    a("s_add_u32 s%d, s%d, %d" % (S_T0, S_T0, SCR_RS))
    a("v_add_u32 v%d, s%d, v%d" % (V_ERS, S_T0, V_T))
    a("v_lshl_add_u32 v%d, v%d, 4, s%d" % (V_ERV, V_T + 2, S_T0))
    a("s_lshl_b32 s%d, s%d, 9" % (S_T0, S_WAVE))
    a("s_add_u32 s%d, s%d, %d" % (S_T0, S_T0, SCR_BF))
    a("v_lshl_add_u32 v%d, v%d, 3, s%d" % (V_EBF, V_LANE, S_T0))
    a("v_lshlrev_b32 v%d, 4, v%d" % (V_OQ, V_LANE))
    a("v_bfe_u32 v%d, v%d, 4, 1" % (V_T + 1, V_LANE))
    a("v_lshlrev_b32 v%d, 16, v%d" % (V_T + 1, V_T + 1))
    a("v_lshl_add_u32 v%d, v%d, 8, v%d" % (V_T + 1, V_T + 2, V_T + 1))
    a("v_and_b32 v%d, 15, v%d" % (V_T + 2, V_LANE))
    a("v_lshl_add_u32 v%d, v%d, 4, v%d" % (V_OV, V_T + 2, V_T + 1))
    a("s_lshl_b32 s%d, s%d, 2" % (S_T0, S_RB))
    a("s_add_u32 s%d, s%d, s%d" % (S_T0, S_T0, S_WAVE))
    a("s_lshl_b32 s%d, s%d, 10" % (S_T0, S_T0))
    a("s_lshl_b32 s%d, s%d, 17" % (S_T1, S_CG))
    a("s_add_u32 s%d, s%d, s%d" % (S_T0, S_T0, S_T1))
    a("s_add_u32 s%d, s%d, 65536" % (S_T1, S_T0))
    a("s_add_u32 s35, s%d, %d" % (S_T0, WS_K))
    a("s_add_u32 s36, s%d, %d" % (S_T1, WS_K))
    a("s_add_u32 s37, s%d, %d" % (S_T0, WS_V))
    VB = V_TMP
    VA = [V_TMP + 4, V_TMP + 8, V_TMP + 12]
    for r in (VB + 2, VB + 3):
        a("v_mov_b32 v%d, 0" % r)
    cur_base = [0]

    def reads(P):
        st, ks = P // 4, P % 4
        slot = st % NS1
        base, imm = (slot // 2) * 2 * SLOT, (slot % 2) * SLOT
        out = []
        if base != cur_base[0]:
            d = base - cur_base[0]
            for r in list(range(V_AX, V_AX + 4)) + [V_AW]:
                out.append("v_add_u32 v%d, %d, v%d" % (r, d, r) if d > 0 else "v_subrev_u32 v%d, %d, v%d" % (r, -d, r))
            cur_base[0] = base
        b = P % 2
        out.append("ds_read_b128 %s, v%d offset:%d" % (vr(V_X[b]), V_AX + ks, imm))
        for sx in range(3):
            for rd in range(2):
                out.append("ds_read_b64_tr_b16 %s, v%d offset:%d" % (vr(V_W[b][sx] + 2 * rd, 2), V_AW, imm + ks * 3072 + sx * 1024 + rd * 256))
        return out

    a("s_waitcnt lgkmcnt(0)")
    srd(a, 20, 8, WS_SIZE)
    a("s_cmp_ge_u32 s2, 4")
    a("s_cbranch_scc1 L_k1_nozero")
    for r in range(4):
        a("v_mov_b32 v%d, 0" % (V_ACC[0] + r))
    a("s_lshl_b32 s3, s2, 2")
    a("s_add_u32 s3, s3, s%d" % S_WAVE)
    a("s_lshl_b32 s3, s3, 10")
    a("s_add_u32 s3, s3, %d" % WS_FL)
    a("buffer_store_dwordx4 %s, v%d, s[20:23], s3 offen" % (vr(V_ACC[0]), V_OQ))
    a.label("L_k1_nozero")
    a.ts("k1")
    a("s_barrier")
    a.ts("k1")
    for l in reads(0):
        a(l)
    for P in range(32):
        st, pos = P // 4, P % 4
        b = P % 2
        a("s_waitcnt lgkmcnt(0)")
        if pos == 3 and P < 31:
            a("s_barrier")
        rd = reads(P + 1) if P < 31 else []
        X = vr(V_X[b])
        c = lambda r, n=16: ("0" if P == 0 else vr(r, n))
        m = []
        m.append("v_mfma_f32_32x32x16_bf16 %s, %s, %s, %s" % (vr(V_ACC[0], 16), vr(V_W[b][0]), X, c(V_ACC[0])))
        m.append("v_mfma_f32_32x32x16_bf16 %s, %s, %s, %s" % (vr(V_ACC[1], 16), vr(V_W[b][1]), X, c(V_ACC[1])))
        m.append("v_mfma_f32_32x32x16_bf16 %s, %s, %s, %s" % (vr(V_ACC[2], 16), X, vr(V_W[b][2]), c(V_ACC[2])))
        nfirst = 3 if len(rd) <= 8 else 8
        for l in rd[:nfirst]:
            a(l)
        for l in interleave(m, rd[nfirst:], per=2):
            a(l)
    a.ts("k1")
    a("s_barrier")
    VC = V_TMP + 16
    V_RS = V_TMP + 22
    V_RQ = V_TMP + 23
    VR = V_TMP + 24
    for sx in range(3):
        a("ds_read2_b32 %s, v%d offset0:%d offset1:%d" % (vr(VC + 2 * sx, 2), V_ECS, sx * 32, sx * 32 + 96))
    a("ds_read_b64 %s, v%d" % (vr(VB, 2), V_EBF))
    a("ds_read_b32 v%d, v%d" % (V_RS, V_ERS))
    for q in range(4):
        a("ds_read_b128 %s, v%d offset:%d" % (vr(VR + 4 * q), V_ERV, q * 32))
    for sx in range(3):
        a("s_waitcnt lgkmcnt(%d)" % (8 - sx))
        a("v_add_f32 v%d, v%d, v%d" % (VC + 2 * sx, VC + 2 * sx, VC + 2 * sx + 1))
        split_hi_lo_A(a, VC + 2 * sx, VA[sx], V_T + 4, S_MASK)
    a("s_waitcnt lgkmcnt(4)")
    a("v_mul_f32 v%d, 0x%x, v%d" % (V_RQ, f32bits(0.25 * math.log2(math.e)), V_RS))
    a("v_mfma_f32_32x32x16_bf16 %s, %s, %s, %s" % (vr(V_ACC[0], 16), vr(VA[0]), vr(VB), vr(V_ACC[0], 16)))
    a("v_mfma_f32_32x32x16_bf16 %s, %s, %s, %s" % (vr(V_ACC[1], 16), vr(VA[1]), vr(VB), vr(V_ACC[1], 16)))
    a("v_mfma_f32_32x32x16_bf16 %s, %s, %s, %s" % (vr(V_ACC[2], 16), vr(VB), vr(VA[2]), vr(V_ACC[2], 16)))
    a("s_nop 9")
    VO = V_X[0]
    k = 0
    for blk, sc, soffs in ((0, V_RQ, (S_T0, S_T1)), (1, V_RS, (35, 36))):
        for half in range(2):
            o = VO + 4 * k
            k += 1
            for i in range(8):
                r = V_ACC[blk] + 8 * half + i
                a("v_mul_f32 v%d, v%d, v%d" % (r, sc, r))
            for i in range(4):
                r = V_ACC[blk] + 8 * half + 2 * i
                a("v_cvt_pk_bf16_f32 v%d, v%d, v%d" % (o + i, r, r + 1))
            a("buffer_store_dwordx4 %s, v%d, s[20:23], s%d offen" % (vr(o), V_OQ, soffs[half]))
    a("s_waitcnt lgkmcnt(0)")
    for half in range(2):
        o = VO + 4 * k
        k += 1
        for i in range(8):
            r = V_ACC[2] + 8 * half + i
            a("v_mul_f32 v%d, v%d, v%d" % (r, VR + 8 * half + i, r))
        for i in range(4):
            r = V_ACC[2] + 8 * half + 2 * i
            a("v_cvt_pk_bf16_f32 v%d, v%d, v%d" % (o + i, r, r + 1))
        a("buffer_store_dwordx4 %s, v%d, s[20:23], s37 offen offset:%d" % (vr(o), V_OV, half * 512))
    a.ts_flush("k1", S_WAVE, V_T)
    a.label("L_k1_end")
    a("s_endpgm")
    return name, 152, 0, (256, 768, LDS_SCR + 4096)


def gen_k2(a):
    name = "k2_attn_kernel"
    kernel_begin(a, name)
    S_WAVE, S_H, S_QB, S_T0, S_T1, S_T2, S_T3 = 40, 41, 42, 43, 44, 45, 46
    S_ITER, S_SYNC, S_PASS, S_NT = 47, 48, 49, 50
    S_TASK, S_STG, S_DST0, S_DST1, S_TYPE = 51, 52, 53, 54, 55
    S_VMASK = 56
    S_CS = 58
    S_KB, S_W1K, S_CH = 59, 60, 61
    S_PE, S_PO, S_PS = 36, 37, 38
    V_LANE, V_L16, V_T = 1, 2, 3
    V_KA, V_VA = 10, 11
    V_Q = 12
    V_K = [16, 20]
    V_V = [24, 32]
    V_P = 40
    V_CM = 48
    V_S = [64, 80]
    V_O = 96
    V_MAX = 112
    V_PK = 113
    V_PD = 114
    V_SEL = 116
    V_PCS = [120, 124]
    STG = 131072
    a("s_cmp_ge_u32 s2, 256")
    a("s_cbranch_scc1 L_k2_end")
    a.ts("k2")
    a.ts("k2b")
    a("s_load_dwordx2 s[8:9], s[0:1], %d" % ARG_WS)
    a("s_load_dwordx2 s[4:5], s[0:1], %d" % ARG_WO)
    a("s_load_dwordx4 s[24:27], s[0:1], %d" % ARG_WG)
    a("s_load_dwordx2 s[6:7], s[0:1], %d" % ARG_WD)
    a("v_lshrrev_b32 v%d, 6, v0" % V_T)
    a("v_and_b32 v%d, 63, v0" % V_LANE)
    a("v_readfirstlane_b32 s%d, v%d" % (S_WAVE, V_T))
    a("v_lshlrev_b32 v%d, 4, v%d" % (V_L16, V_LANE))
    a("s_and_b32 s%d, s2, 7" % S_H)
    a("s_lshl_b32 s%d, s%d, 2" % (S_H, S_H))
    a("s_lshr_b32 s%d, s2, 6" % S_T0)
    a("s_add_u32 s%d, s%d, s%d" % (S_H, S_H, S_T0))
    a("s_lshr_b32 s%d, s2, 3" % S_QB)
    a("s_and_b32 s%d, s%d, 7" % (S_QB, S_QB))
    a("s_lshl_b32 s%d, s%d, 16" % (S_KB, S_H))
    a("s_lshl_b32 s%d, s%d, 10" % (S_W1K, S_WAVE))
    a("s_add_u32 s%d, s%d, s%d" % (S_KB, S_KB, S_W1K))
    a("s_lshl_b32 s%d, s%d, 13" % (S_CH, S_QB))
    a("s_add_u32 s%d, s%d, s%d" % (S_T3, S_KB, S_CH))
    a("s_add_u32 s%d, s%d, %d" % (S_KB, S_KB, WS_K))
    if not K2_ROT:
        a("s_mov_b32 s%d, 0" % S_CH)
    a("s_waitcnt lgkmcnt(0)")
    a.ts("k2b")
    srd(a, 20, 8, WS_SIZE)
    a("buffer_load_dwordx4 %s, v%d, s[20:23], s%d offen" % (vr(V_Q), V_L16, S_T3))
    if INSTR == "k2b":
        a("s_waitcnt vmcnt(0)")
    a.ts("k2b")

    def kv_dma(c):
        return [["s_add_u32 s%d, s%d, s%d" % (S_T3, S_KB, S_CH),
                 "s_add_u32 m0, s%d, %d" % (S_W1K, c * 8192),
                 "s_add_u32 s%d, s%d, 8192" % (S_CH, S_CH),
                 "buffer_load_dwordx4 v%d, s[20:23], s%d offen lds" % (V_L16, S_T3)],
                ["s_add_u32 s%d, s%d, %d" % (S_T3, S_T3, WS_V - WS_K),
                 "s_add_u32 m0, s%d, %d" % (S_W1K, 65536 + c * 8192),
                 "s_and_b32 s%d, s%d, 0xffff" % (S_CH, S_CH),
                 "buffer_load_dwordx4 v%d, s[20:23], s%d offen lds" % (V_L16, S_T3)]]

    for c in range(2):
        for g in kv_dma(c):
            for l in g:
                a(l)
    a("s_mov_b32 s%d, 0" % S_TYPE)
    a("s_cmp_lt_u32 s%d, 4" % S_WAVE)
    a("s_cbranch_scc1 L_k2_nopack")
    a("s_lshl_b32 s%d, s2, 2" % S_TASK)
    a("s_add_u32 s%d, s%d, s%d" % (S_TASK, S_TASK, S_WAVE))
    a("s_sub_u32 s%d, s%d, 4" % (S_TASK, S_TASK))
    a("s_cmp_ge_u32 s%d, 736" % S_TASK)
    a("s_cbranch_scc1 L_k2_nopack")
    a("s_lshl_b32 s%d, s%d, 13" % (S_STG, S_WAVE))
    a("s_add_u32 s%d, s%d, %d" % (S_STG, S_STG, STG - 4 * 8192))
    a("v_lshrrev_b32 v%d, 2, v%d" % (V_T, V_LANE))
    a("v_and_b32 v%d, 3, v%d" % (V_T + 1, V_LANE))
    a("s_cmp_ge_u32 s%d, 448" % S_TASK)
    a("s_cbranch_scc1 L_k2_packn")
    a("s_mov_b32 s%d, 1" % S_TYPE)
    srd(a, 28, 24, 512 * 3584)
    srd(a, 32, 26, 512 * 3584)
    a("v_mul_u32_u24 v%d, 3584, v%d" % (V_T, V_T))
    a("v_lshl_add_u32 v%d, v%d, 4, v%d" % (V_PD, V_T + 1, V_T))
    a("s_and_b32 s%d, s%d, 7" % (S_T0, S_TASK))
    a("s_lshr_b32 s%d, s%d, 3" % (S_T1, S_TASK))
    a("s_mul_i32 s%d, s%d, %d" % (S_PE, S_T0, 64 * 3584))
    a("s_lshl_b32 s%d, s%d, 6" % (S_T2, S_T1))
    a("s_add_u32 s%d, s%d, s%d" % (S_PE, S_PE, S_T2))
    a("s_mov_b32 s%d, s%d" % (S_PO, S_PE))
    a("s_mov_b32 s%d, %d" % (S_PS, 16 * 3584))
    for hb, sd in ((0, S_DST0), (1, S_DST1)):
        a("s_lshl_b32 s%d, s%d, 1" % (S_T2, S_T1))
        if hb:
            a("s_add_u32 s%d, s%d, 1" % (S_T2, S_T2))
        a("s_mul_i32 s%d, s%d, 9363" % (S_CS, S_T2))
        a("s_lshr_b32 s%d, s%d, 16" % (S_CS, S_CS))
        a("s_mul_i32 s%d, s%d, 7" % (sd, S_CS))
        a("s_sub_u32 s%d, s%d, s%d" % (sd, S_T2, sd))
        a("s_mul_i32 s%d, s%d, %d" % (S_CS, S_CS, 32 * 7))
        a("s_add_u32 s%d, s%d, s%d" % (sd, sd, S_CS))
        a("s_mul_i32 s%d, s%d, 28" % (S_CS, S_T0))
        a("s_add_u32 s%d, s%d, s%d" % (sd, sd, S_CS))
        a("s_lshl_b32 s%d, s%d, 10" % (sd, sd))
        a("s_add_u32 s%d, s%d, %d" % (sd, sd, WS_GU))
    a("s_lshl_b32 s%d, s%d, 11" % (S_CS, S_T1))
    a("s_lshr_b32 s%d, s%d, 2" % (S_T2, S_T0))
    a("s_lshl_b32 s%d, s%d, 9" % (S_T2, S_T2))
    a("s_add_u32 s%d, s%d, s%d" % (S_CS, S_CS, S_T2))
    a("s_and_b32 s%d, s%d, 3" % (S_T2, S_T0))
    a("s_lshl_b32 s%d, s%d, 2" % (S_T2, S_T2))
    a("s_add_u32 s%d, s%d, s%d" % (S_CS, S_CS, S_T2))
    a("s_add_u32 s%d, s%d, %d" % (S_CS, S_CS, WS_CS))
    a("s_branch L_k2_nopack")
    a.label("L_k2_packn")
    a("s_mov_b32 s%d, 2" % S_TYPE)
    a("v_lshlrev_b32 v%d, 10, v%d" % (V_T, V_T))
    a("v_lshl_add_u32 v%d, v%d, 4, v%d" % (V_PD, V_T + 1, V_T))
    a("s_cmp_ge_u32 s%d, 512" % S_TASK)
    a("s_cbranch_scc1 L_k2_packd")
    srd(a, 28, 4, 512 * 1024)
    srd(a, 32, 4, 512 * 1024)
    a("s_sub_u32 s%d, s%d, 448" % (S_T0, S_TASK))
    a("s_lshr_b32 s%d, s%d, 2" % (S_T1, S_T0))
    a("s_and_b32 s%d, s%d, 3" % (S_T0, S_T0))
    a("s_lshl_b32 s%d, s%d, 15" % (S_DST0, S_T1))
    a("s_add_u32 s%d, s%d, %d" % (S_DST0, S_DST0, WS_WO))
    a("s_branch L_k2_packc")
    a.label("L_k2_packd")
    srd(a, 28, 6, 1792 * 1024)
    srd(a, 32, 6, 1792 * 1024)
    a("s_sub_u32 s%d, s%d, 512" % (S_T0, S_TASK))
    a("s_mul_i32 s%d, s%d, 4682" % (S_T1, S_T0))
    a("s_lshr_b32 s%d, s%d, 16" % (S_T1, S_T1))
    a("s_mul_i32 s%d, s%d, 14" % (S_T2, S_T1))
    a("s_sub_u32 s%d, s%d, s%d" % (S_T0, S_T0, S_T2))
    a("s_mul_i32 s%d, s%d, %d" % (S_DST0, S_T1, 112 * 1024))
    a("s_add_u32 s%d, s%d, %d" % (S_DST0, S_DST0, WS_WD))
    a.label("L_k2_packc")
    a("s_lshl_b32 s%d, s%d, 13" % (S_T2, S_T0))
    a("s_add_u32 s%d, s%d, s%d" % (S_DST0, S_DST0, S_T2))
    a("s_lshl_b32 s%d, s%d, 17" % (S_PE, S_T0))
    a("s_lshl_b32 s%d, s%d, 6" % (S_T2, S_T1))
    a("s_add_u32 s%d, s%d, s%d" % (S_PE, S_PE, S_T2))
    a("s_add_u32 s%d, s%d, 16384" % (S_PO, S_PE))
    a("s_mov_b32 s%d, 32768" % S_PS)
    a.label("L_k2_nopack")
    a("s_mov_b32 s%d, 0x0000ffff" % S_VMASK)
    a("s_mov_b32 s%d, 0x0000ffff" % (S_VMASK + 1))
    a("v_and_b32 v%d, 27, v%d" % (V_T, V_LANE))
    a("v_cmp_eq_u32 vcc, 16, v%d" % V_T)
    a("v_mov_b32 v%d, 0x%x" % (V_T + 1, ONES_BF16))
    a("s_nop 1")
    a("v_cndmask_b32 v%d, 0, v%d, vcc" % (V_V[0], V_T + 1))
    for i in range(1, 16):
        a("v_mov_b32 v%d, v%d" % (V_V[0] + i, V_V[0]))
    a("s_mov_b32 s%d, 0" % S_SYNC)
    a("s_mov_b32 s%d, 0" % S_PASS)
    a("s_mov_b32 s%d, 1" % S_NT)
    a("s_setprio 3")
    a.ts("k2b")
    a("s_waitcnt vmcnt(2)")
    a.ts("k2b")
    a("s_barrier")
    a.ts("k2")
    a.ts("k2b")
    a.label("L_k2_maxpass")
    a("v_mov_b32 v%d, 0xff800000" % V_MAX)
    a("v_mov_b32 v%d, v%d" % (V_KA, V_L16))
    a.label("L_k2_mloop")
    a("ds_read_b128 %s, v%d" % (vr(V_K[0]), V_KA))
    a("v_add_u32 v%d, 1024, v%d" % (V_KA, V_KA))
    a("s_waitcnt lgkmcnt(0)")
    a("v_mfma_f32_32x32x16_bf16 %s, %s, %s, 0" % (vr(V_S[0], 16), vr(V_K[0]), vr(V_Q)))
    a("s_nop 15")
    for i in range(8):
        a("v_max3_f32 v%d, v%d, v%d, v%d" % (V_MAX, V_S[0] + 2 * i, V_S[0] + 2 * i + 1, V_MAX))
    a("s_sub_u32 s%d, s%d, 1" % (S_NT, S_NT))
    a("s_cmp_lg_u32 s%d, 0" % S_NT)
    a("s_cbranch_scc1 L_k2_mloop")
    a("v_mov_b32 v%d, v%d" % (V_KA, V_L16))
    a("v_lshrrev_b32 v%d, 5, v%d" % (V_T, V_LANE))
    a("v_lshlrev_b32 v%d, 8, v%d" % (V_T, V_T))
    a("v_and_b32 v%d, 15, v%d" % (V_T + 1, V_LANE))
    a("v_lshl_add_u32 v%d, v%d, 4, v%d" % (V_VA, V_T + 1, V_T))
    a("v_add_u32 v%d, 65536, v%d" % (V_VA, V_VA))
    a("ds_read_b128 %s, v%d" % (vr(V_K[0]), V_KA))
    a("ds_read_b128 %s, v%d offset:1024" % (vr(V_K[1]), V_KA))
    a("s_mov_b64 exec, s[%d:%d]" % (S_VMASK, S_VMASK + 1))
    a("ds_read_b128 %s, v%d" % (vr(V_V[0]), V_VA))
    a("ds_read_b128 %s, v%d offset:512" % (vr(V_V[0] + 4), V_VA))
    a("s_mov_b64 exec, -1")
    a("v_mov_b32 v%d, v%d" % (V_T, V_MAX))
    a("s_nop 1")
    a("v_permlane32_swap_b32 v%d, v%d" % (V_MAX, V_T))
    a("s_nop 1")
    a("v_max_f32 v%d, v%d, v%d" % (V_MAX, V_MAX, V_T))
    for i in range(16):
        a("v_sub_f32 v%d, 0, v%d" % (V_CM + i, V_MAX))
    a("s_waitcnt lgkmcnt(0)")
    a("s_nop 0")
    a("v_mfma_f32_32x32x16_bf16 %s, %s, %s, %s" % (vr(V_S[0], 16), vr(V_K[0]), vr(V_Q), vr(V_CM, 16)))
    for i in range(16):
        a("v_mov_b32 v%d, 0" % (V_O + i))
    for i in range(4):
        a("v_mov_b32 v%d, 0" % (V_P + 4 + i))
    a("s_mov_b32 s%d, 8" % S_ITER)
    a.ts("k2")
    a("s_cmp_lg_u32 s%d, 0" % S_PASS)
    a("s_cbranch_scc1 L_k2_loop")

    def body(peeled):
        for t in range(8):
            cur, nxt = t % 2, (t + 1) % 2
            x1, x2 = [], []
            if peeled:
                if t < 6:
                    x1, x2 = kv_dma(t + 2)
                if t == 6:
                    a("s_waitcnt vmcnt(12)")
                    a("s_barrier")
                if t >= 6:
                    lab = "L_k2_np%d" % t
                    x1 = ["s_cmp_eq_u32 s%d, 0" % S_TYPE, "s_cbranch_scc1 %s" % lab]
                    for i in range(4 * (t - 6), 4 * (t - 6) + 4):
                        x1 += ["s_add_u32 m0, s%d, %d" % (S_STG, i * 1024), "s_nop 0",
                               "buffer_load_dwordx4 v%d, s[%d:%d], s%d offen lds" % (V_PD, 28 + 4 * (i % 2), 31 + 4 * (i % 2), S_PO if i % 2 else S_PE),
                               "s_add_u32 s%d, s%d, s%d" % ((S_PO, S_PO, S_PS) if i % 2 else (S_PE, S_PE, S_PS))]
                    x1 += [lab + ":"]
            else:
                if t == 0:
                    for k, r in enumerate((5, 2, 1)):
                        x1 += ["s_cmp_lg_u32 s%d, %d" % (S_ITER, r), "s_cbranch_scc1 L_k2_pp%d" % k, "s_setprio %d" % (2 - k), "L_k2_pp%d:" % k]
                if t == 6:
                    a("s_cmp_eq_u32 s%d, 0" % S_SYNC)
                    a("s_cbranch_scc1 L_k2_sync")
                    a.label("L_k2_syncret")
            S = V_S[cur]
            e = lambda i: "v_exp_f32 v%d, v%d" % (S + i, S + i)
            c = lambda i: "v_cvt_pk_bf16_f32 v%d, v%d, v%d" % (V_P + i, S + 2 * i, S + 2 * i + 1)
            pv = lambda b, h: "v_mfma_f32_32x32x16_bf16 %s, %s, %s, %s" % (vr(V_O, 16), vr(V_V[b] + 4 * h), vr(V_P + 4 * h), vr(V_O, 16))
            qk = "v_mfma_f32_32x32x16_bf16 %s, %s, %s, %s" % (vr(V_S[nxt], 16), vr(V_K[nxt]), vr(V_Q), vr(V_CM, 16))
            rdk = "ds_read_b128 %s, v%d offset:%d" % (vr(V_K[cur]), V_KA, (t + 2) * 1024)
            rdv = ["s_mov_b64 exec, s[%d:%d]" % (S_VMASK, S_VMASK + 1),
                   "ds_read_b128 %s, v%d offset:%d" % (vr(V_V[nxt]), V_VA, (t + 1) * 1024),
                   "ds_read_b128 %s, v%d offset:%d" % (vr(V_V[nxt] + 4), V_VA, (t + 1) * 1024 + 512),
                   "s_mov_b64 exec, -1"]
            seq = [e(0), e(1), pv(nxt, 1), e(2), "s_waitcnt lgkmcnt(0)", rdk, e(3)] + rdv + [c(0), e(4), e(5), c(1), e(6), e(7), qk, c(2), e(8)] + x1 + [e(9), c(3),
                   e(10), e(11), c(4), e(12), e(13), pv(cur, 0), c(5), e(14)] + x2 + [e(15), c(6)]
            if t == 7:
                seq += ["v_add_u32 v%d, 8192, v%d" % (V_KA, V_KA), "v_add_u32 v%d, 8192, v%d" % (V_VA, V_VA),
                        "s_sub_u32 s%d, s%d, 1" % (S_ITER, S_ITER), "s_cmp_lg_u32 s%d, 0" % S_ITER]
            seq += [c(7)]
            for l in seq:
                if l.endswith(":"):
                    a.label(l[:-1])
                else:
                    a(l)

    body(True)
    a.raw(".p2align 6")
    a.label("L_k2_loop")
    body(False)
    a("s_cbranch_scc1 L_k2_loop")
    a.ts("k2")
    a("s_nop 1")
    a("v_mfma_f32_32x32x16_bf16 %s, %s, %s, %s" % (vr(V_O, 16), vr(V_V[1] + 4), vr(V_P + 4), vr(V_O, 16)))
    a("s_waitcnt lgkmcnt(0)")
    a("s_lshl_b32 s%d, s%d, 3" % (S_T0, S_QB))
    a("s_add_u32 s%d, s%d, s%d" % (S_T0, S_T0, S_WAVE))
    a("s_lshl_b32 s%d, s%d, 5" % (S_T0, S_T0))
    a("s_add_u32 s%d, s%d, s%d" % (S_T0, S_T0, S_H))
    a("s_lshl_b32 s%d, s%d, 10" % (S_T0, S_T0))
    a("s_add_u32 s%d, s%d, %d" % (S_T0, S_T0, WS_O))
    a("s_nop 7")
    a("v_mul_f32 v%d, 0, v%d" % (V_T, V_O))
    for i in range(1, 8):
        a("v_fmac_f32 v%d, 0, v%d" % (V_T, V_O + i))
    a("v_add_f32 v%d, v%d, v%d" % (V_T, V_T, V_O + 8))
    a("v_cmp_gt_f32 vcc, 0x%x, v%d" % (f32bits(2.0 ** 100), V_T))
    a("v_rcp_f32 v%d, v%d" % (V_T + 1, V_O + 8))
    a("s_cmp_lg_u32 s%d, 0" % S_PASS)
    a("s_cbranch_scc1 L_k2_fin")
    a("s_cmp_eq_u64 vcc, exec")
    a("s_cbranch_scc1 L_k2_fin")
    a("s_mov_b32 s%d, 1" % S_PASS)
    a("s_mov_b32 s%d, 64" % S_NT)
    a("s_branch L_k2_maxpass")
    a.label("L_k2_fin")
    for i in range(8):
        a("v_mul_f32 v%d, v%d, v%d" % (V_O + i, V_T + 1, V_O + i))
    for i in range(4):
        a("v_cvt_pk_bf16_f32 v%d, v%d, v%d" % (V_P + i, V_O + 2 * i, V_O + 2 * i + 1))
    a("buffer_store_dwordx4 %s, v%d, s[20:23], s%d offen" % (vr(V_P), V_L16, S_T0))
    a.ts_flush("k2", S_WAVE, V_T)
    a.ts_flush("k2b", S_WAVE, V_T)
    a.label("L_k2_end")
    a("s_endpgm")
    a.label("L_k2_sync")
    a("s_mov_b32 s%d, 1" % S_SYNC)
    a("s_waitcnt vmcnt(0)")
    a("s_barrier")
    a("s_cmp_eq_u32 s%d, 0" % S_TYPE)
    a("s_cbranch_scc1 L_k2_syncret")
    a("v_bfe_u32 v%d, v%d, 2, 2" % (V_T, V_LANE))
    a("v_lshrrev_b32 v%d, 5, v%d" % (V_T + 1, V_LANE))
    a("v_lshl_add_u32 v%d, v%d, 2, v%d" % (V_T, V_T + 1, V_T))
    a("v_lshlrev_b32 v%d, 6, v%d" % (V_T, V_T))
    a("v_and_b32 v%d, 3, v%d" % (V_T + 1, V_LANE))
    a("v_lshl_add_u32 v%d, v%d, 3, v%d" % (V_T, V_T + 1, V_T))
    a("v_add_u32 v%d, s%d, v%d" % (V_T, S_STG, V_T))
    a("v_bfe_u32 v%d, v%d, 4, 1" % (V_T + 1, V_LANE))
    FB = [128 + 4 * i for i in range(8)]
    a("s_cmp_eq_u32 s%d, 2" % S_TYPE)
    a("s_cbranch_scc1 L_k2_pk2")
    a("v_lshl_add_u32 v%d, v%d, 10, v%d" % (V_PK, V_T + 1, V_T))
    for ks in range(4):
        for hb in range(2):
            for rd in range(2):
                a("ds_read_b64_tr_b16 %s, v%d offset:%d" % (vr(FB[ks * 2 + hb] + 2 * rd, 2), V_PK, ks * 2048 + hb * 32 + rd * 512))
    make_sel(a, V_LANE, V_SEL, V_T + 2)
    a("v_and_b32 v%d, 31, v%d" % (V_T, V_LANE))
    a("v_lshlrev_b32 v%d, 4, v%d" % (V_T, V_T))
    a("s_waitcnt lgkmcnt(0)")
    for ks in range(4):
        for hb in range(2):
            a("v_mfma_f32_16x16x32_bf16 %s, %s, %s, %s" % (vr(V_PCS[hb]), vr(V_SEL), vr(FB[ks * 2 + hb]), "0" if ks == 0 else vr(V_PCS[hb])))
            a("buffer_store_dwordx4 %s, v%d, s[20:23], s%d offen" % (vr(FB[ks * 2 + hb]), V_L16, (S_DST0, S_DST1)[hb]))
        a("s_add_u32 s%d, s%d, 7168" % (S_DST0, S_DST0))
        a("s_add_u32 s%d, s%d, 7168" % (S_DST1, S_DST1))
    a("s_nop 7")
    a("buffer_store_dword v%d, v%d, s[20:23], s%d offen" % (V_PCS[0], V_T, S_CS))
    a("buffer_store_dword v%d, v%d, s[20:23], s%d offen offset:1024" % (V_PCS[1], V_T, S_CS))
    a("s_branch L_k2_syncret")
    a.label("L_k2_pk2")
    a("v_lshl_add_u32 v%d, v%d, 5, v%d" % (V_PK, V_T + 1, V_T))
    a("s_add_u32 s%d, s%d, 4096" % (S_DST1, S_DST0))
    for f in range(8):
        for rd in range(2):
            a("ds_read_b64_tr_b16 %s, v%d offset:%d" % (vr(FB[f] + 2 * rd, 2), V_PK, f * 1024 + rd * 512))
    a("s_waitcnt lgkmcnt(0)")
    for f in range(8):
        a("buffer_store_dwordx4 %s, v%d, s[20:23], s%d offen offset:%d" % (vr(FB[f]), V_L16, S_DST0 if f < 4 else S_DST1, (f % 4) * 1024))
    a("s_branch L_k2_syncret")
    return name, 160, 0, (256, 512, 163840)


FL_A, FL_B, FL_C, FL_P = WS_FL, WS_FL + 8192, WS_FL + 16384, WS_FL + 20480
S_XCC, S_FAST = 62, 63
T_XCD, T_R2, T_RB64, T_RB128, T_CGF, T_TBO, T_NBO, T_HALF, T_A, T_B, T_C, T_D, T_CNT, T_M = 24, 25, 26, 27, 28, 29, 30, 31, 32, 33, 34, 35, 36, 37
FV_WO = 160
FV_XR = 224
FV_LX = 228
FV_L4 = 229
FV_L8 = 234
FV_F = 230
FSTORE = os.environ.get('FSTORE', '')
PRET = os.environ.get('PRET', 'qa')
WBL2 = os.environ.get('WBL2', '')
LSC = os.environ.get('LSC', ' sc1')
AMAP = int(os.environ.get('AMAP', 0))
S_TEAM, S_MEM = 18, 19
FASTPATH = int(os.environ.get('FASTPATH', 1))
POLLD = int(os.environ.get('POLLD', 1))


def poll(a, tag, soff, n, vl4, vf, depth=1):
    a("s_mov_b32 s%d, 0" % T_CNT)
    a.label("L_poll_%s" % tag)
    a("buffer_load_dword v%d, v%d, s[20:23], s%d offen sc1" % (vf, vl4, soff))
    a("s_add_u32 s%d, s%d, 1" % (T_CNT, T_CNT))
    a("s_waitcnt vmcnt(0)")
    a("v_cmp_ne_u32 vcc, 0, v%d" % vf)
    a("s_cmp_gt_u32 s%d, 0x40000" % T_CNT)
    a("s_cbranch_scc1 L_polld_%s" % tag)
    if n == 64:
        a("s_and_b32 s%d, vcc_lo, vcc_hi" % T_M)
        a("s_cmp_lg_u32 s%d, -1" % T_M)
    else:
        mask = (1 << n) - 1
        a("s_and_b32 s%d, vcc_lo, 0x%x" % (T_M, mask))
        a("s_cmp_lg_u32 s%d, 0x%x" % (T_M, mask))
    a("s_cbranch_scc1 L_poll_%s" % tag)
    a.label("L_polld_%s" % tag)


def hstore(a, tag, stores):
    a("s_cmp_eq_u32 s%d, -1" % S_FAST)
    a("s_cbranch_scc1 L_hs_%s_f" % tag)
    for st in stores:
        a(st + " sc1")
    a("s_branch L_hs_%s_d" % tag)
    a.label("L_hs_%s_f" % tag)
    for st in stores:
        a(st + (FSTORE if "dwordx4" in st else ""))
    a.label("L_hs_%s_d" % tag)


def set_flag(a, soff, vt, tag=None):
    a("v_mov_b32 v%d, 0" % vt)
    a("v_mov_b32 v%d, 1" % (vt + 1))
    a("s_mov_b64 exec, 1")
    st = "buffer_store_dword v%d, v%d, s[20:23], s%d offen" % (vt + 1, vt, soff)
    if tag:
        hstore(a, tag, [st])
    else:
        a(st + " sc1")
    a("s_mov_b64 exec, -1")


def fused_events(a, E):
    S_WAVE, S_H, S_QB, S_ITER, S_SYNC, S_TASK, S_TYPE = (E[k] for k in ("S_WAVE", "S_H", "S_QB", "S_ITER", "S_SYNC", "S_TASK", "S_TYPE"))
    V_LANE, V_L16, V_T = E["V_LANE"], E["V_L16"], E["V_T"]
    a.label("L_f_event")
    a("s_cmp_eq_u32 s%d, 7" % S_ITER)
    a("s_cbranch_scc1 L_f_sync")
    a("s_cmp_eq_u32 s%d, 6" % S_ITER)
    a("s_cbranch_scc1 L_f_ev6")
    a("s_cmp_eq_u32 s%d, 2" % S_ITER)
    a("s_cbranch_scc1 L_f_ev2")
    a("s_cmp_eq_u32 s%d, 3" % S_ITER)
    a("s_cbranch_scc1 L_f_ev3")
    a("s_mov_b32 s%d, 3" % S_SYNC)
    a("s_cmp_eq_u32 s%d, 0" % S_TYPE)
    a("s_cbranch_scc1 L_f_ev5b")
    a("s_lshl_b32 s%d, s%d, 2" % (T_A, S_TASK))
    a("s_add_u32 s%d, s%d, %d" % (T_A, T_A, FL_P))
    a("s_waitcnt vmcnt(0)")
    set_flag(a, T_A, V_T)
    a.label("L_f_ev5b")
    if "a" in WBL2:
        a("s_lshl_b32 s%d, s%d, 3" % (T_A, S_MEM))
        a("s_add_u32 s%d, s%d, s%d" % (T_A, T_A, S_WAVE))
        a("s_cmp_lg_u32 s%d, 5" % T_A)
        a("s_cbranch_scc1 L_f_nowb1")
        a("buffer_wbl2 sc1")
        a.label("L_f_nowb1")
    a("buffer_load_dword v%d, v%d, s[96:99], 0 offen sc1" % (FV_F, FV_L4))
    a("s_branch L_f_syncret")
    a.label("L_f_ev3")
    a("s_mov_b32 s%d, 2" % S_SYNC)
    a("s_mov_b32 s%d, 0" % T_CNT)
    a.label("L_f_dbchk")
    a("s_waitcnt vmcnt(0)")
    a("v_subrev_u32 v%d, 0x01010101, v%d" % (FV_F + 1, FV_F))
    a("v_not_b32 v%d, v%d" % (FV_F + 2, FV_F))
    a("v_and_b32 v%d, v%d, v%d" % (FV_F + 1, FV_F + 1, FV_F + 2))
    a("v_and_b32 v%d, 0x80808080, v%d" % (FV_F + 1, FV_F + 1))
    a("v_cmp_eq_u32 vcc, 0, v%d" % (FV_F + 1))
    a("s_add_u32 s%d, s%d, 1" % (T_CNT, T_CNT))
    a("s_cmp_gt_u32 s%d, 0x40000" % T_CNT)
    a("s_cbranch_scc1 L_f_dbok")
    a("s_and_b32 s%d, vcc_lo, vcc_hi" % T_M)
    a("s_cmp_eq_u32 s%d, -1" % T_M)
    a("s_cbranch_scc1 L_f_dbok")
    a("buffer_load_dword v%d, v%d, s[96:99], 0 offen sc1" % (FV_F, FV_L4))
    a("s_branch L_f_dbchk")
    a.label("L_f_dbok")
    a("s_lshr_b32 s%d, s2, 5" % T_XCD)
    a("s_bfe_u32 s%d, s2, 0x20003" % T_R2)
    a("s_and_b32 s%d, s2, 7" % T_RB64)
    a("s_lshl_b32 s%d, s%d, 2" % (T_RB64, T_RB64))
    a("s_add_u32 s%d, s%d, s%d" % (T_RB64, T_RB64, T_R2))
    a("s_lshr_b32 s%d, s%d, 1" % (T_RB128, T_RB64))
    a("s_and_b32 s%d, s%d, 1" % (T_A, T_R2))
    a("s_lshl_b32 s%d, s%d, 1" % (T_CGF, T_XCD))
    a("s_add_u32 s%d, s%d, s%d" % (T_CGF, T_CGF, T_A))
    a("s_bfe_u32 s%d, s%d, 0x10001" % (T_A, S_WAVE))
    a("s_lshl_b32 s%d, s%d, 1" % (T_TBO, T_RB64))
    a("s_add_u32 s%d, s%d, s%d" % (T_TBO, T_TBO, T_A))
    a("s_and_b32 s%d, s%d, 1" % (T_A, S_WAVE))
    a("s_lshl_b32 s%d, s%d, 1" % (T_NBO, T_XCD))
    a("s_add_u32 s%d, s%d, s%d" % (T_NBO, T_NBO, T_A))
    a("s_lshr_b32 s%d, s%d, 2" % (T_HALF, S_WAVE))
    if "a" in PRET:
        a("s_lshl_b32 s%d, s%d, 4" % (T_A, T_TBO))
        a("s_add_u32 s%d, s%d, s%d" % (T_A, T_A, T_NBO))
        a("s_lshl_b32 s%d, s%d, 9" % (T_B, T_A))
        a("s_add_u32 s%d, s%d, %d" % (T_B, T_B, WS_ST))
        a("s_lshl_b32 s%d, s%d, 1" % (T_A, T_A))
        a("s_add_u32 s%d, s%d, s%d" % (T_A, T_A, T_HALF))
        a("s_lshl_b32 s%d, s%d, 10" % (T_A, T_A))
        a("s_add_u32 s%d, s%d, %d" % (T_A, T_A, WS_H))
        a("buffer_load_dwordx4 %s, v%d, s[20:23], s%d offen sc1" % (vr(236), V_L16, T_A))
        a("buffer_load_dwordx2 %s, v%d, s[20:23], s%d offen sc1" % (vr(240, 2), FV_L8, T_B))
        a("s_and_b32 s%d, s%d, 3" % (T_A, S_WAVE))
        a("s_lshl_b32 s%d, s%d, 2" % (T_B, T_RB128))
        a("s_add_u32 s%d, s%d, s%d" % (T_A, T_A, T_B))
        a("s_mul_i32 s%d, s%d, 112" % (T_A, T_A))
        a("s_mul_i32 s%d, s%d, 7" % (T_B, T_CGF))
        a("s_add_u32 s%d, s%d, s%d" % (T_A, T_A, T_B))
        a("s_mul_i32 s%d, s%d, 3" % (T_B, T_HALF))
        a("s_add_u32 s%d, s%d, s%d" % (T_A, T_A, T_B))
        a("s_lshl_b32 s%d, s%d, 10" % (T_A, T_A))
        a("s_add_u32 s%d, s%d, %d" % (T_A, T_A, WS_A))
        for k in range(4):
            a("buffer_load_dwordx4 %s, v%d, s[20:23], s%d offen offset:%d sc1" % (vr(236 if k == 0 else 240 + 4 * k), V_L16, T_A, k * 1024))
    a("s_mul_i32 s%d, s%d, 7" % (T_A, T_CGF))
    a("s_lshr_b32 s%d, s%d, 1" % (T_A, T_A))
    a("s_lshl_b32 s%d, s%d, 5" % (T_A, T_A))
    a("s_mul_i32 s%d, s%d, 56" % (T_B, T_NBO))
    a("s_add_u32 s%d, s%d, %d" % (T_B, T_B, 512 * 4 - 32 * 4))
    a("s_lshl_b32 s%d, s%d, 1" % (T_C, T_NBO))
    a("s_add_u32 s%d, s%d, s%d" % (T_C, T_C, T_HALF))
    a("s_lshl_b32 s%d, s%d, 3" % (T_C, T_C))
    a("s_add_u32 s%d, s%d, %d" % (T_C, T_C, 448 * 4 - 46 * 4))
    a("v_mov_b32 v%d, s%d" % (V_T, T_A))
    a("v_mov_b32 v%d, s%d" % (V_T + 1, T_B))
    a("v_cmp_le_u32 vcc, 32, v%d" % V_LANE)
    a("v_mov_b32 v%d, s%d" % (V_T + 2, T_C))
    a("s_nop 0")
    a("v_cndmask_b32 v%d, v%d, v%d, vcc" % (V_T, V_T, V_T + 1))
    a("v_cmp_le_u32 vcc, 46, v%d" % V_LANE)
    a("s_mov_b32 s%d, %d" % (T_A, FL_P))
    a("s_nop 0")
    a("v_cndmask_b32 v%d, v%d, v%d, vcc" % (V_T, V_T, V_T + 2))
    a("v_add_u32 v%d, v%d, v%d" % (FV_F + 3, V_T, FV_L4))
    a("buffer_load_dword v%d, v%d, s[20:23], s%d offen sc1" % (FV_F, FV_F + 3, T_A))
    a("s_branch L_f_syncret")
    a.label("L_f_ev2")
    a("s_mov_b32 s%d, 0" % S_SYNC)
    a("s_mov_b32 s%d, 0" % T_CNT)
    a("s_mov_b32 s%d, %d" % (T_A, FL_P))
    a.label("L_f_fpchk")
    a("s_waitcnt vmcnt(0)")
    a("v_cmp_ne_u32 vcc, 0, v%d" % FV_F)
    a("s_add_u32 s%d, s%d, 1" % (T_CNT, T_CNT))
    a("s_cmp_gt_u32 s%d, 0x40000" % T_CNT)
    a("s_cbranch_scc1 L_f_fpok")
    a("s_or_b32 s%d, vcc_hi, 0xffff0000" % T_M)
    a("s_and_b32 s%d, s%d, vcc_lo" % (T_M, T_M))
    a("s_cmp_eq_u32 s%d, -1" % T_M)
    a("s_cbranch_scc1 L_f_fpok")
    a("buffer_load_dword v%d, v%d, s[20:23], s%d offen sc1" % (FV_F, FV_F + 3, T_A))
    a("s_branch L_f_fpchk")
    a.label("L_f_fpok")
    a("s_lshl_b32 s%d, s%d, 1" % (T_A, T_NBO))
    a("s_add_u32 s%d, s%d, s%d" % (T_A, T_A, T_HALF))
    a("s_lshl_b32 s%d, s%d, 14" % (T_A, T_A))
    a("s_add_u32 s%d, s%d, %d" % (T_A, T_A, WS_WO))
    for i in range(16):
        if i and i % 4 == 0:
            a("s_add_u32 s%d, s%d, 4096" % (T_A, T_A))
        a("buffer_load_dwordx4 %s, v%d, s[20:23], s%d offen offset:%d sc1" % (vr(FV_WO + 4 * i), FV_LX, T_A, (i % 4) * 1024))
    srd(a, 12, 10, 2048 * 1024)
    a("v_and_b32 v%d, 31, v%d" % (V_T, V_LANE))
    a("v_lshlrev_b32 v%d, 10, v%d" % (V_T, V_T))
    a("v_lshrrev_b32 v%d, 5, v%d" % (V_T + 1, V_LANE))
    a("v_lshl_add_u32 v%d, v%d, 3, v%d" % (V_T, V_T + 1, V_T))
    a("s_lshl_b32 s%d, s%d, 15" % (T_A, T_TBO))
    a("s_lshl_b32 s%d, s%d, 6" % (T_B, T_NBO))
    a("s_add_u32 s%d, s%d, s%d" % (T_A, T_A, T_B))
    a("s_lshl_b32 s%d, s%d, 5" % (T_B, T_HALF))
    a("s_add_u32 s%d, s%d, s%d" % (T_A, T_A, T_B))
    for q in range(2):
        a("buffer_load_dwordx2 %s, v%d, s[12:15], s%d offen offset:%d" % (vr(FV_XR + 2 * q, 2), V_T, T_A, q * 16))
    a("s_branch L_f_syncret")


def fused_tail(a, E):
    S_WAVE, S_H, S_QB = E["S_WAVE"], E["S_H"], E["S_QB"]
    V_LANE, V_L16 = 1, 2
    V_T = 3
    S_MASK, S_W3, S_M0W, S_SW, S_SH, S_M0H = 43, 44, 45, 46, 47, 48
    a.ts("k2")
    a("s_setprio 0")
    for k in ("S_SYNC", "S_TYPE", "S_PASS", "S_NT", "S_ITER"):
        a("s_mov_b32 s%d, 0" % E[k])
    a("s_mov_b32 s%d, 0xffff0000" % S_MASK)
    a("s_and_b32 s%d, s%d, 3" % (S_W3, S_WAVE))
    S_WB = 51
    a("s_lshl_b32 s%d, s%d, 3" % (S_WB, S_MEM))
    a("s_add_u32 s%d, s%d, s%d" % (S_WB, S_WB, S_WAVE))
    a("s_lshl_b32 s%d, s%d, 2" % (T_A, S_QB))
    a("s_lshr_b32 s%d, s%d, 1" % (T_B, S_WAVE))
    a("s_add_u32 s%d, s%d, s%d" % (T_A, T_A, T_B))
    a("s_lshl_b32 s%d, s%d, 8" % (T_A, T_A))
    a("s_and_b32 s%d, s%d, 1" % (T_B, S_WAVE))
    a("s_lshl_b32 s%d, s%d, 5" % (T_B, T_B))
    a("s_add_u32 s%d, s%d, s%d" % (T_B, T_B, S_H))
    a("s_lshl_b32 s%d, s%d, 2" % (T_B, T_B))
    a("s_add_u32 s%d, s%d, s%d" % (T_B, T_B, T_A))
    a("s_add_u32 s%d, s%d, %d" % (T_B, T_B, FL_A))
    a("s_mul_i32 s%d, s%d, 7168" % (S_M0W, S_W3))
    a("s_mul_i32 s%d, s%d, %d" % (S_SW, T_CGF, 32 * 7 * 1024))
    a("s_add_u32 s%d, s%d, s%d" % (S_SW, S_SW, S_M0W))
    a("s_add_u32 s%d, s%d, %d" % (S_SW, S_SW, WS_GU))

    def w_stage(st):
        slot = st % 4
        a("s_add_u32 s%d, s%d, %d" % (T_C, S_SW, st * SLOT))
        a("s_add_u32 m0, s%d, %d" % (S_M0W, slot * SLOT))
        a("s_add_u32 s%d, s%d, 4096" % (T_D, T_C))
        for q in range(4):
            a("buffer_load_dwordx4 v%d, s[20:23], s%d offen offset:%d sc1 lds" % (V_L16, T_C, q * 1024))
        a("s_add_u32 m0, m0, 4096")
        a("s_nop 0")
        for q in range(3):
            a("buffer_load_dwordx4 v%d, s[20:23], s%d offen offset:%d sc1 lds" % (V_L16, T_D, q * 1024))

    a("s_waitcnt vmcnt(0)")
    set_flag(a, T_B, V_T)
    a("s_barrier")
    OB, XS = 86016, 57344
    a("s_cmp_ge_u32 s%d, 4" % S_WAVE)
    a("s_cbranch_scc1 L_f_a1")
    w_stage(0)
    w_stage(1)
    a("s_branch L_f_a2")
    a.label("L_f_a1")
    a("s_lshl_b32 s%d, s%d, 8" % (T_A, T_RB64))
    a("s_lshl_b32 s%d, s%d, 6" % (T_B, S_W3))
    a("s_add_u32 s%d, s%d, s%d" % (T_A, T_A, T_B))
    a("s_add_u32 s%d, s%d, %d" % (T_A, T_A, FL_A))
    a("s_lshl_b32 s%d, s%d, 2" % (T_C, T_RB64))
    a("s_add_u32 s%d, s%d, s%d" % (T_C, T_C, S_W3))
    a("s_lshl_b32 s%d, s%d, 14" % (T_C, T_C))
    a("s_add_u32 s%d, s%d, %d" % (T_C, T_C, WS_O))
    a("s_lshl_b32 s%d, s%d, 14" % (T_B, S_W3))
    a("s_add_u32 m0, s%d, %d" % (T_B, OB))
    poll(a, "fa", T_A, 16, FV_L4, FV_F + 2)
    a.ts("k2")
    for j in range(16):
        if j and j % 4 == 0:
            a("s_add_u32 m0, m0, 4096")
            a("s_add_u32 s%d, s%d, 4096" % (T_C, T_C))
        a("buffer_load_dwordx4 v%d, s[20:23], s%d offen offset:%d sc1 lds" % (V_L16, T_C, (j % 4) * 1024))
    a.label("L_f_a2")

    V_OA = 12
    V_OF = [16 + 4 * i for i in range(8)]
    V_AB = 64
    V_U = 80
    V_HK = 16
    a("s_bfe_u32 s%d, s%d, 0x10001" % (T_B, S_WAVE))
    a("s_lshl_b32 s%d, s%d, 1" % (T_B, T_B))
    a("s_add_u32 s%d, s%d, s%d" % (T_B, T_B, T_HALF))
    a("s_lshl_b32 s%d, s%d, 14" % (T_B, T_B))
    a("s_add_u32 s%d, s%d, %d" % (T_B, T_B, OB))
    a("v_add_u32 v%d, s%d, v%d" % (V_OA, T_B, V_L16))
    a("s_xor_b32 s%d, s%d, 4" % (T_B, S_WAVE))
    a("s_lshl_b32 s%d, s%d, 11" % (T_B, T_B))
    a("s_add_u32 s%d, s%d, %d" % (T_B, T_B, XS))
    a("v_add_u32 v%d, s%d, v%d" % (V_OA + 1, T_B, V_L16))
    a("s_lshl_b32 s%d, s%d, 11" % (T_B, S_WAVE))
    a("s_add_u32 s%d, s%d, %d" % (T_B, T_B, XS))
    a("v_add_u32 v%d, s%d, v%d" % (V_OA + 2, T_B, V_L16))
    for d in range(4):
        a("v_lshlrev_b32 v%d, 16, v%d" % (V_U + 2 * d, FV_XR + d))
        a("v_and_b32 v%d, s%d, v%d" % (V_U + 2 * d + 1, S_MASK, FV_XR + d))
    a("s_cmp_lt_u32 s%d, 4" % S_WAVE)
    a("s_cbranch_scc1 L_f_b3")
    a("s_waitcnt vmcnt(0)")
    a.label("L_f_b3")
    a("s_barrier")
    a.ts("k2")
    for i in range(8):
        a("ds_read_b128 %s, v%d offset:%d" % (vr(V_OF[i]), V_OA, i * 1024))
    for i in range(16):
        a("s_waitcnt lgkmcnt(%d)" % (7 if i < 8 else 15 - i))
        a("v_mfma_f32_32x32x16_bf16 %s, %s, %s, %s" % (vr(V_AB, 16), vr(FV_WO + 4 * i), vr(V_OF[i % 8]), "0" if i == 0 else vr(V_AB, 16)))
        if i < 8:
            a("ds_read_b128 %s, v%d offset:%d" % (vr(V_OF[i]), V_OA, (i + 8) * 1024))
    a("s_lshl_b32 s%d, s%d, 4" % (T_A, T_TBO))
    a("s_add_u32 s%d, s%d, s%d" % (T_A, T_A, T_NBO))
    a("s_lshl_b32 s%d, s%d, 1" % (T_A, T_A))
    a("s_add_u32 s%d, s%d, s%d" % (T_A, T_A, T_HALF))
    a("s_lshr_b32 s%d, s%d, 1" % (T_B, T_A))
    a("s_lshl_b32 s%d, s%d, 9" % (T_B, T_B))
    a("s_lshl_b32 s%d, s%d, 3" % (T_C, T_HALF))
    a("s_add_u32 s%d, s%d, s%d" % (T_B, T_B, T_C))
    a("s_add_u32 s%d, s%d, %d" % (T_B, T_B, WS_ST))
    a("s_lshl_b32 s%d, s%d, 10" % (T_A, T_A))
    a("s_add_u32 s%d, s%d, %d" % (T_A, T_A, WS_H))
    a("v_and_b32 v%d, 31, v%d" % (V_T, V_LANE))
    a("v_lshlrev_b32 v%d, 4, v%d" % (V_T, V_T))
    a("s_nop 1")
    for q in range(2):
        a("ds_write_b128 v%d, %s offset:%d" % (V_OA + 1, vr(V_AB + 8 + 4 * q), q * 1024))
    for i in range(8):
        a("v_add_f32 v%d, v%d, v%d" % (V_AB + i, V_AB + i, V_U + i))
    a("s_waitcnt lgkmcnt(0)")
    a("s_barrier")
    for q in range(2):
        a("ds_read_b128 %s, v%d offset:%d" % (vr(V_U + 4 * q), V_OA + 2, q * 1024))
    a("s_waitcnt lgkmcnt(0)")
    for i in range(8):
        a("v_add_f32 v%d, v%d, v%d" % (V_AB + i, V_AB + i, V_U + i))
    for i in range(4):
        a("v_cvt_pk_bf16_f32 v%d, v%d, v%d" % (V_HK + i, V_AB + 2 * i, V_AB + 2 * i + 1))
    hstore(a, "h", ["buffer_store_dwordx4 %s, v%d, s[20:23], s%d offen" % (vr(V_HK), V_L16, T_A)])
    for d in range(4):
        a("v_lshlrev_b32 v%d, 16, v%d" % (V_U + 2 * d, V_HK + d))
        a("v_and_b32 v%d, s%d, v%d" % (V_U + 2 * d + 1, S_MASK, V_HK + d))
    S1, S2 = V_AB, V_AB + 1
    a("v_add_f32 v%d, v%d, v%d" % (S1, V_U, V_U + 1))
    a("v_mul_f32 v%d, v%d, v%d" % (S2, V_U, V_U))
    a("v_fmac_f32 v%d, v%d, v%d" % (S2, V_U + 1, V_U + 1))
    for i in range(2, 8):
        a("v_add_f32 v%d, v%d, v%d" % (S1, S1, V_U + i))
        a("v_fmac_f32 v%d, v%d, v%d" % (S2, V_U + i, V_U + i))
    sum_halves(a, S1, V_AB + 2)
    sum_halves(a, S2, V_AB + 3)
    hstore(a, "st", ["buffer_store_dwordx2 %s, v%d, s[20:23], s%d offen" % (vr(S1, 2), V_T, T_B)])
    a("s_lshl_b32 s%d, s%d, 4" % (T_B, T_TBO))
    a("s_add_u32 s%d, s%d, s%d" % (T_B, T_B, T_NBO))
    a("s_lshl_b32 s%d, s%d, 1" % (T_B, T_B))
    a("s_add_u32 s%d, s%d, s%d" % (T_B, T_B, T_HALF))
    a("s_lshl_b32 s%d, s%d, 2" % (T_B, T_B))
    a("s_add_u32 s%d, s%d, %d" % (T_B, T_B, FL_B))
    a("v_mov_b32 v%d, v%d" % (14, FV_LX))
    a("v_mov_b32 v%d, v%d" % (15, FV_L4))
    V_LX, V_L4 = 14, 15
    a("s_waitcnt vmcnt(0)")
    set_flag(a, T_B, V_T, "fb")
    a("s_barrier")
    a.ts("k2")
    HR = 114688
    a("s_lshl_b32 s%d, s%d, 2" % (T_A, T_RB128))
    a("s_add_u32 s%d, s%d, s%d" % (T_A, T_A, S_W3))
    a("s_lshl_b32 s%d, s%d, 15" % (S_SH, T_A))
    a("s_add_u32 s%d, s%d, %d" % (S_SH, S_SH, WS_H))
    a("s_lshl_b32 s%d, s%d, 12" % (S_M0H, S_W3))
    a("s_add_u32 s%d, s%d, %d" % (S_M0H, S_M0H, HR))

    def h_stage(st):
        a("s_add_u32 m0, s%d, %d" % (S_M0H, (st % 3) * 16384))
        a("s_add_u32 s%d, s%d, %d" % (T_C, S_SH, st * 4096))
        for q in range(4):
            a("buffer_load_dwordx4 v%d, s[20:23], s%d offen offset:%d sc1 lds" % (V_L16, T_C, q * 1024))

    a("s_cmp_ge_u32 s%d, 4" % S_WAVE)
    a("s_cbranch_scc1 L_f_ccomp")
    w_stage(2)
    w_stage(3)
    V_WD = 144
    V_WP = 32
    S_KQ = 50
    a("s_lshr_b32 s%d, s%d, 1" % (S_KQ, S_WAVE))
    a("s_lshl_b32 s%d, s%d, 2" % (T_A, T_NBO))
    a("s_add_u32 s%d, s%d, s%d" % (T_A, T_A, S_KQ))
    a("s_mul_i32 s%d, s%d, %d" % (T_A, T_A, 28 * 1024))
    a("s_add_u32 s%d, s%d, %d" % (T_A, T_A, WS_WD))
    a("s_add_u32 s%d, s%d, %d" % (T_B, T_A, 56 * 1024))
    a("v_xor_b32 v%d, 0x100, v%d" % (V_T, V_L16))
    a("s_mul_i32 s%d, s%d, %d" % (T_M, S_W3, 28 * 1024))
    a("v_add_u32 v%d, s%d, v%d" % (V_T + 1, T_M, V_L16))

    def wd_loads(i0, i1):
        for i in range(i0, i1):
            if i and i % 4 == 0:
                a("s_add_u32 s%d, s%d, 4096" % (T_A, T_A))
            a("buffer_load_dwordx4 %s, v%d, s[20:23], s%d offen offset:%d sc1" % (vr(V_WD + 4 * i), V_LX, T_A, (i % 4) * 1024))

    log = ["W0"] * 7 + ["W1"] * 7 + ["W2"] * 7 + ["W3"] * 7
    wd_plan = {5: 8, 6: 12, 7: 8}
    nwd = 0
    for j in range(8):
        last = max(i for i, t in enumerate(log) if t in ("W%d" % j, "h%d" % j))
        n = len(log) - 1 - last
        assert n <= 63
        a("s_waitcnt vmcnt(%d)" % n)
        a("s_barrier")
        if j >= 1:
            if j + 2 <= 7:
                h_stage(j + 2)
                log += ["h%d" % (j + 2)] * 4
            if j + 3 <= 7:
                w_stage(j + 3)
                log += ["W%d" % (j + 3)] * 7
        k = wd_plan.get(j, 0)
        wd_loads(nwd, nwd + k)
        log += ["d"] * k
        nwd += k
    assert nwd == 28
    a("s_mov_b32 m0, s%d" % T_M)
    a("s_barrier")
    for i in range(28):
        if i and i % 4 == 0:
            a("s_add_u32 m0, m0, 4096")
            a("s_add_u32 s%d, s%d, 4096" % (T_B, T_B))
        a("buffer_load_dwordx4 v%d, s[20:23], s%d offen offset:%d sc1 lds" % (V_T, T_B, (i % 4) * 1024))
    a("s_waitcnt vmcnt(0)")
    a("s_barrier")
    a("s_branch L_f_d1")
    a.label("L_f_ccomp")
    V_AW, V_AH = 12, 13
    V_ST = 20
    V_CSL = 52
    V_H = [80, 84]
    V_W = [88, 116]
    V_ACC = [144 + 16 * b for b in range(7)]
    V_TMP = 88
    S_TB = 49
    a("s_lshl_b32 s%d, s%d, 2" % (S_TB, T_RB128))
    a("s_add_u32 s%d, s%d, s%d" % (S_TB, S_TB, S_W3))
    a("v_mov_b32 v%d, v%d" % (V_AW, V_L16))
    a("s_lshl_b32 s%d, s%d, 12" % (T_A, S_W3))
    a("s_add_u32 s%d, s%d, %d" % (T_A, T_A, HR))
    a("v_add_u32 v%d, s%d, v%d" % (V_AH, T_A, V_L16))
    a("v_and_b32 v%d, 31, v%d" % (V_T, V_LANE))
    a("v_lshlrev_b32 v%d, 4, v%d" % (V_T, V_T))
    a("v_lshrrev_b32 v%d, 5, v%d" % (V_T + 1, V_LANE))
    a("v_lshl_add_u32 v%d, v%d, 12, v%d" % (V_T, V_T + 1, V_T))
    a("s_mul_i32 s%d, s%d, 7168" % (T_C, T_CGF))
    a("s_add_u32 s%d, s%d, %d" % (T_C, T_C, WS_CS))
    a("s_add_u32 s%d, s%d, 4096" % (T_D, T_C))
    for blk in range(7):
        a("buffer_load_dwordx4 %s, v%d, s[20:23], s%d offen offset:%d sc1" % (vr(V_CSL + 4 * blk), V_L16, T_C if blk < 4 else T_D, (blk % 4) * 1024))
    a("s_lshl_b32 s%d, s%d, 7" % (T_B, S_TB))
    a("s_add_u32 s%d, s%d, %d" % (T_B, T_B, FL_B))
    poll(a, "fb", T_B, 32, V_L4, 9)
    for st in range(3):
        h_stage(st)
    a("s_lshl_b32 s%d, s%d, 13" % (T_A, S_TB))
    a("s_add_u32 s%d, s%d, %d" % (T_A, T_A, WS_ST))
    cur_base = [0]
    lds = Lds(a)

    def reads(P):
        st, pos = P // 4, P % 4
        slot = st % 4
        base, imm = (slot // 2) * 2 * SLOT, (slot % 2) * SLOT
        out = []
        b = P % 2
        out.append(("ds_read_b128 %s, v%d offset:%d" % (vr(V_H[b]), V_AH, (st % 3) * 16384 + pos * 1024), ("h", P)))
        if base != cur_base[0]:
            d = base - cur_base[0]
            out.append(("v_add_u32 v%d, %d, v%d" % (V_AW, d, V_AW) if d > 0 else "v_subrev_u32 v%d, %d, v%d" % (V_AW, -d, V_AW), None))
            cur_base[0] = base
        for blk in range(7):
            out.append(("ds_read_b128 %s, v%d offset:%d" % (vr(V_W[b] + 4 * blk), V_AW, imm + (pos * 7 + blk) * 1024), ("w", P, blk)))
        return out

    side = {}
    g = []
    for i in range(8):
        g.append("buffer_load_dwordx4 %s, v%d, s[20:23], s%d offen offset:%d sc1" % (vr(V_ST + 4 * i), V_T, T_A, i * 512))
    side[0], side[1] = g[:4], g[4:]
    sa = Asm()
    S1, S2 = V_T + 1, V_T + 2
    V_MU, V_RS = V_T + 2, V_T + 4
    V_VAR, V_C1, V_C2 = 6, 8, 10
    sa("s_waitcnt vmcnt(0)")
    sa("v_add_f32 v%d, v%d, v%d" % (S1, V_ST, V_ST + 2))
    sa("v_add_f32 v%d, v%d, v%d" % (S2, V_ST + 1, V_ST + 3))
    for i in range(2, 16):
        sa("v_add_f32 v%d, v%d, v%d" % (S1, S1, V_ST + 2 * i))
        sa("v_add_f32 v%d, v%d, v%d" % (S2, S2, V_ST + 2 * i + 1))
    sum_halves(sa, S1, V_T + 4)
    sum_halves(sa, S2, V_T + 4)
    sa("v_mul_f32 v%d, 0x%x, v%d" % (V_VAR, f32bits(1.0 / 512), S2))
    sa("v_mul_f32 v%d, 0x%x, v%d" % (V_MU, f32bits(1.0 / 512), S1))
    sa("v_fma_f32 v%d, -v%d, v%d, v%d" % (V_VAR, V_MU, V_MU, V_VAR))
    sa("v_max_f32 v%d, 0, v%d" % (V_VAR, V_VAR))
    sa("v_add_f32 v%d, 0x%x, v%d" % (V_VAR, f32bits(1e-5), V_VAR))
    sa("v_rsq_f32 v%d, v%d" % (V_RS, V_VAR))
    sa("v_sub_f32 v%d, 0, v%d" % (V_MU, V_MU))
    VB = V_ST
    split_hi_lo_B(sa, V_MU, VB, V_T, S_MASK)
    c1 = -2.0 * math.sqrt(2.0 / math.pi) * math.log2(math.e)
    sa("v_mul_f32 v%d, 0x%x, v%d" % (V_C1, f32bits(c1), V_RS))
    sa("v_mul_f32 v%d, v%d, v%d" % (V_C2, V_RS, V_RS))
    sa("v_mul_f32 v%d, v%d, v%d" % (V_C2, V_C2, V_C1))
    sa("v_mul_f32 v%d, 0x%x, v%d" % (V_C2, f32bits(0.044715), V_C2))
    VA = V_CSL
    for blk in range(7):
        c = V_CSL + 4 * blk
        a("v_add_f32 v%d, v%d, v%d" % (c, c, c + 1))
        a("v_add_f32 v%d, v%d, v%d" % (c + 2, c + 2, c + 3))
        a("v_add_f32 v%d, v%d, v%d" % (V_T + 2, c, c + 2))
        split_hi_lo_A(a, V_T + 2, c, V_T + 1, S_MASK)
    sl = [x.strip() for x in sa.L]
    per = 10
    for k in range((len(sl) + per - 1) // per):
        side[10 + k] = sl[per * k:per * (k + 1)]
    P_R1 = 10 + (len(sl) + per - 1) // per + 1
    assert P_R1 <= 30
    side[30] = ["s_mul_i32 s%d, s%d, 112" % (T_A, S_TB), "s_mul_i32 s%d, s%d, 7" % (T_B, T_CGF), "s_add_u32 s%d, s%d, s%d" % (T_A, T_A, T_B),
                "s_lshl_b32 s%d, s%d, 10" % (T_A, T_A), "s_add_u32 s%d, s%d, %d" % (T_A, T_A, WS_A), "s_add_u32 s%d, s%d, 4096" % (T_B, T_A)]
    a("s_waitcnt vmcnt(8)")
    a("s_barrier")
    a.ts("k2")
    for t, tag in reads(0):
        lds.op(t, tag) if tag else a(t)
    for P in range(32):
        st, pos = P // 4, P % 4
        b = P % 2
        rd = reads(P + 1) if P < 31 else []
        sd = list(side.get(P, []))
        bar_at = 3 if (pos == 3 and P < 31) else -1
        first_rd = bar_at if bar_at >= 0 else 0
        for blk in range(7):
            if blk == bar_at:
                lds.drain()
                if st == 0:
                    a("s_waitcnt vmcnt(12)")
                if st == 1:
                    a("s_waitcnt vmcnt(8)")
                a("s_barrier")
            lds.need(("h", P), ("w", P, blk))
            a("v_mfma_f32_32x32x16_bf16 %s, %s, %s, %s" % (vr(V_ACC[blk], 16), vr(V_W[b] + 4 * blk), vr(V_H[b]), "0" if P == 0 else vr(V_ACC[blk], 16)))
            if blk >= first_rd:
                nrd = 3 if bar_at >= 0 else 2
                for _ in range(nrd):
                    if rd:
                        t, tag = rd.pop(0)
                        lds.op(t, tag) if tag else a(t)
            for _ in range(2):
                if sd:
                    a(sd.pop(0))
        assert not rd and not sd
        if P == 14 and "c" in WBL2:
            a("s_cmp_lg_u32 s%d, 7" % S_WB)
            a("s_cbranch_scc1 L_f_nowbc")
            a("buffer_wbl2 sc1")
            a.label("L_f_nowbc")
        if P == P_R1:
            for blk in range(7):
                a("v_mfma_f32_32x32x16_bf16 %s, %s, %s, %s" % (vr(V_ACC[blk], 16), vr(VA + 4 * blk), vr(VB), vr(V_ACC[blk], 16)))
    a.ts("k2")
    a("s_barrier")
    a("s_nop 4")
    bc = lambda r: "v[%d:%d]" % (r, r + 1)
    for blk in range(7):
        G = V_ACC[blk]
        Uu = G + 8
        T = V_TMP + 8 * (blk % 2)
        for i in range(0, 8, 2):
            a("v_pk_mul_f32 %s, %s, %s" % (bc(T + i), bc(G + i), bc(G + i)))
        for i in range(0, 8, 2):
            a("v_pk_fma_f32 %s, %s, %s, %s op_sel_hi:[1,0,0]" % (bc(T + i), bc(T + i), bc(V_C2), bc(V_C1)))
        for i in range(0, 8, 2):
            a("v_pk_mul_f32 %s, %s, %s" % (bc(T + i), bc(T + i), bc(G + i)))
        for i in range(8):
            a("v_exp_f32 v%d, v%d" % (T + i, T + i))
        for i in range(0, 8, 2):
            a("v_pk_mul_f32 %s, %s, %s" % (bc(G + i), bc(G + i), bc(Uu + i)))
        for i in range(0, 8, 2):
            a("v_pk_fma_f32 %s, %s, %s, %s op_sel_hi:[1,0,0]" % (bc(T + i), bc(T + i), bc(V_VAR), bc(V_VAR)))
        for i in range(8):
            a("v_rcp_f32 v%d, v%d" % (T + i, T + i))
        a("s_nop 0")
        for i in range(0, 8, 2):
            a("v_pk_mul_f32 %s, %s, %s" % (bc(G + i), bc(G + i), bc(T + i)))
        o = V_TMP + 16 + 4 * blk
        for i in range(4):
            a("v_cvt_pk_bf16_f32 v%d, v%d, v%d" % (o + i, G + 2 * i, G + 2 * i + 1))
    hstore(a, "act", ["buffer_store_dwordx4 %s, v%d, s[20:23], s%d offen offset:%d" % (vr(V_TMP + 16 + 4 * blk), V_L16, T_A if blk < 4 else T_B, (blk % 4) * 1024) for blk in range(7)])
    a.ts("k2")
    a("s_lshl_b32 s%d, s%d, 4" % (T_B, S_TB))
    a("s_add_u32 s%d, s%d, s%d" % (T_B, T_B, T_CGF))
    a("s_lshl_b32 s%d, s%d, 2" % (T_B, T_B))
    a("s_add_u32 s%d, s%d, %d" % (T_B, T_B, FL_C))
    a("s_lshr_b32 s%d, s%d, 1" % (S_KQ, S_WAVE))
    a("s_mul_i32 s%d, s%d, %d" % (T_M, S_W3, 28 * 1024))
    a("v_add_u32 v%d, s%d, v%d" % (V_T + 2, T_M, V_L16))
    a("s_waitcnt vmcnt(0)")
    set_flag(a, T_B, V_T, "fc")
    a("s_barrier")
    for i in range(28):
        a("ds_read_b128 %s, v%d offset:%d" % (vr(V_WD + 4 * i), V_T + 2, i * 1024))
        if i % 8 == 7:
            a("s_waitcnt lgkmcnt(4)")
    a("s_waitcnt lgkmcnt(0)")
    a.label("L_f_d1")
    V_AA = [12, 13]
    V_AF = [[32 + 32 * b + 4 * i for i in range(8)] for b in range(2)]
    V_AD = [96, 112]
    S_SA, S_M0A = 45, 46
    a("s_and_b32 s%d, s%d, 1" % (T_A, S_WAVE))
    a("s_lshl_b32 s%d, s%d, 1" % (T_B, T_RB64))
    a("s_add_u32 s%d, s%d, s%d" % (T_A, T_A, T_B))
    a("s_lshl_b32 s%d, s%d, 2" % (T_A, T_A))
    a("s_add_u32 s%d, s%d, s%d" % (T_A, T_A, S_KQ))
    a("s_mul_i32 s%d, s%d, %d" % (S_SA, T_A, 28 * 1024))
    a("s_add_u32 s%d, s%d, %d" % (S_SA, S_SA, WS_A))
    a("s_lshl_b32 s%d, s%d, 12" % (S_M0A, S_WAVE))
    for ai in range(2):
        a("s_and_b32 s%d, s%d, 1" % (T_A, S_KQ))
        a("s_xor_b32 s%d, s%d, %d" % (T_A, T_A, ai))
        a("s_lshl_b32 s%d, s%d, 1" % (T_B, S_KQ))
        a("s_add_u32 s%d, s%d, s%d" % (T_A, T_A, T_B))
        a("s_lshl_b32 s%d, s%d, 12" % (T_A, T_A))
        a("v_add_u32 v%d, s%d, v%d" % (V_AA[ai], T_A, V_L16))

    def a_stage(j):
        out = ["s_add_u32 m0, s%d, %d" % (S_M0A, (j % 5) * 32768), "s_add_u32 s%d, s%d, %d" % (T_C, S_SA, j * 4096)]
        for q in range(4):
            out.append("buffer_load_dwordx4 v%d, s[20:23], s%d offen offset:%d%s lds" % (V_L16, T_C, q * 1024, LSC))
        return out

    a("s_cmp_lg_u32 s%d, 0" % S_WAVE)
    a("s_cbranch_scc1 L_f_d2")
    a("s_lshl_b32 s%d, s%d, 7" % (T_A, T_RB64))
    a("s_add_u32 s%d, s%d, %d" % (T_A, T_A, FL_C))
    poll(a, "fc", T_A, 32, V_L4, 9)
    a.label("L_f_d2")
    a("s_barrier")
    a.ts("k2")
    a.ts("kd_")
    DD = int(os.environ.get('DD', 2))
    for l in a_stage(0):
        a(l)
    a("s_barrier")
    if "d" in WBL2:
        a("s_lshl_b32 s%d, s%d, 3" % (T_A, S_MEM))
        a("s_add_u32 s%d, s%d, s%d" % (T_A, T_A, S_WAVE))
        a("s_cmp_lg_u32 s%d, 5" % T_A)
        a("s_cbranch_scc1 L_f_nowb2")
        a("buffer_wbl2 sc1")
        a.label("L_f_nowb2")
    for jj in range(1, DD):
        for l in a_stage(jj):
            a(l)
    cb = 0

    def d_mfmas(j):
        F = V_AF[j % 2]
        return ["v_mfma_f32_32x32x16_bf16 %s, %s, %s, %s" % (vr(V_AD[ai], 16), vr(V_WD + 4 * (4 * j + q)), vr(F[q * 2 + ai]), "0" if (j == 0 and q == 0) else vr(V_AD[ai], 16))
                for q in range(4) for ai in range(2)]

    for j in range(7):
        slot = j % 5
        base, imm = (slot // 2) * 65536, (slot % 2) * 32768
        if base != cb:
            d = base - cb
            for r in V_AA:
                a("v_add_u32 v%d, %d, v%d" % (r, d, r) if d > 0 else "v_subrev_u32 v%d, %d, v%d" % (r, -d, r))
            cb = base
        nw = 4 * (min(j + DD - 1, 6) - j)
        if "g" in WBL2 and j >= 5:
            a("s_cmp_lg_u32 s%d, 7" % S_WB)
            a("s_cbranch_scc1 L_f_wg%da" % j)
            a("s_waitcnt vmcnt(%d) lgkmcnt(0)" % (nw + 1))
            a("s_branch L_f_wg%db" % j)
            a.label("L_f_wg%da" % j)
            a("s_waitcnt vmcnt(%d) lgkmcnt(0)" % nw)
            a.label("L_f_wg%db" % j)
        else:
            a("s_waitcnt vmcnt(%d) lgkmcnt(0)" % nw)
        a("s_barrier")
        a.ts("kd_")
        if j == 6 and ("e" in WBL2 or "f" in WBL2):
            if "e" in WBL2:
                a("s_lshl_b32 s%d, s%d, 3" % (T_A, S_MEM))
                a("s_add_u32 s%d, s%d, s%d" % (T_A, T_A, S_WAVE))
                a("s_cmp_lg_u32 s%d, 7" % T_A)
            else:
                a("s_cmp_lg_u32 s%d, 7" % S_WAVE)
            a("s_cbranch_scc1 L_f_nowb3")
            a("buffer_wbl2 sc1")
            a.label("L_f_nowb3")
        F = V_AF[j % 2]
        stg = a_stage(j + DD) if j + DD <= 6 else []
        for l in stg[:3]:
            a(l)
        for q in range(4):
            for ai in range(2):
                a("ds_read_b128 %s, v%d offset:%d" % (vr(F[q * 2 + ai]), V_AA[ai], imm + q * 1024))
        rest = stg[3:]
        for k, m in enumerate(d_mfmas(j)):
            a("s_waitcnt lgkmcnt(%d)" % (7 - k))
            if DIAG != "dnomfma":
                a(m)
            if rest:
                a(rest.pop(0))
            if k == 4 and j == 4 and "g" in WBL2:
                assert not rest
                a("s_cmp_lg_u32 s%d, 7" % S_WB)
                a("s_cbranch_scc1 L_f_nowbg")
                a("buffer_wbl2 sc1")
                a.label("L_f_nowbg")
    a.ts("kd_")
    XD = 65536
    for x in range(1, 4):
        a("s_xor_b32 s%d, s%d, %d" % (T_A, S_WAVE, x << 1))
        a("s_mul_i32 s%d, s%d, 6144" % (T_A, T_A))
        a("s_add_u32 s%d, s%d, %d" % (T_A, T_A, XD + (x - 1) * 2048))
        a("v_add_u32 v%d, s%d, v%d" % (V_T + x, T_A, V_L16))
    a("s_mul_i32 s%d, s%d, 6144" % (T_A, S_WAVE))
    a("s_add_u32 s%d, s%d, %d" % (T_A, T_A, XD))
    a("v_add_u32 v%d, s%d, v%d" % (V_T, T_A, V_L16))
    src = {1: V_AD[1], 2: V_AD[0] + 8, 3: V_AD[1] + 8}
    for x in (2, 1, 3):
        for q in range(2):
            a("ds_write_b128 v%d, %s offset:%d" % (V_T + x, vr(src[x] + 4 * q), q * 1024))
    U = 32
    for d in range(4):
        a("v_lshlrev_b32 v%d, 16, v%d" % (U + 2 * d, V_HK + d))
        a("v_and_b32 v%d, s%d, v%d" % (U + 2 * d + 1, S_MASK, V_HK + d))
    for i in range(8):
        a("v_add_f32 v%d, v%d, v%d" % (V_AD[0] + i, V_AD[0] + i, U + i))
    srd(a, 12, 16, 2048 * 1024)
    a("v_and_b32 v%d, 31, v%d" % (V_T + 4, V_LANE))
    a("v_lshlrev_b32 v%d, 10, v%d" % (V_T + 4, V_T + 4))
    a("v_lshrrev_b32 v%d, 5, v%d" % (V_T + 5, V_LANE))
    a("v_lshl_add_u32 v%d, v%d, 3, v%d" % (V_T + 4, V_T + 5, V_T + 4))
    a("s_lshl_b32 s%d, s%d, 15" % (T_A, T_TBO))
    a("s_lshl_b32 s%d, s%d, 6" % (T_B, T_NBO))
    a("s_add_u32 s%d, s%d, s%d" % (T_A, T_A, T_B))
    a("s_lshl_b32 s%d, s%d, 5" % (T_B, T_HALF))
    a("s_add_u32 s%d, s%d, s%d" % (T_A, T_A, T_B))
    a("s_waitcnt lgkmcnt(0)")
    a("s_barrier")
    a.ts("kd_")
    R = 48
    for k in range(6):
        a("ds_read_b128 %s, v%d offset:%d" % (vr(R + 4 * k), V_T, k * 1024))
    for x in range(3):
        a("s_waitcnt lgkmcnt(%d)" % (4 - 2 * x))
        for i in range(8):
            a("v_add_f32 v%d, v%d, v%d" % (V_AD[0] + i, V_AD[0] + i, R + 8 * x + i))
    for i in range(4):
        a("v_cvt_pk_bf16_f32 v%d, v%d, v%d" % (U + i, V_AD[0] + 2 * i, V_AD[0] + 2 * i + 1))
    for q in range(2):
        a("buffer_store_dwordx2 %s, v%d, s[12:15], s%d offen offset:%d" % (vr(U + 2 * q, 2), V_T + 4, T_A, q * 16))
    a.ts_flush("k2", S_WAVE, V_T)
    a.ts_flush("kd_", S_WAVE, V_T)


FL_1 = WS_FL + 24576
P1_DIST = int(os.environ.get('P1_DIST', 3))
P1_ROT = int(os.environ.get('P1_ROT', 1))


def team_check(a, tag, vl4, vf, preissued=False):
    a("s_lshl_b32 s38, s%d, 5" % S_TEAM)
    a("s_mov_b32 s36, 0")
    if preissued:
        a("s_branch L_tc_%s_w" % tag)
    a.label("L_tc_%s" % tag)
    a("buffer_load_dword v%d, v%d, s[96:99], s38 offen sc1" % (vf, vl4))
    a.label("L_tc_%s_w" % tag)
    a("s_add_u32 s36, s36, 1")
    a("s_waitcnt vmcnt(0)")
    a("v_subrev_u32 v%d, 0x01010101, v%d" % (vf + 1, vf))
    a("v_not_b32 v%d, v%d" % (vf + 2, vf))
    a("v_and_b32 v%d, v%d, v%d" % (vf + 1, vf + 1, vf + 2))
    a("v_and_b32 v%d, 0x80808080, v%d" % (vf + 1, vf + 1))
    a("v_cmp_eq_u32 vcc, 0, v%d" % (vf + 1))
    a("s_cmp_gt_u32 s36, 0x40000")
    a("s_cbranch_scc1 L_tc_%s_d" % tag)
    a("s_and_b32 s37, vcc_lo, 0xff")
    a("s_cmp_lg_u32 s37, 0xff")
    a("s_cbranch_scc1 L_tc_%s" % tag)
    a.label("L_tc_%s_d" % tag)
    a("s_mul_i32 s37, s%d, 0x01010101" % S_XCC)
    a("v_cmp_eq_u32 vcc, s37, v%d" % vf)
    a("s_nop 3")
    a("s_or_b32 s%d, vcc_lo, 0xffffff00" % S_FAST)
    if not FASTPATH:
        a("s_and_b32 s%d, s%d, 0" % (S_FAST, S_FAST))


def phase1(a, E):
    S_WAVE, S_H, S_QB = E["S_WAVE"], E["S_H"], E["S_QB"]
    WB, WSL = 65536, 24576
    SCR = WB + 3 * WSL
    SCR_CS, SCR_RS, SCR_BF = SCR, SCR + 1536, SCR + 2048
    S_W3, S_MASK, S_T0, S_T1, S_KX, S_KW, S_SLOT, S_CNT, S_M0X, S_M0W, S_RD, S_SLC = 43, 44, 45, 46, 47, 48, 49, 50, 51, 52, 53, 54
    S_TBI, S_G, S_O0, S_O1, S_O2, S_O3, S_O4 = 55, 56, 57, 58, 59, 60, 61
    V_LANE, V_L16, V_T = 1, 2, 3
    V_DX, V_DW, V_AX, V_AW = 10, 14, 15, 19
    V_SEL, V_SQ = 24, 28
    V_X = [32, 36]
    V_W = [[40, 44, 48], [52, 56, 60]]
    V_ACC = [64, 80, 96]
    V_CS = [112, 116, 120]
    V_TMP = 124
    if INSTR == "kv_":
        a("v_mov_b32 v250, 0")
    a.tsv("15")
    a("s_and_b32 s%d, s%d, 3" % (S_W3, S_WAVE))
    a("s_mov_b32 s%d, 0xffff0000" % S_MASK)

    def x_addr(sbase, sxor):
        a("v_and_b32 v%d, 31, v%d" % (V_T, V_LANE))
        a("v_and_b32 v%d, 3, v%d" % (V_T + 1, V_LANE))
        a("v_lshrrev_b32 v%d, 2, v%d" % (V_T + 2, V_T))
        a("v_lshlrev_b32 v%d, 7, v%d" % (V_T + 2, V_T + 2))
        a("v_lshl_add_u32 v%d, v%d, 10, v%d" % (V_T + 2, V_T + 1, V_T + 2))
        a("v_add_u32 v%d, s%d, v%d" % (V_T + 2, sbase, V_T + 2))
        a("v_lshrrev_b32 v%d, 1, v%d" % (V_T + 3, V_T))
        a("v_and_b32 v%d, 4, v%d" % (V_T + 3, V_T + 3))
        a("v_or_b32 v%d, v%d, v%d" % (V_T + 3, V_T + 3, V_T + 1))
        a("v_lshrrev_b32 v%d, 5, v%d" % (V_T + 4, V_LANE))
        a("v_xor_b32 v%d, v%d, v%d" % (V_T + 3, V_T + 3, V_T + 4))
        if sxor is not None:
            a("v_xor_b32 v%d, s%d, v%d" % (V_T + 3, sxor, V_T + 3))
        for ks in range(4):
            a("v_xor_b32 v%d, %d, v%d" % (V_T + 5, 2 * ks, V_T + 3))
            a("v_lshl_add_u32 v%d, v%d, 4, v%d" % (V_AX + ks, V_T + 5, V_T + 2))

    a("v_lshrrev_b32 v%d, 3, v%d" % (V_T, V_LANE))
    a("v_and_b32 v%d, 7, v%d" % (V_T + 1, V_LANE))
    a("v_lshrrev_b32 v%d, 2, v%d" % (V_T + 2, V_LANE))
    a("v_and_b32 v%d, 4, v%d" % (V_T + 2, V_T + 2))
    a("v_xor_b32 v%d, v%d, v%d" % (V_T + 1, V_T + 1, V_T + 2))
    a("v_mul_u32_u24 v%d, 3072, v%d" % (V_T + 3, V_T))
    a("v_lshl_add_u32 v%d, v%d, 4, v%d" % (V_DW, V_T + 1, V_T + 3))
    a("v_lshlrev_b32 v%d, 12, v%d" % (V_T, V_T))
    S_HI, S_TBH = 49, 50
    a("s_and_b32 s%d, s%d, 2" % (S_HI, S_W3))
    a("v_xor_b32 v%d, s%d, v%d" % (V_T + 1, S_HI, V_T + 1))
    for q in range(2):
        a("v_xor_b32 v%d, %d, v%d" % (V_T + 3, q, V_T + 1))
        a("v_lshl_add_u32 v%d, v%d, 4, v%d" % (V_DX + q, V_T + 3, V_T))
    a("s_and_b32 s%d, s%d, 1" % (S_TBH, S_W3))
    a("s_lshl_b32 s53, s%d, 12" % S_TBH)
    a("s_lshl_b32 s%d, s%d, 10" % (S_T0, S_HI))
    a("s_add_u32 s%d, s53, s%d" % (S_M0X, S_T0))
    a("s_lshl_b32 s%d, s%d, 1" % (S_T1, S_MEM))
    a("s_add_u32 s%d, s%d, s%d" % (S_T1, S_T1, S_TBH))
    a("s_lshl_b32 s%d, s%d, 15" % (S_KX, S_T1))
    a("s_add_u32 s%d, s%d, s%d" % (S_KX, S_KX, S_T0))
    a("v_lshlrev_b32 v%d, 10, v%d" % (V_T, V_LANE))
    a("s_mul_i32 s%d, s%d, 48" % (S_T0, S_MEM))
    a("s_mul_i32 s%d, s%d, 12" % (S_T1, S_W3))
    a("s_add_u32 s%d, s%d, s%d" % (S_T0, S_T0, S_T1))
    a("s_lshl_b32 s%d, s%d, 10" % (S_T0, S_T0))
    a("s_lshl_b32 s%d, s%d, 7" % (S_T1, S_TEAM))
    a("s_add_u32 s%d, s%d, s%d" % (S_T0, S_T0, S_T1))
    a("s_mul_i32 s%d, s%d, %d" % (S_KW, S_W3, 16 * 3072))
    a("s_add_u32 s%d, s%d, s%d" % (S_KW, S_KW, S_T1))
    a("s_waitcnt lgkmcnt(0)")
    srd(a, 12, 10, 2048 * 1024)
    srd(a, 28, 100, 512 * 3072)

    def x_issue(st):
        a("s_add_u32 m0, s%d, %d" % (S_M0X, st * 8192))
        a("s_add_u32 s%d, s%d, %d" % (S_T1, S_KX, st * 128))
        for q in range(2):
            a("buffer_load_dwordx4 v%d, s[12:15], s%d offen offset:%d lds" % (V_DX + q, S_T1, q * 1024))

    def w_issue(st):
        a("s_add_u32 m0, s%d, %d" % (S_M0W, (st % 3) * WSL))
        a("s_add_u32 s%d, s%d, %d" % (S_T0, S_KW, st * 64 * 3072))
        for sx in range(3):
            a("buffer_load_dwordx4 v%d, s[28:31], s%d offen offset:%d lds" % (V_DW, S_T0, sx * 1024))
        a("s_add_u32 m0, m0, 3072")
        a("s_add_u32 s%d, s%d, %d" % (S_T0, S_T0, 8 * 3072))
        for sx in range(3):
            a("buffer_load_dwordx4 v%d, s[28:31], s%d offen offset:%d lds" % (V_DW, S_T0, sx * 1024))

    a("s_cmp_ge_u32 s%d, 4" % S_WAVE)
    a("s_cbranch_scc1 L_p1_comp")
    a("s_mov_b64 exec, 0xfff")
    a("buffer_load_dword v%d, v%d, s[28:31], s%d offen" % (V_T + 6, V_T, S_T0))
    a("s_mov_b64 exec, -1")
    a("s_mul_i32 s%d, s%d, 6144" % (S_M0W, S_W3))
    a("s_add_u32 s%d, s%d, %d" % (S_M0W, S_M0W, WB))
    log = ["p"]
    x_issue(0)
    x_issue(1)
    log += ["x0"] * 2 + ["x1"] * 2
    w_issue(0)
    log += ["w0"] * 6
    srd(a, 20, 8, WS_SIZE)
    a("s_mov_b32 s98, 256")
    a("s_mov_b32 s99, 0x00020000")
    LX = [64, 68]
    L_SX = 92
    a("s_lshl_b32 s54, s%d, 1" % S_HI)
    x_addr(53, 54)
    make_sel(a, V_LANE, V_SEL, V_T)
    for r in list(range(V_SQ, V_SQ + 4)) + list(range(L_SX, L_SX + 4)):
        a("v_mov_b32 v%d, 0" % r)
    w_issue(1)
    x_issue(4)
    log += ["w1"] * 6 + ["x4"] * 2
    for jj in range(8):
        last = max(k for k, t in enumerate(log) if t in ("w%d" % jj, "x%d" % jj))
        a("s_waitcnt vmcnt(%d)" % (len(log) - 1 - last))
        a.tsv("%d" % jj)
        a("s_barrier")
        for ks in range(2):
            a("ds_read_b128 %s, v%d offset:%d" % (vr(LX[ks]), V_AX + ks, jj * 8192))
        if jj + 2 <= 7:
            w_issue(jj + 2)
            log += ["w%d" % (jj + 2)] * 6
        if jj + 5 <= 7:
            x_issue(jj + 5)
            log += ["x%d" % (jj + 5)] * 2
        if jj == 5 and "q" in PRET:
            a("s_lshr_b32 s%d, s%d, 1" % (S_T0, S_W3))
            a("s_lshl_b32 s%d, s%d, 1" % (S_T1, S_MEM))
            a("s_add_u32 s%d, s%d, s%d" % (S_T0, S_T0, S_T1))
            a("s_lshl_b32 s%d, s%d, 10" % (S_T0, S_T0))
            a("s_lshl_b32 s%d, s%d, 1" % (S_T1, S_TEAM))
            a("s_add_u32 s%d, s%d, s%d" % (S_T1, S_T1, S_TBH))
            a("s_lshl_b32 s%d, s%d, 17" % (S_T1, S_T1))
            a("s_add_u32 s%d, s%d, s%d" % (S_T0, S_T0, S_T1))
            for k, off in enumerate((WS_K, WS_K + 65536, WS_V, WS_V + 65536, WS_Q, WS_Q + 65536)):
                a("s_add_u32 s%d, s%d, %d" % (S_T1, S_T0, off))
                a("buffer_load_dwordx4 %s, v%d, s[20:23], s%d offen sc1" % (vr(160 + 4 * k), V_L16, S_T1))
            log += ["q"] * 6
        for ks in range(2):
            a("s_waitcnt lgkmcnt(%d)" % (1 - ks))
            for d in range(4):
                a("v_lshlrev_b32 v%d, 16, v%d" % (V_TMP + 2 * d, LX[ks] + d))
                a("v_and_b32 v%d, s%d, v%d" % (V_TMP + 2 * d + 1, S_MASK, LX[ks] + d))
            for d in range(8):
                a("v_fmac_f32 v%d, v%d, v%d" % (V_SQ + d % 4, V_TMP + d, V_TMP + d))
        for ks in range(2):
            a("v_mfma_f32_16x16x32_bf16 %s, %s, %s, %s" % (vr(L_SX), vr(V_SEL), vr(LX[ks]), vr(L_SX)))
    a("s_nop 1")
    a("v_add_f32 v%d, v%d, v%d" % (V_SQ, V_SQ, V_SQ + 1))
    a("v_add_f32 v%d, v%d, v%d" % (V_SQ + 2, V_SQ + 2, V_SQ + 3))
    a("v_add_f32 v%d, v%d, v%d" % (V_SQ, V_SQ, V_SQ + 2))
    sum_halves(a, V_SQ, V_SQ + 1)
    a("v_mov_b32 v%d, v%d" % (V_SQ + 1, L_SX))
    SCR_PX = SCR + 4096
    a("s_lshl_b32 s%d, s%d, 9" % (S_T0, S_TBH))
    a("s_add_u32 s%d, s%d, %d" % (S_T0, S_T0, SCR_PX))
    a("v_lshl_add_u32 v%d, v%d, 3, s%d" % (V_T + 3, V_LANE, S_T0))
    a("s_cmp_lt_u32 s%d, 2" % S_WAVE)
    a("s_cbranch_scc1 L_p1_fin")
    a("ds_write_b64 v%d, %s" % (V_T + 3, vr(V_SQ, 2)))
    a("s_waitcnt lgkmcnt(0)")
    a("s_barrier")
    a("s_branch L_p1_hx")
    a.label("L_p1_fin")
    a("v_and_b32 v%d, 31, v%d" % (V_T, V_LANE))
    a("v_lshlrev_b32 v%d, 2, v%d" % (V_T, V_T))
    a("s_barrier")
    a("ds_read_b64 %s, v%d" % (vr(V_SQ + 2, 2), V_T + 3))
    a("s_lshl_b32 s%d, s%d, 7" % (S_T0, S_W3))
    a("s_add_u32 s%d, s%d, %d" % (S_T0, S_T0, SCR_RS))
    a("v_add_u32 v%d, s%d, v%d" % (V_T + 2, S_T0, V_T))
    a("s_lshl_b32 s%d, s%d, 9" % (S_T0, S_W3))
    a("s_add_u32 s%d, s%d, %d" % (S_T0, S_T0, SCR_BF))
    a("v_lshl_add_u32 v%d, v%d, 3, s%d" % (V_T + 3, V_LANE, S_T0))
    a("s_waitcnt lgkmcnt(0)")
    a("v_add_f32 v%d, v%d, v%d" % (V_SQ, V_SQ, V_SQ + 2))
    a("v_add_f32 v%d, v%d, v%d" % (V_SQ + 1, V_SQ + 1, V_SQ + 3))
    V_MU, V_RS = V_SQ + 2, V_SQ + 3
    a("v_mul_f32 v%d, 0x%x, v%d" % (V_MU, f32bits(1.0 / 512), V_SQ + 1))
    a("v_mul_f32 v%d, 0x%x, v%d" % (V_SQ, f32bits(1.0 / 512), V_SQ))
    a("v_fma_f32 v%d, -v%d, v%d, v%d" % (V_SQ, V_MU, V_MU, V_SQ))
    a("v_max_f32 v%d, 0, v%d" % (V_SQ, V_SQ))
    a("v_add_f32 v%d, 0x%x, v%d" % (V_SQ, f32bits(1e-5), V_SQ))
    a("v_rsq_f32 v%d, v%d" % (V_RS, V_SQ))
    a("v_sub_f32 v%d, 0, v%d" % (V_MU, V_MU))
    split_hi_lo_B(a, V_MU, LX[0], V_T + 4, S_MASK)
    a("ds_write_b32 v%d, v%d" % (V_T + 2, V_RS))
    a("ds_write_b64 v%d, %s" % (V_T + 3, vr(LX[0], 2)))
    a("s_waitcnt lgkmcnt(0)")
    a.label("L_p1_hx")
    a("s_barrier")
    team_check(a, "h", FV_L4, FV_F)
    a("s_cmp_lg_u32 s%d, 0" % S_WAVE)
    a("s_cbranch_scc1 L_p1_done")
    a("s_lshl_b32 s%d, s%d, 9" % (T_A, S_TEAM))
    a("s_bfe_u32 s%d, s%d, 0x10001" % (T_B, S_H))
    a("s_lshl_b32 s%d, s%d, 8" % (T_B, T_B))
    a("s_add_u32 s%d, s%d, s%d" % (T_A, T_A, T_B))
    a("s_add_u32 s%d, s%d, %d" % (T_A, T_A, FL_1))
    poll(a, "f1", T_A, 64, FV_L4, FV_F)
    a("s_branch L_p1_done")
    a.label("L_p1_comp")
    a("v_mov_b32 v200, v%d" % V_DX)
    a("v_mov_b32 v201, v%d" % (V_DX + 1))
    a("s_lshr_b32 s%d, s%d, 1" % (S_TBI, S_W3))
    a("s_and_b32 s%d, s%d, 1" % (S_G, S_W3))
    a("s_lshl_b32 s%d, s%d, 12" % (S_T0, S_TBI))
    a("s_lshl_b32 s%d, s%d, 1" % (S_T1, S_TBI))
    x_addr(S_T0, S_T1)
    a("v_bfe_u32 v%d, v%d, 2, 2" % (V_T, V_LANE))
    a("v_lshlrev_b32 v%d, 7, v%d" % (V_T + 1, V_T))
    a("v_lshrrev_b32 v%d, 1, v%d" % (V_T, V_T))
    a("v_xor_b32 v%d, s%d, v%d" % (V_T, S_G, V_T))
    a("v_lshl_add_u32 v%d, v%d, 6, v%d" % (V_T + 1, V_T, V_T + 1))
    a("v_bfe_u32 v%d, v%d, 4, 1" % (V_T, V_LANE))
    a("v_lshl_add_u32 v%d, v%d, 5, v%d" % (V_T + 1, V_T, V_T + 1))
    a("v_and_b32 v%d, 3, v%d" % (V_T, V_LANE))
    a("v_lshl_add_u32 v%d, v%d, 3, v%d" % (V_T + 1, V_T, V_T + 1))
    a("v_lshrrev_b32 v%d, 5, v%d" % (V_T + 2, V_LANE))
    a("v_mul_u32_u24 v%d, 3072, v%d" % (V_T, V_T + 2))
    a("v_add_u32 v%d, v%d, v%d" % (V_T + 1, V_T + 1, V_T))
    for p in range(2):
        a("s_xor_b32 s%d, s%d, %d" % (S_T0, S_TBI, p))
        a("s_mul_i32 s%d, s%d, 6144" % (S_T0, S_T0))
        a("s_add_u32 s%d, s%d, %d" % (S_T0, S_T0, WB))
        a("v_add_u32 v%d, s%d, v%d" % (V_AW + p, S_T0, V_T + 1))
    make_sel(a, V_LANE, V_SEL, V_T)
    V_ECW, V_ECS, V_ERS, V_ERV, V_EBF, V_OV = 10, 11, 12, 13, 14, 21
    a("v_and_b32 v%d, 31, v%d" % (V_T, V_LANE))
    a("v_lshlrev_b32 v%d, 2, v%d" % (V_T, V_T))
    a("s_mul_i32 s%d, s%d, 768" % (S_T0, S_G))
    a("s_add_u32 s%d, s%d, %d" % (S_T0, S_T0, SCR_CS))
    a("v_mul_u32_u24 v%d, 384, v%d" % (V_T + 3, V_T + 2))
    a("v_add3_u32 v%d, v%d, v%d, s%d" % (V_ECS, V_T + 3, V_T, S_T0))
    a("s_mul_i32 s%d, s%d, 384" % (S_T1, S_TBI))
    a("s_add_u32 s%d, s%d, s%d" % (S_T0, S_T0, S_T1))
    a("v_add_u32 v%d, s%d, v%d" % (V_ECW, S_T0, V_T))
    a("s_lshl_b32 s%d, s%d, 7" % (S_T0, S_TBI))
    a("s_add_u32 s%d, s%d, %d" % (S_T0, S_T0, SCR_RS))
    a("v_add_u32 v%d, s%d, v%d" % (V_ERS, S_T0, V_T))
    a("v_lshl_add_u32 v%d, v%d, 4, s%d" % (V_ERV, V_T + 2, S_T0))
    a("s_lshl_b32 s%d, s%d, 9" % (S_T0, S_TBI))
    a("s_add_u32 s%d, s%d, %d" % (S_T0, S_T0, SCR_BF))
    a("v_lshl_add_u32 v%d, v%d, 3, s%d" % (V_EBF, V_LANE, S_T0))
    a("v_bfe_u32 v%d, v%d, 4, 1" % (V_T + 1, V_LANE))
    a("v_lshlrev_b32 v%d, 16, v%d" % (V_T + 1, V_T + 1))
    a("v_lshl_add_u32 v%d, v%d, 8, v%d" % (V_T + 1, V_T + 2, V_T + 1))
    a("v_and_b32 v%d, 15, v%d" % (V_T + 2, V_LANE))
    a("v_lshl_add_u32 v%d, v%d, 4, v%d" % (V_OV, V_T + 2, V_T + 1))
    a("s_lshl_b32 s%d, s%d, 1" % (S_T0, S_MEM))
    a("s_add_u32 s%d, s%d, s%d" % (S_T0, S_T0, S_TBI))
    a("s_lshl_b32 s%d, s%d, 10" % (S_T0, S_T0))
    a("s_lshl_b32 s%d, s%d, 1" % (S_T1, S_TEAM))
    a("s_add_u32 s%d, s%d, s%d" % (S_T1, S_T1, S_G))
    a("s_lshl_b32 s%d, s%d, 17" % (S_T1, S_T1))
    a("s_add_u32 s%d, s%d, s%d" % (S_O0, S_T0, S_T1))
    a("s_add_u32 s%d, s%d, 65536" % (S_O1, S_O0))
    a("s_add_u32 s%d, s%d, %d" % (S_O2, S_O0, WS_K))
    a("s_add_u32 s%d, s%d, %d" % (S_O3, S_O1, WS_K))
    a("s_add_u32 s%d, s%d, %d" % (S_O4, S_O0, WS_V))
    VB = V_TMP
    VA = [V_TMP + 4, V_TMP + 8, V_TMP + 12]
    for r in (VB + 2, VB + 3):
        a("v_mov_b32 v%d, 0" % r)
    a("s_waitcnt lgkmcnt(0)")
    srd(a, 20, 8, WS_SIZE)
    a("s_mov_b32 s98, 256")
    a("s_mov_b32 s99, 0x00020000")
    pret = []
    V_DX_SAVE, V_DX = V_DX, 200
    x_issue(2)
    x_issue(3)
    V_DX = V_DX_SAVE
    a("s_cmp_lg_u32 s%d, 4" % S_WAVE)
    a("s_cbranch_scc1 L_p1_nz")
    Z = V_TMP + 20
    a("v_and_b32 v%d, 1, v%d" % (Z, V_LANE))
    a("v_bfe_u32 v%d, v%d, 1, 1" % (Z + 1, V_LANE))
    a("v_bfe_u32 v%d, v%d, 2, 1" % (Z + 2, V_LANE))
    a("v_bfe_u32 v%d, v%d, 1, 2" % (Z + 3, V_LANE))
    a("s_lshl_b32 s36, s%d, 10" % S_QB)
    a("s_lshl_b32 s37, s%d, 2" % S_H)
    a("s_add_u32 s36, s36, s37")
    a("v_lshl_add_u32 v%d, v%d, 8, s36" % (Z + 4, Z + 3))
    a("v_lshl_add_u32 v%d, v%d, 7, v%d" % (Z + 4, Z, Z + 4))
    a("s_and_b32 s36, s%d, 3" % S_MEM)
    a("s_lshl_b32 s37, s%d, 2" % S_TEAM)
    a("s_add_u32 s38, s36, s37")
    a("s_lshl_b32 s36, s38, 8")
    a("s_lshr_b32 s37, s%d, 2" % S_MEM)
    a("s_lshl_b32 s39, s37, 4")
    a("s_add_u32 s36, s36, s39")
    a("s_add_u32 s36, s36, %d" % (FL_B - WS_FL))
    a("v_lshl_add_u32 v%d, v%d, 7, s36" % (Z + 5, Z + 1))
    a("v_lshl_add_u32 v%d, v%d, 3, v%d" % (Z + 5, Z, Z + 5))
    a("v_lshl_add_u32 v%d, v%d, 2, v%d" % (Z + 5, Z + 2, Z + 5))
    a("s_lshr_b32 s36, s38, 1")
    a("s_lshl_b32 s36, s36, 8")
    a("s_lshl_b32 s37, s37, 1")
    a("s_and_b32 s39, s%d, 1" % S_MEM)
    a("s_add_u32 s37, s37, s39")
    a("s_lshl_b32 s37, s37, 2")
    a("s_add_u32 s36, s36, s37")
    a("s_add_u32 s36, s36, %d" % (FL_C - WS_FL))
    a("v_lshl_add_u32 v%d, v%d, 7, s36" % (Z + 6, Z + 1))
    a("v_lshl_add_u32 v%d, v%d, 6, v%d" % (Z + 6, Z, Z + 6))
    a("s_lshl_b32 s36, s2, 4")
    a("s_add_u32 s36, s36, %d" % (FL_P - WS_FL))
    a("v_and_b32 v%d, 3, v%d" % (Z + 7, V_LANE))
    a("v_lshl_add_u32 v%d, v%d, 2, s36" % (Z + 7, Z + 7))
    a("v_cmp_ne_u32 vcc, 0, v%d" % (Z + 2))
    a("s_lshl_b32 s36, s%d, 9" % S_TEAM)
    a("s_lshl_b32 s37, s%d, 3" % S_MEM)
    a("s_add_u32 s36, s36, s37")
    a("s_add_u32 s36, s36, %d" % (FL_1 - WS_FL))
    a("v_cndmask_b32 v%d, v%d, v%d, vcc" % (Z + 6, Z + 6, Z + 7))
    a("v_lshl_add_u32 v%d, v%d, 8, s36" % (Z + 7, Z))
    a("v_lshl_add_u32 v%d, v%d, 2, v%d" % (Z + 7, Z + 1, Z + 7))
    a("v_mov_b32 v%d, v%d" % (V_T, Z + 4))
    for k in range(1, 4):
        a("v_cmp_le_u32 vcc, %d, v%d" % (8 * k, V_LANE))
        a("s_nop 1")
        a("v_cndmask_b32 v%d, v%d, v%d, vcc" % (V_T, V_T, Z + 4 + k))
    a("v_mov_b32 v%d, 0" % (V_T + 1))
    a("s_mov_b32 s%d, %d" % (S_T0, WS_FL))
    a("s_mov_b64 exec, 0xffffffff")
    a("buffer_store_dword v%d, v%d, s[20:23], s%d offen sc1" % (V_T + 1, V_T, S_T0))
    a("s_mov_b64 exec, -1")
    a.label("L_p1_nz")
    cur_base = [0]

    lds = Lds(a)
    NB = 3
    V_X = [32, 36, 184]
    V_W = [[40, 44, 48], [52, 56, 60], [188, 192, 196]]

    def reads(P):
        st, pos = P // 4, P % 4
        out = []
        b = P % NB
        out.append(("ds_read_b128 %s, v%d offset:%d" % (vr(V_X[b]), V_AX + pos, st * 8192), ("x", P)))
        for sx in range(3):
            for rd in range(2):
                out.append(("ds_read_b64_tr_b16 %s, v%d offset:%d" % (vr(V_W[b][sx] + 2 * rd, 2), V_AW + (pos & 1), (st % 3) * WSL + (pos & 2) * 6144 + sx * 1024 + rd * 512), ("w", P, sx, rd)))
        return out

    def emit(items):
        for t, tag in items:
            lds.op(t, tag) if tag else a(t)

    a.tsv("0")
    a("s_barrier")
    a.ts("k2")
    a.ts("kp_")
    emit(reads(0))
    emit(reads(1))
    for P in range(32):
        st, pos = P // 4, P % 4
        b = P % NB
        if P == 11:
            a("s_cmp_lg_u32 s%d, 4" % S_WAVE)
            a("s_cbranch_scc1 L_p1_np")
            a("s_lshl_b32 s%d, s%d, 5" % (S_T0, S_TEAM))
            a("s_add_u32 s%d, s%d, s%d" % (S_T0, S_T0, S_MEM))
            a("v_mov_b32 v%d, 0" % (V_T + 1))
            a("v_mov_b32 v%d, s%d" % (V_T + 2, S_XCC))
            a("s_mov_b64 exec, 1")
            a("s_waitcnt vmcnt(0)")
            a("buffer_store_byte v%d, v%d, s[96:99], s%d offen sc1" % (V_T + 2, V_T + 1, S_T0))
            a("s_mov_b64 exec, -1")
            a.label("L_p1_np")
        X = vr(V_X[b])
        c = lambda r, n=16: ("0" if P == 0 else vr(r, n))
        m = []
        m.append(("v_mfma_f32_32x32x16_bf16 %s, %s, %s, %s" % (vr(V_ACC[0], 16), vr(V_W[b][0]), X, c(V_ACC[0])), [("x", P), ("w", P, 0, 1)]))
        m.append(("v_mfma_f32_32x32x16_bf16 %s, %s, %s, %s" % (vr(V_ACC[1], 16), vr(V_W[b][1]), X, c(V_ACC[1])), [("w", P, 1, 1)]))
        m.append(("v_mfma_f32_32x32x16_bf16 %s, %s, %s, %s" % (vr(V_ACC[2], 16), X, vr(V_W[b][2]), c(V_ACC[2])), [("w", P, 2, 1)]))
        if pos % 2 == 0:
            for sx in range(3):
                m.append(("v_mfma_f32_16x16x32_bf16 %s, %s, %s, %s" % (vr(V_CS[sx]), vr(V_SEL), vr(V_W[b][sx]), c(V_CS[sx], 4)), [("w", P, sx, 1)]))
        bar = pos == 2 and P + 2 < 32
        rd = None
        extra = []
        if P == 28:
            extra = [("s_lshl_b32 s38, s%d, 5" % S_TEAM, None), ("buffer_load_dword v%d, v%d, s[96:99], s38 offen sc1" % (FV_F, FV_L4), None)]
        if 4 <= P < 4 + len(pret):
            extra = [(pret[P - 4], None)]
        for k, (t, need) in enumerate(m):
            lds.need(*need)
            if DIAG != "nomfma":
                a(t)
            if k == 0:
                if bar:
                    lds.drain()
                    if st == 1:
                        a("s_cmp_lg_u32 s%d, 4" % S_WAVE)
                        a("s_cbranch_scc1 L_p1_w0")
                        a("s_waitcnt vmcnt(1)")
                        a("s_branch L_p1_w1")
                        a.label("L_p1_w0")
                        a("s_waitcnt vmcnt(0)")
                        a.label("L_p1_w1")
                    a.tsv("%d" % (st + 1))
                    a("s_barrier")
                    a.ts("kp_")
                if P == 30:
                    a("s_barrier")
                rd = (reads(P + 2) if P + 2 < 32 else []) + extra
            n = 4 if len(rd) > 8 else 3
            emit(rd[:n])
            rd = rd[n:]
        emit(rd)
    a("s_nop 3")
    for sx in range(3):
        a("ds_write_b32 v%d, v%d offset:%d" % (V_ECW, V_CS[sx], sx * 128))
    a.ts("k2")
    a("s_waitcnt lgkmcnt(0)")
    a("s_barrier")
    a.ts("kp_")
    VC = V_TMP + 16
    V_RS = V_TMP + 22
    V_RQ = V_TMP + 23
    VR = V_TMP + 24
    for sx in range(3):
        a("ds_read_b32 v%d, v%d offset:%d" % (VC + sx, V_ECS, sx * 128))
    a("ds_read_b64 %s, v%d" % (vr(VB, 2), V_EBF))
    a("ds_read_b32 v%d, v%d" % (V_RS, V_ERS))
    for q in range(4):
        a("ds_read_b128 %s, v%d offset:%d" % (vr(VR + 4 * q), V_ERV, q * 32))
    for sx in range(3):
        a("s_waitcnt lgkmcnt(%d)" % (8 - sx))
        split_hi_lo_A(a, VC + sx, VA[sx], V_T + 4, S_MASK)
    a("s_waitcnt lgkmcnt(4)")
    a("v_mul_f32 v%d, 0x%x, v%d" % (V_RQ, f32bits(0.25 * math.log2(math.e)), V_RS))
    a("v_mfma_f32_32x32x16_bf16 %s, %s, %s, %s" % (vr(V_ACC[0], 16), vr(VA[0]), vr(VB), vr(V_ACC[0], 16)))
    a("v_mfma_f32_32x32x16_bf16 %s, %s, %s, %s" % (vr(V_ACC[1], 16), vr(VA[1]), vr(VB), vr(V_ACC[1], 16)))
    a("v_mfma_f32_32x32x16_bf16 %s, %s, %s, %s" % (vr(V_ACC[2], 16), vr(VB), vr(VA[2]), vr(V_ACC[2], 16)))
    team_check(a, "c", FV_L4, FV_F, preissued=True)
    VO = V_X[0]
    k = 0
    stores = []
    for blk, sc, soffs in ((1, V_RS, (S_O2, S_O3)), (0, V_RQ, (S_O0, S_O1))):
        for half in range(2):
            o = VO + 4 * k
            k += 1
            for i in range(8):
                r = V_ACC[blk] + 8 * half + i
                a("v_mul_f32 v%d, v%d, v%d" % (r, sc, r))
            for i in range(4):
                r = V_ACC[blk] + 8 * half + 2 * i
                a("v_cvt_pk_bf16_f32 v%d, v%d, v%d" % (o + i, r, r + 1))
            stores.append("buffer_store_dwordx4 %s, v%d, s[20:23], s%d offen" % (vr(o), V_L16, soffs[half]))
        hstore(a, "p1%d" % blk, stores)
        stores = []
    a("s_waitcnt lgkmcnt(0)")
    for half in range(2):
        o = VO + 4 * k
        k += 1
        for i in range(8):
            r = V_ACC[2] + 8 * half + i
            a("v_mul_f32 v%d, v%d, v%d" % (r, VR + 8 * half + i, r))
        for i in range(4):
            r = V_ACC[2] + 8 * half + 2 * i
            a("v_cvt_pk_bf16_f32 v%d, v%d, v%d" % (o + i, r, r + 1))
        stores.append("buffer_store_dwordx4 %s, v%d, s[20:23], s%d offen offset:%d" % (vr(o), V_OV, S_O4, half * 512))
    hstore(a, "p1v", stores)
    a("s_lshl_b32 s%d, s%d, 9" % (T_A, S_TEAM))
    a("s_lshl_b32 s%d, s%d, 8" % (T_B, S_G))
    a("s_add_u32 s%d, s%d, s%d" % (T_A, T_A, T_B))
    a("s_lshl_b32 s%d, s%d, 1" % (T_B, S_MEM))
    a("s_add_u32 s%d, s%d, s%d" % (T_B, T_B, S_TBI))
    a("s_lshl_b32 s%d, s%d, 2" % (T_B, T_B))
    a("s_add_u32 s%d, s%d, s%d" % (T_A, T_A, T_B))
    a("s_add_u32 s%d, s%d, %d" % (T_A, T_A, FL_1))
    a("s_waitcnt vmcnt(0)")
    set_flag(a, T_A, V_T, "f1")
    a.ts_flush("kp_", S_WAVE, V_T)
    a.label("L_p1_done")
    a.tsv("9")
    a.tsv_flush(S_WAVE)


def gen_f(a):
    name = NAME + "_kernel"
    kernel_begin(a, name)
    S_WAVE, S_H, S_QB, S_T0, S_T1, S_T2, S_T3 = 40, 41, 42, 43, 44, 45, 46
    S_ITER, S_SYNC, S_PASS, S_NT = 47, 48, 49, 50
    S_TASK, S_STG, S_DST0, S_DST1, S_TYPE = 51, 52, 53, 54, 55
    S_VMASK = 56
    S_CS = 58
    S_KB, S_W1K, S_CH = 59, 60, 61
    S_PE, S_PO, S_PS = 36, 37, 38
    V_LANE, V_L16, V_T = 1, 2, 3
    V_KA, V_VA = 10, 11
    V_Q = 12
    V_K = [16, 20]
    V_V = [24, 32]
    V_P = 40
    V_CM = 48
    V_S = [64, 80]
    V_O = 96
    V_MAX = 112
    V_PK = 113
    V_PD = 114
    V_SEL = 116
    V_PCS = [120, 124]
    STG = 131072
    a("s_cmp_ge_u32 s2, 256")
    a("s_cbranch_scc1 L_f_end")
    a.ts("k2")
    a.ts("kp_")
    pass
    a("s_load_dwordx2 s[8:9], s[0:1], %d" % ARG_WS)
    a("s_load_dwordx2 s[4:5], s[0:1], %d" % ARG_WO)
    a("s_load_dwordx4 s[24:27], s[0:1], %d" % ARG_WG)
    a("s_load_dwordx2 s[6:7], s[0:1], %d" % ARG_WD)
    a("s_load_dwordx2 s[10:11], s[0:1], %d" % ARG_X)
    a("s_load_dwordx2 s[16:17], s[0:1], %d" % ARG_OUT)
    a("s_load_dwordx2 s[100:101], s[0:1], %d" % ARG_WQKV)
    a("s_load_dwordx2 s[96:97], s[0:1], %d" % ARG_DBG)
    a("v_lshrrev_b32 v%d, 6, v0" % V_T)
    a("v_and_b32 v%d, 63, v0" % V_LANE)
    a("v_readfirstlane_b32 s%d, v%d" % (S_WAVE, V_T))
    a("v_lshlrev_b32 v%d, 4, v%d" % (V_L16, V_LANE))
    a("s_lshr_b32 s%d, s2, 3" % S_MEM)
    a("s_and_b32 s%d, s2, 7" % S_TEAM)
    if AMAP:
        a("s_lshr_b32 s%d, s2, 3" % S_H)
        a("s_and_b32 s%d, s2, 7" % S_QB)
    else:
        a("s_and_b32 s%d, s2, 7" % S_H)
        a("s_lshl_b32 s%d, s%d, 2" % (S_H, S_H))
        a("s_lshr_b32 s%d, s2, 6" % S_T0)
        a("s_add_u32 s%d, s%d, s%d" % (S_H, S_H, S_T0))
        a("s_lshr_b32 s%d, s2, 3" % S_QB)
        a("s_and_b32 s%d, s%d, 7" % (S_QB, S_QB))
    a("s_lshr_b32 s%d, s%d, 2" % (S_T0, S_WAVE))
    a("s_lshl_b32 s%d, s%d, 8" % (S_T0, S_T0))
    a("v_xor_b32 v%d, s%d, v%d" % (FV_LX, S_T0, V_L16))
    a("v_lshlrev_b32 v%d, 2, v%d" % (FV_L4, V_LANE))
    a("v_mov_b32 v%d, 0" % (FV_F + 3))
    a("v_lshlrev_b32 v%d, 3, v%d" % (FV_L8, V_LANE))
    a("s_getreg_b32 s%d, hwreg(HW_REG_XCC_ID)" % S_XCC)
    a("s_and_b32 s%d, s%d, 15" % (S_XCC, S_XCC))
    a("s_add_u32 s%d, s%d, 1" % (S_XCC, S_XCC))
    phase1(a, locals())
    a("s_lshl_b32 s%d, s%d, 16" % (S_KB, S_H))
    a("s_lshl_b32 s%d, s%d, 10" % (S_W1K, S_WAVE))
    a("s_add_u32 s%d, s%d, s%d" % (S_KB, S_KB, S_W1K))
    a("s_lshl_b32 s%d, s%d, 13" % (S_CH, S_QB))
    a("s_add_u32 s%d, s%d, s%d" % (S_T3, S_KB, S_CH))
    a("s_add_u32 s%d, s%d, %d" % (S_KB, S_KB, WS_K))
    if not K2_ROT:
        a("s_mov_b32 s%d, 0" % S_CH)
    a("s_mov_b32 s39, s%d" % S_T3)

    def kv_dma(c):
        return [["s_add_u32 s%d, s%d, s%d" % (S_T3, S_KB, S_CH),
                 "s_add_u32 m0, s%d, %d" % (S_W1K, c * 8192),
                 "s_add_u32 s%d, s%d, 8192" % (S_CH, S_CH),
                 "buffer_load_dwordx4 v%d, s[20:23], s%d offen sc1 lds" % (V_L16, S_T3)],
                ["s_add_u32 s%d, s%d, %d" % (S_T3, S_T3, WS_V - WS_K),
                 "s_add_u32 m0, s%d, %d" % (S_W1K, 65536 + c * 8192),
                 "s_and_b32 s%d, s%d, 0xffff" % (S_CH, S_CH),
                 "buffer_load_dwordx4 v%d, s[20:23], s%d offen sc1 lds" % (V_L16, S_T3)]]

    a("s_mov_b32 s%d, 0" % S_TYPE)
    a("s_cmp_ge_u32 s%d, 4" % S_WAVE)
    a("s_cbranch_scc1 L_f_nopack")
    a("s_lshl_b32 s%d, s2, 2" % S_TASK)
    a("s_add_u32 s%d, s%d, s%d" % (S_TASK, S_TASK, S_WAVE))
    a("s_cmp_ge_u32 s%d, 736" % S_TASK)
    a("s_cbranch_scc1 L_f_nopack")
    a("s_lshl_b32 s%d, s%d, 13" % (S_STG, S_WAVE))
    a("s_add_u32 s%d, s%d, %d" % (S_STG, S_STG, STG))
    a("v_lshrrev_b32 v%d, 2, v%d" % (V_T, V_LANE))
    a("v_and_b32 v%d, 3, v%d" % (V_T + 1, V_LANE))
    a("s_cmp_ge_u32 s%d, 448" % S_TASK)
    a("s_cbranch_scc1 L_f_packn")
    a("s_mov_b32 s%d, 1" % S_TYPE)
    srd(a, 28, 24, 512 * 3584)
    srd(a, 32, 26, 512 * 3584)
    a("v_mul_u32_u24 v%d, 3584, v%d" % (V_T, V_T))
    a("v_lshl_add_u32 v%d, v%d, 4, v%d" % (V_PD, V_T + 1, V_T))
    a("s_and_b32 s%d, s%d, 7" % (S_T0, S_TASK))
    a("s_lshr_b32 s%d, s%d, 3" % (S_T1, S_TASK))
    a("s_mul_i32 s%d, s%d, %d" % (S_PE, S_T0, 64 * 3584))
    a("s_lshl_b32 s%d, s%d, 6" % (S_T2, S_T1))
    a("s_add_u32 s%d, s%d, s%d" % (S_PE, S_PE, S_T2))
    a("s_mov_b32 s%d, s%d" % (S_PO, S_PE))
    a("s_mov_b32 s%d, %d" % (S_PS, 16 * 3584))
    for hb, sd in ((0, S_DST0), (1, S_DST1)):
        a("s_lshl_b32 s%d, s%d, 1" % (S_T2, S_T1))
        if hb:
            a("s_add_u32 s%d, s%d, 1" % (S_T2, S_T2))
        a("s_mul_i32 s%d, s%d, 9363" % (S_CS, S_T2))
        a("s_lshr_b32 s%d, s%d, 16" % (S_CS, S_CS))
        a("s_mul_i32 s%d, s%d, 7" % (sd, S_CS))
        a("s_sub_u32 s%d, s%d, s%d" % (sd, S_T2, sd))
        a("s_mul_i32 s%d, s%d, %d" % (S_CS, S_CS, 32 * 7))
        a("s_add_u32 s%d, s%d, s%d" % (sd, sd, S_CS))
        a("s_mul_i32 s%d, s%d, 28" % (S_CS, S_T0))
        a("s_add_u32 s%d, s%d, s%d" % (sd, sd, S_CS))
        a("s_lshl_b32 s%d, s%d, 10" % (sd, sd))
        a("s_add_u32 s%d, s%d, %d" % (sd, sd, WS_GU))
    a("s_lshl_b32 s%d, s%d, 11" % (S_CS, S_T1))
    a("s_lshr_b32 s%d, s%d, 2" % (S_T2, S_T0))
    a("s_lshl_b32 s%d, s%d, 9" % (S_T2, S_T2))
    a("s_add_u32 s%d, s%d, s%d" % (S_CS, S_CS, S_T2))
    a("s_and_b32 s%d, s%d, 3" % (S_T2, S_T0))
    a("s_lshl_b32 s%d, s%d, 2" % (S_T2, S_T2))
    a("s_add_u32 s%d, s%d, s%d" % (S_CS, S_CS, S_T2))
    a("s_add_u32 s%d, s%d, %d" % (S_CS, S_CS, WS_CS))
    a("s_branch L_f_nopack")
    a.label("L_f_packn")
    a("s_mov_b32 s%d, 2" % S_TYPE)
    a("v_lshlrev_b32 v%d, 10, v%d" % (V_T, V_T))
    a("v_lshl_add_u32 v%d, v%d, 4, v%d" % (V_PD, V_T + 1, V_T))
    a("s_cmp_ge_u32 s%d, 512" % S_TASK)
    a("s_cbranch_scc1 L_f_packd")
    srd(a, 28, 4, 512 * 1024)
    srd(a, 32, 4, 512 * 1024)
    a("s_sub_u32 s%d, s%d, 448" % (S_T0, S_TASK))
    a("s_lshr_b32 s%d, s%d, 2" % (S_T1, S_T0))
    a("s_and_b32 s%d, s%d, 3" % (S_T0, S_T0))
    a("s_lshl_b32 s%d, s%d, 15" % (S_DST0, S_T1))
    a("s_add_u32 s%d, s%d, %d" % (S_DST0, S_DST0, WS_WO))
    a("s_branch L_f_packc")
    a.label("L_f_packd")
    srd(a, 28, 6, 1792 * 1024)
    srd(a, 32, 6, 1792 * 1024)
    a("s_sub_u32 s%d, s%d, 512" % (S_T0, S_TASK))
    a("s_mul_i32 s%d, s%d, 4682" % (S_T1, S_T0))
    a("s_lshr_b32 s%d, s%d, 16" % (S_T1, S_T1))
    a("s_mul_i32 s%d, s%d, 14" % (S_T2, S_T1))
    a("s_sub_u32 s%d, s%d, s%d" % (S_T0, S_T0, S_T2))
    a("s_mul_i32 s%d, s%d, %d" % (S_DST0, S_T1, 112 * 1024))
    a("s_add_u32 s%d, s%d, %d" % (S_DST0, S_DST0, WS_WD))
    a.label("L_f_packc")
    a("s_lshl_b32 s%d, s%d, 13" % (S_T2, S_T0))
    a("s_add_u32 s%d, s%d, s%d" % (S_DST0, S_DST0, S_T2))
    a("s_lshl_b32 s%d, s%d, 17" % (S_PE, S_T0))
    a("s_lshl_b32 s%d, s%d, 6" % (S_T2, S_T1))
    a("s_add_u32 s%d, s%d, s%d" % (S_PE, S_PE, S_T2))
    a("s_add_u32 s%d, s%d, 16384" % (S_PO, S_PE))
    a("s_mov_b32 s%d, 32768" % S_PS)
    a.label("L_f_nopack")
    a("s_mov_b32 s%d, 0x0000ffff" % S_VMASK)
    a("s_mov_b32 s%d, 0x0000ffff" % (S_VMASK + 1))
    a("v_and_b32 v%d, 27, v%d" % (V_T, V_LANE))
    a("v_cmp_eq_u32 vcc, 16, v%d" % V_T)
    a("v_mov_b32 v%d, 0x%x" % (V_T + 1, ONES_BF16))
    a("s_nop 1")
    a("v_cndmask_b32 v%d, 0, v%d, vcc" % (V_V[0], V_T + 1))
    for i in range(1, 16):
        a("v_mov_b32 v%d, v%d" % (V_V[0] + i, V_V[0]))
    a("s_mov_b32 s%d, 7" % S_SYNC)
    a("s_mov_b32 s%d, 0" % S_PASS)
    a("s_mov_b32 s%d, 1" % S_NT)
    a("s_setprio 3")
    a("s_barrier")
    if INSTR == "ka_":
        a("v_mov_b32 v250, 0")
    a.tsv("15", "ka_")
    a.ts("k2")
    a("buffer_load_dwordx4 %s, v%d, s[20:23], s39 offen sc1" % (vr(V_Q), V_L16))
    for c in range(2):
        for g in kv_dma(c):
            for l in g:
                a(l)
    a("s_waitcnt vmcnt(2)")
    pass
    a("s_barrier")
    a.ts("k2")
    pass
    a.label("L_f_maxpass")
    a("v_mov_b32 v%d, 0xff800000" % V_MAX)
    a("v_mov_b32 v%d, v%d" % (V_KA, V_L16))
    a.label("L_f_mloop")
    a("ds_read_b128 %s, v%d" % (vr(V_K[0]), V_KA))
    a("v_add_u32 v%d, 1024, v%d" % (V_KA, V_KA))
    a("s_waitcnt lgkmcnt(0)")
    a("v_mfma_f32_32x32x16_bf16 %s, %s, %s, 0" % (vr(V_S[0], 16), vr(V_K[0]), vr(V_Q)))
    a("s_nop 15")
    for i in range(8):
        a("v_max3_f32 v%d, v%d, v%d, v%d" % (V_MAX, V_S[0] + 2 * i, V_S[0] + 2 * i + 1, V_MAX))
    a("s_sub_u32 s%d, s%d, 1" % (S_NT, S_NT))
    a("s_cmp_lg_u32 s%d, 0" % S_NT)
    a("s_cbranch_scc1 L_f_mloop")
    a("v_mov_b32 v%d, v%d" % (V_KA, V_L16))
    a("v_lshrrev_b32 v%d, 5, v%d" % (V_T, V_LANE))
    a("v_lshlrev_b32 v%d, 8, v%d" % (V_T, V_T))
    a("v_and_b32 v%d, 15, v%d" % (V_T + 1, V_LANE))
    a("v_lshl_add_u32 v%d, v%d, 4, v%d" % (V_VA, V_T + 1, V_T))
    a("v_add_u32 v%d, 65536, v%d" % (V_VA, V_VA))
    a("ds_read_b128 %s, v%d" % (vr(V_K[0]), V_KA))
    a("ds_read_b128 %s, v%d offset:1024" % (vr(V_K[1]), V_KA))
    a("s_mov_b64 exec, s[%d:%d]" % (S_VMASK, S_VMASK + 1))
    a("ds_read_b128 %s, v%d" % (vr(V_V[0]), V_VA))
    a("ds_read_b128 %s, v%d offset:512" % (vr(V_V[0] + 4), V_VA))
    a("s_mov_b64 exec, -1")
    a("v_mov_b32 v%d, v%d" % (V_T, V_MAX))
    a("s_nop 1")
    a("v_permlane32_swap_b32 v%d, v%d" % (V_MAX, V_T))
    a("s_nop 1")
    a("v_max_f32 v%d, v%d, v%d" % (V_MAX, V_MAX, V_T))
    for i in range(16):
        a("v_sub_f32 v%d, 0, v%d" % (V_CM + i, V_MAX))
    a("s_waitcnt lgkmcnt(0)")
    a("s_nop 0")
    a("v_mfma_f32_32x32x16_bf16 %s, %s, %s, %s" % (vr(V_S[0], 16), vr(V_K[0]), vr(V_Q), vr(V_CM, 16)))
    for i in range(16):
        a("v_mov_b32 v%d, 0" % (V_O + i))
    for i in range(4):
        a("v_mov_b32 v%d, 0" % (V_P + 4 + i))
    a("s_mov_b32 s%d, 8" % S_ITER)
    a("s_cmp_lg_u32 s%d, 0" % S_PASS)
    a("s_cbranch_scc1 L_f_loop")

    def body(peeled):
        for t in range(8):
            cur, nxt = t % 2, (t + 1) % 2
            x1, x2 = [], []
            if peeled:
                if t < 6:
                    x1, x2 = kv_dma(t + 2)
                if t == 6:
                    a("s_waitcnt vmcnt(12)")
                    a("s_barrier")
                if t >= 6:
                    lab = "L_f_np%d" % t
                    x1 = ["s_cmp_eq_u32 s%d, 0" % S_TYPE, "s_cbranch_scc1 %s" % lab]
                    for i in range(4 * (t - 6), 4 * (t - 6) + 4):
                        x1 += ["s_add_u32 m0, s%d, %d" % (S_STG, i * 1024), "s_nop 0",
                               "buffer_load_dwordx4 v%d, s[%d:%d], s%d offen lds" % (V_PD, 28 + 4 * (i % 2), 31 + 4 * (i % 2), S_PO if i % 2 else S_PE),
                               "s_add_u32 s%d, s%d, s%d" % ((S_PO, S_PO, S_PS) if i % 2 else (S_PE, S_PE, S_PS))]
                    x1 += [lab + ":"]
            else:
                if t == 0:
                    for k, r in enumerate((5, 2, 1)):
                        x1 += ["s_cmp_lg_u32 s%d, %d" % (S_ITER, r), "s_cbranch_scc1 L_f_pp%d" % k, "s_setprio %d" % (2 - k), "L_f_pp%d:" % k]
                if t == 6:
                    a("s_cmp_eq_u32 s%d, s%d" % (S_ITER, S_SYNC))
                    a("s_cbranch_scc1 L_f_event")
                    a.label("L_f_syncret")
            S = V_S[cur]
            e = lambda i: "v_exp_f32 v%d, v%d" % (S + i, S + i)
            c = lambda i: "v_cvt_pk_bf16_f32 v%d, v%d, v%d" % (V_P + i, S + 2 * i, S + 2 * i + 1)
            pv = lambda b, h: "v_mfma_f32_32x32x16_bf16 %s, %s, %s, %s" % (vr(V_O, 16), vr(V_V[b] + 4 * h), vr(V_P + 4 * h), vr(V_O, 16))
            qk = "v_mfma_f32_32x32x16_bf16 %s, %s, %s, %s" % (vr(V_S[nxt], 16), vr(V_K[nxt]), vr(V_Q), vr(V_CM, 16))
            rdk = "ds_read_b128 %s, v%d offset:%d" % (vr(V_K[cur]), V_KA, (t + 2) * 1024)
            rdv = ["s_mov_b64 exec, s[%d:%d]" % (S_VMASK, S_VMASK + 1),
                   "ds_read_b128 %s, v%d offset:%d" % (vr(V_V[nxt]), V_VA, (t + 1) * 1024),
                   "ds_read_b128 %s, v%d offset:%d" % (vr(V_V[nxt] + 4), V_VA, (t + 1) * 1024 + 512),
                   "s_mov_b64 exec, -1"]
            seq = [e(0), e(1), pv(nxt, 1), e(2), "s_waitcnt lgkmcnt(0)", rdk, e(3)] + rdv + [c(0), e(4), e(5), c(1), e(6), e(7), qk, c(2), e(8)] + x1 + [e(9), c(3),
                   e(10), e(11), c(4), e(12), e(13), pv(cur, 0), c(5), e(14)] + x2 + [e(15), c(6)]
            if t == 7:
                seq += ["v_add_u32 v%d, 8192, v%d" % (V_KA, V_KA), "v_add_u32 v%d, 8192, v%d" % (V_VA, V_VA),
                        "s_sub_u32 s%d, s%d, 1" % (S_ITER, S_ITER), "s_cmp_lg_u32 s%d, 0" % S_ITER]
            seq += [c(7)]
            for l in seq:
                if l.endswith(":"):
                    a.label(l[:-1])
                else:
                    a(l)

    a.tsv("8", "ka_")
    body(True)
    a.raw(".p2align 6")
    a.label("L_f_loop")
    a.tsv("s%d" % S_ITER, "ka_")
    body(False)
    a("s_cbranch_scc1 L_f_loop")
    a.tsv("0", "ka_")
    a.tsv_flush(S_WAVE, "ka_")
    a("s_nop 1")
    a("v_mfma_f32_32x32x16_bf16 %s, %s, %s, %s" % (vr(V_O, 16), vr(V_V[1] + 4), vr(V_P + 4), vr(V_O, 16)))
    a("s_waitcnt lgkmcnt(0)")
    a("s_lshl_b32 s%d, s%d, 3" % (S_T0, S_QB))
    a("s_add_u32 s%d, s%d, s%d" % (S_T0, S_T0, S_WAVE))
    a("s_lshl_b32 s%d, s%d, 5" % (S_T0, S_T0))
    a("s_add_u32 s%d, s%d, s%d" % (S_T0, S_T0, S_H))
    a("s_lshl_b32 s%d, s%d, 10" % (S_T0, S_T0))
    a("s_add_u32 s%d, s%d, %d" % (S_T0, S_T0, WS_O))
    a("s_nop 7")
    a("v_mul_f32 v%d, 0, v%d" % (V_T, V_O))
    for i in range(1, 8):
        a("v_fmac_f32 v%d, 0, v%d" % (V_T, V_O + i))
    a("v_add_f32 v%d, v%d, v%d" % (V_T, V_T, V_O + 8))
    a("v_cmp_gt_f32 vcc, 0x%x, v%d" % (f32bits(2.0 ** 100), V_T))
    a("v_rcp_f32 v%d, v%d" % (V_T + 1, V_O + 8))
    a("s_cmp_lg_u32 s%d, 0" % S_PASS)
    a("s_cbranch_scc1 L_f_fin")
    a("s_cmp_eq_u64 vcc, exec")
    a("s_cbranch_scc1 L_f_fin")
    a("s_mov_b32 s%d, 1" % S_PASS)
    a("s_mov_b32 s%d, 64" % S_NT)
    a("s_branch L_f_maxpass")
    a.label("L_f_fin")
    for i in range(8):
        a("v_mul_f32 v%d, v%d, v%d" % (V_O + i, V_T + 1, V_O + i))
    for i in range(4):
        a("v_cvt_pk_bf16_f32 v%d, v%d, v%d" % (V_P + i, V_O + 2 * i, V_O + 2 * i + 1))
    if AMAP:
        hstore(a, "o", ["buffer_store_dwordx4 %s, v%d, s[20:23], s%d offen" % (vr(V_P), V_L16, S_T0)])
    else:
        a("buffer_store_dwordx4 %s, v%d, s[20:23], s%d offen sc1" % (vr(V_P), V_L16, S_T0))
    fused_tail(a, locals())
    a.label("L_f_end")
    a("s_endpgm")
    fused_events(a, locals())
    a.label("L_f_sync")
    a("s_mov_b32 s%d, 6" % S_SYNC)
    a("s_cmp_eq_u32 s%d, 0" % S_TYPE)
    a("s_cbranch_scc1 L_f_sy0")
    a("s_waitcnt vmcnt(8)")
    a("s_barrier")
    a("s_branch L_f_syncret")
    a.label("L_f_sy0")
    a("s_waitcnt vmcnt(0)")
    a("s_barrier")
    a("s_branch L_f_syncret")
    a.label("L_f_ev6")
    a("s_mov_b32 s%d, 5" % S_SYNC)
    a("s_cmp_eq_u32 s%d, 0" % S_TYPE)
    a("s_cbranch_scc1 L_f_syncret")
    a("s_waitcnt vmcnt(0)")
    a("v_bfe_u32 v%d, v%d, 2, 2" % (V_T, V_LANE))
    a("v_lshrrev_b32 v%d, 5, v%d" % (V_T + 1, V_LANE))
    a("v_lshl_add_u32 v%d, v%d, 2, v%d" % (V_T, V_T + 1, V_T))
    a("v_lshlrev_b32 v%d, 6, v%d" % (V_T, V_T))
    a("v_and_b32 v%d, 3, v%d" % (V_T + 1, V_LANE))
    a("v_lshl_add_u32 v%d, v%d, 3, v%d" % (V_T, V_T + 1, V_T))
    a("v_add_u32 v%d, s%d, v%d" % (V_T, S_STG, V_T))
    a("v_bfe_u32 v%d, v%d, 4, 1" % (V_T + 1, V_LANE))
    FB = [128 + 4 * i for i in range(8)]
    a("s_cmp_eq_u32 s%d, 2" % S_TYPE)
    a("s_cbranch_scc1 L_f_pk2")
    a("v_lshl_add_u32 v%d, v%d, 10, v%d" % (V_PK, V_T + 1, V_T))
    for ks in range(4):
        for hb in range(2):
            for rd in range(2):
                a("ds_read_b64_tr_b16 %s, v%d offset:%d" % (vr(FB[ks * 2 + hb] + 2 * rd, 2), V_PK, ks * 2048 + hb * 32 + rd * 512))
    make_sel(a, V_LANE, V_SEL, V_T + 2)
    a("v_and_b32 v%d, 31, v%d" % (V_T, V_LANE))
    a("v_lshlrev_b32 v%d, 4, v%d" % (V_T, V_T))
    a("s_waitcnt lgkmcnt(0)")
    for ks in range(4):
        for hb in range(2):
            a("v_mfma_f32_16x16x32_bf16 %s, %s, %s, %s" % (vr(V_PCS[hb]), vr(V_SEL), vr(FB[ks * 2 + hb]), "0" if ks == 0 else vr(V_PCS[hb])))
            a("buffer_store_dwordx4 %s, v%d, s[20:23], s%d offen sc1" % (vr(FB[ks * 2 + hb]), V_L16, (S_DST0, S_DST1)[hb]))
        a("s_add_u32 s%d, s%d, 7168" % (S_DST0, S_DST0))
        a("s_add_u32 s%d, s%d, 7168" % (S_DST1, S_DST1))
    a("s_nop 7")
    a("buffer_store_dword v%d, v%d, s[20:23], s%d offen sc1" % (V_PCS[0], V_T, S_CS))
    a("buffer_store_dword v%d, v%d, s[20:23], s%d offen offset:1024 sc1" % (V_PCS[1], V_T, S_CS))
    a("s_branch L_f_syncret")
    a.label("L_f_pk2")
    a("v_lshl_add_u32 v%d, v%d, 5, v%d" % (V_PK, V_T + 1, V_T))
    a("s_add_u32 s%d, s%d, 4096" % (S_DST1, S_DST0))
    for f in range(8):
        for rd in range(2):
            a("ds_read_b64_tr_b16 %s, v%d offset:%d" % (vr(FB[f] + 2 * rd, 2), V_PK, f * 1024 + rd * 512))
    a("s_waitcnt lgkmcnt(0)")
    for f in range(8):
        a("buffer_store_dwordx4 %s, v%d, s[20:23], s%d offen offset:%d sc1" % (vr(FB[f]), V_L16, S_DST0 if f < 4 else S_DST1, (f % 4) * 1024))
    a("s_branch L_f_syncret")
    return name, 256, 0, (256, 512, 163840)


def gen_k35(a, which):
    name = "k3_wo_kernel" if which == 3 else "k5_down_kernel"
    L = "L_k%d_" % which
    kernel_begin(a, name)
    NS = 8 if which == 3 else 28
    STEPS = 32 if which == 3 else 112
    WIN = 8 if which == 3 else 14
    A_BASE = WS_O if which == 3 else WS_A
    W_BASE = WS_WO if which == 3 else WS_WD
    S_WAVE, S_RB, S_CG, S_T0, S_T1 = 24, 25, 26, 27, 28
    S_A = [30, 31]
    S_W = [32, 33]
    S_TB, S_NB = 34, 35
    V_LANE, V_L16, V_T = 1, 2, 3
    V_RES = 12
    V_ACC = [32, 48, 64, 80]
    V_RD = 96
    a("s_cmp_ge_u32 s2, 256")
    a("s_cbranch_scc1 %send" % L)
    a.ts("k%d" % which)
    a("s_load_dwordx2 s[8:9], s[0:1], %d" % ARG_WS)
    a("s_load_dwordx2 s[4:5], s[0:1], %d" % (ARG_X if which == 3 else ARG_OUT))
    a("v_lshrrev_b32 v%d, 6, v0" % V_T)
    a("v_and_b32 v%d, 63, v0" % V_LANE)
    a("v_readfirstlane_b32 s%d, v%d" % (S_WAVE, V_T))
    a("v_lshlrev_b32 v%d, 4, v%d" % (V_L16, V_LANE))
    a("s_and_b32 s%d, s2, 7" % S_RB)
    a("s_lshl_b32 s%d, s%d, 2" % (S_RB, S_RB))
    a("s_lshr_b32 s%d, s2, 3" % S_T0)
    a("s_and_b32 s%d, s%d, 3" % (S_T1, S_T0))
    a("s_add_u32 s%d, s%d, s%d" % (S_RB, S_RB, S_T1))
    a("s_lshr_b32 s%d, s%d, 2" % (S_CG, S_T0))
    a("s_lshr_b32 s%d, s%d, 1" % (S_T0, S_WAVE))
    a("s_lshl_b32 s%d, s%d, 1" % (S_TB, S_RB))
    a("s_add_u32 s%d, s%d, s%d" % (S_TB, S_TB, S_T0))
    a("s_and_b32 s%d, s%d, 1" % (S_T0, S_WAVE))
    a("s_lshl_b32 s%d, s%d, 1" % (S_NB, S_CG))
    a("s_add_u32 s%d, s%d, s%d" % (S_NB, S_NB, S_T0))
    a("s_mul_i32 s%d, s%d, %d" % (S_T1, S_WAVE, NS * 1024))
    for i in range(2):
        a("s_xor_b32 s%d, s%d, %d" % (S_T0, S_TB, i))
        a("s_mul_i32 s%d, s%d, %d" % (S_A[i], S_T0, STEPS * 1024))
        a("s_add_u32 s%d, s%d, s%d" % (S_A[i], S_A[i], S_T1))
        a("s_add_u32 s%d, s%d, %d" % (S_A[i], S_A[i], A_BASE))
        a("s_xor_b32 s%d, s%d, %d" % (S_T0, S_NB, i))
        a("s_mul_i32 s%d, s%d, %d" % (S_W[i], S_T0, STEPS * 1024))
        a("s_add_u32 s%d, s%d, s%d" % (S_W[i], S_W[i], S_T1))
        a("s_add_u32 s%d, s%d, %d" % (S_W[i], S_W[i], W_BASE))
    a("s_waitcnt lgkmcnt(0)")
    srd(a, 20, 8, WS_SIZE)
    srd(a, 12, 4, 2048 * 1024)

    def frag(p, kind, i):
        return (p % WIN) * 16 + kind * 8 + i * 4

    def loads(p):
        out = []
        if p > 0 and p % 4 == 0:
            for s in S_A + S_W:
                out.append("s_add_u32 s%d, s%d, 4096" % (s, s))
        off = (p % 4) * 1024
        for i in range(2):
            out.append("buffer_load_dwordx4 %s, v%d, s[20:23], s%d offen offset:%d" % (ar(frag(p, 0, i)), V_L16, S_A[i], off))
            out.append("buffer_load_dwordx4 %s, v%d, s[20:23], s%d offen offset:%d" % (ar(frag(p, 1, i)), V_L16, S_W[i], off))
        return out

    for p in range(WIN):
        for l in loads(p):
            a(l)
    a("v_and_b32 v%d, 31, v%d" % (V_T, V_LANE))
    a("v_lshlrev_b32 v%d, 10, v%d" % (V_T, V_T))
    a("v_lshrrev_b32 v%d, 5, v%d" % (V_T + 1, V_LANE))
    a("v_lshl_add_u32 v%d, v%d, 3, v%d" % (V_T, V_T + 1, V_T))
    a("s_lshl_b32 s36, s%d, 15" % S_TB)
    a("s_lshl_b32 s%d, s%d, 6" % (S_T0, S_NB))
    a("s_add_u32 s36, s36, s%d" % S_T0)
    a("s_lshl_b32 s37, s%d, 5" % S_TB)
    a("s_lshl_b32 s%d, s%d, 1" % (S_T0, S_NB))
    a("s_add_u32 s37, s37, s%d" % S_T0)
    a("s_lshl_b32 s37, s37, 10")
    a("s_add_u32 s37, s37, %d" % WS_H)
    a.ts("k%d" % which)
    issued = WIN
    NRES = 4 if which == 3 else 2
    res_done = False
    for p in range(NS):
        younger = 4 * (issued - p - 1) + (NRES if res_done else 0)
        a("s_waitcnt vmcnt(%d)" % younger)
        for ti in range(2):
            for ni in range(2):
                acc = V_ACC[ti * 2 + ni]
                a("v_mfma_f32_32x32x16_bf16 %s, %s, %s, %s" % (vr(acc, 16), ar(frag(p, 1, ni)), ar(frag(p, 0, ti)), "0" if p == 0 else vr(acc, 16)))
        if issued < NS:
            for l in loads(issued):
                a(l)
            issued += 1
        elif not res_done:
            if which == 3:
                for q in range(4):
                    a("buffer_load_dwordx2 %s, v%d, s[12:15], s36 offen offset:%d" % (vr(V_RES + 2 * q, 2), V_T, q * 16))
            else:
                for q in range(2):
                    a("buffer_load_dwordx4 %s, v%d, s[20:23], s37 offen offset:%d" % (vr(V_RES + 4 * q), V_L16, q * 1024))
            res_done = True
    a.ts("k%d" % which)
    a("s_nop 7")
    for t in range(1, 4):
        a("s_xor_b32 s%d, s%d, %d" % (S_T0, S_WAVE, t))
        a("s_mul_i32 s%d, s%d, 12288" % (S_T0, S_T0))
        a("v_add_u32 v%d, s%d, v%d" % (V_T + 1 + t, S_T0, V_L16))
    a("s_nop 3")
    for t in range(1, 4):
        for q in range(4):
            a("ds_write_b128 v%d, %s offset:%d" % (V_T + 1 + t, vr(V_ACC[t] + 4 * q), (t - 1) * 4096 + q * 1024))
    a("s_mul_i32 s%d, s%d, 12288" % (S_T0, S_WAVE))
    a("v_add_u32 v%d, s%d, v%d" % (V_T + 1, S_T0, V_L16))
    a("s_waitcnt lgkmcnt(0)")
    a("s_barrier")
    for t in range(3):
        for q in range(4):
            a("ds_read_b128 %s, v%d offset:%d" % (vr(V_RD + 16 * t + 4 * q), V_T + 1, t * 4096 + q * 1024))
    A0 = V_ACC[0]
    U = V_ACC[1]
    a("s_mov_b32 s38, 0xffff0000")
    a("s_waitcnt vmcnt(0)")
    for d in range(8):
        a("v_lshlrev_b32 v%d, 16, v%d" % (U + 2 * d, V_RES + d))
        a("v_and_b32 v%d, s38, v%d" % (U + 2 * d + 1, V_RES + d))
    for i in range(16):
        a("v_add_f32 v%d, v%d, v%d" % (A0 + i, A0 + i, U + i))
    for t in range(3):
        a("s_waitcnt lgkmcnt(%d)" % (8 - 4 * t))
        for i in range(16):
            a("v_add_f32 v%d, v%d, v%d" % (A0 + i, A0 + i, V_RD + 16 * t + i))
    O = V_ACC[2]
    for i in range(8):
        a("v_cvt_pk_bf16_f32 v%d, v%d, v%d" % (O + i, A0 + 2 * i, A0 + 2 * i + 1))
    if which == 3:
        for q in range(2):
            a("buffer_store_dwordx4 %s, v%d, s[20:23], s37 offen offset:%d" % (vr(O + 4 * q), V_L16, q * 1024))
        for d in range(8):
            a("v_lshlrev_b32 v%d, 16, v%d" % (U + 2 * d, O + d))
            a("v_and_b32 v%d, s38, v%d" % (U + 2 * d + 1, O + d))
        S1, S2 = V_RD, V_RD + 1
        a("v_add_f32 v%d, v%d, v%d" % (S1, U, U + 1))
        a("v_mul_f32 v%d, v%d, v%d" % (S2, U, U))
        a("v_fmac_f32 v%d, v%d, v%d" % (S2, U + 1, U + 1))
        for i in range(2, 16):
            a("v_add_f32 v%d, v%d, v%d" % (S1, S1, U + i))
            a("v_fmac_f32 v%d, v%d, v%d" % (S2, U + i, U + i))
        sum_halves(a, S1, V_RD + 2)
        sum_halves(a, S2, V_RD + 3)
        a("s_lshl_b32 s%d, s%d, 4" % (S_T0, S_TB))
        a("s_add_u32 s%d, s%d, s%d" % (S_T0, S_T0, S_NB))
        a("s_lshl_b32 s%d, s%d, 8" % (S_T0, S_T0))
        a("s_add_u32 s%d, s%d, %d" % (S_T0, S_T0, WS_ST))
        a("v_and_b32 v%d, 31, v%d" % (V_T, V_LANE))
        a("v_lshlrev_b32 v%d, 3, v%d" % (V_T, V_T))
        a("buffer_store_dwordx2 %s, v%d, s[20:23], s%d offen" % (vr(S1, 2), V_T, S_T0))
    else:
        for q in range(4):
            a("buffer_store_dwordx2 %s, v%d, s[12:15], s36 offen offset:%d" % (vr(O + 2 * q, 2), V_T, q * 16))
    a.ts_flush("k%d" % which, S_WAVE, V_T)
    a.label(L + "end")
    a("s_endpgm")
    return name, 144, WIN * 16, (256, 256, 49152)


def gen_k4(a):
    name = "k4_glu_kernel"
    kernel_begin(a, name)
    SL4, NS4 = 45056, 3
    S_WAVE, S_RB, S_CG, S_KC, S_SH, S_SW, S_T0, S_T1, S_MASK, S_M0 = 24, 25, 26, 27, 28, 29, 30, 31, 32, 33
    S_TB, S_ROLE, S_M0H = 34, 42, 35
    V_LANE, V_L16, V_T = 1, 2, 3
    V_AW, V_AH = 12, 13
    V_ST = 16
    V_CSL = 32
    V_H = [60, 244]
    V_W = [64, 92]
    V_ACC = [120 + 16 * b for b in range(7)]
    V_TMP = 232
    a("s_cmp_ge_u32 s2, 256")
    a("s_cbranch_scc1 L_k4_end")
    a.ts("k4")
    a("s_load_dwordx2 s[8:9], s[0:1], %d" % ARG_WS)
    a("v_lshrrev_b32 v%d, 6, v0" % V_T)
    a("v_and_b32 v%d, 63, v0" % V_LANE)
    a("v_readfirstlane_b32 s%d, v%d" % (S_ROLE, V_T))
    a("v_lshlrev_b32 v%d, 4, v%d" % (V_L16, V_LANE))
    a("s_and_b32 s3, s2, 7")
    a("s_lshr_b32 s%d, s2, 3" % S_T0)
    a("s_lshr_b32 s%d, s3, 2" % S_RB)
    a("s_lshl_b32 s%d, s%d, 3" % (S_RB, S_RB))
    a("s_and_b32 s%d, s%d, 7" % (S_T1, S_T0))
    a("s_add_u32 s%d, s%d, s%d" % (S_RB, S_RB, S_T1))
    a("s_and_b32 s%d, s3, 3" % S_CG)
    a("s_lshl_b32 s%d, s%d, 2" % (S_CG, S_CG))
    a("s_lshr_b32 s%d, s%d, 3" % (S_T1, S_T0))
    a("s_add_u32 s%d, s%d, s%d" % (S_CG, S_CG, S_T1))
    a("s_and_b32 s%d, s%d, 3" % (S_WAVE, S_ROLE))
    a("s_lshl_b32 s%d, s%d, 2" % (S_TB, S_RB))
    a("s_add_u32 s%d, s%d, s%d" % (S_TB, S_TB, S_WAVE))
    a("s_lshl_b32 s%d, s%d, 12" % (S_M0H, S_WAVE))
    a("s_add_u32 s%d, s%d, 28672" % (S_M0H, S_M0H))
    a("s_cmp_ge_u32 s%d, 4" % S_ROLE)
    a("s_cbranch_scc1 L_k4_compute")
    if K4_ROT:
        a("s_add_u32 s%d, s%d, s%d" % (S_KC, S_RB, S_CG))
        a("s_and_b32 s%d, s%d, 7" % (S_KC, S_KC))
    else:
        a("s_mov_b32 s%d, 0" % S_KC)
    a("s_lshl_b32 s%d, s%d, 15" % (S_SH, S_TB))
    a("s_add_u32 s%d, s%d, %d" % (S_SH, S_SH, WS_H))
    a("s_mul_i32 s%d, s%d, 7168" % (S_M0, S_WAVE))
    a("s_mul_i32 s%d, s%d, %d" % (S_SW, S_CG, 32 * 7 * 1024))
    a("s_add_u32 s%d, s%d, s%d" % (S_SW, S_SW, S_M0))
    a("s_add_u32 s%d, s%d, %d" % (S_SW, S_SW, WS_GU))
    S_OH, S_OW, S_SLOT, S_CNT = 38, 39, 40, 41
    a("s_mov_b32 s%d, 0" % S_SLOT)
    a("s_mov_b32 s%d, 0" % S_CNT)
    a("s_waitcnt lgkmcnt(0)")
    srd(a, 20, 8, WS_SIZE)
    a.label("L_k4_ld")
    a("s_lshl_b32 s%d, s%d, 12" % (S_OH, S_KC))
    a("s_add_u32 s%d, s%d, s%d" % (S_OH, S_OH, S_SH))
    a("s_add_u32 m0, s%d, s%d" % (S_M0H, S_SLOT))
    a("s_mul_i32 s%d, s%d, %d" % (S_OW, S_KC, SLOT))
    for q in range(4):
        a("buffer_load_dwordx4 v%d, s[20:23], s%d offen offset:%d lds" % (V_L16, S_OH, q * 1024))
    a("s_add_u32 m0, s%d, s%d" % (S_M0, S_SLOT))
    a("s_add_u32 s%d, s%d, s%d" % (S_OW, S_OW, S_SW))
    for q in range(4):
        a("buffer_load_dwordx4 v%d, s[20:23], s%d offen offset:%d lds" % (V_L16, S_OW, q * 1024))
    a("s_add_u32 m0, m0, 4096")
    a("s_add_u32 s%d, s%d, 4096" % (S_OW, S_OW))
    for q in range(3):
        a("buffer_load_dwordx4 v%d, s[20:23], s%d offen offset:%d lds" % (V_L16, S_OW, q * 1024))
    a("s_add_u32 s%d, s%d, 1" % (S_KC, S_KC))
    a("s_and_b32 s%d, s%d, 7" % (S_KC, S_KC))
    a("s_add_u32 s%d, s%d, %d" % (S_SLOT, S_SLOT, SL4))
    a("s_cmp_eq_u32 s%d, %d" % (S_SLOT, NS4 * SL4))
    a("s_cselect_b32 s%d, 0, s%d" % (S_SLOT, S_SLOT))
    a("s_add_u32 s%d, s%d, 1" % (S_CNT, S_CNT))
    a("s_cmp_lt_u32 s%d, 2" % S_CNT)
    a("s_cbranch_scc1 L_k4_ld")
    a("s_waitcnt vmcnt(11)")
    a("s_barrier")
    a("s_cmp_lt_u32 s%d, 8" % S_CNT)
    a("s_cbranch_scc1 L_k4_ld")
    a("s_waitcnt vmcnt(0)")
    a("s_barrier")
    a("s_endpgm")
    a.label("L_k4_compute")
    a("s_mov_b32 s%d, 0xffff0000" % S_MASK)
    a("v_mov_b32 v%d, v%d" % (V_AW, V_L16))
    a("v_add_u32 v%d, s%d, v%d" % (V_AH, S_M0H, V_L16))
    a("v_and_b32 v%d, 31, v%d" % (V_T, V_LANE))
    a("v_lshlrev_b32 v%d, 3, v%d" % (V_T, V_T))
    a("v_lshrrev_b32 v%d, 5, v%d" % (V_T + 1, V_LANE))
    a("v_lshl_add_u32 v%d, v%d, 11, v%d" % (V_T, V_T + 1, V_T))
    a("s_waitcnt lgkmcnt(0)")
    srd(a, 20, 8, WS_SIZE)
    cur_base = [0]

    def reads(P):
        st, pos = P // 4, P % 4
        base = (st % NS4) * SL4
        out = []
        if base != cur_base[0]:
            d = base - cur_base[0]
            for r in (V_AW, V_AH):
                out.append("v_add_u32 v%d, %d, v%d" % (r, d, r) if d > 0 else "v_subrev_u32 v%d, %d, v%d" % (r, -d, r))
            cur_base[0] = base
        b = P % 2
        out.append("ds_read_b128 %s, v%d offset:%d" % (vr(V_H[b]), V_AH, pos * 1024))
        for blk in range(7):
            out.append("ds_read_b128 %s, v%d offset:%d" % (vr(V_W[b] + 4 * blk), V_AW, (pos * 7 + blk) * 1024))
        return out

    extra = {}
    g = ["s_lshl_b32 s%d, s%d, 12" % (S_T0, S_TB), "s_add_u32 s%d, s%d, %d" % (S_T0, S_T0, WS_ST)]
    for i in range(8):
        g.append("buffer_load_dwordx2 %s, v%d, s[20:23], s%d offen offset:%d" % (vr(V_ST + 2 * i, 2), V_T, S_T0, i * 256))
    extra[8], extra[9], extra[10] = g[:4], g[4:7], g[7:]
    g = ["s_mul_i32 s%d, s%d, 7168" % (S_T0, S_CG), "s_add_u32 s%d, s%d, %d" % (S_T0, S_T0, WS_CS), "s_add_u32 s%d, s%d, 4096" % (S_T1, S_T0)]
    for blk in range(7):
        g.append("buffer_load_dwordx4 %s, v%d, s[20:23], s%d offen offset:%d" % (vr(V_CSL + 4 * blk), V_L16, S_T0 if blk < 4 else S_T1, (blk % 4) * 1024))
    extra[12], extra[13], extra[14] = g[:5], g[5:8], g[8:]
    a.ts("k4")
    a("s_barrier")
    a.ts("k4")
    for l in reads(0):
        a(l)
    for P in range(32):
        st, pos = P // 4, P % 4
        b = P % 2
        a("s_waitcnt lgkmcnt(0)")
        if pos == 3 and P < 31:
            a("s_barrier")
        rd = reads(P + 1) if P < 31 else []
        m = []
        for blk in range(7):
            m.append("v_mfma_f32_32x32x16_bf16 %s, %s, %s, %s" % (vr(V_ACC[blk], 16), vr(V_W[b] + 4 * blk), vr(V_H[b]), "0" if P == 0 else vr(V_ACC[blk], 16)))
        for l in interleave(m, rd + extra.get(P, []), per=2):
            a(l)
    a.ts("k4")
    a("s_waitcnt vmcnt(0)")
    S1, S2 = V_T + 2, V_T + 3
    a("v_add_f32 v%d, v%d, v%d" % (S1, V_ST, V_ST + 2))
    a("v_add_f32 v%d, v%d, v%d" % (S2, V_ST + 1, V_ST + 3))
    for i in range(2, 8):
        a("v_add_f32 v%d, v%d, v%d" % (S1, S1, V_ST + 2 * i))
        a("v_add_f32 v%d, v%d, v%d" % (S2, S2, V_ST + 2 * i + 1))
    sum_halves(a, S1, V_T + 4)
    sum_halves(a, S2, V_T + 4)
    V_MU, V_VAR, V_RS, V_C1, V_C2 = V_T + 4, V_T + 5, V_T + 6, V_T + 7, V_T + 8
    a("v_mul_f32 v%d, 0x%x, v%d" % (V_MU, f32bits(1.0 / 512), S1))
    a("v_mul_f32 v%d, 0x%x, v%d" % (V_VAR, f32bits(1.0 / 512), S2))
    a("v_fma_f32 v%d, -v%d, v%d, v%d" % (V_VAR, V_MU, V_MU, V_VAR))
    a("v_max_f32 v%d, 0, v%d" % (V_VAR, V_VAR))
    a("v_add_f32 v%d, 0x%x, v%d" % (V_VAR, f32bits(1e-5), V_VAR))
    a("v_rsq_f32 v%d, v%d" % (V_RS, V_VAR))
    a("v_sub_f32 v%d, 0, v%d" % (V_MU, V_MU))
    VB = V_ST
    split_hi_lo_B(a, V_MU, VB, V_T, S_MASK)
    c1 = -2.0 * math.sqrt(2.0 / math.pi) * math.log2(math.e)
    a("v_mul_f32 v%d, 0x%x, v%d" % (V_C1, f32bits(c1), V_RS))
    a("v_mul_f32 v%d, v%d, v%d" % (V_C2, V_RS, V_RS))
    a("v_mul_f32 v%d, v%d, v%d" % (V_C2, V_C2, V_C1))
    a("v_mul_f32 v%d, 0x%x, v%d" % (V_C2, f32bits(0.044715), V_C2))
    for blk in range(7):
        c = V_CSL + 4 * blk
        a("v_add_f32 v%d, v%d, v%d" % (c, c, c + 1))
        a("v_add_f32 v%d, v%d, v%d" % (c + 2, c + 2, c + 3))
        a("v_add_f32 v%d, v%d, v%d" % (c, c, c + 2))
        split_hi_lo_A(a, c, V_W[0] + 4 * blk, V_T, S_MASK)
    a("s_nop 1")
    for blk in range(7):
        a("v_mfma_f32_32x32x16_bf16 %s, %s, %s, %s" % (vr(V_ACC[blk], 16), vr(V_W[0] + 4 * blk), vr(VB), vr(V_ACC[blk], 16)))
    a("s_mul_i32 s%d, s%d, 112" % (S_T0, S_TB))
    a("s_mul_i32 s%d, s%d, 7" % (S_T1, S_CG))
    a("s_add_u32 s%d, s%d, s%d" % (S_T0, S_T0, S_T1))
    a("s_lshl_b32 s%d, s%d, 10" % (S_T0, S_T0))
    a("s_add_u32 s%d, s%d, %d" % (S_T0, S_T0, WS_A))
    a("s_add_u32 s%d, s%d, 4096" % (S_T1, S_T0))
    a("s_nop 7")
    for blk in range(7):
        G = V_ACC[blk]
        Uu = G + 8
        T = V_TMP
        for i in range(8):
            a("v_mul_f32 v%d, v%d, v%d" % (T + i, G + i, G + i))
        for i in range(8):
            a("v_fma_f32 v%d, v%d, v%d, v%d" % (T + i, T + i, V_C2, V_C1))
        for i in range(8):
            a("v_mul_f32 v%d, v%d, v%d" % (T + i, T + i, G + i))
        for i in range(8):
            a("v_exp_f32 v%d, v%d" % (T + i, T + i))
        for i in range(8):
            a("v_mul_f32 v%d, v%d, v%d" % (G + i, G + i, Uu + i))
        for i in range(8):
            a("v_fma_f32 v%d, v%d, v%d, v%d" % (T + i, T + i, V_VAR, V_VAR))
        for i in range(8):
            a("v_rcp_f32 v%d, v%d" % (T + i, T + i))
        a("s_nop 0")
        for i in range(8):
            a("v_mul_f32 v%d, v%d, v%d" % (G + i, G + i, T + i))
        o = V_TMP + 8 + 4 * (blk % 4)
        for i in range(4):
            a("v_cvt_pk_bf16_f32 v%d, v%d, v%d" % (o + i, G + 2 * i, G + 2 * i + 1))
        a("buffer_store_dwordx4 %s, v%d, s[20:23], s%d offen offset:%d" % (vr(o), V_L16, S_T0 if blk < 4 else S_T1, (blk % 4) * 1024))
    a.ts_flush("k4", S_WAVE, V_T)
    a.label("L_k4_end")
    a("s_endpgm")
    return name, 256, 0, (256, 512, NS4 * SL4)


def main():
    hdr = open("cdna_kernels/%s.s.ref" % NAME).read().split("\n")
    head = [l for l in hdr if l.startswith(";") and "@launch" not in l and "Override launch" not in l and "grid=ceil" not in l]
    a = Asm()
    ks = []
    ks.append(gen_f(a))
    out = "\n".join(head) + "\n"
    for name, nv, na, (g, b, lds) in ks:
        out += "; @launch grid=(%d,1,1) block=(%d,1,1) lds=%d\n" % (g, b, lds)
    out += '.amdgcn_target "amdgcn-amd-amdhsa--gfx950"\n.text\n'
    out += a.text()
    out += '.section .rodata,"a"\n'
    for name, nv, na, _ in ks:
        out += kernel_desc(name, nv, na)
    path = sys.argv[1] if len(sys.argv) > 1 else "cdna_kernels/%s.s" % NAME
    open(path, "w").write(out)


if __name__ == "__main__":
    main()
```

```python
import sys, math, struct

NAME = "sequential_preLN__softmax_full_mha__geglu_ffn__prompt"

MB = 1 << 20
WS_Q = 0
WS_K = 2 * MB
WS_V = 4 * MB
WS_O = 6 * MB
WS_H = 8 * MB
WS_A = 10 * MB
WS_WO = 17 * MB
WS_WD = 18 * MB
WS_GU = 20 * MB
WS_CS = 24 * MB
WS_ST = 25 * MB
WS_FL = 27 * MB + 768 * 1024
WS_SIZE = 28 * MB

ARG_X, ARG_WQKV, ARG_WO, ARG_BX, ARG_WG, ARG_WU, ARG_WD, ARG_OUT, ARG_DBG, ARG_WS = [8 * i for i in range(10)]

ONES_BF16 = 0x3F803F80


def f32bits(x):
    return struct.unpack("<I", struct.pack("<f", x))[0]


import os
INSTR = os.environ.get("INSTR", "")
WS_TS = 26 * MB


class Asm:
    def __init__(self):
        self.L = []
        self.nts = 0

    def ts(self, kern):
        if INSTR != kern and not (INSTR == "all" and len(kern) == 2):
            return
        if self.nts == 0:
            self("s_memrealtime s[92:93]")
        self("%s s[%d:%d]" % ("s_memrealtime" if os.environ.get("RT") else "s_memtime", 64 + 2 * self.nts, 65 + 2 * self.nts))
        self.nts += 1

    def tsv(self, lane, key="kv_"):
        if INSTR != key:
            return
        self("%s s[64:65]" % ("s_memtime" if os.environ.get("CYC") else "s_memrealtime"))
        self("s_waitcnt lgkmcnt(0)")
        self("v_cmp_eq_u32 vcc, %s, v1" % lane)
        self("v_mov_b32 v251, s64")
        self("s_nop 1")
        self("v_cndmask_b32 v250, v250, v251, vcc")

    def tsv_flush(self, swave, key="kv_"):
        if INSTR != key:
            return
        self("s_lshl_b32 s3, s2, 3")
        self("s_add_u32 s3, s3, s%d" % swave)
        self("s_lshl_b32 s3, s3, 8")
        self("s_add_u32 s3, s3, %d" % WS_TS)
        self("buffer_store_dword v250, v229, s[20:23], s3 offen")

    def ts_flush(self, kern, swave, vtmp):
        if INSTR != kern and not (INSTR == "all" and len(kern) == 2):
            return
        self("%s s[%d:%d]" % ("s_memrealtime" if os.environ.get("RT") else "s_memtime", 64 + 2 * self.nts, 65 + 2 * self.nts))
        self.nts += 1
        self("s_memrealtime s[94:95]")
        self("s_waitcnt lgkmcnt(0)")
        if os.environ.get("DBGOUT"):
            self("s_cmp_lg_u32 s2, %s" % os.environ["DBGOUT"])
            self("s_cbranch_scc1 L_dbg_skip")
            self("s_cmp_lg_u32 s%d, 7" % swave)
            self("s_cbranch_scc1 L_dbg_skip")
            self("v_mov_b32 v%d, 0" % vtmp)
            for i in range(1, self.nts):
                self("s_sub_u32 s3, s%d, s64" % (64 + 2 * i))
                self("s_and_b32 s36, s3, 0x7f")
                self("s_lshr_b32 s3, s3, 7")
                self("s_and_b32 s3, s3, 0x7f")
                self("s_lshl_b32 s3, s3, 8")
                self("s_or_b32 s3, s3, s36")
                self("s_or_b32 s3, s3, 0x80808080")
                self("v_mov_b32 v%d, s3" % (vtmp + 1))
                self("buffer_store_dword v%d, v%d, s[96:99], 0 offen offset:%d" % (vtmp + 1, vtmp, 4 * i))
                self("s_nop 1")
            self.label("L_dbg_skip")
        self("s_lshl_b32 s3, s2, 3")
        self("s_add_u32 s3, s3, s%d" % swave)
        self("s_lshl_b32 s3, s3, 6")
        self("s_add_u32 s3, s3, %d" % (WS_TS + (int(kern[1]) * 131072 if INSTR == "all" else 0)))
        self("v_mov_b32 v%d, 0" % vtmp)
        for i in range(self.nts):
            self("v_mov_b32 v%d, s%d" % (vtmp + 1, 64 + 2 * i))
            self("buffer_store_dword v%d, v%d, s[20:23], s3 offen offset:%d" % (vtmp + 1, vtmp, 4 * i))
            self("s_nop 1")
        for i, r in enumerate((92, 94)):
            self("v_mov_b32 v%d, s%d" % (vtmp + 1, r))
            self("buffer_store_dword v%d, v%d, s[20:23], s3 offen offset:%d" % (vtmp + 1, vtmp, 56 + 4 * i))
            self("s_nop 1")
        self.nts = 0

    def __call__(self, s):
        for line in s.strip("\n").split("\n"):
            self.L.append("    " + line.strip())

    def label(self, s):
        self.L.append(s + ":")

    def raw(self, s):
        self.L.append(s)

    def text(self):
        return "\n".join(self.L) + "\n"


def vr(b, n=4):
    return "v[%d:%d]" % (b, b + n - 1)


def ar(b, n=4):
    return "a[%d:%d]" % (b, b + n - 1)


def srd(a, sbase, sptr, nbytes):
    a("s_mov_b32 s%d, s%d" % (sbase, sptr))
    a("s_mov_b32 s%d, s%d" % (sbase + 1, sptr + 1))
    a("s_mov_b32 s%d, 0x%x" % (sbase + 2, nbytes))
    a("s_mov_b32 s%d, 0x00020000" % (sbase + 3))


def kernel_begin(a, name):
    a.raw(".globl %s" % name)
    a.raw(".p2align 8")
    a.raw(".type %s,@function" % name)
    a.label(name)


def kernel_desc(name, nvgpr, nagpr, nsgpr=102):
    acc = (nvgpr + 3) // 4 * 4
    nfv = acc + nagpr if nagpr else nvgpr
    return """.p2align 6
.amdhsa_kernel %s
  .amdhsa_next_free_vgpr %d
  .amdhsa_next_free_sgpr %d
  .amdhsa_accum_offset %d
  .amdhsa_group_segment_fixed_size 0
  .amdhsa_kernarg_size 80
  .amdhsa_user_sgpr_count 2
  .amdhsa_user_sgpr_kernarg_segment_ptr 1
  .amdhsa_system_sgpr_workgroup_id_x 1
.end_amdhsa_kernel
""" % (name, nfv, nsgpr, acc)


def interleave(main, fill, per=None):
    out = []
    n = len(main)
    fi = 0
    for i, m in enumerate(main):
        out.append(m)
        tgt = (len(fill) * (i + 1) + n - 1) // n if per is None else min(len(fill), per * (i + 1))
        while fi < tgt:
            out.append(fill[fi])
            fi += 1
    out += fill[fi:]
    return out


class Lds:
    def __init__(self, a):
        self.a = a
        self.n = 0
        self.done = 0
        self.idx = {}

    def op(self, text, tag=None):
        self.a(text)
        self.n += 1
        if tag is not None:
            self.idx[tag] = self.n

    def need(self, *tags):
        k = max(self.idx[t] for t in tags)
        if k > self.done:
            w = self.n - k
            assert w <= 15
            self.a("s_waitcnt lgkmcnt(%d)" % w)
            self.done = k

    def drain(self):
        if self.done < self.n:
            self.a("s_waitcnt lgkmcnt(0)")
            self.done = self.n


def make_sel(a, vlane, vsel, vt):
    a("v_lshrrev_b32 v%d, 2, v%d" % (vt, vlane))
    a("v_lshrrev_b32 v%d, 4, v%d" % (vsel, vlane))
    a("v_xor_b32 v%d, v%d, v%d" % (vt, vt, vsel))
    a("v_and_b32 v%d, 1, v%d" % (vt, vt))
    a("v_add_u32 v%d, -1, v%d" % (vt, vt))
    a("v_and_b32 v%d, 0x%x, v%d" % (vsel, ONES_BF16, vt))
    for i in range(1, 4):
        a("v_mov_b32 v%d, v%d" % (vsel + i, vsel))


def split_hi_lo_A(a, vc, vdst, vt, smask):
    a("v_cvt_pk_bf16_f32 v%d, v%d, v%d" % (vt, vc, vc))
    a("v_and_b32 v%d, s%d, v%d" % (vt, smask, vt))
    a("v_sub_f32 v%d, v%d, v%d" % (vt, vc, vt))
    a("v_cvt_pk_bf16_f32 v%d, v%d, v%d" % (vdst, vc, vt))
    a("v_mov_b32 v%d, v%d" % (vdst + 1, vdst))
    a("v_mov_b32 v%d, 0" % (vdst + 2))
    a("v_mov_b32 v%d, 0" % (vdst + 3))


def split_hi_lo_B(a, vm, vdst, vt, smask):
    a("v_cvt_pk_bf16_f32 v%d, v%d, v%d" % (vdst, vm, vm))
    a("v_and_b32 v%d, s%d, v%d" % (vt, smask, vdst))
    a("v_sub_f32 v%d, v%d, v%d" % (vt, vm, vt))
    a("v_cvt_pk_bf16_f32 v%d, v%d, v%d" % (vdst + 1, vt, vt))
    a("v_mov_b32 v%d, 0" % (vdst + 2))
    a("v_mov_b32 v%d, 0" % (vdst + 3))


def sum_halves(a, v, vt):
    a("v_mov_b32 v%d, v%d" % (vt, v))
    a("s_nop 1")
    a("v_permlane32_swap_b32 v%d, v%d" % (v, vt))
    a("s_nop 1")
    a("v_add_f32 v%d, v%d, v%d" % (v, v, vt))


SLOT = 28672
NSLOT = 5
K1_DIST = int(os.environ.get('K1_DIST', 2))
DIAG = os.environ.get('DIAG', '')
K1_ROT = int(os.environ.get('K1_ROT', 1))
K4_ROT = int(os.environ.get('K4_ROT', 0))
K2_ROT = int(os.environ.get('K2_ROT', 0))
K4_DIST = int(os.environ.get('K4_DIST', 2))


def slot_base_adjust(stage):
    slot = stage % NSLOT
    return (slot // 2) * 2 * SLOT, (slot % 2) * SLOT


def gen_k1(a):
    name = "k1_qkv_kernel"
    kernel_begin(a, name)
    NS1 = 4
    LDS_SCR = NS1 * SLOT
    SCR_RS, SCR_BF = LDS_SCR + 1536, LDS_SCR + 2048
    S_WAVE, S_RB, S_CG, S_KC, S_SX, S_SW, S_T0, S_T1, S_MASK, S_M0X, S_M0W = 24, 25, 26, 27, 28, 29, 30, 31, 32, 33, 34
    S_ROLE = 42
    V_LANE = 1
    V_T = 2
    V_DX = 8
    V_DW = 12
    V_AX = 13
    V_AW = 17
    V_SEL = 24
    V_SQ = 28
    V_X = [32, 36]
    V_W = [[40, 44, 48], [52, 56, 60]]
    V_ACC = [64, 80, 96]
    V_TMP = 112
    a("s_cmp_ge_u32 s2, 256")
    a("s_cbranch_scc1 L_k1_end")
    a.ts("k1")
    a("s_load_dwordx4 s[4:7], s[0:1], %d" % ARG_X)
    a("s_load_dwordx2 s[8:9], s[0:1], %d" % ARG_WS)
    a("v_lshrrev_b32 v%d, 6, v0" % V_T)
    a("v_and_b32 v%d, 63, v0" % V_LANE)
    a("v_readfirstlane_b32 s%d, v%d" % (S_ROLE, V_T))
    a("s_and_b32 s3, s2, 7")
    a("s_lshr_b32 s%d, s2, 3" % S_T0)
    a("s_lshr_b32 s%d, s3, 1" % S_RB)
    a("s_lshl_b32 s%d, s%d, 2" % (S_RB, S_RB))
    a("s_and_b32 s%d, s%d, 3" % (S_T1, S_T0))
    a("s_add_u32 s%d, s%d, s%d" % (S_RB, S_RB, S_T1))
    a("s_and_b32 s%d, s3, 1" % S_CG)
    a("s_lshl_b32 s%d, s%d, 3" % (S_CG, S_CG))
    a("s_lshr_b32 s%d, s%d, 2" % (S_T1, S_T0))
    a("s_add_u32 s%d, s%d, s%d" % (S_CG, S_CG, S_T1))
    a("s_and_b32 s%d, s%d, 3" % (S_WAVE, S_ROLE))
    a("s_lshl_b32 s%d, s%d, 12" % (S_M0X, S_WAVE))
    a("s_mul_i32 s%d, s%d, 3072" % (S_M0W, S_WAVE))
    a("s_add_u32 s%d, s%d, 16384" % (S_M0W, S_M0W))
    a("s_mov_b32 s%d, 0xffff0000" % S_MASK)

    def lds_addr_setup(rotate):
        a("v_and_b32 v%d, 31, v%d" % (V_T, V_LANE))
        a("v_and_b32 v%d, 3, v%d" % (V_T + 1, V_LANE))
        a("v_lshrrev_b32 v%d, 2, v%d" % (V_T + 2, V_T))
        a("v_lshlrev_b32 v%d, 7, v%d" % (V_T + 2, V_T + 2))
        a("v_lshl_add_u32 v%d, v%d, 10, v%d" % (V_T + 2, V_T + 1, V_T + 2))
        a("v_add_u32 v%d, s%d, v%d" % (V_T + 2, S_M0X, V_T + 2))
        a("v_lshrrev_b32 v%d, 1, v%d" % (V_T + 3, V_T))
        a("v_and_b32 v%d, 4, v%d" % (V_T + 3, V_T + 3))
        a("v_or_b32 v%d, v%d, v%d" % (V_T + 3, V_T + 3, V_T + 1))
        a("v_lshrrev_b32 v%d, 5, v%d" % (V_T + 4, V_LANE))
        a("v_xor_b32 v%d, v%d, v%d" % (V_T + 3, V_T + 3, V_T + 4))
        a("v_bfe_u32 v%d, v%d, 2, 2" % (V_T + 5, V_LANE))
        a("v_lshl_add_u32 v%d, v%d, 3, v%d" % (V_T + 5, V_T + 4, V_T + 5))
        a("v_lshlrev_b32 v%d, 6, v%d" % (V_T + 5, V_T + 5))
        a("v_bfe_u32 v%d, v%d, 4, 1" % (V_T + 4, V_LANE))
        a("v_lshl_add_u32 v%d, v%d, 5, v%d" % (V_T + 5, V_T + 4, V_T + 5))
        a("v_lshl_add_u32 v%d, v%d, 3, v%d" % (V_T + 5, V_T + 1, V_T + 5))
        for ks in range(4):
            a("v_xor_b32 v%d, %d, v%d" % (V_T + 4, 2 * ks, V_T + 3))
            a("v_lshl_add_u32 v%d, v%d, 4, v%d" % (V_AX + ks, V_T + 4, V_T + 2))

    a("s_cmp_ge_u32 s%d, 8" % S_ROLE)
    a("s_cbranch_scc1 L_k1_stats")
    a("s_cmp_ge_u32 s%d, 4" % S_ROLE)
    a("s_cbranch_scc1 L_k1_compute")
    if K1_ROT:
        a("s_add_u32 s%d, s%d, s%d" % (S_KC, S_RB, S_CG))
        a("s_and_b32 s%d, s%d, 7" % (S_KC, S_KC))
    else:
        a("s_mov_b32 s%d, 0" % S_KC)
    a("v_lshrrev_b32 v%d, 3, v%d" % (V_T, V_LANE))
    a("v_lshlrev_b32 v%d, 12, v%d" % (V_T, V_T))
    a("v_and_b32 v%d, 7, v%d" % (V_T + 1, V_LANE))
    a("v_lshrrev_b32 v%d, 2, v%d" % (V_T + 2, V_LANE))
    a("v_and_b32 v%d, 4, v%d" % (V_T + 2, V_T + 2))
    a("v_xor_b32 v%d, v%d, v%d" % (V_T + 1, V_T + 1, V_T + 2))
    for q in range(4):
        a("v_xor_b32 v%d, %d, v%d" % (V_T + 3, q, V_T + 1))
        a("v_lshl_add_u32 v%d, v%d, 4, v%d" % (V_DX + q, V_T + 3, V_T))
    a("v_lshrrev_b32 v%d, 2, v%d" % (V_T, V_LANE))
    a("v_mul_u32_u24 v%d, 3072, v%d" % (V_T, V_T))
    a("v_and_b32 v%d, 3, v%d" % (V_T + 1, V_LANE))
    a("v_lshl_add_u32 v%d, v%d, 4, v%d" % (V_DW, V_T + 1, V_T))
    a("s_lshl_b32 s%d, s%d, 2" % (S_T0, S_RB))
    a("s_add_u32 s%d, s%d, s%d" % (S_T0, S_T0, S_WAVE))
    a("s_lshl_b32 s%d, s%d, 15" % (S_SX, S_T0))
    a("s_mul_i32 s%d, s%d, %d" % (S_SW, S_WAVE, 16 * 3072))
    a("s_lshl_b32 s%d, s%d, 6" % (S_T1, S_CG))
    a("s_add_u32 s%d, s%d, s%d" % (S_SW, S_SW, S_T1))
    S_OX, S_OW, S_SLOT, S_CNT, S_RD = 38, 39, 40, 41, 43
    a("s_mov_b32 s%d, 0" % S_SLOT)
    a("s_mov_b32 s%d, 0" % S_CNT)
    a("s_waitcnt lgkmcnt(0)")
    srd(a, 12, 4, 2048 * 1024)
    srd(a, 16, 6, 512 * 3072)

    def issue():
        a("s_lshl_b32 s%d, s%d, 7" % (S_OX, S_KC))
        a("s_add_u32 s%d, s%d, s%d" % (S_OX, S_OX, S_SX))
        a("s_add_u32 m0, s%d, s%d" % (S_M0X, S_SLOT))
        a("s_mul_i32 s%d, s%d, %d" % (S_OW, S_KC, 64 * 3072))
        for q in range(4):
            a("buffer_load_dwordx4 v%d, s[12:15], s%d offen offset:%d lds" % (V_DX + q, S_OX, q * 1024))
        a("s_add_u32 m0, s%d, s%d" % (S_M0W, S_SLOT))
        a("s_add_u32 s%d, s%d, s%d" % (S_OW, S_OW, S_SW))
        for sx in range(3):
            a("buffer_load_dwordx4 v%d, s[16:19], s%d offen offset:%d lds" % (V_DW, S_OW, sx * 1024))
        a("s_add_u32 s%d, s%d, 1" % (S_KC, S_KC))
        a("s_and_b32 s%d, s%d, 7" % (S_KC, S_KC))
        a("s_add_u32 s%d, s%d, %d" % (S_SLOT, S_SLOT, SLOT))
        a("s_cmp_eq_u32 s%d, %d" % (S_SLOT, NS1 * SLOT))
        a("s_cselect_b32 s%d, 0, s%d" % (S_SLOT, S_SLOT))

    a.label("L_k1_ld")
    issue()
    a("s_add_u32 s%d, s%d, 1" % (S_CNT, S_CNT))
    a("s_cmp_lt_u32 s%d, %d" % (S_CNT, K1_DIST))
    a("s_cbranch_scc1 L_k1_ld")
    a("s_waitcnt vmcnt(%d)" % (7 * (K1_DIST - 1)))
    a("s_barrier")
    a("s_cmp_lt_u32 s%d, 8" % S_CNT)
    a("s_cbranch_scc1 L_k1_ld")
    for r in range(K1_DIST - 2, -1, -1):
        a("s_waitcnt vmcnt(%d)" % (7 * r))
        a("s_barrier")
    a("s_endpgm")
    a.label("L_k1_stats")
    LX = [64, 68, 72, 76]
    LW = [80, 84, 88]
    L_SX = 92
    L_CS = [96, 100, 104]
    lds_addr_setup(False)
    a("v_add_u32 v%d, s%d, v%d" % (V_AW, S_M0W, V_T + 5))
    make_sel(a, V_LANE, V_SEL, V_T)
    for r in [V_SQ, V_SQ + 1] + list(range(L_SX, L_SX + 16)):
        a("v_mov_b32 v%d, 0" % r)
    a("s_mov_b32 s44, %d" % SLOT)
    a("s_mov_b32 s%d, 0" % S_CNT)
    a.label("L_k1_st")
    a("s_barrier")
    for ks in range(4):
        a("ds_read_b128 %s, v%d" % (vr(LX[ks]), V_AX + ks))
    for sx in range(3):
        for rd in range(2):
            a("ds_read_b64_tr_b16 %s, v%d offset:%d" % (vr(LW[sx] + 2 * rd, 2), V_AW, sx * 1024 + rd * 256))
    a("s_add_u32 s%d, s%d, 1" % (S_CNT, S_CNT))
    a("s_and_b32 s%d, s%d, %d" % (S_T0, S_CNT, NS1 - 1))
    a("s_cmp_eq_u32 s%d, 0" % S_T0)
    a("s_cselect_b32 s%d, %d, s44" % (S_RD, -(NS1 - 1) * SLOT))
    for ks in range(4):
        a("s_waitcnt lgkmcnt(%d)" % (9 - ks))
        a("v_mfma_f32_16x16x32_bf16 %s, %s, %s, %s" % (vr(L_SX), vr(V_SEL), vr(LX[ks]), vr(L_SX)))
        for d in range(4):
            t0, t1 = V_TMP + 2 * (d % 2), V_TMP + 2 * (d % 2) + 1
            a("v_lshlrev_b32 v%d, 16, v%d" % (t0, LX[ks] + d))
            a("v_and_b32 v%d, s%d, v%d" % (t1, S_MASK, LX[ks] + d))
            a("v_fmac_f32 v%d, v%d, v%d" % (V_SQ, t0, t0))
            a("v_fmac_f32 v%d, v%d, v%d" % (V_SQ + 1, t1, t1))
        if ks == 1:
            a("s_waitcnt lgkmcnt(0)")
            for sx in range(3):
                a("v_mfma_f32_16x16x32_bf16 %s, %s, %s, %s" % (vr(L_CS[sx]), vr(V_SEL), vr(LW[sx]), vr(L_CS[sx])))
    for r in list(range(V_AX, V_AX + 4)) + [V_AW]:
        a("v_add_u32 v%d, s%d, v%d" % (r, S_RD, r))
    a("s_cmp_lt_u32 s%d, 8" % S_CNT)
    a("s_cbranch_scc1 L_k1_st")
    a("v_and_b32 v%d, 31, v%d" % (V_T, V_LANE))
    a("v_lshlrev_b32 v%d, 2, v%d" % (V_T, V_T))
    a("s_mul_i32 s%d, s%d, 384" % (S_T0, S_WAVE))
    a("s_add_u32 s%d, s%d, %d" % (S_T0, S_T0, LDS_SCR))
    a("v_add_u32 v%d, s%d, v%d" % (V_T + 1, S_T0, V_T))
    for sx in range(3):
        a("ds_write_b32 v%d, v%d offset:%d" % (V_T + 1, L_CS[sx], sx * 128))
    a("v_add_f32 v%d, v%d, v%d" % (V_SQ, V_SQ, V_SQ + 1))
    sum_halves(a, V_SQ, V_SQ + 1)
    V_MU, V_RS = V_SQ + 2, V_SQ + 3
    a("v_mul_f32 v%d, 0x%x, v%d" % (V_MU, f32bits(1.0 / 512), L_SX))
    a("v_mul_f32 v%d, 0x%x, v%d" % (V_SQ, f32bits(1.0 / 512), V_SQ))
    a("v_fma_f32 v%d, -v%d, v%d, v%d" % (V_SQ, V_MU, V_MU, V_SQ))
    a("v_max_f32 v%d, 0, v%d" % (V_SQ, V_SQ))
    a("v_add_f32 v%d, 0x%x, v%d" % (V_SQ, f32bits(1e-5), V_SQ))
    a("v_rsq_f32 v%d, v%d" % (V_RS, V_SQ))
    a("v_sub_f32 v%d, 0, v%d" % (V_MU, V_MU))
    a("s_lshl_b32 s%d, s%d, 7" % (S_T0, S_WAVE))
    a("s_add_u32 s%d, s%d, %d" % (S_T0, S_T0, SCR_RS))
    a("v_add_u32 v%d, s%d, v%d" % (V_T + 2, S_T0, V_T))
    a("ds_write_b32 v%d, v%d" % (V_T + 2, V_RS))
    split_hi_lo_B(a, V_MU, LX[0], V_T + 4, S_MASK)
    a("s_lshl_b32 s%d, s%d, 9" % (S_T0, S_WAVE))
    a("s_add_u32 s%d, s%d, %d" % (S_T0, S_T0, SCR_BF))
    a("v_lshl_add_u32 v%d, v%d, 3, s%d" % (V_T + 3, V_LANE, S_T0))
    a("ds_write_b64 v%d, %s" % (V_T + 3, vr(LX[0], 2)))
    a("s_waitcnt lgkmcnt(0)")
    a("s_barrier")
    a("s_endpgm")
    a.label("L_k1_compute")
    lds_addr_setup(False)
    a("v_add_u32 v%d, 16384, v%d" % (V_AW, V_T + 5))
    V_ECS, V_ERS, V_ERV, V_EBF, V_OQ, V_OV = 18, 19, 20, 21, 22, 23
    a("v_and_b32 v%d, 31, v%d" % (V_T, V_LANE))
    a("v_lshlrev_b32 v%d, 2, v%d" % (V_T, V_T))
    a("v_lshrrev_b32 v%d, 5, v%d" % (V_T + 2, V_LANE))
    a("v_mul_u32_u24 v%d, 768, v%d" % (V_T + 3, V_T + 2))
    a("v_add_u32 v%d, v%d, v%d" % (V_T + 3, V_T + 3, V_T))
    a("v_add_u32 v%d, %d, v%d" % (V_ECS, LDS_SCR, V_T + 3))
    a("s_lshl_b32 s%d, s%d, 7" % (S_T0, S_WAVE))
    a("s_add_u32 s%d, s%d, %d" % (S_T0, S_T0, SCR_RS))
    a("v_add_u32 v%d, s%d, v%d" % (V_ERS, S_T0, V_T))
    a("v_lshl_add_u32 v%d, v%d, 4, s%d" % (V_ERV, V_T + 2, S_T0))
    a("s_lshl_b32 s%d, s%d, 9" % (S_T0, S_WAVE))
    a("s_add_u32 s%d, s%d, %d" % (S_T0, S_T0, SCR_BF))
    a("v_lshl_add_u32 v%d, v%d, 3, s%d" % (V_EBF, V_LANE, S_T0))
    a("v_lshlrev_b32 v%d, 4, v%d" % (V_OQ, V_LANE))
    a("v_bfe_u32 v%d, v%d, 4, 1" % (V_T + 1, V_LANE))
    a("v_lshlrev_b32 v%d, 16, v%d" % (V_T + 1, V_T + 1))
    a("v_lshl_add_u32 v%d, v%d, 8, v%d" % (V_T + 1, V_T + 2, V_T + 1))
    a("v_and_b32 v%d, 15, v%d" % (V_T + 2, V_LANE))
    a("v_lshl_add_u32 v%d, v%d, 4, v%d" % (V_OV, V_T + 2, V_T + 1))
    a("s_lshl_b32 s%d, s%d, 2" % (S_T0, S_RB))
    a("s_add_u32 s%d, s%d, s%d" % (S_T0, S_T0, S_WAVE))
    a("s_lshl_b32 s%d, s%d, 10" % (S_T0, S_T0))
    a("s_lshl_b32 s%d, s%d, 17" % (S_T1, S_CG))
    a("s_add_u32 s%d, s%d, s%d" % (S_T0, S_T0, S_T1))
    a("s_add_u32 s%d, s%d, 65536" % (S_T1, S_T0))
    a("s_add_u32 s35, s%d, %d" % (S_T0, WS_K))
    a("s_add_u32 s36, s%d, %d" % (S_T1, WS_K))
    a("s_add_u32 s37, s%d, %d" % (S_T0, WS_V))
    VB = V_TMP
    VA = [V_TMP + 4, V_TMP + 8, V_TMP + 12]
    for r in (VB + 2, VB + 3):
        a("v_mov_b32 v%d, 0" % r)
    cur_base = [0]

    def reads(P):
        st, ks = P // 4, P % 4
        slot = st % NS1
        base, imm = (slot // 2) * 2 * SLOT, (slot % 2) * SLOT
        out = []
        if base != cur_base[0]:
            d = base - cur_base[0]
            for r in list(range(V_AX, V_AX + 4)) + [V_AW]:
                out.append("v_add_u32 v%d, %d, v%d" % (r, d, r) if d > 0 else "v_subrev_u32 v%d, %d, v%d" % (r, -d, r))
            cur_base[0] = base
        b = P % 2
        out.append("ds_read_b128 %s, v%d offset:%d" % (vr(V_X[b]), V_AX + ks, imm))
        for sx in range(3):
            for rd in range(2):
                out.append("ds_read_b64_tr_b16 %s, v%d offset:%d" % (vr(V_W[b][sx] + 2 * rd, 2), V_AW, imm + ks * 3072 + sx * 1024 + rd * 256))
        return out

    a("s_waitcnt lgkmcnt(0)")
    srd(a, 20, 8, WS_SIZE)
    a("s_cmp_ge_u32 s2, 4")
    a("s_cbranch_scc1 L_k1_nozero")
    for r in range(4):
        a("v_mov_b32 v%d, 0" % (V_ACC[0] + r))
    a("s_lshl_b32 s3, s2, 2")
    a("s_add_u32 s3, s3, s%d" % S_WAVE)
    a("s_lshl_b32 s3, s3, 10")
    a("s_add_u32 s3, s3, %d" % WS_FL)
    a("buffer_store_dwordx4 %s, v%d, s[20:23], s3 offen" % (vr(V_ACC[0]), V_OQ))
    a.label("L_k1_nozero")
    a.ts("k1")
    a("s_barrier")
    a.ts("k1")
    for l in reads(0):
        a(l)
    for P in range(32):
        st, pos = P // 4, P % 4
        b = P % 2
        a("s_waitcnt lgkmcnt(0)")
        if pos == 3 and P < 31:
            a("s_barrier")
        rd = reads(P + 1) if P < 31 else []
        X = vr(V_X[b])
        c = lambda r, n=16: ("0" if P == 0 else vr(r, n))
        m = []
        m.append("v_mfma_f32_32x32x16_bf16 %s, %s, %s, %s" % (vr(V_ACC[0], 16), vr(V_W[b][0]), X, c(V_ACC[0])))
        m.append("v_mfma_f32_32x32x16_bf16 %s, %s, %s, %s" % (vr(V_ACC[1], 16), vr(V_W[b][1]), X, c(V_ACC[1])))
        m.append("v_mfma_f32_32x32x16_bf16 %s, %s, %s, %s" % (vr(V_ACC[2], 16), X, vr(V_W[b][2]), c(V_ACC[2])))
        nfirst = 3 if len(rd) <= 8 else 8
        for l in rd[:nfirst]:
            a(l)
        for l in interleave(m, rd[nfirst:], per=2):
            a(l)
    a.ts("k1")
    a("s_barrier")
    VC = V_TMP + 16
    V_RS = V_TMP + 22
    V_RQ = V_TMP + 23
    VR = V_TMP + 24
    for sx in range(3):
        a("ds_read2_b32 %s, v%d offset0:%d offset1:%d" % (vr(VC + 2 * sx, 2), V_ECS, sx * 32, sx * 32 + 96))
    a("ds_read_b64 %s, v%d" % (vr(VB, 2), V_EBF))
    a("ds_read_b32 v%d, v%d" % (V_RS, V_ERS))
    for q in range(4):
        a("ds_read_b128 %s, v%d offset:%d" % (vr(VR + 4 * q), V_ERV, q * 32))
    for sx in range(3):
        a("s_waitcnt lgkmcnt(%d)" % (8 - sx))
        a("v_add_f32 v%d, v%d, v%d" % (VC + 2 * sx, VC + 2 * sx, VC + 2 * sx + 1))
        split_hi_lo_A(a, VC + 2 * sx, VA[sx], V_T + 4, S_MASK)
    a("s_waitcnt lgkmcnt(4)")
    a("v_mul_f32 v%d, 0x%x, v%d" % (V_RQ, f32bits(0.25 * math.log2(math.e)), V_RS))
    a("v_mfma_f32_32x32x16_bf16 %s, %s, %s, %s" % (vr(V_ACC[0], 16), vr(VA[0]), vr(VB), vr(V_ACC[0], 16)))
    a("v_mfma_f32_32x32x16_bf16 %s, %s, %s, %s" % (vr(V_ACC[1], 16), vr(VA[1]), vr(VB), vr(V_ACC[1], 16)))
    a("v_mfma_f32_32x32x16_bf16 %s, %s, %s, %s" % (vr(V_ACC[2], 16), vr(VB), vr(VA[2]), vr(V_ACC[2], 16)))
    a("s_nop 9")
    VO = V_X[0]
    k = 0
    for blk, sc, soffs in ((0, V_RQ, (S_T0, S_T1)), (1, V_RS, (35, 36))):
        for half in range(2):
            o = VO + 4 * k
            k += 1
            for i in range(8):
                r = V_ACC[blk] + 8 * half + i
                a("v_mul_f32 v%d, v%d, v%d" % (r, sc, r))
            for i in range(4):
                r = V_ACC[blk] + 8 * half + 2 * i
                a("v_cvt_pk_bf16_f32 v%d, v%d, v%d" % (o + i, r, r + 1))
            a("buffer_store_dwordx4 %s, v%d, s[20:23], s%d offen" % (vr(o), V_OQ, soffs[half]))
    a("s_waitcnt lgkmcnt(0)")
    for half in range(2):
        o = VO + 4 * k
        k += 1
        for i in range(8):
            r = V_ACC[2] + 8 * half + i
            a("v_mul_f32 v%d, v%d, v%d" % (r, VR + 8 * half + i, r))
        for i in range(4):
            r = V_ACC[2] + 8 * half + 2 * i
            a("v_cvt_pk_bf16_f32 v%d, v%d, v%d" % (o + i, r, r + 1))
        a("buffer_store_dwordx4 %s, v%d, s[20:23], s37 offen offset:%d" % (vr(o), V_OV, half * 512))
    a.ts_flush("k1", S_WAVE, V_T)
    a.label("L_k1_end")
    a("s_endpgm")
    return name, 152, 0, (256, 768, LDS_SCR + 4096)


def gen_k2(a):
    name = "k2_attn_kernel"
    kernel_begin(a, name)
    S_WAVE, S_H, S_QB, S_T0, S_T1, S_T2, S_T3 = 40, 41, 42, 43, 44, 45, 46
    S_ITER, S_SYNC, S_PASS, S_NT = 47, 48, 49, 50
    S_TASK, S_STG, S_DST0, S_DST1, S_TYPE = 51, 52, 53, 54, 55
    S_VMASK = 56
    S_CS = 58
    S_KB, S_W1K, S_CH = 59, 60, 61
    S_PE, S_PO, S_PS = 36, 37, 38
    V_LANE, V_L16, V_T = 1, 2, 3
    V_KA, V_VA = 10, 11
    V_Q = 12
    V_K = [16, 20]
    V_V = [24, 32]
    V_P = 40
    V_CM = 48
    V_S = [64, 80]
    V_O = 96
    V_MAX = 112
    V_PK = 113
    V_PD = 114
    V_SEL = 116
    V_PCS = [120, 124]
    STG = 131072
    a("s_cmp_ge_u32 s2, 256")
    a("s_cbranch_scc1 L_k2_end")
    a.ts("k2")
    a.ts("k2b")
    a("s_load_dwordx2 s[8:9], s[0:1], %d" % ARG_WS)
    a("s_load_dwordx2 s[4:5], s[0:1], %d" % ARG_WO)
    a("s_load_dwordx4 s[24:27], s[0:1], %d" % ARG_WG)
    a("s_load_dwordx2 s[6:7], s[0:1], %d" % ARG_WD)
    a("v_lshrrev_b32 v%d, 6, v0" % V_T)
    a("v_and_b32 v%d, 63, v0" % V_LANE)
    a("v_readfirstlane_b32 s%d, v%d" % (S_WAVE, V_T))
    a("v_lshlrev_b32 v%d, 4, v%d" % (V_L16, V_LANE))
    a("s_and_b32 s%d, s2, 7" % S_H)
    a("s_lshl_b32 s%d, s%d, 2" % (S_H, S_H))
    a("s_lshr_b32 s%d, s2, 6" % S_T0)
    a("s_add_u32 s%d, s%d, s%d" % (S_H, S_H, S_T0))
    a("s_lshr_b32 s%d, s2, 3" % S_QB)
    a("s_and_b32 s%d, s%d, 7" % (S_QB, S_QB))
    a("s_lshl_b32 s%d, s%d, 16" % (S_KB, S_H))
    a("s_lshl_b32 s%d, s%d, 10" % (S_W1K, S_WAVE))
    a("s_add_u32 s%d, s%d, s%d" % (S_KB, S_KB, S_W1K))
    a("s_lshl_b32 s%d, s%d, 13" % (S_CH, S_QB))
    a("s_add_u32 s%d, s%d, s%d" % (S_T3, S_KB, S_CH))
    a("s_add_u32 s%d, s%d, %d" % (S_KB, S_KB, WS_K))
    if not K2_ROT:
        a("s_mov_b32 s%d, 0" % S_CH)
    a("s_waitcnt lgkmcnt(0)")
    a.ts("k2b")
    srd(a, 20, 8, WS_SIZE)
    a("buffer_load_dwordx4 %s, v%d, s[20:23], s%d offen" % (vr(V_Q), V_L16, S_T3))
    if INSTR == "k2b":
        a("s_waitcnt vmcnt(0)")
    a.ts("k2b")

    def kv_dma(c):
        return [["s_add_u32 s%d, s%d, s%d" % (S_T3, S_KB, S_CH),
                 "s_add_u32 m0, s%d, %d" % (S_W1K, c * 8192),
                 "s_add_u32 s%d, s%d, 8192" % (S_CH, S_CH),
                 "buffer_load_dwordx4 v%d, s[20:23], s%d offen lds" % (V_L16, S_T3)],
                ["s_add_u32 s%d, s%d, %d" % (S_T3, S_T3, WS_V - WS_K),
                 "s_add_u32 m0, s%d, %d" % (S_W1K, 65536 + c * 8192),
                 "s_and_b32 s%d, s%d, 0xffff" % (S_CH, S_CH),
                 "buffer_load_dwordx4 v%d, s[20:23], s%d offen lds" % (V_L16, S_T3)]]

    for c in range(2):
        for g in kv_dma(c):
            for l in g:
                a(l)
    a("s_mov_b32 s%d, 0" % S_TYPE)
    a("s_cmp_lt_u32 s%d, 4" % S_WAVE)
    a("s_cbranch_scc1 L_k2_nopack")
    a("s_lshl_b32 s%d, s2, 2" % S_TASK)
    a("s_add_u32 s%d, s%d, s%d" % (S_TASK, S_TASK, S_WAVE))
    a("s_sub_u32 s%d, s%d, 4" % (S_TASK, S_TASK))
    a("s_cmp_ge_u32 s%d, 736" % S_TASK)
    a("s_cbranch_scc1 L_k2_nopack")
    a("s_lshl_b32 s%d, s%d, 13" % (S_STG, S_WAVE))
    a("s_add_u32 s%d, s%d, %d" % (S_STG, S_STG, STG - 4 * 8192))
    a("v_lshrrev_b32 v%d, 2, v%d" % (V_T, V_LANE))
    a("v_and_b32 v%d, 3, v%d" % (V_T + 1, V_LANE))
    a("s_cmp_ge_u32 s%d, 448" % S_TASK)
    a("s_cbranch_scc1 L_k2_packn")
    a("s_mov_b32 s%d, 1" % S_TYPE)
    srd(a, 28, 24, 512 * 3584)
    srd(a, 32, 26, 512 * 3584)
    a("v_mul_u32_u24 v%d, 3584, v%d" % (V_T, V_T))
    a("v_lshl_add_u32 v%d, v%d, 4, v%d" % (V_PD, V_T + 1, V_T))
    a("s_and_b32 s%d, s%d, 7" % (S_T0, S_TASK))
    a("s_lshr_b32 s%d, s%d, 3" % (S_T1, S_TASK))
    a("s_mul_i32 s%d, s%d, %d" % (S_PE, S_T0, 64 * 3584))
    a("s_lshl_b32 s%d, s%d, 6" % (S_T2, S_T1))
    a("s_add_u32 s%d, s%d, s%d" % (S_PE, S_PE, S_T2))
    a("s_mov_b32 s%d, s%d" % (S_PO, S_PE))
    a("s_mov_b32 s%d, %d" % (S_PS, 16 * 3584))
    for hb, sd in ((0, S_DST0), (1, S_DST1)):
        a("s_lshl_b32 s%d, s%d, 1" % (S_T2, S_T1))
        if hb:
            a("s_add_u32 s%d, s%d, 1" % (S_T2, S_T2))
        a("s_mul_i32 s%d, s%d, 9363" % (S_CS, S_T2))
        a("s_lshr_b32 s%d, s%d, 16" % (S_CS, S_CS))
        a("s_mul_i32 s%d, s%d, 7" % (sd, S_CS))
        a("s_sub_u32 s%d, s%d, s%d" % (sd, S_T2, sd))
        a("s_mul_i32 s%d, s%d, %d" % (S_CS, S_CS, 32 * 7))
        a("s_add_u32 s%d, s%d, s%d" % (sd, sd, S_CS))
        a("s_mul_i32 s%d, s%d, 28" % (S_CS, S_T0))
        a("s_add_u32 s%d, s%d, s%d" % (sd, sd, S_CS))
        a("s_lshl_b32 s%d, s%d, 10" % (sd, sd))
        a("s_add_u32 s%d, s%d, %d" % (sd, sd, WS_GU))
    a("s_lshl_b32 s%d, s%d, 11" % (S_CS, S_T1))
    a("s_lshr_b32 s%d, s%d, 2" % (S_T2, S_T0))
    a("s_lshl_b32 s%d, s%d, 9" % (S_T2, S_T2))
    a("s_add_u32 s%d, s%d, s%d" % (S_CS, S_CS, S_T2))
    a("s_and_b32 s%d, s%d, 3" % (S_T2, S_T0))
    a("s_lshl_b32 s%d, s%d, 2" % (S_T2, S_T2))
    a("s_add_u32 s%d, s%d, s%d" % (S_CS, S_CS, S_T2))
    a("s_add_u32 s%d, s%d, %d" % (S_CS, S_CS, WS_CS))
    a("s_branch L_k2_nopack")
    a.label("L_k2_packn")
    a("s_mov_b32 s%d, 2" % S_TYPE)
    a("v_lshlrev_b32 v%d, 10, v%d" % (V_T, V_T))
    a("v_lshl_add_u32 v%d, v%d, 4, v%d" % (V_PD, V_T + 1, V_T))
    a("s_cmp_ge_u32 s%d, 512" % S_TASK)
    a("s_cbranch_scc1 L_k2_packd")
    srd(a, 28, 4, 512 * 1024)
    srd(a, 32, 4, 512 * 1024)
    a("s_sub_u32 s%d, s%d, 448" % (S_T0, S_TASK))
    a("s_lshr_b32 s%d, s%d, 2" % (S_T1, S_T0))
    a("s_and_b32 s%d, s%d, 3" % (S_T0, S_T0))
    a("s_lshl_b32 s%d, s%d, 15" % (S_DST0, S_T1))
    a("s_add_u32 s%d, s%d, %d" % (S_DST0, S_DST0, WS_WO))
    a("s_branch L_k2_packc")
    a.label("L_k2_packd")
    srd(a, 28, 6, 1792 * 1024)
    srd(a, 32, 6, 1792 * 1024)
    a("s_sub_u32 s%d, s%d, 512" % (S_T0, S_TASK))
    a("s_mul_i32 s%d, s%d, 4682" % (S_T1, S_T0))
    a("s_lshr_b32 s%d, s%d, 16" % (S_T1, S_T1))
    a("s_mul_i32 s%d, s%d, 14" % (S_T2, S_T1))
    a("s_sub_u32 s%d, s%d, s%d" % (S_T0, S_T0, S_T2))
    a("s_mul_i32 s%d, s%d, %d" % (S_DST0, S_T1, 112 * 1024))
    a("s_add_u32 s%d, s%d, %d" % (S_DST0, S_DST0, WS_WD))
    a.label("L_k2_packc")
    a("s_lshl_b32 s%d, s%d, 13" % (S_T2, S_T0))
    a("s_add_u32 s%d, s%d, s%d" % (S_DST0, S_DST0, S_T2))
    a("s_lshl_b32 s%d, s%d, 17" % (S_PE, S_T0))
    a("s_lshl_b32 s%d, s%d, 6" % (S_T2, S_T1))
    a("s_add_u32 s%d, s%d, s%d" % (S_PE, S_PE, S_T2))
    a("s_add_u32 s%d, s%d, 16384" % (S_PO, S_PE))
    a("s_mov_b32 s%d, 32768" % S_PS)
    a.label("L_k2_nopack")
    a("s_mov_b32 s%d, 0x0000ffff" % S_VMASK)
    a("s_mov_b32 s%d, 0x0000ffff" % (S_VMASK + 1))
    a("v_and_b32 v%d, 27, v%d" % (V_T, V_LANE))
    a("v_cmp_eq_u32 vcc, 16, v%d" % V_T)
    a("v_mov_b32 v%d, 0x%x" % (V_T + 1, ONES_BF16))
    a("s_nop 1")
    a("v_cndmask_b32 v%d, 0, v%d, vcc" % (V_V[0], V_T + 1))
    for i in range(1, 16):
        a("v_mov_b32 v%d, v%d" % (V_V[0] + i, V_V[0]))
    a("s_mov_b32 s%d, 0" % S_SYNC)
    a("s_mov_b32 s%d, 0" % S_PASS)
    a("s_mov_b32 s%d, 1" % S_NT)
    a("s_setprio 3")
    a.ts("k2b")
    a("s_waitcnt vmcnt(2)")
    a.ts("k2b")
    a("s_barrier")
    a.ts("k2")
    a.ts("k2b")
    a.label("L_k2_maxpass")
    a("v_mov_b32 v%d, 0xff800000" % V_MAX)
    a("v_mov_b32 v%d, v%d" % (V_KA, V_L16))
    a.label("L_k2_mloop")
    a("ds_read_b128 %s, v%d" % (vr(V_K[0]), V_KA))
    a("v_add_u32 v%d, 1024, v%d" % (V_KA, V_KA))
    a("s_waitcnt lgkmcnt(0)")
    a("v_mfma_f32_32x32x16_bf16 %s, %s, %s, 0" % (vr(V_S[0], 16), vr(V_K[0]), vr(V_Q)))
    a("s_nop 15")
    for i in range(8):
        a("v_max3_f32 v%d, v%d, v%d, v%d" % (V_MAX, V_S[0] + 2 * i, V_S[0] + 2 * i + 1, V_MAX))
    a("s_sub_u32 s%d, s%d, 1" % (S_NT, S_NT))
    a("s_cmp_lg_u32 s%d, 0" % S_NT)
    a("s_cbranch_scc1 L_k2_mloop")
    a("v_mov_b32 v%d, v%d" % (V_KA, V_L16))
    a("v_lshrrev_b32 v%d, 5, v%d" % (V_T, V_LANE))
    a("v_lshlrev_b32 v%d, 8, v%d" % (V_T, V_T))
    a("v_and_b32 v%d, 15, v%d" % (V_T + 1, V_LANE))
    a("v_lshl_add_u32 v%d, v%d, 4, v%d" % (V_VA, V_T + 1, V_T))
    a("v_add_u32 v%d, 65536, v%d" % (V_VA, V_VA))
    a("ds_read_b128 %s, v%d" % (vr(V_K[0]), V_KA))
    a("ds_read_b128 %s, v%d offset:1024" % (vr(V_K[1]), V_KA))
    a("s_mov_b64 exec, s[%d:%d]" % (S_VMASK, S_VMASK + 1))
    a("ds_read_b128 %s, v%d" % (vr(V_V[0]), V_VA))
    a("ds_read_b128 %s, v%d offset:512" % (vr(V_V[0] + 4), V_VA))
    a("s_mov_b64 exec, -1")
    a("v_mov_b32 v%d, v%d" % (V_T, V_MAX))
    a("s_nop 1")
    a("v_permlane32_swap_b32 v%d, v%d" % (V_MAX, V_T))
    a("s_nop 1")
    a("v_max_f32 v%d, v%d, v%d" % (V_MAX, V_MAX, V_T))
    for i in range(16):
        a("v_sub_f32 v%d, 0, v%d" % (V_CM + i, V_MAX))
    a("s_waitcnt lgkmcnt(0)")
    a("s_nop 0")
    a("v_mfma_f32_32x32x16_bf16 %s, %s, %s, %s" % (vr(V_S[0], 16), vr(V_K[0]), vr(V_Q), vr(V_CM, 16)))
    for i in range(16):
        a("v_mov_b32 v%d, 0" % (V_O + i))
    for i in range(4):
        a("v_mov_b32 v%d, 0" % (V_P + 4 + i))
    a("s_mov_b32 s%d, 8" % S_ITER)
    a.ts("k2")
    a("s_cmp_lg_u32 s%d, 0" % S_PASS)
    a("s_cbranch_scc1 L_k2_loop")

    def body(peeled):
        for t in range(8):
            cur, nxt = t % 2, (t + 1) % 2
            x1, x2 = [], []
            if peeled:
                if t < 6:
                    x1, x2 = kv_dma(t + 2)
                if t == 6:
                    a("s_waitcnt vmcnt(12)")
                    a("s_barrier")
                if t >= 6:
                    lab = "L_k2_np%d" % t
                    x1 = ["s_cmp_eq_u32 s%d, 0" % S_TYPE, "s_cbranch_scc1 %s" % lab]
                    for i in range(4 * (t - 6), 4 * (t - 6) + 4):
                        x1 += ["s_add_u32 m0, s%d, %d" % (S_STG, i * 1024), "s_nop 0",
                               "buffer_load_dwordx4 v%d, s[%d:%d], s%d offen lds" % (V_PD, 28 + 4 * (i % 2), 31 + 4 * (i % 2), S_PO if i % 2 else S_PE),
                               "s_add_u32 s%d, s%d, s%d" % ((S_PO, S_PO, S_PS) if i % 2 else (S_PE, S_PE, S_PS))]
                    x1 += [lab + ":"]
            else:
                if t == 0:
                    for k, r in enumerate((5, 2, 1)):
                        x1 += ["s_cmp_lg_u32 s%d, %d" % (S_ITER, r), "s_cbranch_scc1 L_k2_pp%d" % k, "s_setprio %d" % (2 - k), "L_k2_pp%d:" % k]
                if t == 6:
                    a("s_cmp_eq_u32 s%d, 0" % S_SYNC)
                    a("s_cbranch_scc1 L_k2_sync")
                    a.label("L_k2_syncret")
            S = V_S[cur]
            e = lambda i: "v_exp_f32 v%d, v%d" % (S + i, S + i)
            c = lambda i: "v_cvt_pk_bf16_f32 v%d, v%d, v%d" % (V_P + i, S + 2 * i, S + 2 * i + 1)
            pv = lambda b, h: "v_mfma_f32_32x32x16_bf16 %s, %s, %s, %s" % (vr(V_O, 16), vr(V_V[b] + 4 * h), vr(V_P + 4 * h), vr(V_O, 16))
            qk = "v_mfma_f32_32x32x16_bf16 %s, %s, %s, %s" % (vr(V_S[nxt], 16), vr(V_K[nxt]), vr(V_Q), vr(V_CM, 16))
            rdk = "ds_read_b128 %s, v%d offset:%d" % (vr(V_K[cur]), V_KA, (t + 2) * 1024)
            rdv = ["s_mov_b64 exec, s[%d:%d]" % (S_VMASK, S_VMASK + 1),
                   "ds_read_b128 %s, v%d offset:%d" % (vr(V_V[nxt]), V_VA, (t + 1) * 1024),
                   "ds_read_b128 %s, v%d offset:%d" % (vr(V_V[nxt] + 4), V_VA, (t + 1) * 1024 + 512),
                   "s_mov_b64 exec, -1"]
            seq = [e(0), e(1), pv(nxt, 1), e(2), "s_waitcnt lgkmcnt(0)", rdk, e(3)] + rdv + [c(0), e(4), e(5), c(1), e(6), e(7), qk, c(2), e(8)] + x1 + [e(9), c(3),
                   e(10), e(11), c(4), e(12), e(13), pv(cur, 0), c(5), e(14)] + x2 + [e(15), c(6)]
            if t == 7:
                seq += ["v_add_u32 v%d, 8192, v%d" % (V_KA, V_KA), "v_add_u32 v%d, 8192, v%d" % (V_VA, V_VA),
                        "s_sub_u32 s%d, s%d, 1" % (S_ITER, S_ITER), "s_cmp_lg_u32 s%d, 0" % S_ITER]
            seq += [c(7)]
            for l in seq:
                if l.endswith(":"):
                    a.label(l[:-1])
                else:
                    a(l)

    body(True)
    a.raw(".p2align 6")
    a.label("L_k2_loop")
    body(False)
    a("s_cbranch_scc1 L_k2_loop")
    a.ts("k2")
    a("s_nop 1")
    a("v_mfma_f32_32x32x16_bf16 %s, %s, %s, %s" % (vr(V_O, 16), vr(V_V[1] + 4), vr(V_P + 4), vr(V_O, 16)))
    a("s_waitcnt lgkmcnt(0)")
    a("s_lshl_b32 s%d, s%d, 3" % (S_T0, S_QB))
    a("s_add_u32 s%d, s%d, s%d" % (S_T0, S_T0, S_WAVE))
    a("s_lshl_b32 s%d, s%d, 5" % (S_T0, S_T0))
    a("s_add_u32 s%d, s%d, s%d" % (S_T0, S_T0, S_H))
    a("s_lshl_b32 s%d, s%d, 10" % (S_T0, S_T0))
    a("s_add_u32 s%d, s%d, %d" % (S_T0, S_T0, WS_O))
    a("s_nop 7")
    a("v_mul_f32 v%d, 0, v%d" % (V_T, V_O))
    for i in range(1, 8):
        a("v_fmac_f32 v%d, 0, v%d" % (V_T, V_O + i))
    a("v_add_f32 v%d, v%d, v%d" % (V_T, V_T, V_O + 8))
    a("v_cmp_gt_f32 vcc, 0x%x, v%d" % (f32bits(2.0 ** 100), V_T))
    a("v_rcp_f32 v%d, v%d" % (V_T + 1, V_O + 8))
    a("s_cmp_lg_u32 s%d, 0" % S_PASS)
    a("s_cbranch_scc1 L_k2_fin")
    a("s_cmp_eq_u64 vcc, exec")
    a("s_cbranch_scc1 L_k2_fin")
    a("s_mov_b32 s%d, 1" % S_PASS)
    a("s_mov_b32 s%d, 64" % S_NT)
    a("s_branch L_k2_maxpass")
    a.label("L_k2_fin")
    for i in range(8):
        a("v_mul_f32 v%d, v%d, v%d" % (V_O + i, V_T + 1, V_O + i))
    for i in range(4):
        a("v_cvt_pk_bf16_f32 v%d, v%d, v%d" % (V_P + i, V_O + 2 * i, V_O + 2 * i + 1))
    a("buffer_store_dwordx4 %s, v%d, s[20:23], s%d offen" % (vr(V_P), V_L16, S_T0))
    a.ts_flush("k2", S_WAVE, V_T)
    a.ts_flush("k2b", S_WAVE, V_T)
    a.label("L_k2_end")
    a("s_endpgm")
    a.label("L_k2_sync")
    a("s_mov_b32 s%d, 1" % S_SYNC)
    a("s_waitcnt vmcnt(0)")
    a("s_barrier")
    a("s_cmp_eq_u32 s%d, 0" % S_TYPE)
    a("s_cbranch_scc1 L_k2_syncret")
    a("v_bfe_u32 v%d, v%d, 2, 2" % (V_T, V_LANE))
    a("v_lshrrev_b32 v%d, 5, v%d" % (V_T + 1, V_LANE))
    a("v_lshl_add_u32 v%d, v%d, 2, v%d" % (V_T, V_T + 1, V_T))
    a("v_lshlrev_b32 v%d, 6, v%d" % (V_T, V_T))
    a("v_and_b32 v%d, 3, v%d" % (V_T + 1, V_LANE))
    a("v_lshl_add_u32 v%d, v%d, 3, v%d" % (V_T, V_T + 1, V_T))
    a("v_add_u32 v%d, s%d, v%d" % (V_T, S_STG, V_T))
    a("v_bfe_u32 v%d, v%d, 4, 1" % (V_T + 1, V_LANE))
    FB = [128 + 4 * i for i in range(8)]
    a("s_cmp_eq_u32 s%d, 2" % S_TYPE)
    a("s_cbranch_scc1 L_k2_pk2")
    a("v_lshl_add_u32 v%d, v%d, 10, v%d" % (V_PK, V_T + 1, V_T))
    for ks in range(4):
        for hb in range(2):
            for rd in range(2):
                a("ds_read_b64_tr_b16 %s, v%d offset:%d" % (vr(FB[ks * 2 + hb] + 2 * rd, 2), V_PK, ks * 2048 + hb * 32 + rd * 512))
    make_sel(a, V_LANE, V_SEL, V_T + 2)
    a("v_and_b32 v%d, 31, v%d" % (V_T, V_LANE))
    a("v_lshlrev_b32 v%d, 4, v%d" % (V_T, V_T))
    a("s_waitcnt lgkmcnt(0)")
    for ks in range(4):
        for hb in range(2):
            a("v_mfma_f32_16x16x32_bf16 %s, %s, %s, %s" % (vr(V_PCS[hb]), vr(V_SEL), vr(FB[ks * 2 + hb]), "0" if ks == 0 else vr(V_PCS[hb])))
            a("buffer_store_dwordx4 %s, v%d, s[20:23], s%d offen" % (vr(FB[ks * 2 + hb]), V_L16, (S_DST0, S_DST1)[hb]))
        a("s_add_u32 s%d, s%d, 7168" % (S_DST0, S_DST0))
        a("s_add_u32 s%d, s%d, 7168" % (S_DST1, S_DST1))
    a("s_nop 7")
    a("buffer_store_dword v%d, v%d, s[20:23], s%d offen" % (V_PCS[0], V_T, S_CS))
    a("buffer_store_dword v%d, v%d, s[20:23], s%d offen offset:1024" % (V_PCS[1], V_T, S_CS))
    a("s_branch L_k2_syncret")
    a.label("L_k2_pk2")
    a("v_lshl_add_u32 v%d, v%d, 5, v%d" % (V_PK, V_T + 1, V_T))
    a("s_add_u32 s%d, s%d, 4096" % (S_DST1, S_DST0))
    for f in range(8):
        for rd in range(2):
            a("ds_read_b64_tr_b16 %s, v%d offset:%d" % (vr(FB[f] + 2 * rd, 2), V_PK, f * 1024 + rd * 512))
    a("s_waitcnt lgkmcnt(0)")
    for f in range(8):
        a("buffer_store_dwordx4 %s, v%d, s[20:23], s%d offen offset:%d" % (vr(FB[f]), V_L16, S_DST0 if f < 4 else S_DST1, (f % 4) * 1024))
    a("s_branch L_k2_syncret")
    return name, 160, 0, (256, 512, 163840)


FL_A, FL_B, FL_C, FL_P = WS_FL, WS_FL + 8192, WS_FL + 16384, WS_FL + 20480
S_XCC, S_FAST = 62, 63
T_XCD, T_R2, T_RB64, T_RB128, T_CGF, T_TBO, T_NBO, T_HALF, T_A, T_B, T_C, T_D, T_CNT, T_M = 24, 25, 26, 27, 28, 29, 30, 31, 32, 33, 34, 35, 36, 37
FV_WO = 160
FV_XR = 224
FV_LX = 228
FV_L4 = 229
FV_L8 = 234
FV_F = 230
FSTORE = os.environ.get('FSTORE', '')
PRET = os.environ.get('PRET', 'qa')
WBL2 = os.environ.get('WBL2', 'e')
LSC = os.environ.get('LSC', ' sc1')
AMAP = int(os.environ.get('AMAP', 0))
S_TEAM, S_MEM = 18, 19
FASTPATH = int(os.environ.get('FASTPATH', 1))
POLLD = int(os.environ.get('POLLD', 1))


def poll(a, tag, soff, n, vl4, vf, depth=1):
    a("s_mov_b32 s%d, 0" % T_CNT)
    a.label("L_poll_%s" % tag)
    a("buffer_load_dword v%d, v%d, s[20:23], s%d offen sc1" % (vf, vl4, soff))
    a("s_add_u32 s%d, s%d, 1" % (T_CNT, T_CNT))
    a("s_waitcnt vmcnt(0)")
    a("v_cmp_ne_u32 vcc, 0, v%d" % vf)
    a("s_cmp_gt_u32 s%d, 0x40000" % T_CNT)
    a("s_cbranch_scc1 L_polld_%s" % tag)
    if n == 64:
        a("s_and_b32 s%d, vcc_lo, vcc_hi" % T_M)
        a("s_cmp_lg_u32 s%d, -1" % T_M)
    else:
        mask = (1 << n) - 1
        a("s_and_b32 s%d, vcc_lo, 0x%x" % (T_M, mask))
        a("s_cmp_lg_u32 s%d, 0x%x" % (T_M, mask))
    a("s_cbranch_scc1 L_poll_%s" % tag)
    a.label("L_polld_%s" % tag)


def hstore(a, tag, stores):
    a("s_cmp_eq_u32 s%d, -1" % S_FAST)
    a("s_cbranch_scc1 L_hs_%s_f" % tag)
    for st in stores:
        a(st + " sc1")
    a("s_branch L_hs_%s_d" % tag)
    a.label("L_hs_%s_f" % tag)
    for st in stores:
        a(st + (FSTORE if "dwordx4" in st else ""))
    a.label("L_hs_%s_d" % tag)


def set_flag(a, soff, vt, tag=None):
    a("v_mov_b32 v%d, 0" % vt)
    a("v_mov_b32 v%d, 1" % (vt + 1))
    a("s_mov_b64 exec, 1")
    st = "buffer_store_dword v%d, v%d, s[20:23], s%d offen" % (vt + 1, vt, soff)
    if tag:
        hstore(a, tag, [st])
    else:
        a(st + " sc1")
    a("s_mov_b64 exec, -1")


def fused_events(a, E):
    S_WAVE, S_H, S_QB, S_ITER, S_SYNC, S_TASK, S_TYPE = (E[k] for k in ("S_WAVE", "S_H", "S_QB", "S_ITER", "S_SYNC", "S_TASK", "S_TYPE"))
    V_LANE, V_L16, V_T = E["V_LANE"], E["V_L16"], E["V_T"]
    a.label("L_f_event")
    a("s_cmp_eq_u32 s%d, 7" % S_ITER)
    a("s_cbranch_scc1 L_f_sync")
    a("s_cmp_eq_u32 s%d, 6" % S_ITER)
    a("s_cbranch_scc1 L_f_ev6")
    a("s_cmp_eq_u32 s%d, 2" % S_ITER)
    a("s_cbranch_scc1 L_f_ev2")
    a("s_cmp_eq_u32 s%d, 3" % S_ITER)
    a("s_cbranch_scc1 L_f_ev3")
    a("s_mov_b32 s%d, 3" % S_SYNC)
    a("s_cmp_eq_u32 s%d, 0" % S_TYPE)
    a("s_cbranch_scc1 L_f_ev5b")
    a("s_lshl_b32 s%d, s%d, 2" % (T_A, S_TASK))
    a("s_add_u32 s%d, s%d, %d" % (T_A, T_A, FL_P))
    a("s_waitcnt vmcnt(0)")
    set_flag(a, T_A, V_T)
    a.label("L_f_ev5b")
    if "a" in WBL2:
        a("s_lshl_b32 s%d, s%d, 3" % (T_A, S_MEM))
        a("s_add_u32 s%d, s%d, s%d" % (T_A, T_A, S_WAVE))
        a("s_cmp_lg_u32 s%d, 5" % T_A)
        a("s_cbranch_scc1 L_f_nowb1")
        a("buffer_wbl2 sc1")
        a.label("L_f_nowb1")
    a("buffer_load_dword v%d, v%d, s[96:99], 0 offen sc1" % (FV_F, FV_L4))
    a("s_branch L_f_syncret")
    a.label("L_f_ev3")
    a("s_mov_b32 s%d, 2" % S_SYNC)
    a("s_mov_b32 s%d, 0" % T_CNT)
    a.label("L_f_dbchk")
    a("s_waitcnt vmcnt(0)")
    a("v_subrev_u32 v%d, 0x01010101, v%d" % (FV_F + 1, FV_F))
    a("v_not_b32 v%d, v%d" % (FV_F + 2, FV_F))
    a("v_and_b32 v%d, v%d, v%d" % (FV_F + 1, FV_F + 1, FV_F + 2))
    a("v_and_b32 v%d, 0x80808080, v%d" % (FV_F + 1, FV_F + 1))
    a("v_cmp_eq_u32 vcc, 0, v%d" % (FV_F + 1))
    a("s_add_u32 s%d, s%d, 1" % (T_CNT, T_CNT))
    a("s_cmp_gt_u32 s%d, 0x40000" % T_CNT)
    a("s_cbranch_scc1 L_f_dbok")
    a("s_and_b32 s%d, vcc_lo, vcc_hi" % T_M)
    a("s_cmp_eq_u32 s%d, -1" % T_M)
    a("s_cbranch_scc1 L_f_dbok")
    a("buffer_load_dword v%d, v%d, s[96:99], 0 offen sc1" % (FV_F, FV_L4))
    a("s_branch L_f_dbchk")
    a.label("L_f_dbok")
    a("s_lshr_b32 s%d, s2, 5" % T_XCD)
    a("s_bfe_u32 s%d, s2, 0x20003" % T_R2)
    a("s_and_b32 s%d, s2, 7" % T_RB64)
    a("s_lshl_b32 s%d, s%d, 2" % (T_RB64, T_RB64))
    a("s_add_u32 s%d, s%d, s%d" % (T_RB64, T_RB64, T_R2))
    a("s_lshr_b32 s%d, s%d, 1" % (T_RB128, T_RB64))
    a("s_and_b32 s%d, s%d, 1" % (T_A, T_R2))
    a("s_lshl_b32 s%d, s%d, 1" % (T_CGF, T_XCD))
    a("s_add_u32 s%d, s%d, s%d" % (T_CGF, T_CGF, T_A))
    a("s_bfe_u32 s%d, s%d, 0x10001" % (T_A, S_WAVE))
    a("s_lshl_b32 s%d, s%d, 1" % (T_TBO, T_RB64))
    a("s_add_u32 s%d, s%d, s%d" % (T_TBO, T_TBO, T_A))
    a("s_and_b32 s%d, s%d, 1" % (T_A, S_WAVE))
    a("s_lshl_b32 s%d, s%d, 1" % (T_NBO, T_XCD))
    a("s_add_u32 s%d, s%d, s%d" % (T_NBO, T_NBO, T_A))
    a("s_lshr_b32 s%d, s%d, 2" % (T_HALF, S_WAVE))
    if "a" in PRET:
        a("s_lshl_b32 s%d, s%d, 4" % (T_A, T_TBO))
        a("s_add_u32 s%d, s%d, s%d" % (T_A, T_A, T_NBO))
        a("s_lshl_b32 s%d, s%d, 9" % (T_B, T_A))
        a("s_add_u32 s%d, s%d, %d" % (T_B, T_B, WS_ST))
        a("s_lshl_b32 s%d, s%d, 1" % (T_A, T_A))
        a("s_add_u32 s%d, s%d, s%d" % (T_A, T_A, T_HALF))
        a("s_lshl_b32 s%d, s%d, 10" % (T_A, T_A))
        a("s_add_u32 s%d, s%d, %d" % (T_A, T_A, WS_H))
        a("buffer_load_dwordx4 %s, v%d, s[20:23], s%d offen sc1" % (vr(236), V_L16, T_A))
        a("buffer_load_dwordx2 %s, v%d, s[20:23], s%d offen sc1" % (vr(240, 2), FV_L8, T_B))
        a("s_and_b32 s%d, s%d, 3" % (T_A, S_WAVE))
        a("s_lshl_b32 s%d, s%d, 2" % (T_B, T_RB128))
        a("s_add_u32 s%d, s%d, s%d" % (T_A, T_A, T_B))
        a("s_mul_i32 s%d, s%d, 112" % (T_A, T_A))
        a("s_mul_i32 s%d, s%d, 7" % (T_B, T_CGF))
        a("s_add_u32 s%d, s%d, s%d" % (T_A, T_A, T_B))
        a("s_mul_i32 s%d, s%d, 3" % (T_B, T_HALF))
        a("s_add_u32 s%d, s%d, s%d" % (T_A, T_A, T_B))
        a("s_lshl_b32 s%d, s%d, 10" % (T_A, T_A))
        a("s_add_u32 s%d, s%d, %d" % (T_A, T_A, WS_A))
        for k in range(4):
            a("buffer_load_dwordx4 %s, v%d, s[20:23], s%d offen offset:%d sc1" % (vr(236 if k == 0 else 240 + 4 * k), V_L16, T_A, k * 1024))
    a("s_mul_i32 s%d, s%d, 7" % (T_A, T_CGF))
    a("s_lshr_b32 s%d, s%d, 1" % (T_A, T_A))
    a("s_lshl_b32 s%d, s%d, 5" % (T_A, T_A))
    a("s_mul_i32 s%d, s%d, 56" % (T_B, T_NBO))
    a("s_add_u32 s%d, s%d, %d" % (T_B, T_B, 512 * 4 - 32 * 4))
    a("s_lshl_b32 s%d, s%d, 1" % (T_C, T_NBO))
    a("s_add_u32 s%d, s%d, s%d" % (T_C, T_C, T_HALF))
    a("s_lshl_b32 s%d, s%d, 3" % (T_C, T_C))
    a("s_add_u32 s%d, s%d, %d" % (T_C, T_C, 448 * 4 - 46 * 4))
    a("v_mov_b32 v%d, s%d" % (V_T, T_A))
    a("v_mov_b32 v%d, s%d" % (V_T + 1, T_B))
    a("v_cmp_le_u32 vcc, 32, v%d" % V_LANE)
    a("v_mov_b32 v%d, s%d" % (V_T + 2, T_C))
    a("s_nop 0")
    a("v_cndmask_b32 v%d, v%d, v%d, vcc" % (V_T, V_T, V_T + 1))
    a("v_cmp_le_u32 vcc, 46, v%d" % V_LANE)
    a("s_mov_b32 s%d, %d" % (T_A, FL_P))
    a("s_nop 0")
    a("v_cndmask_b32 v%d, v%d, v%d, vcc" % (V_T, V_T, V_T + 2))
    a("v_add_u32 v%d, v%d, v%d" % (FV_F + 3, V_T, FV_L4))
    a("buffer_load_dword v%d, v%d, s[20:23], s%d offen sc1" % (FV_F, FV_F + 3, T_A))
    a("s_branch L_f_syncret")
    a.label("L_f_ev2")
    a("s_mov_b32 s%d, 0" % S_SYNC)
    a("s_mov_b32 s%d, 0" % T_CNT)
    a("s_mov_b32 s%d, %d" % (T_A, FL_P))
    a.label("L_f_fpchk")
    a("s_waitcnt vmcnt(0)")
    a("v_cmp_ne_u32 vcc, 0, v%d" % FV_F)
    a("s_add_u32 s%d, s%d, 1" % (T_CNT, T_CNT))
    a("s_cmp_gt_u32 s%d, 0x40000" % T_CNT)
    a("s_cbranch_scc1 L_f_fpok")
    a("s_or_b32 s%d, vcc_hi, 0xffff0000" % T_M)
    a("s_and_b32 s%d, s%d, vcc_lo" % (T_M, T_M))
    a("s_cmp_eq_u32 s%d, -1" % T_M)
    a("s_cbranch_scc1 L_f_fpok")
    a("buffer_load_dword v%d, v%d, s[20:23], s%d offen sc1" % (FV_F, FV_F + 3, T_A))
    a("s_branch L_f_fpchk")
    a.label("L_f_fpok")
    a("s_lshl_b32 s%d, s%d, 1" % (T_A, T_NBO))
    a("s_add_u32 s%d, s%d, s%d" % (T_A, T_A, T_HALF))
    a("s_lshl_b32 s%d, s%d, 14" % (T_A, T_A))
    a("s_add_u32 s%d, s%d, %d" % (T_A, T_A, WS_WO))
    for i in range(16):
        if i and i % 4 == 0:
            a("s_add_u32 s%d, s%d, 4096" % (T_A, T_A))
        a("buffer_load_dwordx4 %s, v%d, s[20:23], s%d offen offset:%d sc1" % (vr(FV_WO + 4 * i), FV_LX, T_A, (i % 4) * 1024))
    srd(a, 12, 10, 2048 * 1024)
    a("v_and_b32 v%d, 31, v%d" % (V_T, V_LANE))
    a("v_lshlrev_b32 v%d, 10, v%d" % (V_T, V_T))
    a("v_lshrrev_b32 v%d, 5, v%d" % (V_T + 1, V_LANE))
    a("v_lshl_add_u32 v%d, v%d, 3, v%d" % (V_T, V_T + 1, V_T))
    a("s_lshl_b32 s%d, s%d, 15" % (T_A, T_TBO))
    a("s_lshl_b32 s%d, s%d, 6" % (T_B, T_NBO))
    a("s_add_u32 s%d, s%d, s%d" % (T_A, T_A, T_B))
    a("s_lshl_b32 s%d, s%d, 5" % (T_B, T_HALF))
    a("s_add_u32 s%d, s%d, s%d" % (T_A, T_A, T_B))
    for q in range(2):
        a("buffer_load_dwordx2 %s, v%d, s[12:15], s%d offen offset:%d" % (vr(FV_XR + 2 * q, 2), V_T, T_A, q * 16))
    a("s_branch L_f_syncret")


def fused_tail(a, E):
    S_WAVE, S_H, S_QB = E["S_WAVE"], E["S_H"], E["S_QB"]
    V_LANE, V_L16 = 1, 2
    V_T = 3
    S_MASK, S_W3, S_M0W, S_SW, S_SH, S_M0H = 43, 44, 45, 46, 47, 48
    a.ts("k2")
    a("s_setprio 0")
    for k in ("S_SYNC", "S_TYPE", "S_PASS", "S_NT", "S_ITER"):
        a("s_mov_b32 s%d, 0" % E[k])
    a("s_mov_b32 s%d, 0xffff0000" % S_MASK)
    a("s_and_b32 s%d, s%d, 3" % (S_W3, S_WAVE))
    S_WB = 51
    a("s_lshl_b32 s%d, s%d, 3" % (S_WB, S_MEM))
    a("s_add_u32 s%d, s%d, s%d" % (S_WB, S_WB, S_WAVE))
    a("s_lshl_b32 s%d, s%d, 2" % (T_A, S_QB))
    a("s_lshr_b32 s%d, s%d, 1" % (T_B, S_WAVE))
    a("s_add_u32 s%d, s%d, s%d" % (T_A, T_A, T_B))
    a("s_lshl_b32 s%d, s%d, 8" % (T_A, T_A))
    a("s_and_b32 s%d, s%d, 1" % (T_B, S_WAVE))
    a("s_lshl_b32 s%d, s%d, 5" % (T_B, T_B))
    a("s_add_u32 s%d, s%d, s%d" % (T_B, T_B, S_H))
    a("s_lshl_b32 s%d, s%d, 2" % (T_B, T_B))
    a("s_add_u32 s%d, s%d, s%d" % (T_B, T_B, T_A))
    a("s_add_u32 s%d, s%d, %d" % (T_B, T_B, FL_A))
    a("s_mul_i32 s%d, s%d, 7168" % (S_M0W, S_W3))
    a("s_mul_i32 s%d, s%d, %d" % (S_SW, T_CGF, 32 * 7 * 1024))
    a("s_add_u32 s%d, s%d, s%d" % (S_SW, S_SW, S_M0W))
    a("s_add_u32 s%d, s%d, %d" % (S_SW, S_SW, WS_GU))

    def w_stage(st):
        slot = st % 4
        a("s_add_u32 s%d, s%d, %d" % (T_C, S_SW, st * SLOT))
        a("s_add_u32 m0, s%d, %d" % (S_M0W, slot * SLOT))
        a("s_add_u32 s%d, s%d, 4096" % (T_D, T_C))
        for q in range(4):
            a("buffer_load_dwordx4 v%d, s[20:23], s%d offen offset:%d sc1 lds" % (V_L16, T_C, q * 1024))
        a("s_add_u32 m0, m0, 4096")
        a("s_nop 0")
        for q in range(3):
            a("buffer_load_dwordx4 v%d, s[20:23], s%d offen offset:%d sc1 lds" % (V_L16, T_D, q * 1024))

    a("s_waitcnt vmcnt(0)")
    set_flag(a, T_B, V_T)
    a("s_barrier")
    OB, XS = 86016, 57344
    a("s_cmp_ge_u32 s%d, 4" % S_WAVE)
    a("s_cbranch_scc1 L_f_a1")
    w_stage(0)
    w_stage(1)
    a("s_branch L_f_a2")
    a.label("L_f_a1")
    a("s_lshl_b32 s%d, s%d, 8" % (T_A, T_RB64))
    a("s_lshl_b32 s%d, s%d, 6" % (T_B, S_W3))
    a("s_add_u32 s%d, s%d, s%d" % (T_A, T_A, T_B))
    a("s_add_u32 s%d, s%d, %d" % (T_A, T_A, FL_A))
    a("s_lshl_b32 s%d, s%d, 2" % (T_C, T_RB64))
    a("s_add_u32 s%d, s%d, s%d" % (T_C, T_C, S_W3))
    a("s_lshl_b32 s%d, s%d, 14" % (T_C, T_C))
    a("s_add_u32 s%d, s%d, %d" % (T_C, T_C, WS_O))
    a("s_lshl_b32 s%d, s%d, 14" % (T_B, S_W3))
    a("s_add_u32 m0, s%d, %d" % (T_B, OB))
    poll(a, "fa", T_A, 16, FV_L4, FV_F + 2)
    a.ts("k2")
    for j in range(16):
        if j and j % 4 == 0:
            a("s_add_u32 m0, m0, 4096")
            a("s_add_u32 s%d, s%d, 4096" % (T_C, T_C))
        a("buffer_load_dwordx4 v%d, s[20:23], s%d offen offset:%d sc1 lds" % (V_L16, T_C, (j % 4) * 1024))
    a.label("L_f_a2")

    V_OA = 12
    V_OF = [16 + 4 * i for i in range(8)]
    V_AB = 64
    V_U = 80
    V_HK = 16
    a("s_bfe_u32 s%d, s%d, 0x10001" % (T_B, S_WAVE))
    a("s_lshl_b32 s%d, s%d, 1" % (T_B, T_B))
    a("s_add_u32 s%d, s%d, s%d" % (T_B, T_B, T_HALF))
    a("s_lshl_b32 s%d, s%d, 14" % (T_B, T_B))
    a("s_add_u32 s%d, s%d, %d" % (T_B, T_B, OB))
    a("v_add_u32 v%d, s%d, v%d" % (V_OA, T_B, V_L16))
    a("s_xor_b32 s%d, s%d, 4" % (T_B, S_WAVE))
    a("s_lshl_b32 s%d, s%d, 11" % (T_B, T_B))
    a("s_add_u32 s%d, s%d, %d" % (T_B, T_B, XS))
    a("v_add_u32 v%d, s%d, v%d" % (V_OA + 1, T_B, V_L16))
    a("s_lshl_b32 s%d, s%d, 11" % (T_B, S_WAVE))
    a("s_add_u32 s%d, s%d, %d" % (T_B, T_B, XS))
    a("v_add_u32 v%d, s%d, v%d" % (V_OA + 2, T_B, V_L16))
    for d in range(4):
        a("v_lshlrev_b32 v%d, 16, v%d" % (V_U + 2 * d, FV_XR + d))
        a("v_and_b32 v%d, s%d, v%d" % (V_U + 2 * d + 1, S_MASK, FV_XR + d))
    a("s_cmp_lt_u32 s%d, 4" % S_WAVE)
    a("s_cbranch_scc1 L_f_b3")
    a("s_waitcnt vmcnt(0)")
    a.label("L_f_b3")
    a("s_barrier")
    a.ts("k2")
    for i in range(8):
        a("ds_read_b128 %s, v%d offset:%d" % (vr(V_OF[i]), V_OA, i * 1024))
    for i in range(16):
        a("s_waitcnt lgkmcnt(%d)" % (7 if i < 8 else 15 - i))
        a("v_mfma_f32_32x32x16_bf16 %s, %s, %s, %s" % (vr(V_AB, 16), vr(FV_WO + 4 * i), vr(V_OF[i % 8]), "0" if i == 0 else vr(V_AB, 16)))
        if i < 8:
            a("ds_read_b128 %s, v%d offset:%d" % (vr(V_OF[i]), V_OA, (i + 8) * 1024))
    a("s_lshl_b32 s%d, s%d, 4" % (T_A, T_TBO))
    a("s_add_u32 s%d, s%d, s%d" % (T_A, T_A, T_NBO))
    a("s_lshl_b32 s%d, s%d, 1" % (T_A, T_A))
    a("s_add_u32 s%d, s%d, s%d" % (T_A, T_A, T_HALF))
    a("s_lshr_b32 s%d, s%d, 1" % (T_B, T_A))
    a("s_lshl_b32 s%d, s%d, 9" % (T_B, T_B))
    a("s_lshl_b32 s%d, s%d, 3" % (T_C, T_HALF))
    a("s_add_u32 s%d, s%d, s%d" % (T_B, T_B, T_C))
    a("s_add_u32 s%d, s%d, %d" % (T_B, T_B, WS_ST))
    a("s_lshl_b32 s%d, s%d, 10" % (T_A, T_A))
    a("s_add_u32 s%d, s%d, %d" % (T_A, T_A, WS_H))
    a("v_and_b32 v%d, 31, v%d" % (V_T, V_LANE))
    a("v_lshlrev_b32 v%d, 4, v%d" % (V_T, V_T))
    a("s_nop 1")
    for q in range(2):
        a("ds_write_b128 v%d, %s offset:%d" % (V_OA + 1, vr(V_AB + 8 + 4 * q), q * 1024))
    for i in range(8):
        a("v_add_f32 v%d, v%d, v%d" % (V_AB + i, V_AB + i, V_U + i))
    a("s_waitcnt lgkmcnt(0)")
    a("s_barrier")
    for q in range(2):
        a("ds_read_b128 %s, v%d offset:%d" % (vr(V_U + 4 * q), V_OA + 2, q * 1024))
    a("s_waitcnt lgkmcnt(0)")
    for i in range(8):
        a("v_add_f32 v%d, v%d, v%d" % (V_AB + i, V_AB + i, V_U + i))
    for i in range(4):
        a("v_cvt_pk_bf16_f32 v%d, v%d, v%d" % (V_HK + i, V_AB + 2 * i, V_AB + 2 * i + 1))
    hstore(a, "h", ["buffer_store_dwordx4 %s, v%d, s[20:23], s%d offen" % (vr(V_HK), V_L16, T_A)])
    for d in range(4):
        a("v_lshlrev_b32 v%d, 16, v%d" % (V_U + 2 * d, V_HK + d))
        a("v_and_b32 v%d, s%d, v%d" % (V_U + 2 * d + 1, S_MASK, V_HK + d))
    S1, S2 = V_AB, V_AB + 1
    a("v_add_f32 v%d, v%d, v%d" % (S1, V_U, V_U + 1))
    a("v_mul_f32 v%d, v%d, v%d" % (S2, V_U, V_U))
    a("v_fmac_f32 v%d, v%d, v%d" % (S2, V_U + 1, V_U + 1))
    for i in range(2, 8):
        a("v_add_f32 v%d, v%d, v%d" % (S1, S1, V_U + i))
        a("v_fmac_f32 v%d, v%d, v%d" % (S2, V_U + i, V_U + i))
    sum_halves(a, S1, V_AB + 2)
    sum_halves(a, S2, V_AB + 3)
    hstore(a, "st", ["buffer_store_dwordx2 %s, v%d, s[20:23], s%d offen" % (vr(S1, 2), V_T, T_B)])
    a("s_lshl_b32 s%d, s%d, 4" % (T_B, T_TBO))
    a("s_add_u32 s%d, s%d, s%d" % (T_B, T_B, T_NBO))
    a("s_lshl_b32 s%d, s%d, 1" % (T_B, T_B))
    a("s_add_u32 s%d, s%d, s%d" % (T_B, T_B, T_HALF))
    a("s_lshl_b32 s%d, s%d, 2" % (T_B, T_B))
    a("s_add_u32 s%d, s%d, %d" % (T_B, T_B, FL_B))
    a("v_mov_b32 v%d, v%d" % (14, FV_LX))
    a("v_mov_b32 v%d, v%d" % (15, FV_L4))
    V_LX, V_L4 = 14, 15
    a("s_waitcnt vmcnt(0)")
    set_flag(a, T_B, V_T, "fb")
    a("s_barrier")
    a.ts("k2")
    HR = 114688
    a("s_lshl_b32 s%d, s%d, 2" % (T_A, T_RB128))
    a("s_add_u32 s%d, s%d, s%d" % (T_A, T_A, S_W3))
    a("s_lshl_b32 s%d, s%d, 15" % (S_SH, T_A))
    a("s_add_u32 s%d, s%d, %d" % (S_SH, S_SH, WS_H))
    a("s_lshl_b32 s%d, s%d, 12" % (S_M0H, S_W3))
    a("s_add_u32 s%d, s%d, %d" % (S_M0H, S_M0H, HR))

    def h_stage(st):
        a("s_add_u32 m0, s%d, %d" % (S_M0H, (st % 3) * 16384))
        a("s_add_u32 s%d, s%d, %d" % (T_C, S_SH, st * 4096))
        for q in range(4):
            a("buffer_load_dwordx4 v%d, s[20:23], s%d offen offset:%d sc1 lds" % (V_L16, T_C, q * 1024))

    a("s_cmp_ge_u32 s%d, 4" % S_WAVE)
    a("s_cbranch_scc1 L_f_ccomp")
    w_stage(2)
    w_stage(3)
    V_WD = 144
    V_WP = 32
    S_KQ = 50
    a("s_lshr_b32 s%d, s%d, 1" % (S_KQ, S_WAVE))
    a("s_lshl_b32 s%d, s%d, 2" % (T_A, T_NBO))
    a("s_add_u32 s%d, s%d, s%d" % (T_A, T_A, S_KQ))
    a("s_mul_i32 s%d, s%d, %d" % (T_A, T_A, 28 * 1024))
    a("s_add_u32 s%d, s%d, %d" % (T_A, T_A, WS_WD))
    a("s_add_u32 s%d, s%d, %d" % (T_B, T_A, 56 * 1024))
    a("v_xor_b32 v%d, 0x100, v%d" % (V_T, V_L16))
    a("s_mul_i32 s%d, s%d, %d" % (T_M, S_W3, 28 * 1024))
    a("v_add_u32 v%d, s%d, v%d" % (V_T + 1, T_M, V_L16))

    def wd_loads(i0, i1):
        for i in range(i0, i1):
            if i and i % 4 == 0:
                a("s_add_u32 s%d, s%d, 4096" % (T_A, T_A))
            a("buffer_load_dwordx4 %s, v%d, s[20:23], s%d offen offset:%d sc1" % (vr(V_WD + 4 * i), V_LX, T_A, (i % 4) * 1024))

    log = ["W0"] * 7 + ["W1"] * 7 + ["W2"] * 7 + ["W3"] * 7
    wd_plan = {5: 8, 6: 12, 7: 8}
    nwd = 0
    for j in range(8):
        last = max(i for i, t in enumerate(log) if t in ("W%d" % j, "h%d" % j))
        n = len(log) - 1 - last
        assert n <= 63
        a("s_waitcnt vmcnt(%d)" % n)
        a("s_barrier")
        if j >= 1:
            if j + 2 <= 7:
                h_stage(j + 2)
                log += ["h%d" % (j + 2)] * 4
            if j + 3 <= 7:
                w_stage(j + 3)
                log += ["W%d" % (j + 3)] * 7
        k = wd_plan.get(j, 0)
        wd_loads(nwd, nwd + k)
        log += ["d"] * k
        nwd += k
    assert nwd == 28
    a("s_mov_b32 m0, s%d" % T_M)
    a("s_barrier")
    for i in range(28):
        if i and i % 4 == 0:
            a("s_add_u32 m0, m0, 4096")
            a("s_add_u32 s%d, s%d, 4096" % (T_B, T_B))
        a("buffer_load_dwordx4 v%d, s[20:23], s%d offen offset:%d sc1 lds" % (V_T, T_B, (i % 4) * 1024))
    a("s_waitcnt vmcnt(0)")
    a("s_barrier")
    a("s_branch L_f_d1")
    a.label("L_f_ccomp")
    V_AW, V_AH = 12, 13
    V_ST = 20
    V_CSL = 52
    V_H = [80, 84]
    V_W = [88, 116]
    V_ACC = [144 + 16 * b for b in range(7)]
    V_TMP = 88
    S_TB = 49
    a("s_lshl_b32 s%d, s%d, 2" % (S_TB, T_RB128))
    a("s_add_u32 s%d, s%d, s%d" % (S_TB, S_TB, S_W3))
    a("v_mov_b32 v%d, v%d" % (V_AW, V_L16))
    a("s_lshl_b32 s%d, s%d, 12" % (T_A, S_W3))
    a("s_add_u32 s%d, s%d, %d" % (T_A, T_A, HR))
    a("v_add_u32 v%d, s%d, v%d" % (V_AH, T_A, V_L16))
    a("v_and_b32 v%d, 31, v%d" % (V_T, V_LANE))
    a("v_lshlrev_b32 v%d, 4, v%d" % (V_T, V_T))
    a("v_lshrrev_b32 v%d, 5, v%d" % (V_T + 1, V_LANE))
    a("v_lshl_add_u32 v%d, v%d, 12, v%d" % (V_T, V_T + 1, V_T))
    a("s_mul_i32 s%d, s%d, 7168" % (T_C, T_CGF))
    a("s_add_u32 s%d, s%d, %d" % (T_C, T_C, WS_CS))
    a("s_add_u32 s%d, s%d, 4096" % (T_D, T_C))
    for blk in range(7):
        a("buffer_load_dwordx4 %s, v%d, s[20:23], s%d offen offset:%d sc1" % (vr(V_CSL + 4 * blk), V_L16, T_C if blk < 4 else T_D, (blk % 4) * 1024))
    a("s_lshl_b32 s%d, s%d, 7" % (T_B, S_TB))
    a("s_add_u32 s%d, s%d, %d" % (T_B, T_B, FL_B))
    poll(a, "fb", T_B, 32, V_L4, 9)
    for st in range(3):
        h_stage(st)
    a("s_lshl_b32 s%d, s%d, 13" % (T_A, S_TB))
    a("s_add_u32 s%d, s%d, %d" % (T_A, T_A, WS_ST))
    cur_base = [0]
    lds = Lds(a)

    def reads(P):
        st, pos = P // 4, P % 4
        slot = st % 4
        base, imm = (slot // 2) * 2 * SLOT, (slot % 2) * SLOT
        out = []
        b = P % 2
        out.append(("ds_read_b128 %s, v%d offset:%d" % (vr(V_H[b]), V_AH, (st % 3) * 16384 + pos * 1024), ("h", P)))
        if base != cur_base[0]:
            d = base - cur_base[0]
            out.append(("v_add_u32 v%d, %d, v%d" % (V_AW, d, V_AW) if d > 0 else "v_subrev_u32 v%d, %d, v%d" % (V_AW, -d, V_AW), None))
            cur_base[0] = base
        for blk in range(7):
            out.append(("ds_read_b128 %s, v%d offset:%d" % (vr(V_W[b] + 4 * blk), V_AW, imm + (pos * 7 + blk) * 1024), ("w", P, blk)))
        return out

    side = {}
    g = []
    for i in range(8):
        g.append("buffer_load_dwordx4 %s, v%d, s[20:23], s%d offen offset:%d sc1" % (vr(V_ST + 4 * i), V_T, T_A, i * 512))
    side[0], side[1] = g[:4], g[4:]
    sa = Asm()
    S1, S2 = V_T + 1, V_T + 2
    V_MU, V_RS = V_T + 2, V_T + 4
    V_VAR, V_C1, V_C2 = 6, 8, 10
    sa("s_waitcnt vmcnt(0)")
    sa("v_add_f32 v%d, v%d, v%d" % (S1, V_ST, V_ST + 2))
    sa("v_add_f32 v%d, v%d, v%d" % (S2, V_ST + 1, V_ST + 3))
    for i in range(2, 16):
        sa("v_add_f32 v%d, v%d, v%d" % (S1, S1, V_ST + 2 * i))
        sa("v_add_f32 v%d, v%d, v%d" % (S2, S2, V_ST + 2 * i + 1))
    sum_halves(sa, S1, V_T + 4)
    sum_halves(sa, S2, V_T + 4)
    sa("v_mul_f32 v%d, 0x%x, v%d" % (V_VAR, f32bits(1.0 / 512), S2))
    sa("v_mul_f32 v%d, 0x%x, v%d" % (V_MU, f32bits(1.0 / 512), S1))
    sa("v_fma_f32 v%d, -v%d, v%d, v%d" % (V_VAR, V_MU, V_MU, V_VAR))
    sa("v_max_f32 v%d, 0, v%d" % (V_VAR, V_VAR))
    sa("v_add_f32 v%d, 0x%x, v%d" % (V_VAR, f32bits(1e-5), V_VAR))
    sa("v_rsq_f32 v%d, v%d" % (V_RS, V_VAR))
    sa("v_sub_f32 v%d, 0, v%d" % (V_MU, V_MU))
    VB = V_ST
    split_hi_lo_B(sa, V_MU, VB, V_T, S_MASK)
    c1 = -2.0 * math.sqrt(2.0 / math.pi) * math.log2(math.e)
    sa("v_mul_f32 v%d, 0x%x, v%d" % (V_C1, f32bits(c1), V_RS))
    sa("v_mul_f32 v%d, v%d, v%d" % (V_C2, V_RS, V_RS))
    sa("v_mul_f32 v%d, v%d, v%d" % (V_C2, V_C2, V_C1))
    sa("v_mul_f32 v%d, 0x%x, v%d" % (V_C2, f32bits(0.044715), V_C2))
    VA = V_CSL
    for blk in range(7):
        c = V_CSL + 4 * blk
        a("v_add_f32 v%d, v%d, v%d" % (c, c, c + 1))
        a("v_add_f32 v%d, v%d, v%d" % (c + 2, c + 2, c + 3))
        a("v_add_f32 v%d, v%d, v%d" % (V_T + 2, c, c + 2))
        split_hi_lo_A(a, V_T + 2, c, V_T + 1, S_MASK)
    sl = [x.strip() for x in sa.L]
    per = 10
    for k in range((len(sl) + per - 1) // per):
        side[10 + k] = sl[per * k:per * (k + 1)]
    P_R1 = 10 + (len(sl) + per - 1) // per + 1
    assert P_R1 <= 30
    side[30] = ["s_mul_i32 s%d, s%d, 112" % (T_A, S_TB), "s_mul_i32 s%d, s%d, 7" % (T_B, T_CGF), "s_add_u32 s%d, s%d, s%d" % (T_A, T_A, T_B),
                "s_lshl_b32 s%d, s%d, 10" % (T_A, T_A), "s_add_u32 s%d, s%d, %d" % (T_A, T_A, WS_A), "s_add_u32 s%d, s%d, 4096" % (T_B, T_A)]
    a("s_waitcnt vmcnt(8)")
    a("s_barrier")
    a.ts("k2")
    for t, tag in reads(0):
        lds.op(t, tag) if tag else a(t)
    for P in range(32):
        st, pos = P // 4, P % 4
        b = P % 2
        rd = reads(P + 1) if P < 31 else []
        sd = list(side.get(P, []))
        bar_at = 3 if (pos == 3 and P < 31) else -1
        first_rd = bar_at if bar_at >= 0 else 0
        for blk in range(7):
            if blk == bar_at:
                lds.drain()
                if st == 0:
                    a("s_waitcnt vmcnt(12)")
                if st == 1:
                    a("s_waitcnt vmcnt(8)")
                a("s_barrier")
            lds.need(("h", P), ("w", P, blk))
            a("v_mfma_f32_32x32x16_bf16 %s, %s, %s, %s" % (vr(V_ACC[blk], 16), vr(V_W[b] + 4 * blk), vr(V_H[b]), "0" if P == 0 else vr(V_ACC[blk], 16)))
            if blk >= first_rd:
                nrd = 3 if bar_at >= 0 else 2
                for _ in range(nrd):
                    if rd:
                        t, tag = rd.pop(0)
                        lds.op(t, tag) if tag else a(t)
            for _ in range(2):
                if sd:
                    a(sd.pop(0))
        assert not rd and not sd
        if P == 14 and "c" in WBL2:
            a("s_cmp_lg_u32 s%d, 7" % S_WB)
            a("s_cbranch_scc1 L_f_nowbc")
            a("buffer_wbl2 sc1")
            a.label("L_f_nowbc")
        if P == P_R1:
            for blk in range(7):
                a("v_mfma_f32_32x32x16_bf16 %s, %s, %s, %s" % (vr(V_ACC[blk], 16), vr(VA + 4 * blk), vr(VB), vr(V_ACC[blk], 16)))
    a.ts("k2")
    a("s_barrier")
    a("s_nop 4")
    bc = lambda r: "v[%d:%d]" % (r, r + 1)
    for blk in range(7):
        G = V_ACC[blk]
        Uu = G + 8
        T = V_TMP + 8 * (blk % 2)
        for i in range(0, 8, 2):
            a("v_pk_mul_f32 %s, %s, %s" % (bc(T + i), bc(G + i), bc(G + i)))
        for i in range(0, 8, 2):
            a("v_pk_fma_f32 %s, %s, %s, %s op_sel_hi:[1,0,0]" % (bc(T + i), bc(T + i), bc(V_C2), bc(V_C1)))
        for i in range(0, 8, 2):
            a("v_pk_mul_f32 %s, %s, %s" % (bc(T + i), bc(T + i), bc(G + i)))
        for i in range(8):
            a("v_exp_f32 v%d, v%d" % (T + i, T + i))
        for i in range(0, 8, 2):
            a("v_pk_mul_f32 %s, %s, %s" % (bc(G + i), bc(G + i), bc(Uu + i)))
        for i in range(0, 8, 2):
            a("v_pk_fma_f32 %s, %s, %s, %s op_sel_hi:[1,0,0]" % (bc(T + i), bc(T + i), bc(V_VAR), bc(V_VAR)))
        for i in range(8):
            a("v_rcp_f32 v%d, v%d" % (T + i, T + i))
        a("s_nop 0")
        for i in range(0, 8, 2):
            a("v_pk_mul_f32 %s, %s, %s" % (bc(G + i), bc(G + i), bc(T + i)))
        o = V_TMP + 16 + 4 * blk
        for i in range(4):
            a("v_cvt_pk_bf16_f32 v%d, v%d, v%d" % (o + i, G + 2 * i, G + 2 * i + 1))
    hstore(a, "act", ["buffer_store_dwordx4 %s, v%d, s[20:23], s%d offen offset:%d" % (vr(V_TMP + 16 + 4 * blk), V_L16, T_A if blk < 4 else T_B, (blk % 4) * 1024) for blk in range(7)])
    a.ts("k2")
    a("s_lshl_b32 s%d, s%d, 4" % (T_B, S_TB))
    a("s_add_u32 s%d, s%d, s%d" % (T_B, T_B, T_CGF))
    a("s_lshl_b32 s%d, s%d, 2" % (T_B, T_B))
    a("s_add_u32 s%d, s%d, %d" % (T_B, T_B, FL_C))
    a("s_lshr_b32 s%d, s%d, 1" % (S_KQ, S_WAVE))
    a("s_mul_i32 s%d, s%d, %d" % (T_M, S_W3, 28 * 1024))
    a("v_add_u32 v%d, s%d, v%d" % (V_T + 2, T_M, V_L16))
    a("s_waitcnt vmcnt(0)")
    set_flag(a, T_B, V_T, "fc")
    a("s_barrier")
    for i in range(28):
        a("ds_read_b128 %s, v%d offset:%d" % (vr(V_WD + 4 * i), V_T + 2, i * 1024))
        if i % 8 == 7:
            a("s_waitcnt lgkmcnt(4)")
    a("s_waitcnt lgkmcnt(0)")
    a.label("L_f_d1")
    V_AA = [12, 13]
    V_AF = [[32 + 32 * b + 4 * i for i in range(8)] for b in range(2)]
    V_AD = [96, 112]
    S_SA, S_M0A = 45, 46
    a("s_and_b32 s%d, s%d, 1" % (T_A, S_WAVE))
    a("s_lshl_b32 s%d, s%d, 1" % (T_B, T_RB64))
    a("s_add_u32 s%d, s%d, s%d" % (T_A, T_A, T_B))
    a("s_lshl_b32 s%d, s%d, 2" % (T_A, T_A))
    a("s_add_u32 s%d, s%d, s%d" % (T_A, T_A, S_KQ))
    a("s_mul_i32 s%d, s%d, %d" % (S_SA, T_A, 28 * 1024))
    a("s_add_u32 s%d, s%d, %d" % (S_SA, S_SA, WS_A))
    a("s_lshl_b32 s%d, s%d, 12" % (S_M0A, S_WAVE))
    for ai in range(2):
        a("s_and_b32 s%d, s%d, 1" % (T_A, S_KQ))
        a("s_xor_b32 s%d, s%d, %d" % (T_A, T_A, ai))
        a("s_lshl_b32 s%d, s%d, 1" % (T_B, S_KQ))
        a("s_add_u32 s%d, s%d, s%d" % (T_A, T_A, T_B))
        a("s_lshl_b32 s%d, s%d, 12" % (T_A, T_A))
        a("v_add_u32 v%d, s%d, v%d" % (V_AA[ai], T_A, V_L16))

    def a_stage(j):
        out = ["s_add_u32 m0, s%d, %d" % (S_M0A, (j % 5) * 32768), "s_add_u32 s%d, s%d, %d" % (T_C, S_SA, j * 4096)]
        for q in range(4):
            out.append("buffer_load_dwordx4 v%d, s[20:23], s%d offen offset:%d%s lds" % (V_L16, T_C, q * 1024, LSC))
        return out

    a("s_cmp_lg_u32 s%d, 0" % S_WAVE)
    a("s_cbranch_scc1 L_f_d2")
    a("s_lshl_b32 s%d, s%d, 7" % (T_A, T_RB64))
    a("s_add_u32 s%d, s%d, %d" % (T_A, T_A, FL_C))
    poll(a, "fc", T_A, 32, V_L4, 9)
    a.label("L_f_d2")
    a("s_barrier")
    a.ts("k2")
    a.ts("kd_")
    DD = int(os.environ.get('DD', 2))
    for l in a_stage(0):
        a(l)
    a("s_barrier")
    if "d" in WBL2:
        a("s_lshl_b32 s%d, s%d, 3" % (T_A, S_MEM))
        a("s_add_u32 s%d, s%d, s%d" % (T_A, T_A, S_WAVE))
        a("s_cmp_lg_u32 s%d, 5" % T_A)
        a("s_cbranch_scc1 L_f_nowb2")
        a("buffer_wbl2 sc1")
        a.label("L_f_nowb2")
    for jj in range(1, DD):
        for l in a_stage(jj):
            a(l)
    cb = 0

    def d_mfmas(j):
        F = V_AF[j % 2]
        return ["v_mfma_f32_32x32x16_bf16 %s, %s, %s, %s" % (vr(V_AD[ai], 16), vr(V_WD + 4 * (4 * j + q)), vr(F[q * 2 + ai]), "0" if (j == 0 and q == 0) else vr(V_AD[ai], 16))
                for q in range(4) for ai in range(2)]

    for j in range(7):
        slot = j % 5
        base, imm = (slot // 2) * 65536, (slot % 2) * 32768
        if base != cb:
            d = base - cb
            for r in V_AA:
                a("v_add_u32 v%d, %d, v%d" % (r, d, r) if d > 0 else "v_subrev_u32 v%d, %d, v%d" % (r, -d, r))
            cb = base
        nw = 4 * (min(j + DD - 1, 6) - j)
        if "g" in WBL2 and j >= 5:
            a("s_cmp_lg_u32 s%d, 7" % S_WB)
            a("s_cbranch_scc1 L_f_wg%da" % j)
            a("s_waitcnt vmcnt(%d) lgkmcnt(0)" % (nw + 1))
            a("s_branch L_f_wg%db" % j)
            a.label("L_f_wg%da" % j)
            a("s_waitcnt vmcnt(%d) lgkmcnt(0)" % nw)
            a.label("L_f_wg%db" % j)
        else:
            a("s_waitcnt vmcnt(%d) lgkmcnt(0)" % nw)
        a("s_barrier")
        a.ts("kd_")
        if j == 6 and ("e" in WBL2 or "f" in WBL2):
            if "e" in WBL2:
                a("s_lshl_b32 s%d, s%d, 3" % (T_A, S_MEM))
                a("s_add_u32 s%d, s%d, s%d" % (T_A, T_A, S_WAVE))
                a("s_cmp_lg_u32 s%d, 7" % T_A)
            else:
                a("s_cmp_lg_u32 s%d, 7" % S_WAVE)
            a("s_cbranch_scc1 L_f_nowb3")
            a("buffer_wbl2 sc1")
            a.label("L_f_nowb3")
        F = V_AF[j % 2]
        stg = a_stage(j + DD) if j + DD <= 6 else []
        for l in stg[:3]:
            a(l)
        for q in range(4):
            for ai in range(2):
                a("ds_read_b128 %s, v%d offset:%d" % (vr(F[q * 2 + ai]), V_AA[ai], imm + q * 1024))
        rest = stg[3:]
        for k, m in enumerate(d_mfmas(j)):
            a("s_waitcnt lgkmcnt(%d)" % (7 - k))
            if DIAG != "dnomfma":
                a(m)
            if rest:
                a(rest.pop(0))
            if k == 4 and j == 4 and "g" in WBL2:
                assert not rest
                a("s_cmp_lg_u32 s%d, 7" % S_WB)
                a("s_cbranch_scc1 L_f_nowbg")
                a("buffer_wbl2 sc1")
                a.label("L_f_nowbg")
    a.ts("kd_")
    XD = 65536
    for x in range(1, 4):
        a("s_xor_b32 s%d, s%d, %d" % (T_A, S_WAVE, x << 1))
        a("s_mul_i32 s%d, s%d, 6144" % (T_A, T_A))
        a("s_add_u32 s%d, s%d, %d" % (T_A, T_A, XD + (x - 1) * 2048))
        a("v_add_u32 v%d, s%d, v%d" % (V_T + x, T_A, V_L16))
    a("s_mul_i32 s%d, s%d, 6144" % (T_A, S_WAVE))
    a("s_add_u32 s%d, s%d, %d" % (T_A, T_A, XD))
    a("v_add_u32 v%d, s%d, v%d" % (V_T, T_A, V_L16))
    src = {1: V_AD[1], 2: V_AD[0] + 8, 3: V_AD[1] + 8}
    for x in (2, 1, 3):
        for q in range(2):
            a("ds_write_b128 v%d, %s offset:%d" % (V_T + x, vr(src[x] + 4 * q), q * 1024))
    U = 32
    for d in range(4):
        a("v_lshlrev_b32 v%d, 16, v%d" % (U + 2 * d, V_HK + d))
        a("v_and_b32 v%d, s%d, v%d" % (U + 2 * d + 1, S_MASK, V_HK + d))
    for i in range(8):
        a("v_add_f32 v%d, v%d, v%d" % (V_AD[0] + i, V_AD[0] + i, U + i))
    srd(a, 12, 16, 2048 * 1024)
    a("v_and_b32 v%d, 31, v%d" % (V_T + 4, V_LANE))
    a("v_lshlrev_b32 v%d, 10, v%d" % (V_T + 4, V_T + 4))
    a("v_lshrrev_b32 v%d, 5, v%d" % (V_T + 5, V_LANE))
    a("v_lshl_add_u32 v%d, v%d, 3, v%d" % (V_T + 4, V_T + 5, V_T + 4))
    a("s_lshl_b32 s%d, s%d, 15" % (T_A, T_TBO))
    a("s_lshl_b32 s%d, s%d, 6" % (T_B, T_NBO))
    a("s_add_u32 s%d, s%d, s%d" % (T_A, T_A, T_B))
    a("s_lshl_b32 s%d, s%d, 5" % (T_B, T_HALF))
    a("s_add_u32 s%d, s%d, s%d" % (T_A, T_A, T_B))
    a("s_waitcnt lgkmcnt(0)")
    a("s_barrier")
    a.ts("kd_")
    R = 48
    for k in range(6):
        a("ds_read_b128 %s, v%d offset:%d" % (vr(R + 4 * k), V_T, k * 1024))
    for x in range(3):
        a("s_waitcnt lgkmcnt(%d)" % (4 - 2 * x))
        for i in range(8):
            a("v_add_f32 v%d, v%d, v%d" % (V_AD[0] + i, V_AD[0] + i, R + 8 * x + i))
    for i in range(4):
        a("v_cvt_pk_bf16_f32 v%d, v%d, v%d" % (U + i, V_AD[0] + 2 * i, V_AD[0] + 2 * i + 1))
    for q in range(2):
        a("buffer_store_dwordx2 %s, v%d, s[12:15], s%d offen offset:%d" % (vr(U + 2 * q, 2), V_T + 4, T_A, q * 16))
    a.ts_flush("k2", S_WAVE, V_T)
    a.ts_flush("kd_", S_WAVE, V_T)


FL_1 = WS_FL + 24576
P1_DIST = int(os.environ.get('P1_DIST', 3))
P1_ROT = int(os.environ.get('P1_ROT', 1))


def team_check(a, tag, vl4, vf, preissued=False):
    a("s_lshl_b32 s38, s%d, 5" % S_TEAM)
    a("s_mov_b32 s36, 0")
    if preissued:
        a("s_branch L_tc_%s_w" % tag)
    a.label("L_tc_%s" % tag)
    a("buffer_load_dword v%d, v%d, s[96:99], s38 offen sc1" % (vf, vl4))
    a.label("L_tc_%s_w" % tag)
    a("s_add_u32 s36, s36, 1")
    a("s_waitcnt vmcnt(0)")
    a("v_subrev_u32 v%d, 0x01010101, v%d" % (vf + 1, vf))
    a("v_not_b32 v%d, v%d" % (vf + 2, vf))
    a("v_and_b32 v%d, v%d, v%d" % (vf + 1, vf + 1, vf + 2))
    a("v_and_b32 v%d, 0x80808080, v%d" % (vf + 1, vf + 1))
    a("v_cmp_eq_u32 vcc, 0, v%d" % (vf + 1))
    a("s_cmp_gt_u32 s36, 0x40000")
    a("s_cbranch_scc1 L_tc_%s_d" % tag)
    a("s_and_b32 s37, vcc_lo, 0xff")
    a("s_cmp_lg_u32 s37, 0xff")
    a("s_cbranch_scc1 L_tc_%s" % tag)
    a.label("L_tc_%s_d" % tag)
    a("s_mul_i32 s37, s%d, 0x01010101" % S_XCC)
    a("v_cmp_eq_u32 vcc, s37, v%d" % vf)
    a("s_nop 3")
    a("s_or_b32 s%d, vcc_lo, 0xffffff00" % S_FAST)
    if not FASTPATH:
        a("s_and_b32 s%d, s%d, 0" % (S_FAST, S_FAST))


def phase1(a, E):
    S_WAVE, S_H, S_QB = E["S_WAVE"], E["S_H"], E["S_QB"]
    WB, WSL = 65536, 24576
    SCR = WB + 3 * WSL
    SCR_CS, SCR_RS, SCR_BF = SCR, SCR + 1536, SCR + 2048
    S_W3, S_MASK, S_T0, S_T1, S_KX, S_KW, S_SLOT, S_CNT, S_M0X, S_M0W, S_RD, S_SLC = 43, 44, 45, 46, 47, 48, 49, 50, 51, 52, 53, 54
    S_TBI, S_G, S_O0, S_O1, S_O2, S_O3, S_O4 = 55, 56, 57, 58, 59, 60, 61
    V_LANE, V_L16, V_T = 1, 2, 3
    V_DX, V_DW, V_AX, V_AW = 10, 14, 15, 19
    V_SEL, V_SQ = 24, 28
    V_X = [32, 36]
    V_W = [[40, 44, 48], [52, 56, 60]]
    V_ACC = [64, 80, 96]
    V_CS = [112, 116, 120]
    V_TMP = 124
    if INSTR == "kv_":
        a("v_mov_b32 v250, 0")
    a.tsv("15")
    a("s_and_b32 s%d, s%d, 3" % (S_W3, S_WAVE))
    a("s_mov_b32 s%d, 0xffff0000" % S_MASK)

    def x_addr(sbase, sxor):
        a("v_and_b32 v%d, 31, v%d" % (V_T, V_LANE))
        a("v_and_b32 v%d, 3, v%d" % (V_T + 1, V_LANE))
        a("v_lshrrev_b32 v%d, 2, v%d" % (V_T + 2, V_T))
        a("v_lshlrev_b32 v%d, 7, v%d" % (V_T + 2, V_T + 2))
        a("v_lshl_add_u32 v%d, v%d, 10, v%d" % (V_T + 2, V_T + 1, V_T + 2))
        a("v_add_u32 v%d, s%d, v%d" % (V_T + 2, sbase, V_T + 2))
        a("v_lshrrev_b32 v%d, 1, v%d" % (V_T + 3, V_T))
        a("v_and_b32 v%d, 4, v%d" % (V_T + 3, V_T + 3))
        a("v_or_b32 v%d, v%d, v%d" % (V_T + 3, V_T + 3, V_T + 1))
        a("v_lshrrev_b32 v%d, 5, v%d" % (V_T + 4, V_LANE))
        a("v_xor_b32 v%d, v%d, v%d" % (V_T + 3, V_T + 3, V_T + 4))
        if sxor is not None:
            a("v_xor_b32 v%d, s%d, v%d" % (V_T + 3, sxor, V_T + 3))
        for ks in range(4):
            a("v_xor_b32 v%d, %d, v%d" % (V_T + 5, 2 * ks, V_T + 3))
            a("v_lshl_add_u32 v%d, v%d, 4, v%d" % (V_AX + ks, V_T + 5, V_T + 2))

    a("v_lshrrev_b32 v%d, 3, v%d" % (V_T, V_LANE))
    a("v_and_b32 v%d, 7, v%d" % (V_T + 1, V_LANE))
    a("v_lshrrev_b32 v%d, 2, v%d" % (V_T + 2, V_LANE))
    a("v_and_b32 v%d, 4, v%d" % (V_T + 2, V_T + 2))
    a("v_xor_b32 v%d, v%d, v%d" % (V_T + 1, V_T + 1, V_T + 2))
    a("v_mul_u32_u24 v%d, 3072, v%d" % (V_T + 3, V_T))
    a("v_lshl_add_u32 v%d, v%d, 4, v%d" % (V_DW, V_T + 1, V_T + 3))
    a("v_lshlrev_b32 v%d, 12, v%d" % (V_T, V_T))
    S_HI, S_TBH = 49, 50
    a("s_and_b32 s%d, s%d, 2" % (S_HI, S_W3))
    a("v_xor_b32 v%d, s%d, v%d" % (V_T + 1, S_HI, V_T + 1))
    for q in range(2):
        a("v_xor_b32 v%d, %d, v%d" % (V_T + 3, q, V_T + 1))
        a("v_lshl_add_u32 v%d, v%d, 4, v%d" % (V_DX + q, V_T + 3, V_T))
    a("s_and_b32 s%d, s%d, 1" % (S_TBH, S_W3))
    a("s_lshl_b32 s53, s%d, 12" % S_TBH)
    a("s_lshl_b32 s%d, s%d, 10" % (S_T0, S_HI))
    a("s_add_u32 s%d, s53, s%d" % (S_M0X, S_T0))
    a("s_lshl_b32 s%d, s%d, 1" % (S_T1, S_MEM))
    a("s_add_u32 s%d, s%d, s%d" % (S_T1, S_T1, S_TBH))
    a("s_lshl_b32 s%d, s%d, 15" % (S_KX, S_T1))
    a("s_add_u32 s%d, s%d, s%d" % (S_KX, S_KX, S_T0))
    a("v_lshlrev_b32 v%d, 10, v%d" % (V_T, V_LANE))
    a("s_mul_i32 s%d, s%d, 48" % (S_T0, S_MEM))
    a("s_mul_i32 s%d, s%d, 12" % (S_T1, S_W3))
    a("s_add_u32 s%d, s%d, s%d" % (S_T0, S_T0, S_T1))
    a("s_lshl_b32 s%d, s%d, 10" % (S_T0, S_T0))
    a("s_lshl_b32 s%d, s%d, 7" % (S_T1, S_TEAM))
    a("s_add_u32 s%d, s%d, s%d" % (S_T0, S_T0, S_T1))
    a("s_mul_i32 s%d, s%d, %d" % (S_KW, S_W3, 16 * 3072))
    a("s_add_u32 s%d, s%d, s%d" % (S_KW, S_KW, S_T1))
    a("s_waitcnt lgkmcnt(0)")
    srd(a, 12, 10, 2048 * 1024)
    srd(a, 28, 100, 512 * 3072)

    def x_issue(st):
        a("s_add_u32 m0, s%d, %d" % (S_M0X, st * 8192))
        a("s_add_u32 s%d, s%d, %d" % (S_T1, S_KX, st * 128))
        for q in range(2):
            a("buffer_load_dwordx4 v%d, s[12:15], s%d offen offset:%d lds" % (V_DX + q, S_T1, q * 1024))

    def w_issue(st):
        a("s_add_u32 m0, s%d, %d" % (S_M0W, (st % 3) * WSL))
        a("s_add_u32 s%d, s%d, %d" % (S_T0, S_KW, st * 64 * 3072))
        for sx in range(3):
            a("buffer_load_dwordx4 v%d, s[28:31], s%d offen offset:%d lds" % (V_DW, S_T0, sx * 1024))
        a("s_add_u32 m0, m0, 3072")
        a("s_add_u32 s%d, s%d, %d" % (S_T0, S_T0, 8 * 3072))
        for sx in range(3):
            a("buffer_load_dwordx4 v%d, s[28:31], s%d offen offset:%d lds" % (V_DW, S_T0, sx * 1024))

    a("s_cmp_ge_u32 s%d, 4" % S_WAVE)
    a("s_cbranch_scc1 L_p1_comp")
    a("s_mov_b64 exec, 0xfff")
    a("buffer_load_dword v%d, v%d, s[28:31], s%d offen" % (V_T + 6, V_T, S_T0))
    a("s_mov_b64 exec, -1")
    a("s_mul_i32 s%d, s%d, 6144" % (S_M0W, S_W3))
    a("s_add_u32 s%d, s%d, %d" % (S_M0W, S_M0W, WB))
    log = ["p"]
    x_issue(0)
    x_issue(1)
    log += ["x0"] * 2 + ["x1"] * 2
    w_issue(0)
    log += ["w0"] * 6
    srd(a, 20, 8, WS_SIZE)
    a("s_mov_b32 s98, 256")
    a("s_mov_b32 s99, 0x00020000")
    LX = [64, 68]
    L_SX = 92
    a("s_lshl_b32 s54, s%d, 1" % S_HI)
    x_addr(53, 54)
    make_sel(a, V_LANE, V_SEL, V_T)
    for r in list(range(V_SQ, V_SQ + 4)) + list(range(L_SX, L_SX + 4)):
        a("v_mov_b32 v%d, 0" % r)
    w_issue(1)
    x_issue(4)
    log += ["w1"] * 6 + ["x4"] * 2
    for jj in range(8):
        last = max(k for k, t in enumerate(log) if t in ("w%d" % jj, "x%d" % jj))
        a("s_waitcnt vmcnt(%d)" % (len(log) - 1 - last))
        a.tsv("%d" % jj)
        a("s_barrier")
        for ks in range(2):
            a("ds_read_b128 %s, v%d offset:%d" % (vr(LX[ks]), V_AX + ks, jj * 8192))
        if jj + 2 <= 7:
            w_issue(jj + 2)
            log += ["w%d" % (jj + 2)] * 6
        if jj + 5 <= 7:
            x_issue(jj + 5)
            log += ["x%d" % (jj + 5)] * 2
        if jj == 5 and "q" in PRET:
            a("s_lshr_b32 s%d, s%d, 1" % (S_T0, S_W3))
            a("s_lshl_b32 s%d, s%d, 1" % (S_T1, S_MEM))
            a("s_add_u32 s%d, s%d, s%d" % (S_T0, S_T0, S_T1))
            a("s_lshl_b32 s%d, s%d, 10" % (S_T0, S_T0))
            a("s_lshl_b32 s%d, s%d, 1" % (S_T1, S_TEAM))
            a("s_add_u32 s%d, s%d, s%d" % (S_T1, S_T1, S_TBH))
            a("s_lshl_b32 s%d, s%d, 17" % (S_T1, S_T1))
            a("s_add_u32 s%d, s%d, s%d" % (S_T0, S_T0, S_T1))
            for k, off in enumerate((WS_K, WS_K + 65536, WS_V, WS_V + 65536, WS_Q, WS_Q + 65536)):
                a("s_add_u32 s%d, s%d, %d" % (S_T1, S_T0, off))
                a("buffer_load_dwordx4 %s, v%d, s[20:23], s%d offen sc1" % (vr(160 + 4 * k), V_L16, S_T1))
            log += ["q"] * 6
        for ks in range(2):
            a("s_waitcnt lgkmcnt(%d)" % (1 - ks))
            for d in range(4):
                a("v_lshlrev_b32 v%d, 16, v%d" % (V_TMP + 2 * d, LX[ks] + d))
                a("v_and_b32 v%d, s%d, v%d" % (V_TMP + 2 * d + 1, S_MASK, LX[ks] + d))
            for d in range(8):
                a("v_fmac_f32 v%d, v%d, v%d" % (V_SQ + d % 4, V_TMP + d, V_TMP + d))
        for ks in range(2):
            a("v_mfma_f32_16x16x32_bf16 %s, %s, %s, %s" % (vr(L_SX), vr(V_SEL), vr(LX[ks]), vr(L_SX)))
    a("s_nop 1")
    a("v_add_f32 v%d, v%d, v%d" % (V_SQ, V_SQ, V_SQ + 1))
    a("v_add_f32 v%d, v%d, v%d" % (V_SQ + 2, V_SQ + 2, V_SQ + 3))
    a("v_add_f32 v%d, v%d, v%d" % (V_SQ, V_SQ, V_SQ + 2))
    sum_halves(a, V_SQ, V_SQ + 1)
    a("v_mov_b32 v%d, v%d" % (V_SQ + 1, L_SX))
    SCR_PX = SCR + 4096
    a("s_lshl_b32 s%d, s%d, 9" % (S_T0, S_TBH))
    a("s_add_u32 s%d, s%d, %d" % (S_T0, S_T0, SCR_PX))
    a("v_lshl_add_u32 v%d, v%d, 3, s%d" % (V_T + 3, V_LANE, S_T0))
    a("s_cmp_lt_u32 s%d, 2" % S_WAVE)
    a("s_cbranch_scc1 L_p1_fin")
    a("ds_write_b64 v%d, %s" % (V_T + 3, vr(V_SQ, 2)))
    a("s_waitcnt lgkmcnt(0)")
    a("s_barrier")
    a("s_branch L_p1_hx")
    a.label("L_p1_fin")
    a("v_and_b32 v%d, 31, v%d" % (V_T, V_LANE))
    a("v_lshlrev_b32 v%d, 2, v%d" % (V_T, V_T))
    a("s_barrier")
    a("ds_read_b64 %s, v%d" % (vr(V_SQ + 2, 2), V_T + 3))
    a("s_lshl_b32 s%d, s%d, 7" % (S_T0, S_W3))
    a("s_add_u32 s%d, s%d, %d" % (S_T0, S_T0, SCR_RS))
    a("v_add_u32 v%d, s%d, v%d" % (V_T + 2, S_T0, V_T))
    a("s_lshl_b32 s%d, s%d, 9" % (S_T0, S_W3))
    a("s_add_u32 s%d, s%d, %d" % (S_T0, S_T0, SCR_BF))
    a("v_lshl_add_u32 v%d, v%d, 3, s%d" % (V_T + 3, V_LANE, S_T0))
    a("s_waitcnt lgkmcnt(0)")
    a("v_add_f32 v%d, v%d, v%d" % (V_SQ, V_SQ, V_SQ + 2))
    a("v_add_f32 v%d, v%d, v%d" % (V_SQ + 1, V_SQ + 1, V_SQ + 3))
    V_MU, V_RS = V_SQ + 2, V_SQ + 3
    a("v_mul_f32 v%d, 0x%x, v%d" % (V_MU, f32bits(1.0 / 512), V_SQ + 1))
    a("v_mul_f32 v%d, 0x%x, v%d" % (V_SQ, f32bits(1.0 / 512), V_SQ))
    a("v_fma_f32 v%d, -v%d, v%d, v%d" % (V_SQ, V_MU, V_MU, V_SQ))
    a("v_max_f32 v%d, 0, v%d" % (V_SQ, V_SQ))
    a("v_add_f32 v%d, 0x%x, v%d" % (V_SQ, f32bits(1e-5), V_SQ))
    a("v_rsq_f32 v%d, v%d" % (V_RS, V_SQ))
    a("v_sub_f32 v%d, 0, v%d" % (V_MU, V_MU))
    split_hi_lo_B(a, V_MU, LX[0], V_T + 4, S_MASK)
    a("ds_write_b32 v%d, v%d" % (V_T + 2, V_RS))
    a("ds_write_b64 v%d, %s" % (V_T + 3, vr(LX[0], 2)))
    a("s_waitcnt lgkmcnt(0)")
    a.label("L_p1_hx")
    a("s_barrier")
    team_check(a, "h", FV_L4, FV_F)
    a("s_cmp_lg_u32 s%d, 0" % S_WAVE)
    a("s_cbranch_scc1 L_p1_done")
    a("s_lshl_b32 s%d, s%d, 9" % (T_A, S_TEAM))
    a("s_bfe_u32 s%d, s%d, 0x10001" % (T_B, S_H))
    a("s_lshl_b32 s%d, s%d, 8" % (T_B, T_B))
    a("s_add_u32 s%d, s%d, s%d" % (T_A, T_A, T_B))
    a("s_add_u32 s%d, s%d, %d" % (T_A, T_A, FL_1))
    poll(a, "f1", T_A, 64, FV_L4, FV_F)
    a("s_branch L_p1_done")
    a.label("L_p1_comp")
    a("v_mov_b32 v200, v%d" % V_DX)
    a("v_mov_b32 v201, v%d" % (V_DX + 1))
    a("s_lshr_b32 s%d, s%d, 1" % (S_TBI, S_W3))
    a("s_and_b32 s%d, s%d, 1" % (S_G, S_W3))
    a("s_lshl_b32 s%d, s%d, 12" % (S_T0, S_TBI))
    a("s_lshl_b32 s%d, s%d, 1" % (S_T1, S_TBI))
    x_addr(S_T0, S_T1)
    a("v_bfe_u32 v%d, v%d, 2, 2" % (V_T, V_LANE))
    a("v_lshlrev_b32 v%d, 7, v%d" % (V_T + 1, V_T))
    a("v_lshrrev_b32 v%d, 1, v%d" % (V_T, V_T))
    a("v_xor_b32 v%d, s%d, v%d" % (V_T, S_G, V_T))
    a("v_lshl_add_u32 v%d, v%d, 6, v%d" % (V_T + 1, V_T, V_T + 1))
    a("v_bfe_u32 v%d, v%d, 4, 1" % (V_T, V_LANE))
    a("v_lshl_add_u32 v%d, v%d, 5, v%d" % (V_T + 1, V_T, V_T + 1))
    a("v_and_b32 v%d, 3, v%d" % (V_T, V_LANE))
    a("v_lshl_add_u32 v%d, v%d, 3, v%d" % (V_T + 1, V_T, V_T + 1))
    a("v_lshrrev_b32 v%d, 5, v%d" % (V_T + 2, V_LANE))
    a("v_mul_u32_u24 v%d, 3072, v%d" % (V_T, V_T + 2))
    a("v_add_u32 v%d, v%d, v%d" % (V_T + 1, V_T + 1, V_T))
    for p in range(2):
        a("s_xor_b32 s%d, s%d, %d" % (S_T0, S_TBI, p))
        a("s_mul_i32 s%d, s%d, 6144" % (S_T0, S_T0))
        a("s_add_u32 s%d, s%d, %d" % (S_T0, S_T0, WB))
        a("v_add_u32 v%d, s%d, v%d" % (V_AW + p, S_T0, V_T + 1))
    make_sel(a, V_LANE, V_SEL, V_T)
    V_ECW, V_ECS, V_ERS, V_ERV, V_EBF, V_OV = 10, 11, 12, 13, 14, 21
    a("v_and_b32 v%d, 31, v%d" % (V_T, V_LANE))
    a("v_lshlrev_b32 v%d, 2, v%d" % (V_T, V_T))
    a("s_mul_i32 s%d, s%d, 768" % (S_T0, S_G))
    a("s_add_u32 s%d, s%d, %d" % (S_T0, S_T0, SCR_CS))
    a("v_mul_u32_u24 v%d, 384, v%d" % (V_T + 3, V_T + 2))
    a("v_add3_u32 v%d, v%d, v%d, s%d" % (V_ECS, V_T + 3, V_T, S_T0))
    a("s_mul_i32 s%d, s%d, 384" % (S_T1, S_TBI))
    a("s_add_u32 s%d, s%d, s%d" % (S_T0, S_T0, S_T1))
    a("v_add_u32 v%d, s%d, v%d" % (V_ECW, S_T0, V_T))
    a("s_lshl_b32 s%d, s%d, 7" % (S_T0, S_TBI))
    a("s_add_u32 s%d, s%d, %d" % (S_T0, S_T0, SCR_RS))
    a("v_add_u32 v%d, s%d, v%d" % (V_ERS, S_T0, V_T))
    a("v_lshl_add_u32 v%d, v%d, 4, s%d" % (V_ERV, V_T + 2, S_T0))
    a("s_lshl_b32 s%d, s%d, 9" % (S_T0, S_TBI))
    a("s_add_u32 s%d, s%d, %d" % (S_T0, S_T0, SCR_BF))
    a("v_lshl_add_u32 v%d, v%d, 3, s%d" % (V_EBF, V_LANE, S_T0))
    a("v_bfe_u32 v%d, v%d, 4, 1" % (V_T + 1, V_LANE))
    a("v_lshlrev_b32 v%d, 16, v%d" % (V_T + 1, V_T + 1))
    a("v_lshl_add_u32 v%d, v%d, 8, v%d" % (V_T + 1, V_T + 2, V_T + 1))
    a("v_and_b32 v%d, 15, v%d" % (V_T + 2, V_LANE))
    a("v_lshl_add_u32 v%d, v%d, 4, v%d" % (V_OV, V_T + 2, V_T + 1))
    a("s_lshl_b32 s%d, s%d, 1" % (S_T0, S_MEM))
    a("s_add_u32 s%d, s%d, s%d" % (S_T0, S_T0, S_TBI))
    a("s_lshl_b32 s%d, s%d, 10" % (S_T0, S_T0))
    a("s_lshl_b32 s%d, s%d, 1" % (S_T1, S_TEAM))
    a("s_add_u32 s%d, s%d, s%d" % (S_T1, S_T1, S_G))
    a("s_lshl_b32 s%d, s%d, 17" % (S_T1, S_T1))
    a("s_add_u32 s%d, s%d, s%d" % (S_O0, S_T0, S_T1))
    a("s_add_u32 s%d, s%d, 65536" % (S_O1, S_O0))
    a("s_add_u32 s%d, s%d, %d" % (S_O2, S_O0, WS_K))
    a("s_add_u32 s%d, s%d, %d" % (S_O3, S_O1, WS_K))
    a("s_add_u32 s%d, s%d, %d" % (S_O4, S_O0, WS_V))
    VB = V_TMP
    VA = [V_TMP + 4, V_TMP + 8, V_TMP + 12]
    for r in (VB + 2, VB + 3):
        a("v_mov_b32 v%d, 0" % r)
    a("s_waitcnt lgkmcnt(0)")
    srd(a, 20, 8, WS_SIZE)
    a("s_mov_b32 s98, 256")
    a("s_mov_b32 s99, 0x00020000")
    pret = []
    if "t" in PRET:
        a("v_lshlrev_b32 v202, 20, v%d" % V_LANE)
        a("s_cmp_lg_u32 s%d, 5" % S_WAVE)
        a("s_cbranch_scc1 L_p1_t6")
        a("buffer_load_dword v203, v202, s[20:23], 0 offen")
        a.label("L_p1_t6")
        a("s_cmp_lg_u32 s%d, 6" % S_WAVE)
        a("s_cbranch_scc1 L_p1_t7")
        for k, (sp, nb) in enumerate(((16, 2048 * 1024), (4, 512 * 1024), (6, 1792 * 1024))):
            srd(a, 32, sp, nb)
            a("buffer_load_dword v%d, v202, s[32:35], 0 offen" % (203 + k))
        a.label("L_p1_t7")
        a("s_cmp_lg_u32 s%d, 7" % S_WAVE)
        a("s_cbranch_scc1 L_p1_t8")
        for k, (sp, nb) in enumerate(((24, 512 * 3584), (26, 512 * 3584))):
            srd(a, 32, sp, nb)
            a("buffer_load_dword v%d, v202, s[32:35], 0 offen" % (203 + k))
        a.label("L_p1_t8")
    V_DX_SAVE, V_DX = V_DX, 200
    x_issue(2)
    x_issue(3)
    V_DX = V_DX_SAVE
    a("s_cmp_lg_u32 s%d, 4" % S_WAVE)
    a("s_cbranch_scc1 L_p1_nz")
    Z = V_TMP + 20
    a("v_and_b32 v%d, 1, v%d" % (Z, V_LANE))
    a("v_bfe_u32 v%d, v%d, 1, 1" % (Z + 1, V_LANE))
    a("v_bfe_u32 v%d, v%d, 2, 1" % (Z + 2, V_LANE))
    a("v_bfe_u32 v%d, v%d, 1, 2" % (Z + 3, V_LANE))
    a("s_lshl_b32 s36, s%d, 10" % S_QB)
    a("s_lshl_b32 s37, s%d, 2" % S_H)
    a("s_add_u32 s36, s36, s37")
    a("v_lshl_add_u32 v%d, v%d, 8, s36" % (Z + 4, Z + 3))
    a("v_lshl_add_u32 v%d, v%d, 7, v%d" % (Z + 4, Z, Z + 4))
    a("s_and_b32 s36, s%d, 3" % S_MEM)
    a("s_lshl_b32 s37, s%d, 2" % S_TEAM)
    a("s_add_u32 s38, s36, s37")
    a("s_lshl_b32 s36, s38, 8")
    a("s_lshr_b32 s37, s%d, 2" % S_MEM)
    a("s_lshl_b32 s39, s37, 4")
    a("s_add_u32 s36, s36, s39")
    a("s_add_u32 s36, s36, %d" % (FL_B - WS_FL))
    a("v_lshl_add_u32 v%d, v%d, 7, s36" % (Z + 5, Z + 1))
    a("v_lshl_add_u32 v%d, v%d, 3, v%d" % (Z + 5, Z, Z + 5))
    a("v_lshl_add_u32 v%d, v%d, 2, v%d" % (Z + 5, Z + 2, Z + 5))
    a("s_lshr_b32 s36, s38, 1")
    a("s_lshl_b32 s36, s36, 8")
    a("s_lshl_b32 s37, s37, 1")
    a("s_and_b32 s39, s%d, 1" % S_MEM)
    a("s_add_u32 s37, s37, s39")
    a("s_lshl_b32 s37, s37, 2")
    a("s_add_u32 s36, s36, s37")
    a("s_add_u32 s36, s36, %d" % (FL_C - WS_FL))
    a("v_lshl_add_u32 v%d, v%d, 7, s36" % (Z + 6, Z + 1))
    a("v_lshl_add_u32 v%d, v%d, 6, v%d" % (Z + 6, Z, Z + 6))
    a("s_lshl_b32 s36, s2, 4")
    a("s_add_u32 s36, s36, %d" % (FL_P - WS_FL))
    a("v_and_b32 v%d, 3, v%d" % (Z + 7, V_LANE))
    a("v_lshl_add_u32 v%d, v%d, 2, s36" % (Z + 7, Z + 7))
    a("v_cmp_ne_u32 vcc, 0, v%d" % (Z + 2))
    a("s_lshl_b32 s36, s%d, 9" % S_TEAM)
    a("s_lshl_b32 s37, s%d, 3" % S_MEM)
    a("s_add_u32 s36, s36, s37")
    a("s_add_u32 s36, s36, %d" % (FL_1 - WS_FL))
    a("v_cndmask_b32 v%d, v%d, v%d, vcc" % (Z + 6, Z + 6, Z + 7))
    a("v_lshl_add_u32 v%d, v%d, 8, s36" % (Z + 7, Z))
    a("v_lshl_add_u32 v%d, v%d, 2, v%d" % (Z + 7, Z + 1, Z + 7))
    a("v_mov_b32 v%d, v%d" % (V_T, Z + 4))
    for k in range(1, 4):
        a("v_cmp_le_u32 vcc, %d, v%d" % (8 * k, V_LANE))
        a("s_nop 1")
        a("v_cndmask_b32 v%d, v%d, v%d, vcc" % (V_T, V_T, Z + 4 + k))
    a("v_mov_b32 v%d, 0" % (V_T + 1))
    a("s_mov_b32 s%d, %d" % (S_T0, WS_FL))
    a("s_mov_b64 exec, 0xffffffff")
    a("buffer_store_dword v%d, v%d, s[20:23], s%d offen sc1" % (V_T + 1, V_T, S_T0))
    a("s_mov_b64 exec, -1")
    a.label("L_p1_nz")
    cur_base = [0]

    lds = Lds(a)
    NB = 3
    V_X = [32, 36, 184]
    V_W = [[40, 44, 48], [52, 56, 60], [188, 192, 196]]

    def reads(P):
        st, pos = P // 4, P % 4
        out = []
        b = P % NB
        out.append(("ds_read_b128 %s, v%d offset:%d" % (vr(V_X[b]), V_AX + pos, st * 8192), ("x", P)))
        for sx in range(3):
            for rd in range(2):
                out.append(("ds_read_b64_tr_b16 %s, v%d offset:%d" % (vr(V_W[b][sx] + 2 * rd, 2), V_AW + (pos & 1), (st % 3) * WSL + (pos & 2) * 6144 + sx * 1024 + rd * 512), ("w", P, sx, rd)))
        return out

    def emit(items):
        for t, tag in items:
            lds.op(t, tag) if tag else a(t)

    a.tsv("0")
    a("s_barrier")
    a.ts("k2")
    a.ts("kp_")
    emit(reads(0))
    emit(reads(1))
    for P in range(32):
        st, pos = P // 4, P % 4
        b = P % NB
        if P == 11:
            a("s_cmp_lg_u32 s%d, 4" % S_WAVE)
            a("s_cbranch_scc1 L_p1_np")
            a("s_lshl_b32 s%d, s%d, 5" % (S_T0, S_TEAM))
            a("s_add_u32 s%d, s%d, s%d" % (S_T0, S_T0, S_MEM))
            a("v_mov_b32 v%d, 0" % (V_T + 1))
            a("v_mov_b32 v%d, s%d" % (V_T + 2, S_XCC))
            a("s_mov_b64 exec, 1")
            a("s_waitcnt vmcnt(0)")
            a("buffer_store_byte v%d, v%d, s[96:99], s%d offen sc1" % (V_T + 2, V_T + 1, S_T0))
            a("s_mov_b64 exec, -1")
            a.label("L_p1_np")
        X = vr(V_X[b])
        c = lambda r, n=16: ("0" if P == 0 else vr(r, n))
        m = []
        m.append(("v_mfma_f32_32x32x16_bf16 %s, %s, %s, %s" % (vr(V_ACC[0], 16), vr(V_W[b][0]), X, c(V_ACC[0])), [("x", P), ("w", P, 0, 1)]))
        m.append(("v_mfma_f32_32x32x16_bf16 %s, %s, %s, %s" % (vr(V_ACC[1], 16), vr(V_W[b][1]), X, c(V_ACC[1])), [("w", P, 1, 1)]))
        m.append(("v_mfma_f32_32x32x16_bf16 %s, %s, %s, %s" % (vr(V_ACC[2], 16), X, vr(V_W[b][2]), c(V_ACC[2])), [("w", P, 2, 1)]))
        if pos % 2 == 0:
            for sx in range(3):
                m.append(("v_mfma_f32_16x16x32_bf16 %s, %s, %s, %s" % (vr(V_CS[sx]), vr(V_SEL), vr(V_W[b][sx]), c(V_CS[sx], 4)), [("w", P, sx, 1)]))
        bar = pos == 2 and P + 2 < 32
        rd = None
        extra = []
        if P == 28:
            extra = [("s_lshl_b32 s38, s%d, 5" % S_TEAM, None), ("buffer_load_dword v%d, v%d, s[96:99], s38 offen sc1" % (FV_F, FV_L4), None)]
        if 4 <= P < 4 + len(pret):
            extra = [(pret[P - 4], None)]
        for k, (t, need) in enumerate(m):
            lds.need(*need)
            if DIAG != "nomfma":
                a(t)
            if k == 0:
                if bar:
                    lds.drain()
                    if st == 1:
                        a("s_cmp_lg_u32 s%d, 4" % S_WAVE)
                        a("s_cbranch_scc1 L_p1_w0")
                        a("s_waitcnt vmcnt(1)")
                        a("s_branch L_p1_w1")
                        a.label("L_p1_w0")
                        a("s_waitcnt vmcnt(0)")
                        a.label("L_p1_w1")
                    a.tsv("%d" % (st + 1))
                    a("s_barrier")
                    a.ts("kp_")
                if P == 30:
                    a("s_barrier")
                rd = (reads(P + 2) if P + 2 < 32 else []) + extra
            n = 4 if len(rd) > 8 else 3
            emit(rd[:n])
            rd = rd[n:]
        emit(rd)
    a("s_nop 3")
    for sx in range(3):
        a("ds_write_b32 v%d, v%d offset:%d" % (V_ECW, V_CS[sx], sx * 128))
    a.ts("k2")
    a("s_waitcnt lgkmcnt(0)")
    a("s_barrier")
    a.ts("kp_")
    VC = V_TMP + 16
    V_RS = V_TMP + 22
    V_RQ = V_TMP + 23
    VR = V_TMP + 24
    for sx in range(3):
        a("ds_read_b32 v%d, v%d offset:%d" % (VC + sx, V_ECS, sx * 128))
    a("ds_read_b64 %s, v%d" % (vr(VB, 2), V_EBF))
    a("ds_read_b32 v%d, v%d" % (V_RS, V_ERS))
    for q in range(4):
        a("ds_read_b128 %s, v%d offset:%d" % (vr(VR + 4 * q), V_ERV, q * 32))
    for sx in range(3):
        a("s_waitcnt lgkmcnt(%d)" % (8 - sx))
        split_hi_lo_A(a, VC + sx, VA[sx], V_T + 4, S_MASK)
    a("s_waitcnt lgkmcnt(4)")
    a("v_mul_f32 v%d, 0x%x, v%d" % (V_RQ, f32bits(0.25 * math.log2(math.e)), V_RS))
    a("v_mfma_f32_32x32x16_bf16 %s, %s, %s, %s" % (vr(V_ACC[0], 16), vr(VA[0]), vr(VB), vr(V_ACC[0], 16)))
    a("v_mfma_f32_32x32x16_bf16 %s, %s, %s, %s" % (vr(V_ACC[1], 16), vr(VA[1]), vr(VB), vr(V_ACC[1], 16)))
    a("v_mfma_f32_32x32x16_bf16 %s, %s, %s, %s" % (vr(V_ACC[2], 16), vr(VB), vr(VA[2]), vr(V_ACC[2], 16)))
    team_check(a, "c", FV_L4, FV_F, preissued=True)
    VO = V_X[0]
    k = 0
    stores = []
    for blk, sc, soffs in ((1, V_RS, (S_O2, S_O3)), (0, V_RQ, (S_O0, S_O1))):
        for half in range(2):
            o = VO + 4 * k
            k += 1
            for i in range(8):
                r = V_ACC[blk] + 8 * half + i
                a("v_mul_f32 v%d, v%d, v%d" % (r, sc, r))
            for i in range(4):
                r = V_ACC[blk] + 8 * half + 2 * i
                a("v_cvt_pk_bf16_f32 v%d, v%d, v%d" % (o + i, r, r + 1))
            stores.append("buffer_store_dwordx4 %s, v%d, s[20:23], s%d offen" % (vr(o), V_L16, soffs[half]))
        hstore(a, "p1%d" % blk, stores)
        stores = []
    a("s_waitcnt lgkmcnt(0)")
    for half in range(2):
        o = VO + 4 * k
        k += 1
        for i in range(8):
            r = V_ACC[2] + 8 * half + i
            a("v_mul_f32 v%d, v%d, v%d" % (r, VR + 8 * half + i, r))
        for i in range(4):
            r = V_ACC[2] + 8 * half + 2 * i
            a("v_cvt_pk_bf16_f32 v%d, v%d, v%d" % (o + i, r, r + 1))
        stores.append("buffer_store_dwordx4 %s, v%d, s[20:23], s%d offen offset:%d" % (vr(o), V_OV, S_O4, half * 512))
    hstore(a, "p1v", stores)
    a("s_lshl_b32 s%d, s%d, 9" % (T_A, S_TEAM))
    a("s_lshl_b32 s%d, s%d, 8" % (T_B, S_G))
    a("s_add_u32 s%d, s%d, s%d" % (T_A, T_A, T_B))
    a("s_lshl_b32 s%d, s%d, 1" % (T_B, S_MEM))
    a("s_add_u32 s%d, s%d, s%d" % (T_B, T_B, S_TBI))
    a("s_lshl_b32 s%d, s%d, 2" % (T_B, T_B))
    a("s_add_u32 s%d, s%d, s%d" % (T_A, T_A, T_B))
    a("s_add_u32 s%d, s%d, %d" % (T_A, T_A, FL_1))
    a("s_waitcnt vmcnt(0)")
    set_flag(a, T_A, V_T, "f1")
    a.ts_flush("kp_", S_WAVE, V_T)
    a.label("L_p1_done")
    a.tsv("9")
    a.tsv_flush(S_WAVE)


def gen_f(a):
    name = NAME + "_kernel"
    kernel_begin(a, name)
    S_WAVE, S_H, S_QB, S_T0, S_T1, S_T2, S_T3 = 40, 41, 42, 43, 44, 45, 46
    S_ITER, S_SYNC, S_PASS, S_NT = 47, 48, 49, 50
    S_TASK, S_STG, S_DST0, S_DST1, S_TYPE = 51, 52, 53, 54, 55
    S_VMASK = 56
    S_CS = 58
    S_KB, S_W1K, S_CH = 59, 60, 61
    S_PE, S_PO, S_PS = 36, 37, 38
    V_LANE, V_L16, V_T = 1, 2, 3
    V_KA, V_VA = 10, 11
    V_Q = 12
    V_K = [16, 20]
    V_V = [24, 32]
    V_P = 40
    V_CM = 48
    V_S = [64, 80]
    V_O = 96
    V_MAX = 112
    V_PK = 113
    V_PD = 114
    V_SEL = 116
    V_PCS = [120, 124]
    STG = 131072
    a("s_cmp_ge_u32 s2, 256")
    a("s_cbranch_scc1 L_f_end")
    a.ts("k2")
    a.ts("kp_")
    pass
    a("s_load_dwordx2 s[8:9], s[0:1], %d" % ARG_WS)
    a("s_load_dwordx2 s[4:5], s[0:1], %d" % ARG_WO)
    a("s_load_dwordx4 s[24:27], s[0:1], %d" % ARG_WG)
    a("s_load_dwordx2 s[6:7], s[0:1], %d" % ARG_WD)
    a("s_load_dwordx2 s[10:11], s[0:1], %d" % ARG_X)
    a("s_load_dwordx2 s[16:17], s[0:1], %d" % ARG_OUT)
    a("s_load_dwordx2 s[100:101], s[0:1], %d" % ARG_WQKV)
    a("s_load_dwordx2 s[96:97], s[0:1], %d" % ARG_DBG)
    a("v_lshrrev_b32 v%d, 6, v0" % V_T)
    a("v_and_b32 v%d, 63, v0" % V_LANE)
    a("v_readfirstlane_b32 s%d, v%d" % (S_WAVE, V_T))
    a("v_lshlrev_b32 v%d, 4, v%d" % (V_L16, V_LANE))
    a("s_lshr_b32 s%d, s2, 3" % S_MEM)
    a("s_and_b32 s%d, s2, 7" % S_TEAM)
    if AMAP:
        a("s_lshr_b32 s%d, s2, 3" % S_H)
        a("s_and_b32 s%d, s2, 7" % S_QB)
    else:
        a("s_and_b32 s%d, s2, 7" % S_H)
        a("s_lshl_b32 s%d, s%d, 2" % (S_H, S_H))
        a("s_lshr_b32 s%d, s2, 6" % S_T0)
        a("s_add_u32 s%d, s%d, s%d" % (S_H, S_H, S_T0))
        a("s_lshr_b32 s%d, s2, 3" % S_QB)
        a("s_and_b32 s%d, s%d, 7" % (S_QB, S_QB))
    a("s_lshr_b32 s%d, s%d, 2" % (S_T0, S_WAVE))
    a("s_lshl_b32 s%d, s%d, 8" % (S_T0, S_T0))
    a("v_xor_b32 v%d, s%d, v%d" % (FV_LX, S_T0, V_L16))
    a("v_lshlrev_b32 v%d, 2, v%d" % (FV_L4, V_LANE))
    a("v_mov_b32 v%d, 0" % (FV_F + 3))
    a("v_lshlrev_b32 v%d, 3, v%d" % (FV_L8, V_LANE))
    a("s_getreg_b32 s%d, hwreg(HW_REG_XCC_ID)" % S_XCC)
    a("s_and_b32 s%d, s%d, 15" % (S_XCC, S_XCC))
    a("s_add_u32 s%d, s%d, 1" % (S_XCC, S_XCC))
    phase1(a, locals())
    a("s_lshl_b32 s%d, s%d, 16" % (S_KB, S_H))
    a("s_lshl_b32 s%d, s%d, 10" % (S_W1K, S_WAVE))
    a("s_add_u32 s%d, s%d, s%d" % (S_KB, S_KB, S_W1K))
    a("s_lshl_b32 s%d, s%d, 13" % (S_CH, S_QB))
    a("s_add_u32 s%d, s%d, s%d" % (S_T3, S_KB, S_CH))
    a("s_add_u32 s%d, s%d, %d" % (S_KB, S_KB, WS_K))
    if not K2_ROT:
        a("s_mov_b32 s%d, 0" % S_CH)
    a("s_mov_b32 s39, s%d" % S_T3)

    def kv_dma(c):
        return [["s_add_u32 s%d, s%d, s%d" % (S_T3, S_KB, S_CH),
                 "s_add_u32 m0, s%d, %d" % (S_W1K, c * 8192),
                 "s_add_u32 s%d, s%d, 8192" % (S_CH, S_CH),
                 "buffer_load_dwordx4 v%d, s[20:23], s%d offen sc1 lds" % (V_L16, S_T3)],
                ["s_add_u32 s%d, s%d, %d" % (S_T3, S_T3, WS_V - WS_K),
                 "s_add_u32 m0, s%d, %d" % (S_W1K, 65536 + c * 8192),
                 "s_and_b32 s%d, s%d, 0xffff" % (S_CH, S_CH),
                 "buffer_load_dwordx4 v%d, s[20:23], s%d offen sc1 lds" % (V_L16, S_T3)]]

    a("s_mov_b32 s%d, 0" % S_TYPE)
    a("s_cmp_ge_u32 s%d, 4" % S_WAVE)
    a("s_cbranch_scc1 L_f_nopack")
    a("s_lshl_b32 s%d, s2, 2" % S_TASK)
    a("s_add_u32 s%d, s%d, s%d" % (S_TASK, S_TASK, S_WAVE))
    a("s_cmp_ge_u32 s%d, 736" % S_TASK)
    a("s_cbranch_scc1 L_f_nopack")
    a("s_lshl_b32 s%d, s%d, 13" % (S_STG, S_WAVE))
    a("s_add_u32 s%d, s%d, %d" % (S_STG, S_STG, STG))
    a("v_lshrrev_b32 v%d, 2, v%d" % (V_T, V_LANE))
    a("v_and_b32 v%d, 3, v%d" % (V_T + 1, V_LANE))
    a("s_cmp_ge_u32 s%d, 448" % S_TASK)
    a("s_cbranch_scc1 L_f_packn")
    a("s_mov_b32 s%d, 1" % S_TYPE)
    srd(a, 28, 24, 512 * 3584)
    srd(a, 32, 26, 512 * 3584)
    a("v_mul_u32_u24 v%d, 3584, v%d" % (V_T, V_T))
    a("v_lshl_add_u32 v%d, v%d, 4, v%d" % (V_PD, V_T + 1, V_T))
    a("s_and_b32 s%d, s%d, 7" % (S_T0, S_TASK))
    a("s_lshr_b32 s%d, s%d, 3" % (S_T1, S_TASK))
    a("s_mul_i32 s%d, s%d, %d" % (S_PE, S_T0, 64 * 3584))
    a("s_lshl_b32 s%d, s%d, 6" % (S_T2, S_T1))
    a("s_add_u32 s%d, s%d, s%d" % (S_PE, S_PE, S_T2))
    a("s_mov_b32 s%d, s%d" % (S_PO, S_PE))
    a("s_mov_b32 s%d, %d" % (S_PS, 16 * 3584))
    for hb, sd in ((0, S_DST0), (1, S_DST1)):
        a("s_lshl_b32 s%d, s%d, 1" % (S_T2, S_T1))
        if hb:
            a("s_add_u32 s%d, s%d, 1" % (S_T2, S_T2))
        a("s_mul_i32 s%d, s%d, 9363" % (S_CS, S_T2))
        a("s_lshr_b32 s%d, s%d, 16" % (S_CS, S_CS))
        a("s_mul_i32 s%d, s%d, 7" % (sd, S_CS))
        a("s_sub_u32 s%d, s%d, s%d" % (sd, S_T2, sd))
        a("s_mul_i32 s%d, s%d, %d" % (S_CS, S_CS, 32 * 7))
        a("s_add_u32 s%d, s%d, s%d" % (sd, sd, S_CS))
        a("s_mul_i32 s%d, s%d, 28" % (S_CS, S_T0))
        a("s_add_u32 s%d, s%d, s%d" % (sd, sd, S_CS))
        a("s_lshl_b32 s%d, s%d, 10" % (sd, sd))
        a("s_add_u32 s%d, s%d, %d" % (sd, sd, WS_GU))
    a("s_lshl_b32 s%d, s%d, 11" % (S_CS, S_T1))
    a("s_lshr_b32 s%d, s%d, 2" % (S_T2, S_T0))
    a("s_lshl_b32 s%d, s%d, 9" % (S_T2, S_T2))
    a("s_add_u32 s%d, s%d, s%d" % (S_CS, S_CS, S_T2))
    a("s_and_b32 s%d, s%d, 3" % (S_T2, S_T0))
    a("s_lshl_b32 s%d, s%d, 2" % (S_T2, S_T2))
    a("s_add_u32 s%d, s%d, s%d" % (S_CS, S_CS, S_T2))
    a("s_add_u32 s%d, s%d, %d" % (S_CS, S_CS, WS_CS))
    a("s_branch L_f_nopack")
    a.label("L_f_packn")
    a("s_mov_b32 s%d, 2" % S_TYPE)
    a("v_lshlrev_b32 v%d, 10, v%d" % (V_T, V_T))
    a("v_lshl_add_u32 v%d, v%d, 4, v%d" % (V_PD, V_T + 1, V_T))
    a("s_cmp_ge_u32 s%d, 512" % S_TASK)
    a("s_cbranch_scc1 L_f_packd")
    srd(a, 28, 4, 512 * 1024)
    srd(a, 32, 4, 512 * 1024)
    a("s_sub_u32 s%d, s%d, 448" % (S_T0, S_TASK))
    a("s_lshr_b32 s%d, s%d, 2" % (S_T1, S_T0))
    a("s_and_b32 s%d, s%d, 3" % (S_T0, S_T0))
    a("s_lshl_b32 s%d, s%d, 15" % (S_DST0, S_T1))
    a("s_add_u32 s%d, s%d, %d" % (S_DST0, S_DST0, WS_WO))
    a("s_branch L_f_packc")
    a.label("L_f_packd")
    srd(a, 28, 6, 1792 * 1024)
    srd(a, 32, 6, 1792 * 1024)
    a("s_sub_u32 s%d, s%d, 512" % (S_T0, S_TASK))
    a("s_mul_i32 s%d, s%d, 4682" % (S_T1, S_T0))
    a("s_lshr_b32 s%d, s%d, 16" % (S_T1, S_T1))
    a("s_mul_i32 s%d, s%d, 14" % (S_T2, S_T1))
    a("s_sub_u32 s%d, s%d, s%d" % (S_T0, S_T0, S_T2))
    a("s_mul_i32 s%d, s%d, %d" % (S_DST0, S_T1, 112 * 1024))
    a("s_add_u32 s%d, s%d, %d" % (S_DST0, S_DST0, WS_WD))
    a.label("L_f_packc")
    a("s_lshl_b32 s%d, s%d, 13" % (S_T2, S_T0))
    a("s_add_u32 s%d, s%d, s%d" % (S_DST0, S_DST0, S_T2))
    a("s_lshl_b32 s%d, s%d, 17" % (S_PE, S_T0))
    a("s_lshl_b32 s%d, s%d, 6" % (S_T2, S_T1))
    a("s_add_u32 s%d, s%d, s%d" % (S_PE, S_PE, S_T2))
    a("s_add_u32 s%d, s%d, 16384" % (S_PO, S_PE))
    a("s_mov_b32 s%d, 32768" % S_PS)
    a.label("L_f_nopack")
    a("s_mov_b32 s%d, 0x0000ffff" % S_VMASK)
    a("s_mov_b32 s%d, 0x0000ffff" % (S_VMASK + 1))
    a("v_and_b32 v%d, 27, v%d" % (V_T, V_LANE))
    a("v_cmp_eq_u32 vcc, 16, v%d" % V_T)
    a("v_mov_b32 v%d, 0x%x" % (V_T + 1, ONES_BF16))
    a("s_nop 1")
    a("v_cndmask_b32 v%d, 0, v%d, vcc" % (V_V[0], V_T + 1))
    for i in range(1, 16):
        a("v_mov_b32 v%d, v%d" % (V_V[0] + i, V_V[0]))
    a("s_mov_b32 s%d, 7" % S_SYNC)
    a("s_mov_b32 s%d, 0" % S_PASS)
    a("s_mov_b32 s%d, 1" % S_NT)
    a("s_setprio 3")
    a("s_barrier")
    if INSTR == "ka_":
        a("v_mov_b32 v250, 0")
    a.tsv("15", "ka_")
    a.ts("k2")
    a("buffer_load_dwordx4 %s, v%d, s[20:23], s39 offen sc1" % (vr(V_Q), V_L16))
    for c in range(2):
        for g in kv_dma(c):
            for l in g:
                a(l)
    a("s_waitcnt vmcnt(2)")
    pass
    a("s_barrier")
    a.ts("k2")
    pass
    a.label("L_f_maxpass")
    a("v_mov_b32 v%d, 0xff800000" % V_MAX)
    a("v_mov_b32 v%d, v%d" % (V_KA, V_L16))
    a.label("L_f_mloop")
    a("ds_read_b128 %s, v%d" % (vr(V_K[0]), V_KA))
    a("v_add_u32 v%d, 1024, v%d" % (V_KA, V_KA))
    a("s_waitcnt lgkmcnt(0)")
    a("v_mfma_f32_32x32x16_bf16 %s, %s, %s, 0" % (vr(V_S[0], 16), vr(V_K[0]), vr(V_Q)))
    a("s_nop 15")
    for i in range(8):
        a("v_max3_f32 v%d, v%d, v%d, v%d" % (V_MAX, V_S[0] + 2 * i, V_S[0] + 2 * i + 1, V_MAX))
    a("s_sub_u32 s%d, s%d, 1" % (S_NT, S_NT))
    a("s_cmp_lg_u32 s%d, 0" % S_NT)
    a("s_cbranch_scc1 L_f_mloop")
    a("v_mov_b32 v%d, v%d" % (V_KA, V_L16))
    a("v_lshrrev_b32 v%d, 5, v%d" % (V_T, V_LANE))
    a("v_lshlrev_b32 v%d, 8, v%d" % (V_T, V_T))
    a("v_and_b32 v%d, 15, v%d" % (V_T + 1, V_LANE))
    a("v_lshl_add_u32 v%d, v%d, 4, v%d" % (V_VA, V_T + 1, V_T))
    a("v_add_u32 v%d, 65536, v%d" % (V_VA, V_VA))
    a("ds_read_b128 %s, v%d" % (vr(V_K[0]), V_KA))
    a("ds_read_b128 %s, v%d offset:1024" % (vr(V_K[1]), V_KA))
    a("s_mov_b64 exec, s[%d:%d]" % (S_VMASK, S_VMASK + 1))
    a("ds_read_b128 %s, v%d" % (vr(V_V[0]), V_VA))
    a("ds_read_b128 %s, v%d offset:512" % (vr(V_V[0] + 4), V_VA))
    a("s_mov_b64 exec, -1")
    a("v_mov_b32 v%d, v%d" % (V_T, V_MAX))
    a("s_nop 1")
    a("v_permlane32_swap_b32 v%d, v%d" % (V_MAX, V_T))
    a("s_nop 1")
    a("v_max_f32 v%d, v%d, v%d" % (V_MAX, V_MAX, V_T))
    for i in range(16):
        a("v_sub_f32 v%d, 0, v%d" % (V_CM + i, V_MAX))
    a("s_waitcnt lgkmcnt(0)")
    a("s_nop 0")
    a("v_mfma_f32_32x32x16_bf16 %s, %s, %s, %s" % (vr(V_S[0], 16), vr(V_K[0]), vr(V_Q), vr(V_CM, 16)))
    for i in range(16):
        a("v_mov_b32 v%d, 0" % (V_O + i))
    for i in range(4):
        a("v_mov_b32 v%d, 0" % (V_P + 4 + i))
    a("s_mov_b32 s%d, 8" % S_ITER)
    a("s_cmp_lg_u32 s%d, 0" % S_PASS)
    a("s_cbranch_scc1 L_f_loop")

    def body(peeled):
        for t in range(8):
            cur, nxt = t % 2, (t + 1) % 2
            x1, x2 = [], []
            if peeled:
                if t < 6:
                    x1, x2 = kv_dma(t + 2)
                if t == 6:
                    a("s_waitcnt vmcnt(12)")
                    a("s_barrier")
                if t >= 6:
                    lab = "L_f_np%d" % t
                    x1 = ["s_cmp_eq_u32 s%d, 0" % S_TYPE, "s_cbranch_scc1 %s" % lab]
                    for i in range(4 * (t - 6), 4 * (t - 6) + 4):
                        x1 += ["s_add_u32 m0, s%d, %d" % (S_STG, i * 1024), "s_nop 0",
                               "buffer_load_dwordx4 v%d, s[%d:%d], s%d offen lds" % (V_PD, 28 + 4 * (i % 2), 31 + 4 * (i % 2), S_PO if i % 2 else S_PE),
                               "s_add_u32 s%d, s%d, s%d" % ((S_PO, S_PO, S_PS) if i % 2 else (S_PE, S_PE, S_PS))]
                    x1 += [lab + ":"]
            else:
                if t == 0:
                    for k, r in enumerate((5, 2, 1)):
                        x1 += ["s_cmp_lg_u32 s%d, %d" % (S_ITER, r), "s_cbranch_scc1 L_f_pp%d" % k, "s_setprio %d" % (2 - k), "L_f_pp%d:" % k]
                if t == 6:
                    a("s_cmp_eq_u32 s%d, s%d" % (S_ITER, S_SYNC))
                    a("s_cbranch_scc1 L_f_event")
                    a.label("L_f_syncret")
            S = V_S[cur]
            e = lambda i: "v_exp_f32 v%d, v%d" % (S + i, S + i)
            c = lambda i: "v_cvt_pk_bf16_f32 v%d, v%d, v%d" % (V_P + i, S + 2 * i, S + 2 * i + 1)
            pv = lambda b, h: "v_mfma_f32_32x32x16_bf16 %s, %s, %s, %s" % (vr(V_O, 16), vr(V_V[b] + 4 * h), vr(V_P + 4 * h), vr(V_O, 16))
            qk = "v_mfma_f32_32x32x16_bf16 %s, %s, %s, %s" % (vr(V_S[nxt], 16), vr(V_K[nxt]), vr(V_Q), vr(V_CM, 16))
            rdk = "ds_read_b128 %s, v%d offset:%d" % (vr(V_K[cur]), V_KA, (t + 2) * 1024)
            rdv = ["s_mov_b64 exec, s[%d:%d]" % (S_VMASK, S_VMASK + 1),
                   "ds_read_b128 %s, v%d offset:%d" % (vr(V_V[nxt]), V_VA, (t + 1) * 1024),
                   "ds_read_b128 %s, v%d offset:%d" % (vr(V_V[nxt] + 4), V_VA, (t + 1) * 1024 + 512),
                   "s_mov_b64 exec, -1"]
            seq = [e(0), e(1), pv(nxt, 1), e(2), "s_waitcnt lgkmcnt(0)", rdk, e(3)] + rdv + [c(0), e(4), e(5), c(1), e(6), e(7), qk, c(2), e(8)] + x1 + [e(9), c(3),
                   e(10), e(11), c(4), e(12), e(13), pv(cur, 0), c(5), e(14)] + x2 + [e(15), c(6)]
            if t == 7:
                seq += ["v_add_u32 v%d, 8192, v%d" % (V_KA, V_KA), "v_add_u32 v%d, 8192, v%d" % (V_VA, V_VA),
                        "s_sub_u32 s%d, s%d, 1" % (S_ITER, S_ITER), "s_cmp_lg_u32 s%d, 0" % S_ITER]
            seq += [c(7)]
            for l in seq:
                if l.endswith(":"):
                    a.label(l[:-1])
                else:
                    a(l)

    a.tsv("8", "ka_")
    body(True)
    a.raw(".p2align 6")
    a.label("L_f_loop")
    a.tsv("s%d" % S_ITER, "ka_")
    body(False)
    a("s_cbranch_scc1 L_f_loop")
    a.tsv("0", "ka_")
    a.tsv_flush(S_WAVE, "ka_")
    a("s_nop 1")
    a("v_mfma_f32_32x32x16_bf16 %s, %s, %s, %s" % (vr(V_O, 16), vr(V_V[1] + 4), vr(V_P + 4), vr(V_O, 16)))
    a("s_waitcnt lgkmcnt(0)")
    a("s_lshl_b32 s%d, s%d, 3" % (S_T0, S_QB))
    a("s_add_u32 s%d, s%d, s%d" % (S_T0, S_T0, S_WAVE))
    a("s_lshl_b32 s%d, s%d, 5" % (S_T0, S_T0))
    a("s_add_u32 s%d, s%d, s%d" % (S_T0, S_T0, S_H))
    a("s_lshl_b32 s%d, s%d, 10" % (S_T0, S_T0))
    a("s_add_u32 s%d, s%d, %d" % (S_T0, S_T0, WS_O))
    a("s_nop 7")
    a("v_mul_f32 v%d, 0, v%d" % (V_T, V_O))
    for i in range(1, 8):
        a("v_fmac_f32 v%d, 0, v%d" % (V_T, V_O + i))
    a("v_add_f32 v%d, v%d, v%d" % (V_T, V_T, V_O + 8))
    a("v_cmp_gt_f32 vcc, 0x%x, v%d" % (f32bits(2.0 ** 100), V_T))
    a("v_rcp_f32 v%d, v%d" % (V_T + 1, V_O + 8))
    a("s_cmp_lg_u32 s%d, 0" % S_PASS)
    a("s_cbranch_scc1 L_f_fin")
    a("s_cmp_eq_u64 vcc, exec")
    a("s_cbranch_scc1 L_f_fin")
    a("s_mov_b32 s%d, 1" % S_PASS)
    a("s_mov_b32 s%d, 64" % S_NT)
    a("s_branch L_f_maxpass")
    a.label("L_f_fin")
    for i in range(8):
        a("v_mul_f32 v%d, v%d, v%d" % (V_O + i, V_T + 1, V_O + i))
    for i in range(4):
        a("v_cvt_pk_bf16_f32 v%d, v%d, v%d" % (V_P + i, V_O + 2 * i, V_O + 2 * i + 1))
    if AMAP:
        hstore(a, "o", ["buffer_store_dwordx4 %s, v%d, s[20:23], s%d offen" % (vr(V_P), V_L16, S_T0)])
    else:
        a("buffer_store_dwordx4 %s, v%d, s[20:23], s%d offen sc1" % (vr(V_P), V_L16, S_T0))
    fused_tail(a, locals())
    a.label("L_f_end")
    a("s_endpgm")
    fused_events(a, locals())
    a.label("L_f_sync")
    a("s_mov_b32 s%d, 6" % S_SYNC)
    a("s_cmp_eq_u32 s%d, 0" % S_TYPE)
    a("s_cbranch_scc1 L_f_sy0")
    a("s_waitcnt vmcnt(8)")
    a("s_barrier")
    a("s_branch L_f_syncret")
    a.label("L_f_sy0")
    a("s_waitcnt vmcnt(0)")
    a("s_barrier")
    a("s_branch L_f_syncret")
    a.label("L_f_ev6")
    a("s_mov_b32 s%d, 5" % S_SYNC)
    a("s_cmp_eq_u32 s%d, 0" % S_TYPE)
    a("s_cbranch_scc1 L_f_syncret")
    a("s_waitcnt vmcnt(0)")
    a("v_bfe_u32 v%d, v%d, 2, 2" % (V_T, V_LANE))
    a("v_lshrrev_b32 v%d, 5, v%d" % (V_T + 1, V_LANE))
    a("v_lshl_add_u32 v%d, v%d, 2, v%d" % (V_T, V_T + 1, V_T))
    a("v_lshlrev_b32 v%d, 6, v%d" % (V_T, V_T))
    a("v_and_b32 v%d, 3, v%d" % (V_T + 1, V_LANE))
    a("v_lshl_add_u32 v%d, v%d, 3, v%d" % (V_T, V_T + 1, V_T))
    a("v_add_u32 v%d, s%d, v%d" % (V_T, S_STG, V_T))
    a("v_bfe_u32 v%d, v%d, 4, 1" % (V_T + 1, V_LANE))
    FB = [128 + 4 * i for i in range(8)]
    a("s_cmp_eq_u32 s%d, 2" % S_TYPE)
    a("s_cbranch_scc1 L_f_pk2")
    a("v_lshl_add_u32 v%d, v%d, 10, v%d" % (V_PK, V_T + 1, V_T))
    for ks in range(4):
        for hb in range(2):
            for rd in range(2):
                a("ds_read_b64_tr_b16 %s, v%d offset:%d" % (vr(FB[ks * 2 + hb] + 2 * rd, 2), V_PK, ks * 2048 + hb * 32 + rd * 512))
    make_sel(a, V_LANE, V_SEL, V_T + 2)
    a("v_and_b32 v%d, 31, v%d" % (V_T, V_LANE))
    a("v_lshlrev_b32 v%d, 4, v%d" % (V_T, V_T))
    a("s_waitcnt lgkmcnt(0)")
    for ks in range(4):
        for hb in range(2):
            a("v_mfma_f32_16x16x32_bf16 %s, %s, %s, %s" % (vr(V_PCS[hb]), vr(V_SEL), vr(FB[ks * 2 + hb]), "0" if ks == 0 else vr(V_PCS[hb])))
            a("buffer_store_dwordx4 %s, v%d, s[20:23], s%d offen sc1" % (vr(FB[ks * 2 + hb]), V_L16, (S_DST0, S_DST1)[hb]))
        a("s_add_u32 s%d, s%d, 7168" % (S_DST0, S_DST0))
        a("s_add_u32 s%d, s%d, 7168" % (S_DST1, S_DST1))
    a("s_nop 7")
    a("buffer_store_dword v%d, v%d, s[20:23], s%d offen sc1" % (V_PCS[0], V_T, S_CS))
    a("buffer_store_dword v%d, v%d, s[20:23], s%d offen offset:1024 sc1" % (V_PCS[1], V_T, S_CS))
    a("s_branch L_f_syncret")
    a.label("L_f_pk2")
    a("v_lshl_add_u32 v%d, v%d, 5, v%d" % (V_PK, V_T + 1, V_T))
    a("s_add_u32 s%d, s%d, 4096" % (S_DST1, S_DST0))
    for f in range(8):
        for rd in range(2):
            a("ds_read_b64_tr_b16 %s, v%d offset:%d" % (vr(FB[f] + 2 * rd, 2), V_PK, f * 1024 + rd * 512))
    a("s_waitcnt lgkmcnt(0)")
    for f in range(8):
        a("buffer_store_dwordx4 %s, v%d, s[20:23], s%d offen offset:%d sc1" % (vr(FB[f]), V_L16, S_DST0 if f < 4 else S_DST1, (f % 4) * 1024))
    a("s_branch L_f_syncret")
    return name, 256, 0, (256, 512, 163840)


def gen_k35(a, which):
    name = "k3_wo_kernel" if which == 3 else "k5_down_kernel"
    L = "L_k%d_" % which
    kernel_begin(a, name)
    NS = 8 if which == 3 else 28
    STEPS = 32 if which == 3 else 112
    WIN = 8 if which == 3 else 14
    A_BASE = WS_O if which == 3 else WS_A
    W_BASE = WS_WO if which == 3 else WS_WD
    S_WAVE, S_RB, S_CG, S_T0, S_T1 = 24, 25, 26, 27, 28
    S_A = [30, 31]
    S_W = [32, 33]
    S_TB, S_NB = 34, 35
    V_LANE, V_L16, V_T = 1, 2, 3
    V_RES = 12
    V_ACC = [32, 48, 64, 80]
    V_RD = 96
    a("s_cmp_ge_u32 s2, 256")
    a("s_cbranch_scc1 %send" % L)
    a.ts("k%d" % which)
    a("s_load_dwordx2 s[8:9], s[0:1], %d" % ARG_WS)
    a("s_load_dwordx2 s[4:5], s[0:1], %d" % (ARG_X if which == 3 else ARG_OUT))
    a("v_lshrrev_b32 v%d, 6, v0" % V_T)
    a("v_and_b32 v%d, 63, v0" % V_LANE)
    a("v_readfirstlane_b32 s%d, v%d" % (S_WAVE, V_T))
    a("v_lshlrev_b32 v%d, 4, v%d" % (V_L16, V_LANE))
    a("s_and_b32 s%d, s2, 7" % S_RB)
    a("s_lshl_b32 s%d, s%d, 2" % (S_RB, S_RB))
    a("s_lshr_b32 s%d, s2, 3" % S_T0)
    a("s_and_b32 s%d, s%d, 3" % (S_T1, S_T0))
    a("s_add_u32 s%d, s%d, s%d" % (S_RB, S_RB, S_T1))
    a("s_lshr_b32 s%d, s%d, 2" % (S_CG, S_T0))
    a("s_lshr_b32 s%d, s%d, 1" % (S_T0, S_WAVE))
    a("s_lshl_b32 s%d, s%d, 1" % (S_TB, S_RB))
    a("s_add_u32 s%d, s%d, s%d" % (S_TB, S_TB, S_T0))
    a("s_and_b32 s%d, s%d, 1" % (S_T0, S_WAVE))
    a("s_lshl_b32 s%d, s%d, 1" % (S_NB, S_CG))
    a("s_add_u32 s%d, s%d, s%d" % (S_NB, S_NB, S_T0))
    a("s_mul_i32 s%d, s%d, %d" % (S_T1, S_WAVE, NS * 1024))
    for i in range(2):
        a("s_xor_b32 s%d, s%d, %d" % (S_T0, S_TB, i))
        a("s_mul_i32 s%d, s%d, %d" % (S_A[i], S_T0, STEPS * 1024))
        a("s_add_u32 s%d, s%d, s%d" % (S_A[i], S_A[i], S_T1))
        a("s_add_u32 s%d, s%d, %d" % (S_A[i], S_A[i], A_BASE))
        a("s_xor_b32 s%d, s%d, %d" % (S_T0, S_NB, i))
        a("s_mul_i32 s%d, s%d, %d" % (S_W[i], S_T0, STEPS * 1024))
        a("s_add_u32 s%d, s%d, s%d" % (S_W[i], S_W[i], S_T1))
        a("s_add_u32 s%d, s%d, %d" % (S_W[i], S_W[i], W_BASE))
    a("s_waitcnt lgkmcnt(0)")
    srd(a, 20, 8, WS_SIZE)
    srd(a, 12, 4, 2048 * 1024)

    def frag(p, kind, i):
        return (p % WIN) * 16 + kind * 8 + i * 4

    def loads(p):
        out = []
        if p > 0 and p % 4 == 0:
            for s in S_A + S_W:
                out.append("s_add_u32 s%d, s%d, 4096" % (s, s))
        off = (p % 4) * 1024
        for i in range(2):
            out.append("buffer_load_dwordx4 %s, v%d, s[20:23], s%d offen offset:%d" % (ar(frag(p, 0, i)), V_L16, S_A[i], off))
            out.append("buffer_load_dwordx4 %s, v%d, s[20:23], s%d offen offset:%d" % (ar(frag(p, 1, i)), V_L16, S_W[i], off))
        return out

    for p in range(WIN):
        for l in loads(p):
            a(l)
    a("v_and_b32 v%d, 31, v%d" % (V_T, V_LANE))
    a("v_lshlrev_b32 v%d, 10, v%d" % (V_T, V_T))
    a("v_lshrrev_b32 v%d, 5, v%d" % (V_T + 1, V_LANE))
    a("v_lshl_add_u32 v%d, v%d, 3, v%d" % (V_T, V_T + 1, V_T))
    a("s_lshl_b32 s36, s%d, 15" % S_TB)
    a("s_lshl_b32 s%d, s%d, 6" % (S_T0, S_NB))
    a("s_add_u32 s36, s36, s%d" % S_T0)
    a("s_lshl_b32 s37, s%d, 5" % S_TB)
    a("s_lshl_b32 s%d, s%d, 1" % (S_T0, S_NB))
    a("s_add_u32 s37, s37, s%d" % S_T0)
    a("s_lshl_b32 s37, s37, 10")
    a("s_add_u32 s37, s37, %d" % WS_H)
    a.ts("k%d" % which)
    issued = WIN
    NRES = 4 if which == 3 else 2
    res_done = False
    for p in range(NS):
        younger = 4 * (issued - p - 1) + (NRES if res_done else 0)
        a("s_waitcnt vmcnt(%d)" % younger)
        for ti in range(2):
            for ni in range(2):
                acc = V_ACC[ti * 2 + ni]
                a("v_mfma_f32_32x32x16_bf16 %s, %s, %s, %s" % (vr(acc, 16), ar(frag(p, 1, ni)), ar(frag(p, 0, ti)), "0" if p == 0 else vr(acc, 16)))
        if issued < NS:
            for l in loads(issued):
                a(l)
            issued += 1
        elif not res_done:
            if which == 3:
                for q in range(4):
                    a("buffer_load_dwordx2 %s, v%d, s[12:15], s36 offen offset:%d" % (vr(V_RES + 2 * q, 2), V_T, q * 16))
            else:
                for q in range(2):
                    a("buffer_load_dwordx4 %s, v%d, s[20:23], s37 offen offset:%d" % (vr(V_RES + 4 * q), V_L16, q * 1024))
            res_done = True
    a.ts("k%d" % which)
    a("s_nop 7")
    for t in range(1, 4):
        a("s_xor_b32 s%d, s%d, %d" % (S_T0, S_WAVE, t))
        a("s_mul_i32 s%d, s%d, 12288" % (S_T0, S_T0))
        a("v_add_u32 v%d, s%d, v%d" % (V_T + 1 + t, S_T0, V_L16))
    a("s_nop 3")
    for t in range(1, 4):
        for q in range(4):
            a("ds_write_b128 v%d, %s offset:%d" % (V_T + 1 + t, vr(V_ACC[t] + 4 * q), (t - 1) * 4096 + q * 1024))
    a("s_mul_i32 s%d, s%d, 12288" % (S_T0, S_WAVE))
    a("v_add_u32 v%d, s%d, v%d" % (V_T + 1, S_T0, V_L16))
    a("s_waitcnt lgkmcnt(0)")
    a("s_barrier")
    for t in range(3):
        for q in range(4):
            a("ds_read_b128 %s, v%d offset:%d" % (vr(V_RD + 16 * t + 4 * q), V_T + 1, t * 4096 + q * 1024))
    A0 = V_ACC[0]
    U = V_ACC[1]
    a("s_mov_b32 s38, 0xffff0000")
    a("s_waitcnt vmcnt(0)")
    for d in range(8):
        a("v_lshlrev_b32 v%d, 16, v%d" % (U + 2 * d, V_RES + d))
        a("v_and_b32 v%d, s38, v%d" % (U + 2 * d + 1, V_RES + d))
    for i in range(16):
        a("v_add_f32 v%d, v%d, v%d" % (A0 + i, A0 + i, U + i))
    for t in range(3):
        a("s_waitcnt lgkmcnt(%d)" % (8 - 4 * t))
        for i in range(16):
            a("v_add_f32 v%d, v%d, v%d" % (A0 + i, A0 + i, V_RD + 16 * t + i))
    O = V_ACC[2]
    for i in range(8):
        a("v_cvt_pk_bf16_f32 v%d, v%d, v%d" % (O + i, A0 + 2 * i, A0 + 2 * i + 1))
    if which == 3:
        for q in range(2):
            a("buffer_store_dwordx4 %s, v%d, s[20:23], s37 offen offset:%d" % (vr(O + 4 * q), V_L16, q * 1024))
        for d in range(8):
            a("v_lshlrev_b32 v%d, 16, v%d" % (U + 2 * d, O + d))
            a("v_and_b32 v%d, s38, v%d" % (U + 2 * d + 1, O + d))
        S1, S2 = V_RD, V_RD + 1
        a("v_add_f32 v%d, v%d, v%d" % (S1, U, U + 1))
        a("v_mul_f32 v%d, v%d, v%d" % (S2, U, U))
        a("v_fmac_f32 v%d, v%d, v%d" % (S2, U + 1, U + 1))
        for i in range(2, 16):
            a("v_add_f32 v%d, v%d, v%d" % (S1, S1, U + i))
            a("v_fmac_f32 v%d, v%d, v%d" % (S2, U + i, U + i))
        sum_halves(a, S1, V_RD + 2)
        sum_halves(a, S2, V_RD + 3)
        a("s_lshl_b32 s%d, s%d, 4" % (S_T0, S_TB))
        a("s_add_u32 s%d, s%d, s%d" % (S_T0, S_T0, S_NB))
        a("s_lshl_b32 s%d, s%d, 8" % (S_T0, S_T0))
        a("s_add_u32 s%d, s%d, %d" % (S_T0, S_T0, WS_ST))
        a("v_and_b32 v%d, 31, v%d" % (V_T, V_LANE))
        a("v_lshlrev_b32 v%d, 3, v%d" % (V_T, V_T))
        a("buffer_store_dwordx2 %s, v%d, s[20:23], s%d offen" % (vr(S1, 2), V_T, S_T0))
    else:
        for q in range(4):
            a("buffer_store_dwordx2 %s, v%d, s[12:15], s36 offen offset:%d" % (vr(O + 2 * q, 2), V_T, q * 16))
    a.ts_flush("k%d" % which, S_WAVE, V_T)
    a.label(L + "end")
    a("s_endpgm")
    return name, 144, WIN * 16, (256, 256, 49152)


def gen_k4(a):
    name = "k4_glu_kernel"
    kernel_begin(a, name)
    SL4, NS4 = 45056, 3
    S_WAVE, S_RB, S_CG, S_KC, S_SH, S_SW, S_T0, S_T1, S_MASK, S_M0 = 24, 25, 26, 27, 28, 29, 30, 31, 32, 33
    S_TB, S_ROLE, S_M0H = 34, 42, 35
    V_LANE, V_L16, V_T = 1, 2, 3
    V_AW, V_AH = 12, 13
    V_ST = 16
    V_CSL = 32
    V_H = [60, 244]
    V_W = [64, 92]
    V_ACC = [120 + 16 * b for b in range(7)]
    V_TMP = 232
    a("s_cmp_ge_u32 s2, 256")
    a("s_cbranch_scc1 L_k4_end")
    a.ts("k4")
    a("s_load_dwordx2 s[8:9], s[0:1], %d" % ARG_WS)
    a("v_lshrrev_b32 v%d, 6, v0" % V_T)
    a("v_and_b32 v%d, 63, v0" % V_LANE)
    a("v_readfirstlane_b32 s%d, v%d" % (S_ROLE, V_T))
    a("v_lshlrev_b32 v%d, 4, v%d" % (V_L16, V_LANE))
    a("s_and_b32 s3, s2, 7")
    a("s_lshr_b32 s%d, s2, 3" % S_T0)
    a("s_lshr_b32 s%d, s3, 2" % S_RB)
    a("s_lshl_b32 s%d, s%d, 3" % (S_RB, S_RB))
    a("s_and_b32 s%d, s%d, 7" % (S_T1, S_T0))
    a("s_add_u32 s%d, s%d, s%d" % (S_RB, S_RB, S_T1))
    a("s_and_b32 s%d, s3, 3" % S_CG)
    a("s_lshl_b32 s%d, s%d, 2" % (S_CG, S_CG))
    a("s_lshr_b32 s%d, s%d, 3" % (S_T1, S_T0))
    a("s_add_u32 s%d, s%d, s%d" % (S_CG, S_CG, S_T1))
    a("s_and_b32 s%d, s%d, 3" % (S_WAVE, S_ROLE))
    a("s_lshl_b32 s%d, s%d, 2" % (S_TB, S_RB))
    a("s_add_u32 s%d, s%d, s%d" % (S_TB, S_TB, S_WAVE))
    a("s_lshl_b32 s%d, s%d, 12" % (S_M0H, S_WAVE))
    a("s_add_u32 s%d, s%d, 28672" % (S_M0H, S_M0H))
    a("s_cmp_ge_u32 s%d, 4" % S_ROLE)
    a("s_cbranch_scc1 L_k4_compute")
    if K4_ROT:
        a("s_add_u32 s%d, s%d, s%d" % (S_KC, S_RB, S_CG))
        a("s_and_b32 s%d, s%d, 7" % (S_KC, S_KC))
    else:
        a("s_mov_b32 s%d, 0" % S_KC)
    a("s_lshl_b32 s%d, s%d, 15" % (S_SH, S_TB))
    a("s_add_u32 s%d, s%d, %d" % (S_SH, S_SH, WS_H))
    a("s_mul_i32 s%d, s%d, 7168" % (S_M0, S_WAVE))
    a("s_mul_i32 s%d, s%d, %d" % (S_SW, S_CG, 32 * 7 * 1024))
    a("s_add_u32 s%d, s%d, s%d" % (S_SW, S_SW, S_M0))
    a("s_add_u32 s%d, s%d, %d" % (S_SW, S_SW, WS_GU))
    S_OH, S_OW, S_SLOT, S_CNT = 38, 39, 40, 41
    a("s_mov_b32 s%d, 0" % S_SLOT)
    a("s_mov_b32 s%d, 0" % S_CNT)
    a("s_waitcnt lgkmcnt(0)")
    srd(a, 20, 8, WS_SIZE)
    a.label("L_k4_ld")
    a("s_lshl_b32 s%d, s%d, 12" % (S_OH, S_KC))
    a("s_add_u32 s%d, s%d, s%d" % (S_OH, S_OH, S_SH))
    a("s_add_u32 m0, s%d, s%d" % (S_M0H, S_SLOT))
    a("s_mul_i32 s%d, s%d, %d" % (S_OW, S_KC, SLOT))
    for q in range(4):
        a("buffer_load_dwordx4 v%d, s[20:23], s%d offen offset:%d lds" % (V_L16, S_OH, q * 1024))
    a("s_add_u32 m0, s%d, s%d" % (S_M0, S_SLOT))
    a("s_add_u32 s%d, s%d, s%d" % (S_OW, S_OW, S_SW))
    for q in range(4):
        a("buffer_load_dwordx4 v%d, s[20:23], s%d offen offset:%d lds" % (V_L16, S_OW, q * 1024))
    a("s_add_u32 m0, m0, 4096")
    a("s_add_u32 s%d, s%d, 4096" % (S_OW, S_OW))
    for q in range(3):
        a("buffer_load_dwordx4 v%d, s[20:23], s%d offen offset:%d lds" % (V_L16, S_OW, q * 1024))
    a("s_add_u32 s%d, s%d, 1" % (S_KC, S_KC))
    a("s_and_b32 s%d, s%d, 7" % (S_KC, S_KC))
    a("s_add_u32 s%d, s%d, %d" % (S_SLOT, S_SLOT, SL4))
    a("s_cmp_eq_u32 s%d, %d" % (S_SLOT, NS4 * SL4))
    a("s_cselect_b32 s%d, 0, s%d" % (S_SLOT, S_SLOT))
    a("s_add_u32 s%d, s%d, 1" % (S_CNT, S_CNT))
    a("s_cmp_lt_u32 s%d, 2" % S_CNT)
    a("s_cbranch_scc1 L_k4_ld")
    a("s_waitcnt vmcnt(11)")
    a("s_barrier")
    a("s_cmp_lt_u32 s%d, 8" % S_CNT)
    a("s_cbranch_scc1 L_k4_ld")
    a("s_waitcnt vmcnt(0)")
    a("s_barrier")
    a("s_endpgm")
    a.label("L_k4_compute")
    a("s_mov_b32 s%d, 0xffff0000" % S_MASK)
    a("v_mov_b32 v%d, v%d" % (V_AW, V_L16))
    a("v_add_u32 v%d, s%d, v%d" % (V_AH, S_M0H, V_L16))
    a("v_and_b32 v%d, 31, v%d" % (V_T, V_LANE))
    a("v_lshlrev_b32 v%d, 3, v%d" % (V_T, V_T))
    a("v_lshrrev_b32 v%d, 5, v%d" % (V_T + 1, V_LANE))
    a("v_lshl_add_u32 v%d, v%d, 11, v%d" % (V_T, V_T + 1, V_T))
    a("s_waitcnt lgkmcnt(0)")
    srd(a, 20, 8, WS_SIZE)
    cur_base = [0]

    def reads(P):
        st, pos = P // 4, P % 4
        base = (st % NS4) * SL4
        out = []
        if base != cur_base[0]:
            d = base - cur_base[0]
            for r in (V_AW, V_AH):
                out.append("v_add_u32 v%d, %d, v%d" % (r, d, r) if d > 0 else "v_subrev_u32 v%d, %d, v%d" % (r, -d, r))
            cur_base[0] = base
        b = P % 2
        out.append("ds_read_b128 %s, v%d offset:%d" % (vr(V_H[b]), V_AH, pos * 1024))
        for blk in range(7):
            out.append("ds_read_b128 %s, v%d offset:%d" % (vr(V_W[b] + 4 * blk), V_AW, (pos * 7 + blk) * 1024))
        return out

    extra = {}
    g = ["s_lshl_b32 s%d, s%d, 12" % (S_T0, S_TB), "s_add_u32 s%d, s%d, %d" % (S_T0, S_T0, WS_ST)]
    for i in range(8):
        g.append("buffer_load_dwordx2 %s, v%d, s[20:23], s%d offen offset:%d" % (vr(V_ST + 2 * i, 2), V_T, S_T0, i * 256))
    extra[8], extra[9], extra[10] = g[:4], g[4:7], g[7:]
    g = ["s_mul_i32 s%d, s%d, 7168" % (S_T0, S_CG), "s_add_u32 s%d, s%d, %d" % (S_T0, S_T0, WS_CS), "s_add_u32 s%d, s%d, 4096" % (S_T1, S_T0)]
    for blk in range(7):
        g.append("buffer_load_dwordx4 %s, v%d, s[20:23], s%d offen offset:%d" % (vr(V_CSL + 4 * blk), V_L16, S_T0 if blk < 4 else S_T1, (blk % 4) * 1024))
    extra[12], extra[13], extra[14] = g[:5], g[5:8], g[8:]
    a.ts("k4")
    a("s_barrier")
    a.ts("k4")
    for l in reads(0):
        a(l)
    for P in range(32):
        st, pos = P // 4, P % 4
        b = P % 2
        a("s_waitcnt lgkmcnt(0)")
        if pos == 3 and P < 31:
            a("s_barrier")
        rd = reads(P + 1) if P < 31 else []
        m = []
        for blk in range(7):
            m.append("v_mfma_f32_32x32x16_bf16 %s, %s, %s, %s" % (vr(V_ACC[blk], 16), vr(V_W[b] + 4 * blk), vr(V_H[b]), "0" if P == 0 else vr(V_ACC[blk], 16)))
        for l in interleave(m, rd + extra.get(P, []), per=2):
            a(l)
    a.ts("k4")
    a("s_waitcnt vmcnt(0)")
    S1, S2 = V_T + 2, V_T + 3
    a("v_add_f32 v%d, v%d, v%d" % (S1, V_ST, V_ST + 2))
    a("v_add_f32 v%d, v%d, v%d" % (S2, V_ST + 1, V_ST + 3))
    for i in range(2, 8):
        a("v_add_f32 v%d, v%d, v%d" % (S1, S1, V_ST + 2 * i))
        a("v_add_f32 v%d, v%d, v%d" % (S2, S2, V_ST + 2 * i + 1))
    sum_halves(a, S1, V_T + 4)
    sum_halves(a, S2, V_T + 4)
    V_MU, V_VAR, V_RS, V_C1, V_C2 = V_T + 4, V_T + 5, V_T + 6, V_T + 7, V_T + 8
    a("v_mul_f32 v%d, 0x%x, v%d" % (V_MU, f32bits(1.0 / 512), S1))
    a("v_mul_f32 v%d, 0x%x, v%d" % (V_VAR, f32bits(1.0 / 512), S2))
    a("v_fma_f32 v%d, -v%d, v%d, v%d" % (V_VAR, V_MU, V_MU, V_VAR))
    a("v_max_f32 v%d, 0, v%d" % (V_VAR, V_VAR))
    a("v_add_f32 v%d, 0x%x, v%d" % (V_VAR, f32bits(1e-5), V_VAR))
    a("v_rsq_f32 v%d, v%d" % (V_RS, V_VAR))
    a("v_sub_f32 v%d, 0, v%d" % (V_MU, V_MU))
    VB = V_ST
    split_hi_lo_B(a, V_MU, VB, V_T, S_MASK)
    c1 = -2.0 * math.sqrt(2.0 / math.pi) * math.log2(math.e)
    a("v_mul_f32 v%d, 0x%x, v%d" % (V_C1, f32bits(c1), V_RS))
    a("v_mul_f32 v%d, v%d, v%d" % (V_C2, V_RS, V_RS))
    a("v_mul_f32 v%d, v%d, v%d" % (V_C2, V_C2, V_C1))
    a("v_mul_f32 v%d, 0x%x, v%d" % (V_C2, f32bits(0.044715), V_C2))
    for blk in range(7):
        c = V_CSL + 4 * blk
        a("v_add_f32 v%d, v%d, v%d" % (c, c, c + 1))
        a("v_add_f32 v%d, v%d, v%d" % (c + 2, c + 2, c + 3))
        a("v_add_f32 v%d, v%d, v%d" % (c, c, c + 2))
        split_hi_lo_A(a, c, V_W[0] + 4 * blk, V_T, S_MASK)
    a("s_nop 1")
    for blk in range(7):
        a("v_mfma_f32_32x32x16_bf16 %s, %s, %s, %s" % (vr(V_ACC[blk], 16), vr(V_W[0] + 4 * blk), vr(VB), vr(V_ACC[blk], 16)))
    a("s_mul_i32 s%d, s%d, 112" % (S_T0, S_TB))
    a("s_mul_i32 s%d, s%d, 7" % (S_T1, S_CG))
    a("s_add_u32 s%d, s%d, s%d" % (S_T0, S_T0, S_T1))
    a("s_lshl_b32 s%d, s%d, 10" % (S_T0, S_T0))
    a("s_add_u32 s%d, s%d, %d" % (S_T0, S_T0, WS_A))
    a("s_add_u32 s%d, s%d, 4096" % (S_T1, S_T0))
    a("s_nop 7")
    for blk in range(7):
        G = V_ACC[blk]
        Uu = G + 8
        T = V_TMP
        for i in range(8):
            a("v_mul_f32 v%d, v%d, v%d" % (T + i, G + i, G + i))
        for i in range(8):
            a("v_fma_f32 v%d, v%d, v%d, v%d" % (T + i, T + i, V_C2, V_C1))
        for i in range(8):
            a("v_mul_f32 v%d, v%d, v%d" % (T + i, T + i, G + i))
        for i in range(8):
            a("v_exp_f32 v%d, v%d" % (T + i, T + i))
        for i in range(8):
            a("v_mul_f32 v%d, v%d, v%d" % (G + i, G + i, Uu + i))
        for i in range(8):
            a("v_fma_f32 v%d, v%d, v%d, v%d" % (T + i, T + i, V_VAR, V_VAR))
        for i in range(8):
            a("v_rcp_f32 v%d, v%d" % (T + i, T + i))
        a("s_nop 0")
        for i in range(8):
            a("v_mul_f32 v%d, v%d, v%d" % (G + i, G + i, T + i))
        o = V_TMP + 8 + 4 * (blk % 4)
        for i in range(4):
            a("v_cvt_pk_bf16_f32 v%d, v%d, v%d" % (o + i, G + 2 * i, G + 2 * i + 1))
        a("buffer_store_dwordx4 %s, v%d, s[20:23], s%d offen offset:%d" % (vr(o), V_L16, S_T0 if blk < 4 else S_T1, (blk % 4) * 1024))
    a.ts_flush("k4", S_WAVE, V_T)
    a.label("L_k4_end")
    a("s_endpgm")
    return name, 256, 0, (256, 512, NS4 * SL4)


def main():
    hdr = open("cdna_kernels/%s.s.ref" % NAME).read().split("\n")
    head = [l for l in hdr if l.startswith(";") and "@launch" not in l and "Override launch" not in l and "grid=ceil" not in l]
    a = Asm()
    ks = []
    ks.append(gen_f(a))
    out = "\n".join(head) + "\n"
    for name, nv, na, (g, b, lds) in ks:
        out += "; @launch grid=(%d,1,1) block=(%d,1,1) lds=%d\n" % (g, b, lds)
    out += '.amdgcn_target "amdgcn-amd-amdhsa--gfx950"\n.text\n'
    out += a.text()
    out += '.section .rodata,"a"\n'
    for name, nv, na, _ in ks:
        out += kernel_desc(name, nv, na)
    path = sys.argv[1] if len(sys.argv) > 1 else "cdna_kernels/%s.s" % NAME
    open(path, "w").write(out)


if __name__ == "__main__":
    main()
```

```python
import sys, math, struct

NAME = "sequential_preLN__softmax_full_mha__geglu_ffn__prompt"

MB = 1 << 20
WS_Q = 0
WS_K = 2 * MB
WS_V = 4 * MB
WS_O = 6 * MB
WS_H = 8 * MB
WS_A = 10 * MB
WS_WO = 17 * MB
WS_WD = 18 * MB
WS_GU = 20 * MB
WS_CS = 24 * MB
WS_ST = 25 * MB
WS_FL = 27 * MB + 768 * 1024
WS_SIZE = 28 * MB

ARG_X, ARG_WQKV, ARG_WO, ARG_BX, ARG_WG, ARG_WU, ARG_WD, ARG_OUT, ARG_DBG, ARG_WS = [8 * i for i in range(10)]

ONES_BF16 = 0x3F803F80


def f32bits(x):
    return struct.unpack("<I", struct.pack("<f", x))[0]


import os
INSTR = os.environ.get("INSTR", "")
WS_TS = 26 * MB


class Asm:
    def __init__(self):
        self.L = []
        self.nts = 0

    def ts(self, kern):
        if INSTR != kern and not (INSTR == "all" and len(kern) == 2):
            return
        if self.nts == 0:
            self("s_memrealtime s[92:93]")
        self("%s s[%d:%d]" % ("s_memrealtime" if os.environ.get("RT") else "s_memtime", 64 + 2 * self.nts, 65 + 2 * self.nts))
        self.nts += 1

    def tsv(self, lane, key="kv_"):
        if INSTR != key:
            return
        self("%s s[64:65]" % ("s_memtime" if os.environ.get("CYC") else "s_memrealtime"))
        self("s_waitcnt lgkmcnt(0)")
        self("v_cmp_eq_u32 vcc, %s, v1" % lane)
        self("v_mov_b32 v251, s64")
        self("s_nop 1")
        self("v_cndmask_b32 v250, v250, v251, vcc")

    def tsv_flush(self, swave, key="kv_"):
        if INSTR != key:
            return
        self("s_lshl_b32 s3, s2, 3")
        self("s_add_u32 s3, s3, s%d" % swave)
        self("s_lshl_b32 s3, s3, 8")
        self("s_add_u32 s3, s3, %d" % WS_TS)
        self("buffer_store_dword v250, v229, s[20:23], s3 offen")

    def ts_flush(self, kern, swave, vtmp):
        if INSTR != kern and not (INSTR == "all" and len(kern) == 2):
            return
        self("%s s[%d:%d]" % ("s_memrealtime" if os.environ.get("RT") else "s_memtime", 64 + 2 * self.nts, 65 + 2 * self.nts))
        self.nts += 1
        self("s_memrealtime s[94:95]")
        self("s_waitcnt lgkmcnt(0)")
        if os.environ.get("AMP"):
            ia, ib, kk = [int(x) for x in os.environ["AMP"].split(",")]
            self("s_cmp_lg_u32 s%d, 7" % swave)
            self("s_cbranch_scc1 L_amp_done")
            self("s_sub_u32 s3, s%d, s%d" % (64 + 2 * ib, 64 + 2 * ia))
            self("s_mul_i32 s3, s3, %d" % kk)
            self("s_min_u32 s3, s3, 100000")
            self.label("L_amp_spin")
            self("s_memrealtime s[36:37]")
            self("s_waitcnt lgkmcnt(0)")
            self("s_sub_u32 s36, s36, s94")
            self("s_cmp_lt_u32 s36, s3")
            self("s_cbranch_scc1 L_amp_spin")
            self.label("L_amp_done")
        if os.environ.get("DBGOUT"):
            self("s_cmp_lg_u32 s2, %s" % os.environ["DBGOUT"])
            self("s_cbranch_scc1 L_dbg_skip")
            self("s_cmp_lg_u32 s%d, 7" % swave)
            self("s_cbranch_scc1 L_dbg_skip")
            self("v_mov_b32 v%d, 0" % vtmp)
            for i in range(1, self.nts):
                self("s_sub_u32 s3, s%d, s64" % (64 + 2 * i))
                self("s_and_b32 s36, s3, 0x7f")
                self("s_lshr_b32 s3, s3, 7")
                self("s_and_b32 s3, s3, 0x7f")
                self("s_lshl_b32 s3, s3, 8")
                self("s_or_b32 s3, s3, s36")
                self("s_or_b32 s3, s3, 0x80808080")
                self("v_mov_b32 v%d, s3" % (vtmp + 1))
                self("buffer_store_dword v%d, v%d, s[96:99], 0 offen offset:%d" % (vtmp + 1, vtmp, 4 * i))
                self("s_nop 1")
            self.label("L_dbg_skip")
        self("s_lshl_b32 s3, s2, 3")
        self("s_add_u32 s3, s3, s%d" % swave)
        self("s_lshl_b32 s3, s3, 6")
        self("s_add_u32 s3, s3, %d" % (WS_TS + (int(kern[1]) * 131072 if INSTR == "all" else 0)))
        self("v_mov_b32 v%d, 0" % vtmp)
        for i in range(self.nts):
            self("v_mov_b32 v%d, s%d" % (vtmp + 1, 64 + 2 * i))
            self("buffer_store_dword v%d, v%d, s[20:23], s3 offen offset:%d" % (vtmp + 1, vtmp, 4 * i))
            self("s_nop 1")
        for i, r in enumerate((92, 94)):
            self("v_mov_b32 v%d, s%d" % (vtmp + 1, r))
            self("buffer_store_dword v%d, v%d, s[20:23], s3 offen offset:%d" % (vtmp + 1, vtmp, 56 + 4 * i))
            self("s_nop 1")
        self.nts = 0

    def __call__(self, s):
        for line in s.strip("\n").split("\n"):
            self.L.append("    " + line.strip())

    def label(self, s):
        self.L.append(s + ":")

    def raw(self, s):
        self.L.append(s)

    def text(self):
        return "\n".join(self.L) + "\n"


def vr(b, n=4):
    return "v[%d:%d]" % (b, b + n - 1)


def ar(b, n=4):
    return "a[%d:%d]" % (b, b + n - 1)


def srd(a, sbase, sptr, nbytes):
    a("s_mov_b32 s%d, s%d" % (sbase, sptr))
    a("s_mov_b32 s%d, s%d" % (sbase + 1, sptr + 1))
    a("s_mov_b32 s%d, 0x%x" % (sbase + 2, nbytes))
    a("s_mov_b32 s%d, 0x00020000" % (sbase + 3))


def kernel_begin(a, name):
    a.raw(".globl %s" % name)
    a.raw(".p2align 8")
    a.raw(".type %s,@function" % name)
    a.label(name)


def kernel_desc(name, nvgpr, nagpr, nsgpr=102):
    acc = (nvgpr + 3) // 4 * 4
    nfv = acc + nagpr if nagpr else nvgpr
    return """.p2align 6
.amdhsa_kernel %s
  .amdhsa_next_free_vgpr %d
  .amdhsa_next_free_sgpr %d
  .amdhsa_accum_offset %d
  .amdhsa_group_segment_fixed_size 0
  .amdhsa_kernarg_size 80
  .amdhsa_user_sgpr_count 2
  .amdhsa_user_sgpr_kernarg_segment_ptr 1
  .amdhsa_system_sgpr_workgroup_id_x 1
.end_amdhsa_kernel
""" % (name, nfv, nsgpr, acc)


def interleave(main, fill, per=None):
    out = []
    n = len(main)
    fi = 0
    for i, m in enumerate(main):
        out.append(m)
        tgt = (len(fill) * (i + 1) + n - 1) // n if per is None else min(len(fill), per * (i + 1))
        while fi < tgt:
            out.append(fill[fi])
            fi += 1
    out += fill[fi:]
    return out


class Lds:
    def __init__(self, a):
        self.a = a
        self.n = 0
        self.done = 0
        self.idx = {}

    def op(self, text, tag=None):
        self.a(text)
        self.n += 1
        if tag is not None:
            self.idx[tag] = self.n

    def need(self, *tags):
        k = max(self.idx[t] for t in tags)
        if k > self.done:
            w = self.n - k
            assert w <= 15
            self.a("s_waitcnt lgkmcnt(%d)" % w)
            self.done = k

    def drain(self):
        if self.done < self.n:
            self.a("s_waitcnt lgkmcnt(0)")
            self.done = self.n


def make_sel(a, vlane, vsel, vt):
    a("v_lshrrev_b32 v%d, 2, v%d" % (vt, vlane))
    a("v_lshrrev_b32 v%d, 4, v%d" % (vsel, vlane))
    a("v_xor_b32 v%d, v%d, v%d" % (vt, vt, vsel))
    a("v_and_b32 v%d, 1, v%d" % (vt, vt))
    a("v_add_u32 v%d, -1, v%d" % (vt, vt))
    a("v_and_b32 v%d, 0x%x, v%d" % (vsel, ONES_BF16, vt))
    for i in range(1, 4):
        a("v_mov_b32 v%d, v%d" % (vsel + i, vsel))


def split_hi_lo_A(a, vc, vdst, vt, smask):
    a("v_cvt_pk_bf16_f32 v%d, v%d, v%d" % (vt, vc, vc))
    a("v_and_b32 v%d, s%d, v%d" % (vt, smask, vt))
    a("v_sub_f32 v%d, v%d, v%d" % (vt, vc, vt))
    a("v_cvt_pk_bf16_f32 v%d, v%d, v%d" % (vdst, vc, vt))
    a("v_mov_b32 v%d, v%d" % (vdst + 1, vdst))
    a("v_mov_b32 v%d, 0" % (vdst + 2))
    a("v_mov_b32 v%d, 0" % (vdst + 3))


def split_hi_lo_B(a, vm, vdst, vt, smask):
    a("v_cvt_pk_bf16_f32 v%d, v%d, v%d" % (vdst, vm, vm))
    a("v_and_b32 v%d, s%d, v%d" % (vt, smask, vdst))
    a("v_sub_f32 v%d, v%d, v%d" % (vt, vm, vt))
    a("v_cvt_pk_bf16_f32 v%d, v%d, v%d" % (vdst + 1, vt, vt))
    a("v_mov_b32 v%d, 0" % (vdst + 2))
    a("v_mov_b32 v%d, 0" % (vdst + 3))


def sum_halves(a, v, vt):
    a("v_mov_b32 v%d, v%d" % (vt, v))
    a("s_nop 1")
    a("v_permlane32_swap_b32 v%d, v%d" % (v, vt))
    a("s_nop 1")
    a("v_add_f32 v%d, v%d, v%d" % (v, v, vt))


SLOT = 28672
NSLOT = 5
K1_DIST = int(os.environ.get('K1_DIST', 2))
DIAG = os.environ.get('DIAG', '')
K1_ROT = int(os.environ.get('K1_ROT', 1))
K4_ROT = int(os.environ.get('K4_ROT', 0))
K2_ROT = int(os.environ.get('K2_ROT', 0))
K4_DIST = int(os.environ.get('K4_DIST', 2))


def slot_base_adjust(stage):
    slot = stage % NSLOT
    return (slot // 2) * 2 * SLOT, (slot % 2) * SLOT


def gen_k1(a):
    name = "k1_qkv_kernel"
    kernel_begin(a, name)
    NS1 = 4
    LDS_SCR = NS1 * SLOT
    SCR_RS, SCR_BF = LDS_SCR + 1536, LDS_SCR + 2048
    S_WAVE, S_RB, S_CG, S_KC, S_SX, S_SW, S_T0, S_T1, S_MASK, S_M0X, S_M0W = 24, 25, 26, 27, 28, 29, 30, 31, 32, 33, 34
    S_ROLE = 42
    V_LANE = 1
    V_T = 2
    V_DX = 8
    V_DW = 12
    V_AX = 13
    V_AW = 17
    V_SEL = 24
    V_SQ = 28
    V_X = [32, 36]
    V_W = [[40, 44, 48], [52, 56, 60]]
    V_ACC = [64, 80, 96]
    V_TMP = 112
    a("s_cmp_ge_u32 s2, 256")
    a("s_cbranch_scc1 L_k1_end")
    a.ts("k1")
    a("s_load_dwordx4 s[4:7], s[0:1], %d" % ARG_X)
    a("s_load_dwordx2 s[8:9], s[0:1], %d" % ARG_WS)
    a("v_lshrrev_b32 v%d, 6, v0" % V_T)
    a("v_and_b32 v%d, 63, v0" % V_LANE)
    a("v_readfirstlane_b32 s%d, v%d" % (S_ROLE, V_T))
    a("s_and_b32 s3, s2, 7")
    a("s_lshr_b32 s%d, s2, 3" % S_T0)
    a("s_lshr_b32 s%d, s3, 1" % S_RB)
    a("s_lshl_b32 s%d, s%d, 2" % (S_RB, S_RB))
    a("s_and_b32 s%d, s%d, 3" % (S_T1, S_T0))
    a("s_add_u32 s%d, s%d, s%d" % (S_RB, S_RB, S_T1))
    a("s_and_b32 s%d, s3, 1" % S_CG)
    a("s_lshl_b32 s%d, s%d, 3" % (S_CG, S_CG))
    a("s_lshr_b32 s%d, s%d, 2" % (S_T1, S_T0))
    a("s_add_u32 s%d, s%d, s%d" % (S_CG, S_CG, S_T1))
    a("s_and_b32 s%d, s%d, 3" % (S_WAVE, S_ROLE))
    a("s_lshl_b32 s%d, s%d, 12" % (S_M0X, S_WAVE))
    a("s_mul_i32 s%d, s%d, 3072" % (S_M0W, S_WAVE))
    a("s_add_u32 s%d, s%d, 16384" % (S_M0W, S_M0W))
    a("s_mov_b32 s%d, 0xffff0000" % S_MASK)

    def lds_addr_setup(rotate):
        a("v_and_b32 v%d, 31, v%d" % (V_T, V_LANE))
        a("v_and_b32 v%d, 3, v%d" % (V_T + 1, V_LANE))
        a("v_lshrrev_b32 v%d, 2, v%d" % (V_T + 2, V_T))
        a("v_lshlrev_b32 v%d, 7, v%d" % (V_T + 2, V_T + 2))
        a("v_lshl_add_u32 v%d, v%d, 10, v%d" % (V_T + 2, V_T + 1, V_T + 2))
        a("v_add_u32 v%d, s%d, v%d" % (V_T + 2, S_M0X, V_T + 2))
        a("v_lshrrev_b32 v%d, 1, v%d" % (V_T + 3, V_T))
        a("v_and_b32 v%d, 4, v%d" % (V_T + 3, V_T + 3))
        a("v_or_b32 v%d, v%d, v%d" % (V_T + 3, V_T + 3, V_T + 1))
        a("v_lshrrev_b32 v%d, 5, v%d" % (V_T + 4, V_LANE))
        a("v_xor_b32 v%d, v%d, v%d" % (V_T + 3, V_T + 3, V_T + 4))
        a("v_bfe_u32 v%d, v%d, 2, 2" % (V_T + 5, V_LANE))
        a("v_lshl_add_u32 v%d, v%d, 3, v%d" % (V_T + 5, V_T + 4, V_T + 5))
        a("v_lshlrev_b32 v%d, 6, v%d" % (V_T + 5, V_T + 5))
        a("v_bfe_u32 v%d, v%d, 4, 1" % (V_T + 4, V_LANE))
        a("v_lshl_add_u32 v%d, v%d, 5, v%d" % (V_T + 5, V_T + 4, V_T + 5))
        a("v_lshl_add_u32 v%d, v%d, 3, v%d" % (V_T + 5, V_T + 1, V_T + 5))
        for ks in range(4):
            a("v_xor_b32 v%d, %d, v%d" % (V_T + 4, 2 * ks, V_T + 3))
            a("v_lshl_add_u32 v%d, v%d, 4, v%d" % (V_AX + ks, V_T + 4, V_T + 2))

    a("s_cmp_ge_u32 s%d, 8" % S_ROLE)
    a("s_cbranch_scc1 L_k1_stats")
    a("s_cmp_ge_u32 s%d, 4" % S_ROLE)
    a("s_cbranch_scc1 L_k1_compute")
    if K1_ROT:
        a("s_add_u32 s%d, s%d, s%d" % (S_KC, S_RB, S_CG))
        a("s_and_b32 s%d, s%d, 7" % (S_KC, S_KC))
    else:
        a("s_mov_b32 s%d, 0" % S_KC)
    a("v_lshrrev_b32 v%d, 3, v%d" % (V_T, V_LANE))
    a("v_lshlrev_b32 v%d, 12, v%d" % (V_T, V_T))
    a("v_and_b32 v%d, 7, v%d" % (V_T + 1, V_LANE))
    a("v_lshrrev_b32 v%d, 2, v%d" % (V_T + 2, V_LANE))
    a("v_and_b32 v%d, 4, v%d" % (V_T + 2, V_T + 2))
    a("v_xor_b32 v%d, v%d, v%d" % (V_T + 1, V_T + 1, V_T + 2))
    for q in range(4):
        a("v_xor_b32 v%d, %d, v%d" % (V_T + 3, q, V_T + 1))
        a("v_lshl_add_u32 v%d, v%d, 4, v%d" % (V_DX + q, V_T + 3, V_T))
    a("v_lshrrev_b32 v%d, 2, v%d" % (V_T, V_LANE))
    a("v_mul_u32_u24 v%d, 3072, v%d" % (V_T, V_T))
    a("v_and_b32 v%d, 3, v%d" % (V_T + 1, V_LANE))
    a("v_lshl_add_u32 v%d, v%d, 4, v%d" % (V_DW, V_T + 1, V_T))
    a("s_lshl_b32 s%d, s%d, 2" % (S_T0, S_RB))
    a("s_add_u32 s%d, s%d, s%d" % (S_T0, S_T0, S_WAVE))
    a("s_lshl_b32 s%d, s%d, 15" % (S_SX, S_T0))
    a("s_mul_i32 s%d, s%d, %d" % (S_SW, S_WAVE, 16 * 3072))
    a("s_lshl_b32 s%d, s%d, 6" % (S_T1, S_CG))
    a("s_add_u32 s%d, s%d, s%d" % (S_SW, S_SW, S_T1))
    S_OX, S_OW, S_SLOT, S_CNT, S_RD = 38, 39, 40, 41, 43
    a("s_mov_b32 s%d, 0" % S_SLOT)
    a("s_mov_b32 s%d, 0" % S_CNT)
    a("s_waitcnt lgkmcnt(0)")
    srd(a, 12, 4, 2048 * 1024)
    srd(a, 16, 6, 512 * 3072)

    def issue():
        a("s_lshl_b32 s%d, s%d, 7" % (S_OX, S_KC))
        a("s_add_u32 s%d, s%d, s%d" % (S_OX, S_OX, S_SX))
        a("s_add_u32 m0, s%d, s%d" % (S_M0X, S_SLOT))
        a("s_mul_i32 s%d, s%d, %d" % (S_OW, S_KC, 64 * 3072))
        for q in range(4):
            a("buffer_load_dwordx4 v%d, s[12:15], s%d offen offset:%d lds" % (V_DX + q, S_OX, q * 1024))
        a("s_add_u32 m0, s%d, s%d" % (S_M0W, S_SLOT))
        a("s_add_u32 s%d, s%d, s%d" % (S_OW, S_OW, S_SW))
        for sx in range(3):
            a("buffer_load_dwordx4 v%d, s[16:19], s%d offen offset:%d lds" % (V_DW, S_OW, sx * 1024))
        a("s_add_u32 s%d, s%d, 1" % (S_KC, S_KC))
        a("s_and_b32 s%d, s%d, 7" % (S_KC, S_KC))
        a("s_add_u32 s%d, s%d, %d" % (S_SLOT, S_SLOT, SLOT))
        a("s_cmp_eq_u32 s%d, %d" % (S_SLOT, NS1 * SLOT))
        a("s_cselect_b32 s%d, 0, s%d" % (S_SLOT, S_SLOT))

    a.label("L_k1_ld")
    issue()
    a("s_add_u32 s%d, s%d, 1" % (S_CNT, S_CNT))
    a("s_cmp_lt_u32 s%d, %d" % (S_CNT, K1_DIST))
    a("s_cbranch_scc1 L_k1_ld")
    a("s_waitcnt vmcnt(%d)" % (7 * (K1_DIST - 1)))
    a("s_barrier")
    a("s_cmp_lt_u32 s%d, 8" % S_CNT)
    a("s_cbranch_scc1 L_k1_ld")
    for r in range(K1_DIST - 2, -1, -1):
        a("s_waitcnt vmcnt(%d)" % (7 * r))
        a("s_barrier")
    a("s_endpgm")
    a.label("L_k1_stats")
    LX = [64, 68, 72, 76]
    LW = [80, 84, 88]
    L_SX = 92
    L_CS = [96, 100, 104]
    lds_addr_setup(False)
    a("v_add_u32 v%d, s%d, v%d" % (V_AW, S_M0W, V_T + 5))
    make_sel(a, V_LANE, V_SEL, V_T)
    for r in [V_SQ, V_SQ + 1] + list(range(L_SX, L_SX + 16)):
        a("v_mov_b32 v%d, 0" % r)
    a("s_mov_b32 s44, %d" % SLOT)
    a("s_mov_b32 s%d, 0" % S_CNT)
    a.label("L_k1_st")
    a("s_barrier")
    for ks in range(4):
        a("ds_read_b128 %s, v%d" % (vr(LX[ks]), V_AX + ks))
    for sx in range(3):
        for rd in range(2):
            a("ds_read_b64_tr_b16 %s, v%d offset:%d" % (vr(LW[sx] + 2 * rd, 2), V_AW, sx * 1024 + rd * 256))
    a("s_add_u32 s%d, s%d, 1" % (S_CNT, S_CNT))
    a("s_and_b32 s%d, s%d, %d" % (S_T0, S_CNT, NS1 - 1))
    a("s_cmp_eq_u32 s%d, 0" % S_T0)
    a("s_cselect_b32 s%d, %d, s44" % (S_RD, -(NS1 - 1) * SLOT))
    for ks in range(4):
        a("s_waitcnt lgkmcnt(%d)" % (9 - ks))
        a("v_mfma_f32_16x16x32_bf16 %s, %s, %s, %s" % (vr(L_SX), vr(V_SEL), vr(LX[ks]), vr(L_SX)))
        for d in range(4):
            t0, t1 = V_TMP + 2 * (d % 2), V_TMP + 2 * (d % 2) + 1
            a("v_lshlrev_b32 v%d, 16, v%d" % (t0, LX[ks] + d))
            a("v_and_b32 v%d, s%d, v%d" % (t1, S_MASK, LX[ks] + d))
            a("v_fmac_f32 v%d, v%d, v%d" % (V_SQ, t0, t0))
            a("v_fmac_f32 v%d, v%d, v%d" % (V_SQ + 1, t1, t1))
        if ks == 1:
            a("s_waitcnt lgkmcnt(0)")
            for sx in range(3):
                a("v_mfma_f32_16x16x32_bf16 %s, %s, %s, %s" % (vr(L_CS[sx]), vr(V_SEL), vr(LW[sx]), vr(L_CS[sx])))
    for r in list(range(V_AX, V_AX + 4)) + [V_AW]:
        a("v_add_u32 v%d, s%d, v%d" % (r, S_RD, r))
    a("s_cmp_lt_u32 s%d, 8" % S_CNT)
    a("s_cbranch_scc1 L_k1_st")
    a("v_and_b32 v%d, 31, v%d" % (V_T, V_LANE))
    a("v_lshlrev_b32 v%d, 2, v%d" % (V_T, V_T))
    a("s_mul_i32 s%d, s%d, 384" % (S_T0, S_WAVE))
    a("s_add_u32 s%d, s%d, %d" % (S_T0, S_T0, LDS_SCR))
    a("v_add_u32 v%d, s%d, v%d" % (V_T + 1, S_T0, V_T))
    for sx in range(3):
        a("ds_write_b32 v%d, v%d offset:%d" % (V_T + 1, L_CS[sx], sx * 128))
    a("v_add_f32 v%d, v%d, v%d" % (V_SQ, V_SQ, V_SQ + 1))
    sum_halves(a, V_SQ, V_SQ + 1)
    V_MU, V_RS = V_SQ + 2, V_SQ + 3
    a("v_mul_f32 v%d, 0x%x, v%d" % (V_MU, f32bits(1.0 / 512), L_SX))
    a("v_mul_f32 v%d, 0x%x, v%d" % (V_SQ, f32bits(1.0 / 512), V_SQ))
    a("v_fma_f32 v%d, -v%d, v%d, v%d" % (V_SQ, V_MU, V_MU, V_SQ))
    a("v_max_f32 v%d, 0, v%d" % (V_SQ, V_SQ))
    a("v_add_f32 v%d, 0x%x, v%d" % (V_SQ, f32bits(1e-5), V_SQ))
    a("v_rsq_f32 v%d, v%d" % (V_RS, V_SQ))
    a("v_sub_f32 v%d, 0, v%d" % (V_MU, V_MU))
    a("s_lshl_b32 s%d, s%d, 7" % (S_T0, S_WAVE))
    a("s_add_u32 s%d, s%d, %d" % (S_T0, S_T0, SCR_RS))
    a("v_add_u32 v%d, s%d, v%d" % (V_T + 2, S_T0, V_T))
    a("ds_write_b32 v%d, v%d" % (V_T + 2, V_RS))
    split_hi_lo_B(a, V_MU, LX[0], V_T + 4, S_MASK)
    a("s_lshl_b32 s%d, s%d, 9" % (S_T0, S_WAVE))
    a("s_add_u32 s%d, s%d, %d" % (S_T0, S_T0, SCR_BF))
    a("v_lshl_add_u32 v%d, v%d, 3, s%d" % (V_T + 3, V_LANE, S_T0))
    a("ds_write_b64 v%d, %s" % (V_T + 3, vr(LX[0], 2)))
    a("s_waitcnt lgkmcnt(0)")
    a("s_barrier")
    a("s_endpgm")
    a.label("L_k1_compute")
    lds_addr_setup(False)
    a("v_add_u32 v%d, 16384, v%d" % (V_AW, V_T + 5))
    V_ECS, V_ERS, V_ERV, V_EBF, V_OQ, V_OV = 18, 19, 20, 21, 22, 23
    a("v_and_b32 v%d, 31, v%d" % (V_T, V_LANE))
    a("v_lshlrev_b32 v%d, 2, v%d" % (V_T, V_T))
    a("v_lshrrev_b32 v%d, 5, v%d" % (V_T + 2, V_LANE))
    a("v_mul_u32_u24 v%d, 768, v%d" % (V_T + 3, V_T + 2))
    a("v_add_u32 v%d, v%d, v%d" % (V_T + 3, V_T + 3, V_T))
    a("v_add_u32 v%d, %d, v%d" % (V_ECS, LDS_SCR, V_T + 3))
    a("s_lshl_b32 s%d, s%d, 7" % (S_T0, S_WAVE))
    a("s_add_u32 s%d, s%d, %d" % (S_T0, S_T0, SCR_RS))
    a("v_add_u32 v%d, s%d, v%d" % (V_ERS, S_T0, V_T))
    a("v_lshl_add_u32 v%d, v%d, 4, s%d" % (V_ERV, V_T + 2, S_T0))
    a("s_lshl_b32 s%d, s%d, 9" % (S_T0, S_WAVE))
    a("s_add_u32 s%d, s%d, %d" % (S_T0, S_T0, SCR_BF))
    a("v_lshl_add_u32 v%d, v%d, 3, s%d" % (V_EBF, V_LANE, S_T0))
    a("v_lshlrev_b32 v%d, 4, v%d" % (V_OQ, V_LANE))
    a("v_bfe_u32 v%d, v%d, 4, 1" % (V_T + 1, V_LANE))
    a("v_lshlrev_b32 v%d, 16, v%d" % (V_T + 1, V_T + 1))
    a("v_lshl_add_u32 v%d, v%d, 8, v%d" % (V_T + 1, V_T + 2, V_T + 1))
    a("v_and_b32 v%d, 15, v%d" % (V_T + 2, V_LANE))
    a("v_lshl_add_u32 v%d, v%d, 4, v%d" % (V_OV, V_T + 2, V_T + 1))
    a("s_lshl_b32 s%d, s%d, 2" % (S_T0, S_RB))
    a("s_add_u32 s%d, s%d, s%d" % (S_T0, S_T0, S_WAVE))
    a("s_lshl_b32 s%d, s%d, 10" % (S_T0, S_T0))
    a("s_lshl_b32 s%d, s%d, 17" % (S_T1, S_CG))
    a("s_add_u32 s%d, s%d, s%d" % (S_T0, S_T0, S_T1))
    a("s_add_u32 s%d, s%d, 65536" % (S_T1, S_T0))
    a("s_add_u32 s35, s%d, %d" % (S_T0, WS_K))
    a("s_add_u32 s36, s%d, %d" % (S_T1, WS_K))
    a("s_add_u32 s37, s%d, %d" % (S_T0, WS_V))
    VB = V_TMP
    VA = [V_TMP + 4, V_TMP + 8, V_TMP + 12]
    for r in (VB + 2, VB + 3):
        a("v_mov_b32 v%d, 0" % r)
    cur_base = [0]

    def reads(P):
        st, ks = P // 4, P % 4
        slot = st % NS1
        base, imm = (slot // 2) * 2 * SLOT, (slot % 2) * SLOT
        out = []
        if base != cur_base[0]:
            d = base - cur_base[0]
            for r in list(range(V_AX, V_AX + 4)) + [V_AW]:
                out.append("v_add_u32 v%d, %d, v%d" % (r, d, r) if d > 0 else "v_subrev_u32 v%d, %d, v%d" % (r, -d, r))
            cur_base[0] = base
        b = P % 2
        out.append("ds_read_b128 %s, v%d offset:%d" % (vr(V_X[b]), V_AX + ks, imm))
        for sx in range(3):
            for rd in range(2):
                out.append("ds_read_b64_tr_b16 %s, v%d offset:%d" % (vr(V_W[b][sx] + 2 * rd, 2), V_AW, imm + ks * 3072 + sx * 1024 + rd * 256))
        return out

    a("s_waitcnt lgkmcnt(0)")
    srd(a, 20, 8, WS_SIZE)
    a("s_cmp_ge_u32 s2, 4")
    a("s_cbranch_scc1 L_k1_nozero")
    for r in range(4):
        a("v_mov_b32 v%d, 0" % (V_ACC[0] + r))
    a("s_lshl_b32 s3, s2, 2")
    a("s_add_u32 s3, s3, s%d" % S_WAVE)
    a("s_lshl_b32 s3, s3, 10")
    a("s_add_u32 s3, s3, %d" % WS_FL)
    a("buffer_store_dwordx4 %s, v%d, s[20:23], s3 offen" % (vr(V_ACC[0]), V_OQ))
    a.label("L_k1_nozero")
    a.ts("k1")
    a("s_barrier")
    a.ts("k1")
    for l in reads(0):
        a(l)
    for P in range(32):
        st, pos = P // 4, P % 4
        b = P % 2
        a("s_waitcnt lgkmcnt(0)")
        if pos == 3 and P < 31:
            a("s_barrier")
        rd = reads(P + 1) if P < 31 else []
        X = vr(V_X[b])
        c = lambda r, n=16: ("0" if P == 0 else vr(r, n))
        m = []
        m.append("v_mfma_f32_32x32x16_bf16 %s, %s, %s, %s" % (vr(V_ACC[0], 16), vr(V_W[b][0]), X, c(V_ACC[0])))
        m.append("v_mfma_f32_32x32x16_bf16 %s, %s, %s, %s" % (vr(V_ACC[1], 16), vr(V_W[b][1]), X, c(V_ACC[1])))
        m.append("v_mfma_f32_32x32x16_bf16 %s, %s, %s, %s" % (vr(V_ACC[2], 16), X, vr(V_W[b][2]), c(V_ACC[2])))
        nfirst = 3 if len(rd) <= 8 else 8
        for l in rd[:nfirst]:
            a(l)
        for l in interleave(m, rd[nfirst:], per=2):
            a(l)
    a.ts("k1")
    a("s_barrier")
    VC = V_TMP + 16
    V_RS = V_TMP + 22
    V_RQ = V_TMP + 23
    VR = V_TMP + 24
    for sx in range(3):
        a("ds_read2_b32 %s, v%d offset0:%d offset1:%d" % (vr(VC + 2 * sx, 2), V_ECS, sx * 32, sx * 32 + 96))
    a("ds_read_b64 %s, v%d" % (vr(VB, 2), V_EBF))
    a("ds_read_b32 v%d, v%d" % (V_RS, V_ERS))
    for q in range(4):
        a("ds_read_b128 %s, v%d offset:%d" % (vr(VR + 4 * q), V_ERV, q * 32))
    for sx in range(3):
        a("s_waitcnt lgkmcnt(%d)" % (8 - sx))
        a("v_add_f32 v%d, v%d, v%d" % (VC + 2 * sx, VC + 2 * sx, VC + 2 * sx + 1))
        split_hi_lo_A(a, VC + 2 * sx, VA[sx], V_T + 4, S_MASK)
    a("s_waitcnt lgkmcnt(4)")
    a("v_mul_f32 v%d, 0x%x, v%d" % (V_RQ, f32bits(0.25 * math.log2(math.e)), V_RS))
    a("v_mfma_f32_32x32x16_bf16 %s, %s, %s, %s" % (vr(V_ACC[0], 16), vr(VA[0]), vr(VB), vr(V_ACC[0], 16)))
    a("v_mfma_f32_32x32x16_bf16 %s, %s, %s, %s" % (vr(V_ACC[1], 16), vr(VA[1]), vr(VB), vr(V_ACC[1], 16)))
    a("v_mfma_f32_32x32x16_bf16 %s, %s, %s, %s" % (vr(V_ACC[2], 16), vr(VB), vr(VA[2]), vr(V_ACC[2], 16)))
    a("s_nop 9")
    VO = V_X[0]
    k = 0
    for blk, sc, soffs in ((0, V_RQ, (S_T0, S_T1)), (1, V_RS, (35, 36))):
        for half in range(2):
            o = VO + 4 * k
            k += 1
            for i in range(8):
                r = V_ACC[blk] + 8 * half + i
                a("v_mul_f32 v%d, v%d, v%d" % (r, sc, r))
            for i in range(4):
                r = V_ACC[blk] + 8 * half + 2 * i
                a("v_cvt_pk_bf16_f32 v%d, v%d, v%d" % (o + i, r, r + 1))
            a("buffer_store_dwordx4 %s, v%d, s[20:23], s%d offen" % (vr(o), V_OQ, soffs[half]))
    a("s_waitcnt lgkmcnt(0)")
    for half in range(2):
        o = VO + 4 * k
        k += 1
        for i in range(8):
            r = V_ACC[2] + 8 * half + i
            a("v_mul_f32 v%d, v%d, v%d" % (r, VR + 8 * half + i, r))
        for i in range(4):
            r = V_ACC[2] + 8 * half + 2 * i
            a("v_cvt_pk_bf16_f32 v%d, v%d, v%d" % (o + i, r, r + 1))
        a("buffer_store_dwordx4 %s, v%d, s[20:23], s37 offen offset:%d" % (vr(o), V_OV, half * 512))
    a.ts_flush("k1", S_WAVE, V_T)
    a.label("L_k1_end")
    a("s_endpgm")
    return name, 152, 0, (256, 768, LDS_SCR + 4096)


def gen_k2(a):
    name = "k2_attn_kernel"
    kernel_begin(a, name)
    S_WAVE, S_H, S_QB, S_T0, S_T1, S_T2, S_T3 = 40, 41, 42, 43, 44, 45, 46
    S_ITER, S_SYNC, S_PASS, S_NT = 47, 48, 49, 50
    S_TASK, S_STG, S_DST0, S_DST1, S_TYPE = 51, 52, 53, 54, 55
    S_VMASK = 56
    S_CS = 58
    S_KB, S_W1K, S_CH = 59, 60, 61
    S_PE, S_PO, S_PS = 36, 37, 38
    V_LANE, V_L16, V_T = 1, 2, 3
    V_KA, V_VA = 10, 11
    V_Q = 12
    V_K = [16, 20]
    V_V = [24, 32]
    V_P = 40
    V_CM = 48
    V_S = [64, 80]
    V_O = 96
    V_MAX = 112
    V_PK = 113
    V_PD = 114
    V_SEL = 116
    V_PCS = [120, 124]
    STG = 131072
    a("s_cmp_ge_u32 s2, 256")
    a("s_cbranch_scc1 L_k2_end")
    a.ts("k2")
    a.ts("k2b")
    a("s_load_dwordx2 s[8:9], s[0:1], %d" % ARG_WS)
    a("s_load_dwordx2 s[4:5], s[0:1], %d" % ARG_WO)
    a("s_load_dwordx4 s[24:27], s[0:1], %d" % ARG_WG)
    a("s_load_dwordx2 s[6:7], s[0:1], %d" % ARG_WD)
    a("v_lshrrev_b32 v%d, 6, v0" % V_T)
    a("v_and_b32 v%d, 63, v0" % V_LANE)
    a("v_readfirstlane_b32 s%d, v%d" % (S_WAVE, V_T))
    a("v_lshlrev_b32 v%d, 4, v%d" % (V_L16, V_LANE))
    a("s_and_b32 s%d, s2, 7" % S_H)
    a("s_lshl_b32 s%d, s%d, 2" % (S_H, S_H))
    a("s_lshr_b32 s%d, s2, 6" % S_T0)
    a("s_add_u32 s%d, s%d, s%d" % (S_H, S_H, S_T0))
    a("s_lshr_b32 s%d, s2, 3" % S_QB)
    a("s_and_b32 s%d, s%d, 7" % (S_QB, S_QB))
    a("s_lshl_b32 s%d, s%d, 16" % (S_KB, S_H))
    a("s_lshl_b32 s%d, s%d, 10" % (S_W1K, S_WAVE))
    a("s_add_u32 s%d, s%d, s%d" % (S_KB, S_KB, S_W1K))
    a("s_lshl_b32 s%d, s%d, 13" % (S_CH, S_QB))
    a("s_add_u32 s%d, s%d, s%d" % (S_T3, S_KB, S_CH))
    a("s_add_u32 s%d, s%d, %d" % (S_KB, S_KB, WS_K))
    if not K2_ROT:
        a("s_mov_b32 s%d, 0" % S_CH)
    a("s_waitcnt lgkmcnt(0)")
    a.ts("k2b")
    srd(a, 20, 8, WS_SIZE)
    a("buffer_load_dwordx4 %s, v%d, s[20:23], s%d offen" % (vr(V_Q), V_L16, S_T3))
    if INSTR == "k2b":
        a("s_waitcnt vmcnt(0)")
    a.ts("k2b")

    def kv_dma(c):
        return [["s_add_u32 s%d, s%d, s%d" % (S_T3, S_KB, S_CH),
                 "s_add_u32 m0, s%d, %d" % (S_W1K, c * 8192),
                 "s_add_u32 s%d, s%d, 8192" % (S_CH, S_CH),
                 "buffer_load_dwordx4 v%d, s[20:23], s%d offen lds" % (V_L16, S_T3)],
                ["s_add_u32 s%d, s%d, %d" % (S_T3, S_T3, WS_V - WS_K),
                 "s_add_u32 m0, s%d, %d" % (S_W1K, 65536 + c * 8192),
                 "s_and_b32 s%d, s%d, 0xffff" % (S_CH, S_CH),
                 "buffer_load_dwordx4 v%d, s[20:23], s%d offen lds" % (V_L16, S_T3)]]

    for c in range(2):
        for g in kv_dma(c):
            for l in g:
                a(l)
    a("s_mov_b32 s%d, 0" % S_TYPE)
    a("s_cmp_lt_u32 s%d, 4" % S_WAVE)
    a("s_cbranch_scc1 L_k2_nopack")
    a("s_lshl_b32 s%d, s2, 2" % S_TASK)
    a("s_add_u32 s%d, s%d, s%d" % (S_TASK, S_TASK, S_WAVE))
    a("s_sub_u32 s%d, s%d, 4" % (S_TASK, S_TASK))
    a("s_cmp_ge_u32 s%d, 736" % S_TASK)
    a("s_cbranch_scc1 L_k2_nopack")
    a("s_lshl_b32 s%d, s%d, 13" % (S_STG, S_WAVE))
    a("s_add_u32 s%d, s%d, %d" % (S_STG, S_STG, STG - 4 * 8192))
    a("v_lshrrev_b32 v%d, 2, v%d" % (V_T, V_LANE))
    a("v_and_b32 v%d, 3, v%d" % (V_T + 1, V_LANE))
    a("s_cmp_ge_u32 s%d, 448" % S_TASK)
    a("s_cbranch_scc1 L_k2_packn")
    a("s_mov_b32 s%d, 1" % S_TYPE)
    srd(a, 28, 24, 512 * 3584)
    srd(a, 32, 26, 512 * 3584)
    a("v_mul_u32_u24 v%d, 3584, v%d" % (V_T, V_T))
    a("v_lshl_add_u32 v%d, v%d, 4, v%d" % (V_PD, V_T + 1, V_T))
    a("s_and_b32 s%d, s%d, 7" % (S_T0, S_TASK))
    a("s_lshr_b32 s%d, s%d, 3" % (S_T1, S_TASK))
    a("s_mul_i32 s%d, s%d, %d" % (S_PE, S_T0, 64 * 3584))
    a("s_lshl_b32 s%d, s%d, 6" % (S_T2, S_T1))
    a("s_add_u32 s%d, s%d, s%d" % (S_PE, S_PE, S_T2))
    a("s_mov_b32 s%d, s%d" % (S_PO, S_PE))
    a("s_mov_b32 s%d, %d" % (S_PS, 16 * 3584))
    for hb, sd in ((0, S_DST0), (1, S_DST1)):
        a("s_lshl_b32 s%d, s%d, 1" % (S_T2, S_T1))
        if hb:
            a("s_add_u32 s%d, s%d, 1" % (S_T2, S_T2))
        a("s_mul_i32 s%d, s%d, 9363" % (S_CS, S_T2))
        a("s_lshr_b32 s%d, s%d, 16" % (S_CS, S_CS))
        a("s_mul_i32 s%d, s%d, 7" % (sd, S_CS))
        a("s_sub_u32 s%d, s%d, s%d" % (sd, S_T2, sd))
        a("s_mul_i32 s%d, s%d, %d" % (S_CS, S_CS, 32 * 7))
        a("s_add_u32 s%d, s%d, s%d" % (sd, sd, S_CS))
        a("s_mul_i32 s%d, s%d, 28" % (S_CS, S_T0))
        a("s_add_u32 s%d, s%d, s%d" % (sd, sd, S_CS))
        a("s_lshl_b32 s%d, s%d, 10" % (sd, sd))
        a("s_add_u32 s%d, s%d, %d" % (sd, sd, WS_GU))
    a("s_lshl_b32 s%d, s%d, 11" % (S_CS, S_T1))
    a("s_lshr_b32 s%d, s%d, 2" % (S_T2, S_T0))
    a("s_lshl_b32 s%d, s%d, 9" % (S_T2, S_T2))
    a("s_add_u32 s%d, s%d, s%d" % (S_CS, S_CS, S_T2))
    a("s_and_b32 s%d, s%d, 3" % (S_T2, S_T0))
    a("s_lshl_b32 s%d, s%d, 2" % (S_T2, S_T2))
    a("s_add_u32 s%d, s%d, s%d" % (S_CS, S_CS, S_T2))
    a("s_add_u32 s%d, s%d, %d" % (S_CS, S_CS, WS_CS))
    a("s_branch L_k2_nopack")
    a.label("L_k2_packn")
    a("s_mov_b32 s%d, 2" % S_TYPE)
    a("v_lshlrev_b32 v%d, 10, v%d" % (V_T, V_T))
    a("v_lshl_add_u32 v%d, v%d, 4, v%d" % (V_PD, V_T + 1, V_T))
    a("s_cmp_ge_u32 s%d, 512" % S_TASK)
    a("s_cbranch_scc1 L_k2_packd")
    srd(a, 28, 4, 512 * 1024)
    srd(a, 32, 4, 512 * 1024)
    a("s_sub_u32 s%d, s%d, 448" % (S_T0, S_TASK))
    a("s_lshr_b32 s%d, s%d, 2" % (S_T1, S_T0))
    a("s_and_b32 s%d, s%d, 3" % (S_T0, S_T0))
    a("s_lshl_b32 s%d, s%d, 15" % (S_DST0, S_T1))
    a("s_add_u32 s%d, s%d, %d" % (S_DST0, S_DST0, WS_WO))
    a("s_branch L_k2_packc")
    a.label("L_k2_packd")
    srd(a, 28, 6, 1792 * 1024)
    srd(a, 32, 6, 1792 * 1024)
    a("s_sub_u32 s%d, s%d, 512" % (S_T0, S_TASK))
    a("s_mul_i32 s%d, s%d, 4682" % (S_T1, S_T0))
    a("s_lshr_b32 s%d, s%d, 16" % (S_T1, S_T1))
    a("s_mul_i32 s%d, s%d, 14" % (S_T2, S_T1))
    a("s_sub_u32 s%d, s%d, s%d" % (S_T0, S_T0, S_T2))
    a("s_mul_i32 s%d, s%d, %d" % (S_DST0, S_T1, 112 * 1024))
    a("s_add_u32 s%d, s%d, %d" % (S_DST0, S_DST0, WS_WD))
    a.label("L_k2_packc")
    a("s_lshl_b32 s%d, s%d, 13" % (S_T2, S_T0))
    a("s_add_u32 s%d, s%d, s%d" % (S_DST0, S_DST0, S_T2))
    a("s_lshl_b32 s%d, s%d, 17" % (S_PE, S_T0))
    a("s_lshl_b32 s%d, s%d, 6" % (S_T2, S_T1))
    a("s_add_u32 s%d, s%d, s%d" % (S_PE, S_PE, S_T2))
    a("s_add_u32 s%d, s%d, 16384" % (S_PO, S_PE))
    a("s_mov_b32 s%d, 32768" % S_PS)
    a.label("L_k2_nopack")
    a("s_mov_b32 s%d, 0x0000ffff" % S_VMASK)
    a("s_mov_b32 s%d, 0x0000ffff" % (S_VMASK + 1))
    a("v_and_b32 v%d, 27, v%d" % (V_T, V_LANE))
    a("v_cmp_eq_u32 vcc, 16, v%d" % V_T)
    a("v_mov_b32 v%d, 0x%x" % (V_T + 1, ONES_BF16))
    a("s_nop 1")
    a("v_cndmask_b32 v%d, 0, v%d, vcc" % (V_V[0], V_T + 1))
    for i in range(1, 16):
        a("v_mov_b32 v%d, v%d" % (V_V[0] + i, V_V[0]))
    a("s_mov_b32 s%d, 0" % S_SYNC)
    a("s_mov_b32 s%d, 0" % S_PASS)
    a("s_mov_b32 s%d, 1" % S_NT)
    a("s_setprio 3")
    a.ts("k2b")
    a("s_waitcnt vmcnt(2)")
    a.ts("k2b")
    a("s_barrier")
    a.ts("k2")
    a.ts("k2b")
    a.label("L_k2_maxpass")
    a("v_mov_b32 v%d, 0xff800000" % V_MAX)
    a("v_mov_b32 v%d, v%d" % (V_KA, V_L16))
    a.label("L_k2_mloop")
    a("ds_read_b128 %s, v%d" % (vr(V_K[0]), V_KA))
    a("v_add_u32 v%d, 1024, v%d" % (V_KA, V_KA))
    a("s_waitcnt lgkmcnt(0)")
    a("v_mfma_f32_32x32x16_bf16 %s, %s, %s, 0" % (vr(V_S[0], 16), vr(V_K[0]), vr(V_Q)))
    a("s_nop 15")
    for i in range(8):
        a("v_max3_f32 v%d, v%d, v%d, v%d" % (V_MAX, V_S[0] + 2 * i, V_S[0] + 2 * i + 1, V_MAX))
    a("s_sub_u32 s%d, s%d, 1" % (S_NT, S_NT))
    a("s_cmp_lg_u32 s%d, 0" % S_NT)
    a("s_cbranch_scc1 L_k2_mloop")
    a("v_mov_b32 v%d, v%d" % (V_KA, V_L16))
    a("v_lshrrev_b32 v%d, 5, v%d" % (V_T, V_LANE))
    a("v_lshlrev_b32 v%d, 8, v%d" % (V_T, V_T))
    a("v_and_b32 v%d, 15, v%d" % (V_T + 1, V_LANE))
    a("v_lshl_add_u32 v%d, v%d, 4, v%d" % (V_VA, V_T + 1, V_T))
    a("v_add_u32 v%d, 65536, v%d" % (V_VA, V_VA))
    a("ds_read_b128 %s, v%d" % (vr(V_K[0]), V_KA))
    a("ds_read_b128 %s, v%d offset:1024" % (vr(V_K[1]), V_KA))
    a("s_mov_b64 exec, s[%d:%d]" % (S_VMASK, S_VMASK + 1))
    a("ds_read_b128 %s, v%d" % (vr(V_V[0]), V_VA))
    a("ds_read_b128 %s, v%d offset:512" % (vr(V_V[0] + 4), V_VA))
    a("s_mov_b64 exec, -1")
    a("v_mov_b32 v%d, v%d" % (V_T, V_MAX))
    a("s_nop 1")
    a("v_permlane32_swap_b32 v%d, v%d" % (V_MAX, V_T))
    a("s_nop 1")
    a("v_max_f32 v%d, v%d, v%d" % (V_MAX, V_MAX, V_T))
    for i in range(16):
        a("v_sub_f32 v%d, 0, v%d" % (V_CM + i, V_MAX))
    a("s_waitcnt lgkmcnt(0)")
    a("s_nop 0")
    a("v_mfma_f32_32x32x16_bf16 %s, %s, %s, %s" % (vr(V_S[0], 16), vr(V_K[0]), vr(V_Q), vr(V_CM, 16)))
    for i in range(16):
        a("v_mov_b32 v%d, 0" % (V_O + i))
    for i in range(4):
        a("v_mov_b32 v%d, 0" % (V_P + 4 + i))
    a("s_mov_b32 s%d, 8" % S_ITER)
    a.ts("k2")
    a("s_cmp_lg_u32 s%d, 0" % S_PASS)
    a("s_cbranch_scc1 L_k2_loop")

    def body(peeled):
        for t in range(8):
            cur, nxt = t % 2, (t + 1) % 2
            x1, x2 = [], []
            if peeled:
                if t < 6:
                    x1, x2 = kv_dma(t + 2)
                if t == 6:
                    a("s_waitcnt vmcnt(12)")
                    a("s_barrier")
                if t >= 6:
                    lab = "L_k2_np%d" % t
                    x1 = ["s_cmp_eq_u32 s%d, 0" % S_TYPE, "s_cbranch_scc1 %s" % lab]
                    for i in range(4 * (t - 6), 4 * (t - 6) + 4):
                        x1 += ["s_add_u32 m0, s%d, %d" % (S_STG, i * 1024), "s_nop 0",
                               "buffer_load_dwordx4 v%d, s[%d:%d], s%d offen lds" % (V_PD, 28 + 4 * (i % 2), 31 + 4 * (i % 2), S_PO if i % 2 else S_PE),
                               "s_add_u32 s%d, s%d, s%d" % ((S_PO, S_PO, S_PS) if i % 2 else (S_PE, S_PE, S_PS))]
                    x1 += [lab + ":"]
            else:
                if t == 0:
                    for k, r in enumerate((5, 2, 1)):
                        x1 += ["s_cmp_lg_u32 s%d, %d" % (S_ITER, r), "s_cbranch_scc1 L_k2_pp%d" % k, "s_setprio %d" % (2 - k), "L_k2_pp%d:" % k]
                if t == 6:
                    a("s_cmp_eq_u32 s%d, 0" % S_SYNC)
                    a("s_cbranch_scc1 L_k2_sync")
                    a.label("L_k2_syncret")
            S = V_S[cur]
            e = lambda i: "v_exp_f32 v%d, v%d" % (S + i, S + i)
            c = lambda i: "v_cvt_pk_bf16_f32 v%d, v%d, v%d" % (V_P + i, S + 2 * i, S + 2 * i + 1)
            pv = lambda b, h: "v_mfma_f32_32x32x16_bf16 %s, %s, %s, %s" % (vr(V_O, 16), vr(V_V[b] + 4 * h), vr(V_P + 4 * h), vr(V_O, 16))
            qk = "v_mfma_f32_32x32x16_bf16 %s, %s, %s, %s" % (vr(V_S[nxt], 16), vr(V_K[nxt]), vr(V_Q), vr(V_CM, 16))
            rdk = "ds_read_b128 %s, v%d offset:%d" % (vr(V_K[cur]), V_KA, (t + 2) * 1024)
            rdv = ["s_mov_b64 exec, s[%d:%d]" % (S_VMASK, S_VMASK + 1),
                   "ds_read_b128 %s, v%d offset:%d" % (vr(V_V[nxt]), V_VA, (t + 1) * 1024),
                   "ds_read_b128 %s, v%d offset:%d" % (vr(V_V[nxt] + 4), V_VA, (t + 1) * 1024 + 512),
                   "s_mov_b64 exec, -1"]
            seq = [e(0), e(1), pv(nxt, 1), e(2), "s_waitcnt lgkmcnt(0)", rdk, e(3)] + rdv + [c(0), e(4), e(5), c(1), e(6), e(7), qk, c(2), e(8)] + x1 + [e(9), c(3),
                   e(10), e(11), c(4), e(12), e(13), pv(cur, 0), c(5), e(14)] + x2 + [e(15), c(6)]
            if t == 7:
                seq += ["v_add_u32 v%d, 8192, v%d" % (V_KA, V_KA), "v_add_u32 v%d, 8192, v%d" % (V_VA, V_VA),
                        "s_sub_u32 s%d, s%d, 1" % (S_ITER, S_ITER), "s_cmp_lg_u32 s%d, 0" % S_ITER]
            seq += [c(7)]
            for l in seq:
                if l.endswith(":"):
                    a.label(l[:-1])
                else:
                    a(l)

    body(True)
    a.raw(".p2align 6")
    a.label("L_k2_loop")
    body(False)
    a("s_cbranch_scc1 L_k2_loop")
    a.ts("k2")
    a("s_nop 1")
    a("v_mfma_f32_32x32x16_bf16 %s, %s, %s, %s" % (vr(V_O, 16), vr(V_V[1] + 4), vr(V_P + 4), vr(V_O, 16)))
    a("s_waitcnt lgkmcnt(0)")
    a("s_lshl_b32 s%d, s%d, 3" % (S_T0, S_QB))
    a("s_add_u32 s%d, s%d, s%d" % (S_T0, S_T0, S_WAVE))
    a("s_lshl_b32 s%d, s%d, 5" % (S_T0, S_T0))
    a("s_add_u32 s%d, s%d, s%d" % (S_T0, S_T0, S_H))
    a("s_lshl_b32 s%d, s%d, 10" % (S_T0, S_T0))
    a("s_add_u32 s%d, s%d, %d" % (S_T0, S_T0, WS_O))
    a("s_nop 7")
    a("v_mul_f32 v%d, 0, v%d" % (V_T, V_O))
    for i in range(1, 8):
        a("v_fmac_f32 v%d, 0, v%d" % (V_T, V_O + i))
    a("v_add_f32 v%d, v%d, v%d" % (V_T, V_T, V_O + 8))
    a("v_cmp_gt_f32 vcc, 0x%x, v%d" % (f32bits(2.0 ** 100), V_T))
    a("v_rcp_f32 v%d, v%d" % (V_T + 1, V_O + 8))
    a("s_cmp_lg_u32 s%d, 0" % S_PASS)
    a("s_cbranch_scc1 L_k2_fin")
    a("s_cmp_eq_u64 vcc, exec")
    a("s_cbranch_scc1 L_k2_fin")
    a("s_mov_b32 s%d, 1" % S_PASS)
    a("s_mov_b32 s%d, 64" % S_NT)
    a("s_branch L_k2_maxpass")
    a.label("L_k2_fin")
    for i in range(8):
        a("v_mul_f32 v%d, v%d, v%d" % (V_O + i, V_T + 1, V_O + i))
    for i in range(4):
        a("v_cvt_pk_bf16_f32 v%d, v%d, v%d" % (V_P + i, V_O + 2 * i, V_O + 2 * i + 1))
    a("buffer_store_dwordx4 %s, v%d, s[20:23], s%d offen" % (vr(V_P), V_L16, S_T0))
    a.ts_flush("k2", S_WAVE, V_T)
    a.ts_flush("k2b", S_WAVE, V_T)
    a.label("L_k2_end")
    a("s_endpgm")
    a.label("L_k2_sync")
    a("s_mov_b32 s%d, 1" % S_SYNC)
    a("s_waitcnt vmcnt(0)")
    a("s_barrier")
    a("s_cmp_eq_u32 s%d, 0" % S_TYPE)
    a("s_cbranch_scc1 L_k2_syncret")
    a("v_bfe_u32 v%d, v%d, 2, 2" % (V_T, V_LANE))
    a("v_lshrrev_b32 v%d, 5, v%d" % (V_T + 1, V_LANE))
    a("v_lshl_add_u32 v%d, v%d, 2, v%d" % (V_T, V_T + 1, V_T))
    a("v_lshlrev_b32 v%d, 6, v%d" % (V_T, V_T))
    a("v_and_b32 v%d, 3, v%d" % (V_T + 1, V_LANE))
    a("v_lshl_add_u32 v%d, v%d, 3, v%d" % (V_T, V_T + 1, V_T))
    a("v_add_u32 v%d, s%d, v%d" % (V_T, S_STG, V_T))
    a("v_bfe_u32 v%d, v%d, 4, 1" % (V_T + 1, V_LANE))
    FB = [128 + 4 * i for i in range(8)]
    a("s_cmp_eq_u32 s%d, 2" % S_TYPE)
    a("s_cbranch_scc1 L_k2_pk2")
    a("v_lshl_add_u32 v%d, v%d, 10, v%d" % (V_PK, V_T + 1, V_T))
    for ks in range(4):
        for hb in range(2):
            for rd in range(2):
                a("ds_read_b64_tr_b16 %s, v%d offset:%d" % (vr(FB[ks * 2 + hb] + 2 * rd, 2), V_PK, ks * 2048 + hb * 32 + rd * 512))
    make_sel(a, V_LANE, V_SEL, V_T + 2)
    a("v_and_b32 v%d, 31, v%d" % (V_T, V_LANE))
    a("v_lshlrev_b32 v%d, 4, v%d" % (V_T, V_T))
    a("s_waitcnt lgkmcnt(0)")
    for ks in range(4):
        for hb in range(2):
            a("v_mfma_f32_16x16x32_bf16 %s, %s, %s, %s" % (vr(V_PCS[hb]), vr(V_SEL), vr(FB[ks * 2 + hb]), "0" if ks == 0 else vr(V_PCS[hb])))
            a("buffer_store_dwordx4 %s, v%d, s[20:23], s%d offen" % (vr(FB[ks * 2 + hb]), V_L16, (S_DST0, S_DST1)[hb]))
        a("s_add_u32 s%d, s%d, 7168" % (S_DST0, S_DST0))
        a("s_add_u32 s%d, s%d, 7168" % (S_DST1, S_DST1))
    a("s_nop 7")
    a("buffer_store_dword v%d, v%d, s[20:23], s%d offen" % (V_PCS[0], V_T, S_CS))
    a("buffer_store_dword v%d, v%d, s[20:23], s%d offen offset:1024" % (V_PCS[1], V_T, S_CS))
    a("s_branch L_k2_syncret")
    a.label("L_k2_pk2")
    a("v_lshl_add_u32 v%d, v%d, 5, v%d" % (V_PK, V_T + 1, V_T))
    a("s_add_u32 s%d, s%d, 4096" % (S_DST1, S_DST0))
    for f in range(8):
        for rd in range(2):
            a("ds_read_b64_tr_b16 %s, v%d offset:%d" % (vr(FB[f] + 2 * rd, 2), V_PK, f * 1024 + rd * 512))
    a("s_waitcnt lgkmcnt(0)")
    for f in range(8):
        a("buffer_store_dwordx4 %s, v%d, s[20:23], s%d offen offset:%d" % (vr(FB[f]), V_L16, S_DST0 if f < 4 else S_DST1, (f % 4) * 1024))
    a("s_branch L_k2_syncret")
    return name, 160, 0, (256, 512, 163840)


FL_A, FL_B, FL_C, FL_P = WS_FL, WS_FL + 8192, WS_FL + 16384, WS_FL + 20480
S_XCC, S_FAST = 62, 63
T_XCD, T_R2, T_RB64, T_RB128, T_CGF, T_TBO, T_NBO, T_HALF, T_A, T_B, T_C, T_D, T_CNT, T_M = 24, 25, 26, 27, 28, 29, 30, 31, 32, 33, 34, 35, 36, 37
FV_WO = 160
FV_XR = 224
FV_LX = 228
FV_L4 = 229
FV_L8 = 234
FV_F = 230
FSTORE = os.environ.get('FSTORE', '')
PRET = os.environ.get('PRET', 'qa')
WBL2 = os.environ.get('WBL2', 'e')
LSC = os.environ.get('LSC', ' sc1')
AMAP = int(os.environ.get('AMAP', 0))
S_TEAM, S_MEM = 18, 19
FASTPATH = int(os.environ.get('FASTPATH', 1))
POLLD = int(os.environ.get('POLLD', 1))


def poll(a, tag, soff, n, vl4, vf, depth=1):
    a("s_mov_b32 s%d, 0" % T_CNT)
    a.label("L_poll_%s" % tag)
    a("buffer_load_dword v%d, v%d, s[20:23], s%d offen sc1" % (vf, vl4, soff))
    a("s_add_u32 s%d, s%d, 1" % (T_CNT, T_CNT))
    a("s_waitcnt vmcnt(0)")
    a("v_cmp_ne_u32 vcc, 0, v%d" % vf)
    a("s_cmp_gt_u32 s%d, 0x40000" % T_CNT)
    a("s_cbranch_scc1 L_polld_%s" % tag)
    if n == 64:
        a("s_and_b32 s%d, vcc_lo, vcc_hi" % T_M)
        a("s_cmp_lg_u32 s%d, -1" % T_M)
    else:
        mask = (1 << n) - 1
        a("s_and_b32 s%d, vcc_lo, 0x%x" % (T_M, mask))
        a("s_cmp_lg_u32 s%d, 0x%x" % (T_M, mask))
    a("s_cbranch_scc1 L_poll_%s" % tag)
    a.label("L_polld_%s" % tag)


def hstore(a, tag, stores):
    a("s_cmp_eq_u32 s%d, -1" % S_FAST)
    a("s_cbranch_scc1 L_hs_%s_f" % tag)
    for st in stores:
        a(st + " sc1")
    a("s_branch L_hs_%s_d" % tag)
    a.label("L_hs_%s_f" % tag)
    for st in stores:
        a(st + (FSTORE if "dwordx4" in st else ""))
    a.label("L_hs_%s_d" % tag)


def set_flag(a, soff, vt, tag=None):
    a("v_mov_b32 v%d, 0" % vt)
    a("v_mov_b32 v%d, 1" % (vt + 1))
    a("s_mov_b64 exec, 1")
    st = "buffer_store_dword v%d, v%d, s[20:23], s%d offen" % (vt + 1, vt, soff)
    if tag:
        hstore(a, tag, [st])
    else:
        a(st + " sc1")
    a("s_mov_b64 exec, -1")


def fused_events(a, E):
    S_WAVE, S_H, S_QB, S_ITER, S_SYNC, S_TASK, S_TYPE = (E[k] for k in ("S_WAVE", "S_H", "S_QB", "S_ITER", "S_SYNC", "S_TASK", "S_TYPE"))
    V_LANE, V_L16, V_T = E["V_LANE"], E["V_L16"], E["V_T"]
    a.label("L_f_event")
    a("s_cmp_eq_u32 s%d, 7" % S_ITER)
    a("s_cbranch_scc1 L_f_sync")
    a("s_cmp_eq_u32 s%d, 6" % S_ITER)
    a("s_cbranch_scc1 L_f_ev6")
    a("s_cmp_eq_u32 s%d, 2" % S_ITER)
    a("s_cbranch_scc1 L_f_ev2")
    a("s_cmp_eq_u32 s%d, 3" % S_ITER)
    a("s_cbranch_scc1 L_f_ev3")
    a("s_mov_b32 s%d, 3" % S_SYNC)
    a("s_cmp_eq_u32 s%d, 0" % S_TYPE)
    a("s_cbranch_scc1 L_f_ev5b")
    a("s_lshl_b32 s%d, s%d, 2" % (T_A, S_TASK))
    a("s_add_u32 s%d, s%d, %d" % (T_A, T_A, FL_P))
    a("s_waitcnt vmcnt(0)")
    set_flag(a, T_A, V_T)
    a.label("L_f_ev5b")
    if "a" in WBL2:
        a("s_lshl_b32 s%d, s%d, 3" % (T_A, S_MEM))
        a("s_add_u32 s%d, s%d, s%d" % (T_A, T_A, S_WAVE))
        a("s_cmp_lg_u32 s%d, 5" % T_A)
        a("s_cbranch_scc1 L_f_nowb1")
        a("buffer_wbl2 sc1")
        a.label("L_f_nowb1")
    a("buffer_load_dword v%d, v%d, s[96:99], 0 offen sc1" % (FV_F, FV_L4))
    a("s_branch L_f_syncret")
    a.label("L_f_ev3")
    a("s_mov_b32 s%d, 2" % S_SYNC)
    a("s_mov_b32 s%d, 0" % T_CNT)
    a.label("L_f_dbchk")
    a("s_waitcnt vmcnt(0)")
    a("v_subrev_u32 v%d, 0x01010101, v%d" % (FV_F + 1, FV_F))
    a("v_not_b32 v%d, v%d" % (FV_F + 2, FV_F))
    a("v_and_b32 v%d, v%d, v%d" % (FV_F + 1, FV_F + 1, FV_F + 2))
    a("v_and_b32 v%d, 0x80808080, v%d" % (FV_F + 1, FV_F + 1))
    a("v_cmp_eq_u32 vcc, 0, v%d" % (FV_F + 1))
    a("s_add_u32 s%d, s%d, 1" % (T_CNT, T_CNT))
    a("s_cmp_gt_u32 s%d, 0x40000" % T_CNT)
    a("s_cbranch_scc1 L_f_dbok")
    a("s_and_b32 s%d, vcc_lo, vcc_hi" % T_M)
    a("s_cmp_eq_u32 s%d, -1" % T_M)
    a("s_cbranch_scc1 L_f_dbok")
    a("buffer_load_dword v%d, v%d, s[96:99], 0 offen sc1" % (FV_F, FV_L4))
    a("s_branch L_f_dbchk")
    a.label("L_f_dbok")
    a("s_lshr_b32 s%d, s2, 5" % T_XCD)
    a("s_bfe_u32 s%d, s2, 0x20003" % T_R2)
    a("s_and_b32 s%d, s2, 7" % T_RB64)
    a("s_lshl_b32 s%d, s%d, 2" % (T_RB64, T_RB64))
    a("s_add_u32 s%d, s%d, s%d" % (T_RB64, T_RB64, T_R2))
    a("s_lshr_b32 s%d, s%d, 1" % (T_RB128, T_RB64))
    a("s_and_b32 s%d, s%d, 1" % (T_A, T_R2))
    a("s_lshl_b32 s%d, s%d, 1" % (T_CGF, T_XCD))
    a("s_add_u32 s%d, s%d, s%d" % (T_CGF, T_CGF, T_A))
    a("s_bfe_u32 s%d, s%d, 0x10001" % (T_A, S_WAVE))
    a("s_lshl_b32 s%d, s%d, 1" % (T_TBO, T_RB64))
    a("s_add_u32 s%d, s%d, s%d" % (T_TBO, T_TBO, T_A))
    a("s_and_b32 s%d, s%d, 1" % (T_A, S_WAVE))
    a("s_lshl_b32 s%d, s%d, 1" % (T_NBO, T_XCD))
    a("s_add_u32 s%d, s%d, s%d" % (T_NBO, T_NBO, T_A))
    a("s_lshr_b32 s%d, s%d, 2" % (T_HALF, S_WAVE))
    if "a" in PRET:
        a("s_lshl_b32 s%d, s%d, 4" % (T_A, T_TBO))
        a("s_add_u32 s%d, s%d, s%d" % (T_A, T_A, T_NBO))
        a("s_lshl_b32 s%d, s%d, 9" % (T_B, T_A))
        a("s_add_u32 s%d, s%d, %d" % (T_B, T_B, WS_ST))
        a("s_lshl_b32 s%d, s%d, 1" % (T_A, T_A))
        a("s_add_u32 s%d, s%d, s%d" % (T_A, T_A, T_HALF))
        a("s_lshl_b32 s%d, s%d, 10" % (T_A, T_A))
        a("s_add_u32 s%d, s%d, %d" % (T_A, T_A, WS_H))
        a("buffer_load_dwordx4 %s, v%d, s[20:23], s%d offen sc1" % (vr(236), V_L16, T_A))
        a("buffer_load_dwordx2 %s, v%d, s[20:23], s%d offen sc1" % (vr(240, 2), FV_L8, T_B))
        a("s_and_b32 s%d, s%d, 3" % (T_A, S_WAVE))
        a("s_lshl_b32 s%d, s%d, 2" % (T_B, T_RB128))
        a("s_add_u32 s%d, s%d, s%d" % (T_A, T_A, T_B))
        a("s_mul_i32 s%d, s%d, 112" % (T_A, T_A))
        a("s_mul_i32 s%d, s%d, 7" % (T_B, T_CGF))
        a("s_add_u32 s%d, s%d, s%d" % (T_A, T_A, T_B))
        a("s_mul_i32 s%d, s%d, 3" % (T_B, T_HALF))
        a("s_add_u32 s%d, s%d, s%d" % (T_A, T_A, T_B))
        a("s_lshl_b32 s%d, s%d, 10" % (T_A, T_A))
        a("s_add_u32 s%d, s%d, %d" % (T_A, T_A, WS_A))
        for k in range(4):
            a("buffer_load_dwordx4 %s, v%d, s[20:23], s%d offen offset:%d sc1" % (vr(236 if k == 0 else 240 + 4 * k), V_L16, T_A, k * 1024))
    a("s_mul_i32 s%d, s%d, 7" % (T_A, T_CGF))
    a("s_lshr_b32 s%d, s%d, 1" % (T_A, T_A))
    a("s_lshl_b32 s%d, s%d, 5" % (T_A, T_A))
    a("s_mul_i32 s%d, s%d, 56" % (T_B, T_NBO))
    a("s_add_u32 s%d, s%d, %d" % (T_B, T_B, 512 * 4 - 32 * 4))
    a("s_lshl_b32 s%d, s%d, 1" % (T_C, T_NBO))
    a("s_add_u32 s%d, s%d, s%d" % (T_C, T_C, T_HALF))
    a("s_lshl_b32 s%d, s%d, 3" % (T_C, T_C))
    a("s_add_u32 s%d, s%d, %d" % (T_C, T_C, 448 * 4 - 46 * 4))
    a("v_mov_b32 v%d, s%d" % (V_T, T_A))
    a("v_mov_b32 v%d, s%d" % (V_T + 1, T_B))
    a("v_cmp_le_u32 vcc, 32, v%d" % V_LANE)
    a("v_mov_b32 v%d, s%d" % (V_T + 2, T_C))
    a("s_nop 0")
    a("v_cndmask_b32 v%d, v%d, v%d, vcc" % (V_T, V_T, V_T + 1))
    a("v_cmp_le_u32 vcc, 46, v%d" % V_LANE)
    a("s_mov_b32 s%d, %d" % (T_A, FL_P))
    a("s_nop 0")
    a("v_cndmask_b32 v%d, v%d, v%d, vcc" % (V_T, V_T, V_T + 2))
    a("v_add_u32 v%d, v%d, v%d" % (FV_F + 3, V_T, FV_L4))
    a("buffer_load_dword v%d, v%d, s[20:23], s%d offen sc1" % (FV_F, FV_F + 3, T_A))
    a("s_branch L_f_syncret")
    a.label("L_f_ev2")
    a("s_mov_b32 s%d, 0" % S_SYNC)
    a("s_mov_b32 s%d, 0" % T_CNT)
    a("s_mov_b32 s%d, %d" % (T_A, FL_P))
    a.label("L_f_fpchk")
    a("s_waitcnt vmcnt(0)")
    a("v_cmp_ne_u32 vcc, 0, v%d" % FV_F)
    a("s_add_u32 s%d, s%d, 1" % (T_CNT, T_CNT))
    a("s_cmp_gt_u32 s%d, 0x40000" % T_CNT)
    a("s_cbranch_scc1 L_f_fpok")
    a("s_or_b32 s%d, vcc_hi, 0xffff0000" % T_M)
    a("s_and_b32 s%d, s%d, vcc_lo" % (T_M, T_M))
    a("s_cmp_eq_u32 s%d, -1" % T_M)
    a("s_cbranch_scc1 L_f_fpok")
    a("buffer_load_dword v%d, v%d, s[20:23], s%d offen sc1" % (FV_F, FV_F + 3, T_A))
    a("s_branch L_f_fpchk")
    a.label("L_f_fpok")
    a("s_lshl_b32 s%d, s%d, 1" % (T_A, T_NBO))
    a("s_add_u32 s%d, s%d, s%d" % (T_A, T_A, T_HALF))
    a("s_lshl_b32 s%d, s%d, 14" % (T_A, T_A))
    a("s_add_u32 s%d, s%d, %d" % (T_A, T_A, WS_WO))
    for i in range(16):
        if i and i % 4 == 0:
            a("s_add_u32 s%d, s%d, 4096" % (T_A, T_A))
        a("buffer_load_dwordx4 %s, v%d, s[20:23], s%d offen offset:%d sc1" % (vr(FV_WO + 4 * i), FV_LX, T_A, (i % 4) * 1024))
    srd(a, 12, 10, 2048 * 1024)
    a("v_and_b32 v%d, 31, v%d" % (V_T, V_LANE))
    a("v_lshlrev_b32 v%d, 10, v%d" % (V_T, V_T))
    a("v_lshrrev_b32 v%d, 5, v%d" % (V_T + 1, V_LANE))
    a("v_lshl_add_u32 v%d, v%d, 3, v%d" % (V_T, V_T + 1, V_T))
    a("s_lshl_b32 s%d, s%d, 15" % (T_A, T_TBO))
    a("s_lshl_b32 s%d, s%d, 6" % (T_B, T_NBO))
    a("s_add_u32 s%d, s%d, s%d" % (T_A, T_A, T_B))
    a("s_lshl_b32 s%d, s%d, 5" % (T_B, T_HALF))
    a("s_add_u32 s%d, s%d, s%d" % (T_A, T_A, T_B))
    for q in range(2):
        a("buffer_load_dwordx2 %s, v%d, s[12:15], s%d offen offset:%d" % (vr(FV_XR + 2 * q, 2), V_T, T_A, q * 16))
    a("s_branch L_f_syncret")


def fused_tail(a, E):
    S_WAVE, S_H, S_QB = E["S_WAVE"], E["S_H"], E["S_QB"]
    V_LANE, V_L16 = 1, 2
    V_T = 3
    S_MASK, S_W3, S_M0W, S_SW, S_SH, S_M0H = 43, 44, 45, 46, 47, 48
    a.ts("k2")
    a("s_setprio 0")
    for k in ("S_SYNC", "S_TYPE", "S_PASS", "S_NT", "S_ITER"):
        a("s_mov_b32 s%d, 0" % E[k])
    a("s_mov_b32 s%d, 0xffff0000" % S_MASK)
    a("s_and_b32 s%d, s%d, 3" % (S_W3, S_WAVE))
    S_WB = 51
    a("s_lshl_b32 s%d, s%d, 3" % (S_WB, S_MEM))
    a("s_add_u32 s%d, s%d, s%d" % (S_WB, S_WB, S_WAVE))
    a("s_lshl_b32 s%d, s%d, 2" % (T_A, S_QB))
    a("s_lshr_b32 s%d, s%d, 1" % (T_B, S_WAVE))
    a("s_add_u32 s%d, s%d, s%d" % (T_A, T_A, T_B))
    a("s_lshl_b32 s%d, s%d, 8" % (T_A, T_A))
    a("s_and_b32 s%d, s%d, 1" % (T_B, S_WAVE))
    a("s_lshl_b32 s%d, s%d, 5" % (T_B, T_B))
    a("s_add_u32 s%d, s%d, s%d" % (T_B, T_B, S_H))
    a("s_lshl_b32 s%d, s%d, 2" % (T_B, T_B))
    a("s_add_u32 s%d, s%d, s%d" % (T_B, T_B, T_A))
    a("s_add_u32 s%d, s%d, %d" % (T_B, T_B, FL_A))
    a("s_mul_i32 s%d, s%d, 7168" % (S_M0W, S_W3))
    a("s_mul_i32 s%d, s%d, %d" % (S_SW, T_CGF, 32 * 7 * 1024))
    a("s_add_u32 s%d, s%d, s%d" % (S_SW, S_SW, S_M0W))
    a("s_add_u32 s%d, s%d, %d" % (S_SW, S_SW, WS_GU))

    def w_stage(st):
        slot = st % 4
        a("s_add_u32 s%d, s%d, %d" % (T_C, S_SW, st * SLOT))
        a("s_add_u32 m0, s%d, %d" % (S_M0W, slot * SLOT))
        a("s_add_u32 s%d, s%d, 4096" % (T_D, T_C))
        for q in range(4):
            a("buffer_load_dwordx4 v%d, s[20:23], s%d offen offset:%d sc1 lds" % (V_L16, T_C, q * 1024))
        a("s_add_u32 m0, m0, 4096")
        a("s_nop 0")
        for q in range(3):
            a("buffer_load_dwordx4 v%d, s[20:23], s%d offen offset:%d sc1 lds" % (V_L16, T_D, q * 1024))

    a("s_waitcnt vmcnt(0)")
    set_flag(a, T_B, V_T)
    a("s_barrier")
    OB, XS = 86016, 57344
    a("s_cmp_ge_u32 s%d, 4" % S_WAVE)
    a("s_cbranch_scc1 L_f_a1")
    w_stage(0)
    w_stage(1)
    a("s_branch L_f_a2")
    a.label("L_f_a1")
    a("s_lshl_b32 s%d, s%d, 8" % (T_A, T_RB64))
    a("s_lshl_b32 s%d, s%d, 6" % (T_B, S_W3))
    a("s_add_u32 s%d, s%d, s%d" % (T_A, T_A, T_B))
    a("s_add_u32 s%d, s%d, %d" % (T_A, T_A, FL_A))
    a("s_lshl_b32 s%d, s%d, 2" % (T_C, T_RB64))
    a("s_add_u32 s%d, s%d, s%d" % (T_C, T_C, S_W3))
    a("s_lshl_b32 s%d, s%d, 14" % (T_C, T_C))
    a("s_add_u32 s%d, s%d, %d" % (T_C, T_C, WS_O))
    a("s_lshl_b32 s%d, s%d, 14" % (T_B, S_W3))
    a("s_add_u32 m0, s%d, %d" % (T_B, OB))
    poll(a, "fa", T_A, 16, FV_L4, FV_F + 2)
    a.ts("k2")
    for j in range(16):
        if j and j % 4 == 0:
            a("s_add_u32 m0, m0, 4096")
            a("s_add_u32 s%d, s%d, 4096" % (T_C, T_C))
        a("buffer_load_dwordx4 v%d, s[20:23], s%d offen offset:%d sc1 lds" % (V_L16, T_C, (j % 4) * 1024))
    a.label("L_f_a2")

    V_OA = 12
    V_OF = [16 + 4 * i for i in range(8)]
    V_AB = 64
    V_U = 80
    V_HK = 16
    a("s_bfe_u32 s%d, s%d, 0x10001" % (T_B, S_WAVE))
    a("s_lshl_b32 s%d, s%d, 1" % (T_B, T_B))
    a("s_add_u32 s%d, s%d, s%d" % (T_B, T_B, T_HALF))
    a("s_lshl_b32 s%d, s%d, 14" % (T_B, T_B))
    a("s_add_u32 s%d, s%d, %d" % (T_B, T_B, OB))
    a("v_add_u32 v%d, s%d, v%d" % (V_OA, T_B, V_L16))
    a("s_xor_b32 s%d, s%d, 4" % (T_B, S_WAVE))
    a("s_lshl_b32 s%d, s%d, 11" % (T_B, T_B))
    a("s_add_u32 s%d, s%d, %d" % (T_B, T_B, XS))
    a("v_add_u32 v%d, s%d, v%d" % (V_OA + 1, T_B, V_L16))
    a("s_lshl_b32 s%d, s%d, 11" % (T_B, S_WAVE))
    a("s_add_u32 s%d, s%d, %d" % (T_B, T_B, XS))
    a("v_add_u32 v%d, s%d, v%d" % (V_OA + 2, T_B, V_L16))
    for d in range(4):
        a("v_lshlrev_b32 v%d, 16, v%d" % (V_U + 2 * d, FV_XR + d))
        a("v_and_b32 v%d, s%d, v%d" % (V_U + 2 * d + 1, S_MASK, FV_XR + d))
    a("s_cmp_lt_u32 s%d, 4" % S_WAVE)
    a("s_cbranch_scc1 L_f_b3")
    a("s_waitcnt vmcnt(0)")
    a.label("L_f_b3")
    a("s_barrier")
    a.ts("k2")
    for i in range(8):
        a("ds_read_b128 %s, v%d offset:%d" % (vr(V_OF[i]), V_OA, i * 1024))
    for i in range(16):
        a("s_waitcnt lgkmcnt(%d)" % (7 if i < 8 else 15 - i))
        a("v_mfma_f32_32x32x16_bf16 %s, %s, %s, %s" % (vr(V_AB, 16), vr(FV_WO + 4 * i), vr(V_OF[i % 8]), "0" if i == 0 else vr(V_AB, 16)))
        if i < 8:
            a("ds_read_b128 %s, v%d offset:%d" % (vr(V_OF[i]), V_OA, (i + 8) * 1024))
    a("s_lshl_b32 s%d, s%d, 4" % (T_A, T_TBO))
    a("s_add_u32 s%d, s%d, s%d" % (T_A, T_A, T_NBO))
    a("s_lshl_b32 s%d, s%d, 1" % (T_A, T_A))
    a("s_add_u32 s%d, s%d, s%d" % (T_A, T_A, T_HALF))
    a("s_lshr_b32 s%d, s%d, 1" % (T_B, T_A))
    a("s_lshl_b32 s%d, s%d, 9" % (T_B, T_B))
    a("s_lshl_b32 s%d, s%d, 3" % (T_C, T_HALF))
    a("s_add_u32 s%d, s%d, s%d" % (T_B, T_B, T_C))
    a("s_add_u32 s%d, s%d, %d" % (T_B, T_B, WS_ST))
    a("s_lshl_b32 s%d, s%d, 10" % (T_A, T_A))
    a("s_add_u32 s%d, s%d, %d" % (T_A, T_A, WS_H))
    a("v_and_b32 v%d, 31, v%d" % (V_T, V_LANE))
    a("v_lshlrev_b32 v%d, 4, v%d" % (V_T, V_T))
    a("s_nop 1")
    for q in range(2):
        a("ds_write_b128 v%d, %s offset:%d" % (V_OA + 1, vr(V_AB + 8 + 4 * q), q * 1024))
    for i in range(8):
        a("v_add_f32 v%d, v%d, v%d" % (V_AB + i, V_AB + i, V_U + i))
    a("s_waitcnt lgkmcnt(0)")
    a("s_barrier")
    for q in range(2):
        a("ds_read_b128 %s, v%d offset:%d" % (vr(V_U + 4 * q), V_OA + 2, q * 1024))
    a("s_waitcnt lgkmcnt(0)")
    for i in range(8):
        a("v_add_f32 v%d, v%d, v%d" % (V_AB + i, V_AB + i, V_U + i))
    for i in range(4):
        a("v_cvt_pk_bf16_f32 v%d, v%d, v%d" % (V_HK + i, V_AB + 2 * i, V_AB + 2 * i + 1))
    hstore(a, "h", ["buffer_store_dwordx4 %s, v%d, s[20:23], s%d offen" % (vr(V_HK), V_L16, T_A)])
    for d in range(4):
        a("v_lshlrev_b32 v%d, 16, v%d" % (V_U + 2 * d, V_HK + d))
        a("v_and_b32 v%d, s%d, v%d" % (V_U + 2 * d + 1, S_MASK, V_HK + d))
    S1, S2 = V_AB, V_AB + 1
    a("v_add_f32 v%d, v%d, v%d" % (S1, V_U, V_U + 1))
    a("v_mul_f32 v%d, v%d, v%d" % (S2, V_U, V_U))
    a("v_fmac_f32 v%d, v%d, v%d" % (S2, V_U + 1, V_U + 1))
    for i in range(2, 8):
        a("v_add_f32 v%d, v%d, v%d" % (S1, S1, V_U + i))
        a("v_fmac_f32 v%d, v%d, v%d" % (S2, V_U + i, V_U + i))
    sum_halves(a, S1, V_AB + 2)
    sum_halves(a, S2, V_AB + 3)
    hstore(a, "st", ["buffer_store_dwordx2 %s, v%d, s[20:23], s%d offen" % (vr(S1, 2), V_T, T_B)])
    a("s_lshl_b32 s%d, s%d, 4" % (T_B, T_TBO))
    a("s_add_u32 s%d, s%d, s%d" % (T_B, T_B, T_NBO))
    a("s_lshl_b32 s%d, s%d, 1" % (T_B, T_B))
    a("s_add_u32 s%d, s%d, s%d" % (T_B, T_B, T_HALF))
    a("s_lshl_b32 s%d, s%d, 2" % (T_B, T_B))
    a("s_add_u32 s%d, s%d, %d" % (T_B, T_B, FL_B))
    a("v_mov_b32 v%d, v%d" % (14, FV_LX))
    a("v_mov_b32 v%d, v%d" % (15, FV_L4))
    V_LX, V_L4 = 14, 15
    a("s_waitcnt vmcnt(0)")
    set_flag(a, T_B, V_T, "fb")
    a("s_barrier")
    a.ts("k2")
    HR = 114688
    a("s_lshl_b32 s%d, s%d, 2" % (T_A, T_RB128))
    a("s_add_u32 s%d, s%d, s%d" % (T_A, T_A, S_W3))
    a("s_lshl_b32 s%d, s%d, 15" % (S_SH, T_A))
    a("s_add_u32 s%d, s%d, %d" % (S_SH, S_SH, WS_H))
    a("s_lshl_b32 s%d, s%d, 12" % (S_M0H, S_W3))
    a("s_add_u32 s%d, s%d, %d" % (S_M0H, S_M0H, HR))

    def h_stage(st):
        a("s_add_u32 m0, s%d, %d" % (S_M0H, (st % 3) * 16384))
        a("s_add_u32 s%d, s%d, %d" % (T_C, S_SH, st * 4096))
        for q in range(4):
            a("buffer_load_dwordx4 v%d, s[20:23], s%d offen offset:%d sc1 lds" % (V_L16, T_C, q * 1024))

    a("s_cmp_ge_u32 s%d, 4" % S_WAVE)
    a("s_cbranch_scc1 L_f_ccomp")
    w_stage(2)
    w_stage(3)
    V_WD = 144
    V_WP = 32
    S_KQ = 50
    a("s_lshr_b32 s%d, s%d, 1" % (S_KQ, S_WAVE))
    a("s_lshl_b32 s%d, s%d, 2" % (T_A, T_NBO))
    a("s_add_u32 s%d, s%d, s%d" % (T_A, T_A, S_KQ))
    a("s_mul_i32 s%d, s%d, %d" % (T_A, T_A, 28 * 1024))
    a("s_add_u32 s%d, s%d, %d" % (T_A, T_A, WS_WD))
    a("s_add_u32 s%d, s%d, %d" % (T_B, T_A, 56 * 1024))
    a("v_xor_b32 v%d, 0x100, v%d" % (V_T, V_L16))
    a("s_mul_i32 s%d, s%d, %d" % (T_M, S_W3, 28 * 1024))
    a("v_add_u32 v%d, s%d, v%d" % (V_T + 1, T_M, V_L16))

    def wd_loads(i0, i1):
        for i in range(i0, i1):
            if i and i % 4 == 0:
                a("s_add_u32 s%d, s%d, 4096" % (T_A, T_A))
            a("buffer_load_dwordx4 %s, v%d, s[20:23], s%d offen offset:%d sc1" % (vr(V_WD + 4 * i), V_LX, T_A, (i % 4) * 1024))

    log = ["W0"] * 7 + ["W1"] * 7 + ["W2"] * 7 + ["W3"] * 7
    wd_plan = {5: 8, 6: 12, 7: 8}
    nwd = 0
    for j in range(8):
        last = max(i for i, t in enumerate(log) if t in ("W%d" % j, "h%d" % j))
        n = len(log) - 1 - last
        assert n <= 63
        a("s_waitcnt vmcnt(%d)" % n)
        a("s_barrier")
        if j >= 1:
            if j + 2 <= 7:
                h_stage(j + 2)
                log += ["h%d" % (j + 2)] * 4
            if j + 3 <= 7:
                w_stage(j + 3)
                log += ["W%d" % (j + 3)] * 7
        k = wd_plan.get(j, 0)
        wd_loads(nwd, nwd + k)
        log += ["d"] * k
        nwd += k
    assert nwd == 28
    a("s_mov_b32 m0, s%d" % T_M)
    a("s_barrier")
    for i in range(28):
        if i and i % 4 == 0:
            a("s_add_u32 m0, m0, 4096")
            a("s_add_u32 s%d, s%d, 4096" % (T_B, T_B))
        a("buffer_load_dwordx4 v%d, s[20:23], s%d offen offset:%d sc1 lds" % (V_T, T_B, (i % 4) * 1024))
    a("s_waitcnt vmcnt(0)")
    a("s_barrier")
    a("s_branch L_f_d1")
    a.label("L_f_ccomp")
    V_AW, V_AH = 12, 13
    V_ST = 20
    V_CSL = 52
    V_H = [80, 84]
    V_W = [88, 116]
    V_ACC = [144 + 16 * b for b in range(7)]
    V_TMP = 88
    S_TB = 49
    a("s_lshl_b32 s%d, s%d, 2" % (S_TB, T_RB128))
    a("s_add_u32 s%d, s%d, s%d" % (S_TB, S_TB, S_W3))
    a("v_mov_b32 v%d, v%d" % (V_AW, V_L16))
    a("s_lshl_b32 s%d, s%d, 12" % (T_A, S_W3))
    a("s_add_u32 s%d, s%d, %d" % (T_A, T_A, HR))
    a("v_add_u32 v%d, s%d, v%d" % (V_AH, T_A, V_L16))
    a("v_and_b32 v%d, 31, v%d" % (V_T, V_LANE))
    a("v_lshlrev_b32 v%d, 4, v%d" % (V_T, V_T))
    a("v_lshrrev_b32 v%d, 5, v%d" % (V_T + 1, V_LANE))
    a("v_lshl_add_u32 v%d, v%d, 12, v%d" % (V_T, V_T + 1, V_T))
    a("s_mul_i32 s%d, s%d, 7168" % (T_C, T_CGF))
    a("s_add_u32 s%d, s%d, %d" % (T_C, T_C, WS_CS))
    a("s_add_u32 s%d, s%d, 4096" % (T_D, T_C))
    for blk in range(7):
        a("buffer_load_dwordx4 %s, v%d, s[20:23], s%d offen offset:%d sc1" % (vr(V_CSL + 4 * blk), V_L16, T_C if blk < 4 else T_D, (blk % 4) * 1024))
    a("s_lshl_b32 s%d, s%d, 7" % (T_B, S_TB))
    a("s_add_u32 s%d, s%d, %d" % (T_B, T_B, FL_B))
    poll(a, "fb", T_B, 32, V_L4, 9)
    for st in range(3):
        h_stage(st)
    a("s_lshl_b32 s%d, s%d, 13" % (T_A, S_TB))
    a("s_add_u32 s%d, s%d, %d" % (T_A, T_A, WS_ST))
    cur_base = [0]
    lds = Lds(a)

    def reads(P):
        st, pos = P // 4, P % 4
        slot = st % 4
        base, imm = (slot // 2) * 2 * SLOT, (slot % 2) * SLOT
        out = []
        b = P % 2
        out.append(("ds_read_b128 %s, v%d offset:%d" % (vr(V_H[b]), V_AH, (st % 3) * 16384 + pos * 1024), ("h", P)))
        if base != cur_base[0]:
            d = base - cur_base[0]
            out.append(("v_add_u32 v%d, %d, v%d" % (V_AW, d, V_AW) if d > 0 else "v_subrev_u32 v%d, %d, v%d" % (V_AW, -d, V_AW), None))
            cur_base[0] = base
        for blk in range(7):
            out.append(("ds_read_b128 %s, v%d offset:%d" % (vr(V_W[b] + 4 * blk), V_AW, imm + (pos * 7 + blk) * 1024), ("w", P, blk)))
        return out

    side = {}
    g = []
    for i in range(8):
        g.append("buffer_load_dwordx4 %s, v%d, s[20:23], s%d offen offset:%d sc1" % (vr(V_ST + 4 * i), V_T, T_A, i * 512))
    side[0], side[1] = g[:4], g[4:]
    sa = Asm()
    S1, S2 = V_T + 1, V_T + 2
    V_MU, V_RS = V_T + 2, V_T + 4
    V_VAR, V_C1, V_C2 = 6, 8, 10
    sa("s_waitcnt vmcnt(0)")
    sa("v_add_f32 v%d, v%d, v%d" % (S1, V_ST, V_ST + 2))
    sa("v_add_f32 v%d, v%d, v%d" % (S2, V_ST + 1, V_ST + 3))
    for i in range(2, 16):
        sa("v_add_f32 v%d, v%d, v%d" % (S1, S1, V_ST + 2 * i))
        sa("v_add_f32 v%d, v%d, v%d" % (S2, S2, V_ST + 2 * i + 1))
    sum_halves(sa, S1, V_T + 4)
    sum_halves(sa, S2, V_T + 4)
    sa("v_mul_f32 v%d, 0x%x, v%d" % (V_VAR, f32bits(1.0 / 512), S2))
    sa("v_mul_f32 v%d, 0x%x, v%d" % (V_MU, f32bits(1.0 / 512), S1))
    sa("v_fma_f32 v%d, -v%d, v%d, v%d" % (V_VAR, V_MU, V_MU, V_VAR))
    sa("v_max_f32 v%d, 0, v%d" % (V_VAR, V_VAR))
    sa("v_add_f32 v%d, 0x%x, v%d" % (V_VAR, f32bits(1e-5), V_VAR))
    sa("v_rsq_f32 v%d, v%d" % (V_RS, V_VAR))
    sa("v_sub_f32 v%d, 0, v%d" % (V_MU, V_MU))
    VB = V_ST
    split_hi_lo_B(sa, V_MU, VB, V_T, S_MASK)
    c1 = -2.0 * math.sqrt(2.0 / math.pi) * math.log2(math.e)
    sa("v_mul_f32 v%d, 0x%x, v%d" % (V_C1, f32bits(c1), V_RS))
    sa("v_mul_f32 v%d, v%d, v%d" % (V_C2, V_RS, V_RS))
    sa("v_mul_f32 v%d, v%d, v%d" % (V_C2, V_C2, V_C1))
    sa("v_mul_f32 v%d, 0x%x, v%d" % (V_C2, f32bits(0.044715), V_C2))
    VA = V_CSL
    for blk in range(7):
        c = V_CSL + 4 * blk
        a("v_add_f32 v%d, v%d, v%d" % (c, c, c + 1))
        a("v_add_f32 v%d, v%d, v%d" % (c + 2, c + 2, c + 3))
        a("v_add_f32 v%d, v%d, v%d" % (V_T + 2, c, c + 2))
        split_hi_lo_A(a, V_T + 2, c, V_T + 1, S_MASK)
    sl = [x.strip() for x in sa.L]
    per = 10
    for k in range((len(sl) + per - 1) // per):
        side[10 + k] = sl[per * k:per * (k + 1)]
    P_R1 = 10 + (len(sl) + per - 1) // per + 1
    assert P_R1 <= 30
    side[30] = ["s_mul_i32 s%d, s%d, 112" % (T_A, S_TB), "s_mul_i32 s%d, s%d, 7" % (T_B, T_CGF), "s_add_u32 s%d, s%d, s%d" % (T_A, T_A, T_B),
                "s_lshl_b32 s%d, s%d, 10" % (T_A, T_A), "s_add_u32 s%d, s%d, %d" % (T_A, T_A, WS_A), "s_add_u32 s%d, s%d, 4096" % (T_B, T_A)]
    a("s_waitcnt vmcnt(8)")
    a("s_barrier")
    a.ts("k2")
    for t, tag in reads(0):
        lds.op(t, tag) if tag else a(t)
    for P in range(32):
        st, pos = P // 4, P % 4
        b = P % 2
        rd = reads(P + 1) if P < 31 else []
        sd = list(side.get(P, []))
        bar_at = 3 if (pos == 3 and P < 31) else -1
        first_rd = bar_at if bar_at >= 0 else 0
        for blk in range(7):
            if blk == bar_at:
                lds.drain()
                if st == 0:
                    a("s_waitcnt vmcnt(12)")
                if st == 1:
                    a("s_waitcnt vmcnt(8)")
                a("s_barrier")
            lds.need(("h", P), ("w", P, blk))
            a("v_mfma_f32_32x32x16_bf16 %s, %s, %s, %s" % (vr(V_ACC[blk], 16), vr(V_W[b] + 4 * blk), vr(V_H[b]), "0" if P == 0 else vr(V_ACC[blk], 16)))
            if blk >= first_rd:
                nrd = 3 if bar_at >= 0 else 2
                for _ in range(nrd):
                    if rd:
                        t, tag = rd.pop(0)
                        lds.op(t, tag) if tag else a(t)
            for _ in range(2):
                if sd:
                    a(sd.pop(0))
        assert not rd and not sd
        if P == 14 and "c" in WBL2:
            a("s_cmp_lg_u32 s%d, 7" % S_WB)
            a("s_cbranch_scc1 L_f_nowbc")
            a("buffer_wbl2 sc1")
            a.label("L_f_nowbc")
        if P == P_R1:
            for blk in range(7):
                a("v_mfma_f32_32x32x16_bf16 %s, %s, %s, %s" % (vr(V_ACC[blk], 16), vr(VA + 4 * blk), vr(VB), vr(V_ACC[blk], 16)))
    a.ts("k2")
    a("s_barrier")
    a("s_nop 4")
    bc = lambda r: "v[%d:%d]" % (r, r + 1)
    for blk in range(7):
        G = V_ACC[blk]
        Uu = G + 8
        T = V_TMP + 8 * (blk % 2)
        for i in range(0, 8, 2):
            a("v_pk_mul_f32 %s, %s, %s" % (bc(T + i), bc(G + i), bc(G + i)))
        for i in range(0, 8, 2):
            a("v_pk_fma_f32 %s, %s, %s, %s op_sel_hi:[1,0,0]" % (bc(T + i), bc(T + i), bc(V_C2), bc(V_C1)))
        for i in range(0, 8, 2):
            a("v_pk_mul_f32 %s, %s, %s" % (bc(T + i), bc(T + i), bc(G + i)))
        for i in range(8):
            a("v_exp_f32 v%d, v%d" % (T + i, T + i))
        for i in range(0, 8, 2):
            a("v_pk_mul_f32 %s, %s, %s" % (bc(G + i), bc(G + i), bc(Uu + i)))
        for i in range(0, 8, 2):
            a("v_pk_fma_f32 %s, %s, %s, %s op_sel_hi:[1,0,0]" % (bc(T + i), bc(T + i), bc(V_VAR), bc(V_VAR)))
        for i in range(8):
            a("v_rcp_f32 v%d, v%d" % (T + i, T + i))
        a("s_nop 0")
        for i in range(0, 8, 2):
            a("v_pk_mul_f32 %s, %s, %s" % (bc(G + i), bc(G + i), bc(T + i)))
        o = V_TMP + 16 + 4 * blk
        for i in range(4):
            a("v_cvt_pk_bf16_f32 v%d, v%d, v%d" % (o + i, G + 2 * i, G + 2 * i + 1))
    hstore(a, "act", ["buffer_store_dwordx4 %s, v%d, s[20:23], s%d offen offset:%d" % (vr(V_TMP + 16 + 4 * blk), V_L16, T_A if blk < 4 else T_B, (blk % 4) * 1024) for blk in range(7)])
    a.ts("k2")
    a("s_lshl_b32 s%d, s%d, 4" % (T_B, S_TB))
    a("s_add_u32 s%d, s%d, s%d" % (T_B, T_B, T_CGF))
    a("s_lshl_b32 s%d, s%d, 2" % (T_B, T_B))
    a("s_add_u32 s%d, s%d, %d" % (T_B, T_B, FL_C))
    a("s_lshr_b32 s%d, s%d, 1" % (S_KQ, S_WAVE))
    a("s_mul_i32 s%d, s%d, %d" % (T_M, S_W3, 28 * 1024))
    a("v_add_u32 v%d, s%d, v%d" % (V_T + 2, T_M, V_L16))
    a("s_waitcnt vmcnt(0)")
    set_flag(a, T_B, V_T, "fc")
    a("s_barrier")
    for i in range(28):
        a("ds_read_b128 %s, v%d offset:%d" % (vr(V_WD + 4 * i), V_T + 2, i * 1024))
        if i % 8 == 7:
            a("s_waitcnt lgkmcnt(4)")
    a("s_waitcnt lgkmcnt(0)")
    a.label("L_f_d1")
    V_AA = [12, 13]
    V_AF = [[32 + 32 * b + 4 * i for i in range(8)] for b in range(2)]
    V_AD = [96, 112]
    S_SA, S_M0A = 45, 46
    a("s_and_b32 s%d, s%d, 1" % (T_A, S_WAVE))
    a("s_lshl_b32 s%d, s%d, 1" % (T_B, T_RB64))
    a("s_add_u32 s%d, s%d, s%d" % (T_A, T_A, T_B))
    a("s_lshl_b32 s%d, s%d, 2" % (T_A, T_A))
    a("s_add_u32 s%d, s%d, s%d" % (T_A, T_A, S_KQ))
    a("s_mul_i32 s%d, s%d, %d" % (S_SA, T_A, 28 * 1024))
    a("s_add_u32 s%d, s%d, %d" % (S_SA, S_SA, WS_A))
    a("s_lshl_b32 s%d, s%d, 12" % (S_M0A, S_WAVE))
    for ai in range(2):
        a("s_and_b32 s%d, s%d, 1" % (T_A, S_KQ))
        a("s_xor_b32 s%d, s%d, %d" % (T_A, T_A, ai))
        a("s_lshl_b32 s%d, s%d, 1" % (T_B, S_KQ))
        a("s_add_u32 s%d, s%d, s%d" % (T_A, T_A, T_B))
        a("s_lshl_b32 s%d, s%d, 12" % (T_A, T_A))
        a("v_add_u32 v%d, s%d, v%d" % (V_AA[ai], T_A, V_L16))

    def a_stage(j):
        out = ["s_add_u32 m0, s%d, %d" % (S_M0A, (j % 5) * 32768), "s_add_u32 s%d, s%d, %d" % (T_C, S_SA, j * 4096)]
        for q in range(4):
            out.append("buffer_load_dwordx4 v%d, s[20:23], s%d offen offset:%d%s lds" % (V_L16, T_C, q * 1024, LSC))
        return out

    a("s_cmp_lg_u32 s%d, 0" % S_WAVE)
    a("s_cbranch_scc1 L_f_d2")
    a("s_lshl_b32 s%d, s%d, 7" % (T_A, T_RB64))
    a("s_add_u32 s%d, s%d, %d" % (T_A, T_A, FL_C))
    poll(a, "fc", T_A, 32, V_L4, 9)
    a.label("L_f_d2")
    a("s_barrier")
    a.ts("k2")
    a.ts("kd_")
    DD = int(os.environ.get('DD', 2))
    for l in a_stage(0):
        a(l)
    a("s_barrier")
    if "d" in WBL2:
        a("s_lshl_b32 s%d, s%d, 3" % (T_A, S_MEM))
        a("s_add_u32 s%d, s%d, s%d" % (T_A, T_A, S_WAVE))
        a("s_cmp_lg_u32 s%d, 5" % T_A)
        a("s_cbranch_scc1 L_f_nowb2")
        a("buffer_wbl2 sc1")
        a.label("L_f_nowb2")
    for jj in range(1, DD):
        for l in a_stage(jj):
            a(l)
    cb = 0

    def d_mfmas(j):
        F = V_AF[j % 2]
        return ["v_mfma_f32_32x32x16_bf16 %s, %s, %s, %s" % (vr(V_AD[ai], 16), vr(V_WD + 4 * (4 * j + q)), vr(F[q * 2 + ai]), "0" if (j == 0 and q == 0) else vr(V_AD[ai], 16))
                for q in range(4) for ai in range(2)]

    for j in range(7):
        slot = j % 5
        base, imm = (slot // 2) * 65536, (slot % 2) * 32768
        if base != cb:
            d = base - cb
            for r in V_AA:
                a("v_add_u32 v%d, %d, v%d" % (r, d, r) if d > 0 else "v_subrev_u32 v%d, %d, v%d" % (r, -d, r))
            cb = base
        nw = 4 * (min(j + DD - 1, 6) - j)
        if "g" in WBL2 and j >= 5:
            a("s_cmp_lg_u32 s%d, 7" % S_WB)
            a("s_cbranch_scc1 L_f_wg%da" % j)
            a("s_waitcnt vmcnt(%d) lgkmcnt(0)" % (nw + 1))
            a("s_branch L_f_wg%db" % j)
            a.label("L_f_wg%da" % j)
            a("s_waitcnt vmcnt(%d) lgkmcnt(0)" % nw)
            a.label("L_f_wg%db" % j)
        else:
            a("s_waitcnt vmcnt(%d) lgkmcnt(0)" % nw)
        a("s_barrier")
        a.ts("kd_")
        if j == 6 and ("e" in WBL2 or "f" in WBL2):
            if "e" in WBL2:
                a("s_lshl_b32 s%d, s%d, 3" % (T_A, S_MEM))
                a("s_add_u32 s%d, s%d, s%d" % (T_A, T_A, S_WAVE))
                a("s_cmp_lg_u32 s%d, 7" % T_A)
            else:
                a("s_cmp_lg_u32 s%d, 7" % S_WAVE)
            a("s_cbranch_scc1 L_f_nowb3")
            a("buffer_wbl2 sc1")
            a.label("L_f_nowb3")
        F = V_AF[j % 2]
        stg = a_stage(j + DD) if j + DD <= 6 else []
        for l in stg[:3]:
            a(l)
        for q in range(4):
            for ai in range(2):
                a("ds_read_b128 %s, v%d offset:%d" % (vr(F[q * 2 + ai]), V_AA[ai], imm + q * 1024))
        rest = stg[3:]
        for k, m in enumerate(d_mfmas(j)):
            a("s_waitcnt lgkmcnt(%d)" % (7 - k))
            if DIAG != "dnomfma":
                a(m)
            if rest:
                a(rest.pop(0))
            if k == 4 and j == 4 and "g" in WBL2:
                assert not rest
                a("s_cmp_lg_u32 s%d, 7" % S_WB)
                a("s_cbranch_scc1 L_f_nowbg")
                a("buffer_wbl2 sc1")
                a.label("L_f_nowbg")
    a.ts("kd_")
    XD = 65536
    for x in range(1, 4):
        a("s_xor_b32 s%d, s%d, %d" % (T_A, S_WAVE, x << 1))
        a("s_mul_i32 s%d, s%d, 6144" % (T_A, T_A))
        a("s_add_u32 s%d, s%d, %d" % (T_A, T_A, XD + (x - 1) * 2048))
        a("v_add_u32 v%d, s%d, v%d" % (V_T + x, T_A, V_L16))
    a("s_mul_i32 s%d, s%d, 6144" % (T_A, S_WAVE))
    a("s_add_u32 s%d, s%d, %d" % (T_A, T_A, XD))
    a("v_add_u32 v%d, s%d, v%d" % (V_T, T_A, V_L16))
    src = {1: V_AD[1], 2: V_AD[0] + 8, 3: V_AD[1] + 8}
    for x in (2, 1, 3):
        for q in range(2):
            a("ds_write_b128 v%d, %s offset:%d" % (V_T + x, vr(src[x] + 4 * q), q * 1024))
    U = 32
    for d in range(4):
        a("v_lshlrev_b32 v%d, 16, v%d" % (U + 2 * d, V_HK + d))
        a("v_and_b32 v%d, s%d, v%d" % (U + 2 * d + 1, S_MASK, V_HK + d))
    for i in range(8):
        a("v_add_f32 v%d, v%d, v%d" % (V_AD[0] + i, V_AD[0] + i, U + i))
    srd(a, 12, 16, 2048 * 1024)
    a("v_and_b32 v%d, 31, v%d" % (V_T + 4, V_LANE))
    a("v_lshlrev_b32 v%d, 10, v%d" % (V_T + 4, V_T + 4))
    a("v_lshrrev_b32 v%d, 5, v%d" % (V_T + 5, V_LANE))
    a("v_lshl_add_u32 v%d, v%d, 3, v%d" % (V_T + 4, V_T + 5, V_T + 4))
    a("s_lshl_b32 s%d, s%d, 15" % (T_A, T_TBO))
    a("s_lshl_b32 s%d, s%d, 6" % (T_B, T_NBO))
    a("s_add_u32 s%d, s%d, s%d" % (T_A, T_A, T_B))
    a("s_lshl_b32 s%d, s%d, 5" % (T_B, T_HALF))
    a("s_add_u32 s%d, s%d, s%d" % (T_A, T_A, T_B))
    a("s_waitcnt lgkmcnt(0)")
    a("s_barrier")
    a.ts("kd_")
    R = 48
    for k in range(6):
        a("ds_read_b128 %s, v%d offset:%d" % (vr(R + 4 * k), V_T, k * 1024))
    for x in range(3):
        a("s_waitcnt lgkmcnt(%d)" % (4 - 2 * x))
        for i in range(8):
            a("v_add_f32 v%d, v%d, v%d" % (V_AD[0] + i, V_AD[0] + i, R + 8 * x + i))
    for i in range(4):
        a("v_cvt_pk_bf16_f32 v%d, v%d, v%d" % (U + i, V_AD[0] + 2 * i, V_AD[0] + 2 * i + 1))
    for q in range(2):
        a("buffer_store_dwordx2 %s, v%d, s[12:15], s%d offen offset:%d" % (vr(U + 2 * q, 2), V_T + 4, T_A, q * 16))
    a.ts_flush("k2", S_WAVE, V_T)
    a.ts_flush("kd_", S_WAVE, V_T)


FL_1 = WS_FL + 24576
P1_DIST = int(os.environ.get('P1_DIST', 3))
P1_ROT = int(os.environ.get('P1_ROT', 1))


def team_check(a, tag, vl4, vf, preissued=False):
    a("s_lshl_b32 s38, s%d, 5" % S_TEAM)
    a("s_mov_b32 s36, 0")
    if preissued:
        a("s_branch L_tc_%s_w" % tag)
    a.label("L_tc_%s" % tag)
    a("buffer_load_dword v%d, v%d, s[96:99], s38 offen sc1" % (vf, vl4))
    a.label("L_tc_%s_w" % tag)
    a("s_add_u32 s36, s36, 1")
    a("s_waitcnt vmcnt(0)")
    a("v_subrev_u32 v%d, 0x01010101, v%d" % (vf + 1, vf))
    a("v_not_b32 v%d, v%d" % (vf + 2, vf))
    a("v_and_b32 v%d, v%d, v%d" % (vf + 1, vf + 1, vf + 2))
    a("v_and_b32 v%d, 0x80808080, v%d" % (vf + 1, vf + 1))
    a("v_cmp_eq_u32 vcc, 0, v%d" % (vf + 1))
    a("s_cmp_gt_u32 s36, 0x40000")
    a("s_cbranch_scc1 L_tc_%s_d" % tag)
    a("s_and_b32 s37, vcc_lo, 0xff")
    a("s_cmp_lg_u32 s37, 0xff")
    a("s_cbranch_scc1 L_tc_%s" % tag)
    a.label("L_tc_%s_d" % tag)
    a("s_mul_i32 s37, s%d, 0x01010101" % S_XCC)
    a("v_cmp_eq_u32 vcc, s37, v%d" % vf)
    a("s_nop 3")
    a("s_or_b32 s%d, vcc_lo, 0xffffff00" % S_FAST)
    if not FASTPATH:
        a("s_and_b32 s%d, s%d, 0" % (S_FAST, S_FAST))


def phase1(a, E):
    S_WAVE, S_H, S_QB = E["S_WAVE"], E["S_H"], E["S_QB"]
    WB, WSL = 65536, 24576
    SCR = WB + 3 * WSL
    SCR_CS, SCR_RS, SCR_BF = SCR, SCR + 1536, SCR + 2048
    S_W3, S_MASK, S_T0, S_T1, S_KX, S_KW, S_SLOT, S_CNT, S_M0X, S_M0W, S_RD, S_SLC = 43, 44, 45, 46, 47, 48, 49, 50, 51, 52, 53, 54
    S_TBI, S_G, S_O0, S_O1, S_O2, S_O3, S_O4 = 55, 56, 57, 58, 59, 60, 61
    V_LANE, V_L16, V_T = 1, 2, 3
    V_DX, V_DW, V_AX, V_AW = 10, 14, 15, 19
    V_SEL, V_SQ = 24, 28
    V_X = [32, 36]
    V_W = [[40, 44, 48], [52, 56, 60]]
    V_ACC = [64, 80, 96]
    V_CS = [112, 116, 120]
    V_TMP = 124
    if INSTR == "kv_":
        a("v_mov_b32 v250, 0")
    a.tsv("15")
    a("s_and_b32 s%d, s%d, 3" % (S_W3, S_WAVE))
    a("s_mov_b32 s%d, 0xffff0000" % S_MASK)

    def x_addr(sbase, sxor):
        a("v_and_b32 v%d, 31, v%d" % (V_T, V_LANE))
        a("v_and_b32 v%d, 3, v%d" % (V_T + 1, V_LANE))
        a("v_lshrrev_b32 v%d, 2, v%d" % (V_T + 2, V_T))
        a("v_lshlrev_b32 v%d, 7, v%d" % (V_T + 2, V_T + 2))
        a("v_lshl_add_u32 v%d, v%d, 10, v%d" % (V_T + 2, V_T + 1, V_T + 2))
        a("v_add_u32 v%d, s%d, v%d" % (V_T + 2, sbase, V_T + 2))
        a("v_lshrrev_b32 v%d, 1, v%d" % (V_T + 3, V_T))
        a("v_and_b32 v%d, 4, v%d" % (V_T + 3, V_T + 3))
        a("v_or_b32 v%d, v%d, v%d" % (V_T + 3, V_T + 3, V_T + 1))
        a("v_lshrrev_b32 v%d, 5, v%d" % (V_T + 4, V_LANE))
        a("v_xor_b32 v%d, v%d, v%d" % (V_T + 3, V_T + 3, V_T + 4))
        if sxor is not None:
            a("v_xor_b32 v%d, s%d, v%d" % (V_T + 3, sxor, V_T + 3))
        for ks in range(4):
            a("v_xor_b32 v%d, %d, v%d" % (V_T + 5, 2 * ks, V_T + 3))
            a("v_lshl_add_u32 v%d, v%d, 4, v%d" % (V_AX + ks, V_T + 5, V_T + 2))

    a("v_lshrrev_b32 v%d, 3, v%d" % (V_T, V_LANE))
    a("v_and_b32 v%d, 7, v%d" % (V_T + 1, V_LANE))
    a("v_lshrrev_b32 v%d, 2, v%d" % (V_T + 2, V_LANE))
    a("v_and_b32 v%d, 4, v%d" % (V_T + 2, V_T + 2))
    a("v_xor_b32 v%d, v%d, v%d" % (V_T + 1, V_T + 1, V_T + 2))
    a("v_mul_u32_u24 v%d, 3072, v%d" % (V_T + 3, V_T))
    a("v_lshl_add_u32 v%d, v%d, 4, v%d" % (V_DW, V_T + 1, V_T + 3))
    a("v_lshlrev_b32 v%d, 12, v%d" % (V_T, V_T))
    S_HI, S_TBH = 49, 50
    a("s_and_b32 s%d, s%d, 2" % (S_HI, S_W3))
    a("v_xor_b32 v%d, s%d, v%d" % (V_T + 1, S_HI, V_T + 1))
    for q in range(2):
        a("v_xor_b32 v%d, %d, v%d" % (V_T + 3, q, V_T + 1))
        a("v_lshl_add_u32 v%d, v%d, 4, v%d" % (V_DX + q, V_T + 3, V_T))
    a("s_and_b32 s%d, s%d, 1" % (S_TBH, S_W3))
    a("s_lshl_b32 s53, s%d, 12" % S_TBH)
    a("s_lshl_b32 s%d, s%d, 10" % (S_T0, S_HI))
    a("s_add_u32 s%d, s53, s%d" % (S_M0X, S_T0))
    a("s_lshl_b32 s%d, s%d, 1" % (S_T1, S_MEM))
    a("s_add_u32 s%d, s%d, s%d" % (S_T1, S_T1, S_TBH))
    a("s_lshl_b32 s%d, s%d, 15" % (S_KX, S_T1))
    a("s_add_u32 s%d, s%d, s%d" % (S_KX, S_KX, S_T0))
    a("v_lshlrev_b32 v%d, 10, v%d" % (V_T, V_LANE))
    a("s_mul_i32 s%d, s%d, 48" % (S_T0, S_MEM))
    a("s_mul_i32 s%d, s%d, 12" % (S_T1, S_W3))
    a("s_add_u32 s%d, s%d, s%d" % (S_T0, S_T0, S_T1))
    a("s_lshl_b32 s%d, s%d, 10" % (S_T0, S_T0))
    a("s_lshl_b32 s%d, s%d, 7" % (S_T1, S_TEAM))
    a("s_add_u32 s%d, s%d, s%d" % (S_T0, S_T0, S_T1))
    a("s_mul_i32 s%d, s%d, %d" % (S_KW, S_W3, 16 * 3072))
    a("s_add_u32 s%d, s%d, s%d" % (S_KW, S_KW, S_T1))
    a("s_waitcnt lgkmcnt(0)")
    srd(a, 12, 10, 2048 * 1024)
    srd(a, 28, 100, 512 * 3072)

    def x_issue(st):
        a("s_add_u32 m0, s%d, %d" % (S_M0X, st * 8192))
        a("s_add_u32 s%d, s%d, %d" % (S_T1, S_KX, st * 128))
        for q in range(2):
            a("buffer_load_dwordx4 v%d, s[12:15], s%d offen offset:%d lds" % (V_DX + q, S_T1, q * 1024))

    def w_issue(st):
        a("s_add_u32 m0, s%d, %d" % (S_M0W, (st % 3) * WSL))
        a("s_add_u32 s%d, s%d, %d" % (S_T0, S_KW, st * 64 * 3072))
        for sx in range(3):
            a("buffer_load_dwordx4 v%d, s[28:31], s%d offen offset:%d lds" % (V_DW, S_T0, sx * 1024))
        a("s_add_u32 m0, m0, 3072")
        a("s_add_u32 s%d, s%d, %d" % (S_T0, S_T0, 8 * 3072))
        for sx in range(3):
            a("buffer_load_dwordx4 v%d, s[28:31], s%d offen offset:%d lds" % (V_DW, S_T0, sx * 1024))

    a("s_cmp_ge_u32 s%d, 4" % S_WAVE)
    a("s_cbranch_scc1 L_p1_comp")
    a("s_mov_b64 exec, 0xfff")
    a("buffer_load_dword v%d, v%d, s[28:31], s%d offen" % (V_T + 6, V_T, S_T0))
    a("s_mov_b64 exec, -1")
    a("s_mul_i32 s%d, s%d, 6144" % (S_M0W, S_W3))
    a("s_add_u32 s%d, s%d, %d" % (S_M0W, S_M0W, WB))
    log = ["p"]
    x_issue(0)
    x_issue(1)
    log += ["x0"] * 2 + ["x1"] * 2
    w_issue(0)
    log += ["w0"] * 6
    srd(a, 20, 8, WS_SIZE)
    a("s_mov_b32 s98, 256")
    a("s_mov_b32 s99, 0x00020000")
    LX = [64, 68]
    L_SX = 92
    a("s_lshl_b32 s54, s%d, 1" % S_HI)
    x_addr(53, 54)
    make_sel(a, V_LANE, V_SEL, V_T)
    for r in list(range(V_SQ, V_SQ + 4)) + list(range(L_SX, L_SX + 4)):
        a("v_mov_b32 v%d, 0" % r)
    w_issue(1)
    x_issue(4)
    log += ["w1"] * 6 + ["x4"] * 2
    for jj in range(8):
        last = max(k for k, t in enumerate(log) if t in ("w%d" % jj, "x%d" % jj))
        a("s_waitcnt vmcnt(%d)" % (len(log) - 1 - last))
        a.tsv("%d" % jj)
        a("s_barrier")
        for ks in range(2):
            a("ds_read_b128 %s, v%d offset:%d" % (vr(LX[ks]), V_AX + ks, jj * 8192))
        if jj + 2 <= 7:
            w_issue(jj + 2)
            log += ["w%d" % (jj + 2)] * 6
        if jj + 5 <= 7:
            x_issue(jj + 5)
            log += ["x%d" % (jj + 5)] * 2
        if jj == 5 and "q" in PRET:
            a("s_lshr_b32 s%d, s%d, 1" % (S_T0, S_W3))
            a("s_lshl_b32 s%d, s%d, 1" % (S_T1, S_MEM))
            a("s_add_u32 s%d, s%d, s%d" % (S_T0, S_T0, S_T1))
            a("s_lshl_b32 s%d, s%d, 10" % (S_T0, S_T0))
            a("s_lshl_b32 s%d, s%d, 1" % (S_T1, S_TEAM))
            a("s_add_u32 s%d, s%d, s%d" % (S_T1, S_T1, S_TBH))
            a("s_lshl_b32 s%d, s%d, 17" % (S_T1, S_T1))
            a("s_add_u32 s%d, s%d, s%d" % (S_T0, S_T0, S_T1))
            for k, off in enumerate((WS_K, WS_K + 65536, WS_V, WS_V + 65536, WS_Q, WS_Q + 65536)):
                a("s_add_u32 s%d, s%d, %d" % (S_T1, S_T0, off))
                a("buffer_load_dwordx4 %s, v%d, s[20:23], s%d offen sc1" % (vr(160 + 4 * k), V_L16, S_T1))
            log += ["q"] * 6
        for ks in range(2):
            a("s_waitcnt lgkmcnt(%d)" % (1 - ks))
            for d in range(4):
                a("v_lshlrev_b32 v%d, 16, v%d" % (V_TMP + 2 * d, LX[ks] + d))
                a("v_and_b32 v%d, s%d, v%d" % (V_TMP + 2 * d + 1, S_MASK, LX[ks] + d))
            for d in range(8):
                a("v_fmac_f32 v%d, v%d, v%d" % (V_SQ + d % 4, V_TMP + d, V_TMP + d))
        for ks in range(2):
            a("v_mfma_f32_16x16x32_bf16 %s, %s, %s, %s" % (vr(L_SX), vr(V_SEL), vr(LX[ks]), vr(L_SX)))
    a("s_nop 1")
    a("v_add_f32 v%d, v%d, v%d" % (V_SQ, V_SQ, V_SQ + 1))
    a("v_add_f32 v%d, v%d, v%d" % (V_SQ + 2, V_SQ + 2, V_SQ + 3))
    a("v_add_f32 v%d, v%d, v%d" % (V_SQ, V_SQ, V_SQ + 2))
    sum_halves(a, V_SQ, V_SQ + 1)
    a("v_mov_b32 v%d, v%d" % (V_SQ + 1, L_SX))
    SCR_PX = SCR + 4096
    a("s_lshl_b32 s%d, s%d, 9" % (S_T0, S_TBH))
    a("s_add_u32 s%d, s%d, %d" % (S_T0, S_T0, SCR_PX))
    a("v_lshl_add_u32 v%d, v%d, 3, s%d" % (V_T + 3, V_LANE, S_T0))
    a("s_cmp_lt_u32 s%d, 2" % S_WAVE)
    a("s_cbranch_scc1 L_p1_fin")
    a("ds_write_b64 v%d, %s" % (V_T + 3, vr(V_SQ, 2)))
    a("s_waitcnt lgkmcnt(0)")
    a("s_barrier")
    a("s_branch L_p1_hx")
    a.label("L_p1_fin")
    a("v_and_b32 v%d, 31, v%d" % (V_T, V_LANE))
    a("v_lshlrev_b32 v%d, 2, v%d" % (V_T, V_T))
    a("s_barrier")
    a("ds_read_b64 %s, v%d" % (vr(V_SQ + 2, 2), V_T + 3))
    a("s_lshl_b32 s%d, s%d, 7" % (S_T0, S_W3))
    a("s_add_u32 s%d, s%d, %d" % (S_T0, S_T0, SCR_RS))
    a("v_add_u32 v%d, s%d, v%d" % (V_T + 2, S_T0, V_T))
    a("s_lshl_b32 s%d, s%d, 9" % (S_T0, S_W3))
    a("s_add_u32 s%d, s%d, %d" % (S_T0, S_T0, SCR_BF))
    a("v_lshl_add_u32 v%d, v%d, 3, s%d" % (V_T + 3, V_LANE, S_T0))
    a("s_waitcnt lgkmcnt(0)")
    a("v_add_f32 v%d, v%d, v%d" % (V_SQ, V_SQ, V_SQ + 2))
    a("v_add_f32 v%d, v%d, v%d" % (V_SQ + 1, V_SQ + 1, V_SQ + 3))
    V_MU, V_RS = V_SQ + 2, V_SQ + 3
    a("v_mul_f32 v%d, 0x%x, v%d" % (V_MU, f32bits(1.0 / 512), V_SQ + 1))
    a("v_mul_f32 v%d, 0x%x, v%d" % (V_SQ, f32bits(1.0 / 512), V_SQ))
    a("v_fma_f32 v%d, -v%d, v%d, v%d" % (V_SQ, V_MU, V_MU, V_SQ))
    a("v_max_f32 v%d, 0, v%d" % (V_SQ, V_SQ))
    a("v_add_f32 v%d, 0x%x, v%d" % (V_SQ, f32bits(1e-5), V_SQ))
    a("v_rsq_f32 v%d, v%d" % (V_RS, V_SQ))
    a("v_sub_f32 v%d, 0, v%d" % (V_MU, V_MU))
    split_hi_lo_B(a, V_MU, LX[0], V_T + 4, S_MASK)
    a("ds_write_b32 v%d, v%d" % (V_T + 2, V_RS))
    a("ds_write_b64 v%d, %s" % (V_T + 3, vr(LX[0], 2)))
    a("s_waitcnt lgkmcnt(0)")
    a.label("L_p1_hx")
    a("s_barrier")
    team_check(a, "h", FV_L4, FV_F)
    a("s_cmp_lg_u32 s%d, 0" % S_WAVE)
    a("s_cbranch_scc1 L_p1_done")
    a("s_lshl_b32 s%d, s%d, 9" % (T_A, S_TEAM))
    a("s_bfe_u32 s%d, s%d, 0x10001" % (T_B, S_H))
    a("s_lshl_b32 s%d, s%d, 8" % (T_B, T_B))
    a("s_add_u32 s%d, s%d, s%d" % (T_A, T_A, T_B))
    a("s_add_u32 s%d, s%d, %d" % (T_A, T_A, FL_1))
    poll(a, "f1", T_A, 64, FV_L4, FV_F)
    a("s_branch L_p1_done")
    a.label("L_p1_comp")
    a("v_mov_b32 v200, v%d" % V_DX)
    a("v_mov_b32 v201, v%d" % (V_DX + 1))
    a("s_lshr_b32 s%d, s%d, 1" % (S_TBI, S_W3))
    a("s_and_b32 s%d, s%d, 1" % (S_G, S_W3))
    a("s_lshl_b32 s%d, s%d, 12" % (S_T0, S_TBI))
    a("s_lshl_b32 s%d, s%d, 1" % (S_T1, S_TBI))
    x_addr(S_T0, S_T1)
    a("v_bfe_u32 v%d, v%d, 2, 2" % (V_T, V_LANE))
    a("v_lshlrev_b32 v%d, 7, v%d" % (V_T + 1, V_T))
    a("v_lshrrev_b32 v%d, 1, v%d" % (V_T, V_T))
    a("v_xor_b32 v%d, s%d, v%d" % (V_T, S_G, V_T))
    a("v_lshl_add_u32 v%d, v%d, 6, v%d" % (V_T + 1, V_T, V_T + 1))
    a("v_bfe_u32 v%d, v%d, 4, 1" % (V_T, V_LANE))
    a("v_lshl_add_u32 v%d, v%d, 5, v%d" % (V_T + 1, V_T, V_T + 1))
    a("v_and_b32 v%d, 3, v%d" % (V_T, V_LANE))
    a("v_lshl_add_u32 v%d, v%d, 3, v%d" % (V_T + 1, V_T, V_T + 1))
    a("v_lshrrev_b32 v%d, 5, v%d" % (V_T + 2, V_LANE))
    a("v_mul_u32_u24 v%d, 3072, v%d" % (V_T, V_T + 2))
    a("v_add_u32 v%d, v%d, v%d" % (V_T + 1, V_T + 1, V_T))
    for p in range(2):
        a("s_xor_b32 s%d, s%d, %d" % (S_T0, S_TBI, p))
        a("s_mul_i32 s%d, s%d, 6144" % (S_T0, S_T0))
        a("s_add_u32 s%d, s%d, %d" % (S_T0, S_T0, WB))
        a("v_add_u32 v%d, s%d, v%d" % (V_AW + p, S_T0, V_T + 1))
    make_sel(a, V_LANE, V_SEL, V_T)
    V_ECW, V_ECS, V_ERS, V_ERV, V_EBF, V_OV = 10, 11, 12, 13, 14, 21
    a("v_and_b32 v%d, 31, v%d" % (V_T, V_LANE))
    a("v_lshlrev_b32 v%d, 2, v%d" % (V_T, V_T))
    a("s_mul_i32 s%d, s%d, 768" % (S_T0, S_G))
    a("s_add_u32 s%d, s%d, %d" % (S_T0, S_T0, SCR_CS))
    a("v_mul_u32_u24 v%d, 384, v%d" % (V_T + 3, V_T + 2))
    a("v_add3_u32 v%d, v%d, v%d, s%d" % (V_ECS, V_T + 3, V_T, S_T0))
    a("s_mul_i32 s%d, s%d, 384" % (S_T1, S_TBI))
    a("s_add_u32 s%d, s%d, s%d" % (S_T0, S_T0, S_T1))
    a("v_add_u32 v%d, s%d, v%d" % (V_ECW, S_T0, V_T))
    a("s_lshl_b32 s%d, s%d, 7" % (S_T0, S_TBI))
    a("s_add_u32 s%d, s%d, %d" % (S_T0, S_T0, SCR_RS))
    a("v_add_u32 v%d, s%d, v%d" % (V_ERS, S_T0, V_T))
    a("v_lshl_add_u32 v%d, v%d, 4, s%d" % (V_ERV, V_T + 2, S_T0))
    a("s_lshl_b32 s%d, s%d, 9" % (S_T0, S_TBI))
    a("s_add_u32 s%d, s%d, %d" % (S_T0, S_T0, SCR_BF))
    a("v_lshl_add_u32 v%d, v%d, 3, s%d" % (V_EBF, V_LANE, S_T0))
    a("v_bfe_u32 v%d, v%d, 4, 1" % (V_T + 1, V_LANE))
    a("v_lshlrev_b32 v%d, 16, v%d" % (V_T + 1, V_T + 1))
    a("v_lshl_add_u32 v%d, v%d, 8, v%d" % (V_T + 1, V_T + 2, V_T + 1))
    a("v_and_b32 v%d, 15, v%d" % (V_T + 2, V_LANE))
    a("v_lshl_add_u32 v%d, v%d, 4, v%d" % (V_OV, V_T + 2, V_T + 1))
    a("s_lshl_b32 s%d, s%d, 1" % (S_T0, S_MEM))
    a("s_add_u32 s%d, s%d, s%d" % (S_T0, S_T0, S_TBI))
    a("s_lshl_b32 s%d, s%d, 10" % (S_T0, S_T0))
    a("s_lshl_b32 s%d, s%d, 1" % (S_T1, S_TEAM))
    a("s_add_u32 s%d, s%d, s%d" % (S_T1, S_T1, S_G))
    a("s_lshl_b32 s%d, s%d, 17" % (S_T1, S_T1))
    a("s_add_u32 s%d, s%d, s%d" % (S_O0, S_T0, S_T1))
    a("s_add_u32 s%d, s%d, 65536" % (S_O1, S_O0))
    a("s_add_u32 s%d, s%d, %d" % (S_O2, S_O0, WS_K))
    a("s_add_u32 s%d, s%d, %d" % (S_O3, S_O1, WS_K))
    a("s_add_u32 s%d, s%d, %d" % (S_O4, S_O0, WS_V))
    VB = V_TMP
    VA = [V_TMP + 4, V_TMP + 8, V_TMP + 12]
    for r in (VB + 2, VB + 3):
        a("v_mov_b32 v%d, 0" % r)
    a("s_waitcnt lgkmcnt(0)")
    srd(a, 20, 8, WS_SIZE)
    a("s_mov_b32 s98, 256")
    a("s_mov_b32 s99, 0x00020000")
    pret = []
    if "t" in PRET:
        a("v_lshlrev_b32 v202, 20, v%d" % V_LANE)
        a("s_cmp_lg_u32 s%d, 5" % S_WAVE)
        a("s_cbranch_scc1 L_p1_t6")
        a("buffer_load_dword v203, v202, s[20:23], 0 offen")
        a.label("L_p1_t6")
        a("s_cmp_lg_u32 s%d, 6" % S_WAVE)
        a("s_cbranch_scc1 L_p1_t7")
        for k, (sp, nb) in enumerate(((16, 2048 * 1024), (4, 512 * 1024), (6, 1792 * 1024))):
            srd(a, 32, sp, nb)
            a("buffer_load_dword v%d, v202, s[32:35], 0 offen" % (203 + k))
        a.label("L_p1_t7")
        a("s_cmp_lg_u32 s%d, 7" % S_WAVE)
        a("s_cbranch_scc1 L_p1_t8")
        for k, (sp, nb) in enumerate(((24, 512 * 3584), (26, 512 * 3584))):
            srd(a, 32, sp, nb)
            a("buffer_load_dword v%d, v202, s[32:35], 0 offen" % (203 + k))
        a.label("L_p1_t8")
    V_DX_SAVE, V_DX = V_DX, 200
    x_issue(2)
    x_issue(3)
    V_DX = V_DX_SAVE
    a("s_cmp_lg_u32 s%d, 4" % S_WAVE)
    a("s_cbranch_scc1 L_p1_nz")
    Z = V_TMP + 20
    a("v_and_b32 v%d, 1, v%d" % (Z, V_LANE))
    a("v_bfe_u32 v%d, v%d, 1, 1" % (Z + 1, V_LANE))
    a("v_bfe_u32 v%d, v%d, 2, 1" % (Z + 2, V_LANE))
    a("v_bfe_u32 v%d, v%d, 1, 2" % (Z + 3, V_LANE))
    a("s_lshl_b32 s36, s%d, 10" % S_QB)
    a("s_lshl_b32 s37, s%d, 2" % S_H)
    a("s_add_u32 s36, s36, s37")
    a("v_lshl_add_u32 v%d, v%d, 8, s36" % (Z + 4, Z + 3))
    a("v_lshl_add_u32 v%d, v%d, 7, v%d" % (Z + 4, Z, Z + 4))
    a("s_and_b32 s36, s%d, 3" % S_MEM)
    a("s_lshl_b32 s37, s%d, 2" % S_TEAM)
    a("s_add_u32 s38, s36, s37")
    a("s_lshl_b32 s36, s38, 8")
    a("s_lshr_b32 s37, s%d, 2" % S_MEM)
    a("s_lshl_b32 s39, s37, 4")
    a("s_add_u32 s36, s36, s39")
    a("s_add_u32 s36, s36, %d" % (FL_B - WS_FL))
    a("v_lshl_add_u32 v%d, v%d, 7, s36" % (Z + 5, Z + 1))
    a("v_lshl_add_u32 v%d, v%d, 3, v%d" % (Z + 5, Z, Z + 5))
    a("v_lshl_add_u32 v%d, v%d, 2, v%d" % (Z + 5, Z + 2, Z + 5))
    a("s_lshr_b32 s36, s38, 1")
    a("s_lshl_b32 s36, s36, 8")
    a("s_lshl_b32 s37, s37, 1")
    a("s_and_b32 s39, s%d, 1" % S_MEM)
    a("s_add_u32 s37, s37, s39")
    a("s_lshl_b32 s37, s37, 2")
    a("s_add_u32 s36, s36, s37")
    a("s_add_u32 s36, s36, %d" % (FL_C - WS_FL))
    a("v_lshl_add_u32 v%d, v%d, 7, s36" % (Z + 6, Z + 1))
    a("v_lshl_add_u32 v%d, v%d, 6, v%d" % (Z + 6, Z, Z + 6))
    a("s_lshl_b32 s36, s2, 4")
    a("s_add_u32 s36, s36, %d" % (FL_P - WS_FL))
    a("v_and_b32 v%d, 3, v%d" % (Z + 7, V_LANE))
    a("v_lshl_add_u32 v%d, v%d, 2, s36" % (Z + 7, Z + 7))
    a("v_cmp_ne_u32 vcc, 0, v%d" % (Z + 2))
    a("s_lshl_b32 s36, s%d, 9" % S_TEAM)
    a("s_lshl_b32 s37, s%d, 3" % S_MEM)
    a("s_add_u32 s36, s36, s37")
    a("s_add_u32 s36, s36, %d" % (FL_1 - WS_FL))
    a("v_cndmask_b32 v%d, v%d, v%d, vcc" % (Z + 6, Z + 6, Z + 7))
    a("v_lshl_add_u32 v%d, v%d, 8, s36" % (Z + 7, Z))
    a("v_lshl_add_u32 v%d, v%d, 2, v%d" % (Z + 7, Z + 1, Z + 7))
    a("v_mov_b32 v%d, v%d" % (V_T, Z + 4))
    for k in range(1, 4):
        a("v_cmp_le_u32 vcc, %d, v%d" % (8 * k, V_LANE))
        a("s_nop 1")
        a("v_cndmask_b32 v%d, v%d, v%d, vcc" % (V_T, V_T, Z + 4 + k))
    a("v_mov_b32 v%d, 0" % (V_T + 1))
    a("s_mov_b32 s%d, %d" % (S_T0, WS_FL))
    a("s_mov_b64 exec, 0xffffffff")
    a("buffer_store_dword v%d, v%d, s[20:23], s%d offen sc1" % (V_T + 1, V_T, S_T0))
    a("s_mov_b64 exec, -1")
    a.label("L_p1_nz")
    cur_base = [0]

    lds = Lds(a)
    NB = 3
    V_X = [32, 36, 184]
    V_W = [[40, 44, 48], [52, 56, 60], [188, 192, 196]]

    def reads(P):
        st, pos = P // 4, P % 4
        out = []
        b = P % NB
        out.append(("ds_read_b128 %s, v%d offset:%d" % (vr(V_X[b]), V_AX + pos, st * 8192), ("x", P)))
        for sx in range(3):
            for rd in range(2):
                out.append(("ds_read_b64_tr_b16 %s, v%d offset:%d" % (vr(V_W[b][sx] + 2 * rd, 2), V_AW + (pos & 1), (st % 3) * WSL + (pos & 2) * 6144 + sx * 1024 + rd * 512), ("w", P, sx, rd)))
        return out

    def emit(items):
        for t, tag in items:
            lds.op(t, tag) if tag else a(t)

    a.tsv("0")
    a("s_barrier")
    a.ts("k2")
    a.ts("kp_")
    emit(reads(0))
    emit(reads(1))
    for P in range(32):
        st, pos = P // 4, P % 4
        b = P % NB
        if P == 11:
            a("s_cmp_lg_u32 s%d, 4" % S_WAVE)
            a("s_cbranch_scc1 L_p1_np")
            a("s_lshl_b32 s%d, s%d, 5" % (S_T0, S_TEAM))
            a("s_add_u32 s%d, s%d, s%d" % (S_T0, S_T0, S_MEM))
            a("v_mov_b32 v%d, 0" % (V_T + 1))
            a("v_mov_b32 v%d, s%d" % (V_T + 2, S_XCC))
            a("s_mov_b64 exec, 1")
            a("s_waitcnt vmcnt(0)")
            a("buffer_store_byte v%d, v%d, s[96:99], s%d offen sc1" % (V_T + 2, V_T + 1, S_T0))
            a("s_mov_b64 exec, -1")
            a.label("L_p1_np")
        X = vr(V_X[b])
        c = lambda r, n=16: ("0" if P == 0 else vr(r, n))
        m = []
        m.append(("v_mfma_f32_32x32x16_bf16 %s, %s, %s, %s" % (vr(V_ACC[0], 16), vr(V_W[b][0]), X, c(V_ACC[0])), [("x", P), ("w", P, 0, 1)]))
        m.append(("v_mfma_f32_32x32x16_bf16 %s, %s, %s, %s" % (vr(V_ACC[1], 16), vr(V_W[b][1]), X, c(V_ACC[1])), [("w", P, 1, 1)]))
        m.append(("v_mfma_f32_32x32x16_bf16 %s, %s, %s, %s" % (vr(V_ACC[2], 16), X, vr(V_W[b][2]), c(V_ACC[2])), [("w", P, 2, 1)]))
        if pos % 2 == 0:
            for sx in range(3):
                m.append(("v_mfma_f32_16x16x32_bf16 %s, %s, %s, %s" % (vr(V_CS[sx]), vr(V_SEL), vr(V_W[b][sx]), c(V_CS[sx], 4)), [("w", P, sx, 1)]))
        bar = pos == 2 and P + 2 < 32
        rd = None
        extra = []
        if P == 28:
            extra = [("s_lshl_b32 s38, s%d, 5" % S_TEAM, None), ("buffer_load_dword v%d, v%d, s[96:99], s38 offen sc1" % (FV_F, FV_L4), None)]
        if 4 <= P < 4 + len(pret):
            extra = [(pret[P - 4], None)]
        for k, (t, need) in enumerate(m):
            lds.need(*need)
            if DIAG != "nomfma":
                a(t)
            if k == 0:
                if bar:
                    lds.drain()
                    if st == 1:
                        a("s_cmp_lg_u32 s%d, 4" % S_WAVE)
                        a("s_cbranch_scc1 L_p1_w0")
                        a("s_waitcnt vmcnt(1)")
                        a("s_branch L_p1_w1")
                        a.label("L_p1_w0")
                        a("s_waitcnt vmcnt(0)")
                        a.label("L_p1_w1")
                    a.tsv("%d" % (st + 1))
                    a("s_barrier")
                    a.ts("kp_")
                if P == 30:
                    a("s_barrier")
                rd = (reads(P + 2) if P + 2 < 32 else []) + extra
            n = 4 if len(rd) > 8 else 3
            emit(rd[:n])
            rd = rd[n:]
        emit(rd)
    a("s_nop 3")
    for sx in range(3):
        a("ds_write_b32 v%d, v%d offset:%d" % (V_ECW, V_CS[sx], sx * 128))
    a.ts("k2")
    a("s_waitcnt lgkmcnt(0)")
    a("s_barrier")
    a.ts("kp_")
    VC = V_TMP + 16
    V_RS = V_TMP + 22
    V_RQ = V_TMP + 23
    VR = V_TMP + 24
    for sx in range(3):
        a("ds_read_b32 v%d, v%d offset:%d" % (VC + sx, V_ECS, sx * 128))
    a("ds_read_b64 %s, v%d" % (vr(VB, 2), V_EBF))
    a("ds_read_b32 v%d, v%d" % (V_RS, V_ERS))
    for q in range(4):
        a("ds_read_b128 %s, v%d offset:%d" % (vr(VR + 4 * q), V_ERV, q * 32))
    for sx in range(3):
        a("s_waitcnt lgkmcnt(%d)" % (8 - sx))
        split_hi_lo_A(a, VC + sx, VA[sx], V_T + 4, S_MASK)
    a("s_waitcnt lgkmcnt(4)")
    a("v_mul_f32 v%d, 0x%x, v%d" % (V_RQ, f32bits(0.25 * math.log2(math.e)), V_RS))
    a("v_mfma_f32_32x32x16_bf16 %s, %s, %s, %s" % (vr(V_ACC[0], 16), vr(VA[0]), vr(VB), vr(V_ACC[0], 16)))
    a("v_mfma_f32_32x32x16_bf16 %s, %s, %s, %s" % (vr(V_ACC[1], 16), vr(VA[1]), vr(VB), vr(V_ACC[1], 16)))
    a("v_mfma_f32_32x32x16_bf16 %s, %s, %s, %s" % (vr(V_ACC[2], 16), vr(VB), vr(VA[2]), vr(V_ACC[2], 16)))
    team_check(a, "c", FV_L4, FV_F, preissued=True)
    VO = V_X[0]
    k = 0
    stores = []
    for blk, sc, soffs in ((1, V_RS, (S_O2, S_O3)), (0, V_RQ, (S_O0, S_O1))):
        for half in range(2):
            o = VO + 4 * k
            k += 1
            for i in range(8):
                r = V_ACC[blk] + 8 * half + i
                a("v_mul_f32 v%d, v%d, v%d" % (r, sc, r))
            for i in range(4):
                r = V_ACC[blk] + 8 * half + 2 * i
                a("v_cvt_pk_bf16_f32 v%d, v%d, v%d" % (o + i, r, r + 1))
            stores.append("buffer_store_dwordx4 %s, v%d, s[20:23], s%d offen" % (vr(o), V_L16, soffs[half]))
        hstore(a, "p1%d" % blk, stores)
        stores = []
    a("s_waitcnt lgkmcnt(0)")
    for half in range(2):
        o = VO + 4 * k
        k += 1
        for i in range(8):
            r = V_ACC[2] + 8 * half + i
            a("v_mul_f32 v%d, v%d, v%d" % (r, VR + 8 * half + i, r))
        for i in range(4):
            r = V_ACC[2] + 8 * half + 2 * i
            a("v_cvt_pk_bf16_f32 v%d, v%d, v%d" % (o + i, r, r + 1))
        stores.append("buffer_store_dwordx4 %s, v%d, s[20:23], s%d offen offset:%d" % (vr(o), V_OV, S_O4, half * 512))
    hstore(a, "p1v", stores)
    a("s_lshl_b32 s%d, s%d, 9" % (T_A, S_TEAM))
    a("s_lshl_b32 s%d, s%d, 8" % (T_B, S_G))
    a("s_add_u32 s%d, s%d, s%d" % (T_A, T_A, T_B))
    a("s_lshl_b32 s%d, s%d, 1" % (T_B, S_MEM))
    a("s_add_u32 s%d, s%d, s%d" % (T_B, T_B, S_TBI))
    a("s_lshl_b32 s%d, s%d, 2" % (T_B, T_B))
    a("s_add_u32 s%d, s%d, s%d" % (T_A, T_A, T_B))
    a("s_add_u32 s%d, s%d, %d" % (T_A, T_A, FL_1))
    a("s_waitcnt vmcnt(0)")
    set_flag(a, T_A, V_T, "f1")
    a.ts_flush("kp_", S_WAVE, V_T)
    a.label("L_p1_done")
    a.tsv("9")
    a.tsv_flush(S_WAVE)


def gen_f(a):
    name = NAME + "_kernel"
    kernel_begin(a, name)
    S_WAVE, S_H, S_QB, S_T0, S_T1, S_T2, S_T3 = 40, 41, 42, 43, 44, 45, 46
    S_ITER, S_SYNC, S_PASS, S_NT = 47, 48, 49, 50
    S_TASK, S_STG, S_DST0, S_DST1, S_TYPE = 51, 52, 53, 54, 55
    S_VMASK = 56
    S_CS = 58
    S_KB, S_W1K, S_CH = 59, 60, 61
    S_PE, S_PO, S_PS = 36, 37, 38
    V_LANE, V_L16, V_T = 1, 2, 3
    V_KA, V_VA = 10, 11
    V_Q = 12
    V_K = [16, 20]
    V_V = [24, 32]
    V_P = 40
    V_CM = 48
    V_S = [64, 80]
    V_O = 96
    V_MAX = 112
    V_PK = 113
    V_PD = 114
    V_SEL = 116
    V_PCS = [120, 124]
    STG = 131072
    a("s_cmp_ge_u32 s2, 256")
    a("s_cbranch_scc1 L_f_end")
    a.ts("k2")
    a.ts("kp_")
    pass
    a("s_load_dwordx2 s[8:9], s[0:1], %d" % ARG_WS)
    a("s_load_dwordx2 s[4:5], s[0:1], %d" % ARG_WO)
    a("s_load_dwordx4 s[24:27], s[0:1], %d" % ARG_WG)
    a("s_load_dwordx2 s[6:7], s[0:1], %d" % ARG_WD)
    a("s_load_dwordx2 s[10:11], s[0:1], %d" % ARG_X)
    a("s_load_dwordx2 s[16:17], s[0:1], %d" % ARG_OUT)
    a("s_load_dwordx2 s[100:101], s[0:1], %d" % ARG_WQKV)
    a("s_load_dwordx2 s[96:97], s[0:1], %d" % ARG_DBG)
    a("v_lshrrev_b32 v%d, 6, v0" % V_T)
    a("v_and_b32 v%d, 63, v0" % V_LANE)
    a("v_readfirstlane_b32 s%d, v%d" % (S_WAVE, V_T))
    a("v_lshlrev_b32 v%d, 4, v%d" % (V_L16, V_LANE))
    a("s_lshr_b32 s%d, s2, 3" % S_MEM)
    a("s_and_b32 s%d, s2, 7" % S_TEAM)
    if AMAP:
        a("s_lshr_b32 s%d, s2, 3" % S_H)
        a("s_and_b32 s%d, s2, 7" % S_QB)
    else:
        a("s_and_b32 s%d, s2, 7" % S_H)
        a("s_lshl_b32 s%d, s%d, 2" % (S_H, S_H))
        a("s_lshr_b32 s%d, s2, 6" % S_T0)
        a("s_add_u32 s%d, s%d, s%d" % (S_H, S_H, S_T0))
        a("s_lshr_b32 s%d, s2, 3" % S_QB)
        a("s_and_b32 s%d, s%d, 7" % (S_QB, S_QB))
    a("s_lshr_b32 s%d, s%d, 2" % (S_T0, S_WAVE))
    a("s_lshl_b32 s%d, s%d, 8" % (S_T0, S_T0))
    a("v_xor_b32 v%d, s%d, v%d" % (FV_LX, S_T0, V_L16))
    a("v_lshlrev_b32 v%d, 2, v%d" % (FV_L4, V_LANE))
    a("v_mov_b32 v%d, 0" % (FV_F + 3))
    a("v_lshlrev_b32 v%d, 3, v%d" % (FV_L8, V_LANE))
    a("s_getreg_b32 s%d, hwreg(HW_REG_XCC_ID)" % S_XCC)
    a("s_and_b32 s%d, s%d, 15" % (S_XCC, S_XCC))
    a("s_add_u32 s%d, s%d, 1" % (S_XCC, S_XCC))
    phase1(a, locals())
    a("s_lshl_b32 s%d, s%d, 16" % (S_KB, S_H))
    a("s_lshl_b32 s%d, s%d, 10" % (S_W1K, S_WAVE))
    a("s_add_u32 s%d, s%d, s%d" % (S_KB, S_KB, S_W1K))
    a("s_lshl_b32 s%d, s%d, 13" % (S_CH, S_QB))
    a("s_add_u32 s%d, s%d, s%d" % (S_T3, S_KB, S_CH))
    a("s_add_u32 s%d, s%d, %d" % (S_KB, S_KB, WS_K))
    if not K2_ROT:
        a("s_mov_b32 s%d, 0" % S_CH)
    a("s_mov_b32 s39, s%d" % S_T3)

    def kv_dma(c):
        return [["s_add_u32 s%d, s%d, s%d" % (S_T3, S_KB, S_CH),
                 "s_add_u32 m0, s%d, %d" % (S_W1K, c * 8192),
                 "s_add_u32 s%d, s%d, 8192" % (S_CH, S_CH),
                 "buffer_load_dwordx4 v%d, s[20:23], s%d offen sc1 lds" % (V_L16, S_T3)],
                ["s_add_u32 s%d, s%d, %d" % (S_T3, S_T3, WS_V - WS_K),
                 "s_add_u32 m0, s%d, %d" % (S_W1K, 65536 + c * 8192),
                 "s_and_b32 s%d, s%d, 0xffff" % (S_CH, S_CH),
                 "buffer_load_dwordx4 v%d, s[20:23], s%d offen sc1 lds" % (V_L16, S_T3)]]

    a("s_mov_b32 s%d, 0" % S_TYPE)
    a("s_cmp_ge_u32 s%d, 4" % S_WAVE)
    a("s_cbranch_scc1 L_f_nopack")
    a("s_lshl_b32 s%d, s2, 2" % S_TASK)
    a("s_add_u32 s%d, s%d, s%d" % (S_TASK, S_TASK, S_WAVE))
    a("s_cmp_ge_u32 s%d, 736" % S_TASK)
    a("s_cbranch_scc1 L_f_nopack")
    a("s_lshl_b32 s%d, s%d, 13" % (S_STG, S_WAVE))
    a("s_add_u32 s%d, s%d, %d" % (S_STG, S_STG, STG))
    a("v_lshrrev_b32 v%d, 2, v%d" % (V_T, V_LANE))
    a("v_and_b32 v%d, 3, v%d" % (V_T + 1, V_LANE))
    a("s_cmp_ge_u32 s%d, 448" % S_TASK)
    a("s_cbranch_scc1 L_f_packn")
    a("s_mov_b32 s%d, 1" % S_TYPE)
    srd(a, 28, 24, 512 * 3584)
    srd(a, 32, 26, 512 * 3584)
    a("v_mul_u32_u24 v%d, 3584, v%d" % (V_T, V_T))
    a("v_lshl_add_u32 v%d, v%d, 4, v%d" % (V_PD, V_T + 1, V_T))
    a("s_and_b32 s%d, s%d, 7" % (S_T0, S_TASK))
    a("s_lshr_b32 s%d, s%d, 3" % (S_T1, S_TASK))
    a("s_mul_i32 s%d, s%d, %d" % (S_PE, S_T0, 64 * 3584))
    a("s_lshl_b32 s%d, s%d, 6" % (S_T2, S_T1))
    a("s_add_u32 s%d, s%d, s%d" % (S_PE, S_PE, S_T2))
    a("s_mov_b32 s%d, s%d" % (S_PO, S_PE))
    a("s_mov_b32 s%d, %d" % (S_PS, 16 * 3584))
    for hb, sd in ((0, S_DST0), (1, S_DST1)):
        a("s_lshl_b32 s%d, s%d, 1" % (S_T2, S_T1))
        if hb:
            a("s_add_u32 s%d, s%d, 1" % (S_T2, S_T2))
        a("s_mul_i32 s%d, s%d, 9363" % (S_CS, S_T2))
        a("s_lshr_b32 s%d, s%d, 16" % (S_CS, S_CS))
        a("s_mul_i32 s%d, s%d, 7" % (sd, S_CS))
        a("s_sub_u32 s%d, s%d, s%d" % (sd, S_T2, sd))
        a("s_mul_i32 s%d, s%d, %d" % (S_CS, S_CS, 32 * 7))
        a("s_add_u32 s%d, s%d, s%d" % (sd, sd, S_CS))
        a("s_mul_i32 s%d, s%d, 28" % (S_CS, S_T0))
        a("s_add_u32 s%d, s%d, s%d" % (sd, sd, S_CS))
        a("s_lshl_b32 s%d, s%d, 10" % (sd, sd))
        a("s_add_u32 s%d, s%d, %d" % (sd, sd, WS_GU))
    a("s_lshl_b32 s%d, s%d, 11" % (S_CS, S_T1))
    a("s_lshr_b32 s%d, s%d, 2" % (S_T2, S_T0))
    a("s_lshl_b32 s%d, s%d, 9" % (S_T2, S_T2))
    a("s_add_u32 s%d, s%d, s%d" % (S_CS, S_CS, S_T2))
    a("s_and_b32 s%d, s%d, 3" % (S_T2, S_T0))
    a("s_lshl_b32 s%d, s%d, 2" % (S_T2, S_T2))
    a("s_add_u32 s%d, s%d, s%d" % (S_CS, S_CS, S_T2))
    a("s_add_u32 s%d, s%d, %d" % (S_CS, S_CS, WS_CS))
    a("s_branch L_f_nopack")
    a.label("L_f_packn")
    a("s_mov_b32 s%d, 2" % S_TYPE)
    a("v_lshlrev_b32 v%d, 10, v%d" % (V_T, V_T))
    a("v_lshl_add_u32 v%d, v%d, 4, v%d" % (V_PD, V_T + 1, V_T))
    a("s_cmp_ge_u32 s%d, 512" % S_TASK)
    a("s_cbranch_scc1 L_f_packd")
    srd(a, 28, 4, 512 * 1024)
    srd(a, 32, 4, 512 * 1024)
    a("s_sub_u32 s%d, s%d, 448" % (S_T0, S_TASK))
    a("s_lshr_b32 s%d, s%d, 2" % (S_T1, S_T0))
    a("s_and_b32 s%d, s%d, 3" % (S_T0, S_T0))
    a("s_lshl_b32 s%d, s%d, 15" % (S_DST0, S_T1))
    a("s_add_u32 s%d, s%d, %d" % (S_DST0, S_DST0, WS_WO))
    a("s_branch L_f_packc")
    a.label("L_f_packd")
    srd(a, 28, 6, 1792 * 1024)
    srd(a, 32, 6, 1792 * 1024)
    a("s_sub_u32 s%d, s%d, 512" % (S_T0, S_TASK))
    a("s_mul_i32 s%d, s%d, 4682" % (S_T1, S_T0))
    a("s_lshr_b32 s%d, s%d, 16" % (S_T1, S_T1))
    a("s_mul_i32 s%d, s%d, 14" % (S_T2, S_T1))
    a("s_sub_u32 s%d, s%d, s%d" % (S_T0, S_T0, S_T2))
    a("s_mul_i32 s%d, s%d, %d" % (S_DST0, S_T1, 112 * 1024))
    a("s_add_u32 s%d, s%d, %d" % (S_DST0, S_DST0, WS_WD))
    a.label("L_f_packc")
    a("s_lshl_b32 s%d, s%d, 13" % (S_T2, S_T0))
    a("s_add_u32 s%d, s%d, s%d" % (S_DST0, S_DST0, S_T2))
    a("s_lshl_b32 s%d, s%d, 17" % (S_PE, S_T0))
    a("s_lshl_b32 s%d, s%d, 6" % (S_T2, S_T1))
    a("s_add_u32 s%d, s%d, s%d" % (S_PE, S_PE, S_T2))
    a("s_add_u32 s%d, s%d, 16384" % (S_PO, S_PE))
    a("s_mov_b32 s%d, 32768" % S_PS)
    a.label("L_f_nopack")
    a("s_mov_b32 s%d, 0x0000ffff" % S_VMASK)
    a("s_mov_b32 s%d, 0x0000ffff" % (S_VMASK + 1))
    a("v_and_b32 v%d, 27, v%d" % (V_T, V_LANE))
    a("v_cmp_eq_u32 vcc, 16, v%d" % V_T)
    a("v_mov_b32 v%d, 0x%x" % (V_T + 1, ONES_BF16))
    a("s_nop 1")
    a("v_cndmask_b32 v%d, 0, v%d, vcc" % (V_V[0], V_T + 1))
    for i in range(1, 16):
        a("v_mov_b32 v%d, v%d" % (V_V[0] + i, V_V[0]))
    a("s_mov_b32 s%d, 7" % S_SYNC)
    a("s_mov_b32 s%d, 0" % S_PASS)
    a("s_mov_b32 s%d, 1" % S_NT)
    a("s_setprio 3")
    a("s_barrier")
    if INSTR == "ka_":
        a("v_mov_b32 v250, 0")
    a.tsv("15", "ka_")
    a.ts("k2")
    a("buffer_load_dwordx4 %s, v%d, s[20:23], s39 offen sc1" % (vr(V_Q), V_L16))
    for c in range(2):
        for g in kv_dma(c):
            for l in g:
                a(l)
    a("s_waitcnt vmcnt(2)")
    pass
    a("s_barrier")
    a.ts("k2")
    pass
    a.label("L_f_maxpass")
    a("v_mov_b32 v%d, 0xff800000" % V_MAX)
    a("v_mov_b32 v%d, v%d" % (V_KA, V_L16))
    a.label("L_f_mloop")
    a("ds_read_b128 %s, v%d" % (vr(V_K[0]), V_KA))
    a("v_add_u32 v%d, 1024, v%d" % (V_KA, V_KA))
    a("s_waitcnt lgkmcnt(0)")
    a("v_mfma_f32_32x32x16_bf16 %s, %s, %s, 0" % (vr(V_S[0], 16), vr(V_K[0]), vr(V_Q)))
    a("s_nop 15")
    for i in range(8):
        a("v_max3_f32 v%d, v%d, v%d, v%d" % (V_MAX, V_S[0] + 2 * i, V_S[0] + 2 * i + 1, V_MAX))
    a("s_sub_u32 s%d, s%d, 1" % (S_NT, S_NT))
    a("s_cmp_lg_u32 s%d, 0" % S_NT)
    a("s_cbranch_scc1 L_f_mloop")
    a("v_mov_b32 v%d, v%d" % (V_KA, V_L16))
    a("v_lshrrev_b32 v%d, 5, v%d" % (V_T, V_LANE))
    a("v_lshlrev_b32 v%d, 8, v%d" % (V_T, V_T))
    a("v_and_b32 v%d, 15, v%d" % (V_T + 1, V_LANE))
    a("v_lshl_add_u32 v%d, v%d, 4, v%d" % (V_VA, V_T + 1, V_T))
    a("v_add_u32 v%d, 65536, v%d" % (V_VA, V_VA))
    a("ds_read_b128 %s, v%d" % (vr(V_K[0]), V_KA))
    a("ds_read_b128 %s, v%d offset:1024" % (vr(V_K[1]), V_KA))
    a("s_mov_b64 exec, s[%d:%d]" % (S_VMASK, S_VMASK + 1))
    a("ds_read_b128 %s, v%d" % (vr(V_V[0]), V_VA))
    a("ds_read_b128 %s, v%d offset:512" % (vr(V_V[0] + 4), V_VA))
    a("s_mov_b64 exec, -1")
    a("v_mov_b32 v%d, v%d" % (V_T, V_MAX))
    a("s_nop 1")
    a("v_permlane32_swap_b32 v%d, v%d" % (V_MAX, V_T))
    a("s_nop 1")
    a("v_max_f32 v%d, v%d, v%d" % (V_MAX, V_MAX, V_T))
    for i in range(16):
        a("v_sub_f32 v%d, 0, v%d" % (V_CM + i, V_MAX))
    a("s_waitcnt lgkmcnt(0)")
    a("s_nop 0")
    a("v_mfma_f32_32x32x16_bf16 %s, %s, %s, %s" % (vr(V_S[0], 16), vr(V_K[0]), vr(V_Q), vr(V_CM, 16)))
    for i in range(16):
        a("v_mov_b32 v%d, 0" % (V_O + i))
    for i in range(4):
        a("v_mov_b32 v%d, 0" % (V_P + 4 + i))
    a("s_mov_b32 s%d, 8" % S_ITER)
    a("s_cmp_lg_u32 s%d, 0" % S_PASS)
    a("s_cbranch_scc1 L_f_loop")

    def body(peeled):
        for t in range(8):
            cur, nxt = t % 2, (t + 1) % 2
            x1, x2 = [], []
            if peeled:
                if t < 6:
                    x1, x2 = kv_dma(t + 2)
                if t == 6:
                    a("s_waitcnt vmcnt(12)")
                    a("s_barrier")
                if t >= 6:
                    lab = "L_f_np%d" % t
                    x1 = ["s_cmp_eq_u32 s%d, 0" % S_TYPE, "s_cbranch_scc1 %s" % lab]
                    for i in range(4 * (t - 6), 4 * (t - 6) + 4):
                        x1 += ["s_add_u32 m0, s%d, %d" % (S_STG, i * 1024), "s_nop 0",
                               "buffer_load_dwordx4 v%d, s[%d:%d], s%d offen lds" % (V_PD, 28 + 4 * (i % 2), 31 + 4 * (i % 2), S_PO if i % 2 else S_PE),
                               "s_add_u32 s%d, s%d, s%d" % ((S_PO, S_PO, S_PS) if i % 2 else (S_PE, S_PE, S_PS))]
                    x1 += [lab + ":"]
            else:
                if t == 0:
                    for k, r in enumerate((5, 2, 1)):
                        x1 += ["s_cmp_lg_u32 s%d, %d" % (S_ITER, r), "s_cbranch_scc1 L_f_pp%d" % k, "s_setprio %d" % (2 - k), "L_f_pp%d:" % k]
                if t == 6:
                    a("s_cmp_eq_u32 s%d, s%d" % (S_ITER, S_SYNC))
                    a("s_cbranch_scc1 L_f_event")
                    a.label("L_f_syncret")
            S = V_S[cur]
            e = lambda i: "v_exp_f32 v%d, v%d" % (S + i, S + i)
            c = lambda i: "v_cvt_pk_bf16_f32 v%d, v%d, v%d" % (V_P + i, S + 2 * i, S + 2 * i + 1)
            pv = lambda b, h: "v_mfma_f32_32x32x16_bf16 %s, %s, %s, %s" % (vr(V_O, 16), vr(V_V[b] + 4 * h), vr(V_P + 4 * h), vr(V_O, 16))
            qk = "v_mfma_f32_32x32x16_bf16 %s, %s, %s, %s" % (vr(V_S[nxt], 16), vr(V_K[nxt]), vr(V_Q), vr(V_CM, 16))
            rdk = "ds_read_b128 %s, v%d offset:%d" % (vr(V_K[cur]), V_KA, (t + 2) * 1024)
            rdv = ["s_mov_b64 exec, s[%d:%d]" % (S_VMASK, S_VMASK + 1),
                   "ds_read_b128 %s, v%d offset:%d" % (vr(V_V[nxt]), V_VA, (t + 1) * 1024),
                   "ds_read_b128 %s, v%d offset:%d" % (vr(V_V[nxt] + 4), V_VA, (t + 1) * 1024 + 512),
                   "s_mov_b64 exec, -1"]
            seq = [e(0), e(1), pv(nxt, 1), e(2), "s_waitcnt lgkmcnt(0)", rdk, e(3)] + rdv + [c(0), e(4), e(5), c(1), e(6), e(7), qk, c(2), e(8)] + x1 + [e(9), c(3),
                   e(10), e(11), c(4), e(12), e(13), pv(cur, 0), c(5), e(14)] + x2 + [e(15), c(6)]
            if t == 7:
                seq += ["v_add_u32 v%d, 8192, v%d" % (V_KA, V_KA), "v_add_u32 v%d, 8192, v%d" % (V_VA, V_VA),
                        "s_sub_u32 s%d, s%d, 1" % (S_ITER, S_ITER), "s_cmp_lg_u32 s%d, 0" % S_ITER]
            seq += [c(7)]
            for l in seq:
                if l.endswith(":"):
                    a.label(l[:-1])
                else:
                    a(l)

    a.tsv("8", "ka_")
    body(True)
    a.raw(".p2align 6")
    a.label("L_f_loop")
    a.tsv("s%d" % S_ITER, "ka_")
    body(False)
    a("s_cbranch_scc1 L_f_loop")
    a.tsv("0", "ka_")
    a.tsv_flush(S_WAVE, "ka_")
    a("s_nop 1")
    a("v_mfma_f32_32x32x16_bf16 %s, %s, %s, %s" % (vr(V_O, 16), vr(V_V[1] + 4), vr(V_P + 4), vr(V_O, 16)))
    a("s_waitcnt lgkmcnt(0)")
    a("s_lshl_b32 s%d, s%d, 3" % (S_T0, S_QB))
    a("s_add_u32 s%d, s%d, s%d" % (S_T0, S_T0, S_WAVE))
    a("s_lshl_b32 s%d, s%d, 5" % (S_T0, S_T0))
    a("s_add_u32 s%d, s%d, s%d" % (S_T0, S_T0, S_H))
    a("s_lshl_b32 s%d, s%d, 10" % (S_T0, S_T0))
    a("s_add_u32 s%d, s%d, %d" % (S_T0, S_T0, WS_O))
    a("s_nop 7")
    a("v_mul_f32 v%d, 0, v%d" % (V_T, V_O))
    for i in range(1, 8):
        a("v_fmac_f32 v%d, 0, v%d" % (V_T, V_O + i))
    a("v_add_f32 v%d, v%d, v%d" % (V_T, V_T, V_O + 8))
    a("v_cmp_gt_f32 vcc, 0x%x, v%d" % (f32bits(2.0 ** 100), V_T))
    a("v_rcp_f32 v%d, v%d" % (V_T + 1, V_O + 8))
    a("s_cmp_lg_u32 s%d, 0" % S_PASS)
    a("s_cbranch_scc1 L_f_fin")
    a("s_cmp_eq_u64 vcc, exec")
    a("s_cbranch_scc1 L_f_fin")
    a("s_mov_b32 s%d, 1" % S_PASS)
    a("s_mov_b32 s%d, 64" % S_NT)
    a("s_branch L_f_maxpass")
    a.label("L_f_fin")
    for i in range(8):
        a("v_mul_f32 v%d, v%d, v%d" % (V_O + i, V_T + 1, V_O + i))
    for i in range(4):
        a("v_cvt_pk_bf16_f32 v%d, v%d, v%d" % (V_P + i, V_O + 2 * i, V_O + 2 * i + 1))
    if AMAP:
        hstore(a, "o", ["buffer_store_dwordx4 %s, v%d, s[20:23], s%d offen" % (vr(V_P), V_L16, S_T0)])
    else:
        a("buffer_store_dwordx4 %s, v%d, s[20:23], s%d offen sc1" % (vr(V_P), V_L16, S_T0))
    fused_tail(a, locals())
    a.label("L_f_end")
    a("s_endpgm")
    fused_events(a, locals())
    a.label("L_f_sync")
    a("s_mov_b32 s%d, 6" % S_SYNC)
    a("s_cmp_eq_u32 s%d, 0" % S_TYPE)
    a("s_cbranch_scc1 L_f_sy0")
    a("s_waitcnt vmcnt(8)")
    a("s_barrier")
    a("s_branch L_f_syncret")
    a.label("L_f_sy0")
    a("s_waitcnt vmcnt(0)")
    a("s_barrier")
    a("s_branch L_f_syncret")
    a.label("L_f_ev6")
    a("s_mov_b32 s%d, 5" % S_SYNC)
    a("s_cmp_eq_u32 s%d, 0" % S_TYPE)
    a("s_cbranch_scc1 L_f_syncret")
    a("s_waitcnt vmcnt(0)")
    a("v_bfe_u32 v%d, v%d, 2, 2" % (V_T, V_LANE))
    a("v_lshrrev_b32 v%d, 5, v%d" % (V_T + 1, V_LANE))
    a("v_lshl_add_u32 v%d, v%d, 2, v%d" % (V_T, V_T + 1, V_T))
    a("v_lshlrev_b32 v%d, 6, v%d" % (V_T, V_T))
    a("v_and_b32 v%d, 3, v%d" % (V_T + 1, V_LANE))
    a("v_lshl_add_u32 v%d, v%d, 3, v%d" % (V_T, V_T + 1, V_T))
    a("v_add_u32 v%d, s%d, v%d" % (V_T, S_STG, V_T))
    a("v_bfe_u32 v%d, v%d, 4, 1" % (V_T + 1, V_LANE))
    FB = [128 + 4 * i for i in range(8)]
    a("s_cmp_eq_u32 s%d, 2" % S_TYPE)
    a("s_cbranch_scc1 L_f_pk2")
    a("v_lshl_add_u32 v%d, v%d, 10, v%d" % (V_PK, V_T + 1, V_T))
    for ks in range(4):
        for hb in range(2):
            for rd in range(2):
                a("ds_read_b64_tr_b16 %s, v%d offset:%d" % (vr(FB[ks * 2 + hb] + 2 * rd, 2), V_PK, ks * 2048 + hb * 32 + rd * 512))
    make_sel(a, V_LANE, V_SEL, V_T + 2)
    a("v_and_b32 v%d, 31, v%d" % (V_T, V_LANE))
    a("v_lshlrev_b32 v%d, 4, v%d" % (V_T, V_T))
    a("s_waitcnt lgkmcnt(0)")
    for ks in range(4):
        for hb in range(2):
            a("v_mfma_f32_16x16x32_bf16 %s, %s, %s, %s" % (vr(V_PCS[hb]), vr(V_SEL), vr(FB[ks * 2 + hb]), "0" if ks == 0 else vr(V_PCS[hb])))
            a("buffer_store_dwordx4 %s, v%d, s[20:23], s%d offen sc1" % (vr(FB[ks * 2 + hb]), V_L16, (S_DST0, S_DST1)[hb]))
        a("s_add_u32 s%d, s%d, 7168" % (S_DST0, S_DST0))
        a("s_add_u32 s%d, s%d, 7168" % (S_DST1, S_DST1))
    a("s_nop 7")
    a("buffer_store_dword v%d, v%d, s[20:23], s%d offen sc1" % (V_PCS[0], V_T, S_CS))
    a("buffer_store_dword v%d, v%d, s[20:23], s%d offen offset:1024 sc1" % (V_PCS[1], V_T, S_CS))
    a("s_branch L_f_syncret")
    a.label("L_f_pk2")
    a("v_lshl_add_u32 v%d, v%d, 5, v%d" % (V_PK, V_T + 1, V_T))
    a("s_add_u32 s%d, s%d, 4096" % (S_DST1, S_DST0))
    for f in range(8):
        for rd in range(2):
            a("ds_read_b64_tr_b16 %s, v%d offset:%d" % (vr(FB[f] + 2 * rd, 2), V_PK, f * 1024 + rd * 512))
    a("s_waitcnt lgkmcnt(0)")
    for f in range(8):
        a("buffer_store_dwordx4 %s, v%d, s[20:23], s%d offen offset:%d sc1" % (vr(FB[f]), V_L16, S_DST0 if f < 4 else S_DST1, (f % 4) * 1024))
    a("s_branch L_f_syncret")
    return name, 256, 0, (256, 512, 163840)


def gen_k35(a, which):
    name = "k3_wo_kernel" if which == 3 else "k5_down_kernel"
    L = "L_k%d_" % which
    kernel_begin(a, name)
    NS = 8 if which == 3 else 28
    STEPS = 32 if which == 3 else 112
    WIN = 8 if which == 3 else 14
    A_BASE = WS_O if which == 3 else WS_A
    W_BASE = WS_WO if which == 3 else WS_WD
    S_WAVE, S_RB, S_CG, S_T0, S_T1 = 24, 25, 26, 27, 28
    S_A = [30, 31]
    S_W = [32, 33]
    S_TB, S_NB = 34, 35
    V_LANE, V_L16, V_T = 1, 2, 3
    V_RES = 12
    V_ACC = [32, 48, 64, 80]
    V_RD = 96
    a("s_cmp_ge_u32 s2, 256")
    a("s_cbranch_scc1 %send" % L)
    a.ts("k%d" % which)
    a("s_load_dwordx2 s[8:9], s[0:1], %d" % ARG_WS)
    a("s_load_dwordx2 s[4:5], s[0:1], %d" % (ARG_X if which == 3 else ARG_OUT))
    a("v_lshrrev_b32 v%d, 6, v0" % V_T)
    a("v_and_b32 v%d, 63, v0" % V_LANE)
    a("v_readfirstlane_b32 s%d, v%d" % (S_WAVE, V_T))
    a("v_lshlrev_b32 v%d, 4, v%d" % (V_L16, V_LANE))
    a("s_and_b32 s%d, s2, 7" % S_RB)
    a("s_lshl_b32 s%d, s%d, 2" % (S_RB, S_RB))
    a("s_lshr_b32 s%d, s2, 3" % S_T0)
    a("s_and_b32 s%d, s%d, 3" % (S_T1, S_T0))
    a("s_add_u32 s%d, s%d, s%d" % (S_RB, S_RB, S_T1))
    a("s_lshr_b32 s%d, s%d, 2" % (S_CG, S_T0))
    a("s_lshr_b32 s%d, s%d, 1" % (S_T0, S_WAVE))
    a("s_lshl_b32 s%d, s%d, 1" % (S_TB, S_RB))
    a("s_add_u32 s%d, s%d, s%d" % (S_TB, S_TB, S_T0))
    a("s_and_b32 s%d, s%d, 1" % (S_T0, S_WAVE))
    a("s_lshl_b32 s%d, s%d, 1" % (S_NB, S_CG))
    a("s_add_u32 s%d, s%d, s%d" % (S_NB, S_NB, S_T0))
    a("s_mul_i32 s%d, s%d, %d" % (S_T1, S_WAVE, NS * 1024))
    for i in range(2):
        a("s_xor_b32 s%d, s%d, %d" % (S_T0, S_TB, i))
        a("s_mul_i32 s%d, s%d, %d" % (S_A[i], S_T0, STEPS * 1024))
        a("s_add_u32 s%d, s%d, s%d" % (S_A[i], S_A[i], S_T1))
        a("s_add_u32 s%d, s%d, %d" % (S_A[i], S_A[i], A_BASE))
        a("s_xor_b32 s%d, s%d, %d" % (S_T0, S_NB, i))
        a("s_mul_i32 s%d, s%d, %d" % (S_W[i], S_T0, STEPS * 1024))
        a("s_add_u32 s%d, s%d, s%d" % (S_W[i], S_W[i], S_T1))
        a("s_add_u32 s%d, s%d, %d" % (S_W[i], S_W[i], W_BASE))
    a("s_waitcnt lgkmcnt(0)")
    srd(a, 20, 8, WS_SIZE)
    srd(a, 12, 4, 2048 * 1024)

    def frag(p, kind, i):
        return (p % WIN) * 16 + kind * 8 + i * 4

    def loads(p):
        out = []
        if p > 0 and p % 4 == 0:
            for s in S_A + S_W:
                out.append("s_add_u32 s%d, s%d, 4096" % (s, s))
        off = (p % 4) * 1024
        for i in range(2):
            out.append("buffer_load_dwordx4 %s, v%d, s[20:23], s%d offen offset:%d" % (ar(frag(p, 0, i)), V_L16, S_A[i], off))
            out.append("buffer_load_dwordx4 %s, v%d, s[20:23], s%d offen offset:%d" % (ar(frag(p, 1, i)), V_L16, S_W[i], off))
        return out

    for p in range(WIN):
        for l in loads(p):
            a(l)
    a("v_and_b32 v%d, 31, v%d" % (V_T, V_LANE))
    a("v_lshlrev_b32 v%d, 10, v%d" % (V_T, V_T))
    a("v_lshrrev_b32 v%d, 5, v%d" % (V_T + 1, V_LANE))
    a("v_lshl_add_u32 v%d, v%d, 3, v%d" % (V_T, V_T + 1, V_T))
    a("s_lshl_b32 s36, s%d, 15" % S_TB)
    a("s_lshl_b32 s%d, s%d, 6" % (S_T0, S_NB))
    a("s_add_u32 s36, s36, s%d" % S_T0)
    a("s_lshl_b32 s37, s%d, 5" % S_TB)
    a("s_lshl_b32 s%d, s%d, 1" % (S_T0, S_NB))
    a("s_add_u32 s37, s37, s%d" % S_T0)
    a("s_lshl_b32 s37, s37, 10")
    a("s_add_u32 s37, s37, %d" % WS_H)
    a.ts("k%d" % which)
    issued = WIN
    NRES = 4 if which == 3 else 2
    res_done = False
    for p in range(NS):
        younger = 4 * (issued - p - 1) + (NRES if res_done else 0)
        a("s_waitcnt vmcnt(%d)" % younger)
        for ti in range(2):
            for ni in range(2):
                acc = V_ACC[ti * 2 + ni]
                a("v_mfma_f32_32x32x16_bf16 %s, %s, %s, %s" % (vr(acc, 16), ar(frag(p, 1, ni)), ar(frag(p, 0, ti)), "0" if p == 0 else vr(acc, 16)))
        if issued < NS:
            for l in loads(issued):
                a(l)
            issued += 1
        elif not res_done:
            if which == 3:
                for q in range(4):
                    a("buffer_load_dwordx2 %s, v%d, s[12:15], s36 offen offset:%d" % (vr(V_RES + 2 * q, 2), V_T, q * 16))
            else:
                for q in range(2):
                    a("buffer_load_dwordx4 %s, v%d, s[20:23], s37 offen offset:%d" % (vr(V_RES + 4 * q), V_L16, q * 1024))
            res_done = True
    a.ts("k%d" % which)
    a("s_nop 7")
    for t in range(1, 4):
        a("s_xor_b32 s%d, s%d, %d" % (S_T0, S_WAVE, t))
        a("s_mul_i32 s%d, s%d, 12288" % (S_T0, S_T0))
        a("v_add_u32 v%d, s%d, v%d" % (V_T + 1 + t, S_T0, V_L16))
    a("s_nop 3")
    for t in range(1, 4):
        for q in range(4):
            a("ds_write_b128 v%d, %s offset:%d" % (V_T + 1 + t, vr(V_ACC[t] + 4 * q), (t - 1) * 4096 + q * 1024))
    a("s_mul_i32 s%d, s%d, 12288" % (S_T0, S_WAVE))
    a("v_add_u32 v%d, s%d, v%d" % (V_T + 1, S_T0, V_L16))
    a("s_waitcnt lgkmcnt(0)")
    a("s_barrier")
    for t in range(3):
        for q in range(4):
            a("ds_read_b128 %s, v%d offset:%d" % (vr(V_RD + 16 * t + 4 * q), V_T + 1, t * 4096 + q * 1024))
    A0 = V_ACC[0]
    U = V_ACC[1]
    a("s_mov_b32 s38, 0xffff0000")
    a("s_waitcnt vmcnt(0)")
    for d in range(8):
        a("v_lshlrev_b32 v%d, 16, v%d" % (U + 2 * d, V_RES + d))
        a("v_and_b32 v%d, s38, v%d" % (U + 2 * d + 1, V_RES + d))
    for i in range(16):
        a("v_add_f32 v%d, v%d, v%d" % (A0 + i, A0 + i, U + i))
    for t in range(3):
        a("s_waitcnt lgkmcnt(%d)" % (8 - 4 * t))
        for i in range(16):
            a("v_add_f32 v%d, v%d, v%d" % (A0 + i, A0 + i, V_RD + 16 * t + i))
    O = V_ACC[2]
    for i in range(8):
        a("v_cvt_pk_bf16_f32 v%d, v%d, v%d" % (O + i, A0 + 2 * i, A0 + 2 * i + 1))
    if which == 3:
        for q in range(2):
            a("buffer_store_dwordx4 %s, v%d, s[20:23], s37 offen offset:%d" % (vr(O + 4 * q), V_L16, q * 1024))
        for d in range(8):
            a("v_lshlrev_b32 v%d, 16, v%d" % (U + 2 * d, O + d))
            a("v_and_b32 v%d, s38, v%d" % (U + 2 * d + 1, O + d))
        S1, S2 = V_RD, V_RD + 1
        a("v_add_f32 v%d, v%d, v%d" % (S1, U, U + 1))
        a("v_mul_f32 v%d, v%d, v%d" % (S2, U, U))
        a("v_fmac_f32 v%d, v%d, v%d" % (S2, U + 1, U + 1))
        for i in range(2, 16):
            a("v_add_f32 v%d, v%d, v%d" % (S1, S1, U + i))
            a("v_fmac_f32 v%d, v%d, v%d" % (S2, U + i, U + i))
        sum_halves(a, S1, V_RD + 2)
        sum_halves(a, S2, V_RD + 3)
        a("s_lshl_b32 s%d, s%d, 4" % (S_T0, S_TB))
        a("s_add_u32 s%d, s%d, s%d" % (S_T0, S_T0, S_NB))
        a("s_lshl_b32 s%d, s%d, 8" % (S_T0, S_T0))
        a("s_add_u32 s%d, s%d, %d" % (S_T0, S_T0, WS_ST))
        a("v_and_b32 v%d, 31, v%d" % (V_T, V_LANE))
        a("v_lshlrev_b32 v%d, 3, v%d" % (V_T, V_T))
        a("buffer_store_dwordx2 %s, v%d, s[20:23], s%d offen" % (vr(S1, 2), V_T, S_T0))
    else:
        for q in range(4):
            a("buffer_store_dwordx2 %s, v%d, s[12:15], s36 offen offset:%d" % (vr(O + 2 * q, 2), V_T, q * 16))
    a.ts_flush("k%d" % which, S_WAVE, V_T)
    a.label(L + "end")
    a("s_endpgm")
    return name, 144, WIN * 16, (256, 256, 49152)


def gen_k4(a):
    name = "k4_glu_kernel"
    kernel_begin(a, name)
    SL4, NS4 = 45056, 3
    S_WAVE, S_RB, S_CG, S_KC, S_SH, S_SW, S_T0, S_T1, S_MASK, S_M0 = 24, 25, 26, 27, 28, 29, 30, 31, 32, 33
    S_TB, S_ROLE, S_M0H = 34, 42, 35
    V_LANE, V_L16, V_T = 1, 2, 3
    V_AW, V_AH = 12, 13
    V_ST = 16
    V_CSL = 32
    V_H = [60, 244]
    V_W = [64, 92]
    V_ACC = [120 + 16 * b for b in range(7)]
    V_TMP = 232
    a("s_cmp_ge_u32 s2, 256")
    a("s_cbranch_scc1 L_k4_end")
    a.ts("k4")
    a("s_load_dwordx2 s[8:9], s[0:1], %d" % ARG_WS)
    a("v_lshrrev_b32 v%d, 6, v0" % V_T)
    a("v_and_b32 v%d, 63, v0" % V_LANE)
    a("v_readfirstlane_b32 s%d, v%d" % (S_ROLE, V_T))
    a("v_lshlrev_b32 v%d, 4, v%d" % (V_L16, V_LANE))
    a("s_and_b32 s3, s2, 7")
    a("s_lshr_b32 s%d, s2, 3" % S_T0)
    a("s_lshr_b32 s%d, s3, 2" % S_RB)
    a("s_lshl_b32 s%d, s%d, 3" % (S_RB, S_RB))
    a("s_and_b32 s%d, s%d, 7" % (S_T1, S_T0))
    a("s_add_u32 s%d, s%d, s%d" % (S_RB, S_RB, S_T1))
    a("s_and_b32 s%d, s3, 3" % S_CG)
    a("s_lshl_b32 s%d, s%d, 2" % (S_CG, S_CG))
    a("s_lshr_b32 s%d, s%d, 3" % (S_T1, S_T0))
    a("s_add_u32 s%d, s%d, s%d" % (S_CG, S_CG, S_T1))
    a("s_and_b32 s%d, s%d, 3" % (S_WAVE, S_ROLE))
    a("s_lshl_b32 s%d, s%d, 2" % (S_TB, S_RB))
    a("s_add_u32 s%d, s%d, s%d" % (S_TB, S_TB, S_WAVE))
    a("s_lshl_b32 s%d, s%d, 12" % (S_M0H, S_WAVE))
    a("s_add_u32 s%d, s%d, 28672" % (S_M0H, S_M0H))
    a("s_cmp_ge_u32 s%d, 4" % S_ROLE)
    a("s_cbranch_scc1 L_k4_compute")
    if K4_ROT:
        a("s_add_u32 s%d, s%d, s%d" % (S_KC, S_RB, S_CG))
        a("s_and_b32 s%d, s%d, 7" % (S_KC, S_KC))
    else:
        a("s_mov_b32 s%d, 0" % S_KC)
    a("s_lshl_b32 s%d, s%d, 15" % (S_SH, S_TB))
    a("s_add_u32 s%d, s%d, %d" % (S_SH, S_SH, WS_H))
    a("s_mul_i32 s%d, s%d, 7168" % (S_M0, S_WAVE))
    a("s_mul_i32 s%d, s%d, %d" % (S_SW, S_CG, 32 * 7 * 1024))
    a("s_add_u32 s%d, s%d, s%d" % (S_SW, S_SW, S_M0))
    a("s_add_u32 s%d, s%d, %d" % (S_SW, S_SW, WS_GU))
    S_OH, S_OW, S_SLOT, S_CNT = 38, 39, 40, 41
    a("s_mov_b32 s%d, 0" % S_SLOT)
    a("s_mov_b32 s%d, 0" % S_CNT)
    a("s_waitcnt lgkmcnt(0)")
    srd(a, 20, 8, WS_SIZE)
    a.label("L_k4_ld")
    a("s_lshl_b32 s%d, s%d, 12" % (S_OH, S_KC))
    a("s_add_u32 s%d, s%d, s%d" % (S_OH, S_OH, S_SH))
    a("s_add_u32 m0, s%d, s%d" % (S_M0H, S_SLOT))
    a("s_mul_i32 s%d, s%d, %d" % (S_OW, S_KC, SLOT))
    for q in range(4):
        a("buffer_load_dwordx4 v%d, s[20:23], s%d offen offset:%d lds" % (V_L16, S_OH, q * 1024))
    a("s_add_u32 m0, s%d, s%d" % (S_M0, S_SLOT))
    a("s_add_u32 s%d, s%d, s%d" % (S_OW, S_OW, S_SW))
    for q in range(4):
        a("buffer_load_dwordx4 v%d, s[20:23], s%d offen offset:%d lds" % (V_L16, S_OW, q * 1024))
    a("s_add_u32 m0, m0, 4096")
    a("s_add_u32 s%d, s%d, 4096" % (S_OW, S_OW))
    for q in range(3):
        a("buffer_load_dwordx4 v%d, s[20:23], s%d offen offset:%d lds" % (V_L16, S_OW, q * 1024))
    a("s_add_u32 s%d, s%d, 1" % (S_KC, S_KC))
    a("s_and_b32 s%d, s%d, 7" % (S_KC, S_KC))
    a("s_add_u32 s%d, s%d, %d" % (S_SLOT, S_SLOT, SL4))
    a("s_cmp_eq_u32 s%d, %d" % (S_SLOT, NS4 * SL4))
    a("s_cselect_b32 s%d, 0, s%d" % (S_SLOT, S_SLOT))
    a("s_add_u32 s%d, s%d, 1" % (S_CNT, S_CNT))
    a("s_cmp_lt_u32 s%d, 2" % S_CNT)
    a("s_cbranch_scc1 L_k4_ld")
    a("s_waitcnt vmcnt(11)")
    a("s_barrier")
    a("s_cmp_lt_u32 s%d, 8" % S_CNT)
    a("s_cbranch_scc1 L_k4_ld")
    a("s_waitcnt vmcnt(0)")
    a("s_barrier")
    a("s_endpgm")
    a.label("L_k4_compute")
    a("s_mov_b32 s%d, 0xffff0000" % S_MASK)
    a("v_mov_b32 v%d, v%d" % (V_AW, V_L16))
    a("v_add_u32 v%d, s%d, v%d" % (V_AH, S_M0H, V_L16))
    a("v_and_b32 v%d, 31, v%d" % (V_T, V_LANE))
    a("v_lshlrev_b32 v%d, 3, v%d" % (V_T, V_T))
    a("v_lshrrev_b32 v%d, 5, v%d" % (V_T + 1, V_LANE))
    a("v_lshl_add_u32 v%d, v%d, 11, v%d" % (V_T, V_T + 1, V_T))
    a("s_waitcnt lgkmcnt(0)")
    srd(a, 20, 8, WS_SIZE)
    cur_base = [0]

    def reads(P):
        st, pos = P // 4, P % 4
        base = (st % NS4) * SL4
        out = []
        if base != cur_base[0]:
            d = base - cur_base[0]
            for r in (V_AW, V_AH):
                out.append("v_add_u32 v%d, %d, v%d" % (r, d, r) if d > 0 else "v_subrev_u32 v%d, %d, v%d" % (r, -d, r))
            cur_base[0] = base
        b = P % 2
        out.append("ds_read_b128 %s, v%d offset:%d" % (vr(V_H[b]), V_AH, pos * 1024))
        for blk in range(7):
            out.append("ds_read_b128 %s, v%d offset:%d" % (vr(V_W[b] + 4 * blk), V_AW, (pos * 7 + blk) * 1024))
        return out

    extra = {}
    g = ["s_lshl_b32 s%d, s%d, 12" % (S_T0, S_TB), "s_add_u32 s%d, s%d, %d" % (S_T0, S_T0, WS_ST)]
    for i in range(8):
        g.append("buffer_load_dwordx2 %s, v%d, s[20:23], s%d offen offset:%d" % (vr(V_ST + 2 * i, 2), V_T, S_T0, i * 256))
    extra[8], extra[9], extra[10] = g[:4], g[4:7], g[7:]
    g = ["s_mul_i32 s%d, s%d, 7168" % (S_T0, S_CG), "s_add_u32 s%d, s%d, %d" % (S_T0, S_T0, WS_CS), "s_add_u32 s%d, s%d, 4096" % (S_T1, S_T0)]
    for blk in range(7):
        g.append("buffer_load_dwordx4 %s, v%d, s[20:23], s%d offen offset:%d" % (vr(V_CSL + 4 * blk), V_L16, S_T0 if blk < 4 else S_T1, (blk % 4) * 1024))
    extra[12], extra[13], extra[14] = g[:5], g[5:8], g[8:]
    a.ts("k4")
    a("s_barrier")
    a.ts("k4")
    for l in reads(0):
        a(l)
    for P in range(32):
        st, pos = P // 4, P % 4
        b = P % 2
        a("s_waitcnt lgkmcnt(0)")
        if pos == 3 and P < 31:
            a("s_barrier")
        rd = reads(P + 1) if P < 31 else []
        m = []
        for blk in range(7):
            m.append("v_mfma_f32_32x32x16_bf16 %s, %s, %s, %s" % (vr(V_ACC[blk], 16), vr(V_W[b] + 4 * blk), vr(V_H[b]), "0" if P == 0 else vr(V_ACC[blk], 16)))
        for l in interleave(m, rd + extra.get(P, []), per=2):
            a(l)
    a.ts("k4")
    a("s_waitcnt vmcnt(0)")
    S1, S2 = V_T + 2, V_T + 3
    a("v_add_f32 v%d, v%d, v%d" % (S1, V_ST, V_ST + 2))
    a("v_add_f32 v%d, v%d, v%d" % (S2, V_ST + 1, V_ST + 3))
    for i in range(2, 8):
        a("v_add_f32 v%d, v%d, v%d" % (S1, S1, V_ST + 2 * i))
        a("v_add_f32 v%d, v%d, v%d" % (S2, S2, V_ST + 2 * i + 1))
    sum_halves(a, S1, V_T + 4)
    sum_halves(a, S2, V_T + 4)
    V_MU, V_VAR, V_RS, V_C1, V_C2 = V_T + 4, V_T + 5, V_T + 6, V_T + 7, V_T + 8
    a("v_mul_f32 v%d, 0x%x, v%d" % (V_MU, f32bits(1.0 / 512), S1))
    a("v_mul_f32 v%d, 0x%x, v%d" % (V_VAR, f32bits(1.0 / 512), S2))
    a("v_fma_f32 v%d, -v%d, v%d, v%d" % (V_VAR, V_MU, V_MU, V_VAR))
    a("v_max_f32 v%d, 0, v%d" % (V_VAR, V_VAR))
    a("v_add_f32 v%d, 0x%x, v%d" % (V_VAR, f32bits(1e-5), V_VAR))
    a("v_rsq_f32 v%d, v%d" % (V_RS, V_VAR))
    a("v_sub_f32 v%d, 0, v%d" % (V_MU, V_MU))
    VB = V_ST
    split_hi_lo_B(a, V_MU, VB, V_T, S_MASK)
    c1 = -2.0 * math.sqrt(2.0 / math.pi) * math.log2(math.e)
    a("v_mul_f32 v%d, 0x%x, v%d" % (V_C1, f32bits(c1), V_RS))
    a("v_mul_f32 v%d, v%d, v%d" % (V_C2, V_RS, V_RS))
    a("v_mul_f32 v%d, v%d, v%d" % (V_C2, V_C2, V_C1))
    a("v_mul_f32 v%d, 0x%x, v%d" % (V_C2, f32bits(0.044715), V_C2))
    for blk in range(7):
        c = V_CSL + 4 * blk
        a("v_add_f32 v%d, v%d, v%d" % (c, c, c + 1))
        a("v_add_f32 v%d, v%d, v%d" % (c + 2, c + 2, c + 3))
        a("v_add_f32 v%d, v%d, v%d" % (c, c, c + 2))
        split_hi_lo_A(a, c, V_W[0] + 4 * blk, V_T, S_MASK)
    a("s_nop 1")
    for blk in range(7):
        a("v_mfma_f32_32x32x16_bf16 %s, %s, %s, %s" % (vr(V_ACC[blk], 16), vr(V_W[0] + 4 * blk), vr(VB), vr(V_ACC[blk], 16)))
    a("s_mul_i32 s%d, s%d, 112" % (S_T0, S_TB))
    a("s_mul_i32 s%d, s%d, 7" % (S_T1, S_CG))
    a("s_add_u32 s%d, s%d, s%d" % (S_T0, S_T0, S_T1))
    a("s_lshl_b32 s%d, s%d, 10" % (S_T0, S_T0))
    a("s_add_u32 s%d, s%d, %d" % (S_T0, S_T0, WS_A))
    a("s_add_u32 s%d, s%d, 4096" % (S_T1, S_T0))
    a("s_nop 7")
    for blk in range(7):
        G = V_ACC[blk]
        Uu = G + 8
        T = V_TMP
        for i in range(8):
            a("v_mul_f32 v%d, v%d, v%d" % (T + i, G + i, G + i))
        for i in range(8):
            a("v_fma_f32 v%d, v%d, v%d, v%d" % (T + i, T + i, V_C2, V_C1))
        for i in range(8):
            a("v_mul_f32 v%d, v%d, v%d" % (T + i, T + i, G + i))
        for i in range(8):
            a("v_exp_f32 v%d, v%d" % (T + i, T + i))
        for i in range(8):
            a("v_mul_f32 v%d, v%d, v%d" % (G + i, G + i, Uu + i))
        for i in range(8):
            a("v_fma_f32 v%d, v%d, v%d, v%d" % (T + i, T + i, V_VAR, V_VAR))
        for i in range(8):
            a("v_rcp_f32 v%d, v%d" % (T + i, T + i))
        a("s_nop 0")
        for i in range(8):
            a("v_mul_f32 v%d, v%d, v%d" % (G + i, G + i, T + i))
        o = V_TMP + 8 + 4 * (blk % 4)
        for i in range(4):
            a("v_cvt_pk_bf16_f32 v%d, v%d, v%d" % (o + i, G + 2 * i, G + 2 * i + 1))
        a("buffer_store_dwordx4 %s, v%d, s[20:23], s%d offen offset:%d" % (vr(o), V_L16, S_T0 if blk < 4 else S_T1, (blk % 4) * 1024))
    a.ts_flush("k4", S_WAVE, V_T)
    a.label("L_k4_end")
    a("s_endpgm")
    return name, 256, 0, (256, 512, NS4 * SL4)


def main():
    hdr = open("cdna_kernels/%s.s.ref" % NAME).read().split("\n")
    head = [l for l in hdr if l.startswith(";") and "@launch" not in l and "Override launch" not in l and "grid=ceil" not in l]
    a = Asm()
    ks = []
    ks.append(gen_f(a))
    out = "\n".join(head) + "\n"
    for name, nv, na, (g, b, lds) in ks:
        out += "; @launch grid=(%d,1,1) block=(%d,1,1) lds=%d\n" % (g, b, lds)
    out += '.amdgcn_target "amdgcn-amd-amdhsa--gfx950"\n.text\n'
    out += a.text()
    out += '.section .rodata,"a"\n'
    for name, nv, na, _ in ks:
        out += kernel_desc(name, nv, na)
    path = sys.argv[1] if len(sys.argv) > 1 else "cdna_kernels/%s.s" % NAME
    open(path, "w").write(out)


if __name__ == "__main__":
    main()
```

```python
import sys, math, struct

NAME = "sequential_preLN__softmax_full_mha__geglu_ffn__prompt"

MB = 1 << 20
WS_Q = 0
WS_K = 2 * MB
WS_V = 4 * MB
WS_O = 6 * MB
WS_H = 8 * MB
WS_A = 10 * MB
WS_WO = 17 * MB
WS_WD = 18 * MB
WS_GU = 20 * MB
WS_CS = 24 * MB
WS_ST = 25 * MB
WS_FL = 27 * MB + 768 * 1024
WS_SIZE = 28 * MB

ARG_X, ARG_WQKV, ARG_WO, ARG_BX, ARG_WG, ARG_WU, ARG_WD, ARG_OUT, ARG_DBG, ARG_WS = [8 * i for i in range(10)]

ONES_BF16 = 0x3F803F80


def f32bits(x):
    return struct.unpack("<I", struct.pack("<f", x))[0]


import os
INSTR = os.environ.get("INSTR", "")
WS_TS = 26 * MB


class Asm:
    def __init__(self):
        self.L = []
        self.nts = 0

    def ts(self, kern):
        if INSTR != kern and not (INSTR == "all" and len(kern) == 2):
            return
        if self.nts == 0:
            self("s_memrealtime s[92:93]")
        self("%s s[%d:%d]" % ("s_memrealtime" if os.environ.get("RT") else "s_memtime", 64 + 2 * self.nts, 65 + 2 * self.nts))
        self.nts += 1

    def tsv(self, lane, key="kv_"):
        if INSTR != key:
            return
        self("%s s[64:65]" % ("s_memtime" if os.environ.get("CYC") else "s_memrealtime"))
        self("s_waitcnt lgkmcnt(0)")
        self("v_cmp_eq_u32 vcc, %s, v1" % lane)
        self("v_mov_b32 v251, s64")
        self("s_nop 1")
        self("v_cndmask_b32 v250, v250, v251, vcc")

    def tsv_flush(self, swave, key="kv_"):
        if INSTR != key:
            return
        self("s_lshl_b32 s3, s2, 3")
        self("s_add_u32 s3, s3, s%d" % swave)
        self("s_lshl_b32 s3, s3, 8")
        self("s_add_u32 s3, s3, %d" % WS_TS)
        self("buffer_store_dword v250, v229, s[20:23], s3 offen")

    def ts_flush(self, kern, swave, vtmp):
        if INSTR != kern and not (INSTR == "all" and len(kern) == 2):
            return
        self("%s s[%d:%d]" % ("s_memrealtime" if os.environ.get("RT") else "s_memtime", 64 + 2 * self.nts, 65 + 2 * self.nts))
        self.nts += 1
        self("s_memrealtime s[94:95]")
        self("s_waitcnt lgkmcnt(0)")
        if os.environ.get("AMP"):
            ia, ib, kk = [int(x) for x in os.environ["AMP"].split(",")]
            self("s_cmp_lg_u32 s%d, 7" % swave)
            self("s_cbranch_scc1 L_amp_done")
            self("s_sub_u32 s3, s%d, s%d" % (64 + 2 * ib, 64 + 2 * ia))
            self("s_mul_i32 s3, s3, %d" % kk)
            self("s_min_u32 s3, s3, 100000")
            self.label("L_amp_spin")
            self("s_memrealtime s[36:37]")
            self("s_waitcnt lgkmcnt(0)")
            self("s_sub_u32 s36, s36, s94")
            self("s_cmp_lt_u32 s36, s3")
            self("s_cbranch_scc1 L_amp_spin")
            self.label("L_amp_done")
        if os.environ.get("DBGOUT"):
            self("s_cmp_lg_u32 s2, %s" % os.environ["DBGOUT"])
            self("s_cbranch_scc1 L_dbg_skip")
            self("s_cmp_lg_u32 s%d, 7" % swave)
            self("s_cbranch_scc1 L_dbg_skip")
            self("v_mov_b32 v%d, 0" % vtmp)
            for i in range(1, self.nts):
                self("s_sub_u32 s3, s%d, s64" % (64 + 2 * i))
                self("s_and_b32 s36, s3, 0x7f")
                self("s_lshr_b32 s3, s3, 7")
                self("s_and_b32 s3, s3, 0x7f")
                self("s_lshl_b32 s3, s3, 8")
                self("s_or_b32 s3, s3, s36")
                self("s_or_b32 s3, s3, 0x80808080")
                self("v_mov_b32 v%d, s3" % (vtmp + 1))
                self("buffer_store_dword v%d, v%d, s[96:99], 0 offen offset:%d" % (vtmp + 1, vtmp, 4 * i))
                self("s_nop 1")
            self.label("L_dbg_skip")
        self("s_lshl_b32 s3, s2, 3")
        self("s_add_u32 s3, s3, s%d" % swave)
        self("s_lshl_b32 s3, s3, 6")
        self("s_add_u32 s3, s3, %d" % (WS_TS + (int(kern[1]) * 131072 if INSTR == "all" else 0)))
        self("v_mov_b32 v%d, 0" % vtmp)
        for i in range(self.nts):
            self("v_mov_b32 v%d, s%d" % (vtmp + 1, 64 + 2 * i))
            self("buffer_store_dword v%d, v%d, s[20:23], s3 offen offset:%d" % (vtmp + 1, vtmp, 4 * i))
            self("s_nop 1")
        for i, r in enumerate((92, 94)):
            self("v_mov_b32 v%d, s%d" % (vtmp + 1, r))
            self("buffer_store_dword v%d, v%d, s[20:23], s3 offen offset:%d" % (vtmp + 1, vtmp, 56 + 4 * i))
            self("s_nop 1")
        self.nts = 0

    def __call__(self, s):
        for line in s.strip("\n").split("\n"):
            self.L.append("    " + line.strip())

    def label(self, s):
        self.L.append(s + ":")

    def raw(self, s):
        self.L.append(s)

    def text(self):
        return "\n".join(self.L) + "\n"


def vr(b, n=4):
    return "v[%d:%d]" % (b, b + n - 1)


def ar(b, n=4):
    return "a[%d:%d]" % (b, b + n - 1)


def srd(a, sbase, sptr, nbytes):
    a("s_mov_b32 s%d, s%d" % (sbase, sptr))
    a("s_mov_b32 s%d, s%d" % (sbase + 1, sptr + 1))
    a("s_mov_b32 s%d, 0x%x" % (sbase + 2, nbytes))
    a("s_mov_b32 s%d, 0x00020000" % (sbase + 3))


def kernel_begin(a, name):
    a.raw(".globl %s" % name)
    a.raw(".p2align 8")
    a.raw(".type %s,@function" % name)
    a.label(name)


def kernel_desc(name, nvgpr, nagpr, nsgpr=102):
    acc = (nvgpr + 3) // 4 * 4
    nfv = acc + nagpr if nagpr else nvgpr
    return """.p2align 6
.amdhsa_kernel %s
  .amdhsa_next_free_vgpr %d
  .amdhsa_next_free_sgpr %d
  .amdhsa_accum_offset %d
  .amdhsa_group_segment_fixed_size 0
  .amdhsa_kernarg_size 80
  .amdhsa_user_sgpr_count 2
  .amdhsa_user_sgpr_kernarg_segment_ptr 1
  .amdhsa_system_sgpr_workgroup_id_x 1
.end_amdhsa_kernel
""" % (name, nfv, nsgpr, acc)


def interleave(main, fill, per=None):
    out = []
    n = len(main)
    fi = 0
    for i, m in enumerate(main):
        out.append(m)
        tgt = (len(fill) * (i + 1) + n - 1) // n if per is None else min(len(fill), per * (i + 1))
        while fi < tgt:
            out.append(fill[fi])
            fi += 1
    out += fill[fi:]
    return out


class Lds:
    def __init__(self, a):
        self.a = a
        self.n = 0
        self.done = 0
        self.idx = {}

    def op(self, text, tag=None):
        self.a(text)
        self.n += 1
        if tag is not None:
            self.idx[tag] = self.n

    def need(self, *tags):
        k = max(self.idx[t] for t in tags)
        if k > self.done:
            w = self.n - k
            assert w <= 15
            self.a("s_waitcnt lgkmcnt(%d)" % w)
            self.done = k

    def drain(self):
        if self.done < self.n:
            self.a("s_waitcnt lgkmcnt(0)")
            self.done = self.n


def make_sel(a, vlane, vsel, vt):
    a("v_lshrrev_b32 v%d, 2, v%d" % (vt, vlane))
    a("v_lshrrev_b32 v%d, 4, v%d" % (vsel, vlane))
    a("v_xor_b32 v%d, v%d, v%d" % (vt, vt, vsel))
    a("v_and_b32 v%d, 1, v%d" % (vt, vt))
    a("v_add_u32 v%d, -1, v%d" % (vt, vt))
    a("v_and_b32 v%d, 0x%x, v%d" % (vsel, ONES_BF16, vt))
    for i in range(1, 4):
        a("v_mov_b32 v%d, v%d" % (vsel + i, vsel))


def split_hi_lo_A(a, vc, vdst, vt, smask):
    a("v_cvt_pk_bf16_f32 v%d, v%d, v%d" % (vt, vc, vc))
    a("v_and_b32 v%d, s%d, v%d" % (vt, smask, vt))
    a("v_sub_f32 v%d, v%d, v%d" % (vt, vc, vt))
    a("v_cvt_pk_bf16_f32 v%d, v%d, v%d" % (vdst, vc, vt))
    a("v_mov_b32 v%d, v%d" % (vdst + 1, vdst))
    a("v_mov_b32 v%d, 0" % (vdst + 2))
    a("v_mov_b32 v%d, 0" % (vdst + 3))


def split_hi_lo_B(a, vm, vdst, vt, smask):
    a("v_cvt_pk_bf16_f32 v%d, v%d, v%d" % (vdst, vm, vm))
    a("v_and_b32 v%d, s%d, v%d" % (vt, smask, vdst))
    a("v_sub_f32 v%d, v%d, v%d" % (vt, vm, vt))
    a("v_cvt_pk_bf16_f32 v%d, v%d, v%d" % (vdst + 1, vt, vt))
    a("v_mov_b32 v%d, 0" % (vdst + 2))
    a("v_mov_b32 v%d, 0" % (vdst + 3))


def sum_halves(a, v, vt):
    a("v_mov_b32 v%d, v%d" % (vt, v))
    a("s_nop 1")
    a("v_permlane32_swap_b32 v%d, v%d" % (v, vt))
    a("s_nop 1")
    a("v_add_f32 v%d, v%d, v%d" % (v, v, vt))


SLOT = 28672
NSLOT = 5
K1_DIST = int(os.environ.get('K1_DIST', 2))
DIAG = os.environ.get('DIAG', '')
K1_ROT = int(os.environ.get('K1_ROT', 1))
K4_ROT = int(os.environ.get('K4_ROT', 0))
K2_ROT = int(os.environ.get('K2_ROT', 0))
K4_DIST = int(os.environ.get('K4_DIST', 2))


def slot_base_adjust(stage):
    slot = stage % NSLOT
    return (slot // 2) * 2 * SLOT, (slot % 2) * SLOT


def gen_k1(a):
    name = "k1_qkv_kernel"
    kernel_begin(a, name)
    NS1 = 4
    LDS_SCR = NS1 * SLOT
    SCR_RS, SCR_BF = LDS_SCR + 1536, LDS_SCR + 2048
    S_WAVE, S_RB, S_CG, S_KC, S_SX, S_SW, S_T0, S_T1, S_MASK, S_M0X, S_M0W = 24, 25, 26, 27, 28, 29, 30, 31, 32, 33, 34
    S_ROLE = 42
    V_LANE = 1
    V_T = 2
    V_DX = 8
    V_DW = 12
    V_AX = 13
    V_AW = 17
    V_SEL = 24
    V_SQ = 28
    V_X = [32, 36]
    V_W = [[40, 44, 48], [52, 56, 60]]
    V_ACC = [64, 80, 96]
    V_TMP = 112
    a("s_cmp_ge_u32 s2, 256")
    a("s_cbranch_scc1 L_k1_end")
    a.ts("k1")
    a("s_load_dwordx4 s[4:7], s[0:1], %d" % ARG_X)
    a("s_load_dwordx2 s[8:9], s[0:1], %d" % ARG_WS)
    a("v_lshrrev_b32 v%d, 6, v0" % V_T)
    a("v_and_b32 v%d, 63, v0" % V_LANE)
    a("v_readfirstlane_b32 s%d, v%d" % (S_ROLE, V_T))
    a("s_and_b32 s3, s2, 7")
    a("s_lshr_b32 s%d, s2, 3" % S_T0)
    a("s_lshr_b32 s%d, s3, 1" % S_RB)
    a("s_lshl_b32 s%d, s%d, 2" % (S_RB, S_RB))
    a("s_and_b32 s%d, s%d, 3" % (S_T1, S_T0))
    a("s_add_u32 s%d, s%d, s%d" % (S_RB, S_RB, S_T1))
    a("s_and_b32 s%d, s3, 1" % S_CG)
    a("s_lshl_b32 s%d, s%d, 3" % (S_CG, S_CG))
    a("s_lshr_b32 s%d, s%d, 2" % (S_T1, S_T0))
    a("s_add_u32 s%d, s%d, s%d" % (S_CG, S_CG, S_T1))
    a("s_and_b32 s%d, s%d, 3" % (S_WAVE, S_ROLE))
    a("s_lshl_b32 s%d, s%d, 12" % (S_M0X, S_WAVE))
    a("s_mul_i32 s%d, s%d, 3072" % (S_M0W, S_WAVE))
    a("s_add_u32 s%d, s%d, 16384" % (S_M0W, S_M0W))
    a("s_mov_b32 s%d, 0xffff0000" % S_MASK)

    def lds_addr_setup(rotate):
        a("v_and_b32 v%d, 31, v%d" % (V_T, V_LANE))
        a("v_and_b32 v%d, 3, v%d" % (V_T + 1, V_LANE))
        a("v_lshrrev_b32 v%d, 2, v%d" % (V_T + 2, V_T))
        a("v_lshlrev_b32 v%d, 7, v%d" % (V_T + 2, V_T + 2))
        a("v_lshl_add_u32 v%d, v%d, 10, v%d" % (V_T + 2, V_T + 1, V_T + 2))
        a("v_add_u32 v%d, s%d, v%d" % (V_T + 2, S_M0X, V_T + 2))
        a("v_lshrrev_b32 v%d, 1, v%d" % (V_T + 3, V_T))
        a("v_and_b32 v%d, 4, v%d" % (V_T + 3, V_T + 3))
        a("v_or_b32 v%d, v%d, v%d" % (V_T + 3, V_T + 3, V_T + 1))
        a("v_lshrrev_b32 v%d, 5, v%d" % (V_T + 4, V_LANE))
        a("v_xor_b32 v%d, v%d, v%d" % (V_T + 3, V_T + 3, V_T + 4))
        a("v_bfe_u32 v%d, v%d, 2, 2" % (V_T + 5, V_LANE))
        a("v_lshl_add_u32 v%d, v%d, 3, v%d" % (V_T + 5, V_T + 4, V_T + 5))
        a("v_lshlrev_b32 v%d, 6, v%d" % (V_T + 5, V_T + 5))
        a("v_bfe_u32 v%d, v%d, 4, 1" % (V_T + 4, V_LANE))
        a("v_lshl_add_u32 v%d, v%d, 5, v%d" % (V_T + 5, V_T + 4, V_T + 5))
        a("v_lshl_add_u32 v%d, v%d, 3, v%d" % (V_T + 5, V_T + 1, V_T + 5))
        for ks in range(4):
            a("v_xor_b32 v%d, %d, v%d" % (V_T + 4, 2 * ks, V_T + 3))
            a("v_lshl_add_u32 v%d, v%d, 4, v%d" % (V_AX + ks, V_T + 4, V_T + 2))

    a("s_cmp_ge_u32 s%d, 8" % S_ROLE)
    a("s_cbranch_scc1 L_k1_stats")
    a("s_cmp_ge_u32 s%d, 4" % S_ROLE)
    a("s_cbranch_scc1 L_k1_compute")
    if K1_ROT:
        a("s_add_u32 s%d, s%d, s%d" % (S_KC, S_RB, S_CG))
        a("s_and_b32 s%d, s%d, 7" % (S_KC, S_KC))
    else:
        a("s_mov_b32 s%d, 0" % S_KC)
    a("v_lshrrev_b32 v%d, 3, v%d" % (V_T, V_LANE))
    a("v_lshlrev_b32 v%d, 12, v%d" % (V_T, V_T))
    a("v_and_b32 v%d, 7, v%d" % (V_T + 1, V_LANE))
    a("v_lshrrev_b32 v%d, 2, v%d" % (V_T + 2, V_LANE))
    a("v_and_b32 v%d, 4, v%d" % (V_T + 2, V_T + 2))
    a("v_xor_b32 v%d, v%d, v%d" % (V_T + 1, V_T + 1, V_T + 2))
    for q in range(4):
        a("v_xor_b32 v%d, %d, v%d" % (V_T + 3, q, V_T + 1))
        a("v_lshl_add_u32 v%d, v%d, 4, v%d" % (V_DX + q, V_T + 3, V_T))
    a("v_lshrrev_b32 v%d, 2, v%d" % (V_T, V_LANE))
    a("v_mul_u32_u24 v%d, 3072, v%d" % (V_T, V_T))
    a("v_and_b32 v%d, 3, v%d" % (V_T + 1, V_LANE))
    a("v_lshl_add_u32 v%d, v%d, 4, v%d" % (V_DW, V_T + 1, V_T))
    a("s_lshl_b32 s%d, s%d, 2" % (S_T0, S_RB))
    a("s_add_u32 s%d, s%d, s%d" % (S_T0, S_T0, S_WAVE))
    a("s_lshl_b32 s%d, s%d, 15" % (S_SX, S_T0))
    a("s_mul_i32 s%d, s%d, %d" % (S_SW, S_WAVE, 16 * 3072))
    a("s_lshl_b32 s%d, s%d, 6" % (S_T1, S_CG))
    a("s_add_u32 s%d, s%d, s%d" % (S_SW, S_SW, S_T1))
    S_OX, S_OW, S_SLOT, S_CNT, S_RD = 38, 39, 40, 41, 43
    a("s_mov_b32 s%d, 0" % S_SLOT)
    a("s_mov_b32 s%d, 0" % S_CNT)
    a("s_waitcnt lgkmcnt(0)")
    srd(a, 12, 4, 2048 * 1024)
    srd(a, 16, 6, 512 * 3072)

    def issue():
        a("s_lshl_b32 s%d, s%d, 7" % (S_OX, S_KC))
        a("s_add_u32 s%d, s%d, s%d" % (S_OX, S_OX, S_SX))
        a("s_add_u32 m0, s%d, s%d" % (S_M0X, S_SLOT))
        a("s_mul_i32 s%d, s%d, %d" % (S_OW, S_KC, 64 * 3072))
        for q in range(4):
            a("buffer_load_dwordx4 v%d, s[12:15], s%d offen offset:%d lds" % (V_DX + q, S_OX, q * 1024))
        a("s_add_u32 m0, s%d, s%d" % (S_M0W, S_SLOT))
        a("s_add_u32 s%d, s%d, s%d" % (S_OW, S_OW, S_SW))
        for sx in range(3):
            a("buffer_load_dwordx4 v%d, s[16:19], s%d offen offset:%d lds" % (V_DW, S_OW, sx * 1024))
        a("s_add_u32 s%d, s%d, 1" % (S_KC, S_KC))
        a("s_and_b32 s%d, s%d, 7" % (S_KC, S_KC))
        a("s_add_u32 s%d, s%d, %d" % (S_SLOT, S_SLOT, SLOT))
        a("s_cmp_eq_u32 s%d, %d" % (S_SLOT, NS1 * SLOT))
        a("s_cselect_b32 s%d, 0, s%d" % (S_SLOT, S_SLOT))

    a.label("L_k1_ld")
    issue()
    a("s_add_u32 s%d, s%d, 1" % (S_CNT, S_CNT))
    a("s_cmp_lt_u32 s%d, %d" % (S_CNT, K1_DIST))
    a("s_cbranch_scc1 L_k1_ld")
    a("s_waitcnt vmcnt(%d)" % (7 * (K1_DIST - 1)))
    a("s_barrier")
    a("s_cmp_lt_u32 s%d, 8" % S_CNT)
    a("s_cbranch_scc1 L_k1_ld")
    for r in range(K1_DIST - 2, -1, -1):
        a("s_waitcnt vmcnt(%d)" % (7 * r))
        a("s_barrier")
    a("s_endpgm")
    a.label("L_k1_stats")
    LX = [64, 68, 72, 76]
    LW = [80, 84, 88]
    L_SX = 92
    L_CS = [96, 100, 104]
    lds_addr_setup(False)
    a("v_add_u32 v%d, s%d, v%d" % (V_AW, S_M0W, V_T + 5))
    make_sel(a, V_LANE, V_SEL, V_T)
    for r in [V_SQ, V_SQ + 1] + list(range(L_SX, L_SX + 16)):
        a("v_mov_b32 v%d, 0" % r)
    a("s_mov_b32 s44, %d" % SLOT)
    a("s_mov_b32 s%d, 0" % S_CNT)
    a.label("L_k1_st")
    a("s_barrier")
    for ks in range(4):
        a("ds_read_b128 %s, v%d" % (vr(LX[ks]), V_AX + ks))
    for sx in range(3):
        for rd in range(2):
            a("ds_read_b64_tr_b16 %s, v%d offset:%d" % (vr(LW[sx] + 2 * rd, 2), V_AW, sx * 1024 + rd * 256))
    a("s_add_u32 s%d, s%d, 1" % (S_CNT, S_CNT))
    a("s_and_b32 s%d, s%d, %d" % (S_T0, S_CNT, NS1 - 1))
    a("s_cmp_eq_u32 s%d, 0" % S_T0)
    a("s_cselect_b32 s%d, %d, s44" % (S_RD, -(NS1 - 1) * SLOT))
    for ks in range(4):
        a("s_waitcnt lgkmcnt(%d)" % (9 - ks))
        a("v_mfma_f32_16x16x32_bf16 %s, %s, %s, %s" % (vr(L_SX), vr(V_SEL), vr(LX[ks]), vr(L_SX)))
        for d in range(4):
            t0, t1 = V_TMP + 2 * (d % 2), V_TMP + 2 * (d % 2) + 1
            a("v_lshlrev_b32 v%d, 16, v%d" % (t0, LX[ks] + d))
            a("v_and_b32 v%d, s%d, v%d" % (t1, S_MASK, LX[ks] + d))
            a("v_fmac_f32 v%d, v%d, v%d" % (V_SQ, t0, t0))
            a("v_fmac_f32 v%d, v%d, v%d" % (V_SQ + 1, t1, t1))
        if ks == 1:
            a("s_waitcnt lgkmcnt(0)")
            for sx in range(3):
                a("v_mfma_f32_16x16x32_bf16 %s, %s, %s, %s" % (vr(L_CS[sx]), vr(V_SEL), vr(LW[sx]), vr(L_CS[sx])))
    for r in list(range(V_AX, V_AX + 4)) + [V_AW]:
        a("v_add_u32 v%d, s%d, v%d" % (r, S_RD, r))
    a("s_cmp_lt_u32 s%d, 8" % S_CNT)
    a("s_cbranch_scc1 L_k1_st")
    a("v_and_b32 v%d, 31, v%d" % (V_T, V_LANE))
    a("v_lshlrev_b32 v%d, 2, v%d" % (V_T, V_T))
    a("s_mul_i32 s%d, s%d, 384" % (S_T0, S_WAVE))
    a("s_add_u32 s%d, s%d, %d" % (S_T0, S_T0, LDS_SCR))
    a("v_add_u32 v%d, s%d, v%d" % (V_T + 1, S_T0, V_T))
    for sx in range(3):
        a("ds_write_b32 v%d, v%d offset:%d" % (V_T + 1, L_CS[sx], sx * 128))
    a("v_add_f32 v%d, v%d, v%d" % (V_SQ, V_SQ, V_SQ + 1))
    sum_halves(a, V_SQ, V_SQ + 1)
    V_MU, V_RS = V_SQ + 2, V_SQ + 3
    a("v_mul_f32 v%d, 0x%x, v%d" % (V_MU, f32bits(1.0 / 512), L_SX))
    a("v_mul_f32 v%d, 0x%x, v%d" % (V_SQ, f32bits(1.0 / 512), V_SQ))
    a("v_fma_f32 v%d, -v%d, v%d, v%d" % (V_SQ, V_MU, V_MU, V_SQ))
    a("v_max_f32 v%d, 0, v%d" % (V_SQ, V_SQ))
    a("v_add_f32 v%d, 0x%x, v%d" % (V_SQ, f32bits(1e-5), V_SQ))
    a("v_rsq_f32 v%d, v%d" % (V_RS, V_SQ))
    a("v_sub_f32 v%d, 0, v%d" % (V_MU, V_MU))
    a("s_lshl_b32 s%d, s%d, 7" % (S_T0, S_WAVE))
    a("s_add_u32 s%d, s%d, %d" % (S_T0, S_T0, SCR_RS))
    a("v_add_u32 v%d, s%d, v%d" % (V_T + 2, S_T0, V_T))
    a("ds_write_b32 v%d, v%d" % (V_T + 2, V_RS))
    split_hi_lo_B(a, V_MU, LX[0], V_T + 4, S_MASK)
    a("s_lshl_b32 s%d, s%d, 9" % (S_T0, S_WAVE))
    a("s_add_u32 s%d, s%d, %d" % (S_T0, S_T0, SCR_BF))
    a("v_lshl_add_u32 v%d, v%d, 3, s%d" % (V_T + 3, V_LANE, S_T0))
    a("ds_write_b64 v%d, %s" % (V_T + 3, vr(LX[0], 2)))
    a("s_waitcnt lgkmcnt(0)")
    a("s_barrier")
    a("s_endpgm")
    a.label("L_k1_compute")
    lds_addr_setup(False)
    a("v_add_u32 v%d, 16384, v%d" % (V_AW, V_T + 5))
    V_ECS, V_ERS, V_ERV, V_EBF, V_OQ, V_OV = 18, 19, 20, 21, 22, 23
    a("v_and_b32 v%d, 31, v%d" % (V_T, V_LANE))
    a("v_lshlrev_b32 v%d, 2, v%d" % (V_T, V_T))
    a("v_lshrrev_b32 v%d, 5, v%d" % (V_T + 2, V_LANE))
    a("v_mul_u32_u24 v%d, 768, v%d" % (V_T + 3, V_T + 2))
    a("v_add_u32 v%d, v%d, v%d" % (V_T + 3, V_T + 3, V_T))
    a("v_add_u32 v%d, %d, v%d" % (V_ECS, LDS_SCR, V_T + 3))
    a("s_lshl_b32 s%d, s%d, 7" % (S_T0, S_WAVE))
    a("s_add_u32 s%d, s%d, %d" % (S_T0, S_T0, SCR_RS))
    a("v_add_u32 v%d, s%d, v%d" % (V_ERS, S_T0, V_T))
    a("v_lshl_add_u32 v%d, v%d, 4, s%d" % (V_ERV, V_T + 2, S_T0))
    a("s_lshl_b32 s%d, s%d, 9" % (S_T0, S_WAVE))
    a("s_add_u32 s%d, s%d, %d" % (S_T0, S_T0, SCR_BF))
    a("v_lshl_add_u32 v%d, v%d, 3, s%d" % (V_EBF, V_LANE, S_T0))
    a("v_lshlrev_b32 v%d, 4, v%d" % (V_OQ, V_LANE))
    a("v_bfe_u32 v%d, v%d, 4, 1" % (V_T + 1, V_LANE))
    a("v_lshlrev_b32 v%d, 16, v%d" % (V_T + 1, V_T + 1))
    a("v_lshl_add_u32 v%d, v%d, 8, v%d" % (V_T + 1, V_T + 2, V_T + 1))
    a("v_and_b32 v%d, 15, v%d" % (V_T + 2, V_LANE))
    a("v_lshl_add_u32 v%d, v%d, 4, v%d" % (V_OV, V_T + 2, V_T + 1))
    a("s_lshl_b32 s%d, s%d, 2" % (S_T0, S_RB))
    a("s_add_u32 s%d, s%d, s%d" % (S_T0, S_T0, S_WAVE))
    a("s_lshl_b32 s%d, s%d, 10" % (S_T0, S_T0))
    a("s_lshl_b32 s%d, s%d, 17" % (S_T1, S_CG))
    a("s_add_u32 s%d, s%d, s%d" % (S_T0, S_T0, S_T1))
    a("s_add_u32 s%d, s%d, 65536" % (S_T1, S_T0))
    a("s_add_u32 s35, s%d, %d" % (S_T0, WS_K))
    a("s_add_u32 s36, s%d, %d" % (S_T1, WS_K))
    a("s_add_u32 s37, s%d, %d" % (S_T0, WS_V))
    VB = V_TMP
    VA = [V_TMP + 4, V_TMP + 8, V_TMP + 12]
    for r in (VB + 2, VB + 3):
        a("v_mov_b32 v%d, 0" % r)
    cur_base = [0]

    def reads(P):
        st, ks = P // 4, P % 4
        slot = st % NS1
        base, imm = (slot // 2) * 2 * SLOT, (slot % 2) * SLOT
        out = []
        if base != cur_base[0]:
            d = base - cur_base[0]
            for r in list(range(V_AX, V_AX + 4)) + [V_AW]:
                out.append("v_add_u32 v%d, %d, v%d" % (r, d, r) if d > 0 else "v_subrev_u32 v%d, %d, v%d" % (r, -d, r))
            cur_base[0] = base
        b = P % 2
        out.append("ds_read_b128 %s, v%d offset:%d" % (vr(V_X[b]), V_AX + ks, imm))
        for sx in range(3):
            for rd in range(2):
                out.append("ds_read_b64_tr_b16 %s, v%d offset:%d" % (vr(V_W[b][sx] + 2 * rd, 2), V_AW, imm + ks * 3072 + sx * 1024 + rd * 256))
        return out

    a("s_waitcnt lgkmcnt(0)")
    srd(a, 20, 8, WS_SIZE)
    a("s_cmp_ge_u32 s2, 4")
    a("s_cbranch_scc1 L_k1_nozero")
    for r in range(4):
        a("v_mov_b32 v%d, 0" % (V_ACC[0] + r))
    a("s_lshl_b32 s3, s2, 2")
    a("s_add_u32 s3, s3, s%d" % S_WAVE)
    a("s_lshl_b32 s3, s3, 10")
    a("s_add_u32 s3, s3, %d" % WS_FL)
    a("buffer_store_dwordx4 %s, v%d, s[20:23], s3 offen" % (vr(V_ACC[0]), V_OQ))
    a.label("L_k1_nozero")
    a.ts("k1")
    a("s_barrier")
    a.ts("k1")
    for l in reads(0):
        a(l)
    for P in range(32):
        st, pos = P // 4, P % 4
        b = P % 2
        a("s_waitcnt lgkmcnt(0)")
        if pos == 3 and P < 31:
            a("s_barrier")
        rd = reads(P + 1) if P < 31 else []
        X = vr(V_X[b])
        c = lambda r, n=16: ("0" if P == 0 else vr(r, n))
        m = []
        m.append("v_mfma_f32_32x32x16_bf16 %s, %s, %s, %s" % (vr(V_ACC[0], 16), vr(V_W[b][0]), X, c(V_ACC[0])))
        m.append("v_mfma_f32_32x32x16_bf16 %s, %s, %s, %s" % (vr(V_ACC[1], 16), vr(V_W[b][1]), X, c(V_ACC[1])))
        m.append("v_mfma_f32_32x32x16_bf16 %s, %s, %s, %s" % (vr(V_ACC[2], 16), X, vr(V_W[b][2]), c(V_ACC[2])))
        nfirst = 3 if len(rd) <= 8 else 8
        for l in rd[:nfirst]:
            a(l)
        for l in interleave(m, rd[nfirst:], per=2):
            a(l)
    a.ts("k1")
    a("s_barrier")
    VC = V_TMP + 16
    V_RS = V_TMP + 22
    V_RQ = V_TMP + 23
    VR = V_TMP + 24
    for sx in range(3):
        a("ds_read2_b32 %s, v%d offset0:%d offset1:%d" % (vr(VC + 2 * sx, 2), V_ECS, sx * 32, sx * 32 + 96))
    a("ds_read_b64 %s, v%d" % (vr(VB, 2), V_EBF))
    a("ds_read_b32 v%d, v%d" % (V_RS, V_ERS))
    for q in range(4):
        a("ds_read_b128 %s, v%d offset:%d" % (vr(VR + 4 * q), V_ERV, q * 32))
    for sx in range(3):
        a("s_waitcnt lgkmcnt(%d)" % (8 - sx))
        a("v_add_f32 v%d, v%d, v%d" % (VC + 2 * sx, VC + 2 * sx, VC + 2 * sx + 1))
        split_hi_lo_A(a, VC + 2 * sx, VA[sx], V_T + 4, S_MASK)
    a("s_waitcnt lgkmcnt(4)")
    a("v_mul_f32 v%d, 0x%x, v%d" % (V_RQ, f32bits(0.25 * math.log2(math.e)), V_RS))
    a("v_mfma_f32_32x32x16_bf16 %s, %s, %s, %s" % (vr(V_ACC[0], 16), vr(VA[0]), vr(VB), vr(V_ACC[0], 16)))
    a("v_mfma_f32_32x32x16_bf16 %s, %s, %s, %s" % (vr(V_ACC[1], 16), vr(VA[1]), vr(VB), vr(V_ACC[1], 16)))
    a("v_mfma_f32_32x32x16_bf16 %s, %s, %s, %s" % (vr(V_ACC[2], 16), vr(VB), vr(VA[2]), vr(V_ACC[2], 16)))
    a("s_nop 9")
    VO = V_X[0]
    k = 0
    for blk, sc, soffs in ((0, V_RQ, (S_T0, S_T1)), (1, V_RS, (35, 36))):
        for half in range(2):
            o = VO + 4 * k
            k += 1
            for i in range(8):
                r = V_ACC[blk] + 8 * half + i
                a("v_mul_f32 v%d, v%d, v%d" % (r, sc, r))
            for i in range(4):
                r = V_ACC[blk] + 8 * half + 2 * i
                a("v_cvt_pk_bf16_f32 v%d, v%d, v%d" % (o + i, r, r + 1))
            a("buffer_store_dwordx4 %s, v%d, s[20:23], s%d offen" % (vr(o), V_OQ, soffs[half]))
    a("s_waitcnt lgkmcnt(0)")
    for half in range(2):
        o = VO + 4 * k
        k += 1
        for i in range(8):
            r = V_ACC[2] + 8 * half + i
            a("v_mul_f32 v%d, v%d, v%d" % (r, VR + 8 * half + i, r))
        for i in range(4):
            r = V_ACC[2] + 8 * half + 2 * i
            a("v_cvt_pk_bf16_f32 v%d, v%d, v%d" % (o + i, r, r + 1))
        a("buffer_store_dwordx4 %s, v%d, s[20:23], s37 offen offset:%d" % (vr(o), V_OV, half * 512))
    a.ts_flush("k1", S_WAVE, V_T)
    a.label("L_k1_end")
    a("s_endpgm")
    return name, 152, 0, (256, 768, LDS_SCR + 4096)


def gen_k2(a):
    name = "k2_attn_kernel"
    kernel_begin(a, name)
    S_WAVE, S_H, S_QB, S_T0, S_T1, S_T2, S_T3 = 40, 41, 42, 43, 44, 45, 46
    S_ITER, S_SYNC, S_PASS, S_NT = 47, 48, 49, 50
    S_TASK, S_STG, S_DST0, S_DST1, S_TYPE = 51, 52, 53, 54, 55
    S_VMASK = 56
    S_CS = 58
    S_KB, S_W1K, S_CH = 59, 60, 61
    S_PE, S_PO, S_PS = 36, 37, 38
    V_LANE, V_L16, V_T = 1, 2, 3
    V_KA, V_VA = 10, 11
    V_Q = 12
    V_K = [16, 20]
    V_V = [24, 32]
    V_P = 40
    V_CM = 48
    V_S = [64, 80]
    V_O = 96
    V_MAX = 112
    V_PK = 113
    V_PD = 114
    V_SEL = 116
    V_PCS = [120, 124]
    STG = 131072
    a("s_cmp_ge_u32 s2, 256")
    a("s_cbranch_scc1 L_k2_end")
    a.ts("k2")
    a.ts("k2b")
    a("s_load_dwordx2 s[8:9], s[0:1], %d" % ARG_WS)
    a("s_load_dwordx2 s[4:5], s[0:1], %d" % ARG_WO)
    a("s_load_dwordx4 s[24:27], s[0:1], %d" % ARG_WG)
    a("s_load_dwordx2 s[6:7], s[0:1], %d" % ARG_WD)
    a("v_lshrrev_b32 v%d, 6, v0" % V_T)
    a("v_and_b32 v%d, 63, v0" % V_LANE)
    a("v_readfirstlane_b32 s%d, v%d" % (S_WAVE, V_T))
    a("v_lshlrev_b32 v%d, 4, v%d" % (V_L16, V_LANE))
    a("s_and_b32 s%d, s2, 7" % S_H)
    a("s_lshl_b32 s%d, s%d, 2" % (S_H, S_H))
    a("s_lshr_b32 s%d, s2, 6" % S_T0)
    a("s_add_u32 s%d, s%d, s%d" % (S_H, S_H, S_T0))
    a("s_lshr_b32 s%d, s2, 3" % S_QB)
    a("s_and_b32 s%d, s%d, 7" % (S_QB, S_QB))
    a("s_lshl_b32 s%d, s%d, 16" % (S_KB, S_H))
    a("s_lshl_b32 s%d, s%d, 10" % (S_W1K, S_WAVE))
    a("s_add_u32 s%d, s%d, s%d" % (S_KB, S_KB, S_W1K))
    a("s_lshl_b32 s%d, s%d, 13" % (S_CH, S_QB))
    a("s_add_u32 s%d, s%d, s%d" % (S_T3, S_KB, S_CH))
    a("s_add_u32 s%d, s%d, %d" % (S_KB, S_KB, WS_K))
    if not K2_ROT:
        a("s_mov_b32 s%d, 0" % S_CH)
    a("s_waitcnt lgkmcnt(0)")
    a.ts("k2b")
    srd(a, 20, 8, WS_SIZE)
    a("buffer_load_dwordx4 %s, v%d, s[20:23], s%d offen" % (vr(V_Q), V_L16, S_T3))
    if INSTR == "k2b":
        a("s_waitcnt vmcnt(0)")
    a.ts("k2b")

    def kv_dma(c):
        return [["s_add_u32 s%d, s%d, s%d" % (S_T3, S_KB, S_CH),
                 "s_add_u32 m0, s%d, %d" % (S_W1K, c * 8192),
                 "s_add_u32 s%d, s%d, 8192" % (S_CH, S_CH),
                 "buffer_load_dwordx4 v%d, s[20:23], s%d offen lds" % (V_L16, S_T3)],
                ["s_add_u32 s%d, s%d, %d" % (S_T3, S_T3, WS_V - WS_K),
                 "s_add_u32 m0, s%d, %d" % (S_W1K, 65536 + c * 8192),
                 "s_and_b32 s%d, s%d, 0xffff" % (S_CH, S_CH),
                 "buffer_load_dwordx4 v%d, s[20:23], s%d offen lds" % (V_L16, S_T3)]]

    for c in range(2):
        for g in kv_dma(c):
            for l in g:
                a(l)
    a("s_mov_b32 s%d, 0" % S_TYPE)
    a("s_cmp_lt_u32 s%d, 4" % S_WAVE)
    a("s_cbranch_scc1 L_k2_nopack")
    a("s_lshl_b32 s%d, s2, 2" % S_TASK)
    a("s_add_u32 s%d, s%d, s%d" % (S_TASK, S_TASK, S_WAVE))
    a("s_sub_u32 s%d, s%d, 4" % (S_TASK, S_TASK))
    a("s_cmp_ge_u32 s%d, 736" % S_TASK)
    a("s_cbranch_scc1 L_k2_nopack")
    a("s_lshl_b32 s%d, s%d, 13" % (S_STG, S_WAVE))
    a("s_add_u32 s%d, s%d, %d" % (S_STG, S_STG, STG - 4 * 8192))
    a("v_lshrrev_b32 v%d, 2, v%d" % (V_T, V_LANE))
    a("v_and_b32 v%d, 3, v%d" % (V_T + 1, V_LANE))
    a("s_cmp_ge_u32 s%d, 448" % S_TASK)
    a("s_cbranch_scc1 L_k2_packn")
    a("s_mov_b32 s%d, 1" % S_TYPE)
    srd(a, 28, 24, 512 * 3584)
    srd(a, 32, 26, 512 * 3584)
    a("v_mul_u32_u24 v%d, 3584, v%d" % (V_T, V_T))
    a("v_lshl_add_u32 v%d, v%d, 4, v%d" % (V_PD, V_T + 1, V_T))
    a("s_and_b32 s%d, s%d, 7" % (S_T0, S_TASK))
    a("s_lshr_b32 s%d, s%d, 3" % (S_T1, S_TASK))
    a("s_mul_i32 s%d, s%d, %d" % (S_PE, S_T0, 64 * 3584))
    a("s_lshl_b32 s%d, s%d, 6" % (S_T2, S_T1))
    a("s_add_u32 s%d, s%d, s%d" % (S_PE, S_PE, S_T2))
    a("s_mov_b32 s%d, s%d" % (S_PO, S_PE))
    a("s_mov_b32 s%d, %d" % (S_PS, 16 * 3584))
    for hb, sd in ((0, S_DST0), (1, S_DST1)):
        a("s_lshl_b32 s%d, s%d, 1" % (S_T2, S_T1))
        if hb:
            a("s_add_u32 s%d, s%d, 1" % (S_T2, S_T2))
        a("s_mul_i32 s%d, s%d, 9363" % (S_CS, S_T2))
        a("s_lshr_b32 s%d, s%d, 16" % (S_CS, S_CS))
        a("s_mul_i32 s%d, s%d, 7" % (sd, S_CS))
        a("s_sub_u32 s%d, s%d, s%d" % (sd, S_T2, sd))
        a("s_mul_i32 s%d, s%d, %d" % (S_CS, S_CS, 32 * 7))
        a("s_add_u32 s%d, s%d, s%d" % (sd, sd, S_CS))
        a("s_mul_i32 s%d, s%d, 28" % (S_CS, S_T0))
        a("s_add_u32 s%d, s%d, s%d" % (sd, sd, S_CS))
        a("s_lshl_b32 s%d, s%d, 10" % (sd, sd))
        a("s_add_u32 s%d, s%d, %d" % (sd, sd, WS_GU))
    a("s_lshl_b32 s%d, s%d, 11" % (S_CS, S_T1))
    a("s_lshr_b32 s%d, s%d, 2" % (S_T2, S_T0))
    a("s_lshl_b32 s%d, s%d, 9" % (S_T2, S_T2))
    a("s_add_u32 s%d, s%d, s%d" % (S_CS, S_CS, S_T2))
    a("s_and_b32 s%d, s%d, 3" % (S_T2, S_T0))
    a("s_lshl_b32 s%d, s%d, 2" % (S_T2, S_T2))
    a("s_add_u32 s%d, s%d, s%d" % (S_CS, S_CS, S_T2))
    a("s_add_u32 s%d, s%d, %d" % (S_CS, S_CS, WS_CS))
    a("s_branch L_k2_nopack")
    a.label("L_k2_packn")
    a("s_mov_b32 s%d, 2" % S_TYPE)
    a("v_lshlrev_b32 v%d, 10, v%d" % (V_T, V_T))
    a("v_lshl_add_u32 v%d, v%d, 4, v%d" % (V_PD, V_T + 1, V_T))
    a("s_cmp_ge_u32 s%d, 512" % S_TASK)
    a("s_cbranch_scc1 L_k2_packd")
    srd(a, 28, 4, 512 * 1024)
    srd(a, 32, 4, 512 * 1024)
    a("s_sub_u32 s%d, s%d, 448" % (S_T0, S_TASK))
    a("s_lshr_b32 s%d, s%d, 2" % (S_T1, S_T0))
    a("s_and_b32 s%d, s%d, 3" % (S_T0, S_T0))
    a("s_lshl_b32 s%d, s%d, 15" % (S_DST0, S_T1))
    a("s_add_u32 s%d, s%d, %d" % (S_DST0, S_DST0, WS_WO))
    a("s_branch L_k2_packc")
    a.label("L_k2_packd")
    srd(a, 28, 6, 1792 * 1024)
    srd(a, 32, 6, 1792 * 1024)
    a("s_sub_u32 s%d, s%d, 512" % (S_T0, S_TASK))
    a("s_mul_i32 s%d, s%d, 4682" % (S_T1, S_T0))
    a("s_lshr_b32 s%d, s%d, 16" % (S_T1, S_T1))
    a("s_mul_i32 s%d, s%d, 14" % (S_T2, S_T1))
    a("s_sub_u32 s%d, s%d, s%d" % (S_T0, S_T0, S_T2))
    a("s_mul_i32 s%d, s%d, %d" % (S_DST0, S_T1, 112 * 1024))
    a("s_add_u32 s%d, s%d, %d" % (S_DST0, S_DST0, WS_WD))
    a.label("L_k2_packc")
    a("s_lshl_b32 s%d, s%d, 13" % (S_T2, S_T0))
    a("s_add_u32 s%d, s%d, s%d" % (S_DST0, S_DST0, S_T2))
    a("s_lshl_b32 s%d, s%d, 17" % (S_PE, S_T0))
    a("s_lshl_b32 s%d, s%d, 6" % (S_T2, S_T1))
    a("s_add_u32 s%d, s%d, s%d" % (S_PE, S_PE, S_T2))
    a("s_add_u32 s%d, s%d, 16384" % (S_PO, S_PE))
    a("s_mov_b32 s%d, 32768" % S_PS)
    a.label("L_k2_nopack")
    a("s_mov_b32 s%d, 0x0000ffff" % S_VMASK)
    a("s_mov_b32 s%d, 0x0000ffff" % (S_VMASK + 1))
    a("v_and_b32 v%d, 27, v%d" % (V_T, V_LANE))
    a("v_cmp_eq_u32 vcc, 16, v%d" % V_T)
    a("v_mov_b32 v%d, 0x%x" % (V_T + 1, ONES_BF16))
    a("s_nop 1")
    a("v_cndmask_b32 v%d, 0, v%d, vcc" % (V_V[0], V_T + 1))
    for i in range(1, 16):
        a("v_mov_b32 v%d, v%d" % (V_V[0] + i, V_V[0]))
    a("s_mov_b32 s%d, 0" % S_SYNC)
    a("s_mov_b32 s%d, 0" % S_PASS)
    a("s_mov_b32 s%d, 1" % S_NT)
    a("s_setprio 3")
    a.ts("k2b")
    a("s_waitcnt vmcnt(2)")
    a.ts("k2b")
    a("s_barrier")
    a.ts("k2")
    a.ts("k2b")
    a.label("L_k2_maxpass")
    a("v_mov_b32 v%d, 0xff800000" % V_MAX)
    a("v_mov_b32 v%d, v%d" % (V_KA, V_L16))
    a.label("L_k2_mloop")
    a("ds_read_b128 %s, v%d" % (vr(V_K[0]), V_KA))
    a("v_add_u32 v%d, 1024, v%d" % (V_KA, V_KA))
    a("s_waitcnt lgkmcnt(0)")
    a("v_mfma_f32_32x32x16_bf16 %s, %s, %s, 0" % (vr(V_S[0], 16), vr(V_K[0]), vr(V_Q)))
    a("s_nop 15")
    for i in range(8):
        a("v_max3_f32 v%d, v%d, v%d, v%d" % (V_MAX, V_S[0] + 2 * i, V_S[0] + 2 * i + 1, V_MAX))
    a("s_sub_u32 s%d, s%d, 1" % (S_NT, S_NT))
    a("s_cmp_lg_u32 s%d, 0" % S_NT)
    a("s_cbranch_scc1 L_k2_mloop")
    a("v_mov_b32 v%d, v%d" % (V_KA, V_L16))
    a("v_lshrrev_b32 v%d, 5, v%d" % (V_T, V_LANE))
    a("v_lshlrev_b32 v%d, 8, v%d" % (V_T, V_T))
    a("v_and_b32 v%d, 15, v%d" % (V_T + 1, V_LANE))
    a("v_lshl_add_u32 v%d, v%d, 4, v%d" % (V_VA, V_T + 1, V_T))
    a("v_add_u32 v%d, 65536, v%d" % (V_VA, V_VA))
    a("ds_read_b128 %s, v%d" % (vr(V_K[0]), V_KA))
    a("ds_read_b128 %s, v%d offset:1024" % (vr(V_K[1]), V_KA))
    a("s_mov_b64 exec, s[%d:%d]" % (S_VMASK, S_VMASK + 1))
    a("ds_read_b128 %s, v%d" % (vr(V_V[0]), V_VA))
    a("ds_read_b128 %s, v%d offset:512" % (vr(V_V[0] + 4), V_VA))
    a("s_mov_b64 exec, -1")
    a("v_mov_b32 v%d, v%d" % (V_T, V_MAX))
    a("s_nop 1")
    a("v_permlane32_swap_b32 v%d, v%d" % (V_MAX, V_T))
    a("s_nop 1")
    a("v_max_f32 v%d, v%d, v%d" % (V_MAX, V_MAX, V_T))
    for i in range(16):
        a("v_sub_f32 v%d, 0, v%d" % (V_CM + i, V_MAX))
    a("s_waitcnt lgkmcnt(0)")
    a("s_nop 0")
    a("v_mfma_f32_32x32x16_bf16 %s, %s, %s, %s" % (vr(V_S[0], 16), vr(V_K[0]), vr(V_Q), vr(V_CM, 16)))
    for i in range(16):
        a("v_mov_b32 v%d, 0" % (V_O + i))
    for i in range(4):
        a("v_mov_b32 v%d, 0" % (V_P + 4 + i))
    a("s_mov_b32 s%d, 8" % S_ITER)
    a.ts("k2")
    a("s_cmp_lg_u32 s%d, 0" % S_PASS)
    a("s_cbranch_scc1 L_k2_loop")

    def body(peeled):
        for t in range(8):
            cur, nxt = t % 2, (t + 1) % 2
            x1, x2 = [], []
            if peeled:
                if t < 6:
                    x1, x2 = kv_dma(t + 2)
                if t == 6:
                    a("s_waitcnt vmcnt(12)")
                    a("s_barrier")
                if t >= 6:
                    lab = "L_k2_np%d" % t
                    x1 = ["s_cmp_eq_u32 s%d, 0" % S_TYPE, "s_cbranch_scc1 %s" % lab]
                    for i in range(4 * (t - 6), 4 * (t - 6) + 4):
                        x1 += ["s_add_u32 m0, s%d, %d" % (S_STG, i * 1024), "s_nop 0",
                               "buffer_load_dwordx4 v%d, s[%d:%d], s%d offen lds" % (V_PD, 28 + 4 * (i % 2), 31 + 4 * (i % 2), S_PO if i % 2 else S_PE),
                               "s_add_u32 s%d, s%d, s%d" % ((S_PO, S_PO, S_PS) if i % 2 else (S_PE, S_PE, S_PS))]
                    x1 += [lab + ":"]
            else:
                if t == 0:
                    for k, r in enumerate((5, 2, 1)):
                        x1 += ["s_cmp_lg_u32 s%d, %d" % (S_ITER, r), "s_cbranch_scc1 L_k2_pp%d" % k, "s_setprio %d" % (2 - k), "L_k2_pp%d:" % k]
                if t == 6:
                    a("s_cmp_eq_u32 s%d, 0" % S_SYNC)
                    a("s_cbranch_scc1 L_k2_sync")
                    a.label("L_k2_syncret")
            S = V_S[cur]
            e = lambda i: "v_exp_f32 v%d, v%d" % (S + i, S + i)
            c = lambda i: "v_cvt_pk_bf16_f32 v%d, v%d, v%d" % (V_P + i, S + 2 * i, S + 2 * i + 1)
            pv = lambda b, h: "v_mfma_f32_32x32x16_bf16 %s, %s, %s, %s" % (vr(V_O, 16), vr(V_V[b] + 4 * h), vr(V_P + 4 * h), vr(V_O, 16))
            qk = "v_mfma_f32_32x32x16_bf16 %s, %s, %s, %s" % (vr(V_S[nxt], 16), vr(V_K[nxt]), vr(V_Q), vr(V_CM, 16))
            rdk = "ds_read_b128 %s, v%d offset:%d" % (vr(V_K[cur]), V_KA, (t + 2) * 1024)
            rdv = ["s_mov_b64 exec, s[%d:%d]" % (S_VMASK, S_VMASK + 1),
                   "ds_read_b128 %s, v%d offset:%d" % (vr(V_V[nxt]), V_VA, (t + 1) * 1024),
                   "ds_read_b128 %s, v%d offset:%d" % (vr(V_V[nxt] + 4), V_VA, (t + 1) * 1024 + 512),
                   "s_mov_b64 exec, -1"]
            seq = [e(0), e(1), pv(nxt, 1), e(2), "s_waitcnt lgkmcnt(0)", rdk, e(3)] + rdv + [c(0), e(4), e(5), c(1), e(6), e(7), qk, c(2), e(8)] + x1 + [e(9), c(3),
                   e(10), e(11), c(4), e(12), e(13), pv(cur, 0), c(5), e(14)] + x2 + [e(15), c(6)]
            if t == 7:
                seq += ["v_add_u32 v%d, 8192, v%d" % (V_KA, V_KA), "v_add_u32 v%d, 8192, v%d" % (V_VA, V_VA),
                        "s_sub_u32 s%d, s%d, 1" % (S_ITER, S_ITER), "s_cmp_lg_u32 s%d, 0" % S_ITER]
            seq += [c(7)]
            for l in seq:
                if l.endswith(":"):
                    a.label(l[:-1])
                else:
                    a(l)

    body(True)
    a.raw(".p2align 6")
    a.label("L_k2_loop")
    body(False)
    a("s_cbranch_scc1 L_k2_loop")
    a.ts("k2")
    a("s_nop 1")
    a("v_mfma_f32_32x32x16_bf16 %s, %s, %s, %s" % (vr(V_O, 16), vr(V_V[1] + 4), vr(V_P + 4), vr(V_O, 16)))
    a("s_waitcnt lgkmcnt(0)")
    a("s_lshl_b32 s%d, s%d, 3" % (S_T0, S_QB))
    a("s_add_u32 s%d, s%d, s%d" % (S_T0, S_T0, S_WAVE))
    a("s_lshl_b32 s%d, s%d, 5" % (S_T0, S_T0))
    a("s_add_u32 s%d, s%d, s%d" % (S_T0, S_T0, S_H))
    a("s_lshl_b32 s%d, s%d, 10" % (S_T0, S_T0))
    a("s_add_u32 s%d, s%d, %d" % (S_T0, S_T0, WS_O))
    a("s_nop 7")
    a("v_mul_f32 v%d, 0, v%d" % (V_T, V_O))
    for i in range(1, 8):
        a("v_fmac_f32 v%d, 0, v%d" % (V_T, V_O + i))
    a("v_add_f32 v%d, v%d, v%d" % (V_T, V_T, V_O + 8))
    a("v_cmp_gt_f32 vcc, 0x%x, v%d" % (f32bits(2.0 ** 100), V_T))
    a("v_rcp_f32 v%d, v%d" % (V_T + 1, V_O + 8))
    a("s_cmp_lg_u32 s%d, 0" % S_PASS)
    a("s_cbranch_scc1 L_k2_fin")
    a("s_cmp_eq_u64 vcc, exec")
    a("s_cbranch_scc1 L_k2_fin")
    a("s_mov_b32 s%d, 1" % S_PASS)
    a("s_mov_b32 s%d, 64" % S_NT)
    a("s_branch L_k2_maxpass")
    a.label("L_k2_fin")
    for i in range(8):
        a("v_mul_f32 v%d, v%d, v%d" % (V_O + i, V_T + 1, V_O + i))
    for i in range(4):
        a("v_cvt_pk_bf16_f32 v%d, v%d, v%d" % (V_P + i, V_O + 2 * i, V_O + 2 * i + 1))
    a("buffer_store_dwordx4 %s, v%d, s[20:23], s%d offen" % (vr(V_P), V_L16, S_T0))
    a.ts_flush("k2", S_WAVE, V_T)
    a.ts_flush("k2b", S_WAVE, V_T)
    a.label("L_k2_end")
    a("s_endpgm")
    a.label("L_k2_sync")
    a("s_mov_b32 s%d, 1" % S_SYNC)
    a("s_waitcnt vmcnt(0)")
    a("s_barrier")
    a("s_cmp_eq_u32 s%d, 0" % S_TYPE)
    a("s_cbranch_scc1 L_k2_syncret")
    a("v_bfe_u32 v%d, v%d, 2, 2" % (V_T, V_LANE))
    a("v_lshrrev_b32 v%d, 5, v%d" % (V_T + 1, V_LANE))
    a("v_lshl_add_u32 v%d, v%d, 2, v%d" % (V_T, V_T + 1, V_T))
    a("v_lshlrev_b32 v%d, 6, v%d" % (V_T, V_T))
    a("v_and_b32 v%d, 3, v%d" % (V_T + 1, V_LANE))
    a("v_lshl_add_u32 v%d, v%d, 3, v%d" % (V_T, V_T + 1, V_T))
    a("v_add_u32 v%d, s%d, v%d" % (V_T, S_STG, V_T))
    a("v_bfe_u32 v%d, v%d, 4, 1" % (V_T + 1, V_LANE))
    FB = [128 + 4 * i for i in range(8)]
    a("s_cmp_eq_u32 s%d, 2" % S_TYPE)
    a("s_cbranch_scc1 L_k2_pk2")
    a("v_lshl_add_u32 v%d, v%d, 10, v%d" % (V_PK, V_T + 1, V_T))
    for ks in range(4):
        for hb in range(2):
            for rd in range(2):
                a("ds_read_b64_tr_b16 %s, v%d offset:%d" % (vr(FB[ks * 2 + hb] + 2 * rd, 2), V_PK, ks * 2048 + hb * 32 + rd * 512))
    make_sel(a, V_LANE, V_SEL, V_T + 2)
    a("v_and_b32 v%d, 31, v%d" % (V_T, V_LANE))
    a("v_lshlrev_b32 v%d, 4, v%d" % (V_T, V_T))
    a("s_waitcnt lgkmcnt(0)")
    for ks in range(4):
        for hb in range(2):
            a("v_mfma_f32_16x16x32_bf16 %s, %s, %s, %s" % (vr(V_PCS[hb]), vr(V_SEL), vr(FB[ks * 2 + hb]), "0" if ks == 0 else vr(V_PCS[hb])))
            a("buffer_store_dwordx4 %s, v%d, s[20:23], s%d offen" % (vr(FB[ks * 2 + hb]), V_L16, (S_DST0, S_DST1)[hb]))
        a("s_add_u32 s%d, s%d, 7168" % (S_DST0, S_DST0))
        a("s_add_u32 s%d, s%d, 7168" % (S_DST1, S_DST1))
    a("s_nop 7")
    a("buffer_store_dword v%d, v%d, s[20:23], s%d offen" % (V_PCS[0], V_T, S_CS))
    a("buffer_store_dword v%d, v%d, s[20:23], s%d offen offset:1024" % (V_PCS[1], V_T, S_CS))
    a("s_branch L_k2_syncret")
    a.label("L_k2_pk2")
    a("v_lshl_add_u32 v%d, v%d, 5, v%d" % (V_PK, V_T + 1, V_T))
    a("s_add_u32 s%d, s%d, 4096" % (S_DST1, S_DST0))
    for f in range(8):
        for rd in range(2):
            a("ds_read_b64_tr_b16 %s, v%d offset:%d" % (vr(FB[f] + 2 * rd, 2), V_PK, f * 1024 + rd * 512))
    a("s_waitcnt lgkmcnt(0)")
    for f in range(8):
        a("buffer_store_dwordx4 %s, v%d, s[20:23], s%d offen offset:%d" % (vr(FB[f]), V_L16, S_DST0 if f < 4 else S_DST1, (f % 4) * 1024))
    a("s_branch L_k2_syncret")
    return name, 160, 0, (256, 512, 163840)


FL_A, FL_B, FL_C, FL_P = WS_FL, WS_FL + 8192, WS_FL + 16384, WS_FL + 20480
S_XCC, S_FAST = 62, 63
T_XCD, T_R2, T_RB64, T_RB128, T_CGF, T_TBO, T_NBO, T_HALF, T_A, T_B, T_C, T_D, T_CNT, T_M = 24, 25, 26, 27, 28, 29, 30, 31, 32, 33, 34, 35, 36, 37
FV_WO = 160
FV_XR = 224
FV_LX = 228
FV_L4 = 229
FV_L8 = 234
FV_F = 230
FSTORE = os.environ.get('FSTORE', '')
PRET = os.environ.get('PRET', 'qa')
WBL2 = os.environ.get('WBL2', 'e')
LSC = os.environ.get('LSC', ' sc1')
AMAP = int(os.environ.get('AMAP', 0))
S_TEAM, S_MEM = 18, 19
FASTPATH = int(os.environ.get('FASTPATH', 1))
POLLD = int(os.environ.get('POLLD', 1))


def poll(a, tag, soff, n, vl4, vf, depth=1):
    a("s_mov_b32 s%d, 0" % T_CNT)
    a.label("L_poll_%s" % tag)
    a("buffer_load_dword v%d, v%d, s[20:23], s%d offen sc1" % (vf, vl4, soff))
    a("s_add_u32 s%d, s%d, 1" % (T_CNT, T_CNT))
    a("s_waitcnt vmcnt(0)")
    a("v_cmp_ne_u32 vcc, 0, v%d" % vf)
    a("s_cmp_gt_u32 s%d, 0x40000" % T_CNT)
    a("s_cbranch_scc1 L_polld_%s" % tag)
    if n == 64:
        a("s_and_b32 s%d, vcc_lo, vcc_hi" % T_M)
        a("s_cmp_lg_u32 s%d, -1" % T_M)
    else:
        mask = (1 << n) - 1
        a("s_and_b32 s%d, vcc_lo, 0x%x" % (T_M, mask))
        a("s_cmp_lg_u32 s%d, 0x%x" % (T_M, mask))
    a("s_cbranch_scc1 L_poll_%s" % tag)
    a.label("L_polld_%s" % tag)


def hstore(a, tag, stores):
    a("s_cmp_eq_u32 s%d, -1" % S_FAST)
    a("s_cbranch_scc1 L_hs_%s_f" % tag)
    for st in stores:
        a(st + " sc1")
    a("s_branch L_hs_%s_d" % tag)
    a.label("L_hs_%s_f" % tag)
    for st in stores:
        a(st + (FSTORE if "dwordx4" in st else ""))
    a.label("L_hs_%s_d" % tag)


def set_flag(a, soff, vt, tag=None):
    a("v_mov_b32 v%d, 0" % vt)
    a("v_mov_b32 v%d, 1" % (vt + 1))
    a("s_mov_b64 exec, 1")
    st = "buffer_store_dword v%d, v%d, s[20:23], s%d offen" % (vt + 1, vt, soff)
    if tag:
        hstore(a, tag, [st])
    else:
        a(st + " sc1")
    a("s_mov_b64 exec, -1")


def fused_events(a, E):
    S_WAVE, S_H, S_QB, S_ITER, S_SYNC, S_TASK, S_TYPE = (E[k] for k in ("S_WAVE", "S_H", "S_QB", "S_ITER", "S_SYNC", "S_TASK", "S_TYPE"))
    V_LANE, V_L16, V_T = E["V_LANE"], E["V_L16"], E["V_T"]
    a.label("L_f_event")
    a("s_cmp_eq_u32 s%d, 7" % S_ITER)
    a("s_cbranch_scc1 L_f_sync")
    a("s_cmp_eq_u32 s%d, 6" % S_ITER)
    a("s_cbranch_scc1 L_f_ev6")
    a("s_cmp_eq_u32 s%d, 2" % S_ITER)
    a("s_cbranch_scc1 L_f_ev2")
    a("s_cmp_eq_u32 s%d, 3" % S_ITER)
    a("s_cbranch_scc1 L_f_ev3")
    a("s_mov_b32 s%d, 3" % S_SYNC)
    a("s_cmp_eq_u32 s%d, 0" % S_TYPE)
    a("s_cbranch_scc1 L_f_ev5b")
    a("s_lshl_b32 s%d, s%d, 2" % (T_A, S_TASK))
    a("s_add_u32 s%d, s%d, %d" % (T_A, T_A, FL_P))
    a("s_waitcnt vmcnt(0)")
    set_flag(a, T_A, V_T)
    a.label("L_f_ev5b")
    if "a" in WBL2:
        a("s_lshl_b32 s%d, s%d, 3" % (T_A, S_MEM))
        a("s_add_u32 s%d, s%d, s%d" % (T_A, T_A, S_WAVE))
        a("s_cmp_lg_u32 s%d, 5" % T_A)
        a("s_cbranch_scc1 L_f_nowb1")
        a("buffer_wbl2 sc1")
        a.label("L_f_nowb1")
    a("buffer_load_dword v%d, v%d, s[96:99], 0 offen sc1" % (FV_F, FV_L4))
    a("s_branch L_f_syncret")
    a.label("L_f_ev3")
    a("s_mov_b32 s%d, 2" % S_SYNC)
    a("s_mov_b32 s%d, 0" % T_CNT)
    a.label("L_f_dbchk")
    a("s_waitcnt vmcnt(0)")
    a("v_subrev_u32 v%d, 0x01010101, v%d" % (FV_F + 1, FV_F))
    a("v_not_b32 v%d, v%d" % (FV_F + 2, FV_F))
    a("v_and_b32 v%d, v%d, v%d" % (FV_F + 1, FV_F + 1, FV_F + 2))
    a("v_and_b32 v%d, 0x80808080, v%d" % (FV_F + 1, FV_F + 1))
    a("v_cmp_eq_u32 vcc, 0, v%d" % (FV_F + 1))
    a("s_add_u32 s%d, s%d, 1" % (T_CNT, T_CNT))
    a("s_cmp_gt_u32 s%d, 0x40000" % T_CNT)
    a("s_cbranch_scc1 L_f_dbok")
    a("s_and_b32 s%d, vcc_lo, vcc_hi" % T_M)
    a("s_cmp_eq_u32 s%d, -1" % T_M)
    a("s_cbranch_scc1 L_f_dbok")
    a("buffer_load_dword v%d, v%d, s[96:99], 0 offen sc1" % (FV_F, FV_L4))
    a("s_branch L_f_dbchk")
    a.label("L_f_dbok")
    a("s_lshr_b32 s%d, s2, 5" % T_XCD)
    a("s_bfe_u32 s%d, s2, 0x20003" % T_R2)
    a("s_and_b32 s%d, s2, 7" % T_RB64)
    a("s_lshl_b32 s%d, s%d, 2" % (T_RB64, T_RB64))
    a("s_add_u32 s%d, s%d, s%d" % (T_RB64, T_RB64, T_R2))
    a("s_lshr_b32 s%d, s%d, 1" % (T_RB128, T_RB64))
    a("s_and_b32 s%d, s%d, 1" % (T_A, T_R2))
    a("s_lshl_b32 s%d, s%d, 1" % (T_CGF, T_XCD))
    a("s_add_u32 s%d, s%d, s%d" % (T_CGF, T_CGF, T_A))
    a("s_bfe_u32 s%d, s%d, 0x10001" % (T_A, S_WAVE))
    a("s_lshl_b32 s%d, s%d, 1" % (T_TBO, T_RB64))
    a("s_add_u32 s%d, s%d, s%d" % (T_TBO, T_TBO, T_A))
    a("s_and_b32 s%d, s%d, 1" % (T_A, S_WAVE))
    a("s_lshl_b32 s%d, s%d, 1" % (T_NBO, T_XCD))
    a("s_add_u32 s%d, s%d, s%d" % (T_NBO, T_NBO, T_A))
    a("s_lshr_b32 s%d, s%d, 2" % (T_HALF, S_WAVE))
    if "a" in PRET:
        a("s_lshl_b32 s%d, s%d, 4" % (T_A, T_TBO))
        a("s_add_u32 s%d, s%d, s%d" % (T_A, T_A, T_NBO))
        a("s_lshl_b32 s%d, s%d, 9" % (T_B, T_A))
        a("s_add_u32 s%d, s%d, %d" % (T_B, T_B, WS_ST))
        a("s_lshl_b32 s%d, s%d, 1" % (T_A, T_A))
        a("s_add_u32 s%d, s%d, s%d" % (T_A, T_A, T_HALF))
        a("s_lshl_b32 s%d, s%d, 10" % (T_A, T_A))
        a("s_add_u32 s%d, s%d, %d" % (T_A, T_A, WS_H))
        a("buffer_load_dwordx4 %s, v%d, s[20:23], s%d offen sc1" % (vr(236), V_L16, T_A))
        a("buffer_load_dwordx2 %s, v%d, s[20:23], s%d offen sc1" % (vr(240, 2), FV_L8, T_B))
        a("s_and_b32 s%d, s%d, 3" % (T_A, S_WAVE))
        a("s_lshl_b32 s%d, s%d, 2" % (T_B, T_RB128))
        a("s_add_u32 s%d, s%d, s%d" % (T_A, T_A, T_B))
        a("s_mul_i32 s%d, s%d, 112" % (T_A, T_A))
        a("s_mul_i32 s%d, s%d, 7" % (T_B, T_CGF))
        a("s_add_u32 s%d, s%d, s%d" % (T_A, T_A, T_B))
        a("s_mul_i32 s%d, s%d, 3" % (T_B, T_HALF))
        a("s_add_u32 s%d, s%d, s%d" % (T_A, T_A, T_B))
        a("s_lshl_b32 s%d, s%d, 10" % (T_A, T_A))
        a("s_add_u32 s%d, s%d, %d" % (T_A, T_A, WS_A))
        for k in range(4):
            a("buffer_load_dwordx4 %s, v%d, s[20:23], s%d offen offset:%d sc1" % (vr(236 if k == 0 else 240 + 4 * k), V_L16, T_A, k * 1024))
    a("s_mul_i32 s%d, s%d, 7" % (T_A, T_CGF))
    a("s_lshr_b32 s%d, s%d, 1" % (T_A, T_A))
    a("s_lshl_b32 s%d, s%d, 5" % (T_A, T_A))
    a("s_mul_i32 s%d, s%d, 56" % (T_B, T_NBO))
    a("s_add_u32 s%d, s%d, %d" % (T_B, T_B, 512 * 4 - 32 * 4))
    a("s_lshl_b32 s%d, s%d, 1" % (T_C, T_NBO))
    a("s_add_u32 s%d, s%d, s%d" % (T_C, T_C, T_HALF))
    a("s_lshl_b32 s%d, s%d, 3" % (T_C, T_C))
    a("s_add_u32 s%d, s%d, %d" % (T_C, T_C, 448 * 4 - 46 * 4))
    a("v_mov_b32 v%d, s%d" % (V_T, T_A))
    a("v_mov_b32 v%d, s%d" % (V_T + 1, T_B))
    a("v_cmp_le_u32 vcc, 32, v%d" % V_LANE)
    a("v_mov_b32 v%d, s%d" % (V_T + 2, T_C))
    a("s_nop 0")
    a("v_cndmask_b32 v%d, v%d, v%d, vcc" % (V_T, V_T, V_T + 1))
    a("v_cmp_le_u32 vcc, 46, v%d" % V_LANE)
    a("s_mov_b32 s%d, %d" % (T_A, FL_P))
    a("s_nop 0")
    a("v_cndmask_b32 v%d, v%d, v%d, vcc" % (V_T, V_T, V_T + 2))
    a("v_add_u32 v%d, v%d, v%d" % (FV_F + 3, V_T, FV_L4))
    a("buffer_load_dword v%d, v%d, s[20:23], s%d offen sc1" % (FV_F, FV_F + 3, T_A))
    a("s_branch L_f_syncret")
    a.label("L_f_ev2")
    a("s_mov_b32 s%d, 0" % S_SYNC)
    a("s_mov_b32 s%d, 0" % T_CNT)
    a("s_mov_b32 s%d, %d" % (T_A, FL_P))
    a.label("L_f_fpchk")
    a("s_waitcnt vmcnt(0)")
    a("v_cmp_ne_u32 vcc, 0, v%d" % FV_F)
    a("s_add_u32 s%d, s%d, 1" % (T_CNT, T_CNT))
    a("s_cmp_gt_u32 s%d, 0x40000" % T_CNT)
    a("s_cbranch_scc1 L_f_fpok")
    a("s_or_b32 s%d, vcc_hi, 0xffff0000" % T_M)
    a("s_and_b32 s%d, s%d, vcc_lo" % (T_M, T_M))
    a("s_cmp_eq_u32 s%d, -1" % T_M)
    a("s_cbranch_scc1 L_f_fpok")
    if DIAG == "nopack":
        a("s_branch L_f_fpok")
    a("buffer_load_dword v%d, v%d, s[20:23], s%d offen sc1" % (FV_F, FV_F + 3, T_A))
    a("s_branch L_f_fpchk")
    a.label("L_f_fpok")
    a("s_lshl_b32 s%d, s%d, 1" % (T_A, T_NBO))
    a("s_add_u32 s%d, s%d, s%d" % (T_A, T_A, T_HALF))
    a("s_lshl_b32 s%d, s%d, 14" % (T_A, T_A))
    a("s_add_u32 s%d, s%d, %d" % (T_A, T_A, WS_WO))
    for i in range(16):
        if i and i % 4 == 0:
            a("s_add_u32 s%d, s%d, 4096" % (T_A, T_A))
        a("buffer_load_dwordx4 %s, v%d, s[20:23], s%d offen offset:%d sc1" % (vr(FV_WO + 4 * i), FV_LX, T_A, (i % 4) * 1024))
    if "w" in PRET:
        a("v_lshlrev_b32 v%d, 7, v%d" % (V_T, V_LANE))
        a("s_mul_i32 s%d, s%d, %d" % (T_A, T_CGF, 32 * 7 * 1024))
        a("s_and_b32 s%d, s%d, 1" % (T_B, T_RB128))
        a("s_lshl_b32 s%d, s%d, 3" % (T_B, T_B))
        a("s_add_u32 s%d, s%d, s%d" % (T_B, T_B, S_WAVE))
        a("s_mul_i32 s%d, s%d, 7168" % (T_B, T_B))
        a("s_add_u32 s%d, s%d, s%d" % (T_A, T_A, T_B))
        a("s_add_u32 s%d, s%d, %d" % (T_A, T_A, WS_GU + 4 * SLOT))
        a("s_mov_b32 exec_hi, 0x00ffffff")
        a("buffer_load_dword v%d, v%d, s[20:23], s%d offen sc1" % (236, V_T, T_A))
        if "d" in PRET:
            a("s_mul_i32 s%d, s%d, %d" % (T_A, T_NBO, 112 * 1024))
            a("s_lshl_b32 s%d, s%d, 2" % (T_B, T_R2))
            a("s_lshr_b32 s%d, s%d, 1" % (T_C, S_WAVE))
            a("s_add_u32 s%d, s%d, s%d" % (T_B, T_B, T_C))
            a("s_mul_i32 s%d, s%d, 7168" % (T_B, T_B))
            a("s_add_u32 s%d, s%d, s%d" % (T_A, T_A, T_B))
            a("s_add_u32 s%d, s%d, %d" % (T_A, T_A, WS_WD))
            a("buffer_load_dword v%d, v%d, s[20:23], s%d offen sc1" % (237, V_T, T_A))
        a("s_mov_b64 exec, -1")
    srd(a, 12, 10, 2048 * 1024)
    a("v_and_b32 v%d, 31, v%d" % (V_T, V_LANE))
    a("v_lshlrev_b32 v%d, 10, v%d" % (V_T, V_T))
    a("v_lshrrev_b32 v%d, 5, v%d" % (V_T + 1, V_LANE))
    a("v_lshl_add_u32 v%d, v%d, 3, v%d" % (V_T, V_T + 1, V_T))
    a("s_lshl_b32 s%d, s%d, 15" % (T_A, T_TBO))
    a("s_lshl_b32 s%d, s%d, 6" % (T_B, T_NBO))
    a("s_add_u32 s%d, s%d, s%d" % (T_A, T_A, T_B))
    a("s_lshl_b32 s%d, s%d, 5" % (T_B, T_HALF))
    a("s_add_u32 s%d, s%d, s%d" % (T_A, T_A, T_B))
    for q in range(2):
        a("buffer_load_dwordx2 %s, v%d, s[12:15], s%d offen offset:%d" % (vr(FV_XR + 2 * q, 2), V_T, T_A, q * 16))
    a("s_branch L_f_syncret")


def fused_tail(a, E):
    S_WAVE, S_H, S_QB = E["S_WAVE"], E["S_H"], E["S_QB"]
    V_LANE, V_L16 = 1, 2
    V_T = 3
    S_MASK, S_W3, S_M0W, S_SW, S_SH, S_M0H = 43, 44, 45, 46, 47, 48
    a.ts("k2")
    a("s_setprio 0")
    for k in ("S_SYNC", "S_TYPE", "S_PASS", "S_NT", "S_ITER"):
        a("s_mov_b32 s%d, 0" % E[k])
    a("s_mov_b32 s%d, 0xffff0000" % S_MASK)
    a("s_and_b32 s%d, s%d, 3" % (S_W3, S_WAVE))
    S_WB = 51
    a("s_lshl_b32 s%d, s%d, 3" % (S_WB, S_MEM))
    a("s_add_u32 s%d, s%d, s%d" % (S_WB, S_WB, S_WAVE))
    a("s_lshl_b32 s%d, s%d, 2" % (T_A, S_QB))
    a("s_lshr_b32 s%d, s%d, 1" % (T_B, S_WAVE))
    a("s_add_u32 s%d, s%d, s%d" % (T_A, T_A, T_B))
    a("s_lshl_b32 s%d, s%d, 8" % (T_A, T_A))
    a("s_and_b32 s%d, s%d, 1" % (T_B, S_WAVE))
    a("s_lshl_b32 s%d, s%d, 5" % (T_B, T_B))
    a("s_add_u32 s%d, s%d, s%d" % (T_B, T_B, S_H))
    a("s_lshl_b32 s%d, s%d, 2" % (T_B, T_B))
    a("s_add_u32 s%d, s%d, s%d" % (T_B, T_B, T_A))
    a("s_add_u32 s%d, s%d, %d" % (T_B, T_B, FL_A))
    a("s_mul_i32 s%d, s%d, 7168" % (S_M0W, S_W3))
    a("s_mul_i32 s%d, s%d, %d" % (S_SW, T_CGF, 32 * 7 * 1024))
    a("s_add_u32 s%d, s%d, s%d" % (S_SW, S_SW, S_M0W))
    a("s_add_u32 s%d, s%d, %d" % (S_SW, S_SW, WS_GU))

    def w_stage(st):
        slot = st % 4
        a("s_add_u32 s%d, s%d, %d" % (T_C, S_SW, st * SLOT))
        a("s_add_u32 m0, s%d, %d" % (S_M0W, slot * SLOT))
        a("s_add_u32 s%d, s%d, 4096" % (T_D, T_C))
        for q in range(4):
            a("buffer_load_dwordx4 v%d, s[20:23], s%d offen offset:%d sc1 lds" % (V_L16, T_C, q * 1024))
        a("s_add_u32 m0, m0, 4096")
        a("s_nop 0")
        for q in range(3):
            a("buffer_load_dwordx4 v%d, s[20:23], s%d offen offset:%d sc1 lds" % (V_L16, T_D, q * 1024))

    a("s_waitcnt vmcnt(0)")
    set_flag(a, T_B, V_T)
    a("s_barrier")
    OB, XS = 86016, 57344
    a("s_cmp_ge_u32 s%d, 4" % S_WAVE)
    a("s_cbranch_scc1 L_f_a1")
    w_stage(0)
    w_stage(1)
    a("s_branch L_f_a2")
    a.label("L_f_a1")
    a("s_lshl_b32 s%d, s%d, 8" % (T_A, T_RB64))
    a("s_lshl_b32 s%d, s%d, 6" % (T_B, S_W3))
    a("s_add_u32 s%d, s%d, s%d" % (T_A, T_A, T_B))
    a("s_add_u32 s%d, s%d, %d" % (T_A, T_A, FL_A))
    a("s_lshl_b32 s%d, s%d, 2" % (T_C, T_RB64))
    a("s_add_u32 s%d, s%d, s%d" % (T_C, T_C, S_W3))
    a("s_lshl_b32 s%d, s%d, 14" % (T_C, T_C))
    a("s_add_u32 s%d, s%d, %d" % (T_C, T_C, WS_O))
    a("s_lshl_b32 s%d, s%d, 14" % (T_B, S_W3))
    a("s_add_u32 m0, s%d, %d" % (T_B, OB))
    poll(a, "fa", T_A, 16, FV_L4, FV_F + 2)
    a.ts("k2")
    for j in range(16):
        if j and j % 4 == 0:
            a("s_add_u32 m0, m0, 4096")
            a("s_add_u32 s%d, s%d, 4096" % (T_C, T_C))
        a("buffer_load_dwordx4 v%d, s[20:23], s%d offen offset:%d sc1 lds" % (V_L16, T_C, (j % 4) * 1024))
    a.label("L_f_a2")

    V_OA = 12
    V_OF = [[16 + 4 * i for i in range(8)], [96 + 4 * i for i in range(8)]]
    V_AB = 64
    V_U = 80
    V_HK = 16
    a("s_bfe_u32 s%d, s%d, 0x10001" % (T_B, S_WAVE))
    a("s_lshl_b32 s%d, s%d, 1" % (T_B, T_B))
    a("s_add_u32 s%d, s%d, s%d" % (T_B, T_B, T_HALF))
    a("s_lshl_b32 s%d, s%d, 14" % (T_B, T_B))
    a("s_add_u32 s%d, s%d, %d" % (T_B, T_B, OB))
    a("v_add_u32 v%d, s%d, v%d" % (V_OA, T_B, V_L16))
    a("s_xor_b32 s%d, s%d, 4" % (T_B, S_WAVE))
    a("s_lshl_b32 s%d, s%d, 11" % (T_B, T_B))
    a("s_add_u32 s%d, s%d, %d" % (T_B, T_B, XS))
    a("v_add_u32 v%d, s%d, v%d" % (V_OA + 1, T_B, V_L16))
    a("s_lshl_b32 s%d, s%d, 11" % (T_B, S_WAVE))
    a("s_add_u32 s%d, s%d, %d" % (T_B, T_B, XS))
    a("v_add_u32 v%d, s%d, v%d" % (V_OA + 2, T_B, V_L16))
    for d in range(4):
        a("v_lshlrev_b32 v%d, 16, v%d" % (V_U + 2 * d, FV_XR + d))
        a("v_and_b32 v%d, s%d, v%d" % (V_U + 2 * d + 1, S_MASK, FV_XR + d))
    for hf in range(2):
        a("s_cmp_lt_u32 s%d, 4" % S_WAVE)
        a("s_cbranch_scc1 L_f_b3%d" % hf)
        a("s_waitcnt vmcnt(%d)" % (8 - 8 * hf))
        a.label("L_f_b3%d" % hf)
        a("s_barrier")
        if hf == 0:
            a.ts("k2")
        for i in range(8):
            a("ds_read_b128 %s, v%d offset:%d" % (vr(V_OF[hf][i]), V_OA, (8 * hf + i) * 1024))
        if hf == 1:
            for i in range(4, 8):
                a("v_mfma_f32_32x32x16_bf16 %s, %s, %s, %s" % (vr(V_AB, 16), vr(FV_WO + 4 * i), vr(V_OF[0][i]), vr(V_AB, 16)))
        for i in range(4 if hf == 0 else 8):
            a("s_waitcnt lgkmcnt(%d)" % (7 - i))
            a("v_mfma_f32_32x32x16_bf16 %s, %s, %s, %s" % (vr(V_AB, 16), vr(FV_WO + 4 * (8 * hf + i)), vr(V_OF[hf][i]), "0" if (hf == 0 and i == 0) else vr(V_AB, 16)))
        if hf == 0:
            a("s_waitcnt lgkmcnt(0)")
    a("s_lshl_b32 s%d, s%d, 4" % (T_A, T_TBO))
    a("s_add_u32 s%d, s%d, s%d" % (T_A, T_A, T_NBO))
    a("s_lshl_b32 s%d, s%d, 1" % (T_A, T_A))
    a("s_add_u32 s%d, s%d, s%d" % (T_A, T_A, T_HALF))
    a("s_lshr_b32 s%d, s%d, 1" % (T_B, T_A))
    a("s_lshl_b32 s%d, s%d, 9" % (T_B, T_B))
    a("s_lshl_b32 s%d, s%d, 3" % (T_C, T_HALF))
    a("s_add_u32 s%d, s%d, s%d" % (T_B, T_B, T_C))
    a("s_add_u32 s%d, s%d, %d" % (T_B, T_B, WS_ST))
    a("s_lshl_b32 s%d, s%d, 10" % (T_A, T_A))
    a("s_add_u32 s%d, s%d, %d" % (T_A, T_A, WS_H))
    a("v_and_b32 v%d, 31, v%d" % (V_T, V_LANE))
    a("v_lshlrev_b32 v%d, 4, v%d" % (V_T, V_T))
    a("s_nop 1")
    for q in range(2):
        a("ds_write_b128 v%d, %s offset:%d" % (V_OA + 1, vr(V_AB + 8 + 4 * q), q * 1024))
    for i in range(8):
        a("v_add_f32 v%d, v%d, v%d" % (V_AB + i, V_AB + i, V_U + i))
    a("s_waitcnt lgkmcnt(0)")
    a("s_barrier")
    for q in range(2):
        a("ds_read_b128 %s, v%d offset:%d" % (vr(V_U + 4 * q), V_OA + 2, q * 1024))
    a("s_waitcnt lgkmcnt(0)")
    for i in range(8):
        a("v_add_f32 v%d, v%d, v%d" % (V_AB + i, V_AB + i, V_U + i))
    for i in range(4):
        a("v_cvt_pk_bf16_f32 v%d, v%d, v%d" % (V_HK + i, V_AB + 2 * i, V_AB + 2 * i + 1))
    hstore(a, "h", ["buffer_store_dwordx4 %s, v%d, s[20:23], s%d offen" % (vr(V_HK), V_L16, T_A)])
    for d in range(4):
        a("v_lshlrev_b32 v%d, 16, v%d" % (V_U + 2 * d, V_HK + d))
        a("v_and_b32 v%d, s%d, v%d" % (V_U + 2 * d + 1, S_MASK, V_HK + d))
    S1, S2 = V_AB, V_AB + 1
    a("v_add_f32 v%d, v%d, v%d" % (S1, V_U, V_U + 1))
    a("v_mul_f32 v%d, v%d, v%d" % (S2, V_U, V_U))
    a("v_fmac_f32 v%d, v%d, v%d" % (S2, V_U + 1, V_U + 1))
    for i in range(2, 8):
        a("v_add_f32 v%d, v%d, v%d" % (S1, S1, V_U + i))
        a("v_fmac_f32 v%d, v%d, v%d" % (S2, V_U + i, V_U + i))
    sum_halves(a, S1, V_AB + 2)
    sum_halves(a, S2, V_AB + 3)
    hstore(a, "st", ["buffer_store_dwordx2 %s, v%d, s[20:23], s%d offen" % (vr(S1, 2), V_T, T_B)])
    a("s_lshl_b32 s%d, s%d, 4" % (T_B, T_TBO))
    a("s_add_u32 s%d, s%d, s%d" % (T_B, T_B, T_NBO))
    a("s_lshl_b32 s%d, s%d, 1" % (T_B, T_B))
    a("s_add_u32 s%d, s%d, s%d" % (T_B, T_B, T_HALF))
    a("s_lshl_b32 s%d, s%d, 2" % (T_B, T_B))
    a("s_add_u32 s%d, s%d, %d" % (T_B, T_B, FL_B))
    a("v_mov_b32 v%d, v%d" % (14, FV_LX))
    a("v_mov_b32 v%d, v%d" % (15, FV_L4))
    V_LX, V_L4 = 14, 15
    a("s_waitcnt vmcnt(0)")
    set_flag(a, T_B, V_T, "fb")
    a("s_barrier")
    a.ts("k2")
    HR = 114688
    a("s_lshl_b32 s%d, s%d, 2" % (T_A, T_RB128))
    a("s_add_u32 s%d, s%d, s%d" % (T_A, T_A, S_W3))
    a("s_lshl_b32 s%d, s%d, 15" % (S_SH, T_A))
    a("s_add_u32 s%d, s%d, %d" % (S_SH, S_SH, WS_H))
    a("s_lshl_b32 s%d, s%d, 12" % (S_M0H, S_W3))
    a("s_add_u32 s%d, s%d, %d" % (S_M0H, S_M0H, HR))

    def h_stage(st):
        a("s_add_u32 m0, s%d, %d" % (S_M0H, (st % 3) * 16384))
        a("s_add_u32 s%d, s%d, %d" % (T_C, S_SH, st * 4096))
        for q in range(4):
            a("buffer_load_dwordx4 v%d, s[20:23], s%d offen offset:%d sc1 lds" % (V_L16, T_C, q * 1024))

    a("s_cmp_ge_u32 s%d, 4" % S_WAVE)
    a("s_cbranch_scc1 L_f_ccomp")
    w_stage(2)
    w_stage(3)
    V_WD = 144
    V_WP = 32
    S_KQ = 50
    a("s_lshr_b32 s%d, s%d, 1" % (S_KQ, S_WAVE))
    a("s_lshl_b32 s%d, s%d, 2" % (T_A, T_NBO))
    a("s_add_u32 s%d, s%d, s%d" % (T_A, T_A, S_KQ))
    a("s_mul_i32 s%d, s%d, %d" % (T_A, T_A, 28 * 1024))
    a("s_add_u32 s%d, s%d, %d" % (T_A, T_A, WS_WD))
    a("s_add_u32 s%d, s%d, %d" % (T_B, T_A, 56 * 1024))
    a("v_xor_b32 v%d, 0x100, v%d" % (V_T, V_L16))
    a("s_mul_i32 s%d, s%d, %d" % (T_M, S_W3, 28 * 1024))
    a("v_add_u32 v%d, s%d, v%d" % (V_T + 1, T_M, V_L16))

    def wd_loads(i0, i1):
        for i in range(i0, i1):
            if i and i % 4 == 0:
                a("s_add_u32 s%d, s%d, 4096" % (T_A, T_A))
            a("buffer_load_dwordx4 %s, v%d, s[20:23], s%d offen offset:%d sc1" % (vr(V_WD + 4 * i), V_LX, T_A, (i % 4) * 1024))

    log = ["W0"] * 7 + ["W1"] * 7 + ["W2"] * 7 + ["W3"] * 7
    wd_plan = {5: 8, 6: 12, 7: 8}
    nwd = 0
    for j in range(8):
        last = max(i for i, t in enumerate(log) if t in ("W%d" % j, "h%d" % j))
        n = len(log) - 1 - last
        assert n <= 63
        a("s_waitcnt vmcnt(%d)" % n)
        a("s_barrier")
        if j >= 1:
            if j + 2 <= 7:
                h_stage(j + 2)
                log += ["h%d" % (j + 2)] * 4
            if j + 3 <= 7 and DIAG != "cnodma":
                w_stage(j + 3)
                log += ["W%d" % (j + 3)] * 7
        k = wd_plan.get(j, 0)
        if DIAG != "cnodma":
            wd_loads(nwd, nwd + k)
            log += ["d"] * k
        nwd += k
    assert nwd == 28
    a("s_mov_b32 m0, s%d" % T_M)
    a("s_barrier")
    for i in range(28):
        if i and i % 4 == 0:
            a("s_add_u32 m0, m0, 4096")
            a("s_add_u32 s%d, s%d, 4096" % (T_B, T_B))
        a("buffer_load_dwordx4 v%d, s[20:23], s%d offen offset:%d sc1 lds" % (V_T, T_B, (i % 4) * 1024))
    a("s_waitcnt vmcnt(0)")
    a("s_barrier")
    a("s_branch L_f_d1")
    a.label("L_f_ccomp")
    V_AW, V_AH = 12, 13
    V_ST = 20
    V_CSL = 52
    V_H = [80, 84]
    V_W = [88, 116]
    V_ACC = [144 + 16 * b for b in range(7)]
    V_TMP = 88
    S_TB = 49
    a("s_lshl_b32 s%d, s%d, 2" % (S_TB, T_RB128))
    a("s_add_u32 s%d, s%d, s%d" % (S_TB, S_TB, S_W3))
    a("v_mov_b32 v%d, v%d" % (V_AW, V_L16))
    a("s_lshl_b32 s%d, s%d, 12" % (T_A, S_W3))
    a("s_add_u32 s%d, s%d, %d" % (T_A, T_A, HR))
    a("v_add_u32 v%d, s%d, v%d" % (V_AH, T_A, V_L16))
    a("v_and_b32 v%d, 31, v%d" % (V_T, V_LANE))
    a("v_lshlrev_b32 v%d, 4, v%d" % (V_T, V_T))
    a("v_lshrrev_b32 v%d, 5, v%d" % (V_T + 1, V_LANE))
    a("v_lshl_add_u32 v%d, v%d, 12, v%d" % (V_T, V_T + 1, V_T))
    a("s_mul_i32 s%d, s%d, 7168" % (T_C, T_CGF))
    a("s_add_u32 s%d, s%d, %d" % (T_C, T_C, WS_CS))
    a("s_add_u32 s%d, s%d, 4096" % (T_D, T_C))
    for blk in range(7):
        a("buffer_load_dwordx4 %s, v%d, s[20:23], s%d offen offset:%d sc1" % (vr(V_CSL + 4 * blk), V_L16, T_C if blk < 4 else T_D, (blk % 4) * 1024))
    a("s_lshl_b32 s%d, s%d, 7" % (T_B, S_TB))
    a("s_add_u32 s%d, s%d, %d" % (T_B, T_B, FL_B))
    poll(a, "fb", T_B, 32, V_L4, 9)
    for st in range(3):
        h_stage(st)
    a("s_lshl_b32 s%d, s%d, 13" % (T_A, S_TB))
    a("s_add_u32 s%d, s%d, %d" % (T_A, T_A, WS_ST))
    cur_base = [0]
    lds = Lds(a)

    def reads(P):
        st, pos = P // 4, P % 4
        slot = st % 4
        base, imm = (slot // 2) * 2 * SLOT, (slot % 2) * SLOT
        out = []
        b = P % 2
        out.append(("ds_read_b128 %s, v%d offset:%d" % (vr(V_H[b]), V_AH, (st % 3) * 16384 + pos * 1024), ("h", P)))
        if base != cur_base[0]:
            d = base - cur_base[0]
            out.append(("v_add_u32 v%d, %d, v%d" % (V_AW, d, V_AW) if d > 0 else "v_subrev_u32 v%d, %d, v%d" % (V_AW, -d, V_AW), None))
            cur_base[0] = base
        for blk in range(7):
            if DIAG == "cnolds" and P >= 2:
                lds.idx[("w", P, blk)] = 0
                continue
            out.append(("ds_read_b128 %s, v%d offset:%d" % (vr(V_W[b] + 4 * blk), V_AW, imm + (pos * 7 + blk) * 1024), ("w", P, blk)))
        return out

    side = {}
    g = []
    for i in range(8):
        g.append("buffer_load_dwordx4 %s, v%d, s[20:23], s%d offen offset:%d sc1" % (vr(V_ST + 4 * i), V_T, T_A, i * 512))
    side[0], side[1] = g[:4], g[4:]
    sa = Asm()
    S1, S2 = V_T + 1, V_T + 2
    V_MU, V_RS = V_T + 2, V_T + 4
    V_VAR, V_C1, V_C2 = 6, 8, 10
    sa("s_waitcnt vmcnt(0)")
    sa("v_add_f32 v%d, v%d, v%d" % (S1, V_ST, V_ST + 2))
    sa("v_add_f32 v%d, v%d, v%d" % (S2, V_ST + 1, V_ST + 3))
    for i in range(2, 16):
        sa("v_add_f32 v%d, v%d, v%d" % (S1, S1, V_ST + 2 * i))
        sa("v_add_f32 v%d, v%d, v%d" % (S2, S2, V_ST + 2 * i + 1))
    sum_halves(sa, S1, V_T + 4)
    sum_halves(sa, S2, V_T + 4)
    sa("v_mul_f32 v%d, 0x%x, v%d" % (V_VAR, f32bits(1.0 / 512), S2))
    sa("v_mul_f32 v%d, 0x%x, v%d" % (V_MU, f32bits(1.0 / 512), S1))
    sa("v_fma_f32 v%d, -v%d, v%d, v%d" % (V_VAR, V_MU, V_MU, V_VAR))
    sa("v_max_f32 v%d, 0, v%d" % (V_VAR, V_VAR))
    sa("v_add_f32 v%d, 0x%x, v%d" % (V_VAR, f32bits(1e-5), V_VAR))
    sa("v_rsq_f32 v%d, v%d" % (V_RS, V_VAR))
    sa("v_sub_f32 v%d, 0, v%d" % (V_MU, V_MU))
    VB = V_ST
    split_hi_lo_B(sa, V_MU, VB, V_T, S_MASK)
    c1 = -2.0 * math.sqrt(2.0 / math.pi) * math.log2(math.e)
    sa("v_mul_f32 v%d, 0x%x, v%d" % (V_C1, f32bits(c1), V_RS))
    sa("v_mul_f32 v%d, v%d, v%d" % (V_C2, V_RS, V_RS))
    sa("v_mul_f32 v%d, v%d, v%d" % (V_C2, V_C2, V_C1))
    sa("v_mul_f32 v%d, 0x%x, v%d" % (V_C2, f32bits(0.044715), V_C2))
    VA = V_CSL
    for blk in range(7):
        c = V_CSL + 4 * blk
        a("v_add_f32 v%d, v%d, v%d" % (c, c, c + 1))
        a("v_add_f32 v%d, v%d, v%d" % (c + 2, c + 2, c + 3))
        a("v_add_f32 v%d, v%d, v%d" % (V_T + 2, c, c + 2))
        split_hi_lo_A(a, V_T + 2, c, V_T + 1, S_MASK)
    sl = [x.strip() for x in sa.L]
    per = 10
    for k in range((len(sl) + per - 1) // per):
        side[10 + k] = sl[per * k:per * (k + 1)]
    P_R1 = 10 + (len(sl) + per - 1) // per + 1
    assert P_R1 <= 30
    side[30] = ["s_mul_i32 s%d, s%d, 112" % (T_A, S_TB), "s_mul_i32 s%d, s%d, 7" % (T_B, T_CGF), "s_add_u32 s%d, s%d, s%d" % (T_A, T_A, T_B),
                "s_lshl_b32 s%d, s%d, 10" % (T_A, T_A), "s_add_u32 s%d, s%d, %d" % (T_A, T_A, WS_A), "s_add_u32 s%d, s%d, 4096" % (T_B, T_A)]
    a("s_waitcnt vmcnt(8)")
    a("s_barrier")
    a.ts("k2")
    for t, tag in reads(0):
        lds.op(t, tag) if tag else a(t)
    for P in range(32):
        st, pos = P // 4, P % 4
        b = P % 2
        rd = reads(P + 1) if P < 31 else []
        sd = list(side.get(P, []))
        bar_at = 3 if (pos == 3 and P < 31) else -1
        first_rd = bar_at if bar_at >= 0 else 0
        for blk in range(7):
            if blk == bar_at:
                lds.drain()
                if st == 0:
                    a("s_waitcnt vmcnt(12)")
                if st == 1:
                    a("s_waitcnt vmcnt(8)")
                a("s_barrier")
            lds.need(("h", P), ("w", P, blk))
            a("v_mfma_f32_32x32x16_bf16 %s, %s, %s, %s" % (vr(V_ACC[blk], 16), vr(V_W[b] + 4 * blk), vr(V_H[b]), "0" if P == 0 else vr(V_ACC[blk], 16)))
            if blk >= first_rd:
                nrd = 3 if bar_at >= 0 else 2
                for _ in range(nrd):
                    if rd:
                        t, tag = rd.pop(0)
                        lds.op(t, tag) if tag else a(t)
            for _ in range(2):
                if sd:
                    a(sd.pop(0))
        assert not rd and not sd
        if P == 14 and "c" in WBL2:
            a("s_cmp_lg_u32 s%d, 7" % S_WB)
            a("s_cbranch_scc1 L_f_nowbc")
            a("buffer_wbl2 sc1")
            a.label("L_f_nowbc")
        if P == P_R1:
            for blk in range(7):
                a("v_mfma_f32_32x32x16_bf16 %s, %s, %s, %s" % (vr(V_ACC[blk], 16), vr(VA + 4 * blk), vr(VB), vr(V_ACC[blk], 16)))
    a.ts("k2")
    a("s_barrier")
    a("s_nop 4")
    bc = lambda r: "v[%d:%d]" % (r, r + 1)
    for blk in range(7):
        G = V_ACC[blk]
        Uu = G + 8
        T = V_TMP + 8 * (blk % 2)
        for i in range(0, 8, 2):
            a("v_pk_mul_f32 %s, %s, %s" % (bc(T + i), bc(G + i), bc(G + i)))
        for i in range(0, 8, 2):
            a("v_pk_fma_f32 %s, %s, %s, %s op_sel_hi:[1,0,0]" % (bc(T + i), bc(T + i), bc(V_C2), bc(V_C1)))
        for i in range(0, 8, 2):
            a("v_pk_mul_f32 %s, %s, %s" % (bc(T + i), bc(T + i), bc(G + i)))
        for i in range(8):
            a("v_exp_f32 v%d, v%d" % (T + i, T + i))
        for i in range(0, 8, 2):
            a("v_pk_mul_f32 %s, %s, %s" % (bc(G + i), bc(G + i), bc(Uu + i)))
        for i in range(0, 8, 2):
            a("v_pk_fma_f32 %s, %s, %s, %s op_sel_hi:[1,0,0]" % (bc(T + i), bc(T + i), bc(V_VAR), bc(V_VAR)))
        for i in range(8):
            a("v_rcp_f32 v%d, v%d" % (T + i, T + i))
        a("s_nop 0")
        for i in range(0, 8, 2):
            a("v_pk_mul_f32 %s, %s, %s" % (bc(G + i), bc(G + i), bc(T + i)))
        o = V_TMP + 16 + 4 * blk
        for i in range(4):
            a("v_cvt_pk_bf16_f32 v%d, v%d, v%d" % (o + i, G + 2 * i, G + 2 * i + 1))
    hstore(a, "act", ["buffer_store_dwordx4 %s, v%d, s[20:23], s%d offen offset:%d" % (vr(V_TMP + 16 + 4 * blk), V_L16, T_A if blk < 4 else T_B, (blk % 4) * 1024) for blk in range(7)])
    a.ts("k2")
    a("s_lshl_b32 s%d, s%d, 4" % (T_B, S_TB))
    a("s_add_u32 s%d, s%d, s%d" % (T_B, T_B, T_CGF))
    a("s_lshl_b32 s%d, s%d, 2" % (T_B, T_B))
    a("s_add_u32 s%d, s%d, %d" % (T_B, T_B, FL_C))
    a("s_lshr_b32 s%d, s%d, 1" % (S_KQ, S_WAVE))
    a("s_mul_i32 s%d, s%d, %d" % (T_M, S_W3, 28 * 1024))
    a("v_add_u32 v%d, s%d, v%d" % (V_T + 2, T_M, V_L16))
    a("s_waitcnt vmcnt(0)")
    set_flag(a, T_B, V_T, "fc")
    a("s_barrier")
    for i in range(28):
        a("ds_read_b128 %s, v%d offset:%d" % (vr(V_WD + 4 * i), V_T + 2, i * 1024))
        if i % 8 == 7:
            a("s_waitcnt lgkmcnt(4)")
    a("s_waitcnt lgkmcnt(0)")
    a.label("L_f_d1")
    V_AA = [12, 13]
    V_AF = [[32 + 32 * b + 4 * i for i in range(8)] for b in range(2)]
    V_AD = [96, 112]
    S_SA, S_M0A = 45, 46
    a("s_and_b32 s%d, s%d, 1" % (T_A, S_WAVE))
    a("s_lshl_b32 s%d, s%d, 1" % (T_B, T_RB64))
    a("s_add_u32 s%d, s%d, s%d" % (T_A, T_A, T_B))
    a("s_lshl_b32 s%d, s%d, 2" % (T_A, T_A))
    a("s_add_u32 s%d, s%d, s%d" % (T_A, T_A, S_KQ))
    a("s_mul_i32 s%d, s%d, %d" % (S_SA, T_A, 28 * 1024))
    a("s_add_u32 s%d, s%d, %d" % (S_SA, S_SA, WS_A))
    a("s_lshl_b32 s%d, s%d, 12" % (S_M0A, S_WAVE))
    for ai in range(2):
        a("s_and_b32 s%d, s%d, 1" % (T_A, S_KQ))
        a("s_xor_b32 s%d, s%d, %d" % (T_A, T_A, ai))
        a("s_lshl_b32 s%d, s%d, 1" % (T_B, S_KQ))
        a("s_add_u32 s%d, s%d, s%d" % (T_A, T_A, T_B))
        a("s_lshl_b32 s%d, s%d, 12" % (T_A, T_A))
        a("v_add_u32 v%d, s%d, v%d" % (V_AA[ai], T_A, V_L16))

    def a_stage(j):
        out = ["s_add_u32 m0, s%d, %d" % (S_M0A, (j % 5) * 32768), "s_add_u32 s%d, s%d, %d" % (T_C, S_SA, j * 4096)]
        for q in range(4):
            out.append("buffer_load_dwordx4 v%d, s[20:23], s%d offen offset:%d%s lds" % (V_L16, T_C, q * 1024, LSC))
        return out

    a("s_cmp_lg_u32 s%d, 0" % S_WAVE)
    a("s_cbranch_scc1 L_f_d2")
    a("s_lshl_b32 s%d, s%d, 7" % (T_A, T_RB64))
    a("s_add_u32 s%d, s%d, %d" % (T_A, T_A, FL_C))
    poll(a, "fc", T_A, 32, V_L4, 9)
    a.label("L_f_d2")
    a("s_barrier")
    a.ts("k2")
    a.ts("kd_")
    DD = int(os.environ.get('DD', 2))
    for l in a_stage(0):
        a(l)
    a("s_barrier")
    if "d" in WBL2:
        a("s_lshl_b32 s%d, s%d, 3" % (T_A, S_MEM))
        a("s_add_u32 s%d, s%d, s%d" % (T_A, T_A, S_WAVE))
        a("s_cmp_lg_u32 s%d, 5" % T_A)
        a("s_cbranch_scc1 L_f_nowb2")
        a("buffer_wbl2 sc1")
        a.label("L_f_nowb2")
    for jj in range(1, DD):
        for l in a_stage(jj):
            a(l)
    cb = 0

    def d_mfmas(j):
        F = V_AF[j % 2]
        return ["v_mfma_f32_32x32x16_bf16 %s, %s, %s, %s" % (vr(V_AD[ai], 16), vr(V_WD + 4 * (4 * j + q)), vr(F[q * 2 + ai]), "0" if (j == 0 and q == 0) else vr(V_AD[ai], 16))
                for q in range(4) for ai in range(2)]

    for j in range(7):
        slot = j % 5
        base, imm = (slot // 2) * 65536, (slot % 2) * 32768
        if base != cb:
            d = base - cb
            for r in V_AA:
                a("v_add_u32 v%d, %d, v%d" % (r, d, r) if d > 0 else "v_subrev_u32 v%d, %d, v%d" % (r, -d, r))
            cb = base
        nw = 4 * (min(j + DD - 1, 6) - j)
        if "g" in WBL2 and j >= 5:
            a("s_cmp_lg_u32 s%d, 7" % S_WB)
            a("s_cbranch_scc1 L_f_wg%da" % j)
            a("s_waitcnt vmcnt(%d) lgkmcnt(0)" % (nw + 1))
            a("s_branch L_f_wg%db" % j)
            a.label("L_f_wg%da" % j)
            a("s_waitcnt vmcnt(%d) lgkmcnt(0)" % nw)
            a.label("L_f_wg%db" % j)
        else:
            a("s_waitcnt vmcnt(%d) lgkmcnt(0)" % nw)
        a("s_barrier")
        a.ts("kd_")
        if j == 6 and ("e" in WBL2 or "f" in WBL2):
            if "e" in WBL2:
                a("s_lshl_b32 s%d, s%d, 3" % (T_A, S_MEM))
                a("s_add_u32 s%d, s%d, s%d" % (T_A, T_A, S_WAVE))
                a("s_cmp_lg_u32 s%d, 7" % T_A)
            else:
                a("s_cmp_lg_u32 s%d, 7" % S_WAVE)
            a("s_cbranch_scc1 L_f_nowb3")
            a("buffer_wbl2 sc1")
            a.label("L_f_nowb3")
        F = V_AF[j % 2]
        stg = a_stage(j + DD) if j + DD <= 6 else []
        for l in stg[:3]:
            a(l)
        for q in range(4):
            for ai in range(2):
                a("ds_read_b128 %s, v%d offset:%d" % (vr(F[q * 2 + ai]), V_AA[ai], imm + q * 1024))
        rest = stg[3:]
        for k, m in enumerate(d_mfmas(j)):
            a("s_waitcnt lgkmcnt(%d)" % (7 - k))
            if DIAG != "dnomfma":
                a(m)
            if rest:
                a(rest.pop(0))
            if k == 4 and j == 4 and "g" in WBL2:
                assert not rest
                a("s_cmp_lg_u32 s%d, 7" % S_WB)
                a("s_cbranch_scc1 L_f_nowbg")
                a("buffer_wbl2 sc1")
                a.label("L_f_nowbg")
    a.ts("kd_")
    XD = 65536
    for x in range(1, 4):
        a("s_xor_b32 s%d, s%d, %d" % (T_A, S_WAVE, x << 1))
        a("s_mul_i32 s%d, s%d, 6144" % (T_A, T_A))
        a("s_add_u32 s%d, s%d, %d" % (T_A, T_A, XD + (x - 1) * 2048))
        a("v_add_u32 v%d, s%d, v%d" % (V_T + x, T_A, V_L16))
    a("s_mul_i32 s%d, s%d, 6144" % (T_A, S_WAVE))
    a("s_add_u32 s%d, s%d, %d" % (T_A, T_A, XD))
    a("v_add_u32 v%d, s%d, v%d" % (V_T, T_A, V_L16))
    src = {1: V_AD[1], 2: V_AD[0] + 8, 3: V_AD[1] + 8}
    for x in (2, 1, 3):
        for q in range(2):
            a("ds_write_b128 v%d, %s offset:%d" % (V_T + x, vr(src[x] + 4 * q), q * 1024))
    U = 32
    for d in range(4):
        a("v_lshlrev_b32 v%d, 16, v%d" % (U + 2 * d, V_HK + d))
        a("v_and_b32 v%d, s%d, v%d" % (U + 2 * d + 1, S_MASK, V_HK + d))
    for i in range(8):
        a("v_add_f32 v%d, v%d, v%d" % (V_AD[0] + i, V_AD[0] + i, U + i))
    srd(a, 12, 16, 2048 * 1024)
    a("v_and_b32 v%d, 31, v%d" % (V_T + 4, V_LANE))
    a("v_lshlrev_b32 v%d, 10, v%d" % (V_T + 4, V_T + 4))
    a("v_lshrrev_b32 v%d, 5, v%d" % (V_T + 5, V_LANE))
    a("v_lshl_add_u32 v%d, v%d, 3, v%d" % (V_T + 4, V_T + 5, V_T + 4))
    a("s_lshl_b32 s%d, s%d, 15" % (T_A, T_TBO))
    a("s_lshl_b32 s%d, s%d, 6" % (T_B, T_NBO))
    a("s_add_u32 s%d, s%d, s%d" % (T_A, T_A, T_B))
    a("s_lshl_b32 s%d, s%d, 5" % (T_B, T_HALF))
    a("s_add_u32 s%d, s%d, s%d" % (T_A, T_A, T_B))
    a("s_waitcnt lgkmcnt(0)")
    a("s_barrier")
    a.ts("kd_")
    R = 48
    for k in range(6):
        a("ds_read_b128 %s, v%d offset:%d" % (vr(R + 4 * k), V_T, k * 1024))
    for x in range(3):
        a("s_waitcnt lgkmcnt(%d)" % (4 - 2 * x))
        for i in range(8):
            a("v_add_f32 v%d, v%d, v%d" % (V_AD[0] + i, V_AD[0] + i, R + 8 * x + i))
    for i in range(4):
        a("v_cvt_pk_bf16_f32 v%d, v%d, v%d" % (U + i, V_AD[0] + 2 * i, V_AD[0] + 2 * i + 1))
    for q in range(2):
        a("buffer_store_dwordx2 %s, v%d, s[12:15], s%d offen offset:%d" % (vr(U + 2 * q, 2), V_T + 4, T_A, q * 16))
    a.ts_flush("k2", S_WAVE, V_T)
    a.ts_flush("kd_", S_WAVE, V_T)


FL_1 = WS_FL + 24576
P1_DIST = int(os.environ.get('P1_DIST', 3))
P1_ROT = int(os.environ.get('P1_ROT', 1))


def team_check(a, tag, vl4, vf, preissued=False):
    a("s_lshl_b32 s38, s%d, 5" % S_TEAM)
    a("s_mov_b32 s36, 0")
    if preissued:
        a("s_branch L_tc_%s_w" % tag)
    a.label("L_tc_%s" % tag)
    a("buffer_load_dword v%d, v%d, s[96:99], s38 offen sc1" % (vf, vl4))
    a.label("L_tc_%s_w" % tag)
    a("s_add_u32 s36, s36, 1")
    a("s_waitcnt vmcnt(0)")
    a("v_subrev_u32 v%d, 0x01010101, v%d" % (vf + 1, vf))
    a("v_not_b32 v%d, v%d" % (vf + 2, vf))
    a("v_and_b32 v%d, v%d, v%d" % (vf + 1, vf + 1, vf + 2))
    a("v_and_b32 v%d, 0x80808080, v%d" % (vf + 1, vf + 1))
    a("v_cmp_eq_u32 vcc, 0, v%d" % (vf + 1))
    a("s_cmp_gt_u32 s36, 0x40000")
    a("s_cbranch_scc1 L_tc_%s_d" % tag)
    a("s_and_b32 s37, vcc_lo, 0xff")
    a("s_cmp_lg_u32 s37, 0xff")
    a("s_cbranch_scc1 L_tc_%s" % tag)
    a.label("L_tc_%s_d" % tag)
    a("s_mul_i32 s37, s%d, 0x01010101" % S_XCC)
    a("v_cmp_eq_u32 vcc, s37, v%d" % vf)
    a("s_nop 3")
    a("s_or_b32 s%d, vcc_lo, 0xffffff00" % S_FAST)
    if not FASTPATH:
        a("s_and_b32 s%d, s%d, 0" % (S_FAST, S_FAST))


def phase1(a, E):
    S_WAVE, S_H, S_QB = E["S_WAVE"], E["S_H"], E["S_QB"]
    WB, WSL = 65536, 24576
    SCR = WB + 3 * WSL
    SCR_CS, SCR_RS, SCR_BF = SCR, SCR + 1536, SCR + 2048
    S_W3, S_MASK, S_T0, S_T1, S_KX, S_KW, S_SLOT, S_CNT, S_M0X, S_M0W, S_RD, S_SLC = 43, 44, 45, 46, 47, 48, 49, 50, 51, 52, 53, 54
    S_TBI, S_G, S_O0, S_O1, S_O2, S_O3, S_O4 = 55, 56, 57, 58, 59, 60, 61
    V_LANE, V_L16, V_T = 1, 2, 3
    V_DX, V_DW, V_AX, V_AW = 10, 14, 15, 19
    V_SEL, V_SQ = 24, 28
    V_X = [32, 36]
    V_W = [[40, 44, 48], [52, 56, 60]]
    V_ACC = [64, 80, 96]
    V_CS = [112, 116, 120]
    V_TMP = 124
    if INSTR == "kv_":
        a("v_mov_b32 v250, 0")
    a.tsv("15")
    a("s_and_b32 s%d, s%d, 3" % (S_W3, S_WAVE))
    a("s_mov_b32 s%d, 0xffff0000" % S_MASK)

    def x_addr(sbase, sxor):
        a("v_and_b32 v%d, 31, v%d" % (V_T, V_LANE))
        a("v_and_b32 v%d, 3, v%d" % (V_T + 1, V_LANE))
        a("v_lshrrev_b32 v%d, 2, v%d" % (V_T + 2, V_T))
        a("v_lshlrev_b32 v%d, 7, v%d" % (V_T + 2, V_T + 2))
        a("v_lshl_add_u32 v%d, v%d, 10, v%d" % (V_T + 2, V_T + 1, V_T + 2))
        a("v_add_u32 v%d, s%d, v%d" % (V_T + 2, sbase, V_T + 2))
        a("v_lshrrev_b32 v%d, 1, v%d" % (V_T + 3, V_T))
        a("v_and_b32 v%d, 4, v%d" % (V_T + 3, V_T + 3))
        a("v_or_b32 v%d, v%d, v%d" % (V_T + 3, V_T + 3, V_T + 1))
        a("v_lshrrev_b32 v%d, 5, v%d" % (V_T + 4, V_LANE))
        a("v_xor_b32 v%d, v%d, v%d" % (V_T + 3, V_T + 3, V_T + 4))
        if sxor is not None:
            a("v_xor_b32 v%d, s%d, v%d" % (V_T + 3, sxor, V_T + 3))
        for ks in range(4):
            a("v_xor_b32 v%d, %d, v%d" % (V_T + 5, 2 * ks, V_T + 3))
            a("v_lshl_add_u32 v%d, v%d, 4, v%d" % (V_AX + ks, V_T + 5, V_T + 2))

    a("v_lshrrev_b32 v%d, 3, v%d" % (V_T, V_LANE))
    a("v_and_b32 v%d, 7, v%d" % (V_T + 1, V_LANE))
    a("v_lshrrev_b32 v%d, 2, v%d" % (V_T + 2, V_LANE))
    a("v_and_b32 v%d, 4, v%d" % (V_T + 2, V_T + 2))
    a("v_xor_b32 v%d, v%d, v%d" % (V_T + 1, V_T + 1, V_T + 2))
    a("v_mul_u32_u24 v%d, 3072, v%d" % (V_T + 3, V_T))
    a("v_lshl_add_u32 v%d, v%d, 4, v%d" % (V_DW, V_T + 1, V_T + 3))
    a("v_lshlrev_b32 v%d, 12, v%d" % (V_T, V_T))
    S_HI, S_TBH = 49, 50
    a("s_and_b32 s%d, s%d, 2" % (S_HI, S_W3))
    a("v_xor_b32 v%d, s%d, v%d" % (V_T + 1, S_HI, V_T + 1))
    for q in range(2):
        a("v_xor_b32 v%d, %d, v%d" % (V_T + 3, q, V_T + 1))
        a("v_lshl_add_u32 v%d, v%d, 4, v%d" % (V_DX + q, V_T + 3, V_T))
    a("s_and_b32 s%d, s%d, 1" % (S_TBH, S_W3))
    a("s_lshl_b32 s53, s%d, 12" % S_TBH)
    a("s_lshl_b32 s%d, s%d, 10" % (S_T0, S_HI))
    a("s_add_u32 s%d, s53, s%d" % (S_M0X, S_T0))
    a("s_lshl_b32 s%d, s%d, 1" % (S_T1, S_MEM))
    a("s_add_u32 s%d, s%d, s%d" % (S_T1, S_T1, S_TBH))
    a("s_lshl_b32 s%d, s%d, 15" % (S_KX, S_T1))
    a("s_add_u32 s%d, s%d, s%d" % (S_KX, S_KX, S_T0))
    a("v_lshlrev_b32 v%d, 10, v%d" % (V_T, V_LANE))
    a("s_mul_i32 s%d, s%d, 48" % (S_T0, S_MEM))
    a("s_mul_i32 s%d, s%d, 12" % (S_T1, S_W3))
    a("s_add_u32 s%d, s%d, s%d" % (S_T0, S_T0, S_T1))
    a("s_lshl_b32 s%d, s%d, 10" % (S_T0, S_T0))
    a("s_lshl_b32 s%d, s%d, 7" % (S_T1, S_TEAM))
    a("s_add_u32 s%d, s%d, s%d" % (S_T0, S_T0, S_T1))
    a("s_mul_i32 s%d, s%d, %d" % (S_KW, S_W3, 16 * 3072))
    a("s_add_u32 s%d, s%d, s%d" % (S_KW, S_KW, S_T1))
    a("s_waitcnt lgkmcnt(0)")
    srd(a, 12, 10, 2048 * 1024)
    srd(a, 28, 100, 512 * 3072)

    def x_issue(st):
        a("s_add_u32 m0, s%d, %d" % (S_M0X, st * 8192))
        a("s_add_u32 s%d, s%d, %d" % (S_T1, S_KX, st * 128))
        for q in range(2):
            a("buffer_load_dwordx4 v%d, s[12:15], s%d offen offset:%d lds" % (V_DX + q, S_T1, q * 1024))

    def w_issue(st):
        a("s_add_u32 m0, s%d, %d" % (S_M0W, (st % 3) * WSL))
        a("s_add_u32 s%d, s%d, %d" % (S_T0, S_KW, st * 64 * 3072))
        for sx in range(3):
            a("buffer_load_dwordx4 v%d, s[28:31], s%d offen offset:%d lds" % (V_DW, S_T0, sx * 1024))
        a("s_add_u32 m0, m0, 3072")
        a("s_add_u32 s%d, s%d, %d" % (S_T0, S_T0, 8 * 3072))
        for sx in range(3):
            a("buffer_load_dwordx4 v%d, s[28:31], s%d offen offset:%d lds" % (V_DW, S_T0, sx * 1024))

    a("s_cmp_ge_u32 s%d, 4" % S_WAVE)
    a("s_cbranch_scc1 L_p1_comp")
    a("s_mov_b64 exec, 0xfff")
    a("buffer_load_dword v%d, v%d, s[28:31], s%d offen" % (V_T + 6, V_T, S_T0))
    a("s_mov_b64 exec, -1")
    a("s_mul_i32 s%d, s%d, 6144" % (S_M0W, S_W3))
    a("s_add_u32 s%d, s%d, %d" % (S_M0W, S_M0W, WB))
    log = ["p"]
    x_issue(0)
    x_issue(1)
    log += ["x0"] * 2 + ["x1"] * 2
    w_issue(0)
    log += ["w0"] * 6
    srd(a, 20, 8, WS_SIZE)
    a("s_mov_b32 s98, 256")
    a("s_mov_b32 s99, 0x00020000")
    LX = [64, 68]
    L_SX = 92
    a("s_lshl_b32 s54, s%d, 1" % S_HI)
    x_addr(53, 54)
    make_sel(a, V_LANE, V_SEL, V_T)
    for r in list(range(V_SQ, V_SQ + 4)) + list(range(L_SX, L_SX + 4)):
        a("v_mov_b32 v%d, 0" % r)
    w_issue(1)
    x_issue(4)
    log += ["w1"] * 6 + ["x4"] * 2
    for jj in range(8):
        last = max(k for k, t in enumerate(log) if t in ("w%d" % jj, "x%d" % jj))
        a("s_waitcnt vmcnt(%d)" % (len(log) - 1 - last))
        a.tsv("%d" % jj)
        a("s_barrier")
        for ks in range(2):
            a("ds_read_b128 %s, v%d offset:%d" % (vr(LX[ks]), V_AX + ks, jj * 8192))
        if jj + 2 <= 7:
            w_issue(jj + 2)
            log += ["w%d" % (jj + 2)] * 6
        if jj + 5 <= 7:
            x_issue(jj + 5)
            log += ["x%d" % (jj + 5)] * 2
        if jj == 5 and "q" in PRET:
            a("s_lshr_b32 s%d, s%d, 1" % (S_T0, S_W3))
            a("s_lshl_b32 s%d, s%d, 1" % (S_T1, S_MEM))
            a("s_add_u32 s%d, s%d, s%d" % (S_T0, S_T0, S_T1))
            a("s_lshl_b32 s%d, s%d, 10" % (S_T0, S_T0))
            a("s_lshl_b32 s%d, s%d, 1" % (S_T1, S_TEAM))
            a("s_add_u32 s%d, s%d, s%d" % (S_T1, S_T1, S_TBH))
            a("s_lshl_b32 s%d, s%d, 17" % (S_T1, S_T1))
            a("s_add_u32 s%d, s%d, s%d" % (S_T0, S_T0, S_T1))
            for k, off in enumerate((WS_K, WS_K + 65536, WS_V, WS_V + 65536, WS_Q, WS_Q + 65536)):
                a("s_add_u32 s%d, s%d, %d" % (S_T1, S_T0, off))
                a("buffer_load_dwordx4 %s, v%d, s[20:23], s%d offen sc1" % (vr(160 + 4 * k), V_L16, S_T1))
            log += ["q"] * 6
        for ks in range(2):
            a("s_waitcnt lgkmcnt(%d)" % (1 - ks))
            for d in range(4):
                a("v_lshlrev_b32 v%d, 16, v%d" % (V_TMP + 2 * d, LX[ks] + d))
                a("v_and_b32 v%d, s%d, v%d" % (V_TMP + 2 * d + 1, S_MASK, LX[ks] + d))
            for d in range(8):
                a("v_fmac_f32 v%d, v%d, v%d" % (V_SQ + d % 4, V_TMP + d, V_TMP + d))
        for ks in range(2):
            a("v_mfma_f32_16x16x32_bf16 %s, %s, %s, %s" % (vr(L_SX), vr(V_SEL), vr(LX[ks]), vr(L_SX)))
    a("s_nop 1")
    a("v_add_f32 v%d, v%d, v%d" % (V_SQ, V_SQ, V_SQ + 1))
    a("v_add_f32 v%d, v%d, v%d" % (V_SQ + 2, V_SQ + 2, V_SQ + 3))
    a("v_add_f32 v%d, v%d, v%d" % (V_SQ, V_SQ, V_SQ + 2))
    sum_halves(a, V_SQ, V_SQ + 1)
    a("v_mov_b32 v%d, v%d" % (V_SQ + 1, L_SX))
    SCR_PX = SCR + 4096
    a("s_lshl_b32 s%d, s%d, 9" % (S_T0, S_TBH))
    a("s_add_u32 s%d, s%d, %d" % (S_T0, S_T0, SCR_PX))
    a("v_lshl_add_u32 v%d, v%d, 3, s%d" % (V_T + 3, V_LANE, S_T0))
    a("s_cmp_lt_u32 s%d, 2" % S_WAVE)
    a("s_cbranch_scc1 L_p1_fin")
    a("ds_write_b64 v%d, %s" % (V_T + 3, vr(V_SQ, 2)))
    a("s_waitcnt lgkmcnt(0)")
    a("s_barrier")
    a("s_branch L_p1_hx")
    a.label("L_p1_fin")
    a("v_and_b32 v%d, 31, v%d" % (V_T, V_LANE))
    a("v_lshlrev_b32 v%d, 2, v%d" % (V_T, V_T))
    a("s_barrier")
    a("ds_read_b64 %s, v%d" % (vr(V_SQ + 2, 2), V_T + 3))
    a("s_lshl_b32 s%d, s%d, 7" % (S_T0, S_W3))
    a("s_add_u32 s%d, s%d, %d" % (S_T0, S_T0, SCR_RS))
    a("v_add_u32 v%d, s%d, v%d" % (V_T + 2, S_T0, V_T))
    a("s_lshl_b32 s%d, s%d, 9" % (S_T0, S_W3))
    a("s_add_u32 s%d, s%d, %d" % (S_T0, S_T0, SCR_BF))
    a("v_lshl_add_u32 v%d, v%d, 3, s%d" % (V_T + 3, V_LANE, S_T0))
    a("s_waitcnt lgkmcnt(0)")
    a("v_add_f32 v%d, v%d, v%d" % (V_SQ, V_SQ, V_SQ + 2))
    a("v_add_f32 v%d, v%d, v%d" % (V_SQ + 1, V_SQ + 1, V_SQ + 3))
    V_MU, V_RS = V_SQ + 2, V_SQ + 3
    a("v_mul_f32 v%d, 0x%x, v%d" % (V_MU, f32bits(1.0 / 512), V_SQ + 1))
    a("v_mul_f32 v%d, 0x%x, v%d" % (V_SQ, f32bits(1.0 / 512), V_SQ))
    a("v_fma_f32 v%d, -v%d, v%d, v%d" % (V_SQ, V_MU, V_MU, V_SQ))
    a("v_max_f32 v%d, 0, v%d" % (V_SQ, V_SQ))
    a("v_add_f32 v%d, 0x%x, v%d" % (V_SQ, f32bits(1e-5), V_SQ))
    a("v_rsq_f32 v%d, v%d" % (V_RS, V_SQ))
    a("v_sub_f32 v%d, 0, v%d" % (V_MU, V_MU))
    split_hi_lo_B(a, V_MU, LX[0], V_T + 4, S_MASK)
    a("ds_write_b32 v%d, v%d" % (V_T + 2, V_RS))
    a("ds_write_b64 v%d, %s" % (V_T + 3, vr(LX[0], 2)))
    a("s_waitcnt lgkmcnt(0)")
    a.label("L_p1_hx")
    a("s_barrier")
    team_check(a, "h", FV_L4, FV_F)
    a("s_cmp_lg_u32 s%d, 0" % S_WAVE)
    a("s_cbranch_scc1 L_p1_done")
    a("s_lshl_b32 s%d, s%d, 9" % (T_A, S_TEAM))
    a("s_bfe_u32 s%d, s%d, 0x10001" % (T_B, S_H))
    a("s_lshl_b32 s%d, s%d, 8" % (T_B, T_B))
    a("s_add_u32 s%d, s%d, s%d" % (T_A, T_A, T_B))
    a("s_add_u32 s%d, s%d, %d" % (T_A, T_A, FL_1))
    poll(a, "f1", T_A, 64, FV_L4, FV_F)
    a("s_branch L_p1_done")
    a.label("L_p1_comp")
    a("v_mov_b32 v200, v%d" % V_DX)
    a("v_mov_b32 v201, v%d" % (V_DX + 1))
    a("s_lshr_b32 s%d, s%d, 1" % (S_TBI, S_W3))
    a("s_and_b32 s%d, s%d, 1" % (S_G, S_W3))
    a("s_lshl_b32 s%d, s%d, 12" % (S_T0, S_TBI))
    a("s_lshl_b32 s%d, s%d, 1" % (S_T1, S_TBI))
    x_addr(S_T0, S_T1)
    a("v_bfe_u32 v%d, v%d, 2, 2" % (V_T, V_LANE))
    a("v_lshlrev_b32 v%d, 7, v%d" % (V_T + 1, V_T))
    a("v_lshrrev_b32 v%d, 1, v%d" % (V_T, V_T))
    a("v_xor_b32 v%d, s%d, v%d" % (V_T, S_G, V_T))
    a("v_lshl_add_u32 v%d, v%d, 6, v%d" % (V_T + 1, V_T, V_T + 1))
    a("v_bfe_u32 v%d, v%d, 4, 1" % (V_T, V_LANE))
    a("v_lshl_add_u32 v%d, v%d, 5, v%d" % (V_T + 1, V_T, V_T + 1))
    a("v_and_b32 v%d, 3, v%d" % (V_T, V_LANE))
    a("v_lshl_add_u32 v%d, v%d, 3, v%d" % (V_T + 1, V_T, V_T + 1))
    a("v_lshrrev_b32 v%d, 5, v%d" % (V_T + 2, V_LANE))
    a("v_mul_u32_u24 v%d, 3072, v%d" % (V_T, V_T + 2))
    a("v_add_u32 v%d, v%d, v%d" % (V_T + 1, V_T + 1, V_T))
    for p in range(2):
        a("s_xor_b32 s%d, s%d, %d" % (S_T0, S_TBI, p))
        a("s_mul_i32 s%d, s%d, 6144" % (S_T0, S_T0))
        a("s_add_u32 s%d, s%d, %d" % (S_T0, S_T0, WB))
        a("v_add_u32 v%d, s%d, v%d" % (V_AW + p, S_T0, V_T + 1))
    make_sel(a, V_LANE, V_SEL, V_T)
    V_ECW, V_ECS, V_ERS, V_ERV, V_EBF, V_OV = 10, 11, 12, 13, 14, 21
    a("v_and_b32 v%d, 31, v%d" % (V_T, V_LANE))
    a("v_lshlrev_b32 v%d, 2, v%d" % (V_T, V_T))
    a("s_mul_i32 s%d, s%d, 768" % (S_T0, S_G))
    a("s_add_u32 s%d, s%d, %d" % (S_T0, S_T0, SCR_CS))
    a("v_mul_u32_u24 v%d, 384, v%d" % (V_T + 3, V_T + 2))
    a("v_add3_u32 v%d, v%d, v%d, s%d" % (V_ECS, V_T + 3, V_T, S_T0))
    a("s_mul_i32 s%d, s%d, 384" % (S_T1, S_TBI))
    a("s_add_u32 s%d, s%d, s%d" % (S_T0, S_T0, S_T1))
    a("v_add_u32 v%d, s%d, v%d" % (V_ECW, S_T0, V_T))
    a("s_lshl_b32 s%d, s%d, 7" % (S_T0, S_TBI))
    a("s_add_u32 s%d, s%d, %d" % (S_T0, S_T0, SCR_RS))
    a("v_add_u32 v%d, s%d, v%d" % (V_ERS, S_T0, V_T))
    a("v_lshl_add_u32 v%d, v%d, 4, s%d" % (V_ERV, V_T + 2, S_T0))
    a("s_lshl_b32 s%d, s%d, 9" % (S_T0, S_TBI))
    a("s_add_u32 s%d, s%d, %d" % (S_T0, S_T0, SCR_BF))
    a("v_lshl_add_u32 v%d, v%d, 3, s%d" % (V_EBF, V_LANE, S_T0))
    a("v_bfe_u32 v%d, v%d, 4, 1" % (V_T + 1, V_LANE))
    a("v_lshlrev_b32 v%d, 16, v%d" % (V_T + 1, V_T + 1))
    a("v_lshl_add_u32 v%d, v%d, 8, v%d" % (V_T + 1, V_T + 2, V_T + 1))
    a("v_and_b32 v%d, 15, v%d" % (V_T + 2, V_LANE))
    a("v_lshl_add_u32 v%d, v%d, 4, v%d" % (V_OV, V_T + 2, V_T + 1))
    a("s_lshl_b32 s%d, s%d, 1" % (S_T0, S_MEM))
    a("s_add_u32 s%d, s%d, s%d" % (S_T0, S_T0, S_TBI))
    a("s_lshl_b32 s%d, s%d, 10" % (S_T0, S_T0))
    a("s_lshl_b32 s%d, s%d, 1" % (S_T1, S_TEAM))
    a("s_add_u32 s%d, s%d, s%d" % (S_T1, S_T1, S_G))
    a("s_lshl_b32 s%d, s%d, 17" % (S_T1, S_T1))
    a("s_add_u32 s%d, s%d, s%d" % (S_O0, S_T0, S_T1))
    a("s_add_u32 s%d, s%d, 65536" % (S_O1, S_O0))
    a("s_add_u32 s%d, s%d, %d" % (S_O2, S_O0, WS_K))
    a("s_add_u32 s%d, s%d, %d" % (S_O3, S_O1, WS_K))
    a("s_add_u32 s%d, s%d, %d" % (S_O4, S_O0, WS_V))
    VB = V_TMP
    VA = [V_TMP + 4, V_TMP + 8, V_TMP + 12]
    for r in (VB + 2, VB + 3):
        a("v_mov_b32 v%d, 0" % r)
    a("s_waitcnt lgkmcnt(0)")
    srd(a, 20, 8, WS_SIZE)
    a("s_mov_b32 s98, 256")
    a("s_mov_b32 s99, 0x00020000")
    pret = []
    if "t" in PRET:
        a("v_lshlrev_b32 v202, 20, v%d" % V_LANE)
        a("s_cmp_lg_u32 s%d, 5" % S_WAVE)
        a("s_cbranch_scc1 L_p1_t6")
        a("buffer_load_dword v203, v202, s[20:23], 0 offen")
        a.label("L_p1_t6")
        a("s_cmp_lg_u32 s%d, 6" % S_WAVE)
        a("s_cbranch_scc1 L_p1_t7")
        for k, (sp, nb) in enumerate(((16, 2048 * 1024), (4, 512 * 1024), (6, 1792 * 1024))):
            srd(a, 32, sp, nb)
            a("buffer_load_dword v%d, v202, s[32:35], 0 offen" % (203 + k))
        a.label("L_p1_t7")
        a("s_cmp_lg_u32 s%d, 7" % S_WAVE)
        a("s_cbranch_scc1 L_p1_t8")
        for k, (sp, nb) in enumerate(((24, 512 * 3584), (26, 512 * 3584))):
            srd(a, 32, sp, nb)
            a("buffer_load_dword v%d, v202, s[32:35], 0 offen" % (203 + k))
        a.label("L_p1_t8")
    V_DX_SAVE, V_DX = V_DX, 200
    x_issue(2)
    x_issue(3)
    V_DX = V_DX_SAVE
    a("s_cmp_lg_u32 s%d, 4" % S_WAVE)
    a("s_cbranch_scc1 L_p1_nz")
    Z = V_TMP + 20
    a("v_and_b32 v%d, 1, v%d" % (Z, V_LANE))
    a("v_bfe_u32 v%d, v%d, 1, 1" % (Z + 1, V_LANE))
    a("v_bfe_u32 v%d, v%d, 2, 1" % (Z + 2, V_LANE))
    a("v_bfe_u32 v%d, v%d, 1, 2" % (Z + 3, V_LANE))
    a("s_lshl_b32 s36, s%d, 10" % S_QB)
    a("s_lshl_b32 s37, s%d, 2" % S_H)
    a("s_add_u32 s36, s36, s37")
    a("v_lshl_add_u32 v%d, v%d, 8, s36" % (Z + 4, Z + 3))
    a("v_lshl_add_u32 v%d, v%d, 7, v%d" % (Z + 4, Z, Z + 4))
    a("s_and_b32 s36, s%d, 3" % S_MEM)
    a("s_lshl_b32 s37, s%d, 2" % S_TEAM)
    a("s_add_u32 s38, s36, s37")
    a("s_lshl_b32 s36, s38, 8")
    a("s_lshr_b32 s37, s%d, 2" % S_MEM)
    a("s_lshl_b32 s39, s37, 4")
    a("s_add_u32 s36, s36, s39")
    a("s_add_u32 s36, s36, %d" % (FL_B - WS_FL))
    a("v_lshl_add_u32 v%d, v%d, 7, s36" % (Z + 5, Z + 1))
    a("v_lshl_add_u32 v%d, v%d, 3, v%d" % (Z + 5, Z, Z + 5))
    a("v_lshl_add_u32 v%d, v%d, 2, v%d" % (Z + 5, Z + 2, Z + 5))
    a("s_lshr_b32 s36, s38, 1")
    a("s_lshl_b32 s36, s36, 8")
    a("s_lshl_b32 s37, s37, 1")
    a("s_and_b32 s39, s%d, 1" % S_MEM)
    a("s_add_u32 s37, s37, s39")
    a("s_lshl_b32 s37, s37, 2")
    a("s_add_u32 s36, s36, s37")
    a("s_add_u32 s36, s36, %d" % (FL_C - WS_FL))
    a("v_lshl_add_u32 v%d, v%d, 7, s36" % (Z + 6, Z + 1))
    a("v_lshl_add_u32 v%d, v%d, 6, v%d" % (Z + 6, Z, Z + 6))
    a("s_lshl_b32 s36, s2, 4")
    a("s_add_u32 s36, s36, %d" % (FL_P - WS_FL))
    a("v_and_b32 v%d, 3, v%d" % (Z + 7, V_LANE))
    a("v_lshl_add_u32 v%d, v%d, 2, s36" % (Z + 7, Z + 7))
    a("v_cmp_ne_u32 vcc, 0, v%d" % (Z + 2))
    a("s_lshl_b32 s36, s%d, 9" % S_TEAM)
    a("s_lshl_b32 s37, s%d, 3" % S_MEM)
    a("s_add_u32 s36, s36, s37")
    a("s_add_u32 s36, s36, %d" % (FL_1 - WS_FL))
    a("v_cndmask_b32 v%d, v%d, v%d, vcc" % (Z + 6, Z + 6, Z + 7))
    a("v_lshl_add_u32 v%d, v%d, 8, s36" % (Z + 7, Z))
    a("v_lshl_add_u32 v%d, v%d, 2, v%d" % (Z + 7, Z + 1, Z + 7))
    a("v_mov_b32 v%d, v%d" % (V_T, Z + 4))
    for k in range(1, 4):
        a("v_cmp_le_u32 vcc, %d, v%d" % (8 * k, V_LANE))
        a("s_nop 1")
        a("v_cndmask_b32 v%d, v%d, v%d, vcc" % (V_T, V_T, Z + 4 + k))
    a("v_mov_b32 v%d, 0" % (V_T + 1))
    a("s_mov_b32 s%d, %d" % (S_T0, WS_FL))
    a("s_mov_b64 exec, 0xffffffff")
    a("buffer_store_dword v%d, v%d, s[20:23], s%d offen sc1" % (V_T + 1, V_T, S_T0))
    a("s_mov_b64 exec, -1")
    a.label("L_p1_nz")
    cur_base = [0]

    lds = Lds(a)
    NB = 3
    V_X = [32, 36, 184]
    V_W = [[40, 44, 48], [52, 56, 60], [188, 192, 196]]

    def reads(P):
        st, pos = P // 4, P % 4
        out = []
        b = P % NB
        out.append(("ds_read_b128 %s, v%d offset:%d" % (vr(V_X[b]), V_AX + pos, st * 8192), ("x", P)))
        for sx in range(3):
            for rd in range(2):
                out.append(("ds_read_b64_tr_b16 %s, v%d offset:%d" % (vr(V_W[b][sx] + 2 * rd, 2), V_AW + (pos & 1), (st % 3) * WSL + (pos & 2) * 6144 + sx * 1024 + rd * 512), ("w", P, sx, rd)))
        return out

    def emit(items):
        for t, tag in items:
            lds.op(t, tag) if tag else a(t)

    a.tsv("0")
    a("s_barrier")
    a.ts("k2")
    a.ts("kp_")
    emit(reads(0))
    emit(reads(1))
    for P in range(32):
        st, pos = P // 4, P % 4
        b = P % NB
        if P == 11:
            a("s_cmp_lg_u32 s%d, 4" % S_WAVE)
            a("s_cbranch_scc1 L_p1_np")
            a("s_lshl_b32 s%d, s%d, 5" % (S_T0, S_TEAM))
            a("s_add_u32 s%d, s%d, s%d" % (S_T0, S_T0, S_MEM))
            a("v_mov_b32 v%d, 0" % (V_T + 1))
            a("v_mov_b32 v%d, s%d" % (V_T + 2, S_XCC))
            a("s_mov_b64 exec, 1")
            a("s_waitcnt vmcnt(0)")
            a("buffer_store_byte v%d, v%d, s[96:99], s%d offen sc1" % (V_T + 2, V_T + 1, S_T0))
            a("s_mov_b64 exec, -1")
            a.label("L_p1_np")
        X = vr(V_X[b])
        c = lambda r, n=16: ("0" if P == 0 else vr(r, n))
        m = []
        m.append(("v_mfma_f32_32x32x16_bf16 %s, %s, %s, %s" % (vr(V_ACC[0], 16), vr(V_W[b][0]), X, c(V_ACC[0])), [("x", P), ("w", P, 0, 1)]))
        m.append(("v_mfma_f32_32x32x16_bf16 %s, %s, %s, %s" % (vr(V_ACC[1], 16), vr(V_W[b][1]), X, c(V_ACC[1])), [("w", P, 1, 1)]))
        m.append(("v_mfma_f32_32x32x16_bf16 %s, %s, %s, %s" % (vr(V_ACC[2], 16), X, vr(V_W[b][2]), c(V_ACC[2])), [("w", P, 2, 1)]))
        if pos % 2 == 0:
            for sx in range(3):
                m.append(("v_mfma_f32_16x16x32_bf16 %s, %s, %s, %s" % (vr(V_CS[sx]), vr(V_SEL), vr(V_W[b][sx]), c(V_CS[sx], 4)), [("w", P, sx, 1)]))
        bar = pos == 2 and P + 2 < 32
        rd = None
        extra = []
        if P == 28:
            extra = [("s_lshl_b32 s38, s%d, 5" % S_TEAM, None), ("buffer_load_dword v%d, v%d, s[96:99], s38 offen sc1" % (FV_F, FV_L4), None)]
        if 4 <= P < 4 + len(pret):
            extra = [(pret[P - 4], None)]
        for k, (t, need) in enumerate(m):
            lds.need(*need)
            if DIAG != "nomfma":
                a(t)
            if k == 0:
                if bar:
                    lds.drain()
                    if st == 1:
                        a("s_cmp_lg_u32 s%d, 4" % S_WAVE)
                        a("s_cbranch_scc1 L_p1_w0")
                        a("s_waitcnt vmcnt(1)")
                        a("s_branch L_p1_w1")
                        a.label("L_p1_w0")
                        a("s_waitcnt vmcnt(0)")
                        a.label("L_p1_w1")
                    a.tsv("%d" % (st + 1))
                    a("s_barrier")
                    a.ts("kp_")
                if P == 30:
                    a("s_barrier")
                rd = (reads(P + 2) if P + 2 < 32 else []) + extra
            n = 4 if len(rd) > 8 else 3
            emit(rd[:n])
            rd = rd[n:]
        emit(rd)
    a("s_nop 3")
    for sx in range(3):
        a("ds_write_b32 v%d, v%d offset:%d" % (V_ECW, V_CS[sx], sx * 128))
    a.ts("k2")
    a("s_waitcnt lgkmcnt(0)")
    a("s_barrier")
    a.ts("kp_")
    VC = V_TMP + 16
    V_RS = V_TMP + 22
    V_RQ = V_TMP + 23
    VR = V_TMP + 24
    for sx in range(3):
        a("ds_read_b32 v%d, v%d offset:%d" % (VC + sx, V_ECS, sx * 128))
    a("ds_read_b64 %s, v%d" % (vr(VB, 2), V_EBF))
    a("ds_read_b32 v%d, v%d" % (V_RS, V_ERS))
    for q in range(4):
        a("ds_read_b128 %s, v%d offset:%d" % (vr(VR + 4 * q), V_ERV, q * 32))
    for sx in range(3):
        a("s_waitcnt lgkmcnt(%d)" % (8 - sx))
        split_hi_lo_A(a, VC + sx, VA[sx], V_T + 4, S_MASK)
    a("s_waitcnt lgkmcnt(4)")
    a("v_mul_f32 v%d, 0x%x, v%d" % (V_RQ, f32bits(0.25 * math.log2(math.e)), V_RS))
    a("v_mfma_f32_32x32x16_bf16 %s, %s, %s, %s" % (vr(V_ACC[0], 16), vr(VA[0]), vr(VB), vr(V_ACC[0], 16)))
    a("v_mfma_f32_32x32x16_bf16 %s, %s, %s, %s" % (vr(V_ACC[1], 16), vr(VA[1]), vr(VB), vr(V_ACC[1], 16)))
    a("v_mfma_f32_32x32x16_bf16 %s, %s, %s, %s" % (vr(V_ACC[2], 16), vr(VB), vr(VA[2]), vr(V_ACC[2], 16)))
    team_check(a, "c", FV_L4, FV_F, preissued=True)
    VO = V_X[0]
    k = 0
    stores = []
    for blk, sc, soffs in ((1, V_RS, (S_O2, S_O3)), (0, V_RQ, (S_O0, S_O1))):
        for half in range(2):
            o = VO + 4 * k
            k += 1
            for i in range(8):
                r = V_ACC[blk] + 8 * half + i
                a("v_mul_f32 v%d, v%d, v%d" % (r, sc, r))
            for i in range(4):
                r = V_ACC[blk] + 8 * half + 2 * i
                a("v_cvt_pk_bf16_f32 v%d, v%d, v%d" % (o + i, r, r + 1))
            stores.append("buffer_store_dwordx4 %s, v%d, s[20:23], s%d offen" % (vr(o), V_L16, soffs[half]))
        hstore(a, "p1%d" % blk, stores)
        stores = []
    a("s_waitcnt lgkmcnt(0)")
    for half in range(2):
        o = VO + 4 * k
        k += 1
        for i in range(8):
            r = V_ACC[2] + 8 * half + i
            a("v_mul_f32 v%d, v%d, v%d" % (r, VR + 8 * half + i, r))
        for i in range(4):
            r = V_ACC[2] + 8 * half + 2 * i
            a("v_cvt_pk_bf16_f32 v%d, v%d, v%d" % (o + i, r, r + 1))
        stores.append("buffer_store_dwordx4 %s, v%d, s[20:23], s%d offen offset:%d" % (vr(o), V_OV, S_O4, half * 512))
    hstore(a, "p1v", stores)
    a("s_lshl_b32 s%d, s%d, 9" % (T_A, S_TEAM))
    a("s_lshl_b32 s%d, s%d, 8" % (T_B, S_G))
    a("s_add_u32 s%d, s%d, s%d" % (T_A, T_A, T_B))
    a("s_lshl_b32 s%d, s%d, 1" % (T_B, S_MEM))
    a("s_add_u32 s%d, s%d, s%d" % (T_B, T_B, S_TBI))
    a("s_lshl_b32 s%d, s%d, 2" % (T_B, T_B))
    a("s_add_u32 s%d, s%d, s%d" % (T_A, T_A, T_B))
    a("s_add_u32 s%d, s%d, %d" % (T_A, T_A, FL_1))
    a("s_waitcnt vmcnt(0)")
    set_flag(a, T_A, V_T, "f1")
    a.ts_flush("kp_", S_WAVE, V_T)
    a.label("L_p1_done")
    a.tsv("9")
    a.tsv_flush(S_WAVE)


def gen_f(a):
    name = NAME + "_kernel"
    kernel_begin(a, name)
    S_WAVE, S_H, S_QB, S_T0, S_T1, S_T2, S_T3 = 40, 41, 42, 43, 44, 45, 46
    S_ITER, S_SYNC, S_PASS, S_NT = 47, 48, 49, 50
    S_TASK, S_STG, S_DST0, S_DST1, S_TYPE = 51, 52, 53, 54, 55
    S_VMASK = 56
    S_CS = 58
    S_KB, S_W1K, S_CH = 59, 60, 61
    S_PE, S_PO, S_PS = 36, 37, 38
    V_LANE, V_L16, V_T = 1, 2, 3
    V_KA, V_VA = 10, 11
    V_Q = 12
    V_K = [16, 20]
    V_V = [24, 32]
    V_P = 40
    V_CM = 48
    V_S = [64, 80]
    V_O = 96
    V_MAX = 112
    V_PK = 113
    V_PD = 114
    V_SEL = 116
    V_PCS = [120, 124]
    STG = 131072
    a("s_cmp_ge_u32 s2, 256")
    a("s_cbranch_scc1 L_f_end")
    a.ts("k2")
    a.ts("kp_")
    pass
    a("s_load_dwordx2 s[8:9], s[0:1], %d" % ARG_WS)
    a("s_load_dwordx2 s[4:5], s[0:1], %d" % ARG_WO)
    a("s_load_dwordx4 s[24:27], s[0:1], %d" % ARG_WG)
    a("s_load_dwordx2 s[6:7], s[0:1], %d" % ARG_WD)
    a("s_load_dwordx2 s[10:11], s[0:1], %d" % ARG_X)
    a("s_load_dwordx2 s[16:17], s[0:1], %d" % ARG_OUT)
    a("s_load_dwordx2 s[100:101], s[0:1], %d" % ARG_WQKV)
    a("s_load_dwordx2 s[96:97], s[0:1], %d" % ARG_DBG)
    a("v_lshrrev_b32 v%d, 6, v0" % V_T)
    a("v_and_b32 v%d, 63, v0" % V_LANE)
    a("v_readfirstlane_b32 s%d, v%d" % (S_WAVE, V_T))
    a("v_lshlrev_b32 v%d, 4, v%d" % (V_L16, V_LANE))
    a("s_lshr_b32 s%d, s2, 3" % S_MEM)
    a("s_and_b32 s%d, s2, 7" % S_TEAM)
    if AMAP:
        a("s_lshr_b32 s%d, s2, 3" % S_H)
        a("s_and_b32 s%d, s2, 7" % S_QB)
    else:
        a("s_and_b32 s%d, s2, 7" % S_H)
        a("s_lshl_b32 s%d, s%d, 2" % (S_H, S_H))
        a("s_lshr_b32 s%d, s2, 6" % S_T0)
        a("s_add_u32 s%d, s%d, s%d" % (S_H, S_H, S_T0))
        a("s_lshr_b32 s%d, s2, 3" % S_QB)
        a("s_and_b32 s%d, s%d, 7" % (S_QB, S_QB))
    a("s_lshr_b32 s%d, s%d, 2" % (S_T0, S_WAVE))
    a("s_lshl_b32 s%d, s%d, 8" % (S_T0, S_T0))
    a("v_xor_b32 v%d, s%d, v%d" % (FV_LX, S_T0, V_L16))
    a("v_lshlrev_b32 v%d, 2, v%d" % (FV_L4, V_LANE))
    a("v_mov_b32 v%d, 0" % (FV_F + 3))
    a("v_lshlrev_b32 v%d, 3, v%d" % (FV_L8, V_LANE))
    a("s_getreg_b32 s%d, hwreg(HW_REG_XCC_ID)" % S_XCC)
    a("s_and_b32 s%d, s%d, 15" % (S_XCC, S_XCC))
    a("s_add_u32 s%d, s%d, 1" % (S_XCC, S_XCC))
    phase1(a, locals())
    a("s_lshl_b32 s%d, s%d, 16" % (S_KB, S_H))
    a("s_lshl_b32 s%d, s%d, 10" % (S_W1K, S_WAVE))
    a("s_add_u32 s%d, s%d, s%d" % (S_KB, S_KB, S_W1K))
    a("s_lshl_b32 s%d, s%d, 13" % (S_CH, S_QB))
    a("s_add_u32 s%d, s%d, s%d" % (S_T3, S_KB, S_CH))
    a("s_add_u32 s%d, s%d, %d" % (S_KB, S_KB, WS_K))
    if not K2_ROT:
        a("s_mov_b32 s%d, 0" % S_CH)
    a("s_mov_b32 s39, s%d" % S_T3)

    def kv_dma(c):
        return [["s_add_u32 s%d, s%d, s%d" % (S_T3, S_KB, S_CH),
                 "s_add_u32 m0, s%d, %d" % (S_W1K, c * 8192),
                 "s_add_u32 s%d, s%d, 8192" % (S_CH, S_CH),
                 "buffer_load_dwordx4 v%d, s[20:23], s%d offen sc1 lds" % (V_L16, S_T3)],
                ["s_add_u32 s%d, s%d, %d" % (S_T3, S_T3, WS_V - WS_K),
                 "s_add_u32 m0, s%d, %d" % (S_W1K, 65536 + c * 8192),
                 "s_and_b32 s%d, s%d, 0xffff" % (S_CH, S_CH),
                 "buffer_load_dwordx4 v%d, s[20:23], s%d offen sc1 lds" % (V_L16, S_T3)]]

    a("s_mov_b32 s%d, 0" % S_TYPE)
    a("s_cmp_ge_u32 s%d, %d" % (S_WAVE, 0 if DIAG == "nopack" else 4))
    a("s_cbranch_scc1 L_f_nopack")
    a("s_lshl_b32 s%d, s2, 2" % S_TASK)
    a("s_add_u32 s%d, s%d, s%d" % (S_TASK, S_TASK, S_WAVE))
    a("s_cmp_ge_u32 s%d, 736" % S_TASK)
    a("s_cbranch_scc1 L_f_nopack")
    a("s_lshl_b32 s%d, s%d, 13" % (S_STG, S_WAVE))
    a("s_add_u32 s%d, s%d, %d" % (S_STG, S_STG, STG))
    a("v_lshrrev_b32 v%d, 2, v%d" % (V_T, V_LANE))
    a("v_and_b32 v%d, 3, v%d" % (V_T + 1, V_LANE))
    a("s_cmp_ge_u32 s%d, 448" % S_TASK)
    a("s_cbranch_scc1 L_f_packn")
    a("s_mov_b32 s%d, 1" % S_TYPE)
    srd(a, 28, 24, 512 * 3584)
    srd(a, 32, 26, 512 * 3584)
    a("v_mul_u32_u24 v%d, 3584, v%d" % (V_T, V_T))
    a("v_lshl_add_u32 v%d, v%d, 4, v%d" % (V_PD, V_T + 1, V_T))
    a("s_and_b32 s%d, s%d, 7" % (S_T0, S_TASK))
    a("s_lshr_b32 s%d, s%d, 3" % (S_T1, S_TASK))
    a("s_mul_i32 s%d, s%d, %d" % (S_PE, S_T0, 64 * 3584))
    a("s_lshl_b32 s%d, s%d, 6" % (S_T2, S_T1))
    a("s_add_u32 s%d, s%d, s%d" % (S_PE, S_PE, S_T2))
    a("s_mov_b32 s%d, s%d" % (S_PO, S_PE))
    a("s_mov_b32 s%d, %d" % (S_PS, 16 * 3584))
    for hb, sd in ((0, S_DST0), (1, S_DST1)):
        a("s_lshl_b32 s%d, s%d, 1" % (S_T2, S_T1))
        if hb:
            a("s_add_u32 s%d, s%d, 1" % (S_T2, S_T2))
        a("s_mul_i32 s%d, s%d, 9363" % (S_CS, S_T2))
        a("s_lshr_b32 s%d, s%d, 16" % (S_CS, S_CS))
        a("s_mul_i32 s%d, s%d, 7" % (sd, S_CS))
        a("s_sub_u32 s%d, s%d, s%d" % (sd, S_T2, sd))
        a("s_mul_i32 s%d, s%d, %d" % (S_CS, S_CS, 32 * 7))
        a("s_add_u32 s%d, s%d, s%d" % (sd, sd, S_CS))
        a("s_mul_i32 s%d, s%d, 28" % (S_CS, S_T0))
        a("s_add_u32 s%d, s%d, s%d" % (sd, sd, S_CS))
        a("s_lshl_b32 s%d, s%d, 10" % (sd, sd))
        a("s_add_u32 s%d, s%d, %d" % (sd, sd, WS_GU))
    a("s_lshl_b32 s%d, s%d, 11" % (S_CS, S_T1))
    a("s_lshr_b32 s%d, s%d, 2" % (S_T2, S_T0))
    a("s_lshl_b32 s%d, s%d, 9" % (S_T2, S_T2))
    a("s_add_u32 s%d, s%d, s%d" % (S_CS, S_CS, S_T2))
    a("s_and_b32 s%d, s%d, 3" % (S_T2, S_T0))
    a("s_lshl_b32 s%d, s%d, 2" % (S_T2, S_T2))
    a("s_add_u32 s%d, s%d, s%d" % (S_CS, S_CS, S_T2))
    a("s_add_u32 s%d, s%d, %d" % (S_CS, S_CS, WS_CS))
    a("s_branch L_f_nopack")
    a.label("L_f_packn")
    a("s_mov_b32 s%d, 2" % S_TYPE)
    a("v_lshlrev_b32 v%d, 10, v%d" % (V_T, V_T))
    a("v_lshl_add_u32 v%d, v%d, 4, v%d" % (V_PD, V_T + 1, V_T))
    a("s_cmp_ge_u32 s%d, 512" % S_TASK)
    a("s_cbranch_scc1 L_f_packd")
    srd(a, 28, 4, 512 * 1024)
    srd(a, 32, 4, 512 * 1024)
    a("s_sub_u32 s%d, s%d, 448" % (S_T0, S_TASK))
    a("s_lshr_b32 s%d, s%d, 2" % (S_T1, S_T0))
    a("s_and_b32 s%d, s%d, 3" % (S_T0, S_T0))
    a("s_lshl_b32 s%d, s%d, 15" % (S_DST0, S_T1))
    a("s_add_u32 s%d, s%d, %d" % (S_DST0, S_DST0, WS_WO))
    a("s_branch L_f_packc")
    a.label("L_f_packd")
    srd(a, 28, 6, 1792 * 1024)
    srd(a, 32, 6, 1792 * 1024)
    a("s_sub_u32 s%d, s%d, 512" % (S_T0, S_TASK))
    a("s_mul_i32 s%d, s%d, 4682" % (S_T1, S_T0))
    a("s_lshr_b32 s%d, s%d, 16" % (S_T1, S_T1))
    a("s_mul_i32 s%d, s%d, 14" % (S_T2, S_T1))
    a("s_sub_u32 s%d, s%d, s%d" % (S_T0, S_T0, S_T2))
    a("s_mul_i32 s%d, s%d, %d" % (S_DST0, S_T1, 112 * 1024))
    a("s_add_u32 s%d, s%d, %d" % (S_DST0, S_DST0, WS_WD))
    a.label("L_f_packc")
    a("s_lshl_b32 s%d, s%d, 13" % (S_T2, S_T0))
    a("s_add_u32 s%d, s%d, s%d" % (S_DST0, S_DST0, S_T2))
    a("s_lshl_b32 s%d, s%d, 17" % (S_PE, S_T0))
    a("s_lshl_b32 s%d, s%d, 6" % (S_T2, S_T1))
    a("s_add_u32 s%d, s%d, s%d" % (S_PE, S_PE, S_T2))
    a("s_add_u32 s%d, s%d, 16384" % (S_PO, S_PE))
    a("s_mov_b32 s%d, 32768" % S_PS)
    a.label("L_f_nopack")
    a("s_mov_b32 s%d, 0x0000ffff" % S_VMASK)
    a("s_mov_b32 s%d, 0x0000ffff" % (S_VMASK + 1))
    a("v_and_b32 v%d, 27, v%d" % (V_T, V_LANE))
    a("v_cmp_eq_u32 vcc, 16, v%d" % V_T)
    a("v_mov_b32 v%d, 0x%x" % (V_T + 1, ONES_BF16))
    a("s_nop 1")
    a("v_cndmask_b32 v%d, 0, v%d, vcc" % (V_V[0], V_T + 1))
    for i in range(1, 16):
        a("v_mov_b32 v%d, v%d" % (V_V[0] + i, V_V[0]))
    a("s_mov_b32 s%d, 7" % S_SYNC)
    a("s_mov_b32 s%d, 0" % S_PASS)
    a("s_mov_b32 s%d, 1" % S_NT)
    a("s_setprio 3")
    a("s_barrier")
    if INSTR == "ka_":
        a("v_mov_b32 v250, 0")
    a.tsv("15", "ka_")
    a.ts("k2")
    a("buffer_load_dwordx4 %s, v%d, s[20:23], s39 offen sc1" % (vr(V_Q), V_L16))
    for c in range(2):
        for g in kv_dma(c):
            for l in g:
                a(l)
    a("s_waitcnt vmcnt(2)")
    pass
    a("s_barrier")
    a.ts("k2")
    pass
    a.label("L_f_maxpass")
    a("v_mov_b32 v%d, 0xff800000" % V_MAX)
    a("v_mov_b32 v%d, v%d" % (V_KA, V_L16))
    a.label("L_f_mloop")
    a("ds_read_b128 %s, v%d" % (vr(V_K[0]), V_KA))
    a("v_add_u32 v%d, 1024, v%d" % (V_KA, V_KA))
    a("s_waitcnt lgkmcnt(0)")
    a("v_mfma_f32_32x32x16_bf16 %s, %s, %s, 0" % (vr(V_S[0], 16), vr(V_K[0]), vr(V_Q)))
    a("s_nop 15")
    for i in range(8):
        a("v_max3_f32 v%d, v%d, v%d, v%d" % (V_MAX, V_S[0] + 2 * i, V_S[0] + 2 * i + 1, V_MAX))
    a("s_sub_u32 s%d, s%d, 1" % (S_NT, S_NT))
    a("s_cmp_lg_u32 s%d, 0" % S_NT)
    a("s_cbranch_scc1 L_f_mloop")
    a("v_mov_b32 v%d, v%d" % (V_KA, V_L16))
    a("v_lshrrev_b32 v%d, 5, v%d" % (V_T, V_LANE))
    a("v_lshlrev_b32 v%d, 8, v%d" % (V_T, V_T))
    a("v_and_b32 v%d, 15, v%d" % (V_T + 1, V_LANE))
    a("v_lshl_add_u32 v%d, v%d, 4, v%d" % (V_VA, V_T + 1, V_T))
    a("v_add_u32 v%d, 65536, v%d" % (V_VA, V_VA))
    a("ds_read_b128 %s, v%d" % (vr(V_K[0]), V_KA))
    a("ds_read_b128 %s, v%d offset:1024" % (vr(V_K[1]), V_KA))
    a("s_mov_b64 exec, s[%d:%d]" % (S_VMASK, S_VMASK + 1))
    a("ds_read_b128 %s, v%d" % (vr(V_V[0]), V_VA))
    a("ds_read_b128 %s, v%d offset:512" % (vr(V_V[0] + 4), V_VA))
    a("s_mov_b64 exec, -1")
    a("v_mov_b32 v%d, v%d" % (V_T, V_MAX))
    a("s_nop 1")
    a("v_permlane32_swap_b32 v%d, v%d" % (V_MAX, V_T))
    a("s_nop 1")
    a("v_max_f32 v%d, v%d, v%d" % (V_MAX, V_MAX, V_T))
    for i in range(16):
        a("v_sub_f32 v%d, 0, v%d" % (V_CM + i, V_MAX))
    a("s_waitcnt lgkmcnt(0)")
    a("s_nop 0")
    a("v_mfma_f32_32x32x16_bf16 %s, %s, %s, %s" % (vr(V_S[0], 16), vr(V_K[0]), vr(V_Q), vr(V_CM, 16)))
    for i in range(16):
        a("v_mov_b32 v%d, 0" % (V_O + i))
    for i in range(4):
        a("v_mov_b32 v%d, 0" % (V_P + 4 + i))
    a("s_mov_b32 s%d, 8" % S_ITER)
    a("s_cmp_lg_u32 s%d, 0" % S_PASS)
    a("s_cbranch_scc1 L_f_loop")

    def body(peeled):
        for t in range(8):
            cur, nxt = t % 2, (t + 1) % 2
            x1, x2 = [], []
            if peeled:
                if t < 6:
                    x1, x2 = kv_dma(t + 2)
                if t == 6:
                    a("s_waitcnt vmcnt(12)")
                    a("s_barrier")
                if t >= 6:
                    lab = "L_f_np%d" % t
                    x1 = ["s_cmp_eq_u32 s%d, 0" % S_TYPE, "s_cbranch_scc1 %s" % lab]
                    for i in range(4 * (t - 6), 4 * (t - 6) + 4):
                        x1 += ["s_add_u32 m0, s%d, %d" % (S_STG, i * 1024), "s_nop 0",
                               "buffer_load_dwordx4 v%d, s[%d:%d], s%d offen lds" % (V_PD, 28 + 4 * (i % 2), 31 + 4 * (i % 2), S_PO if i % 2 else S_PE),
                               "s_add_u32 s%d, s%d, s%d" % ((S_PO, S_PO, S_PS) if i % 2 else (S_PE, S_PE, S_PS))]
                    x1 += [lab + ":"]
            else:
                if t == 0:
                    for k, r in enumerate((5, 2, 1)):
                        x1 += ["s_cmp_lg_u32 s%d, %d" % (S_ITER, r), "s_cbranch_scc1 L_f_pp%d" % k, "s_setprio %d" % (2 - k), "L_f_pp%d:" % k]
                if t == 6:
                    a("s_cmp_eq_u32 s%d, s%d" % (S_ITER, S_SYNC))
                    a("s_cbranch_scc1 L_f_event")
                    a.label("L_f_syncret")
            S = V_S[cur]
            e = lambda i: "v_exp_f32 v%d, v%d" % (S + i, S + i)
            c = lambda i: "v_cvt_pk_bf16_f32 v%d, v%d, v%d" % (V_P + i, S + 2 * i, S + 2 * i + 1)
            pv = lambda b, h: "v_mfma_f32_32x32x16_bf16 %s, %s, %s, %s" % (vr(V_O, 16), vr(V_V[b] + 4 * h), vr(V_P + 4 * h), vr(V_O, 16))
            qk = "v_mfma_f32_32x32x16_bf16 %s, %s, %s, %s" % (vr(V_S[nxt], 16), vr(V_K[nxt]), vr(V_Q), vr(V_CM, 16))
            rdk = "ds_read_b128 %s, v%d offset:%d" % (vr(V_K[cur]), V_KA, (t + 2) * 1024)
            rdv = ["s_mov_b64 exec, s[%d:%d]" % (S_VMASK, S_VMASK + 1),
                   "ds_read_b128 %s, v%d offset:%d" % (vr(V_V[nxt]), V_VA, (t + 1) * 1024),
                   "ds_read_b128 %s, v%d offset:%d" % (vr(V_V[nxt] + 4), V_VA, (t + 1) * 1024 + 512),
                   "s_mov_b64 exec, -1"]
            seq = [e(0), e(1), pv(nxt, 1), e(2), "s_waitcnt lgkmcnt(0)", rdk, e(3)] + rdv + [c(0), e(4), e(5), c(1), e(6), e(7), qk, c(2), e(8)] + x1 + [e(9), c(3),
                   e(10), e(11), c(4), e(12), e(13), pv(cur, 0), c(5), e(14)] + x2 + [e(15), c(6)]
            if t == 7:
                seq += ["v_add_u32 v%d, 8192, v%d" % (V_KA, V_KA), "v_add_u32 v%d, 8192, v%d" % (V_VA, V_VA),
                        "s_sub_u32 s%d, s%d, 1" % (S_ITER, S_ITER), "s_cmp_lg_u32 s%d, 0" % S_ITER]
            seq += [c(7)]
            for l in seq:
                if l.endswith(":"):
                    a.label(l[:-1])
                else:
                    a(l)

    a.tsv("8", "ka_")
    body(True)
    a.raw(".p2align 6")
    a.label("L_f_loop")
    a.tsv("s%d" % S_ITER, "ka_")
    body(False)
    a("s_cbranch_scc1 L_f_loop")
    a.tsv("0", "ka_")
    a.tsv_flush(S_WAVE, "ka_")
    a("s_nop 1")
    a("v_mfma_f32_32x32x16_bf16 %s, %s, %s, %s" % (vr(V_O, 16), vr(V_V[1] + 4), vr(V_P + 4), vr(V_O, 16)))
    a("s_waitcnt lgkmcnt(0)")
    a("s_lshl_b32 s%d, s%d, 3" % (S_T0, S_QB))
    a("s_add_u32 s%d, s%d, s%d" % (S_T0, S_T0, S_WAVE))
    a("s_lshl_b32 s%d, s%d, 5" % (S_T0, S_T0))
    a("s_add_u32 s%d, s%d, s%d" % (S_T0, S_T0, S_H))
    a("s_lshl_b32 s%d, s%d, 10" % (S_T0, S_T0))
    a("s_add_u32 s%d, s%d, %d" % (S_T0, S_T0, WS_O))
    a("s_nop 7")
    a("v_mul_f32 v%d, 0, v%d" % (V_T, V_O))
    for i in range(1, 8):
        a("v_fmac_f32 v%d, 0, v%d" % (V_T, V_O + i))
    a("v_add_f32 v%d, v%d, v%d" % (V_T, V_T, V_O + 8))
    a("v_cmp_gt_f32 vcc, 0x%x, v%d" % (f32bits(2.0 ** 100), V_T))
    a("v_rcp_f32 v%d, v%d" % (V_T + 1, V_O + 8))
    a("s_cmp_lg_u32 s%d, 0" % S_PASS)
    a("s_cbranch_scc1 L_f_fin")
    a("s_cmp_eq_u64 vcc, exec")
    a("s_cbranch_scc1 L_f_fin")
    a("s_mov_b32 s%d, 1" % S_PASS)
    a("s_mov_b32 s%d, 64" % S_NT)
    a("s_branch L_f_maxpass")
    a.label("L_f_fin")
    for i in range(8):
        a("v_mul_f32 v%d, v%d, v%d" % (V_O + i, V_T + 1, V_O + i))
    for i in range(4):
        a("v_cvt_pk_bf16_f32 v%d, v%d, v%d" % (V_P + i, V_O + 2 * i, V_O + 2 * i + 1))
    if AMAP:
        hstore(a, "o", ["buffer_store_dwordx4 %s, v%d, s[20:23], s%d offen" % (vr(V_P), V_L16, S_T0)])
    else:
        a("buffer_store_dwordx4 %s, v%d, s[20:23], s%d offen sc1" % (vr(V_P), V_L16, S_T0))
    fused_tail(a, locals())
    a.label("L_f_end")
    a("s_endpgm")
    fused_events(a, locals())
    a.label("L_f_sync")
    a("s_mov_b32 s%d, 6" % S_SYNC)
    a("s_cmp_eq_u32 s%d, 0" % S_TYPE)
    a("s_cbranch_scc1 L_f_sy0")
    a("s_waitcnt vmcnt(8)")
    a("s_barrier")
    a("s_branch L_f_syncret")
    a.label("L_f_sy0")
    a("s_waitcnt vmcnt(0)")
    a("s_barrier")
    a("s_branch L_f_syncret")
    a.label("L_f_ev6")
    a("s_mov_b32 s%d, 5" % S_SYNC)
    a("s_cmp_eq_u32 s%d, 0" % S_TYPE)
    a("s_cbranch_scc1 L_f_syncret")
    a("s_waitcnt vmcnt(0)")
    a("v_bfe_u32 v%d, v%d, 2, 2" % (V_T, V_LANE))
    a("v_lshrrev_b32 v%d, 5, v%d" % (V_T + 1, V_LANE))
    a("v_lshl_add_u32 v%d, v%d, 2, v%d" % (V_T, V_T + 1, V_T))
    a("v_lshlrev_b32 v%d, 6, v%d" % (V_T, V_T))
    a("v_and_b32 v%d, 3, v%d" % (V_T + 1, V_LANE))
    a("v_lshl_add_u32 v%d, v%d, 3, v%d" % (V_T, V_T + 1, V_T))
    a("v_add_u32 v%d, s%d, v%d" % (V_T, S_STG, V_T))
    a("v_bfe_u32 v%d, v%d, 4, 1" % (V_T + 1, V_LANE))
    FB = [128 + 4 * i for i in range(8)]
    a("s_cmp_eq_u32 s%d, 2" % S_TYPE)
    a("s_cbranch_scc1 L_f_pk2")
    a("v_lshl_add_u32 v%d, v%d, 10, v%d" % (V_PK, V_T + 1, V_T))
    for ks in range(4):
        for hb in range(2):
            for rd in range(2):
                a("ds_read_b64_tr_b16 %s, v%d offset:%d" % (vr(FB[ks * 2 + hb] + 2 * rd, 2), V_PK, ks * 2048 + hb * 32 + rd * 512))
    make_sel(a, V_LANE, V_SEL, V_T + 2)
    a("v_and_b32 v%d, 31, v%d" % (V_T, V_LANE))
    a("v_lshlrev_b32 v%d, 4, v%d" % (V_T, V_T))
    a("s_waitcnt lgkmcnt(0)")
    for ks in range(4):
        for hb in range(2):
            a("v_mfma_f32_16x16x32_bf16 %s, %s, %s, %s" % (vr(V_PCS[hb]), vr(V_SEL), vr(FB[ks * 2 + hb]), "0" if ks == 0 else vr(V_PCS[hb])))
            a("buffer_store_dwordx4 %s, v%d, s[20:23], s%d offen sc1" % (vr(FB[ks * 2 + hb]), V_L16, (S_DST0, S_DST1)[hb]))
        a("s_add_u32 s%d, s%d, 7168" % (S_DST0, S_DST0))
        a("s_add_u32 s%d, s%d, 7168" % (S_DST1, S_DST1))
    a("s_nop 7")
    a("buffer_store_dword v%d, v%d, s[20:23], s%d offen sc1" % (V_PCS[0], V_T, S_CS))
    a("buffer_store_dword v%d, v%d, s[20:23], s%d offen offset:1024 sc1" % (V_PCS[1], V_T, S_CS))
    a("s_branch L_f_syncret")
    a.label("L_f_pk2")
    a("v_lshl_add_u32 v%d, v%d, 5, v%d" % (V_PK, V_T + 1, V_T))
    a("s_add_u32 s%d, s%d, 4096" % (S_DST1, S_DST0))
    for f in range(8):
        for rd in range(2):
            a("ds_read_b64_tr_b16 %s, v%d offset:%d" % (vr(FB[f] + 2 * rd, 2), V_PK, f * 1024 + rd * 512))
    a("s_waitcnt lgkmcnt(0)")
    for f in range(8):
        a("buffer_store_dwordx4 %s, v%d, s[20:23], s%d offen offset:%d sc1" % (vr(FB[f]), V_L16, S_DST0 if f < 4 else S_DST1, (f % 4) * 1024))
    a("s_branch L_f_syncret")
    return name, 256, 0, (256, 512, 163840)


def gen_k35(a, which):
    name = "k3_wo_kernel" if which == 3 else "k5_down_kernel"
    L = "L_k%d_" % which
    kernel_begin(a, name)
    NS = 8 if which == 3 else 28
    STEPS = 32 if which == 3 else 112
    WIN = 8 if which == 3 else 14
    A_BASE = WS_O if which == 3 else WS_A
    W_BASE = WS_WO if which == 3 else WS_WD
    S_WAVE, S_RB, S_CG, S_T0, S_T1 = 24, 25, 26, 27, 28
    S_A = [30, 31]
    S_W = [32, 33]
    S_TB, S_NB = 34, 35
    V_LANE, V_L16, V_T = 1, 2, 3
    V_RES = 12
    V_ACC = [32, 48, 64, 80]
    V_RD = 96
    a("s_cmp_ge_u32 s2, 256")
    a("s_cbranch_scc1 %send" % L)
    a.ts("k%d" % which)
    a("s_load_dwordx2 s[8:9], s[0:1], %d" % ARG_WS)
    a("s_load_dwordx2 s[4:5], s[0:1], %d" % (ARG_X if which == 3 else ARG_OUT))
    a("v_lshrrev_b32 v%d, 6, v0" % V_T)
    a("v_and_b32 v%d, 63, v0" % V_LANE)
    a("v_readfirstlane_b32 s%d, v%d" % (S_WAVE, V_T))
    a("v_lshlrev_b32 v%d, 4, v%d" % (V_L16, V_LANE))
    a("s_and_b32 s%d, s2, 7" % S_RB)
    a("s_lshl_b32 s%d, s%d, 2" % (S_RB, S_RB))
    a("s_lshr_b32 s%d, s2, 3" % S_T0)
    a("s_and_b32 s%d, s%d, 3" % (S_T1, S_T0))
    a("s_add_u32 s%d, s%d, s%d" % (S_RB, S_RB, S_T1))
    a("s_lshr_b32 s%d, s%d, 2" % (S_CG, S_T0))
    a("s_lshr_b32 s%d, s%d, 1" % (S_T0, S_WAVE))
    a("s_lshl_b32 s%d, s%d, 1" % (S_TB, S_RB))
    a("s_add_u32 s%d, s%d, s%d" % (S_TB, S_TB, S_T0))
    a("s_and_b32 s%d, s%d, 1" % (S_T0, S_WAVE))
    a("s_lshl_b32 s%d, s%d, 1" % (S_NB, S_CG))
    a("s_add_u32 s%d, s%d, s%d" % (S_NB, S_NB, S_T0))
    a("s_mul_i32 s%d, s%d, %d" % (S_T1, S_WAVE, NS * 1024))
    for i in range(2):
        a("s_xor_b32 s%d, s%d, %d" % (S_T0, S_TB, i))
        a("s_mul_i32 s%d, s%d, %d" % (S_A[i], S_T0, STEPS * 1024))
        a("s_add_u32 s%d, s%d, s%d" % (S_A[i], S_A[i], S_T1))
        a("s_add_u32 s%d, s%d, %d" % (S_A[i], S_A[i], A_BASE))
        a("s_xor_b32 s%d, s%d, %d" % (S_T0, S_NB, i))
        a("s_mul_i32 s%d, s%d, %d" % (S_W[i], S_T0, STEPS * 1024))
        a("s_add_u32 s%d, s%d, s%d" % (S_W[i], S_W[i], S_T1))
        a("s_add_u32 s%d, s%d, %d" % (S_W[i], S_W[i], W_BASE))
    a("s_waitcnt lgkmcnt(0)")
    srd(a, 20, 8, WS_SIZE)
    srd(a, 12, 4, 2048 * 1024)

    def frag(p, kind, i):
        return (p % WIN) * 16 + kind * 8 + i * 4

    def loads(p):
        out = []
        if p > 0 and p % 4 == 0:
            for s in S_A + S_W:
                out.append("s_add_u32 s%d, s%d, 4096" % (s, s))
        off = (p % 4) * 1024
        for i in range(2):
            out.append("buffer_load_dwordx4 %s, v%d, s[20:23], s%d offen offset:%d" % (ar(frag(p, 0, i)), V_L16, S_A[i], off))
            out.append("buffer_load_dwordx4 %s, v%d, s[20:23], s%d offen offset:%d" % (ar(frag(p, 1, i)), V_L16, S_W[i], off))
        return out

    for p in range(WIN):
        for l in loads(p):
            a(l)
    a("v_and_b32 v%d, 31, v%d" % (V_T, V_LANE))
    a("v_lshlrev_b32 v%d, 10, v%d" % (V_T, V_T))
    a("v_lshrrev_b32 v%d, 5, v%d" % (V_T + 1, V_LANE))
    a("v_lshl_add_u32 v%d, v%d, 3, v%d" % (V_T, V_T + 1, V_T))
    a("s_lshl_b32 s36, s%d, 15" % S_TB)
    a("s_lshl_b32 s%d, s%d, 6" % (S_T0, S_NB))
    a("s_add_u32 s36, s36, s%d" % S_T0)
    a("s_lshl_b32 s37, s%d, 5" % S_TB)
    a("s_lshl_b32 s%d, s%d, 1" % (S_T0, S_NB))
    a("s_add_u32 s37, s37, s%d" % S_T0)
    a("s_lshl_b32 s37, s37, 10")
    a("s_add_u32 s37, s37, %d" % WS_H)
    a.ts("k%d" % which)
    issued = WIN
    NRES = 4 if which == 3 else 2
    res_done = False
    for p in range(NS):
        younger = 4 * (issued - p - 1) + (NRES if res_done else 0)
        a("s_waitcnt vmcnt(%d)" % younger)
        for ti in range(2):
            for ni in range(2):
                acc = V_ACC[ti * 2 + ni]
                a("v_mfma_f32_32x32x16_bf16 %s, %s, %s, %s" % (vr(acc, 16), ar(frag(p, 1, ni)), ar(frag(p, 0, ti)), "0" if p == 0 else vr(acc, 16)))
        if issued < NS:
            for l in loads(issued):
                a(l)
            issued += 1
        elif not res_done:
            if which == 3:
                for q in range(4):
                    a("buffer_load_dwordx2 %s, v%d, s[12:15], s36 offen offset:%d" % (vr(V_RES + 2 * q, 2), V_T, q * 16))
            else:
                for q in range(2):
                    a("buffer_load_dwordx4 %s, v%d, s[20:23], s37 offen offset:%d" % (vr(V_RES + 4 * q), V_L16, q * 1024))
            res_done = True
    a.ts("k%d" % which)
    a("s_nop 7")
    for t in range(1, 4):
        a("s_xor_b32 s%d, s%d, %d" % (S_T0, S_WAVE, t))
        a("s_mul_i32 s%d, s%d, 12288" % (S_T0, S_T0))
        a("v_add_u32 v%d, s%d, v%d" % (V_T + 1 + t, S_T0, V_L16))
    a("s_nop 3")
    for t in range(1, 4):
        for q in range(4):
            a("ds_write_b128 v%d, %s offset:%d" % (V_T + 1 + t, vr(V_ACC[t] + 4 * q), (t - 1) * 4096 + q * 1024))
    a("s_mul_i32 s%d, s%d, 12288" % (S_T0, S_WAVE))
    a("v_add_u32 v%d, s%d, v%d" % (V_T + 1, S_T0, V_L16))
    a("s_waitcnt lgkmcnt(0)")
    a("s_barrier")
    for t in range(3):
        for q in range(4):
            a("ds_read_b128 %s, v%d offset:%d" % (vr(V_RD + 16 * t + 4 * q), V_T + 1, t * 4096 + q * 1024))
    A0 = V_ACC[0]
    U = V_ACC[1]
    a("s_mov_b32 s38, 0xffff0000")
    a("s_waitcnt vmcnt(0)")
    for d in range(8):
        a("v_lshlrev_b32 v%d, 16, v%d" % (U + 2 * d, V_RES + d))
        a("v_and_b32 v%d, s38, v%d" % (U + 2 * d + 1, V_RES + d))
    for i in range(16):
        a("v_add_f32 v%d, v%d, v%d" % (A0 + i, A0 + i, U + i))
    for t in range(3):
        a("s_waitcnt lgkmcnt(%d)" % (8 - 4 * t))
        for i in range(16):
            a("v_add_f32 v%d, v%d, v%d" % (A0 + i, A0 + i, V_RD + 16 * t + i))
    O = V_ACC[2]
    for i in range(8):
        a("v_cvt_pk_bf16_f32 v%d, v%d, v%d" % (O + i, A0 + 2 * i, A0 + 2 * i + 1))
    if which == 3:
        for q in range(2):
            a("buffer_store_dwordx4 %s, v%d, s[20:23], s37 offen offset:%d" % (vr(O + 4 * q), V_L16, q * 1024))
        for d in range(8):
            a("v_lshlrev_b32 v%d, 16, v%d" % (U + 2 * d, O + d))
            a("v_and_b32 v%d, s38, v%d" % (U + 2 * d + 1, O + d))
        S1, S2 = V_RD, V_RD + 1
        a("v_add_f32 v%d, v%d, v%d" % (S1, U, U + 1))
        a("v_mul_f32 v%d, v%d, v%d" % (S2, U, U))
        a("v_fmac_f32 v%d, v%d, v%d" % (S2, U + 1, U + 1))
        for i in range(2, 16):
            a("v_add_f32 v%d, v%d, v%d" % (S1, S1, U + i))
            a("v_fmac_f32 v%d, v%d, v%d" % (S2, U + i, U + i))
        sum_halves(a, S1, V_RD + 2)
        sum_halves(a, S2, V_RD + 3)
        a("s_lshl_b32 s%d, s%d, 4" % (S_T0, S_TB))
        a("s_add_u32 s%d, s%d, s%d" % (S_T0, S_T0, S_NB))
        a("s_lshl_b32 s%d, s%d, 8" % (S_T0, S_T0))
        a("s_add_u32 s%d, s%d, %d" % (S_T0, S_T0, WS_ST))
        a("v_and_b32 v%d, 31, v%d" % (V_T, V_LANE))
        a("v_lshlrev_b32 v%d, 3, v%d" % (V_T, V_T))
        a("buffer_store_dwordx2 %s, v%d, s[20:23], s%d offen" % (vr(S1, 2), V_T, S_T0))
    else:
        for q in range(4):
            a("buffer_store_dwordx2 %s, v%d, s[12:15], s36 offen offset:%d" % (vr(O + 2 * q, 2), V_T, q * 16))
    a.ts_flush("k%d" % which, S_WAVE, V_T)
    a.label(L + "end")
    a("s_endpgm")
    return name, 144, WIN * 16, (256, 256, 49152)


def gen_k4(a):
    name = "k4_glu_kernel"
    kernel_begin(a, name)
    SL4, NS4 = 45056, 3
    S_WAVE, S_RB, S_CG, S_KC, S_SH, S_SW, S_T0, S_T1, S_MASK, S_M0 = 24, 25, 26, 27, 28, 29, 30, 31, 32, 33
    S_TB, S_ROLE, S_M0H = 34, 42, 35
    V_LANE, V_L16, V_T = 1, 2, 3
    V_AW, V_AH = 12, 13
    V_ST = 16
    V_CSL = 32
    V_H = [60, 244]
    V_W = [64, 92]
    V_ACC = [120 + 16 * b for b in range(7)]
    V_TMP = 232
    a("s_cmp_ge_u32 s2, 256")
    a("s_cbranch_scc1 L_k4_end")
    a.ts("k4")
    a("s_load_dwordx2 s[8:9], s[0:1], %d" % ARG_WS)
    a("v_lshrrev_b32 v%d, 6, v0" % V_T)
    a("v_and_b32 v%d, 63, v0" % V_LANE)
    a("v_readfirstlane_b32 s%d, v%d" % (S_ROLE, V_T))
    a("v_lshlrev_b32 v%d, 4, v%d" % (V_L16, V_LANE))
    a("s_and_b32 s3, s2, 7")
    a("s_lshr_b32 s%d, s2, 3" % S_T0)
    a("s_lshr_b32 s%d, s3, 2" % S_RB)
    a("s_lshl_b32 s%d, s%d, 3" % (S_RB, S_RB))
    a("s_and_b32 s%d, s%d, 7" % (S_T1, S_T0))
    a("s_add_u32 s%d, s%d, s%d" % (S_RB, S_RB, S_T1))
    a("s_and_b32 s%d, s3, 3" % S_CG)
    a("s_lshl_b32 s%d, s%d, 2" % (S_CG, S_CG))
    a("s_lshr_b32 s%d, s%d, 3" % (S_T1, S_T0))
    a("s_add_u32 s%d, s%d, s%d" % (S_CG, S_CG, S_T1))
    a("s_and_b32 s%d, s%d, 3" % (S_WAVE, S_ROLE))
    a("s_lshl_b32 s%d, s%d, 2" % (S_TB, S_RB))
    a("s_add_u32 s%d, s%d, s%d" % (S_TB, S_TB, S_WAVE))
    a("s_lshl_b32 s%d, s%d, 12" % (S_M0H, S_WAVE))
    a("s_add_u32 s%d, s%d, 28672" % (S_M0H, S_M0H))
    a("s_cmp_ge_u32 s%d, 4" % S_ROLE)
    a("s_cbranch_scc1 L_k4_compute")
    if K4_ROT:
        a("s_add_u32 s%d, s%d, s%d" % (S_KC, S_RB, S_CG))
        a("s_and_b32 s%d, s%d, 7" % (S_KC, S_KC))
    else:
        a("s_mov_b32 s%d, 0" % S_KC)
    a("s_lshl_b32 s%d, s%d, 15" % (S_SH, S_TB))
    a("s_add_u32 s%d, s%d, %d" % (S_SH, S_SH, WS_H))
    a("s_mul_i32 s%d, s%d, 7168" % (S_M0, S_WAVE))
    a("s_mul_i32 s%d, s%d, %d" % (S_SW, S_CG, 32 * 7 * 1024))
    a("s_add_u32 s%d, s%d, s%d" % (S_SW, S_SW, S_M0))
    a("s_add_u32 s%d, s%d, %d" % (S_SW, S_SW, WS_GU))
    S_OH, S_OW, S_SLOT, S_CNT = 38, 39, 40, 41
    a("s_mov_b32 s%d, 0" % S_SLOT)
    a("s_mov_b32 s%d, 0" % S_CNT)
    a("s_waitcnt lgkmcnt(0)")
    srd(a, 20, 8, WS_SIZE)
    a.label("L_k4_ld")
    a("s_lshl_b32 s%d, s%d, 12" % (S_OH, S_KC))
    a("s_add_u32 s%d, s%d, s%d" % (S_OH, S_OH, S_SH))
    a("s_add_u32 m0, s%d, s%d" % (S_M0H, S_SLOT))
    a("s_mul_i32 s%d, s%d, %d" % (S_OW, S_KC, SLOT))
    for q in range(4):
        a("buffer_load_dwordx4 v%d, s[20:23], s%d offen offset:%d lds" % (V_L16, S_OH, q * 1024))
    a("s_add_u32 m0, s%d, s%d" % (S_M0, S_SLOT))
    a("s_add_u32 s%d, s%d, s%d" % (S_OW, S_OW, S_SW))
    for q in range(4):
        a("buffer_load_dwordx4 v%d, s[20:23], s%d offen offset:%d lds" % (V_L16, S_OW, q * 1024))
    a("s_add_u32 m0, m0, 4096")
    a("s_add_u32 s%d, s%d, 4096" % (S_OW, S_OW))
    for q in range(3):
        a("buffer_load_dwordx4 v%d, s[20:23], s%d offen offset:%d lds" % (V_L16, S_OW, q * 1024))
    a("s_add_u32 s%d, s%d, 1" % (S_KC, S_KC))
    a("s_and_b32 s%d, s%d, 7" % (S_KC, S_KC))
    a("s_add_u32 s%d, s%d, %d" % (S_SLOT, S_SLOT, SL4))
    a("s_cmp_eq_u32 s%d, %d" % (S_SLOT, NS4 * SL4))
    a("s_cselect_b32 s%d, 0, s%d" % (S_SLOT, S_SLOT))
    a("s_add_u32 s%d, s%d, 1" % (S_CNT, S_CNT))
    a("s_cmp_lt_u32 s%d, 2" % S_CNT)
    a("s_cbranch_scc1 L_k4_ld")
    a("s_waitcnt vmcnt(11)")
    a("s_barrier")
    a("s_cmp_lt_u32 s%d, 8" % S_CNT)
    a("s_cbranch_scc1 L_k4_ld")
    a("s_waitcnt vmcnt(0)")
    a("s_barrier")
    a("s_endpgm")
    a.label("L_k4_compute")
    a("s_mov_b32 s%d, 0xffff0000" % S_MASK)
    a("v_mov_b32 v%d, v%d" % (V_AW, V_L16))
    a("v_add_u32 v%d, s%d, v%d" % (V_AH, S_M0H, V_L16))
    a("v_and_b32 v%d, 31, v%d" % (V_T, V_LANE))
    a("v_lshlrev_b32 v%d, 3, v%d" % (V_T, V_T))
    a("v_lshrrev_b32 v%d, 5, v%d" % (V_T + 1, V_LANE))
    a("v_lshl_add_u32 v%d, v%d, 11, v%d" % (V_T, V_T + 1, V_T))
    a("s_waitcnt lgkmcnt(0)")
    srd(a, 20, 8, WS_SIZE)
    cur_base = [0]

    def reads(P):
        st, pos = P // 4, P % 4
        base = (st % NS4) * SL4
        out = []
        if base != cur_base[0]:
            d = base - cur_base[0]
            for r in (V_AW, V_AH):
                out.append("v_add_u32 v%d, %d, v%d" % (r, d, r) if d > 0 else "v_subrev_u32 v%d, %d, v%d" % (r, -d, r))
            cur_base[0] = base
        b = P % 2
        out.append("ds_read_b128 %s, v%d offset:%d" % (vr(V_H[b]), V_AH, pos * 1024))
        for blk in range(7):
            out.append("ds_read_b128 %s, v%d offset:%d" % (vr(V_W[b] + 4 * blk), V_AW, (pos * 7 + blk) * 1024))
        return out

    extra = {}
    g = ["s_lshl_b32 s%d, s%d, 12" % (S_T0, S_TB), "s_add_u32 s%d, s%d, %d" % (S_T0, S_T0, WS_ST)]
    for i in range(8):
        g.append("buffer_load_dwordx2 %s, v%d, s[20:23], s%d offen offset:%d" % (vr(V_ST + 2 * i, 2), V_T, S_T0, i * 256))
    extra[8], extra[9], extra[10] = g[:4], g[4:7], g[7:]
    g = ["s_mul_i32 s%d, s%d, 7168" % (S_T0, S_CG), "s_add_u32 s%d, s%d, %d" % (S_T0, S_T0, WS_CS), "s_add_u32 s%d, s%d, 4096" % (S_T1, S_T0)]
    for blk in range(7):
        g.append("buffer_load_dwordx4 %s, v%d, s[20:23], s%d offen offset:%d" % (vr(V_CSL + 4 * blk), V_L16, S_T0 if blk < 4 else S_T1, (blk % 4) * 1024))
    extra[12], extra[13], extra[14] = g[:5], g[5:8], g[8:]
    a.ts("k4")
    a("s_barrier")
    a.ts("k4")
    for l in reads(0):
        a(l)
    for P in range(32):
        st, pos = P // 4, P % 4
        b = P % 2
        a("s_waitcnt lgkmcnt(0)")
        if pos == 3 and P < 31:
            a("s_barrier")
        rd = reads(P + 1) if P < 31 else []
        m = []
        for blk in range(7):
            m.append("v_mfma_f32_32x32x16_bf16 %s, %s, %s, %s" % (vr(V_ACC[blk], 16), vr(V_W[b] + 4 * blk), vr(V_H[b]), "0" if P == 0 else vr(V_ACC[blk], 16)))
        for l in interleave(m, rd + extra.get(P, []), per=2):
            a(l)
    a.ts("k4")
    a("s_waitcnt vmcnt(0)")
    S1, S2 = V_T + 2, V_T + 3
    a("v_add_f32 v%d, v%d, v%d" % (S1, V_ST, V_ST + 2))
    a("v_add_f32 v%d, v%d, v%d" % (S2, V_ST + 1, V_ST + 3))
    for i in range(2, 8):
        a("v_add_f32 v%d, v%d, v%d" % (S1, S1, V_ST + 2 * i))
        a("v_add_f32 v%d, v%d, v%d" % (S2, S2, V_ST + 2 * i + 1))
    sum_halves(a, S1, V_T + 4)
    sum_halves(a, S2, V_T + 4)
    V_MU, V_VAR, V_RS, V_C1, V_C2 = V_T + 4, V_T + 5, V_T + 6, V_T + 7, V_T + 8
    a("v_mul_f32 v%d, 0x%x, v%d" % (V_MU, f32bits(1.0 / 512), S1))
    a("v_mul_f32 v%d, 0x%x, v%d" % (V_VAR, f32bits(1.0 / 512), S2))
    a("v_fma_f32 v%d, -v%d, v%d, v%d" % (V_VAR, V_MU, V_MU, V_VAR))
    a("v_max_f32 v%d, 0, v%d" % (V_VAR, V_VAR))
    a("v_add_f32 v%d, 0x%x, v%d" % (V_VAR, f32bits(1e-5), V_VAR))
    a("v_rsq_f32 v%d, v%d" % (V_RS, V_VAR))
    a("v_sub_f32 v%d, 0, v%d" % (V_MU, V_MU))
    VB = V_ST
    split_hi_lo_B(a, V_MU, VB, V_T, S_MASK)
    c1 = -2.0 * math.sqrt(2.0 / math.pi) * math.log2(math.e)
    a("v_mul_f32 v%d, 0x%x, v%d" % (V_C1, f32bits(c1), V_RS))
    a("v_mul_f32 v%d, v%d, v%d" % (V_C2, V_RS, V_RS))
    a("v_mul_f32 v%d, v%d, v%d" % (V_C2, V_C2, V_C1))
    a("v_mul_f32 v%d, 0x%x, v%d" % (V_C2, f32bits(0.044715), V_C2))
    for blk in range(7):
        c = V_CSL + 4 * blk
        a("v_add_f32 v%d, v%d, v%d" % (c, c, c + 1))
        a("v_add_f32 v%d, v%d, v%d" % (c + 2, c + 2, c + 3))
        a("v_add_f32 v%d, v%d, v%d" % (c, c, c + 2))
        split_hi_lo_A(a, c, V_W[0] + 4 * blk, V_T, S_MASK)
    a("s_nop 1")
    for blk in range(7):
        a("v_mfma_f32_32x32x16_bf16 %s, %s, %s, %s" % (vr(V_ACC[blk], 16), vr(V_W[0] + 4 * blk), vr(VB), vr(V_ACC[blk], 16)))
    a("s_mul_i32 s%d, s%d, 112" % (S_T0, S_TB))
    a("s_mul_i32 s%d, s%d, 7" % (S_T1, S_CG))
    a("s_add_u32 s%d, s%d, s%d" % (S_T0, S_T0, S_T1))
    a("s_lshl_b32 s%d, s%d, 10" % (S_T0, S_T0))
    a("s_add_u32 s%d, s%d, %d" % (S_T0, S_T0, WS_A))
    a("s_add_u32 s%d, s%d, 4096" % (S_T1, S_T0))
    a("s_nop 7")
    for blk in range(7):
        G = V_ACC[blk]
        Uu = G + 8
        T = V_TMP
        for i in range(8):
            a("v_mul_f32 v%d, v%d, v%d" % (T + i, G + i, G + i))
        for i in range(8):
            a("v_fma_f32 v%d, v%d, v%d, v%d" % (T + i, T + i, V_C2, V_C1))
        for i in range(8):
            a("v_mul_f32 v%d, v%d, v%d" % (T + i, T + i, G + i))
        for i in range(8):
            a("v_exp_f32 v%d, v%d" % (T + i, T + i))
        for i in range(8):
            a("v_mul_f32 v%d, v%d, v%d" % (G + i, G + i, Uu + i))
        for i in range(8):
            a("v_fma_f32 v%d, v%d, v%d, v%d" % (T + i, T + i, V_VAR, V_VAR))
        for i in range(8):
            a("v_rcp_f32 v%d, v%d" % (T + i, T + i))
        a("s_nop 0")
        for i in range(8):
            a("v_mul_f32 v%d, v%d, v%d" % (G + i, G + i, T + i))
        o = V_TMP + 8 + 4 * (blk % 4)
        for i in range(4):
            a("v_cvt_pk_bf16_f32 v%d, v%d, v%d" % (o + i, G + 2 * i, G + 2 * i + 1))
        a("buffer_store_dwordx4 %s, v%d, s[20:23], s%d offen offset:%d" % (vr(o), V_L16, S_T0 if blk < 4 else S_T1, (blk % 4) * 1024))
    a.ts_flush("k4", S_WAVE, V_T)
    a.label("L_k4_end")
    a("s_endpgm")
    return name, 256, 0, (256, 512, NS4 * SL4)


def main():
    hdr = open("cdna_kernels/%s.s.ref" % NAME).read().split("\n")
    head = [l for l in hdr if l.startswith(";") and "@launch" not in l and "Override launch" not in l and "grid=ceil" not in l]
    a = Asm()
    ks = []
    ks.append(gen_f(a))
    out = "\n".join(head) + "\n"
    for name, nv, na, (g, b, lds) in ks:
        out += "; @launch grid=(%d,1,1) block=(%d,1,1) lds=%d\n" % (g, b, lds)
    out += '.amdgcn_target "amdgcn-amd-amdhsa--gfx950"\n.text\n'
    out += a.text()
    out += '.section .rodata,"a"\n'
    for name, nv, na, _ in ks:
        out += kernel_desc(name, nv, na)
    path = sys.argv[1] if len(sys.argv) > 1 else "cdna_kernels/%s.s" % NAME
    open(path, "w").write(out)


if __name__ == "__main__":
    main()
```

```python
import sys, math, struct

NAME = "sequential_preLN__softmax_full_mha__geglu_ffn__prompt"

MB = 1 << 20
WS_Q = 0
WS_K = 2 * MB
WS_V = 4 * MB
WS_O = 6 * MB
WS_H = 8 * MB
WS_A = 10 * MB
WS_WO = 17 * MB
WS_WD = 18 * MB
WS_GU = 20 * MB
WS_CS = 24 * MB
WS_ST = 25 * MB
WS_FL = 27 * MB + 768 * 1024
WS_SIZE = 28 * MB

ARG_X, ARG_WQKV, ARG_WO, ARG_BX, ARG_WG, ARG_WU, ARG_WD, ARG_OUT, ARG_DBG, ARG_WS = [8 * i for i in range(10)]

ONES_BF16 = 0x3F803F80


def f32bits(x):
    return struct.unpack("<I", struct.pack("<f", x))[0]


import os
INSTR = os.environ.get("INSTR", "")
WS_TS = 26 * MB


class Asm:
    def __init__(self):
        self.L = []
        self.nts = 0

    def ts(self, kern):
        if INSTR != kern and not (INSTR == "all" and len(kern) == 2):
            return
        if self.nts == 0:
            self("s_memrealtime s[92:93]")
        self("%s s[%d:%d]" % ("s_memrealtime" if os.environ.get("RT") else "s_memtime", 64 + 2 * self.nts, 65 + 2 * self.nts))
        self.nts += 1

    def tsv(self, lane, key="kv_"):
        if INSTR != key:
            return
        self("%s s[64:65]" % ("s_memtime" if os.environ.get("CYC") else "s_memrealtime"))
        self("s_waitcnt lgkmcnt(0)")
        self("v_cmp_eq_u32 vcc, %s, v1" % lane)
        self("v_mov_b32 v251, s64")
        self("s_nop 1")
        self("v_cndmask_b32 v250, v250, v251, vcc")

    def tsv_flush(self, swave, key="kv_"):
        if INSTR != key:
            return
        self("s_lshl_b32 s3, s2, 3")
        self("s_add_u32 s3, s3, s%d" % swave)
        self("s_lshl_b32 s3, s3, 8")
        self("s_add_u32 s3, s3, %d" % WS_TS)
        self("buffer_store_dword v250, v229, s[20:23], s3 offen")

    def ts_flush(self, kern, swave, vtmp):
        if INSTR != kern and not (INSTR == "all" and len(kern) == 2):
            return
        self("%s s[%d:%d]" % ("s_memrealtime" if os.environ.get("RT") else "s_memtime", 64 + 2 * self.nts, 65 + 2 * self.nts))
        self.nts += 1
        self("s_memrealtime s[94:95]")
        self("s_waitcnt lgkmcnt(0)")
        if os.environ.get("AMP"):
            ia, ib, kk = [int(x) for x in os.environ["AMP"].split(",")]
            self("s_cmp_lg_u32 s%d, 7" % swave)
            self("s_cbranch_scc1 L_amp_done")
            self("s_sub_u32 s3, s%d, s%d" % (64 + 2 * ib, 64 + 2 * ia))
            self("s_mul_i32 s3, s3, %d" % kk)
            self("s_min_u32 s3, s3, 100000")
            self.label("L_amp_spin")
            self("s_memrealtime s[36:37]")
            self("s_waitcnt lgkmcnt(0)")
            self("s_sub_u32 s36, s36, s94")
            self("s_cmp_lt_u32 s36, s3")
            self("s_cbranch_scc1 L_amp_spin")
            self.label("L_amp_done")
        if os.environ.get("DBGOUT"):
            self("s_cmp_lg_u32 s2, %s" % os.environ["DBGOUT"])
            self("s_cbranch_scc1 L_dbg_skip")
            self("s_cmp_lg_u32 s%d, 7" % swave)
            self("s_cbranch_scc1 L_dbg_skip")
            self("v_mov_b32 v%d, 0" % vtmp)
            for i in range(1, self.nts):
                self("s_sub_u32 s3, s%d, s64" % (64 + 2 * i))
                self("s_and_b32 s36, s3, 0x7f")
                self("s_lshr_b32 s3, s3, 7")
                self("s_and_b32 s3, s3, 0x7f")
                self("s_lshl_b32 s3, s3, 8")
                self("s_or_b32 s3, s3, s36")
                self("s_or_b32 s3, s3, 0x80808080")
                self("v_mov_b32 v%d, s3" % (vtmp + 1))
                self("buffer_store_dword v%d, v%d, s[96:99], 0 offen offset:%d" % (vtmp + 1, vtmp, 4 * i))
                self("s_nop 1")
            self.label("L_dbg_skip")
        self("s_lshl_b32 s3, s2, 3")
        self("s_add_u32 s3, s3, s%d" % swave)
        self("s_lshl_b32 s3, s3, 6")
        self("s_add_u32 s3, s3, %d" % (WS_TS + (int(kern[1]) * 131072 if INSTR == "all" else 0)))
        self("v_mov_b32 v%d, 0" % vtmp)
        for i in range(self.nts):
            self("v_mov_b32 v%d, s%d" % (vtmp + 1, 64 + 2 * i))
            self("buffer_store_dword v%d, v%d, s[20:23], s3 offen offset:%d" % (vtmp + 1, vtmp, 4 * i))
            self("s_nop 1")
        for i, r in enumerate((92, 94)):
            self("v_mov_b32 v%d, s%d" % (vtmp + 1, r))
            self("buffer_store_dword v%d, v%d, s[20:23], s3 offen offset:%d" % (vtmp + 1, vtmp, 56 + 4 * i))
            self("s_nop 1")
        self.nts = 0

    def __call__(self, s):
        for line in s.strip("\n").split("\n"):
            self.L.append("    " + line.strip())

    def label(self, s):
        self.L.append(s + ":")

    def raw(self, s):
        self.L.append(s)

    def text(self):
        return "\n".join(self.L) + "\n"


def vr(b, n=4):
    return "v[%d:%d]" % (b, b + n - 1)


def ar(b, n=4):
    return "a[%d:%d]" % (b, b + n - 1)


def srd(a, sbase, sptr, nbytes):
    a("s_mov_b32 s%d, s%d" % (sbase, sptr))
    a("s_mov_b32 s%d, s%d" % (sbase + 1, sptr + 1))
    a("s_mov_b32 s%d, 0x%x" % (sbase + 2, nbytes))
    a("s_mov_b32 s%d, 0x00020000" % (sbase + 3))


def kernel_begin(a, name):
    a.raw(".globl %s" % name)
    a.raw(".p2align 8")
    a.raw(".type %s,@function" % name)
    a.label(name)


def kernel_desc(name, nvgpr, nagpr, nsgpr=102):
    acc = (nvgpr + 3) // 4 * 4
    nfv = acc + nagpr if nagpr else nvgpr
    return """.p2align 6
.amdhsa_kernel %s
  .amdhsa_next_free_vgpr %d
  .amdhsa_next_free_sgpr %d
  .amdhsa_accum_offset %d
  .amdhsa_group_segment_fixed_size 0
  .amdhsa_kernarg_size 80
  .amdhsa_user_sgpr_count 2
  .amdhsa_user_sgpr_kernarg_segment_ptr 1
  .amdhsa_system_sgpr_workgroup_id_x 1
.end_amdhsa_kernel
""" % (name, nfv, nsgpr, acc)


def interleave(main, fill, per=None):
    out = []
    n = len(main)
    fi = 0
    for i, m in enumerate(main):
        out.append(m)
        tgt = (len(fill) * (i + 1) + n - 1) // n if per is None else min(len(fill), per * (i + 1))
        while fi < tgt:
            out.append(fill[fi])
            fi += 1
    out += fill[fi:]
    return out


class Lds:
    def __init__(self, a):
        self.a = a
        self.n = 0
        self.done = 0
        self.idx = {}

    def op(self, text, tag=None):
        self.a(text)
        self.n += 1
        if tag is not None:
            self.idx[tag] = self.n

    def need(self, *tags):
        k = max(self.idx[t] for t in tags)
        if k > self.done:
            w = self.n - k
            assert w <= 15
            self.a("s_waitcnt lgkmcnt(%d)" % w)
            self.done = k

    def drain(self):
        if self.done < self.n:
            self.a("s_waitcnt lgkmcnt(0)")
            self.done = self.n


def make_sel(a, vlane, vsel, vt):
    a("v_lshrrev_b32 v%d, 2, v%d" % (vt, vlane))
    a("v_lshrrev_b32 v%d, 4, v%d" % (vsel, vlane))
    a("v_xor_b32 v%d, v%d, v%d" % (vt, vt, vsel))
    a("v_and_b32 v%d, 1, v%d" % (vt, vt))
    a("v_add_u32 v%d, -1, v%d" % (vt, vt))
    a("v_and_b32 v%d, 0x%x, v%d" % (vsel, ONES_BF16, vt))
    for i in range(1, 4):
        a("v_mov_b32 v%d, v%d" % (vsel + i, vsel))


def split_hi_lo_A(a, vc, vdst, vt, smask):
    a("v_cvt_pk_bf16_f32 v%d, v%d, v%d" % (vt, vc, vc))
    a("v_and_b32 v%d, s%d, v%d" % (vt, smask, vt))
    a("v_sub_f32 v%d, v%d, v%d" % (vt, vc, vt))
    a("v_cvt_pk_bf16_f32 v%d, v%d, v%d" % (vdst, vc, vt))
    a("v_mov_b32 v%d, v%d" % (vdst + 1, vdst))
    a("v_mov_b32 v%d, 0" % (vdst + 2))
    a("v_mov_b32 v%d, 0" % (vdst + 3))


def split_hi_lo_B(a, vm, vdst, vt, smask):
    a("v_cvt_pk_bf16_f32 v%d, v%d, v%d" % (vdst, vm, vm))
    a("v_and_b32 v%d, s%d, v%d" % (vt, smask, vdst))
    a("v_sub_f32 v%d, v%d, v%d" % (vt, vm, vt))
    a("v_cvt_pk_bf16_f32 v%d, v%d, v%d" % (vdst + 1, vt, vt))
    a("v_mov_b32 v%d, 0" % (vdst + 2))
    a("v_mov_b32 v%d, 0" % (vdst + 3))


def sum_halves(a, v, vt):
    a("v_mov_b32 v%d, v%d" % (vt, v))
    a("s_nop 1")
    a("v_permlane32_swap_b32 v%d, v%d" % (v, vt))
    a("s_nop 1")
    a("v_add_f32 v%d, v%d, v%d" % (v, v, vt))


SLOT = 28672
NSLOT = 5
K1_DIST = int(os.environ.get('K1_DIST', 2))
DIAG = os.environ.get('DIAG', '')
K1_ROT = int(os.environ.get('K1_ROT', 1))
K4_ROT = int(os.environ.get('K4_ROT', 0))
K2_ROT = int(os.environ.get('K2_ROT', 0))
K4_DIST = int(os.environ.get('K4_DIST', 2))


def slot_base_adjust(stage):
    slot = stage % NSLOT
    return (slot // 2) * 2 * SLOT, (slot % 2) * SLOT


def gen_k1(a):
    name = "k1_qkv_kernel"
    kernel_begin(a, name)
    NS1 = 4
    LDS_SCR = NS1 * SLOT
    SCR_RS, SCR_BF = LDS_SCR + 1536, LDS_SCR + 2048
    S_WAVE, S_RB, S_CG, S_KC, S_SX, S_SW, S_T0, S_T1, S_MASK, S_M0X, S_M0W = 24, 25, 26, 27, 28, 29, 30, 31, 32, 33, 34
    S_ROLE = 42
    V_LANE = 1
    V_T = 2
    V_DX = 8
    V_DW = 12
    V_AX = 13
    V_AW = 17
    V_SEL = 24
    V_SQ = 28
    V_X = [32, 36]
    V_W = [[40, 44, 48], [52, 56, 60]]
    V_ACC = [64, 80, 96]
    V_TMP = 112
    a("s_cmp_ge_u32 s2, 256")
    a("s_cbranch_scc1 L_k1_end")
    a.ts("k1")
    a("s_load_dwordx4 s[4:7], s[0:1], %d" % ARG_X)
    a("s_load_dwordx2 s[8:9], s[0:1], %d" % ARG_WS)
    a("v_lshrrev_b32 v%d, 6, v0" % V_T)
    a("v_and_b32 v%d, 63, v0" % V_LANE)
    a("v_readfirstlane_b32 s%d, v%d" % (S_ROLE, V_T))
    a("s_and_b32 s3, s2, 7")
    a("s_lshr_b32 s%d, s2, 3" % S_T0)
    a("s_lshr_b32 s%d, s3, 1" % S_RB)
    a("s_lshl_b32 s%d, s%d, 2" % (S_RB, S_RB))
    a("s_and_b32 s%d, s%d, 3" % (S_T1, S_T0))
    a("s_add_u32 s%d, s%d, s%d" % (S_RB, S_RB, S_T1))
    a("s_and_b32 s%d, s3, 1" % S_CG)
    a("s_lshl_b32 s%d, s%d, 3" % (S_CG, S_CG))
    a("s_lshr_b32 s%d, s%d, 2" % (S_T1, S_T0))
    a("s_add_u32 s%d, s%d, s%d" % (S_CG, S_CG, S_T1))
    a("s_and_b32 s%d, s%d, 3" % (S_WAVE, S_ROLE))
    a("s_lshl_b32 s%d, s%d, 12" % (S_M0X, S_WAVE))
    a("s_mul_i32 s%d, s%d, 3072" % (S_M0W, S_WAVE))
    a("s_add_u32 s%d, s%d, 16384" % (S_M0W, S_M0W))
    a("s_mov_b32 s%d, 0xffff0000" % S_MASK)

    def lds_addr_setup(rotate):
        a("v_and_b32 v%d, 31, v%d" % (V_T, V_LANE))
        a("v_and_b32 v%d, 3, v%d" % (V_T + 1, V_LANE))
        a("v_lshrrev_b32 v%d, 2, v%d" % (V_T + 2, V_T))
        a("v_lshlrev_b32 v%d, 7, v%d" % (V_T + 2, V_T + 2))
        a("v_lshl_add_u32 v%d, v%d, 10, v%d" % (V_T + 2, V_T + 1, V_T + 2))
        a("v_add_u32 v%d, s%d, v%d" % (V_T + 2, S_M0X, V_T + 2))
        a("v_lshrrev_b32 v%d, 1, v%d" % (V_T + 3, V_T))
        a("v_and_b32 v%d, 4, v%d" % (V_T + 3, V_T + 3))
        a("v_or_b32 v%d, v%d, v%d" % (V_T + 3, V_T + 3, V_T + 1))
        a("v_lshrrev_b32 v%d, 5, v%d" % (V_T + 4, V_LANE))
        a("v_xor_b32 v%d, v%d, v%d" % (V_T + 3, V_T + 3, V_T + 4))
        a("v_bfe_u32 v%d, v%d, 2, 2" % (V_T + 5, V_LANE))
        a("v_lshl_add_u32 v%d, v%d, 3, v%d" % (V_T + 5, V_T + 4, V_T + 5))
        a("v_lshlrev_b32 v%d, 6, v%d" % (V_T + 5, V_T + 5))
        a("v_bfe_u32 v%d, v%d, 4, 1" % (V_T + 4, V_LANE))
        a("v_lshl_add_u32 v%d, v%d, 5, v%d" % (V_T + 5, V_T + 4, V_T + 5))
        a("v_lshl_add_u32 v%d, v%d, 3, v%d" % (V_T + 5, V_T + 1, V_T + 5))
        for ks in range(4):
            a("v_xor_b32 v%d, %d, v%d" % (V_T + 4, 2 * ks, V_T + 3))
            a("v_lshl_add_u32 v%d, v%d, 4, v%d" % (V_AX + ks, V_T + 4, V_T + 2))

    a("s_cmp_ge_u32 s%d, 8" % S_ROLE)
    a("s_cbranch_scc1 L_k1_stats")
    a("s_cmp_ge_u32 s%d, 4" % S_ROLE)
    a("s_cbranch_scc1 L_k1_compute")
    if K1_ROT:
        a("s_add_u32 s%d, s%d, s%d" % (S_KC, S_RB, S_CG))
        a("s_and_b32 s%d, s%d, 7" % (S_KC, S_KC))
    else:
        a("s_mov_b32 s%d, 0" % S_KC)
    a("v_lshrrev_b32 v%d, 3, v%d" % (V_T, V_LANE))
    a("v_lshlrev_b32 v%d, 12, v%d" % (V_T, V_T))
    a("v_and_b32 v%d, 7, v%d" % (V_T + 1, V_LANE))
    a("v_lshrrev_b32 v%d, 2, v%d" % (V_T + 2, V_LANE))
    a("v_and_b32 v%d, 4, v%d" % (V_T + 2, V_T + 2))
    a("v_xor_b32 v%d, v%d, v%d" % (V_T + 1, V_T + 1, V_T + 2))
    for q in range(4):
        a("v_xor_b32 v%d, %d, v%d" % (V_T + 3, q, V_T + 1))
        a("v_lshl_add_u32 v%d, v%d, 4, v%d" % (V_DX + q, V_T + 3, V_T))
    a("v_lshrrev_b32 v%d, 2, v%d" % (V_T, V_LANE))
    a("v_mul_u32_u24 v%d, 3072, v%d" % (V_T, V_T))
    a("v_and_b32 v%d, 3, v%d" % (V_T + 1, V_LANE))
    a("v_lshl_add_u32 v%d, v%d, 4, v%d" % (V_DW, V_T + 1, V_T))
    a("s_lshl_b32 s%d, s%d, 2" % (S_T0, S_RB))
    a("s_add_u32 s%d, s%d, s%d" % (S_T0, S_T0, S_WAVE))
    a("s_lshl_b32 s%d, s%d, 15" % (S_SX, S_T0))
    a("s_mul_i32 s%d, s%d, %d" % (S_SW, S_WAVE, 16 * 3072))
    a("s_lshl_b32 s%d, s%d, 6" % (S_T1, S_CG))
    a("s_add_u32 s%d, s%d, s%d" % (S_SW, S_SW, S_T1))
    S_OX, S_OW, S_SLOT, S_CNT, S_RD = 38, 39, 40, 41, 43
    a("s_mov_b32 s%d, 0" % S_SLOT)
    a("s_mov_b32 s%d, 0" % S_CNT)
    a("s_waitcnt lgkmcnt(0)")
    srd(a, 12, 4, 2048 * 1024)
    srd(a, 16, 6, 512 * 3072)

    def issue():
        a("s_lshl_b32 s%d, s%d, 7" % (S_OX, S_KC))
        a("s_add_u32 s%d, s%d, s%d" % (S_OX, S_OX, S_SX))
        a("s_add_u32 m0, s%d, s%d" % (S_M0X, S_SLOT))
        a("s_mul_i32 s%d, s%d, %d" % (S_OW, S_KC, 64 * 3072))
        for q in range(4):
            a("buffer_load_dwordx4 v%d, s[12:15], s%d offen offset:%d lds" % (V_DX + q, S_OX, q * 1024))
        a("s_add_u32 m0, s%d, s%d" % (S_M0W, S_SLOT))
        a("s_add_u32 s%d, s%d, s%d" % (S_OW, S_OW, S_SW))
        for sx in range(3):
            a("buffer_load_dwordx4 v%d, s[16:19], s%d offen offset:%d lds" % (V_DW, S_OW, sx * 1024))
        a("s_add_u32 s%d, s%d, 1" % (S_KC, S_KC))
        a("s_and_b32 s%d, s%d, 7" % (S_KC, S_KC))
        a("s_add_u32 s%d, s%d, %d" % (S_SLOT, S_SLOT, SLOT))
        a("s_cmp_eq_u32 s%d, %d" % (S_SLOT, NS1 * SLOT))
        a("s_cselect_b32 s%d, 0, s%d" % (S_SLOT, S_SLOT))

    a.label("L_k1_ld")
    issue()
    a("s_add_u32 s%d, s%d, 1" % (S_CNT, S_CNT))
    a("s_cmp_lt_u32 s%d, %d" % (S_CNT, K1_DIST))
    a("s_cbranch_scc1 L_k1_ld")
    a("s_waitcnt vmcnt(%d)" % (7 * (K1_DIST - 1)))
    a("s_barrier")
    a("s_cmp_lt_u32 s%d, 8" % S_CNT)
    a("s_cbranch_scc1 L_k1_ld")
    for r in range(K1_DIST - 2, -1, -1):
        a("s_waitcnt vmcnt(%d)" % (7 * r))
        a("s_barrier")
    a("s_endpgm")
    a.label("L_k1_stats")
    LX = [64, 68, 72, 76]
    LW = [80, 84, 88]
    L_SX = 92
    L_CS = [96, 100, 104]
    lds_addr_setup(False)
    a("v_add_u32 v%d, s%d, v%d" % (V_AW, S_M0W, V_T + 5))
    make_sel(a, V_LANE, V_SEL, V_T)
    for r in [V_SQ, V_SQ + 1] + list(range(L_SX, L_SX + 16)):
        a("v_mov_b32 v%d, 0" % r)
    a("s_mov_b32 s44, %d" % SLOT)
    a("s_mov_b32 s%d, 0" % S_CNT)
    a.label("L_k1_st")
    a("s_barrier")
    for ks in range(4):
        a("ds_read_b128 %s, v%d" % (vr(LX[ks]), V_AX + ks))
    for sx in range(3):
        for rd in range(2):
            a("ds_read_b64_tr_b16 %s, v%d offset:%d" % (vr(LW[sx] + 2 * rd, 2), V_AW, sx * 1024 + rd * 256))
    a("s_add_u32 s%d, s%d, 1" % (S_CNT, S_CNT))
    a("s_and_b32 s%d, s%d, %d" % (S_T0, S_CNT, NS1 - 1))
    a("s_cmp_eq_u32 s%d, 0" % S_T0)
    a("s_cselect_b32 s%d, %d, s44" % (S_RD, -(NS1 - 1) * SLOT))
    for ks in range(4):
        a("s_waitcnt lgkmcnt(%d)" % (9 - ks))
        a("v_mfma_f32_16x16x32_bf16 %s, %s, %s, %s" % (vr(L_SX), vr(V_SEL), vr(LX[ks]), vr(L_SX)))
        for d in range(4):
            t0, t1 = V_TMP + 2 * (d % 2), V_TMP + 2 * (d % 2) + 1
            a("v_lshlrev_b32 v%d, 16, v%d" % (t0, LX[ks] + d))
            a("v_and_b32 v%d, s%d, v%d" % (t1, S_MASK, LX[ks] + d))
            a("v_fmac_f32 v%d, v%d, v%d" % (V_SQ, t0, t0))
            a("v_fmac_f32 v%d, v%d, v%d" % (V_SQ + 1, t1, t1))
        if ks == 1:
            a("s_waitcnt lgkmcnt(0)")
            for sx in range(3):
                a("v_mfma_f32_16x16x32_bf16 %s, %s, %s, %s" % (vr(L_CS[sx]), vr(V_SEL), vr(LW[sx]), vr(L_CS[sx])))
    for r in list(range(V_AX, V_AX + 4)) + [V_AW]:
        a("v_add_u32 v%d, s%d, v%d" % (r, S_RD, r))
    a("s_cmp_lt_u32 s%d, 8" % S_CNT)
    a("s_cbranch_scc1 L_k1_st")
    a("v_and_b32 v%d, 31, v%d" % (V_T, V_LANE))
    a("v_lshlrev_b32 v%d, 2, v%d" % (V_T, V_T))
    a("s_mul_i32 s%d, s%d, 384" % (S_T0, S_WAVE))
    a("s_add_u32 s%d, s%d, %d" % (S_T0, S_T0, LDS_SCR))
    a("v_add_u32 v%d, s%d, v%d" % (V_T + 1, S_T0, V_T))
    for sx in range(3):
        a("ds_write_b32 v%d, v%d offset:%d" % (V_T + 1, L_CS[sx], sx * 128))
    a("v_add_f32 v%d, v%d, v%d" % (V_SQ, V_SQ, V_SQ + 1))
    sum_halves(a, V_SQ, V_SQ + 1)
    V_MU, V_RS = V_SQ + 2, V_SQ + 3
    a("v_mul_f32 v%d, 0x%x, v%d" % (V_MU, f32bits(1.0 / 512), L_SX))
    a("v_mul_f32 v%d, 0x%x, v%d" % (V_SQ, f32bits(1.0 / 512), V_SQ))
    a("v_fma_f32 v%d, -v%d, v%d, v%d" % (V_SQ, V_MU, V_MU, V_SQ))
    a("v_max_f32 v%d, 0, v%d" % (V_SQ, V_SQ))
    a("v_add_f32 v%d, 0x%x, v%d" % (V_SQ, f32bits(1e-5), V_SQ))
    a("v_rsq_f32 v%d, v%d" % (V_RS, V_SQ))
    a("v_sub_f32 v%d, 0, v%d" % (V_MU, V_MU))
    a("s_lshl_b32 s%d, s%d, 7" % (S_T0, S_WAVE))
    a("s_add_u32 s%d, s%d, %d" % (S_T0, S_T0, SCR_RS))
    a("v_add_u32 v%d, s%d, v%d" % (V_T + 2, S_T0, V_T))
    a("ds_write_b32 v%d, v%d" % (V_T + 2, V_RS))
    split_hi_lo_B(a, V_MU, LX[0], V_T + 4, S_MASK)
    a("s_lshl_b32 s%d, s%d, 9" % (S_T0, S_WAVE))
    a("s_add_u32 s%d, s%d, %d" % (S_T0, S_T0, SCR_BF))
    a("v_lshl_add_u32 v%d, v%d, 3, s%d" % (V_T + 3, V_LANE, S_T0))
    a("ds_write_b64 v%d, %s" % (V_T + 3, vr(LX[0], 2)))
    a("s_waitcnt lgkmcnt(0)")
    a("s_barrier")
    a("s_endpgm")
    a.label("L_k1_compute")
    lds_addr_setup(False)
    a("v_add_u32 v%d, 16384, v%d" % (V_AW, V_T + 5))
    V_ECS, V_ERS, V_ERV, V_EBF, V_OQ, V_OV = 18, 19, 20, 21, 22, 23
    a("v_and_b32 v%d, 31, v%d" % (V_T, V_LANE))
    a("v_lshlrev_b32 v%d, 2, v%d" % (V_T, V_T))
    a("v_lshrrev_b32 v%d, 5, v%d" % (V_T + 2, V_LANE))
    a("v_mul_u32_u24 v%d, 768, v%d" % (V_T + 3, V_T + 2))
    a("v_add_u32 v%d, v%d, v%d" % (V_T + 3, V_T + 3, V_T))
    a("v_add_u32 v%d, %d, v%d" % (V_ECS, LDS_SCR, V_T + 3))
    a("s_lshl_b32 s%d, s%d, 7" % (S_T0, S_WAVE))
    a("s_add_u32 s%d, s%d, %d" % (S_T0, S_T0, SCR_RS))
    a("v_add_u32 v%d, s%d, v%d" % (V_ERS, S_T0, V_T))
    a("v_lshl_add_u32 v%d, v%d, 4, s%d" % (V_ERV, V_T + 2, S_T0))
    a("s_lshl_b32 s%d, s%d, 9" % (S_T0, S_WAVE))
    a("s_add_u32 s%d, s%d, %d" % (S_T0, S_T0, SCR_BF))
    a("v_lshl_add_u32 v%d, v%d, 3, s%d" % (V_EBF, V_LANE, S_T0))
    a("v_lshlrev_b32 v%d, 4, v%d" % (V_OQ, V_LANE))
    a("v_bfe_u32 v%d, v%d, 4, 1" % (V_T + 1, V_LANE))
    a("v_lshlrev_b32 v%d, 16, v%d" % (V_T + 1, V_T + 1))
    a("v_lshl_add_u32 v%d, v%d, 8, v%d" % (V_T + 1, V_T + 2, V_T + 1))
    a("v_and_b32 v%d, 15, v%d" % (V_T + 2, V_LANE))
    a("v_lshl_add_u32 v%d, v%d, 4, v%d" % (V_OV, V_T + 2, V_T + 1))
    a("s_lshl_b32 s%d, s%d, 2" % (S_T0, S_RB))
    a("s_add_u32 s%d, s%d, s%d" % (S_T0, S_T0, S_WAVE))
    a("s_lshl_b32 s%d, s%d, 10" % (S_T0, S_T0))
    a("s_lshl_b32 s%d, s%d, 17" % (S_T1, S_CG))
    a("s_add_u32 s%d, s%d, s%d" % (S_T0, S_T0, S_T1))
    a("s_add_u32 s%d, s%d, 65536" % (S_T1, S_T0))
    a("s_add_u32 s35, s%d, %d" % (S_T0, WS_K))
    a("s_add_u32 s36, s%d, %d" % (S_T1, WS_K))
    a("s_add_u32 s37, s%d, %d" % (S_T0, WS_V))
    VB = V_TMP
    VA = [V_TMP + 4, V_TMP + 8, V_TMP + 12]
    for r in (VB + 2, VB + 3):
        a("v_mov_b32 v%d, 0" % r)
    cur_base = [0]

    def reads(P):
        st, ks = P // 4, P % 4
        slot = st % NS1
        base, imm = (slot // 2) * 2 * SLOT, (slot % 2) * SLOT
        out = []
        if base != cur_base[0]:
            d = base - cur_base[0]
            for r in list(range(V_AX, V_AX + 4)) + [V_AW]:
                out.append("v_add_u32 v%d, %d, v%d" % (r, d, r) if d > 0 else "v_subrev_u32 v%d, %d, v%d" % (r, -d, r))
            cur_base[0] = base
        b = P % 2
        out.append("ds_read_b128 %s, v%d offset:%d" % (vr(V_X[b]), V_AX + ks, imm))
        for sx in range(3):
            for rd in range(2):
                out.append("ds_read_b64_tr_b16 %s, v%d offset:%d" % (vr(V_W[b][sx] + 2 * rd, 2), V_AW, imm + ks * 3072 + sx * 1024 + rd * 256))
        return out

    a("s_waitcnt lgkmcnt(0)")
    srd(a, 20, 8, WS_SIZE)
    a("s_cmp_ge_u32 s2, 4")
    a("s_cbranch_scc1 L_k1_nozero")
    for r in range(4):
        a("v_mov_b32 v%d, 0" % (V_ACC[0] + r))
    a("s_lshl_b32 s3, s2, 2")
    a("s_add_u32 s3, s3, s%d" % S_WAVE)
    a("s_lshl_b32 s3, s3, 10")
    a("s_add_u32 s3, s3, %d" % WS_FL)
    a("buffer_store_dwordx4 %s, v%d, s[20:23], s3 offen" % (vr(V_ACC[0]), V_OQ))
    a.label("L_k1_nozero")
    a.ts("k1")
    a("s_barrier")
    a.ts("k1")
    for l in reads(0):
        a(l)
    for P in range(32):
        st, pos = P // 4, P % 4
        b = P % 2
        a("s_waitcnt lgkmcnt(0)")
        if pos == 3 and P < 31:
            a("s_barrier")
        rd = reads(P + 1) if P < 31 else []
        X = vr(V_X[b])
        c = lambda r, n=16: ("0" if P == 0 else vr(r, n))
        m = []
        m.append("v_mfma_f32_32x32x16_bf16 %s, %s, %s, %s" % (vr(V_ACC[0], 16), vr(V_W[b][0]), X, c(V_ACC[0])))
        m.append("v_mfma_f32_32x32x16_bf16 %s, %s, %s, %s" % (vr(V_ACC[1], 16), vr(V_W[b][1]), X, c(V_ACC[1])))
        m.append("v_mfma_f32_32x32x16_bf16 %s, %s, %s, %s" % (vr(V_ACC[2], 16), X, vr(V_W[b][2]), c(V_ACC[2])))
        nfirst = 3 if len(rd) <= 8 else 8
        for l in rd[:nfirst]:
            a(l)
        for l in interleave(m, rd[nfirst:], per=2):
            a(l)
    a.ts("k1")
    a("s_barrier")
    VC = V_TMP + 16
    V_RS = V_TMP + 22
    V_RQ = V_TMP + 23
    VR = V_TMP + 24
    for sx in range(3):
        a("ds_read2_b32 %s, v%d offset0:%d offset1:%d" % (vr(VC + 2 * sx, 2), V_ECS, sx * 32, sx * 32 + 96))
    a("ds_read_b64 %s, v%d" % (vr(VB, 2), V_EBF))
    a("ds_read_b32 v%d, v%d" % (V_RS, V_ERS))
    for q in range(4):
        a("ds_read_b128 %s, v%d offset:%d" % (vr(VR + 4 * q), V_ERV, q * 32))
    for sx in range(3):
        a("s_waitcnt lgkmcnt(%d)" % (8 - sx))
        a("v_add_f32 v%d, v%d, v%d" % (VC + 2 * sx, VC + 2 * sx, VC + 2 * sx + 1))
        split_hi_lo_A(a, VC + 2 * sx, VA[sx], V_T + 4, S_MASK)
    a("s_waitcnt lgkmcnt(4)")
    a("v_mul_f32 v%d, 0x%x, v%d" % (V_RQ, f32bits(0.25 * math.log2(math.e)), V_RS))
    a("v_mfma_f32_32x32x16_bf16 %s, %s, %s, %s" % (vr(V_ACC[0], 16), vr(VA[0]), vr(VB), vr(V_ACC[0], 16)))
    a("v_mfma_f32_32x32x16_bf16 %s, %s, %s, %s" % (vr(V_ACC[1], 16), vr(VA[1]), vr(VB), vr(V_ACC[1], 16)))
    a("v_mfma_f32_32x32x16_bf16 %s, %s, %s, %s" % (vr(V_ACC[2], 16), vr(VB), vr(VA[2]), vr(V_ACC[2], 16)))
    a("s_nop 9")
    VO = V_X[0]
    k = 0
    for blk, sc, soffs in ((0, V_RQ, (S_T0, S_T1)), (1, V_RS, (35, 36))):
        for half in range(2):
            o = VO + 4 * k
            k += 1
            for i in range(8):
                r = V_ACC[blk] + 8 * half + i
                a("v_mul_f32 v%d, v%d, v%d" % (r, sc, r))
            for i in range(4):
                r = V_ACC[blk] + 8 * half + 2 * i
                a("v_cvt_pk_bf16_f32 v%d, v%d, v%d" % (o + i, r, r + 1))
            a("buffer_store_dwordx4 %s, v%d, s[20:23], s%d offen" % (vr(o), V_OQ, soffs[half]))
    a("s_waitcnt lgkmcnt(0)")
    for half in range(2):
        o = VO + 4 * k
        k += 1
        for i in range(8):
            r = V_ACC[2] + 8 * half + i
            a("v_mul_f32 v%d, v%d, v%d" % (r, VR + 8 * half + i, r))
        for i in range(4):
            r = V_ACC[2] + 8 * half + 2 * i
            a("v_cvt_pk_bf16_f32 v%d, v%d, v%d" % (o + i, r, r + 1))
        a("buffer_store_dwordx4 %s, v%d, s[20:23], s37 offen offset:%d" % (vr(o), V_OV, half * 512))
    a.ts_flush("k1", S_WAVE, V_T)
    a.label("L_k1_end")
    a("s_endpgm")
    return name, 152, 0, (256, 768, LDS_SCR + 4096)


def gen_k2(a):
    name = "k2_attn_kernel"
    kernel_begin(a, name)
    S_WAVE, S_H, S_QB, S_T0, S_T1, S_T2, S_T3 = 40, 41, 42, 43, 44, 45, 46
    S_ITER, S_SYNC, S_PASS, S_NT = 47, 48, 49, 50
    S_TASK, S_STG, S_DST0, S_DST1, S_TYPE = 51, 52, 53, 54, 55
    S_VMASK = 56
    S_CS = 58
    S_KB, S_W1K, S_CH = 59, 60, 61
    S_PE, S_PO, S_PS = 36, 37, 38
    V_LANE, V_L16, V_T = 1, 2, 3
    V_KA, V_VA = 10, 11
    V_Q = 12
    V_K = [16, 20]
    V_V = [24, 32]
    V_P = 40
    V_CM = 48
    V_S = [64, 80]
    V_O = 96
    V_MAX = 112
    V_PK = 113
    V_PD = 114
    V_SEL = 116
    V_PCS = [120, 124]
    STG = 131072
    a("s_cmp_ge_u32 s2, 256")
    a("s_cbranch_scc1 L_k2_end")
    a.ts("k2")
    a.ts("k2b")
    a("s_load_dwordx2 s[8:9], s[0:1], %d" % ARG_WS)
    a("s_load_dwordx2 s[4:5], s[0:1], %d" % ARG_WO)
    a("s_load_dwordx4 s[24:27], s[0:1], %d" % ARG_WG)
    a("s_load_dwordx2 s[6:7], s[0:1], %d" % ARG_WD)
    a("v_lshrrev_b32 v%d, 6, v0" % V_T)
    a("v_and_b32 v%d, 63, v0" % V_LANE)
    a("v_readfirstlane_b32 s%d, v%d" % (S_WAVE, V_T))
    a("v_lshlrev_b32 v%d, 4, v%d" % (V_L16, V_LANE))
    a("s_and_b32 s%d, s2, 7" % S_H)
    a("s_lshl_b32 s%d, s%d, 2" % (S_H, S_H))
    a("s_lshr_b32 s%d, s2, 6" % S_T0)
    a("s_add_u32 s%d, s%d, s%d" % (S_H, S_H, S_T0))
    a("s_lshr_b32 s%d, s2, 3" % S_QB)
    a("s_and_b32 s%d, s%d, 7" % (S_QB, S_QB))
    a("s_lshl_b32 s%d, s%d, 16" % (S_KB, S_H))
    a("s_lshl_b32 s%d, s%d, 10" % (S_W1K, S_WAVE))
    a("s_add_u32 s%d, s%d, s%d" % (S_KB, S_KB, S_W1K))
    a("s_lshl_b32 s%d, s%d, 13" % (S_CH, S_QB))
    a("s_add_u32 s%d, s%d, s%d" % (S_T3, S_KB, S_CH))
    a("s_add_u32 s%d, s%d, %d" % (S_KB, S_KB, WS_K))
    if not K2_ROT:
        a("s_mov_b32 s%d, 0" % S_CH)
    a("s_waitcnt lgkmcnt(0)")
    a.ts("k2b")
    srd(a, 20, 8, WS_SIZE)
    a("buffer_load_dwordx4 %s, v%d, s[20:23], s%d offen" % (vr(V_Q), V_L16, S_T3))
    if INSTR == "k2b":
        a("s_waitcnt vmcnt(0)")
    a.ts("k2b")

    def kv_dma(c):
        return [["s_add_u32 s%d, s%d, s%d" % (S_T3, S_KB, S_CH),
                 "s_add_u32 m0, s%d, %d" % (S_W1K, c * 8192),
                 "s_add_u32 s%d, s%d, 8192" % (S_CH, S_CH),
                 "buffer_load_dwordx4 v%d, s[20:23], s%d offen lds" % (V_L16, S_T3)],
                ["s_add_u32 s%d, s%d, %d" % (S_T3, S_T3, WS_V - WS_K),
                 "s_add_u32 m0, s%d, %d" % (S_W1K, 65536 + c * 8192),
                 "s_and_b32 s%d, s%d, 0xffff" % (S_CH, S_CH),
                 "buffer_load_dwordx4 v%d, s[20:23], s%d offen lds" % (V_L16, S_T3)]]

    for c in range(2):
        for g in kv_dma(c):
            for l in g:
                a(l)
    a("s_mov_b32 s%d, 0" % S_TYPE)
    a("s_cmp_lt_u32 s%d, 4" % S_WAVE)
    a("s_cbranch_scc1 L_k2_nopack")
    a("s_lshl_b32 s%d, s2, 2" % S_TASK)
    a("s_add_u32 s%d, s%d, s%d" % (S_TASK, S_TASK, S_WAVE))
    a("s_sub_u32 s%d, s%d, 4" % (S_TASK, S_TASK))
    a("s_cmp_ge_u32 s%d, 736" % S_TASK)
    a("s_cbranch_scc1 L_k2_nopack")
    a("s_lshl_b32 s%d, s%d, 13" % (S_STG, S_WAVE))
    a("s_add_u32 s%d, s%d, %d" % (S_STG, S_STG, STG - 4 * 8192))
    a("v_lshrrev_b32 v%d, 2, v%d" % (V_T, V_LANE))
    a("v_and_b32 v%d, 3, v%d" % (V_T + 1, V_LANE))
    a("s_cmp_ge_u32 s%d, 448" % S_TASK)
    a("s_cbranch_scc1 L_k2_packn")
    a("s_mov_b32 s%d, 1" % S_TYPE)
    srd(a, 28, 24, 512 * 3584)
    srd(a, 32, 26, 512 * 3584)
    a("v_mul_u32_u24 v%d, 3584, v%d" % (V_T, V_T))
    a("v_lshl_add_u32 v%d, v%d, 4, v%d" % (V_PD, V_T + 1, V_T))
    a("s_and_b32 s%d, s%d, 7" % (S_T0, S_TASK))
    a("s_lshr_b32 s%d, s%d, 3" % (S_T1, S_TASK))
    a("s_mul_i32 s%d, s%d, %d" % (S_PE, S_T0, 64 * 3584))
    a("s_lshl_b32 s%d, s%d, 6" % (S_T2, S_T1))
    a("s_add_u32 s%d, s%d, s%d" % (S_PE, S_PE, S_T2))
    a("s_mov_b32 s%d, s%d" % (S_PO, S_PE))
    a("s_mov_b32 s%d, %d" % (S_PS, 16 * 3584))
    for hb, sd in ((0, S_DST0), (1, S_DST1)):
        a("s_lshl_b32 s%d, s%d, 1" % (S_T2, S_T1))
        if hb:
            a("s_add_u32 s%d, s%d, 1" % (S_T2, S_T2))
        a("s_mul_i32 s%d, s%d, 9363" % (S_CS, S_T2))
        a("s_lshr_b32 s%d, s%d, 16" % (S_CS, S_CS))
        a("s_mul_i32 s%d, s%d, 7" % (sd, S_CS))
        a("s_sub_u32 s%d, s%d, s%d" % (sd, S_T2, sd))
        a("s_mul_i32 s%d, s%d, %d" % (S_CS, S_CS, 32 * 7))
        a("s_add_u32 s%d, s%d, s%d" % (sd, sd, S_CS))
        a("s_mul_i32 s%d, s%d, 28" % (S_CS, S_T0))
        a("s_add_u32 s%d, s%d, s%d" % (sd, sd, S_CS))
        a("s_lshl_b32 s%d, s%d, 10" % (sd, sd))
        a("s_add_u32 s%d, s%d, %d" % (sd, sd, WS_GU))
    a("s_lshl_b32 s%d, s%d, 11" % (S_CS, S_T1))
    a("s_lshr_b32 s%d, s%d, 2" % (S_T2, S_T0))
    a("s_lshl_b32 s%d, s%d, 9" % (S_T2, S_T2))
    a("s_add_u32 s%d, s%d, s%d" % (S_CS, S_CS, S_T2))
    a("s_and_b32 s%d, s%d, 3" % (S_T2, S_T0))
    a("s_lshl_b32 s%d, s%d, 2" % (S_T2, S_T2))
    a("s_add_u32 s%d, s%d, s%d" % (S_CS, S_CS, S_T2))
    a("s_add_u32 s%d, s%d, %d" % (S_CS, S_CS, WS_CS))
    a("s_branch L_k2_nopack")
    a.label("L_k2_packn")
    a("s_mov_b32 s%d, 2" % S_TYPE)
    a("v_lshlrev_b32 v%d, 10, v%d" % (V_T, V_T))
    a("v_lshl_add_u32 v%d, v%d, 4, v%d" % (V_PD, V_T + 1, V_T))
    a("s_cmp_ge_u32 s%d, 512" % S_TASK)
    a("s_cbranch_scc1 L_k2_packd")
    srd(a, 28, 4, 512 * 1024)
    srd(a, 32, 4, 512 * 1024)
    a("s_sub_u32 s%d, s%d, 448" % (S_T0, S_TASK))
    a("s_lshr_b32 s%d, s%d, 2" % (S_T1, S_T0))
    a("s_and_b32 s%d, s%d, 3" % (S_T0, S_T0))
    a("s_lshl_b32 s%d, s%d, 15" % (S_DST0, S_T1))
    a("s_add_u32 s%d, s%d, %d" % (S_DST0, S_DST0, WS_WO))
    a("s_branch L_k2_packc")
    a.label("L_k2_packd")
    srd(a, 28, 6, 1792 * 1024)
    srd(a, 32, 6, 1792 * 1024)
    a("s_sub_u32 s%d, s%d, 512" % (S_T0, S_TASK))
    a("s_mul_i32 s%d, s%d, 4682" % (S_T1, S_T0))
    a("s_lshr_b32 s%d, s%d, 16" % (S_T1, S_T1))
    a("s_mul_i32 s%d, s%d, 14" % (S_T2, S_T1))
    a("s_sub_u32 s%d, s%d, s%d" % (S_T0, S_T0, S_T2))
    a("s_mul_i32 s%d, s%d, %d" % (S_DST0, S_T1, 112 * 1024))
    a("s_add_u32 s%d, s%d, %d" % (S_DST0, S_DST0, WS_WD))
    a.label("L_k2_packc")
    a("s_lshl_b32 s%d, s%d, 13" % (S_T2, S_T0))
    a("s_add_u32 s%d, s%d, s%d" % (S_DST0, S_DST0, S_T2))
    a("s_lshl_b32 s%d, s%d, 17" % (S_PE, S_T0))
    a("s_lshl_b32 s%d, s%d, 6" % (S_T2, S_T1))
    a("s_add_u32 s%d, s%d, s%d" % (S_PE, S_PE, S_T2))
    a("s_add_u32 s%d, s%d, 16384" % (S_PO, S_PE))
    a("s_mov_b32 s%d, 32768" % S_PS)
    a.label("L_k2_nopack")
    a("s_mov_b32 s%d, 0x0000ffff" % S_VMASK)
    a("s_mov_b32 s%d, 0x0000ffff" % (S_VMASK + 1))
    a("v_and_b32 v%d, 27, v%d" % (V_T, V_LANE))
    a("v_cmp_eq_u32 vcc, 16, v%d" % V_T)
    a("v_mov_b32 v%d, 0x%x" % (V_T + 1, ONES_BF16))
    a("s_nop 1")
    a("v_cndmask_b32 v%d, 0, v%d, vcc" % (V_V[0], V_T + 1))
    for i in range(1, 16):
        a("v_mov_b32 v%d, v%d" % (V_V[0] + i, V_V[0]))
    a("s_mov_b32 s%d, 0" % S_SYNC)
    a("s_mov_b32 s%d, 0" % S_PASS)
    a("s_mov_b32 s%d, 1" % S_NT)
    a("s_setprio 3")
    a.ts("k2b")
    a("s_waitcnt vmcnt(2)")
    a.ts("k2b")
    a("s_barrier")
    a.ts("k2")
    a.ts("k2b")
    a.label("L_k2_maxpass")
    a("v_mov_b32 v%d, 0xff800000" % V_MAX)
    a("v_mov_b32 v%d, v%d" % (V_KA, V_L16))
    a.label("L_k2_mloop")
    a("ds_read_b128 %s, v%d" % (vr(V_K[0]), V_KA))
    a("v_add_u32 v%d, 1024, v%d" % (V_KA, V_KA))
    a("s_waitcnt lgkmcnt(0)")
    a("v_mfma_f32_32x32x16_bf16 %s, %s, %s, 0" % (vr(V_S[0], 16), vr(V_K[0]), vr(V_Q)))
    a("s_nop 15")
    for i in range(8):
        a("v_max3_f32 v%d, v%d, v%d, v%d" % (V_MAX, V_S[0] + 2 * i, V_S[0] + 2 * i + 1, V_MAX))
    a("s_sub_u32 s%d, s%d, 1" % (S_NT, S_NT))
    a("s_cmp_lg_u32 s%d, 0" % S_NT)
    a("s_cbranch_scc1 L_k2_mloop")
    a("v_mov_b32 v%d, v%d" % (V_KA, V_L16))
    a("v_lshrrev_b32 v%d, 5, v%d" % (V_T, V_LANE))
    a("v_lshlrev_b32 v%d, 8, v%d" % (V_T, V_T))
    a("v_and_b32 v%d, 15, v%d" % (V_T + 1, V_LANE))
    a("v_lshl_add_u32 v%d, v%d, 4, v%d" % (V_VA, V_T + 1, V_T))
    a("v_add_u32 v%d, 65536, v%d" % (V_VA, V_VA))
    a("ds_read_b128 %s, v%d" % (vr(V_K[0]), V_KA))
    a("ds_read_b128 %s, v%d offset:1024" % (vr(V_K[1]), V_KA))
    a("s_mov_b64 exec, s[%d:%d]" % (S_VMASK, S_VMASK + 1))
    a("ds_read_b128 %s, v%d" % (vr(V_V[0]), V_VA))
    a("ds_read_b128 %s, v%d offset:512" % (vr(V_V[0] + 4), V_VA))
    a("s_mov_b64 exec, -1")
    a("v_mov_b32 v%d, v%d" % (V_T, V_MAX))
    a("s_nop 1")
    a("v_permlane32_swap_b32 v%d, v%d" % (V_MAX, V_T))
    a("s_nop 1")
    a("v_max_f32 v%d, v%d, v%d" % (V_MAX, V_MAX, V_T))
    for i in range(16):
        a("v_sub_f32 v%d, 0, v%d" % (V_CM + i, V_MAX))
    a("s_waitcnt lgkmcnt(0)")
    a("s_nop 0")
    a("v_mfma_f32_32x32x16_bf16 %s, %s, %s, %s" % (vr(V_S[0], 16), vr(V_K[0]), vr(V_Q), vr(V_CM, 16)))
    for i in range(16):
        a("v_mov_b32 v%d, 0" % (V_O + i))
    for i in range(4):
        a("v_mov_b32 v%d, 0" % (V_P + 4 + i))
    a("s_mov_b32 s%d, 8" % S_ITER)
    a.ts("k2")
    a("s_cmp_lg_u32 s%d, 0" % S_PASS)
    a("s_cbranch_scc1 L_k2_loop")

    def body(peeled):
        for t in range(8):
            cur, nxt = t % 2, (t + 1) % 2
            x1, x2 = [], []
            if peeled:
                if t < 6:
                    x1, x2 = kv_dma(t + 2)
                if t == 6:
                    a("s_waitcnt vmcnt(12)")
                    a("s_barrier")
                if t >= 6:
                    lab = "L_k2_np%d" % t
                    x1 = ["s_cmp_eq_u32 s%d, 0" % S_TYPE, "s_cbranch_scc1 %s" % lab]
                    for i in range(4 * (t - 6), 4 * (t - 6) + 4):
                        x1 += ["s_add_u32 m0, s%d, %d" % (S_STG, i * 1024), "s_nop 0",
                               "buffer_load_dwordx4 v%d, s[%d:%d], s%d offen lds" % (V_PD, 28 + 4 * (i % 2), 31 + 4 * (i % 2), S_PO if i % 2 else S_PE),
                               "s_add_u32 s%d, s%d, s%d" % ((S_PO, S_PO, S_PS) if i % 2 else (S_PE, S_PE, S_PS))]
                    x1 += [lab + ":"]
            else:
                if t == 0:
                    for k, r in enumerate((5, 2, 1)):
                        x1 += ["s_cmp_lg_u32 s%d, %d" % (S_ITER, r), "s_cbranch_scc1 L_k2_pp%d" % k, "s_setprio %d" % (2 - k), "L_k2_pp%d:" % k]
                if t == 6:
                    a("s_cmp_eq_u32 s%d, 0" % S_SYNC)
                    a("s_cbranch_scc1 L_k2_sync")
                    a.label("L_k2_syncret")
            S = V_S[cur]
            e = lambda i: "v_exp_f32 v%d, v%d" % (S + i, S + i)
            c = lambda i: "v_cvt_pk_bf16_f32 v%d, v%d, v%d" % (V_P + i, S + 2 * i, S + 2 * i + 1)
            pv = lambda b, h: "v_mfma_f32_32x32x16_bf16 %s, %s, %s, %s" % (vr(V_O, 16), vr(V_V[b] + 4 * h), vr(V_P + 4 * h), vr(V_O, 16))
            qk = "v_mfma_f32_32x32x16_bf16 %s, %s, %s, %s" % (vr(V_S[nxt], 16), vr(V_K[nxt]), vr(V_Q), vr(V_CM, 16))
            rdk = "ds_read_b128 %s, v%d offset:%d" % (vr(V_K[cur]), V_KA, (t + 2) * 1024)
            rdv = ["s_mov_b64 exec, s[%d:%d]" % (S_VMASK, S_VMASK + 1),
                   "ds_read_b128 %s, v%d offset:%d" % (vr(V_V[nxt]), V_VA, (t + 1) * 1024),
                   "ds_read_b128 %s, v%d offset:%d" % (vr(V_V[nxt] + 4), V_VA, (t + 1) * 1024 + 512),
                   "s_mov_b64 exec, -1"]
            seq = [e(0), e(1), pv(nxt, 1), e(2), "s_waitcnt lgkmcnt(0)", rdk, e(3)] + rdv + [c(0), e(4), e(5), c(1), e(6), e(7), qk, c(2), e(8)] + x1 + [e(9), c(3),
                   e(10), e(11), c(4), e(12), e(13), pv(cur, 0), c(5), e(14)] + x2 + [e(15), c(6)]
            if t == 7:
                seq += ["v_add_u32 v%d, 8192, v%d" % (V_KA, V_KA), "v_add_u32 v%d, 8192, v%d" % (V_VA, V_VA),
                        "s_sub_u32 s%d, s%d, 1" % (S_ITER, S_ITER), "s_cmp_lg_u32 s%d, 0" % S_ITER]
            seq += [c(7)]
            for l in seq:
                if l.endswith(":"):
                    a.label(l[:-1])
                else:
                    a(l)

    body(True)
    a.raw(".p2align 6")
    a.label("L_k2_loop")
    body(False)
    a("s_cbranch_scc1 L_k2_loop")
    a.ts("k2")
    a("s_nop 1")
    a("v_mfma_f32_32x32x16_bf16 %s, %s, %s, %s" % (vr(V_O, 16), vr(V_V[1] + 4), vr(V_P + 4), vr(V_O, 16)))
    a("s_waitcnt lgkmcnt(0)")
    a("s_lshl_b32 s%d, s%d, 3" % (S_T0, S_QB))
    a("s_add_u32 s%d, s%d, s%d" % (S_T0, S_T0, S_WAVE))
    a("s_lshl_b32 s%d, s%d, 5" % (S_T0, S_T0))
    a("s_add_u32 s%d, s%d, s%d" % (S_T0, S_T0, S_H))
    a("s_lshl_b32 s%d, s%d, 10" % (S_T0, S_T0))
    a("s_add_u32 s%d, s%d, %d" % (S_T0, S_T0, WS_O))
    a("s_nop 7")
    a("v_mul_f32 v%d, 0, v%d" % (V_T, V_O))
    for i in range(1, 8):
        a("v_fmac_f32 v%d, 0, v%d" % (V_T, V_O + i))
    a("v_add_f32 v%d, v%d, v%d" % (V_T, V_T, V_O + 8))
    a("v_cmp_gt_f32 vcc, 0x%x, v%d" % (f32bits(2.0 ** 100), V_T))
    a("v_rcp_f32 v%d, v%d" % (V_T + 1, V_O + 8))
    a("s_cmp_lg_u32 s%d, 0" % S_PASS)
    a("s_cbranch_scc1 L_k2_fin")
    a("s_cmp_eq_u64 vcc, exec")
    a("s_cbranch_scc1 L_k2_fin")
    a("s_mov_b32 s%d, 1" % S_PASS)
    a("s_mov_b32 s%d, 64" % S_NT)
    a("s_branch L_k2_maxpass")
    a.label("L_k2_fin")
    for i in range(8):
        a("v_mul_f32 v%d, v%d, v%d" % (V_O + i, V_T + 1, V_O + i))
    for i in range(4):
        a("v_cvt_pk_bf16_f32 v%d, v%d, v%d" % (V_P + i, V_O + 2 * i, V_O + 2 * i + 1))
    a("buffer_store_dwordx4 %s, v%d, s[20:23], s%d offen" % (vr(V_P), V_L16, S_T0))
    a.ts_flush("k2", S_WAVE, V_T)
    a.ts_flush("k2b", S_WAVE, V_T)
    a.label("L_k2_end")
    a("s_endpgm")
    a.label("L_k2_sync")
    a("s_mov_b32 s%d, 1" % S_SYNC)
    a("s_waitcnt vmcnt(0)")
    a("s_barrier")
    a("s_cmp_eq_u32 s%d, 0" % S_TYPE)
    a("s_cbranch_scc1 L_k2_syncret")
    a("v_bfe_u32 v%d, v%d, 2, 2" % (V_T, V_LANE))
    a("v_lshrrev_b32 v%d, 5, v%d" % (V_T + 1, V_LANE))
    a("v_lshl_add_u32 v%d, v%d, 2, v%d" % (V_T, V_T + 1, V_T))
    a("v_lshlrev_b32 v%d, 6, v%d" % (V_T, V_T))
    a("v_and_b32 v%d, 3, v%d" % (V_T + 1, V_LANE))
    a("v_lshl_add_u32 v%d, v%d, 3, v%d" % (V_T, V_T + 1, V_T))
    a("v_add_u32 v%d, s%d, v%d" % (V_T, S_STG, V_T))
    a("v_bfe_u32 v%d, v%d, 4, 1" % (V_T + 1, V_LANE))
    FB = [128 + 4 * i for i in range(8)]
    a("s_cmp_eq_u32 s%d, 2" % S_TYPE)
    a("s_cbranch_scc1 L_k2_pk2")
    a("v_lshl_add_u32 v%d, v%d, 10, v%d" % (V_PK, V_T + 1, V_T))
    for ks in range(4):
        for hb in range(2):
            for rd in range(2):
                a("ds_read_b64_tr_b16 %s, v%d offset:%d" % (vr(FB[ks * 2 + hb] + 2 * rd, 2), V_PK, ks * 2048 + hb * 32 + rd * 512))
    make_sel(a, V_LANE, V_SEL, V_T + 2)
    a("v_and_b32 v%d, 31, v%d" % (V_T, V_LANE))
    a("v_lshlrev_b32 v%d, 4, v%d" % (V_T, V_T))
    a("s_waitcnt lgkmcnt(0)")
    for ks in range(4):
        for hb in range(2):
            a("v_mfma_f32_16x16x32_bf16 %s, %s, %s, %s" % (vr(V_PCS[hb]), vr(V_SEL), vr(FB[ks * 2 + hb]), "0" if ks == 0 else vr(V_PCS[hb])))
            a("buffer_store_dwordx4 %s, v%d, s[20:23], s%d offen" % (vr(FB[ks * 2 + hb]), V_L16, (S_DST0, S_DST1)[hb]))
        a("s_add_u32 s%d, s%d, 7168" % (S_DST0, S_DST0))
        a("s_add_u32 s%d, s%d, 7168" % (S_DST1, S_DST1))
    a("s_nop 7")
    a("buffer_store_dword v%d, v%d, s[20:23], s%d offen" % (V_PCS[0], V_T, S_CS))
    a("buffer_store_dword v%d, v%d, s[20:23], s%d offen offset:1024" % (V_PCS[1], V_T, S_CS))
    a("s_branch L_k2_syncret")
    a.label("L_k2_pk2")
    a("v_lshl_add_u32 v%d, v%d, 5, v%d" % (V_PK, V_T + 1, V_T))
    a("s_add_u32 s%d, s%d, 4096" % (S_DST1, S_DST0))
    for f in range(8):
        for rd in range(2):
            a("ds_read_b64_tr_b16 %s, v%d offset:%d" % (vr(FB[f] + 2 * rd, 2), V_PK, f * 1024 + rd * 512))
    a("s_waitcnt lgkmcnt(0)")
    for f in range(8):
        a("buffer_store_dwordx4 %s, v%d, s[20:23], s%d offen offset:%d" % (vr(FB[f]), V_L16, S_DST0 if f < 4 else S_DST1, (f % 4) * 1024))
    a("s_branch L_k2_syncret")
    return name, 160, 0, (256, 512, 163840)


FL_A, FL_B, FL_C, FL_P = WS_FL, WS_FL + 8192, WS_FL + 16384, WS_FL + 20480
S_XCC, S_FAST = 62, 63
T_XCD, T_R2, T_RB64, T_RB128, T_CGF, T_TBO, T_NBO, T_HALF, T_A, T_B, T_C, T_D, T_CNT, T_M = 24, 25, 26, 27, 28, 29, 30, 31, 32, 33, 34, 35, 36, 37
FV_WO = 160
FV_XR = 224
FV_LX = 228
FV_L4 = 229
FV_L8 = 234
FV_F = 230
PRIO = os.environ.get('PRIO', 'c')
FSTORE = os.environ.get('FSTORE', '')
PRET = os.environ.get('PRET', 'qa')
WBL2 = os.environ.get('WBL2', 'e')
LSC = os.environ.get('LSC', ' sc1')
AMAP = int(os.environ.get('AMAP', 0))
S_TEAM, S_MEM = 18, 19
FASTPATH = int(os.environ.get('FASTPATH', 1))
POLLD = int(os.environ.get('POLLD', 1))


def poll(a, tag, soff, n, vl4, vf, depth=1):
    a("s_mov_b32 s%d, 0" % T_CNT)
    a.label("L_poll_%s" % tag)
    a("buffer_load_dword v%d, v%d, s[20:23], s%d offen sc1" % (vf, vl4, soff))
    a("s_add_u32 s%d, s%d, 1" % (T_CNT, T_CNT))
    a("s_waitcnt vmcnt(0)")
    a("v_cmp_ne_u32 vcc, 0, v%d" % vf)
    a("s_cmp_gt_u32 s%d, 0x40000" % T_CNT)
    a("s_cbranch_scc1 L_polld_%s" % tag)
    if n == 64:
        a("s_and_b32 s%d, vcc_lo, vcc_hi" % T_M)
        a("s_cmp_lg_u32 s%d, -1" % T_M)
    else:
        mask = (1 << n) - 1
        a("s_and_b32 s%d, vcc_lo, 0x%x" % (T_M, mask))
        a("s_cmp_lg_u32 s%d, 0x%x" % (T_M, mask))
    a("s_cbranch_scc1 L_poll_%s" % tag)
    a.label("L_polld_%s" % tag)


def hstore(a, tag, stores):
    a("s_cmp_eq_u32 s%d, -1" % S_FAST)
    a("s_cbranch_scc1 L_hs_%s_f" % tag)
    for st in stores:
        a(st + " sc1")
    a("s_branch L_hs_%s_d" % tag)
    a.label("L_hs_%s_f" % tag)
    for st in stores:
        a(st + (FSTORE if "dwordx4" in st else ""))
    a.label("L_hs_%s_d" % tag)


def set_flag(a, soff, vt, tag=None):
    a("v_mov_b32 v%d, 0" % vt)
    a("v_mov_b32 v%d, 1" % (vt + 1))
    a("s_mov_b64 exec, 1")
    st = "buffer_store_dword v%d, v%d, s[20:23], s%d offen" % (vt + 1, vt, soff)
    if tag:
        hstore(a, tag, [st])
    else:
        a(st + " sc1")
    a("s_mov_b64 exec, -1")


def fused_events(a, E):
    S_WAVE, S_H, S_QB, S_ITER, S_SYNC, S_TASK, S_TYPE = (E[k] for k in ("S_WAVE", "S_H", "S_QB", "S_ITER", "S_SYNC", "S_TASK", "S_TYPE"))
    V_LANE, V_L16, V_T = E["V_LANE"], E["V_L16"], E["V_T"]
    a.label("L_f_event")
    a("s_cmp_eq_u32 s%d, 7" % S_ITER)
    a("s_cbranch_scc1 L_f_sync")
    a("s_cmp_eq_u32 s%d, 6" % S_ITER)
    a("s_cbranch_scc1 L_f_ev6")
    a("s_cmp_eq_u32 s%d, 2" % S_ITER)
    a("s_cbranch_scc1 L_f_ev2")
    a("s_cmp_eq_u32 s%d, 3" % S_ITER)
    a("s_cbranch_scc1 L_f_ev3")
    a("s_mov_b32 s%d, 3" % S_SYNC)
    a("s_cmp_eq_u32 s%d, 0" % S_TYPE)
    a("s_cbranch_scc1 L_f_ev5b")
    a("s_lshl_b32 s%d, s%d, 2" % (T_A, S_TASK))
    a("s_add_u32 s%d, s%d, %d" % (T_A, T_A, FL_P))
    a("s_waitcnt vmcnt(0)")
    set_flag(a, T_A, V_T)
    a.label("L_f_ev5b")
    if "a" in WBL2:
        a("s_lshl_b32 s%d, s%d, 3" % (T_A, S_MEM))
        a("s_add_u32 s%d, s%d, s%d" % (T_A, T_A, S_WAVE))
        a("s_cmp_lg_u32 s%d, 5" % T_A)
        a("s_cbranch_scc1 L_f_nowb1")
        a("buffer_wbl2 sc1")
        a.label("L_f_nowb1")
    a("buffer_load_dword v%d, v%d, s[96:99], 0 offen sc1" % (FV_F, FV_L4))
    a("s_branch L_f_syncret")
    a.label("L_f_ev3")
    a("s_mov_b32 s%d, 2" % S_SYNC)
    a("s_mov_b32 s%d, 0" % T_CNT)
    a.label("L_f_dbchk")
    a("s_waitcnt vmcnt(0)")
    a("v_subrev_u32 v%d, 0x01010101, v%d" % (FV_F + 1, FV_F))
    a("v_not_b32 v%d, v%d" % (FV_F + 2, FV_F))
    a("v_and_b32 v%d, v%d, v%d" % (FV_F + 1, FV_F + 1, FV_F + 2))
    a("v_and_b32 v%d, 0x80808080, v%d" % (FV_F + 1, FV_F + 1))
    a("v_cmp_eq_u32 vcc, 0, v%d" % (FV_F + 1))
    a("s_add_u32 s%d, s%d, 1" % (T_CNT, T_CNT))
    a("s_cmp_gt_u32 s%d, 0x40000" % T_CNT)
    a("s_cbranch_scc1 L_f_dbok")
    a("s_and_b32 s%d, vcc_lo, vcc_hi" % T_M)
    a("s_cmp_eq_u32 s%d, -1" % T_M)
    a("s_cbranch_scc1 L_f_dbok")
    a("buffer_load_dword v%d, v%d, s[96:99], 0 offen sc1" % (FV_F, FV_L4))
    a("s_branch L_f_dbchk")
    a.label("L_f_dbok")
    a("s_lshr_b32 s%d, s2, 5" % T_XCD)
    a("s_bfe_u32 s%d, s2, 0x20003" % T_R2)
    a("s_and_b32 s%d, s2, 7" % T_RB64)
    a("s_lshl_b32 s%d, s%d, 2" % (T_RB64, T_RB64))
    a("s_add_u32 s%d, s%d, s%d" % (T_RB64, T_RB64, T_R2))
    a("s_lshr_b32 s%d, s%d, 1" % (T_RB128, T_RB64))
    a("s_and_b32 s%d, s%d, 1" % (T_A, T_R2))
    a("s_lshl_b32 s%d, s%d, 1" % (T_CGF, T_XCD))
    a("s_add_u32 s%d, s%d, s%d" % (T_CGF, T_CGF, T_A))
    a("s_bfe_u32 s%d, s%d, 0x10001" % (T_A, S_WAVE))
    a("s_lshl_b32 s%d, s%d, 1" % (T_TBO, T_RB64))
    a("s_add_u32 s%d, s%d, s%d" % (T_TBO, T_TBO, T_A))
    a("s_and_b32 s%d, s%d, 1" % (T_A, S_WAVE))
    a("s_lshl_b32 s%d, s%d, 1" % (T_NBO, T_XCD))
    a("s_add_u32 s%d, s%d, s%d" % (T_NBO, T_NBO, T_A))
    a("s_lshr_b32 s%d, s%d, 2" % (T_HALF, S_WAVE))
    if "a" in PRET:
        a("s_lshl_b32 s%d, s%d, 4" % (T_A, T_TBO))
        a("s_add_u32 s%d, s%d, s%d" % (T_A, T_A, T_NBO))
        a("s_lshl_b32 s%d, s%d, 9" % (T_B, T_A))
        a("s_add_u32 s%d, s%d, %d" % (T_B, T_B, WS_ST))
        a("s_lshl_b32 s%d, s%d, 1" % (T_A, T_A))
        a("s_add_u32 s%d, s%d, s%d" % (T_A, T_A, T_HALF))
        a("s_lshl_b32 s%d, s%d, 10" % (T_A, T_A))
        a("s_add_u32 s%d, s%d, %d" % (T_A, T_A, WS_H))
        a("buffer_load_dwordx4 %s, v%d, s[20:23], s%d offen sc1" % (vr(236), V_L16, T_A))
        a("buffer_load_dwordx2 %s, v%d, s[20:23], s%d offen sc1" % (vr(240, 2), FV_L8, T_B))
        a("s_and_b32 s%d, s%d, 3" % (T_A, S_WAVE))
        a("s_lshl_b32 s%d, s%d, 2" % (T_B, T_RB128))
        a("s_add_u32 s%d, s%d, s%d" % (T_A, T_A, T_B))
        a("s_mul_i32 s%d, s%d, 112" % (T_A, T_A))
        a("s_mul_i32 s%d, s%d, 7" % (T_B, T_CGF))
        a("s_add_u32 s%d, s%d, s%d" % (T_A, T_A, T_B))
        a("s_mul_i32 s%d, s%d, 3" % (T_B, T_HALF))
        a("s_add_u32 s%d, s%d, s%d" % (T_A, T_A, T_B))
        a("s_lshl_b32 s%d, s%d, 10" % (T_A, T_A))
        a("s_add_u32 s%d, s%d, %d" % (T_A, T_A, WS_A))
        for k in range(4):
            a("buffer_load_dwordx4 %s, v%d, s[20:23], s%d offen offset:%d sc1" % (vr(236 if k == 0 else 240 + 4 * k), V_L16, T_A, k * 1024))
    a("s_mul_i32 s%d, s%d, 7" % (T_A, T_CGF))
    a("s_lshr_b32 s%d, s%d, 1" % (T_A, T_A))
    a("s_lshl_b32 s%d, s%d, 5" % (T_A, T_A))
    a("s_mul_i32 s%d, s%d, 56" % (T_B, T_NBO))
    a("s_add_u32 s%d, s%d, %d" % (T_B, T_B, 512 * 4 - 32 * 4))
    a("s_lshl_b32 s%d, s%d, 1" % (T_C, T_NBO))
    a("s_add_u32 s%d, s%d, s%d" % (T_C, T_C, T_HALF))
    a("s_lshl_b32 s%d, s%d, 3" % (T_C, T_C))
    a("s_add_u32 s%d, s%d, %d" % (T_C, T_C, 448 * 4 - 46 * 4))
    a("v_mov_b32 v%d, s%d" % (V_T, T_A))
    a("v_mov_b32 v%d, s%d" % (V_T + 1, T_B))
    a("v_cmp_le_u32 vcc, 32, v%d" % V_LANE)
    a("v_mov_b32 v%d, s%d" % (V_T + 2, T_C))
    a("s_nop 0")
    a("v_cndmask_b32 v%d, v%d, v%d, vcc" % (V_T, V_T, V_T + 1))
    a("v_cmp_le_u32 vcc, 46, v%d" % V_LANE)
    a("s_mov_b32 s%d, %d" % (T_A, FL_P))
    a("s_nop 0")
    a("v_cndmask_b32 v%d, v%d, v%d, vcc" % (V_T, V_T, V_T + 2))
    a("v_add_u32 v%d, v%d, v%d" % (FV_F + 3, V_T, FV_L4))
    a("buffer_load_dword v%d, v%d, s[20:23], s%d offen sc1" % (FV_F, FV_F + 3, T_A))
    a("s_branch L_f_syncret")
    a.label("L_f_ev2")
    a("s_mov_b32 s%d, 0" % S_SYNC)
    a("s_mov_b32 s%d, 0" % T_CNT)
    a("s_mov_b32 s%d, %d" % (T_A, FL_P))
    a.label("L_f_fpchk")
    a("s_waitcnt vmcnt(0)")
    a("v_cmp_ne_u32 vcc, 0, v%d" % FV_F)
    a("s_add_u32 s%d, s%d, 1" % (T_CNT, T_CNT))
    a("s_cmp_gt_u32 s%d, 0x40000" % T_CNT)
    a("s_cbranch_scc1 L_f_fpok")
    a("s_or_b32 s%d, vcc_hi, 0xffff0000" % T_M)
    a("s_and_b32 s%d, s%d, vcc_lo" % (T_M, T_M))
    a("s_cmp_eq_u32 s%d, -1" % T_M)
    a("s_cbranch_scc1 L_f_fpok")
    if DIAG == "nopack":
        a("s_branch L_f_fpok")
    a("buffer_load_dword v%d, v%d, s[20:23], s%d offen sc1" % (FV_F, FV_F + 3, T_A))
    a("s_branch L_f_fpchk")
    a.label("L_f_fpok")
    a("s_lshl_b32 s%d, s%d, 1" % (T_A, T_NBO))
    a("s_add_u32 s%d, s%d, s%d" % (T_A, T_A, T_HALF))
    a("s_lshl_b32 s%d, s%d, 14" % (T_A, T_A))
    a("s_add_u32 s%d, s%d, %d" % (T_A, T_A, WS_WO))
    for i in range(16):
        if i and i % 4 == 0:
            a("s_add_u32 s%d, s%d, 4096" % (T_A, T_A))
        a("buffer_load_dwordx4 %s, v%d, s[20:23], s%d offen offset:%d sc1" % (vr(FV_WO + 4 * i), FV_LX, T_A, (i % 4) * 1024))
    if "w" in PRET:
        a("v_lshlrev_b32 v%d, 7, v%d" % (V_T, V_LANE))
        a("s_mul_i32 s%d, s%d, %d" % (T_A, T_CGF, 32 * 7 * 1024))
        a("s_and_b32 s%d, s%d, 1" % (T_B, T_RB128))
        a("s_lshl_b32 s%d, s%d, 3" % (T_B, T_B))
        a("s_add_u32 s%d, s%d, s%d" % (T_B, T_B, S_WAVE))
        a("s_mul_i32 s%d, s%d, 7168" % (T_B, T_B))
        a("s_add_u32 s%d, s%d, s%d" % (T_A, T_A, T_B))
        a("s_add_u32 s%d, s%d, %d" % (T_A, T_A, WS_GU + 4 * SLOT))
        a("s_mov_b32 exec_hi, 0x00ffffff")
        a("buffer_load_dword v%d, v%d, s[20:23], s%d offen sc1" % (236, V_T, T_A))
        if "d" in PRET:
            a("s_mul_i32 s%d, s%d, %d" % (T_A, T_NBO, 112 * 1024))
            a("s_lshl_b32 s%d, s%d, 2" % (T_B, T_R2))
            a("s_lshr_b32 s%d, s%d, 1" % (T_C, S_WAVE))
            a("s_add_u32 s%d, s%d, s%d" % (T_B, T_B, T_C))
            a("s_mul_i32 s%d, s%d, 7168" % (T_B, T_B))
            a("s_add_u32 s%d, s%d, s%d" % (T_A, T_A, T_B))
            a("s_add_u32 s%d, s%d, %d" % (T_A, T_A, WS_WD))
            a("buffer_load_dword v%d, v%d, s[20:23], s%d offen sc1" % (237, V_T, T_A))
        a("s_mov_b64 exec, -1")
    srd(a, 12, 10, 2048 * 1024)
    a("v_and_b32 v%d, 31, v%d" % (V_T, V_LANE))
    a("v_lshlrev_b32 v%d, 10, v%d" % (V_T, V_T))
    a("v_lshrrev_b32 v%d, 5, v%d" % (V_T + 1, V_LANE))
    a("v_lshl_add_u32 v%d, v%d, 3, v%d" % (V_T, V_T + 1, V_T))
    a("s_lshl_b32 s%d, s%d, 15" % (T_A, T_TBO))
    a("s_lshl_b32 s%d, s%d, 6" % (T_B, T_NBO))
    a("s_add_u32 s%d, s%d, s%d" % (T_A, T_A, T_B))
    a("s_lshl_b32 s%d, s%d, 5" % (T_B, T_HALF))
    a("s_add_u32 s%d, s%d, s%d" % (T_A, T_A, T_B))
    for q in range(2):
        a("buffer_load_dwordx2 %s, v%d, s[12:15], s%d offen offset:%d" % (vr(FV_XR + 2 * q, 2), V_T, T_A, q * 16))
    a("s_branch L_f_syncret")


def fused_tail(a, E):
    S_WAVE, S_H, S_QB = E["S_WAVE"], E["S_H"], E["S_QB"]
    V_LANE, V_L16 = 1, 2
    V_T = 3
    S_MASK, S_W3, S_M0W, S_SW, S_SH, S_M0H = 43, 44, 45, 46, 47, 48
    a.ts("k2")
    a("s_setprio 0")
    for k in ("S_SYNC", "S_TYPE", "S_PASS", "S_NT", "S_ITER"):
        a("s_mov_b32 s%d, 0" % E[k])
    a("s_mov_b32 s%d, 0xffff0000" % S_MASK)
    a("s_and_b32 s%d, s%d, 3" % (S_W3, S_WAVE))
    S_WB = 51
    a("s_lshl_b32 s%d, s%d, 3" % (S_WB, S_MEM))
    a("s_add_u32 s%d, s%d, s%d" % (S_WB, S_WB, S_WAVE))
    a("s_lshl_b32 s%d, s%d, 2" % (T_A, S_QB))
    a("s_lshr_b32 s%d, s%d, 1" % (T_B, S_WAVE))
    a("s_add_u32 s%d, s%d, s%d" % (T_A, T_A, T_B))
    a("s_lshl_b32 s%d, s%d, 8" % (T_A, T_A))
    a("s_and_b32 s%d, s%d, 1" % (T_B, S_WAVE))
    a("s_lshl_b32 s%d, s%d, 5" % (T_B, T_B))
    a("s_add_u32 s%d, s%d, s%d" % (T_B, T_B, S_H))
    a("s_lshl_b32 s%d, s%d, 2" % (T_B, T_B))
    a("s_add_u32 s%d, s%d, s%d" % (T_B, T_B, T_A))
    a("s_add_u32 s%d, s%d, %d" % (T_B, T_B, FL_A))
    a("s_mul_i32 s%d, s%d, 7168" % (S_M0W, S_W3))
    a("s_mul_i32 s%d, s%d, %d" % (S_SW, T_CGF, 32 * 7 * 1024))
    a("s_add_u32 s%d, s%d, s%d" % (S_SW, S_SW, S_M0W))
    a("s_add_u32 s%d, s%d, %d" % (S_SW, S_SW, WS_GU))

    def w_stage(st):
        slot = st % 4
        a("s_add_u32 s%d, s%d, %d" % (T_C, S_SW, st * SLOT))
        a("s_add_u32 m0, s%d, %d" % (S_M0W, slot * SLOT))
        a("s_add_u32 s%d, s%d, 4096" % (T_D, T_C))
        for q in range(4):
            a("buffer_load_dwordx4 v%d, s[20:23], s%d offen offset:%d sc1 lds" % (V_L16, T_C, q * 1024))
        a("s_add_u32 m0, m0, 4096")
        a("s_nop 0")
        for q in range(3):
            a("buffer_load_dwordx4 v%d, s[20:23], s%d offen offset:%d sc1 lds" % (V_L16, T_D, q * 1024))

    a("s_waitcnt vmcnt(0)")
    set_flag(a, T_B, V_T)
    a("s_barrier")
    OB, XS = 86016, 57344
    a("s_cmp_ge_u32 s%d, 4" % S_WAVE)
    a("s_cbranch_scc1 L_f_a1")
    w_stage(0)
    w_stage(1)
    a("s_branch L_f_a2")
    a.label("L_f_a1")
    if "a" in PRIO:
        a("s_setprio 2")
    a("s_lshl_b32 s%d, s%d, 8" % (T_A, T_RB64))
    a("s_lshl_b32 s%d, s%d, 6" % (T_B, S_W3))
    a("s_add_u32 s%d, s%d, s%d" % (T_A, T_A, T_B))
    a("s_add_u32 s%d, s%d, %d" % (T_A, T_A, FL_A))
    a("s_lshl_b32 s%d, s%d, 2" % (T_C, T_RB64))
    a("s_add_u32 s%d, s%d, s%d" % (T_C, T_C, S_W3))
    a("s_lshl_b32 s%d, s%d, 14" % (T_C, T_C))
    a("s_add_u32 s%d, s%d, %d" % (T_C, T_C, WS_O))
    a("s_lshl_b32 s%d, s%d, 14" % (T_B, S_W3))
    a("s_add_u32 m0, s%d, %d" % (T_B, OB))
    poll(a, "fa", T_A, 16, FV_L4, FV_F + 2)
    a.ts("k2")
    for j in range(16):
        if j and j % 4 == 0:
            a("s_add_u32 m0, m0, 4096")
            a("s_add_u32 s%d, s%d, 4096" % (T_C, T_C))
        a("buffer_load_dwordx4 v%d, s[20:23], s%d offen offset:%d sc1 lds" % (V_L16, T_C, (j % 4) * 1024))
    a.label("L_f_a2")

    V_OA = 12
    V_OF = [[16 + 4 * i for i in range(8)], [96 + 4 * i for i in range(8)]]
    V_AB = 64
    V_U = 80
    V_HK = 16
    a("s_bfe_u32 s%d, s%d, 0x10001" % (T_B, S_WAVE))
    a("s_lshl_b32 s%d, s%d, 1" % (T_B, T_B))
    a("s_add_u32 s%d, s%d, s%d" % (T_B, T_B, T_HALF))
    a("s_lshl_b32 s%d, s%d, 14" % (T_B, T_B))
    a("s_add_u32 s%d, s%d, %d" % (T_B, T_B, OB))
    a("v_add_u32 v%d, s%d, v%d" % (V_OA, T_B, V_L16))
    a("s_lshl_b32 s%d, s%d, 14" % (T_B, S_W3))
    a("s_add_u32 s%d, s%d, %d" % (T_B, T_B, OB))
    a("s_lshl_b32 s%d, s%d, 11" % (T_M, T_HALF))
    a("s_add_u32 s%d, s%d, s%d" % (T_B, T_B, T_M))
    a("v_add_u32 v%d, s%d, v%d" % (V_OA + 2, T_B, V_L16))
    a("v_xor_b32 v%d, 0x800, v%d" % (V_OA + 1, V_OA + 2))
    for d in range(4):
        a("v_lshlrev_b32 v%d, 16, v%d" % (V_U + 2 * d, FV_XR + d))
        a("v_and_b32 v%d, s%d, v%d" % (V_U + 2 * d + 1, S_MASK, FV_XR + d))
    for hf in range(2):
        a("s_cmp_lt_u32 s%d, 4" % S_WAVE)
        a("s_cbranch_scc1 L_f_b3%d" % hf)
        a("s_waitcnt vmcnt(%d)" % (8 - 8 * hf))
        a.label("L_f_b3%d" % hf)
        a("s_barrier")
        if hf == 0:
            a.ts("k2")
        for i in range(8):
            a("ds_read_b128 %s, v%d offset:%d" % (vr(V_OF[hf][i]), V_OA, (8 * hf + i) * 1024))
        if hf == 1:
            for i in range(4, 8):
                a("v_mfma_f32_32x32x16_bf16 %s, %s, %s, %s" % (vr(V_AB, 16), vr(FV_WO + 4 * i), vr(V_OF[0][i]), vr(V_AB, 16)))
        for i in range(4 if hf == 0 else 8):
            a("s_waitcnt lgkmcnt(%d)" % (7 - i))
            a("v_mfma_f32_32x32x16_bf16 %s, %s, %s, %s" % (vr(V_AB, 16), vr(FV_WO + 4 * (8 * hf + i)), vr(V_OF[hf][i]), "0" if (hf == 0 and i == 0) else vr(V_AB, 16)))
        if hf == 0:
            a("s_waitcnt lgkmcnt(0)")
    a("s_lshl_b32 s%d, s%d, 4" % (T_A, T_TBO))
    a("s_add_u32 s%d, s%d, s%d" % (T_A, T_A, T_NBO))
    a("s_lshl_b32 s%d, s%d, 1" % (T_A, T_A))
    a("s_add_u32 s%d, s%d, s%d" % (T_A, T_A, T_HALF))
    a("s_lshr_b32 s%d, s%d, 1" % (T_B, T_A))
    a("s_lshl_b32 s%d, s%d, 9" % (T_B, T_B))
    a("s_lshl_b32 s%d, s%d, 3" % (T_C, T_HALF))
    a("s_add_u32 s%d, s%d, s%d" % (T_B, T_B, T_C))
    a("s_add_u32 s%d, s%d, %d" % (T_B, T_B, WS_ST))
    a("s_lshl_b32 s%d, s%d, 10" % (T_A, T_A))
    a("s_add_u32 s%d, s%d, %d" % (T_A, T_A, WS_H))
    a("v_and_b32 v%d, 31, v%d" % (V_T, V_LANE))
    a("v_lshlrev_b32 v%d, 4, v%d" % (V_T, V_T))
    a("s_nop 1")
    for q in range(2):
        a("ds_write_b128 v%d, %s offset:%d" % (V_OA + 1, vr(V_AB + 8 + 4 * q), q * 1024))
    for i in range(8):
        a("v_add_f32 v%d, v%d, v%d" % (V_AB + i, V_AB + i, V_U + i))
    a("s_waitcnt lgkmcnt(0)")
    a("s_barrier")
    for q in range(2):
        a("ds_read_b128 %s, v%d offset:%d" % (vr(V_U + 4 * q), V_OA + 2, q * 1024))
    a("s_waitcnt lgkmcnt(0)")
    for i in range(8):
        a("v_add_f32 v%d, v%d, v%d" % (V_AB + i, V_AB + i, V_U + i))
    for i in range(4):
        a("v_cvt_pk_bf16_f32 v%d, v%d, v%d" % (V_HK + i, V_AB + 2 * i, V_AB + 2 * i + 1))
    hstore(a, "h", ["buffer_store_dwordx4 %s, v%d, s[20:23], s%d offen" % (vr(V_HK), V_L16, T_A)])
    for d in range(4):
        a("v_lshlrev_b32 v%d, 16, v%d" % (V_U + 2 * d, V_HK + d))
        a("v_and_b32 v%d, s%d, v%d" % (V_U + 2 * d + 1, S_MASK, V_HK + d))
    S1, S2 = V_AB, V_AB + 1
    a("v_add_f32 v%d, v%d, v%d" % (S1, V_U, V_U + 1))
    a("v_mul_f32 v%d, v%d, v%d" % (S2, V_U, V_U))
    a("v_fmac_f32 v%d, v%d, v%d" % (S2, V_U + 1, V_U + 1))
    for i in range(2, 8):
        a("v_add_f32 v%d, v%d, v%d" % (S1, S1, V_U + i))
        a("v_fmac_f32 v%d, v%d, v%d" % (S2, V_U + i, V_U + i))
    sum_halves(a, S1, V_AB + 2)
    sum_halves(a, S2, V_AB + 3)
    hstore(a, "st", ["buffer_store_dwordx2 %s, v%d, s[20:23], s%d offen" % (vr(S1, 2), V_T, T_B)])
    a("s_lshl_b32 s%d, s%d, 4" % (T_B, T_TBO))
    a("s_add_u32 s%d, s%d, s%d" % (T_B, T_B, T_NBO))
    a("s_lshl_b32 s%d, s%d, 1" % (T_B, T_B))
    a("s_add_u32 s%d, s%d, s%d" % (T_B, T_B, T_HALF))
    a("s_lshl_b32 s%d, s%d, 2" % (T_B, T_B))
    a("s_add_u32 s%d, s%d, %d" % (T_B, T_B, FL_B))
    a("v_mov_b32 v%d, v%d" % (14, FV_LX))
    a("v_mov_b32 v%d, v%d" % (15, FV_L4))
    V_LX, V_L4 = 14, 15
    a("s_waitcnt vmcnt(0)")
    set_flag(a, T_B, V_T, "fb")
    a("s_cmp_ge_u32 s%d, 4" % S_WAVE)
    a("s_cbranch_scc1 L_f_b5")
    w_stage(2)
    a.label("L_f_b5")
    a("s_barrier")
    a.ts("k2")
    HR = 114688
    a("s_lshl_b32 s%d, s%d, 2" % (T_A, T_RB128))
    a("s_add_u32 s%d, s%d, s%d" % (T_A, T_A, S_W3))
    a("s_lshl_b32 s%d, s%d, 15" % (S_SH, T_A))
    a("s_add_u32 s%d, s%d, %d" % (S_SH, S_SH, WS_H))
    a("s_lshl_b32 s%d, s%d, 12" % (S_M0H, S_W3))
    a("s_add_u32 s%d, s%d, %d" % (S_M0H, S_M0H, HR))

    def h_stage(st):
        a("s_add_u32 m0, s%d, %d" % (S_M0H, (st % 3) * 16384))
        a("s_add_u32 s%d, s%d, %d" % (T_C, S_SH, st * 4096))
        for q in range(4):
            a("buffer_load_dwordx4 v%d, s[20:23], s%d offen offset:%d sc1 lds" % (V_L16, T_C, q * 1024))

    a("s_cmp_ge_u32 s%d, 4" % S_WAVE)
    a("s_cbranch_scc1 L_f_ccomp")
    w_stage(3)
    V_WD = 144
    V_WP = 32
    S_KQ = 50
    a("s_lshr_b32 s%d, s%d, 1" % (S_KQ, S_WAVE))
    a("s_lshl_b32 s%d, s%d, 2" % (T_A, T_NBO))
    a("s_add_u32 s%d, s%d, s%d" % (T_A, T_A, S_KQ))
    a("s_mul_i32 s%d, s%d, %d" % (T_A, T_A, 28 * 1024))
    a("s_add_u32 s%d, s%d, %d" % (T_A, T_A, WS_WD))
    a("s_add_u32 s%d, s%d, %d" % (T_B, T_A, 56 * 1024))
    a("v_xor_b32 v%d, 0x100, v%d" % (V_T, V_L16))
    a("s_mul_i32 s%d, s%d, %d" % (T_M, S_W3, 28 * 1024))
    a("v_add_u32 v%d, s%d, v%d" % (V_T + 1, T_M, V_L16))

    def wd_loads(i0, i1):
        for i in range(i0, i1):
            if i and i % 4 == 0:
                a("s_add_u32 s%d, s%d, 4096" % (T_A, T_A))
            a("buffer_load_dwordx4 %s, v%d, s[20:23], s%d offen offset:%d sc1" % (vr(V_WD + 4 * i), V_LX, T_A, (i % 4) * 1024))

    log = ["W0"] * 7 + ["W1"] * 7 + ["W2"] * 7 + ["W3"] * 7
    wd_plan = {5: 8, 6: 12, 7: 8}
    nwd = 0
    for j in range(8):
        last = max(i for i, t in enumerate(log) if t in ("W%d" % j, "h%d" % j))
        n = len(log) - 1 - last
        assert n <= 63
        a("s_waitcnt vmcnt(%d)" % n)
        a("s_barrier")
        if j >= 1:
            if j + 2 <= 7:
                h_stage(j + 2)
                log += ["h%d" % (j + 2)] * 4
            if j + 3 <= 7 and DIAG != "cnodma":
                w_stage(j + 3)
                log += ["W%d" % (j + 3)] * 7
        k = wd_plan.get(j, 0)
        if DIAG != "cnodma":
            wd_loads(nwd, nwd + k)
            log += ["d"] * k
        nwd += k
    assert nwd == 28
    a("s_mov_b32 m0, s%d" % T_M)
    a("s_barrier")
    for i in range(28):
        if i and i % 4 == 0:
            a("s_add_u32 m0, m0, 4096")
            a("s_add_u32 s%d, s%d, 4096" % (T_B, T_B))
        a("buffer_load_dwordx4 v%d, s[20:23], s%d offen offset:%d sc1 lds" % (V_T, T_B, (i % 4) * 1024))
    a("s_waitcnt vmcnt(0)")
    a("s_barrier")
    a("s_branch L_f_d1")
    a.label("L_f_ccomp")
    if "c" in PRIO:
        a("s_setprio 2")
    V_AW, V_AH = 12, 13
    V_ST = 20
    V_CSL = 52
    V_H = [80, 84]
    V_W = [88, 116]
    V_ACC = [144 + 16 * b for b in range(7)]
    V_TMP = 88
    S_TB = 49
    a("s_lshl_b32 s%d, s%d, 2" % (S_TB, T_RB128))
    a("s_add_u32 s%d, s%d, s%d" % (S_TB, S_TB, S_W3))
    a("v_mov_b32 v%d, v%d" % (V_AW, V_L16))
    a("s_lshl_b32 s%d, s%d, 12" % (T_A, S_W3))
    a("s_add_u32 s%d, s%d, %d" % (T_A, T_A, HR))
    a("v_add_u32 v%d, s%d, v%d" % (V_AH, T_A, V_L16))
    a("v_and_b32 v%d, 31, v%d" % (V_T, V_LANE))
    a("v_lshlrev_b32 v%d, 4, v%d" % (V_T, V_T))
    a("v_lshrrev_b32 v%d, 5, v%d" % (V_T + 1, V_LANE))
    a("v_lshl_add_u32 v%d, v%d, 12, v%d" % (V_T, V_T + 1, V_T))
    a("s_mul_i32 s%d, s%d, 7168" % (T_C, T_CGF))
    a("s_add_u32 s%d, s%d, %d" % (T_C, T_C, WS_CS))
    a("s_add_u32 s%d, s%d, 4096" % (T_D, T_C))
    for blk in range(7):
        a("buffer_load_dwordx4 %s, v%d, s[20:23], s%d offen offset:%d sc1" % (vr(V_CSL + 4 * blk), V_L16, T_C if blk < 4 else T_D, (blk % 4) * 1024))
    a("s_lshl_b32 s%d, s%d, 7" % (T_B, S_TB))
    a("s_add_u32 s%d, s%d, %d" % (T_B, T_B, FL_B))
    poll(a, "fb", T_B, 32, V_L4, 9)
    for st in range(3):
        h_stage(st)
    a("s_lshl_b32 s%d, s%d, 13" % (T_A, S_TB))
    a("s_add_u32 s%d, s%d, %d" % (T_A, T_A, WS_ST))
    cur_base = [0]
    lds = Lds(a)

    def reads(P):
        st, pos = P // 4, P % 4
        slot = st % 4
        base, imm = (slot // 2) * 2 * SLOT, (slot % 2) * SLOT
        out = []
        b = P % 2
        out.append(("ds_read_b128 %s, v%d offset:%d" % (vr(V_H[b]), V_AH, (st % 3) * 16384 + pos * 1024), ("h", P)))
        if base != cur_base[0]:
            d = base - cur_base[0]
            out.append(("v_add_u32 v%d, %d, v%d" % (V_AW, d, V_AW) if d > 0 else "v_subrev_u32 v%d, %d, v%d" % (V_AW, -d, V_AW), None))
            cur_base[0] = base
        for blk in range(7):
            if DIAG == "cnolds" and P >= 2:
                lds.idx[("w", P, blk)] = 0
                continue
            out.append(("ds_read_b128 %s, v%d offset:%d" % (vr(V_W[b] + 4 * blk), V_AW, imm + (pos * 7 + blk) * 1024), ("w", P, blk)))
        return out

    side = {}
    g = []
    for i in range(8):
        g.append("buffer_load_dwordx4 %s, v%d, s[20:23], s%d offen offset:%d sc1" % (vr(V_ST + 4 * i), V_T, T_A, i * 512))
    side[0], side[1] = g[:4], g[4:]
    sa = Asm()
    S1, S2 = V_T + 1, V_T + 2
    V_MU, V_RS = V_T + 2, V_T + 4
    V_VAR, V_C1, V_C2 = 6, 8, 10
    sa("s_waitcnt vmcnt(0)")
    sa("v_add_f32 v%d, v%d, v%d" % (S1, V_ST, V_ST + 2))
    sa("v_add_f32 v%d, v%d, v%d" % (S2, V_ST + 1, V_ST + 3))
    for i in range(2, 16):
        sa("v_add_f32 v%d, v%d, v%d" % (S1, S1, V_ST + 2 * i))
        sa("v_add_f32 v%d, v%d, v%d" % (S2, S2, V_ST + 2 * i + 1))
    sum_halves(sa, S1, V_T + 4)
    sum_halves(sa, S2, V_T + 4)
    sa("v_mul_f32 v%d, 0x%x, v%d" % (V_VAR, f32bits(1.0 / 512), S2))
    sa("v_mul_f32 v%d, 0x%x, v%d" % (V_MU, f32bits(1.0 / 512), S1))
    sa("v_fma_f32 v%d, -v%d, v%d, v%d" % (V_VAR, V_MU, V_MU, V_VAR))
    sa("v_max_f32 v%d, 0, v%d" % (V_VAR, V_VAR))
    sa("v_add_f32 v%d, 0x%x, v%d" % (V_VAR, f32bits(1e-5), V_VAR))
    sa("v_rsq_f32 v%d, v%d" % (V_RS, V_VAR))
    sa("v_sub_f32 v%d, 0, v%d" % (V_MU, V_MU))
    VB = V_ST
    split_hi_lo_B(sa, V_MU, VB, V_T, S_MASK)
    c1 = -2.0 * math.sqrt(2.0 / math.pi) * math.log2(math.e)
    sa("v_mul_f32 v%d, 0x%x, v%d" % (V_C1, f32bits(c1), V_RS))
    sa("v_mul_f32 v%d, v%d, v%d" % (V_C2, V_RS, V_RS))
    sa("v_mul_f32 v%d, v%d, v%d" % (V_C2, V_C2, V_C1))
    sa("v_mul_f32 v%d, 0x%x, v%d" % (V_C2, f32bits(0.044715), V_C2))
    VA = V_CSL
    for blk in range(7):
        c = V_CSL + 4 * blk
        a("v_add_f32 v%d, v%d, v%d" % (c, c, c + 1))
        a("v_add_f32 v%d, v%d, v%d" % (c + 2, c + 2, c + 3))
        a("v_add_f32 v%d, v%d, v%d" % (V_T + 2, c, c + 2))
        split_hi_lo_A(a, V_T + 2, c, V_T + 1, S_MASK)
    sl = [x.strip() for x in sa.L]
    per = 10
    for k in range((len(sl) + per - 1) // per):
        side[10 + k] = sl[per * k:per * (k + 1)]
    P_R1 = 10 + (len(sl) + per - 1) // per + 1
    assert P_R1 <= 30
    side[30] = ["s_mul_i32 s%d, s%d, 112" % (T_A, S_TB), "s_mul_i32 s%d, s%d, 7" % (T_B, T_CGF), "s_add_u32 s%d, s%d, s%d" % (T_A, T_A, T_B),
                "s_lshl_b32 s%d, s%d, 10" % (T_A, T_A), "s_add_u32 s%d, s%d, %d" % (T_A, T_A, WS_A), "s_add_u32 s%d, s%d, 4096" % (T_B, T_A)]
    a("s_waitcnt vmcnt(8)")
    a("s_barrier")
    a.ts("k2")
    for t, tag in reads(0):
        lds.op(t, tag) if tag else a(t)
    for P in range(32):
        st, pos = P // 4, P % 4
        b = P % 2
        rd = reads(P + 1) if P < 31 else []
        sd = list(side.get(P, []))
        bar_at = 3 if (pos == 3 and P < 31) else -1
        first_rd = bar_at if bar_at >= 0 else 0
        for blk in range(7):
            if blk == bar_at:
                lds.drain()
                if st == 0:
                    a("s_waitcnt vmcnt(12)")
                if st == 1:
                    a("s_waitcnt vmcnt(8)")
                a("s_barrier")
            lds.need(("h", P), ("w", P, blk))
            a("v_mfma_f32_32x32x16_bf16 %s, %s, %s, %s" % (vr(V_ACC[blk], 16), vr(V_W[b] + 4 * blk), vr(V_H[b]), "0" if P == 0 else vr(V_ACC[blk], 16)))
            if blk >= first_rd:
                nrd = 3 if bar_at >= 0 else 2
                for _ in range(nrd):
                    if rd:
                        t, tag = rd.pop(0)
                        lds.op(t, tag) if tag else a(t)
            for _ in range(2):
                if sd:
                    a(sd.pop(0))
        assert not rd and not sd
        if P == 14 and "c" in WBL2:
            a("s_cmp_lg_u32 s%d, 7" % S_WB)
            a("s_cbranch_scc1 L_f_nowbc")
            a("buffer_wbl2 sc1")
            a.label("L_f_nowbc")
        if P == P_R1:
            for blk in range(7):
                a("v_mfma_f32_32x32x16_bf16 %s, %s, %s, %s" % (vr(V_ACC[blk], 16), vr(VA + 4 * blk), vr(VB), vr(V_ACC[blk], 16)))
    a.ts("k2")
    a("s_barrier")
    a("s_nop 4")
    bc = lambda r: "v[%d:%d]" % (r, r + 1)
    for blk in range(7):
        G = V_ACC[blk]
        Uu = G + 8
        T = V_TMP + 8 * (blk % 2)
        for i in range(0, 8, 2):
            a("v_pk_mul_f32 %s, %s, %s" % (bc(T + i), bc(G + i), bc(G + i)))
        for i in range(0, 8, 2):
            a("v_pk_fma_f32 %s, %s, %s, %s op_sel_hi:[1,0,0]" % (bc(T + i), bc(T + i), bc(V_C2), bc(V_C1)))
        for i in range(0, 8, 2):
            a("v_pk_mul_f32 %s, %s, %s" % (bc(T + i), bc(T + i), bc(G + i)))
        for i in range(8):
            a("v_exp_f32 v%d, v%d" % (T + i, T + i))
        for i in range(0, 8, 2):
            a("v_pk_mul_f32 %s, %s, %s" % (bc(G + i), bc(G + i), bc(Uu + i)))
        for i in range(0, 8, 2):
            a("v_pk_fma_f32 %s, %s, %s, %s op_sel_hi:[1,0,0]" % (bc(T + i), bc(T + i), bc(V_VAR), bc(V_VAR)))
        for i in range(8):
            a("v_rcp_f32 v%d, v%d" % (T + i, T + i))
        a("s_nop 0")
        for i in range(0, 8, 2):
            a("v_pk_mul_f32 %s, %s, %s" % (bc(G + i), bc(G + i), bc(T + i)))
        o = V_TMP + 16 + 4 * blk
        for i in range(4):
            a("v_cvt_pk_bf16_f32 v%d, v%d, v%d" % (o + i, G + 2 * i, G + 2 * i + 1))
    hstore(a, "act", ["buffer_store_dwordx4 %s, v%d, s[20:23], s%d offen offset:%d" % (vr(V_TMP + 16 + 4 * blk), V_L16, T_A if blk < 4 else T_B, (blk % 4) * 1024) for blk in range(7)])
    a.ts("k2")
    a("s_lshl_b32 s%d, s%d, 4" % (T_B, S_TB))
    a("s_add_u32 s%d, s%d, s%d" % (T_B, T_B, T_CGF))
    a("s_lshl_b32 s%d, s%d, 2" % (T_B, T_B))
    a("s_add_u32 s%d, s%d, %d" % (T_B, T_B, FL_C))
    a("s_lshr_b32 s%d, s%d, 1" % (S_KQ, S_WAVE))
    a("s_mul_i32 s%d, s%d, %d" % (T_M, S_W3, 28 * 1024))
    a("v_add_u32 v%d, s%d, v%d" % (V_T + 2, T_M, V_L16))
    a("s_waitcnt vmcnt(0)")
    set_flag(a, T_B, V_T, "fc")
    a("s_barrier")
    for i in range(28):
        a("ds_read_b128 %s, v%d offset:%d" % (vr(V_WD + 4 * i), V_T + 2, i * 1024))
        if i % 8 == 7:
            a("s_waitcnt lgkmcnt(4)")
    a("s_waitcnt lgkmcnt(0)")
    a.label("L_f_d1")
    a("s_setprio 0")
    V_AA = [12, 13]
    V_AF = [[32 + 32 * b + 4 * i for i in range(8)] for b in range(2)]
    V_AD = [96, 112]
    S_SA, S_M0A = 45, 46
    a("s_and_b32 s%d, s%d, 1" % (T_A, S_WAVE))
    a("s_lshl_b32 s%d, s%d, 1" % (T_B, T_RB64))
    a("s_add_u32 s%d, s%d, s%d" % (T_A, T_A, T_B))
    a("s_lshl_b32 s%d, s%d, 2" % (T_A, T_A))
    a("s_add_u32 s%d, s%d, s%d" % (T_A, T_A, S_KQ))
    a("s_mul_i32 s%d, s%d, %d" % (S_SA, T_A, 28 * 1024))
    a("s_add_u32 s%d, s%d, %d" % (S_SA, S_SA, WS_A))
    a("s_lshl_b32 s%d, s%d, 12" % (S_M0A, S_WAVE))
    for ai in range(2):
        a("s_and_b32 s%d, s%d, 1" % (T_A, S_KQ))
        a("s_xor_b32 s%d, s%d, %d" % (T_A, T_A, ai))
        a("s_lshl_b32 s%d, s%d, 1" % (T_B, S_KQ))
        a("s_add_u32 s%d, s%d, s%d" % (T_A, T_A, T_B))
        a("s_lshl_b32 s%d, s%d, 12" % (T_A, T_A))
        a("v_add_u32 v%d, s%d, v%d" % (V_AA[ai], T_A, V_L16))

    def a_stage(j):
        out = ["s_add_u32 m0, s%d, %d" % (S_M0A, (j % 5) * 32768), "s_add_u32 s%d, s%d, %d" % (T_C, S_SA, j * 4096)]
        for q in range(4):
            out.append("buffer_load_dwordx4 v%d, s[20:23], s%d offen offset:%d%s lds" % (V_L16, T_C, q * 1024, LSC))
        return out

    a("s_cmp_lg_u32 s%d, 0" % S_WAVE)
    a("s_cbranch_scc1 L_f_d2")
    a("s_lshl_b32 s%d, s%d, 7" % (T_A, T_RB64))
    a("s_add_u32 s%d, s%d, %d" % (T_A, T_A, FL_C))
    poll(a, "fc", T_A, 32, V_L4, 9)
    a.label("L_f_d2")
    a("s_barrier")
    a.ts("k2")
    a.ts("kd_")
    DD = int(os.environ.get('DD', 2))
    for l in a_stage(0):
        a(l)
    a("s_barrier")
    if "d" in WBL2:
        a("s_lshl_b32 s%d, s%d, 3" % (T_A, S_MEM))
        a("s_add_u32 s%d, s%d, s%d" % (T_A, T_A, S_WAVE))
        a("s_cmp_lg_u32 s%d, 5" % T_A)
        a("s_cbranch_scc1 L_f_nowb2")
        a("buffer_wbl2 sc1")
        a.label("L_f_nowb2")
    for jj in range(1, DD):
        for l in a_stage(jj):
            a(l)
    cb = 0

    def d_mfmas(j):
        F = V_AF[j % 2]
        return ["v_mfma_f32_32x32x16_bf16 %s, %s, %s, %s" % (vr(V_AD[ai], 16), vr(V_WD + 4 * (4 * j + q)), vr(F[q * 2 + ai]), "0" if (j == 0 and q == 0) else vr(V_AD[ai], 16))
                for q in range(4) for ai in range(2)]

    for j in range(7):
        slot = j % 5
        base, imm = (slot // 2) * 65536, (slot % 2) * 32768
        if base != cb:
            d = base - cb
            for r in V_AA:
                a("v_add_u32 v%d, %d, v%d" % (r, d, r) if d > 0 else "v_subrev_u32 v%d, %d, v%d" % (r, -d, r))
            cb = base
        nw = 4 * (min(j + DD - 1, 6) - j)
        if "g" in WBL2 and j >= 5:
            a("s_cmp_lg_u32 s%d, 7" % S_WB)
            a("s_cbranch_scc1 L_f_wg%da" % j)
            a("s_waitcnt vmcnt(%d) lgkmcnt(0)" % (nw + 1))
            a("s_branch L_f_wg%db" % j)
            a.label("L_f_wg%da" % j)
            a("s_waitcnt vmcnt(%d) lgkmcnt(0)" % nw)
            a.label("L_f_wg%db" % j)
        else:
            a("s_waitcnt vmcnt(%d) lgkmcnt(0)" % nw)
        a("s_barrier")
        a.ts("kd_")
        if j == 6 and ("e" in WBL2 or "f" in WBL2):
            if "e" in WBL2:
                a("s_lshl_b32 s%d, s%d, 3" % (T_A, S_MEM))
                a("s_add_u32 s%d, s%d, s%d" % (T_A, T_A, S_WAVE))
                a("s_cmp_lg_u32 s%d, 7" % T_A)
            else:
                a("s_cmp_lg_u32 s%d, 7" % S_WAVE)
            a("s_cbranch_scc1 L_f_nowb3")
            a("buffer_wbl2 sc1")
            a.label("L_f_nowb3")
        F = V_AF[j % 2]
        stg = a_stage(j + DD) if j + DD <= 6 else []
        for l in stg[:3]:
            a(l)
        for q in range(4):
            for ai in range(2):
                a("ds_read_b128 %s, v%d offset:%d" % (vr(F[q * 2 + ai]), V_AA[ai], imm + q * 1024))
        rest = stg[3:]
        for k, m in enumerate(d_mfmas(j)):
            a("s_waitcnt lgkmcnt(%d)" % (7 - k))
            if DIAG != "dnomfma":
                a(m)
            if rest:
                a(rest.pop(0))
            if k == 4 and j == 4 and "g" in WBL2:
                assert not rest
                a("s_cmp_lg_u32 s%d, 7" % S_WB)
                a("s_cbranch_scc1 L_f_nowbg")
                a("buffer_wbl2 sc1")
                a.label("L_f_nowbg")
    a.ts("kd_")
    XD = 65536
    for x in range(1, 4):
        a("s_xor_b32 s%d, s%d, %d" % (T_A, S_WAVE, x << 1))
        a("s_mul_i32 s%d, s%d, 6144" % (T_A, T_A))
        a("s_add_u32 s%d, s%d, %d" % (T_A, T_A, XD + (x - 1) * 2048))
        a("v_add_u32 v%d, s%d, v%d" % (V_T + x, T_A, V_L16))
    a("s_mul_i32 s%d, s%d, 6144" % (T_A, S_WAVE))
    a("s_add_u32 s%d, s%d, %d" % (T_A, T_A, XD))
    a("v_add_u32 v%d, s%d, v%d" % (V_T, T_A, V_L16))
    src = {1: V_AD[1], 2: V_AD[0] + 8, 3: V_AD[1] + 8}
    for x in (2, 1, 3):
        for q in range(2):
            a("ds_write_b128 v%d, %s offset:%d" % (V_T + x, vr(src[x] + 4 * q), q * 1024))
    U = 32
    for d in range(4):
        a("v_lshlrev_b32 v%d, 16, v%d" % (U + 2 * d, V_HK + d))
        a("v_and_b32 v%d, s%d, v%d" % (U + 2 * d + 1, S_MASK, V_HK + d))
    for i in range(8):
        a("v_add_f32 v%d, v%d, v%d" % (V_AD[0] + i, V_AD[0] + i, U + i))
    srd(a, 12, 16, 2048 * 1024)
    a("v_and_b32 v%d, 31, v%d" % (V_T + 4, V_LANE))
    a("v_lshlrev_b32 v%d, 10, v%d" % (V_T + 4, V_T + 4))
    a("v_lshrrev_b32 v%d, 5, v%d" % (V_T + 5, V_LANE))
    a("v_lshl_add_u32 v%d, v%d, 3, v%d" % (V_T + 4, V_T + 5, V_T + 4))
    a("s_lshl_b32 s%d, s%d, 15" % (T_A, T_TBO))
    a("s_lshl_b32 s%d, s%d, 6" % (T_B, T_NBO))
    a("s_add_u32 s%d, s%d, s%d" % (T_A, T_A, T_B))
    a("s_lshl_b32 s%d, s%d, 5" % (T_B, T_HALF))
    a("s_add_u32 s%d, s%d, s%d" % (T_A, T_A, T_B))
    a("s_waitcnt lgkmcnt(0)")
    a("s_barrier")
    a.ts("kd_")
    R = 48
    for k in range(6):
        a("ds_read_b128 %s, v%d offset:%d" % (vr(R + 4 * k), V_T, k * 1024))
    for x in range(3):
        a("s_waitcnt lgkmcnt(%d)" % (4 - 2 * x))
        for i in range(8):
            a("v_add_f32 v%d, v%d, v%d" % (V_AD[0] + i, V_AD[0] + i, R + 8 * x + i))
    for i in range(4):
        a("v_cvt_pk_bf16_f32 v%d, v%d, v%d" % (U + i, V_AD[0] + 2 * i, V_AD[0] + 2 * i + 1))
    for q in range(2):
        a("buffer_store_dwordx2 %s, v%d, s[12:15], s%d offen offset:%d" % (vr(U + 2 * q, 2), V_T + 4, T_A, q * 16))
    a.ts_flush("k2", S_WAVE, V_T)
    a.ts_flush("kd_", S_WAVE, V_T)


FL_1 = WS_FL + 24576
P1_DIST = int(os.environ.get('P1_DIST', 3))
P1_ROT = int(os.environ.get('P1_ROT', 1))


def team_check(a, tag, vl4, vf, preissued=False):
    a("s_lshl_b32 s38, s%d, 5" % S_TEAM)
    a("s_mov_b32 s36, 0")
    if preissued:
        a("s_branch L_tc_%s_w" % tag)
    a.label("L_tc_%s" % tag)
    a("buffer_load_dword v%d, v%d, s[96:99], s38 offen sc1" % (vf, vl4))
    a.label("L_tc_%s_w" % tag)
    a("s_add_u32 s36, s36, 1")
    a("s_waitcnt vmcnt(0)")
    a("v_subrev_u32 v%d, 0x01010101, v%d" % (vf + 1, vf))
    a("v_not_b32 v%d, v%d" % (vf + 2, vf))
    a("v_and_b32 v%d, v%d, v%d" % (vf + 1, vf + 1, vf + 2))
    a("v_and_b32 v%d, 0x80808080, v%d" % (vf + 1, vf + 1))
    a("v_cmp_eq_u32 vcc, 0, v%d" % (vf + 1))
    a("s_cmp_gt_u32 s36, 0x40000")
    a("s_cbranch_scc1 L_tc_%s_d" % tag)
    a("s_and_b32 s37, vcc_lo, 0xff")
    a("s_cmp_lg_u32 s37, 0xff")
    a("s_cbranch_scc1 L_tc_%s" % tag)
    a.label("L_tc_%s_d" % tag)
    a("s_mul_i32 s37, s%d, 0x01010101" % S_XCC)
    a("v_cmp_eq_u32 vcc, s37, v%d" % vf)
    a("s_nop 3")
    a("s_or_b32 s%d, vcc_lo, 0xffffff00" % S_FAST)
    if not FASTPATH:
        a("s_and_b32 s%d, s%d, 0" % (S_FAST, S_FAST))


def phase1(a, E):
    S_WAVE, S_H, S_QB = E["S_WAVE"], E["S_H"], E["S_QB"]
    WB, WSL = 65536, 24576
    SCR = WB + 3 * WSL
    SCR_CS, SCR_RS, SCR_BF = SCR, SCR + 1536, SCR + 2048
    S_W3, S_MASK, S_T0, S_T1, S_KX, S_KW, S_SLOT, S_CNT, S_M0X, S_M0W, S_RD, S_SLC = 43, 44, 45, 46, 47, 48, 49, 50, 51, 52, 53, 54
    S_TBI, S_G, S_O0, S_O1, S_O2, S_O3, S_O4 = 55, 56, 57, 58, 59, 60, 61
    V_LANE, V_L16, V_T = 1, 2, 3
    V_DX, V_DW, V_AX, V_AW = 10, 14, 15, 19
    V_SEL, V_SQ = 24, 28
    V_X = [32, 36]
    V_W = [[40, 44, 48], [52, 56, 60]]
    V_ACC = [64, 80, 96]
    V_CS = [112, 116, 120]
    V_TMP = 124
    if INSTR == "kv_":
        a("v_mov_b32 v250, 0")
    a.tsv("15")
    a("s_and_b32 s%d, s%d, 3" % (S_W3, S_WAVE))
    a("s_mov_b32 s%d, 0xffff0000" % S_MASK)

    def x_addr(sbase, sxor):
        a("v_and_b32 v%d, 31, v%d" % (V_T, V_LANE))
        a("v_and_b32 v%d, 3, v%d" % (V_T + 1, V_LANE))
        a("v_lshrrev_b32 v%d, 2, v%d" % (V_T + 2, V_T))
        a("v_lshlrev_b32 v%d, 7, v%d" % (V_T + 2, V_T + 2))
        a("v_lshl_add_u32 v%d, v%d, 10, v%d" % (V_T + 2, V_T + 1, V_T + 2))
        a("v_add_u32 v%d, s%d, v%d" % (V_T + 2, sbase, V_T + 2))
        a("v_lshrrev_b32 v%d, 1, v%d" % (V_T + 3, V_T))
        a("v_and_b32 v%d, 4, v%d" % (V_T + 3, V_T + 3))
        a("v_or_b32 v%d, v%d, v%d" % (V_T + 3, V_T + 3, V_T + 1))
        a("v_lshrrev_b32 v%d, 5, v%d" % (V_T + 4, V_LANE))
        a("v_xor_b32 v%d, v%d, v%d" % (V_T + 3, V_T + 3, V_T + 4))
        if sxor is not None:
            a("v_xor_b32 v%d, s%d, v%d" % (V_T + 3, sxor, V_T + 3))
        for ks in range(4):
            a("v_xor_b32 v%d, %d, v%d" % (V_T + 5, 2 * ks, V_T + 3))
            a("v_lshl_add_u32 v%d, v%d, 4, v%d" % (V_AX + ks, V_T + 5, V_T + 2))

    a("v_lshrrev_b32 v%d, 3, v%d" % (V_T, V_LANE))
    a("v_and_b32 v%d, 7, v%d" % (V_T + 1, V_LANE))
    a("v_lshrrev_b32 v%d, 2, v%d" % (V_T + 2, V_LANE))
    a("v_and_b32 v%d, 4, v%d" % (V_T + 2, V_T + 2))
    a("v_xor_b32 v%d, v%d, v%d" % (V_T + 1, V_T + 1, V_T + 2))
    a("v_mul_u32_u24 v%d, 3072, v%d" % (V_T + 3, V_T))
    a("v_lshl_add_u32 v%d, v%d, 4, v%d" % (V_DW, V_T + 1, V_T + 3))
    a("v_lshlrev_b32 v%d, 12, v%d" % (V_T, V_T))
    S_HI, S_TBH = 49, 50
    a("s_and_b32 s%d, s%d, 2" % (S_HI, S_W3))
    a("v_xor_b32 v%d, s%d, v%d" % (V_T + 1, S_HI, V_T + 1))
    for q in range(2):
        a("v_xor_b32 v%d, %d, v%d" % (V_T + 3, q, V_T + 1))
        a("v_lshl_add_u32 v%d, v%d, 4, v%d" % (V_DX + q, V_T + 3, V_T))
    a("s_and_b32 s%d, s%d, 1" % (S_TBH, S_W3))
    a("s_lshl_b32 s53, s%d, 12" % S_TBH)
    a("s_lshl_b32 s%d, s%d, 10" % (S_T0, S_HI))
    a("s_add_u32 s%d, s53, s%d" % (S_M0X, S_T0))
    a("s_lshl_b32 s%d, s%d, 1" % (S_T1, S_MEM))
    a("s_add_u32 s%d, s%d, s%d" % (S_T1, S_T1, S_TBH))
    a("s_lshl_b32 s%d, s%d, 15" % (S_KX, S_T1))
    a("s_add_u32 s%d, s%d, s%d" % (S_KX, S_KX, S_T0))
    a("v_lshlrev_b32 v%d, 10, v%d" % (V_T, V_LANE))
    a("s_mul_i32 s%d, s%d, 48" % (S_T0, S_MEM))
    a("s_mul_i32 s%d, s%d, 12" % (S_T1, S_W3))
    a("s_add_u32 s%d, s%d, s%d" % (S_T0, S_T0, S_T1))
    a("s_lshl_b32 s%d, s%d, 10" % (S_T0, S_T0))
    a("s_lshl_b32 s%d, s%d, 7" % (S_T1, S_TEAM))
    a("s_add_u32 s%d, s%d, s%d" % (S_T0, S_T0, S_T1))
    a("s_mul_i32 s%d, s%d, %d" % (S_KW, S_W3, 16 * 3072))
    a("s_add_u32 s%d, s%d, s%d" % (S_KW, S_KW, S_T1))
    a("s_waitcnt lgkmcnt(0)")
    srd(a, 12, 10, 2048 * 1024)
    srd(a, 28, 100, 512 * 3072)

    def x_issue(st):
        a("s_add_u32 m0, s%d, %d" % (S_M0X, st * 8192))
        a("s_add_u32 s%d, s%d, %d" % (S_T1, S_KX, st * 128))
        for q in range(2):
            a("buffer_load_dwordx4 v%d, s[12:15], s%d offen offset:%d lds" % (V_DX + q, S_T1, q * 1024))

    def w_issue(st):
        a("s_add_u32 m0, s%d, %d" % (S_M0W, (st % 3) * WSL))
        a("s_add_u32 s%d, s%d, %d" % (S_T0, S_KW, st * 64 * 3072))
        for sx in range(3):
            a("buffer_load_dwordx4 v%d, s[28:31], s%d offen offset:%d lds" % (V_DW, S_T0, sx * 1024))
        a("s_add_u32 m0, m0, 3072")
        a("s_add_u32 s%d, s%d, %d" % (S_T0, S_T0, 8 * 3072))
        for sx in range(3):
            a("buffer_load_dwordx4 v%d, s[28:31], s%d offen offset:%d lds" % (V_DW, S_T0, sx * 1024))

    a("s_cmp_ge_u32 s%d, 4" % S_WAVE)
    a("s_cbranch_scc1 L_p1_comp")
    a("s_mov_b64 exec, 0xfff")
    a("buffer_load_dword v%d, v%d, s[28:31], s%d offen" % (V_T + 6, V_T, S_T0))
    a("s_mov_b64 exec, -1")
    a("s_mul_i32 s%d, s%d, 6144" % (S_M0W, S_W3))
    a("s_add_u32 s%d, s%d, %d" % (S_M0W, S_M0W, WB))
    log = ["p"]
    x_issue(0)
    x_issue(1)
    log += ["x0"] * 2 + ["x1"] * 2
    w_issue(0)
    log += ["w0"] * 6
    srd(a, 20, 8, WS_SIZE)
    a("s_mov_b32 s98, 256")
    a("s_mov_b32 s99, 0x00020000")
    LX = [64, 68]
    L_SX = 92
    a("s_lshl_b32 s54, s%d, 1" % S_HI)
    x_addr(53, 54)
    make_sel(a, V_LANE, V_SEL, V_T)
    for r in list(range(V_SQ, V_SQ + 4)) + list(range(L_SX, L_SX + 4)):
        a("v_mov_b32 v%d, 0" % r)
    w_issue(1)
    x_issue(4)
    log += ["w1"] * 6 + ["x4"] * 2
    for jj in range(8):
        last = max(k for k, t in enumerate(log) if t in ("w%d" % jj, "x%d" % jj))
        a("s_waitcnt vmcnt(%d)" % (len(log) - 1 - last))
        a.tsv("%d" % jj)
        a("s_barrier")
        for ks in range(2):
            a("ds_read_b128 %s, v%d offset:%d" % (vr(LX[ks]), V_AX + ks, jj * 8192))
        if jj + 2 <= 7:
            w_issue(jj + 2)
            log += ["w%d" % (jj + 2)] * 6
        if jj + 5 <= 7:
            x_issue(jj + 5)
            log += ["x%d" % (jj + 5)] * 2
        if jj == 5 and "q" in PRET:
            a("s_lshr_b32 s%d, s%d, 1" % (S_T0, S_W3))
            a("s_lshl_b32 s%d, s%d, 1" % (S_T1, S_MEM))
            a("s_add_u32 s%d, s%d, s%d" % (S_T0, S_T0, S_T1))
            a("s_lshl_b32 s%d, s%d, 10" % (S_T0, S_T0))
            a("s_lshl_b32 s%d, s%d, 1" % (S_T1, S_TEAM))
            a("s_add_u32 s%d, s%d, s%d" % (S_T1, S_T1, S_TBH))
            a("s_lshl_b32 s%d, s%d, 17" % (S_T1, S_T1))
            a("s_add_u32 s%d, s%d, s%d" % (S_T0, S_T0, S_T1))
            for k, off in enumerate((WS_K, WS_K + 65536, WS_V, WS_V + 65536, WS_Q, WS_Q + 65536)):
                a("s_add_u32 s%d, s%d, %d" % (S_T1, S_T0, off))
                a("buffer_load_dwordx4 %s, v%d, s[20:23], s%d offen sc1" % (vr(160 + 4 * k), V_L16, S_T1))
            log += ["q"] * 6
        for ks in range(2):
            a("s_waitcnt lgkmcnt(%d)" % (1 - ks))
            for d in range(4):
                a("v_lshlrev_b32 v%d, 16, v%d" % (V_TMP + 2 * d, LX[ks] + d))
                a("v_and_b32 v%d, s%d, v%d" % (V_TMP + 2 * d + 1, S_MASK, LX[ks] + d))
            for d in range(8):
                a("v_fmac_f32 v%d, v%d, v%d" % (V_SQ + d % 4, V_TMP + d, V_TMP + d))
        for ks in range(2):
            a("v_mfma_f32_16x16x32_bf16 %s, %s, %s, %s" % (vr(L_SX), vr(V_SEL), vr(LX[ks]), vr(L_SX)))
    a("s_nop 1")
    a("v_add_f32 v%d, v%d, v%d" % (V_SQ, V_SQ, V_SQ + 1))
    a("v_add_f32 v%d, v%d, v%d" % (V_SQ + 2, V_SQ + 2, V_SQ + 3))
    a("v_add_f32 v%d, v%d, v%d" % (V_SQ, V_SQ, V_SQ + 2))
    sum_halves(a, V_SQ, V_SQ + 1)
    a("v_mov_b32 v%d, v%d" % (V_SQ + 1, L_SX))
    SCR_PX = SCR + 4096
    a("s_lshl_b32 s%d, s%d, 9" % (S_T0, S_TBH))
    a("s_add_u32 s%d, s%d, %d" % (S_T0, S_T0, SCR_PX))
    a("v_lshl_add_u32 v%d, v%d, 3, s%d" % (V_T + 3, V_LANE, S_T0))
    a("s_cmp_lt_u32 s%d, 2" % S_WAVE)
    a("s_cbranch_scc1 L_p1_fin")
    a("ds_write_b64 v%d, %s" % (V_T + 3, vr(V_SQ, 2)))
    a("s_waitcnt lgkmcnt(0)")
    a("s_barrier")
    a("s_branch L_p1_hx")
    a.label("L_p1_fin")
    a("v_and_b32 v%d, 31, v%d" % (V_T, V_LANE))
    a("v_lshlrev_b32 v%d, 2, v%d" % (V_T, V_T))
    a("s_barrier")
    a("ds_read_b64 %s, v%d" % (vr(V_SQ + 2, 2), V_T + 3))
    a("s_lshl_b32 s%d, s%d, 7" % (S_T0, S_W3))
    a("s_add_u32 s%d, s%d, %d" % (S_T0, S_T0, SCR_RS))
    a("v_add_u32 v%d, s%d, v%d" % (V_T + 2, S_T0, V_T))
    a("s_lshl_b32 s%d, s%d, 9" % (S_T0, S_W3))
    a("s_add_u32 s%d, s%d, %d" % (S_T0, S_T0, SCR_BF))
    a("v_lshl_add_u32 v%d, v%d, 3, s%d" % (V_T + 3, V_LANE, S_T0))
    a("s_waitcnt lgkmcnt(0)")
    a("v_add_f32 v%d, v%d, v%d" % (V_SQ, V_SQ, V_SQ + 2))
    a("v_add_f32 v%d, v%d, v%d" % (V_SQ + 1, V_SQ + 1, V_SQ + 3))
    V_MU, V_RS = V_SQ + 2, V_SQ + 3
    a("v_mul_f32 v%d, 0x%x, v%d" % (V_MU, f32bits(1.0 / 512), V_SQ + 1))
    a("v_mul_f32 v%d, 0x%x, v%d" % (V_SQ, f32bits(1.0 / 512), V_SQ))
    a("v_fma_f32 v%d, -v%d, v%d, v%d" % (V_SQ, V_MU, V_MU, V_SQ))
    a("v_max_f32 v%d, 0, v%d" % (V_SQ, V_SQ))
    a("v_add_f32 v%d, 0x%x, v%d" % (V_SQ, f32bits(1e-5), V_SQ))
    a("v_rsq_f32 v%d, v%d" % (V_RS, V_SQ))
    a("v_sub_f32 v%d, 0, v%d" % (V_MU, V_MU))
    split_hi_lo_B(a, V_MU, LX[0], V_T + 4, S_MASK)
    a("ds_write_b32 v%d, v%d" % (V_T + 2, V_RS))
    a("ds_write_b64 v%d, %s" % (V_T + 3, vr(LX[0], 2)))
    a("s_waitcnt lgkmcnt(0)")
    a.label("L_p1_hx")
    a("s_barrier")
    team_check(a, "h", FV_L4, FV_F)
    a("s_cmp_lg_u32 s%d, 0" % S_WAVE)
    a("s_cbranch_scc1 L_p1_done")
    a("s_lshl_b32 s%d, s%d, 9" % (T_A, S_TEAM))
    a("s_bfe_u32 s%d, s%d, 0x10001" % (T_B, S_H))
    a("s_lshl_b32 s%d, s%d, 8" % (T_B, T_B))
    a("s_add_u32 s%d, s%d, s%d" % (T_A, T_A, T_B))
    a("s_add_u32 s%d, s%d, %d" % (T_A, T_A, FL_1))
    poll(a, "f1", T_A, 64, FV_L4, FV_F)
    a("s_branch L_p1_done")
    a.label("L_p1_comp")
    if "p" in PRIO:
        a("s_setprio 2")
    a("v_mov_b32 v200, v%d" % V_DX)
    a("v_mov_b32 v201, v%d" % (V_DX + 1))
    a("s_lshr_b32 s%d, s%d, 1" % (S_TBI, S_W3))
    a("s_and_b32 s%d, s%d, 1" % (S_G, S_W3))
    a("s_lshl_b32 s%d, s%d, 12" % (S_T0, S_TBI))
    a("s_lshl_b32 s%d, s%d, 1" % (S_T1, S_TBI))
    x_addr(S_T0, S_T1)
    a("v_bfe_u32 v%d, v%d, 2, 2" % (V_T, V_LANE))
    a("v_lshlrev_b32 v%d, 7, v%d" % (V_T + 1, V_T))
    a("v_lshrrev_b32 v%d, 1, v%d" % (V_T, V_T))
    a("v_xor_b32 v%d, s%d, v%d" % (V_T, S_G, V_T))
    a("v_lshl_add_u32 v%d, v%d, 6, v%d" % (V_T + 1, V_T, V_T + 1))
    a("v_bfe_u32 v%d, v%d, 4, 1" % (V_T, V_LANE))
    a("v_lshl_add_u32 v%d, v%d, 5, v%d" % (V_T + 1, V_T, V_T + 1))
    a("v_and_b32 v%d, 3, v%d" % (V_T, V_LANE))
    a("v_lshl_add_u32 v%d, v%d, 3, v%d" % (V_T + 1, V_T, V_T + 1))
    a("v_lshrrev_b32 v%d, 5, v%d" % (V_T + 2, V_LANE))
    a("v_mul_u32_u24 v%d, 3072, v%d" % (V_T, V_T + 2))
    a("v_add_u32 v%d, v%d, v%d" % (V_T + 1, V_T + 1, V_T))
    for p in range(2):
        a("s_xor_b32 s%d, s%d, %d" % (S_T0, S_TBI, p))
        a("s_mul_i32 s%d, s%d, 6144" % (S_T0, S_T0))
        a("s_add_u32 s%d, s%d, %d" % (S_T0, S_T0, WB))
        a("v_add_u32 v%d, s%d, v%d" % (V_AW + p, S_T0, V_T + 1))
    make_sel(a, V_LANE, V_SEL, V_T)
    V_ECW, V_ECS, V_ERS, V_ERV, V_EBF, V_OV = 10, 11, 12, 13, 14, 21
    a("v_and_b32 v%d, 31, v%d" % (V_T, V_LANE))
    a("v_lshlrev_b32 v%d, 2, v%d" % (V_T, V_T))
    a("s_mul_i32 s%d, s%d, 768" % (S_T0, S_G))
    a("s_add_u32 s%d, s%d, %d" % (S_T0, S_T0, SCR_CS))
    a("v_mul_u32_u24 v%d, 384, v%d" % (V_T + 3, V_T + 2))
    a("v_add3_u32 v%d, v%d, v%d, s%d" % (V_ECS, V_T + 3, V_T, S_T0))
    a("s_mul_i32 s%d, s%d, 384" % (S_T1, S_TBI))
    a("s_add_u32 s%d, s%d, s%d" % (S_T0, S_T0, S_T1))
    a("v_add_u32 v%d, s%d, v%d" % (V_ECW, S_T0, V_T))
    a("s_lshl_b32 s%d, s%d, 7" % (S_T0, S_TBI))
    a("s_add_u32 s%d, s%d, %d" % (S_T0, S_T0, SCR_RS))
    a("v_add_u32 v%d, s%d, v%d" % (V_ERS, S_T0, V_T))
    a("v_lshl_add_u32 v%d, v%d, 4, s%d" % (V_ERV, V_T + 2, S_T0))
    a("s_lshl_b32 s%d, s%d, 9" % (S_T0, S_TBI))
    a("s_add_u32 s%d, s%d, %d" % (S_T0, S_T0, SCR_BF))
    a("v_lshl_add_u32 v%d, v%d, 3, s%d" % (V_EBF, V_LANE, S_T0))
    a("v_bfe_u32 v%d, v%d, 4, 1" % (V_T + 1, V_LANE))
    a("v_lshlrev_b32 v%d, 16, v%d" % (V_T + 1, V_T + 1))
    a("v_lshl_add_u32 v%d, v%d, 8, v%d" % (V_T + 1, V_T + 2, V_T + 1))
    a("v_and_b32 v%d, 15, v%d" % (V_T + 2, V_LANE))
    a("v_lshl_add_u32 v%d, v%d, 4, v%d" % (V_OV, V_T + 2, V_T + 1))
    a("s_lshl_b32 s%d, s%d, 1" % (S_T0, S_MEM))
    a("s_add_u32 s%d, s%d, s%d" % (S_T0, S_T0, S_TBI))
    a("s_lshl_b32 s%d, s%d, 10" % (S_T0, S_T0))
    a("s_lshl_b32 s%d, s%d, 1" % (S_T1, S_TEAM))
    a("s_add_u32 s%d, s%d, s%d" % (S_T1, S_T1, S_G))
    a("s_lshl_b32 s%d, s%d, 17" % (S_T1, S_T1))
    a("s_add_u32 s%d, s%d, s%d" % (S_O0, S_T0, S_T1))
    a("s_add_u32 s%d, s%d, 65536" % (S_O1, S_O0))
    a("s_add_u32 s%d, s%d, %d" % (S_O2, S_O0, WS_K))
    a("s_add_u32 s%d, s%d, %d" % (S_O3, S_O1, WS_K))
    a("s_add_u32 s%d, s%d, %d" % (S_O4, S_O0, WS_V))
    VB = V_TMP
    VA = [V_TMP + 4, V_TMP + 8, V_TMP + 12]
    for r in (VB + 2, VB + 3):
        a("v_mov_b32 v%d, 0" % r)
    a("s_waitcnt lgkmcnt(0)")
    srd(a, 20, 8, WS_SIZE)
    a("s_mov_b32 s98, 256")
    a("s_mov_b32 s99, 0x00020000")
    pret = []
    if "t" in PRET:
        a("v_lshlrev_b32 v202, 20, v%d" % V_LANE)
        a("s_cmp_lg_u32 s%d, 5" % S_WAVE)
        a("s_cbranch_scc1 L_p1_t6")
        a("buffer_load_dword v203, v202, s[20:23], 0 offen")
        a.label("L_p1_t6")
        a("s_cmp_lg_u32 s%d, 6" % S_WAVE)
        a("s_cbranch_scc1 L_p1_t7")
        for k, (sp, nb) in enumerate(((16, 2048 * 1024), (4, 512 * 1024), (6, 1792 * 1024))):
            srd(a, 32, sp, nb)
            a("buffer_load_dword v%d, v202, s[32:35], 0 offen" % (203 + k))
        a.label("L_p1_t7")
        a("s_cmp_lg_u32 s%d, 7" % S_WAVE)
        a("s_cbranch_scc1 L_p1_t8")
        for k, (sp, nb) in enumerate(((24, 512 * 3584), (26, 512 * 3584))):
            srd(a, 32, sp, nb)
            a("buffer_load_dword v%d, v202, s[32:35], 0 offen" % (203 + k))
        a.label("L_p1_t8")
    V_DX_SAVE, V_DX = V_DX, 200
    x_issue(2)
    x_issue(3)
    V_DX = V_DX_SAVE
    a("s_cmp_lg_u32 s%d, 4" % S_WAVE)
    a("s_cbranch_scc1 L_p1_nz")
    Z = V_TMP + 20
    a("v_and_b32 v%d, 1, v%d" % (Z, V_LANE))
    a("v_bfe_u32 v%d, v%d, 1, 1" % (Z + 1, V_LANE))
    a("v_bfe_u32 v%d, v%d, 2, 1" % (Z + 2, V_LANE))
    a("v_bfe_u32 v%d, v%d, 1, 2" % (Z + 3, V_LANE))
    a("s_lshl_b32 s36, s%d, 10" % S_QB)
    a("s_lshl_b32 s37, s%d, 2" % S_H)
    a("s_add_u32 s36, s36, s37")
    a("v_lshl_add_u32 v%d, v%d, 8, s36" % (Z + 4, Z + 3))
    a("v_lshl_add_u32 v%d, v%d, 7, v%d" % (Z + 4, Z, Z + 4))
    a("s_and_b32 s36, s%d, 3" % S_MEM)
    a("s_lshl_b32 s37, s%d, 2" % S_TEAM)
    a("s_add_u32 s38, s36, s37")
    a("s_lshl_b32 s36, s38, 8")
    a("s_lshr_b32 s37, s%d, 2" % S_MEM)
    a("s_lshl_b32 s39, s37, 4")
    a("s_add_u32 s36, s36, s39")
    a("s_add_u32 s36, s36, %d" % (FL_B - WS_FL))
    a("v_lshl_add_u32 v%d, v%d, 7, s36" % (Z + 5, Z + 1))
    a("v_lshl_add_u32 v%d, v%d, 3, v%d" % (Z + 5, Z, Z + 5))
    a("v_lshl_add_u32 v%d, v%d, 2, v%d" % (Z + 5, Z + 2, Z + 5))
    a("s_lshr_b32 s36, s38, 1")
    a("s_lshl_b32 s36, s36, 8")
    a("s_lshl_b32 s37, s37, 1")
    a("s_and_b32 s39, s%d, 1" % S_MEM)
    a("s_add_u32 s37, s37, s39")
    a("s_lshl_b32 s37, s37, 2")
    a("s_add_u32 s36, s36, s37")
    a("s_add_u32 s36, s36, %d" % (FL_C - WS_FL))
    a("v_lshl_add_u32 v%d, v%d, 7, s36" % (Z + 6, Z + 1))
    a("v_lshl_add_u32 v%d, v%d, 6, v%d" % (Z + 6, Z, Z + 6))
    a("s_lshl_b32 s36, s2, 4")
    a("s_add_u32 s36, s36, %d" % (FL_P - WS_FL))
    a("v_and_b32 v%d, 3, v%d" % (Z + 7, V_LANE))
    a("v_lshl_add_u32 v%d, v%d, 2, s36" % (Z + 7, Z + 7))
    a("v_cmp_ne_u32 vcc, 0, v%d" % (Z + 2))
    a("s_lshl_b32 s36, s%d, 9" % S_TEAM)
    a("s_lshl_b32 s37, s%d, 3" % S_MEM)
    a("s_add_u32 s36, s36, s37")
    a("s_add_u32 s36, s36, %d" % (FL_1 - WS_FL))
    a("v_cndmask_b32 v%d, v%d, v%d, vcc" % (Z + 6, Z + 6, Z + 7))
    a("v_lshl_add_u32 v%d, v%d, 8, s36" % (Z + 7, Z))
    a("v_lshl_add_u32 v%d, v%d, 2, v%d" % (Z + 7, Z + 1, Z + 7))
    a("v_mov_b32 v%d, v%d" % (V_T, Z + 4))
    for k in range(1, 4):
        a("v_cmp_le_u32 vcc, %d, v%d" % (8 * k, V_LANE))
        a("s_nop 1")
        a("v_cndmask_b32 v%d, v%d, v%d, vcc" % (V_T, V_T, Z + 4 + k))
    a("v_mov_b32 v%d, 0" % (V_T + 1))
    a("s_mov_b32 s%d, %d" % (S_T0, WS_FL))
    a("s_mov_b64 exec, 0xffffffff")
    a("buffer_store_dword v%d, v%d, s[20:23], s%d offen sc1" % (V_T + 1, V_T, S_T0))
    a("s_mov_b64 exec, -1")
    a.label("L_p1_nz")
    cur_base = [0]

    lds = Lds(a)
    NB = 3
    V_X = [32, 36, 184]
    V_W = [[40, 44, 48], [52, 56, 60], [188, 192, 196]]

    def reads(P):
        st, pos = P // 4, P % 4
        out = []
        b = P % NB
        out.append(("ds_read_b128 %s, v%d offset:%d" % (vr(V_X[b]), V_AX + pos, st * 8192), ("x", P)))
        for sx in range(3):
            for rd in range(2):
                out.append(("ds_read_b64_tr_b16 %s, v%d offset:%d" % (vr(V_W[b][sx] + 2 * rd, 2), V_AW + (pos & 1), (st % 3) * WSL + (pos & 2) * 6144 + sx * 1024 + rd * 512), ("w", P, sx, rd)))
        return out

    def emit(items):
        for t, tag in items:
            lds.op(t, tag) if tag else a(t)

    a.tsv("0")
    a("s_barrier")
    a.ts("k2")
    a.ts("kp_")
    emit(reads(0))
    emit(reads(1))
    for P in range(32):
        st, pos = P // 4, P % 4
        b = P % NB
        if P == 11:
            a("s_cmp_lg_u32 s%d, 4" % S_WAVE)
            a("s_cbranch_scc1 L_p1_np")
            a("s_lshl_b32 s%d, s%d, 5" % (S_T0, S_TEAM))
            a("s_add_u32 s%d, s%d, s%d" % (S_T0, S_T0, S_MEM))
            a("v_mov_b32 v%d, 0" % (V_T + 1))
            a("v_mov_b32 v%d, s%d" % (V_T + 2, S_XCC))
            a("s_mov_b64 exec, 1")
            a("s_waitcnt vmcnt(0)")
            a("buffer_store_byte v%d, v%d, s[96:99], s%d offen sc1" % (V_T + 2, V_T + 1, S_T0))
            a("s_mov_b64 exec, -1")
            a.label("L_p1_np")
        X = vr(V_X[b])
        c = lambda r, n=16: ("0" if P == 0 else vr(r, n))
        m = []
        m.append(("v_mfma_f32_32x32x16_bf16 %s, %s, %s, %s" % (vr(V_ACC[0], 16), vr(V_W[b][0]), X, c(V_ACC[0])), [("x", P), ("w", P, 0, 1)]))
        m.append(("v_mfma_f32_32x32x16_bf16 %s, %s, %s, %s" % (vr(V_ACC[1], 16), vr(V_W[b][1]), X, c(V_ACC[1])), [("w", P, 1, 1)]))
        m.append(("v_mfma_f32_32x32x16_bf16 %s, %s, %s, %s" % (vr(V_ACC[2], 16), X, vr(V_W[b][2]), c(V_ACC[2])), [("w", P, 2, 1)]))
        if pos % 2 == 0:
            for sx in range(3):
                m.append(("v_mfma_f32_16x16x32_bf16 %s, %s, %s, %s" % (vr(V_CS[sx]), vr(V_SEL), vr(V_W[b][sx]), c(V_CS[sx], 4)), [("w", P, sx, 1)]))
        bar = pos == 2 and P + 2 < 32
        rd = None
        extra = []
        if P == 28:
            extra = [("s_lshl_b32 s38, s%d, 5" % S_TEAM, None), ("buffer_load_dword v%d, v%d, s[96:99], s38 offen sc1" % (FV_F, FV_L4), None)]
        if 4 <= P < 4 + len(pret):
            extra = [(pret[P - 4], None)]
        for k, (t, need) in enumerate(m):
            lds.need(*need)
            if DIAG != "nomfma":
                a(t)
            if k == 0:
                if bar:
                    lds.drain()
                    if st == 1:
                        a("s_cmp_lg_u32 s%d, 4" % S_WAVE)
                        a("s_cbranch_scc1 L_p1_w0")
                        a("s_waitcnt vmcnt(1)")
                        a("s_branch L_p1_w1")
                        a.label("L_p1_w0")
                        a("s_waitcnt vmcnt(0)")
                        a.label("L_p1_w1")
                    a.tsv("%d" % (st + 1))
                    a("s_barrier")
                    a.ts("kp_")
                if P == 30:
                    a("s_barrier")
                rd = (reads(P + 2) if P + 2 < 32 else []) + extra
            n = 4 if len(rd) > 8 else 3
            emit(rd[:n])
            rd = rd[n:]
        emit(rd)
    a("s_nop 3")
    for sx in range(3):
        a("ds_write_b32 v%d, v%d offset:%d" % (V_ECW, V_CS[sx], sx * 128))
    a.ts("k2")
    a("s_waitcnt lgkmcnt(0)")
    a("s_barrier")
    a.ts("kp_")
    VC = V_TMP + 16
    V_RS = V_TMP + 22
    V_RQ = V_TMP + 23
    VR = V_TMP + 24
    for sx in range(3):
        a("ds_read_b32 v%d, v%d offset:%d" % (VC + sx, V_ECS, sx * 128))
    a("ds_read_b64 %s, v%d" % (vr(VB, 2), V_EBF))
    a("ds_read_b32 v%d, v%d" % (V_RS, V_ERS))
    for q in range(4):
        a("ds_read_b128 %s, v%d offset:%d" % (vr(VR + 4 * q), V_ERV, q * 32))
    for sx in range(3):
        a("s_waitcnt lgkmcnt(%d)" % (8 - sx))
        split_hi_lo_A(a, VC + sx, VA[sx], V_T + 4, S_MASK)
    a("s_waitcnt lgkmcnt(4)")
    a("v_mul_f32 v%d, 0x%x, v%d" % (V_RQ, f32bits(0.25 * math.log2(math.e)), V_RS))
    a("v_mfma_f32_32x32x16_bf16 %s, %s, %s, %s" % (vr(V_ACC[0], 16), vr(VA[0]), vr(VB), vr(V_ACC[0], 16)))
    a("v_mfma_f32_32x32x16_bf16 %s, %s, %s, %s" % (vr(V_ACC[1], 16), vr(VA[1]), vr(VB), vr(V_ACC[1], 16)))
    a("v_mfma_f32_32x32x16_bf16 %s, %s, %s, %s" % (vr(V_ACC[2], 16), vr(VB), vr(VA[2]), vr(V_ACC[2], 16)))
    team_check(a, "c", FV_L4, FV_F, preissued=True)
    VO = V_X[0]
    k = 0
    stores = []
    for blk, sc, soffs in ((1, V_RS, (S_O2, S_O3)), (0, V_RQ, (S_O0, S_O1))):
        for half in range(2):
            o = VO + 4 * k
            k += 1
            for i in range(8):
                r = V_ACC[blk] + 8 * half + i
                a("v_mul_f32 v%d, v%d, v%d" % (r, sc, r))
            for i in range(4):
                r = V_ACC[blk] + 8 * half + 2 * i
                a("v_cvt_pk_bf16_f32 v%d, v%d, v%d" % (o + i, r, r + 1))
            stores.append("buffer_store_dwordx4 %s, v%d, s[20:23], s%d offen" % (vr(o), V_L16, soffs[half]))
        hstore(a, "p1%d" % blk, stores)
        stores = []
    a("s_waitcnt lgkmcnt(0)")
    for half in range(2):
        o = VO + 4 * k
        k += 1
        for i in range(8):
            r = V_ACC[2] + 8 * half + i
            a("v_mul_f32 v%d, v%d, v%d" % (r, VR + 8 * half + i, r))
        for i in range(4):
            r = V_ACC[2] + 8 * half + 2 * i
            a("v_cvt_pk_bf16_f32 v%d, v%d, v%d" % (o + i, r, r + 1))
        stores.append("buffer_store_dwordx4 %s, v%d, s[20:23], s%d offen offset:%d" % (vr(o), V_OV, S_O4, half * 512))
    hstore(a, "p1v", stores)
    a("s_lshl_b32 s%d, s%d, 9" % (T_A, S_TEAM))
    a("s_lshl_b32 s%d, s%d, 8" % (T_B, S_G))
    a("s_add_u32 s%d, s%d, s%d" % (T_A, T_A, T_B))
    a("s_lshl_b32 s%d, s%d, 1" % (T_B, S_MEM))
    a("s_add_u32 s%d, s%d, s%d" % (T_B, T_B, S_TBI))
    a("s_lshl_b32 s%d, s%d, 2" % (T_B, T_B))
    a("s_add_u32 s%d, s%d, s%d" % (T_A, T_A, T_B))
    a("s_add_u32 s%d, s%d, %d" % (T_A, T_A, FL_1))
    a("s_waitcnt vmcnt(0)")
    set_flag(a, T_A, V_T, "f1")
    a.ts_flush("kp_", S_WAVE, V_T)
    a.label("L_p1_done")
    a.tsv("9")
    a.tsv_flush(S_WAVE)


def gen_f(a):
    name = NAME + "_kernel"
    kernel_begin(a, name)
    S_WAVE, S_H, S_QB, S_T0, S_T1, S_T2, S_T3 = 40, 41, 42, 43, 44, 45, 46
    S_ITER, S_SYNC, S_PASS, S_NT = 47, 48, 49, 50
    S_TASK, S_STG, S_DST0, S_DST1, S_TYPE = 51, 52, 53, 54, 55
    S_VMASK = 56
    S_CS = 58
    S_KB, S_W1K, S_CH = 59, 60, 61
    S_PE, S_PO, S_PS = 36, 37, 38
    V_LANE, V_L16, V_T = 1, 2, 3
    V_KA, V_VA = 10, 11
    V_Q = 12
    V_K = [16, 20]
    V_V = [24, 32]
    V_P = 40
    V_CM = 48
    V_S = [64, 80]
    V_O = 96
    V_MAX = 112
    V_PK = 113
    V_PD = 114
    V_SEL = 116
    V_PCS = [120, 124]
    STG = 131072
    a("s_cmp_ge_u32 s2, 256")
    a("s_cbranch_scc1 L_f_end")
    a.ts("k2")
    a.ts("kp_")
    pass
    a("s_load_dwordx2 s[8:9], s[0:1], %d" % ARG_WS)
    a("s_load_dwordx2 s[4:5], s[0:1], %d" % ARG_WO)
    a("s_load_dwordx4 s[24:27], s[0:1], %d" % ARG_WG)
    a("s_load_dwordx2 s[6:7], s[0:1], %d" % ARG_WD)
    a("s_load_dwordx2 s[10:11], s[0:1], %d" % ARG_X)
    a("s_load_dwordx2 s[16:17], s[0:1], %d" % ARG_OUT)
    a("s_load_dwordx2 s[100:101], s[0:1], %d" % ARG_WQKV)
    a("s_load_dwordx2 s[96:97], s[0:1], %d" % ARG_DBG)
    a("v_lshrrev_b32 v%d, 6, v0" % V_T)
    a("v_and_b32 v%d, 63, v0" % V_LANE)
    a("v_readfirstlane_b32 s%d, v%d" % (S_WAVE, V_T))
    a("v_lshlrev_b32 v%d, 4, v%d" % (V_L16, V_LANE))
    a("s_lshr_b32 s%d, s2, 3" % S_MEM)
    a("s_and_b32 s%d, s2, 7" % S_TEAM)
    if AMAP:
        a("s_lshr_b32 s%d, s2, 3" % S_H)
        a("s_and_b32 s%d, s2, 7" % S_QB)
    else:
        a("s_and_b32 s%d, s2, 7" % S_H)
        a("s_lshl_b32 s%d, s%d, 2" % (S_H, S_H))
        a("s_lshr_b32 s%d, s2, 6" % S_T0)
        a("s_add_u32 s%d, s%d, s%d" % (S_H, S_H, S_T0))
        a("s_lshr_b32 s%d, s2, 3" % S_QB)
        a("s_and_b32 s%d, s%d, 7" % (S_QB, S_QB))
    a("s_lshr_b32 s%d, s%d, 2" % (S_T0, S_WAVE))
    a("s_lshl_b32 s%d, s%d, 8" % (S_T0, S_T0))
    a("v_xor_b32 v%d, s%d, v%d" % (FV_LX, S_T0, V_L16))
    a("v_lshlrev_b32 v%d, 2, v%d" % (FV_L4, V_LANE))
    a("v_mov_b32 v%d, 0" % (FV_F + 3))
    a("v_lshlrev_b32 v%d, 3, v%d" % (FV_L8, V_LANE))
    a("s_getreg_b32 s%d, hwreg(HW_REG_XCC_ID)" % S_XCC)
    a("s_and_b32 s%d, s%d, 15" % (S_XCC, S_XCC))
    a("s_add_u32 s%d, s%d, 1" % (S_XCC, S_XCC))
    phase1(a, locals())
    a("s_lshl_b32 s%d, s%d, 16" % (S_KB, S_H))
    a("s_lshl_b32 s%d, s%d, 10" % (S_W1K, S_WAVE))
    a("s_add_u32 s%d, s%d, s%d" % (S_KB, S_KB, S_W1K))
    a("s_lshl_b32 s%d, s%d, 13" % (S_CH, S_QB))
    a("s_add_u32 s%d, s%d, s%d" % (S_T3, S_KB, S_CH))
    a("s_add_u32 s%d, s%d, %d" % (S_KB, S_KB, WS_K))
    if not K2_ROT:
        a("s_mov_b32 s%d, 0" % S_CH)
    a("s_mov_b32 s39, s%d" % S_T3)

    def kv_dma(c):
        return [["s_add_u32 s%d, s%d, s%d" % (S_T3, S_KB, S_CH),
                 "s_add_u32 m0, s%d, %d" % (S_W1K, c * 8192),
                 "s_add_u32 s%d, s%d, 8192" % (S_CH, S_CH),
                 "buffer_load_dwordx4 v%d, s[20:23], s%d offen sc1 lds" % (V_L16, S_T3)],
                ["s_add_u32 s%d, s%d, %d" % (S_T3, S_T3, WS_V - WS_K),
                 "s_add_u32 m0, s%d, %d" % (S_W1K, 65536 + c * 8192),
                 "s_and_b32 s%d, s%d, 0xffff" % (S_CH, S_CH),
                 "buffer_load_dwordx4 v%d, s[20:23], s%d offen sc1 lds" % (V_L16, S_T3)]]

    a("s_mov_b32 s%d, 0" % S_TYPE)
    a("s_cmp_ge_u32 s%d, %d" % (S_WAVE, 0 if DIAG == "nopack" else 4))
    a("s_cbranch_scc1 L_f_nopack")
    a("s_lshl_b32 s%d, s2, 2" % S_TASK)
    a("s_add_u32 s%d, s%d, s%d" % (S_TASK, S_TASK, S_WAVE))
    a("s_cmp_ge_u32 s%d, 736" % S_TASK)
    a("s_cbranch_scc1 L_f_nopack")
    a("s_lshl_b32 s%d, s%d, 13" % (S_STG, S_WAVE))
    a("s_add_u32 s%d, s%d, %d" % (S_STG, S_STG, STG))
    a("v_lshrrev_b32 v%d, 2, v%d" % (V_T, V_LANE))
    a("v_and_b32 v%d, 3, v%d" % (V_T + 1, V_LANE))
    a("s_cmp_ge_u32 s%d, 448" % S_TASK)
    a("s_cbranch_scc1 L_f_packn")
    a("s_mov_b32 s%d, 1" % S_TYPE)
    srd(a, 28, 24, 512 * 3584)
    srd(a, 32, 26, 512 * 3584)
    a("v_mul_u32_u24 v%d, 3584, v%d" % (V_T, V_T))
    a("v_lshl_add_u32 v%d, v%d, 4, v%d" % (V_PD, V_T + 1, V_T))
    a("s_and_b32 s%d, s%d, 7" % (S_T0, S_TASK))
    a("s_lshr_b32 s%d, s%d, 3" % (S_T1, S_TASK))
    a("s_mul_i32 s%d, s%d, %d" % (S_PE, S_T0, 64 * 3584))
    a("s_lshl_b32 s%d, s%d, 6" % (S_T2, S_T1))
    a("s_add_u32 s%d, s%d, s%d" % (S_PE, S_PE, S_T2))
    a("s_mov_b32 s%d, s%d" % (S_PO, S_PE))
    a("s_mov_b32 s%d, %d" % (S_PS, 16 * 3584))
    for hb, sd in ((0, S_DST0), (1, S_DST1)):
        a("s_lshl_b32 s%d, s%d, 1" % (S_T2, S_T1))
        if hb:
            a("s_add_u32 s%d, s%d, 1" % (S_T2, S_T2))
        a("s_mul_i32 s%d, s%d, 9363" % (S_CS, S_T2))
        a("s_lshr_b32 s%d, s%d, 16" % (S_CS, S_CS))
        a("s_mul_i32 s%d, s%d, 7" % (sd, S_CS))
        a("s_sub_u32 s%d, s%d, s%d" % (sd, S_T2, sd))
        a("s_mul_i32 s%d, s%d, %d" % (S_CS, S_CS, 32 * 7))
        a("s_add_u32 s%d, s%d, s%d" % (sd, sd, S_CS))
        a("s_mul_i32 s%d, s%d, 28" % (S_CS, S_T0))
        a("s_add_u32 s%d, s%d, s%d" % (sd, sd, S_CS))
        a("s_lshl_b32 s%d, s%d, 10" % (sd, sd))
        a("s_add_u32 s%d, s%d, %d" % (sd, sd, WS_GU))
    a("s_lshl_b32 s%d, s%d, 11" % (S_CS, S_T1))
    a("s_lshr_b32 s%d, s%d, 2" % (S_T2, S_T0))
    a("s_lshl_b32 s%d, s%d, 9" % (S_T2, S_T2))
    a("s_add_u32 s%d, s%d, s%d" % (S_CS, S_CS, S_T2))
    a("s_and_b32 s%d, s%d, 3" % (S_T2, S_T0))
    a("s_lshl_b32 s%d, s%d, 2" % (S_T2, S_T2))
    a("s_add_u32 s%d, s%d, s%d" % (S_CS, S_CS, S_T2))
    a("s_add_u32 s%d, s%d, %d" % (S_CS, S_CS, WS_CS))
    a("s_branch L_f_nopack")
    a.label("L_f_packn")
    a("s_mov_b32 s%d, 2" % S_TYPE)
    a("v_lshlrev_b32 v%d, 10, v%d" % (V_T, V_T))
    a("v_lshl_add_u32 v%d, v%d, 4, v%d" % (V_PD, V_T + 1, V_T))
    a("s_cmp_ge_u32 s%d, 512" % S_TASK)
    a("s_cbranch_scc1 L_f_packd")
    srd(a, 28, 4, 512 * 1024)
    srd(a, 32, 4, 512 * 1024)
    a("s_sub_u32 s%d, s%d, 448" % (S_T0, S_TASK))
    a("s_lshr_b32 s%d, s%d, 2" % (S_T1, S_T0))
    a("s_and_b32 s%d, s%d, 3" % (S_T0, S_T0))
    a("s_lshl_b32 s%d, s%d, 15" % (S_DST0, S_T1))
    a("s_add_u32 s%d, s%d, %d" % (S_DST0, S_DST0, WS_WO))
    a("s_branch L_f_packc")
    a.label("L_f_packd")
    srd(a, 28, 6, 1792 * 1024)
    srd(a, 32, 6, 1792 * 1024)
    a("s_sub_u32 s%d, s%d, 512" % (S_T0, S_TASK))
    a("s_mul_i32 s%d, s%d, 4682" % (S_T1, S_T0))
    a("s_lshr_b32 s%d, s%d, 16" % (S_T1, S_T1))
    a("s_mul_i32 s%d, s%d, 14" % (S_T2, S_T1))
    a("s_sub_u32 s%d, s%d, s%d" % (S_T0, S_T0, S_T2))
    a("s_mul_i32 s%d, s%d, %d" % (S_DST0, S_T1, 112 * 1024))
    a("s_add_u32 s%d, s%d, %d" % (S_DST0, S_DST0, WS_WD))
    a.label("L_f_packc")
    a("s_lshl_b32 s%d, s%d, 13" % (S_T2, S_T0))
    a("s_add_u32 s%d, s%d, s%d" % (S_DST0, S_DST0, S_T2))
    a("s_lshl_b32 s%d, s%d, 17" % (S_PE, S_T0))
    a("s_lshl_b32 s%d, s%d, 6" % (S_T2, S_T1))
    a("s_add_u32 s%d, s%d, s%d" % (S_PE, S_PE, S_T2))
    a("s_add_u32 s%d, s%d, 16384" % (S_PO, S_PE))
    a("s_mov_b32 s%d, 32768" % S_PS)
    a.label("L_f_nopack")
    a("s_mov_b32 s%d, 0x0000ffff" % S_VMASK)
    a("s_mov_b32 s%d, 0x0000ffff" % (S_VMASK + 1))
    a("v_and_b32 v%d, 27, v%d" % (V_T, V_LANE))
    a("v_cmp_eq_u32 vcc, 16, v%d" % V_T)
    a("v_mov_b32 v%d, 0x%x" % (V_T + 1, ONES_BF16))
    a("s_nop 1")
    a("v_cndmask_b32 v%d, 0, v%d, vcc" % (V_V[0], V_T + 1))
    for i in range(1, 16):
        a("v_mov_b32 v%d, v%d" % (V_V[0] + i, V_V[0]))
    a("s_mov_b32 s%d, 7" % S_SYNC)
    a("s_mov_b32 s%d, 0" % S_PASS)
    a("s_mov_b32 s%d, 1" % S_NT)
    a("s_setprio 3")
    a("s_barrier")
    if INSTR == "ka_":
        a("v_mov_b32 v250, 0")
    a.tsv("15", "ka_")
    a.ts("k2")
    a("buffer_load_dwordx4 %s, v%d, s[20:23], s39 offen sc1" % (vr(V_Q), V_L16))
    for c in range(2):
        for g in kv_dma(c):
            for l in g:
                a(l)
    a("s_waitcnt vmcnt(2)")
    pass
    a("s_barrier")
    a.ts("k2")
    pass
    a.label("L_f_maxpass")
    a("v_mov_b32 v%d, 0xff800000" % V_MAX)
    a("v_mov_b32 v%d, v%d" % (V_KA, V_L16))
    a.label("L_f_mloop")
    a("ds_read_b128 %s, v%d" % (vr(V_K[0]), V_KA))
    a("v_add_u32 v%d, 1024, v%d" % (V_KA, V_KA))
    a("s_waitcnt lgkmcnt(0)")
    a("v_mfma_f32_32x32x16_bf16 %s, %s, %s, 0" % (vr(V_S[0], 16), vr(V_K[0]), vr(V_Q)))
    a("s_nop 15")
    for i in range(8):
        a("v_max3_f32 v%d, v%d, v%d, v%d" % (V_MAX, V_S[0] + 2 * i, V_S[0] + 2 * i + 1, V_MAX))
    a("s_sub_u32 s%d, s%d, 1" % (S_NT, S_NT))
    a("s_cmp_lg_u32 s%d, 0" % S_NT)
    a("s_cbranch_scc1 L_f_mloop")
    a("v_mov_b32 v%d, v%d" % (V_KA, V_L16))
    a("v_lshrrev_b32 v%d, 5, v%d" % (V_T, V_LANE))
    a("v_lshlrev_b32 v%d, 8, v%d" % (V_T, V_T))
    a("v_and_b32 v%d, 15, v%d" % (V_T + 1, V_LANE))
    a("v_lshl_add_u32 v%d, v%d, 4, v%d" % (V_VA, V_T + 1, V_T))
    a("v_add_u32 v%d, 65536, v%d" % (V_VA, V_VA))
    a("ds_read_b128 %s, v%d" % (vr(V_K[0]), V_KA))
    a("ds_read_b128 %s, v%d offset:1024" % (vr(V_K[1]), V_KA))
    a("s_mov_b64 exec, s[%d:%d]" % (S_VMASK, S_VMASK + 1))
    a("ds_read_b128 %s, v%d" % (vr(V_V[0]), V_VA))
    a("ds_read_b128 %s, v%d offset:512" % (vr(V_V[0] + 4), V_VA))
    a("s_mov_b64 exec, -1")
    a("v_mov_b32 v%d, v%d" % (V_T, V_MAX))
    a("s_nop 1")
    a("v_permlane32_swap_b32 v%d, v%d" % (V_MAX, V_T))
    a("s_nop 1")
    a("v_max_f32 v%d, v%d, v%d" % (V_MAX, V_MAX, V_T))
    for i in range(16):
        a("v_sub_f32 v%d, 0, v%d" % (V_CM + i, V_MAX))
    a("s_waitcnt lgkmcnt(0)")
    a("s_nop 0")
    a("v_mfma_f32_32x32x16_bf16 %s, %s, %s, %s" % (vr(V_S[0], 16), vr(V_K[0]), vr(V_Q), vr(V_CM, 16)))
    for i in range(16):
        a("v_mov_b32 v%d, 0" % (V_O + i))
    for i in range(4):
        a("v_mov_b32 v%d, 0" % (V_P + 4 + i))
    a("s_mov_b32 s%d, 8" % S_ITER)
    a("s_cmp_lg_u32 s%d, 0" % S_PASS)
    a("s_cbranch_scc1 L_f_loop")

    def body(peeled):
        for t in range(8):
            cur, nxt = t % 2, (t + 1) % 2
            x1, x2 = [], []
            if peeled:
                if t < 6:
                    x1, x2 = kv_dma(t + 2)
                if t == 6:
                    a("s_waitcnt vmcnt(12)")
                    a("s_barrier")
                if t >= 6:
                    lab = "L_f_np%d" % t
                    x1 = ["s_cmp_eq_u32 s%d, 0" % S_TYPE, "s_cbranch_scc1 %s" % lab]
                    for i in range(4 * (t - 6), 4 * (t - 6) + 4):
                        x1 += ["s_add_u32 m0, s%d, %d" % (S_STG, i * 1024), "s_nop 0",
                               "buffer_load_dwordx4 v%d, s[%d:%d], s%d offen lds" % (V_PD, 28 + 4 * (i % 2), 31 + 4 * (i % 2), S_PO if i % 2 else S_PE),
                               "s_add_u32 s%d, s%d, s%d" % ((S_PO, S_PO, S_PS) if i % 2 else (S_PE, S_PE, S_PS))]
                    x1 += [lab + ":"]
            else:
                if t == 0:
                    for k, r in enumerate((5, 2, 1)):
                        x1 += ["s_cmp_lg_u32 s%d, %d" % (S_ITER, r), "s_cbranch_scc1 L_f_pp%d" % k, "s_setprio %d" % (2 - k), "L_f_pp%d:" % k]
                if t == 6:
                    a("s_cmp_eq_u32 s%d, s%d" % (S_ITER, S_SYNC))
                    a("s_cbranch_scc1 L_f_event")
                    a.label("L_f_syncret")
            S = V_S[cur]
            e = lambda i: "v_exp_f32 v%d, v%d" % (S + i, S + i)
            c = lambda i: "v_cvt_pk_bf16_f32 v%d, v%d, v%d" % (V_P + i, S + 2 * i, S + 2 * i + 1)
            pv = lambda b, h: "v_mfma_f32_32x32x16_bf16 %s, %s, %s, %s" % (vr(V_O, 16), vr(V_V[b] + 4 * h), vr(V_P + 4 * h), vr(V_O, 16))
            qk = "v_mfma_f32_32x32x16_bf16 %s, %s, %s, %s" % (vr(V_S[nxt], 16), vr(V_K[nxt]), vr(V_Q), vr(V_CM, 16))
            rdk = "ds_read_b128 %s, v%d offset:%d" % (vr(V_K[cur]), V_KA, (t + 2) * 1024)
            rdv = ["s_mov_b64 exec, s[%d:%d]" % (S_VMASK, S_VMASK + 1),
                   "ds_read_b128 %s, v%d offset:%d" % (vr(V_V[nxt]), V_VA, (t + 1) * 1024),
                   "ds_read_b128 %s, v%d offset:%d" % (vr(V_V[nxt] + 4), V_VA, (t + 1) * 1024 + 512),
                   "s_mov_b64 exec, -1"]
            seq = [e(0), e(1), pv(nxt, 1), e(2), "s_waitcnt lgkmcnt(0)", rdk, e(3)] + rdv + [c(0), e(4), e(5), c(1), e(6), e(7), qk, c(2), e(8)] + x1 + [e(9), c(3),
                   e(10), e(11), c(4), e(12), e(13), pv(cur, 0), c(5), e(14)] + x2 + [e(15), c(6)]
            if t == 7:
                seq += ["v_add_u32 v%d, 8192, v%d" % (V_KA, V_KA), "v_add_u32 v%d, 8192, v%d" % (V_VA, V_VA),
                        "s_sub_u32 s%d, s%d, 1" % (S_ITER, S_ITER), "s_cmp_lg_u32 s%d, 0" % S_ITER]
            seq += [c(7)]
            for l in seq:
                if l.endswith(":"):
                    a.label(l[:-1])
                else:
                    a(l)

    a.tsv("8", "ka_")
    body(True)
    a.raw(".p2align 6")
    a.label("L_f_loop")
    a.tsv("s%d" % S_ITER, "ka_")
    body(False)
    a("s_cbranch_scc1 L_f_loop")
    a.tsv("0", "ka_")
    a.tsv_flush(S_WAVE, "ka_")
    a("s_nop 1")
    a("v_mfma_f32_32x32x16_bf16 %s, %s, %s, %s" % (vr(V_O, 16), vr(V_V[1] + 4), vr(V_P + 4), vr(V_O, 16)))
    a("s_waitcnt lgkmcnt(0)")
    a("s_lshl_b32 s%d, s%d, 3" % (S_T0, S_QB))
    a("s_add_u32 s%d, s%d, s%d" % (S_T0, S_T0, S_WAVE))
    a("s_lshl_b32 s%d, s%d, 5" % (S_T0, S_T0))
    a("s_add_u32 s%d, s%d, s%d" % (S_T0, S_T0, S_H))
    a("s_lshl_b32 s%d, s%d, 10" % (S_T0, S_T0))
    a("s_add_u32 s%d, s%d, %d" % (S_T0, S_T0, WS_O))
    a("s_nop 7")
    a("v_mul_f32 v%d, 0, v%d" % (V_T, V_O))
    for i in range(1, 8):
        a("v_fmac_f32 v%d, 0, v%d" % (V_T, V_O + i))
    a("v_add_f32 v%d, v%d, v%d" % (V_T, V_T, V_O + 8))
    a("v_cmp_gt_f32 vcc, 0x%x, v%d" % (f32bits(2.0 ** 100), V_T))
    a("v_rcp_f32 v%d, v%d" % (V_T + 1, V_O + 8))
    a("s_cmp_lg_u32 s%d, 0" % S_PASS)
    a("s_cbranch_scc1 L_f_fin")
    a("s_cmp_eq_u64 vcc, exec")
    a("s_cbranch_scc1 L_f_fin")
    a("s_mov_b32 s%d, 1" % S_PASS)
    a("s_mov_b32 s%d, 64" % S_NT)
    a("s_branch L_f_maxpass")
    a.label("L_f_fin")
    for i in range(8):
        a("v_mul_f32 v%d, v%d, v%d" % (V_O + i, V_T + 1, V_O + i))
    for i in range(4):
        a("v_cvt_pk_bf16_f32 v%d, v%d, v%d" % (V_P + i, V_O + 2 * i, V_O + 2 * i + 1))
    if AMAP:
        hstore(a, "o", ["buffer_store_dwordx4 %s, v%d, s[20:23], s%d offen" % (vr(V_P), V_L16, S_T0)])
    else:
        a("buffer_store_dwordx4 %s, v%d, s[20:23], s%d offen sc1" % (vr(V_P), V_L16, S_T0))
    fused_tail(a, locals())
    a.label("L_f_end")
    a("s_endpgm")
    fused_events(a, locals())
    a.label("L_f_sync")
    a("s_mov_b32 s%d, 6" % S_SYNC)
    a("s_cmp_eq_u32 s%d, 0" % S_TYPE)
    a("s_cbranch_scc1 L_f_sy0")
    a("s_waitcnt vmcnt(8)")
    a("s_barrier")
    a("s_branch L_f_syncret")
    a.label("L_f_sy0")
    a("s_waitcnt vmcnt(0)")
    a("s_barrier")
    a("s_branch L_f_syncret")
    a.label("L_f_ev6")
    a("s_mov_b32 s%d, 5" % S_SYNC)
    a("s_cmp_eq_u32 s%d, 0" % S_TYPE)
    a("s_cbranch_scc1 L_f_syncret")
    a("s_waitcnt vmcnt(0)")
    a("v_bfe_u32 v%d, v%d, 2, 2" % (V_T, V_LANE))
    a("v_lshrrev_b32 v%d, 5, v%d" % (V_T + 1, V_LANE))
    a("v_lshl_add_u32 v%d, v%d, 2, v%d" % (V_T, V_T + 1, V_T))
    a("v_lshlrev_b32 v%d, 6, v%d" % (V_T, V_T))
    a("v_and_b32 v%d, 3, v%d" % (V_T + 1, V_LANE))
    a("v_lshl_add_u32 v%d, v%d, 3, v%d" % (V_T, V_T + 1, V_T))
    a("v_add_u32 v%d, s%d, v%d" % (V_T, S_STG, V_T))
    a("v_bfe_u32 v%d, v%d, 4, 1" % (V_T + 1, V_LANE))
    FB = [128 + 4 * i for i in range(8)]
    a("s_cmp_eq_u32 s%d, 2" % S_TYPE)
    a("s_cbranch_scc1 L_f_pk2")
    a("v_lshl_add_u32 v%d, v%d, 10, v%d" % (V_PK, V_T + 1, V_T))
    for ks in range(4):
        for hb in range(2):
            for rd in range(2):
                a("ds_read_b64_tr_b16 %s, v%d offset:%d" % (vr(FB[ks * 2 + hb] + 2 * rd, 2), V_PK, ks * 2048 + hb * 32 + rd * 512))
    make_sel(a, V_LANE, V_SEL, V_T + 2)
    a("v_and_b32 v%d, 31, v%d" % (V_T, V_LANE))
    a("v_lshlrev_b32 v%d, 4, v%d" % (V_T, V_T))
    a("s_waitcnt lgkmcnt(0)")
    for ks in range(4):
        for hb in range(2):
            a("v_mfma_f32_16x16x32_bf16 %s, %s, %s, %s" % (vr(V_PCS[hb]), vr(V_SEL), vr(FB[ks * 2 + hb]), "0" if ks == 0 else vr(V_PCS[hb])))
            a("buffer_store_dwordx4 %s, v%d, s[20:23], s%d offen sc1" % (vr(FB[ks * 2 + hb]), V_L16, (S_DST0, S_DST1)[hb]))
        a("s_add_u32 s%d, s%d, 7168" % (S_DST0, S_DST0))
        a("s_add_u32 s%d, s%d, 7168" % (S_DST1, S_DST1))
    a("s_nop 7")
    a("buffer_store_dword v%d, v%d, s[20:23], s%d offen sc1" % (V_PCS[0], V_T, S_CS))
    a("buffer_store_dword v%d, v%d, s[20:23], s%d offen offset:1024 sc1" % (V_PCS[1], V_T, S_CS))
    a("s_branch L_f_syncret")
    a.label("L_f_pk2")
    a("v_lshl_add_u32 v%d, v%d, 5, v%d" % (V_PK, V_T + 1, V_T))
    a("s_add_u32 s%d, s%d, 4096" % (S_DST1, S_DST0))
    for f in range(8):
        for rd in range(2):
            a("ds_read_b64_tr_b16 %s, v%d offset:%d" % (vr(FB[f] + 2 * rd, 2), V_PK, f * 1024 + rd * 512))
    a("s_waitcnt lgkmcnt(0)")
    for f in range(8):
        a("buffer_store_dwordx4 %s, v%d, s[20:23], s%d offen offset:%d sc1" % (vr(FB[f]), V_L16, S_DST0 if f < 4 else S_DST1, (f % 4) * 1024))
    a("s_branch L_f_syncret")
    return name, 256, 0, (256, 512, 163840)


def gen_k35(a, which):
    name = "k3_wo_kernel" if which == 3 else "k5_down_kernel"
    L = "L_k%d_" % which
    kernel_begin(a, name)
    NS = 8 if which == 3 else 28
    STEPS = 32 if which == 3 else 112
    WIN = 8 if which == 3 else 14
    A_BASE = WS_O if which == 3 else WS_A
    W_BASE = WS_WO if which == 3 else WS_WD
    S_WAVE, S_RB, S_CG, S_T0, S_T1 = 24, 25, 26, 27, 28
    S_A = [30, 31]
    S_W = [32, 33]
    S_TB, S_NB = 34, 35
    V_LANE, V_L16, V_T = 1, 2, 3
    V_RES = 12
    V_ACC = [32, 48, 64, 80]
    V_RD = 96
    a("s_cmp_ge_u32 s2, 256")
    a("s_cbranch_scc1 %send" % L)
    a.ts("k%d" % which)
    a("s_load_dwordx2 s[8:9], s[0:1], %d" % ARG_WS)
    a("s_load_dwordx2 s[4:5], s[0:1], %d" % (ARG_X if which == 3 else ARG_OUT))
    a("v_lshrrev_b32 v%d, 6, v0" % V_T)
    a("v_and_b32 v%d, 63, v0" % V_LANE)
    a("v_readfirstlane_b32 s%d, v%d" % (S_WAVE, V_T))
    a("v_lshlrev_b32 v%d, 4, v%d" % (V_L16, V_LANE))
    a("s_and_b32 s%d, s2, 7" % S_RB)
    a("s_lshl_b32 s%d, s%d, 2" % (S_RB, S_RB))
    a("s_lshr_b32 s%d, s2, 3" % S_T0)
    a("s_and_b32 s%d, s%d, 3" % (S_T1, S_T0))
    a("s_add_u32 s%d, s%d, s%d" % (S_RB, S_RB, S_T1))
    a("s_lshr_b32 s%d, s%d, 2" % (S_CG, S_T0))
    a("s_lshr_b32 s%d, s%d, 1" % (S_T0, S_WAVE))
    a("s_lshl_b32 s%d, s%d, 1" % (S_TB, S_RB))
    a("s_add_u32 s%d, s%d, s%d" % (S_TB, S_TB, S_T0))
    a("s_and_b32 s%d, s%d, 1" % (S_T0, S_WAVE))
    a("s_lshl_b32 s%d, s%d, 1" % (S_NB, S_CG))
    a("s_add_u32 s%d, s%d, s%d" % (S_NB, S_NB, S_T0))
    a("s_mul_i32 s%d, s%d, %d" % (S_T1, S_WAVE, NS * 1024))
    for i in range(2):
        a("s_xor_b32 s%d, s%d, %d" % (S_T0, S_TB, i))
        a("s_mul_i32 s%d, s%d, %d" % (S_A[i], S_T0, STEPS * 1024))
        a("s_add_u32 s%d, s%d, s%d" % (S_A[i], S_A[i], S_T1))
        a("s_add_u32 s%d, s%d, %d" % (S_A[i], S_A[i], A_BASE))
        a("s_xor_b32 s%d, s%d, %d" % (S_T0, S_NB, i))
        a("s_mul_i32 s%d, s%d, %d" % (S_W[i], S_T0, STEPS * 1024))
        a("s_add_u32 s%d, s%d, s%d" % (S_W[i], S_W[i], S_T1))
        a("s_add_u32 s%d, s%d, %d" % (S_W[i], S_W[i], W_BASE))
    a("s_waitcnt lgkmcnt(0)")
    srd(a, 20, 8, WS_SIZE)
    srd(a, 12, 4, 2048 * 1024)

    def frag(p, kind, i):
        return (p % WIN) * 16 + kind * 8 + i * 4

    def loads(p):
        out = []
        if p > 0 and p % 4 == 0:
            for s in S_A + S_W:
                out.append("s_add_u32 s%d, s%d, 4096" % (s, s))
        off = (p % 4) * 1024
        for i in range(2):
            out.append("buffer_load_dwordx4 %s, v%d, s[20:23], s%d offen offset:%d" % (ar(frag(p, 0, i)), V_L16, S_A[i], off))
            out.append("buffer_load_dwordx4 %s, v%d, s[20:23], s%d offen offset:%d" % (ar(frag(p, 1, i)), V_L16, S_W[i], off))
        return out

    for p in range(WIN):
        for l in loads(p):
            a(l)
    a("v_and_b32 v%d, 31, v%d" % (V_T, V_LANE))
    a("v_lshlrev_b32 v%d, 10, v%d" % (V_T, V_T))
    a("v_lshrrev_b32 v%d, 5, v%d" % (V_T + 1, V_LANE))
    a("v_lshl_add_u32 v%d, v%d, 3, v%d" % (V_T, V_T + 1, V_T))
    a("s_lshl_b32 s36, s%d, 15" % S_TB)
    a("s_lshl_b32 s%d, s%d, 6" % (S_T0, S_NB))
    a("s_add_u32 s36, s36, s%d" % S_T0)
    a("s_lshl_b32 s37, s%d, 5" % S_TB)
    a("s_lshl_b32 s%d, s%d, 1" % (S_T0, S_NB))
    a("s_add_u32 s37, s37, s%d" % S_T0)
    a("s_lshl_b32 s37, s37, 10")
    a("s_add_u32 s37, s37, %d" % WS_H)
    a.ts("k%d" % which)
    issued = WIN
    NRES = 4 if which == 3 else 2
    res_done = False
    for p in range(NS):
        younger = 4 * (issued - p - 1) + (NRES if res_done else 0)
        a("s_waitcnt vmcnt(%d)" % younger)
        for ti in range(2):
            for ni in range(2):
                acc = V_ACC[ti * 2 + ni]
                a("v_mfma_f32_32x32x16_bf16 %s, %s, %s, %s" % (vr(acc, 16), ar(frag(p, 1, ni)), ar(frag(p, 0, ti)), "0" if p == 0 else vr(acc, 16)))
        if issued < NS:
            for l in loads(issued):
                a(l)
            issued += 1
        elif not res_done:
            if which == 3:
                for q in range(4):
                    a("buffer_load_dwordx2 %s, v%d, s[12:15], s36 offen offset:%d" % (vr(V_RES + 2 * q, 2), V_T, q * 16))
            else:
                for q in range(2):
                    a("buffer_load_dwordx4 %s, v%d, s[20:23], s37 offen offset:%d" % (vr(V_RES + 4 * q), V_L16, q * 1024))
            res_done = True
    a.ts("k%d" % which)
    a("s_nop 7")
    for t in range(1, 4):
        a("s_xor_b32 s%d, s%d, %d" % (S_T0, S_WAVE, t))
        a("s_mul_i32 s%d, s%d, 12288" % (S_T0, S_T0))
        a("v_add_u32 v%d, s%d, v%d" % (V_T + 1 + t, S_T0, V_L16))
    a("s_nop 3")
    for t in range(1, 4):
        for q in range(4):
            a("ds_write_b128 v%d, %s offset:%d" % (V_T + 1 + t, vr(V_ACC[t] + 4 * q), (t - 1) * 4096 + q * 1024))
    a("s_mul_i32 s%d, s%d, 12288" % (S_T0, S_WAVE))
    a("v_add_u32 v%d, s%d, v%d" % (V_T + 1, S_T0, V_L16))
    a("s_waitcnt lgkmcnt(0)")
    a("s_barrier")
    for t in range(3):
        for q in range(4):
            a("ds_read_b128 %s, v%d offset:%d" % (vr(V_RD + 16 * t + 4 * q), V_T + 1, t * 4096 + q * 1024))
    A0 = V_ACC[0]
    U = V_ACC[1]
    a("s_mov_b32 s38, 0xffff0000")
    a("s_waitcnt vmcnt(0)")
    for d in range(8):
        a("v_lshlrev_b32 v%d, 16, v%d" % (U + 2 * d, V_RES + d))
        a("v_and_b32 v%d, s38, v%d" % (U + 2 * d + 1, V_RES + d))
    for i in range(16):
        a("v_add_f32 v%d, v%d, v%d" % (A0 + i, A0 + i, U + i))
    for t in range(3):
        a("s_waitcnt lgkmcnt(%d)" % (8 - 4 * t))
        for i in range(16):
            a("v_add_f32 v%d, v%d, v%d" % (A0 + i, A0 + i, V_RD + 16 * t + i))
    O = V_ACC[2]
    for i in range(8):
        a("v_cvt_pk_bf16_f32 v%d, v%d, v%d" % (O + i, A0 + 2 * i, A0 + 2 * i + 1))
    if which == 3:
        for q in range(2):
            a("buffer_store_dwordx4 %s, v%d, s[20:23], s37 offen offset:%d" % (vr(O + 4 * q), V_L16, q * 1024))
        for d in range(8):
            a("v_lshlrev_b32 v%d, 16, v%d" % (U + 2 * d, O + d))
            a("v_and_b32 v%d, s38, v%d" % (U + 2 * d + 1, O + d))
        S1, S2 = V_RD, V_RD + 1
        a("v_add_f32 v%d, v%d, v%d" % (S1, U, U + 1))
        a("v_mul_f32 v%d, v%d, v%d" % (S2, U, U))
        a("v_fmac_f32 v%d, v%d, v%d" % (S2, U + 1, U + 1))
        for i in range(2, 16):
            a("v_add_f32 v%d, v%d, v%d" % (S1, S1, U + i))
            a("v_fmac_f32 v%d, v%d, v%d" % (S2, U + i, U + i))
        sum_halves(a, S1, V_RD + 2)
        sum_halves(a, S2, V_RD + 3)
        a("s_lshl_b32 s%d, s%d, 4" % (S_T0, S_TB))
        a("s_add_u32 s%d, s%d, s%d" % (S_T0, S_T0, S_NB))
        a("s_lshl_b32 s%d, s%d, 8" % (S_T0, S_T0))
        a("s_add_u32 s%d, s%d, %d" % (S_T0, S_T0, WS_ST))
        a("v_and_b32 v%d, 31, v%d" % (V_T, V_LANE))
        a("v_lshlrev_b32 v%d, 3, v%d" % (V_T, V_T))
        a("buffer_store_dwordx2 %s, v%d, s[20:23], s%d offen" % (vr(S1, 2), V_T, S_T0))
    else:
        for q in range(4):
            a("buffer_store_dwordx2 %s, v%d, s[12:15], s36 offen offset:%d" % (vr(O + 2 * q, 2), V_T, q * 16))
    a.ts_flush("k%d" % which, S_WAVE, V_T)
    a.label(L + "end")
    a("s_endpgm")
    return name, 144, WIN * 16, (256, 256, 49152)


def gen_k4(a):
    name = "k4_glu_kernel"
    kernel_begin(a, name)
    SL4, NS4 = 45056, 3
    S_WAVE, S_RB, S_CG, S_KC, S_SH, S_SW, S_T0, S_T1, S_MASK, S_M0 = 24, 25, 26, 27, 28, 29, 30, 31, 32, 33
    S_TB, S_ROLE, S_M0H = 34, 42, 35
    V_LANE, V_L16, V_T = 1, 2, 3
    V_AW, V_AH = 12, 13
    V_ST = 16
    V_CSL = 32
    V_H = [60, 244]
    V_W = [64, 92]
    V_ACC = [120 + 16 * b for b in range(7)]
    V_TMP = 232
    a("s_cmp_ge_u32 s2, 256")
    a("s_cbranch_scc1 L_k4_end")
    a.ts("k4")
    a("s_load_dwordx2 s[8:9], s[0:1], %d" % ARG_WS)
    a("v_lshrrev_b32 v%d, 6, v0" % V_T)
    a("v_and_b32 v%d, 63, v0" % V_LANE)
    a("v_readfirstlane_b32 s%d, v%d" % (S_ROLE, V_T))
    a("v_lshlrev_b32 v%d, 4, v%d" % (V_L16, V_LANE))
    a("s_and_b32 s3, s2, 7")
    a("s_lshr_b32 s%d, s2, 3" % S_T0)
    a("s_lshr_b32 s%d, s3, 2" % S_RB)
    a("s_lshl_b32 s%d, s%d, 3" % (S_RB, S_RB))
    a("s_and_b32 s%d, s%d, 7" % (S_T1, S_T0))
    a("s_add_u32 s%d, s%d, s%d" % (S_RB, S_RB, S_T1))
    a("s_and_b32 s%d, s3, 3" % S_CG)
    a("s_lshl_b32 s%d, s%d, 2" % (S_CG, S_CG))
    a("s_lshr_b32 s%d, s%d, 3" % (S_T1, S_T0))
    a("s_add_u32 s%d, s%d, s%d" % (S_CG, S_CG, S_T1))
    a("s_and_b32 s%d, s%d, 3" % (S_WAVE, S_ROLE))
    a("s_lshl_b32 s%d, s%d, 2" % (S_TB, S_RB))
    a("s_add_u32 s%d, s%d, s%d" % (S_TB, S_TB, S_WAVE))
    a("s_lshl_b32 s%d, s%d, 12" % (S_M0H, S_WAVE))
    a("s_add_u32 s%d, s%d, 28672" % (S_M0H, S_M0H))
    a("s_cmp_ge_u32 s%d, 4" % S_ROLE)
    a("s_cbranch_scc1 L_k4_compute")
    if K4_ROT:
        a("s_add_u32 s%d, s%d, s%d" % (S_KC, S_RB, S_CG))
        a("s_and_b32 s%d, s%d, 7" % (S_KC, S_KC))
    else:
        a("s_mov_b32 s%d, 0" % S_KC)
    a("s_lshl_b32 s%d, s%d, 15" % (S_SH, S_TB))
    a("s_add_u32 s%d, s%d, %d" % (S_SH, S_SH, WS_H))
    a("s_mul_i32 s%d, s%d, 7168" % (S_M0, S_WAVE))
    a("s_mul_i32 s%d, s%d, %d" % (S_SW, S_CG, 32 * 7 * 1024))
    a("s_add_u32 s%d, s%d, s%d" % (S_SW, S_SW, S_M0))
    a("s_add_u32 s%d, s%d, %d" % (S_SW, S_SW, WS_GU))
    S_OH, S_OW, S_SLOT, S_CNT = 38, 39, 40, 41
    a("s_mov_b32 s%d, 0" % S_SLOT)
    a("s_mov_b32 s%d, 0" % S_CNT)
    a("s_waitcnt lgkmcnt(0)")
    srd(a, 20, 8, WS_SIZE)
    a.label("L_k4_ld")
    a("s_lshl_b32 s%d, s%d, 12" % (S_OH, S_KC))
    a("s_add_u32 s%d, s%d, s%d" % (S_OH, S_OH, S_SH))
    a("s_add_u32 m0, s%d, s%d" % (S_M0H, S_SLOT))
    a("s_mul_i32 s%d, s%d, %d" % (S_OW, S_KC, SLOT))
    for q in range(4):
        a("buffer_load_dwordx4 v%d, s[20:23], s%d offen offset:%d lds" % (V_L16, S_OH, q * 1024))
    a("s_add_u32 m0, s%d, s%d" % (S_M0, S_SLOT))
    a("s_add_u32 s%d, s%d, s%d" % (S_OW, S_OW, S_SW))
    for q in range(4):
        a("buffer_load_dwordx4 v%d, s[20:23], s%d offen offset:%d lds" % (V_L16, S_OW, q * 1024))
    a("s_add_u32 m0, m0, 4096")
    a("s_add_u32 s%d, s%d, 4096" % (S_OW, S_OW))
    for q in range(3):
        a("buffer_load_dwordx4 v%d, s[20:23], s%d offen offset:%d lds" % (V_L16, S_OW, q * 1024))
    a("s_add_u32 s%d, s%d, 1" % (S_KC, S_KC))
    a("s_and_b32 s%d, s%d, 7" % (S_KC, S_KC))
    a("s_add_u32 s%d, s%d, %d" % (S_SLOT, S_SLOT, SL4))
    a("s_cmp_eq_u32 s%d, %d" % (S_SLOT, NS4 * SL4))
    a("s_cselect_b32 s%d, 0, s%d" % (S_SLOT, S_SLOT))
    a("s_add_u32 s%d, s%d, 1" % (S_CNT, S_CNT))
    a("s_cmp_lt_u32 s%d, 2" % S_CNT)
    a("s_cbranch_scc1 L_k4_ld")
    a("s_waitcnt vmcnt(11)")
    a("s_barrier")
    a("s_cmp_lt_u32 s%d, 8" % S_CNT)
    a("s_cbranch_scc1 L_k4_ld")
    a("s_waitcnt vmcnt(0)")
    a("s_barrier")
    a("s_endpgm")
    a.label("L_k4_compute")
    a("s_mov_b32 s%d, 0xffff0000" % S_MASK)
    a("v_mov_b32 v%d, v%d" % (V_AW, V_L16))
    a("v_add_u32 v%d, s%d, v%d" % (V_AH, S_M0H, V_L16))
    a("v_and_b32 v%d, 31, v%d" % (V_T, V_LANE))
    a("v_lshlrev_b32 v%d, 3, v%d" % (V_T, V_T))
    a("v_lshrrev_b32 v%d, 5, v%d" % (V_T + 1, V_LANE))
    a("v_lshl_add_u32 v%d, v%d, 11, v%d" % (V_T, V_T + 1, V_T))
    a("s_waitcnt lgkmcnt(0)")
    srd(a, 20, 8, WS_SIZE)
    cur_base = [0]

    def reads(P):
        st, pos = P // 4, P % 4
        base = (st % NS4) * SL4
        out = []
        if base != cur_base[0]:
            d = base - cur_base[0]
            for r in (V_AW, V_AH):
                out.append("v_add_u32 v%d, %d, v%d" % (r, d, r) if d > 0 else "v_subrev_u32 v%d, %d, v%d" % (r, -d, r))
            cur_base[0] = base
        b = P % 2
        out.append("ds_read_b128 %s, v%d offset:%d" % (vr(V_H[b]), V_AH, pos * 1024))
        for blk in range(7):
            out.append("ds_read_b128 %s, v%d offset:%d" % (vr(V_W[b] + 4 * blk), V_AW, (pos * 7 + blk) * 1024))
        return out

    extra = {}
    g = ["s_lshl_b32 s%d, s%d, 12" % (S_T0, S_TB), "s_add_u32 s%d, s%d, %d" % (S_T0, S_T0, WS_ST)]
    for i in range(8):
        g.append("buffer_load_dwordx2 %s, v%d, s[20:23], s%d offen offset:%d" % (vr(V_ST + 2 * i, 2), V_T, S_T0, i * 256))
    extra[8], extra[9], extra[10] = g[:4], g[4:7], g[7:]
    g = ["s_mul_i32 s%d, s%d, 7168" % (S_T0, S_CG), "s_add_u32 s%d, s%d, %d" % (S_T0, S_T0, WS_CS), "s_add_u32 s%d, s%d, 4096" % (S_T1, S_T0)]
    for blk in range(7):
        g.append("buffer_load_dwordx4 %s, v%d, s[20:23], s%d offen offset:%d" % (vr(V_CSL + 4 * blk), V_L16, S_T0 if blk < 4 else S_T1, (blk % 4) * 1024))
    extra[12], extra[13], extra[14] = g[:5], g[5:8], g[8:]
    a.ts("k4")
    a("s_barrier")
    a.ts("k4")
    for l in reads(0):
        a(l)
    for P in range(32):
        st, pos = P // 4, P % 4
        b = P % 2
        a("s_waitcnt lgkmcnt(0)")
        if pos == 3 and P < 31:
            a("s_barrier")
        rd = reads(P + 1) if P < 31 else []
        m = []
        for blk in range(7):
            m.append("v_mfma_f32_32x32x16_bf16 %s, %s, %s, %s" % (vr(V_ACC[blk], 16), vr(V_W[b] + 4 * blk), vr(V_H[b]), "0" if P == 0 else vr(V_ACC[blk], 16)))
        for l in interleave(m, rd + extra.get(P, []), per=2):
            a(l)
    a.ts("k4")
    a("s_waitcnt vmcnt(0)")
    S1, S2 = V_T + 2, V_T + 3
    a("v_add_f32 v%d, v%d, v%d" % (S1, V_ST, V_ST + 2))
    a("v_add_f32 v%d, v%d, v%d" % (S2, V_ST + 1, V_ST + 3))
    for i in range(2, 8):
        a("v_add_f32 v%d, v%d, v%d" % (S1, S1, V_ST + 2 * i))
        a("v_add_f32 v%d, v%d, v%d" % (S2, S2, V_ST + 2 * i + 1))
    sum_halves(a, S1, V_T + 4)
    sum_halves(a, S2, V_T + 4)
    V_MU, V_VAR, V_RS, V_C1, V_C2 = V_T + 4, V_T + 5, V_T + 6, V_T + 7, V_T + 8
    a("v_mul_f32 v%d, 0x%x, v%d" % (V_MU, f32bits(1.0 / 512), S1))
    a("v_mul_f32 v%d, 0x%x, v%d" % (V_VAR, f32bits(1.0 / 512), S2))
    a("v_fma_f32 v%d, -v%d, v%d, v%d" % (V_VAR, V_MU, V_MU, V_VAR))
    a("v_max_f32 v%d, 0, v%d" % (V_VAR, V_VAR))
    a("v_add_f32 v%d, 0x%x, v%d" % (V_VAR, f32bits(1e-5), V_VAR))
    a("v_rsq_f32 v%d, v%d" % (V_RS, V_VAR))
    a("v_sub_f32 v%d, 0, v%d" % (V_MU, V_MU))
    VB = V_ST
    split_hi_lo_B(a, V_MU, VB, V_T, S_MASK)
    c1 = -2.0 * math.sqrt(2.0 / math.pi) * math.log2(math.e)
    a("v_mul_f32 v%d, 0x%x, v%d" % (V_C1, f32bits(c1), V_RS))
    a("v_mul_f32 v%d, v%d, v%d" % (V_C2, V_RS, V_RS))
    a("v_mul_f32 v%d, v%d, v%d" % (V_C2, V_C2, V_C1))
    a("v_mul_f32 v%d, 0x%x, v%d" % (V_C2, f32bits(0.044715), V_C2))
    for blk in range(7):
        c = V_CSL + 4 * blk
        a("v_add_f32 v%d, v%d, v%d" % (c, c, c + 1))
        a("v_add_f32 v%d, v%d, v%d" % (c + 2, c + 2, c + 3))
        a("v_add_f32 v%d, v%d, v%d" % (c, c, c + 2))
        split_hi_lo_A(a, c, V_W[0] + 4 * blk, V_T, S_MASK)
    a("s_nop 1")
    for blk in range(7):
        a("v_mfma_f32_32x32x16_bf16 %s, %s, %s, %s" % (vr(V_ACC[blk], 16), vr(V_W[0] + 4 * blk), vr(VB), vr(V_ACC[blk], 16)))
    a("s_mul_i32 s%d, s%d, 112" % (S_T0, S_TB))
    a("s_mul_i32 s%d, s%d, 7" % (S_T1, S_CG))
    a("s_add_u32 s%d, s%d, s%d" % (S_T0, S_T0, S_T1))
    a("s_lshl_b32 s%d, s%d, 10" % (S_T0, S_T0))
    a("s_add_u32 s%d, s%d, %d" % (S_T0, S_T0, WS_A))
    a("s_add_u32 s%d, s%d, 4096" % (S_T1, S_T0))
    a("s_nop 7")
    for blk in range(7):
        G = V_ACC[blk]
        Uu = G + 8
        T = V_TMP
        for i in range(8):
            a("v_mul_f32 v%d, v%d, v%d" % (T + i, G + i, G + i))
        for i in range(8):
            a("v_fma_f32 v%d, v%d, v%d, v%d" % (T + i, T + i, V_C2, V_C1))
        for i in range(8):
            a("v_mul_f32 v%d, v%d, v%d" % (T + i, T + i, G + i))
        for i in range(8):
            a("v_exp_f32 v%d, v%d" % (T + i, T + i))
        for i in range(8):
            a("v_mul_f32 v%d, v%d, v%d" % (G + i, G + i, Uu + i))
        for i in range(8):
            a("v_fma_f32 v%d, v%d, v%d, v%d" % (T + i, T + i, V_VAR, V_VAR))
        for i in range(8):
            a("v_rcp_f32 v%d, v%d" % (T + i, T + i))
        a("s_nop 0")
        for i in range(8):
            a("v_mul_f32 v%d, v%d, v%d" % (G + i, G + i, T + i))
        o = V_TMP + 8 + 4 * (blk % 4)
        for i in range(4):
            a("v_cvt_pk_bf16_f32 v%d, v%d, v%d" % (o + i, G + 2 * i, G + 2 * i + 1))
        a("buffer_store_dwordx4 %s, v%d, s[20:23], s%d offen offset:%d" % (vr(o), V_L16, S_T0 if blk < 4 else S_T1, (blk % 4) * 1024))
    a.ts_flush("k4", S_WAVE, V_T)
    a.label("L_k4_end")
    a("s_endpgm")
    return name, 256, 0, (256, 512, NS4 * SL4)


def main():
    hdr = open("cdna_kernels/%s.s.ref" % NAME).read().split("\n")
    head = [l for l in hdr if l.startswith(";") and "@launch" not in l and "Override launch" not in l and "grid=ceil" not in l]
    a = Asm()
    ks = []
    ks.append(gen_f(a))
    out = "\n".join(head) + "\n"
    for name, nv, na, (g, b, lds) in ks:
        out += "; @launch grid=(%d,1,1) block=(%d,1,1) lds=%d\n" % (g, b, lds)
    out += '.amdgcn_target "amdgcn-amd-amdhsa--gfx950"\n.text\n'
    out += a.text()
    out += '.section .rodata,"a"\n'
    for name, nv, na, _ in ks:
        out += kernel_desc(name, nv, na)
    path = sys.argv[1] if len(sys.argv) > 1 else "cdna_kernels/%s.s" % NAME
    open(path, "w").write(out)


if __name__ == "__main__":
    main()
```
